```python
import torch

def _softmax(x, axis=-1):
    return torch.softmax(x, dim=axis)
def _gelu(x):
    return torch.nn.functional.gelu(x, approximate="tanh")
def _silu(x):
    return torch.nn.functional.silu(x)
def _sigmoid(x):
    return torch.sigmoid(x)
def _layernorm(x, axis=-1, eps=1e-5):
    m = x.mean(dim=axis, keepdim=True)
    v = x.var(dim=axis, keepdim=True, unbiased=False)
    return (x - m) / torch.sqrt(v + eps)
def _scatter_add(tgt, idx, src, axis=0):
    return tgt.clone().index_add_(axis, idx, src)
def _segment_sum(src, seg, n):
    out = torch.zeros((n,) + src.shape[1:], dtype=src.dtype)
    return out.index_add_(0, seg, src)
def _pad(x, pw):
    flat = tuple(v for pair in reversed(pw) for v in pair)
    return torch.nn.functional.pad(x, flat)

kernel_name = 'concat_heads__linear_kernel_hedgehog__ssm_conv_h3__prompt'

def setup_inputs():

    _w = (lambda a: (lambda t: t.to(torch.bfloat16) if t.is_floating_point() else t)(torch.as_tensor(a)))
    def _A_setup():
        B, S, D, H = 1, 2048, 640, 32
        Dh = D // H
        return {
            "x": _w((lambda *s: torch.randn(*s, dtype=torch.bfloat16) * 0.4)(B, S, D)),
            "wqkv": _w((lambda *s: torch.randn(*s, dtype=torch.bfloat16) * 0.4)(D, 3 * D)),
            "w_phi": _w((lambda *s: torch.randn(*s, dtype=torch.bfloat16) * 0.4)(H, Dh, Dh) * (Dh ** -0.5)),
            "wo": _w((lambda *s: torch.randn(*s, dtype=torch.bfloat16) * 0.05)(D, D)),
        }
    _A_in = _A_setup()

    def _B_setup():
        B, S, D = 1, 2048, 640
        ks = 4
        return {
            "q": _w((lambda *s: torch.randn(*s, dtype=torch.bfloat16) * 0.05)(B, S, D)),
            "k": _w((lambda *s: torch.randn(*s, dtype=torch.bfloat16) * 0.8)(B, S, D)),
            "v": _w((lambda *s: torch.randn(*s, dtype=torch.bfloat16) * 0.8)(B, S, D)),
            "shift_k": _w((lambda *s: torch.randn(*s, dtype=torch.bfloat16) * 0.8)(D, ks) * 0.5),
            "ssm_k": _w((lambda *s: torch.randn(*s, dtype=torch.bfloat16) * 0.8)(D, S) * (1.0 / S ** 0.5)),
            "ssm_D": _w((lambda *s: torch.randn(*s, dtype=torch.bfloat16) * 0.8)(D)),
        }
    _B_in = _B_setup()

    return {
        "A_x": _A_in["x"],
        "A_wqkv": _A_in["wqkv"],
        "A_w_phi": _A_in["w_phi"],
        "A_wo": _A_in["wo"],
        "B_q": _B_in["q"],
        "B_k": _B_in["k"],
        "B_v": _B_in["v"],
        "B_shift_k": _B_in["shift_k"],
        "B_ssm_k": _B_in["ssm_k"],
        "B_ssm_D": _B_in["ssm_D"],
    }

def reference(A_x, A_wqkv, A_w_phi, A_wo, B_q, B_k, B_v, B_shift_k, B_ssm_k, B_ssm_D):
    def _A_ref(x, wqkv, w_phi, wo):
        B, S, D = x.shape
        H = 32; Dh = D // H
        qkv = (lambda x, *d: x.permute(*d))((x @ wqkv).reshape(B, S, 3, H, Dh), 2, 0, 3, 1, 4)
        q, k, v = qkv[0], qkv[1], qkv[2]
        pq = torch.einsum("bhsd,hdf->bhsf", q, w_phi)
        pk = torch.einsum("bhsd,hdf->bhsf", k, w_phi)
        phi_q = torch.concatenate([_softmax(pq, axis=-1), _softmax(-pq, axis=-1)], axis=-1)
        phi_k = torch.concatenate([_softmax(pk, axis=-1), _softmax(-pk, axis=-1)], axis=-1)
        kv = torch.einsum("bhsf,bhsd->bhfd", phi_k, v)
        z  = torch.einsum("bhsf->bhf", phi_k)
        num = torch.einsum("bhqf,bhfd->bhqd", phi_q, kv)
        den = torch.einsum("bhqf,bhf->bhq", phi_q, z)[..., None] + 1e-6
        o = num / den
        return (lambda x, *d: x.permute(*d))(o, 0, 2, 1, 3).reshape(B, S, D) @ wo

    def _B_ref(q, k, v, shift_k, ssm_k, ssm_D):
        B, S, D = q.shape
        ks = shift_k.shape[-1]
        k_pad = _pad(k, ((0, 0), (ks - 1, 0), (0, 0)))
        k_shift = torch.zeros_like(k)
        for t in range(ks):
            k_shift = k_shift + k_pad[:, t:t + S, :] * shift_k[:, ks - 1 - t][None, None, :]
        kv = k_shift * v
        L = 2 * S
        kv_pad = _pad(kv, ((0, 0), (0, S), (0, 0)))
        kf_pad = _pad(ssm_k, ((0, 0), (0, S)))
        kv_f = (lambda x, axes=(-2,-1): torch.fft.rfft2(x.float(), dim=axes))(kv_pad[:, None, :, :], axes=(1, 2))
        kf_f = (lambda x, axes=(-2,-1): torch.fft.rfft2(x.float(), dim=axes))(kf_pad[:, None, :], axes=(1, 2))
        kf_f = (lambda x, *d: x.permute(*d))(kf_f, 1, 2, 0)
        y_f = kv_f * kf_f[None, :, :, :]
        y = (lambda x, s, axes=(-2,-1): torch.fft.irfft2(x, s=s, dim=axes).to(torch.bfloat16))(y_f, (1, L), axes=(1, 2))[:, 0, :S, :]
        y = y + kv * ssm_D[None, None, :]
        return q * y

    a = _A_ref(A_x, A_wqkv, A_w_phi, A_wo)
    b = _B_ref(B_q, B_k, B_v, B_shift_k, B_ssm_k, B_ssm_D)
    return torch.concatenate([a, b], axis=-1)
```

```python
import re

_TRANS = ("v_exp_f32", "v_log_f32", "v_rcp_f32", "v_rsq_f32", "v_sqrt_f32", "v_sin_f32", "v_cos_f32")


def _regs(tok):
    tok = tok.strip()
    neg = tok.lstrip("-")
    m = re.fullmatch(r"(?:abs\()?([vas])(\d+)\)?", neg)
    if m:
        return [m.group(1) + m.group(2)]
    m = re.fullmatch(r"([vas])\[(\d+):(\d+)\]", neg)
    if m:
        return [m.group(1) + str(i) for i in range(int(m.group(2)), int(m.group(3)) + 1)]
    if tok in ("vcc", "exec", "m0", "scc"):
        return [tok]
    if tok in ("vcc_lo", "vcc_hi"):
        return ["vcc"]
    if tok in ("exec_lo", "exec_hi"):
        return ["exec"]
    return []


class Ins:
    __slots__ = ("text", "op", "kind", "w", "r", "states", "mf", "dpp")

    def __init__(self, text):
        self.text = text
        self.mf = None
        self.dpp = None
        t = text.split(";")[0].strip()
        self.states = 1
        self.w, self.r = [], []
        if not t or t.endswith(":") or t.startswith("."):
            self.op, self.kind, self.states = "", "none", 0
            return
        parts = t.split(None, 1)
        op = parts[0]
        self.op = op
        rest = parts[1] if len(parts) > 1 else ""
        ops, depth, cur = [], 0, ""
        for ch in rest:
            if ch in "[(":
                depth += 1
            if ch in "])":
                depth -= 1
            if ch == "," and depth == 0:
                ops.append(cur.strip()); cur = ""
            else:
                cur += ch
        if cur.strip():
            ops.append(cur.strip())
        mods = ""
        if ops:
            last = ops[-1].split(None, 1)
            ops[-1] = last[0]
            mods = last[1] if len(last) > 1 else ""
        R = [_regs(o) for o in ops]
        flat = lambda L: [x for l in L for x in l]
        if op == "s_nop":
            self.kind, self.states = "nop", int(ops[0], 0) + 1
        elif op.startswith("v_mfma"):
            self.kind = "mfma"
            self.w = R[0]
            self.r = flat(R[1:])
            passes = 8 if "32x32" in op else 4
            self.mf = (passes, R[0], R[1] + R[2], R[3])
        elif op.startswith("v_"):
            self.kind = "valu"
            base = op.replace("_e32", "").replace("_e64", "")
            if base.startswith("v_permlane"):
                self.w = R[0] + R[1]; self.r = R[0] + R[1]
            elif base.startswith("v_cmp"):
                self.w = R[0]; self.r = flat(R[1:])
            elif base.startswith(("v_add_co", "v_sub_co", "v_addc_co", "v_subb_co")):
                self.w = R[0] + R[1]; self.r = flat(R[2:])
            else:
                self.w = R[0]; self.r = flat(R[1:])
                if base.startswith(("v_fmac", "v_writelane", "v_dot2c")) or "_dpp" in base:
                    self.r = self.r + R[0]
            if "_dpp" in base:
                self.dpp = R[1]
        elif op.startswith("ds_"):
            self.kind = "ds"
            if op.startswith(("ds_read", "ds_bpermute", "ds_permute", "ds_swizzle")) or "_rtn" in op:
                self.w = R[0]; self.r = flat(R[1:])
            else:
                self.r = flat(R)
        elif op.startswith(("buffer_", "global_")):
            self.kind = "vmem"
            allmods = mods.split()
            if op in ("buffer_wbl2", "buffer_inv"):
                pass
            elif "lds" in allmods or "_lds_" in op:
                self.kind = "dma"; self.r = flat(R) + ["m0"]
            elif "_load" in op:
                self.w = R[0]; self.r = flat(R[1:])
            elif "_atomic" in op and "sc0" in allmods:
                self.w = R[0]; self.r = flat(R)
            else:
                self.r = flat(R)
                if op.endswith(("x3", "x4")):
                    self.kind = "wstore"
                    self.dpp = R[0] if op.startswith("buffer") else R[1]
        elif op.startswith("s_"):
            self.kind = "salu"
            if op.startswith(("s_cmp", "s_cbranch", "s_branch", "s_waitcnt", "s_barrier", "s_endpgm", "s_sleep", "s_setprio", "s_bitcmp")):
                self.r = flat(R)
            else:
                self.w = R[0] if R else []
                self.r = flat(R[1:])
        else:
            raise ValueError("unknown instruction: " + text)


def need(p, c):
    n = 0
    pw, cr, cw = set(p.w), set(c.r), set(c.w)
    isv = lambda s: {x for x in s if x[0] in "va" and x != "vcc"}
    iss = lambda s: {x for x in s if x[0] == "s" or x == "vcc"}
    if p.kind == "valu":
        vw = isv(pw)
        if c.kind == "mfma" and vw & cr:
            n = max(n, 2)
        if c.kind == "valu":
            b = c.op
            if b.startswith("v_permlane") and vw & cr:
                n = max(n, 2)
            if c.dpp and vw & cr:
                n = max(n, 2)
            if b.startswith(("v_readlane", "v_readfirstlane")) and vw & cr:
                n = max(n, 1)
            if p.op.replace("_e32", "").replace("_e64", "") in _TRANS and vw & cr:
                n = max(n, 1)
            if iss(pw) & cr:
                n = max(n, 4 if b.startswith(("v_readlane", "v_writelane")) else 2)
        if c.kind in ("vmem", "dma", "wstore") and iss(pw) & cr:
            n = max(n, 5)
        if c.kind == "salu" and iss(pw) & cr:
            n = max(n, 1)
    if p.kind == "mfma":
        passes, D, AB, C = p.mf
        D = set(D)
        big = 12 if passes == 8 else 8
        if c.kind == "mfma":
            cp, cD, cAB, cC = c.mf
            if D & set(cAB):
                n = max(n, big)
            if D & set(cC):
                if not (list(p.mf[1]) == list(cC) and cp == passes):
                    n = max(n, big - 2)
            elif D & set(cD):
                n = max(n, big)
        elif c.kind in ("valu", "ds", "vmem", "wstore", "dma"):
            if D & (cr | cw):
                n = max(n, big)
            if c.kind == "valu" and set(C) & cw:
                n = max(n, 7 if passes == 8 else 3)
    if p.kind == "salu" and "m0" in pw and c.kind == "dma":
        n = max(n, 1)
    if p.kind == "wstore" and set(p.dpp) & cw:
        n = max(n, 2)
    if c.dpp and c.kind == "valu" and p.kind in ("ds", "vmem") and False:
        pass
    return n


class Asm:
    def __init__(self):
        self.ins = []
        self.nlab = 0

    def __call__(self, text):
        for line in text.split("\n"):
            line = line.strip()
            if line:
                self._emit(Ins(line))

    def _emit(self, c):
        if c.kind not in ("none", "nop"):
            dist, short = 0, 0
            for p in reversed(self.ins):
                if dist >= 20:
                    break
                if p.kind not in ("none", "nop"):
                    short = max(short, need(p, c) - dist)
                dist += p.states
            while short > 0:
                k = min(short, 16)
                self.ins.append(Ins(f"s_nop {k-1}"))
                short -= k
        self.ins.append(c)

    def label(self, name):
        self.ins.append(Ins(name + ":"))

    def newlabel(self, stem="L"):
        self.nlab += 1
        return f"{stem}_{self.nlab}"

    def raw(self, text):
        i = Ins(""); i.text = text
        self.ins.append(i)

    def mark(self):
        return len(self.ins)

    def check_seam(self, tail_end, head_start):
        tail = self.ins[max(0, tail_end - 40):tail_end]
        head = self.ins[head_start:head_start + 40]
        seq = tail + head
        for j in range(len(tail), len(seq)):
            c = seq[j]
            if c.kind in ("none", "nop"):
                continue
            dist = 0
            for i in range(j - 1, -1, -1):
                p = seq[i]
                if p.kind not in ("none", "nop") and i < len(tail) and need(p, c) > dist:
                    raise RuntimeError(f"seam hazard: {p.text} -> {c.text} need {need(p,c)} have {dist}")
                dist += p.states

    def text(self):
        out = []
        for i in self.ins:
            t = i.text
            out.append(t if (t.endswith(":") or t.startswith(".") or t.startswith(";")) else "    " + t)
        return "\n".join(out) + "\n"


def vr(b, n=1, f="v"):
    return f"{f}{b}" if n == 1 else f"{f}[{b}:{b+n-1}]"


def ar(b, n=1):
    return vr(b, n, "a")


def sr(b, n=1):
    return vr(b, n, "s")
```

```python
from asm import Asm, vr, ar, sr

WS_PHIQ = 0x0
WS_PART = 0x500000
WS_O    = 0x780000
WS_KVT  = 0xA00000
WS_YT   = 0xC80000
WS_STAMP = 0x1000000
WS_SIZE = 0x1100000

S_X, S_W, S_WPHI, S_WO, S_BQ, S_BK, S_BV, S_SH, S_SSK, S_SSD, S_OUT, S_DBG, S_WS = range(4, 30, 2)
NB_X = 2048 * 640 * 2
NB_W = 640 * 1920 * 2
NB_WPHI = 32 * 800
NB_WO = 640 * 640 * 2
NB_SH = 640 * 8
NB_SSK = 640 * 4096
NB_OUT = 2048 * 1280 * 2

LOG2E = 0x3fb8aa3b


class Ctx:
    stamps = False
    nstamp = 0


def load_kernargs(A):
    A("s_load_dwordx16 s[4:19], s[0:1], 0")
    A("s_load_dwordx8 s[20:27], s[0:1], 64")
    A("s_load_dwordx2 s[28:29], s[0:1], 96")


def srd(A, d, base, nbytes):
    A(f"s_mov_b32 s{d}, s{base}")
    A(f"s_mov_b32 s{d+1}, s{base+1}")
    A(f"s_mov_b32 s{d+2}, {nbytes:#x}")
    A(f"s_mov_b32 s{d+3}, 0x20000")


def stamp(A, k, real=False):
    if not Ctx.stamps:
        return
    A(f"s_mem{'real' if real else ''}time s[{64+2*k}:{65+2*k}]")


def stamp_flush(A, kern, srd_ws):
    if not Ctx.stamps:
        return
    stamp(A, 15, True)
    A("s_waitcnt lgkmcnt(0)")
    A("s_mov_b64 exec, -1")
    A("v_mbcnt_lo_u32_b32 v1, -1, 0")
    A("v_mbcnt_hi_u32_b32 v1, -1, v1")
    A("v_mov_b32 v2, 0")
    for k in range(16):
        A(f"v_mov_b32 v3, s{64+2*k}")
        A(f"v_cmp_eq_u32 vcc, {k}, v1")
        A("v_cndmask_b32 v2, v2, v3, vcc")
    A(f"s_add_u32 s62, s2, {kern*512}")
    A("s_lshl_b32 s62, s62, 2")
    A("s_add_u32 s62, s62, s48")
    A("s_lshl_b32 s62, s62, 6")
    A(f"s_add_u32 s62, s62, {WS_STAMP:#x}")
    A("v_lshlrev_b32 v1, 2, v1")
    A("s_mov_b64 exec, 0xffff")
    A(f"buffer_store_dword v2, v1, s[{srd_ws}:{srd_ws+3}], s62 offen")


def stamp_init(A):
    if not Ctx.stamps:
        return
    for k in range(16):
        A(f"s_mov_b64 s[{64+2*k}:{65+2*k}], 0")
    stamp(A, 0, True)
    stamp(A, 1)


def wave_id(A):
    A("v_lshrrev_b32 v2, 6, v0")
    A("v_and_b32 v1, 63, v0")
    A("v_readfirstlane_b32 s48, v2")


def softmax20(A, X, E, F, T, PH):
    mx, mn = T, T + 2
    A(f"v_max3_f32 v{mx}, v{X}, v{X+1}, v{X+2}")
    A(f"v_min3_f32 v{mn}, v{X}, v{X+1}, v{X+2}")
    for i in range(3, 19, 2):
        A(f"v_max3_f32 v{mx}, v{mx}, v{X+i}, v{X+i+1}")
        A(f"v_min3_f32 v{mn}, v{mn}, v{X+i}, v{X+i+1}")
    A(f"v_max_f32 v{mx}, v{mx}, v{X+19}")
    A(f"v_min_f32 v{mn}, v{mn}, v{X+19}")
    A(f"v_mul_f32 v{mx}, s60, v{mx}")
    A(f"v_mul_f32 v{mn}, s60, v{mn}")
    for i in range(0, 20, 2):
        A(f"v_pk_fma_f32 {vr(E+i,2)}, {vr(X+i,2)}, s[60:61], {vr(mx,2)} op_sel_hi:[1,1,0] neg_lo:[0,0,1] neg_hi:[0,0,1]")
        A(f"v_pk_fma_f32 {vr(F+i,2)}, {vr(X+i,2)}, s[60:61], {vr(mn,2)} op_sel_hi:[1,1,0] neg_lo:[1,0,0] neg_hi:[1,0,0]")
    for i in range(20):
        A(f"v_exp_f32 v{E+i}, v{E+i}")
        A(f"v_exp_f32 v{F+i}, v{F+i}")
    se, sf = T + 4, T + 6
    A(f"v_pk_add_f32 {vr(se,2)}, {vr(E,2)}, {vr(E+2,2)}")
    A(f"v_pk_add_f32 {vr(sf,2)}, {vr(F,2)}, {vr(F+2,2)}")
    for i in range(4, 20, 2):
        A(f"v_pk_add_f32 {vr(se,2)}, {vr(se,2)}, {vr(E+i,2)}")
        A(f"v_pk_add_f32 {vr(sf,2)}, {vr(sf,2)}, {vr(F+i,2)}")
    A(f"v_add_f32 v{se}, v{se}, v{se+1}")
    A(f"v_add_f32 v{sf}, v{sf}, v{sf+1}")
    A(f"v_rcp_f32 v{se}, v{se}")
    A(f"v_rcp_f32 v{sf}, v{sf}")
    for i in range(0, 20, 2):
        A(f"v_pk_mul_f32 {vr(E+i,2)}, {vr(E+i,2)}, {vr(se,2)} op_sel_hi:[1,0]")
        A(f"v_pk_mul_f32 {vr(F+i,2)}, {vr(F+i,2)}, {vr(sf,2)} op_sel_hi:[1,0]")
    for i in range(0, 20, 2):
        A(f"v_cvt_pk_bf16_f32 v{PH+i//2}, v{E+i}, v{E+i+1}")
    for i in range(0, 20, 2):
        A(f"v_cvt_pk_bf16_f32 v{PH+10+i//2}, v{F+i}, v{F+i+1}")


SLOT = 36864
L_WP = 147456
L_Z = L_WP + 8192
L_PHI = 73728
L_V = L_PHI + 128 * 336


def role_gemm(A, kern):
    SX, SW, SP, SWS = 32, 36, 40, 44
    VX = 2
    VW = 6
    XA = 144
    WA = 152
    AD = 154
    ACC = 16
    WF = (96, 116)
    XF = (136, 140)
    t0, t1, t2, t3 = 11, 12, 13, 14
    wave_id(A)
    A(f"v_lshrrev_b32 v{t0}, 3, v1")
    A(f"v_mul_u32_u24 v{t0}, 1280, v{t0}")
    A(f"v_lshrrev_b32 v{t1}, 4, v1")
    A(f"v_and_b32 v{t2}, 7, v1")
    A(f"v_xor_b32 v{t1}, v{t1}, v{t2}")
    A(f"v_xor_b32 v{t2}, 4, v{t1}")
    A(f"v_lshl_add_u32 v{VX}, v{t1}, 4, v{t0}")
    A(f"v_lshl_add_u32 v{VX+1}, v{t2}, 4, v{t0}")
    A(f"v_add_u32 v{VX+2}, {2*(8*1280-1024)}, v{VX}")
    A(f"v_add_u32 v{VX+3}, {3*(8*1280-1024)}, v{VX+1}")
    A(f"v_add_u32 v{VX+1}, {8*1280-1024}, v{VX+1}")
    A("s_cmp_eq_u32 s51, 0")
    A("s_cselect_b32 s56, 1120, 0")
    for i in range(5):
        A(f"v_add_u32 v{t0}, {64*i}, v1")
        A(f"v_mul_u32_u24 v{t1}, 3277, v{t0}")
        A(f"v_lshrrev_b32 v{t1}, 16, v{t1}")
        A(f"v_mul_u32_u24 v{t2}, 20, v{t1}")
        A(f"v_sub_u32 v{t0}, v{t0}, v{t2}")
        A(f"v_mul_u32_u24 v{t1}, 3840, v{t1}")
        A(f"v_lshl_add_u32 v{t1}, v{t0}, 4, v{t1}")
        A(f"v_add_u32 v{t2}, s56, v{t1}")
        A(f"v_cmp_lt_u32 vcc, 9, v{t0}")
        A(f"v_cndmask_b32 v{VW+i}, v{t1}, v{t2}, vcc")
        if i & 3:
            A(f"v_subrev_u32 v{VW+i}, {1024*(i&3)}, v{VW+i}")
    A("s_lshl_b32 s52, s49, 2")
    A("s_add_u32 s52, s52, s48")
    A(f"s_mul_i32 s52, s52, {32*1280}")
    A(f"s_mul_i32 s53, s48, {16*3840}")
    A("s_mul_i32 s57, s50, 160")
    A("s_add_u32 s58, s57, 1280")
    A("s_lshl_b32 s57, s57, 1")
    A("s_cmp_eq_u32 s51, 0")
    A("s_cselect_b32 s57, s58, s57")
    A("s_add_u32 s53, s53, s57")
    A("s_lshl_b32 s54, s48, 12")
    A(f"s_mul_i32 s55, s48, 5120")
    A(f"s_add_u32 s55, s55, 16384")
    A("s_mul_i32 s57, s50, 3200")
    A("s_lshl_b32 s57, s57, s51")
    A("s_lshl_b32 s58, s48, 11")
    A("s_add_u32 s57, s57, s58")
    A(f"v_lshlrev_b32 v{t3}, 4, v1")
    A("s_waitcnt lgkmcnt(0)")
    srd(A, SX, S_X, NB_X)
    srd(A, SW, S_W, NB_W)
    srd(A, SP, S_WPHI, NB_WPHI)

    def dma_stage(s):
        sl = (s % 4) * SLOT
        g = []
        g.append([f"s_add_u32 m0, s54, {sl}", f"buffer_load_dwordx4 v{VX}, s[{SX}:{SX+3}], s52 offen lds"])
        for i in range(1, 4):
            g.append([f"buffer_load_dwordx4 v{VX+i}, s[{SX}:{SX+3}], s52 offen offset:{1024*i} lds"])
        g[-1].append("s_add_u32 s52, s52, 128")
        g.append([f"s_add_u32 m0, s55, {sl}", f"buffer_load_dwordx4 v{VW}, s[{SW}:{SW+3}], s53 offen lds"])
        for i in range(1, 4):
            g.append([f"buffer_load_dwordx4 v{VW+i}, s[{SW}:{SW+3}], s53 offen offset:{1024*i} lds"])
        g.append([f"s_add_u32 m0, s55, {sl+4096}", f"buffer_load_dwordx4 v{VW+4}, s[{SW}:{SW+3}], s53 offen lds",
                  f"s_add_u32 s53, s53, {64*3840}"])
        return g

    for s in range(4):
        for grp in dma_stage(s):
            for i in grp:
                A(i)
        if s == 0:
            A(f"s_add_u32 m0, s58, {L_WP}")
            A(f"buffer_load_dwordx4 v{t3}, s[{SP}:{SP+3}], s57 offen lds")
            A(f"buffer_load_dwordx4 v{t3}, s[{SP}:{SP+3}], s57 offen offset:1024 lds")
    stamp(A, 2)
    srd(A, SWS, S_WS, WS_SIZE)
    A(f"s_mov_b32 s60, {LOG2E:#x}")
    A(f"s_mov_b32 s61, {LOG2E:#x}")
    for i in range(80):
        A(f"v_mov_b32 v{ACC+i}, 0")
    A(f"v_lshlrev_b32 v{t0}, 4, v0")
    A(f"v_add_u32 v{t0}, {L_Z}, v{t0}")
    A(f"ds_write_b128 v{t0}, {vr(ACC,4)}")
    A(f"v_and_b32 v{t0}, 31, v1")
    A(f"v_lshrrev_b32 v{t1}, 5, v1")
    A(f"v_bfe_u32 v{t2}, v1, 1, 3")
    A(f"v_xor_b32 v{t2}, v{t2}, v{t1}")
    A(f"v_lshlrev_b32 v{t2}, 4, v{t2}")
    A(f"v_lshl_add_u32 v{t2}, v{t0}, 7, v{t2}")
    A(f"v_add_u32 v{XA}, s54, v{t2}")
    for t in range(1, 4):
        A(f"v_xor_b32 v{XA+t}, {32*t}, v{XA}")
    for t in range(4):
        A(f"v_add_u32 v{XA+4+t}, {2*SLOT}, v{XA+t}")
    R8, JJ, HH = 158, 159, 160
    A(f"v_bfe_u32 v{t0}, v1, 2, 2")
    A(f"v_lshl_add_u32 v{R8}, v{t1}, 3, v{t0}")
    A(f"v_bfe_u32 v{t2}, v1, 4, 1")
    A(f"v_bfe_u32 v{t3}, v1, 1, 1")
    A(f"v_lshl_add_u32 v{JJ}, v{t2}, 1, v{t3}")
    A(f"v_and_b32 v{HH}, 1, v1")
    A(f"v_mul_u32_u24 v{t2}, 320, v{R8}")
    A(f"v_mul_u32_u24 v{t3}, 160, v{HH}")
    A(f"v_lshl_add_u32 v{t3}, v{JJ}, 3, v{t3}")
    A(f"v_add3_u32 v{WA}, v{t2}, v{t3}, 0")
    A(f"v_add_u32 v{WA}, 16384, v{WA}")
    A(f"v_add_u32 v{WA+1}, {2*SLOT}, v{WA}")
    A("s_movk_i32 s57, 1600")
    A("s_lshl_b32 s57, s57, s51")
    A(f"v_mul_u32_u24 v{t2}, s57, v{HH}")
    A(f"v_mul_u32_u24 v{t3}, 40, v{t0}")
    A(f"v_add_u32 v{t2}, v{t2}, v{t3}")
    A(f"v_lshl_add_u32 v{t2}, v{JJ}, 3, v{t2}")
    A(f"v_add_u32 v{t2}, {L_WP}, v{t2}")
    A(f"v_mov_b32 v{t3}, {L_Z}")
    A(f"v_cmp_eq_u32 vcc, v{HH}, v{t1}")
    A(f"v_cndmask_b32 v{AD}, v{t3}, v{t2}, vcc")
    A(f"v_add_u32 v{t0}, 24, v{t2}")
    A(f"v_cndmask_b32 v{AD+3}, v{t3}, v{t0}, vcc")
    A(f"v_cmp_eq_u32 s[58:59], 0, v{JJ}")
    A("s_and_b64 s[62:63], vcc, s[58:59]")
    A("s_andn2_b64 s[58:59], vcc, s[58:59]")
    A(f"v_add_u32 v{t0}, 32, v{t2}")
    A(f"v_cndmask_b32 v{AD+1}, v{t3}, v{t0}, s[62:63]")
    A(f"v_subrev_u32 v{t0}, 8, v{t2}")
    A(f"v_cndmask_b32 v{AD+2}, v{t3}, v{t0}, s[58:59]")

    def rd_x(s, t, b):
        sl = s % 4
        return f"ds_read_b128 {vr(XF[b],4)}, v{XA + 4*(sl>>1) + t} offset:{(sl&1)*SLOT}"

    def rd_w(s, t, T, half, b):
        sl = s % 4
        return f"ds_read_b64_tr_b16 {vr(WF[b]+4*T+2*half,2)}, v{WA+(sl>>1)} offset:{(sl&1)*SLOT + (16*t+4*half)*320 + 32*T}"

    A("s_waitcnt vmcnt(27) lgkmcnt(0)")
    A("s_barrier")
    stamp(A, 3)
    if Ctx.stamps:
        A("s_waitcnt lgkmcnt(0)")
    A(rd_x(0, 0, 0))
    for T in range(5):
        A(rd_w(0, 0, T, 0, 0)); A(rd_w(0, 0, T, 1, 0))
    pend = []
    for s in range(10):
        for t in range(4):
            b = t & 1
            last = (s == 9 and t == 3)
            ns, nt = (s, t + 1) if t < 3 else (s + 1, 0)
            prev_remaining = [8, 6, 4, 2, 0]
            issued = 0
            for T in range(5):
                if t == 3 and T >= 2:
                    pass
                else:
                    A(f"s_waitcnt lgkmcnt({prev_remaining[T] + issued})")
                A(f"v_mfma_f32_32x32x16_bf16 {vr(ACC+16*T,16)}, {vr(WF[b]+4*T,4)}, {vr(XF[b],4)}, {vr(ACC+16*T,16)}")
                if last:
                    if T == 1:
                        A("s_waitcnt lgkmcnt(0)")
                    continue
                if t < 3:
                    if T == 0:
                        A(rd_x(ns, nt, 1 - b)); issued += 1
                    A(rd_w(ns, nt, T, 0, 1 - b)); A(rd_w(ns, nt, T, 1, 1 - b)); issued += 2
                    if pend:
                        for i in pend.pop(0):
                            A(i)
                else:
                    if T == 1:
                        assert not pend
                        n_after = min(s + 3, 9) - (s + 1)
                        A(f"s_waitcnt vmcnt({9*n_after}) lgkmcnt(0)")
                        A("s_barrier")
                        A(rd_x(ns, nt, 1 - b))
                        for TT in (0, 1):
                            A(rd_w(ns, nt, TT, 0, 1 - b)); A(rd_w(ns, nt, TT, 1, 1 - b))
                        if s + 4 <= 9:
                            pend = dma_stage(s + 4)
                    elif T >= 2:
                        A(rd_w(ns, nt, T, 0, 1 - b)); A(rd_w(ns, nt, T, 1, 1 - b))
                        if pend:
                            for i in pend.pop(0):
                                A(i)
    stamp(A, 4)
    P = 96
    WPF = 164
    E, F, TT_, PH0, PH1 = 208, 228, 248, 64, 84 - 20 + 20
    PH1 = 136
    frags = [(0, 0), (0, 1), (0, 2), (1, 0), (1, 1), (1, 2), (1, 3), (1, 4), (2, 2), (2, 3), (2, 4)]

    def read_wphi(pas):
        for fi, (Tp, u) in enumerate(frags):
            for half in range(2):
                dq = 2 * u + half
                r = WPF + 4 * fi + 2 * half
                if (Tp == 0 and dq == 5) or (Tp == 2 and dq == 4):
                    if pas == 0:
                        A(f"v_mov_b32 v{r}, 0"); A(f"v_mov_b32 v{r+1}, 0")
                    continue
                ad = {(0, 0): AD, (1, 0): AD + 1, (1, 1): AD + 2, (2, 1): AD + 3}[(Tp, dq // 5)]
                A(f"ds_read_b64_tr_b16 {vr(r,2)}, v{ad} offset:{dq*160 + pas*1600}")

    def phi_mfma(src):
        seen = set()
        for fi, (Tp, u) in enumerate(frags):
            c = vr(ACC + 16 * Tp, 16) if Tp in seen else "0"
            seen.add(Tp)
            A(f"v_mfma_f32_32x32x16_bf16 {vr(ACC+16*Tp,16)}, {vr(WPF+4*fi,4)}, {vr(src+4*u,4)}, {c}")

    if Ctx.stamps:
        A("s_waitcnt lgkmcnt(0)")
    read_wphi(0)
    for i in range(40):
        A(f"v_cvt_pk_bf16_f32 v{P+i}, v{ACC+2*i}, v{ACC+2*i+1}")
    Lq = A.newlabel("L_q")
    A("s_cmp_eq_u32 s51, 0")
    A(f"s_cbranch_scc0 {Lq}")
    mq = A.mark()
    for i in range(20):
        A(f"v_permlane32_swap_b32 v{P+i}, v{P+20+i}")
    A("s_waitcnt lgkmcnt(0)")
    phi_mfma(P)
    A(f"v_and_b32 v{t0}, 31, v1")
    A(f"s_lshl_b32 s57, s48, 5")
    A(f"v_add_u32 v{t0}, s57, v{t0}")
    A(f"v_lshrrev_b32 v{t1}, 5, v1")
    A(f"v_mul_u32_u24 v{t2}, 176, v{t0}")
    A(f"v_add_u32 v{t2}, {L_V}, v{t2}")
    A(f"v_mul_u32_u24 v{t3}, 80, v{t1}")
    A(f"v_add_u32 v2, v{t2}, v{t3}")
    for i in range(5):
        A(f"ds_write_b128 v2, {vr(P+20+4*i,4)} offset:{16*i}")
    A("v_mov_b32 v4, 0x3f803f80")
    A("v_mov_b32 v5, 0x3f803f80")
    A(f"ds_write_b64 v{t2}, v[4:5] offset:160")
    A(f"v_mul_u32_u24 v{t2}, 336, v{t0}")
    A(f"v_lshl_add_u32 v{t2}, v{t3}, 1, v{t2}")
    A(f"v_add_u32 v3, {L_PHI}, v{t2}")
    A(f"v_mul_u32_u24 v{t0}, 336, v{R8}")
    A(f"v_mul_u32_u24 v{t1}, 5, v{HH}")
    A(f"v_add_u32 v{t1}, v{t1}, v{JJ}")
    A(f"v_lshl_add_u32 v{t0}, v{t1}, 3, v{t0}")
    A(f"s_mul_i32 s57, s48, 80")
    A(f"s_add_u32 s57, s57, {L_PHI}")
    A(f"v_add_u32 v6, s57, v{t0}")
    A(f"v_lshl_add_u32 v{t0}, v{JJ}, 1, v{HH}")
    A(f"s_mul_i32 s57, s48, 5")
    A(f"v_add_u32 v{t1}, s57, v{t0}")
    A(f"v_cmp_gt_u32 vcc, 5, v{t0}")
    A(f"v_cndmask_b32 v{t1}, 20, v{t1}, vcc")
    A(f"v_mul_u32_u24 v{t0}, 176, v{R8}")
    A(f"v_lshl_add_u32 v{t0}, v{t1}, 3, v{t0}")
    A(f"v_add_u32 v7, {L_V}, v{t0}")
    for grp, ph in ((0, 64), (1, 96)):
        softmax20(A, ACC + 20 * grp, E, F, TT_, ph)
        for i in range(5):
            A(f"ds_write_b128 v3, {vr(ph+4*i,4)} offset:{80*grp+16*i}")
    stamp(A, 5)
    A("s_waitcnt lgkmcnt(0)")
    A("s_barrier")
    FA = 64
    for u in range(8):
        for half in range(2):
            o = (16 * u + 4 * half)
            A(f"ds_read_b64_tr_b16 {vr(FA+12*u+2*half,2)}, v6 offset:{o*336}")
            A(f"ds_read_b64_tr_b16 {vr(FA+12*u+4+2*half,2)}, v6 offset:{o*336+32}")
            A(f"ds_read_b64_tr_b16 {vr(FA+12*u+8+2*half,2)}, v7 offset:{o*176}")
        if u >= 2:
            uu = u - 2
            A("s_waitcnt lgkmcnt(12)")
            for T in range(2):
                c = vr(ACC + 16 * T, 16) if uu else "0"
                A(f"v_mfma_f32_32x32x16_bf16 {vr(ACC+16*T,16)}, {vr(FA+12*uu+4*T,4)}, {vr(FA+12*uu+8,4)}, {c}")
    for uu in (6, 7):
        A(f"s_waitcnt lgkmcnt({6*(7-uu)})")
        for T in range(2):
            A(f"v_mfma_f32_32x32x16_bf16 {vr(ACC+16*T,16)}, {vr(FA+12*uu+4*T,4)}, {vr(FA+12*uu+8,4)}, {vr(ACC+16*T,16)}")
    A("s_lshl_b32 s57, s50, 2")
    A("s_add_u32 s57, s57, s48")
    A("s_lshl_b32 s57, s57, 4")
    A("s_add_u32 s57, s57, s49")
    A("s_mul_i32 s57, s57, 5120")
    A(f"s_add_u32 s57, s57, {WS_PART:#x}")
    A("s_add_u32 s58, s57, 4096")
    A(f"v_lshlrev_b32 v2, 4, v1")
    A("s_mov_b32 exec_lo, 0x00ffffff")
    A("s_mov_b32 exec_hi, 0x00ffffff")
    for q in range(4):
        A(f"buffer_store_dwordx4 {vr(ACC+4*q,4)}, v2, s[{SWS}:{SWS+3}], s57 offen offset:{1024*q}")
    A(f"buffer_store_dwordx4 {vr(ACC+16,4)}, v2, s[{SWS}:{SWS+3}], s58 offen")
    stamp(A, 6)
    stamp_flush(A, kern, SWS)
    A("s_endpgm")
    A.label(Lq)
    hq = A.mark()
    A("s_nop 1")
    A(f"v_and_b32 v{t0}, 31, v1")
    A(f"v_lshrrev_b32 v{t1}, 5, v1")
    A(f"s_mov_b32 s57, {4*64*2560}")
    A(f"v_mul_lo_u32 v{t1}, s57, v{t1}")
    A(f"v_lshl_add_u32 v2, v{t0}, 4, v{t1}")
    A(f"v_lshl_add_u32 v3, v{t0}, 3, v{t1}")
    A("s_lshl_b32 s57, s50, 9")
    A("s_lshl_b32 s58, s49, 2")
    A("s_add_u32 s57, s57, s58")
    A("s_add_u32 s57, s57, s48")
    A("s_mul_i32 s57, s57, 2560")
    if WS_PHIQ:
        A(f"s_add_u32 s57, s57, {WS_PHIQ:#x}")
    for pas in range(2):
        A("s_waitcnt lgkmcnt(0)")
        phi_mfma(P + 20 * pas)
        if pas == 0:
            A("s_nop 7")
            read_wphi(1)
        for grp in range(2):
            ph = 64 if grp == 0 else (96 if True else 0)
            if pas == 0 and grp == 1:
                ph = 96
            softmax20(A, ACC + 20 * grp, E, F, TT_, ph)
            for g in range(2):
                A(f"buffer_store_dwordx4 {vr(ph+10*g,4)}, v2, s[{SWS}:{SWS+3}], s57 offen offset:{512*g}")
                A(f"buffer_store_dwordx4 {vr(ph+10*g+4,4)}, v2, s[{SWS}:{SWS+3}], s57 offen offset:{1024+512*g}")
                A(f"buffer_store_dwordx2 {vr(ph+10*g+8,2)}, v3, s[{SWS}:{SWS+3}], s57 offen offset:{2048+256*g}")
            A(f"s_add_u32 s57, s57, {64*2560}")
    stamp(A, 6)
    stamp_flush(A, kern, SWS)
    A("s_endpgm")
    A.check_seam(mq, hq)
```

```python
from asm import Asm, vr, ar, sr
from roles import *


def role_pre(A, kern):
    SK, SV, SS, SWS = 32, 36, 40, 44
    t0, t1, t2 = 2, 3, 4
    A("s_mul_i32 s50, s49, 6554")
    A("s_lshr_b32 s50, s50, 16")
    A("s_mul_i32 s51, s50, 10")
    A("s_sub_u32 s51, s49, s51")
    A(f"s_mul_i32 s52, s50, {64*1280}")
    A("s_lshl_b32 s53, s51, 7")
    A("s_add_u32 s52, s52, s53")
    A(f"v_lshrrev_b32 v{t0}, 3, v1")
    A(f"v_and_b32 v{t1}, 7, v1")
    A(f"v_mul_u32_u24 v{t2}, {8*1280}, v{t0}")
    A(f"v_lshl_add_u32 v{t2}, v{t1}, 4, v{t2}")
    A(f"v_add_u32 v5, s52, v{t2}")
    A(f"v_subrev_u32 v6, {3*1280}, v5")
    A(f"v_subrev_u32 v7, {2*1280}, v5")
    A(f"v_subrev_u32 v8, {1280}, v5")
    A(f"v_lshlrev_b32 v9, 6, v{t1}")
    A("s_lshl_b32 s54, s51, 9")
    A(f"s_movk_i32 s55, {4*1280}")
    A("s_waitcnt lgkmcnt(0)")
    srd(A, SK, S_BK, NB_X)
    srd(A, SV, S_BV, NB_X)
    srd(A, SS, S_SH, NB_SH)
    WR, KR, VR = 16, 32, 76
    for i in range(4):
        A(f"buffer_load_dwordx4 {vr(WR+4*i,4)}, v9, s[{SS}:{SS+3}], s54 offen offset:{16*i}")
    for i in range(3):
        A(f"buffer_load_dwordx4 {vr(KR+4*i,4)}, v{6+i}, s[{SK}:{SK+3}], 0 offen")
    for i in range(8):
        so = "0" if i < 4 else "s55"
        A(f"buffer_load_dwordx4 {vr(KR+12+4*i,4)}, v5, s[{SK}:{SK+3}], {so} offen offset:{1280*(i&3)}")
        A(f"buffer_load_dwordx4 {vr(VR+4*i,4)}, v5, s[{SV}:{SV+3}], {so} offen offset:{1280*(i&3)}")
    stamp(A, 2)
    srd(A, SWS, S_WS, WS_SIZE)
    A("s_mul_i32 s56, s48, 8320")
    A(f"v_mul_u32_u24 v10, 1040, v{t1}")
    A(f"v_lshl_add_u32 v10, v{t0}, 4, v10")
    A("v_add_u32 v10, s56, v10")
    A("v_lshrrev_b32 v11, 4, v1")
    A("v_lshlrev_b32 v11, 8, v11")
    A("v_and_b32 v12, 3, v1")
    A("v_lshl_add_u32 v11, v12, 6, v11")
    A("v_bfe_u32 v12, v1, 2, 2")
    A("v_lshl_add_u32 v11, v12, 3, v11")
    A("v_add_u32 v11, s56, v11")
    A(f"v_lshlrev_b32 v12, 12, v{t0}")
    A(f"v_lshl_add_u32 v12, v{t1}, 4, v12")
    A("s_lshl_b32 s57, s51, 18")
    A("s_lshl_b32 s58, s50, 7")
    A("s_add_u32 s57, s57, s58")
    A(f"s_add_u32 s57, s57, {WS_KVT:#x}")
    A("s_mov_b32 s59, 0xffff0000")
    WF, KF, VF, TA, OUT = 108, 140, 172, 180, 196

    def unpack(dst, src, n):
        for i in range(n):
            A(f"v_lshlrev_b32 v{dst+2*i}, 16, v{src+i}")
            A(f"v_and_b32 v{dst+2*i+1}, s59, v{src+i}")

    A("s_waitcnt vmcnt(19)")
    for c in range(8):
        A(f"v_lshlrev_b32 v{WF+c}, 16, v{WR+2*c}")
        A(f"v_and_b32 v{WF+8+c}, s59, v{WR+2*c}")
        A(f"v_lshlrev_b32 v{WF+16+c}, 16, v{WR+2*c+1}")
        A(f"v_and_b32 v{WF+24+c}, s59, v{WR+2*c+1}")
    A("s_waitcnt vmcnt(16)")
    for i in range(3):
        unpack(KF + 8 * i, KR + 4 * i, 4)
    for i in range(8):
        A(f"s_waitcnt vmcnt({14-2*i})")
        unpack(KF + 8 * ((i + 3) & 3), KR + 12 + 4 * i, 4)
        unpack(VF, VR + 4 * i, 4)
        acc = TA + 8 * (i & 1)
        for j in (3, 2, 1, 0):
            kk = KF + 8 * ((i + 3 - j) & 3)
            for c in range(0, 8, 2):
                if j == 3:
                    A(f"v_pk_mul_f32 {vr(acc+c,2)}, {vr(kk+c,2)}, {vr(WF+8*j+c,2)}")
                else:
                    A(f"v_pk_fma_f32 {vr(acc+c,2)}, {vr(kk+c,2)}, {vr(WF+8*j+c,2)}, {vr(acc+c,2)}")
        for c in range(0, 8, 2):
            A(f"v_pk_mul_f32 {vr(acc+c,2)}, {vr(acc+c,2)}, {vr(VF+c,2)}")
        if i & 1:
            for c in range(8):
                A(f"v_cvt_pk_bf16_f32 v{OUT+4*c+i//2}, v{TA+c}, v{TA+8+c}")
    stamp(A, 3)
    for c in range(8):
        A(f"ds_write_b128 v10, {vr(OUT+4*c,4)} offset:{128*c}")
    A("s_waitcnt lgkmcnt(0)")
    for i in range(8):
        A(f"ds_read_b64_tr_b16 {vr(16+4*i,2)}, v11 offset:{1040*i}")
        A(f"ds_read_b64_tr_b16 {vr(18+4*i,2)}, v11 offset:{1040*i+32}")
    for i in range(8):
        A(f"s_waitcnt lgkmcnt({14-2*i})")
        A(f"buffer_store_dwordx4 {vr(16+4*i,4)}, v12, s[{SWS}:{SWS+3}], s57 offen")
        if i < 7:
            A(f"s_add_u32 s57, s57, {8*4096}")
    stamp(A, 6)
    stamp_flush(A, kern, SWS)
    A("s_endpgm")


CV_LDS = 8768


def role_conv(A, kern):
    SH, SWS = 32, 44
    A(f"s_mul_i32 s56, s48, {CV_LDS}")
    A("v_lshlrev_b32 v2, 4, v1")
    A("s_lshl_b32 s50, s49, 12")
    A(f"s_add_u32 s51, s50, {WS_KVT:#x}")
    A("s_lshl_b32 s52, s49, 1")
    A("s_and_b32 s52, s52, 0xfffffffc")
    A("s_waitcnt lgkmcnt(0)")
    srd(A, SH, S_SSK, NB_SSK)
    srd(A, SWS, S_WS, WS_SIZE)
    A(f"s_load_dword s53, s[{S_SSD}:{S_SSD+1}], s52")
    A(f"s_load_dword s54, s[{S_SSK}:{S_SSK+1}], s50")
    for i in range(4):
        A(f"s_add_u32 m0, s56, 64")
        A(f"buffer_load_dwordx4 v2, s[{SH}:{SH+3}], s50 offen offset:{1024*i} lds")
        A(f"s_add_u32 m0, s56, {64+4096+512}")
        A(f"buffer_load_dwordx4 v2, s[{SWS}:{SWS+3}], s51 offen offset:{1024*i} lds")
    stamp(A, 2)
    for i in range(4):
        A(f"v_mov_b32 v{4+i}, 0")
    A("v_add_u32 v3, s56, v2")
    A("s_mov_b64 exec, 0xf")
    A("ds_write_b128 v3, v[4:7]")
    A("s_mov_b32 exec_lo, -1")
    A(f"ds_write_b128 v3, v[4:7] offset:{64+4096}")
    A("s_mov_b64 exec, -1")
    A("v_and_b32 v8, 1, v1")
    A("v_lshlrev_b32 v8, 5, v8")
    A("v_bfe_u32 v9, v1, 4, 1")
    A("v_lshl_add_u32 v8, v9, 4, v8")
    A("v_bfe_u32 v9, v1, 1, 1")
    A("v_lshl_add_u32 v8, v9, 3, v8")
    A("v_lshrrev_b32 v10, 5, v1")
    A("v_lshl_add_u32 v8, v10, 6, v8")
    A("v_bfe_u32 v9, v1, 2, 2")
    A("v_lshlrev_b32 v9, 3, v9")
    A("v_sub_u32 v8, v8, v9")
    A("s_add_u32 s57, s56, 32")
    A("v_add_u32 v8, s57, v8")
    A("v_bfe_u32 v9, v1, 4, 1")
    A("v_lshlrev_b32 v9, 8, v9")
    A("v_and_b32 v11, 3, v1")
    A("v_lshl_add_u32 v9, v11, 6, v9")
    A("v_bfe_u32 v11, v1, 2, 2")
    A("v_lshl_add_u32 v9, v11, 4, v9")
    A("v_lshlrev_b32 v11, 6, v10")
    A("v_sub_u32 v9, v9, v11")
    A(f"s_add_u32 s57, s56, {64+4096+512-384}")
    A("v_add_u32 v9, s57, v9")
    A("v_bfe_u32 v11, v1, 2, 1")
    A("v_bfe_u32 v12, v1, 3, 2")
    A("v_lshl_add_u32 v11, v11, 2, v12")
    A("v_and_b32 v12, 35, v1")
    A("v_lshl_add_u32 v11, v12, 3, v11")
    A("v_and_b32 v12, 1, v11")
    A("v_lshlrev_b32 v12, 4, v12")
    A("v_mov_b32 v13, 0xffff")
    A("v_lshlrev_b32 v13, v12, v13")
    A("v_lshrrev_b32 v11, 1, v11")
    MK = 16
    for i in range(4):
        A(f"v_cmp_eq_u32 vcc, {i}, v11")
        A(f"v_cndmask_b32 v{MK+i}, 0, v13, vcc")
    A("v_bfe_u32 v11, v1, 4, 1")
    A("v_and_b32 v12, 3, v1")
    A("v_lshl_add_u32 v11, v11, 2, v12")
    A("v_add_u32 v11, 7, v11")
    A("v_and_b32 v12, 3, v11")
    A("v_bfe_u32 v13, v11, 2, 1")
    A("v_lshl_add_u32 v12, v13, 4, v12")
    A("v_and_b32 v13, 12, v1")
    A("v_add3_u32 v12, v12, v13, 32")
    A("v_subrev_u32 v13, 32, v1")
    A("v_cmp_gt_u32 vcc, 32, v1")
    A("v_cndmask_b32 v14, v13, v12, vcc")
    A("v_lshlrev_b32 v14, 2, v14")
    A("s_mov_b32 s58, 0x1111")
    A("s_mov_b32 s59, 0")
    A("s_waitcnt lgkmcnt(0)")
    A("s_lshl_b32 s54, s54, 16")
    A("s_lshl_b32 s55, s53, 16")
    A("s_and_b32 s53, s53, 0xffff0000")
    A("s_bitcmp1_b32 s49, 0")
    A("s_cselect_b32 s53, s53, s55")
    A("v_mov_b32 v15, s54")
    A("v_add_f32 v15, s53, v15")
    A("v_cvt_pk_bf16_f32 v15, v15, v15")
    A(f"s_add_u32 s51, s50, {WS_YT:#x}")
    ACCS = (24, 40)
    CAR, PUL = 56, (57, 58)
    OUT = (60, 64)

    def afr(m):
        return vr(20, 4) if m == 0 else ar(4 * m, 4)

    def rdA(m):
        f = "v" if m == 0 else "a"
        b = 20 if m == 0 else 4 * m
        return [f"ds_read_b64_tr_b16 {vr(b,2,f)}, v8 offset:{128*m+32}",
                f"ds_read_b64_tr_b16 {vr(b+2,2,f)}, v8 offset:{128*m}"]

    def rdB(w):
        return [f"ds_read_b128 {ar(128+4*(w+3),4)}, v9 offset:{128*(w+3)}"]

    def reads(i):
        L = []
        for k in range(4):
            L += rdB(4 * i - k) + rdA(4 * i + k)
        return L

    def epilogue(i):
        V = ACCS[i & 1]
        L = [f"v_mov_b32 v{CAR}, 0"]
        for k in (1, 2, 3):
            for j in range(4):
                L.append(f"v_add_f32_dpp v{V+4*j}, v{V+4*j+k}, v{V+4*j} row_shr:{4*k} row_mask:0xf bank_mask:0xf")
        for k in (1, 2, 3):
            for j in (3, 2, 1, 0):
                d = V + 4 * j + 4 if j < 3 else CAR
                L.append(f"v_add_f32_dpp v{d}, v{V+4*j+k}, v{d} row_shl:{16-4*k} row_mask:0xf bank_mask:0xf")
        return L

    def finish(i):
        V = ACCS[i & 1]
        o = OUT[(i >> 1) & 1] + 2 * (i & 1)
        L = []
        L.append(f"v_cndmask_b32 v59, v{PUL[i&1]}, v{PUL[1-(i&1)]}, s[58:59]")
        L.append(f"v_add_f32 v{V}, v{V}, v59")
        L.append(f"v_cvt_pk_bf16_f32 v{o}, v{V}, v{V+4}")
        L.append(f"v_cvt_pk_bf16_f32 v{o+1}, v{V+8}, v{V+12}")
        if i & 1:
            L.append(f"buffer_store_dwordx4 {vr(OUT[(i>>1)&1],4)}, v2, s[{SWS}:{SWS+3}], s51 offen offset:{1024*(i>>1)}")
        return L

    A(f"v_mov_b32 v{PUL[1]}, 0")
    A("s_waitcnt vmcnt(6) lgkmcnt(0)")
    stamp(A, 3)
    for x in reads(0):
        A(x)
    A("s_waitcnt lgkmcnt(0)")
    for k in range(4):
        A(f"v_bfi_b32 v{20+k}, v{MK+k}, v15, v{20+k}")
    for i in range(8):
        V = ACCS[i & 1]
        n = 4 * (i + 1)
        fill = []
        if i + 1 < 8:
            if (i + 1) % 2 == 0:
                fill.append(f"s_waitcnt vmcnt({6 - (i+1) + (0 if i < 3 else (i-1)//2)})")
            fill += reads(i + 1)
        post = []
        if i > 0:
            post = epilogue(i - 1) + [f"ds_bpermute_b32 v{PUL[(i-1)&1]}, v14, v{CAR}", "WAIT"] + finish(i - 1)
        per = -(-(len(fill) + len(post)) // n) if n else 0
        stream = fill + post
        for k in range(n):
            m = k
            c = vr(V, 16) if k else "0"
            A(f"v_mfma_f32_32x32x16_bf16 {vr(V,16)}, {afr(m)}, {ar(128+4*(4*i-m+3),4)}, {c}")
            for _ in range(max(per, 1)):
                if stream:
                    x = stream.pop(0)
                    A("s_waitcnt lgkmcnt(0)" if x == "WAIT" else x)
        while stream:
            x = stream.pop(0)
            A("s_waitcnt lgkmcnt(0)" if x == "WAIT" else x)
        A("s_waitcnt lgkmcnt(0)")
    stamp(A, 4)
    for x in epilogue(7) + [f"ds_bpermute_b32 v{PUL[1]}, v14, v{CAR}", "s_waitcnt lgkmcnt(0)"] + finish(7):
        A(x)
    stamp(A, 6)
    stamp_flush(A, kern, SWS)
    A("s_endpgm")


def role_o(A, kern, NT):
    SWS = 44
    A("v_and_b32 v2, 31, v1")
    A("v_min_u32 v3, 20, v2")
    A("v_and_b32 v4, 32, v1")
    A("v_add_lshl_u32 v3, v3, v4, 4")
    A("s_lshl_b32 s51, s49, 4")
    A("s_lshl_b32 s52, s48, 2")
    A("s_add_u32 s51, s51, s52")
    A("s_mul_i32 s51, s51, 5120")
    A(f"s_add_u32 s51, s51, {WS_PART:#x}")
    A("v_lshlrev_b32 v5, 4, v1")
    A("v_lshlrev_b32 v6, 3, v1")
    A(f"s_mul_i32 s52, s48, {NT}")
    A("s_add_u32 s50, s50, s52")
    A("s_lshl_b32 s52, s49, 6")
    A("s_add_u32 s52, s52, s50")
    A("s_mul_i32 s52, s52, 2560")
    if WS_PHIQ:
        A(f"s_add_u32 s52, s52, {WS_PHIQ:#x}")
    A("s_waitcnt lgkmcnt(0)")
    srd(A, SWS, S_WS, WS_SIZE)
    PR = 16
    PQ = 96
    for p in range(4):
        for q in range(5):
            if q == 4:
                A("s_add_u32 s51, s51, 4096")
            A(f"buffer_load_dwordx4 {vr(PR+20*p+4*q,4)}, v3, s[{SWS}:{SWS+3}], s51 offen offset:{1024*(q&3)}")
        A("s_add_u32 s51, s51, 1024")
    for t in range(NT):
        A(f"buffer_load_dwordx4 {vr(PQ+12*t,4)}, v5, s[{SWS}:{SWS+3}], s52 offen")
        A(f"buffer_load_dwordx4 {vr(PQ+12*t+4,4)}, v5, s[{SWS}:{SWS+3}], s52 offen offset:1024")
        A(f"buffer_load_dwordx2 {vr(PQ+12*t+8,2)}, v6, s[{SWS}:{SWS+3}], s52 offen offset:2048")
        A("s_add_u32 s52, s52, 2560")
    stamp(A, 2)
    for t in range(NT):
        A(f"v_mov_b32 v{PQ+12*t+10}, 0")
        A(f"v_mov_b32 v{PQ+12*t+11}, 0")
    A("s_mul_i32 s53, s49, 5")
    A("v_lshrrev_b32 v7, 5, v1")
    A("v_add_u32 v7, s53, v7")
    A("v_and_b32 v8, 1, v7")
    A("v_lshrrev_b32 v7, 1, v7")
    A("v_lshlrev_b32 v7, 9, v7")
    A("v_lshl_add_u32 v7, v8, 3, v7")
    A("v_lshl_add_u32 v7, v2, 4, v7")
    A("s_mul_i32 s54, s50, 40960")
    A(f"s_add_u32 s54, s54, {WS_O:#x}")
    A("s_mul_i32 s55, s48, 5120")
    A("v_add_u32 v8, s55, v5")
    A(f"s_waitcnt vmcnt({3*NT})")
    for p in (1, 2, 3):
        for i in range(0, 20, 2):
            A(f"v_pk_add_f32 {vr(PR+i,2)}, {vr(PR+i,2)}, {vr(PR+20*p+i,2)}")
    for q in range(5):
        A(f"ds_write_b128 v8, {vr(PR+4*q,4)} offset:{1024*q}")
    A("s_waitcnt lgkmcnt(0)")
    A("s_barrier")
    for p in range(4):
        for q in range(5):
            A(f"ds_read_b128 {vr(PR+20*p+4*q,4)}, v5 offset:{5120*p+1024*q}")
        if p == 2:
            A("s_waitcnt lgkmcnt(5)")
    A("s_waitcnt lgkmcnt(0)")
    for p in (1, 2, 3):
        for i in range(0, 20, 2):
            A(f"v_pk_add_f32 {vr(PR+i,2)}, {vr(PR+i,2)}, {vr(PR+20*p+i,2)}")
    KF = 36
    for i in range(10):
        A(f"v_cvt_pk_bf16_f32 v{KF+i}, v{PR+2*i}, v{PR+2*i+1}")
    A(f"v_mov_b32 v{KF+10}, 0")
    A(f"v_mov_b32 v{KF+11}, 0")
    stamp(A, 3)
    D = (48, 64)
    OP = (80, 88)

    def mf(t):
        A(f"s_waitcnt vmcnt({3*(NT-1-t) + 3*max(0, t-1)})")
        for u in range(3):
            c = vr(D[t & 1], 16) if u else "0"
            A(f"v_mfma_f32_32x32x16_bf16 {vr(D[t&1],16)}, {vr(KF+4*u,4)}, {vr(PQ+12*t+4*u,4)}, {c}")

    mf(0)
    for t in range(NT):
        if t + 1 < NT:
            mf(t + 1)
        d, o = D[t & 1], OP[t & 1]
        A(f"v_add_f32 v10, 0x358637bd, v{d+12}")
        A("v_rcp_f32 v10, v10")
        for i in range(0, 12, 2):
            A(f"v_pk_mul_f32 {vr(d+i,2)}, {vr(d+i,2)}, v[10:11] op_sel_hi:[1,0]")
        for i in range(6):
            A(f"v_cvt_pk_bf16_f32 v{o+i}, v{d+2*i}, v{d+2*i+1}")
        A(f"buffer_store_dwordx2 {vr(o,2)}, v7, s[{SWS}:{SWS+3}], s54 offen")
        A(f"buffer_store_dwordx2 {vr(o+2,2)}, v7, s[{SWS}:{SWS+3}], s54 offen offset:512")
        A("s_mov_b32 exec_hi, 0")
        A(f"buffer_store_dwordx2 {vr(o+4,2)}, v7, s[{SWS}:{SWS+3}], s54 offen offset:1024")
        A("s_mov_b64 exec, -1")
        A("s_add_u32 s54, s54, 40960")
    stamp(A, 6)
    stamp_flush(A, kern, SWS)
    A("s_endpgm")


def role_wo(A, kern):
    SO, SWO, SWS = 32, 36, 44
    A("v_lshrrev_b32 v2, 3, v1")
    A("v_and_b32 v3, 7, v1")
    A("v_and_b32 v4, 2, v2")
    A("v_xor_b32 v4, v4, v3")
    A("v_mul_u32_u24 v5, 1280, v2")
    A("v_lshl_add_u32 v5, v4, 4, v5")
    for i in range(1, 4):
        A(f"v_add_u32 v{5+i}, {i*(8*1280-1024)}, v5")
    A(f"s_mul_i32 s51, s48, {32*1280}")
    A("s_lshl_b32 s52, s50, 7")
    A("s_add_u32 s51, s51, s52")
    A("s_lshl_b32 s53, s48, 12")
    A("s_lshl_b32 s54, s49, 2")
    A("s_add_u32 s54, s54, s48")
    A("s_mul_i32 s55, s54, 40960")
    A(f"s_add_u32 s55, s55, {WS_O:#x}")
    A("v_lshlrev_b32 v9, 4, v1")
    A("s_waitcnt lgkmcnt(0)")
    srd(A, SWO, S_WO, NB_WO)
    srd(A, SWS, S_WS, WS_SIZE)
    OF = 64
    for st in range(5):
        A(f"s_add_u32 m0, s53, {st*16384}")
        for i in range(4):
            A(f"buffer_load_dwordx4 v{5+i}, s[{SWO}:{SWO+3}], s51 offen offset:{1024*i} lds")
        A(f"s_add_u32 s51, s51, {128*1280}")
        for i in range(8):
            A(f"buffer_load_dwordx4 {vr(OF+32*st+4*i,4)}, v9, s[{SWS}:{SWS+3}], s55 offen offset:{1024*(i&3)}")
            if i & 3 == 3:
                A("s_add_u32 s55, s55, 4096")
    stamp(A, 2)
    srd(A, SO, S_OUT, NB_OUT)
    A("v_bfe_u32 v10, v1, 2, 2")
    A("v_lshrrev_b32 v11, 5, v1")
    A("v_lshl_add_u32 v11, v11, 3, v10")
    A("v_lshlrev_b32 v11, 7, v11")
    A("v_and_b32 v12, 1, v1")
    A("v_lshl_add_u32 v11, v12, 6, v11")
    A("v_bfe_u32 v12, v1, 4, 1")
    A("v_lshl_add_u32 v11, v12, 4, v11")
    A("v_bfe_u32 v12, v1, 1, 1")
    A("v_lshl_add_u32 v11, v12, 3, v11")
    A("v_and_b32 v10, 2, v10")
    A("v_lshl_add_u32 v10, v10, 4, v11")
    A("v_xor_b32 v11, 32, v10")
    A("v_add_u32 v12, 0xc000, v10")
    A("v_add_u32 v13, 0xc000, v11")
    ACC = 16
    WF = (48, 56)

    def rd(k, T, half, b):
        off = (16 * k + 4 * half) * 128
        a = 10 + T
        if off >= 0xc000:
            off -= 0xc000; a += 2
        return f"ds_read_b64_tr_b16 {vr(WF[b]+4*T+2*half,2)}, v{a} offset:{off}"

    A("s_waitcnt vmcnt(48)")
    A("s_barrier")
    stamp(A, 3)
    if Ctx.stamps:
        A("s_waitcnt lgkmcnt(0)")
    for T in range(2):
        A(rd(0, T, 0, 0)); A(rd(0, T, 1, 0))
    for k in range(40):
        b = k & 1
        for T in range(2):
            A(f"s_waitcnt lgkmcnt({2 if k < 39 or T == 0 else 0})")
            c = vr(ACC + 16 * T, 16) if k else "0"
            A(f"v_mfma_f32_32x32x16_bf16 {vr(ACC+16*T,16)}, {vr(WF[b]+4*T,4)}, {vr(OF+4*k,4)}, {c}")
            if k + 1 < 40:
                if T == 0 and (k + 1) % 8 == 0:
                    A(f"s_waitcnt vmcnt({48 - 12*((k+1)//8)})")
                    A("s_barrier")
                A(rd(k + 1, T, 0, 1 - b)); A(rd(k + 1, T, 1, 1 - b))
    stamp(A, 4)
    A("s_mul_i32 s56, s48, 4608")
    A(f"s_add_u32 s56, s56, 81920")
    A("v_and_b32 v10, 31, v1")
    A("v_mul_u32_u24 v10, 144, v10")
    A("v_lshrrev_b32 v11, 5, v1")
    A("v_lshl_add_u32 v10, v11, 6, v10")
    A("v_add_u32 v10, s56, v10")
    A("v_mul_u32_u24 v11, 144, v2")
    A("v_lshl_add_u32 v11, v3, 4, v11")
    A("v_add_u32 v11, s56, v11")
    A("v_mul_u32_u24 v12, 2560, v2")
    A("v_lshl_add_u32 v12, v3, 4, v12")
    A(f"s_mul_i32 s57, s54, {32*2560}")
    A("s_add_u32 s57, s57, s52")
    for i in range(16):
        A(f"v_cvt_pk_bf16_f32 v{48+i}, v{ACC+2*i}, v{ACC+2*i+1}")
    for i in range(4):
        A(f"ds_write_b128 v10, {vr(48+4*i,4)} offset:{16*i}")
    A("s_waitcnt lgkmcnt(0)")
    for i in range(4):
        A(f"ds_read_b128 {vr(64+4*i,4)}, v11 offset:{8*144*i}")
    for i in range(4):
        A(f"s_waitcnt lgkmcnt({3-i})")
        A(f"buffer_store_dwordx4 {vr(64+4*i,4)}, v12, s[{SO}:{SO+3}], s57 offen")
        if i < 3:
            A(f"s_add_u32 s57, s57, {8*2560}")
    stamp(A, 6)
    stamp_flush(A, kern, SWS)
    A("s_endpgm")


def role_post(A, kern):
    SQ, SO, SWS = 32, 36, 44
    A("s_mul_i32 s50, s49, 6554")
    A("s_lshr_b32 s50, s50, 16")
    A("s_mul_i32 s51, s50, 10")
    A("s_sub_u32 s51, s49, s51")
    A("v_lshrrev_b32 v2, 3, v1")
    A("v_and_b32 v3, 7, v1")
    A("v_lshlrev_b32 v4, 12, v2")
    A("v_lshl_add_u32 v4, v3, 4, v4")
    A("s_lshl_b32 s52, s51, 18")
    A("s_lshl_b32 s53, s50, 7")
    A("s_add_u32 s52, s52, s53")
    A(f"s_add_u32 s52, s52, {WS_YT:#x}")
    A("s_lshl_b32 s56, s48, 13")
    A("s_lshr_b32 s54, s50, 3")
    A("s_lshl_b32 s54, s54, 9")
    A("s_bfe_u32 s55, s50, 0x10002")
    A("s_lshl_b32 s55, s55, 4")
    A("s_add_u32 s54, s54, s55")
    A("s_bfe_u32 s55, s50, 0x10001")
    A("s_lshl_b32 s55, s55, 7")
    A("s_add_u32 s54, s54, s55")
    A("s_and_b32 s55, s50, 1")
    A("s_lshl_b32 s55, s55, 1")
    A("s_add_u32 s54, s54, s55")
    A("v_and_b32 v5, 3, v2")
    A("v_lshrrev_b32 v6, 2, v2")
    A("v_lshl_add_u32 v5, v5, 5, v6")
    A("v_mul_u32_u24 v6, 1280, v5")
    A("v_lshlrev_b32 v7, 1, v6")
    A("v_lshl_add_u32 v6, v3, 4, v6")
    A("v_lshl_add_u32 v7, v3, 4, v7")
    A("s_mul_i32 s54, s54, 1280")
    A("s_lshl_b32 s53, s51, 7")
    A("s_lshl_b32 s55, s54, 1")
    A("s_add_u32 s54, s54, s53")
    A("s_add_u32 s55, s55, s53")
    A("s_add_u32 s55, s55, 1280")
    A("s_waitcnt lgkmcnt(0)")
    srd(A, SWS, S_WS, WS_SIZE)
    srd(A, SQ, S_BQ, NB_X)
    QR, YR = 16, 48
    rows = [0, 4, 8, 12, 256, 260, 264, 268]
    for i in range(8):
        A(f"v_xor_b32 v8, {16*i}, v4")
        A(f"s_add_u32 m0, s56, {1024*i}")
        A(f"buffer_load_dwordx4 v8, s[{SWS}:{SWS+3}], s52 offen lds")
        A(f"s_add_u32 s52, s52, {8*4096}")
    for i in range(8):
        A(f"s_add_u32 s57, s54, {rows[i]*1280}")
        A(f"buffer_load_dwordx4 {vr(QR+4*i,4)}, v6, s[{SQ}:{SQ+3}], s57 offen")
    stamp(A, 2)
    srd(A, SO, S_OUT, NB_OUT)
    A("v_xor_b32 v8, v2, v3")
    A("v_lshlrev_b32 v8, 4, v8")
    A("v_lshl_add_u32 v8, v3, 10, v8")
    A("v_add_u32 v8, s56, v8")
    A("s_mov_b32 s59, 0xffff0000")
    A("s_waitcnt vmcnt(8)")
    for c in range(8):
        A(f"ds_read_b128 {vr(YR+4*c,4)}, v8 offset:{128*c}")
    A("s_waitcnt lgkmcnt(0)")
    stamp(A, 3)
    YF, QF, OUT = 80, 88, 96
    for i in range(8):
        A(f"s_waitcnt vmcnt(7)")
        for c in range(8):
            if i & 1:
                A(f"v_and_b32 v{YF+c}, s59, v{YR+4*c+i//2}")
            else:
                A(f"v_lshlrev_b32 v{YF+c}, 16, v{YR+4*c+i//2}")
        for k in range(4):
            A(f"v_lshlrev_b32 v{QF+2*k}, 16, v{QR+4*i+k}")
            A(f"v_and_b32 v{QF+2*k+1}, s59, v{QR+4*i+k}")
        for c in range(0, 8, 2):
            A(f"v_pk_mul_f32 {vr(YF+c,2)}, {vr(YF+c,2)}, {vr(QF+c,2)}")
        for k in range(4):
            A(f"v_cvt_pk_bf16_f32 v{OUT+4*i+k}, v{YF+2*k}, v{YF+2*k+1}")
        A(f"s_add_u32 s57, s55, {rows[i]*2560}")
        A(f"buffer_store_dwordx4 {vr(OUT+4*i,4)}, v7, s[{SO}:{SO+3}], s57 offen")
    stamp(A, 6)
    stamp_flush(A, kern, SWS)
    A("s_endpgm")
```

```python
import sys
from asm import Asm
from roles import *
from roles2 import *

NAME = "concat_heads__linear_kernel_hedgehog__ssm_conv_h3__prompt"


def kernel_head(A, name):
    A.raw(f".globl {name}")
    A.raw(".p2align 8")
    A.raw(f".type {name},@function")
    A.label(name)


def descriptor(name, vgpr, accum):
    return f""".p2align 6
.amdhsa_kernel {name}
  .amdhsa_next_free_vgpr {vgpr}
  .amdhsa_next_free_sgpr 102
  .amdhsa_accum_offset {accum}
  .amdhsa_group_segment_fixed_size 0
  .amdhsa_kernarg_size 104
  .amdhsa_user_sgpr_count 2
  .amdhsa_user_sgpr_kernarg_segment_ptr 1
  .amdhsa_system_sgpr_workgroup_id_x 1
.end_amdhsa_kernel
"""


def build(extra_empty=0):
    A = Asm()
    kernel_head(A, "k1_kernel")
    load_kernargs(A)
    stamp_init(A)
    A("s_cmp_ge_u32 s2, 192")
    A("s_cbranch_scc1 K1_pre")
    A("s_and_b32 s49, s2, 3")
    A("s_lshl_b32 s49, s49, 2")
    A("s_bfe_u32 s50, s2, 0x20003")
    A("s_add_u32 s49, s49, s50")
    A("s_bfe_u32 s52, s2, 0x10002")
    A("s_lshr_b32 s53, s2, 5")
    A("s_lshl_b32 s54, s52, 1")
    A("s_add_u32 s54, s54, s53")
    A("s_lshl_b32 s55, s52, 2")
    A("s_add_u32 s55, s55, s53")
    A("s_sub_u32 s55, s55, 2")
    A("s_cmp_lt_u32 s2, 64")
    A("s_cselect_b32 s50, s54, s55")
    A("s_cselect_b32 s51, 1, 0")
    role_gemm(A, 0)
    A.label("K1_pre")
    A("s_cmp_ge_u32 s2, 272")
    A("s_cbranch_scc1 K1_end")
    wave_id(A)
    A("s_sub_u32 s49, s2, 192")
    A("s_lshl_b32 s49, s49, 2")
    A("s_add_u32 s49, s49, s48")
    role_pre(A, 0)
    A.label("K1_end")
    A("s_endpgm")
    kernel_head(A, "k2_kernel")
    load_kernargs(A)
    stamp_init(A)
    wave_id(A)
    A("s_cmp_ge_u32 s2, 160")
    A("s_cbranch_scc1 K2_o")
    A("s_lshl_b32 s49, s2, 2")
    A("s_add_u32 s49, s49, s48")
    role_conv(A, 1)
    A.label("K2_o")
    A("s_cmp_ge_u32 s2, 224")
    A("s_cbranch_scc1 K2_end")
    A("s_sub_u32 s50, s2, 160")
    A("s_lshr_b32 s49, s50, 1")
    A("s_and_b32 s50, s50, 1")
    A("s_lshl_b32 s50, s50, 5")
    role_o(A, 1, 8)
    A.label("K2_end")
    A("s_endpgm")
    kernel_head(A, "k3_kernel")
    load_kernargs(A)
    stamp_init(A)
    wave_id(A)
    A("s_cmp_ge_u32 s2, 160")
    A("s_cbranch_scc1 K3_post")
    A("s_and_b32 s49, s2, 15")
    A("s_lshr_b32 s50, s2, 4")
    role_wo(A, 2)
    A.label("K3_post")
    A("s_cmp_ge_u32 s2, 240")
    A("s_cbranch_scc1 K3_end")
    A("s_sub_u32 s49, s2, 160")
    A("s_lshl_b32 s49, s49, 2")
    A("s_add_u32 s49, s49, s48")
    role_post(A, 2)
    A.label("K3_end")
    A("s_endpgm")
    if extra_empty:
        kernel_head(A, "k4_kernel")
        A("s_endpgm")
    head = [
        "; generated by gen/gen_s.py",
        "; @launch kernel=k1_kernel grid=(272,1,1) block=(256,1,1) lds=163840",
        "; @launch kernel=k2_kernel grid=(224,1,1) block=(256,1,1) lds=98304",
        "; @launch kernel=k3_kernel grid=(240,1,1) block=(256,1,1) lds=100352",
    ]
    for _ in range(extra_empty):
        head.append("; @launch kernel=k4_kernel grid=(256,1,1) block=(256,1,1) lds=0")
    txt = "\n".join(head) + '\n.amdgcn_target "amdgcn-amd-amdhsa--gfx950"\n.text\n' + A.text()
    txt += '.section .rodata,"a"\n'
    txt += descriptor("k1_kernel", 256, 256) + descriptor("k2_kernel", 512, 256) + descriptor("k3_kernel", 256, 256)
    if extra_empty:
        txt += descriptor("k4_kernel", 8, 8)
    return txt


if __name__ == "__main__":
    out = sys.argv[1]
    Ctx.stamps = "stamps" in sys.argv[2:]
    ee = [int(a[5:]) for a in sys.argv[2:] if a.startswith("empty")]
    open(out, "w").write(build(ee[0] if ee else 0))
```

```python
from asm import Asm, vr, ar, sr

WS_PHIQ = 0x0
WS_PART = 0x500000
WS_O    = 0x780000
WS_KVT  = 0xA00000
WS_YT   = 0xC80000
WS_STAMP = 0x1000000
WS_SIZE = 0x1100000

S_X, S_W, S_WPHI, S_WO, S_BQ, S_BK, S_BV, S_SH, S_SSK, S_SSD, S_OUT, S_DBG, S_WS = range(4, 30, 2)
NB_X = 2048 * 640 * 2
NB_W = 640 * 1920 * 2
NB_WPHI = 32 * 800
NB_WO = 640 * 640 * 2
NB_SH = 640 * 8
NB_SSK = 640 * 4096
NB_OUT = 2048 * 1280 * 2

LOG2E = 0x3fb8aa3b


class Ctx:
    stamps = False
    nstamp = 0
    nt_g = ""
    nt_s = ""
    nt_wo = ""
    rot = False


def load_kernargs(A):
    A("s_load_dwordx16 s[4:19], s[0:1], 0")
    A("s_load_dwordx8 s[20:27], s[0:1], 64")
    A("s_load_dwordx2 s[28:29], s[0:1], 96")


def srd(A, d, base, nbytes):
    A(f"s_mov_b32 s{d}, s{base}")
    A(f"s_mov_b32 s{d+1}, s{base+1}")
    A(f"s_mov_b32 s{d+2}, {nbytes:#x}")
    A(f"s_mov_b32 s{d+3}, 0x20000")


def stamp(A, k, real=False):
    if not Ctx.stamps:
        return
    A(f"s_mem{'real' if real else ''}time s[{64+2*k}:{65+2*k}]")


def stamp_flush(A, kern, srd_ws):
    if not Ctx.stamps:
        return
    stamp(A, 15, True)
    A("s_waitcnt lgkmcnt(0)")
    A("s_mov_b64 exec, -1")
    A("v_mbcnt_lo_u32_b32 v1, -1, 0")
    A("v_mbcnt_hi_u32_b32 v1, -1, v1")
    A("v_mov_b32 v2, 0")
    for k in range(16):
        A(f"v_mov_b32 v3, s{64+2*k}")
        A(f"v_cmp_eq_u32 vcc, {k}, v1")
        A("v_cndmask_b32 v2, v2, v3, vcc")
    A(f"s_add_u32 s62, s2, {kern*512}")
    A("s_lshl_b32 s62, s62, 2")
    A("s_add_u32 s62, s62, s48")
    A("s_lshl_b32 s62, s62, 6")
    A(f"s_add_u32 s62, s62, {WS_STAMP:#x}")
    A("v_lshlrev_b32 v1, 2, v1")
    A("s_mov_b64 exec, 0xffff")
    A(f"buffer_store_dword v2, v1, s[{srd_ws}:{srd_ws+3}], s62 offen")


def stamp_init(A):
    if not Ctx.stamps:
        return
    for k in range(16):
        A(f"s_mov_b64 s[{64+2*k}:{65+2*k}], 0")
    stamp(A, 0, True)
    stamp(A, 1)


def wave_id(A):
    A("v_lshrrev_b32 v2, 6, v0")
    A("v_and_b32 v1, 63, v0")
    A("v_readfirstlane_b32 s48, v2")


def softmax20(A, X, E, F, T, PH):
    mx, mn = T, T + 2
    A(f"v_max3_f32 v{mx}, v{X}, v{X+1}, v{X+2}")
    A(f"v_min3_f32 v{mn}, v{X}, v{X+1}, v{X+2}")
    for i in range(3, 19, 2):
        A(f"v_max3_f32 v{mx}, v{mx}, v{X+i}, v{X+i+1}")
        A(f"v_min3_f32 v{mn}, v{mn}, v{X+i}, v{X+i+1}")
    A(f"v_max_f32 v{mx}, v{mx}, v{X+19}")
    A(f"v_min_f32 v{mn}, v{mn}, v{X+19}")
    A(f"v_mul_f32 v{mx}, s60, v{mx}")
    A(f"v_mul_f32 v{mn}, s60, v{mn}")
    for i in range(0, 20, 2):
        A(f"v_pk_fma_f32 {vr(E+i,2)}, {vr(X+i,2)}, s[60:61], {vr(mx,2)} op_sel_hi:[1,1,0] neg_lo:[0,0,1] neg_hi:[0,0,1]")
        A(f"v_pk_fma_f32 {vr(F+i,2)}, {vr(X+i,2)}, s[60:61], {vr(mn,2)} op_sel_hi:[1,1,0] neg_lo:[1,0,0] neg_hi:[1,0,0]")
    for i in range(20):
        A(f"v_exp_f32 v{E+i}, v{E+i}")
        A(f"v_exp_f32 v{F+i}, v{F+i}")
    se, sf = T + 4, T + 6
    A(f"v_pk_add_f32 {vr(se,2)}, {vr(E,2)}, {vr(E+2,2)}")
    A(f"v_pk_add_f32 {vr(sf,2)}, {vr(F,2)}, {vr(F+2,2)}")
    for i in range(4, 20, 2):
        A(f"v_pk_add_f32 {vr(se,2)}, {vr(se,2)}, {vr(E+i,2)}")
        A(f"v_pk_add_f32 {vr(sf,2)}, {vr(sf,2)}, {vr(F+i,2)}")
    A(f"v_add_f32 v{se}, v{se}, v{se+1}")
    A(f"v_add_f32 v{sf}, v{sf}, v{sf+1}")
    A(f"v_rcp_f32 v{se}, v{se}")
    A(f"v_rcp_f32 v{sf}, v{sf}")
    for i in range(0, 20, 2):
        A(f"v_pk_mul_f32 {vr(E+i,2)}, {vr(E+i,2)}, {vr(se,2)} op_sel_hi:[1,0]")
        A(f"v_pk_mul_f32 {vr(F+i,2)}, {vr(F+i,2)}, {vr(sf,2)} op_sel_hi:[1,0]")
    for i in range(0, 20, 2):
        A(f"v_cvt_pk_bf16_f32 v{PH+i//2}, v{E+i}, v{E+i+1}")
    for i in range(0, 20, 2):
        A(f"v_cvt_pk_bf16_f32 v{PH+10+i//2}, v{F+i}, v{F+i+1}")


SLOT = 36864
L_WP = 147456
L_Z = L_WP + 8192
L_PHI = 73728
L_V = L_PHI + 128 * 336


def role_gemm(A, kern):
    SX, SW, SP, SWS = 32, 36, 40, 44
    VX = 2
    VW = 6
    XA = 144
    WA = 152
    AD = 154
    ACC = 16
    WF = (96, 116)
    XF = (136, 140)
    t0, t1, t2, t3 = 11, 12, 13, 14
    wave_id(A)
    A(f"v_lshrrev_b32 v{t0}, 3, v1")
    A(f"v_mul_u32_u24 v{t0}, 1280, v{t0}")
    A(f"v_lshrrev_b32 v{t1}, 4, v1")
    A(f"v_and_b32 v{t2}, 7, v1")
    A(f"v_xor_b32 v{t1}, v{t1}, v{t2}")
    A(f"v_xor_b32 v{t2}, 4, v{t1}")
    A(f"v_lshl_add_u32 v{VX}, v{t1}, 4, v{t0}")
    A(f"v_lshl_add_u32 v{VX+1}, v{t2}, 4, v{t0}")
    A(f"v_add_u32 v{VX+2}, {2*(8*1280-1024)}, v{VX}")
    A(f"v_add_u32 v{VX+3}, {3*(8*1280-1024)}, v{VX+1}")
    A(f"v_add_u32 v{VX+1}, {8*1280-1024}, v{VX+1}")
    A("s_cmp_eq_u32 s51, 0")
    A("s_cselect_b32 s56, 1120, 0")
    for i in range(5):
        A(f"v_add_u32 v{t0}, {64*i}, v1")
        A(f"v_mul_u32_u24 v{t1}, 3277, v{t0}")
        A(f"v_lshrrev_b32 v{t1}, 16, v{t1}")
        A(f"v_mul_u32_u24 v{t2}, 20, v{t1}")
        A(f"v_sub_u32 v{t0}, v{t0}, v{t2}")
        A(f"v_mul_u32_u24 v{t1}, 3840, v{t1}")
        A(f"v_lshl_add_u32 v{t1}, v{t0}, 4, v{t1}")
        A(f"v_add_u32 v{t2}, s56, v{t1}")
        A(f"v_cmp_lt_u32 vcc, 9, v{t0}")
        A(f"v_cndmask_b32 v{VW+i}, v{t1}, v{t2}, vcc")
        if i & 3:
            A(f"v_subrev_u32 v{VW+i}, {1024*(i&3)}, v{VW+i}")
    A("s_lshl_b32 s52, s49, 2")
    A("s_add_u32 s52, s52, s48")
    A(f"s_mul_i32 s52, s52, {32*1280}")
    A(f"s_mul_i32 s53, s48, {16*3840}")
    A("s_mul_i32 s57, s50, 160")
    A("s_add_u32 s58, s57, 1280")
    A("s_lshl_b32 s57, s57, 1")
    A("s_cmp_eq_u32 s51, 0")
    A("s_cselect_b32 s57, s58, s57")
    A("s_add_u32 s53, s53, s57")
    if Ctx.rot:
        A("s_and_b32 s30, s49, 3")
        A("s_lshl_b32 s30, s30, 2")
        A("s_lshr_b32 s30, 0x8530, s30")
        A("s_and_b32 s30, s30, 15")
        A("s_lshr_b32 s31, s2, 5")
        A("s_lshl_b32 s31, s31, 2")
        A("s_lshr_b32 s31, 0x875320, s31")
        A("s_and_b32 s31, s31, 15")
        A("s_add_u32 s30, s30, s31")
        A("s_sub_u32 s31, s30, 10")
        A("s_cmp_ge_u32 s30, 10")
        A("s_cselect_b32 s30, s31, s30")
        A("s_lshl_b32 s31, s30, 7")
        A("s_add_u32 s52, s52, s31")
        A(f"s_mov_b32 s96, {64*3840}")
        A("s_mul_i32 s31, s30, s96")
        A("s_add_u32 s53, s53, s31")
    A("s_lshl_b32 s54, s48, 12")
    A(f"s_mul_i32 s55, s48, 5120")
    A(f"s_add_u32 s55, s55, 16384")
    A("s_mul_i32 s57, s50, 3200")
    A("s_lshl_b32 s57, s57, s51")
    A("s_lshl_b32 s58, s48, 11")
    A("s_add_u32 s57, s57, s58")
    A(f"v_lshlrev_b32 v{t3}, 4, v1")
    A("s_waitcnt lgkmcnt(0)")
    srd(A, SX, S_X, NB_X)
    srd(A, SW, S_W, NB_W)
    srd(A, SP, S_WPHI, NB_WPHI)

    def dma_stage(s):
        sl = (s % 4) * SLOT
        g = []
        g.append([f"s_add_u32 m0, s54, {sl}", f"buffer_load_dwordx4 v{VX}, s[{SX}:{SX+3}], s52 offen{Ctx.nt_g} lds"])
        for i in range(1, 4):
            g.append([f"buffer_load_dwordx4 v{VX+i}, s[{SX}:{SX+3}], s52 offen offset:{1024*i}{Ctx.nt_g} lds"])
        if Ctx.rot:
            g[-1] += ["s_add_u32 s30, s30, 1", "s_cmp_eq_u32 s30, 10", f"s_cselect_b32 s31, {(-1152)&0xffffffff:#x}, 128",
                      f"s_cselect_b32 s3, {(-9*64*3840)&0xffffffff:#x}, s96", "s_add_u32 s52, s52, s31"]
        else:
            g[-1].append("s_add_u32 s52, s52, 128")
        g.append([f"s_add_u32 m0, s55, {sl}", f"buffer_load_dwordx4 v{VW}, s[{SW}:{SW+3}], s53 offen{Ctx.nt_g} lds"])
        for i in range(1, 4):
            g.append([f"buffer_load_dwordx4 v{VW+i}, s[{SW}:{SW+3}], s53 offen offset:{1024*i}{Ctx.nt_g} lds"])
        g.append([f"s_add_u32 m0, s55, {sl+4096}", f"buffer_load_dwordx4 v{VW+4}, s[{SW}:{SW+3}], s53 offen{Ctx.nt_g} lds",
                  "s_add_u32 s53, s53, s3" if Ctx.rot else f"s_add_u32 s53, s53, {64*3840}"])
        return g

    for s in range(4):
        for grp in dma_stage(s):
            for i in grp:
                A(i)
        if s == 0:
            A(f"s_add_u32 m0, s58, {L_WP}")
            A(f"buffer_load_dwordx4 v{t3}, s[{SP}:{SP+3}], s57 offen lds")
            A(f"buffer_load_dwordx4 v{t3}, s[{SP}:{SP+3}], s57 offen offset:1024 lds")
    stamp(A, 2)
    srd(A, SWS, S_WS, WS_SIZE)
    A(f"s_mov_b32 s60, {LOG2E:#x}")
    A(f"s_mov_b32 s61, {LOG2E:#x}")
    for i in range(80):
        A(f"v_mov_b32 v{ACC+i}, 0")
    A(f"v_lshlrev_b32 v{t0}, 4, v0")
    A(f"v_add_u32 v{t0}, {L_Z}, v{t0}")
    A(f"ds_write_b128 v{t0}, {vr(ACC,4)}")
    A(f"v_and_b32 v{t0}, 31, v1")
    A(f"v_lshrrev_b32 v{t1}, 5, v1")
    A(f"v_bfe_u32 v{t2}, v1, 1, 3")
    A(f"v_xor_b32 v{t2}, v{t2}, v{t1}")
    A(f"v_lshlrev_b32 v{t2}, 4, v{t2}")
    A(f"v_lshl_add_u32 v{t2}, v{t0}, 7, v{t2}")
    A(f"v_add_u32 v{XA}, s54, v{t2}")
    for t in range(1, 4):
        A(f"v_xor_b32 v{XA+t}, {32*t}, v{XA}")
    for t in range(4):
        A(f"v_add_u32 v{XA+4+t}, {2*SLOT}, v{XA+t}")
    R8, JJ, HH = 158, 159, 160
    A(f"v_bfe_u32 v{t0}, v1, 2, 2")
    A(f"v_lshl_add_u32 v{R8}, v{t1}, 3, v{t0}")
    A(f"v_bfe_u32 v{t2}, v1, 4, 1")
    A(f"v_bfe_u32 v{t3}, v1, 1, 1")
    A(f"v_lshl_add_u32 v{JJ}, v{t2}, 1, v{t3}")
    A(f"v_and_b32 v{HH}, 1, v1")
    A(f"v_mul_u32_u24 v{t2}, 320, v{R8}")
    A(f"v_mul_u32_u24 v{t3}, 160, v{HH}")
    A(f"v_lshl_add_u32 v{t3}, v{JJ}, 3, v{t3}")
    A(f"v_add3_u32 v{WA}, v{t2}, v{t3}, 0")
    A(f"v_add_u32 v{WA}, 16384, v{WA}")
    A(f"v_add_u32 v{WA+1}, {2*SLOT}, v{WA}")
    A("s_movk_i32 s57, 1600")
    A("s_lshl_b32 s57, s57, s51")
    A(f"v_mul_u32_u24 v{t2}, s57, v{HH}")
    A(f"v_mul_u32_u24 v{t3}, 40, v{t0}")
    A(f"v_add_u32 v{t2}, v{t2}, v{t3}")
    A(f"v_lshl_add_u32 v{t2}, v{JJ}, 3, v{t2}")
    A(f"v_add_u32 v{t2}, {L_WP}, v{t2}")
    A(f"v_mov_b32 v{t3}, {L_Z}")
    A(f"v_cmp_eq_u32 vcc, v{HH}, v{t1}")
    A(f"v_cndmask_b32 v{AD}, v{t3}, v{t2}, vcc")
    A(f"v_add_u32 v{t0}, 24, v{t2}")
    A(f"v_cndmask_b32 v{AD+3}, v{t3}, v{t0}, vcc")
    A(f"v_cmp_eq_u32 s[58:59], 0, v{JJ}")
    A("s_and_b64 s[62:63], vcc, s[58:59]")
    A("s_andn2_b64 s[58:59], vcc, s[58:59]")
    A(f"v_add_u32 v{t0}, 32, v{t2}")
    A(f"v_cndmask_b32 v{AD+1}, v{t3}, v{t0}, s[62:63]")
    A(f"v_subrev_u32 v{t0}, 8, v{t2}")
    A(f"v_cndmask_b32 v{AD+2}, v{t3}, v{t0}, s[58:59]")

    def rd_x(s, t, b):
        sl = s % 4
        return f"ds_read_b128 {vr(XF[b],4)}, v{XA + 4*(sl>>1) + t} offset:{(sl&1)*SLOT}"

    def rd_w(s, t, T, half, b):
        sl = s % 4
        return f"ds_read_b64_tr_b16 {vr(WF[b]+4*T+2*half,2)}, v{WA+(sl>>1)} offset:{(sl&1)*SLOT + (16*t+4*half)*320 + 32*T}"

    A("s_waitcnt vmcnt(27) lgkmcnt(0)")
    A("s_barrier")
    stamp(A, 3)
    if Ctx.stamps:
        A("s_waitcnt lgkmcnt(0)")
    A(rd_x(0, 0, 0))
    for T in range(5):
        A(rd_w(0, 0, T, 0, 0)); A(rd_w(0, 0, T, 1, 0))
    pend = []
    for s in range(10):
        for t in range(4):
            b = t & 1
            last = (s == 9 and t == 3)
            ns, nt = (s, t + 1) if t < 3 else (s + 1, 0)
            prev_remaining = [8, 6, 4, 2, 0]
            issued = 0
            for T in range(5):
                if t == 3 and T >= 2:
                    pass
                else:
                    A(f"s_waitcnt lgkmcnt({prev_remaining[T] + issued})")
                A(f"v_mfma_f32_32x32x16_bf16 {vr(ACC+16*T,16)}, {vr(WF[b]+4*T,4)}, {vr(XF[b],4)}, {vr(ACC+16*T,16)}")
                if last:
                    if T == 1:
                        A("s_waitcnt lgkmcnt(0)")
                    continue
                if t < 3:
                    if T == 0:
                        A(rd_x(ns, nt, 1 - b)); issued += 1
                    A(rd_w(ns, nt, T, 0, 1 - b)); A(rd_w(ns, nt, T, 1, 1 - b)); issued += 2
                    if pend:
                        for i in pend.pop(0):
                            A(i)
                else:
                    if T == 1:
                        assert not pend
                        n_after = min(s + 3, 9) - (s + 1)
                        A(f"s_waitcnt vmcnt({9*n_after}) lgkmcnt(0)")
                        A("s_barrier")
                        A(rd_x(ns, nt, 1 - b))
                        for TT in (0, 1):
                            A(rd_w(ns, nt, TT, 0, 1 - b)); A(rd_w(ns, nt, TT, 1, 1 - b))
                        if s + 4 <= 9:
                            pend = dma_stage(s + 4)
                    elif T >= 2:
                        A(rd_w(ns, nt, T, 0, 1 - b)); A(rd_w(ns, nt, T, 1, 1 - b))
                        if pend:
                            for i in pend.pop(0):
                                A(i)
    stamp(A, 4)
    P = 96
    WPF = 164
    E, F, TT_, PH0, PH1 = 208, 228, 248, 64, 84 - 20 + 20
    PH1 = 136
    frags = [(0, 0), (0, 1), (0, 2), (1, 0), (1, 1), (1, 2), (1, 3), (1, 4), (2, 2), (2, 3), (2, 4)]

    def read_wphi(pas):
        for fi, (Tp, u) in enumerate(frags):
            for half in range(2):
                dq = 2 * u + half
                r = WPF + 4 * fi + 2 * half
                if (Tp == 0 and dq == 5) or (Tp == 2 and dq == 4):
                    if pas == 0:
                        A(f"v_mov_b32 v{r}, 0"); A(f"v_mov_b32 v{r+1}, 0")
                    continue
                ad = {(0, 0): AD, (1, 0): AD + 1, (1, 1): AD + 2, (2, 1): AD + 3}[(Tp, dq // 5)]
                A(f"ds_read_b64_tr_b16 {vr(r,2)}, v{ad} offset:{dq*160 + pas*1600}")

    def phi_mfma(src):
        seen = set()
        for fi, (Tp, u) in enumerate(frags):
            c = vr(ACC + 16 * Tp, 16) if Tp in seen else "0"
            seen.add(Tp)
            A(f"v_mfma_f32_32x32x16_bf16 {vr(ACC+16*Tp,16)}, {vr(WPF+4*fi,4)}, {vr(src+4*u,4)}, {c}")

    if Ctx.stamps:
        A("s_waitcnt lgkmcnt(0)")
    read_wphi(0)
    for i in range(40):
        A(f"v_cvt_pk_bf16_f32 v{P+i}, v{ACC+2*i}, v{ACC+2*i+1}")
    Lq = A.newlabel("L_q")
    A("s_cmp_eq_u32 s51, 0")
    A(f"s_cbranch_scc0 {Lq}")
    mq = A.mark()
    for i in range(20):
        A(f"v_permlane32_swap_b32 v{P+i}, v{P+20+i}")
    A("s_waitcnt lgkmcnt(0)")
    phi_mfma(P)
    A(f"v_and_b32 v{t0}, 31, v1")
    A(f"s_lshl_b32 s57, s48, 5")
    A(f"v_add_u32 v{t0}, s57, v{t0}")
    A(f"v_lshrrev_b32 v{t1}, 5, v1")
    A(f"v_mul_u32_u24 v{t2}, 176, v{t0}")
    A(f"v_add_u32 v{t2}, {L_V}, v{t2}")
    A(f"v_mul_u32_u24 v{t3}, 80, v{t1}")
    A(f"v_add_u32 v2, v{t2}, v{t3}")
    for i in range(5):
        A(f"ds_write_b128 v2, {vr(P+20+4*i,4)} offset:{16*i}")
    A("v_mov_b32 v4, 0x3f803f80")
    A("v_mov_b32 v5, 0x3f803f80")
    A(f"ds_write_b64 v{t2}, v[4:5] offset:160")
    A(f"v_mul_u32_u24 v{t2}, 336, v{t0}")
    A(f"v_lshl_add_u32 v{t2}, v{t3}, 1, v{t2}")
    A(f"v_add_u32 v3, {L_PHI}, v{t2}")
    A(f"v_mul_u32_u24 v{t0}, 336, v{R8}")
    A(f"v_mul_u32_u24 v{t1}, 5, v{HH}")
    A(f"v_add_u32 v{t1}, v{t1}, v{JJ}")
    A(f"v_lshl_add_u32 v{t0}, v{t1}, 3, v{t0}")
    A(f"s_mul_i32 s57, s48, 80")
    A(f"s_add_u32 s57, s57, {L_PHI}")
    A(f"v_add_u32 v6, s57, v{t0}")
    A(f"v_lshl_add_u32 v{t0}, v{JJ}, 1, v{HH}")
    A(f"s_mul_i32 s57, s48, 5")
    A(f"v_add_u32 v{t1}, s57, v{t0}")
    A(f"v_cmp_gt_u32 vcc, 5, v{t0}")
    A(f"v_cndmask_b32 v{t1}, 20, v{t1}, vcc")
    A(f"v_mul_u32_u24 v{t0}, 176, v{R8}")
    A(f"v_lshl_add_u32 v{t0}, v{t1}, 3, v{t0}")
    A(f"v_add_u32 v7, {L_V}, v{t0}")
    for grp, ph in ((0, 64), (1, 96)):
        softmax20(A, ACC + 20 * grp, E, F, TT_, ph)
        for i in range(5):
            A(f"ds_write_b128 v3, {vr(ph+4*i,4)} offset:{80*grp+16*i}")
    stamp(A, 5)
    A("s_waitcnt lgkmcnt(0)")
    A("s_barrier")
    FA = 64
    for u in range(8):
        for half in range(2):
            o = (16 * u + 4 * half)
            A(f"ds_read_b64_tr_b16 {vr(FA+12*u+2*half,2)}, v6 offset:{o*336}")
            A(f"ds_read_b64_tr_b16 {vr(FA+12*u+4+2*half,2)}, v6 offset:{o*336+32}")
            A(f"ds_read_b64_tr_b16 {vr(FA+12*u+8+2*half,2)}, v7 offset:{o*176}")
        if u >= 2:
            uu = u - 2
            A("s_waitcnt lgkmcnt(12)")
            for T in range(2):
                c = vr(ACC + 16 * T, 16) if uu else "0"
                A(f"v_mfma_f32_32x32x16_bf16 {vr(ACC+16*T,16)}, {vr(FA+12*uu+4*T,4)}, {vr(FA+12*uu+8,4)}, {c}")
    for uu in (6, 7):
        A(f"s_waitcnt lgkmcnt({6*(7-uu)})")
        for T in range(2):
            A(f"v_mfma_f32_32x32x16_bf16 {vr(ACC+16*T,16)}, {vr(FA+12*uu+4*T,4)}, {vr(FA+12*uu+8,4)}, {vr(ACC+16*T,16)}")
    A("s_lshl_b32 s57, s50, 2")
    A("s_add_u32 s57, s57, s48")
    A("s_lshl_b32 s57, s57, 4")
    A("s_add_u32 s57, s57, s49")
    A("s_mul_i32 s57, s57, 5120")
    A(f"s_add_u32 s57, s57, {WS_PART:#x}")
    A("s_add_u32 s58, s57, 4096")
    A(f"v_lshlrev_b32 v2, 4, v1")
    A("s_mov_b32 exec_lo, 0x00ffffff")
    A("s_mov_b32 exec_hi, 0x00ffffff")
    for q in range(4):
        A(f"buffer_store_dwordx4 {vr(ACC+4*q,4)}, v2, s[{SWS}:{SWS+3}], s57 offen offset:{1024*q}")
    A(f"buffer_store_dwordx4 {vr(ACC+16,4)}, v2, s[{SWS}:{SWS+3}], s58 offen")
    stamp(A, 6)
    stamp_flush(A, kern, SWS)
    A("s_endpgm")
    A.label(Lq)
    hq = A.mark()
    A("s_nop 1")
    A(f"v_and_b32 v{t0}, 31, v1")
    A(f"v_lshrrev_b32 v{t1}, 5, v1")
    A(f"s_mov_b32 s57, {4*64*2560}")
    A(f"v_mul_lo_u32 v{t1}, s57, v{t1}")
    A(f"v_lshl_add_u32 v2, v{t0}, 4, v{t1}")
    A(f"v_lshl_add_u32 v3, v{t0}, 3, v{t1}")
    A("s_lshl_b32 s57, s50, 9")
    A("s_lshl_b32 s58, s49, 2")
    A("s_add_u32 s57, s57, s58")
    A("s_add_u32 s57, s57, s48")
    A("s_mul_i32 s57, s57, 2560")
    if WS_PHIQ:
        A(f"s_add_u32 s57, s57, {WS_PHIQ:#x}")
    for pas in range(2):
        A("s_waitcnt lgkmcnt(0)")
        phi_mfma(P + 20 * pas)
        if pas == 0:
            A("s_nop 7")
            read_wphi(1)
        for grp in range(2):
            ph = 64 if grp == 0 else (96 if True else 0)
            if pas == 0 and grp == 1:
                ph = 96
            softmax20(A, ACC + 20 * grp, E, F, TT_, ph)
            for g in range(2):
                A(f"buffer_store_dwordx4 {vr(ph+10*g,4)}, v2, s[{SWS}:{SWS+3}], s57 offen offset:{512*g}")
                A(f"buffer_store_dwordx4 {vr(ph+10*g+4,4)}, v2, s[{SWS}:{SWS+3}], s57 offen offset:{1024+512*g}")
                A(f"buffer_store_dwordx2 {vr(ph+10*g+8,2)}, v3, s[{SWS}:{SWS+3}], s57 offen offset:{2048+256*g}")
            A(f"s_add_u32 s57, s57, {64*2560}")
    stamp(A, 6)
    stamp_flush(A, kern, SWS)
    A("s_endpgm")
    A.check_seam(mq, hq)
```

```python
from asm import Asm, vr, ar, sr
from roles import *


def role_pre(A, kern):
    SK, SV, SS, SWS = 32, 36, 40, 44
    t0, t1, t2 = 2, 3, 4
    A("s_mul_i32 s50, s49, 6554")
    A("s_lshr_b32 s50, s50, 16")
    A("s_mul_i32 s51, s50, 10")
    A("s_sub_u32 s51, s49, s51")
    A(f"s_mul_i32 s52, s50, {64*1280}")
    A("s_lshl_b32 s53, s51, 7")
    A("s_add_u32 s52, s52, s53")
    A(f"v_lshrrev_b32 v{t0}, 3, v1")
    A(f"v_and_b32 v{t1}, 7, v1")
    A(f"v_mul_u32_u24 v{t2}, {8*1280}, v{t0}")
    A(f"v_lshl_add_u32 v{t2}, v{t1}, 4, v{t2}")
    A(f"v_add_u32 v5, s52, v{t2}")
    A(f"v_subrev_u32 v6, {3*1280}, v5")
    A(f"v_subrev_u32 v7, {2*1280}, v5")
    A(f"v_subrev_u32 v8, {1280}, v5")
    A(f"v_lshlrev_b32 v9, 6, v{t1}")
    A("s_lshl_b32 s54, s51, 9")
    A(f"s_movk_i32 s55, {4*1280}")
    A("s_waitcnt lgkmcnt(0)")
    srd(A, SK, S_BK, NB_X)
    srd(A, SV, S_BV, NB_X)
    srd(A, SS, S_SH, NB_SH)
    WR, KR, VR = 16, 32, 76
    for i in range(4):
        A(f"buffer_load_dwordx4 {vr(WR+4*i,4)}, v9, s[{SS}:{SS+3}], s54 offen offset:{16*i}")
    for i in range(3):
        A(f"buffer_load_dwordx4 {vr(KR+4*i,4)}, v{6+i}, s[{SK}:{SK+3}], 0 offen{Ctx.nt_s}")
    for i in range(8):
        so = "0" if i < 4 else "s55"
        A(f"buffer_load_dwordx4 {vr(KR+12+4*i,4)}, v5, s[{SK}:{SK+3}], {so} offen offset:{1280*(i&3)}{Ctx.nt_s}")
        A(f"buffer_load_dwordx4 {vr(VR+4*i,4)}, v5, s[{SV}:{SV+3}], {so} offen offset:{1280*(i&3)}{Ctx.nt_s}")
    stamp(A, 2)
    srd(A, SWS, S_WS, WS_SIZE)
    A("s_mul_i32 s56, s48, 8320")
    A(f"v_mul_u32_u24 v10, 1040, v{t1}")
    A(f"v_lshl_add_u32 v10, v{t0}, 4, v10")
    A("v_add_u32 v10, s56, v10")
    A("v_lshrrev_b32 v11, 4, v1")
    A("v_lshlrev_b32 v11, 8, v11")
    A("v_and_b32 v12, 3, v1")
    A("v_lshl_add_u32 v11, v12, 6, v11")
    A("v_bfe_u32 v12, v1, 2, 2")
    A("v_lshl_add_u32 v11, v12, 3, v11")
    A("v_add_u32 v11, s56, v11")
    A(f"v_lshlrev_b32 v12, 12, v{t0}")
    A(f"v_lshl_add_u32 v12, v{t1}, 4, v12")
    A("s_lshl_b32 s57, s51, 18")
    A("s_lshl_b32 s58, s50, 7")
    A("s_add_u32 s57, s57, s58")
    A(f"s_add_u32 s57, s57, {WS_KVT:#x}")
    A("s_mov_b32 s59, 0xffff0000")
    WF, KF, VF, TA, OUT = 108, 140, 172, 180, 196

    def unpack(dst, src, n):
        for i in range(n):
            A(f"v_lshlrev_b32 v{dst+2*i}, 16, v{src+i}")
            A(f"v_and_b32 v{dst+2*i+1}, s59, v{src+i}")

    A("s_waitcnt vmcnt(19)")
    for c in range(8):
        A(f"v_lshlrev_b32 v{WF+c}, 16, v{WR+2*c}")
        A(f"v_and_b32 v{WF+8+c}, s59, v{WR+2*c}")
        A(f"v_lshlrev_b32 v{WF+16+c}, 16, v{WR+2*c+1}")
        A(f"v_and_b32 v{WF+24+c}, s59, v{WR+2*c+1}")
    A("s_waitcnt vmcnt(16)")
    for i in range(3):
        unpack(KF + 8 * i, KR + 4 * i, 4)
    for i in range(8):
        A(f"s_waitcnt vmcnt({14-2*i})")
        unpack(KF + 8 * ((i + 3) & 3), KR + 12 + 4 * i, 4)
        unpack(VF, VR + 4 * i, 4)
        acc = TA + 8 * (i & 1)
        for j in (3, 2, 1, 0):
            kk = KF + 8 * ((i + 3 - j) & 3)
            for c in range(0, 8, 2):
                if j == 3:
                    A(f"v_pk_mul_f32 {vr(acc+c,2)}, {vr(kk+c,2)}, {vr(WF+8*j+c,2)}")
                else:
                    A(f"v_pk_fma_f32 {vr(acc+c,2)}, {vr(kk+c,2)}, {vr(WF+8*j+c,2)}, {vr(acc+c,2)}")
        for c in range(0, 8, 2):
            A(f"v_pk_mul_f32 {vr(acc+c,2)}, {vr(acc+c,2)}, {vr(VF+c,2)}")
        if i & 1:
            for c in range(8):
                A(f"v_cvt_pk_bf16_f32 v{OUT+4*c+i//2}, v{TA+c}, v{TA+8+c}")
    stamp(A, 3)
    for c in range(8):
        A(f"ds_write_b128 v10, {vr(OUT+4*c,4)} offset:{128*c}")
    A("s_waitcnt lgkmcnt(0)")
    for i in range(8):
        A(f"ds_read_b64_tr_b16 {vr(16+4*i,2)}, v11 offset:{1040*i}")
        A(f"ds_read_b64_tr_b16 {vr(18+4*i,2)}, v11 offset:{1040*i+32}")
    for i in range(8):
        A(f"s_waitcnt lgkmcnt({14-2*i})")
        A(f"buffer_store_dwordx4 {vr(16+4*i,4)}, v12, s[{SWS}:{SWS+3}], s57 offen")
        if i < 7:
            A(f"s_add_u32 s57, s57, {8*4096}")
    stamp(A, 6)
    stamp_flush(A, kern, SWS)
    A("s_endpgm")


CV_LDS = 8768


def role_conv(A, kern):
    SH, SWS = 32, 44
    A(f"s_mul_i32 s56, s48, {CV_LDS}")
    A("v_lshlrev_b32 v2, 4, v1")
    A("s_lshl_b32 s50, s49, 12")
    A(f"s_add_u32 s51, s50, {WS_KVT:#x}")
    A("s_lshl_b32 s52, s49, 1")
    A("s_and_b32 s52, s52, 0xfffffffc")
    A("s_waitcnt lgkmcnt(0)")
    srd(A, SH, S_SSK, NB_SSK)
    srd(A, SWS, S_WS, WS_SIZE)
    A(f"s_load_dword s53, s[{S_SSD}:{S_SSD+1}], s52")
    A(f"s_load_dword s54, s[{S_SSK}:{S_SSK+1}], s50")
    for i in range(4):
        A(f"s_add_u32 m0, s56, 64")
        A(f"buffer_load_dwordx4 v2, s[{SH}:{SH+3}], s50 offen offset:{1024*i}{Ctx.nt_s} lds")
        A(f"s_add_u32 m0, s56, {64+4096+512}")
        A(f"buffer_load_dwordx4 v2, s[{SWS}:{SWS+3}], s51 offen offset:{1024*i} lds")
    stamp(A, 2)
    for i in range(4):
        A(f"v_mov_b32 v{4+i}, 0")
    A("v_add_u32 v3, s56, v2")
    A("s_mov_b64 exec, 0xf")
    A("ds_write_b128 v3, v[4:7]")
    A("s_mov_b32 exec_lo, -1")
    A(f"ds_write_b128 v3, v[4:7] offset:{64+4096}")
    A("s_mov_b64 exec, -1")
    A("v_and_b32 v8, 1, v1")
    A("v_lshlrev_b32 v8, 5, v8")
    A("v_bfe_u32 v9, v1, 4, 1")
    A("v_lshl_add_u32 v8, v9, 4, v8")
    A("v_bfe_u32 v9, v1, 1, 1")
    A("v_lshl_add_u32 v8, v9, 3, v8")
    A("v_lshrrev_b32 v10, 5, v1")
    A("v_lshl_add_u32 v8, v10, 6, v8")
    A("v_bfe_u32 v9, v1, 2, 2")
    A("v_lshlrev_b32 v9, 3, v9")
    A("v_sub_u32 v8, v8, v9")
    A("s_add_u32 s57, s56, 32")
    A("v_add_u32 v8, s57, v8")
    A("v_bfe_u32 v9, v1, 4, 1")
    A("v_lshlrev_b32 v9, 8, v9")
    A("v_and_b32 v11, 3, v1")
    A("v_lshl_add_u32 v9, v11, 6, v9")
    A("v_bfe_u32 v11, v1, 2, 2")
    A("v_lshl_add_u32 v9, v11, 4, v9")
    A("v_lshlrev_b32 v11, 6, v10")
    A("v_sub_u32 v9, v9, v11")
    A(f"s_add_u32 s57, s56, {64+4096+512-384}")
    A("v_add_u32 v9, s57, v9")
    A("v_bfe_u32 v11, v1, 2, 1")
    A("v_bfe_u32 v12, v1, 3, 2")
    A("v_lshl_add_u32 v11, v11, 2, v12")
    A("v_and_b32 v12, 35, v1")
    A("v_lshl_add_u32 v11, v12, 3, v11")
    A("v_and_b32 v12, 1, v11")
    A("v_lshlrev_b32 v12, 4, v12")
    A("v_mov_b32 v13, 0xffff")
    A("v_lshlrev_b32 v13, v12, v13")
    A("v_lshrrev_b32 v11, 1, v11")
    MK = 16
    for i in range(4):
        A(f"v_cmp_eq_u32 vcc, {i}, v11")
        A(f"v_cndmask_b32 v{MK+i}, 0, v13, vcc")
    A("v_bfe_u32 v11, v1, 4, 1")
    A("v_and_b32 v12, 3, v1")
    A("v_lshl_add_u32 v11, v11, 2, v12")
    A("v_add_u32 v11, 7, v11")
    A("v_and_b32 v12, 3, v11")
    A("v_bfe_u32 v13, v11, 2, 1")
    A("v_lshl_add_u32 v12, v13, 4, v12")
    A("v_and_b32 v13, 12, v1")
    A("v_add3_u32 v12, v12, v13, 32")
    A("v_subrev_u32 v13, 32, v1")
    A("v_cmp_gt_u32 vcc, 32, v1")
    A("v_cndmask_b32 v14, v13, v12, vcc")
    A("v_lshlrev_b32 v14, 2, v14")
    A("s_mov_b32 s58, 0x1111")
    A("s_mov_b32 s59, 0")
    A("s_waitcnt lgkmcnt(0)")
    A("s_lshl_b32 s54, s54, 16")
    A("s_lshl_b32 s55, s53, 16")
    A("s_and_b32 s53, s53, 0xffff0000")
    A("s_bitcmp1_b32 s49, 0")
    A("s_cselect_b32 s53, s53, s55")
    A("v_mov_b32 v15, s54")
    A("v_add_f32 v15, s53, v15")
    A("v_cvt_pk_bf16_f32 v15, v15, v15")
    A(f"s_add_u32 s51, s50, {WS_YT:#x}")
    ACCS = (24, 40)
    CAR, PUL = 56, (57, 58)
    OUT = (60, 64)

    def afr(m):
        return vr(20, 4) if m == 0 else ar(4 * m, 4)

    def rdA(m):
        f = "v" if m == 0 else "a"
        b = 20 if m == 0 else 4 * m
        return [f"ds_read_b64_tr_b16 {vr(b,2,f)}, v8 offset:{128*m+32}",
                f"ds_read_b64_tr_b16 {vr(b+2,2,f)}, v8 offset:{128*m}"]

    def rdB(w):
        return [f"ds_read_b128 {ar(128+4*(w+3),4)}, v9 offset:{128*(w+3)}"]

    def reads(i):
        L = []
        for k in range(4):
            L += rdB(4 * i - k) + rdA(4 * i + k)
        return L

    def epilogue(i):
        V = ACCS[i & 1]
        L = [f"v_mov_b32 v{CAR}, 0"]
        for k in (1, 2, 3):
            for j in range(4):
                L.append(f"v_add_f32_dpp v{V+4*j}, v{V+4*j+k}, v{V+4*j} row_shr:{4*k} row_mask:0xf bank_mask:0xf")
        for k in (1, 2, 3):
            for j in (3, 2, 1, 0):
                d = V + 4 * j + 4 if j < 3 else CAR
                L.append(f"v_add_f32_dpp v{d}, v{V+4*j+k}, v{d} row_shl:{16-4*k} row_mask:0xf bank_mask:0xf")
        return L

    def finish(i):
        V = ACCS[i & 1]
        o = OUT[(i >> 1) & 1] + 2 * (i & 1)
        L = []
        L.append(f"v_cndmask_b32 v59, v{PUL[i&1]}, v{PUL[1-(i&1)]}, s[58:59]")
        L.append(f"v_add_f32 v{V}, v{V}, v59")
        L.append(f"v_cvt_pk_bf16_f32 v{o}, v{V}, v{V+4}")
        L.append(f"v_cvt_pk_bf16_f32 v{o+1}, v{V+8}, v{V+12}")
        if i & 1:
            L.append(f"buffer_store_dwordx4 {vr(OUT[(i>>1)&1],4)}, v2, s[{SWS}:{SWS+3}], s51 offen offset:{1024*(i>>1)}")
        return L

    A(f"v_mov_b32 v{PUL[1]}, 0")
    A("s_waitcnt vmcnt(6) lgkmcnt(0)")
    stamp(A, 3)
    for x in reads(0):
        A(x)
    A("s_waitcnt lgkmcnt(0)")
    for k in range(4):
        A(f"v_bfi_b32 v{20+k}, v{MK+k}, v15, v{20+k}")
    for i in range(8):
        V = ACCS[i & 1]
        n = 4 * (i + 1)
        fill = []
        if i + 1 < 8:
            if (i + 1) % 2 == 0:
                fill.append(f"s_waitcnt vmcnt({6 - (i+1) + (0 if i < 3 else (i-1)//2)})")
            fill += reads(i + 1)
        post = []
        if i > 0:
            post = epilogue(i - 1) + [f"ds_bpermute_b32 v{PUL[(i-1)&1]}, v14, v{CAR}", "WAIT"] + finish(i - 1)
        per = -(-(len(fill) + len(post)) // n) if n else 0
        stream = fill + post
        for k in range(n):
            m = k
            c = vr(V, 16) if k else "0"
            A(f"v_mfma_f32_32x32x16_bf16 {vr(V,16)}, {afr(m)}, {ar(128+4*(4*i-m+3),4)}, {c}")
            for _ in range(max(per, 1)):
                if stream:
                    x = stream.pop(0)
                    A("s_waitcnt lgkmcnt(0)" if x == "WAIT" else x)
        while stream:
            x = stream.pop(0)
            A("s_waitcnt lgkmcnt(0)" if x == "WAIT" else x)
        A("s_waitcnt lgkmcnt(0)")
    stamp(A, 4)
    for x in epilogue(7) + [f"ds_bpermute_b32 v{PUL[1]}, v14, v{CAR}", "s_waitcnt lgkmcnt(0)"] + finish(7):
        A(x)
    stamp(A, 6)
    stamp_flush(A, kern, SWS)
    A("s_endpgm")


def role_o(A, kern, NT):
    SWS = 44
    A("v_and_b32 v2, 31, v1")
    A("v_min_u32 v3, 20, v2")
    A("v_and_b32 v4, 32, v1")
    A("v_add_lshl_u32 v3, v3, v4, 4")
    A("s_lshl_b32 s51, s49, 4")
    A("s_lshl_b32 s52, s48, 2")
    A("s_add_u32 s51, s51, s52")
    A("s_mul_i32 s51, s51, 5120")
    A(f"s_add_u32 s51, s51, {WS_PART:#x}")
    A("v_lshlrev_b32 v5, 4, v1")
    A("v_lshlrev_b32 v6, 3, v1")
    A(f"s_mul_i32 s52, s48, {NT}")
    A("s_add_u32 s50, s50, s52")
    A("s_lshl_b32 s52, s49, 6")
    A("s_add_u32 s52, s52, s50")
    A("s_mul_i32 s52, s52, 2560")
    if WS_PHIQ:
        A(f"s_add_u32 s52, s52, {WS_PHIQ:#x}")
    A("s_waitcnt lgkmcnt(0)")
    srd(A, SWS, S_WS, WS_SIZE)
    PR = 16
    PQ = 96
    for p in range(4):
        for q in range(5):
            if q == 4:
                A("s_add_u32 s51, s51, 4096")
            A(f"buffer_load_dwordx4 {vr(PR+20*p+4*q,4)}, v3, s[{SWS}:{SWS+3}], s51 offen offset:{1024*(q&3)}")
        A("s_add_u32 s51, s51, 1024")
    for t in range(NT):
        A(f"buffer_load_dwordx4 {vr(PQ+12*t,4)}, v5, s[{SWS}:{SWS+3}], s52 offen")
        A(f"buffer_load_dwordx4 {vr(PQ+12*t+4,4)}, v5, s[{SWS}:{SWS+3}], s52 offen offset:1024")
        A(f"buffer_load_dwordx2 {vr(PQ+12*t+8,2)}, v6, s[{SWS}:{SWS+3}], s52 offen offset:2048")
        A("s_add_u32 s52, s52, 2560")
    stamp(A, 2)
    for t in range(NT):
        A(f"v_mov_b32 v{PQ+12*t+10}, 0")
        A(f"v_mov_b32 v{PQ+12*t+11}, 0")
    A("s_mul_i32 s53, s49, 5")
    A("v_lshrrev_b32 v7, 5, v1")
    A("v_add_u32 v7, s53, v7")
    A("v_and_b32 v8, 1, v7")
    A("v_lshrrev_b32 v7, 1, v7")
    A("v_lshlrev_b32 v7, 9, v7")
    A("v_lshl_add_u32 v7, v8, 3, v7")
    A("v_lshl_add_u32 v7, v2, 4, v7")
    A("s_mul_i32 s54, s50, 40960")
    A(f"s_add_u32 s54, s54, {WS_O:#x}")
    A("s_mul_i32 s55, s48, 5120")
    A("v_add_u32 v8, s55, v5")
    A(f"s_waitcnt vmcnt({3*NT})")
    for p in (1, 2, 3):
        for i in range(0, 20, 2):
            A(f"v_pk_add_f32 {vr(PR+i,2)}, {vr(PR+i,2)}, {vr(PR+20*p+i,2)}")
    for q in range(5):
        A(f"ds_write_b128 v8, {vr(PR+4*q,4)} offset:{1024*q}")
    A("s_waitcnt lgkmcnt(0)")
    A("s_barrier")
    for p in range(4):
        for q in range(5):
            A(f"ds_read_b128 {vr(PR+20*p+4*q,4)}, v5 offset:{5120*p+1024*q}")
        if p == 2:
            A("s_waitcnt lgkmcnt(5)")
    A("s_waitcnt lgkmcnt(0)")
    for p in (1, 2, 3):
        for i in range(0, 20, 2):
            A(f"v_pk_add_f32 {vr(PR+i,2)}, {vr(PR+i,2)}, {vr(PR+20*p+i,2)}")
    KF = 36
    for i in range(10):
        A(f"v_cvt_pk_bf16_f32 v{KF+i}, v{PR+2*i}, v{PR+2*i+1}")
    A(f"v_mov_b32 v{KF+10}, 0")
    A(f"v_mov_b32 v{KF+11}, 0")
    stamp(A, 3)
    D = (48, 64)
    OP = (80, 88)

    def mf(t):
        A(f"s_waitcnt vmcnt({3*(NT-1-t) + 3*max(0, t-1)})")
        for u in range(3):
            c = vr(D[t & 1], 16) if u else "0"
            A(f"v_mfma_f32_32x32x16_bf16 {vr(D[t&1],16)}, {vr(KF+4*u,4)}, {vr(PQ+12*t+4*u,4)}, {c}")

    mf(0)
    for t in range(NT):
        if t + 1 < NT:
            mf(t + 1)
        d, o = D[t & 1], OP[t & 1]
        A(f"v_add_f32 v10, 0x358637bd, v{d+12}")
        A("v_rcp_f32 v10, v10")
        for i in range(0, 12, 2):
            A(f"v_pk_mul_f32 {vr(d+i,2)}, {vr(d+i,2)}, v[10:11] op_sel_hi:[1,0]")
        for i in range(6):
            A(f"v_cvt_pk_bf16_f32 v{o+i}, v{d+2*i}, v{d+2*i+1}")
        A(f"buffer_store_dwordx2 {vr(o,2)}, v7, s[{SWS}:{SWS+3}], s54 offen")
        A(f"buffer_store_dwordx2 {vr(o+2,2)}, v7, s[{SWS}:{SWS+3}], s54 offen offset:512")
        A("s_mov_b32 exec_hi, 0")
        A(f"buffer_store_dwordx2 {vr(o+4,2)}, v7, s[{SWS}:{SWS+3}], s54 offen offset:1024")
        A("s_mov_b64 exec, -1")
        A("s_add_u32 s54, s54, 40960")
    stamp(A, 6)
    stamp_flush(A, kern, SWS)
    A("s_endpgm")


def role_wo(A, kern):
    SO, SWO, SWS = 32, 36, 44
    A("v_lshrrev_b32 v2, 3, v1")
    A("v_and_b32 v3, 7, v1")
    A("v_and_b32 v4, 2, v2")
    A("v_xor_b32 v4, v4, v3")
    A("v_mul_u32_u24 v5, 1280, v2")
    A("v_lshl_add_u32 v5, v4, 4, v5")
    for i in range(1, 4):
        A(f"v_add_u32 v{5+i}, {i*(8*1280-1024)}, v5")
    A(f"s_mul_i32 s51, s48, {32*1280}")
    A("s_lshl_b32 s52, s50, 7")
    A("s_add_u32 s51, s51, s52")
    A("s_lshl_b32 s53, s48, 12")
    A("s_lshl_b32 s54, s49, 2")
    A("s_add_u32 s54, s54, s48")
    A("s_mul_i32 s55, s54, 40960")
    A(f"s_add_u32 s55, s55, {WS_O:#x}")
    A("v_lshlrev_b32 v9, 4, v1")
    A("s_waitcnt lgkmcnt(0)")
    srd(A, SWO, S_WO, NB_WO)
    srd(A, SWS, S_WS, WS_SIZE)
    OF = 64
    for st in range(5):
        A(f"s_add_u32 m0, s53, {st*16384}")
        for i in range(4):
            A(f"buffer_load_dwordx4 v{5+i}, s[{SWO}:{SWO+3}], s51 offen offset:{1024*i}{Ctx.nt_wo} lds")
        A(f"s_add_u32 s51, s51, {128*1280}")
        for i in range(8):
            A(f"buffer_load_dwordx4 {vr(OF+32*st+4*i,4)}, v9, s[{SWS}:{SWS+3}], s55 offen offset:{1024*(i&3)}")
            if i & 3 == 3:
                A("s_add_u32 s55, s55, 4096")
    stamp(A, 2)
    srd(A, SO, S_OUT, NB_OUT)
    A("v_bfe_u32 v10, v1, 2, 2")
    A("v_lshrrev_b32 v11, 5, v1")
    A("v_lshl_add_u32 v11, v11, 3, v10")
    A("v_lshlrev_b32 v11, 7, v11")
    A("v_and_b32 v12, 1, v1")
    A("v_lshl_add_u32 v11, v12, 6, v11")
    A("v_bfe_u32 v12, v1, 4, 1")
    A("v_lshl_add_u32 v11, v12, 4, v11")
    A("v_bfe_u32 v12, v1, 1, 1")
    A("v_lshl_add_u32 v11, v12, 3, v11")
    A("v_and_b32 v10, 2, v10")
    A("v_lshl_add_u32 v10, v10, 4, v11")
    A("v_xor_b32 v11, 32, v10")
    A("v_add_u32 v12, 0xc000, v10")
    A("v_add_u32 v13, 0xc000, v11")
    ACC = 16
    WF = (48, 56)

    def rd(k, T, half, b):
        off = (16 * k + 4 * half) * 128
        a = 10 + T
        if off >= 0xc000:
            off -= 0xc000; a += 2
        return f"ds_read_b64_tr_b16 {vr(WF[b]+4*T+2*half,2)}, v{a} offset:{off}"

    A("s_waitcnt vmcnt(48)")
    A("s_barrier")
    stamp(A, 3)
    if Ctx.stamps:
        A("s_waitcnt lgkmcnt(0)")
    for T in range(2):
        A(rd(0, T, 0, 0)); A(rd(0, T, 1, 0))
    for k in range(40):
        b = k & 1
        for T in range(2):
            A(f"s_waitcnt lgkmcnt({2 if k < 39 or T == 0 else 0})")
            c = vr(ACC + 16 * T, 16) if k else "0"
            A(f"v_mfma_f32_32x32x16_bf16 {vr(ACC+16*T,16)}, {vr(WF[b]+4*T,4)}, {vr(OF+4*k,4)}, {c}")
            if k + 1 < 40:
                if T == 0 and (k + 1) % 8 == 0:
                    A(f"s_waitcnt vmcnt({48 - 12*((k+1)//8)})")
                    A("s_barrier")
                A(rd(k + 1, T, 0, 1 - b)); A(rd(k + 1, T, 1, 1 - b))
    stamp(A, 4)
    A("s_mul_i32 s56, s48, 4608")
    A(f"s_add_u32 s56, s56, 81920")
    A("v_and_b32 v10, 31, v1")
    A("v_mul_u32_u24 v10, 144, v10")
    A("v_lshrrev_b32 v11, 5, v1")
    A("v_lshl_add_u32 v10, v11, 6, v10")
    A("v_add_u32 v10, s56, v10")
    A("v_mul_u32_u24 v11, 144, v2")
    A("v_lshl_add_u32 v11, v3, 4, v11")
    A("v_add_u32 v11, s56, v11")
    A("v_mul_u32_u24 v12, 2560, v2")
    A("v_lshl_add_u32 v12, v3, 4, v12")
    A(f"s_mul_i32 s57, s54, {32*2560}")
    A("s_add_u32 s57, s57, s52")
    for i in range(16):
        A(f"v_cvt_pk_bf16_f32 v{48+i}, v{ACC+2*i}, v{ACC+2*i+1}")
    for i in range(4):
        A(f"ds_write_b128 v10, {vr(48+4*i,4)} offset:{16*i}")
    A("s_waitcnt lgkmcnt(0)")
    for i in range(4):
        A(f"ds_read_b128 {vr(64+4*i,4)}, v11 offset:{8*144*i}")
    for i in range(4):
        A(f"s_waitcnt lgkmcnt({3-i})")
        A(f"buffer_store_dwordx4 {vr(64+4*i,4)}, v12, s[{SO}:{SO+3}], s57 offen")
        if i < 3:
            A(f"s_add_u32 s57, s57, {8*2560}")
    stamp(A, 6)
    stamp_flush(A, kern, SWS)
    A("s_endpgm")


def role_post(A, kern):
    SQ, SO, SWS = 32, 36, 44
    A("s_mul_i32 s50, s49, 6554")
    A("s_lshr_b32 s50, s50, 16")
    A("s_mul_i32 s51, s50, 10")
    A("s_sub_u32 s51, s49, s51")
    A("v_lshrrev_b32 v2, 3, v1")
    A("v_and_b32 v3, 7, v1")
    A("v_lshlrev_b32 v4, 12, v2")
    A("v_lshl_add_u32 v4, v3, 4, v4")
    A("s_lshl_b32 s52, s51, 18")
    A("s_lshl_b32 s53, s50, 7")
    A("s_add_u32 s52, s52, s53")
    A(f"s_add_u32 s52, s52, {WS_YT:#x}")
    A("s_lshl_b32 s56, s48, 13")
    A("s_lshr_b32 s54, s50, 3")
    A("s_lshl_b32 s54, s54, 9")
    A("s_bfe_u32 s55, s50, 0x10002")
    A("s_lshl_b32 s55, s55, 4")
    A("s_add_u32 s54, s54, s55")
    A("s_bfe_u32 s55, s50, 0x10001")
    A("s_lshl_b32 s55, s55, 7")
    A("s_add_u32 s54, s54, s55")
    A("s_and_b32 s55, s50, 1")
    A("s_lshl_b32 s55, s55, 1")
    A("s_add_u32 s54, s54, s55")
    A("v_and_b32 v5, 3, v2")
    A("v_lshrrev_b32 v6, 2, v2")
    A("v_lshl_add_u32 v5, v5, 5, v6")
    A("v_mul_u32_u24 v6, 1280, v5")
    A("v_lshlrev_b32 v7, 1, v6")
    A("v_lshl_add_u32 v6, v3, 4, v6")
    A("v_lshl_add_u32 v7, v3, 4, v7")
    A("s_mul_i32 s54, s54, 1280")
    A("s_lshl_b32 s53, s51, 7")
    A("s_lshl_b32 s55, s54, 1")
    A("s_add_u32 s54, s54, s53")
    A("s_add_u32 s55, s55, s53")
    A("s_add_u32 s55, s55, 1280")
    A("s_waitcnt lgkmcnt(0)")
    srd(A, SWS, S_WS, WS_SIZE)
    srd(A, SQ, S_BQ, NB_X)
    QR, YR = 16, 48
    rows = [0, 4, 8, 12, 256, 260, 264, 268]
    for i in range(8):
        A(f"v_xor_b32 v8, {16*i}, v4")
        A(f"s_add_u32 m0, s56, {1024*i}")
        A(f"buffer_load_dwordx4 v8, s[{SWS}:{SWS+3}], s52 offen lds")
        A(f"s_add_u32 s52, s52, {8*4096}")
    for i in range(8):
        A(f"s_add_u32 s57, s54, {rows[i]*1280}")
        A(f"buffer_load_dwordx4 {vr(QR+4*i,4)}, v6, s[{SQ}:{SQ+3}], s57 offen{Ctx.nt_s}")
    stamp(A, 2)
    srd(A, SO, S_OUT, NB_OUT)
    A("v_xor_b32 v8, v2, v3")
    A("v_lshlrev_b32 v8, 4, v8")
    A("v_lshl_add_u32 v8, v3, 10, v8")
    A("v_add_u32 v8, s56, v8")
    A("s_mov_b32 s59, 0xffff0000")
    A("s_waitcnt vmcnt(8)")
    for c in range(8):
        A(f"ds_read_b128 {vr(YR+4*c,4)}, v8 offset:{128*c}")
    A("s_waitcnt lgkmcnt(0)")
    stamp(A, 3)
    YF, QF, OUT = 80, 88, 96
    for i in range(8):
        A(f"s_waitcnt vmcnt(7)")
        for c in range(8):
            if i & 1:
                A(f"v_and_b32 v{YF+c}, s59, v{YR+4*c+i//2}")
            else:
                A(f"v_lshlrev_b32 v{YF+c}, 16, v{YR+4*c+i//2}")
        for k in range(4):
            A(f"v_lshlrev_b32 v{QF+2*k}, 16, v{QR+4*i+k}")
            A(f"v_and_b32 v{QF+2*k+1}, s59, v{QR+4*i+k}")
        for c in range(0, 8, 2):
            A(f"v_pk_mul_f32 {vr(YF+c,2)}, {vr(YF+c,2)}, {vr(QF+c,2)}")
        for k in range(4):
            A(f"v_cvt_pk_bf16_f32 v{OUT+4*i+k}, v{YF+2*k}, v{YF+2*k+1}")
        A(f"s_add_u32 s57, s55, {rows[i]*2560}")
        A(f"buffer_store_dwordx4 {vr(OUT+4*i,4)}, v7, s[{SO}:{SO+3}], s57 offen")
    stamp(A, 6)
    stamp_flush(A, kern, SWS)
    A("s_endpgm")
```

```python
import sys
from asm import Asm
from roles import *
from roles2 import *

NAME = "concat_heads__linear_kernel_hedgehog__ssm_conv_h3__prompt"


def kernel_head(A, name):
    A.raw(f".globl {name}")
    A.raw(".p2align 8")
    A.raw(f".type {name},@function")
    A.label(name)


def descriptor(name, vgpr, accum):
    return f""".p2align 6
.amdhsa_kernel {name}
  .amdhsa_next_free_vgpr {vgpr}
  .amdhsa_next_free_sgpr 102
  .amdhsa_accum_offset {accum}
  .amdhsa_group_segment_fixed_size 0
  .amdhsa_kernarg_size 104
  .amdhsa_user_sgpr_count 2
  .amdhsa_user_sgpr_kernarg_segment_ptr 1
  .amdhsa_system_sgpr_workgroup_id_x 1
.end_amdhsa_kernel
"""


def build(extra_empty=0):
    A = Asm()
    kernel_head(A, "k1_kernel")
    load_kernargs(A)
    stamp_init(A)
    A("s_cmp_ge_u32 s2, 192")
    A("s_cbranch_scc1 K1_pre")
    A("s_and_b32 s49, s2, 3")
    A("s_lshl_b32 s49, s49, 2")
    A("s_bfe_u32 s50, s2, 0x20003")
    A("s_add_u32 s49, s49, s50")
    A("s_bfe_u32 s52, s2, 0x10002")
    A("s_lshr_b32 s53, s2, 5")
    A("s_lshl_b32 s54, s52, 1")
    A("s_add_u32 s54, s54, s53")
    A("s_lshl_b32 s55, s52, 2")
    A("s_add_u32 s55, s55, s53")
    A("s_sub_u32 s55, s55, 2")
    A("s_cmp_lt_u32 s2, 64")
    A("s_cselect_b32 s50, s54, s55")
    A("s_cselect_b32 s51, 1, 0")
    role_gemm(A, 0)
    A.label("K1_pre")
    A("s_cmp_ge_u32 s2, 272")
    A("s_cbranch_scc1 K1_end")
    wave_id(A)
    A("s_sub_u32 s49, s2, 192")
    A("s_lshl_b32 s49, s49, 2")
    A("s_add_u32 s49, s49, s48")
    role_pre(A, 0)
    A.label("K1_end")
    A("s_endpgm")
    kernel_head(A, "k2_kernel")
    load_kernargs(A)
    stamp_init(A)
    wave_id(A)
    A("s_cmp_ge_u32 s2, 160")
    A("s_cbranch_scc1 K2_o")
    A("s_lshl_b32 s49, s2, 2")
    A("s_add_u32 s49, s49, s48")
    role_conv(A, 1)
    A.label("K2_o")
    A("s_cmp_ge_u32 s2, 224")
    A("s_cbranch_scc1 K2_end")
    A("s_sub_u32 s50, s2, 160")
    A("s_lshr_b32 s49, s50, 1")
    A("s_and_b32 s50, s50, 1")
    A("s_lshl_b32 s50, s50, 5")
    role_o(A, 1, 8)
    A.label("K2_end")
    A("s_endpgm")
    kernel_head(A, "k3_kernel")
    load_kernargs(A)
    stamp_init(A)
    wave_id(A)
    A("s_cmp_ge_u32 s2, 160")
    A("s_cbranch_scc1 K3_post")
    A("s_and_b32 s49, s2, 15")
    A("s_lshr_b32 s50, s2, 4")
    role_wo(A, 2)
    A.label("K3_post")
    A("s_cmp_ge_u32 s2, 240")
    A("s_cbranch_scc1 K3_end")
    A("s_sub_u32 s49, s2, 160")
    A("s_lshl_b32 s49, s49, 2")
    A("s_add_u32 s49, s49, s48")
    role_post(A, 2)
    A.label("K3_end")
    A("s_endpgm")
    if extra_empty:
        kernel_head(A, "k4_kernel")
        A("s_endpgm")
    head = [
        "; generated by gen/gen_s.py",
        "; @launch kernel=k1_kernel grid=(272,1,1) block=(256,1,1) lds=163840",
        "; @launch kernel=k2_kernel grid=(224,1,1) block=(256,1,1) lds=98304",
        "; @launch kernel=k3_kernel grid=(240,1,1) block=(256,1,1) lds=100352",
    ]
    for _ in range(extra_empty):
        head.append("; @launch kernel=k4_kernel grid=(256,1,1) block=(256,1,1) lds=0")
    txt = "\n".join(head) + '\n.amdgcn_target "amdgcn-amd-amdhsa--gfx950"\n.text\n' + A.text()
    txt += '.section .rodata,"a"\n'
    txt += descriptor("k1_kernel", 256, 256) + descriptor("k2_kernel", 512, 256) + descriptor("k3_kernel", 256, 256)
    if extra_empty:
        txt += descriptor("k4_kernel", 8, 8)
    return txt


if __name__ == "__main__":
    out = sys.argv[1]
    Ctx.stamps = "stamps" in sys.argv[2:]
    if "ntg" in sys.argv: Ctx.nt_g = " nt"
    if "nts" in sys.argv: Ctx.nt_s = " nt"
    if "ntwo" in sys.argv: Ctx.nt_wo = " nt"
    if "rot" in sys.argv: Ctx.rot = True
    ee = [int(a[5:]) for a in sys.argv[2:] if a.startswith("empty")]
    open(out, "w").write(build(ee[0] if ee else 0))
```

```python
import sys
from asm import Asm, vr, ar, sr
from roles import (WS_PHIQ, WS_PART, WS_O, WS_KVT, WS_YT, WS_STAMP, WS_SIZE, S_X, S_W, S_WPHI, S_WO, S_BQ, S_BK, S_BV,
                   S_SH, S_SSK, S_SSD, S_OUT, S_DBG, S_WS, NB_X, NB_W, NB_WPHI, NB_WO, NB_SH, NB_SSK, NB_OUT, LOG2E,
                   Ctx, load_kernargs, srd, stamp, stamp_init, softmax20)

NAME = "concat_heads__linear_kernel_hedgehog__ssm_conv_h3__prompt"
WS_FLAG = 0xF00000
F1, F2, F3, F0, F4 = (WS_FLAG + 128 * o for o in (0, 512, 1024, 1536, 1856))
WS_EPOCH = WS_FLAG + 128 * 2560 + 64
SWS = 44
SC = " sc1"
SLOT = 36864
L_WP = 147456
L_Z = L_WP + 8192
L_SYNC = L_Z + 4096
L_PHI = 0
L_V = 128 * 336
L_WOB = 73728
L_OT = 65536
CV_LDS = 8768


class Opt:
    rot = False
    LA = 2
    nt_s = " nt"
    codepf = True
    wopf = True


def end_wave(A):
    if Ctx.stamps:
        stamp(A, 15, True)
        A("s_waitcnt lgkmcnt(0)")
        A("s_mov_b64 exec, -1")
        A("v_mbcnt_lo_u32_b32 v1, -1, 0")
        A("v_mbcnt_hi_u32_b32 v1, -1, v1")
        A("v_mov_b32 v2, 0")
        for k in range(16):
            A(f"v_mov_b32 v3, s{64+2*k}")
            A(f"v_cmp_eq_u32 vcc, {k}, v1")
            A("v_cndmask_b32 v2, v2, v3, vcc")
        A("s_lshl_b32 s62, s2, 3")
        A("s_add_u32 s62, s62, s100")
        A("s_lshl_b32 s62, s62, 6")
        A(f"s_add_u32 s62, s62, {WS_STAMP:#x}")
        A("v_lshlrev_b32 v1, 2, v1")
        A("s_mov_b64 exec, 0xffff")
        A(f"buffer_store_dword v2, v1, s[{SWS}:{SWS+3}], s62 offen")
    A("s_endpgm")


def stampw(A, k):
    stamp(A, k)
    if Ctx.stamps:
        A("s_waitcnt lgkmcnt(0)")


TAG = 30


def poll(A, vt, voff, soff, sleep=1):
    L, Ld = A.newlabel("L_poll"), A.newlabel("L_polld")
    A("s_mov_b32 s101, 0x40000")
    A.label(L)
    A(f"buffer_load_dwordx2 {vr(vt,2)}, v{voff}, s[{SWS}:{SWS+3}], {soff} offen{SC}")
    A("s_waitcnt vmcnt(0)")
    A(f"v_cmp_eq_u64 vcc, s[{TAG}:{TAG+1}], {vr(vt,2)}")
    A("s_cmp_eq_u64 vcc, -1")
    A(f"s_cbranch_scc1 {Ld}")
    A(f"s_sleep {sleep}")
    A("s_sub_u32 s101, s101, 1")
    A("s_cmp_eq_u32 s101, 0")
    A(f"s_cbranch_scc0 {L}")
    A("s_endpgm")
    A.label(Ld)


def set_flag(A, vt, soff):
    A(f"v_mov_b32 v{vt}, s{TAG}")
    A(f"v_mov_b32 v{vt+1}, s{TAG+1}")
    A(f"v_lshlrev_b32 v{vt+2}, 3, v1")
    A("s_waitcnt vmcnt(0)")
    A("s_mov_b64 exec, 0xffff")
    A(f"buffer_store_dwordx2 {vr(vt,2)}, v{vt+2}, s[{SWS}:{SWS+3}], {soff} offen{SC}")
    A("s_mov_b64 exec, -1")


def lds_arrive(A, vt, word):
    A(f"v_mov_b32 v{vt}, {L_SYNC + 4*word}")
    A(f"v_mov_b32 v{vt+1}, 1")
    A("s_waitcnt lgkmcnt(0)")
    A("s_mov_b64 exec, 1")
    A(f"ds_add_u32 v{vt}, v{vt+1}")
    A("s_mov_b64 exec, -1")


def lds_wait(A, vt, word, n, setaddr=True, sleep=0):
    L, Ld = A.newlabel("L_lw"), A.newlabel("L_lwd")
    if setaddr:
        A(f"v_mov_b32 v{vt}, {L_SYNC + 4*word}")
    A("s_mov_b32 s101, 0x400000")
    A.label(L)
    A(f"ds_read_b32 v{vt+1}, v{vt}")
    A("s_waitcnt lgkmcnt(0)")
    A(f"v_cmp_le_u32 vcc, {n}, v{vt+1}")
    A(f"s_cbranch_vccnz {Ld}")
    if sleep:
        A(f"s_sleep {sleep}")
    A("s_sub_u32 s101, s101, 1")
    A("s_cmp_eq_u32 s101, 0")
    A(f"s_cbranch_scc0 {L}")
    A("s_endpgm")
    A.label(Ld)


class Lgkm:
    def __init__(self, A):
        self.A, self.n, self.done, self.tag = A, 0, 0, {}

    def issue(self, text, tag=None):
        self.A(text)
        self.n += 1
        if tag is not None:
            self.tag[tag] = self.n

    def wait(self, *tags):
        need = max(self.tag[t] for t in tags)
        if need > self.done:
            self.A(f"s_waitcnt lgkmcnt({min(15, self.n - need)})")
            self.done = max(need, self.n - 15) if self.n - need > 15 else need

    def all(self):
        if self.done < self.n:
            self.A("s_waitcnt lgkmcnt(0)")
            self.done = self.n


def dbg_srd(A, d):
    srd(A, d, S_DBG, 256)


def handshake_issue(A, sd, vt):
    dbg_srd(A, sd)
    A(f"buffer_load_dwordx2 {vr(vt,2)}, off, s[{sd}:{sd+3}], 0{SC}")


def handshake_check(A, sd, vt):
    L, Lc, Ld = A.newlabel("L_hs"), A.newlabel("L_hsc"), A.newlabel("L_hsd")
    A("s_mov_b32 s101, 0x40000")
    A(f"s_branch {Lc}")
    A.label(L)
    A("s_sleep 8")
    A(f"buffer_load_dwordx2 {vr(vt,2)}, off, s[{sd}:{sd+3}], 0{SC}")
    A.label(Lc)
    A("s_waitcnt vmcnt(0)")
    A(f"v_readfirstlane_b32 s{TAG}, v{vt}")
    A(f"v_readfirstlane_b32 s{TAG+1}, v{vt+1}")
    A(f"s_cmp_lg_u32 s{TAG}, s{TAG+1}")
    A(f"s_cbranch_scc1 {Ld}")
    A("s_sub_u32 s101, s101, 1")
    A("s_cmp_eq_u32 s101, 0")
    A(f"s_cbranch_scc0 {L}")
    A("s_endpgm")
    A.label(Ld)
    A("s_nop 0")


def handshake(A, sd, vt):
    handshake_issue(A, sd, vt)
    handshake_check(A, sd, vt)


def role_loader(A):
    SX, SW, SP = 32, 36, 40
    VX, VW = 2, 6
    t0, t1, t2, t3 = 11, 12, 13, 14
    A("s_setprio 1")
    A(f"v_lshrrev_b32 v{t0}, 3, v1")
    A(f"v_mul_u32_u24 v{t0}, 1280, v{t0}")
    A(f"v_lshrrev_b32 v{t1}, 4, v1")
    A(f"v_and_b32 v{t2}, 7, v1")
    A(f"v_xor_b32 v{t1}, v{t1}, v{t2}")
    A(f"v_xor_b32 v{t2}, 4, v{t1}")
    A(f"v_lshl_add_u32 v{VX}, v{t1}, 4, v{t0}")
    A(f"v_lshl_add_u32 v{VX+1}, v{t2}, 4, v{t0}")
    A(f"v_add_u32 v{VX+2}, {2*(8*1280-1024)}, v{VX}")
    A(f"v_add_u32 v{VX+3}, {3*(8*1280-1024)}, v{VX+1}")
    A(f"v_add_u32 v{VX+1}, {8*1280-1024}, v{VX+1}")
    A("s_cmp_eq_u32 s51, 0")
    A("s_cselect_b32 s56, 1120, 0")
    for i in range(5):
        A(f"v_add_u32 v{t0}, {64*i}, v1")
        A(f"v_mul_u32_u24 v{t1}, 3277, v{t0}")
        A(f"v_lshrrev_b32 v{t1}, 16, v{t1}")
        A(f"v_mul_u32_u24 v{t2}, 20, v{t1}")
        A(f"v_sub_u32 v{t0}, v{t0}, v{t2}")
        A(f"v_mul_u32_u24 v{t1}, 3840, v{t1}")
        A(f"v_lshl_add_u32 v{t1}, v{t0}, 4, v{t1}")
        A(f"v_cmp_lt_u32 vcc, 9, v{t0}")
        A(f"v_add_u32 v{t2}, s56, v{t1}")
        A(f"v_cndmask_b32 v{VW+i}, v{t1}, v{t2}, vcc")
        if i & 3:
            A(f"v_subrev_u32 v{VW+i}, {1024*(i&3)}, v{VW+i}")
    A("s_lshl_b32 s52, s49, 2")
    A("s_add_u32 s52, s52, s48")
    A(f"s_mul_i32 s52, s52, {32*1280}")
    A(f"s_mul_i32 s53, s48, {16*3840}")
    A("s_mul_i32 s57, s50, 160")
    A("s_add_u32 s58, s57, 1280")
    A("s_lshl_b32 s57, s57, 1")
    A("s_cmp_eq_u32 s51, 0")
    A("s_cselect_b32 s57, s58, s57")
    A("s_add_u32 s53, s53, s57")
    if Opt.rot:
        A("s_and_b32 s30, s49, 3")
        A("s_lshl_b32 s30, s30, 2")
        A("s_lshr_b32 s30, 0x8530, s30")
        A("s_and_b32 s30, s30, 15")
        A("s_and_b32 s31, s99, 28")
        A("s_lshr_b32 s31, 0x875320, s31")
        A("s_and_b32 s31, s31, 15")
        A("s_add_u32 s30, s30, s31")
        A("s_sub_u32 s31, s30, 10")
        A("s_cmp_ge_u32 s30, 10")
        A("s_cselect_b32 s30, s31, s30")
        A("s_lshl_b32 s31, s30, 7")
        A("s_add_u32 s52, s52, s31")
        A(f"s_mov_b32 s96, {64*3840}")
        A("s_movk_i32 s97, 128")
        A("s_mul_i32 s31, s30, s96")
        A("s_add_u32 s53, s53, s31")
    A("s_lshl_b32 s54, s48, 12")
    A("s_mul_i32 s55, s48, 5120")
    A("s_add_u32 s55, s55, 16384")
    A("s_mul_i32 s57, s50, 3200")
    A("s_lshl_b32 s57, s57, s51")
    A("s_lshl_b32 s58, s48, 11")
    A("s_add_u32 s57, s57, s58")
    A(f"v_lshlrev_b32 v{t3}, 4, v1")
    A("s_waitcnt lgkmcnt(0)")
    srd(A, SX, S_X, NB_X)
    srd(A, SW, S_W, NB_W)

    def dma_stage(s):
        sl = (s % 4) * SLOT
        A(f"s_add_u32 m0, s54, {sl}")
        for i in range(4):
            A(f"buffer_load_dwordx4 v{VX+i}, s[{SX}:{SX+3}], s52 offen offset:{1024*i} lds")
        A(f"s_add_u32 m0, s55, {sl}")
        for i in range(4):
            A(f"buffer_load_dwordx4 v{VW+i}, s[{SW}:{SW+3}], s53 offen offset:{1024*i} lds")
        A(f"s_add_u32 m0, s55, {sl+4096}")
        A(f"buffer_load_dwordx4 v{VW+4}, s[{SW}:{SW+3}], s53 offen lds")
        if s < 9:
            if Opt.rot:
                A("s_add_u32 s30, s30, 1")
                A("s_cmp_eq_u32 s30, 10")
                A(f"s_cselect_b32 s31, {(-1152)&0xffffffff:#x}, s97")
                A(f"s_cselect_b32 s3, {(-9*64*3840)&0xffffffff:#x}, s96")
                A("s_add_u32 s52, s52, s31")
                A("s_add_u32 s53, s53, s3")
            else:
                A("s_add_u32 s52, s52, 128")
                A(f"s_add_u32 s53, s53, {64*3840}")

    LA = Opt.LA
    dma_stage(0)
    stamp(A, 2)
    srd(A, SP, S_WPHI, NB_WPHI)
    A(f"s_add_u32 m0, s58, {L_WP}")
    A(f"buffer_load_dwordx4 v{t3}, s[{SP}:{SP+3}], s57 offen lds")
    A(f"buffer_load_dwordx4 v{t3}, s[{SP}:{SP+3}], s57 offen offset:1024 lds")
    srd(A, SWS, S_WS, WS_SIZE)
    issued = 0
    extra = 0
    for s in range(10):
        while issued < min(s + LA - 1, 9):
            issued += 1
            dma_stage(issued)
        A(f"s_waitcnt vmcnt({9*(issued-s) + extra})")
        A("s_barrier")
        if s in (0, 3, 6, 9):
            stamp(A, 3 + s // 3)
        if s in (7, 8):
            stamp(A, 5 + s)
    A("s_setprio 0")
    srd(A, 36, S_WO, NB_WO)
    if Opt.wopf:
        A("s_lshl_b32 s52, s99, 2")
        A("s_add_u32 s52, s52, s48")
        A("s_lshl_b32 s53, s48, 4")
        A("s_add_u32 s53, s53, s99")
        A("s_add_u32 s53, s53, 56")
        A("s_cmp_eq_u32 s51, 0")
        A("s_cselect_b32 s52, s53, s52")
        A("s_cselect_b32 s53, 64, 32")
        A("s_add_u32 s53, s53, s52")
        A("s_lshl_b32 s52, s52, 13")
        A("s_lshl_b32 s53, s53, 13")
        A("v_lshlrev_b32 v2, 7, v1")
        A("buffer_load_dword v24, v2, s[36:39], s52 offen")
        A("buffer_load_dword v25, v2, s[36:39], s53 offen")
    Lsp = A.newlabel("L_spare")
    A("s_lshr_b32 s50, s99, 2")
    A("s_cmp_eq_u32 s50, 1")
    A(f"s_cbranch_scc1 {Lsp}")
    role_wo(A)
    A.label(Lsp)
    A("s_barrier")
    A("s_mul_i32 s49, s98, 80")
    A("s_sub_u32 s50, s99, 4")
    A("s_lshl_b32 s50, s50, 2")
    A("s_add_u32 s49, s49, s50")
    A("s_add_u32 s49, s49, s48")
    A("s_add_u32 s49, s49, 64")
    A(f"s_mul_i32 s56, s48, {CV_LDS}")
    A(f"s_add_u32 s56, s56, {L_WOB}")
    A("s_mov_b32 s63, 1")
    conv_load_h(A)
    A("s_branch L_conv")


def role_wo(A):
    SO, SWO = 32, 36
    WR = 64
    A("v_lshrrev_b32 v2, 2, v1")
    A("v_and_b32 v3, 3, v1")
    A("v_mul_u32_u24 v4, 1280, v2")
    A("v_lshl_add_u32 v4, v3, 4, v4")
    for i in range(1, 4):
        A(f"v_add_u32 v{4+i}, {i*(16*1280-1024)}, v4")
    A(f"v_add_u32 v8, {4*16*1280}, v4")
    A("s_sub_u32 s50, s50, 1")
    A("s_max_i32 s50, s50, 0")
    A("s_lshl_b32 s52, s50, 8")
    A("s_lshl_b32 s53, s48, 6")
    A("s_add_u32 s52, s52, s53")
    A("s_mov_b32 s51, s52")
    A("s_mul_i32 s53, s48, 15360")
    A(f"s_add_u32 s53, s53, {L_WOB}")

    def chunk(c):
        b = (c % 3) * 5120
        A(f"s_add_u32 m0, s53, {b}")
        for i in range(4):
            A(f"buffer_load_dwordx4 v{4+i}, s[{SWO}:{SWO+3}], s51 offen offset:{1024*i} lds")
        A(f"s_add_u32 m0, s53, {b+4096}")
        A(f"buffer_load_dwordx4 v8, s[{SWO}:{SWO+3}], s51 offen lds")
        A(f"s_add_u32 s51, s51, {80*1280}")

    Lkv, Lj = A.newlabel("L_wokv"), A.newlabel("L_woj")
    A("s_cmp_ge_u32 s99, 8")
    A(f"s_cbranch_scc1 {Lkv}")
    A("s_barrier")
    A("s_barrier")
    A.label(Lkv)
    for c in range(2):
        chunk(c)
    A("s_cmp_lt_u32 s99, 8")
    A(f"s_cbranch_scc1 {Lj}")
    A("s_barrier")
    A.label(Lj)
    chunk(2)
    A("v_bfe_u32 v10, v1, 2, 2")
    A("v_lshrrev_b32 v11, 5, v1")
    A("v_and_b32 v12, 1, v1")
    A("v_lshlrev_b32 v12, 5, v12")
    A("v_bfe_u32 v13, v1, 4, 1")
    A("v_lshl_add_u32 v12, v13, 4, v12")
    A("v_bfe_u32 v13, v1, 1, 1")
    A("v_lshl_add_u32 v12, v13, 3, v12")
    A("v_lshl_add_u32 v12, v10, 6, v12")
    A("v_add_u32 v12, s53, v12")
    A("v_lshl_add_u32 v13, v11, 8, v12")
    A("v_mul_u32_u24 v14, 2560, v11")
    A("v_add_u32 v14, v14, v12")
    for c in range(8):
        b = (c % 3) * 5120
        A(f"s_waitcnt vmcnt({5*(min(c+2,7)-c)})")
        for hh in range(4):
            for half in range(2):
                A(f"ds_read_b64_tr_b16 {vr(WR+4*(4*c+hh)+2*half,2)}, v13 offset:{b+(20*hh+8*half)*64}")
        for half in range(2):
            A(f"ds_read_b64_tr_b16 {vr(WR+128+4*c+2*half,2)}, v14 offset:{b+(20*half+16)*64}")
        A("s_waitcnt lgkmcnt(0)")
        if c + 3 < 8:
            chunk(c + 3)
    stamp(A, 7)
    handshake(A, 40, 16)
    srd(A, SO, S_OUT, NB_OUT)
    A("s_and_b32 s54, s99, 3")
    A("s_lshl_b32 s55, s98, 2")
    A("s_add_u32 s54, s54, s55")
    A("s_lshr_b32 s55, s54, 1")
    A("s_lshl_b32 s55, s55, 12")
    A(f"s_add_u32 s55, s55, {F3:#x}")
    A("v_and_b32 v9, 31, v1")
    A("v_lshrrev_b32 v15, 1, v1")
    A("v_lshlrev_b32 v15, 7, v15")
    A("s_mul_i32 s57, s54, 81920")
    A(f"s_add_u32 s57, s57, {WS_O:#x}")
    A("v_lshlrev_b32 v5, 4, v1")
    A("s_lshr_b32 s58, s48, 1")
    A("s_mul_i32 s58, s58, 40960")
    A("s_and_b32 s59, s48, 1")
    A("s_lshl_b32 s59, s59, 12")
    A("s_add_u32 s58, s58, s59")
    A("s_add_u32 s57, s57, s58")
    A(f"s_add_u32 s58, s58, {L_OT}")
    A(f"v_add_u32 v6, {L_OT}, v5")
    A(f"v_add_u32 v7, {L_OT+40960}, v5")
    A("v_lshlrev_b32 v10, 3, v9")
    A("v_lshl_add_u32 v10, v11, 9, v10")
    A(f"v_add_u32 v10, {L_OT+32768}, v10")
    A("s_mul_i32 s56, s48, 5120")
    A("v_mul_u32_u24 v12, 80, v9")
    A("v_lshl_add_u32 v12, v11, 5, v12")
    A("v_add_u32 v12, s56, v12")
    A("v_mul_u32_u24 v13, 80, v2")
    A("v_lshl_add_u32 v13, v3, 4, v13")
    A("v_add_u32 v13, s56, v13")
    A("v_mul_u32_u24 v14, 2560, v2")
    A("v_lshl_add_u32 v14, v3, 4, v14")
    A(f"s_mul_i32 s59, s54, {64*2560}")
    A("s_add_u32 s59, s59, s52")
    A("s_barrier")
    stamp(A, 8)
    poll(A, 16, 15, "s55")
    stamp(A, 9)
    for k in range(5):
        A(f"s_add_u32 m0, s58, {8192*k}")
        for i in range(4):
            A(f"buffer_load_dwordx4 v5, s[{SWS}:{SWS+3}], s57 offen offset:{1024*i}{SC} lds")
        if k < 4:
            A("s_add_u32 s57, s57, 8192")
    if Ctx.stamps:
        A("s_waitcnt lgkmcnt(0)")
    ACC = (16, 32)
    OFB = 224
    T = Lgkm(A)

    def rd(f):
        for t in range(2):
            d = OFB + 4 * ((2 * f + t) % 8)
            if f < 32:
                T.issue(f"ds_read_b128 {vr(d,4)}, v{6+t} offset:{1024*f}", (f, t))
            else:
                a = f - 32
                T.issue(f"ds_read_b64 {vr(d,2)}, v10 offset:{40960*t + 1024*a}")
                T.issue(f"ds_read_b64 {vr(d+2,2)}, v10 offset:{40960*t + 1024*a + 256}", (f, t))

    def rdx(f):
        if f % 8 == 0:
            A(f"s_waitcnt vmcnt({16 - 4*(f//8)})")
            A("s_barrier")
        rd(f)

    for f in range(3):
        rdx(f)
    for f in range(40):
        for t in range(2):
            T.wait((f, t))
            c = vr(ACC[t], 16) if f else "0"
            A(f"v_mfma_f32_32x32x16_bf16 {vr(ACC[t],16)}, {vr(WR+4*f,4)}, {vr(OFB+4*((2*f+t)%8),4)}, {c}")
            if t == 0 and f + 3 < 40:
                rdx(f + 3)
    stamp(A, 10)
    for t in range(2):
        for i in range(8):
            A(f"v_cvt_pk_bf16_f32 v{48+8*t+i}, v{ACC[t]+2*i}, v{ACC[t]+2*i+1}")
        for i in range(2):
            A(f"ds_write_b128 v12, {vr(48+8*t+4*i,4)} offset:{2560*t+16*i}")
    A("s_waitcnt lgkmcnt(0)")
    for i in range(4):
        A(f"ds_read_b128 {vr(64+4*i,4)}, v13 offset:{1280*i}")
    for i in range(4):
        A(f"s_waitcnt lgkmcnt({3-i})")
        A(f"buffer_store_dwordx4 {vr(64+4*i,4)}, v14, s[{SO}:{SO+3}], s59 offen")
        if i < 3:
            A(f"s_add_u32 s59, s59, {16*2560}")
    stamp(A, 11)
    end_wave(A)


def role_compute(A):
    XA, WA, AD = 144, 152, 154
    ACC = 16
    WF = (96, 116)
    XF = (136, 140)
    t0, t1, t2, t3 = 11, 12, 13, 14
    for i in range(80):
        A(f"v_mov_b32 v{ACC+i}, 0")
    A(f"v_and_b32 v{t0}, 255, v0")
    A(f"v_lshlrev_b32 v{t0}, 4, v{t0}")
    A(f"v_add_u32 v{t0}, {L_Z}, v{t0}")
    A(f"ds_write_b128 v{t0}, {vr(ACC,4)}")
    A(f"ds_write_b128 v{t0}, {vr(ACC,4)} offset:64")
    A("s_lshl_b32 s54, s48, 12")
    A(f"v_and_b32 v{t0}, 31, v1")
    A(f"v_lshrrev_b32 v{t1}, 5, v1")
    A(f"v_bfe_u32 v{t2}, v1, 1, 3")
    A(f"v_xor_b32 v{t2}, v{t2}, v{t1}")
    A(f"v_lshlrev_b32 v{t2}, 4, v{t2}")
    A(f"v_lshl_add_u32 v{t2}, v{t0}, 7, v{t2}")
    A(f"v_add_u32 v{XA}, s54, v{t2}")
    for t in range(1, 4):
        A(f"v_xor_b32 v{XA+t}, {32*t}, v{XA}")
    for t in range(4):
        A(f"v_add_u32 v{XA+4+t}, {2*SLOT}, v{XA+t}")
    R8, JJ, HH = 158, 159, 160
    A(f"v_bfe_u32 v{t0}, v1, 2, 2")
    A(f"v_lshl_add_u32 v{R8}, v{t1}, 3, v{t0}")
    A(f"v_bfe_u32 v{t2}, v1, 4, 1")
    A(f"v_bfe_u32 v{t3}, v1, 1, 1")
    A(f"v_lshl_add_u32 v{JJ}, v{t2}, 1, v{t3}")
    A(f"v_and_b32 v{HH}, 1, v1")
    A(f"v_mul_u32_u24 v{t2}, 320, v{R8}")
    A(f"v_mul_u32_u24 v{t3}, 160, v{HH}")
    A(f"v_lshl_add_u32 v{t3}, v{JJ}, 3, v{t3}")
    A(f"v_add_u32 v{WA}, v{t2}, v{t3}")
    A(f"v_add_u32 v{WA}, 16384, v{WA}")
    A(f"v_add_u32 v{WA+1}, {2*SLOT}, v{WA}")
    A("s_movk_i32 s57, 1600")
    A("s_lshl_b32 s57, s57, s51")
    A(f"v_mul_u32_u24 v{t2}, s57, v{HH}")
    A(f"v_mul_u32_u24 v{t3}, 40, v{t0}")
    A(f"v_add_u32 v{t2}, v{t2}, v{t3}")
    A(f"v_lshl_add_u32 v{t2}, v{JJ}, 3, v{t2}")
    A(f"v_add_u32 v{t2}, {L_WP}, v{t2}")
    A(f"v_mov_b32 v{t3}, {L_Z}")
    A(f"v_cmp_eq_u32 vcc, v{HH}, v{t1}")
    A(f"v_cndmask_b32 v{AD}, v{t3}, v{t2}, vcc")
    A(f"v_add_u32 v{t0}, 24, v{t2}")
    A(f"v_cndmask_b32 v{AD+3}, v{t3}, v{t0}, vcc")
    A(f"v_cmp_eq_u32 s[58:59], 0, v{JJ}")
    A("s_and_b64 s[62:63], vcc, s[58:59]")
    A("s_andn2_b64 s[58:59], vcc, s[58:59]")
    A(f"v_add_u32 v{t0}, 32, v{t2}")
    A(f"v_cndmask_b32 v{AD+1}, v{t3}, v{t0}, s[62:63]")
    A(f"v_subrev_u32 v{t0}, 8, v{t2}")
    A(f"v_cndmask_b32 v{AD+2}, v{t3}, v{t0}, s[58:59]")
    A(f"v_and_b32 v{t0}, 31, v1")
    A("s_lshl_b32 s57, s48, 5")
    A(f"v_add_u32 v{t0}, s57, v{t0}")
    A(f"v_mul_u32_u24 v8, 176, v{t0}")
    A(f"v_add_u32 v8, {L_V}, v8")
    A(f"v_mul_u32_u24 v{t3}, 80, v{t1}")
    A(f"v_add_u32 v2, v8, v{t3}")
    A(f"v_mul_u32_u24 v{t2}, 336, v{t0}")
    A(f"v_lshl_add_u32 v3, v{t3}, 1, v{t2}")
    A(f"v_mul_u32_u24 v{t0}, 336, v{R8}")
    A(f"v_mul_u32_u24 v{t1}, 5, v{HH}")
    A(f"v_add_u32 v{t1}, v{t1}, v{JJ}")
    A(f"v_lshl_add_u32 v{t0}, v{t1}, 3, v{t0}")
    A("s_mul_i32 s57, s48, 80")
    A(f"v_add_u32 v6, s57, v{t0}")
    A(f"v_lshl_add_u32 v{t0}, v{JJ}, 1, v{HH}")
    A("s_mul_i32 s57, s48, 5")
    A(f"v_add_u32 v{t1}, s57, v{t0}")
    A(f"v_cmp_gt_u32 vcc, 5, v{t0}")
    A(f"v_cndmask_b32 v{t1}, 20, v{t1}, vcc")
    A(f"v_mul_u32_u24 v{t0}, 176, v{R8}")
    A(f"v_lshl_add_u32 v{t0}, v{t1}, 3, v{t0}")
    A(f"v_add_u32 v7, {L_V}, v{t0}")
    A("v_mov_b32 v4, 0x3f803f80")
    A("v_mov_b32 v5, 0x3f803f80")
    WPF = 164
    frags = [(0, 0), (0, 1), (0, 2), (1, 0), (1, 1), (1, 2), (1, 3), (1, 4), (2, 2), (2, 3), (2, 4)]
    for r in (WPF + 4 * 2 + 2, WPF + 4 * 2 + 3, WPF + 4 * 8, WPF + 4 * 8 + 1):
        A(f"v_mov_b32 v{r}, 0")
    A(f"s_mov_b32 s60, {LOG2E:#x}")
    A(f"s_mov_b32 s61, {LOG2E:#x}")
    A("s_waitcnt lgkmcnt(0)")
    srd(A, SWS, S_WS, WS_SIZE)
    A("s_setprio 2")

    def rd_x(s, t, b):
        sl = s % 4
        return f"ds_read_b128 {vr(XF[b],4)}, v{XA + 4*(sl>>1) + t} offset:{(sl&1)*SLOT}"

    def rd_w(s, t, T, half, b):
        sl = s % 4
        return f"ds_read_b64_tr_b16 {vr(WF[b]+4*T+2*half,2)}, v{WA+(sl>>1)} offset:{(sl&1)*SLOT + (16*t+4*half)*320 + 32*T}"

    def wphi_reads(pas):
        L = []
        for fi, (Tp, u) in enumerate(frags):
            for half in range(2):
                dq = 2 * u + half
                r = WPF + 4 * fi + 2 * half
                if (Tp == 0 and dq == 5) or (Tp == 2 and dq == 4):
                    continue
                ad = {(0, 0): AD, (1, 0): AD + 1, (1, 1): AD + 2, (2, 1): AD + 3}[(Tp, dq // 5)]
                L.append(f"ds_read_b64_tr_b16 {vr(r,2)}, v{ad} offset:{dq*160 + pas*1600}")
        return L

    A("s_barrier")
    stampw(A, 3)
    A(rd_x(0, 0, 0))
    for T in range(5):
        A(rd_w(0, 0, T, 0, 0)); A(rd_w(0, 0, T, 1, 0))
    for s in range(10):
        for t in range(4):
            b = t & 1
            last = (s == 9 and t == 3)
            ns, nt = (s, t + 1) if t < 3 else (s + 1, 0)
            prev_remaining = [8, 6, 4, 2, 0]
            issued = 0
            wp = wphi_reads(0) if last else []
            for T in range(5):
                if not (t == 3 and T >= 2):
                    A(f"s_waitcnt lgkmcnt({prev_remaining[T] + issued})")
                A(f"v_mfma_f32_32x32x16_bf16 {vr(ACC+16*T,16)}, {vr(WF[b]+4*T,4)}, {vr(XF[b],4)}, {vr(ACC+16*T,16)}")
                if t < 3:
                    if T == 0:
                        A(rd_x(ns, nt, 1 - b)); issued += 1
                    A(rd_w(ns, nt, T, 0, 1 - b)); A(rd_w(ns, nt, T, 1, 1 - b)); issued += 2
                elif T == 1:
                    A("s_waitcnt lgkmcnt(0)")
                    A("s_barrier")
                    if not last:
                        A(rd_x(ns, nt, 1 - b))
                        for TT in (0, 1):
                            A(rd_w(ns, nt, TT, 0, 1 - b)); A(rd_w(ns, nt, TT, 1, 1 - b))
                    else:
                        for x in wp[:5]:
                            A(x)
                elif T >= 2:
                    if not last:
                        A(rd_w(ns, nt, T, 0, 1 - b)); A(rd_w(ns, nt, T, 1, 1 - b))
                    else:
                        for x in wp[5 * (T - 1):5 * T]:
                            A(x)
    stamp(A, 4)
    handshake_issue(A, 32, 14)
    P = 96
    E, F, TT_ = 208, 228, 248

    def phi_mfma(src):
        seen = set()
        for fi, (Tp, u) in enumerate(frags):
            c = vr(ACC + 16 * Tp, 16) if Tp in seen else "0"
            seen.add(Tp)
            A(f"v_mfma_f32_32x32x16_bf16 {vr(ACC+16*Tp,16)}, {vr(WPF+4*fi,4)}, {vr(src+4*u,4)}, {c}")

    for i in range(40):
        A(f"v_cvt_pk_bf16_f32 v{P+i}, v{ACC+2*i}, v{ACC+2*i+1}")
    Lq = A.newlabel("L_q")
    A("s_cmp_eq_u32 s51, 0")
    A(f"s_cbranch_scc0 {Lq}")
    mq = A.mark()
    for i in range(20):
        A(f"v_permlane32_swap_b32 v{P+i}, v{P+20+i}")
    A("s_waitcnt lgkmcnt(0)")
    phi_mfma(P)
    for i in range(5):
        A(f"ds_write_b128 v2, {vr(P+20+4*i,4)} offset:{16*i}")
    A("ds_write_b64 v8, v[4:5] offset:160")
    for grp, ph in ((0, 64), (1, 96)):
        softmax20(A, ACC + 20 * grp, E, F, TT_, ph)
        for i in range(5):
            A(f"ds_write_b128 v3, {vr(ph+4*i,4)} offset:{80*grp+16*i}")
    stamp(A, 5)
    lds_arrive(A, 9, 0)
    A("s_lshl_b32 s57, s50, 2")
    A("s_add_u32 s57, s57, s48")
    A("s_lshl_b32 s57, s57, 4")
    A("s_add_u32 s57, s57, s49")
    A("s_lshl_b32 s59, s57, 7")
    A(f"s_add_u32 s59, s59, {F1:#x}")
    A("s_mul_i32 s57, s57, 5120")
    A(f"s_add_u32 s57, s57, {WS_PART:#x}")
    A("s_add_u32 s58, s57, 4096")
    A("v_lshlrev_b32 v2, 4, v1")
    lds_wait(A, 9, 0, 4, setaddr=False)
    FA = 64
    T = Lgkm(A)
    for u in range(10):
        if u < 8:
            for half in range(2):
                o = (16 * u + 4 * half)
                T.issue(f"ds_read_b64_tr_b16 {vr(FA+12*u+2*half,2)}, v6 offset:{o*336}")
                T.issue(f"ds_read_b64_tr_b16 {vr(FA+12*u+4+2*half,2)}, v6 offset:{o*336+32}")
                T.issue(f"ds_read_b64_tr_b16 {vr(FA+12*u+8+2*half,2)}, v7 offset:{o*176}", u)
        if u >= 2:
            uu = u - 2
            T.wait(uu)
            for TT in range(2):
                c = vr(ACC + 16 * TT, 16) if uu else "0"
                A(f"v_mfma_f32_32x32x16_bf16 {vr(ACC+16*TT,16)}, {vr(FA+12*uu+4*TT,4)}, {vr(FA+12*uu+8,4)}, {c}")
    lds_arrive(A, 9, 1)
    A("s_mov_b32 exec_lo, 0x00ffffff")
    A("s_mov_b32 exec_hi, 0x00ffffff")
    for q in range(4):
        A(f"buffer_store_dwordx4 {vr(ACC+4*q,4)}, v2, s[{SWS}:{SWS+3}], s57 offen offset:{1024*q}{SC}")
    A(f"buffer_store_dwordx4 {vr(ACC+16,4)}, v2, s[{SWS}:{SWS+3}], s58 offen{SC}")
    A("s_mov_b64 exec, -1")
    stamp(A, 6)
    handshake_check(A, 32, 14)
    set_flag(A, 10, "s59")
    stamp(A, 7)
    role_o(A)
    end_wave(A)
    A.label(Lq)
    hq = A.mark()
    A("s_nop 1")
    A(f"v_and_b32 v{t0}, 31, v1")
    A(f"v_lshrrev_b32 v{t1}, 5, v1")
    A(f"s_mov_b32 s57, {4*64*2560}")
    A(f"v_mul_lo_u32 v{t1}, s57, v{t1}")
    A(f"v_lshl_add_u32 v2, v{t0}, 4, v{t1}")
    A(f"v_lshl_add_u32 v3, v{t0}, 3, v{t1}")
    A("s_lshl_b32 s58, s49, 2")
    A("s_add_u32 s58, s58, s48")
    A("s_lshl_b32 s57, s50, 9")
    A("s_lshl_b32 s59, s58, 2")
    A("s_add_u32 s59, s59, s57")
    A("s_lshl_b32 s59, s59, 5")
    A(f"s_add_u32 s59, s59, {F2:#x}")
    A("s_add_u32 s57, s57, s58")
    A("s_mul_i32 s57, s57, 2560")
    for pas in range(2):
        A("s_waitcnt lgkmcnt(0)")
        phi_mfma(P + 20 * pas)
        if pas == 0:
            A("s_nop 7")
            for x in wphi_reads(1):
                A(x)
        for grp in range(2):
            ph = 64 if grp == 0 else 96
            softmax20(A, ACC + 20 * grp, E, F, TT_, ph)
            if pas == 1 and grp == 0:
                handshake_check(A, 32, 14)
                set_flag(A, 10, "s59")
                A("s_add_u32 s59, s59, 8192")
            for g in range(2):
                A(f"buffer_store_dwordx4 {vr(ph+10*g,4)}, v2, s[{SWS}:{SWS+3}], s57 offen offset:{512*g}{SC}")
                A(f"buffer_store_dwordx4 {vr(ph+10*g+4,4)}, v2, s[{SWS}:{SWS+3}], s57 offen offset:{1024+512*g}{SC}")
                A(f"buffer_store_dwordx2 {vr(ph+10*g+8,2)}, v3, s[{SWS}:{SWS+3}], s57 offen offset:{2048+256*g}{SC}")
            A(f"s_add_u32 s57, s57, {64*2560}")
    stamp(A, 6)
    lds_arrive(A, 9, 0)
    set_flag(A, 10, "s59")
    stamp(A, 7)
    A.check_seam(mq, hq)
    end_wave(A)


def role_o(A):
    NT = 4
    A("s_sub_u32 s50, s99, 8")
    A("s_lshr_b32 s49, s50, 2")
    A("s_lshl_b32 s51, s98, 2")
    A("s_add_u32 s49, s49, s51")
    A("s_and_b32 s50, s50, 3")
    A("s_lshl_b32 s50, s50, 2")
    A("s_add_u32 s50, s50, s48")
    A("s_lshl_b32 s51, s49, 6")
    A("s_lshl_b32 s52, s48, 4")
    A("s_add_u32 s51, s51, s52")
    A("s_lshl_b32 s51, s51, 5")
    A(f"s_add_u32 s51, s51, {F1:#x}")
    A("s_lshr_b32 s52, s49, 3")
    A("s_lshl_b32 s52, s52, 9")
    A("s_bfe_u32 s53, s49, 0x10001")
    A("s_lshl_b32 s53, s53, 8")
    A("s_add_u32 s52, s52, s53")
    A("s_lshl_b32 s53, s50, 4")
    A("s_add_u32 s52, s52, s53")
    A("s_lshl_b32 s52, s52, 5")
    A(f"s_add_u32 s52, s52, {F2:#x}")
    A("v_lshrrev_b32 v2, 4, v1")
    A("v_lshlrev_b32 v12, 7, v2")
    A("v_and_b32 v2, 31, v1")
    A("v_min_u32 v3, 20, v2")
    A("v_and_b32 v4, 32, v1")
    A("v_add_lshl_u32 v3, v3, v4, 4")
    A("s_lshl_b32 s55, s49, 4")
    A("s_lshl_b32 s56, s48, 2")
    A("s_add_u32 s55, s55, s56")
    A("s_mul_i32 s55, s55, 5120")
    A(f"s_add_u32 s55, s55, {WS_PART:#x}")
    A("v_lshlrev_b32 v5, 4, v1")
    A("v_lshlrev_b32 v6, 3, v1")
    A("s_lshl_b32 s56, s49, 6")
    A("s_lshl_b32 s57, s50, 2")
    A("s_add_u32 s56, s56, s57")
    A("s_mul_i32 s56, s56, 2560")
    A("s_mul_i32 s54, s57, 40960")
    A("s_lshl_b32 s58, s49, 10")
    A("s_lshl_b32 s59, s49, 8")
    A(f"s_add_u32 s54, s54, {WS_O:#x}")
    A("s_add_u32 s59, s59, s54")
    A("s_add_u32 s59, s59, 32768")
    A("s_add_u32 s54, s54, s58")
    A("s_mul_i32 s58, s48, 5120")
    A("v_add_u32 v8, s58, v5")
    PR, PQ = 16, 96
    for t in range(NT):
        A(f"v_mov_b32 v{PQ+12*t+10}, 0")
        A(f"v_mov_b32 v{PQ+12*t+11}, 0")
    poll(A, 14, 12, "s51")
    stamp(A, 8)
    for p in range(4):
        for q in range(5):
            if q == 4:
                A("s_add_u32 s55, s55, 4096")
            A(f"buffer_load_dwordx4 {vr(PR+20*p+4*q,4)}, v3, s[{SWS}:{SWS+3}], s55 offen offset:{1024*(q&3)}{SC}")
        if p < 3:
            A("s_add_u32 s55, s55, 1024")
    lds_wait(A, 9, 1, 4)
    poll(A, 14, 12, "s52")
    stamp(A, 9)
    for t in range(NT):
        A(f"buffer_load_dwordx4 {vr(PQ+12*t,4)}, v5, s[{SWS}:{SWS+3}], s56 offen{SC}")
        A(f"buffer_load_dwordx4 {vr(PQ+12*t+4,4)}, v5, s[{SWS}:{SWS+3}], s56 offen offset:1024{SC}")
        A(f"buffer_load_dwordx2 {vr(PQ+12*t+8,2)}, v6, s[{SWS}:{SWS+3}], s56 offen offset:2048{SC}")
        if t < NT - 1:
            A("s_add_u32 s56, s56, 2560")
    for p in (1, 2, 3):
        for i in range(0, 20, 2):
            A(f"v_pk_add_f32 {vr(PR+i,2)}, {vr(PR+i,2)}, {vr(PR+20*p+i,2)}")
    for q in range(5):
        A(f"ds_write_b128 v8, {vr(PR+4*q,4)} offset:{1024*q}")
    lds_arrive(A, 9, 2)
    lds_wait(A, 9, 2, 4, setaddr=False)
    for p in range(4):
        for q in range(5):
            A(f"ds_read_b128 {vr(PR+20*p+4*q,4)}, v5 offset:{5120*p+1024*q}")
        if p == 2:
            A("s_waitcnt lgkmcnt(5)")
    A("s_waitcnt lgkmcnt(0)")
    for p in (1, 2, 3):
        for i in range(0, 20, 2):
            A(f"v_pk_add_f32 {vr(PR+i,2)}, {vr(PR+i,2)}, {vr(PR+20*p+i,2)}")
    KF = 36
    for i in range(10):
        A(f"v_cvt_pk_bf16_f32 v{KF+i}, v{PR+2*i}, v{PR+2*i+1}")
    A(f"v_mov_b32 v{KF+10}, 0")
    A(f"v_mov_b32 v{KF+11}, 0")
    stamp(A, 10)
    D = [144, 160, 176, 192]
    OP = [48, 56, 64, 72]
    for t in range(NT):
        A(f"s_waitcnt vmcnt({3*(NT-1-t)})")
        for u in range(3):
            c = vr(D[t], 16) if u else "0"
            A(f"v_mfma_f32_32x32x16_bf16 {vr(D[t],16)}, {vr(KF+4*u,4)}, {vr(PQ+12*t+4*u,4)}, {c}")
    for t in range(NT):
        d, o = D[t], OP[t]
        A(f"v_add_f32 v10, 0x358637bd, v{d+12}")
        A("v_rcp_f32 v10, v10")
        for i in range(0, 12, 2):
            A(f"v_pk_mul_f32 {vr(d+i,2)}, {vr(d+i,2)}, v[10:11] op_sel_hi:[1,0]")
        for i in range(6):
            A(f"v_cvt_pk_bf16_f32 v{o+i}, v{d+2*i}, v{d+2*i+1}")
        A(f"buffer_store_dwordx4 {vr(o,4)}, v5, s[{SWS}:{SWS+3}], s54 offen{SC}")
        A("s_mov_b32 exec_hi, 0")
        A(f"buffer_store_dwordx2 {vr(o+4,2)}, v6, s[{SWS}:{SWS+3}], s59 offen{SC}")
        A("s_mov_b64 exec, -1")
        if t < NT - 1:
            A("s_add_u32 s54, s54, 40960")
            A("s_add_u32 s59, s59, 40960")
    A("s_lshl_b32 s50, s50, 7")
    A("s_lshl_b32 s49, s49, 2")
    A("s_add_u32 s50, s50, s49")
    A("s_lshl_b32 s50, s50, 5")
    A(f"s_add_u32 s50, s50, {F3:#x}")
    stamp(A, 11)
    set_flag(A, 12, "s50")
    stamp(A, 12)


B_PRE = 8 * CV_LDS


def tile_decode(A):
    A("s_mul_i32 s50, s49, 6554")
    A("s_lshr_b32 s50, s50, 16")
    A("s_mul_i32 s51, s50, 10")
    A("s_sub_u32 s51, s49, s51")


def b_tile(A):
    A("s_sub_u32 s49, s2, 192")
    A("s_mul_i32 s49, s49, 5")
    A("s_add_u32 s49, s49, s48")


def conv_load_h(A):
    SH = 32
    srd(A, SH, S_SSK, NB_SSK)
    A("v_lshlrev_b32 v2, 4, v1")
    A("s_lshl_b32 s50, s49, 12")
    A("s_add_u32 m0, s56, 64")
    for i in range(4):
        A(f"buffer_load_dwordx4 v2, s[{SH}:{SH+3}], s50 offen offset:{1024*i}{Opt.nt_s} lds")


def role_pre(A):
    SK, SV, SS = 32, 36, 40
    t0, t1, t2 = 2, 3, 4
    b_tile(A)
    tile_decode(A)
    A(f"s_mul_i32 s52, s50, {64*1280}")
    A("s_lshl_b32 s53, s51, 7")
    A("s_add_u32 s52, s52, s53")
    A(f"v_lshrrev_b32 v{t0}, 3, v1")
    A(f"v_and_b32 v{t1}, 7, v1")
    A(f"v_mul_u32_u24 v{t2}, {8*1280}, v{t0}")
    A(f"v_lshl_add_u32 v{t2}, v{t1}, 4, v{t2}")
    A(f"v_add_u32 v5, s52, v{t2}")
    A(f"v_subrev_u32 v6, {3*1280}, v5")
    A(f"v_subrev_u32 v7, {2*1280}, v5")
    A(f"v_subrev_u32 v8, {1280}, v5")
    A(f"v_lshlrev_b32 v9, 6, v{t1}")
    A("s_lshl_b32 s54, s51, 9")
    A(f"s_movk_i32 s55, {4*1280}")
    A("s_waitcnt lgkmcnt(0)")
    srd(A, SK, S_BK, NB_X)
    srd(A, SV, S_BV, NB_X)
    srd(A, SS, S_SH, NB_SH)
    WR, KR, VR = 16, 32, 76
    for i in range(4):
        A(f"buffer_load_dwordx4 {vr(WR+4*i,4)}, v9, s[{SS}:{SS+3}], s54 offen offset:{16*i}")
    for i in range(3):
        A(f"buffer_load_dwordx4 {vr(KR+4*i,4)}, v{6+i}, s[{SK}:{SK+3}], 0 offen{Opt.nt_s}")
    for i in range(8):
        so = "0" if i < 4 else "s55"
        A(f"buffer_load_dwordx4 {vr(KR+12+4*i,4)}, v5, s[{SK}:{SK+3}], {so} offen offset:{1280*(i&3)}{Opt.nt_s}")
        A(f"buffer_load_dwordx4 {vr(VR+4*i,4)}, v5, s[{SV}:{SV+3}], {so} offen offset:{1280*(i&3)}{Opt.nt_s}")
    stamp(A, 2)
    srd(A, SWS, S_WS, WS_SIZE)
    A("s_mul_i32 s56, s48, 8320")
    A(f"s_add_u32 s56, s56, {B_PRE}")
    A(f"v_mul_u32_u24 v10, 1040, v{t1}")
    A(f"v_lshl_add_u32 v10, v{t0}, 4, v10")
    A("v_add_u32 v10, s56, v10")
    A("v_lshrrev_b32 v11, 4, v1")
    A("v_lshlrev_b32 v11, 8, v11")
    A("v_and_b32 v12, 3, v1")
    A("v_lshl_add_u32 v11, v12, 6, v11")
    A("v_bfe_u32 v12, v1, 2, 2")
    A("v_lshl_add_u32 v11, v12, 3, v11")
    A("v_add_u32 v11, s56, v11")
    A(f"v_lshlrev_b32 v12, 12, v{t0}")
    A(f"v_lshl_add_u32 v12, v{t1}, 4, v12")
    A("s_lshl_b32 s57, s51, 18")
    A("s_lshl_b32 s58, s50, 7")
    A("s_add_u32 s57, s57, s58")
    A(f"s_add_u32 s57, s57, {WS_KVT:#x}")
    A("s_lshl_b32 s58, s50, 2")
    A("s_add_u32 s58, s58, s53")
    A("s_lshl_b32 s58, s58, 5")
    A(f"s_add_u32 s58, s58, {F0:#x}")
    A("s_mov_b32 s59, 0xffff0000")
    WF, KF, VF, TA, OUT = 108, 140, 172, 180, 196

    def unpack(dst, src, n):
        for i in range(n):
            A(f"v_lshlrev_b32 v{dst+2*i}, 16, v{src+i}")
            A(f"v_and_b32 v{dst+2*i+1}, s59, v{src+i}")

    A("s_waitcnt vmcnt(19)")
    for c in range(8):
        A(f"v_lshlrev_b32 v{WF+c}, 16, v{WR+2*c}")
        A(f"v_and_b32 v{WF+8+c}, s59, v{WR+2*c}")
        A(f"v_lshlrev_b32 v{WF+16+c}, 16, v{WR+2*c+1}")
        A(f"v_and_b32 v{WF+24+c}, s59, v{WR+2*c+1}")
    A("s_waitcnt vmcnt(16)")
    for i in range(3):
        unpack(KF + 8 * i, KR + 4 * i, 4)
    for i in range(8):
        A(f"s_waitcnt vmcnt({14-2*i})")
        unpack(KF + 8 * ((i + 3) & 3), KR + 12 + 4 * i, 4)
        unpack(VF, VR + 4 * i, 4)
        acc = TA + 8 * (i & 1)
        for j in (3, 2, 1, 0):
            kk = KF + 8 * ((i + 3 - j) & 3)
            for c in range(0, 8, 2):
                if j == 3:
                    A(f"v_pk_mul_f32 {vr(acc+c,2)}, {vr(kk+c,2)}, {vr(WF+8*j+c,2)}")
                else:
                    A(f"v_pk_fma_f32 {vr(acc+c,2)}, {vr(kk+c,2)}, {vr(WF+8*j+c,2)}, {vr(acc+c,2)}")
        for c in range(0, 8, 2):
            A(f"v_pk_mul_f32 {vr(acc+c,2)}, {vr(acc+c,2)}, {vr(VF+c,2)}")
        if i & 1:
            for c in range(8):
                A(f"v_cvt_pk_bf16_f32 v{OUT+4*c+i//2}, v{TA+c}, v{TA+8+c}")
    stamp(A, 3)
    handshake_issue(A, SS, 14)
    for c in range(8):
        A(f"ds_write_b128 v10, {vr(OUT+4*c,4)} offset:{128*c}")
    A("s_waitcnt lgkmcnt(0)")
    T = Lgkm(A)
    for i in range(8):
        T.issue(f"ds_read_b64_tr_b16 {vr(16+4*i,2)}, v11 offset:{1040*i}")
        T.issue(f"ds_read_b64_tr_b16 {vr(18+4*i,2)}, v11 offset:{1040*i+32}", i)
    for i in range(8):
        T.wait(i)
        A(f"buffer_store_dwordx4 {vr(16+4*i,4)}, v12, s[{SWS}:{SWS+3}], s57 offen{SC}")
        if i < 7:
            A(f"s_add_u32 s57, s57, {8*4096}")
    handshake_check(A, SS, 14)
    set_flag(A, 6, "s58")
    stamp(A, 4)


def role_helper(A):
    SD = 40
    A("s_setprio 3")
    A("s_waitcnt lgkmcnt(0)")
    srd(A, SWS, S_WS, WS_SIZE)
    dbg_srd(A, SD)
    Lz = A.newlabel("L_nz")
    A("s_cmp_eq_u32 s2, 192")
    A(f"s_cbranch_scc0 {Lz}")
    A("s_cmp_eq_u32 s48, 5")
    A(f"s_cbranch_scc0 {Lz}")
    A(f"s_mov_b32 s57, {WS_EPOCH:#x}")
    A("s_mov_b64 exec, 1")
    A(f"buffer_load_dword v4, off, s[{SWS}:{SWS+3}], s57{SC}")
    A("s_waitcnt vmcnt(0)")
    A("v_add_u32 v4, 1, v4")
    A("v_not_b32 v5, v4")
    A(f"buffer_store_dwordx2 v[4:5], off, s[{SD}:{SD+3}], 0{SC}")
    A(f"buffer_store_dword v4, off, s[{SWS}:{SWS+3}], s57{SC}")
    A("s_mov_b64 exec, -1")
    stamp(A, 2)
    A.label(Lz)
    if Opt.codepf:
        Lp = A.newlabel("L_npf")
        A("s_cmp_eq_u32 s48, 6")
        A(f"s_cbranch_scc0 {Lp}")
        A("s_getpc_b64 s[50:51]")
        A.label("L_pc")
        A(f"s_sub_u32 s50, s50, L_pc-{NAME}_kernel")
        A("s_subb_u32 s51, s51, 0")
        A("s_sub_u32 s52, s99, 24")
        A("s_lshl_b32 s52, s52, 13")
        A("v_lshl_add_u32 v2, v1, 7, s52")
        A(f"v_min_u32 v2, L_code_end-{NAME}_kernel-4, v2")
        A("global_load_dword v24, v2, s[50:51]")
        A.label(Lp)
    A("s_setprio 0")


def role_conv(A):
    A.label("L_conv")
    handshake_issue(A, 40, 22)
    A("s_lshl_b32 s52, s49, 1")
    A("s_and_b32 s52, s52, 0xfffffffc")
    A(f"s_load_dword s53, s[{S_SSD}:{S_SSD+1}], s52")
    A(f"s_load_dword s54, s[{S_SSK}:{S_SSK+1}], s50")
    A(f"s_add_u32 s51, s50, {WS_KVT:#x}")
    for i in range(4):
        A(f"v_mov_b32 v{4+i}, 0")
    A("v_add_u32 v3, s56, v2")
    A("s_mov_b64 exec, 0xf")
    A("ds_write_b128 v3, v[4:7]")
    A("s_mov_b32 exec_lo, -1")
    A(f"ds_write_b128 v3, v[4:7] offset:{64+4096}")
    A("s_mov_b64 exec, -1")
    A("v_and_b32 v8, 1, v1")
    A("v_lshlrev_b32 v8, 5, v8")
    A("v_bfe_u32 v9, v1, 4, 1")
    A("v_lshl_add_u32 v8, v9, 4, v8")
    A("v_bfe_u32 v9, v1, 1, 1")
    A("v_lshl_add_u32 v8, v9, 3, v8")
    A("v_lshrrev_b32 v10, 5, v1")
    A("v_lshl_add_u32 v8, v10, 6, v8")
    A("v_bfe_u32 v9, v1, 2, 2")
    A("v_lshlrev_b32 v9, 3, v9")
    A("v_sub_u32 v8, v8, v9")
    A("s_add_u32 s57, s56, 32")
    A("v_add_u32 v8, s57, v8")
    A("v_bfe_u32 v9, v1, 4, 1")
    A("v_lshlrev_b32 v9, 8, v9")
    A("v_and_b32 v11, 3, v1")
    A("v_lshl_add_u32 v9, v11, 6, v9")
    A("v_bfe_u32 v11, v1, 2, 2")
    A("v_lshl_add_u32 v9, v11, 4, v9")
    A("v_lshlrev_b32 v11, 6, v10")
    A("v_sub_u32 v9, v9, v11")
    A(f"s_add_u32 s57, s56, {64+4096+512-384}")
    A("v_add_u32 v9, s57, v9")
    A("v_bfe_u32 v11, v1, 2, 1")
    A("v_bfe_u32 v12, v1, 3, 2")
    A("v_lshl_add_u32 v11, v11, 2, v12")
    A("v_and_b32 v12, 35, v1")
    A("v_lshl_add_u32 v11, v12, 3, v11")
    A("v_and_b32 v12, 1, v11")
    A("v_lshlrev_b32 v12, 4, v12")
    A("v_mov_b32 v13, 0xffff")
    A("v_lshlrev_b32 v13, v12, v13")
    A("v_lshrrev_b32 v11, 1, v11")
    MK = 16
    for i in range(4):
        A(f"v_cmp_eq_u32 vcc, {i}, v11")
        A(f"v_cndmask_b32 v{MK+i}, 0, v13, vcc")
    A("v_bfe_u32 v11, v1, 4, 1")
    A("v_and_b32 v12, 3, v1")
    A("v_lshl_add_u32 v11, v11, 2, v12")
    A("v_add_u32 v11, 7, v11")
    A("v_and_b32 v12, 3, v11")
    A("v_bfe_u32 v13, v11, 2, 1")
    A("v_lshl_add_u32 v12, v13, 4, v12")
    A("v_and_b32 v13, 12, v1")
    A("v_add3_u32 v12, v12, v13, 32")
    A("v_subrev_u32 v13, 32, v1")
    A("v_cmp_gt_u32 vcc, 32, v1")
    A("v_cndmask_b32 v14, v13, v12, vcc")
    A("v_lshlrev_b32 v14, 2, v14")
    A("s_mov_b32 s58, 0x1111")
    A("s_mov_b32 s59, 0")
    A("s_waitcnt lgkmcnt(0)")
    A("s_lshl_b32 s54, s54, 16")
    A("s_lshl_b32 s55, s53, 16")
    A("s_and_b32 s53, s53, 0xffff0000")
    A("s_bitcmp1_b32 s49, 0")
    A("s_cselect_b32 s53, s53, s55")
    A("v_mov_b32 v15, s54")
    A("v_add_f32 v15, s53, v15")
    A("v_cvt_pk_bf16_f32 v15, v15, v15")
    A("s_lshr_b32 s52, s49, 6")
    A("s_lshl_b32 s52, s52, 12")
    A(f"s_add_u32 s52, s52, {F0:#x}")
    A("v_lshrrev_b32 v12, 1, v1")
    A("v_lshlrev_b32 v12, 7, v12")
    handshake_check(A, 40, 22)
    poll(A, 22, 12, "s52", sleep=4)
    stamp(A, 8)
    A(f"s_add_u32 m0, s56, {64+4096+512}")
    for i in range(4):
        A(f"buffer_load_dwordx4 v2, s[{SWS}:{SWS+3}], s51 offen offset:{1024*i}{SC} lds")
    A(f"s_add_u32 s51, s50, {WS_YT:#x}")
    NR = 20
    RA, RB, RS = 64, 144, 224
    ACCS = (32, 48)
    CAR, PUL, TMP = 20, (21, 22), 23
    OUT = (24, 28)
    if Ctx.stamps:
        A("s_waitcnt lgkmcnt(0)")
    T = Lgkm(A)

    def rdA(m, reg, tag):
        return [(f"ds_read_b64_tr_b16 {vr(reg,2)}, v8 offset:{128*m+32}", None),
                (f"ds_read_b64_tr_b16 {vr(reg+2,2)}, v8 offset:{128*m}", tag)]

    def rdB(b, reg, tag):
        return [(f"ds_read_b128 {vr(reg,4)}, v9 offset:{128*b}", tag)]

    for m in range(NR):
        for x, tg in rdA(m, RA + 4 * m, ("A", m)):
            T.issue(x, tg)
    T.wait(("A", 0))
    for k in range(4):
        A(f"v_bfi_b32 v{RA+k}, v{MK+k}, v15, v{RA+k}")
    A(f"v_mov_b32 v{PUL[1]}, 0")
    T.all()
    Lns = A.newlabel("L_nsp")
    A("s_cmp_eq_u32 s63, 0")
    A(f"s_cbranch_scc1 {Lns}")
    lds_wait(A, 12, 0, 4, sleep=2)
    A.label(Lns)

    sched = []
    for i in range(8):
        ms = list(range(4 * i + 4))
        res = [m for m in ms if m < NR and 4 * i + 3 - m < NR]
        stm = [m for m in ms if m not in res]
        sched += [(i, m) for m in res + stm]
    streams = []
    for k, (i, m) in enumerate(sched):
        b = 4 * i + 3 - m
        if m >= NR:
            streams.append((k, "A", m))
        elif b >= NR:
            streams.append((k, "B", b))
    slot_of = {k: n % 8 for n, (k, _, _) in enumerate(streams)}

    def epilogue(i):
        V = ACCS[i & 1]
        own = [f"v_add_f32_dpp v{V+4*j}, v{V+4*j+k}, v{V+4*j} row_shr:{4*k} row_mask:0xf bank_mask:0xf"
               for k in (1, 2, 3) for j in range(4)]
        car = [f"v_add_f32_dpp v{CAR}, v{V+12+k}, v{CAR} row_shl:{16-4*k} row_mask:0xf bank_mask:0xf" for k in (1, 2, 3)]
        L = [f"v_mov_b32 v{CAR}, 0"] + own[0:2] + car[0:1] + own[2:4] + car[1:2] + own[4:6] + car[2:3]
        L.append(("ds", f"ds_bpermute_b32 v{PUL[i&1]}, v14, v{CAR}", ("P", i)))
        L += own[6:]
        for k in (1, 2, 3):
            for j in (0, 1, 2):
                L.append(f"v_add_f32_dpp v{V+4*j+4}, v{V+4*j+k}, v{V+4*j+4} row_shl:{16-4*k} row_mask:0xf bank_mask:0xf")
        o = OUT[(i >> 1) & 1] + 2 * (i & 1)
        L.append(f"v_cvt_pk_bf16_f32 v{o+1}, v{V+8}, v{V+12}")
        L.append(("wait", ("P", i)))
        L.append(f"v_cndmask_b32 v{TMP}, v{PUL[i&1]}, v{PUL[1-(i&1)]}, s[58:59]")
        L.append(f"v_add_f32 v{V}, v{V}, v{TMP}")
        L.append(f"v_cvt_pk_bf16_f32 v{o}, v{V}, v{V+4}")
        if i & 1:
            L.append(f"buffer_store_dwordx4 {vr(OUT[(i>>1)&1],4)}, v2, s[{SWS}:{SWS+3}], s51 offen offset:{1024*(i>>1)}{SC}")
        return L

    def emit(x):
        if isinstance(x, tuple):
            if x[0] == "ds":
                T.issue(x[1], x[2])
            else:
                T.wait(x[1])
        else:
            A(x)

    A("s_waitcnt vmcnt(0)")
    stampw(A, 9)
    for b in range(8):
        for x, tg in rdB(b, RB + 4 * b, ("B", b)):
            T.issue(x, tg)
    nres = 8
    nst = 0
    fill = []
    first = {}
    for k, (i, m) in enumerate(sched):
        first.setdefault(i, k)
    for k, (i, m) in enumerate(sched):
        V = ACCS[i & 1]
        b = 4 * i + 3 - m
        if k == first[i]:
            while fill:
                emit(fill.pop(0))
            if i > 0:
                fill = epilogue(i - 1)
        if k in slot_of:
            T.wait(("S", k))
        if b < NR:
            T.wait(("B", b))
        ra = RA + 4 * m if m < NR else RS + 4 * slot_of[k]
        rb = RB + 4 * b if b < NR else RS + 4 * slot_of[k]
        c = vr(V, 16) if k != first[i] else "0"
        A(f"v_mfma_f32_32x32x16_bf16 {vr(V,16)}, {vr(ra,4)}, {vr(rb,4)}, {c}")
        budget = 5
        if nres < NR:
            for x, tg in rdB(nres, RB + 4 * nres, ("B", nres)):
                T.issue(x, tg)
            nres += 1
            budget -= 1
        elif nst < len(streams) and (nst < 8 or streams[nst - 8][0] < k) and streams[nst][0] - k <= 10:
            kk, kind, fr = streams[nst]
            for x, tg in (rdA if kind == "A" else rdB)(fr, RS + 4 * slot_of[kk], ("S", kk)):
                T.issue(x, tg)
                budget -= 1
            nst += 1
        if k > first[i]:
            for _ in range(budget):
                if fill:
                    emit(fill.pop(0))
    while fill:
        emit(fill.pop(0))
    stampw(A, 10)
    T.done = T.n if Ctx.stamps else T.done
    for x in epilogue(7):
        emit(x)
    A("s_lshl_b32 s52, s49, 7")
    A(f"s_add_u32 s52, s52, {F4:#x}")
    set_flag(A, 10, "s52")
    stamp(A, 11)


def role_post(A):
    SQ, SO = 32, 36
    A("s_mul_i32 s49, s98, 40")
    A("s_sub_u32 s50, s99, 24")
    A("s_mul_i32 s50, s50, 5")
    A("s_add_u32 s49, s49, s50")
    A("s_add_u32 s49, s49, s48")
    A("s_and_b32 s50, s49, 31")
    A("s_lshr_b32 s51, s49, 5")
    A("v_lshrrev_b32 v2, 3, v1")
    A("v_and_b32 v3, 7, v1")
    A("v_lshlrev_b32 v4, 12, v2")
    A("v_lshl_add_u32 v4, v3, 4, v4")
    A("s_lshl_b32 s52, s51, 18")
    A("s_lshl_b32 s53, s50, 7")
    A("s_add_u32 s52, s52, s53")
    A(f"s_add_u32 s52, s52, {WS_YT:#x}")
    A("s_mul_i32 s56, s48, 8320")
    A(f"s_add_u32 s56, s56, {B_PRE}")
    A("s_lshr_b32 s54, s50, 3")
    A("s_lshl_b32 s54, s54, 9")
    A("s_bfe_u32 s55, s50, 0x10002")
    A("s_lshl_b32 s55, s55, 4")
    A("s_add_u32 s54, s54, s55")
    A("s_bfe_u32 s55, s50, 0x10001")
    A("s_lshl_b32 s55, s55, 7")
    A("s_add_u32 s54, s54, s55")
    A("s_and_b32 s55, s50, 1")
    A("s_lshl_b32 s55, s55, 1")
    A("s_add_u32 s54, s54, s55")
    A("v_and_b32 v5, 3, v2")
    A("v_lshrrev_b32 v6, 2, v2")
    A("v_lshl_add_u32 v5, v5, 5, v6")
    A("v_mul_u32_u24 v6, 1280, v5")
    A("v_lshlrev_b32 v7, 1, v6")
    A("v_lshl_add_u32 v6, v3, 4, v6")
    A("v_lshl_add_u32 v7, v3, 4, v7")
    A("s_mul_i32 s54, s54, 1280")
    A("s_lshl_b32 s53, s51, 7")
    A("s_lshl_b32 s55, s54, 1")
    A("s_add_u32 s54, s54, s53")
    A("s_add_u32 s55, s55, s53")
    A("s_add_u32 s55, s55, 1280")
    srd(A, SQ, S_BQ, NB_X)
    srd(A, SO, S_OUT, NB_OUT)
    QR, YR = 16, 48
    rows = [0, 4, 8, 12, 256, 260, 264, 268]
    for i in range(8):
        A(f"s_add_u32 s57, s54, {rows[i]*1280}")
        A(f"buffer_load_dwordx4 {vr(QR+4*i,4)}, v6, s[{SQ}:{SQ+3}], s57 offen{Opt.nt_s}")
    A("s_lshl_b32 s58, s51, 13")
    A(f"s_add_u32 s58, s58, {F4:#x}")
    A("v_lshlrev_b32 v12, 7, v1")
    A("s_mov_b32 s59, 0xffff0000")
    QF = 128
    A("s_waitcnt vmcnt(0)")
    for i in range(32):
        A(f"v_lshlrev_b32 v{QF+2*i}, 16, v{QR+i}")
        A(f"v_and_b32 v{QF+2*i+1}, s59, v{QR+i}")
    poll(A, 14, 12, "s58", sleep=4)
    stamp(A, 12)
    for i in range(8):
        A(f"v_xor_b32 v8, {16*i}, v4")
        A(f"s_add_u32 m0, s56, {1024*i}")
        A(f"buffer_load_dwordx4 v8, s[{SWS}:{SWS+3}], s52 offen{SC} lds")
        if i < 7:
            A(f"s_add_u32 s52, s52, {8*4096}")
    A("v_xor_b32 v8, v2, v3")
    A("v_lshlrev_b32 v8, 4, v8")
    A("v_lshl_add_u32 v8, v3, 10, v8")
    A("v_add_u32 v8, s56, v8")
    A("s_waitcnt vmcnt(0)")
    for c in range(8):
        A(f"ds_read_b128 {vr(YR+4*c,4)}, v8 offset:{128*c}")
    A("s_waitcnt lgkmcnt(0)")
    stamp(A, 13)
    YF, OUT = 80, 96
    for i in range(8):
        for c in range(8):
            if i & 1:
                A(f"v_and_b32 v{YF+c}, s59, v{YR+4*c+i//2}")
            else:
                A(f"v_lshlrev_b32 v{YF+c}, 16, v{YR+4*c+i//2}")
        for c in range(0, 8, 2):
            A(f"v_pk_mul_f32 {vr(YF+c,2)}, {vr(YF+c,2)}, {vr(QF+8*i+c,2)}")
        for k in range(4):
            A(f"v_cvt_pk_bf16_f32 v{OUT+4*i+k}, v{YF+2*k}, v{YF+2*k+1}")
        A(f"s_add_u32 s57, s55, {rows[i]*2560}")
        A(f"buffer_store_dwordx4 {vr(OUT+4*i,4)}, v7, s[{SO}:{SO+3}], s57 offen")
    stamp(A, 14)


def build():
    A = Asm()
    k = NAME + "_kernel"
    A.raw(f".globl {k}")
    A.raw(".p2align 8")
    A.raw(f".type {k},@function")
    A.label(k)
    load_kernargs(A)
    stamp_init(A)
    A("v_lshrrev_b32 v2, 6, v0")
    A("v_and_b32 v1, 63, v0")
    A("v_readfirstlane_b32 s100, v2")
    A("s_and_b32 s98, s2, 7")
    A("s_lshr_b32 s99, s2, 3")
    A("s_cmp_ge_u32 s2, 192")
    A("s_cbranch_scc1 L_b")
    A("s_and_b32 s49, s2, 3")
    A("s_lshl_b32 s49, s49, 2")
    A("s_and_b32 s50, s99, 3")
    A("s_add_u32 s49, s49, s50")
    A("s_bfe_u32 s52, s2, 0x10002")
    A("s_lshr_b32 s53, s2, 5")
    A("s_lshl_b32 s54, s52, 1")
    A("s_add_u32 s54, s54, s53")
    A("s_lshl_b32 s55, s52, 2")
    A("s_add_u32 s55, s55, s53")
    A("s_sub_u32 s55, s55, 2")
    A("s_cmp_lt_u32 s2, 64")
    A("s_cselect_b32 s50, s54, s55")
    A("s_cselect_b32 s51, 1, 0")
    A("s_and_b32 s48, s100, 3")
    A("s_cmp_ge_u32 s100, 4")
    A("s_cbranch_scc1 L_c")
    role_loader(A)
    A.label("L_c")
    role_compute(A)
    A.label("L_b")
    A("s_cmp_ge_u32 s2, 256")
    A("s_cbranch_scc1 L_exit")
    A("s_mov_b32 s48, s100")
    A("s_cmp_ge_u32 s48, 5")
    A("s_cbranch_scc1 L_help")
    role_pre(A)
    A("s_branch L_bconv")
    A.label("L_help")
    role_helper(A)
    A.label("L_bconv")
    A("s_mul_i32 s49, s98, 80")
    A("s_sub_u32 s50, s99, 24")
    A("s_lshl_b32 s50, s50, 3")
    A("s_add_u32 s49, s49, s50")
    A("s_add_u32 s49, s49, s48")
    A(f"s_mul_i32 s56, s48, {CV_LDS}")
    A("s_mov_b32 s63, 0")
    conv_load_h(A)
    A("s_barrier")
    role_conv(A)
    A("s_cmp_eq_u32 s63, 0")
    A("s_cbranch_scc0 L_bend")
    A("s_cmp_ge_u32 s48, 5")
    A("s_cbranch_scc1 L_bend")
    role_post(A)
    A.label("L_bend")
    end_wave(A)
    A.label("L_exit")
    A("s_endpgm")
    A.label("L_code_end")
    head = ["; generated by gen/fused.py",
            "; @launch grid=(256,1,1) block=(512,1,1) lds=163840"]
    txt = "\n".join(head) + '\n.amdgcn_target "amdgcn-amd-amdhsa--gfx950"\n.text\n' + A.text()
    txt += f'''.section .rodata,"a"
.p2align 6
.amdhsa_kernel {k}
  .amdhsa_next_free_vgpr 256
  .amdhsa_next_free_sgpr 102
  .amdhsa_accum_offset 256
  .amdhsa_group_segment_fixed_size 0
  .amdhsa_kernarg_size 104
  .amdhsa_user_sgpr_count 2
  .amdhsa_user_sgpr_kernarg_segment_ptr 1
  .amdhsa_system_sgpr_workgroup_id_x 1
.end_amdhsa_kernel
'''
    return txt


if __name__ == "__main__":
    args = sys.argv[2:]
    Ctx.stamps = "stamps" in args
    Opt.rot = "rot" in args
    Opt.codepf = "nocodepf" not in args
    Opt.wopf = "nowopf" not in args
    for a in args:
        if a.startswith("LA="):
            Opt.LA = int(a[3:])
    open(sys.argv[1], "w").write(build())
```

```python
import sys
from asm import Asm, vr, ar, sr
from roles import (WS_PHIQ, WS_PART, WS_O, WS_KVT, WS_YT, WS_STAMP, WS_SIZE, S_X, S_W, S_WPHI, S_WO, S_BQ, S_BK, S_BV,
                   S_SH, S_SSK, S_SSD, S_OUT, S_DBG, S_WS, NB_X, NB_W, NB_WPHI, NB_WO, NB_SH, NB_SSK, NB_OUT, LOG2E,
                   Ctx, load_kernargs, srd, stamp, stamp_init, softmax20)

NAME = "concat_heads__linear_kernel_hedgehog__ssm_conv_h3__prompt"
WS_FLAG = 0xF00000
F1, F2, F3, F0, F4 = (WS_FLAG + 128 * o for o in (0, 512, 1024, 1536, 1856))
WS_EPOCH = WS_FLAG + 128 * 2560 + 64
SWS = 44
SC = " sc1"
SLOT = 36864
L_WP = 147456
L_Z = L_WP + 8192
L_SYNC = L_Z + 4096
L_PHI = 0
L_V = 128 * 336
L_WOB = 73728
L_OT = 65536
CV_LDS = 8768


class Opt:
    rot = False
    LA = 2
    nt_s = " nt"
    codepf = True
    wopf = True
    osc = ""
    touch = False


def end_wave(A):
    if Ctx.stamps:
        stamp(A, 15, True)
        A("s_waitcnt lgkmcnt(0)")
        A("s_mov_b64 exec, -1")
        A("v_mbcnt_lo_u32_b32 v1, -1, 0")
        A("v_mbcnt_hi_u32_b32 v1, -1, v1")
        A("v_mov_b32 v2, 0")
        for k in range(16):
            A(f"v_mov_b32 v3, s{64+2*k}")
            A(f"v_cmp_eq_u32 vcc, {k}, v1")
            A("v_cndmask_b32 v2, v2, v3, vcc")
        A("s_lshl_b32 s62, s2, 3")
        A("s_add_u32 s62, s62, s100")
        A("s_lshl_b32 s62, s62, 6")
        A(f"s_add_u32 s62, s62, {WS_STAMP:#x}")
        A("v_lshlrev_b32 v1, 2, v1")
        A("s_mov_b64 exec, 0xffff")
        A(f"buffer_store_dword v2, v1, s[{SWS}:{SWS+3}], s62 offen")
    A("s_endpgm")


def stampw(A, k):
    stamp(A, k)
    if Ctx.stamps:
        A("s_waitcnt lgkmcnt(0)")


TAG = 30


def poll(A, vt, voff, soff, sleep=1):
    L, Ld = A.newlabel("L_poll"), A.newlabel("L_polld")
    A("s_mov_b32 s101, 0x4000")
    A.label(L)
    A(f"buffer_load_dwordx2 {vr(vt,2)}, v{voff}, s[{SWS}:{SWS+3}], {soff} offen{SC}")
    A("s_waitcnt vmcnt(0)")
    A(f"v_cmp_eq_u64 vcc, s[{TAG}:{TAG+1}], {vr(vt,2)}")
    A("s_cmp_eq_u64 vcc, -1")
    A(f"s_cbranch_scc1 {Ld}")
    A(f"s_sleep {sleep}")
    A("s_sub_u32 s101, s101, 1")
    A("s_cmp_eq_u32 s101, 0")
    A(f"s_cbranch_scc0 {L}")
    A("s_endpgm")
    A.label(Ld)


def set_flag(A, vt, soff):
    A(f"v_mov_b32 v{vt}, s{TAG}")
    A(f"v_mov_b32 v{vt+1}, s{TAG+1}")
    A(f"v_lshlrev_b32 v{vt+2}, 3, v1")
    A("s_waitcnt vmcnt(0)")
    A("s_mov_b64 exec, 0xffff")
    A(f"buffer_store_dwordx2 {vr(vt,2)}, v{vt+2}, s[{SWS}:{SWS+3}], {soff} offen{SC}")
    A("s_mov_b64 exec, -1")


def lds_arrive(A, vt, word):
    A(f"v_mov_b32 v{vt}, {L_SYNC + 4*word}")
    A(f"v_mov_b32 v{vt+1}, 1")
    A("s_waitcnt lgkmcnt(0)")
    A("s_mov_b64 exec, 1")
    A(f"ds_add_u32 v{vt}, v{vt+1}")
    A("s_mov_b64 exec, -1")


def lds_wait(A, vt, word, n, setaddr=True, sleep=0):
    L, Ld = A.newlabel("L_lw"), A.newlabel("L_lwd")
    if setaddr:
        A(f"v_mov_b32 v{vt}, {L_SYNC + 4*word}")
    A("s_mov_b32 s101, 0x40000")
    A.label(L)
    A(f"ds_read_b32 v{vt+1}, v{vt}")
    A("s_waitcnt lgkmcnt(0)")
    A(f"v_cmp_le_u32 vcc, {n}, v{vt+1}")
    A(f"s_cbranch_vccnz {Ld}")
    if sleep:
        A(f"s_sleep {sleep}")
    A("s_sub_u32 s101, s101, 1")
    A("s_cmp_eq_u32 s101, 0")
    A(f"s_cbranch_scc0 {L}")
    A("s_endpgm")
    A.label(Ld)


class Lgkm:
    def __init__(self, A):
        self.A, self.n, self.done, self.tag = A, 0, 0, {}

    def issue(self, text, tag=None):
        self.A(text)
        self.n += 1
        if tag is not None:
            self.tag[tag] = self.n

    def wait(self, *tags):
        need = max(self.tag[t] for t in tags)
        if need > self.done:
            self.A(f"s_waitcnt lgkmcnt({min(15, self.n - need)})")
            self.done = max(need, self.n - 15) if self.n - need > 15 else need

    def all(self):
        if self.done < self.n:
            self.A("s_waitcnt lgkmcnt(0)")
            self.done = self.n


def dbg_srd(A, d):
    srd(A, d, S_DBG, 256)


def handshake_issue(A, sd, vt):
    dbg_srd(A, sd)
    A(f"buffer_load_dwordx2 {vr(vt,2)}, off, s[{sd}:{sd+3}], 0{SC}")


def handshake_check(A, sd, vt):
    L, Lc, Ld = A.newlabel("L_hs"), A.newlabel("L_hsc"), A.newlabel("L_hsd")
    A("s_mov_b32 s101, 0x4000")
    A(f"s_branch {Lc}")
    A.label(L)
    A("s_sleep 8")
    A(f"buffer_load_dwordx2 {vr(vt,2)}, off, s[{sd}:{sd+3}], 0{SC}")
    A.label(Lc)
    A("s_waitcnt vmcnt(0)")
    A(f"v_readfirstlane_b32 s{TAG}, v{vt}")
    A(f"v_readfirstlane_b32 s{TAG+1}, v{vt+1}")
    A(f"s_cmp_lg_u32 s{TAG}, s{TAG+1}")
    A(f"s_cbranch_scc1 {Ld}")
    A("s_sub_u32 s101, s101, 1")
    A("s_cmp_eq_u32 s101, 0")
    A(f"s_cbranch_scc0 {L}")
    A("s_endpgm")
    A.label(Ld)
    A("s_nop 0")


def touch(A, v):
    if not Opt.touch:
        return
    A(f"v_lshlrev_b32 v{v}, 20, v1")
    A(f"buffer_load_dword v{v+1}, v{v}, s[{SWS}:{SWS+3}], 0 offen")
    for k, (b, n) in enumerate(((S_OUT, NB_OUT), (S_WO, NB_WO), (S_BQ, NB_X), (S_SSK, NB_SSK))):
        srd(A, 32, b, n)
        A(f"buffer_load_dword v{v+2+k}, v{v}, s[32:35], 0 offen")


def handshake(A, sd, vt):
    handshake_issue(A, sd, vt)
    handshake_check(A, sd, vt)


def role_loader(A):
    SX, SW, SP = 32, 36, 40
    VX, VW = 2, 6
    t0, t1, t2, t3 = 11, 12, 13, 14
    A("s_setprio 1")
    A(f"v_lshrrev_b32 v{t0}, 3, v1")
    A(f"v_mul_u32_u24 v{t0}, 1280, v{t0}")
    A(f"v_lshrrev_b32 v{t1}, 4, v1")
    A(f"v_and_b32 v{t2}, 7, v1")
    A(f"v_xor_b32 v{t1}, v{t1}, v{t2}")
    A(f"v_xor_b32 v{t2}, 4, v{t1}")
    A(f"v_lshl_add_u32 v{VX}, v{t1}, 4, v{t0}")
    A(f"v_lshl_add_u32 v{VX+1}, v{t2}, 4, v{t0}")
    A(f"v_add_u32 v{VX+2}, {2*(8*1280-1024)}, v{VX}")
    A(f"v_add_u32 v{VX+3}, {3*(8*1280-1024)}, v{VX+1}")
    A(f"v_add_u32 v{VX+1}, {8*1280-1024}, v{VX+1}")
    A("s_cmp_eq_u32 s51, 0")
    A("s_cselect_b32 s56, 1120, 0")
    for i in range(5):
        A(f"v_add_u32 v{t0}, {64*i}, v1")
        A(f"v_mul_u32_u24 v{t1}, 3277, v{t0}")
        A(f"v_lshrrev_b32 v{t1}, 16, v{t1}")
        A(f"v_mul_u32_u24 v{t2}, 20, v{t1}")
        A(f"v_sub_u32 v{t0}, v{t0}, v{t2}")
        A(f"v_mul_u32_u24 v{t1}, 3840, v{t1}")
        A(f"v_lshl_add_u32 v{t1}, v{t0}, 4, v{t1}")
        A(f"v_cmp_lt_u32 vcc, 9, v{t0}")
        A(f"v_add_u32 v{t2}, s56, v{t1}")
        A(f"v_cndmask_b32 v{VW+i}, v{t1}, v{t2}, vcc")
        if i & 3:
            A(f"v_subrev_u32 v{VW+i}, {1024*(i&3)}, v{VW+i}")
    A("s_lshl_b32 s52, s49, 2")
    A("s_add_u32 s52, s52, s48")
    A(f"s_mul_i32 s52, s52, {32*1280}")
    A(f"s_mul_i32 s53, s48, {16*3840}")
    A("s_mul_i32 s57, s50, 160")
    A("s_add_u32 s58, s57, 1280")
    A("s_lshl_b32 s57, s57, 1")
    A("s_cmp_eq_u32 s51, 0")
    A("s_cselect_b32 s57, s58, s57")
    A("s_add_u32 s53, s53, s57")
    if Opt.rot:
        A("s_and_b32 s30, s49, 3")
        A("s_lshl_b32 s30, s30, 2")
        A("s_lshr_b32 s30, 0x8530, s30")
        A("s_and_b32 s30, s30, 15")
        A("s_and_b32 s31, s99, 28")
        A("s_lshr_b32 s31, 0x875320, s31")
        A("s_and_b32 s31, s31, 15")
        A("s_add_u32 s30, s30, s31")
        A("s_sub_u32 s31, s30, 10")
        A("s_cmp_ge_u32 s30, 10")
        A("s_cselect_b32 s30, s31, s30")
        A("s_lshl_b32 s31, s30, 7")
        A("s_add_u32 s52, s52, s31")
        A(f"s_mov_b32 s96, {64*3840}")
        A("s_movk_i32 s97, 128")
        A("s_mul_i32 s31, s30, s96")
        A("s_add_u32 s53, s53, s31")
    A("s_lshl_b32 s54, s48, 12")
    A("s_mul_i32 s55, s48, 5120")
    A("s_add_u32 s55, s55, 16384")
    A("s_mul_i32 s57, s50, 3200")
    A("s_lshl_b32 s57, s57, s51")
    A("s_lshl_b32 s58, s48, 11")
    A("s_add_u32 s57, s57, s58")
    A(f"v_lshlrev_b32 v{t3}, 4, v1")
    A("s_waitcnt lgkmcnt(0)")
    srd(A, SX, S_X, NB_X)
    srd(A, SW, S_W, NB_W)

    def dma_stage(s):
        sl = (s % 4) * SLOT
        A(f"s_add_u32 m0, s54, {sl}")
        for i in range(4):
            A(f"buffer_load_dwordx4 v{VX+i}, s[{SX}:{SX+3}], s52 offen offset:{1024*i} lds")
        A(f"s_add_u32 m0, s55, {sl}")
        for i in range(4):
            A(f"buffer_load_dwordx4 v{VW+i}, s[{SW}:{SW+3}], s53 offen offset:{1024*i} lds")
        A(f"s_add_u32 m0, s55, {sl+4096}")
        A(f"buffer_load_dwordx4 v{VW+4}, s[{SW}:{SW+3}], s53 offen lds")
        if s < 9:
            if Opt.rot:
                A("s_add_u32 s30, s30, 1")
                A("s_cmp_eq_u32 s30, 10")
                A(f"s_cselect_b32 s31, {(-1152)&0xffffffff:#x}, s97")
                A(f"s_cselect_b32 s3, {(-9*64*3840)&0xffffffff:#x}, s96")
                A("s_add_u32 s52, s52, s31")
                A("s_add_u32 s53, s53, s3")
            else:
                A("s_add_u32 s52, s52, 128")
                A(f"s_add_u32 s53, s53, {64*3840}")

    LA = Opt.LA
    dma_stage(0)
    stamp(A, 2)
    srd(A, SP, S_WPHI, NB_WPHI)
    A(f"s_add_u32 m0, s58, {L_WP}")
    A(f"buffer_load_dwordx4 v{t3}, s[{SP}:{SP+3}], s57 offen lds")
    A(f"buffer_load_dwordx4 v{t3}, s[{SP}:{SP+3}], s57 offen offset:1024 lds")
    srd(A, SWS, S_WS, WS_SIZE)
    issued = 0
    extra = 0
    for s in range(10):
        while issued < min(s + LA - 1, 9):
            issued += 1
            dma_stage(issued)
        A(f"s_waitcnt vmcnt({9*(issued-s) + extra})")
        A("s_barrier")
        if s in (0, 3, 6, 9):
            stamp(A, 3 + s // 3)
        if s in (7, 8):
            stamp(A, 5 + s)
    A("s_setprio 0")
    srd(A, 36, S_WO, NB_WO)
    if Opt.wopf:
        A("s_lshl_b32 s52, s99, 2")
        A("s_add_u32 s52, s52, s48")
        A("s_lshl_b32 s53, s48, 4")
        A("s_add_u32 s53, s53, s99")
        A("s_add_u32 s53, s53, 56")
        A("s_cmp_eq_u32 s51, 0")
        A("s_cselect_b32 s52, s53, s52")
        A("s_cselect_b32 s53, 64, 32")
        A("s_add_u32 s53, s53, s52")
        A("s_lshl_b32 s52, s52, 13")
        A("s_lshl_b32 s53, s53, 13")
        A("v_lshlrev_b32 v2, 7, v1")
        A("buffer_load_dword v24, v2, s[36:39], s52 offen")
        A("buffer_load_dword v25, v2, s[36:39], s53 offen")
    Lsp = A.newlabel("L_spare")
    A("s_lshr_b32 s50, s99, 2")
    A("s_cmp_eq_u32 s50, 1")
    A(f"s_cbranch_scc1 {Lsp}")
    role_wo(A)
    A.label(Lsp)
    A("s_barrier")
    A("s_mul_i32 s49, s98, 80")
    A("s_sub_u32 s50, s99, 4")
    A("s_lshl_b32 s50, s50, 2")
    A("s_add_u32 s49, s49, s50")
    A("s_add_u32 s49, s49, s48")
    A("s_add_u32 s49, s49, 64")
    A(f"s_mul_i32 s56, s48, {CV_LDS}")
    A(f"s_add_u32 s56, s56, {L_WOB}")
    A("s_mov_b32 s63, 1")
    conv_load_h(A)
    A("s_branch L_conv")


def role_wo(A):
    SO, SWO = 32, 36
    WR = 64
    A("v_lshrrev_b32 v2, 2, v1")
    A("v_and_b32 v3, 3, v1")
    A("v_mul_u32_u24 v4, 1280, v2")
    A("v_lshl_add_u32 v4, v3, 4, v4")
    for i in range(1, 4):
        A(f"v_add_u32 v{4+i}, {i*(16*1280-1024)}, v4")
    A(f"v_add_u32 v8, {4*16*1280}, v4")
    A("s_sub_u32 s50, s50, 1")
    A("s_max_i32 s50, s50, 0")
    A("s_lshl_b32 s52, s50, 8")
    A("s_lshl_b32 s53, s48, 6")
    A("s_add_u32 s52, s52, s53")
    A("s_mov_b32 s51, s52")
    A("s_mul_i32 s53, s48, 15360")
    A(f"s_add_u32 s53, s53, {L_WOB}")

    def chunk(c):
        b = (c % 3) * 5120
        A(f"s_add_u32 m0, s53, {b}")
        for i in range(4):
            A(f"buffer_load_dwordx4 v{4+i}, s[{SWO}:{SWO+3}], s51 offen offset:{1024*i} lds")
        A(f"s_add_u32 m0, s53, {b+4096}")
        A(f"buffer_load_dwordx4 v8, s[{SWO}:{SWO+3}], s51 offen lds")
        A(f"s_add_u32 s51, s51, {80*1280}")

    Lkv, Lj = A.newlabel("L_wokv"), A.newlabel("L_woj")
    A("s_cmp_ge_u32 s99, 8")
    A(f"s_cbranch_scc1 {Lkv}")
    A("s_barrier")
    A("s_barrier")
    A.label(Lkv)
    for c in range(2):
        chunk(c)
    A("s_cmp_lt_u32 s99, 8")
    A(f"s_cbranch_scc1 {Lj}")
    A("s_barrier")
    A.label(Lj)
    chunk(2)
    A("v_bfe_u32 v10, v1, 2, 2")
    A("v_lshrrev_b32 v11, 5, v1")
    A("v_and_b32 v12, 1, v1")
    A("v_lshlrev_b32 v12, 5, v12")
    A("v_bfe_u32 v13, v1, 4, 1")
    A("v_lshl_add_u32 v12, v13, 4, v12")
    A("v_bfe_u32 v13, v1, 1, 1")
    A("v_lshl_add_u32 v12, v13, 3, v12")
    A("v_lshl_add_u32 v12, v10, 6, v12")
    A("v_add_u32 v12, s53, v12")
    A("v_lshl_add_u32 v13, v11, 8, v12")
    A("v_mul_u32_u24 v14, 2560, v11")
    A("v_add_u32 v14, v14, v12")
    for c in range(8):
        b = (c % 3) * 5120
        A(f"s_waitcnt vmcnt({5*(min(c+2,7)-c)})")
        for hh in range(4):
            for half in range(2):
                A(f"ds_read_b64_tr_b16 {vr(WR+4*(4*c+hh)+2*half,2)}, v13 offset:{b+(20*hh+8*half)*64}")
        for half in range(2):
            A(f"ds_read_b64_tr_b16 {vr(WR+128+4*c+2*half,2)}, v14 offset:{b+(20*half+16)*64}")
        A("s_waitcnt lgkmcnt(0)")
        if c + 3 < 8:
            chunk(c + 3)
    stamp(A, 7)
    handshake(A, 40, 16)
    srd(A, SO, S_OUT, NB_OUT)
    A("s_and_b32 s54, s99, 3")
    A("s_lshl_b32 s55, s98, 2")
    A("s_add_u32 s54, s54, s55")
    A("s_lshr_b32 s55, s54, 1")
    A("s_lshl_b32 s55, s55, 12")
    A(f"s_add_u32 s55, s55, {F3:#x}")
    A("v_and_b32 v9, 31, v1")
    A("v_lshrrev_b32 v15, 1, v1")
    A("v_lshlrev_b32 v15, 7, v15")
    A("s_mul_i32 s57, s54, 81920")
    A(f"s_add_u32 s57, s57, {WS_O:#x}")
    A("v_lshlrev_b32 v5, 4, v1")
    A("s_lshr_b32 s58, s48, 1")
    A("s_mul_i32 s58, s58, 40960")
    A("s_and_b32 s59, s48, 1")
    A("s_lshl_b32 s59, s59, 12")
    A("s_add_u32 s58, s58, s59")
    A("s_add_u32 s57, s57, s58")
    A(f"s_add_u32 s58, s58, {L_OT}")
    A(f"v_add_u32 v6, {L_OT}, v5")
    A(f"v_add_u32 v7, {L_OT+40960}, v5")
    A("v_lshlrev_b32 v10, 3, v9")
    A("v_lshl_add_u32 v10, v11, 9, v10")
    A(f"v_add_u32 v10, {L_OT+32768}, v10")
    A("s_mul_i32 s56, s48, 5120")
    A("v_mul_u32_u24 v12, 80, v9")
    A("v_lshl_add_u32 v12, v11, 5, v12")
    A("v_add_u32 v12, s56, v12")
    A("v_mul_u32_u24 v13, 80, v2")
    A("v_lshl_add_u32 v13, v3, 4, v13")
    A("v_add_u32 v13, s56, v13")
    A("v_mul_u32_u24 v14, 2560, v2")
    A("v_lshl_add_u32 v14, v3, 4, v14")
    A(f"s_mul_i32 s59, s54, {64*2560}")
    A("s_add_u32 s59, s59, s52")
    A("s_barrier")
    stamp(A, 8)
    poll(A, 16, 15, "s55")
    stamp(A, 9)
    for k in range(5):
        A(f"s_add_u32 m0, s58, {8192*k}")
        for i in range(4):
            A(f"buffer_load_dwordx4 v5, s[{SWS}:{SWS+3}], s57 offen offset:{1024*i}{SC} lds")
        if k < 4:
            A("s_add_u32 s57, s57, 8192")
    if Ctx.stamps:
        A("s_waitcnt lgkmcnt(0)")
    ACC = (16, 32)
    OFB = 224
    T = Lgkm(A)

    def rd(f):
        for t in range(2):
            d = OFB + 4 * ((2 * f + t) % 8)
            if f < 32:
                T.issue(f"ds_read_b128 {vr(d,4)}, v{6+t} offset:{1024*f}", (f, t))
            else:
                a = f - 32
                T.issue(f"ds_read_b64 {vr(d,2)}, v10 offset:{40960*t + 1024*a}")
                T.issue(f"ds_read_b64 {vr(d+2,2)}, v10 offset:{40960*t + 1024*a + 256}", (f, t))

    def rdx(f):
        if f % 8 == 0:
            A(f"s_waitcnt vmcnt({16 - 4*(f//8)})")
            A("s_barrier")
        rd(f)

    for f in range(3):
        rdx(f)
    for f in range(40):
        for t in range(2):
            T.wait((f, t))
            c = vr(ACC[t], 16) if f else "0"
            A(f"v_mfma_f32_32x32x16_bf16 {vr(ACC[t],16)}, {vr(WR+4*f,4)}, {vr(OFB+4*((2*f+t)%8),4)}, {c}")
            if t == 0 and f + 3 < 40:
                rdx(f + 3)
    stamp(A, 10)
    for t in range(2):
        for i in range(8):
            A(f"v_cvt_pk_bf16_f32 v{48+8*t+i}, v{ACC[t]+2*i}, v{ACC[t]+2*i+1}")
        for i in range(2):
            A(f"ds_write_b128 v12, {vr(48+8*t+4*i,4)} offset:{2560*t+16*i}")
    A("s_waitcnt lgkmcnt(0)")
    for i in range(4):
        A(f"ds_read_b128 {vr(64+4*i,4)}, v13 offset:{1280*i}")
    for i in range(4):
        A(f"s_waitcnt lgkmcnt({3-i})")
        A(f"buffer_store_dwordx4 {vr(64+4*i,4)}, v14, s[{SO}:{SO+3}], s59 offen{Opt.osc}")
        if i < 3:
            A(f"s_add_u32 s59, s59, {16*2560}")
    stamp(A, 11)
    end_wave(A)


def role_compute(A):
    XA, WA, AD = 144, 152, 154
    ACC = 16
    WF = (96, 116)
    XF = (136, 140)
    t0, t1, t2, t3 = 11, 12, 13, 14
    for i in range(80):
        A(f"v_mov_b32 v{ACC+i}, 0")
    A(f"v_and_b32 v{t0}, 255, v0")
    A(f"v_lshlrev_b32 v{t0}, 4, v{t0}")
    A(f"v_add_u32 v{t0}, {L_Z}, v{t0}")
    A(f"ds_write_b128 v{t0}, {vr(ACC,4)}")
    A(f"ds_write_b128 v{t0}, {vr(ACC,4)} offset:64")
    A("s_lshl_b32 s54, s48, 12")
    A(f"v_and_b32 v{t0}, 31, v1")
    A(f"v_lshrrev_b32 v{t1}, 5, v1")
    A(f"v_bfe_u32 v{t2}, v1, 1, 3")
    A(f"v_xor_b32 v{t2}, v{t2}, v{t1}")
    A(f"v_lshlrev_b32 v{t2}, 4, v{t2}")
    A(f"v_lshl_add_u32 v{t2}, v{t0}, 7, v{t2}")
    A(f"v_add_u32 v{XA}, s54, v{t2}")
    for t in range(1, 4):
        A(f"v_xor_b32 v{XA+t}, {32*t}, v{XA}")
    for t in range(4):
        A(f"v_add_u32 v{XA+4+t}, {2*SLOT}, v{XA+t}")
    R8, JJ, HH = 158, 159, 160
    A(f"v_bfe_u32 v{t0}, v1, 2, 2")
    A(f"v_lshl_add_u32 v{R8}, v{t1}, 3, v{t0}")
    A(f"v_bfe_u32 v{t2}, v1, 4, 1")
    A(f"v_bfe_u32 v{t3}, v1, 1, 1")
    A(f"v_lshl_add_u32 v{JJ}, v{t2}, 1, v{t3}")
    A(f"v_and_b32 v{HH}, 1, v1")
    A(f"v_mul_u32_u24 v{t2}, 320, v{R8}")
    A(f"v_mul_u32_u24 v{t3}, 160, v{HH}")
    A(f"v_lshl_add_u32 v{t3}, v{JJ}, 3, v{t3}")
    A(f"v_add_u32 v{WA}, v{t2}, v{t3}")
    A(f"v_add_u32 v{WA}, 16384, v{WA}")
    A(f"v_add_u32 v{WA+1}, {2*SLOT}, v{WA}")
    A("s_movk_i32 s57, 1600")
    A("s_lshl_b32 s57, s57, s51")
    A(f"v_mul_u32_u24 v{t2}, s57, v{HH}")
    A(f"v_mul_u32_u24 v{t3}, 40, v{t0}")
    A(f"v_add_u32 v{t2}, v{t2}, v{t3}")
    A(f"v_lshl_add_u32 v{t2}, v{JJ}, 3, v{t2}")
    A(f"v_add_u32 v{t2}, {L_WP}, v{t2}")
    A(f"v_mov_b32 v{t3}, {L_Z}")
    A(f"v_cmp_eq_u32 vcc, v{HH}, v{t1}")
    A(f"v_cndmask_b32 v{AD}, v{t3}, v{t2}, vcc")
    A(f"v_add_u32 v{t0}, 24, v{t2}")
    A(f"v_cndmask_b32 v{AD+3}, v{t3}, v{t0}, vcc")
    A(f"v_cmp_eq_u32 s[58:59], 0, v{JJ}")
    A("s_and_b64 s[62:63], vcc, s[58:59]")
    A("s_andn2_b64 s[58:59], vcc, s[58:59]")
    A(f"v_add_u32 v{t0}, 32, v{t2}")
    A(f"v_cndmask_b32 v{AD+1}, v{t3}, v{t0}, s[62:63]")
    A(f"v_subrev_u32 v{t0}, 8, v{t2}")
    A(f"v_cndmask_b32 v{AD+2}, v{t3}, v{t0}, s[58:59]")
    A(f"v_and_b32 v{t0}, 31, v1")
    A("s_lshl_b32 s57, s48, 5")
    A(f"v_add_u32 v{t0}, s57, v{t0}")
    A(f"v_mul_u32_u24 v8, 176, v{t0}")
    A(f"v_add_u32 v8, {L_V}, v8")
    A(f"v_mul_u32_u24 v{t3}, 80, v{t1}")
    A(f"v_add_u32 v2, v8, v{t3}")
    A(f"v_mul_u32_u24 v{t2}, 336, v{t0}")
    A(f"v_lshl_add_u32 v3, v{t3}, 1, v{t2}")
    A(f"v_mul_u32_u24 v{t0}, 336, v{R8}")
    A(f"v_mul_u32_u24 v{t1}, 5, v{HH}")
    A(f"v_add_u32 v{t1}, v{t1}, v{JJ}")
    A(f"v_lshl_add_u32 v{t0}, v{t1}, 3, v{t0}")
    A("s_mul_i32 s57, s48, 80")
    A(f"v_add_u32 v6, s57, v{t0}")
    A(f"v_lshl_add_u32 v{t0}, v{JJ}, 1, v{HH}")
    A("s_mul_i32 s57, s48, 5")
    A(f"v_add_u32 v{t1}, s57, v{t0}")
    A(f"v_cmp_gt_u32 vcc, 5, v{t0}")
    A(f"v_cndmask_b32 v{t1}, 20, v{t1}, vcc")
    A(f"v_mul_u32_u24 v{t0}, 176, v{R8}")
    A(f"v_lshl_add_u32 v{t0}, v{t1}, 3, v{t0}")
    A(f"v_add_u32 v7, {L_V}, v{t0}")
    A("v_mov_b32 v4, 0x3f803f80")
    A("v_mov_b32 v5, 0x3f803f80")
    WPF = 164
    frags = [(0, 0), (0, 1), (0, 2), (1, 0), (1, 1), (1, 2), (1, 3), (1, 4), (2, 2), (2, 3), (2, 4)]
    for r in (WPF + 4 * 2 + 2, WPF + 4 * 2 + 3, WPF + 4 * 8, WPF + 4 * 8 + 1):
        A(f"v_mov_b32 v{r}, 0")
    A(f"s_mov_b32 s60, {LOG2E:#x}")
    A(f"s_mov_b32 s61, {LOG2E:#x}")
    A("s_waitcnt lgkmcnt(0)")
    srd(A, SWS, S_WS, WS_SIZE)
    if Opt.touch:
        Lt = A.newlabel("L_nt")
        A("s_cmp_eq_u32 s48, 0")
        A(f"s_cbranch_scc0 {Lt}")
        touch(A, 248)
        A.label(Lt)
    A("s_setprio 2")

    def rd_x(s, t, b):
        sl = s % 4
        return f"ds_read_b128 {vr(XF[b],4)}, v{XA + 4*(sl>>1) + t} offset:{(sl&1)*SLOT}"

    def rd_w(s, t, T, half, b):
        sl = s % 4
        return f"ds_read_b64_tr_b16 {vr(WF[b]+4*T+2*half,2)}, v{WA+(sl>>1)} offset:{(sl&1)*SLOT + (16*t+4*half)*320 + 32*T}"

    def wphi_reads(pas):
        L = []
        for fi, (Tp, u) in enumerate(frags):
            for half in range(2):
                dq = 2 * u + half
                r = WPF + 4 * fi + 2 * half
                if (Tp == 0 and dq == 5) or (Tp == 2 and dq == 4):
                    continue
                ad = {(0, 0): AD, (1, 0): AD + 1, (1, 1): AD + 2, (2, 1): AD + 3}[(Tp, dq // 5)]
                L.append(f"ds_read_b64_tr_b16 {vr(r,2)}, v{ad} offset:{dq*160 + pas*1600}")
        return L

    A("s_barrier")
    stampw(A, 3)
    A(rd_x(0, 0, 0))
    for T in range(5):
        A(rd_w(0, 0, T, 0, 0)); A(rd_w(0, 0, T, 1, 0))
    for s in range(10):
        for t in range(4):
            b = t & 1
            last = (s == 9 and t == 3)
            ns, nt = (s, t + 1) if t < 3 else (s + 1, 0)
            prev_remaining = [8, 6, 4, 2, 0]
            issued = 0
            wp = wphi_reads(0) if last else []
            for T in range(5):
                if not (t == 3 and T >= 2):
                    A(f"s_waitcnt lgkmcnt({prev_remaining[T] + issued})")
                A(f"v_mfma_f32_32x32x16_bf16 {vr(ACC+16*T,16)}, {vr(WF[b]+4*T,4)}, {vr(XF[b],4)}, {vr(ACC+16*T,16)}")
                if t < 3:
                    if T == 0:
                        A(rd_x(ns, nt, 1 - b)); issued += 1
                    A(rd_w(ns, nt, T, 0, 1 - b)); A(rd_w(ns, nt, T, 1, 1 - b)); issued += 2
                elif T == 1:
                    A("s_waitcnt lgkmcnt(0)")
                    A("s_barrier")
                    if not last:
                        A(rd_x(ns, nt, 1 - b))
                        for TT in (0, 1):
                            A(rd_w(ns, nt, TT, 0, 1 - b)); A(rd_w(ns, nt, TT, 1, 1 - b))
                    else:
                        for x in wp[:5]:
                            A(x)
                elif T >= 2:
                    if not last:
                        A(rd_w(ns, nt, T, 0, 1 - b)); A(rd_w(ns, nt, T, 1, 1 - b))
                    else:
                        for x in wp[5 * (T - 1):5 * T]:
                            A(x)
    stamp(A, 4)
    handshake_issue(A, 32, 14)
    P = 96
    E, F, TT_ = 208, 228, 248

    def phi_mfma(src):
        seen = set()
        for fi, (Tp, u) in enumerate(frags):
            c = vr(ACC + 16 * Tp, 16) if Tp in seen else "0"
            seen.add(Tp)
            A(f"v_mfma_f32_32x32x16_bf16 {vr(ACC+16*Tp,16)}, {vr(WPF+4*fi,4)}, {vr(src+4*u,4)}, {c}")

    for i in range(40):
        A(f"v_cvt_pk_bf16_f32 v{P+i}, v{ACC+2*i}, v{ACC+2*i+1}")
    Lq = A.newlabel("L_q")
    A("s_cmp_eq_u32 s51, 0")
    A(f"s_cbranch_scc0 {Lq}")
    mq = A.mark()
    for i in range(20):
        A(f"v_permlane32_swap_b32 v{P+i}, v{P+20+i}")
    A("s_waitcnt lgkmcnt(0)")
    phi_mfma(P)
    for i in range(5):
        A(f"ds_write_b128 v2, {vr(P+20+4*i,4)} offset:{16*i}")
    A("ds_write_b64 v8, v[4:5] offset:160")
    for grp, ph in ((0, 64), (1, 96)):
        softmax20(A, ACC + 20 * grp, E, F, TT_, ph)
        for i in range(5):
            A(f"ds_write_b128 v3, {vr(ph+4*i,4)} offset:{80*grp+16*i}")
    stamp(A, 5)
    lds_arrive(A, 9, 0)
    A("s_lshl_b32 s57, s50, 2")
    A("s_add_u32 s57, s57, s48")
    A("s_lshl_b32 s57, s57, 4")
    A("s_add_u32 s57, s57, s49")
    A("s_lshl_b32 s59, s57, 7")
    A(f"s_add_u32 s59, s59, {F1:#x}")
    A("s_mul_i32 s57, s57, 5120")
    A(f"s_add_u32 s57, s57, {WS_PART:#x}")
    A("s_add_u32 s58, s57, 4096")
    A("v_lshlrev_b32 v2, 4, v1")
    lds_wait(A, 9, 0, 4, setaddr=False)
    FA = 64
    T = Lgkm(A)
    for u in range(10):
        if u < 8:
            for half in range(2):
                o = (16 * u + 4 * half)
                T.issue(f"ds_read_b64_tr_b16 {vr(FA+12*u+2*half,2)}, v6 offset:{o*336}")
                T.issue(f"ds_read_b64_tr_b16 {vr(FA+12*u+4+2*half,2)}, v6 offset:{o*336+32}")
                T.issue(f"ds_read_b64_tr_b16 {vr(FA+12*u+8+2*half,2)}, v7 offset:{o*176}", u)
        if u >= 2:
            uu = u - 2
            T.wait(uu)
            for TT in range(2):
                c = vr(ACC + 16 * TT, 16) if uu else "0"
                A(f"v_mfma_f32_32x32x16_bf16 {vr(ACC+16*TT,16)}, {vr(FA+12*uu+4*TT,4)}, {vr(FA+12*uu+8,4)}, {c}")
    lds_arrive(A, 9, 1)
    A("s_mov_b32 exec_lo, 0x00ffffff")
    A("s_mov_b32 exec_hi, 0x00ffffff")
    for q in range(4):
        A(f"buffer_store_dwordx4 {vr(ACC+4*q,4)}, v2, s[{SWS}:{SWS+3}], s57 offen offset:{1024*q}{SC}")
    A(f"buffer_store_dwordx4 {vr(ACC+16,4)}, v2, s[{SWS}:{SWS+3}], s58 offen{SC}")
    A("s_mov_b64 exec, -1")
    stamp(A, 6)
    handshake_check(A, 32, 14)
    set_flag(A, 10, "s59")
    stamp(A, 7)
    role_o(A)
    end_wave(A)
    A.label(Lq)
    hq = A.mark()
    A("s_nop 1")
    A(f"v_and_b32 v{t0}, 31, v1")
    A(f"v_lshrrev_b32 v{t1}, 5, v1")
    A(f"s_mov_b32 s57, {4*64*2560}")
    A(f"v_mul_lo_u32 v{t1}, s57, v{t1}")
    A(f"v_lshl_add_u32 v2, v{t0}, 4, v{t1}")
    A(f"v_lshl_add_u32 v3, v{t0}, 3, v{t1}")
    A("s_lshl_b32 s58, s49, 2")
    A("s_add_u32 s58, s58, s48")
    A("s_lshl_b32 s57, s50, 9")
    A("s_lshl_b32 s59, s58, 2")
    A("s_add_u32 s59, s59, s57")
    A("s_lshl_b32 s59, s59, 5")
    A(f"s_add_u32 s59, s59, {F2:#x}")
    A("s_add_u32 s57, s57, s58")
    A("s_mul_i32 s57, s57, 2560")
    for pas in range(2):
        A("s_waitcnt lgkmcnt(0)")
        phi_mfma(P + 20 * pas)
        if pas == 0:
            A("s_nop 7")
            for x in wphi_reads(1):
                A(x)
        for grp in range(2):
            ph = 64 if grp == 0 else 96
            softmax20(A, ACC + 20 * grp, E, F, TT_, ph)
            if pas == 1 and grp == 0:
                handshake_check(A, 32, 14)
                set_flag(A, 10, "s59")
                A("s_add_u32 s59, s59, 8192")
            for g in range(2):
                A(f"buffer_store_dwordx4 {vr(ph+10*g,4)}, v2, s[{SWS}:{SWS+3}], s57 offen offset:{512*g}{SC}")
                A(f"buffer_store_dwordx4 {vr(ph+10*g+4,4)}, v2, s[{SWS}:{SWS+3}], s57 offen offset:{1024+512*g}{SC}")
                A(f"buffer_store_dwordx2 {vr(ph+10*g+8,2)}, v3, s[{SWS}:{SWS+3}], s57 offen offset:{2048+256*g}{SC}")
            A(f"s_add_u32 s57, s57, {64*2560}")
    stamp(A, 6)
    lds_arrive(A, 9, 0)
    set_flag(A, 10, "s59")
    stamp(A, 7)
    A.check_seam(mq, hq)
    end_wave(A)


def role_o(A):
    NT = 4
    A("s_sub_u32 s50, s99, 8")
    A("s_lshr_b32 s49, s50, 2")
    A("s_lshl_b32 s51, s98, 2")
    A("s_add_u32 s49, s49, s51")
    A("s_and_b32 s50, s50, 3")
    A("s_lshl_b32 s50, s50, 2")
    A("s_add_u32 s50, s50, s48")
    A("s_lshl_b32 s51, s49, 6")
    A("s_lshl_b32 s52, s48, 4")
    A("s_add_u32 s51, s51, s52")
    A("s_lshl_b32 s51, s51, 5")
    A(f"s_add_u32 s51, s51, {F1:#x}")
    A("s_lshr_b32 s52, s49, 3")
    A("s_lshl_b32 s52, s52, 9")
    A("s_bfe_u32 s53, s49, 0x10001")
    A("s_lshl_b32 s53, s53, 8")
    A("s_add_u32 s52, s52, s53")
    A("s_lshl_b32 s53, s50, 4")
    A("s_add_u32 s52, s52, s53")
    A("s_lshl_b32 s52, s52, 5")
    A(f"s_add_u32 s52, s52, {F2:#x}")
    A("v_lshrrev_b32 v2, 4, v1")
    A("v_lshlrev_b32 v12, 7, v2")
    A("v_and_b32 v2, 31, v1")
    A("v_min_u32 v3, 20, v2")
    A("v_and_b32 v4, 32, v1")
    A("v_add_lshl_u32 v3, v3, v4, 4")
    A("s_lshl_b32 s55, s49, 4")
    A("s_lshl_b32 s56, s48, 2")
    A("s_add_u32 s55, s55, s56")
    A("s_mul_i32 s55, s55, 5120")
    A(f"s_add_u32 s55, s55, {WS_PART:#x}")
    A("v_lshlrev_b32 v5, 4, v1")
    A("v_lshlrev_b32 v6, 3, v1")
    A("s_lshl_b32 s56, s49, 6")
    A("s_lshl_b32 s57, s50, 2")
    A("s_add_u32 s56, s56, s57")
    A("s_mul_i32 s56, s56, 2560")
    A("s_mul_i32 s54, s57, 40960")
    A("s_lshl_b32 s58, s49, 10")
    A("s_lshl_b32 s59, s49, 8")
    A(f"s_add_u32 s54, s54, {WS_O:#x}")
    A("s_add_u32 s59, s59, s54")
    A("s_add_u32 s59, s59, 32768")
    A("s_add_u32 s54, s54, s58")
    A("s_mul_i32 s58, s48, 5120")
    A("v_add_u32 v8, s58, v5")
    PR, PQ = 16, 96
    for t in range(NT):
        A(f"v_mov_b32 v{PQ+12*t+10}, 0")
        A(f"v_mov_b32 v{PQ+12*t+11}, 0")
    poll(A, 14, 12, "s51")
    stamp(A, 8)
    for p in range(4):
        for q in range(5):
            if q == 4:
                A("s_add_u32 s55, s55, 4096")
            A(f"buffer_load_dwordx4 {vr(PR+20*p+4*q,4)}, v3, s[{SWS}:{SWS+3}], s55 offen offset:{1024*(q&3)}{SC}")
        if p < 3:
            A("s_add_u32 s55, s55, 1024")
    lds_wait(A, 9, 1, 4)
    poll(A, 14, 12, "s52")
    stamp(A, 9)
    for t in range(NT):
        A(f"buffer_load_dwordx4 {vr(PQ+12*t,4)}, v5, s[{SWS}:{SWS+3}], s56 offen{SC}")
        A(f"buffer_load_dwordx4 {vr(PQ+12*t+4,4)}, v5, s[{SWS}:{SWS+3}], s56 offen offset:1024{SC}")
        A(f"buffer_load_dwordx2 {vr(PQ+12*t+8,2)}, v6, s[{SWS}:{SWS+3}], s56 offen offset:2048{SC}")
        if t < NT - 1:
            A("s_add_u32 s56, s56, 2560")
    for p in (1, 2, 3):
        for i in range(0, 20, 2):
            A(f"v_pk_add_f32 {vr(PR+i,2)}, {vr(PR+i,2)}, {vr(PR+20*p+i,2)}")
    for q in range(5):
        A(f"ds_write_b128 v8, {vr(PR+4*q,4)} offset:{1024*q}")
    lds_arrive(A, 9, 2)
    lds_wait(A, 9, 2, 4, setaddr=False)
    for p in range(4):
        for q in range(5):
            A(f"ds_read_b128 {vr(PR+20*p+4*q,4)}, v5 offset:{5120*p+1024*q}")
        if p == 2:
            A("s_waitcnt lgkmcnt(5)")
    A("s_waitcnt lgkmcnt(0)")
    for p in (1, 2, 3):
        for i in range(0, 20, 2):
            A(f"v_pk_add_f32 {vr(PR+i,2)}, {vr(PR+i,2)}, {vr(PR+20*p+i,2)}")
    KF = 36
    for i in range(10):
        A(f"v_cvt_pk_bf16_f32 v{KF+i}, v{PR+2*i}, v{PR+2*i+1}")
    A(f"v_mov_b32 v{KF+10}, 0")
    A(f"v_mov_b32 v{KF+11}, 0")
    stamp(A, 10)
    D = [144, 160, 176, 192]
    OP = [48, 56, 64, 72]
    for t in range(NT):
        A(f"s_waitcnt vmcnt({3*(NT-1-t)})")
        for u in range(3):
            c = vr(D[t], 16) if u else "0"
            A(f"v_mfma_f32_32x32x16_bf16 {vr(D[t],16)}, {vr(KF+4*u,4)}, {vr(PQ+12*t+4*u,4)}, {c}")
    for t in range(NT):
        d, o = D[t], OP[t]
        A(f"v_add_f32 v10, 0x358637bd, v{d+12}")
        A("v_rcp_f32 v10, v10")
        for i in range(0, 12, 2):
            A(f"v_pk_mul_f32 {vr(d+i,2)}, {vr(d+i,2)}, v[10:11] op_sel_hi:[1,0]")
        for i in range(6):
            A(f"v_cvt_pk_bf16_f32 v{o+i}, v{d+2*i}, v{d+2*i+1}")
        A(f"buffer_store_dwordx4 {vr(o,4)}, v5, s[{SWS}:{SWS+3}], s54 offen{SC}")
        A("s_mov_b32 exec_hi, 0")
        A(f"buffer_store_dwordx2 {vr(o+4,2)}, v6, s[{SWS}:{SWS+3}], s59 offen{SC}")
        A("s_mov_b64 exec, -1")
        if t < NT - 1:
            A("s_add_u32 s54, s54, 40960")
            A("s_add_u32 s59, s59, 40960")
    A("s_lshl_b32 s50, s50, 7")
    A("s_lshl_b32 s49, s49, 2")
    A("s_add_u32 s50, s50, s49")
    A("s_lshl_b32 s50, s50, 5")
    A(f"s_add_u32 s50, s50, {F3:#x}")
    stamp(A, 11)
    set_flag(A, 12, "s50")
    stamp(A, 12)


B_PRE = 8 * CV_LDS


def tile_decode(A):
    A("s_mul_i32 s50, s49, 6554")
    A("s_lshr_b32 s50, s50, 16")
    A("s_mul_i32 s51, s50, 10")
    A("s_sub_u32 s51, s49, s51")


def b_tile(A):
    A("s_sub_u32 s49, s2, 192")
    A("s_mul_i32 s49, s49, 5")
    A("s_add_u32 s49, s49, s48")


def conv_load_h(A):
    SH = 32
    srd(A, SH, S_SSK, NB_SSK)
    A("v_lshlrev_b32 v2, 4, v1")
    A("s_lshl_b32 s50, s49, 12")
    A("s_add_u32 m0, s56, 64")
    for i in range(4):
        A(f"buffer_load_dwordx4 v2, s[{SH}:{SH+3}], s50 offen offset:{1024*i}{Opt.nt_s} lds")


def role_pre(A):
    SK, SV, SS = 32, 36, 40
    t0, t1, t2 = 2, 3, 4
    b_tile(A)
    tile_decode(A)
    A(f"s_mul_i32 s52, s50, {64*1280}")
    A("s_lshl_b32 s53, s51, 7")
    A("s_add_u32 s52, s52, s53")
    A(f"v_lshrrev_b32 v{t0}, 3, v1")
    A(f"v_and_b32 v{t1}, 7, v1")
    A(f"v_mul_u32_u24 v{t2}, {8*1280}, v{t0}")
    A(f"v_lshl_add_u32 v{t2}, v{t1}, 4, v{t2}")
    A(f"v_add_u32 v5, s52, v{t2}")
    A(f"v_subrev_u32 v6, {3*1280}, v5")
    A(f"v_subrev_u32 v7, {2*1280}, v5")
    A(f"v_subrev_u32 v8, {1280}, v5")
    A(f"v_lshlrev_b32 v9, 6, v{t1}")
    A("s_lshl_b32 s54, s51, 9")
    A(f"s_movk_i32 s55, {4*1280}")
    A("s_waitcnt lgkmcnt(0)")
    srd(A, SK, S_BK, NB_X)
    srd(A, SV, S_BV, NB_X)
    srd(A, SS, S_SH, NB_SH)
    WR, KR, VR = 16, 32, 76
    for i in range(4):
        A(f"buffer_load_dwordx4 {vr(WR+4*i,4)}, v9, s[{SS}:{SS+3}], s54 offen offset:{16*i}")
    for i in range(3):
        A(f"buffer_load_dwordx4 {vr(KR+4*i,4)}, v{6+i}, s[{SK}:{SK+3}], 0 offen{Opt.nt_s}")
    for i in range(8):
        so = "0" if i < 4 else "s55"
        A(f"buffer_load_dwordx4 {vr(KR+12+4*i,4)}, v5, s[{SK}:{SK+3}], {so} offen offset:{1280*(i&3)}{Opt.nt_s}")
        A(f"buffer_load_dwordx4 {vr(VR+4*i,4)}, v5, s[{SV}:{SV+3}], {so} offen offset:{1280*(i&3)}{Opt.nt_s}")
    stamp(A, 2)
    srd(A, SWS, S_WS, WS_SIZE)
    A("s_mul_i32 s56, s48, 8320")
    A(f"s_add_u32 s56, s56, {B_PRE}")
    A(f"v_mul_u32_u24 v10, 1040, v{t1}")
    A(f"v_lshl_add_u32 v10, v{t0}, 4, v10")
    A("v_add_u32 v10, s56, v10")
    A("v_lshrrev_b32 v11, 4, v1")
    A("v_lshlrev_b32 v11, 8, v11")
    A("v_and_b32 v12, 3, v1")
    A("v_lshl_add_u32 v11, v12, 6, v11")
    A("v_bfe_u32 v12, v1, 2, 2")
    A("v_lshl_add_u32 v11, v12, 3, v11")
    A("v_add_u32 v11, s56, v11")
    A(f"v_lshlrev_b32 v12, 12, v{t0}")
    A(f"v_lshl_add_u32 v12, v{t1}, 4, v12")
    A("s_lshl_b32 s57, s51, 18")
    A("s_lshl_b32 s58, s50, 7")
    A("s_add_u32 s57, s57, s58")
    A(f"s_add_u32 s57, s57, {WS_KVT:#x}")
    A("s_lshl_b32 s58, s50, 2")
    A("s_add_u32 s58, s58, s53")
    A("s_lshl_b32 s58, s58, 5")
    A(f"s_add_u32 s58, s58, {F0:#x}")
    A("s_mov_b32 s59, 0xffff0000")
    WF, KF, VF, TA, OUT = 108, 140, 172, 180, 196

    def unpack(dst, src, n):
        for i in range(n):
            A(f"v_lshlrev_b32 v{dst+2*i}, 16, v{src+i}")
            A(f"v_and_b32 v{dst+2*i+1}, s59, v{src+i}")

    A("s_waitcnt vmcnt(19)")
    for c in range(8):
        A(f"v_lshlrev_b32 v{WF+c}, 16, v{WR+2*c}")
        A(f"v_and_b32 v{WF+8+c}, s59, v{WR+2*c}")
        A(f"v_lshlrev_b32 v{WF+16+c}, 16, v{WR+2*c+1}")
        A(f"v_and_b32 v{WF+24+c}, s59, v{WR+2*c+1}")
    A("s_waitcnt vmcnt(16)")
    for i in range(3):
        unpack(KF + 8 * i, KR + 4 * i, 4)
    for i in range(8):
        A(f"s_waitcnt vmcnt({14-2*i})")
        unpack(KF + 8 * ((i + 3) & 3), KR + 12 + 4 * i, 4)
        unpack(VF, VR + 4 * i, 4)
        acc = TA + 8 * (i & 1)
        for j in (3, 2, 1, 0):
            kk = KF + 8 * ((i + 3 - j) & 3)
            for c in range(0, 8, 2):
                if j == 3:
                    A(f"v_pk_mul_f32 {vr(acc+c,2)}, {vr(kk+c,2)}, {vr(WF+8*j+c,2)}")
                else:
                    A(f"v_pk_fma_f32 {vr(acc+c,2)}, {vr(kk+c,2)}, {vr(WF+8*j+c,2)}, {vr(acc+c,2)}")
        for c in range(0, 8, 2):
            A(f"v_pk_mul_f32 {vr(acc+c,2)}, {vr(acc+c,2)}, {vr(VF+c,2)}")
        if i & 1:
            for c in range(8):
                A(f"v_cvt_pk_bf16_f32 v{OUT+4*c+i//2}, v{TA+c}, v{TA+8+c}")
    stamp(A, 3)
    handshake_issue(A, SS, 14)
    for c in range(8):
        A(f"ds_write_b128 v10, {vr(OUT+4*c,4)} offset:{128*c}")
    A("s_waitcnt lgkmcnt(0)")
    T = Lgkm(A)
    for i in range(8):
        T.issue(f"ds_read_b64_tr_b16 {vr(16+4*i,2)}, v11 offset:{1040*i}")
        T.issue(f"ds_read_b64_tr_b16 {vr(18+4*i,2)}, v11 offset:{1040*i+32}", i)
    for i in range(8):
        T.wait(i)
        A(f"buffer_store_dwordx4 {vr(16+4*i,4)}, v12, s[{SWS}:{SWS+3}], s57 offen{SC}")
        if i < 7:
            A(f"s_add_u32 s57, s57, {8*4096}")
    handshake_check(A, SS, 14)
    set_flag(A, 6, "s58")
    stamp(A, 4)


def role_helper(A):
    SD = 40
    A("s_setprio 3")
    A("s_waitcnt lgkmcnt(0)")
    srd(A, SWS, S_WS, WS_SIZE)
    dbg_srd(A, SD)
    Lz = A.newlabel("L_nz")
    A("s_cmp_eq_u32 s2, 192")
    A(f"s_cbranch_scc0 {Lz}")
    A("s_cmp_eq_u32 s48, 5")
    A(f"s_cbranch_scc0 {Lz}")
    A(f"s_mov_b32 s57, {WS_EPOCH:#x}")
    A("s_mov_b64 exec, 1")
    A(f"buffer_load_dword v4, off, s[{SWS}:{SWS+3}], s57{SC}")
    A("s_waitcnt vmcnt(0)")
    A("v_add_u32 v4, 1, v4")
    A("v_not_b32 v5, v4")
    A(f"buffer_store_dwordx2 v[4:5], off, s[{SD}:{SD+3}], 0{SC}")
    A(f"buffer_store_dword v4, off, s[{SWS}:{SWS+3}], s57{SC}")
    A("s_mov_b64 exec, -1")
    stamp(A, 2)
    A.label(Lz)
    if Opt.codepf:
        Lp = A.newlabel("L_npf")
        A("s_cmp_eq_u32 s48, 6")
        A(f"s_cbranch_scc0 {Lp}")
        A("s_getpc_b64 s[50:51]")
        A.label("L_pc")
        A(f"s_sub_u32 s50, s50, L_pc-{NAME}_kernel")
        A("s_subb_u32 s51, s51, 0")
        A("s_sub_u32 s52, s99, 24")
        A("s_lshl_b32 s52, s52, 13")
        A("v_lshl_add_u32 v2, v1, 7, s52")
        A(f"v_min_u32 v2, L_code_end-{NAME}_kernel-4, v2")
        A("global_load_dword v24, v2, s[50:51]")
        A.label(Lp)
    if Opt.touch:
        Lt = A.newlabel("L_nt")
        A("s_cmp_eq_u32 s48, 7")
        A(f"s_cbranch_scc0 {Lt}")
        touch(A, 248)
        A.label(Lt)
    A("s_setprio 0")


def role_conv(A):
    A.label("L_conv")
    handshake_issue(A, 40, 22)
    A("s_lshl_b32 s52, s49, 1")
    A("s_and_b32 s52, s52, 0xfffffffc")
    A(f"s_load_dword s53, s[{S_SSD}:{S_SSD+1}], s52")
    A(f"s_load_dword s54, s[{S_SSK}:{S_SSK+1}], s50")
    A(f"s_add_u32 s51, s50, {WS_KVT:#x}")
    for i in range(4):
        A(f"v_mov_b32 v{4+i}, 0")
    A("v_add_u32 v3, s56, v2")
    A("s_mov_b64 exec, 0xf")
    A("ds_write_b128 v3, v[4:7]")
    A("s_mov_b32 exec_lo, -1")
    A(f"ds_write_b128 v3, v[4:7] offset:{64+4096}")
    A("s_mov_b64 exec, -1")
    A("v_and_b32 v8, 1, v1")
    A("v_lshlrev_b32 v8, 5, v8")
    A("v_bfe_u32 v9, v1, 4, 1")
    A("v_lshl_add_u32 v8, v9, 4, v8")
    A("v_bfe_u32 v9, v1, 1, 1")
    A("v_lshl_add_u32 v8, v9, 3, v8")
    A("v_lshrrev_b32 v10, 5, v1")
    A("v_lshl_add_u32 v8, v10, 6, v8")
    A("v_bfe_u32 v9, v1, 2, 2")
    A("v_lshlrev_b32 v9, 3, v9")
    A("v_sub_u32 v8, v8, v9")
    A("s_add_u32 s57, s56, 32")
    A("v_add_u32 v8, s57, v8")
    A("v_bfe_u32 v9, v1, 4, 1")
    A("v_lshlrev_b32 v9, 8, v9")
    A("v_and_b32 v11, 3, v1")
    A("v_lshl_add_u32 v9, v11, 6, v9")
    A("v_bfe_u32 v11, v1, 2, 2")
    A("v_lshl_add_u32 v9, v11, 4, v9")
    A("v_lshlrev_b32 v11, 6, v10")
    A("v_sub_u32 v9, v9, v11")
    A(f"s_add_u32 s57, s56, {64+4096+512-384}")
    A("v_add_u32 v9, s57, v9")
    A("v_bfe_u32 v11, v1, 2, 1")
    A("v_bfe_u32 v12, v1, 3, 2")
    A("v_lshl_add_u32 v11, v11, 2, v12")
    A("v_and_b32 v12, 35, v1")
    A("v_lshl_add_u32 v11, v12, 3, v11")
    A("v_and_b32 v12, 1, v11")
    A("v_lshlrev_b32 v12, 4, v12")
    A("v_mov_b32 v13, 0xffff")
    A("v_lshlrev_b32 v13, v12, v13")
    A("v_lshrrev_b32 v11, 1, v11")
    MK = 16
    for i in range(4):
        A(f"v_cmp_eq_u32 vcc, {i}, v11")
        A(f"v_cndmask_b32 v{MK+i}, 0, v13, vcc")
    A("v_bfe_u32 v11, v1, 4, 1")
    A("v_and_b32 v12, 3, v1")
    A("v_lshl_add_u32 v11, v11, 2, v12")
    A("v_add_u32 v11, 7, v11")
    A("v_and_b32 v12, 3, v11")
    A("v_bfe_u32 v13, v11, 2, 1")
    A("v_lshl_add_u32 v12, v13, 4, v12")
    A("v_and_b32 v13, 12, v1")
    A("v_add3_u32 v12, v12, v13, 32")
    A("v_subrev_u32 v13, 32, v1")
    A("v_cmp_gt_u32 vcc, 32, v1")
    A("v_cndmask_b32 v14, v13, v12, vcc")
    A("v_lshlrev_b32 v14, 2, v14")
    A("s_mov_b32 s58, 0x1111")
    A("s_mov_b32 s59, 0")
    A("s_waitcnt lgkmcnt(0)")
    A("s_lshl_b32 s54, s54, 16")
    A("s_lshl_b32 s55, s53, 16")
    A("s_and_b32 s53, s53, 0xffff0000")
    A("s_bitcmp1_b32 s49, 0")
    A("s_cselect_b32 s53, s53, s55")
    A("v_mov_b32 v15, s54")
    A("v_add_f32 v15, s53, v15")
    A("v_cvt_pk_bf16_f32 v15, v15, v15")
    A("s_lshr_b32 s52, s49, 6")
    A("s_lshl_b32 s52, s52, 12")
    A(f"s_add_u32 s52, s52, {F0:#x}")
    A("v_lshrrev_b32 v12, 1, v1")
    A("v_lshlrev_b32 v12, 7, v12")
    handshake_check(A, 40, 22)
    poll(A, 22, 12, "s52", sleep=4)
    stamp(A, 8)
    A(f"s_add_u32 m0, s56, {64+4096+512}")
    for i in range(4):
        A(f"buffer_load_dwordx4 v2, s[{SWS}:{SWS+3}], s51 offen offset:{1024*i}{SC} lds")
    A(f"s_add_u32 s51, s50, {WS_YT:#x}")
    NR = 20
    RA, RB, RS = 64, 144, 224
    ACCS = (32, 48)
    CAR, PUL, TMP = 20, (21, 22), 23
    OUT = (24, 28)
    if Ctx.stamps:
        A("s_waitcnt lgkmcnt(0)")
    T = Lgkm(A)

    def rdA(m, reg, tag):
        return [(f"ds_read_b64_tr_b16 {vr(reg,2)}, v8 offset:{128*m+32}", None),
                (f"ds_read_b64_tr_b16 {vr(reg+2,2)}, v8 offset:{128*m}", tag)]

    def rdB(b, reg, tag):
        return [(f"ds_read_b128 {vr(reg,4)}, v9 offset:{128*b}", tag)]

    for m in range(NR):
        for x, tg in rdA(m, RA + 4 * m, ("A", m)):
            T.issue(x, tg)
    T.wait(("A", 0))
    for k in range(4):
        A(f"v_bfi_b32 v{RA+k}, v{MK+k}, v15, v{RA+k}")
    A(f"v_mov_b32 v{PUL[1]}, 0")
    T.all()
    Lns = A.newlabel("L_nsp")
    A("s_cmp_eq_u32 s63, 0")
    A(f"s_cbranch_scc1 {Lns}")
    lds_wait(A, 12, 0, 4, sleep=2)
    A.label(Lns)

    sched = []
    for i in range(8):
        ms = list(range(4 * i + 4))
        res = [m for m in ms if m < NR and 4 * i + 3 - m < NR]
        stm = [m for m in ms if m not in res]
        sched += [(i, m) for m in res + stm]
    streams = []
    for k, (i, m) in enumerate(sched):
        b = 4 * i + 3 - m
        if m >= NR:
            streams.append((k, "A", m))
        elif b >= NR:
            streams.append((k, "B", b))
    slot_of = {k: n % 8 for n, (k, _, _) in enumerate(streams)}

    def epilogue(i):
        V = ACCS[i & 1]
        own = [f"v_add_f32_dpp v{V+4*j}, v{V+4*j+k}, v{V+4*j} row_shr:{4*k} row_mask:0xf bank_mask:0xf"
               for k in (1, 2, 3) for j in range(4)]
        car = [f"v_add_f32_dpp v{CAR}, v{V+12+k}, v{CAR} row_shl:{16-4*k} row_mask:0xf bank_mask:0xf" for k in (1, 2, 3)]
        L = [f"v_mov_b32 v{CAR}, 0"] + own[0:2] + car[0:1] + own[2:4] + car[1:2] + own[4:6] + car[2:3]
        L.append(("ds", f"ds_bpermute_b32 v{PUL[i&1]}, v14, v{CAR}", ("P", i)))
        L += own[6:]
        for k in (1, 2, 3):
            for j in (0, 1, 2):
                L.append(f"v_add_f32_dpp v{V+4*j+4}, v{V+4*j+k}, v{V+4*j+4} row_shl:{16-4*k} row_mask:0xf bank_mask:0xf")
        o = OUT[(i >> 1) & 1] + 2 * (i & 1)
        L.append(f"v_cvt_pk_bf16_f32 v{o+1}, v{V+8}, v{V+12}")
        L.append(("wait", ("P", i)))
        L.append(f"v_cndmask_b32 v{TMP}, v{PUL[i&1]}, v{PUL[1-(i&1)]}, s[58:59]")
        L.append(f"v_add_f32 v{V}, v{V}, v{TMP}")
        L.append(f"v_cvt_pk_bf16_f32 v{o}, v{V}, v{V+4}")
        if i & 1:
            L.append(f"buffer_store_dwordx4 {vr(OUT[(i>>1)&1],4)}, v2, s[{SWS}:{SWS+3}], s51 offen offset:{1024*(i>>1)}{SC}")
        return L

    def emit(x):
        if isinstance(x, tuple):
            if x[0] == "ds":
                T.issue(x[1], x[2])
            else:
                T.wait(x[1])
        else:
            A(x)

    A("s_waitcnt vmcnt(0)")
    stampw(A, 9)
    for b in range(8):
        for x, tg in rdB(b, RB + 4 * b, ("B", b)):
            T.issue(x, tg)
    nres = 8
    nst = 0
    fill = []
    first = {}
    for k, (i, m) in enumerate(sched):
        first.setdefault(i, k)
    for k, (i, m) in enumerate(sched):
        V = ACCS[i & 1]
        b = 4 * i + 3 - m
        if k == first[i]:
            while fill:
                emit(fill.pop(0))
            if i > 0:
                fill = epilogue(i - 1)
        if k in slot_of:
            T.wait(("S", k))
        if b < NR:
            T.wait(("B", b))
        ra = RA + 4 * m if m < NR else RS + 4 * slot_of[k]
        rb = RB + 4 * b if b < NR else RS + 4 * slot_of[k]
        c = vr(V, 16) if k != first[i] else "0"
        A(f"v_mfma_f32_32x32x16_bf16 {vr(V,16)}, {vr(ra,4)}, {vr(rb,4)}, {c}")
        budget = 5
        if nres < NR:
            for x, tg in rdB(nres, RB + 4 * nres, ("B", nres)):
                T.issue(x, tg)
            nres += 1
            budget -= 1
        elif nst < len(streams) and (nst < 8 or streams[nst - 8][0] < k) and streams[nst][0] - k <= 10:
            kk, kind, fr = streams[nst]
            for x, tg in (rdA if kind == "A" else rdB)(fr, RS + 4 * slot_of[kk], ("S", kk)):
                T.issue(x, tg)
                budget -= 1
            nst += 1
        if k > first[i]:
            for _ in range(budget):
                if fill:
                    emit(fill.pop(0))
    while fill:
        emit(fill.pop(0))
    stampw(A, 10)
    T.done = T.n if Ctx.stamps else T.done
    for x in epilogue(7):
        emit(x)
    A("s_lshl_b32 s52, s49, 7")
    A(f"s_add_u32 s52, s52, {F4:#x}")
    set_flag(A, 10, "s52")
    stamp(A, 11)


def role_post(A):
    SQ, SO = 32, 36
    A("s_mul_i32 s49, s98, 40")
    A("s_sub_u32 s50, s99, 24")
    A("s_mul_i32 s50, s50, 5")
    A("s_add_u32 s49, s49, s50")
    A("s_add_u32 s49, s49, s48")
    A("s_and_b32 s50, s49, 31")
    A("s_lshr_b32 s51, s49, 5")
    A("v_lshrrev_b32 v2, 3, v1")
    A("v_and_b32 v3, 7, v1")
    A("v_lshlrev_b32 v4, 12, v2")
    A("v_lshl_add_u32 v4, v3, 4, v4")
    A("s_lshl_b32 s52, s51, 18")
    A("s_lshl_b32 s53, s50, 7")
    A("s_add_u32 s52, s52, s53")
    A(f"s_add_u32 s52, s52, {WS_YT:#x}")
    A("s_mul_i32 s56, s48, 8320")
    A(f"s_add_u32 s56, s56, {B_PRE}")
    A("s_lshr_b32 s54, s50, 3")
    A("s_lshl_b32 s54, s54, 9")
    A("s_bfe_u32 s55, s50, 0x10002")
    A("s_lshl_b32 s55, s55, 4")
    A("s_add_u32 s54, s54, s55")
    A("s_bfe_u32 s55, s50, 0x10001")
    A("s_lshl_b32 s55, s55, 7")
    A("s_add_u32 s54, s54, s55")
    A("s_and_b32 s55, s50, 1")
    A("s_lshl_b32 s55, s55, 1")
    A("s_add_u32 s54, s54, s55")
    A("v_and_b32 v5, 3, v2")
    A("v_lshrrev_b32 v6, 2, v2")
    A("v_lshl_add_u32 v5, v5, 5, v6")
    A("v_mul_u32_u24 v6, 1280, v5")
    A("v_lshlrev_b32 v7, 1, v6")
    A("v_lshl_add_u32 v6, v3, 4, v6")
    A("v_lshl_add_u32 v7, v3, 4, v7")
    A("s_mul_i32 s54, s54, 1280")
    A("s_lshl_b32 s53, s51, 7")
    A("s_lshl_b32 s55, s54, 1")
    A("s_add_u32 s54, s54, s53")
    A("s_add_u32 s55, s55, s53")
    A("s_add_u32 s55, s55, 1280")
    srd(A, SQ, S_BQ, NB_X)
    srd(A, SO, S_OUT, NB_OUT)
    QR, YR = 16, 48
    rows = [0, 4, 8, 12, 256, 260, 264, 268]
    for i in range(8):
        A(f"s_add_u32 s57, s54, {rows[i]*1280}")
        A(f"buffer_load_dwordx4 {vr(QR+4*i,4)}, v6, s[{SQ}:{SQ+3}], s57 offen{Opt.nt_s}")
    A("s_lshl_b32 s58, s51, 13")
    A(f"s_add_u32 s58, s58, {F4:#x}")
    A("v_lshlrev_b32 v12, 7, v1")
    A("s_mov_b32 s59, 0xffff0000")
    QF = 128
    A("s_waitcnt vmcnt(0)")
    for i in range(32):
        A(f"v_lshlrev_b32 v{QF+2*i}, 16, v{QR+i}")
        A(f"v_and_b32 v{QF+2*i+1}, s59, v{QR+i}")
    poll(A, 14, 12, "s58", sleep=4)
    stamp(A, 12)
    for i in range(8):
        A(f"v_xor_b32 v8, {16*i}, v4")
        A(f"s_add_u32 m0, s56, {1024*i}")
        A(f"buffer_load_dwordx4 v8, s[{SWS}:{SWS+3}], s52 offen{SC} lds")
        if i < 7:
            A(f"s_add_u32 s52, s52, {8*4096}")
    A("v_xor_b32 v8, v2, v3")
    A("v_lshlrev_b32 v8, 4, v8")
    A("v_lshl_add_u32 v8, v3, 10, v8")
    A("v_add_u32 v8, s56, v8")
    A("s_waitcnt vmcnt(0)")
    for c in range(8):
        A(f"ds_read_b128 {vr(YR+4*c,4)}, v8 offset:{128*c}")
    A("s_waitcnt lgkmcnt(0)")
    stamp(A, 13)
    YF, OUT = 80, 96
    for i in range(8):
        for c in range(8):
            if i & 1:
                A(f"v_and_b32 v{YF+c}, s59, v{YR+4*c+i//2}")
            else:
                A(f"v_lshlrev_b32 v{YF+c}, 16, v{YR+4*c+i//2}")
        for c in range(0, 8, 2):
            A(f"v_pk_mul_f32 {vr(YF+c,2)}, {vr(YF+c,2)}, {vr(QF+8*i+c,2)}")
        for k in range(4):
            A(f"v_cvt_pk_bf16_f32 v{OUT+4*i+k}, v{YF+2*k}, v{YF+2*k+1}")
        A(f"s_add_u32 s57, s55, {rows[i]*2560}")
        A(f"buffer_store_dwordx4 {vr(OUT+4*i,4)}, v7, s[{SO}:{SO+3}], s57 offen{Opt.osc}")
    stamp(A, 14)


def build():
    A = Asm()
    k = NAME + "_kernel"
    A.raw(f".globl {k}")
    A.raw(".p2align 8")
    A.raw(f".type {k},@function")
    A.label(k)
    load_kernargs(A)
    stamp_init(A)
    A("v_lshrrev_b32 v2, 6, v0")
    A("v_and_b32 v1, 63, v0")
    A("v_readfirstlane_b32 s100, v2")
    A("s_and_b32 s98, s2, 7")
    A("s_lshr_b32 s99, s2, 3")
    A("s_cmp_ge_u32 s2, 192")
    A("s_cbranch_scc1 L_b")
    A("s_and_b32 s49, s2, 3")
    A("s_lshl_b32 s49, s49, 2")
    A("s_and_b32 s50, s99, 3")
    A("s_add_u32 s49, s49, s50")
    A("s_bfe_u32 s52, s2, 0x10002")
    A("s_lshr_b32 s53, s2, 5")
    A("s_lshl_b32 s54, s52, 1")
    A("s_add_u32 s54, s54, s53")
    A("s_lshl_b32 s55, s52, 2")
    A("s_add_u32 s55, s55, s53")
    A("s_sub_u32 s55, s55, 2")
    A("s_cmp_lt_u32 s2, 64")
    A("s_cselect_b32 s50, s54, s55")
    A("s_cselect_b32 s51, 1, 0")
    A("s_and_b32 s48, s100, 3")
    A("s_cmp_ge_u32 s100, 4")
    A("s_cbranch_scc1 L_c")
    role_loader(A)
    A.label("L_c")
    role_compute(A)
    A.label("L_b")
    A("s_cmp_ge_u32 s2, 256")
    A("s_cbranch_scc1 L_exit")
    A("s_mov_b32 s48, s100")
    A("s_cmp_ge_u32 s48, 5")
    A("s_cbranch_scc1 L_help")
    role_pre(A)
    A("s_branch L_bconv")
    A.label("L_help")
    role_helper(A)
    A.label("L_bconv")
    A("s_mul_i32 s49, s98, 80")
    A("s_sub_u32 s50, s99, 24")
    A("s_lshl_b32 s50, s50, 3")
    A("s_add_u32 s49, s49, s50")
    A("s_add_u32 s49, s49, s48")
    A(f"s_mul_i32 s56, s48, {CV_LDS}")
    A("s_mov_b32 s63, 0")
    conv_load_h(A)
    A("s_barrier")
    role_conv(A)
    A("s_cmp_eq_u32 s63, 0")
    A("s_cbranch_scc0 L_bend")
    A("s_cmp_ge_u32 s48, 5")
    A("s_cbranch_scc1 L_bend")
    role_post(A)
    A.label("L_bend")
    end_wave(A)
    A.label("L_exit")
    A("s_endpgm")
    A.label("L_code_end")
    head = ["; generated by gen/fused.py",
            "; @launch grid=(256,1,1) block=(512,1,1) lds=163840"]
    txt = "\n".join(head) + '\n.amdgcn_target "amdgcn-amd-amdhsa--gfx950"\n.text\n' + A.text()
    txt += f'''.section .rodata,"a"
.p2align 6
.amdhsa_kernel {k}
  .amdhsa_next_free_vgpr 256
  .amdhsa_next_free_sgpr 102
  .amdhsa_accum_offset 256
  .amdhsa_group_segment_fixed_size 0
  .amdhsa_kernarg_size 104
  .amdhsa_user_sgpr_count 2
  .amdhsa_user_sgpr_kernarg_segment_ptr 1
  .amdhsa_system_sgpr_workgroup_id_x 1
.end_amdhsa_kernel
'''
    return txt


if __name__ == "__main__":
    args = sys.argv[2:]
    Ctx.stamps = "stamps" in args
    Opt.rot = "rot" in args
    Opt.codepf = "nocodepf" not in args
    Opt.wopf = "nowopf" not in args
    Opt.osc = " sc1" if "osc" in args else (" nt" if "ont" in args else "")
    Opt.touch = "touch" in args
    for a in args:
        if a.startswith("LA="):
            Opt.LA = int(a[3:])
    open(sys.argv[1], "w").write(build())
```

```python
import sys
from asm import Asm, vr, ar, sr
from roles import (WS_PHIQ, WS_PART, WS_O, WS_KVT, WS_YT, WS_STAMP, WS_SIZE, S_X, S_W, S_WPHI, S_WO, S_BQ, S_BK, S_BV,
                   S_SH, S_SSK, S_SSD, S_OUT, S_DBG, S_WS, NB_X, NB_W, NB_WPHI, NB_WO, NB_SH, NB_SSK, NB_OUT, LOG2E,
                   Ctx, load_kernargs, srd, stamp, stamp_init, softmax20)

NAME = "concat_heads__linear_kernel_hedgehog__ssm_conv_h3__prompt"
WS_PQ = WS_PHIQ
WS_FLAG = 0xF00000
F1, F2, F3, F0, F4 = (WS_FLAG + 128 * o for o in (0, 512, 1024, 1536, 1856))
WS_EPOCH = WS_FLAG + 128 * 2560 + 64
SWS = 44
SC = " sc1"
TAG = 30
SLOT = 36864
L_WP = 147456
L_Z = L_WP + 8192
L_SYNC = L_Z + 4096
L_V = 128 * 336
L_WOB = 65536
L_OT = 65536
CV_LDS = 8768
L_QCV = 3 * SLOT
B_PRE = 6 * CV_LDS


class Opt:
    rot = True
    LA = 2
    nt_s = " nt"
    codepf = True
    wopf = "b"
    osc = " nt"
    ppoll = False
    womall = True
    psleep = 2


def end_wave(A):
    if Ctx.stamps:
        stamp(A, 15, True)
        A("s_waitcnt lgkmcnt(0)")
        A("s_mov_b64 exec, -1")
        A("v_mov_b32 v2, 0")
        for k in range(16):
            A(f"v_writelane_b32 v2, s{64+2*k}, {k}")
        A("s_lshl_b32 s62, s2, 3")
        A("s_add_u32 s62, s62, s100")
        A("s_lshl_b32 s62, s62, 6")
        A(f"s_add_u32 s62, s62, {WS_STAMP:#x}")
        A("v_lshlrev_b32 v1, 2, v1")
        A("s_mov_b64 exec, 0xffff")
        A(f"buffer_store_dword v2, v1, s[{SWS}:{SWS+3}], s62 offen")
    A("s_endpgm")


def stampw(A, k):
    stamp(A, k)
    if Ctx.stamps:
        A("s_waitcnt lgkmcnt(0)")


def poll(A, vt, voff, soff, sleep=1):
    L, Ld = A.newlabel("L_poll"), A.newlabel("L_polld")
    A("s_movk_i32 s101, 0x4000")
    A.label(L)
    A(f"buffer_load_dwordx2 {vr(vt,2)}, v{voff}, s[{SWS}:{SWS+3}], {soff} offen{SC}")
    A("s_waitcnt vmcnt(0)")
    A(f"v_cmp_eq_u64 vcc, s[{TAG}:{TAG+1}], {vr(vt,2)}")
    A("s_cmp_eq_u64 vcc, -1")
    A(f"s_cbranch_scc1 {Ld}")
    A(f"s_sleep {sleep}")
    A("s_sub_u32 s101, s101, 1")
    A("s_cmp_eq_u32 s101, 0")
    A(f"s_cbranch_scc0 {L}")
    A("s_endpgm")
    A.label(Ld)


def ppoll(A, vt, voff, soff, sleep=1, depth=4):
    if not Opt.ppoll:
        return poll(A, vt, voff, soff, sleep=sleep)
    L, Ld = A.newlabel("L_pp"), A.newlabel("L_ppd")
    ld = lambda k: f"buffer_load_dwordx2 {vr(vt+2*k,2)}, v{voff}, s[{SWS}:{SWS+3}], {soff} offen{SC}"
    A("s_movk_i32 s101, 0x4000")
    for k in range(depth - 1):
        A(ld(k))
        A(f"s_sleep {sleep}")
    A.label(L)
    for k in range(depth):
        A(ld((k + depth - 1) % depth))
        A(f"s_waitcnt vmcnt({depth-1})")
        A(f"v_cmp_eq_u64 vcc, s[{TAG}:{TAG+1}], {vr(vt+2*k,2)}")
        A("s_cmp_eq_u64 vcc, -1")
        A(f"s_cbranch_scc1 {Ld}")
        A(f"s_sleep {sleep}")
    A("s_sub_u32 s101, s101, 1")
    A("s_cmp_eq_u32 s101, 0")
    A(f"s_cbranch_scc0 {L}")
    A("s_endpgm")
    A.label(Ld)


def set_flag(A, vt, soff):
    A(f"v_mov_b32 v{vt}, s{TAG}")
    A(f"v_mov_b32 v{vt+1}, s{TAG+1}")
    A(f"v_lshlrev_b32 v{vt+2}, 3, v1")
    A("s_waitcnt vmcnt(0)")
    A("s_mov_b64 exec, 0xffff")
    A(f"buffer_store_dwordx2 {vr(vt,2)}, v{vt+2}, s[{SWS}:{SWS+3}], {soff} offen{SC}")
    A("s_mov_b64 exec, -1")


def tag_issue(A):
    A(f"s_load_dwordx2 s[{TAG}:{TAG+1}], s[{S_DBG}:{S_DBG+1}], 0")


def tag_check(A, vt):
    L, Ld = A.newlabel("L_hs"), A.newlabel("L_hsd")
    A("s_waitcnt lgkmcnt(0)")
    A(f"s_cmp_lg_u32 s{TAG}, s{TAG+1}")
    A(f"s_cbranch_scc1 {Ld}")
    A("s_movk_i32 s101, 0x4000")
    A(f"v_mov_b32 v{vt+2}, 0")
    A.label(L)
    A(f"global_load_dwordx2 {vr(vt,2)}, v{vt+2}, s[{S_DBG}:{S_DBG+1}]{SC}")
    A("s_waitcnt vmcnt(0)")
    A(f"v_readfirstlane_b32 s{TAG}, v{vt}")
    A(f"v_readfirstlane_b32 s{TAG+1}, v{vt+1}")
    A("s_nop 3")
    A(f"s_cmp_lg_u32 s{TAG}, s{TAG+1}")
    A(f"s_cbranch_scc1 {Ld}")
    A("s_sleep 8")
    A("s_sub_u32 s101, s101, 1")
    A("s_cmp_eq_u32 s101, 0")
    A(f"s_cbranch_scc0 {L}")
    A("s_endpgm")
    A.label(Ld)


def lds_arrive(A, vt, addr):
    A(f"v_mov_b32 v{vt}, {addr}")
    A(f"v_mov_b32 v{vt+1}, 1")
    A("s_waitcnt lgkmcnt(0)")
    A("s_mov_b64 exec, 1")
    A(f"ds_add_u32 v{vt}, v{vt+1}")
    A("s_mov_b64 exec, -1")


def lds_wait(A, vt, addr, n, sleep=0):
    L, Ld = A.newlabel("L_lw"), A.newlabel("L_lwd")
    if addr is not None:
        A(f"v_mov_b32 v{vt}, {addr}")
    A("s_mov_b32 s101, 0x40000")
    A.label(L)
    A(f"ds_read_b32 v{vt+1}, v{vt}")
    A("s_waitcnt lgkmcnt(0)")
    A(f"v_cmp_le_u32 vcc, {n}, v{vt+1}")
    A(f"s_cbranch_vccnz {Ld}")
    if sleep:
        A(f"s_sleep {sleep}")
    A("s_sub_u32 s101, s101, 1")
    A("s_cmp_eq_u32 s101, 0")
    A(f"s_cbranch_scc0 {L}")
    A("s_endpgm")
    A.label(Ld)


class Lgkm:
    def __init__(self, A):
        self.A, self.n, self.done, self.tag = A, 0, 0, {}

    def issue(self, text, tag=None):
        self.A(text)
        self.n += 1
        if tag is not None:
            self.tag[tag] = self.n

    def wait(self, *tags):
        need = max(self.tag[t] for t in tags)
        if need > self.done:
            self.A(f"s_waitcnt lgkmcnt({min(15, self.n - need)})")
            self.done = max(need, self.n - 15)

    def all(self):
        if self.done < self.n:
            self.A("s_waitcnt lgkmcnt(0)")
            self.done = self.n


def o_index(A):
    A("s_sub_u32 s63, s99, 8")
    A("s_lshr_b32 s62, s63, 2")
    A("s_lshl_b32 s3, s98, 2")
    A("s_add_u32 s62, s62, s3")
    A("s_and_b32 s63, s63, 3")
    A("s_lshl_b32 s63, s63, 2")
    A("s_add_u32 s63, s63, s48")


def role_loader(A):
    SX, SW, SP = 32, 36, 40
    VX, VW = 24, 28
    t0, t1, t2, t3 = 11, 12, 13, 14
    A("s_setprio 1")
    A(f"v_lshrrev_b32 v{t0}, 3, v1")
    A(f"v_mul_u32_u24 v{t0}, 1280, v{t0}")
    A(f"v_lshrrev_b32 v{t1}, 4, v1")
    A(f"v_and_b32 v{t2}, 7, v1")
    A(f"v_xor_b32 v{t1}, v{t1}, v{t2}")
    A(f"v_xor_b32 v{t2}, 4, v{t1}")
    A(f"v_lshl_add_u32 v{VX}, v{t1}, 4, v{t0}")
    A(f"v_lshl_add_u32 v{VX+1}, v{t2}, 4, v{t0}")
    A(f"v_add_u32 v{VX+2}, {2*(8*1280-1024)}, v{VX}")
    A(f"v_add_u32 v{VX+3}, {3*(8*1280-1024)}, v{VX+1}")
    A(f"v_add_u32 v{VX+1}, {8*1280-1024}, v{VX+1}")
    A("s_lshl_b32 s60, s49, 2")
    A("s_add_u32 s60, s60, s48")
    A(f"s_mul_i32 s60, s60, {32*1280}")
    if Opt.rot:
        A("s_lshl_b32 s30, s49, 2")
        A("s_bfe_u32 s30, s30, 0x40000")
        A("s_lshr_b32 s30, 0x8530, s30")
        A("s_and_b32 s30, s30, 15")
        A("s_and_b32 s31, s99, 28")
        A("s_lshr_b32 s31, 0x875320, s31")
        A("s_and_b32 s31, s31, 15")
        A("s_add_u32 s30, s30, s31")
        A("s_sub_u32 s31, s30, 10")
        A("s_cmp_ge_u32 s30, 10")
        A("s_cselect_b32 s30, s31, s30")
        A("s_lshl_b32 s31, s30, 7")
        A("s_add_u32 s60, s60, s31")
    A("s_lshl_b32 s62, s48, 12")
    A("s_mov_b32 m0, s62")
    A(f"s_mov_b32 s{SX+2}, {NB_X:#x}")
    A(f"s_mov_b32 s{SX+3}, 0x20000")
    A("s_waitcnt lgkmcnt(0)")
    A(f"s_mov_b64 s[{SX}:{SX+1}], s[{S_X}:{S_X+1}]")

    def dma_x(s):
        if s:
            A(f"s_add_u32 m0, s62, {(s % 3) * SLOT}")
        for i in range(4):
            A(f"buffer_load_dwordx4 v{VX+i}, s[{SX}:{SX+3}], s60 offen offset:{1024*i} lds")

    def dma_w(s):
        sl = (s % 3) * SLOT
        A(f"s_add_u32 m0, s63, {sl}")
        for i in range(4):
            A(f"buffer_load_dwordx4 v{VW+i}, s[{SW}:{SW+3}], s61 offen offset:{1024*i} lds")
        A(f"s_add_u32 m0, s63, {sl+4096}")
        A(f"buffer_load_dwordx4 v{VW+4}, s[{SW}:{SW+3}], s61 offen lds")
        if s < 9:
            if Opt.rot:
                A("s_add_u32 s30, s30, 1")
                A("s_cmp_eq_u32 s30, 10")
                A(f"s_cselect_b32 s31, {(-1152)&0xffffffff:#x}, s97")
                A(f"s_cselect_b32 s3, {(-9*64*3840)&0xffffffff:#x}, s96")
                A("s_add_u32 s60, s60, s31")
                A("s_add_u32 s61, s61, s3")
            else:
                A("s_add_u32 s60, s60, 128")
                A(f"s_add_u32 s61, s61, {64*3840}")

    dma_x(0)
    A("s_cmp_eq_u32 s51, 0")
    A("s_cselect_b32 s56, 1120, 0")
    A(f"v_lshlrev_b32 v{t3}, 4, v1")
    A(f"v_mul_u32_u24 v{t2}, 6554, v1")
    A("s_movk_i32 s57, 3520")
    for i in range(5):
        if i:
            A(f"v_add_u32 v{t2}, {64*6554}, v{t2}")
        A(f"v_lshrrev_b32 v{t0}, 17, v{t2}")
        A(f"v_bfe_u32 v{t1}, v{t2}, 16, 1")
        A(f"v_mad_u32_u24 v{t0}, v{t0}, s57, v{t3}")
        A(f"v_mad_u32_u24 v{VW+i}, v{t1}, s56, v{t0}")
    A(f"v_add_u32 v{VW+4}, 4096, v{VW+4}")
    A(f"s_mul_i32 s61, s48, {16*3840}")
    A("s_mul_i32 s57, s50, 160")
    A("s_add_u32 s58, s57, 1280")
    A("s_lshl_b32 s57, s57, 1")
    A("s_cmp_eq_u32 s51, 0")
    A("s_cselect_b32 s57, s58, s57")
    A("s_add_u32 s61, s61, s57")
    if Opt.rot:
        A(f"s_mov_b32 s96, {64*3840}")
        A("s_movk_i32 s97, 128")
        A("s_mul_i32 s31, s30, s96")
        A("s_add_u32 s61, s61, s31")
    A("s_mul_i32 s63, s48, 5120")
    A("s_add_u32 s63, s63, 16384")
    srd(A, SW, S_W, NB_W)
    dma_w(0)
    stamp(A, 2)
    A("s_mul_i32 s57, s50, 3200")
    A("s_lshl_b32 s57, s57, s51")
    A("s_lshl_b32 s58, s48, 11")
    A("s_add_u32 s57, s57, s58")
    srd(A, SP, S_WPHI, NB_WPHI)
    A(f"s_add_u32 m0, s58, {L_WP}")
    A(f"buffer_load_dwordx4 v{t3}, s[{SP}:{SP+3}], s57 offen lds")
    A(f"buffer_load_dwordx4 v{t3}, s[{SP}:{SP+3}], s57 offen offset:1024 lds")
    srd(A, SWS, S_WS, WS_SIZE)
    Lh = A.newlabel("L_noh")
    A("s_cmp_eq_u32 s51, 0")
    A(f"s_cbranch_scc1 {Lh}")
    A("s_mul_i32 s49, s98, 80")
    A("s_lshl_b32 s50, s99, 2")
    A("s_add_u32 s49, s49, s50")
    A("s_add_u32 s49, s49, s48")
    A("s_add_u32 s49, s49, 48")
    A(f"s_mul_i32 s56, s48, {CV_LDS}")
    A(f"s_add_u32 s56, s56, {L_QCV}")
    conv_load_h(A, t3)
    A.label(Lh)
    assert Opt.LA == 2
    issued = 0
    for s in range(10):
        while issued < min(s + Opt.LA - 1, 9):
            issued += 1
            dma_x(issued)
            dma_w(issued)
        if s == 0:
            Ls = A.newlabel("L_nosetup")
            A("s_cmp_ge_u32 s99, 8")
            A(f"s_cbranch_scc1 {Ls}")
            conv_setup(A)
            f0_lines(A, 49, 49, 12)
            A.label(Ls)
        if s == 9:
            tag_issue(A)
        A(f"s_waitcnt vmcnt({9*(issued-s)})")
        A("s_barrier")
        if s in (0, 3, 6, 9):
            stamp(A, 3 + s // 3)
    A("s_setprio 0")
    A("s_cmp_lt_u32 s99, 8")
    A("s_cbranch_scc1 L_conv")
    role_wo(A)


def role_wo(A):
    SO, SWO = 32, 36
    WR = 64
    A.label("L_wo")
    srd(A, SWO, S_WO, NB_WO)
    if Opt.wopf == "kv":
        Ls = A.newlabel("L_nopf")
        A("s_cmp_lt_u32 s99, 8")
        A(f"s_cbranch_scc1 {Ls}")
        A("s_lshl_b32 s52, s99, 2")
        A("s_add_u32 s52, s52, s48")
        A("s_sub_u32 s52, s52, 32")
        A("s_lshl_b32 s52, s52, 13")
        A(f"s_add_u32 s53, s52, {64*8192}")
        A("v_lshlrev_b32 v2, 7, v1")
        A(f"buffer_load_dword v24, v2, s[{SWO}:{SWO+3}], s52 offen")
        A(f"buffer_load_dword v25, v2, s[{SWO}:{SWO+3}], s53 offen")
        A.label(Ls)
    A("v_lshrrev_b32 v2, 2, v1")
    A("v_and_b32 v3, 3, v1")
    A("v_mul_u32_u24 v4, 1280, v2")
    A("v_lshl_add_u32 v4, v3, 4, v4")
    for i in range(1, 4):
        A(f"v_add_u32 v{4+i}, {i*(16*1280-1024)}, v4")
    A(f"v_add_u32 v8, {4*16*1280}, v4")
    A("s_lshr_b32 s50, s99, 2")
    A("s_sub_u32 s50, s50, 1")
    A("s_max_i32 s50, s50, 0")
    A("s_lshl_b32 s52, s50, 8")
    A("s_lshl_b32 s53, s48, 6")
    A("s_add_u32 s52, s52, s53")
    A("s_mov_b32 s51, s52")
    A("s_mul_i32 s53, s48, 20480")
    A("s_cmp_lt_u32 s99, 8")
    A(f"s_cselect_b32 s54, 0, {L_WOB}")
    A("s_add_u32 s53, s53, s54")

    def cbuf(c):
        return 5120 + ((c + 1) % 3) * 5120

    def chunk(c):
        b = cbuf(c)
        A(f"s_add_u32 m0, s53, {b}")
        for i in range(4):
            A(f"buffer_load_dwordx4 v{4+i}, s[{SWO}:{SWO+3}], s51 offen offset:{1024*i} lds")
        A(f"s_add_u32 m0, s53, {b+4096}")
        A(f"buffer_load_dwordx4 v8, s[{SWO}:{SWO+3}], s51 offen lds")
        A(f"s_add_u32 s51, s51, {80*1280}")

    Lj = A.newlabel("L_woj")
    chunk(0)
    A("s_cmp_lt_u32 s99, 8")
    A(f"s_cbranch_scc1 {Lj}")
    A("s_barrier")
    A.label(Lj)
    chunk(1)
    chunk(2)
    A("v_bfe_u32 v10, v1, 2, 2")
    A("v_lshrrev_b32 v11, 5, v1")
    A("v_and_b32 v12, 1, v1")
    A("v_lshlrev_b32 v12, 5, v12")
    A("v_bfe_u32 v13, v1, 4, 1")
    A("v_lshl_add_u32 v12, v13, 4, v12")
    A("v_bfe_u32 v13, v1, 1, 1")
    A("v_lshl_add_u32 v12, v13, 3, v12")
    A("v_lshl_add_u32 v12, v10, 6, v12")
    A("v_add_u32 v12, s53, v12")
    A("v_lshl_add_u32 v13, v11, 8, v12")
    A("v_mul_u32_u24 v14, 2560, v11")
    A("v_add_u32 v14, v14, v12")
    A("v_and_b32 v9, 31, v1")
    A("v_lshrrev_b32 v15, 4, v1")
    A("v_lshlrev_b32 v15, 7, v15")
    A("v_lshlrev_b32 v18, 4, v1")
    o_index(A)
    tag_check(A, 20)

    def take(c):
        b = cbuf(c)
        for hh in range(4):
            for half in range(2):
                A(f"ds_read_b64_tr_b16 {vr(WR+4*(4*c+hh)+2*half,2)}, v13 offset:{b+(20*hh+8*half)*64}")
        for half in range(2):
            A(f"ds_read_b64_tr_b16 {vr(WR+128+4*c+2*half,2)}, v14 offset:{b+(20*half+16)*64}")

    Lq2 = A.newlabel("L_woq")
    for c in range(6):
        A("s_waitcnt vmcnt(10)")
        take(c)
        A("s_waitcnt lgkmcnt(0)")
        if c + 3 < 8:
            chunk(c + 3)
    stamp(A, 14)
    A("s_cmp_lt_u32 s99, 8")
    A(f"s_cbranch_scc1 {Lq2}")
    A("s_lshr_b32 s54, s62, 3")
    A("s_lshl_b32 s54, s54, 4")
    A("s_add_u32 s54, s54, s63")
    A("s_lshl_b32 s54, s54, 9")
    A(f"s_add_u32 s54, s54, {F2:#x}")
    A("s_lshl_b32 s55, s62, 4")
    A("s_add_u32 s55, s55, s63")
    A("s_mul_i32 s55, s55, 5120")
    poll(A, 16, 15, "s54", sleep=4)
    A("s_mov_b32 m0, s53")
    A("s_add_u32 s54, s55, 4096")
    for i in range(4):
        A(f"buffer_load_dwordx4 v18, s[{SWS}:{SWS+3}], s55 offen offset:{1024*i}{SC} lds")
    A("s_add_u32 m0, s53, 4096")
    A(f"buffer_load_dwordx4 v18, s[{SWS}:{SWS+3}], s54 offen{SC} lds")
    A("s_lshl_b32 s54, s48, 2")
    A(f"s_add_u32 s54, s54, {L_SYNC+16}")
    A("s_waitcnt vmcnt(0)")
    lds_arrive(A, 16, "s54")
    stamp(A, 7)
    A("s_lshl_b32 s54, s62, 2")
    A("s_add_u32 s54, s54, s48")
    A("s_mul_i32 s55, s54, 10240")
    A(f"s_add_u32 s55, s55, {WS_PART:#x}")
    A("s_lshl_b32 s54, s54, 9")
    A(f"s_add_u32 s54, s54, {F1:#x}")
    A("v_min_u32 v19, 20, v9")
    A("v_and_b32 v20, 32, v1")
    A("v_add_u32 v19, v19, v20")
    A("v_lshlrev_b32 v20, 3, v19")
    A("v_lshlrev_b32 v19, 4, v19")
    A("v_add_u32 v21, s53, v18")
    A("v_add_u32 v21, 5120, v21")
    A("s_mov_b32 s59, 0xffff0000")
    lds_wait(A, 16, L_SYNC + 4, 4, sleep=2)
    ppoll(A, 244, 15, "s54", sleep=Opt.psleep)
    stamp(A, 12)
    PR = [24, 34, 44, 54]
    SM, TP = 224, 244
    for p in range(4):
        A(f"buffer_load_dwordx4 {vr(PR[p],4)}, v19, s[{SWS}:{SWS+3}], s55 offen{SC}")
        A(f"buffer_load_dwordx4 {vr(PR[p]+4,4)}, v19, s[{SWS}:{SWS+3}], s55 offen offset:1024{SC}")
        A(f"buffer_load_dwordx2 {vr(PR[p]+8,2)}, v20, s[{SWS}:{SWS+3}], s55 offen offset:2048{SC}")
        if p < 3:
            A("s_add_u32 s55, s55, 2560")
    A("s_setprio 3")
    for p in range(4):
        A(f"s_waitcnt vmcnt({9-3*p})")
        for i in range(10):
            d = SM + 2 * i if p == 0 else TP + 2 * (i % 5)
            A(f"v_lshlrev_b32 v{d}, 16, v{PR[p]+i}")
            A(f"v_and_b32 v{d+1}, s59, v{PR[p]+i}")
            if p:
                A(f"v_pk_add_f32 {vr(SM+2*i,2)}, {vr(SM+2*i,2)}, {vr(d,2)}")
    for q in range(5):
        A(f"ds_write_b128 v21, {vr(SM+4*q,4)} offset:{1024*q}")
    lds_arrive(A, 16, L_SYNC + 8)
    A("s_setprio 0")
    stamp(A, 13)
    A.label(Lq2)
    A("s_waitcnt vmcnt(0)")
    take(6)
    take(7)
    srd(A, SO, S_OUT, NB_OUT)
    A("s_and_b32 s54, s99, 3")
    A("s_lshl_b32 s55, s98, 2")
    A("s_add_u32 s54, s54, s55")
    A("s_lshr_b32 s55, s54, 1")
    A("s_lshl_b32 s55, s55, 12")
    A(f"s_add_u32 s55, s55, {F3:#x}")
    A("s_lshl_b32 s57, s48, 10")
    A("s_add_u32 s55, s55, s57")
    A("v_lshrrev_b32 v15, 3, v1")
    A("v_lshlrev_b32 v15, 7, v15")
    A("s_mul_i32 s57, s54, 81920")
    A(f"s_add_u32 s57, s57, {WS_O:#x}")
    A("s_lshr_b32 s58, s48, 1")
    A("s_mul_i32 s58, s58, 40960")
    A("s_and_b32 s59, s48, 1")
    A("s_lshl_b32 s59, s59, 12")
    A("s_add_u32 s58, s58, s59")
    A("s_add_u32 s57, s57, s58")
    A(f"s_add_u32 s58, s58, {L_OT}")
    A("v_mov_b32 v5, v18")
    A(f"v_add_u32 v6, {L_OT}, v5")
    A(f"v_add_u32 v7, {L_OT+40960}, v5")
    A("v_lshlrev_b32 v10, 3, v9")
    A("v_lshl_add_u32 v10, v11, 9, v10")
    A(f"v_add_u32 v10, {L_OT+32768}, v10")
    A("s_mul_i32 s56, s48, 5120")
    A("s_waitcnt lgkmcnt(0)")
    A("v_mul_u32_u24 v12, 80, v9")
    A("v_lshl_add_u32 v12, v11, 5, v12")
    A("v_add_u32 v12, s56, v12")
    A("v_mul_u32_u24 v13, 80, v2")
    A("v_lshl_add_u32 v13, v3, 4, v13")
    A("v_add_u32 v13, s56, v13")
    A("v_mul_u32_u24 v14, 2560, v2")
    A("v_lshl_add_u32 v14, v3, 4, v14")
    A(f"s_mul_i32 s59, s54, {64*2560}")
    A("s_add_u32 s59, s59, s52")
    lds_wait(A, 16, L_SYNC + 12, 4, sleep=2)
    stamp(A, 8)
    ppoll(A, 48, 15, "s55", sleep=Opt.psleep)
    A("s_barrier")
    stamp(A, 9)
    for k in range(5):
        A(f"s_add_u32 m0, s58, {8192*k}")
        for i in range(4):
            A(f"buffer_load_dwordx4 v5, s[{SWS}:{SWS+3}], s57 offen offset:{1024*i}{SC} lds")
        if k < 4:
            A("s_add_u32 s57, s57, 8192")
    if Ctx.stamps:
        A("s_waitcnt lgkmcnt(0)")
    ACC = (16, 32)
    OFB = 224
    T = Lgkm(A)

    def rdx(f):
        if f % 8 == 0:
            A(f"s_waitcnt vmcnt({16 - 4*(f//8)})")
            A("s_barrier")
        for t in range(2):
            d = OFB + 4 * ((2 * f + t) % 8)
            if f < 32:
                T.issue(f"ds_read_b128 {vr(d,4)}, v{6+t} offset:{1024*f}", (f, t))
            else:
                a = f - 32
                T.issue(f"ds_read_b64 {vr(d,2)}, v10 offset:{40960*t + 1024*a}")
                T.issue(f"ds_read_b64 {vr(d+2,2)}, v10 offset:{40960*t + 1024*a + 256}", (f, t))

    for f in range(3):
        rdx(f)
    for f in range(40):
        for t in range(2):
            T.wait((f, t))
            c = vr(ACC[t], 16) if f else "0"
            A(f"v_mfma_f32_32x32x16_bf16 {vr(ACC[t],16)}, {vr(WR+4*f,4)}, {vr(OFB+4*((2*f+t)%8),4)}, {c}")
            if t == 0 and f + 3 < 40:
                rdx(f + 3)
    stamp(A, 10)
    for t in range(2):
        for i in range(8):
            A(f"v_cvt_pk_bf16_f32 v{48+8*t+i}, v{ACC[t]+2*i}, v{ACC[t]+2*i+1}")
        for i in range(2):
            A(f"ds_write_b128 v12, {vr(48+8*t+4*i,4)} offset:{2560*t+16*i}")
    A("s_waitcnt lgkmcnt(0)")
    for i in range(4):
        A(f"ds_read_b128 {vr(64+4*i,4)}, v13 offset:{1280*i}")
    for i in range(4):
        A(f"s_waitcnt lgkmcnt({3-i})")
        A(f"buffer_store_dwordx4 {vr(64+4*i,4)}, v14, s[{SO}:{SO+3}], s59 offen{Opt.osc}")
        if i < 3:
            A(f"s_add_u32 s59, s59, {16*2560}")
    stamp(A, 11)
    end_wave(A)


def role_compute(A):
    XA, WA, AD = 144, 152, 154
    ACC = 16
    WF = (96, 116)
    XF = (136, 140)
    t0, t1, t2, t3 = 11, 12, 13, 14
    for i in range(80):
        A(f"v_mov_b32 v{ACC+i}, 0")
    A(f"v_and_b32 v{t0}, 255, v0")
    A(f"v_lshlrev_b32 v{t0}, 4, v{t0}")
    A(f"v_add_u32 v{t0}, {L_Z}, v{t0}")
    A(f"ds_write_b128 v{t0}, {vr(ACC,4)}")
    A(f"ds_write_b128 v{t0}, {vr(ACC,4)} offset:64")
    A("s_lshl_b32 s54, s48, 12")
    A(f"v_and_b32 v{t0}, 31, v1")
    A(f"v_lshrrev_b32 v{t1}, 5, v1")
    A(f"v_bfe_u32 v{t2}, v1, 1, 3")
    A(f"v_xor_b32 v{t2}, v{t2}, v{t1}")
    A(f"v_lshlrev_b32 v{t2}, 4, v{t2}")
    A(f"v_lshl_add_u32 v{t2}, v{t0}, 7, v{t2}")
    A(f"v_add_u32 v{XA}, s54, v{t2}")
    for t in range(1, 4):
        A(f"v_xor_b32 v{XA+t}, {32*t}, v{XA}")
    for t in range(4):
        A(f"v_add_u32 v{XA+4+t}, {2*SLOT}, v{XA+t}")
    R8, JJ, HH = 158, 159, 160
    A(f"v_bfe_u32 v{t0}, v1, 2, 2")
    A(f"v_lshl_add_u32 v{R8}, v{t1}, 3, v{t0}")
    A(f"v_bfe_u32 v{t2}, v1, 4, 1")
    A(f"v_bfe_u32 v{t3}, v1, 1, 1")
    A(f"v_lshl_add_u32 v{JJ}, v{t2}, 1, v{t3}")
    A(f"v_and_b32 v{HH}, 1, v1")
    A(f"v_mul_u32_u24 v{t2}, 320, v{R8}")
    A(f"v_mul_u32_u24 v{t3}, 160, v{HH}")
    A(f"v_lshl_add_u32 v{t3}, v{JJ}, 3, v{t3}")
    A(f"v_add_u32 v{WA}, v{t2}, v{t3}")
    A(f"v_add_u32 v{WA}, 16384, v{WA}")
    A(f"v_add_u32 v{WA+1}, {2*SLOT}, v{WA}")
    A("s_movk_i32 s57, 1600")
    A("s_lshl_b32 s57, s57, s51")
    A(f"v_mul_u32_u24 v{t2}, s57, v{HH}")
    A(f"v_mul_u32_u24 v{t3}, 40, v{t0}")
    A(f"v_add_u32 v{t2}, v{t2}, v{t3}")
    A(f"v_lshl_add_u32 v{t2}, v{JJ}, 3, v{t2}")
    A(f"v_add_u32 v{t2}, {L_WP}, v{t2}")
    A(f"v_mov_b32 v{t3}, {L_Z}")
    A(f"v_cmp_eq_u32 vcc, v{HH}, v{t1}")
    A(f"v_cndmask_b32 v{AD}, v{t3}, v{t2}, vcc")
    A(f"v_add_u32 v{t0}, 24, v{t2}")
    A(f"v_cndmask_b32 v{AD+3}, v{t3}, v{t0}, vcc")
    A(f"v_cmp_eq_u32 s[58:59], 0, v{JJ}")
    A("s_and_b64 s[62:63], vcc, s[58:59]")
    A("s_andn2_b64 s[58:59], vcc, s[58:59]")
    A(f"v_add_u32 v{t0}, 32, v{t2}")
    A(f"v_cndmask_b32 v{AD+1}, v{t3}, v{t0}, s[62:63]")
    A(f"v_subrev_u32 v{t0}, 8, v{t2}")
    A(f"v_cndmask_b32 v{AD+2}, v{t3}, v{t0}, s[58:59]")
    A(f"v_and_b32 v{t0}, 31, v1")
    A("s_lshl_b32 s57, s48, 5")
    A(f"v_add_u32 v{t0}, s57, v{t0}")
    A(f"v_mul_u32_u24 v8, 176, v{t0}")
    A(f"v_add_u32 v8, {L_V}, v8")
    A(f"v_mul_u32_u24 v{t3}, 80, v{t1}")
    A(f"v_add_u32 v2, v8, v{t3}")
    A(f"v_mul_u32_u24 v{t2}, 336, v{t0}")
    A(f"v_lshl_add_u32 v3, v{t3}, 1, v{t2}")
    A(f"v_mul_u32_u24 v{t0}, 336, v{R8}")
    A(f"v_mul_u32_u24 v{t1}, 5, v{HH}")
    A(f"v_add_u32 v{t1}, v{t1}, v{JJ}")
    A(f"v_lshl_add_u32 v{t0}, v{t1}, 3, v{t0}")
    A("s_mul_i32 s57, s48, 80")
    A(f"v_add_u32 v6, s57, v{t0}")
    A(f"v_lshl_add_u32 v{t0}, v{JJ}, 1, v{HH}")
    A("s_mul_i32 s57, s48, 5")
    A(f"v_add_u32 v{t1}, s57, v{t0}")
    A(f"v_cmp_gt_u32 vcc, 5, v{t0}")
    A(f"v_cndmask_b32 v{t1}, 20, v{t1}, vcc")
    A(f"v_mul_u32_u24 v{t0}, 176, v{R8}")
    A(f"v_lshl_add_u32 v{t0}, v{t1}, 3, v{t0}")
    A(f"v_add_u32 v7, {L_V}, v{t0}")
    A("v_mov_b32 v4, 0x3f803f80")
    A("v_mov_b32 v5, 0x3f803f80")
    WPF = 164
    frags = [(0, 0), (0, 1), (0, 2), (1, 0), (1, 1), (1, 2), (1, 3), (1, 4), (2, 2), (2, 3), (2, 4)]
    for r in (WPF + 4 * 2 + 2, WPF + 4 * 2 + 3, WPF + 4 * 8, WPF + 4 * 8 + 1):
        A(f"v_mov_b32 v{r}, 0")
    A(f"s_mov_b32 s60, {LOG2E:#x}")
    A(f"s_mov_b32 s61, {LOG2E:#x}")
    A("s_waitcnt lgkmcnt(0)")
    srd(A, SWS, S_WS, WS_SIZE)
    A("s_setprio 2")

    def rd_x(s, t, b):
        sl = s % 3
        return f"ds_read_b128 {vr(XF[b],4)}, v{XA + 4*(sl>>1) + t} offset:{(sl&1)*SLOT}"

    def rd_w(s, t, T, half, b):
        sl = s % 3
        return f"ds_read_b64_tr_b16 {vr(WF[b]+4*T+2*half,2)}, v{WA+(sl>>1)} offset:{(sl&1)*SLOT + (16*t+4*half)*320 + 32*T}"

    def wphi_reads(pas):
        L = []
        for fi, (Tp, u) in enumerate(frags):
            for half in range(2):
                dq = 2 * u + half
                r = WPF + 4 * fi + 2 * half
                if (Tp == 0 and dq == 5) or (Tp == 2 and dq == 4):
                    continue
                ad = {(0, 0): AD, (1, 0): AD + 1, (1, 1): AD + 2, (2, 1): AD + 3}[(Tp, dq // 5)]
                L.append(f"ds_read_b64_tr_b16 {vr(r,2)}, v{ad} offset:{dq*160 + pas*1600}")
        return L

    A("s_barrier")
    stampw(A, 3)
    A(rd_x(0, 0, 0))
    for T in range(5):
        A(rd_w(0, 0, T, 0, 0)); A(rd_w(0, 0, T, 1, 0))
    for s in range(10):
        for t in range(4):
            b = t & 1
            last = (s == 9 and t == 3)
            ns, nt = (s, t + 1) if t < 3 else (s + 1, 0)
            prev_remaining = [8, 6, 4, 2, 0]
            issued = 0
            wp = wphi_reads(0) if last else []
            for T in range(5):
                if not (t == 3 and T >= 2):
                    A(f"s_waitcnt lgkmcnt({prev_remaining[T] + issued})")
                A(f"v_mfma_f32_32x32x16_bf16 {vr(ACC+16*T,16)}, {vr(WF[b]+4*T,4)}, {vr(XF[b],4)}, {vr(ACC+16*T,16)}")
                if t < 3:
                    if T == 0:
                        A(rd_x(ns, nt, 1 - b)); issued += 1
                    A(rd_w(ns, nt, T, 0, 1 - b)); A(rd_w(ns, nt, T, 1, 1 - b)); issued += 2
                elif T == 1:
                    A("s_waitcnt lgkmcnt(0)")
                    A("s_barrier")
                    if not last:
                        A(rd_x(ns, nt, 1 - b))
                        for TT in (0, 1):
                            A(rd_w(ns, nt, TT, 0, 1 - b)); A(rd_w(ns, nt, TT, 1, 1 - b))
                    else:
                        for x in wp[:5]:
                            A(x)
                elif T >= 2:
                    if not last:
                        A(rd_w(ns, nt, T, 0, 1 - b)); A(rd_w(ns, nt, T, 1, 1 - b))
                    else:
                        for x in wp[5 * (T - 1):5 * T]:
                            A(x)
    stamp(A, 4)
    tag_issue(A)
    P = 96
    E, F, TT_ = 208, 228, 248

    def phi_mfma(src, acc):
        seen = set()
        for fi, (Tp, u) in enumerate(frags):
            c = vr(acc + 16 * Tp, 16) if Tp in seen else "0"
            seen.add(Tp)
            A(f"v_mfma_f32_32x32x16_bf16 {vr(acc+16*Tp,16)}, {vr(WPF+4*fi,4)}, {vr(src+4*u,4)}, {c}")

    for i in range(40):
        A(f"v_cvt_pk_bf16_f32 v{P+i}, v{ACC+2*i}, v{ACC+2*i+1}")
    Lq = A.newlabel("L_q")
    A("s_cmp_eq_u32 s51, 0")
    A(f"s_cbranch_scc0 {Lq}")
    mq = A.mark()
    for i in range(20):
        A(f"v_permlane32_swap_b32 v{P+i}, v{P+20+i}")
    tag_check(A, 10)
    phi_mfma(P, ACC)
    for i in range(5):
        A(f"ds_write_b128 v2, {vr(P+20+4*i,4)} offset:{16*i}")
    A("ds_write_b64 v8, v[4:5] offset:160")
    for grp, ph in ((0, 64), (1, 96)):
        softmax20(A, ACC + 20 * grp, E, F, TT_, ph)
        for i in range(5):
            A(f"ds_write_b128 v3, {vr(ph+4*i,4)} offset:{80*grp+16*i}")
    stamp(A, 5)
    lds_arrive(A, 10, L_SYNC)
    A("s_lshl_b32 s57, s50, 2")
    A("s_add_u32 s57, s57, s48")
    A("s_lshl_b32 s57, s57, 4")
    A("s_add_u32 s57, s57, s49")
    A("s_lshl_b32 s59, s57, 7")
    A(f"s_add_u32 s59, s59, {F1:#x}")
    A("s_mul_i32 s57, s57, 2560")
    A(f"s_add_u32 s57, s57, {WS_PART:#x}")
    A("v_lshlrev_b32 v2, 4, v1")
    A("v_lshlrev_b32 v3, 3, v1")
    lds_wait(A, 10, None, 4)
    FA = 64
    T = Lgkm(A)
    for u in range(10):
        if u < 8:
            for half in range(2):
                o = (16 * u + 4 * half)
                T.issue(f"ds_read_b64_tr_b16 {vr(FA+12*u+2*half,2)}, v6 offset:{o*336}")
                T.issue(f"ds_read_b64_tr_b16 {vr(FA+12*u+4+2*half,2)}, v6 offset:{o*336+32}")
                T.issue(f"ds_read_b64_tr_b16 {vr(FA+12*u+8+2*half,2)}, v7 offset:{o*176}", u)
        if u >= 2:
            uu = u - 2
            T.wait(uu)
            for TT in range(2):
                c = vr(ACC + 16 * TT, 16) if uu else "0"
                A(f"v_mfma_f32_32x32x16_bf16 {vr(ACC+16*TT,16)}, {vr(FA+12*uu+4*TT,4)}, {vr(FA+12*uu+8,4)}, {c}")
    o_index(A)
    for i in range(10):
        A(f"v_cvt_pk_bf16_f32 v{48+i}, v{ACC+2*i}, v{ACC+2*i+1}")
    A(f"buffer_store_dwordx2 v[56:57], v3, s[{SWS}:{SWS+3}], s57 offen offset:2048{SC}")
    A("s_mov_b32 exec_lo, 0x00ffffff")
    A("s_mov_b32 exec_hi, 0x00ffffff")
    A(f"buffer_store_dwordx4 v[48:51], v2, s[{SWS}:{SWS+3}], s57 offen{SC}")
    A(f"buffer_store_dwordx4 v[52:55], v2, s[{SWS}:{SWS+3}], s57 offen offset:1024{SC}")
    A("s_mov_b64 exec, -1")
    stamp(A, 6)
    role_o(A)
    end_wave(A)
    A.label(Lq)
    hq = A.mark()
    A("s_nop 1")
    tag_check(A, 10)
    phi_mfma(P, ACC)
    A(f"v_and_b32 v{t0}, 31, v1")
    A(f"v_lshrrev_b32 v{t1}, 5, v1")
    A(f"s_mov_b32 s57, {4*64*1280}")
    A(f"v_mul_lo_u32 v{t1}, s57, v{t1}")
    A(f"v_lshl_add_u32 v2, v{t0}, 4, v{t1}")
    A(f"v_lshl_add_u32 v3, v{t0}, 3, v{t1}")
    A("s_lshl_b32 s58, s49, 2")
    A("s_add_u32 s58, s58, s48")
    for x in wphi_reads(1):
        A(x)
    A("s_lshl_b32 s59, s50, 6")
    A("s_add_u32 s59, s59, s58")
    A("s_lshl_b32 s59, s59, 7")
    A(f"s_add_u32 s59, s59, {F2:#x}")
    A("s_lshl_b32 s57, s50, 9")
    A("s_add_u32 s57, s57, s58")
    A("s_mul_i32 s57, s57, 1280")
    A("s_waitcnt lgkmcnt(0)")
    phi_mfma(P + 20, 208)
    for hs in range(4):
        x = (ACC, ACC + 20, 208, 228)[hs]
        o = 64 + 10 * hs if hs < 3 else 96
        for i in range(10):
            A(f"v_cvt_pk_bf16_f32 v{o+i}, v{x+2*i}, v{x+2*i+1}")
        A(f"buffer_store_dwordx4 {vr(o,4)}, v2, s[{SWS}:{SWS+3}], s57 offen{SC}")
        A(f"buffer_store_dwordx4 {vr(o+4,4)}, v2, s[{SWS}:{SWS+3}], s57 offen offset:512{SC}")
        A(f"buffer_store_dwordx2 {vr(o+8,2)}, v3, s[{SWS}:{SWS+3}], s57 offen offset:1024{SC}")
        if hs < 3:
            A(f"s_add_u32 s57, s57, {64*1280}")
    stamp(A, 6)
    set_flag(A, 10, "s59")
    stamp(A, 7)
    A.check_seam(mq, hq)
    A("s_setprio 0")
    A("s_cmp_lt_u32 s99, 4")
    A("s_cbranch_scc1 L_wo")
    end_wave(A)


def role_o(A):
    NT = 4
    RAW, X, PQ = 64, 104, 128
    A("s_mul_i32 s53, s48, 20480")
    A(f"s_add_u32 s53, s53, {L_WOB}")
    A("v_and_b32 v4, 31, v1")
    A("v_lshl_add_u32 v5, v4, 4, s53")
    A("v_lshl_add_u32 v6, v4, 3, s53")
    A("v_and_b32 v7, 32, v1")
    A("v_lshlrev_b32 v7, 26, v7")
    A("s_lshl_b32 s54, s48, 2")
    A(f"s_add_u32 s54, s54, {L_SYNC+16}")
    A("s_mov_b32 s58, 0xffff0000")
    for t in range(NT):
        A(f"v_mov_b32 v{PQ+12*t+10}, 0")
        A(f"v_mov_b32 v{PQ+12*t+11}, 0")
    set_flag(A, 10, "s59")
    lds_arrive(A, 14, L_SYNC + 4)
    stamp(A, 7)
    lds_wait(A, 14, "s54", 1)
    stampw(A, 8)
    T = Lgkm(A)
    for t in range(NT):
        T.issue(f"ds_read_b128 {vr(RAW+10*t,4)}, v5 offset:{1280*t}")
        T.issue(f"ds_read_b128 {vr(RAW+10*t+4,4)}, v5 offset:{1280*t+512}")
        T.issue(f"ds_read_b64 {vr(RAW+10*t+8,2)}, v6 offset:{1280*t+1024}", t)
    A("s_lshl_b32 s57, s63, 2")
    A("s_mul_i32 s54, s57, 40960")
    A(f"s_add_u32 s54, s54, {WS_O:#x}")
    A("s_lshl_b32 s59, s62, 8")
    A("s_add_u32 s59, s59, s54")
    A("s_add_u32 s59, s59, 32768")
    A("s_lshl_b32 s57, s62, 10")
    A("s_add_u32 s54, s54, s57")
    A("s_lshl_b32 s50, s63, 5")
    A("s_add_u32 s50, s50, s62")
    A("s_lshl_b32 s50, s50, 7")
    A(f"s_add_u32 s50, s50, {F3:#x}")
    mx, se = 124, 126
    for t in range(NT):
        T.wait(t)
        for i in range(10):
            A(f"v_lshl_add_u32 v{X+2*i}, v{RAW+10*t+i}, 16, v7")
            A(f"v_bitop3_b32 v{X+2*i+1}, v{RAW+10*t+i}, s58, v7 bitop3:0x6a")
        A(f"v_max3_f32 v{mx}, v{X}, v{X+1}, v{X+2}")
        A(f"v_max3_f32 v{mx+1}, v{X+3}, v{X+4}, v{X+5}")
        for i in range(6, 18, 4):
            A(f"v_max3_f32 v{mx}, v{mx}, v{X+i}, v{X+i+1}")
            A(f"v_max3_f32 v{mx+1}, v{mx+1}, v{X+i+2}, v{X+i+3}")
        A(f"v_max3_f32 v{mx}, v{mx}, v{X+18}, v{X+19}")
        A(f"v_max_f32 v{mx}, v{mx}, v{mx+1}")
        A(f"v_mul_f32 v{mx}, s60, v{mx}")
        for i in range(0, 20, 2):
            A(f"v_pk_fma_f32 {vr(X+i,2)}, {vr(X+i,2)}, s[60:61], {vr(mx,2)} op_sel_hi:[1,1,0] neg_lo:[0,0,1] neg_hi:[0,0,1]")
        for i in range(20):
            A(f"v_exp_f32 v{X+i}, v{X+i}")
        A(f"v_pk_add_f32 {vr(se,2)}, {vr(X,2)}, {vr(X+2,2)}")
        A(f"v_pk_add_f32 {vr(mx,2)}, {vr(X+4,2)}, {vr(X+6,2)}")
        for i in range(8, 20, 4):
            A(f"v_pk_add_f32 {vr(se,2)}, {vr(se,2)}, {vr(X+i,2)}")
            A(f"v_pk_add_f32 {vr(mx,2)}, {vr(mx,2)}, {vr(X+i+2,2)}")
        A(f"v_pk_add_f32 {vr(se,2)}, {vr(se,2)}, {vr(mx,2)}")
        A(f"v_add_f32 v{se}, v{se}, v{se+1}")
        A(f"v_rcp_f32 v{se}, v{se}")
        for i in range(0, 20, 2):
            A(f"v_pk_mul_f32 {vr(X+i,2)}, {vr(X+i,2)}, {vr(se,2)} op_sel_hi:[1,0]")
        for i in range(10):
            A(f"v_cvt_pk_bf16_f32 v{PQ+12*t+i}, v{X+2*i}, v{X+2*i+1}")
    stamp(A, 9)
    A(f"v_add_u32 v8, {L_WOB+5120}, v2")
    A(f"v_add_u32 v9, {L_WOB+5120+40960}, v2")
    KF = 16
    A(f"v_mov_b32 v{KF+10}, 0")
    A(f"v_mov_b32 v{KF+11}, 0")
    lds_wait(A, 14, L_SYNC + 8, 4)
    stampw(A, 10)
    PR = 32
    T = Lgkm(A)
    for q in range(5):
        for p in range(4):
            T.issue(f"ds_read_b128 {vr(PR+16*q+4*p,4)}, v{8+(p>>1)} offset:{20480*(p&1)+1024*q}", q)
    for q in range(5):
        T.wait(q)
        b = PR + 16 * q
        for h in (0, 2):
            A(f"v_pk_add_f32 {vr(b+h,2)}, {vr(b+h,2)}, {vr(b+4+h,2)}")
            A(f"v_pk_add_f32 {vr(b+8+h,2)}, {vr(b+8+h,2)}, {vr(b+12+h,2)}")
        for h in (0, 2):
            A(f"v_pk_add_f32 {vr(b+h,2)}, {vr(b+h,2)}, {vr(b+8+h,2)}")
        for h in (0, 2):
            A(f"v_cvt_pk_bf16_f32 v{KF+2*q+h//2}, v{b+h}, v{b+h+1}")
    D = [176, 192, 208, 224]
    OP = [32, 40, 48, 56]

    def mf(t):
        for u in range(3):
            c = vr(D[t], 16) if u else "0"
            A(f"v_mfma_f32_32x32x16_bf16 {vr(D[t],16)}, {vr(KF+4*u,4)}, {vr(PQ+12*t+4*u,4)}, {c}")

    mf(0)
    mf(1)
    for t in range(NT):
        d, o = D[t], OP[t]
        A(f"v_add_f32 v10, 0x358637bd, v{d+12}")
        A("v_rcp_f32 v10, v10")
        if t + 2 < NT:
            mf(t + 2)
        for i in range(12):
            A(f"v_mul_f32 v{d+i}, v10, v{d+i}")
        for i in range(6):
            A(f"v_cvt_pk_bf16_f32 v{o+i}, v{d+2*i}, v{d+2*i+1}")
        A(f"buffer_store_dwordx4 {vr(o,4)}, v2, s[{SWS}:{SWS+3}], s54 offen{SC}")
        A("s_mov_b32 exec_hi, 0")
        A(f"buffer_store_dwordx2 {vr(o+4,2)}, v3, s[{SWS}:{SWS+3}], s59 offen{SC}")
        A("s_mov_b64 exec, -1")
        if t < NT - 1:
            A("s_add_u32 s54, s54, 40960")
            A("s_add_u32 s59, s59, 40960")
    stamp(A, 11)
    set_flag(A, 12, "s50")
    lds_arrive(A, 16, L_SYNC + 12)
    stamp(A, 12)


def b_channel(A):
    A("s_mul_i32 s49, s98, 80")
    A("s_sub_u32 s50, s99, 24")
    A("s_mul_i32 s50, s50, 6")
    A("s_add_u32 s49, s49, s50")
    A("s_add_u32 s49, s49, s48")
    A(f"s_mul_i32 s56, s48, {CV_LDS}")


def conv_load_h(A, v):
    SH = 40
    srd(A, SH, S_SSK, NB_SSK)
    A(f"v_lshlrev_b32 v{v}, 4, v1")
    A("s_lshl_b32 s50, s49, 12")
    A("s_add_u32 m0, s56, 64")
    for i in range(4):
        A(f"buffer_load_dwordx4 v{v}, s[{SH}:{SH+3}], s50 offen offset:{1024*i}{Opt.nt_s} lds")


def f0_lines(A, c0, c1, v):
    A(f"s_lshr_b32 s52, s{c0}, 6")
    A("s_mul_i32 s52, s52, 419431")
    A("s_lshr_b32 s52, s52, 16")
    A(f"s_lshr_b32 s53, s{c1}, 6")
    A("s_mul_i32 s53, s53, 419431")
    A("s_add_u32 s53, s53, 406324")
    A("s_lshr_b32 s53, s53, 16")
    A(f"v_lshrrev_b32 v{v}, 2, v1")
    A(f"v_add_u32 v{v}, s52, v{v}")
    A(f"v_min_u32 v{v}, s53, v{v}")
    A(f"v_lshlrev_b32 v{v}, 7, v{v}")
    A(f"s_mov_b32 s52, {F0:#x}")


def role_pre(A):
    SK, SV, SS = 32, 36, 40
    t0, t1, t2 = 2, 3, 4
    A("s_lshl_b32 s49, s98, 3")
    A("s_add_u32 s49, s49, s99")
    A("s_sub_u32 s49, s49, 24")
    A("s_mul_i32 s49, s49, 5")
    A("s_add_u32 s49, s49, s48")
    A("s_and_b32 s50, s49, 31")
    A("s_lshr_b32 s51, s49, 5")
    A(f"s_mul_i32 s52, s50, {64*1280}")
    A("s_lshl_b32 s53, s51, 7")
    A("s_add_u32 s52, s52, s53")
    A(f"v_lshrrev_b32 v{t0}, 3, v1")
    A(f"v_and_b32 v{t1}, 7, v1")
    A(f"v_mul_u32_u24 v{t2}, {8*1280}, v{t0}")
    A(f"v_lshl_add_u32 v{t2}, v{t1}, 4, v{t2}")
    A(f"v_add_u32 v5, s52, v{t2}")
    A(f"v_subrev_u32 v6, {3*1280}, v5")
    A(f"v_subrev_u32 v7, {2*1280}, v5")
    A(f"v_subrev_u32 v8, {1280}, v5")
    A(f"v_lshlrev_b32 v9, 6, v{t1}")
    A("s_lshl_b32 s54, s51, 9")
    A(f"s_movk_i32 s55, {4*1280}")
    A("s_waitcnt lgkmcnt(0)")
    srd(A, SK, S_BK, NB_X)
    srd(A, SV, S_BV, NB_X)
    srd(A, SS, S_SH, NB_SH)
    WR, KR, VR = 16, 32, 76
    for i in range(4):
        A(f"buffer_load_dwordx4 {vr(WR+4*i,4)}, v9, s[{SS}:{SS+3}], s54 offen offset:{16*i}")
    for i in range(3):
        A(f"buffer_load_dwordx4 {vr(KR+4*i,4)}, v{6+i}, s[{SK}:{SK+3}], 0 offen{Opt.nt_s}")

    order = []

    def ld(kind, i):
        so = "0" if i < 4 else "s55"
        if kind == "k":
            A(f"buffer_load_dwordx4 {vr(KR+12+4*i,4)}, v5, s[{SK}:{SK+3}], {so} offen offset:{1280*(i&3)}{Opt.nt_s}")
        else:
            A(f"buffer_load_dwordx4 {vr(VR+4*i,4)}, v5, s[{SV}:{SV+3}], {so} offen offset:{1280*(i&3)}{Opt.nt_s}")
        order.append((kind, i))

    for i in (5, 6, 7):
        ld("k", i)
    ld("k", 0); ld("v", 0); ld("k", 1); ld("v", 1)
    todo = [("k", 2), ("v", 2), ("k", 3), ("v", 3), ("k", 4), ("v", 4), ("v", 5), ("v", 6), ("v", 7)]
    stamp(A, 2)
    srd(A, SWS, S_WS, WS_SIZE)
    A("s_mul_i32 s56, s48, 8320")
    A(f"s_add_u32 s56, s56, {B_PRE}")
    A(f"v_mul_u32_u24 v10, 1040, v{t1}")
    A(f"v_lshl_add_u32 v10, v{t0}, 4, v10")
    A("v_add_u32 v10, s56, v10")
    A("v_lshrrev_b32 v11, 4, v1")
    A("v_lshlrev_b32 v11, 8, v11")
    A("v_and_b32 v12, 3, v1")
    A("v_lshl_add_u32 v11, v12, 6, v11")
    A("v_bfe_u32 v12, v1, 2, 2")
    A("v_lshl_add_u32 v11, v12, 3, v11")
    A("v_add_u32 v11, s56, v11")
    A(f"v_lshlrev_b32 v12, 12, v{t0}")
    A(f"v_lshl_add_u32 v12, v{t1}, 4, v12")
    A("s_lshl_b32 s57, s51, 18")
    A("s_lshl_b32 s58, s50, 7")
    A("s_add_u32 s57, s57, s58")
    A(f"s_add_u32 s57, s57, {WS_KVT:#x}")
    A("s_mov_b32 s59, 0xffff0000")
    WF, KF, VF, TA, OUT = 108, 140, 172, 180, 196

    def unpack(dst, src, n):
        for i in range(n):
            A(f"v_lshlrev_b32 v{dst+2*i}, 16, v{src+i}")
            A(f"v_and_b32 v{dst+2*i+1}, s59, v{src+i}")

    A(f"s_waitcnt vmcnt({3+len(order)})")
    ld(*todo.pop(0)); ld(*todo.pop(0))
    for c in range(8):
        A(f"v_lshlrev_b32 v{WF+c}, 16, v{WR+2*c}")
        A(f"v_and_b32 v{WF+8+c}, s59, v{WR+2*c}")
        A(f"v_lshlrev_b32 v{WF+16+c}, 16, v{WR+2*c+1}")
        A(f"v_and_b32 v{WF+24+c}, s59, v{WR+2*c+1}")
    A(f"s_waitcnt vmcnt({len(order)})")
    ld(*todo.pop(0)); ld(*todo.pop(0))
    for i in range(3):
        unpack(KF + 8 * i, KR + 4 * i, 4)
    for i in range(8):
        need = max(order.index(("k", i)), order.index(("v", i)))
        A(f"s_waitcnt vmcnt({len(order)-1-need})")
        for _ in range(2):
            if todo:
                ld(*todo.pop(0))
        if i == 2:
            b_channel(A)
            conv_load_h(A, 13)
            order.extend([None] * 4)
        unpack(KF + 8 * ((i + 3) & 3), KR + 12 + 4 * i, 4)
        unpack(VF, VR + 4 * i, 4)
        acc = TA + 8 * (i & 1)
        for j in (3, 2, 1, 0):
            kk = KF + 8 * ((i + 3 - j) & 3)
            for c in range(0, 8, 2):
                if j == 3:
                    A(f"v_pk_mul_f32 {vr(acc+c,2)}, {vr(kk+c,2)}, {vr(WF+8*j+c,2)}")
                else:
                    A(f"v_pk_fma_f32 {vr(acc+c,2)}, {vr(kk+c,2)}, {vr(WF+8*j+c,2)}, {vr(acc+c,2)}")
        for c in range(0, 8, 2):
            A(f"v_pk_mul_f32 {vr(acc+c,2)}, {vr(acc+c,2)}, {vr(VF+c,2)}")
        if i & 1:
            for c in range(8):
                A(f"v_cvt_pk_bf16_f32 v{OUT+4*c+i//2}, v{TA+c}, v{TA+8+c}")
    stamp(A, 3)
    for c in range(8):
        A(f"ds_write_b128 v10, {vr(OUT+4*c,4)} offset:{128*c}")
    A("s_waitcnt lgkmcnt(0)")
    T = Lgkm(A)
    for i in range(8):
        T.issue(f"ds_read_b64_tr_b16 {vr(16+4*i,2)}, v11 offset:{1040*i}")
        T.issue(f"ds_read_b64_tr_b16 {vr(18+4*i,2)}, v11 offset:{1040*i+32}", i)
    for i in range(8):
        T.wait(i)
        A(f"buffer_store_dwordx4 {vr(16+4*i,4)}, v12, s[{SWS}:{SWS+3}], s57 offen{SC}")
        if i < 7:
            A(f"s_add_u32 s57, s57, {8*4096}")
    A("s_waitcnt vmcnt(0)")
    stamp(A, 4)


def role_helper(A):
    SD = 40
    A("s_setprio 3")
    A("s_waitcnt lgkmcnt(0)")
    srd(A, SWS, S_WS, WS_SIZE)
    srd(A, SD, S_DBG, 256)
    Lz = A.newlabel("L_nz")
    A("s_cmp_eq_u32 s2, 192")
    A(f"s_cbranch_scc0 {Lz}")
    A("s_cmp_eq_u32 s48, 5")
    A(f"s_cbranch_scc0 {Lz}")
    A(f"s_mov_b32 s57, {WS_EPOCH:#x}")
    A("s_mov_b64 exec, 1")
    A(f"buffer_load_dword v4, off, s[{SWS}:{SWS+3}], s57{SC}")
    A("s_waitcnt vmcnt(0)")
    A("v_add_u32 v4, 1, v4")
    A("v_not_b32 v5, v4")
    A(f"buffer_store_dwordx2 v[4:5], off, s[{SD}:{SD+3}], 0{SC}")
    A(f"buffer_store_dword v4, off, s[{SWS}:{SWS+3}], s57{SC}")
    A("s_mov_b64 exec, -1")
    stamp(A, 2)
    A.label(Lz)
    if Opt.codepf:
        Lp = A.newlabel("L_npf")
        A("s_cmp_eq_u32 s48, 6")
        A(f"s_cbranch_scc0 {Lp}")
        A("s_getpc_b64 s[50:51]")
        A.label("L_pc")
        A(f"s_sub_u32 s50, s50, L_pc-{NAME}_kernel")
        A("s_subb_u32 s51, s51, 0")
        A("s_sub_u32 s52, s99, 24")
        A("s_lshl_b32 s52, s52, 13")
        A("v_lshl_add_u32 v2, v1, 7, s52")
        A(f"v_min_u32 v2, L_code_end-{NAME}_kernel-4, v2")
        A("global_load_dword v24, v2, s[50:51]")
        if Opt.womall:
            srd(A, 36, S_WO, NB_WO)
            A("s_sub_u32 s52, s2, 192")
            A("s_lshl_b32 s52, s52, 14")
            A("s_add_u32 s53, s52, 8192")
            A("v_lshlrev_b32 v2, 7, v1")
            A("buffer_load_dword v25, v2, s[36:39], s52 offen")
            A("buffer_load_dword v26, v2, s[36:39], s53 offen")
        A.label(Lp)
    A("s_setprio 0")
    L6 = A.newlabel("L_h6")
    Lx = A.newlabel("L_h67")
    A("s_cmp_eq_u32 s48, 5")
    A(f"s_cbranch_scc0 {L6}")
    b_channel(A)
    conv_load_h(A, 2)
    A("s_branch L_bconv")
    A.label(L6)
    A("s_mul_i32 s54, s98, 80")
    A("s_sub_u32 s50, s99, 24")
    A("s_mul_i32 s55, s50, 6")
    A("s_add_u32 s54, s54, s55")
    A("s_add_u32 s55, s54, 5")
    f0_lines(A, 54, 55, 12)
    A("s_lshl_b32 s58, s98, 3")
    A("s_add_u32 s58, s58, s50")
    A("s_lshl_b32 s58, s58, 7")
    A(f"s_add_u32 s58, s58, {F0:#x}")
    Lt = A.newlabel("L_h7")
    A("s_cmp_eq_u32 s48, 7")
    A(f"s_cbranch_scc0 {Lt}")
    A(f"s_mov_b64 s[{TAG}:{TAG+1}], 0")
    tag_check(A, 8)
    A.label(Lt)
    A("s_barrier")
    A("s_cmp_eq_u32 s48, 7")
    A(f"s_cbranch_scc0 {Lx}")
    set_flag(A, 8, "s58")
    poll(A, 14, 12, "s52", sleep=4)
    A.label(Lx)
    A("s_barrier")
    A("s_branch L_post")


def conv_setup(A):
    A("v_lshlrev_b32 v2, 4, v1")
    A("s_lshl_b32 s52, s49, 1")
    A("s_and_b32 s52, s52, 0xfffffffc")
    A(f"s_load_dword s55, s[{S_SSD}:{S_SSD+1}], s52")
    A(f"s_load_dword s54, s[{S_SSK}:{S_SSK+1}], s50")
    A(f"s_add_u32 s51, s50, {WS_KVT:#x}")
    for i in range(4):
        A(f"v_mov_b32 v{4+i}, 0")
    A("v_add_u32 v3, s56, v2")
    A("s_mov_b64 exec, 0xf")
    A("ds_write_b128 v3, v[4:7]")
    A("s_mov_b32 exec_lo, -1")
    A(f"ds_write_b128 v3, v[4:7] offset:{64+4096}")
    A("s_mov_b64 exec, -1")
    A("v_and_b32 v8, 1, v1")
    A("v_lshlrev_b32 v8, 5, v8")
    A("v_bfe_u32 v9, v1, 4, 1")
    A("v_lshl_add_u32 v8, v9, 4, v8")
    A("v_bfe_u32 v9, v1, 1, 1")
    A("v_lshl_add_u32 v8, v9, 3, v8")
    A("v_lshrrev_b32 v10, 5, v1")
    A("v_lshl_add_u32 v8, v10, 6, v8")
    A("v_bfe_u32 v9, v1, 2, 2")
    A("v_lshlrev_b32 v9, 3, v9")
    A("v_sub_u32 v8, v8, v9")
    A("s_add_u32 s57, s56, 32")
    A("v_add_u32 v8, s57, v8")
    A("v_bfe_u32 v9, v1, 4, 1")
    A("v_lshlrev_b32 v9, 8, v9")
    A("v_and_b32 v11, 3, v1")
    A("v_lshl_add_u32 v9, v11, 6, v9")
    A("v_bfe_u32 v11, v1, 2, 2")
    A("v_lshl_add_u32 v9, v11, 4, v9")
    A("v_lshlrev_b32 v11, 6, v10")
    A("v_sub_u32 v9, v9, v11")
    A(f"s_add_u32 s57, s56, {64+4096+512-384}")
    A("v_add_u32 v9, s57, v9")
    A("v_bfe_u32 v11, v1, 2, 1")
    A("v_bfe_u32 v12, v1, 3, 2")
    A("v_lshl_add_u32 v11, v11, 2, v12")
    A("v_and_b32 v12, 35, v1")
    A("v_lshl_add_u32 v11, v12, 3, v11")
    A("v_and_b32 v12, 1, v11")
    A("v_lshlrev_b32 v12, 4, v12")
    A("v_mov_b32 v13, 0xffff")
    A("v_lshlrev_b32 v13, v12, v13")
    A("v_lshrrev_b32 v11, 1, v11")
    for i in range(4):
        A(f"v_cmp_eq_u32 vcc, {i}, v11")
        A(f"v_cndmask_b32 v{MK+i}, 0, v13, vcc")
    A("v_bfe_u32 v11, v1, 4, 1")
    A("v_and_b32 v12, 3, v1")
    A("v_lshl_add_u32 v11, v11, 2, v12")
    A("v_add_u32 v11, 7, v11")
    A("v_and_b32 v12, 3, v11")
    A("v_bfe_u32 v13, v11, 2, 1")
    A("v_lshl_add_u32 v12, v13, 4, v12")
    A("v_and_b32 v13, 12, v1")
    A("v_add3_u32 v12, v12, v13, 32")
    A("v_subrev_u32 v13, 32, v1")
    A("v_cmp_gt_u32 vcc, 32, v1")
    A("v_cndmask_b32 v14, v13, v12, vcc")
    A("v_lshlrev_b32 v14, 2, v14")
    A("s_mov_b32 s58, 0x1111")
    A("s_mov_b32 s59, 0")


MK = 16


def role_conv(A):
    A("s_barrier")
    conv_setup(A)
    A.label("L_conv")
    NR = 20
    RA, RB, RS = 64, 144, 224
    ACCS = (32, 48)
    CAR, PUL, TMP = 20, (21, 22), 23
    OUT = (24, 28)

    def rdA(m, reg, tag):
        return [(f"ds_read_b64_tr_b16 {vr(reg,2)}, v8 offset:{128*m+32}", None),
                (f"ds_read_b64_tr_b16 {vr(reg+2,2)}, v8 offset:{128*m}", tag)]

    def rdB(b, reg, tag):
        return [(f"ds_read_b128 {vr(reg,4)}, v9 offset:{128*b}", tag)]

    def xload():
        A(f"s_add_u32 m0, s56, {64+4096+512}")
        for i in range(4):
            A(f"buffer_load_dwordx4 v2, s[{SWS}:{SWS+3}], s51 offen offset:{1024*i}{SC} lds")

    Lb, Lg = A.newlabel("L_cb"), A.newlabel("L_cg")
    A("s_waitcnt vmcnt(0)")
    A("s_cmp_ge_u32 s99, 24")
    A(f"s_cbranch_scc1 {Lb}")
    tag_check(A, 22)
    A(f"buffer_load_dwordx2 v[22:23], v12, s[{SWS}:{SWS+3}], s52 offen{SC}")
    A("s_barrier")
    A("s_waitcnt vmcnt(0)")
    A(f"v_cmp_eq_u64 vcc, s[{TAG}:{TAG+1}], v[22:23]")
    A("s_cmp_eq_u64 vcc, -1")
    Lx = A.newlabel("L_cx")
    A(f"s_cbranch_scc1 {Lx}")
    poll(A, 22, 12, "s52", sleep=8)
    A.label(Lx)
    stamp(A, 8)
    xload()
    A.label(Lb)
    A("s_waitcnt lgkmcnt(0)")
    A("s_lshl_b32 s54, s54, 16")
    A("s_lshl_b32 s53, s55, 16")
    A("s_and_b32 s55, s55, 0xffff0000")
    A("s_bitcmp1_b32 s49, 0")
    A("s_cselect_b32 s53, s55, s53")
    A("v_mov_b32 v15, s54")
    A("v_add_f32 v15, s53, v15")
    A("v_cvt_pk_bf16_f32 v15, v15, v15")
    T = Lgkm(A)
    for m in range(NR):
        for x, tg in rdA(m, RA + 4 * m, ("A", m)):
            T.issue(x, tg)
    T.wait(("A", 0))
    for k in range(4):
        A(f"v_bfi_b32 v{RA+k}, v{MK+k}, v15, v{RA+k}")
    T.all()
    A("s_cmp_ge_u32 s99, 24")
    A(f"s_cbranch_scc0 {Lg}")
    A("s_barrier")
    stamp(A, 8)
    xload()
    A.label(Lg)
    A(f"s_add_u32 s51, s50, {WS_YT:#x}")
    A(f"v_mov_b32 v{PUL[1]}, 0")

    sched = []
    for i in range(8):
        ms = list(range(4 * i + 4))
        res = [m for m in ms if m < NR and 4 * i + 3 - m < NR]
        stm = [m for m in ms if m not in res]
        sched += [(i, m) for m in res + stm]
    streams = []
    for k, (i, m) in enumerate(sched):
        b = 4 * i + 3 - m
        if m >= NR:
            streams.append((k, "A", m))
        elif b >= NR:
            streams.append((k, "B", b))
    slot_of = {k: n % 8 for n, (k, _, _) in enumerate(streams)}

    def epilogue(i):
        V = ACCS[i & 1]
        own = [f"v_add_f32_dpp v{V+4*j}, v{V+4*j+k}, v{V+4*j} row_shr:{4*k} row_mask:0xf bank_mask:0xf"
               for k in (1, 2, 3) for j in range(4)]
        car = [f"v_add_f32_dpp v{CAR}, v{V+12+k}, v{CAR} row_shl:{16-4*k} row_mask:0xf bank_mask:0xf" for k in (1, 2, 3)]
        L = [f"v_mov_b32 v{CAR}, 0"] + own[0:2] + car[0:1] + own[2:4] + car[1:2] + own[4:6] + car[2:3]
        L.append(("ds", f"ds_bpermute_b32 v{PUL[i&1]}, v14, v{CAR}", ("P", i)))
        L += own[6:]
        for k in (1, 2, 3):
            for j in (0, 1, 2):
                L.append(f"v_add_f32_dpp v{V+4*j+4}, v{V+4*j+k}, v{V+4*j+4} row_shl:{16-4*k} row_mask:0xf bank_mask:0xf")
        o = OUT[(i >> 1) & 1] + 2 * (i & 1)
        L.append(f"v_cvt_pk_bf16_f32 v{o+1}, v{V+8}, v{V+12}")
        L.append(("wait", ("P", i)))
        L.append(f"v_cndmask_b32 v{TMP}, v{PUL[i&1]}, v{PUL[1-(i&1)]}, s[58:59]")
        L.append(f"v_add_f32 v{V}, v{V}, v{TMP}")
        L.append(f"v_cvt_pk_bf16_f32 v{o}, v{V}, v{V+4}")
        if i & 1:
            L.append(f"buffer_store_dwordx4 {vr(OUT[(i>>1)&1],4)}, v2, s[{SWS}:{SWS+3}], s51 offen offset:{1024*(i>>1)}{SC}")
        return L

    def emit(x):
        if isinstance(x, tuple):
            if x[0] == "ds":
                T.issue(x[1], x[2])
            else:
                T.wait(x[1])
        else:
            A(x)

    A("s_waitcnt vmcnt(0)")
    stampw(A, 9)
    for b in range(8):
        for x, tg in rdB(b, RB + 4 * b, ("B", b)):
            T.issue(x, tg)
    nres = 8
    nst = 0
    fill = []
    first = {}
    for k, (i, m) in enumerate(sched):
        first.setdefault(i, k)
    for k, (i, m) in enumerate(sched):
        V = ACCS[i & 1]
        b = 4 * i + 3 - m
        if k == first[i]:
            while fill:
                emit(fill.pop(0))
            if i > 0:
                fill = epilogue(i - 1)
        if k in slot_of:
            T.wait(("S", k))
        if b < NR:
            T.wait(("B", b))
        ra = RA + 4 * m if m < NR else RS + 4 * slot_of[k]
        rb = RB + 4 * b if b < NR else RS + 4 * slot_of[k]
        c = vr(V, 16) if k != first[i] else "0"
        A(f"v_mfma_f32_32x32x16_bf16 {vr(V,16)}, {vr(ra,4)}, {vr(rb,4)}, {c}")
        budget = 5
        if nres < NR:
            for x, tg in rdB(nres, RB + 4 * nres, ("B", nres)):
                T.issue(x, tg)
            nres += 1
            budget -= 1
        elif nst < len(streams) and (nst < 8 or streams[nst - 8][0] < k) and streams[nst][0] - k <= 10:
            kk, kind, fr = streams[nst]
            for x, tg in (rdA if kind == "A" else rdB)(fr, RS + 4 * slot_of[kk], ("S", kk)):
                T.issue(x, tg)
                budget -= 1
            nst += 1
        if k > first[i]:
            for _ in range(budget):
                if fill:
                    emit(fill.pop(0))
    while fill:
        emit(fill.pop(0))
    stampw(A, 10)
    T.done = T.n if Ctx.stamps else T.done
    for x in epilogue(7):
        emit(x)
    A("s_waitcnt vmcnt(0)")
    stamp(A, 11)
    A("s_cmp_ge_u32 s99, 24")
    A("s_cbranch_scc1 L_bdone")
    A(f"v_mov_b32 v10, {L_SYNC+12}")
    A("v_mov_b32 v11, 1")
    A("s_mov_b64 exec, 1")
    A("ds_add_rtn_u32 v12, v10, v11")
    A("s_mov_b64 exec, -1")
    A("s_lshl_b32 s52, s98, 4")
    A("s_add_u32 s52, s52, s99")
    A("s_lshl_b32 s52, s52, 7")
    A(f"s_add_u32 s52, s52, {F4+8*128:#x}")
    A("s_waitcnt lgkmcnt(0)")
    A("v_readfirstlane_b32 s53, v12")
    A("s_cmp_eq_u32 s53, 3")
    A("s_cbranch_scc0 L_bend")
    set_flag(A, 10, "s52")
    A("s_branch L_bend")
    A.label("L_bdone")


def role_post(A):
    SQ, SO = 32, 36
    A.label("L_post")
    A("s_lshl_b32 s48, s48, 2")
    A("s_lshr_b32 s48, 0x43002100, s48")
    A("s_and_b32 s48, s48, 7")
    A("s_mul_i32 s49, s98, 40")
    A("s_sub_u32 s50, s99, 24")
    A("s_mul_i32 s50, s50, 5")
    A("s_add_u32 s49, s49, s50")
    A("s_add_u32 s49, s49, s48")
    A("s_and_b32 s50, s49, 31")
    A("s_lshr_b32 s51, s49, 5")
    A("v_lshrrev_b32 v2, 3, v1")
    A("v_and_b32 v3, 7, v1")
    A("v_lshlrev_b32 v4, 12, v2")
    A("v_lshl_add_u32 v4, v3, 4, v4")
    A("s_lshl_b32 s52, s51, 18")
    A("s_lshl_b32 s53, s50, 7")
    A("s_add_u32 s52, s52, s53")
    A(f"s_add_u32 s52, s52, {WS_YT:#x}")
    A("s_mul_i32 s56, s48, 8320")
    A(f"s_add_u32 s56, s56, {B_PRE}")
    A("s_lshr_b32 s54, s50, 3")
    A("s_lshl_b32 s54, s54, 9")
    A("s_bfe_u32 s55, s50, 0x10002")
    A("s_lshl_b32 s55, s55, 4")
    A("s_add_u32 s54, s54, s55")
    A("s_bfe_u32 s55, s50, 0x10001")
    A("s_lshl_b32 s55, s55, 7")
    A("s_add_u32 s54, s54, s55")
    A("s_and_b32 s55, s50, 1")
    A("s_lshl_b32 s55, s55, 1")
    A("s_add_u32 s54, s54, s55")
    A("v_and_b32 v5, 3, v2")
    A("v_lshrrev_b32 v6, 2, v2")
    A("v_lshl_add_u32 v5, v5, 5, v6")
    A("v_mul_u32_u24 v6, 1280, v5")
    A("v_lshlrev_b32 v7, 1, v6")
    A("v_lshl_add_u32 v6, v3, 4, v6")
    A("v_lshl_add_u32 v7, v3, 4, v7")
    A("s_mul_i32 s54, s54, 1280")
    A("s_lshl_b32 s53, s51, 7")
    A("s_lshl_b32 s55, s54, 1")
    A("s_add_u32 s54, s54, s53")
    A("s_add_u32 s55, s55, s53")
    A("s_add_u32 s55, s55, 1280")
    srd(A, SQ, S_BQ, NB_X)
    srd(A, SO, S_OUT, NB_OUT)
    QR, YR = 16, 48
    rows = [0, 4, 8, 12, 256, 260, 264, 268]
    if Opt.wopf == "b":
        Ln = A.newlabel("L_npf")
        A("s_cmp_ge_u32 s48, 3")
        A(f"s_cbranch_scc0 {Ln}")
        srd(A, 40, S_WO, NB_WO)
        A("s_sub_u32 s57, s99, 24")
        A("s_lshl_b32 s57, s57, 1")
        A("s_add_u32 s57, s57, s48")
        A("s_sub_u32 s57, s57, 3")
        A("s_lshl_b32 s57, s57, 13")
        A("v_lshlrev_b32 v8, 7, v1")
        for i in range(7):
            A(f"buffer_load_dword v{200+i}, v8, s[40:43], s57 offen")
            A(f"s_add_u32 s57, s57, {16*8192}")
        A.label(Ln)
    for i in range(8):
        A(f"s_add_u32 s57, s54, {rows[i]*1280}")
        A(f"buffer_load_dwordx4 {vr(QR+4*i,4)}, v6, s[{SQ}:{SQ+3}], s57 offen{Opt.nt_s}")
    A("s_mov_b32 s59, 0xffff0000")
    QF = 128
    A("s_waitcnt vmcnt(0)")
    for i in range(32):
        A(f"v_lshlrev_b32 v{QF+2*i}, 16, v{QR+i}")
        A(f"v_and_b32 v{QF+2*i+1}, s59, v{QR+i}")
    A("s_lshl_b32 s57, s98, 4")
    A("s_sub_u32 s58, s57, 16")
    A("v_min_u32 v12, 47, v1")
    A("v_add_u32 v12, s58, v12")
    A("v_max_i32 v12, 0, v12")
    A("v_min_u32 v12, 127, v12")
    A("v_lshlrev_b32 v12, 7, v12")
    A("s_add_u32 s57, s57, s99")
    A("s_lshl_b32 s57, s57, 7")
    A(f"s_add_u32 s57, s57, {F4-24*128:#x}")
    A(f"s_mov_b32 s58, {F4:#x}")
    Lx = A.newlabel("L_p7")
    A("s_barrier")
    A("s_cmp_eq_u32 s48, 4")
    A(f"s_cbranch_scc0 {Lx}")
    set_flag(A, 8, "s57")
    poll(A, 14, 12, "s58", sleep=4)
    A.label(Lx)
    A("s_barrier")
    stamp(A, 12)
    for i in range(8):
        A(f"v_xor_b32 v8, {16*i}, v4")
        A(f"s_add_u32 m0, s56, {1024*i}")
        A(f"buffer_load_dwordx4 v8, s[{SWS}:{SWS+3}], s52 offen{SC} lds")
        if i < 7:
            A(f"s_add_u32 s52, s52, {8*4096}")
    A("v_xor_b32 v8, v2, v3")
    A("v_lshlrev_b32 v8, 4, v8")
    A("v_lshl_add_u32 v8, v3, 10, v8")
    A("v_add_u32 v8, s56, v8")
    A("s_waitcnt vmcnt(0)")
    for c in range(8):
        A(f"ds_read_b128 {vr(YR+4*c,4)}, v8 offset:{128*c}")
    A("s_waitcnt lgkmcnt(0)")
    stamp(A, 13)
    YF, OUT = 80, 96
    for i in range(8):
        for c in range(8):
            if i & 1:
                A(f"v_and_b32 v{YF+c}, s59, v{YR+4*c+i//2}")
            else:
                A(f"v_lshlrev_b32 v{YF+c}, 16, v{YR+4*c+i//2}")
        for c in range(0, 8, 2):
            A(f"v_pk_mul_f32 {vr(YF+c,2)}, {vr(YF+c,2)}, {vr(QF+8*i+c,2)}")
        for k in range(4):
            A(f"v_cvt_pk_bf16_f32 v{OUT+4*i+k}, v{YF+2*k}, v{YF+2*k+1}")
        A(f"s_add_u32 s57, s55, {rows[i]*2560}")
        A(f"buffer_store_dwordx4 {vr(OUT+4*i,4)}, v7, s[{SO}:{SO+3}], s57 offen{Opt.osc}")
    stamp(A, 14)


def build():
    A = Asm()
    k = NAME + "_kernel"
    A.raw(f".globl {k}")
    A.raw(".p2align 8")
    A.raw(f".type {k},@function")
    A.label(k)
    load_kernargs(A)
    stamp_init(A)
    A("v_lshrrev_b32 v2, 6, v0")
    A("v_and_b32 v1, 63, v0")
    A("v_readfirstlane_b32 s100, v2")
    A("s_and_b32 s98, s2, 7")
    A("s_lshr_b32 s99, s2, 3")
    A("s_cmp_ge_u32 s2, 192")
    A("s_cbranch_scc1 L_b")
    A("s_and_b32 s49, s2, 3")
    A("s_lshl_b32 s49, s49, 2")
    A("s_and_b32 s50, s99, 3")
    A("s_add_u32 s49, s49, s50")
    A("s_bfe_u32 s52, s2, 0x10002")
    A("s_lshr_b32 s53, s2, 5")
    A("s_lshl_b32 s54, s52, 1")
    A("s_add_u32 s54, s54, s53")
    A("s_lshl_b32 s55, s52, 2")
    A("s_add_u32 s55, s55, s53")
    A("s_sub_u32 s55, s55, 2")
    A("s_cmp_lt_u32 s2, 64")
    A("s_cselect_b32 s50, s54, s55")
    A("s_cselect_b32 s51, 1, 0")
    A("s_and_b32 s48, s100, 3")
    A("s_cmp_ge_u32 s100, 4")
    A("s_cbranch_scc1 L_c")
    role_loader(A)
    A.label("L_c")
    role_compute(A)
    A.label("L_b")
    A("s_cmp_ge_u32 s2, 256")
    A("s_cbranch_scc1 L_exit")
    A("s_mov_b32 s48, s100")
    A("s_cmp_ge_u32 s48, 5")
    A("s_cbranch_scc1 L_help")
    role_pre(A)
    A("s_branch L_bconv")
    A.label("L_help")
    role_helper(A)
    A.label("L_bconv")
    role_conv(A)
    A("s_bitcmp1_b32 0x32, s48")
    A("s_cbranch_scc1 L_bend")
    role_post(A)
    A.label("L_bend")
    end_wave(A)
    A.label("L_exit")
    A("s_endpgm")
    A.label("L_code_end")
    head = ["; generated by gen/f3.py",
            "; @launch grid=(256,1,1) block=(512,1,1) lds=163840"]
    txt = "\n".join(head) + '\n.amdgcn_target "amdgcn-amd-amdhsa--gfx950"\n.text\n' + A.text()
    txt += f'''.section .rodata,"a"
.p2align 6
.amdhsa_kernel {k}
  .amdhsa_next_free_vgpr 256
  .amdhsa_next_free_sgpr 102
  .amdhsa_accum_offset 256
  .amdhsa_group_segment_fixed_size 0
  .amdhsa_kernarg_size 104
  .amdhsa_user_sgpr_count 2
  .amdhsa_user_sgpr_kernarg_segment_ptr 1
  .amdhsa_system_sgpr_workgroup_id_x 1
.end_amdhsa_kernel
'''
    return txt


if __name__ == "__main__":
    args = sys.argv[2:]
    Ctx.stamps = "stamps" in args
    Opt.rot = "norot" not in args
    Opt.codepf = "nocodepf" not in args
    for a in args:
        if a == "nowomall":
            Opt.womall = False
        if a == "noppoll":
            Opt.ppoll = False
        if a.startswith("psleep="):
            Opt.psleep = int(a[7:])
        if a.startswith("wopf="):
            Opt.wopf = a[5:]
    for a in args:
        if a.startswith("LA="):
            Opt.LA = int(a[3:])
    open(sys.argv[1], "w").write(build())
```

```python
import sys
from asm import Asm, vr, ar, sr
from roles import (WS_PHIQ, WS_PART, WS_O, WS_KVT, WS_YT, WS_STAMP, WS_SIZE, S_X, S_W, S_WPHI, S_WO, S_BQ, S_BK, S_BV,
                   S_SH, S_SSK, S_SSD, S_OUT, S_DBG, S_WS, NB_X, NB_W, NB_WPHI, NB_WO, NB_SH, NB_SSK, NB_OUT, LOG2E,
                   Ctx, load_kernargs, srd, stamp, stamp_init, softmax20)

NAME = "concat_heads__linear_kernel_hedgehog__ssm_conv_h3__prompt"
WS_PQ = WS_PHIQ
WS_FLAG = 0xF00000
F1, F2, F3, F0, F4 = (WS_FLAG + 128 * o for o in (0, 512, 1024, 1536, 1856))
WS_EPOCH = WS_FLAG + 128 * 2560 + 64
SWS = 44
SC = " sc1"
TAG = 30
SLOT = 36864
L_WP = 147456
L_Z = L_WP + 8192
L_SYNC = L_Z + 4096
L_V = 128 * 336
L_WOB = 65536
L_OT = 65536
CV_LDS = 8768
L_QCV = 3 * SLOT
B_PRE = 6 * CV_LDS


class Opt:
    rot = True
    LA = 2
    nt_s = " nt"
    codepf = True
    wopf = "no"
    osc = " nt"
    ppoll = False
    womall = True
    probe = None
    psleep = 2


def end_wave(A):
    if Ctx.stamps:
        stamp(A, 15, True)
        A("s_waitcnt lgkmcnt(0)")
        A("s_mov_b64 exec, -1")
        A("v_mov_b32 v2, 0")
        for k in range(16):
            A(f"v_writelane_b32 v2, s{64+2*k}, {k}")
        A("s_lshl_b32 s62, s2, 3")
        A("s_add_u32 s62, s62, s100")
        A("s_lshl_b32 s62, s62, 6")
        A(f"s_add_u32 s62, s62, {WS_STAMP:#x}")
        A("v_lshlrev_b32 v1, 2, v1")
        A("s_mov_b64 exec, 0xffff")
        A(f"buffer_store_dword v2, v1, s[{SWS}:{SWS+3}], s62 offen")
        if Opt.probe:
            Lp = A.newlabel("L_probe")
            A(f"s_cmp_eq_u32 s2, {Opt.probe[0]}")
            A(f"s_cbranch_scc0 {Lp}")
            A(f"s_cmp_eq_u32 s100, {Opt.probe[1]}")
            A(f"s_cbranch_scc0 {Lp}")
            A("v_subrev_u32 v3, s66, v2")
            A("s_sub_u32 s62, s94, s64")
            A("v_writelane_b32 v3, s62, 15")
            A("v_cmp_ne_u32 vcc, 0, v2")
            A("v_cndmask_b32 v3, 0, v3, vcc")
            A("s_mov_b64 exec, 0xfffc")
            A(f"global_store_dword v1, v3, s[{S_DBG}:{S_DBG+1}]")
            A.label(Lp)
    A("s_endpgm")


def stampw(A, k):
    stamp(A, k)
    if Ctx.stamps:
        A("s_waitcnt lgkmcnt(0)")


def poll(A, vt, voff, soff, sleep=1):
    L, Ld = A.newlabel("L_poll"), A.newlabel("L_polld")
    A("s_movk_i32 s101, 0x4000")
    A.label(L)
    A(f"buffer_load_dwordx2 {vr(vt,2)}, v{voff}, s[{SWS}:{SWS+3}], {soff} offen{SC}")
    A("s_waitcnt vmcnt(0)")
    A(f"v_cmp_eq_u64 vcc, s[{TAG}:{TAG+1}], {vr(vt,2)}")
    A("s_cmp_eq_u64 vcc, -1")
    A(f"s_cbranch_scc1 {Ld}")
    A(f"s_sleep {sleep}")
    A("s_sub_u32 s101, s101, 1")
    A("s_cmp_eq_u32 s101, 0")
    A(f"s_cbranch_scc0 {L}")
    A("s_endpgm")
    A.label(Ld)


def ppoll(A, vt, voff, soff, sleep=1, depth=4):
    if not Opt.ppoll:
        return poll(A, vt, voff, soff, sleep=sleep)
    L, Ld = A.newlabel("L_pp"), A.newlabel("L_ppd")
    ld = lambda k: f"buffer_load_dwordx2 {vr(vt+2*k,2)}, v{voff}, s[{SWS}:{SWS+3}], {soff} offen{SC}"
    A("s_movk_i32 s101, 0x4000")
    for k in range(depth - 1):
        A(ld(k))
        A(f"s_sleep {sleep}")
    A.label(L)
    for k in range(depth):
        A(ld((k + depth - 1) % depth))
        A(f"s_waitcnt vmcnt({depth-1})")
        A(f"v_cmp_eq_u64 vcc, s[{TAG}:{TAG+1}], {vr(vt+2*k,2)}")
        A("s_cmp_eq_u64 vcc, -1")
        A(f"s_cbranch_scc1 {Ld}")
        A(f"s_sleep {sleep}")
    A("s_sub_u32 s101, s101, 1")
    A("s_cmp_eq_u32 s101, 0")
    A(f"s_cbranch_scc0 {L}")
    A("s_endpgm")
    A.label(Ld)


def set_flag(A, vt, soff):
    A(f"v_mov_b32 v{vt}, s{TAG}")
    A(f"v_mov_b32 v{vt+1}, s{TAG+1}")
    A(f"v_lshlrev_b32 v{vt+2}, 3, v1")
    A("s_waitcnt vmcnt(0)")
    A("s_mov_b64 exec, 0xffff")
    A(f"buffer_store_dwordx2 {vr(vt,2)}, v{vt+2}, s[{SWS}:{SWS+3}], {soff} offen{SC}")
    A("s_mov_b64 exec, -1")


def tag_issue(A):
    A(f"s_load_dwordx2 s[{TAG}:{TAG+1}], s[{S_DBG}:{S_DBG+1}], 0")


def tag_check(A, vt):
    L, Ld = A.newlabel("L_hs"), A.newlabel("L_hsd")
    A("s_waitcnt lgkmcnt(0)")
    A(f"s_cmp_lg_u32 s{TAG}, s{TAG+1}")
    A(f"s_cbranch_scc1 {Ld}")
    A("s_movk_i32 s101, 0x4000")
    A(f"v_mov_b32 v{vt+2}, 0")
    A.label(L)
    A(f"global_load_dwordx2 {vr(vt,2)}, v{vt+2}, s[{S_DBG}:{S_DBG+1}]{SC}")
    A("s_waitcnt vmcnt(0)")
    A(f"v_readfirstlane_b32 s{TAG}, v{vt}")
    A(f"v_readfirstlane_b32 s{TAG+1}, v{vt+1}")
    A("s_nop 3")
    A(f"s_cmp_lg_u32 s{TAG}, s{TAG+1}")
    A(f"s_cbranch_scc1 {Ld}")
    A("s_sleep 8")
    A("s_sub_u32 s101, s101, 1")
    A("s_cmp_eq_u32 s101, 0")
    A(f"s_cbranch_scc0 {L}")
    A("s_endpgm")
    A.label(Ld)


def lds_arrive(A, vt, addr):
    A(f"v_mov_b32 v{vt}, {addr}")
    A(f"v_mov_b32 v{vt+1}, 1")
    A("s_waitcnt lgkmcnt(0)")
    A("s_mov_b64 exec, 1")
    A(f"ds_add_u32 v{vt}, v{vt+1}")
    A("s_mov_b64 exec, -1")


def lds_wait(A, vt, addr, n, sleep=0):
    L, Ld = A.newlabel("L_lw"), A.newlabel("L_lwd")
    if addr is not None:
        A(f"v_mov_b32 v{vt}, {addr}")
    A("s_mov_b32 s101, 0x40000")
    A.label(L)
    A(f"ds_read_b32 v{vt+1}, v{vt}")
    A("s_waitcnt lgkmcnt(0)")
    A(f"v_cmp_le_u32 vcc, {n}, v{vt+1}")
    A(f"s_cbranch_vccnz {Ld}")
    if sleep:
        A(f"s_sleep {sleep}")
    A("s_sub_u32 s101, s101, 1")
    A("s_cmp_eq_u32 s101, 0")
    A(f"s_cbranch_scc0 {L}")
    A("s_endpgm")
    A.label(Ld)


class Lgkm:
    def __init__(self, A):
        self.A, self.n, self.done, self.tag = A, 0, 0, {}

    def issue(self, text, tag=None):
        self.A(text)
        self.n += 1
        if tag is not None:
            self.tag[tag] = self.n

    def wait(self, *tags):
        need = max(self.tag[t] for t in tags)
        if need > self.done:
            self.A(f"s_waitcnt lgkmcnt({min(15, self.n - need)})")
            self.done = max(need, self.n - 15)

    def all(self):
        if self.done < self.n:
            self.A("s_waitcnt lgkmcnt(0)")
            self.done = self.n


def o_index(A):
    A("s_sub_u32 s63, s99, 8")
    A("s_lshr_b32 s62, s63, 2")
    A("s_lshl_b32 s3, s98, 2")
    A("s_add_u32 s62, s62, s3")
    A("s_and_b32 s63, s63, 3")
    A("s_lshl_b32 s63, s63, 2")
    A("s_add_u32 s63, s63, s48")


def role_loader(A):
    SX, SW, SP = 32, 36, 40
    VX, VW = 24, 28
    t0, t1, t2, t3 = 11, 12, 13, 14
    A("s_setprio 1")
    A(f"v_lshrrev_b32 v{t0}, 3, v1")
    A(f"v_mul_u32_u24 v{t0}, 1280, v{t0}")
    A(f"v_lshrrev_b32 v{t1}, 4, v1")
    A(f"v_and_b32 v{t2}, 7, v1")
    A(f"v_xor_b32 v{t1}, v{t1}, v{t2}")
    A(f"v_xor_b32 v{t2}, 4, v{t1}")
    A(f"v_lshl_add_u32 v{VX}, v{t1}, 4, v{t0}")
    A(f"v_lshl_add_u32 v{VX+1}, v{t2}, 4, v{t0}")
    A(f"v_add_u32 v{VX+2}, {2*(8*1280-1024)}, v{VX}")
    A(f"v_add_u32 v{VX+3}, {3*(8*1280-1024)}, v{VX+1}")
    A(f"v_add_u32 v{VX+1}, {8*1280-1024}, v{VX+1}")
    A("s_lshl_b32 s60, s49, 2")
    A("s_add_u32 s60, s60, s48")
    A(f"s_mul_i32 s60, s60, {32*1280}")
    if Opt.rot:
        A("s_lshl_b32 s30, s49, 2")
        A("s_bfe_u32 s30, s30, 0x40000")
        A("s_lshr_b32 s30, 0x8530, s30")
        A("s_and_b32 s30, s30, 15")
        A("s_and_b32 s31, s99, 28")
        A("s_lshr_b32 s31, 0x875320, s31")
        A("s_and_b32 s31, s31, 15")
        A("s_add_u32 s30, s30, s31")
        A("s_sub_u32 s31, s30, 10")
        A("s_cmp_ge_u32 s30, 10")
        A("s_cselect_b32 s30, s31, s30")
        A("s_lshl_b32 s31, s30, 7")
        A("s_add_u32 s60, s60, s31")
    A("s_lshl_b32 s62, s48, 12")
    A("s_mov_b32 m0, s62")
    A(f"s_mov_b32 s{SX+2}, {NB_X:#x}")
    A(f"s_mov_b32 s{SX+3}, 0x20000")
    A("s_waitcnt lgkmcnt(0)")
    A(f"s_mov_b64 s[{SX}:{SX+1}], s[{S_X}:{S_X+1}]")

    def dma_x(s):
        if s:
            A(f"s_add_u32 m0, s62, {(s % 3) * SLOT}")
        for i in range(4):
            A(f"buffer_load_dwordx4 v{VX+i}, s[{SX}:{SX+3}], s60 offen offset:{1024*i} lds")

    def dma_w(s):
        sl = (s % 3) * SLOT
        A(f"s_add_u32 m0, s63, {sl}")
        for i in range(4):
            A(f"buffer_load_dwordx4 v{VW+i}, s[{SW}:{SW+3}], s61 offen offset:{1024*i} lds")
        A(f"s_add_u32 m0, s63, {sl+4096}")
        A(f"buffer_load_dwordx4 v{VW+4}, s[{SW}:{SW+3}], s61 offen lds")
        if s < 9:
            if Opt.rot:
                A("s_add_u32 s30, s30, 1")
                A("s_cmp_eq_u32 s30, 10")
                A(f"s_cselect_b32 s31, {(-1152)&0xffffffff:#x}, s97")
                A(f"s_cselect_b32 s3, {(-9*64*3840)&0xffffffff:#x}, s96")
                A("s_add_u32 s60, s60, s31")
                A("s_add_u32 s61, s61, s3")
            else:
                A("s_add_u32 s60, s60, 128")
                A(f"s_add_u32 s61, s61, {64*3840}")

    dma_x(0)
    A("s_cmp_eq_u32 s51, 0")
    A("s_cselect_b32 s56, 1120, 0")
    A(f"v_lshlrev_b32 v{t3}, 4, v1")
    A(f"v_mul_u32_u24 v{t2}, 6554, v1")
    A("s_movk_i32 s57, 3520")
    for i in range(5):
        if i:
            A(f"v_add_u32 v{t2}, {64*6554}, v{t2}")
        A(f"v_lshrrev_b32 v{t0}, 17, v{t2}")
        A(f"v_bfe_u32 v{t1}, v{t2}, 16, 1")
        A(f"v_mad_u32_u24 v{t0}, v{t0}, s57, v{t3}")
        A(f"v_mad_u32_u24 v{VW+i}, v{t1}, s56, v{t0}")
    A(f"v_add_u32 v{VW+4}, 4096, v{VW+4}")
    A(f"s_mul_i32 s61, s48, {16*3840}")
    A("s_mul_i32 s57, s50, 160")
    A("s_add_u32 s58, s57, 1280")
    A("s_lshl_b32 s57, s57, 1")
    A("s_cmp_eq_u32 s51, 0")
    A("s_cselect_b32 s57, s58, s57")
    A("s_add_u32 s61, s61, s57")
    if Opt.rot:
        A(f"s_mov_b32 s96, {64*3840}")
        A("s_movk_i32 s97, 128")
        A("s_mul_i32 s31, s30, s96")
        A("s_add_u32 s61, s61, s31")
    A("s_mul_i32 s63, s48, 5120")
    A("s_add_u32 s63, s63, 16384")
    srd(A, SW, S_W, NB_W)
    dma_w(0)
    stamp(A, 2)
    A("s_mul_i32 s57, s50, 3200")
    A("s_lshl_b32 s57, s57, s51")
    A("s_lshl_b32 s58, s48, 11")
    A("s_add_u32 s57, s57, s58")
    srd(A, SP, S_WPHI, NB_WPHI)
    A(f"s_add_u32 m0, s58, {L_WP}")
    A(f"buffer_load_dwordx4 v{t3}, s[{SP}:{SP+3}], s57 offen lds")
    A(f"buffer_load_dwordx4 v{t3}, s[{SP}:{SP+3}], s57 offen offset:1024 lds")
    srd(A, SWS, S_WS, WS_SIZE)
    Lh = A.newlabel("L_noh")
    A("s_cmp_eq_u32 s51, 0")
    A(f"s_cbranch_scc1 {Lh}")
    A("s_mul_i32 s49, s98, 80")
    A("s_lshl_b32 s50, s99, 2")
    A("s_add_u32 s49, s49, s50")
    A("s_add_u32 s49, s49, s48")
    A("s_add_u32 s49, s49, 48")
    A(f"s_mul_i32 s56, s48, {CV_LDS}")
    A(f"s_add_u32 s56, s56, {L_QCV}")
    conv_load_h(A, t3)
    A.label(Lh)
    assert Opt.LA == 2
    issued = 0
    for s in range(10):
        while issued < min(s + Opt.LA - 1, 9):
            issued += 1
            dma_x(issued)
            dma_w(issued)
        if s == 0:
            Ls = A.newlabel("L_nosetup")
            A("s_cmp_ge_u32 s99, 8")
            A(f"s_cbranch_scc1 {Ls}")
            conv_setup(A)
            f0_lines(A, 49, 49, 12)
            A.label(Ls)
        if s == 9:
            tag_issue(A)
        A(f"s_waitcnt vmcnt({9*(issued-s)})")
        A("s_barrier")
        if s in (0, 3, 6, 9):
            stamp(A, 3 + s // 3)
    A("s_setprio 0")
    A("s_cmp_lt_u32 s99, 8")
    A("s_cbranch_scc1 L_conv")
    role_wo(A)


def role_wo(A):
    SO, SWO = 32, 36
    WR = 64
    A.label("L_wo")
    srd(A, SWO, S_WO, NB_WO)
    if Opt.wopf == "kv":
        Ls = A.newlabel("L_nopf")
        A("s_cmp_lt_u32 s99, 8")
        A(f"s_cbranch_scc1 {Ls}")
        A("s_lshl_b32 s52, s99, 2")
        A("s_add_u32 s52, s52, s48")
        A("s_sub_u32 s52, s52, 32")
        A("s_lshl_b32 s52, s52, 13")
        A(f"s_add_u32 s53, s52, {64*8192}")
        A("v_lshlrev_b32 v2, 7, v1")
        A(f"buffer_load_dword v24, v2, s[{SWO}:{SWO+3}], s52 offen")
        A(f"buffer_load_dword v25, v2, s[{SWO}:{SWO+3}], s53 offen")
        A.label(Ls)
    A("v_lshrrev_b32 v2, 2, v1")
    A("v_and_b32 v3, 3, v1")
    A("v_mul_u32_u24 v4, 1280, v2")
    A("v_lshl_add_u32 v4, v3, 4, v4")
    for i in range(1, 4):
        A(f"v_add_u32 v{4+i}, {i*(16*1280-1024)}, v4")
    A(f"v_add_u32 v8, {4*16*1280}, v4")
    A("s_lshr_b32 s50, s99, 2")
    A("s_sub_u32 s50, s50, 1")
    A("s_max_i32 s50, s50, 0")
    A("s_lshl_b32 s52, s50, 8")
    A("s_lshl_b32 s53, s48, 6")
    A("s_add_u32 s52, s52, s53")
    A("s_mov_b32 s51, s52")
    A("s_mul_i32 s53, s48, 20480")
    A("s_cmp_lt_u32 s99, 8")
    A(f"s_cselect_b32 s54, 0, {L_WOB}")
    A("s_add_u32 s53, s53, s54")

    def cbuf(c):
        return 5120 + ((c + 1) % 3) * 5120

    def chunk(c):
        b = cbuf(c)
        A(f"s_add_u32 m0, s53, {b}")
        for i in range(4):
            A(f"buffer_load_dwordx4 v{4+i}, s[{SWO}:{SWO+3}], s51 offen offset:{1024*i} lds")
        A(f"s_add_u32 m0, s53, {b+4096}")
        A(f"buffer_load_dwordx4 v8, s[{SWO}:{SWO+3}], s51 offen lds")
        A(f"s_add_u32 s51, s51, {80*1280}")

    Lj = A.newlabel("L_woj")
    chunk(0)
    A("s_cmp_lt_u32 s99, 8")
    A(f"s_cbranch_scc1 {Lj}")
    A("s_barrier")
    A.label(Lj)
    chunk(1)
    chunk(2)
    A("v_bfe_u32 v10, v1, 2, 2")
    A("v_lshrrev_b32 v11, 5, v1")
    A("v_and_b32 v12, 1, v1")
    A("v_lshlrev_b32 v12, 5, v12")
    A("v_bfe_u32 v13, v1, 4, 1")
    A("v_lshl_add_u32 v12, v13, 4, v12")
    A("v_bfe_u32 v13, v1, 1, 1")
    A("v_lshl_add_u32 v12, v13, 3, v12")
    A("v_lshl_add_u32 v12, v10, 6, v12")
    A("v_add_u32 v12, s53, v12")
    A("v_lshl_add_u32 v13, v11, 8, v12")
    A("v_mul_u32_u24 v14, 2560, v11")
    A("v_add_u32 v14, v14, v12")
    A("v_and_b32 v9, 31, v1")
    A("v_lshrrev_b32 v15, 4, v1")
    A("v_lshlrev_b32 v15, 7, v15")
    A("v_lshlrev_b32 v18, 4, v1")
    o_index(A)
    tag_check(A, 20)

    def take(c):
        b = cbuf(c)
        for hh in range(4):
            for half in range(2):
                A(f"ds_read_b64_tr_b16 {vr(WR+4*(4*c+hh)+2*half,2)}, v13 offset:{b+(20*hh+8*half)*64}")
        for half in range(2):
            A(f"ds_read_b64_tr_b16 {vr(WR+128+4*c+2*half,2)}, v14 offset:{b+(20*half+16)*64}")

    Lq2 = A.newlabel("L_woq")
    for c in range(6):
        A("s_waitcnt vmcnt(10)")
        take(c)
        A("s_waitcnt lgkmcnt(0)")
        if c + 3 < 8:
            chunk(c + 3)
    stamp(A, 14)
    A("s_cmp_lt_u32 s99, 8")
    A(f"s_cbranch_scc1 {Lq2}")
    A("s_lshr_b32 s54, s62, 3")
    A("s_lshl_b32 s54, s54, 4")
    A("s_add_u32 s54, s54, s63")
    A("s_lshl_b32 s54, s54, 9")
    A(f"s_add_u32 s54, s54, {F2:#x}")
    A("s_lshl_b32 s55, s62, 4")
    A("s_add_u32 s55, s55, s63")
    A("s_mul_i32 s55, s55, 5120")
    poll(A, 16, 15, "s54", sleep=4)
    A("s_mov_b32 m0, s53")
    A("s_add_u32 s54, s55, 4096")
    for i in range(4):
        A(f"buffer_load_dwordx4 v18, s[{SWS}:{SWS+3}], s55 offen offset:{1024*i}{SC} lds")
    A("s_add_u32 m0, s53, 4096")
    A(f"buffer_load_dwordx4 v18, s[{SWS}:{SWS+3}], s54 offen{SC} lds")
    A("s_lshl_b32 s54, s48, 2")
    A(f"s_add_u32 s54, s54, {L_SYNC+16}")
    A("s_waitcnt vmcnt(0)")
    lds_arrive(A, 16, "s54")
    stamp(A, 7)
    A("s_lshl_b32 s54, s62, 2")
    A("s_add_u32 s54, s54, s48")
    A("s_mul_i32 s55, s54, 10240")
    A(f"s_add_u32 s55, s55, {WS_PART:#x}")
    A("s_lshl_b32 s54, s54, 9")
    A(f"s_add_u32 s54, s54, {F1:#x}")
    A("v_min_u32 v19, 20, v9")
    A("v_and_b32 v20, 32, v1")
    A("v_add_u32 v19, v19, v20")
    A("v_lshlrev_b32 v20, 3, v19")
    A("v_lshlrev_b32 v19, 4, v19")
    A("v_add_u32 v21, s53, v18")
    A("v_add_u32 v21, 5120, v21")
    A("s_mov_b32 s59, 0xffff0000")
    lds_wait(A, 16, L_SYNC + 4, 4, sleep=2)
    ppoll(A, 244, 15, "s54", sleep=Opt.psleep)
    stamp(A, 12)
    PR = [24, 34, 44, 54]
    SM, TP = 224, 244
    for p in range(4):
        A(f"buffer_load_dwordx4 {vr(PR[p],4)}, v19, s[{SWS}:{SWS+3}], s55 offen{SC}")
        A(f"buffer_load_dwordx4 {vr(PR[p]+4,4)}, v19, s[{SWS}:{SWS+3}], s55 offen offset:1024{SC}")
        A(f"buffer_load_dwordx2 {vr(PR[p]+8,2)}, v20, s[{SWS}:{SWS+3}], s55 offen offset:2048{SC}")
        if p < 3:
            A("s_add_u32 s55, s55, 2560")
    A("s_setprio 3")
    for p in range(4):
        A(f"s_waitcnt vmcnt({9-3*p})")
        for i in range(10):
            d = SM + 2 * i if p == 0 else TP + 2 * (i % 5)
            A(f"v_lshlrev_b32 v{d}, 16, v{PR[p]+i}")
            A(f"v_and_b32 v{d+1}, s59, v{PR[p]+i}")
            if p:
                A(f"v_pk_add_f32 {vr(SM+2*i,2)}, {vr(SM+2*i,2)}, {vr(d,2)}")
    for q in range(5):
        A(f"ds_write_b128 v21, {vr(SM+4*q,4)} offset:{1024*q}")
    lds_arrive(A, 16, L_SYNC + 8)
    A("s_setprio 0")
    stamp(A, 13)
    A.label(Lq2)
    A("s_waitcnt vmcnt(0)")
    take(6)
    take(7)
    srd(A, SO, S_OUT, NB_OUT)
    A("s_and_b32 s54, s99, 3")
    A("s_lshl_b32 s55, s98, 2")
    A("s_add_u32 s54, s54, s55")
    A("s_lshr_b32 s55, s54, 1")
    A("s_lshl_b32 s55, s55, 12")
    A(f"s_add_u32 s55, s55, {F3:#x}")
    A("s_lshl_b32 s57, s48, 10")
    A("s_add_u32 s55, s55, s57")
    A("v_lshrrev_b32 v15, 3, v1")
    A("v_lshlrev_b32 v15, 7, v15")
    A("s_mul_i32 s57, s54, 81920")
    A(f"s_add_u32 s57, s57, {WS_O:#x}")
    A("s_lshr_b32 s58, s48, 1")
    A("s_mul_i32 s58, s58, 40960")
    A("s_and_b32 s59, s48, 1")
    A("s_lshl_b32 s59, s59, 12")
    A("s_add_u32 s58, s58, s59")
    A("s_add_u32 s57, s57, s58")
    A(f"s_add_u32 s58, s58, {L_OT}")
    A("v_mov_b32 v5, v18")
    A(f"v_add_u32 v6, {L_OT}, v5")
    A(f"v_add_u32 v7, {L_OT+40960}, v5")
    A("v_lshlrev_b32 v10, 3, v9")
    A("v_lshl_add_u32 v10, v11, 9, v10")
    A(f"v_add_u32 v10, {L_OT+32768}, v10")
    A("s_mul_i32 s56, s48, 5120")
    A("s_waitcnt lgkmcnt(0)")
    A("v_mul_u32_u24 v12, 80, v9")
    A("v_lshl_add_u32 v12, v11, 5, v12")
    A("v_add_u32 v12, s56, v12")
    A("v_mul_u32_u24 v13, 80, v2")
    A("v_lshl_add_u32 v13, v3, 4, v13")
    A("v_add_u32 v13, s56, v13")
    A("v_mul_u32_u24 v14, 2560, v2")
    A("v_lshl_add_u32 v14, v3, 4, v14")
    A(f"s_mul_i32 s59, s54, {64*2560}")
    A("s_add_u32 s59, s59, s52")
    lds_wait(A, 16, L_SYNC + 12, 4, sleep=2)
    stamp(A, 8)
    ppoll(A, 48, 15, "s55", sleep=Opt.psleep)
    A("s_barrier")
    stamp(A, 9)
    for k in range(5):
        A(f"s_add_u32 m0, s58, {8192*k}")
        for i in range(4):
            A(f"buffer_load_dwordx4 v5, s[{SWS}:{SWS+3}], s57 offen offset:{1024*i}{SC} lds")
        if k < 4:
            A("s_add_u32 s57, s57, 8192")
    if Ctx.stamps:
        A("s_waitcnt lgkmcnt(0)")
    ACC = (16, 32)
    OFB = 224
    T = Lgkm(A)

    def rdx(f):
        if f % 8 == 0:
            A(f"s_waitcnt vmcnt({16 - 4*(f//8)})")
            A("s_barrier")
        for t in range(2):
            d = OFB + 4 * ((2 * f + t) % 8)
            if f < 32:
                T.issue(f"ds_read_b128 {vr(d,4)}, v{6+t} offset:{1024*f}", (f, t))
            else:
                a = f - 32
                T.issue(f"ds_read_b64 {vr(d,2)}, v10 offset:{40960*t + 1024*a}")
                T.issue(f"ds_read_b64 {vr(d+2,2)}, v10 offset:{40960*t + 1024*a + 256}", (f, t))

    for f in range(3):
        rdx(f)
    for f in range(40):
        for t in range(2):
            T.wait((f, t))
            c = vr(ACC[t], 16) if f else "0"
            A(f"v_mfma_f32_32x32x16_bf16 {vr(ACC[t],16)}, {vr(WR+4*f,4)}, {vr(OFB+4*((2*f+t)%8),4)}, {c}")
            if t == 0 and f + 3 < 40:
                rdx(f + 3)
    stamp(A, 10)
    for t in range(2):
        for i in range(8):
            A(f"v_cvt_pk_bf16_f32 v{48+8*t+i}, v{ACC[t]+2*i}, v{ACC[t]+2*i+1}")
        for i in range(2):
            A(f"ds_write_b128 v12, {vr(48+8*t+4*i,4)} offset:{2560*t+16*i}")
    A("s_waitcnt lgkmcnt(0)")
    for i in range(4):
        A(f"ds_read_b128 {vr(64+4*i,4)}, v13 offset:{1280*i}")
    for i in range(4):
        A(f"s_waitcnt lgkmcnt({3-i})")
        A(f"buffer_store_dwordx4 {vr(64+4*i,4)}, v14, s[{SO}:{SO+3}], s59 offen{Opt.osc}")
        if i < 3:
            A(f"s_add_u32 s59, s59, {16*2560}")
    stamp(A, 11)
    end_wave(A)


def role_compute(A):
    XA, WA, AD = 144, 152, 154
    ACC = 16
    WF = (96, 116)
    XF = (136, 140)
    t0, t1, t2, t3 = 11, 12, 13, 14
    for i in range(80):
        A(f"v_mov_b32 v{ACC+i}, 0")
    A(f"v_and_b32 v{t0}, 255, v0")
    A(f"v_lshlrev_b32 v{t0}, 4, v{t0}")
    A(f"v_add_u32 v{t0}, {L_Z}, v{t0}")
    A(f"ds_write_b128 v{t0}, {vr(ACC,4)}")
    A(f"ds_write_b128 v{t0}, {vr(ACC,4)} offset:64")
    A("s_lshl_b32 s54, s48, 12")
    A(f"v_and_b32 v{t0}, 31, v1")
    A(f"v_lshrrev_b32 v{t1}, 5, v1")
    A(f"v_bfe_u32 v{t2}, v1, 1, 3")
    A(f"v_xor_b32 v{t2}, v{t2}, v{t1}")
    A(f"v_lshlrev_b32 v{t2}, 4, v{t2}")
    A(f"v_lshl_add_u32 v{t2}, v{t0}, 7, v{t2}")
    A(f"v_add_u32 v{XA}, s54, v{t2}")
    for t in range(1, 4):
        A(f"v_xor_b32 v{XA+t}, {32*t}, v{XA}")
    for t in range(4):
        A(f"v_add_u32 v{XA+4+t}, {2*SLOT}, v{XA+t}")
    R8, JJ, HH = 158, 159, 160
    A(f"v_bfe_u32 v{t0}, v1, 2, 2")
    A(f"v_lshl_add_u32 v{R8}, v{t1}, 3, v{t0}")
    A(f"v_bfe_u32 v{t2}, v1, 4, 1")
    A(f"v_bfe_u32 v{t3}, v1, 1, 1")
    A(f"v_lshl_add_u32 v{JJ}, v{t2}, 1, v{t3}")
    A(f"v_and_b32 v{HH}, 1, v1")
    A(f"v_mul_u32_u24 v{t2}, 320, v{R8}")
    A(f"v_mul_u32_u24 v{t3}, 160, v{HH}")
    A(f"v_lshl_add_u32 v{t3}, v{JJ}, 3, v{t3}")
    A(f"v_add_u32 v{WA}, v{t2}, v{t3}")
    A(f"v_add_u32 v{WA}, 16384, v{WA}")
    A(f"v_add_u32 v{WA+1}, {2*SLOT}, v{WA}")
    A("s_movk_i32 s57, 1600")
    A("s_lshl_b32 s57, s57, s51")
    A(f"v_mul_u32_u24 v{t2}, s57, v{HH}")
    A(f"v_mul_u32_u24 v{t3}, 40, v{t0}")
    A(f"v_add_u32 v{t2}, v{t2}, v{t3}")
    A(f"v_lshl_add_u32 v{t2}, v{JJ}, 3, v{t2}")
    A(f"v_add_u32 v{t2}, {L_WP}, v{t2}")
    A(f"v_mov_b32 v{t3}, {L_Z}")
    A(f"v_cmp_eq_u32 vcc, v{HH}, v{t1}")
    A(f"v_cndmask_b32 v{AD}, v{t3}, v{t2}, vcc")
    A(f"v_add_u32 v{t0}, 24, v{t2}")
    A(f"v_cndmask_b32 v{AD+3}, v{t3}, v{t0}, vcc")
    A(f"v_cmp_eq_u32 s[58:59], 0, v{JJ}")
    A("s_and_b64 s[62:63], vcc, s[58:59]")
    A("s_andn2_b64 s[58:59], vcc, s[58:59]")
    A(f"v_add_u32 v{t0}, 32, v{t2}")
    A(f"v_cndmask_b32 v{AD+1}, v{t3}, v{t0}, s[62:63]")
    A(f"v_subrev_u32 v{t0}, 8, v{t2}")
    A(f"v_cndmask_b32 v{AD+2}, v{t3}, v{t0}, s[58:59]")
    A(f"v_and_b32 v{t0}, 31, v1")
    A("s_lshl_b32 s57, s48, 5")
    A(f"v_add_u32 v{t0}, s57, v{t0}")
    A(f"v_mul_u32_u24 v8, 176, v{t0}")
    A(f"v_add_u32 v8, {L_V}, v8")
    A(f"v_mul_u32_u24 v{t3}, 80, v{t1}")
    A(f"v_add_u32 v2, v8, v{t3}")
    A(f"v_mul_u32_u24 v{t2}, 336, v{t0}")
    A(f"v_lshl_add_u32 v3, v{t3}, 1, v{t2}")
    A(f"v_mul_u32_u24 v{t0}, 336, v{R8}")
    A(f"v_mul_u32_u24 v{t1}, 5, v{HH}")
    A(f"v_add_u32 v{t1}, v{t1}, v{JJ}")
    A(f"v_lshl_add_u32 v{t0}, v{t1}, 3, v{t0}")
    A("s_mul_i32 s57, s48, 80")
    A(f"v_add_u32 v6, s57, v{t0}")
    A(f"v_lshl_add_u32 v{t0}, v{JJ}, 1, v{HH}")
    A("s_mul_i32 s57, s48, 5")
    A(f"v_add_u32 v{t1}, s57, v{t0}")
    A(f"v_cmp_gt_u32 vcc, 5, v{t0}")
    A(f"v_cndmask_b32 v{t1}, 20, v{t1}, vcc")
    A(f"v_mul_u32_u24 v{t0}, 176, v{R8}")
    A(f"v_lshl_add_u32 v{t0}, v{t1}, 3, v{t0}")
    A(f"v_add_u32 v7, {L_V}, v{t0}")
    A("v_mov_b32 v4, 0x3f803f80")
    A("v_mov_b32 v5, 0x3f803f80")
    WPF = 164
    frags = [(0, 0), (0, 1), (0, 2), (1, 0), (1, 1), (1, 2), (1, 3), (1, 4), (2, 2), (2, 3), (2, 4)]
    for r in (WPF + 4 * 2 + 2, WPF + 4 * 2 + 3, WPF + 4 * 8, WPF + 4 * 8 + 1):
        A(f"v_mov_b32 v{r}, 0")
    A(f"s_mov_b32 s60, {LOG2E:#x}")
    A(f"s_mov_b32 s61, {LOG2E:#x}")
    A("s_waitcnt lgkmcnt(0)")
    srd(A, SWS, S_WS, WS_SIZE)
    A("s_setprio 2")

    def rd_x(s, t, b):
        sl = s % 3
        return f"ds_read_b128 {vr(XF[b],4)}, v{XA + 4*(sl>>1) + t} offset:{(sl&1)*SLOT}"

    def rd_w(s, t, T, half, b):
        sl = s % 3
        return f"ds_read_b64_tr_b16 {vr(WF[b]+4*T+2*half,2)}, v{WA+(sl>>1)} offset:{(sl&1)*SLOT + (16*t+4*half)*320 + 32*T}"

    def wphi_reads(pas):
        L = []
        for fi, (Tp, u) in enumerate(frags):
            for half in range(2):
                dq = 2 * u + half
                r = WPF + 4 * fi + 2 * half
                if (Tp == 0 and dq == 5) or (Tp == 2 and dq == 4):
                    continue
                ad = {(0, 0): AD, (1, 0): AD + 1, (1, 1): AD + 2, (2, 1): AD + 3}[(Tp, dq // 5)]
                L.append(f"ds_read_b64_tr_b16 {vr(r,2)}, v{ad} offset:{dq*160 + pas*1600}")
        return L

    A("s_barrier")
    stampw(A, 3)
    A(rd_x(0, 0, 0))
    for T in range(5):
        A(rd_w(0, 0, T, 0, 0)); A(rd_w(0, 0, T, 1, 0))
    for s in range(10):
        for t in range(4):
            b = t & 1
            last = (s == 9 and t == 3)
            ns, nt = (s, t + 1) if t < 3 else (s + 1, 0)
            prev_remaining = [8, 6, 4, 2, 0]
            issued = 0
            wp = wphi_reads(0) if last else []
            for T in range(5):
                if not (t == 3 and T >= 2):
                    A(f"s_waitcnt lgkmcnt({prev_remaining[T] + issued})")
                A(f"v_mfma_f32_32x32x16_bf16 {vr(ACC+16*T,16)}, {vr(WF[b]+4*T,4)}, {vr(XF[b],4)}, {vr(ACC+16*T,16)}")
                if t < 3:
                    if T == 0:
                        A(rd_x(ns, nt, 1 - b)); issued += 1
                    A(rd_w(ns, nt, T, 0, 1 - b)); A(rd_w(ns, nt, T, 1, 1 - b)); issued += 2
                elif T == 1:
                    A("s_waitcnt lgkmcnt(0)")
                    A("s_barrier")
                    if not last:
                        A(rd_x(ns, nt, 1 - b))
                        for TT in (0, 1):
                            A(rd_w(ns, nt, TT, 0, 1 - b)); A(rd_w(ns, nt, TT, 1, 1 - b))
                    else:
                        for x in wp[:5]:
                            A(x)
                elif T >= 2:
                    if not last:
                        A(rd_w(ns, nt, T, 0, 1 - b)); A(rd_w(ns, nt, T, 1, 1 - b))
                    else:
                        for x in wp[5 * (T - 1):5 * T]:
                            A(x)
    stamp(A, 4)
    tag_issue(A)
    P = 96
    E, F, TT_ = 208, 228, 248

    def phi_mfma(src, acc):
        seen = set()
        for fi, (Tp, u) in enumerate(frags):
            c = vr(acc + 16 * Tp, 16) if Tp in seen else "0"
            seen.add(Tp)
            A(f"v_mfma_f32_32x32x16_bf16 {vr(acc+16*Tp,16)}, {vr(WPF+4*fi,4)}, {vr(src+4*u,4)}, {c}")

    for i in range(40):
        A(f"v_cvt_pk_bf16_f32 v{P+i}, v{ACC+2*i}, v{ACC+2*i+1}")
    Lq = A.newlabel("L_q")
    A("s_cmp_eq_u32 s51, 0")
    A(f"s_cbranch_scc0 {Lq}")
    mq = A.mark()
    for i in range(20):
        A(f"v_permlane32_swap_b32 v{P+i}, v{P+20+i}")
    tag_check(A, 10)
    phi_mfma(P, ACC)
    for i in range(5):
        A(f"ds_write_b128 v2, {vr(P+20+4*i,4)} offset:{16*i}")
    A("ds_write_b64 v8, v[4:5] offset:160")
    for grp, ph in ((0, 64), (1, 96)):
        softmax20(A, ACC + 20 * grp, E, F, TT_, ph)
        for i in range(5):
            A(f"ds_write_b128 v3, {vr(ph+4*i,4)} offset:{80*grp+16*i}")
    stamp(A, 5)
    lds_arrive(A, 10, L_SYNC)
    A("s_lshl_b32 s57, s50, 2")
    A("s_add_u32 s57, s57, s48")
    A("s_lshl_b32 s57, s57, 4")
    A("s_add_u32 s57, s57, s49")
    A("s_lshl_b32 s59, s57, 7")
    A(f"s_add_u32 s59, s59, {F1:#x}")
    A("s_mul_i32 s57, s57, 2560")
    A(f"s_add_u32 s57, s57, {WS_PART:#x}")
    A("v_lshlrev_b32 v2, 4, v1")
    A("v_lshlrev_b32 v3, 3, v1")
    lds_wait(A, 10, None, 4)
    FA = 64
    T = Lgkm(A)
    for u in range(10):
        if u < 8:
            for half in range(2):
                o = (16 * u + 4 * half)
                T.issue(f"ds_read_b64_tr_b16 {vr(FA+12*u+2*half,2)}, v6 offset:{o*336}")
                T.issue(f"ds_read_b64_tr_b16 {vr(FA+12*u+4+2*half,2)}, v6 offset:{o*336+32}")
                T.issue(f"ds_read_b64_tr_b16 {vr(FA+12*u+8+2*half,2)}, v7 offset:{o*176}", u)
        if u >= 2:
            uu = u - 2
            T.wait(uu)
            for TT in range(2):
                c = vr(ACC + 16 * TT, 16) if uu else "0"
                A(f"v_mfma_f32_32x32x16_bf16 {vr(ACC+16*TT,16)}, {vr(FA+12*uu+4*TT,4)}, {vr(FA+12*uu+8,4)}, {c}")
    o_index(A)
    for i in range(10):
        A(f"v_cvt_pk_bf16_f32 v{48+i}, v{ACC+2*i}, v{ACC+2*i+1}")
    A(f"buffer_store_dwordx2 v[56:57], v3, s[{SWS}:{SWS+3}], s57 offen offset:2048{SC}")
    A("s_mov_b32 exec_lo, 0x00ffffff")
    A("s_mov_b32 exec_hi, 0x00ffffff")
    A(f"buffer_store_dwordx4 v[48:51], v2, s[{SWS}:{SWS+3}], s57 offen{SC}")
    A(f"buffer_store_dwordx4 v[52:55], v2, s[{SWS}:{SWS+3}], s57 offen offset:1024{SC}")
    A("s_mov_b64 exec, -1")
    stamp(A, 6)
    role_o(A)
    end_wave(A)
    A.label(Lq)
    hq = A.mark()
    A("s_nop 1")
    tag_check(A, 10)
    phi_mfma(P, ACC)
    A(f"v_and_b32 v{t0}, 31, v1")
    A(f"v_lshrrev_b32 v{t1}, 5, v1")
    A(f"s_mov_b32 s57, {4*64*1280}")
    A(f"v_mul_lo_u32 v{t1}, s57, v{t1}")
    A(f"v_lshl_add_u32 v2, v{t0}, 4, v{t1}")
    A(f"v_lshl_add_u32 v3, v{t0}, 3, v{t1}")
    A("s_lshl_b32 s58, s49, 2")
    A("s_add_u32 s58, s58, s48")
    for x in wphi_reads(1):
        A(x)
    A("s_lshl_b32 s59, s50, 6")
    A("s_add_u32 s59, s59, s58")
    A("s_lshl_b32 s59, s59, 7")
    A(f"s_add_u32 s59, s59, {F2:#x}")
    A("s_lshl_b32 s57, s50, 9")
    A("s_add_u32 s57, s57, s58")
    A("s_mul_i32 s57, s57, 1280")
    A("s_waitcnt lgkmcnt(0)")
    phi_mfma(P + 20, 208)
    for hs in range(4):
        x = (ACC, ACC + 20, 208, 228)[hs]
        o = 64 + 10 * hs if hs < 3 else 96
        for i in range(10):
            A(f"v_cvt_pk_bf16_f32 v{o+i}, v{x+2*i}, v{x+2*i+1}")
        A(f"buffer_store_dwordx4 {vr(o,4)}, v2, s[{SWS}:{SWS+3}], s57 offen{SC}")
        A(f"buffer_store_dwordx4 {vr(o+4,4)}, v2, s[{SWS}:{SWS+3}], s57 offen offset:512{SC}")
        A(f"buffer_store_dwordx2 {vr(o+8,2)}, v3, s[{SWS}:{SWS+3}], s57 offen offset:1024{SC}")
        if hs < 3:
            A(f"s_add_u32 s57, s57, {64*1280}")
    stamp(A, 6)
    set_flag(A, 10, "s59")
    stamp(A, 7)
    A.check_seam(mq, hq)
    A("s_setprio 0")
    A("s_cmp_lt_u32 s99, 4")
    A("s_cbranch_scc1 L_wo")
    end_wave(A)


def role_o(A):
    NT = 4
    RAW, X, PQ = 64, 104, 128
    A("s_mul_i32 s53, s48, 20480")
    A(f"s_add_u32 s53, s53, {L_WOB}")
    A("v_and_b32 v4, 31, v1")
    A("v_lshl_add_u32 v5, v4, 4, s53")
    A("v_lshl_add_u32 v6, v4, 3, s53")
    A("v_and_b32 v7, 32, v1")
    A("v_lshlrev_b32 v7, 26, v7")
    A("s_lshl_b32 s54, s48, 2")
    A(f"s_add_u32 s54, s54, {L_SYNC+16}")
    A("s_mov_b32 s58, 0xffff0000")
    for t in range(NT):
        A(f"v_mov_b32 v{PQ+12*t+10}, 0")
        A(f"v_mov_b32 v{PQ+12*t+11}, 0")
    set_flag(A, 10, "s59")
    lds_arrive(A, 14, L_SYNC + 4)
    stamp(A, 7)
    lds_wait(A, 14, "s54", 1)
    stampw(A, 8)
    T = Lgkm(A)
    for t in range(NT):
        T.issue(f"ds_read_b128 {vr(RAW+10*t,4)}, v5 offset:{1280*t}")
        T.issue(f"ds_read_b128 {vr(RAW+10*t+4,4)}, v5 offset:{1280*t+512}")
        T.issue(f"ds_read_b64 {vr(RAW+10*t+8,2)}, v6 offset:{1280*t+1024}", t)
    A("s_lshl_b32 s57, s63, 2")
    A("s_mul_i32 s54, s57, 40960")
    A(f"s_add_u32 s54, s54, {WS_O:#x}")
    A("s_lshl_b32 s59, s62, 8")
    A("s_add_u32 s59, s59, s54")
    A("s_add_u32 s59, s59, 32768")
    A("s_lshl_b32 s57, s62, 10")
    A("s_add_u32 s54, s54, s57")
    A("s_lshl_b32 s50, s63, 5")
    A("s_add_u32 s50, s50, s62")
    A("s_lshl_b32 s50, s50, 7")
    A(f"s_add_u32 s50, s50, {F3:#x}")
    mx, se = 124, 126
    for t in range(NT):
        T.wait(t)
        for i in range(10):
            A(f"v_lshl_add_u32 v{X+2*i}, v{RAW+10*t+i}, 16, v7")
            A(f"v_bitop3_b32 v{X+2*i+1}, v{RAW+10*t+i}, s58, v7 bitop3:0x6a")
        A(f"v_max3_f32 v{mx}, v{X}, v{X+1}, v{X+2}")
        A(f"v_max3_f32 v{mx+1}, v{X+3}, v{X+4}, v{X+5}")
        for i in range(6, 18, 4):
            A(f"v_max3_f32 v{mx}, v{mx}, v{X+i}, v{X+i+1}")
            A(f"v_max3_f32 v{mx+1}, v{mx+1}, v{X+i+2}, v{X+i+3}")
        A(f"v_max3_f32 v{mx}, v{mx}, v{X+18}, v{X+19}")
        A(f"v_max_f32 v{mx}, v{mx}, v{mx+1}")
        A(f"v_mul_f32 v{mx}, s60, v{mx}")
        for i in range(0, 20, 2):
            A(f"v_pk_fma_f32 {vr(X+i,2)}, {vr(X+i,2)}, s[60:61], {vr(mx,2)} op_sel_hi:[1,1,0] neg_lo:[0,0,1] neg_hi:[0,0,1]")
        for i in range(20):
            A(f"v_exp_f32 v{X+i}, v{X+i}")
        A(f"v_pk_add_f32 {vr(se,2)}, {vr(X,2)}, {vr(X+2,2)}")
        A(f"v_pk_add_f32 {vr(mx,2)}, {vr(X+4,2)}, {vr(X+6,2)}")
        for i in range(8, 20, 4):
            A(f"v_pk_add_f32 {vr(se,2)}, {vr(se,2)}, {vr(X+i,2)}")
            A(f"v_pk_add_f32 {vr(mx,2)}, {vr(mx,2)}, {vr(X+i+2,2)}")
        A(f"v_pk_add_f32 {vr(se,2)}, {vr(se,2)}, {vr(mx,2)}")
        A(f"v_add_f32 v{se}, v{se}, v{se+1}")
        A(f"v_rcp_f32 v{se}, v{se}")
        for i in range(0, 20, 2):
            A(f"v_pk_mul_f32 {vr(X+i,2)}, {vr(X+i,2)}, {vr(se,2)} op_sel_hi:[1,0]")
        for i in range(10):
            A(f"v_cvt_pk_bf16_f32 v{PQ+12*t+i}, v{X+2*i}, v{X+2*i+1}")
    stamp(A, 9)
    A(f"v_add_u32 v8, {L_WOB+5120}, v2")
    A(f"v_add_u32 v9, {L_WOB+5120+40960}, v2")
    KF = 16
    A(f"v_mov_b32 v{KF+10}, 0")
    A(f"v_mov_b32 v{KF+11}, 0")
    lds_wait(A, 14, L_SYNC + 8, 4)
    stampw(A, 10)
    PR = 32
    T = Lgkm(A)
    for q in range(5):
        for p in range(4):
            T.issue(f"ds_read_b128 {vr(PR+16*q+4*p,4)}, v{8+(p>>1)} offset:{20480*(p&1)+1024*q}", q)
    for q in range(5):
        T.wait(q)
        b = PR + 16 * q
        for h in (0, 2):
            A(f"v_pk_add_f32 {vr(b+h,2)}, {vr(b+h,2)}, {vr(b+4+h,2)}")
            A(f"v_pk_add_f32 {vr(b+8+h,2)}, {vr(b+8+h,2)}, {vr(b+12+h,2)}")
        for h in (0, 2):
            A(f"v_pk_add_f32 {vr(b+h,2)}, {vr(b+h,2)}, {vr(b+8+h,2)}")
        for h in (0, 2):
            A(f"v_cvt_pk_bf16_f32 v{KF+2*q+h//2}, v{b+h}, v{b+h+1}")
    D = [176, 192, 208, 224]
    OP = [32, 40, 48, 56]

    def mf(t):
        for u in range(3):
            c = vr(D[t], 16) if u else "0"
            A(f"v_mfma_f32_32x32x16_bf16 {vr(D[t],16)}, {vr(KF+4*u,4)}, {vr(PQ+12*t+4*u,4)}, {c}")

    mf(0)
    mf(1)
    for t in range(NT):
        d, o = D[t], OP[t]
        A(f"v_add_f32 v10, 0x358637bd, v{d+12}")
        A("v_rcp_f32 v10, v10")
        if t + 2 < NT:
            mf(t + 2)
        for i in range(12):
            A(f"v_mul_f32 v{d+i}, v10, v{d+i}")
        for i in range(6):
            A(f"v_cvt_pk_bf16_f32 v{o+i}, v{d+2*i}, v{d+2*i+1}")
        A(f"buffer_store_dwordx4 {vr(o,4)}, v2, s[{SWS}:{SWS+3}], s54 offen{SC}")
        A("s_mov_b32 exec_hi, 0")
        A(f"buffer_store_dwordx2 {vr(o+4,2)}, v3, s[{SWS}:{SWS+3}], s59 offen{SC}")
        A("s_mov_b64 exec, -1")
        if t < NT - 1:
            A("s_add_u32 s54, s54, 40960")
            A("s_add_u32 s59, s59, 40960")
    stamp(A, 11)
    set_flag(A, 12, "s50")
    lds_arrive(A, 16, L_SYNC + 12)
    stamp(A, 12)


def b_channel(A):
    A("s_mul_i32 s49, s98, 80")
    A("s_sub_u32 s50, s99, 24")
    A("s_mul_i32 s50, s50, 6")
    A("s_add_u32 s49, s49, s50")
    A("s_add_u32 s49, s49, s48")
    A(f"s_mul_i32 s56, s48, {CV_LDS}")


def conv_load_h(A, v):
    SH = 40
    srd(A, SH, S_SSK, NB_SSK)
    A(f"v_lshlrev_b32 v{v}, 4, v1")
    A("s_lshl_b32 s50, s49, 12")
    A("s_add_u32 m0, s56, 64")
    for i in range(4):
        A(f"buffer_load_dwordx4 v{v}, s[{SH}:{SH+3}], s50 offen offset:{1024*i}{Opt.nt_s} lds")


def f0_lines(A, c0, c1, v):
    A(f"s_lshr_b32 s52, s{c0}, 6")
    A("s_mul_i32 s52, s52, 419431")
    A("s_lshr_b32 s52, s52, 16")
    A(f"s_lshr_b32 s53, s{c1}, 6")
    A("s_mul_i32 s53, s53, 419431")
    A("s_add_u32 s53, s53, 406324")
    A("s_lshr_b32 s53, s53, 16")
    A(f"v_lshrrev_b32 v{v}, 2, v1")
    A(f"v_add_u32 v{v}, s52, v{v}")
    A(f"v_min_u32 v{v}, s53, v{v}")
    A(f"v_lshlrev_b32 v{v}, 7, v{v}")
    A(f"s_mov_b32 s52, {F0:#x}")


def role_pre(A):
    SK, SV, SS = 32, 36, 40
    t0, t1, t2 = 2, 3, 4
    A("s_lshl_b32 s49, s98, 3")
    A("s_add_u32 s49, s49, s99")
    A("s_sub_u32 s49, s49, 24")
    A("s_mul_i32 s49, s49, 5")
    A("s_add_u32 s49, s49, s48")
    A("s_and_b32 s50, s49, 31")
    A("s_lshr_b32 s51, s49, 5")
    A(f"s_mul_i32 s52, s50, {64*1280}")
    A("s_lshl_b32 s53, s51, 7")
    A("s_add_u32 s52, s52, s53")
    A(f"v_lshrrev_b32 v{t0}, 3, v1")
    A(f"v_and_b32 v{t1}, 7, v1")
    A(f"v_mul_u32_u24 v{t2}, {8*1280}, v{t0}")
    A(f"v_lshl_add_u32 v{t2}, v{t1}, 4, v{t2}")
    A(f"v_add_u32 v5, s52, v{t2}")
    A(f"v_subrev_u32 v6, {3*1280}, v5")
    A(f"v_subrev_u32 v7, {2*1280}, v5")
    A(f"v_subrev_u32 v8, {1280}, v5")
    A(f"v_lshlrev_b32 v9, 6, v{t1}")
    A("s_lshl_b32 s54, s51, 9")
    A(f"s_movk_i32 s55, {4*1280}")
    A("s_waitcnt lgkmcnt(0)")
    srd(A, SK, S_BK, NB_X)
    srd(A, SV, S_BV, NB_X)
    srd(A, SS, S_SH, NB_SH)
    WR, KR, VR = 16, 32, 76
    for i in range(4):
        A(f"buffer_load_dwordx4 {vr(WR+4*i,4)}, v9, s[{SS}:{SS+3}], s54 offen offset:{16*i}")
    for i in range(3):
        A(f"buffer_load_dwordx4 {vr(KR+4*i,4)}, v{6+i}, s[{SK}:{SK+3}], 0 offen{Opt.nt_s}")

    order = []

    def ld(kind, i):
        so = "0" if i < 4 else "s55"
        if kind == "k":
            A(f"buffer_load_dwordx4 {vr(KR+12+4*i,4)}, v5, s[{SK}:{SK+3}], {so} offen offset:{1280*(i&3)}{Opt.nt_s}")
        else:
            A(f"buffer_load_dwordx4 {vr(VR+4*i,4)}, v5, s[{SV}:{SV+3}], {so} offen offset:{1280*(i&3)}{Opt.nt_s}")
        order.append((kind, i))

    for i in (5, 6, 7):
        ld("k", i)
    ld("k", 0); ld("v", 0); ld("k", 1); ld("v", 1)
    todo = [("k", 2), ("v", 2), ("k", 3), ("v", 3), ("k", 4), ("v", 4), ("v", 5), ("v", 6), ("v", 7)]
    stamp(A, 2)
    srd(A, SWS, S_WS, WS_SIZE)
    A("s_mul_i32 s56, s48, 8320")
    A(f"s_add_u32 s56, s56, {B_PRE}")
    A(f"v_mul_u32_u24 v10, 1040, v{t1}")
    A(f"v_lshl_add_u32 v10, v{t0}, 4, v10")
    A("v_add_u32 v10, s56, v10")
    A("v_lshrrev_b32 v11, 4, v1")
    A("v_lshlrev_b32 v11, 8, v11")
    A("v_and_b32 v12, 3, v1")
    A("v_lshl_add_u32 v11, v12, 6, v11")
    A("v_bfe_u32 v12, v1, 2, 2")
    A("v_lshl_add_u32 v11, v12, 3, v11")
    A("v_add_u32 v11, s56, v11")
    A(f"v_lshlrev_b32 v12, 12, v{t0}")
    A(f"v_lshl_add_u32 v12, v{t1}, 4, v12")
    A("s_lshl_b32 s57, s51, 18")
    A("s_lshl_b32 s58, s50, 7")
    A("s_add_u32 s57, s57, s58")
    A(f"s_add_u32 s57, s57, {WS_KVT:#x}")
    A("s_mov_b32 s59, 0xffff0000")
    WF, KF, VF, TA, OUT = 108, 140, 172, 180, 196

    def unpack(dst, src, n):
        for i in range(n):
            A(f"v_lshlrev_b32 v{dst+2*i}, 16, v{src+i}")
            A(f"v_and_b32 v{dst+2*i+1}, s59, v{src+i}")

    A(f"s_waitcnt vmcnt({3+len(order)})")
    ld(*todo.pop(0)); ld(*todo.pop(0))
    for c in range(8):
        A(f"v_lshlrev_b32 v{WF+c}, 16, v{WR+2*c}")
        A(f"v_and_b32 v{WF+8+c}, s59, v{WR+2*c}")
        A(f"v_lshlrev_b32 v{WF+16+c}, 16, v{WR+2*c+1}")
        A(f"v_and_b32 v{WF+24+c}, s59, v{WR+2*c+1}")
    A(f"s_waitcnt vmcnt({len(order)})")
    ld(*todo.pop(0)); ld(*todo.pop(0))
    for i in range(3):
        unpack(KF + 8 * i, KR + 4 * i, 4)
    for i in range(8):
        need = max(order.index(("k", i)), order.index(("v", i)))
        A(f"s_waitcnt vmcnt({len(order)-1-need})")
        for _ in range(2):
            if todo:
                ld(*todo.pop(0))
        if i == 2:
            b_channel(A)
            conv_load_h(A, 13)
            order.extend([None] * 4)
        unpack(KF + 8 * ((i + 3) & 3), KR + 12 + 4 * i, 4)
        unpack(VF, VR + 4 * i, 4)
        acc = TA + 8 * (i & 1)
        for j in (3, 2, 1, 0):
            kk = KF + 8 * ((i + 3 - j) & 3)
            for c in range(0, 8, 2):
                if j == 3:
                    A(f"v_pk_mul_f32 {vr(acc+c,2)}, {vr(kk+c,2)}, {vr(WF+8*j+c,2)}")
                else:
                    A(f"v_pk_fma_f32 {vr(acc+c,2)}, {vr(kk+c,2)}, {vr(WF+8*j+c,2)}, {vr(acc+c,2)}")
        for c in range(0, 8, 2):
            A(f"v_pk_mul_f32 {vr(acc+c,2)}, {vr(acc+c,2)}, {vr(VF+c,2)}")
        if i & 1:
            for c in range(8):
                A(f"v_cvt_pk_bf16_f32 v{OUT+4*c+i//2}, v{TA+c}, v{TA+8+c}")
    stamp(A, 3)
    for c in range(8):
        A(f"ds_write_b128 v10, {vr(OUT+4*c,4)} offset:{128*c}")
    A("s_waitcnt lgkmcnt(0)")
    T = Lgkm(A)
    for i in range(8):
        T.issue(f"ds_read_b64_tr_b16 {vr(16+4*i,2)}, v11 offset:{1040*i}")
        T.issue(f"ds_read_b64_tr_b16 {vr(18+4*i,2)}, v11 offset:{1040*i+32}", i)
    for i in range(8):
        T.wait(i)
        A(f"buffer_store_dwordx4 {vr(16+4*i,4)}, v12, s[{SWS}:{SWS+3}], s57 offen{SC}")
        if i < 7:
            A(f"s_add_u32 s57, s57, {8*4096}")
    A("s_waitcnt vmcnt(0)")
    stamp(A, 4)


def role_helper(A):
    SD = 40
    A("s_setprio 3")
    A("s_waitcnt lgkmcnt(0)")
    srd(A, SWS, S_WS, WS_SIZE)
    srd(A, SD, S_DBG, 256)
    Lz = A.newlabel("L_nz")
    A("s_cmp_eq_u32 s2, 192")
    A(f"s_cbranch_scc0 {Lz}")
    A("s_cmp_eq_u32 s48, 5")
    A(f"s_cbranch_scc0 {Lz}")
    A(f"s_mov_b32 s57, {WS_EPOCH:#x}")
    A("s_mov_b64 exec, 1")
    A(f"buffer_load_dword v4, off, s[{SWS}:{SWS+3}], s57{SC}")
    A("s_waitcnt vmcnt(0)")
    A("v_add_u32 v4, 1, v4")
    A("v_not_b32 v5, v4")
    A(f"buffer_store_dwordx2 v[4:5], off, s[{SD}:{SD+3}], 0{SC}")
    A(f"buffer_store_dword v4, off, s[{SWS}:{SWS+3}], s57{SC}")
    A("s_mov_b64 exec, -1")
    stamp(A, 2)
    A.label(Lz)
    if Opt.codepf:
        Lp = A.newlabel("L_npf")
        A("s_cmp_eq_u32 s48, 6")
        A(f"s_cbranch_scc0 {Lp}")
        A("s_getpc_b64 s[50:51]")
        A.label("L_pc")
        A(f"s_sub_u32 s50, s50, L_pc-{NAME}_kernel")
        A("s_subb_u32 s51, s51, 0")
        A("s_sub_u32 s52, s99, 24")
        A("s_lshl_b32 s52, s52, 13")
        A("v_lshl_add_u32 v2, v1, 7, s52")
        A(f"v_min_u32 v2, L_code_end-{NAME}_kernel-4, v2")
        A("global_load_dword v24, v2, s[50:51]")
        if Opt.womall:
            srd(A, 36, S_WO, NB_WO)
            A("s_sub_u32 s52, s2, 192")
            A("s_lshl_b32 s52, s52, 14")
            A("s_add_u32 s53, s52, 8192")
            A("v_lshlrev_b32 v2, 7, v1")
            A("buffer_load_dword v25, v2, s[36:39], s52 offen")
            A("buffer_load_dword v26, v2, s[36:39], s53 offen")
        A.label(Lp)
    A("s_setprio 0")
    L6 = A.newlabel("L_h6")
    Lx = A.newlabel("L_h67")
    A("s_cmp_eq_u32 s48, 5")
    A(f"s_cbranch_scc0 {L6}")
    b_channel(A)
    conv_load_h(A, 2)
    A("s_branch L_bconv")
    A.label(L6)
    A("s_mul_i32 s54, s98, 80")
    A("s_sub_u32 s50, s99, 24")
    A("s_mul_i32 s55, s50, 6")
    A("s_add_u32 s54, s54, s55")
    A("s_add_u32 s55, s54, 5")
    f0_lines(A, 54, 55, 12)
    A("s_lshl_b32 s58, s98, 3")
    A("s_add_u32 s58, s58, s50")
    A("s_lshl_b32 s58, s58, 7")
    A(f"s_add_u32 s58, s58, {F0:#x}")
    Lt = A.newlabel("L_h7")
    A("s_cmp_eq_u32 s48, 7")
    A(f"s_cbranch_scc0 {Lt}")
    A(f"s_mov_b64 s[{TAG}:{TAG+1}], 0")
    tag_check(A, 8)
    A.label(Lt)
    A("s_barrier")
    A("s_cmp_eq_u32 s48, 7")
    A(f"s_cbranch_scc0 {Lx}")
    set_flag(A, 8, "s58")
    poll(A, 14, 12, "s52", sleep=4)
    A.label(Lx)
    A("s_barrier")
    A("s_branch L_post")


def conv_setup(A):
    A("v_lshlrev_b32 v2, 4, v1")
    A("s_lshl_b32 s52, s49, 1")
    A("s_and_b32 s52, s52, 0xfffffffc")
    A(f"s_load_dword s55, s[{S_SSD}:{S_SSD+1}], s52")
    A(f"s_load_dword s54, s[{S_SSK}:{S_SSK+1}], s50")
    A(f"s_add_u32 s51, s50, {WS_KVT:#x}")
    for i in range(4):
        A(f"v_mov_b32 v{4+i}, 0")
    A("v_add_u32 v3, s56, v2")
    A("s_mov_b64 exec, 0xf")
    A("ds_write_b128 v3, v[4:7]")
    A("s_mov_b32 exec_lo, -1")
    A(f"ds_write_b128 v3, v[4:7] offset:{64+4096}")
    A("s_mov_b64 exec, -1")
    A("v_and_b32 v8, 1, v1")
    A("v_lshlrev_b32 v8, 5, v8")
    A("v_bfe_u32 v9, v1, 4, 1")
    A("v_lshl_add_u32 v8, v9, 4, v8")
    A("v_bfe_u32 v9, v1, 1, 1")
    A("v_lshl_add_u32 v8, v9, 3, v8")
    A("v_lshrrev_b32 v10, 5, v1")
    A("v_lshl_add_u32 v8, v10, 6, v8")
    A("v_bfe_u32 v9, v1, 2, 2")
    A("v_lshlrev_b32 v9, 3, v9")
    A("v_sub_u32 v8, v8, v9")
    A("s_add_u32 s57, s56, 32")
    A("v_add_u32 v8, s57, v8")
    A("v_bfe_u32 v9, v1, 4, 1")
    A("v_lshlrev_b32 v9, 8, v9")
    A("v_and_b32 v11, 3, v1")
    A("v_lshl_add_u32 v9, v11, 6, v9")
    A("v_bfe_u32 v11, v1, 2, 2")
    A("v_lshl_add_u32 v9, v11, 4, v9")
    A("v_lshlrev_b32 v11, 6, v10")
    A("v_sub_u32 v9, v9, v11")
    A(f"s_add_u32 s57, s56, {64+4096+512-384}")
    A("v_add_u32 v9, s57, v9")
    A("v_bfe_u32 v11, v1, 2, 1")
    A("v_bfe_u32 v12, v1, 3, 2")
    A("v_lshl_add_u32 v11, v11, 2, v12")
    A("v_and_b32 v12, 35, v1")
    A("v_lshl_add_u32 v11, v12, 3, v11")
    A("v_and_b32 v12, 1, v11")
    A("v_lshlrev_b32 v12, 4, v12")
    A("v_mov_b32 v13, 0xffff")
    A("v_lshlrev_b32 v13, v12, v13")
    A("v_lshrrev_b32 v11, 1, v11")
    for i in range(4):
        A(f"v_cmp_eq_u32 vcc, {i}, v11")
        A(f"v_cndmask_b32 v{MK+i}, 0, v13, vcc")
    A("v_bfe_u32 v11, v1, 4, 1")
    A("v_and_b32 v12, 3, v1")
    A("v_lshl_add_u32 v11, v11, 2, v12")
    A("v_add_u32 v11, 7, v11")
    A("v_and_b32 v12, 3, v11")
    A("v_bfe_u32 v13, v11, 2, 1")
    A("v_lshl_add_u32 v12, v13, 4, v12")
    A("v_and_b32 v13, 12, v1")
    A("v_add3_u32 v12, v12, v13, 32")
    A("v_subrev_u32 v13, 32, v1")
    A("v_cmp_gt_u32 vcc, 32, v1")
    A("v_cndmask_b32 v14, v13, v12, vcc")
    A("v_lshlrev_b32 v14, 2, v14")
    A("s_mov_b32 s58, 0x1111")
    A("s_mov_b32 s59, 0")


MK = 16


def role_conv(A):
    A("s_barrier")
    conv_setup(A)
    A.label("L_conv")
    NR = 20
    RA, RB, RS = 64, 144, 224
    ACCS = (32, 48)
    CAR, PUL, TMP = 20, (21, 22), 23
    OUT = (24, 28)

    def rdA(m, reg, tag):
        return [(f"ds_read_b64_tr_b16 {vr(reg,2)}, v8 offset:{128*m+32}", None),
                (f"ds_read_b64_tr_b16 {vr(reg+2,2)}, v8 offset:{128*m}", tag)]

    def rdB(b, reg, tag):
        return [(f"ds_read_b128 {vr(reg,4)}, v9 offset:{128*b}", tag)]

    def xload():
        A(f"s_add_u32 m0, s56, {64+4096+512}")
        for i in range(4):
            A(f"buffer_load_dwordx4 v2, s[{SWS}:{SWS+3}], s51 offen offset:{1024*i}{SC} lds")

    Lb, Lg = A.newlabel("L_cb"), A.newlabel("L_cg")
    A("s_waitcnt vmcnt(0)")
    A("s_cmp_ge_u32 s99, 24")
    A(f"s_cbranch_scc1 {Lb}")
    tag_check(A, 22)
    A(f"buffer_load_dwordx2 v[22:23], v12, s[{SWS}:{SWS+3}], s52 offen{SC}")
    A("s_barrier")
    A("s_waitcnt vmcnt(0)")
    A(f"v_cmp_eq_u64 vcc, s[{TAG}:{TAG+1}], v[22:23]")
    A("s_cmp_eq_u64 vcc, -1")
    Lx = A.newlabel("L_cx")
    A(f"s_cbranch_scc1 {Lx}")
    poll(A, 22, 12, "s52", sleep=8)
    A.label(Lx)
    stamp(A, 8)
    xload()
    A.label(Lb)
    A("s_waitcnt lgkmcnt(0)")
    A("s_lshl_b32 s54, s54, 16")
    A("s_lshl_b32 s53, s55, 16")
    A("s_and_b32 s55, s55, 0xffff0000")
    A("s_bitcmp1_b32 s49, 0")
    A("s_cselect_b32 s53, s55, s53")
    A("v_mov_b32 v15, s54")
    A("v_add_f32 v15, s53, v15")
    A("v_cvt_pk_bf16_f32 v15, v15, v15")
    T = Lgkm(A)
    for m in range(NR):
        for x, tg in rdA(m, RA + 4 * m, ("A", m)):
            T.issue(x, tg)
    T.wait(("A", 0))
    for k in range(4):
        A(f"v_bfi_b32 v{RA+k}, v{MK+k}, v15, v{RA+k}")
    T.all()
    A("s_cmp_ge_u32 s99, 24")
    A(f"s_cbranch_scc0 {Lg}")
    A("s_barrier")
    stamp(A, 8)
    xload()
    A.label(Lg)
    A(f"s_add_u32 s51, s50, {WS_YT:#x}")
    A(f"v_mov_b32 v{PUL[1]}, 0")

    sched = []
    for i in range(8):
        ms = list(range(4 * i + 4))
        res = [m for m in ms if m < NR and 4 * i + 3 - m < NR]
        stm = [m for m in ms if m not in res]
        sched += [(i, m) for m in res + stm]
    streams = []
    for k, (i, m) in enumerate(sched):
        b = 4 * i + 3 - m
        if m >= NR:
            streams.append((k, "A", m))
        elif b >= NR:
            streams.append((k, "B", b))
    slot_of = {k: n % 8 for n, (k, _, _) in enumerate(streams)}

    def epilogue(i):
        V = ACCS[i & 1]
        own = [f"v_add_f32_dpp v{V+4*j}, v{V+4*j+k}, v{V+4*j} row_shr:{4*k} row_mask:0xf bank_mask:0xf"
               for k in (1, 2, 3) for j in range(4)]
        car = [f"v_add_f32_dpp v{CAR}, v{V+12+k}, v{CAR} row_shl:{16-4*k} row_mask:0xf bank_mask:0xf" for k in (1, 2, 3)]
        L = [f"v_mov_b32 v{CAR}, 0"] + own[0:2] + car[0:1] + own[2:4] + car[1:2] + own[4:6] + car[2:3]
        L.append(("ds", f"ds_bpermute_b32 v{PUL[i&1]}, v14, v{CAR}", ("P", i)))
        L += own[6:]
        for k in (1, 2, 3):
            for j in (0, 1, 2):
                L.append(f"v_add_f32_dpp v{V+4*j+4}, v{V+4*j+k}, v{V+4*j+4} row_shl:{16-4*k} row_mask:0xf bank_mask:0xf")
        o = OUT[(i >> 1) & 1] + 2 * (i & 1)
        L.append(f"v_cvt_pk_bf16_f32 v{o+1}, v{V+8}, v{V+12}")
        L.append(("wait", ("P", i)))
        L.append(f"v_cndmask_b32 v{TMP}, v{PUL[i&1]}, v{PUL[1-(i&1)]}, s[58:59]")
        L.append(f"v_add_f32 v{V}, v{V}, v{TMP}")
        L.append(f"v_cvt_pk_bf16_f32 v{o}, v{V}, v{V+4}")
        if i & 1:
            L.append(f"buffer_store_dwordx4 {vr(OUT[(i>>1)&1],4)}, v2, s[{SWS}:{SWS+3}], s51 offen offset:{1024*(i>>1)}{SC}")
        return L

    def emit(x):
        if isinstance(x, tuple):
            if x[0] == "ds":
                T.issue(x[1], x[2])
            else:
                T.wait(x[1])
        else:
            A(x)

    A("s_waitcnt vmcnt(0)")
    stampw(A, 9)
    for b in range(8):
        for x, tg in rdB(b, RB + 4 * b, ("B", b)):
            T.issue(x, tg)
    nres = 8
    nst = 0
    fill = []
    first = {}
    for k, (i, m) in enumerate(sched):
        first.setdefault(i, k)
    for k, (i, m) in enumerate(sched):
        V = ACCS[i & 1]
        b = 4 * i + 3 - m
        if k == first[i]:
            while fill:
                emit(fill.pop(0))
            if i > 0:
                fill = epilogue(i - 1)
        if k in slot_of:
            T.wait(("S", k))
        if b < NR:
            T.wait(("B", b))
        ra = RA + 4 * m if m < NR else RS + 4 * slot_of[k]
        rb = RB + 4 * b if b < NR else RS + 4 * slot_of[k]
        c = vr(V, 16) if k != first[i] else "0"
        A(f"v_mfma_f32_32x32x16_bf16 {vr(V,16)}, {vr(ra,4)}, {vr(rb,4)}, {c}")
        budget = 5
        if nres < NR:
            for x, tg in rdB(nres, RB + 4 * nres, ("B", nres)):
                T.issue(x, tg)
            nres += 1
            budget -= 1
        elif nst < len(streams) and (nst < 8 or streams[nst - 8][0] < k) and streams[nst][0] - k <= 10:
            kk, kind, fr = streams[nst]
            for x, tg in (rdA if kind == "A" else rdB)(fr, RS + 4 * slot_of[kk], ("S", kk)):
                T.issue(x, tg)
                budget -= 1
            nst += 1
        if k > first[i]:
            for _ in range(budget):
                if fill:
                    emit(fill.pop(0))
    while fill:
        emit(fill.pop(0))
    stampw(A, 10)
    T.done = T.n if Ctx.stamps else T.done
    for x in epilogue(7):
        emit(x)
    A("s_waitcnt vmcnt(0)")
    stamp(A, 11)
    A("s_cmp_ge_u32 s99, 24")
    A("s_cbranch_scc1 L_bdone")
    A(f"v_mov_b32 v10, {L_SYNC+12}")
    A("v_mov_b32 v11, 1")
    A("s_mov_b64 exec, 1")
    A("ds_add_rtn_u32 v12, v10, v11")
    A("s_mov_b64 exec, -1")
    A("s_lshl_b32 s52, s98, 4")
    A("s_add_u32 s52, s52, s99")
    A("s_lshl_b32 s52, s52, 7")
    A(f"s_add_u32 s52, s52, {F4+8*128:#x}")
    A("s_waitcnt lgkmcnt(0)")
    A("v_readfirstlane_b32 s53, v12")
    A("s_cmp_eq_u32 s53, 3")
    A("s_cbranch_scc0 L_bend")
    set_flag(A, 10, "s52")
    A("s_branch L_bend")
    A.label("L_bdone")


def role_post(A):
    SQ, SO = 32, 36
    A.label("L_post")
    A("s_lshl_b32 s48, s48, 2")
    A("s_lshr_b32 s48, 0x43002100, s48")
    A("s_and_b32 s48, s48, 7")
    A("s_mul_i32 s49, s98, 40")
    A("s_sub_u32 s50, s99, 24")
    A("s_mul_i32 s50, s50, 5")
    A("s_add_u32 s49, s49, s50")
    A("s_add_u32 s49, s49, s48")
    A("s_and_b32 s50, s49, 31")
    A("s_lshr_b32 s51, s49, 5")
    A("v_lshrrev_b32 v2, 3, v1")
    A("v_and_b32 v3, 7, v1")
    A("v_lshlrev_b32 v4, 12, v2")
    A("v_lshl_add_u32 v4, v3, 4, v4")
    A("s_lshl_b32 s52, s51, 18")
    A("s_lshl_b32 s53, s50, 7")
    A("s_add_u32 s52, s52, s53")
    A(f"s_add_u32 s52, s52, {WS_YT:#x}")
    A("s_mul_i32 s56, s48, 8320")
    A(f"s_add_u32 s56, s56, {B_PRE}")
    A("s_lshr_b32 s54, s50, 3")
    A("s_lshl_b32 s54, s54, 9")
    A("s_bfe_u32 s55, s50, 0x10002")
    A("s_lshl_b32 s55, s55, 4")
    A("s_add_u32 s54, s54, s55")
    A("s_bfe_u32 s55, s50, 0x10001")
    A("s_lshl_b32 s55, s55, 7")
    A("s_add_u32 s54, s54, s55")
    A("s_and_b32 s55, s50, 1")
    A("s_lshl_b32 s55, s55, 1")
    A("s_add_u32 s54, s54, s55")
    A("v_and_b32 v5, 3, v2")
    A("v_lshrrev_b32 v6, 2, v2")
    A("v_lshl_add_u32 v5, v5, 5, v6")
    A("v_mul_u32_u24 v6, 1280, v5")
    A("v_lshlrev_b32 v7, 1, v6")
    A("v_lshl_add_u32 v6, v3, 4, v6")
    A("v_lshl_add_u32 v7, v3, 4, v7")
    A("s_mul_i32 s54, s54, 1280")
    A("s_lshl_b32 s53, s51, 7")
    A("s_lshl_b32 s55, s54, 1")
    A("s_add_u32 s54, s54, s53")
    A("s_add_u32 s55, s55, s53")
    A("s_add_u32 s55, s55, 1280")
    srd(A, SQ, S_BQ, NB_X)
    srd(A, SO, S_OUT, NB_OUT)
    QR, YR = 16, 48
    rows = [0, 4, 8, 12, 256, 260, 264, 268]
    if Opt.wopf == "b":
        Ln = A.newlabel("L_npf")
        A("s_cmp_ge_u32 s48, 3")
        A(f"s_cbranch_scc0 {Ln}")
        srd(A, 40, S_WO, NB_WO)
        A("s_sub_u32 s57, s99, 24")
        A("s_lshl_b32 s57, s57, 1")
        A("s_add_u32 s57, s57, s48")
        A("s_sub_u32 s57, s57, 3")
        A("s_lshl_b32 s57, s57, 13")
        A("v_lshlrev_b32 v8, 7, v1")
        for i in range(7):
            A(f"buffer_load_dword v{200+i}, v8, s[40:43], s57 offen")
            A(f"s_add_u32 s57, s57, {16*8192}")
        A.label(Ln)
    for i in range(8):
        A(f"s_add_u32 s57, s54, {rows[i]*1280}")
        A(f"buffer_load_dwordx4 {vr(QR+4*i,4)}, v6, s[{SQ}:{SQ+3}], s57 offen{Opt.nt_s}")
    A("s_mov_b32 s59, 0xffff0000")
    QF = 128
    A("s_waitcnt vmcnt(0)")
    for i in range(32):
        A(f"v_lshlrev_b32 v{QF+2*i}, 16, v{QR+i}")
        A(f"v_and_b32 v{QF+2*i+1}, s59, v{QR+i}")
    A("s_lshl_b32 s57, s98, 4")
    A("s_sub_u32 s58, s57, 16")
    A("v_min_u32 v12, 47, v1")
    A("v_add_u32 v12, s58, v12")
    A("v_max_i32 v12, 0, v12")
    A("v_min_u32 v12, 127, v12")
    A("v_lshlrev_b32 v12, 7, v12")
    A("s_add_u32 s57, s57, s99")
    A("s_lshl_b32 s57, s57, 7")
    A(f"s_add_u32 s57, s57, {F4-24*128:#x}")
    A(f"s_mov_b32 s58, {F4:#x}")
    Lx = A.newlabel("L_p7")
    A("s_barrier")
    A("s_cmp_eq_u32 s48, 4")
    A(f"s_cbranch_scc0 {Lx}")
    set_flag(A, 8, "s57")
    poll(A, 14, 12, "s58", sleep=4)
    A.label(Lx)
    A("s_barrier")
    stamp(A, 12)
    for i in range(8):
        A(f"v_xor_b32 v8, {16*i}, v4")
        A(f"s_add_u32 m0, s56, {1024*i}")
        A(f"buffer_load_dwordx4 v8, s[{SWS}:{SWS+3}], s52 offen{SC} lds")
        if i < 7:
            A(f"s_add_u32 s52, s52, {8*4096}")
    A("v_xor_b32 v8, v2, v3")
    A("v_lshlrev_b32 v8, 4, v8")
    A("v_lshl_add_u32 v8, v3, 10, v8")
    A("v_add_u32 v8, s56, v8")
    A("s_waitcnt vmcnt(0)")
    for c in range(8):
        A(f"ds_read_b128 {vr(YR+4*c,4)}, v8 offset:{128*c}")
    A("s_waitcnt lgkmcnt(0)")
    stamp(A, 13)
    YF, OUT = 80, 96
    for i in range(8):
        for c in range(8):
            if i & 1:
                A(f"v_and_b32 v{YF+c}, s59, v{YR+4*c+i//2}")
            else:
                A(f"v_lshlrev_b32 v{YF+c}, 16, v{YR+4*c+i//2}")
        for c in range(0, 8, 2):
            A(f"v_pk_mul_f32 {vr(YF+c,2)}, {vr(YF+c,2)}, {vr(QF+8*i+c,2)}")
        for k in range(4):
            A(f"v_cvt_pk_bf16_f32 v{OUT+4*i+k}, v{YF+2*k}, v{YF+2*k+1}")
        A(f"s_add_u32 s57, s55, {rows[i]*2560}")
        A(f"buffer_store_dwordx4 {vr(OUT+4*i,4)}, v7, s[{SO}:{SO+3}], s57 offen{Opt.osc}")
    stamp(A, 14)


def build():
    A = Asm()
    k = NAME + "_kernel"
    A.raw(f".globl {k}")
    A.raw(".p2align 8")
    A.raw(f".type {k},@function")
    A.label(k)
    load_kernargs(A)
    stamp_init(A)
    A("v_lshrrev_b32 v2, 6, v0")
    A("v_and_b32 v1, 63, v0")
    A("v_readfirstlane_b32 s100, v2")
    A("s_and_b32 s98, s2, 7")
    A("s_lshr_b32 s99, s2, 3")
    A("s_cmp_ge_u32 s2, 192")
    A("s_cbranch_scc1 L_b")
    A("s_and_b32 s49, s2, 3")
    A("s_lshl_b32 s49, s49, 2")
    A("s_and_b32 s50, s99, 3")
    A("s_add_u32 s49, s49, s50")
    A("s_bfe_u32 s52, s2, 0x10002")
    A("s_lshr_b32 s53, s2, 5")
    A("s_lshl_b32 s54, s52, 1")
    A("s_add_u32 s54, s54, s53")
    A("s_lshl_b32 s55, s52, 2")
    A("s_add_u32 s55, s55, s53")
    A("s_sub_u32 s55, s55, 2")
    A("s_cmp_lt_u32 s2, 64")
    A("s_cselect_b32 s50, s54, s55")
    A("s_cselect_b32 s51, 1, 0")
    A("s_and_b32 s48, s100, 3")
    A("s_cmp_ge_u32 s100, 4")
    A("s_cbranch_scc1 L_c")
    role_loader(A)
    A.label("L_c")
    role_compute(A)
    A.label("L_b")
    A("s_cmp_ge_u32 s2, 256")
    A("s_cbranch_scc1 L_exit")
    A("s_mov_b32 s48, s100")
    A("s_cmp_ge_u32 s48, 5")
    A("s_cbranch_scc1 L_help")
    role_pre(A)
    A("s_branch L_bconv")
    A.label("L_help")
    role_helper(A)
    A.label("L_bconv")
    role_conv(A)
    A("s_bitcmp1_b32 0x32, s48")
    A("s_cbranch_scc1 L_bend")
    role_post(A)
    A.label("L_bend")
    end_wave(A)
    A.label("L_exit")
    A("s_endpgm")
    A.label("L_code_end")
    head = ["; generated by gen/f3.py",
            "; @launch grid=(256,1,1) block=(512,1,1) lds=163840"]
    txt = "\n".join(head) + '\n.amdgcn_target "amdgcn-amd-amdhsa--gfx950"\n.text\n' + A.text()
    txt += f'''.section .rodata,"a"
.p2align 6
.amdhsa_kernel {k}
  .amdhsa_next_free_vgpr 256
  .amdhsa_next_free_sgpr 102
  .amdhsa_accum_offset 256
  .amdhsa_group_segment_fixed_size 0
  .amdhsa_kernarg_size 104
  .amdhsa_user_sgpr_count 2
  .amdhsa_user_sgpr_kernarg_segment_ptr 1
  .amdhsa_system_sgpr_workgroup_id_x 1
.end_amdhsa_kernel
'''
    return txt


if __name__ == "__main__":
    args = sys.argv[2:]
    Ctx.stamps = "stamps" in args
    Opt.rot = "norot" not in args
    Opt.codepf = "nocodepf" not in args
    for a in args:
        if a.startswith("probe="):
            Opt.probe = tuple(int(x) for x in a[6:].split(","))
        if a == "nowomall":
            Opt.womall = False
        if a == "noppoll":
            Opt.ppoll = False
        if a.startswith("psleep="):
            Opt.psleep = int(a[7:])
        if a.startswith("wopf="):
            Opt.wopf = a[5:]
    for a in args:
        if a.startswith("LA="):
            Opt.LA = int(a[3:])
    open(sys.argv[1], "w").write(build())
```

```python
import sys
from asm import Asm, vr, ar, sr
from roles import (WS_PHIQ, WS_PART, WS_O, WS_KVT, WS_YT, WS_STAMP, WS_SIZE, S_X, S_W, S_WPHI, S_WO, S_BQ, S_BK, S_BV,
                   S_SH, S_SSK, S_SSD, S_OUT, S_DBG, S_WS, NB_X, NB_W, NB_WPHI, NB_WO, NB_SH, NB_SSK, NB_OUT, LOG2E,
                   Ctx, load_kernargs, srd, stamp, stamp_init, softmax20)

NAME = "concat_heads__linear_kernel_hedgehog__ssm_conv_h3__prompt"
WS_PQ = WS_PHIQ
WS_FLAG = 0xF00000
F1, F2, F3, F0, F4 = (WS_FLAG + 128 * o for o in (0, 512, 1024, 1536, 1856))
WS_EPOCH = WS_FLAG + 128 * 2560 + 64
SWS = 44
SC = " sc1"
TAG = 30
SLOT = 36864
L_WP = 147456
L_Z = L_WP + 8192
L_SYNC = L_Z + 4096
L_V = 128 * 336
L_WOB = 65536
L_OT = 65536
CV_LDS = 8768
L_QCV = 3 * SLOT
B_PRE = 6 * CV_LDS


class Opt:
    rot = True
    LA = 2
    nt_s = " nt"
    codepf = True
    wopf = "no"
    osc = " nt"
    ppoll = False
    womall = True
    probe = None
    dA = 0
    dB = 0
    psleep = 2


def end_wave(A):
    if Ctx.stamps:
        stamp(A, 15, True)
        A("s_waitcnt lgkmcnt(0)")
        A("s_mov_b64 exec, -1")
        A("v_mov_b32 v2, 0")
        for k in range(16):
            A(f"v_writelane_b32 v2, s{64+2*k}, {k}")
        A("s_lshl_b32 s62, s2, 3")
        A("s_add_u32 s62, s62, s100")
        A("s_lshl_b32 s62, s62, 6")
        A(f"s_add_u32 s62, s62, {WS_STAMP:#x}")
        A("v_lshlrev_b32 v1, 2, v1")
        A("s_mov_b64 exec, 0xffff")
        A(f"buffer_store_dword v2, v1, s[{SWS}:{SWS+3}], s62 offen")
        if Opt.probe:
            Lp = A.newlabel("L_probe")
            A(f"s_cmp_eq_u32 s2, {Opt.probe[0]}")
            A(f"s_cbranch_scc0 {Lp}")
            A(f"s_cmp_eq_u32 s100, {Opt.probe[1]}")
            A(f"s_cbranch_scc0 {Lp}")
            A("v_subrev_u32 v3, s66, v2")
            A("s_sub_u32 s62, s94, s64")
            A("v_writelane_b32 v3, s62, 15")
            A("v_cmp_ne_u32 vcc, 0, v2")
            A("v_cndmask_b32 v3, 0, v3, vcc")
            A("s_mov_b64 exec, 0xfffc")
            A(f"global_store_dword v1, v3, s[{S_DBG}:{S_DBG+1}]")
            A.label(Lp)
    A("s_endpgm")


def stampw(A, k):
    stamp(A, k)
    if Ctx.stamps:
        A("s_waitcnt lgkmcnt(0)")


def poll(A, vt, voff, soff, sleep=1):
    L, Ld = A.newlabel("L_poll"), A.newlabel("L_polld")
    A("s_movk_i32 s101, 0x4000")
    A.label(L)
    A(f"buffer_load_dwordx2 {vr(vt,2)}, v{voff}, s[{SWS}:{SWS+3}], {soff} offen{SC}")
    A("s_waitcnt vmcnt(0)")
    A(f"v_cmp_eq_u64 vcc, s[{TAG}:{TAG+1}], {vr(vt,2)}")
    A("s_cmp_eq_u64 vcc, -1")
    A(f"s_cbranch_scc1 {Ld}")
    A(f"s_sleep {sleep}")
    A("s_sub_u32 s101, s101, 1")
    A("s_cmp_eq_u32 s101, 0")
    A(f"s_cbranch_scc0 {L}")
    A("s_endpgm")
    A.label(Ld)


def ppoll(A, vt, voff, soff, sleep=1, depth=4):
    if not Opt.ppoll:
        return poll(A, vt, voff, soff, sleep=sleep)
    L, Ld = A.newlabel("L_pp"), A.newlabel("L_ppd")
    ld = lambda k: f"buffer_load_dwordx2 {vr(vt+2*k,2)}, v{voff}, s[{SWS}:{SWS+3}], {soff} offen{SC}"
    A("s_movk_i32 s101, 0x4000")
    for k in range(depth - 1):
        A(ld(k))
        A(f"s_sleep {sleep}")
    A.label(L)
    for k in range(depth):
        A(ld((k + depth - 1) % depth))
        A(f"s_waitcnt vmcnt({depth-1})")
        A(f"v_cmp_eq_u64 vcc, s[{TAG}:{TAG+1}], {vr(vt+2*k,2)}")
        A("s_cmp_eq_u64 vcc, -1")
        A(f"s_cbranch_scc1 {Ld}")
        A(f"s_sleep {sleep}")
    A("s_sub_u32 s101, s101, 1")
    A("s_cmp_eq_u32 s101, 0")
    A(f"s_cbranch_scc0 {L}")
    A("s_endpgm")
    A.label(Ld)


def set_flag(A, vt, soff):
    A(f"v_mov_b32 v{vt}, s{TAG}")
    A(f"v_mov_b32 v{vt+1}, s{TAG+1}")
    A(f"v_lshlrev_b32 v{vt+2}, 3, v1")
    A("s_waitcnt vmcnt(0)")
    A("s_mov_b64 exec, 0xffff")
    A(f"buffer_store_dwordx2 {vr(vt,2)}, v{vt+2}, s[{SWS}:{SWS+3}], {soff} offen{SC}")
    A("s_mov_b64 exec, -1")


def tag_issue(A):
    A(f"s_load_dwordx2 s[{TAG}:{TAG+1}], s[{S_DBG}:{S_DBG+1}], 0")


def tag_check(A, vt):
    L, Ld = A.newlabel("L_hs"), A.newlabel("L_hsd")
    A("s_waitcnt lgkmcnt(0)")
    A(f"s_cmp_lg_u32 s{TAG}, s{TAG+1}")
    A(f"s_cbranch_scc1 {Ld}")
    A("s_movk_i32 s101, 0x4000")
    A(f"v_mov_b32 v{vt+2}, 0")
    A.label(L)
    A(f"global_load_dwordx2 {vr(vt,2)}, v{vt+2}, s[{S_DBG}:{S_DBG+1}]{SC}")
    A("s_waitcnt vmcnt(0)")
    A(f"v_readfirstlane_b32 s{TAG}, v{vt}")
    A(f"v_readfirstlane_b32 s{TAG+1}, v{vt+1}")
    A("s_nop 3")
    A(f"s_cmp_lg_u32 s{TAG}, s{TAG+1}")
    A(f"s_cbranch_scc1 {Ld}")
    A("s_sleep 8")
    A("s_sub_u32 s101, s101, 1")
    A("s_cmp_eq_u32 s101, 0")
    A(f"s_cbranch_scc0 {L}")
    A("s_endpgm")
    A.label(Ld)


def lds_arrive(A, vt, addr):
    A(f"v_mov_b32 v{vt}, {addr}")
    A(f"v_mov_b32 v{vt+1}, 1")
    A("s_waitcnt lgkmcnt(0)")
    A("s_mov_b64 exec, 1")
    A(f"ds_add_u32 v{vt}, v{vt+1}")
    A("s_mov_b64 exec, -1")


def lds_wait(A, vt, addr, n, sleep=0):
    L, Ld = A.newlabel("L_lw"), A.newlabel("L_lwd")
    if addr is not None:
        A(f"v_mov_b32 v{vt}, {addr}")
    A("s_mov_b32 s101, 0x40000")
    A.label(L)
    A(f"ds_read_b32 v{vt+1}, v{vt}")
    A("s_waitcnt lgkmcnt(0)")
    A(f"v_cmp_le_u32 vcc, {n}, v{vt+1}")
    A(f"s_cbranch_vccnz {Ld}")
    if sleep:
        A(f"s_sleep {sleep}")
    A("s_sub_u32 s101, s101, 1")
    A("s_cmp_eq_u32 s101, 0")
    A(f"s_cbranch_scc0 {L}")
    A("s_endpgm")
    A.label(Ld)


class Lgkm:
    def __init__(self, A):
        self.A, self.n, self.done, self.tag = A, 0, 0, {}

    def issue(self, text, tag=None):
        self.A(text)
        self.n += 1
        if tag is not None:
            self.tag[tag] = self.n

    def wait(self, *tags):
        need = max(self.tag[t] for t in tags)
        if need > self.done:
            self.A(f"s_waitcnt lgkmcnt({min(15, self.n - need)})")
            self.done = max(need, self.n - 15)

    def all(self):
        if self.done < self.n:
            self.A("s_waitcnt lgkmcnt(0)")
            self.done = self.n


def o_index(A):
    A("s_sub_u32 s63, s99, 8")
    A("s_lshr_b32 s62, s63, 2")
    A("s_lshl_b32 s3, s98, 2")
    A("s_add_u32 s62, s62, s3")
    A("s_and_b32 s63, s63, 3")
    A("s_lshl_b32 s63, s63, 2")
    A("s_add_u32 s63, s63, s48")


def role_loader(A):
    SX, SW, SP = 32, 36, 40
    VX, VW = 24, 28
    t0, t1, t2, t3 = 11, 12, 13, 14
    A("s_setprio 1")
    A(f"v_lshrrev_b32 v{t0}, 3, v1")
    A(f"v_mul_u32_u24 v{t0}, 1280, v{t0}")
    A(f"v_lshrrev_b32 v{t1}, 4, v1")
    A(f"v_and_b32 v{t2}, 7, v1")
    A(f"v_xor_b32 v{t1}, v{t1}, v{t2}")
    A(f"v_xor_b32 v{t2}, 4, v{t1}")
    A(f"v_lshl_add_u32 v{VX}, v{t1}, 4, v{t0}")
    A(f"v_lshl_add_u32 v{VX+1}, v{t2}, 4, v{t0}")
    A(f"v_add_u32 v{VX+2}, {2*(8*1280-1024)}, v{VX}")
    A(f"v_add_u32 v{VX+3}, {3*(8*1280-1024)}, v{VX+1}")
    A(f"v_add_u32 v{VX+1}, {8*1280-1024}, v{VX+1}")
    A("s_lshl_b32 s60, s49, 2")
    A("s_add_u32 s60, s60, s48")
    A(f"s_mul_i32 s60, s60, {32*1280}")
    if Opt.rot:
        A("s_lshl_b32 s30, s49, 2")
        A("s_bfe_u32 s30, s30, 0x40000")
        A("s_lshr_b32 s30, 0x8530, s30")
        A("s_and_b32 s30, s30, 15")
        A("s_and_b32 s31, s99, 28")
        A("s_lshr_b32 s31, 0x875320, s31")
        A("s_and_b32 s31, s31, 15")
        A("s_add_u32 s30, s30, s31")
        A("s_sub_u32 s31, s30, 10")
        A("s_cmp_ge_u32 s30, 10")
        A("s_cselect_b32 s30, s31, s30")
        A("s_lshl_b32 s31, s30, 7")
        A("s_add_u32 s60, s60, s31")
    A("s_lshl_b32 s62, s48, 12")
    A("s_mov_b32 m0, s62")
    A(f"s_mov_b32 s{SX+2}, {NB_X:#x}")
    A(f"s_mov_b32 s{SX+3}, 0x20000")
    A("s_waitcnt lgkmcnt(0)")
    A(f"s_mov_b64 s[{SX}:{SX+1}], s[{S_X}:{S_X+1}]")

    def dma_x(s):
        if s:
            A(f"s_add_u32 m0, s62, {(s % 3) * SLOT}")
        for i in range(4):
            A(f"buffer_load_dwordx4 v{VX+i}, s[{SX}:{SX+3}], s60 offen offset:{1024*i} lds")

    def dma_w(s):
        sl = (s % 3) * SLOT
        A(f"s_add_u32 m0, s63, {sl}")
        for i in range(4):
            A(f"buffer_load_dwordx4 v{VW+i}, s[{SW}:{SW+3}], s61 offen offset:{1024*i} lds")
        A(f"s_add_u32 m0, s63, {sl+4096}")
        A(f"buffer_load_dwordx4 v{VW+4}, s[{SW}:{SW+3}], s61 offen lds")
        if s < 9:
            if Opt.rot:
                A("s_add_u32 s30, s30, 1")
                A("s_cmp_eq_u32 s30, 10")
                A(f"s_cselect_b32 s31, {(-1152)&0xffffffff:#x}, s97")
                A(f"s_cselect_b32 s3, {(-9*64*3840)&0xffffffff:#x}, s96")
                A("s_add_u32 s60, s60, s31")
                A("s_add_u32 s61, s61, s3")
            else:
                A("s_add_u32 s60, s60, 128")
                A(f"s_add_u32 s61, s61, {64*3840}")

    dma_x(0)
    A("s_cmp_eq_u32 s51, 0")
    A("s_cselect_b32 s56, 1120, 0")
    A(f"v_lshlrev_b32 v{t3}, 4, v1")
    A(f"v_mul_u32_u24 v{t2}, 6554, v1")
    A("s_movk_i32 s57, 3520")
    for i in range(5):
        if i:
            A(f"v_add_u32 v{t2}, {64*6554}, v{t2}")
        A(f"v_lshrrev_b32 v{t0}, 17, v{t2}")
        A(f"v_bfe_u32 v{t1}, v{t2}, 16, 1")
        A(f"v_mad_u32_u24 v{t0}, v{t0}, s57, v{t3}")
        A(f"v_mad_u32_u24 v{VW+i}, v{t1}, s56, v{t0}")
    A(f"v_add_u32 v{VW+4}, 4096, v{VW+4}")
    A(f"s_mul_i32 s61, s48, {16*3840}")
    A("s_mul_i32 s57, s50, 160")
    A("s_add_u32 s58, s57, 1280")
    A("s_lshl_b32 s57, s57, 1")
    A("s_cmp_eq_u32 s51, 0")
    A("s_cselect_b32 s57, s58, s57")
    A("s_add_u32 s61, s61, s57")
    if Opt.rot:
        A(f"s_mov_b32 s96, {64*3840}")
        A("s_movk_i32 s97, 128")
        A("s_mul_i32 s31, s30, s96")
        A("s_add_u32 s61, s61, s31")
    A("s_mul_i32 s63, s48, 5120")
    A("s_add_u32 s63, s63, 16384")
    srd(A, SW, S_W, NB_W)
    dma_w(0)
    stamp(A, 2)
    A("s_mul_i32 s57, s50, 3200")
    A("s_lshl_b32 s57, s57, s51")
    A("s_lshl_b32 s58, s48, 11")
    A("s_add_u32 s57, s57, s58")
    srd(A, SP, S_WPHI, NB_WPHI)
    A(f"s_add_u32 m0, s58, {L_WP}")
    A(f"buffer_load_dwordx4 v{t3}, s[{SP}:{SP+3}], s57 offen lds")
    A(f"buffer_load_dwordx4 v{t3}, s[{SP}:{SP+3}], s57 offen offset:1024 lds")
    srd(A, SWS, S_WS, WS_SIZE)
    Lh = A.newlabel("L_noh")
    A("s_cmp_eq_u32 s51, 0")
    A(f"s_cbranch_scc1 {Lh}")
    A("s_mul_i32 s49, s98, 80")
    A("s_lshl_b32 s50, s99, 2")
    A("s_add_u32 s49, s49, s50")
    A("s_add_u32 s49, s49, s48")
    A("s_add_u32 s49, s49, 48")
    A(f"s_mul_i32 s56, s48, {CV_LDS}")
    A(f"s_add_u32 s56, s56, {L_QCV}")
    conv_load_h(A, t3)
    A.label(Lh)
    assert Opt.LA == 2
    issued = 0
    for s in range(10):
        while issued < min(s + Opt.LA - 1, 9):
            issued += 1
            dma_x(issued)
            dma_w(issued)
        if s == 0:
            Ls = A.newlabel("L_nosetup")
            A("s_cmp_ge_u32 s99, 8")
            A(f"s_cbranch_scc1 {Ls}")
            conv_setup(A)
            f0_lines(A, 49, 49, 12)
            A.label(Ls)
        if s == 9:
            tag_issue(A)
        A(f"s_waitcnt vmcnt({9*(issued-s)})")
        A("s_barrier")
        if s in (0, 3, 6, 9):
            stamp(A, 3 + s // 3)
    A("s_setprio 0")
    A("s_cmp_lt_u32 s99, 8")
    A("s_cbranch_scc1 L_conv")
    role_wo(A)


def role_wo(A):
    SO, SWO = 32, 36
    WR = 64
    A.label("L_wo")
    srd(A, SWO, S_WO, NB_WO)
    if Opt.wopf == "kv":
        Ls = A.newlabel("L_nopf")
        A("s_cmp_lt_u32 s99, 8")
        A(f"s_cbranch_scc1 {Ls}")
        A("s_lshl_b32 s52, s99, 2")
        A("s_add_u32 s52, s52, s48")
        A("s_sub_u32 s52, s52, 32")
        A("s_lshl_b32 s52, s52, 13")
        A(f"s_add_u32 s53, s52, {64*8192}")
        A("v_lshlrev_b32 v2, 7, v1")
        A(f"buffer_load_dword v24, v2, s[{SWO}:{SWO+3}], s52 offen")
        A(f"buffer_load_dword v25, v2, s[{SWO}:{SWO+3}], s53 offen")
        A.label(Ls)
    A("v_lshrrev_b32 v2, 2, v1")
    A("v_and_b32 v3, 3, v1")
    A("v_mul_u32_u24 v4, 1280, v2")
    A("v_lshl_add_u32 v4, v3, 4, v4")
    for i in range(1, 4):
        A(f"v_add_u32 v{4+i}, {i*(16*1280-1024)}, v4")
    A(f"v_add_u32 v8, {4*16*1280}, v4")
    A("s_lshr_b32 s50, s99, 2")
    A("s_sub_u32 s50, s50, 1")
    A("s_max_i32 s50, s50, 0")
    A("s_lshl_b32 s52, s50, 8")
    A("s_lshl_b32 s53, s48, 6")
    A("s_add_u32 s52, s52, s53")
    A("s_mov_b32 s51, s52")
    A("s_mul_i32 s53, s48, 20480")
    A("s_cmp_lt_u32 s99, 8")
    A(f"s_cselect_b32 s54, 0, {L_WOB}")
    A("s_add_u32 s53, s53, s54")

    def cbuf(c):
        return 5120 + ((c + 1) % 3) * 5120

    def chunk(c):
        b = cbuf(c)
        A(f"s_add_u32 m0, s53, {b}")
        for i in range(4):
            A(f"buffer_load_dwordx4 v{4+i}, s[{SWO}:{SWO+3}], s51 offen offset:{1024*i} lds")
        A(f"s_add_u32 m0, s53, {b+4096}")
        A(f"buffer_load_dwordx4 v8, s[{SWO}:{SWO+3}], s51 offen lds")
        A(f"s_add_u32 s51, s51, {80*1280}")

    Lj = A.newlabel("L_woj")
    chunk(0)
    A("s_cmp_lt_u32 s99, 8")
    A(f"s_cbranch_scc1 {Lj}")
    A("s_barrier")
    A.label(Lj)
    chunk(1)
    chunk(2)
    A("v_bfe_u32 v10, v1, 2, 2")
    A("v_lshrrev_b32 v11, 5, v1")
    A("v_and_b32 v12, 1, v1")
    A("v_lshlrev_b32 v12, 5, v12")
    A("v_bfe_u32 v13, v1, 4, 1")
    A("v_lshl_add_u32 v12, v13, 4, v12")
    A("v_bfe_u32 v13, v1, 1, 1")
    A("v_lshl_add_u32 v12, v13, 3, v12")
    A("v_lshl_add_u32 v12, v10, 6, v12")
    A("v_add_u32 v12, s53, v12")
    A("v_lshl_add_u32 v13, v11, 8, v12")
    A("v_mul_u32_u24 v14, 2560, v11")
    A("v_add_u32 v14, v14, v12")
    A("v_and_b32 v9, 31, v1")
    A("v_lshrrev_b32 v15, 4, v1")
    A("v_lshlrev_b32 v15, 7, v15")
    A("v_lshlrev_b32 v18, 4, v1")
    o_index(A)
    tag_check(A, 20)

    def take(c):
        b = cbuf(c)
        for hh in range(4):
            for half in range(2):
                A(f"ds_read_b64_tr_b16 {vr(WR+4*(4*c+hh)+2*half,2)}, v13 offset:{b+(20*hh+8*half)*64}")
        for half in range(2):
            A(f"ds_read_b64_tr_b16 {vr(WR+128+4*c+2*half,2)}, v14 offset:{b+(20*half+16)*64}")

    Lq2 = A.newlabel("L_woq")
    for c in range(6):
        A("s_waitcnt vmcnt(10)")
        take(c)
        A("s_waitcnt lgkmcnt(0)")
        if c + 3 < 8:
            chunk(c + 3)
    stamp(A, 14)
    A("s_cmp_lt_u32 s99, 8")
    A(f"s_cbranch_scc1 {Lq2}")
    A("s_lshr_b32 s54, s62, 3")
    A("s_lshl_b32 s54, s54, 4")
    A("s_add_u32 s54, s54, s63")
    A("s_lshl_b32 s54, s54, 9")
    A(f"s_add_u32 s54, s54, {F2:#x}")
    A("s_lshl_b32 s55, s62, 4")
    A("s_add_u32 s55, s55, s63")
    A("s_mul_i32 s55, s55, 5120")
    poll(A, 16, 15, "s54", sleep=4)
    A("s_mov_b32 m0, s53")
    A("s_add_u32 s54, s55, 4096")
    for i in range(4):
        A(f"buffer_load_dwordx4 v18, s[{SWS}:{SWS+3}], s55 offen offset:{1024*i}{SC} lds")
    A("s_add_u32 m0, s53, 4096")
    A(f"buffer_load_dwordx4 v18, s[{SWS}:{SWS+3}], s54 offen{SC} lds")
    A("s_lshl_b32 s54, s48, 2")
    A(f"s_add_u32 s54, s54, {L_SYNC+16}")
    A("s_waitcnt vmcnt(0)")
    lds_arrive(A, 16, "s54")
    stamp(A, 7)
    A("s_lshl_b32 s54, s62, 2")
    A("s_add_u32 s54, s54, s48")
    A("s_mul_i32 s55, s54, 10240")
    A(f"s_add_u32 s55, s55, {WS_PART:#x}")
    A("s_lshl_b32 s54, s54, 9")
    A(f"s_add_u32 s54, s54, {F1:#x}")
    A("v_min_u32 v19, 20, v9")
    A("v_and_b32 v20, 32, v1")
    A("v_add_u32 v19, v19, v20")
    A("v_lshlrev_b32 v20, 3, v19")
    A("v_lshlrev_b32 v19, 4, v19")
    A("v_add_u32 v21, s53, v18")
    A("v_add_u32 v21, 5120, v21")
    A("s_mov_b32 s59, 0xffff0000")
    lds_wait(A, 16, L_SYNC + 4, 4, sleep=2)
    ppoll(A, 244, 15, "s54", sleep=Opt.psleep)
    stamp(A, 12)
    PR = [24, 34, 44, 54]
    SM, TP = 224, 244
    for p in range(4):
        A(f"buffer_load_dwordx4 {vr(PR[p],4)}, v19, s[{SWS}:{SWS+3}], s55 offen{SC}")
        A(f"buffer_load_dwordx4 {vr(PR[p]+4,4)}, v19, s[{SWS}:{SWS+3}], s55 offen offset:1024{SC}")
        A(f"buffer_load_dwordx2 {vr(PR[p]+8,2)}, v20, s[{SWS}:{SWS+3}], s55 offen offset:2048{SC}")
        if p < 3:
            A("s_add_u32 s55, s55, 2560")
    A("s_setprio 3")
    for p in range(4):
        A(f"s_waitcnt vmcnt({9-3*p})")
        for i in range(10):
            d = SM + 2 * i if p == 0 else TP + 2 * (i % 5)
            A(f"v_lshlrev_b32 v{d}, 16, v{PR[p]+i}")
            A(f"v_and_b32 v{d+1}, s59, v{PR[p]+i}")
            if p:
                A(f"v_pk_add_f32 {vr(SM+2*i,2)}, {vr(SM+2*i,2)}, {vr(d,2)}")
    for q in range(5):
        A(f"ds_write_b128 v21, {vr(SM+4*q,4)} offset:{1024*q}")
    lds_arrive(A, 16, L_SYNC + 8)
    A("s_setprio 0")
    stamp(A, 13)
    A.label(Lq2)
    A("s_waitcnt vmcnt(0)")
    take(6)
    take(7)
    srd(A, SO, S_OUT, NB_OUT)
    A("s_and_b32 s54, s99, 3")
    A("s_lshl_b32 s55, s98, 2")
    A("s_add_u32 s54, s54, s55")
    A("s_lshr_b32 s55, s54, 1")
    A("s_lshl_b32 s55, s55, 12")
    A(f"s_add_u32 s55, s55, {F3:#x}")
    A("s_lshl_b32 s57, s48, 10")
    A("s_add_u32 s55, s55, s57")
    A("v_lshrrev_b32 v15, 3, v1")
    A("v_lshlrev_b32 v15, 7, v15")
    A("s_mul_i32 s57, s54, 81920")
    A(f"s_add_u32 s57, s57, {WS_O:#x}")
    A("s_lshr_b32 s58, s48, 1")
    A("s_mul_i32 s58, s58, 40960")
    A("s_and_b32 s59, s48, 1")
    A("s_lshl_b32 s59, s59, 12")
    A("s_add_u32 s58, s58, s59")
    A("s_add_u32 s57, s57, s58")
    A(f"s_add_u32 s58, s58, {L_OT}")
    A("v_mov_b32 v5, v18")
    A(f"v_add_u32 v6, {L_OT}, v5")
    A(f"v_add_u32 v7, {L_OT+40960}, v5")
    A("v_lshlrev_b32 v10, 3, v9")
    A("v_lshl_add_u32 v10, v11, 9, v10")
    A(f"v_add_u32 v10, {L_OT+32768}, v10")
    A("s_mul_i32 s56, s48, 5120")
    A("s_waitcnt lgkmcnt(0)")
    A("v_mul_u32_u24 v12, 80, v9")
    A("v_lshl_add_u32 v12, v11, 5, v12")
    A("v_add_u32 v12, s56, v12")
    A("v_mul_u32_u24 v13, 80, v2")
    A("v_lshl_add_u32 v13, v3, 4, v13")
    A("v_add_u32 v13, s56, v13")
    A("v_mul_u32_u24 v14, 2560, v2")
    A("v_lshl_add_u32 v14, v3, 4, v14")
    A(f"s_mul_i32 s59, s54, {64*2560}")
    A("s_add_u32 s59, s59, s52")
    lds_wait(A, 16, L_SYNC + 12, 4, sleep=2)
    stamp(A, 8)
    ppoll(A, 48, 15, "s55", sleep=Opt.psleep)
    A("s_barrier")
    stamp(A, 9)
    for k in range(5):
        A(f"s_add_u32 m0, s58, {8192*k}")
        for i in range(4):
            A(f"buffer_load_dwordx4 v5, s[{SWS}:{SWS+3}], s57 offen offset:{1024*i}{SC} lds")
        if k < 4:
            A("s_add_u32 s57, s57, 8192")
    if Ctx.stamps:
        A("s_waitcnt lgkmcnt(0)")
    ACC = (16, 32)
    OFB = 224
    T = Lgkm(A)

    def rdx(f):
        if f % 8 == 0:
            A(f"s_waitcnt vmcnt({16 - 4*(f//8)})")
            A("s_barrier")
        for t in range(2):
            d = OFB + 4 * ((2 * f + t) % 8)
            if f < 32:
                T.issue(f"ds_read_b128 {vr(d,4)}, v{6+t} offset:{1024*f}", (f, t))
            else:
                a = f - 32
                T.issue(f"ds_read_b64 {vr(d,2)}, v10 offset:{40960*t + 1024*a}")
                T.issue(f"ds_read_b64 {vr(d+2,2)}, v10 offset:{40960*t + 1024*a + 256}", (f, t))

    for f in range(3):
        rdx(f)
    for f in range(40):
        for t in range(2):
            T.wait((f, t))
            c = vr(ACC[t], 16) if f else "0"
            A(f"v_mfma_f32_32x32x16_bf16 {vr(ACC[t],16)}, {vr(WR+4*f,4)}, {vr(OFB+4*((2*f+t)%8),4)}, {c}")
            if t == 0 and f + 3 < 40:
                rdx(f + 3)
    stamp(A, 10)
    for t in range(2):
        for i in range(8):
            A(f"v_cvt_pk_bf16_f32 v{48+8*t+i}, v{ACC[t]+2*i}, v{ACC[t]+2*i+1}")
        for i in range(2):
            A(f"ds_write_b128 v12, {vr(48+8*t+4*i,4)} offset:{2560*t+16*i}")
    A("s_waitcnt lgkmcnt(0)")
    for i in range(4):
        A(f"ds_read_b128 {vr(64+4*i,4)}, v13 offset:{1280*i}")
    for i in range(4):
        A(f"s_waitcnt lgkmcnt({3-i})")
        A(f"buffer_store_dwordx4 {vr(64+4*i,4)}, v14, s[{SO}:{SO+3}], s59 offen{Opt.osc}")
        if i < 3:
            A(f"s_add_u32 s59, s59, {16*2560}")
    stamp(A, 11)
    end_wave(A)


def role_compute(A):
    XA, WA, AD = 144, 152, 154
    ACC = 16
    WF = (96, 116)
    XF = (136, 140)
    t0, t1, t2, t3 = 11, 12, 13, 14
    for i in range(80):
        A(f"v_mov_b32 v{ACC+i}, 0")
    A(f"v_and_b32 v{t0}, 255, v0")
    A(f"v_lshlrev_b32 v{t0}, 4, v{t0}")
    A(f"v_add_u32 v{t0}, {L_Z}, v{t0}")
    A(f"ds_write_b128 v{t0}, {vr(ACC,4)}")
    A(f"ds_write_b128 v{t0}, {vr(ACC,4)} offset:64")
    A("s_lshl_b32 s54, s48, 12")
    A(f"v_and_b32 v{t0}, 31, v1")
    A(f"v_lshrrev_b32 v{t1}, 5, v1")
    A(f"v_bfe_u32 v{t2}, v1, 1, 3")
    A(f"v_xor_b32 v{t2}, v{t2}, v{t1}")
    A(f"v_lshlrev_b32 v{t2}, 4, v{t2}")
    A(f"v_lshl_add_u32 v{t2}, v{t0}, 7, v{t2}")
    A(f"v_add_u32 v{XA}, s54, v{t2}")
    for t in range(1, 4):
        A(f"v_xor_b32 v{XA+t}, {32*t}, v{XA}")
    for t in range(4):
        A(f"v_add_u32 v{XA+4+t}, {2*SLOT}, v{XA+t}")
    R8, JJ, HH = 158, 159, 160
    A(f"v_bfe_u32 v{t0}, v1, 2, 2")
    A(f"v_lshl_add_u32 v{R8}, v{t1}, 3, v{t0}")
    A(f"v_bfe_u32 v{t2}, v1, 4, 1")
    A(f"v_bfe_u32 v{t3}, v1, 1, 1")
    A(f"v_lshl_add_u32 v{JJ}, v{t2}, 1, v{t3}")
    A(f"v_and_b32 v{HH}, 1, v1")
    A(f"v_mul_u32_u24 v{t2}, 320, v{R8}")
    A(f"v_mul_u32_u24 v{t3}, 160, v{HH}")
    A(f"v_lshl_add_u32 v{t3}, v{JJ}, 3, v{t3}")
    A(f"v_add_u32 v{WA}, v{t2}, v{t3}")
    A(f"v_add_u32 v{WA}, 16384, v{WA}")
    A(f"v_add_u32 v{WA+1}, {2*SLOT}, v{WA}")
    A("s_movk_i32 s57, 1600")
    A("s_lshl_b32 s57, s57, s51")
    A(f"v_mul_u32_u24 v{t2}, s57, v{HH}")
    A(f"v_mul_u32_u24 v{t3}, 40, v{t0}")
    A(f"v_add_u32 v{t2}, v{t2}, v{t3}")
    A(f"v_lshl_add_u32 v{t2}, v{JJ}, 3, v{t2}")
    A(f"v_add_u32 v{t2}, {L_WP}, v{t2}")
    A(f"v_mov_b32 v{t3}, {L_Z}")
    A(f"v_cmp_eq_u32 vcc, v{HH}, v{t1}")
    A(f"v_cndmask_b32 v{AD}, v{t3}, v{t2}, vcc")
    A(f"v_add_u32 v{t0}, 24, v{t2}")
    A(f"v_cndmask_b32 v{AD+3}, v{t3}, v{t0}, vcc")
    A(f"v_cmp_eq_u32 s[58:59], 0, v{JJ}")
    A("s_and_b64 s[62:63], vcc, s[58:59]")
    A("s_andn2_b64 s[58:59], vcc, s[58:59]")
    A(f"v_add_u32 v{t0}, 32, v{t2}")
    A(f"v_cndmask_b32 v{AD+1}, v{t3}, v{t0}, s[62:63]")
    A(f"v_subrev_u32 v{t0}, 8, v{t2}")
    A(f"v_cndmask_b32 v{AD+2}, v{t3}, v{t0}, s[58:59]")
    A(f"v_and_b32 v{t0}, 31, v1")
    A("s_lshl_b32 s57, s48, 5")
    A(f"v_add_u32 v{t0}, s57, v{t0}")
    A(f"v_mul_u32_u24 v8, 176, v{t0}")
    A(f"v_add_u32 v8, {L_V}, v8")
    A(f"v_mul_u32_u24 v{t3}, 80, v{t1}")
    A(f"v_add_u32 v2, v8, v{t3}")
    A(f"v_mul_u32_u24 v{t2}, 336, v{t0}")
    A(f"v_lshl_add_u32 v3, v{t3}, 1, v{t2}")
    A(f"v_mul_u32_u24 v{t0}, 336, v{R8}")
    A(f"v_mul_u32_u24 v{t1}, 5, v{HH}")
    A(f"v_add_u32 v{t1}, v{t1}, v{JJ}")
    A(f"v_lshl_add_u32 v{t0}, v{t1}, 3, v{t0}")
    A("s_mul_i32 s57, s48, 80")
    A(f"v_add_u32 v6, s57, v{t0}")
    A(f"v_lshl_add_u32 v{t0}, v{JJ}, 1, v{HH}")
    A("s_mul_i32 s57, s48, 5")
    A(f"v_add_u32 v{t1}, s57, v{t0}")
    A(f"v_cmp_gt_u32 vcc, 5, v{t0}")
    A(f"v_cndmask_b32 v{t1}, 20, v{t1}, vcc")
    A(f"v_mul_u32_u24 v{t0}, 176, v{R8}")
    A(f"v_lshl_add_u32 v{t0}, v{t1}, 3, v{t0}")
    A(f"v_add_u32 v7, {L_V}, v{t0}")
    A("v_mov_b32 v4, 0x3f803f80")
    A("v_mov_b32 v5, 0x3f803f80")
    WPF = 164
    frags = [(0, 0), (0, 1), (0, 2), (1, 0), (1, 1), (1, 2), (1, 3), (1, 4), (2, 2), (2, 3), (2, 4)]
    for r in (WPF + 4 * 2 + 2, WPF + 4 * 2 + 3, WPF + 4 * 8, WPF + 4 * 8 + 1):
        A(f"v_mov_b32 v{r}, 0")
    A(f"s_mov_b32 s60, {LOG2E:#x}")
    A(f"s_mov_b32 s61, {LOG2E:#x}")
    A("s_waitcnt lgkmcnt(0)")
    srd(A, SWS, S_WS, WS_SIZE)
    A("s_setprio 2")

    def rd_x(s, t, b):
        sl = s % 3
        return f"ds_read_b128 {vr(XF[b],4)}, v{XA + 4*(sl>>1) + t} offset:{(sl&1)*SLOT}"

    def rd_w(s, t, T, half, b):
        sl = s % 3
        return f"ds_read_b64_tr_b16 {vr(WF[b]+4*T+2*half,2)}, v{WA+(sl>>1)} offset:{(sl&1)*SLOT + (16*t+4*half)*320 + 32*T}"

    def wphi_reads(pas):
        L = []
        for fi, (Tp, u) in enumerate(frags):
            for half in range(2):
                dq = 2 * u + half
                r = WPF + 4 * fi + 2 * half
                if (Tp == 0 and dq == 5) or (Tp == 2 and dq == 4):
                    continue
                ad = {(0, 0): AD, (1, 0): AD + 1, (1, 1): AD + 2, (2, 1): AD + 3}[(Tp, dq // 5)]
                L.append(f"ds_read_b64_tr_b16 {vr(r,2)}, v{ad} offset:{dq*160 + pas*1600}")
        return L

    A("s_barrier")
    stampw(A, 3)
    A(rd_x(0, 0, 0))
    for T in range(5):
        A(rd_w(0, 0, T, 0, 0)); A(rd_w(0, 0, T, 1, 0))
    for s in range(10):
        for t in range(4):
            b = t & 1
            last = (s == 9 and t == 3)
            ns, nt = (s, t + 1) if t < 3 else (s + 1, 0)
            prev_remaining = [8, 6, 4, 2, 0]
            issued = 0
            wp = wphi_reads(0) if last else []
            for T in range(5):
                if not (t == 3 and T >= 2):
                    A(f"s_waitcnt lgkmcnt({prev_remaining[T] + issued})")
                A(f"v_mfma_f32_32x32x16_bf16 {vr(ACC+16*T,16)}, {vr(WF[b]+4*T,4)}, {vr(XF[b],4)}, {vr(ACC+16*T,16)}")
                if t < 3:
                    if T == 0:
                        A(rd_x(ns, nt, 1 - b)); issued += 1
                    A(rd_w(ns, nt, T, 0, 1 - b)); A(rd_w(ns, nt, T, 1, 1 - b)); issued += 2
                elif T == 1:
                    A("s_waitcnt lgkmcnt(0)")
                    A("s_barrier")
                    if not last:
                        A(rd_x(ns, nt, 1 - b))
                        for TT in (0, 1):
                            A(rd_w(ns, nt, TT, 0, 1 - b)); A(rd_w(ns, nt, TT, 1, 1 - b))
                    else:
                        for x in wp[:5]:
                            A(x)
                elif T >= 2:
                    if not last:
                        A(rd_w(ns, nt, T, 0, 1 - b)); A(rd_w(ns, nt, T, 1, 1 - b))
                    else:
                        for x in wp[5 * (T - 1):5 * T]:
                            A(x)
    stamp(A, 4)
    tag_issue(A)
    P = 96
    E, F, TT_ = 208, 228, 248

    def phi_mfma(src, acc):
        seen = set()
        for fi, (Tp, u) in enumerate(frags):
            c = vr(acc + 16 * Tp, 16) if Tp in seen else "0"
            seen.add(Tp)
            A(f"v_mfma_f32_32x32x16_bf16 {vr(acc+16*Tp,16)}, {vr(WPF+4*fi,4)}, {vr(src+4*u,4)}, {c}")

    for i in range(40):
        A(f"v_cvt_pk_bf16_f32 v{P+i}, v{ACC+2*i}, v{ACC+2*i+1}")
    Lq = A.newlabel("L_q")
    A("s_cmp_eq_u32 s51, 0")
    A(f"s_cbranch_scc0 {Lq}")
    mq = A.mark()
    for i in range(20):
        A(f"v_permlane32_swap_b32 v{P+i}, v{P+20+i}")
    tag_check(A, 10)
    phi_mfma(P, ACC)
    for i in range(5):
        A(f"ds_write_b128 v2, {vr(P+20+4*i,4)} offset:{16*i}")
    A("ds_write_b64 v8, v[4:5] offset:160")
    for grp, ph in ((0, 64), (1, 96)):
        softmax20(A, ACC + 20 * grp, E, F, TT_, ph)
        for i in range(5):
            A(f"ds_write_b128 v3, {vr(ph+4*i,4)} offset:{80*grp+16*i}")
    stamp(A, 5)
    lds_arrive(A, 10, L_SYNC)
    A("s_lshl_b32 s57, s50, 2")
    A("s_add_u32 s57, s57, s48")
    A("s_lshl_b32 s57, s57, 4")
    A("s_add_u32 s57, s57, s49")
    A("s_lshl_b32 s59, s57, 7")
    A(f"s_add_u32 s59, s59, {F1:#x}")
    A("s_mul_i32 s57, s57, 2560")
    A(f"s_add_u32 s57, s57, {WS_PART:#x}")
    A("v_lshlrev_b32 v2, 4, v1")
    A("v_lshlrev_b32 v3, 3, v1")
    lds_wait(A, 10, None, 4)
    FA = 64
    T = Lgkm(A)
    for u in range(10):
        if u < 8:
            for half in range(2):
                o = (16 * u + 4 * half)
                T.issue(f"ds_read_b64_tr_b16 {vr(FA+12*u+2*half,2)}, v6 offset:{o*336}")
                T.issue(f"ds_read_b64_tr_b16 {vr(FA+12*u+4+2*half,2)}, v6 offset:{o*336+32}")
                T.issue(f"ds_read_b64_tr_b16 {vr(FA+12*u+8+2*half,2)}, v7 offset:{o*176}", u)
        if u >= 2:
            uu = u - 2
            T.wait(uu)
            for TT in range(2):
                c = vr(ACC + 16 * TT, 16) if uu else "0"
                A(f"v_mfma_f32_32x32x16_bf16 {vr(ACC+16*TT,16)}, {vr(FA+12*uu+4*TT,4)}, {vr(FA+12*uu+8,4)}, {c}")
    o_index(A)
    for i in range(10):
        A(f"v_cvt_pk_bf16_f32 v{48+i}, v{ACC+2*i}, v{ACC+2*i+1}")
    A(f"buffer_store_dwordx2 v[56:57], v3, s[{SWS}:{SWS+3}], s57 offen offset:2048{SC}")
    A("s_mov_b32 exec_lo, 0x00ffffff")
    A("s_mov_b32 exec_hi, 0x00ffffff")
    A(f"buffer_store_dwordx4 v[48:51], v2, s[{SWS}:{SWS+3}], s57 offen{SC}")
    A(f"buffer_store_dwordx4 v[52:55], v2, s[{SWS}:{SWS+3}], s57 offen offset:1024{SC}")
    A("s_mov_b64 exec, -1")
    stamp(A, 6)
    role_o(A)
    end_wave(A)
    A.label(Lq)
    hq = A.mark()
    A("s_nop 1")
    tag_check(A, 10)
    phi_mfma(P, ACC)
    A(f"v_and_b32 v{t0}, 31, v1")
    A(f"v_lshrrev_b32 v{t1}, 5, v1")
    A(f"s_mov_b32 s57, {4*64*1280}")
    A(f"v_mul_lo_u32 v{t1}, s57, v{t1}")
    A(f"v_lshl_add_u32 v2, v{t0}, 4, v{t1}")
    A(f"v_lshl_add_u32 v3, v{t0}, 3, v{t1}")
    A("s_lshl_b32 s58, s49, 2")
    A("s_add_u32 s58, s58, s48")
    for x in wphi_reads(1):
        A(x)
    A("s_lshl_b32 s59, s50, 6")
    A("s_add_u32 s59, s59, s58")
    A("s_lshl_b32 s59, s59, 7")
    A(f"s_add_u32 s59, s59, {F2:#x}")
    A("s_lshl_b32 s57, s50, 9")
    A("s_add_u32 s57, s57, s58")
    A("s_mul_i32 s57, s57, 1280")
    A("s_waitcnt lgkmcnt(0)")
    phi_mfma(P + 20, 208)
    for hs in range(4):
        x = (ACC, ACC + 20, 208, 228)[hs]
        o = 64 + 10 * hs if hs < 3 else 96
        for i in range(10):
            A(f"v_cvt_pk_bf16_f32 v{o+i}, v{x+2*i}, v{x+2*i+1}")
        A(f"buffer_store_dwordx4 {vr(o,4)}, v2, s[{SWS}:{SWS+3}], s57 offen{SC}")
        A(f"buffer_store_dwordx4 {vr(o+4,4)}, v2, s[{SWS}:{SWS+3}], s57 offen offset:512{SC}")
        A(f"buffer_store_dwordx2 {vr(o+8,2)}, v3, s[{SWS}:{SWS+3}], s57 offen offset:1024{SC}")
        if hs < 3:
            A(f"s_add_u32 s57, s57, {64*1280}")
    stamp(A, 6)
    set_flag(A, 10, "s59")
    stamp(A, 7)
    A.check_seam(mq, hq)
    A("s_setprio 0")
    A("s_cmp_lt_u32 s99, 4")
    A("s_cbranch_scc1 L_wo")
    end_wave(A)


def role_o(A):
    NT = 4
    RAW, X, PQ = 64, 104, 128
    A("s_mul_i32 s53, s48, 20480")
    A(f"s_add_u32 s53, s53, {L_WOB}")
    A("v_and_b32 v4, 31, v1")
    A("v_lshl_add_u32 v5, v4, 4, s53")
    A("v_lshl_add_u32 v6, v4, 3, s53")
    A("v_and_b32 v7, 32, v1")
    A("v_lshlrev_b32 v7, 26, v7")
    A("s_lshl_b32 s54, s48, 2")
    A(f"s_add_u32 s54, s54, {L_SYNC+16}")
    A("s_mov_b32 s58, 0xffff0000")
    for t in range(NT):
        A(f"v_mov_b32 v{PQ+12*t+10}, 0")
        A(f"v_mov_b32 v{PQ+12*t+11}, 0")
    set_flag(A, 10, "s59")
    lds_arrive(A, 14, L_SYNC + 4)
    stamp(A, 7)
    lds_wait(A, 14, "s54", 1)
    stampw(A, 8)
    T = Lgkm(A)
    for t in range(NT):
        T.issue(f"ds_read_b128 {vr(RAW+10*t,4)}, v5 offset:{1280*t}")
        T.issue(f"ds_read_b128 {vr(RAW+10*t+4,4)}, v5 offset:{1280*t+512}")
        T.issue(f"ds_read_b64 {vr(RAW+10*t+8,2)}, v6 offset:{1280*t+1024}", t)
    A("s_lshl_b32 s57, s63, 2")
    A("s_mul_i32 s54, s57, 40960")
    A(f"s_add_u32 s54, s54, {WS_O:#x}")
    A("s_lshl_b32 s59, s62, 8")
    A("s_add_u32 s59, s59, s54")
    A("s_add_u32 s59, s59, 32768")
    A("s_lshl_b32 s57, s62, 10")
    A("s_add_u32 s54, s54, s57")
    A("s_lshl_b32 s50, s63, 5")
    A("s_add_u32 s50, s50, s62")
    A("s_lshl_b32 s50, s50, 7")
    A(f"s_add_u32 s50, s50, {F3:#x}")
    mx, se = 124, 126
    for t in range(NT):
        T.wait(t)
        for i in range(10):
            A(f"v_lshl_add_u32 v{X+2*i}, v{RAW+10*t+i}, 16, v7")
            A(f"v_bitop3_b32 v{X+2*i+1}, v{RAW+10*t+i}, s58, v7 bitop3:0x6a")
        A(f"v_max3_f32 v{mx}, v{X}, v{X+1}, v{X+2}")
        A(f"v_max3_f32 v{mx+1}, v{X+3}, v{X+4}, v{X+5}")
        for i in range(6, 18, 4):
            A(f"v_max3_f32 v{mx}, v{mx}, v{X+i}, v{X+i+1}")
            A(f"v_max3_f32 v{mx+1}, v{mx+1}, v{X+i+2}, v{X+i+3}")
        A(f"v_max3_f32 v{mx}, v{mx}, v{X+18}, v{X+19}")
        A(f"v_max_f32 v{mx}, v{mx}, v{mx+1}")
        A(f"v_mul_f32 v{mx}, s60, v{mx}")
        for i in range(0, 20, 2):
            A(f"v_pk_fma_f32 {vr(X+i,2)}, {vr(X+i,2)}, s[60:61], {vr(mx,2)} op_sel_hi:[1,1,0] neg_lo:[0,0,1] neg_hi:[0,0,1]")
        for i in range(20):
            A(f"v_exp_f32 v{X+i}, v{X+i}")
        A(f"v_pk_add_f32 {vr(se,2)}, {vr(X,2)}, {vr(X+2,2)}")
        A(f"v_pk_add_f32 {vr(mx,2)}, {vr(X+4,2)}, {vr(X+6,2)}")
        for i in range(8, 20, 4):
            A(f"v_pk_add_f32 {vr(se,2)}, {vr(se,2)}, {vr(X+i,2)}")
            A(f"v_pk_add_f32 {vr(mx,2)}, {vr(mx,2)}, {vr(X+i+2,2)}")
        A(f"v_pk_add_f32 {vr(se,2)}, {vr(se,2)}, {vr(mx,2)}")
        A(f"v_add_f32 v{se}, v{se}, v{se+1}")
        A(f"v_rcp_f32 v{se}, v{se}")
        for i in range(0, 20, 2):
            A(f"v_pk_mul_f32 {vr(X+i,2)}, {vr(X+i,2)}, {vr(se,2)} op_sel_hi:[1,0]")
        for i in range(10):
            A(f"v_cvt_pk_bf16_f32 v{PQ+12*t+i}, v{X+2*i}, v{X+2*i+1}")
    stamp(A, 9)
    A(f"v_add_u32 v8, {L_WOB+5120}, v2")
    A(f"v_add_u32 v9, {L_WOB+5120+40960}, v2")
    KF = 16
    A(f"v_mov_b32 v{KF+10}, 0")
    A(f"v_mov_b32 v{KF+11}, 0")
    lds_wait(A, 14, L_SYNC + 8, 4)
    stampw(A, 10)
    PR = 32
    T = Lgkm(A)
    for q in range(5):
        for p in range(4):
            T.issue(f"ds_read_b128 {vr(PR+16*q+4*p,4)}, v{8+(p>>1)} offset:{20480*(p&1)+1024*q}", q)
    for q in range(5):
        T.wait(q)
        b = PR + 16 * q
        for h in (0, 2):
            A(f"v_pk_add_f32 {vr(b+h,2)}, {vr(b+h,2)}, {vr(b+4+h,2)}")
            A(f"v_pk_add_f32 {vr(b+8+h,2)}, {vr(b+8+h,2)}, {vr(b+12+h,2)}")
        for h in (0, 2):
            A(f"v_pk_add_f32 {vr(b+h,2)}, {vr(b+h,2)}, {vr(b+8+h,2)}")
        for h in (0, 2):
            A(f"v_cvt_pk_bf16_f32 v{KF+2*q+h//2}, v{b+h}, v{b+h+1}")
    D = [176, 192, 208, 224]
    OP = [32, 40, 48, 56]

    def mf(t):
        for u in range(3):
            c = vr(D[t], 16) if u else "0"
            A(f"v_mfma_f32_32x32x16_bf16 {vr(D[t],16)}, {vr(KF+4*u,4)}, {vr(PQ+12*t+4*u,4)}, {c}")

    if Opt.dA:
        A(f"s_sleep {Opt.dA}")
    mf(0)
    mf(1)
    for t in range(NT):
        d, o = D[t], OP[t]
        A(f"v_add_f32 v10, 0x358637bd, v{d+12}")
        A("v_rcp_f32 v10, v10")
        if t + 2 < NT:
            mf(t + 2)
        for i in range(12):
            A(f"v_mul_f32 v{d+i}, v10, v{d+i}")
        for i in range(6):
            A(f"v_cvt_pk_bf16_f32 v{o+i}, v{d+2*i}, v{d+2*i+1}")
        A(f"buffer_store_dwordx4 {vr(o,4)}, v2, s[{SWS}:{SWS+3}], s54 offen{SC}")
        A("s_mov_b32 exec_hi, 0")
        A(f"buffer_store_dwordx2 {vr(o+4,2)}, v3, s[{SWS}:{SWS+3}], s59 offen{SC}")
        A("s_mov_b64 exec, -1")
        if t < NT - 1:
            A("s_add_u32 s54, s54, 40960")
            A("s_add_u32 s59, s59, 40960")
    stamp(A, 11)
    set_flag(A, 12, "s50")
    lds_arrive(A, 16, L_SYNC + 12)
    stamp(A, 12)


def b_channel(A):
    A("s_mul_i32 s49, s98, 80")
    A("s_sub_u32 s50, s99, 24")
    A("s_mul_i32 s50, s50, 6")
    A("s_add_u32 s49, s49, s50")
    A("s_add_u32 s49, s49, s48")
    A(f"s_mul_i32 s56, s48, {CV_LDS}")


def conv_load_h(A, v):
    SH = 40
    srd(A, SH, S_SSK, NB_SSK)
    A(f"v_lshlrev_b32 v{v}, 4, v1")
    A("s_lshl_b32 s50, s49, 12")
    A("s_add_u32 m0, s56, 64")
    for i in range(4):
        A(f"buffer_load_dwordx4 v{v}, s[{SH}:{SH+3}], s50 offen offset:{1024*i}{Opt.nt_s} lds")


def f0_lines(A, c0, c1, v):
    A(f"s_lshr_b32 s52, s{c0}, 6")
    A("s_mul_i32 s52, s52, 419431")
    A("s_lshr_b32 s52, s52, 16")
    A(f"s_lshr_b32 s53, s{c1}, 6")
    A("s_mul_i32 s53, s53, 419431")
    A("s_add_u32 s53, s53, 406324")
    A("s_lshr_b32 s53, s53, 16")
    A(f"v_lshrrev_b32 v{v}, 2, v1")
    A(f"v_add_u32 v{v}, s52, v{v}")
    A(f"v_min_u32 v{v}, s53, v{v}")
    A(f"v_lshlrev_b32 v{v}, 7, v{v}")
    A(f"s_mov_b32 s52, {F0:#x}")


def role_pre(A):
    SK, SV, SS = 32, 36, 40
    t0, t1, t2 = 2, 3, 4
    A("s_lshl_b32 s49, s98, 3")
    A("s_add_u32 s49, s49, s99")
    A("s_sub_u32 s49, s49, 24")
    A("s_mul_i32 s49, s49, 5")
    A("s_add_u32 s49, s49, s48")
    A("s_and_b32 s50, s49, 31")
    A("s_lshr_b32 s51, s49, 5")
    A(f"s_mul_i32 s52, s50, {64*1280}")
    A("s_lshl_b32 s53, s51, 7")
    A("s_add_u32 s52, s52, s53")
    A(f"v_lshrrev_b32 v{t0}, 3, v1")
    A(f"v_and_b32 v{t1}, 7, v1")
    A(f"v_mul_u32_u24 v{t2}, {8*1280}, v{t0}")
    A(f"v_lshl_add_u32 v{t2}, v{t1}, 4, v{t2}")
    A(f"v_add_u32 v5, s52, v{t2}")
    A(f"v_subrev_u32 v6, {3*1280}, v5")
    A(f"v_subrev_u32 v7, {2*1280}, v5")
    A(f"v_subrev_u32 v8, {1280}, v5")
    A(f"v_lshlrev_b32 v9, 6, v{t1}")
    A("s_lshl_b32 s54, s51, 9")
    A(f"s_movk_i32 s55, {4*1280}")
    A("s_waitcnt lgkmcnt(0)")
    srd(A, SK, S_BK, NB_X)
    srd(A, SV, S_BV, NB_X)
    srd(A, SS, S_SH, NB_SH)
    WR, KR, VR = 16, 32, 76
    for i in range(4):
        A(f"buffer_load_dwordx4 {vr(WR+4*i,4)}, v9, s[{SS}:{SS+3}], s54 offen offset:{16*i}")
    for i in range(3):
        A(f"buffer_load_dwordx4 {vr(KR+4*i,4)}, v{6+i}, s[{SK}:{SK+3}], 0 offen{Opt.nt_s}")

    order = []

    def ld(kind, i):
        so = "0" if i < 4 else "s55"
        if kind == "k":
            A(f"buffer_load_dwordx4 {vr(KR+12+4*i,4)}, v5, s[{SK}:{SK+3}], {so} offen offset:{1280*(i&3)}{Opt.nt_s}")
        else:
            A(f"buffer_load_dwordx4 {vr(VR+4*i,4)}, v5, s[{SV}:{SV+3}], {so} offen offset:{1280*(i&3)}{Opt.nt_s}")
        order.append((kind, i))

    for i in (5, 6, 7):
        ld("k", i)
    ld("k", 0); ld("v", 0); ld("k", 1); ld("v", 1)
    todo = [("k", 2), ("v", 2), ("k", 3), ("v", 3), ("k", 4), ("v", 4), ("v", 5), ("v", 6), ("v", 7)]
    stamp(A, 2)
    srd(A, SWS, S_WS, WS_SIZE)
    A("s_mul_i32 s56, s48, 8320")
    A(f"s_add_u32 s56, s56, {B_PRE}")
    A(f"v_mul_u32_u24 v10, 1040, v{t1}")
    A(f"v_lshl_add_u32 v10, v{t0}, 4, v10")
    A("v_add_u32 v10, s56, v10")
    A("v_lshrrev_b32 v11, 4, v1")
    A("v_lshlrev_b32 v11, 8, v11")
    A("v_and_b32 v12, 3, v1")
    A("v_lshl_add_u32 v11, v12, 6, v11")
    A("v_bfe_u32 v12, v1, 2, 2")
    A("v_lshl_add_u32 v11, v12, 3, v11")
    A("v_add_u32 v11, s56, v11")
    A(f"v_lshlrev_b32 v12, 12, v{t0}")
    A(f"v_lshl_add_u32 v12, v{t1}, 4, v12")
    A("s_lshl_b32 s57, s51, 18")
    A("s_lshl_b32 s58, s50, 7")
    A("s_add_u32 s57, s57, s58")
    A(f"s_add_u32 s57, s57, {WS_KVT:#x}")
    A("s_mov_b32 s59, 0xffff0000")
    WF, KF, VF, TA, OUT = 108, 140, 172, 180, 196

    def unpack(dst, src, n):
        for i in range(n):
            A(f"v_lshlrev_b32 v{dst+2*i}, 16, v{src+i}")
            A(f"v_and_b32 v{dst+2*i+1}, s59, v{src+i}")

    A(f"s_waitcnt vmcnt({3+len(order)})")
    ld(*todo.pop(0)); ld(*todo.pop(0))
    for c in range(8):
        A(f"v_lshlrev_b32 v{WF+c}, 16, v{WR+2*c}")
        A(f"v_and_b32 v{WF+8+c}, s59, v{WR+2*c}")
        A(f"v_lshlrev_b32 v{WF+16+c}, 16, v{WR+2*c+1}")
        A(f"v_and_b32 v{WF+24+c}, s59, v{WR+2*c+1}")
    A(f"s_waitcnt vmcnt({len(order)})")
    ld(*todo.pop(0)); ld(*todo.pop(0))
    for i in range(3):
        unpack(KF + 8 * i, KR + 4 * i, 4)
    for i in range(8):
        need = max(order.index(("k", i)), order.index(("v", i)))
        A(f"s_waitcnt vmcnt({len(order)-1-need})")
        for _ in range(2):
            if todo:
                ld(*todo.pop(0))
        if i == 2:
            b_channel(A)
            conv_load_h(A, 13)
            order.extend([None] * 4)
        unpack(KF + 8 * ((i + 3) & 3), KR + 12 + 4 * i, 4)
        unpack(VF, VR + 4 * i, 4)
        acc = TA + 8 * (i & 1)
        for j in (3, 2, 1, 0):
            kk = KF + 8 * ((i + 3 - j) & 3)
            for c in range(0, 8, 2):
                if j == 3:
                    A(f"v_pk_mul_f32 {vr(acc+c,2)}, {vr(kk+c,2)}, {vr(WF+8*j+c,2)}")
                else:
                    A(f"v_pk_fma_f32 {vr(acc+c,2)}, {vr(kk+c,2)}, {vr(WF+8*j+c,2)}, {vr(acc+c,2)}")
        for c in range(0, 8, 2):
            A(f"v_pk_mul_f32 {vr(acc+c,2)}, {vr(acc+c,2)}, {vr(VF+c,2)}")
        if i & 1:
            for c in range(8):
                A(f"v_cvt_pk_bf16_f32 v{OUT+4*c+i//2}, v{TA+c}, v{TA+8+c}")
    stamp(A, 3)
    for c in range(8):
        A(f"ds_write_b128 v10, {vr(OUT+4*c,4)} offset:{128*c}")
    A("s_waitcnt lgkmcnt(0)")
    T = Lgkm(A)
    for i in range(8):
        T.issue(f"ds_read_b64_tr_b16 {vr(16+4*i,2)}, v11 offset:{1040*i}")
        T.issue(f"ds_read_b64_tr_b16 {vr(18+4*i,2)}, v11 offset:{1040*i+32}", i)
    for i in range(8):
        T.wait(i)
        A(f"buffer_store_dwordx4 {vr(16+4*i,4)}, v12, s[{SWS}:{SWS+3}], s57 offen{SC}")
        if i < 7:
            A(f"s_add_u32 s57, s57, {8*4096}")
    A("s_waitcnt vmcnt(0)")
    stamp(A, 4)


def role_helper(A):
    SD = 40
    A("s_setprio 3")
    A("s_waitcnt lgkmcnt(0)")
    srd(A, SWS, S_WS, WS_SIZE)
    srd(A, SD, S_DBG, 256)
    Lz = A.newlabel("L_nz")
    A("s_cmp_eq_u32 s2, 192")
    A(f"s_cbranch_scc0 {Lz}")
    A("s_cmp_eq_u32 s48, 5")
    A(f"s_cbranch_scc0 {Lz}")
    A(f"s_mov_b32 s57, {WS_EPOCH:#x}")
    A("s_mov_b64 exec, 1")
    A(f"buffer_load_dword v4, off, s[{SWS}:{SWS+3}], s57{SC}")
    A("s_waitcnt vmcnt(0)")
    A("v_add_u32 v4, 1, v4")
    A("v_not_b32 v5, v4")
    A(f"buffer_store_dwordx2 v[4:5], off, s[{SD}:{SD+3}], 0{SC}")
    A(f"buffer_store_dword v4, off, s[{SWS}:{SWS+3}], s57{SC}")
    A("s_mov_b64 exec, -1")
    stamp(A, 2)
    A.label(Lz)
    if Opt.codepf:
        Lp = A.newlabel("L_npf")
        A("s_cmp_eq_u32 s48, 6")
        A(f"s_cbranch_scc0 {Lp}")
        A("s_getpc_b64 s[50:51]")
        A.label("L_pc")
        A(f"s_sub_u32 s50, s50, L_pc-{NAME}_kernel")
        A("s_subb_u32 s51, s51, 0")
        A("s_sub_u32 s52, s99, 24")
        A("s_lshl_b32 s52, s52, 13")
        A("v_lshl_add_u32 v2, v1, 7, s52")
        A(f"v_min_u32 v2, L_code_end-{NAME}_kernel-4, v2")
        A("global_load_dword v24, v2, s[50:51]")
        if Opt.womall:
            srd(A, 36, S_WO, NB_WO)
            A("s_sub_u32 s52, s2, 192")
            A("s_lshl_b32 s52, s52, 14")
            A("s_add_u32 s53, s52, 8192")
            A("v_lshlrev_b32 v2, 7, v1")
            A("buffer_load_dword v25, v2, s[36:39], s52 offen")
            A("buffer_load_dword v26, v2, s[36:39], s53 offen")
        A.label(Lp)
    A("s_setprio 0")
    L6 = A.newlabel("L_h6")
    Lx = A.newlabel("L_h67")
    A("s_cmp_eq_u32 s48, 5")
    A(f"s_cbranch_scc0 {L6}")
    b_channel(A)
    conv_load_h(A, 2)
    A("s_branch L_bconv")
    A.label(L6)
    A("s_mul_i32 s54, s98, 80")
    A("s_sub_u32 s50, s99, 24")
    A("s_mul_i32 s55, s50, 6")
    A("s_add_u32 s54, s54, s55")
    A("s_add_u32 s55, s54, 5")
    f0_lines(A, 54, 55, 12)
    A("s_lshl_b32 s58, s98, 3")
    A("s_add_u32 s58, s58, s50")
    A("s_lshl_b32 s58, s58, 7")
    A(f"s_add_u32 s58, s58, {F0:#x}")
    Lt = A.newlabel("L_h7")
    A("s_cmp_eq_u32 s48, 7")
    A(f"s_cbranch_scc0 {Lt}")
    A(f"s_mov_b64 s[{TAG}:{TAG+1}], 0")
    tag_check(A, 8)
    A.label(Lt)
    A("s_barrier")
    A("s_cmp_eq_u32 s48, 7")
    A(f"s_cbranch_scc0 {Lx}")
    set_flag(A, 8, "s58")
    poll(A, 14, 12, "s52", sleep=4)
    A.label(Lx)
    A("s_barrier")
    A("s_branch L_post")


def conv_setup(A):
    A("v_lshlrev_b32 v2, 4, v1")
    A("s_lshl_b32 s52, s49, 1")
    A("s_and_b32 s52, s52, 0xfffffffc")
    A(f"s_load_dword s55, s[{S_SSD}:{S_SSD+1}], s52")
    A(f"s_load_dword s54, s[{S_SSK}:{S_SSK+1}], s50")
    A(f"s_add_u32 s51, s50, {WS_KVT:#x}")
    for i in range(4):
        A(f"v_mov_b32 v{4+i}, 0")
    A("v_add_u32 v3, s56, v2")
    A("s_mov_b64 exec, 0xf")
    A("ds_write_b128 v3, v[4:7]")
    A("s_mov_b32 exec_lo, -1")
    A(f"ds_write_b128 v3, v[4:7] offset:{64+4096}")
    A("s_mov_b64 exec, -1")
    A("v_and_b32 v8, 1, v1")
    A("v_lshlrev_b32 v8, 5, v8")
    A("v_bfe_u32 v9, v1, 4, 1")
    A("v_lshl_add_u32 v8, v9, 4, v8")
    A("v_bfe_u32 v9, v1, 1, 1")
    A("v_lshl_add_u32 v8, v9, 3, v8")
    A("v_lshrrev_b32 v10, 5, v1")
    A("v_lshl_add_u32 v8, v10, 6, v8")
    A("v_bfe_u32 v9, v1, 2, 2")
    A("v_lshlrev_b32 v9, 3, v9")
    A("v_sub_u32 v8, v8, v9")
    A("s_add_u32 s57, s56, 32")
    A("v_add_u32 v8, s57, v8")
    A("v_bfe_u32 v9, v1, 4, 1")
    A("v_lshlrev_b32 v9, 8, v9")
    A("v_and_b32 v11, 3, v1")
    A("v_lshl_add_u32 v9, v11, 6, v9")
    A("v_bfe_u32 v11, v1, 2, 2")
    A("v_lshl_add_u32 v9, v11, 4, v9")
    A("v_lshlrev_b32 v11, 6, v10")
    A("v_sub_u32 v9, v9, v11")
    A(f"s_add_u32 s57, s56, {64+4096+512-384}")
    A("v_add_u32 v9, s57, v9")
    A("v_bfe_u32 v11, v1, 2, 1")
    A("v_bfe_u32 v12, v1, 3, 2")
    A("v_lshl_add_u32 v11, v11, 2, v12")
    A("v_and_b32 v12, 35, v1")
    A("v_lshl_add_u32 v11, v12, 3, v11")
    A("v_and_b32 v12, 1, v11")
    A("v_lshlrev_b32 v12, 4, v12")
    A("v_mov_b32 v13, 0xffff")
    A("v_lshlrev_b32 v13, v12, v13")
    A("v_lshrrev_b32 v11, 1, v11")
    for i in range(4):
        A(f"v_cmp_eq_u32 vcc, {i}, v11")
        A(f"v_cndmask_b32 v{MK+i}, 0, v13, vcc")
    A("v_bfe_u32 v11, v1, 4, 1")
    A("v_and_b32 v12, 3, v1")
    A("v_lshl_add_u32 v11, v11, 2, v12")
    A("v_add_u32 v11, 7, v11")
    A("v_and_b32 v12, 3, v11")
    A("v_bfe_u32 v13, v11, 2, 1")
    A("v_lshl_add_u32 v12, v13, 4, v12")
    A("v_and_b32 v13, 12, v1")
    A("v_add3_u32 v12, v12, v13, 32")
    A("v_subrev_u32 v13, 32, v1")
    A("v_cmp_gt_u32 vcc, 32, v1")
    A("v_cndmask_b32 v14, v13, v12, vcc")
    A("v_lshlrev_b32 v14, 2, v14")
    A("s_mov_b32 s58, 0x1111")
    A("s_mov_b32 s59, 0")


MK = 16


def role_conv(A):
    A("s_barrier")
    conv_setup(A)
    A.label("L_conv")
    NR = 20
    RA, RB, RS = 64, 144, 224
    ACCS = (32, 48)
    CAR, PUL, TMP = 20, (21, 22), 23
    OUT = (24, 28)

    def rdA(m, reg, tag):
        return [(f"ds_read_b64_tr_b16 {vr(reg,2)}, v8 offset:{128*m+32}", None),
                (f"ds_read_b64_tr_b16 {vr(reg+2,2)}, v8 offset:{128*m}", tag)]

    def rdB(b, reg, tag):
        return [(f"ds_read_b128 {vr(reg,4)}, v9 offset:{128*b}", tag)]

    def xload():
        A(f"s_add_u32 m0, s56, {64+4096+512}")
        for i in range(4):
            A(f"buffer_load_dwordx4 v2, s[{SWS}:{SWS+3}], s51 offen offset:{1024*i}{SC} lds")

    Lb, Lg = A.newlabel("L_cb"), A.newlabel("L_cg")
    A("s_waitcnt vmcnt(0)")
    A("s_cmp_ge_u32 s99, 24")
    A(f"s_cbranch_scc1 {Lb}")
    tag_check(A, 22)
    A(f"buffer_load_dwordx2 v[22:23], v12, s[{SWS}:{SWS+3}], s52 offen{SC}")
    A("s_barrier")
    A("s_waitcnt vmcnt(0)")
    A(f"v_cmp_eq_u64 vcc, s[{TAG}:{TAG+1}], v[22:23]")
    A("s_cmp_eq_u64 vcc, -1")
    Lx = A.newlabel("L_cx")
    A(f"s_cbranch_scc1 {Lx}")
    poll(A, 22, 12, "s52", sleep=8)
    A.label(Lx)
    stamp(A, 8)
    xload()
    A.label(Lb)
    A("s_waitcnt lgkmcnt(0)")
    A("s_lshl_b32 s54, s54, 16")
    A("s_lshl_b32 s53, s55, 16")
    A("s_and_b32 s55, s55, 0xffff0000")
    A("s_bitcmp1_b32 s49, 0")
    A("s_cselect_b32 s53, s55, s53")
    A("v_mov_b32 v15, s54")
    A("v_add_f32 v15, s53, v15")
    A("v_cvt_pk_bf16_f32 v15, v15, v15")
    T = Lgkm(A)
    for m in range(NR):
        for x, tg in rdA(m, RA + 4 * m, ("A", m)):
            T.issue(x, tg)
    T.wait(("A", 0))
    for k in range(4):
        A(f"v_bfi_b32 v{RA+k}, v{MK+k}, v15, v{RA+k}")
    T.all()
    A("s_cmp_ge_u32 s99, 24")
    A(f"s_cbranch_scc0 {Lg}")
    A("s_barrier")
    stamp(A, 8)
    xload()
    A.label(Lg)
    A(f"s_add_u32 s51, s50, {WS_YT:#x}")
    A(f"v_mov_b32 v{PUL[1]}, 0")

    sched = []
    for i in range(8):
        ms = list(range(4 * i + 4))
        res = [m for m in ms if m < NR and 4 * i + 3 - m < NR]
        stm = [m for m in ms if m not in res]
        sched += [(i, m) for m in res + stm]
    streams = []
    for k, (i, m) in enumerate(sched):
        b = 4 * i + 3 - m
        if m >= NR:
            streams.append((k, "A", m))
        elif b >= NR:
            streams.append((k, "B", b))
    slot_of = {k: n % 8 for n, (k, _, _) in enumerate(streams)}

    def epilogue(i):
        V = ACCS[i & 1]
        own = [f"v_add_f32_dpp v{V+4*j}, v{V+4*j+k}, v{V+4*j} row_shr:{4*k} row_mask:0xf bank_mask:0xf"
               for k in (1, 2, 3) for j in range(4)]
        car = [f"v_add_f32_dpp v{CAR}, v{V+12+k}, v{CAR} row_shl:{16-4*k} row_mask:0xf bank_mask:0xf" for k in (1, 2, 3)]
        L = [f"v_mov_b32 v{CAR}, 0"] + own[0:2] + car[0:1] + own[2:4] + car[1:2] + own[4:6] + car[2:3]
        L.append(("ds", f"ds_bpermute_b32 v{PUL[i&1]}, v14, v{CAR}", ("P", i)))
        L += own[6:]
        for k in (1, 2, 3):
            for j in (0, 1, 2):
                L.append(f"v_add_f32_dpp v{V+4*j+4}, v{V+4*j+k}, v{V+4*j+4} row_shl:{16-4*k} row_mask:0xf bank_mask:0xf")
        o = OUT[(i >> 1) & 1] + 2 * (i & 1)
        L.append(f"v_cvt_pk_bf16_f32 v{o+1}, v{V+8}, v{V+12}")
        L.append(("wait", ("P", i)))
        L.append(f"v_cndmask_b32 v{TMP}, v{PUL[i&1]}, v{PUL[1-(i&1)]}, s[58:59]")
        L.append(f"v_add_f32 v{V}, v{V}, v{TMP}")
        L.append(f"v_cvt_pk_bf16_f32 v{o}, v{V}, v{V+4}")
        if i & 1:
            L.append(f"buffer_store_dwordx4 {vr(OUT[(i>>1)&1],4)}, v2, s[{SWS}:{SWS+3}], s51 offen offset:{1024*(i>>1)}{SC}")
        return L

    def emit(x):
        if isinstance(x, tuple):
            if x[0] == "ds":
                T.issue(x[1], x[2])
            else:
                T.wait(x[1])
        else:
            A(x)

    A("s_waitcnt vmcnt(0)")
    stampw(A, 9)
    for b in range(8):
        for x, tg in rdB(b, RB + 4 * b, ("B", b)):
            T.issue(x, tg)
    nres = 8
    nst = 0
    fill = []
    first = {}
    for k, (i, m) in enumerate(sched):
        first.setdefault(i, k)
    for k, (i, m) in enumerate(sched):
        V = ACCS[i & 1]
        b = 4 * i + 3 - m
        if k == first[i]:
            while fill:
                emit(fill.pop(0))
            if i > 0:
                fill = epilogue(i - 1)
        if k in slot_of:
            T.wait(("S", k))
        if b < NR:
            T.wait(("B", b))
        ra = RA + 4 * m if m < NR else RS + 4 * slot_of[k]
        rb = RB + 4 * b if b < NR else RS + 4 * slot_of[k]
        c = vr(V, 16) if k != first[i] else "0"
        A(f"v_mfma_f32_32x32x16_bf16 {vr(V,16)}, {vr(ra,4)}, {vr(rb,4)}, {c}")
        budget = 5
        if nres < NR:
            for x, tg in rdB(nres, RB + 4 * nres, ("B", nres)):
                T.issue(x, tg)
            nres += 1
            budget -= 1
        elif nst < len(streams) and (nst < 8 or streams[nst - 8][0] < k) and streams[nst][0] - k <= 10:
            kk, kind, fr = streams[nst]
            for x, tg in (rdA if kind == "A" else rdB)(fr, RS + 4 * slot_of[kk], ("S", kk)):
                T.issue(x, tg)
                budget -= 1
            nst += 1
        if k > first[i]:
            for _ in range(budget):
                if fill:
                    emit(fill.pop(0))
    while fill:
        emit(fill.pop(0))
    stampw(A, 10)
    T.done = T.n if Ctx.stamps else T.done
    for x in epilogue(7):
        emit(x)
    A("s_waitcnt vmcnt(0)")
    stamp(A, 11)
    A("s_cmp_ge_u32 s99, 24")
    A("s_cbranch_scc1 L_bdone")
    A(f"v_mov_b32 v10, {L_SYNC+12}")
    A("v_mov_b32 v11, 1")
    A("s_mov_b64 exec, 1")
    A("ds_add_rtn_u32 v12, v10, v11")
    A("s_mov_b64 exec, -1")
    A("s_lshl_b32 s52, s98, 4")
    A("s_add_u32 s52, s52, s99")
    A("s_lshl_b32 s52, s52, 7")
    A(f"s_add_u32 s52, s52, {F4+8*128:#x}")
    A("s_waitcnt lgkmcnt(0)")
    A("v_readfirstlane_b32 s53, v12")
    A("s_cmp_eq_u32 s53, 3")
    A("s_cbranch_scc0 L_bend")
    set_flag(A, 10, "s52")
    A("s_branch L_bend")
    A.label("L_bdone")


def role_post(A):
    SQ, SO = 32, 36
    A.label("L_post")
    A("s_lshl_b32 s48, s48, 2")
    A("s_lshr_b32 s48, 0x43002100, s48")
    A("s_and_b32 s48, s48, 7")
    A("s_mul_i32 s49, s98, 40")
    A("s_sub_u32 s50, s99, 24")
    A("s_mul_i32 s50, s50, 5")
    A("s_add_u32 s49, s49, s50")
    A("s_add_u32 s49, s49, s48")
    A("s_and_b32 s50, s49, 31")
    A("s_lshr_b32 s51, s49, 5")
    A("v_lshrrev_b32 v2, 3, v1")
    A("v_and_b32 v3, 7, v1")
    A("v_lshlrev_b32 v4, 12, v2")
    A("v_lshl_add_u32 v4, v3, 4, v4")
    A("s_lshl_b32 s52, s51, 18")
    A("s_lshl_b32 s53, s50, 7")
    A("s_add_u32 s52, s52, s53")
    A(f"s_add_u32 s52, s52, {WS_YT:#x}")
    A("s_mul_i32 s56, s48, 8320")
    A(f"s_add_u32 s56, s56, {B_PRE}")
    A("s_lshr_b32 s54, s50, 3")
    A("s_lshl_b32 s54, s54, 9")
    A("s_bfe_u32 s55, s50, 0x10002")
    A("s_lshl_b32 s55, s55, 4")
    A("s_add_u32 s54, s54, s55")
    A("s_bfe_u32 s55, s50, 0x10001")
    A("s_lshl_b32 s55, s55, 7")
    A("s_add_u32 s54, s54, s55")
    A("s_and_b32 s55, s50, 1")
    A("s_lshl_b32 s55, s55, 1")
    A("s_add_u32 s54, s54, s55")
    A("v_and_b32 v5, 3, v2")
    A("v_lshrrev_b32 v6, 2, v2")
    A("v_lshl_add_u32 v5, v5, 5, v6")
    A("v_mul_u32_u24 v6, 1280, v5")
    A("v_lshlrev_b32 v7, 1, v6")
    A("v_lshl_add_u32 v6, v3, 4, v6")
    A("v_lshl_add_u32 v7, v3, 4, v7")
    A("s_mul_i32 s54, s54, 1280")
    A("s_lshl_b32 s53, s51, 7")
    A("s_lshl_b32 s55, s54, 1")
    A("s_add_u32 s54, s54, s53")
    A("s_add_u32 s55, s55, s53")
    A("s_add_u32 s55, s55, 1280")
    srd(A, SQ, S_BQ, NB_X)
    srd(A, SO, S_OUT, NB_OUT)
    QR, YR = 16, 48
    rows = [0, 4, 8, 12, 256, 260, 264, 268]
    if Opt.wopf == "b":
        Ln = A.newlabel("L_npf")
        A("s_cmp_ge_u32 s48, 3")
        A(f"s_cbranch_scc0 {Ln}")
        srd(A, 40, S_WO, NB_WO)
        A("s_sub_u32 s57, s99, 24")
        A("s_lshl_b32 s57, s57, 1")
        A("s_add_u32 s57, s57, s48")
        A("s_sub_u32 s57, s57, 3")
        A("s_lshl_b32 s57, s57, 13")
        A("v_lshlrev_b32 v8, 7, v1")
        for i in range(7):
            A(f"buffer_load_dword v{200+i}, v8, s[40:43], s57 offen")
            A(f"s_add_u32 s57, s57, {16*8192}")
        A.label(Ln)
    for i in range(8):
        A(f"s_add_u32 s57, s54, {rows[i]*1280}")
        A(f"buffer_load_dwordx4 {vr(QR+4*i,4)}, v6, s[{SQ}:{SQ+3}], s57 offen{Opt.nt_s}")
    A("s_mov_b32 s59, 0xffff0000")
    QF = 128
    A("s_waitcnt vmcnt(0)")
    for i in range(32):
        A(f"v_lshlrev_b32 v{QF+2*i}, 16, v{QR+i}")
        A(f"v_and_b32 v{QF+2*i+1}, s59, v{QR+i}")
    A("s_lshl_b32 s57, s98, 4")
    A("s_sub_u32 s58, s57, 16")
    A("v_min_u32 v12, 47, v1")
    A("v_add_u32 v12, s58, v12")
    A("v_max_i32 v12, 0, v12")
    A("v_min_u32 v12, 127, v12")
    A("v_lshlrev_b32 v12, 7, v12")
    A("s_add_u32 s57, s57, s99")
    A("s_lshl_b32 s57, s57, 7")
    A(f"s_add_u32 s57, s57, {F4-24*128:#x}")
    A(f"s_mov_b32 s58, {F4:#x}")
    Lx = A.newlabel("L_p7")
    A("s_barrier")
    A("s_cmp_eq_u32 s48, 4")
    A(f"s_cbranch_scc0 {Lx}")
    set_flag(A, 8, "s57")
    poll(A, 14, 12, "s58", sleep=4)
    A.label(Lx)
    A("s_barrier")
    if Opt.dB:
        A(f"s_sleep {Opt.dB}")
    stamp(A, 12)
    for i in range(8):
        A(f"v_xor_b32 v8, {16*i}, v4")
        A(f"s_add_u32 m0, s56, {1024*i}")
        A(f"buffer_load_dwordx4 v8, s[{SWS}:{SWS+3}], s52 offen{SC} lds")
        if i < 7:
            A(f"s_add_u32 s52, s52, {8*4096}")
    A("v_xor_b32 v8, v2, v3")
    A("v_lshlrev_b32 v8, 4, v8")
    A("v_lshl_add_u32 v8, v3, 10, v8")
    A("v_add_u32 v8, s56, v8")
    A("s_waitcnt vmcnt(0)")
    for c in range(8):
        A(f"ds_read_b128 {vr(YR+4*c,4)}, v8 offset:{128*c}")
    A("s_waitcnt lgkmcnt(0)")
    stamp(A, 13)
    YF, OUT = 80, 96
    for i in range(8):
        for c in range(8):
            if i & 1:
                A(f"v_and_b32 v{YF+c}, s59, v{YR+4*c+i//2}")
            else:
                A(f"v_lshlrev_b32 v{YF+c}, 16, v{YR+4*c+i//2}")
        for c in range(0, 8, 2):
            A(f"v_pk_mul_f32 {vr(YF+c,2)}, {vr(YF+c,2)}, {vr(QF+8*i+c,2)}")
        for k in range(4):
            A(f"v_cvt_pk_bf16_f32 v{OUT+4*i+k}, v{YF+2*k}, v{YF+2*k+1}")
        A(f"s_add_u32 s57, s55, {rows[i]*2560}")
        A(f"buffer_store_dwordx4 {vr(OUT+4*i,4)}, v7, s[{SO}:{SO+3}], s57 offen{Opt.osc}")
    stamp(A, 14)


def build():
    A = Asm()
    k = NAME + "_kernel"
    A.raw(f".globl {k}")
    A.raw(".p2align 8")
    A.raw(f".type {k},@function")
    A.label(k)
    load_kernargs(A)
    stamp_init(A)
    A("v_lshrrev_b32 v2, 6, v0")
    A("v_and_b32 v1, 63, v0")
    A("v_readfirstlane_b32 s100, v2")
    A("s_and_b32 s98, s2, 7")
    A("s_lshr_b32 s99, s2, 3")
    A("s_cmp_ge_u32 s2, 192")
    A("s_cbranch_scc1 L_b")
    A("s_and_b32 s49, s2, 3")
    A("s_lshl_b32 s49, s49, 2")
    A("s_and_b32 s50, s99, 3")
    A("s_add_u32 s49, s49, s50")
    A("s_bfe_u32 s52, s2, 0x10002")
    A("s_lshr_b32 s53, s2, 5")
    A("s_lshl_b32 s54, s52, 1")
    A("s_add_u32 s54, s54, s53")
    A("s_lshl_b32 s55, s52, 2")
    A("s_add_u32 s55, s55, s53")
    A("s_sub_u32 s55, s55, 2")
    A("s_cmp_lt_u32 s2, 64")
    A("s_cselect_b32 s50, s54, s55")
    A("s_cselect_b32 s51, 1, 0")
    A("s_and_b32 s48, s100, 3")
    A("s_cmp_ge_u32 s100, 4")
    A("s_cbranch_scc1 L_c")
    role_loader(A)
    A.label("L_c")
    role_compute(A)
    A.label("L_b")
    A("s_cmp_ge_u32 s2, 256")
    A("s_cbranch_scc1 L_exit")
    A("s_mov_b32 s48, s100")
    A("s_cmp_ge_u32 s48, 5")
    A("s_cbranch_scc1 L_help")
    role_pre(A)
    A("s_branch L_bconv")
    A.label("L_help")
    role_helper(A)
    A.label("L_bconv")
    role_conv(A)
    A("s_bitcmp1_b32 0x32, s48")
    A("s_cbranch_scc1 L_bend")
    role_post(A)
    A.label("L_bend")
    end_wave(A)
    A.label("L_exit")
    A("s_endpgm")
    A.label("L_code_end")
    head = ["; generated by gen/f3.py",
            "; @launch grid=(256,1,1) block=(512,1,1) lds=163840"]
    txt = "\n".join(head) + '\n.amdgcn_target "amdgcn-amd-amdhsa--gfx950"\n.text\n' + A.text()
    txt += f'''.section .rodata,"a"
.p2align 6
.amdhsa_kernel {k}
  .amdhsa_next_free_vgpr 256
  .amdhsa_next_free_sgpr 102
  .amdhsa_accum_offset 256
  .amdhsa_group_segment_fixed_size 0
  .amdhsa_kernarg_size 104
  .amdhsa_user_sgpr_count 2
  .amdhsa_user_sgpr_kernarg_segment_ptr 1
  .amdhsa_system_sgpr_workgroup_id_x 1
.end_amdhsa_kernel
'''
    return txt


if __name__ == "__main__":
    args = sys.argv[2:]
    Ctx.stamps = "stamps" in args
    Opt.rot = "norot" not in args
    Opt.codepf = "nocodepf" not in args
    for a in args:
        if a.startswith("probe="):
            Opt.probe = tuple(int(x) for x in a[6:].split(","))
        if a.startswith("dA="):
            Opt.dA = int(a[3:])
        if a.startswith("dB="):
            Opt.dB = int(a[3:])
        if a == "nowomall":
            Opt.womall = False
        if a == "noppoll":
            Opt.ppoll = False
        if a.startswith("psleep="):
            Opt.psleep = int(a[7:])
        if a.startswith("wopf="):
            Opt.wopf = a[5:]
    for a in args:
        if a.startswith("LA="):
            Opt.LA = int(a[3:])
    open(sys.argv[1], "w").write(build())
```

```python
import sys
from asm import Asm, vr, ar, sr
from roles import (WS_PHIQ, WS_PART, WS_O, WS_KVT, WS_YT, WS_STAMP, WS_SIZE, S_X, S_W, S_WPHI, S_WO, S_BQ, S_BK, S_BV,
                   S_SH, S_SSK, S_SSD, S_OUT, S_DBG, S_WS, NB_X, NB_W, NB_WPHI, NB_WO, NB_SH, NB_SSK, NB_OUT, LOG2E,
                   Ctx, load_kernargs, srd, stamp, stamp_init, softmax20)

NAME = "concat_heads__linear_kernel_hedgehog__ssm_conv_h3__prompt"
WS_PQ = WS_PHIQ
WS_FLAG = 0xF00000
F1, F2, F3, F0, F4 = (WS_FLAG + 128 * o for o in (0, 512, 1024, 1536, 1856))
WS_EPOCH = WS_FLAG + 128 * 2560 + 64
SWS = 44
SC = " sc1"
TAG = 30
SLOT = 36864
L_WP = 147456
L_Z = L_WP + 8192
L_SYNC = L_Z + 4096
L_V = 128 * 336
L_WOB = 65536
L_OT = 65536
CV_LDS = 8768
L_QCV = 3 * SLOT
B_PRE = 6 * CV_LDS


class Opt:
    rot = True
    LA = 2
    nt_s = " nt"
    codepf = True
    wopf = "no"
    osc = " nt"
    ppoll = False
    womall = True
    probe = None
    dA = 0
    hold = 0
    dB = 0
    psleep = 2


def end_wave(A):
    if Ctx.stamps:
        stamp(A, 15, True)
        A("s_waitcnt lgkmcnt(0)")
        A("s_mov_b64 exec, -1")
        A("v_mov_b32 v2, 0")
        for k in range(16):
            A(f"v_writelane_b32 v2, s{64+2*k}, {k}")
        A("s_lshl_b32 s62, s2, 3")
        A("s_add_u32 s62, s62, s100")
        A("s_lshl_b32 s62, s62, 6")
        A(f"s_add_u32 s62, s62, {WS_STAMP:#x}")
        A("v_lshlrev_b32 v1, 2, v1")
        A("s_mov_b64 exec, 0xffff")
        A(f"buffer_store_dword v2, v1, s[{SWS}:{SWS+3}], s62 offen")
        if Opt.probe:
            Lp = A.newlabel("L_probe")
            A(f"s_cmp_eq_u32 s2, {Opt.probe[0]}")
            A(f"s_cbranch_scc0 {Lp}")
            A(f"s_cmp_eq_u32 s100, {Opt.probe[1]}")
            A(f"s_cbranch_scc0 {Lp}")
            A("v_subrev_u32 v3, s66, v2")
            A("s_sub_u32 s62, s94, s64")
            A("v_writelane_b32 v3, s62, 15")
            A("v_cmp_ne_u32 vcc, 0, v2")
            A("v_cndmask_b32 v3, 0, v3, vcc")
            A("s_mov_b64 exec, 0xfffc")
            A(f"global_store_dword v1, v3, s[{S_DBG}:{S_DBG+1}]")
            A.label(Lp)
    A("s_endpgm")


def stampw(A, k):
    stamp(A, k)
    if Ctx.stamps:
        A("s_waitcnt lgkmcnt(0)")


def poll(A, vt, voff, soff, sleep=1):
    L, Ld = A.newlabel("L_poll"), A.newlabel("L_polld")
    A("s_movk_i32 s101, 0x4000")
    A.label(L)
    A(f"buffer_load_dwordx2 {vr(vt,2)}, v{voff}, s[{SWS}:{SWS+3}], {soff} offen{SC}")
    A("s_waitcnt vmcnt(0)")
    A(f"v_cmp_eq_u64 vcc, s[{TAG}:{TAG+1}], {vr(vt,2)}")
    A("s_cmp_eq_u64 vcc, -1")
    A(f"s_cbranch_scc1 {Ld}")
    A(f"s_sleep {sleep}")
    A("s_sub_u32 s101, s101, 1")
    A("s_cmp_eq_u32 s101, 0")
    A(f"s_cbranch_scc0 {L}")
    A("s_endpgm")
    A.label(Ld)


def ppoll(A, vt, voff, soff, sleep=1, depth=4):
    if not Opt.ppoll:
        return poll(A, vt, voff, soff, sleep=sleep)
    L, Ld = A.newlabel("L_pp"), A.newlabel("L_ppd")
    ld = lambda k: f"buffer_load_dwordx2 {vr(vt+2*k,2)}, v{voff}, s[{SWS}:{SWS+3}], {soff} offen{SC}"
    A("s_movk_i32 s101, 0x4000")
    for k in range(depth - 1):
        A(ld(k))
        A(f"s_sleep {sleep}")
    A.label(L)
    for k in range(depth):
        A(ld((k + depth - 1) % depth))
        A(f"s_waitcnt vmcnt({depth-1})")
        A(f"v_cmp_eq_u64 vcc, s[{TAG}:{TAG+1}], {vr(vt+2*k,2)}")
        A("s_cmp_eq_u64 vcc, -1")
        A(f"s_cbranch_scc1 {Ld}")
        A(f"s_sleep {sleep}")
    A("s_sub_u32 s101, s101, 1")
    A("s_cmp_eq_u32 s101, 0")
    A(f"s_cbranch_scc0 {L}")
    A("s_endpgm")
    A.label(Ld)


def set_flag(A, vt, soff):
    A(f"v_mov_b32 v{vt}, s{TAG}")
    A(f"v_mov_b32 v{vt+1}, s{TAG+1}")
    A(f"v_lshlrev_b32 v{vt+2}, 3, v1")
    A("s_waitcnt vmcnt(0)")
    A("s_mov_b64 exec, 0xffff")
    A(f"buffer_store_dwordx2 {vr(vt,2)}, v{vt+2}, s[{SWS}:{SWS+3}], {soff} offen{SC}")
    A("s_mov_b64 exec, -1")


def tag_issue(A):
    A(f"s_load_dwordx2 s[{TAG}:{TAG+1}], s[{S_DBG}:{S_DBG+1}], 0")


def tag_check(A, vt):
    L, Ld = A.newlabel("L_hs"), A.newlabel("L_hsd")
    A("s_waitcnt lgkmcnt(0)")
    A(f"s_cmp_lg_u32 s{TAG}, s{TAG+1}")
    A(f"s_cbranch_scc1 {Ld}")
    A("s_movk_i32 s101, 0x4000")
    A(f"v_mov_b32 v{vt+2}, 0")
    A.label(L)
    A(f"global_load_dwordx2 {vr(vt,2)}, v{vt+2}, s[{S_DBG}:{S_DBG+1}]{SC}")
    A("s_waitcnt vmcnt(0)")
    A(f"v_readfirstlane_b32 s{TAG}, v{vt}")
    A(f"v_readfirstlane_b32 s{TAG+1}, v{vt+1}")
    A("s_nop 3")
    A(f"s_cmp_lg_u32 s{TAG}, s{TAG+1}")
    A(f"s_cbranch_scc1 {Ld}")
    A("s_sleep 8")
    A("s_sub_u32 s101, s101, 1")
    A("s_cmp_eq_u32 s101, 0")
    A(f"s_cbranch_scc0 {L}")
    A("s_endpgm")
    A.label(Ld)


def lds_arrive(A, vt, addr):
    A(f"v_mov_b32 v{vt}, {addr}")
    A(f"v_mov_b32 v{vt+1}, 1")
    A("s_waitcnt lgkmcnt(0)")
    A("s_mov_b64 exec, 1")
    A(f"ds_add_u32 v{vt}, v{vt+1}")
    A("s_mov_b64 exec, -1")


def lds_wait(A, vt, addr, n, sleep=0):
    L, Ld = A.newlabel("L_lw"), A.newlabel("L_lwd")
    if addr is not None:
        A(f"v_mov_b32 v{vt}, {addr}")
    A("s_mov_b32 s101, 0x40000")
    A.label(L)
    A(f"ds_read_b32 v{vt+1}, v{vt}")
    A("s_waitcnt lgkmcnt(0)")
    A(f"v_cmp_le_u32 vcc, {n}, v{vt+1}")
    A(f"s_cbranch_vccnz {Ld}")
    if sleep:
        A(f"s_sleep {sleep}")
    A("s_sub_u32 s101, s101, 1")
    A("s_cmp_eq_u32 s101, 0")
    A(f"s_cbranch_scc0 {L}")
    A("s_endpgm")
    A.label(Ld)


class Lgkm:
    def __init__(self, A):
        self.A, self.n, self.done, self.tag = A, 0, 0, {}

    def issue(self, text, tag=None):
        self.A(text)
        self.n += 1
        if tag is not None:
            self.tag[tag] = self.n

    def wait(self, *tags):
        need = max(self.tag[t] for t in tags)
        if need > self.done:
            self.A(f"s_waitcnt lgkmcnt({min(15, self.n - need)})")
            self.done = max(need, self.n - 15)

    def all(self):
        if self.done < self.n:
            self.A("s_waitcnt lgkmcnt(0)")
            self.done = self.n


def o_index(A):
    A("s_sub_u32 s63, s99, 8")
    A("s_lshr_b32 s62, s63, 2")
    A("s_lshl_b32 s3, s98, 2")
    A("s_add_u32 s62, s62, s3")
    A("s_and_b32 s63, s63, 3")
    A("s_lshl_b32 s63, s63, 2")
    A("s_add_u32 s63, s63, s48")


def role_loader(A):
    SX, SW, SP = 32, 36, 40
    VX, VW = 24, 28
    t0, t1, t2, t3 = 11, 12, 13, 14
    A("s_setprio 1")
    A(f"v_lshrrev_b32 v{t0}, 3, v1")
    A(f"v_mul_u32_u24 v{t0}, 1280, v{t0}")
    A(f"v_lshrrev_b32 v{t1}, 4, v1")
    A(f"v_and_b32 v{t2}, 7, v1")
    A(f"v_xor_b32 v{t1}, v{t1}, v{t2}")
    A(f"v_xor_b32 v{t2}, 4, v{t1}")
    A(f"v_lshl_add_u32 v{VX}, v{t1}, 4, v{t0}")
    A(f"v_lshl_add_u32 v{VX+1}, v{t2}, 4, v{t0}")
    A(f"v_add_u32 v{VX+2}, {2*(8*1280-1024)}, v{VX}")
    A(f"v_add_u32 v{VX+3}, {3*(8*1280-1024)}, v{VX+1}")
    A(f"v_add_u32 v{VX+1}, {8*1280-1024}, v{VX+1}")
    A("s_lshl_b32 s60, s49, 2")
    A("s_add_u32 s60, s60, s48")
    A(f"s_mul_i32 s60, s60, {32*1280}")
    if Opt.rot:
        A("s_lshl_b32 s30, s49, 2")
        A("s_bfe_u32 s30, s30, 0x40000")
        A("s_lshr_b32 s30, 0x8530, s30")
        A("s_and_b32 s30, s30, 15")
        A("s_and_b32 s31, s99, 28")
        A("s_lshr_b32 s31, 0x875320, s31")
        A("s_and_b32 s31, s31, 15")
        A("s_add_u32 s30, s30, s31")
        A("s_sub_u32 s31, s30, 10")
        A("s_cmp_ge_u32 s30, 10")
        A("s_cselect_b32 s30, s31, s30")
        A("s_lshl_b32 s31, s30, 7")
        A("s_add_u32 s60, s60, s31")
    A("s_lshl_b32 s62, s48, 12")
    A("s_mov_b32 m0, s62")
    A(f"s_mov_b32 s{SX+2}, {NB_X:#x}")
    A(f"s_mov_b32 s{SX+3}, 0x20000")
    A("s_waitcnt lgkmcnt(0)")
    A(f"s_mov_b64 s[{SX}:{SX+1}], s[{S_X}:{S_X+1}]")

    def dma_x(s):
        if s:
            A(f"s_add_u32 m0, s62, {(s % 3) * SLOT}")
        for i in range(4):
            A(f"buffer_load_dwordx4 v{VX+i}, s[{SX}:{SX+3}], s60 offen offset:{1024*i} lds")

    def dma_w(s):
        sl = (s % 3) * SLOT
        A(f"s_add_u32 m0, s63, {sl}")
        for i in range(4):
            A(f"buffer_load_dwordx4 v{VW+i}, s[{SW}:{SW+3}], s61 offen offset:{1024*i} lds")
        A(f"s_add_u32 m0, s63, {sl+4096}")
        A(f"buffer_load_dwordx4 v{VW+4}, s[{SW}:{SW+3}], s61 offen lds")
        if s < 9:
            if Opt.rot:
                A("s_add_u32 s30, s30, 1")
                A("s_cmp_eq_u32 s30, 10")
                A(f"s_cselect_b32 s31, {(-1152)&0xffffffff:#x}, s97")
                A(f"s_cselect_b32 s3, {(-9*64*3840)&0xffffffff:#x}, s96")
                A("s_add_u32 s60, s60, s31")
                A("s_add_u32 s61, s61, s3")
            else:
                A("s_add_u32 s60, s60, 128")
                A(f"s_add_u32 s61, s61, {64*3840}")

    dma_x(0)
    A("s_cmp_eq_u32 s51, 0")
    A("s_cselect_b32 s56, 1120, 0")
    A(f"v_lshlrev_b32 v{t3}, 4, v1")
    A(f"v_mul_u32_u24 v{t2}, 6554, v1")
    A("s_movk_i32 s57, 3520")
    for i in range(5):
        if i:
            A(f"v_add_u32 v{t2}, {64*6554}, v{t2}")
        A(f"v_lshrrev_b32 v{t0}, 17, v{t2}")
        A(f"v_bfe_u32 v{t1}, v{t2}, 16, 1")
        A(f"v_mad_u32_u24 v{t0}, v{t0}, s57, v{t3}")
        A(f"v_mad_u32_u24 v{VW+i}, v{t1}, s56, v{t0}")
    A(f"v_add_u32 v{VW+4}, 4096, v{VW+4}")
    A(f"s_mul_i32 s61, s48, {16*3840}")
    A("s_mul_i32 s57, s50, 160")
    A("s_add_u32 s58, s57, 1280")
    A("s_lshl_b32 s57, s57, 1")
    A("s_cmp_eq_u32 s51, 0")
    A("s_cselect_b32 s57, s58, s57")
    A("s_add_u32 s61, s61, s57")
    if Opt.rot:
        A(f"s_mov_b32 s96, {64*3840}")
        A("s_movk_i32 s97, 128")
        A("s_mul_i32 s31, s30, s96")
        A("s_add_u32 s61, s61, s31")
    A("s_mul_i32 s63, s48, 5120")
    A("s_add_u32 s63, s63, 16384")
    srd(A, SW, S_W, NB_W)
    dma_w(0)
    stamp(A, 2)
    A("s_mul_i32 s57, s50, 3200")
    A("s_lshl_b32 s57, s57, s51")
    A("s_lshl_b32 s58, s48, 11")
    A("s_add_u32 s57, s57, s58")
    srd(A, SP, S_WPHI, NB_WPHI)
    A(f"s_add_u32 m0, s58, {L_WP}")
    A(f"buffer_load_dwordx4 v{t3}, s[{SP}:{SP+3}], s57 offen lds")
    A(f"buffer_load_dwordx4 v{t3}, s[{SP}:{SP+3}], s57 offen offset:1024 lds")
    srd(A, SWS, S_WS, WS_SIZE)
    Lh = A.newlabel("L_noh")
    A("s_cmp_eq_u32 s51, 0")
    A(f"s_cbranch_scc1 {Lh}")
    A("s_mul_i32 s49, s98, 80")
    A("s_lshl_b32 s50, s99, 2")
    A("s_add_u32 s49, s49, s50")
    A("s_add_u32 s49, s49, s48")
    A("s_add_u32 s49, s49, 48")
    A(f"s_mul_i32 s56, s48, {CV_LDS}")
    A(f"s_add_u32 s56, s56, {L_QCV}")
    conv_load_h(A, t3)
    A.label(Lh)
    assert Opt.LA == 2
    issued = 0
    for s in range(10):
        while issued < min(s + Opt.LA - 1, 9):
            issued += 1
            dma_x(issued)
            dma_w(issued)
        if s == 0:
            Ls = A.newlabel("L_nosetup")
            A("s_cmp_ge_u32 s99, 8")
            A(f"s_cbranch_scc1 {Ls}")
            conv_setup(A)
            f0_lines(A, 49, 49, 12)
            A.label(Ls)
        if s == 9:
            tag_issue(A)
        A(f"s_waitcnt vmcnt({9*(issued-s)})")
        A("s_barrier")
        if s in (0, 3, 6, 9):
            stamp(A, 3 + s // 3)
    A("s_setprio 0")
    A("s_cmp_lt_u32 s99, 8")
    A("s_cbranch_scc1 L_conv")
    role_wo(A)


def role_wo(A):
    SO, SWO = 32, 36
    WR = 64
    A.label("L_wo")
    srd(A, SWO, S_WO, NB_WO)
    if Opt.wopf == "kv":
        Ls = A.newlabel("L_nopf")
        A("s_cmp_lt_u32 s99, 8")
        A(f"s_cbranch_scc1 {Ls}")
        A("s_lshl_b32 s52, s99, 2")
        A("s_add_u32 s52, s52, s48")
        A("s_sub_u32 s52, s52, 32")
        A("s_lshl_b32 s52, s52, 13")
        A(f"s_add_u32 s53, s52, {64*8192}")
        A("v_lshlrev_b32 v2, 7, v1")
        A(f"buffer_load_dword v24, v2, s[{SWO}:{SWO+3}], s52 offen")
        A(f"buffer_load_dword v25, v2, s[{SWO}:{SWO+3}], s53 offen")
        A.label(Ls)
    A("v_lshrrev_b32 v2, 2, v1")
    A("v_and_b32 v3, 3, v1")
    A("v_mul_u32_u24 v4, 1280, v2")
    A("v_lshl_add_u32 v4, v3, 4, v4")
    for i in range(1, 4):
        A(f"v_add_u32 v{4+i}, {i*(16*1280-1024)}, v4")
    A(f"v_add_u32 v8, {4*16*1280}, v4")
    A("s_lshr_b32 s50, s99, 2")
    A("s_sub_u32 s50, s50, 1")
    A("s_max_i32 s50, s50, 0")
    A("s_lshl_b32 s52, s50, 8")
    A("s_lshl_b32 s53, s48, 6")
    A("s_add_u32 s52, s52, s53")
    A("s_mov_b32 s51, s52")
    A("s_mul_i32 s53, s48, 20480")
    A("s_cmp_lt_u32 s99, 8")
    A(f"s_cselect_b32 s54, 0, {L_WOB}")
    A("s_add_u32 s53, s53, s54")

    def cbuf(c):
        return 5120 + ((c + 1) % 3) * 5120

    def chunk(c):
        b = cbuf(c)
        A(f"s_add_u32 m0, s53, {b}")
        for i in range(4):
            A(f"buffer_load_dwordx4 v{4+i}, s[{SWO}:{SWO+3}], s51 offen offset:{1024*i} lds")
        A(f"s_add_u32 m0, s53, {b+4096}")
        A(f"buffer_load_dwordx4 v8, s[{SWO}:{SWO+3}], s51 offen lds")
        A(f"s_add_u32 s51, s51, {80*1280}")

    Lj = A.newlabel("L_woj")
    chunk(0)
    A("s_cmp_lt_u32 s99, 8")
    A(f"s_cbranch_scc1 {Lj}")
    A("s_barrier")
    A.label(Lj)
    chunk(1)
    chunk(2)
    A("v_bfe_u32 v10, v1, 2, 2")
    A("v_lshrrev_b32 v11, 5, v1")
    A("v_and_b32 v12, 1, v1")
    A("v_lshlrev_b32 v12, 5, v12")
    A("v_bfe_u32 v13, v1, 4, 1")
    A("v_lshl_add_u32 v12, v13, 4, v12")
    A("v_bfe_u32 v13, v1, 1, 1")
    A("v_lshl_add_u32 v12, v13, 3, v12")
    A("v_lshl_add_u32 v12, v10, 6, v12")
    A("v_add_u32 v12, s53, v12")
    A("v_lshl_add_u32 v13, v11, 8, v12")
    A("v_mul_u32_u24 v14, 2560, v11")
    A("v_add_u32 v14, v14, v12")
    A("v_and_b32 v9, 31, v1")
    A("v_lshrrev_b32 v15, 4, v1")
    A("v_lshlrev_b32 v15, 7, v15")
    A("v_lshlrev_b32 v18, 4, v1")
    o_index(A)
    tag_check(A, 20)

    def take(c):
        b = cbuf(c)
        for hh in range(4):
            for half in range(2):
                A(f"ds_read_b64_tr_b16 {vr(WR+4*(4*c+hh)+2*half,2)}, v13 offset:{b+(20*hh+8*half)*64}")
        for half in range(2):
            A(f"ds_read_b64_tr_b16 {vr(WR+128+4*c+2*half,2)}, v14 offset:{b+(20*half+16)*64}")

    Lq2 = A.newlabel("L_woq")
    for c in range(6):
        A("s_waitcnt vmcnt(10)")
        take(c)
        A("s_waitcnt lgkmcnt(0)")
        if c + 3 < 8:
            chunk(c + 3)
    stamp(A, 14)
    A("s_cmp_lt_u32 s99, 8")
    A(f"s_cbranch_scc1 {Lq2}")
    A("s_lshr_b32 s54, s62, 3")
    A("s_lshl_b32 s54, s54, 4")
    A("s_add_u32 s54, s54, s63")
    A("s_lshl_b32 s54, s54, 9")
    A(f"s_add_u32 s54, s54, {F2:#x}")
    A("s_lshl_b32 s55, s62, 4")
    A("s_add_u32 s55, s55, s63")
    A("s_mul_i32 s55, s55, 5120")
    poll(A, 16, 15, "s54", sleep=4)
    A("s_mov_b32 m0, s53")
    A("s_add_u32 s54, s55, 4096")
    for i in range(4):
        A(f"buffer_load_dwordx4 v18, s[{SWS}:{SWS+3}], s55 offen offset:{1024*i}{SC} lds")
    A("s_add_u32 m0, s53, 4096")
    A(f"buffer_load_dwordx4 v18, s[{SWS}:{SWS+3}], s54 offen{SC} lds")
    A("s_lshl_b32 s54, s48, 2")
    A(f"s_add_u32 s54, s54, {L_SYNC+16}")
    A("s_waitcnt vmcnt(0)")
    lds_arrive(A, 16, "s54")
    stamp(A, 7)
    A("s_lshl_b32 s54, s62, 2")
    A("s_add_u32 s54, s54, s48")
    A("s_mul_i32 s55, s54, 10240")
    A(f"s_add_u32 s55, s55, {WS_PART:#x}")
    A("s_lshl_b32 s54, s54, 9")
    A(f"s_add_u32 s54, s54, {F1:#x}")
    A("v_min_u32 v19, 20, v9")
    A("v_and_b32 v20, 32, v1")
    A("v_add_u32 v19, v19, v20")
    A("v_lshlrev_b32 v20, 3, v19")
    A("v_lshlrev_b32 v19, 4, v19")
    A("v_add_u32 v21, s53, v18")
    A("v_add_u32 v21, 5120, v21")
    A("s_mov_b32 s59, 0xffff0000")
    lds_wait(A, 16, L_SYNC + 4, 4, sleep=2)
    ppoll(A, 244, 15, "s54", sleep=Opt.psleep)
    stamp(A, 12)
    PR = [24, 34, 44, 54]
    SM, TP = 224, 244
    for p in range(4):
        A(f"buffer_load_dwordx4 {vr(PR[p],4)}, v19, s[{SWS}:{SWS+3}], s55 offen{SC}")
        A(f"buffer_load_dwordx4 {vr(PR[p]+4,4)}, v19, s[{SWS}:{SWS+3}], s55 offen offset:1024{SC}")
        A(f"buffer_load_dwordx2 {vr(PR[p]+8,2)}, v20, s[{SWS}:{SWS+3}], s55 offen offset:2048{SC}")
        if p < 3:
            A("s_add_u32 s55, s55, 2560")
    A("s_setprio 3")
    for p in range(4):
        A(f"s_waitcnt vmcnt({9-3*p})")
        for i in range(10):
            d = SM + 2 * i if p == 0 else TP + 2 * (i % 5)
            A(f"v_lshlrev_b32 v{d}, 16, v{PR[p]+i}")
            A(f"v_and_b32 v{d+1}, s59, v{PR[p]+i}")
            if p:
                A(f"v_pk_add_f32 {vr(SM+2*i,2)}, {vr(SM+2*i,2)}, {vr(d,2)}")
    for q in range(5):
        A(f"ds_write_b128 v21, {vr(SM+4*q,4)} offset:{1024*q}")
    lds_arrive(A, 16, L_SYNC + 8)
    A("s_setprio 0")
    stamp(A, 13)
    A.label(Lq2)
    A("s_waitcnt vmcnt(0)")
    take(6)
    take(7)
    srd(A, SO, S_OUT, NB_OUT)
    A("s_and_b32 s54, s99, 3")
    A("s_lshl_b32 s55, s98, 2")
    A("s_add_u32 s54, s54, s55")
    A("s_lshr_b32 s55, s54, 1")
    A("s_lshl_b32 s55, s55, 12")
    A(f"s_add_u32 s55, s55, {F3:#x}")
    A("s_lshl_b32 s57, s48, 10")
    A("s_add_u32 s55, s55, s57")
    A("v_lshrrev_b32 v15, 3, v1")
    A("v_lshlrev_b32 v15, 7, v15")
    A("s_mul_i32 s57, s54, 81920")
    A(f"s_add_u32 s57, s57, {WS_O:#x}")
    A("s_lshr_b32 s58, s48, 1")
    A("s_mul_i32 s58, s58, 40960")
    A("s_and_b32 s59, s48, 1")
    A("s_lshl_b32 s59, s59, 12")
    A("s_add_u32 s58, s58, s59")
    A("s_add_u32 s57, s57, s58")
    A(f"s_add_u32 s58, s58, {L_OT}")
    A("v_mov_b32 v5, v18")
    A(f"v_add_u32 v6, {L_OT}, v5")
    A(f"v_add_u32 v7, {L_OT+40960}, v5")
    A("v_lshlrev_b32 v10, 3, v9")
    A("v_lshl_add_u32 v10, v11, 9, v10")
    A(f"v_add_u32 v10, {L_OT+32768}, v10")
    A("s_mul_i32 s56, s48, 5120")
    A("s_waitcnt lgkmcnt(0)")
    A("v_mul_u32_u24 v12, 80, v9")
    A("v_lshl_add_u32 v12, v11, 5, v12")
    A("v_add_u32 v12, s56, v12")
    A("v_mul_u32_u24 v13, 80, v2")
    A("v_lshl_add_u32 v13, v3, 4, v13")
    A("v_add_u32 v13, s56, v13")
    A("v_mul_u32_u24 v14, 2560, v2")
    A("v_lshl_add_u32 v14, v3, 4, v14")
    A(f"s_mul_i32 s59, s54, {64*2560}")
    A("s_add_u32 s59, s59, s52")
    lds_wait(A, 16, L_SYNC + 12, 4, sleep=2)
    stamp(A, 8)
    ppoll(A, 48, 15, "s55", sleep=Opt.psleep)
    A("s_barrier")
    stamp(A, 9)
    for k in range(5):
        A(f"s_add_u32 m0, s58, {8192*k}")
        for i in range(4):
            A(f"buffer_load_dwordx4 v5, s[{SWS}:{SWS+3}], s57 offen offset:{1024*i}{SC} lds")
        if k < 4:
            A("s_add_u32 s57, s57, 8192")
    if Ctx.stamps:
        A("s_waitcnt lgkmcnt(0)")
    ACC = (16, 32)
    OFB = 224
    T = Lgkm(A)

    def rdx(f):
        if f % 8 == 0:
            A(f"s_waitcnt vmcnt({16 - 4*(f//8)})")
            A("s_barrier")
        for t in range(2):
            d = OFB + 4 * ((2 * f + t) % 8)
            if f < 32:
                T.issue(f"ds_read_b128 {vr(d,4)}, v{6+t} offset:{1024*f}", (f, t))
            else:
                a = f - 32
                T.issue(f"ds_read_b64 {vr(d,2)}, v10 offset:{40960*t + 1024*a}")
                T.issue(f"ds_read_b64 {vr(d+2,2)}, v10 offset:{40960*t + 1024*a + 256}", (f, t))

    for f in range(3):
        rdx(f)
    for f in range(40):
        for t in range(2):
            T.wait((f, t))
            c = vr(ACC[t], 16) if f else "0"
            A(f"v_mfma_f32_32x32x16_bf16 {vr(ACC[t],16)}, {vr(WR+4*f,4)}, {vr(OFB+4*((2*f+t)%8),4)}, {c}")
            if t == 0 and f + 3 < 40:
                rdx(f + 3)
    stamp(A, 10)
    for t in range(2):
        for i in range(8):
            A(f"v_cvt_pk_bf16_f32 v{48+8*t+i}, v{ACC[t]+2*i}, v{ACC[t]+2*i+1}")
        for i in range(2):
            A(f"ds_write_b128 v12, {vr(48+8*t+4*i,4)} offset:{2560*t+16*i}")
    A("s_waitcnt lgkmcnt(0)")
    for i in range(4):
        A(f"ds_read_b128 {vr(64+4*i,4)}, v13 offset:{1280*i}")
    for i in range(4):
        A(f"s_waitcnt lgkmcnt({3-i})")
        A(f"buffer_store_dwordx4 {vr(64+4*i,4)}, v14, s[{SO}:{SO+3}], s59 offen{Opt.osc}")
        if i < 3:
            A(f"s_add_u32 s59, s59, {16*2560}")
    stamp(A, 11)
    end_wave(A)


def role_compute(A):
    XA, WA, AD = 144, 152, 154
    ACC = 16
    WF = (96, 116)
    XF = (136, 140)
    t0, t1, t2, t3 = 11, 12, 13, 14
    for i in range(80):
        A(f"v_mov_b32 v{ACC+i}, 0")
    A(f"v_and_b32 v{t0}, 255, v0")
    A(f"v_lshlrev_b32 v{t0}, 4, v{t0}")
    A(f"v_add_u32 v{t0}, {L_Z}, v{t0}")
    A(f"ds_write_b128 v{t0}, {vr(ACC,4)}")
    A(f"ds_write_b128 v{t0}, {vr(ACC,4)} offset:64")
    A("s_lshl_b32 s54, s48, 12")
    A(f"v_and_b32 v{t0}, 31, v1")
    A(f"v_lshrrev_b32 v{t1}, 5, v1")
    A(f"v_bfe_u32 v{t2}, v1, 1, 3")
    A(f"v_xor_b32 v{t2}, v{t2}, v{t1}")
    A(f"v_lshlrev_b32 v{t2}, 4, v{t2}")
    A(f"v_lshl_add_u32 v{t2}, v{t0}, 7, v{t2}")
    A(f"v_add_u32 v{XA}, s54, v{t2}")
    for t in range(1, 4):
        A(f"v_xor_b32 v{XA+t}, {32*t}, v{XA}")
    for t in range(4):
        A(f"v_add_u32 v{XA+4+t}, {2*SLOT}, v{XA+t}")
    R8, JJ, HH = 158, 159, 160
    A(f"v_bfe_u32 v{t0}, v1, 2, 2")
    A(f"v_lshl_add_u32 v{R8}, v{t1}, 3, v{t0}")
    A(f"v_bfe_u32 v{t2}, v1, 4, 1")
    A(f"v_bfe_u32 v{t3}, v1, 1, 1")
    A(f"v_lshl_add_u32 v{JJ}, v{t2}, 1, v{t3}")
    A(f"v_and_b32 v{HH}, 1, v1")
    A(f"v_mul_u32_u24 v{t2}, 320, v{R8}")
    A(f"v_mul_u32_u24 v{t3}, 160, v{HH}")
    A(f"v_lshl_add_u32 v{t3}, v{JJ}, 3, v{t3}")
    A(f"v_add_u32 v{WA}, v{t2}, v{t3}")
    A(f"v_add_u32 v{WA}, 16384, v{WA}")
    A(f"v_add_u32 v{WA+1}, {2*SLOT}, v{WA}")
    A("s_movk_i32 s57, 1600")
    A("s_lshl_b32 s57, s57, s51")
    A(f"v_mul_u32_u24 v{t2}, s57, v{HH}")
    A(f"v_mul_u32_u24 v{t3}, 40, v{t0}")
    A(f"v_add_u32 v{t2}, v{t2}, v{t3}")
    A(f"v_lshl_add_u32 v{t2}, v{JJ}, 3, v{t2}")
    A(f"v_add_u32 v{t2}, {L_WP}, v{t2}")
    A(f"v_mov_b32 v{t3}, {L_Z}")
    A(f"v_cmp_eq_u32 vcc, v{HH}, v{t1}")
    A(f"v_cndmask_b32 v{AD}, v{t3}, v{t2}, vcc")
    A(f"v_add_u32 v{t0}, 24, v{t2}")
    A(f"v_cndmask_b32 v{AD+3}, v{t3}, v{t0}, vcc")
    A(f"v_cmp_eq_u32 s[58:59], 0, v{JJ}")
    A("s_and_b64 s[62:63], vcc, s[58:59]")
    A("s_andn2_b64 s[58:59], vcc, s[58:59]")
    A(f"v_add_u32 v{t0}, 32, v{t2}")
    A(f"v_cndmask_b32 v{AD+1}, v{t3}, v{t0}, s[62:63]")
    A(f"v_subrev_u32 v{t0}, 8, v{t2}")
    A(f"v_cndmask_b32 v{AD+2}, v{t3}, v{t0}, s[58:59]")
    A(f"v_and_b32 v{t0}, 31, v1")
    A("s_lshl_b32 s57, s48, 5")
    A(f"v_add_u32 v{t0}, s57, v{t0}")
    A(f"v_mul_u32_u24 v8, 176, v{t0}")
    A(f"v_add_u32 v8, {L_V}, v8")
    A(f"v_mul_u32_u24 v{t3}, 80, v{t1}")
    A(f"v_add_u32 v2, v8, v{t3}")
    A(f"v_mul_u32_u24 v{t2}, 336, v{t0}")
    A(f"v_lshl_add_u32 v3, v{t3}, 1, v{t2}")
    A(f"v_mul_u32_u24 v{t0}, 336, v{R8}")
    A(f"v_mul_u32_u24 v{t1}, 5, v{HH}")
    A(f"v_add_u32 v{t1}, v{t1}, v{JJ}")
    A(f"v_lshl_add_u32 v{t0}, v{t1}, 3, v{t0}")
    A("s_mul_i32 s57, s48, 80")
    A(f"v_add_u32 v6, s57, v{t0}")
    A(f"v_lshl_add_u32 v{t0}, v{JJ}, 1, v{HH}")
    A("s_mul_i32 s57, s48, 5")
    A(f"v_add_u32 v{t1}, s57, v{t0}")
    A(f"v_cmp_gt_u32 vcc, 5, v{t0}")
    A(f"v_cndmask_b32 v{t1}, 20, v{t1}, vcc")
    A(f"v_mul_u32_u24 v{t0}, 176, v{R8}")
    A(f"v_lshl_add_u32 v{t0}, v{t1}, 3, v{t0}")
    A(f"v_add_u32 v7, {L_V}, v{t0}")
    A("v_mov_b32 v4, 0x3f803f80")
    A("v_mov_b32 v5, 0x3f803f80")
    WPF = 164
    frags = [(0, 0), (0, 1), (0, 2), (1, 0), (1, 1), (1, 2), (1, 3), (1, 4), (2, 2), (2, 3), (2, 4)]
    for r in (WPF + 4 * 2 + 2, WPF + 4 * 2 + 3, WPF + 4 * 8, WPF + 4 * 8 + 1):
        A(f"v_mov_b32 v{r}, 0")
    A(f"s_mov_b32 s60, {LOG2E:#x}")
    A(f"s_mov_b32 s61, {LOG2E:#x}")
    A("s_waitcnt lgkmcnt(0)")
    srd(A, SWS, S_WS, WS_SIZE)
    A("s_setprio 2")

    def rd_x(s, t, b):
        sl = s % 3
        return f"ds_read_b128 {vr(XF[b],4)}, v{XA + 4*(sl>>1) + t} offset:{(sl&1)*SLOT}"

    def rd_w(s, t, T, half, b):
        sl = s % 3
        return f"ds_read_b64_tr_b16 {vr(WF[b]+4*T+2*half,2)}, v{WA+(sl>>1)} offset:{(sl&1)*SLOT + (16*t+4*half)*320 + 32*T}"

    def wphi_reads(pas):
        L = []
        for fi, (Tp, u) in enumerate(frags):
            for half in range(2):
                dq = 2 * u + half
                r = WPF + 4 * fi + 2 * half
                if (Tp == 0 and dq == 5) or (Tp == 2 and dq == 4):
                    continue
                ad = {(0, 0): AD, (1, 0): AD + 1, (1, 1): AD + 2, (2, 1): AD + 3}[(Tp, dq // 5)]
                L.append(f"ds_read_b64_tr_b16 {vr(r,2)}, v{ad} offset:{dq*160 + pas*1600}")
        return L

    A("s_barrier")
    stampw(A, 3)
    A(rd_x(0, 0, 0))
    for T in range(5):
        A(rd_w(0, 0, T, 0, 0)); A(rd_w(0, 0, T, 1, 0))
    for s in range(10):
        for t in range(4):
            b = t & 1
            last = (s == 9 and t == 3)
            ns, nt = (s, t + 1) if t < 3 else (s + 1, 0)
            prev_remaining = [8, 6, 4, 2, 0]
            issued = 0
            wp = wphi_reads(0) if last else []
            for T in range(5):
                if not (t == 3 and T >= 2):
                    A(f"s_waitcnt lgkmcnt({prev_remaining[T] + issued})")
                A(f"v_mfma_f32_32x32x16_bf16 {vr(ACC+16*T,16)}, {vr(WF[b]+4*T,4)}, {vr(XF[b],4)}, {vr(ACC+16*T,16)}")
                if t < 3:
                    if T == 0:
                        A(rd_x(ns, nt, 1 - b)); issued += 1
                    A(rd_w(ns, nt, T, 0, 1 - b)); A(rd_w(ns, nt, T, 1, 1 - b)); issued += 2
                elif T == 1:
                    A("s_waitcnt lgkmcnt(0)")
                    A("s_barrier")
                    if not last:
                        A(rd_x(ns, nt, 1 - b))
                        for TT in (0, 1):
                            A(rd_w(ns, nt, TT, 0, 1 - b)); A(rd_w(ns, nt, TT, 1, 1 - b))
                    else:
                        for x in wp[:5]:
                            A(x)
                elif T >= 2:
                    if not last:
                        A(rd_w(ns, nt, T, 0, 1 - b)); A(rd_w(ns, nt, T, 1, 1 - b))
                    else:
                        for x in wp[5 * (T - 1):5 * T]:
                            A(x)
    stamp(A, 4)
    tag_issue(A)
    P = 96
    E, F, TT_ = 208, 228, 248

    def phi_mfma(src, acc):
        seen = set()
        for fi, (Tp, u) in enumerate(frags):
            c = vr(acc + 16 * Tp, 16) if Tp in seen else "0"
            seen.add(Tp)
            A(f"v_mfma_f32_32x32x16_bf16 {vr(acc+16*Tp,16)}, {vr(WPF+4*fi,4)}, {vr(src+4*u,4)}, {c}")

    for i in range(40):
        A(f"v_cvt_pk_bf16_f32 v{P+i}, v{ACC+2*i}, v{ACC+2*i+1}")
    Lq = A.newlabel("L_q")
    A("s_cmp_eq_u32 s51, 0")
    A(f"s_cbranch_scc0 {Lq}")
    mq = A.mark()
    for i in range(20):
        A(f"v_permlane32_swap_b32 v{P+i}, v{P+20+i}")
    tag_check(A, 10)
    phi_mfma(P, ACC)
    for i in range(5):
        A(f"ds_write_b128 v2, {vr(P+20+4*i,4)} offset:{16*i}")
    A("ds_write_b64 v8, v[4:5] offset:160")
    for grp, ph in ((0, 64), (1, 96)):
        softmax20(A, ACC + 20 * grp, E, F, TT_, ph)
        for i in range(5):
            A(f"ds_write_b128 v3, {vr(ph+4*i,4)} offset:{80*grp+16*i}")
    stamp(A, 5)
    lds_arrive(A, 10, L_SYNC)
    A("s_lshl_b32 s57, s50, 2")
    A("s_add_u32 s57, s57, s48")
    A("s_lshl_b32 s57, s57, 4")
    A("s_add_u32 s57, s57, s49")
    A("s_lshl_b32 s59, s57, 7")
    A(f"s_add_u32 s59, s59, {F1:#x}")
    A("s_mul_i32 s57, s57, 2560")
    A(f"s_add_u32 s57, s57, {WS_PART:#x}")
    A("v_lshlrev_b32 v2, 4, v1")
    A("v_lshlrev_b32 v3, 3, v1")
    lds_wait(A, 10, None, 4)
    FA = 64
    T = Lgkm(A)
    for u in range(10):
        if u < 8:
            for half in range(2):
                o = (16 * u + 4 * half)
                T.issue(f"ds_read_b64_tr_b16 {vr(FA+12*u+2*half,2)}, v6 offset:{o*336}")
                T.issue(f"ds_read_b64_tr_b16 {vr(FA+12*u+4+2*half,2)}, v6 offset:{o*336+32}")
                T.issue(f"ds_read_b64_tr_b16 {vr(FA+12*u+8+2*half,2)}, v7 offset:{o*176}", u)
        if u >= 2:
            uu = u - 2
            T.wait(uu)
            for TT in range(2):
                c = vr(ACC + 16 * TT, 16) if uu else "0"
                A(f"v_mfma_f32_32x32x16_bf16 {vr(ACC+16*TT,16)}, {vr(FA+12*uu+4*TT,4)}, {vr(FA+12*uu+8,4)}, {c}")
    o_index(A)
    for i in range(10):
        A(f"v_cvt_pk_bf16_f32 v{48+i}, v{ACC+2*i}, v{ACC+2*i+1}")
    A(f"buffer_store_dwordx2 v[56:57], v3, s[{SWS}:{SWS+3}], s57 offen offset:2048{SC}")
    A("s_mov_b32 exec_lo, 0x00ffffff")
    A("s_mov_b32 exec_hi, 0x00ffffff")
    A(f"buffer_store_dwordx4 v[48:51], v2, s[{SWS}:{SWS+3}], s57 offen{SC}")
    A(f"buffer_store_dwordx4 v[52:55], v2, s[{SWS}:{SWS+3}], s57 offen offset:1024{SC}")
    A("s_mov_b64 exec, -1")
    stamp(A, 6)
    role_o(A)
    end_wave(A)
    A.label(Lq)
    hq = A.mark()
    A("s_nop 1")
    tag_check(A, 10)
    phi_mfma(P, ACC)
    A(f"v_and_b32 v{t0}, 31, v1")
    A(f"v_lshrrev_b32 v{t1}, 5, v1")
    A(f"s_mov_b32 s57, {4*64*1280}")
    A(f"v_mul_lo_u32 v{t1}, s57, v{t1}")
    A(f"v_lshl_add_u32 v2, v{t0}, 4, v{t1}")
    A(f"v_lshl_add_u32 v3, v{t0}, 3, v{t1}")
    A("s_lshl_b32 s58, s49, 2")
    A("s_add_u32 s58, s58, s48")
    for x in wphi_reads(1):
        A(x)
    A("s_lshl_b32 s59, s50, 6")
    A("s_add_u32 s59, s59, s58")
    A("s_lshl_b32 s59, s59, 7")
    A(f"s_add_u32 s59, s59, {F2:#x}")
    A("s_lshl_b32 s57, s50, 9")
    A("s_add_u32 s57, s57, s58")
    A("s_mul_i32 s57, s57, 1280")
    A("s_waitcnt lgkmcnt(0)")
    phi_mfma(P + 20, 208)
    for hs in range(4):
        x = (ACC, ACC + 20, 208, 228)[hs]
        o = 64 + 10 * hs if hs < 3 else 96
        for i in range(10):
            A(f"v_cvt_pk_bf16_f32 v{o+i}, v{x+2*i}, v{x+2*i+1}")
        A(f"buffer_store_dwordx4 {vr(o,4)}, v2, s[{SWS}:{SWS+3}], s57 offen{SC}")
        A(f"buffer_store_dwordx4 {vr(o+4,4)}, v2, s[{SWS}:{SWS+3}], s57 offen offset:512{SC}")
        A(f"buffer_store_dwordx2 {vr(o+8,2)}, v3, s[{SWS}:{SWS+3}], s57 offen offset:1024{SC}")
        if hs < 3:
            A(f"s_add_u32 s57, s57, {64*1280}")
    stamp(A, 6)
    set_flag(A, 10, "s59")
    stamp(A, 7)
    A.check_seam(mq, hq)
    A("s_setprio 0")
    A("s_cmp_lt_u32 s99, 4")
    A("s_cbranch_scc1 L_wo")
    if Opt.hold:
        A.label("L_hold")
        A("s_sleep 4")
        A("s_memrealtime s[66:67]")
        A("s_waitcnt lgkmcnt(0)")
        A("s_sub_u32 s66, s66, s64")
        A(f"s_cmp_lt_u32 s66, {Opt.hold}")
        A("s_cbranch_scc1 L_hold")
    end_wave(A)


def role_o(A):
    NT = 4
    RAW, X, PQ = 64, 104, 128
    A("s_mul_i32 s53, s48, 20480")
    A(f"s_add_u32 s53, s53, {L_WOB}")
    A("v_and_b32 v4, 31, v1")
    A("v_lshl_add_u32 v5, v4, 4, s53")
    A("v_lshl_add_u32 v6, v4, 3, s53")
    A("v_and_b32 v7, 32, v1")
    A("v_lshlrev_b32 v7, 26, v7")
    A("s_lshl_b32 s54, s48, 2")
    A(f"s_add_u32 s54, s54, {L_SYNC+16}")
    A("s_mov_b32 s58, 0xffff0000")
    for t in range(NT):
        A(f"v_mov_b32 v{PQ+12*t+10}, 0")
        A(f"v_mov_b32 v{PQ+12*t+11}, 0")
    set_flag(A, 10, "s59")
    lds_arrive(A, 14, L_SYNC + 4)
    stamp(A, 7)
    lds_wait(A, 14, "s54", 1)
    stampw(A, 8)
    T = Lgkm(A)
    for t in range(NT):
        T.issue(f"ds_read_b128 {vr(RAW+10*t,4)}, v5 offset:{1280*t}")
        T.issue(f"ds_read_b128 {vr(RAW+10*t+4,4)}, v5 offset:{1280*t+512}")
        T.issue(f"ds_read_b64 {vr(RAW+10*t+8,2)}, v6 offset:{1280*t+1024}", t)
    A("s_lshl_b32 s57, s63, 2")
    A("s_mul_i32 s54, s57, 40960")
    A(f"s_add_u32 s54, s54, {WS_O:#x}")
    A("s_lshl_b32 s59, s62, 8")
    A("s_add_u32 s59, s59, s54")
    A("s_add_u32 s59, s59, 32768")
    A("s_lshl_b32 s57, s62, 10")
    A("s_add_u32 s54, s54, s57")
    A("s_lshl_b32 s50, s63, 5")
    A("s_add_u32 s50, s50, s62")
    A("s_lshl_b32 s50, s50, 7")
    A(f"s_add_u32 s50, s50, {F3:#x}")
    mx, se = 124, 126
    for t in range(NT):
        T.wait(t)
        for i in range(10):
            A(f"v_lshl_add_u32 v{X+2*i}, v{RAW+10*t+i}, 16, v7")
            A(f"v_bitop3_b32 v{X+2*i+1}, v{RAW+10*t+i}, s58, v7 bitop3:0x6a")
        A(f"v_max3_f32 v{mx}, v{X}, v{X+1}, v{X+2}")
        A(f"v_max3_f32 v{mx+1}, v{X+3}, v{X+4}, v{X+5}")
        for i in range(6, 18, 4):
            A(f"v_max3_f32 v{mx}, v{mx}, v{X+i}, v{X+i+1}")
            A(f"v_max3_f32 v{mx+1}, v{mx+1}, v{X+i+2}, v{X+i+3}")
        A(f"v_max3_f32 v{mx}, v{mx}, v{X+18}, v{X+19}")
        A(f"v_max_f32 v{mx}, v{mx}, v{mx+1}")
        A(f"v_mul_f32 v{mx}, s60, v{mx}")
        for i in range(0, 20, 2):
            A(f"v_pk_fma_f32 {vr(X+i,2)}, {vr(X+i,2)}, s[60:61], {vr(mx,2)} op_sel_hi:[1,1,0] neg_lo:[0,0,1] neg_hi:[0,0,1]")
        for i in range(20):
            A(f"v_exp_f32 v{X+i}, v{X+i}")
        A(f"v_pk_add_f32 {vr(se,2)}, {vr(X,2)}, {vr(X+2,2)}")
        A(f"v_pk_add_f32 {vr(mx,2)}, {vr(X+4,2)}, {vr(X+6,2)}")
        for i in range(8, 20, 4):
            A(f"v_pk_add_f32 {vr(se,2)}, {vr(se,2)}, {vr(X+i,2)}")
            A(f"v_pk_add_f32 {vr(mx,2)}, {vr(mx,2)}, {vr(X+i+2,2)}")
        A(f"v_pk_add_f32 {vr(se,2)}, {vr(se,2)}, {vr(mx,2)}")
        A(f"v_add_f32 v{se}, v{se}, v{se+1}")
        A(f"v_rcp_f32 v{se}, v{se}")
        for i in range(0, 20, 2):
            A(f"v_pk_mul_f32 {vr(X+i,2)}, {vr(X+i,2)}, {vr(se,2)} op_sel_hi:[1,0]")
        for i in range(10):
            A(f"v_cvt_pk_bf16_f32 v{PQ+12*t+i}, v{X+2*i}, v{X+2*i+1}")
    stamp(A, 9)
    A(f"v_add_u32 v8, {L_WOB+5120}, v2")
    A(f"v_add_u32 v9, {L_WOB+5120+40960}, v2")
    KF = 16
    A(f"v_mov_b32 v{KF+10}, 0")
    A(f"v_mov_b32 v{KF+11}, 0")
    lds_wait(A, 14, L_SYNC + 8, 4)
    stampw(A, 10)
    PR = 32
    T = Lgkm(A)
    for q in range(5):
        for p in range(4):
            T.issue(f"ds_read_b128 {vr(PR+16*q+4*p,4)}, v{8+(p>>1)} offset:{20480*(p&1)+1024*q}", q)
    for q in range(5):
        T.wait(q)
        b = PR + 16 * q
        for h in (0, 2):
            A(f"v_pk_add_f32 {vr(b+h,2)}, {vr(b+h,2)}, {vr(b+4+h,2)}")
            A(f"v_pk_add_f32 {vr(b+8+h,2)}, {vr(b+8+h,2)}, {vr(b+12+h,2)}")
        for h in (0, 2):
            A(f"v_pk_add_f32 {vr(b+h,2)}, {vr(b+h,2)}, {vr(b+8+h,2)}")
        for h in (0, 2):
            A(f"v_cvt_pk_bf16_f32 v{KF+2*q+h//2}, v{b+h}, v{b+h+1}")
    D = [176, 192, 208, 224]
    OP = [32, 40, 48, 56]

    def mf(t):
        for u in range(3):
            c = vr(D[t], 16) if u else "0"
            A(f"v_mfma_f32_32x32x16_bf16 {vr(D[t],16)}, {vr(KF+4*u,4)}, {vr(PQ+12*t+4*u,4)}, {c}")

    if Opt.dA:
        A(f"s_sleep {Opt.dA}")
    mf(0)
    mf(1)
    for t in range(NT):
        d, o = D[t], OP[t]
        A(f"v_add_f32 v10, 0x358637bd, v{d+12}")
        A("v_rcp_f32 v10, v10")
        if t + 2 < NT:
            mf(t + 2)
        for i in range(12):
            A(f"v_mul_f32 v{d+i}, v10, v{d+i}")
        for i in range(6):
            A(f"v_cvt_pk_bf16_f32 v{o+i}, v{d+2*i}, v{d+2*i+1}")
        A(f"buffer_store_dwordx4 {vr(o,4)}, v2, s[{SWS}:{SWS+3}], s54 offen{SC}")
        A("s_mov_b32 exec_hi, 0")
        A(f"buffer_store_dwordx2 {vr(o+4,2)}, v3, s[{SWS}:{SWS+3}], s59 offen{SC}")
        A("s_mov_b64 exec, -1")
        if t < NT - 1:
            A("s_add_u32 s54, s54, 40960")
            A("s_add_u32 s59, s59, 40960")
    stamp(A, 11)
    set_flag(A, 12, "s50")
    lds_arrive(A, 16, L_SYNC + 12)
    stamp(A, 12)


def b_channel(A):
    A("s_mul_i32 s49, s98, 80")
    A("s_sub_u32 s50, s99, 24")
    A("s_mul_i32 s50, s50, 6")
    A("s_add_u32 s49, s49, s50")
    A("s_add_u32 s49, s49, s48")
    A(f"s_mul_i32 s56, s48, {CV_LDS}")


def conv_load_h(A, v):
    SH = 40
    srd(A, SH, S_SSK, NB_SSK)
    A(f"v_lshlrev_b32 v{v}, 4, v1")
    A("s_lshl_b32 s50, s49, 12")
    A("s_add_u32 m0, s56, 64")
    for i in range(4):
        A(f"buffer_load_dwordx4 v{v}, s[{SH}:{SH+3}], s50 offen offset:{1024*i}{Opt.nt_s} lds")


def f0_lines(A, c0, c1, v):
    A(f"s_lshr_b32 s52, s{c0}, 6")
    A("s_mul_i32 s52, s52, 419431")
    A("s_lshr_b32 s52, s52, 16")
    A(f"s_lshr_b32 s53, s{c1}, 6")
    A("s_mul_i32 s53, s53, 419431")
    A("s_add_u32 s53, s53, 406324")
    A("s_lshr_b32 s53, s53, 16")
    A(f"v_lshrrev_b32 v{v}, 2, v1")
    A(f"v_add_u32 v{v}, s52, v{v}")
    A(f"v_min_u32 v{v}, s53, v{v}")
    A(f"v_lshlrev_b32 v{v}, 7, v{v}")
    A(f"s_mov_b32 s52, {F0:#x}")


def role_pre(A):
    SK, SV, SS = 32, 36, 40
    t0, t1, t2 = 2, 3, 4
    A("s_lshl_b32 s49, s98, 3")
    A("s_add_u32 s49, s49, s99")
    A("s_sub_u32 s49, s49, 24")
    A("s_mul_i32 s49, s49, 5")
    A("s_add_u32 s49, s49, s48")
    A("s_and_b32 s50, s49, 31")
    A("s_lshr_b32 s51, s49, 5")
    A(f"s_mul_i32 s52, s50, {64*1280}")
    A("s_lshl_b32 s53, s51, 7")
    A("s_add_u32 s52, s52, s53")
    A(f"v_lshrrev_b32 v{t0}, 3, v1")
    A(f"v_and_b32 v{t1}, 7, v1")
    A(f"v_mul_u32_u24 v{t2}, {8*1280}, v{t0}")
    A(f"v_lshl_add_u32 v{t2}, v{t1}, 4, v{t2}")
    A(f"v_add_u32 v5, s52, v{t2}")
    A(f"v_subrev_u32 v6, {3*1280}, v5")
    A(f"v_subrev_u32 v7, {2*1280}, v5")
    A(f"v_subrev_u32 v8, {1280}, v5")
    A(f"v_lshlrev_b32 v9, 6, v{t1}")
    A("s_lshl_b32 s54, s51, 9")
    A(f"s_movk_i32 s55, {4*1280}")
    A("s_waitcnt lgkmcnt(0)")
    srd(A, SK, S_BK, NB_X)
    srd(A, SV, S_BV, NB_X)
    srd(A, SS, S_SH, NB_SH)
    WR, KR, VR = 16, 32, 76
    for i in range(4):
        A(f"buffer_load_dwordx4 {vr(WR+4*i,4)}, v9, s[{SS}:{SS+3}], s54 offen offset:{16*i}")
    for i in range(3):
        A(f"buffer_load_dwordx4 {vr(KR+4*i,4)}, v{6+i}, s[{SK}:{SK+3}], 0 offen{Opt.nt_s}")

    order = []

    def ld(kind, i):
        so = "0" if i < 4 else "s55"
        if kind == "k":
            A(f"buffer_load_dwordx4 {vr(KR+12+4*i,4)}, v5, s[{SK}:{SK+3}], {so} offen offset:{1280*(i&3)}{Opt.nt_s}")
        else:
            A(f"buffer_load_dwordx4 {vr(VR+4*i,4)}, v5, s[{SV}:{SV+3}], {so} offen offset:{1280*(i&3)}{Opt.nt_s}")
        order.append((kind, i))

    for i in (5, 6, 7):
        ld("k", i)
    ld("k", 0); ld("v", 0); ld("k", 1); ld("v", 1)
    todo = [("k", 2), ("v", 2), ("k", 3), ("v", 3), ("k", 4), ("v", 4), ("v", 5), ("v", 6), ("v", 7)]
    stamp(A, 2)
    srd(A, SWS, S_WS, WS_SIZE)
    A("s_mul_i32 s56, s48, 8320")
    A(f"s_add_u32 s56, s56, {B_PRE}")
    A(f"v_mul_u32_u24 v10, 1040, v{t1}")
    A(f"v_lshl_add_u32 v10, v{t0}, 4, v10")
    A("v_add_u32 v10, s56, v10")
    A("v_lshrrev_b32 v11, 4, v1")
    A("v_lshlrev_b32 v11, 8, v11")
    A("v_and_b32 v12, 3, v1")
    A("v_lshl_add_u32 v11, v12, 6, v11")
    A("v_bfe_u32 v12, v1, 2, 2")
    A("v_lshl_add_u32 v11, v12, 3, v11")
    A("v_add_u32 v11, s56, v11")
    A(f"v_lshlrev_b32 v12, 12, v{t0}")
    A(f"v_lshl_add_u32 v12, v{t1}, 4, v12")
    A("s_lshl_b32 s57, s51, 18")
    A("s_lshl_b32 s58, s50, 7")
    A("s_add_u32 s57, s57, s58")
    A(f"s_add_u32 s57, s57, {WS_KVT:#x}")
    A("s_mov_b32 s59, 0xffff0000")
    WF, KF, VF, TA, OUT = 108, 140, 172, 180, 196

    def unpack(dst, src, n):
        for i in range(n):
            A(f"v_lshlrev_b32 v{dst+2*i}, 16, v{src+i}")
            A(f"v_and_b32 v{dst+2*i+1}, s59, v{src+i}")

    A(f"s_waitcnt vmcnt({3+len(order)})")
    ld(*todo.pop(0)); ld(*todo.pop(0))
    for c in range(8):
        A(f"v_lshlrev_b32 v{WF+c}, 16, v{WR+2*c}")
        A(f"v_and_b32 v{WF+8+c}, s59, v{WR+2*c}")
        A(f"v_lshlrev_b32 v{WF+16+c}, 16, v{WR+2*c+1}")
        A(f"v_and_b32 v{WF+24+c}, s59, v{WR+2*c+1}")
    A(f"s_waitcnt vmcnt({len(order)})")
    ld(*todo.pop(0)); ld(*todo.pop(0))
    for i in range(3):
        unpack(KF + 8 * i, KR + 4 * i, 4)
    for i in range(8):
        need = max(order.index(("k", i)), order.index(("v", i)))
        A(f"s_waitcnt vmcnt({len(order)-1-need})")
        for _ in range(2):
            if todo:
                ld(*todo.pop(0))
        if i == 2:
            b_channel(A)
            conv_load_h(A, 13)
            order.extend([None] * 4)
        unpack(KF + 8 * ((i + 3) & 3), KR + 12 + 4 * i, 4)
        unpack(VF, VR + 4 * i, 4)
        acc = TA + 8 * (i & 1)
        for j in (3, 2, 1, 0):
            kk = KF + 8 * ((i + 3 - j) & 3)
            for c in range(0, 8, 2):
                if j == 3:
                    A(f"v_pk_mul_f32 {vr(acc+c,2)}, {vr(kk+c,2)}, {vr(WF+8*j+c,2)}")
                else:
                    A(f"v_pk_fma_f32 {vr(acc+c,2)}, {vr(kk+c,2)}, {vr(WF+8*j+c,2)}, {vr(acc+c,2)}")
        for c in range(0, 8, 2):
            A(f"v_pk_mul_f32 {vr(acc+c,2)}, {vr(acc+c,2)}, {vr(VF+c,2)}")
        if i & 1:
            for c in range(8):
                A(f"v_cvt_pk_bf16_f32 v{OUT+4*c+i//2}, v{TA+c}, v{TA+8+c}")
    stamp(A, 3)
    for c in range(8):
        A(f"ds_write_b128 v10, {vr(OUT+4*c,4)} offset:{128*c}")
    A("s_waitcnt lgkmcnt(0)")
    T = Lgkm(A)
    for i in range(8):
        T.issue(f"ds_read_b64_tr_b16 {vr(16+4*i,2)}, v11 offset:{1040*i}")
        T.issue(f"ds_read_b64_tr_b16 {vr(18+4*i,2)}, v11 offset:{1040*i+32}", i)
    for i in range(8):
        T.wait(i)
        A(f"buffer_store_dwordx4 {vr(16+4*i,4)}, v12, s[{SWS}:{SWS+3}], s57 offen{SC}")
        if i < 7:
            A(f"s_add_u32 s57, s57, {8*4096}")
    A("s_waitcnt vmcnt(0)")
    stamp(A, 4)


def role_helper(A):
    SD = 40
    A("s_setprio 3")
    A("s_waitcnt lgkmcnt(0)")
    srd(A, SWS, S_WS, WS_SIZE)
    srd(A, SD, S_DBG, 256)
    Lz = A.newlabel("L_nz")
    A("s_cmp_eq_u32 s2, 192")
    A(f"s_cbranch_scc0 {Lz}")
    A("s_cmp_eq_u32 s48, 5")
    A(f"s_cbranch_scc0 {Lz}")
    A(f"s_mov_b32 s57, {WS_EPOCH:#x}")
    A("s_mov_b64 exec, 1")
    A(f"buffer_load_dword v4, off, s[{SWS}:{SWS+3}], s57{SC}")
    A("s_waitcnt vmcnt(0)")
    A("v_add_u32 v4, 1, v4")
    A("v_not_b32 v5, v4")
    A(f"buffer_store_dwordx2 v[4:5], off, s[{SD}:{SD+3}], 0{SC}")
    A(f"buffer_store_dword v4, off, s[{SWS}:{SWS+3}], s57{SC}")
    A("s_mov_b64 exec, -1")
    stamp(A, 2)
    A.label(Lz)
    if Opt.codepf:
        Lp = A.newlabel("L_npf")
        A("s_cmp_eq_u32 s48, 6")
        A(f"s_cbranch_scc0 {Lp}")
        A("s_getpc_b64 s[50:51]")
        A.label("L_pc")
        A(f"s_sub_u32 s50, s50, L_pc-{NAME}_kernel")
        A("s_subb_u32 s51, s51, 0")
        A("s_sub_u32 s52, s99, 24")
        A("s_lshl_b32 s52, s52, 13")
        A("v_lshl_add_u32 v2, v1, 7, s52")
        A(f"v_min_u32 v2, L_code_end-{NAME}_kernel-4, v2")
        A("global_load_dword v24, v2, s[50:51]")
        if Opt.womall:
            srd(A, 36, S_WO, NB_WO)
            A("s_sub_u32 s52, s2, 192")
            A("s_lshl_b32 s52, s52, 14")
            A("s_add_u32 s53, s52, 8192")
            A("v_lshlrev_b32 v2, 7, v1")
            A("buffer_load_dword v25, v2, s[36:39], s52 offen")
            A("buffer_load_dword v26, v2, s[36:39], s53 offen")
        A.label(Lp)
    A("s_setprio 0")
    L6 = A.newlabel("L_h6")
    Lx = A.newlabel("L_h67")
    A("s_cmp_eq_u32 s48, 5")
    A(f"s_cbranch_scc0 {L6}")
    b_channel(A)
    conv_load_h(A, 2)
    A("s_branch L_bconv")
    A.label(L6)
    A("s_mul_i32 s54, s98, 80")
    A("s_sub_u32 s50, s99, 24")
    A("s_mul_i32 s55, s50, 6")
    A("s_add_u32 s54, s54, s55")
    A("s_add_u32 s55, s54, 5")
    f0_lines(A, 54, 55, 12)
    A("s_lshl_b32 s58, s98, 3")
    A("s_add_u32 s58, s58, s50")
    A("s_lshl_b32 s58, s58, 7")
    A(f"s_add_u32 s58, s58, {F0:#x}")
    Lt = A.newlabel("L_h7")
    A("s_cmp_eq_u32 s48, 7")
    A(f"s_cbranch_scc0 {Lt}")
    A(f"s_mov_b64 s[{TAG}:{TAG+1}], 0")
    tag_check(A, 8)
    A.label(Lt)
    A("s_barrier")
    A("s_cmp_eq_u32 s48, 7")
    A(f"s_cbranch_scc0 {Lx}")
    set_flag(A, 8, "s58")
    poll(A, 14, 12, "s52", sleep=4)
    A.label(Lx)
    A("s_barrier")
    A("s_branch L_post")


def conv_setup(A):
    A("v_lshlrev_b32 v2, 4, v1")
    A("s_lshl_b32 s52, s49, 1")
    A("s_and_b32 s52, s52, 0xfffffffc")
    A(f"s_load_dword s55, s[{S_SSD}:{S_SSD+1}], s52")
    A(f"s_load_dword s54, s[{S_SSK}:{S_SSK+1}], s50")
    A(f"s_add_u32 s51, s50, {WS_KVT:#x}")
    for i in range(4):
        A(f"v_mov_b32 v{4+i}, 0")
    A("v_add_u32 v3, s56, v2")
    A("s_mov_b64 exec, 0xf")
    A("ds_write_b128 v3, v[4:7]")
    A("s_mov_b32 exec_lo, -1")
    A(f"ds_write_b128 v3, v[4:7] offset:{64+4096}")
    A("s_mov_b64 exec, -1")
    A("v_and_b32 v8, 1, v1")
    A("v_lshlrev_b32 v8, 5, v8")
    A("v_bfe_u32 v9, v1, 4, 1")
    A("v_lshl_add_u32 v8, v9, 4, v8")
    A("v_bfe_u32 v9, v1, 1, 1")
    A("v_lshl_add_u32 v8, v9, 3, v8")
    A("v_lshrrev_b32 v10, 5, v1")
    A("v_lshl_add_u32 v8, v10, 6, v8")
    A("v_bfe_u32 v9, v1, 2, 2")
    A("v_lshlrev_b32 v9, 3, v9")
    A("v_sub_u32 v8, v8, v9")
    A("s_add_u32 s57, s56, 32")
    A("v_add_u32 v8, s57, v8")
    A("v_bfe_u32 v9, v1, 4, 1")
    A("v_lshlrev_b32 v9, 8, v9")
    A("v_and_b32 v11, 3, v1")
    A("v_lshl_add_u32 v9, v11, 6, v9")
    A("v_bfe_u32 v11, v1, 2, 2")
    A("v_lshl_add_u32 v9, v11, 4, v9")
    A("v_lshlrev_b32 v11, 6, v10")
    A("v_sub_u32 v9, v9, v11")
    A(f"s_add_u32 s57, s56, {64+4096+512-384}")
    A("v_add_u32 v9, s57, v9")
    A("v_bfe_u32 v11, v1, 2, 1")
    A("v_bfe_u32 v12, v1, 3, 2")
    A("v_lshl_add_u32 v11, v11, 2, v12")
    A("v_and_b32 v12, 35, v1")
    A("v_lshl_add_u32 v11, v12, 3, v11")
    A("v_and_b32 v12, 1, v11")
    A("v_lshlrev_b32 v12, 4, v12")
    A("v_mov_b32 v13, 0xffff")
    A("v_lshlrev_b32 v13, v12, v13")
    A("v_lshrrev_b32 v11, 1, v11")
    for i in range(4):
        A(f"v_cmp_eq_u32 vcc, {i}, v11")
        A(f"v_cndmask_b32 v{MK+i}, 0, v13, vcc")
    A("v_bfe_u32 v11, v1, 4, 1")
    A("v_and_b32 v12, 3, v1")
    A("v_lshl_add_u32 v11, v11, 2, v12")
    A("v_add_u32 v11, 7, v11")
    A("v_and_b32 v12, 3, v11")
    A("v_bfe_u32 v13, v11, 2, 1")
    A("v_lshl_add_u32 v12, v13, 4, v12")
    A("v_and_b32 v13, 12, v1")
    A("v_add3_u32 v12, v12, v13, 32")
    A("v_subrev_u32 v13, 32, v1")
    A("v_cmp_gt_u32 vcc, 32, v1")
    A("v_cndmask_b32 v14, v13, v12, vcc")
    A("v_lshlrev_b32 v14, 2, v14")
    A("s_mov_b32 s58, 0x1111")
    A("s_mov_b32 s59, 0")


MK = 16


def role_conv(A):
    A("s_barrier")
    conv_setup(A)
    A.label("L_conv")
    NR = 20
    RA, RB, RS = 64, 144, 224
    ACCS = (32, 48)
    CAR, PUL, TMP = 20, (21, 22), 23
    OUT = (24, 28)

    def rdA(m, reg, tag):
        return [(f"ds_read_b64_tr_b16 {vr(reg,2)}, v8 offset:{128*m+32}", None),
                (f"ds_read_b64_tr_b16 {vr(reg+2,2)}, v8 offset:{128*m}", tag)]

    def rdB(b, reg, tag):
        return [(f"ds_read_b128 {vr(reg,4)}, v9 offset:{128*b}", tag)]

    def xload():
        A(f"s_add_u32 m0, s56, {64+4096+512}")
        for i in range(4):
            A(f"buffer_load_dwordx4 v2, s[{SWS}:{SWS+3}], s51 offen offset:{1024*i}{SC} lds")

    Lb, Lg = A.newlabel("L_cb"), A.newlabel("L_cg")
    A("s_waitcnt vmcnt(0)")
    A("s_cmp_ge_u32 s99, 24")
    A(f"s_cbranch_scc1 {Lb}")
    tag_check(A, 22)
    A(f"buffer_load_dwordx2 v[22:23], v12, s[{SWS}:{SWS+3}], s52 offen{SC}")
    A("s_barrier")
    A("s_waitcnt vmcnt(0)")
    A(f"v_cmp_eq_u64 vcc, s[{TAG}:{TAG+1}], v[22:23]")
    A("s_cmp_eq_u64 vcc, -1")
    Lx = A.newlabel("L_cx")
    A(f"s_cbranch_scc1 {Lx}")
    poll(A, 22, 12, "s52", sleep=8)
    A.label(Lx)
    stamp(A, 8)
    xload()
    A.label(Lb)
    A("s_waitcnt lgkmcnt(0)")
    A("s_lshl_b32 s54, s54, 16")
    A("s_lshl_b32 s53, s55, 16")
    A("s_and_b32 s55, s55, 0xffff0000")
    A("s_bitcmp1_b32 s49, 0")
    A("s_cselect_b32 s53, s55, s53")
    A("v_mov_b32 v15, s54")
    A("v_add_f32 v15, s53, v15")
    A("v_cvt_pk_bf16_f32 v15, v15, v15")
    T = Lgkm(A)
    for m in range(NR):
        for x, tg in rdA(m, RA + 4 * m, ("A", m)):
            T.issue(x, tg)
    T.wait(("A", 0))
    for k in range(4):
        A(f"v_bfi_b32 v{RA+k}, v{MK+k}, v15, v{RA+k}")
    T.all()
    A("s_cmp_ge_u32 s99, 24")
    A(f"s_cbranch_scc0 {Lg}")
    A("s_barrier")
    stamp(A, 8)
    xload()
    A.label(Lg)
    A(f"s_add_u32 s51, s50, {WS_YT:#x}")
    A(f"v_mov_b32 v{PUL[1]}, 0")

    sched = []
    for i in range(8):
        ms = list(range(4 * i + 4))
        res = [m for m in ms if m < NR and 4 * i + 3 - m < NR]
        stm = [m for m in ms if m not in res]
        sched += [(i, m) for m in res + stm]
    streams = []
    for k, (i, m) in enumerate(sched):
        b = 4 * i + 3 - m
        if m >= NR:
            streams.append((k, "A", m))
        elif b >= NR:
            streams.append((k, "B", b))
    slot_of = {k: n % 8 for n, (k, _, _) in enumerate(streams)}

    def epilogue(i):
        V = ACCS[i & 1]
        own = [f"v_add_f32_dpp v{V+4*j}, v{V+4*j+k}, v{V+4*j} row_shr:{4*k} row_mask:0xf bank_mask:0xf"
               for k in (1, 2, 3) for j in range(4)]
        car = [f"v_add_f32_dpp v{CAR}, v{V+12+k}, v{CAR} row_shl:{16-4*k} row_mask:0xf bank_mask:0xf" for k in (1, 2, 3)]
        L = [f"v_mov_b32 v{CAR}, 0"] + own[0:2] + car[0:1] + own[2:4] + car[1:2] + own[4:6] + car[2:3]
        L.append(("ds", f"ds_bpermute_b32 v{PUL[i&1]}, v14, v{CAR}", ("P", i)))
        L += own[6:]
        for k in (1, 2, 3):
            for j in (0, 1, 2):
                L.append(f"v_add_f32_dpp v{V+4*j+4}, v{V+4*j+k}, v{V+4*j+4} row_shl:{16-4*k} row_mask:0xf bank_mask:0xf")
        o = OUT[(i >> 1) & 1] + 2 * (i & 1)
        L.append(f"v_cvt_pk_bf16_f32 v{o+1}, v{V+8}, v{V+12}")
        L.append(("wait", ("P", i)))
        L.append(f"v_cndmask_b32 v{TMP}, v{PUL[i&1]}, v{PUL[1-(i&1)]}, s[58:59]")
        L.append(f"v_add_f32 v{V}, v{V}, v{TMP}")
        L.append(f"v_cvt_pk_bf16_f32 v{o}, v{V}, v{V+4}")
        if i & 1:
            L.append(f"buffer_store_dwordx4 {vr(OUT[(i>>1)&1],4)}, v2, s[{SWS}:{SWS+3}], s51 offen offset:{1024*(i>>1)}{SC}")
        return L

    def emit(x):
        if isinstance(x, tuple):
            if x[0] == "ds":
                T.issue(x[1], x[2])
            else:
                T.wait(x[1])
        else:
            A(x)

    A("s_waitcnt vmcnt(0)")
    stampw(A, 9)
    for b in range(8):
        for x, tg in rdB(b, RB + 4 * b, ("B", b)):
            T.issue(x, tg)
    nres = 8
    nst = 0
    fill = []
    first = {}
    for k, (i, m) in enumerate(sched):
        first.setdefault(i, k)
    for k, (i, m) in enumerate(sched):
        V = ACCS[i & 1]
        b = 4 * i + 3 - m
        if k == first[i]:
            while fill:
                emit(fill.pop(0))
            if i > 0:
                fill = epilogue(i - 1)
        if k in slot_of:
            T.wait(("S", k))
        if b < NR:
            T.wait(("B", b))
        ra = RA + 4 * m if m < NR else RS + 4 * slot_of[k]
        rb = RB + 4 * b if b < NR else RS + 4 * slot_of[k]
        c = vr(V, 16) if k != first[i] else "0"
        A(f"v_mfma_f32_32x32x16_bf16 {vr(V,16)}, {vr(ra,4)}, {vr(rb,4)}, {c}")
        budget = 5
        if nres < NR:
            for x, tg in rdB(nres, RB + 4 * nres, ("B", nres)):
                T.issue(x, tg)
            nres += 1
            budget -= 1
        elif nst < len(streams) and (nst < 8 or streams[nst - 8][0] < k) and streams[nst][0] - k <= 10:
            kk, kind, fr = streams[nst]
            for x, tg in (rdA if kind == "A" else rdB)(fr, RS + 4 * slot_of[kk], ("S", kk)):
                T.issue(x, tg)
                budget -= 1
            nst += 1
        if k > first[i]:
            for _ in range(budget):
                if fill:
                    emit(fill.pop(0))
    while fill:
        emit(fill.pop(0))
    stampw(A, 10)
    T.done = T.n if Ctx.stamps else T.done
    for x in epilogue(7):
        emit(x)
    A("s_waitcnt vmcnt(0)")
    stamp(A, 11)
    A("s_cmp_ge_u32 s99, 24")
    A("s_cbranch_scc1 L_bdone")
    A(f"v_mov_b32 v10, {L_SYNC+12}")
    A("v_mov_b32 v11, 1")
    A("s_mov_b64 exec, 1")
    A("ds_add_rtn_u32 v12, v10, v11")
    A("s_mov_b64 exec, -1")
    A("s_lshl_b32 s52, s98, 4")
    A("s_add_u32 s52, s52, s99")
    A("s_lshl_b32 s52, s52, 7")
    A(f"s_add_u32 s52, s52, {F4+8*128:#x}")
    A("s_waitcnt lgkmcnt(0)")
    A("v_readfirstlane_b32 s53, v12")
    A("s_cmp_eq_u32 s53, 3")
    A("s_cbranch_scc0 L_bend")
    set_flag(A, 10, "s52")
    A("s_branch L_bend")
    A.label("L_bdone")


def role_post(A):
    SQ, SO = 32, 36
    A.label("L_post")
    A("s_lshl_b32 s48, s48, 2")
    A("s_lshr_b32 s48, 0x43002100, s48")
    A("s_and_b32 s48, s48, 7")
    A("s_mul_i32 s49, s98, 40")
    A("s_sub_u32 s50, s99, 24")
    A("s_mul_i32 s50, s50, 5")
    A("s_add_u32 s49, s49, s50")
    A("s_add_u32 s49, s49, s48")
    A("s_and_b32 s50, s49, 31")
    A("s_lshr_b32 s51, s49, 5")
    A("v_lshrrev_b32 v2, 3, v1")
    A("v_and_b32 v3, 7, v1")
    A("v_lshlrev_b32 v4, 12, v2")
    A("v_lshl_add_u32 v4, v3, 4, v4")
    A("s_lshl_b32 s52, s51, 18")
    A("s_lshl_b32 s53, s50, 7")
    A("s_add_u32 s52, s52, s53")
    A(f"s_add_u32 s52, s52, {WS_YT:#x}")
    A("s_mul_i32 s56, s48, 8320")
    A(f"s_add_u32 s56, s56, {B_PRE}")
    A("s_lshr_b32 s54, s50, 3")
    A("s_lshl_b32 s54, s54, 9")
    A("s_bfe_u32 s55, s50, 0x10002")
    A("s_lshl_b32 s55, s55, 4")
    A("s_add_u32 s54, s54, s55")
    A("s_bfe_u32 s55, s50, 0x10001")
    A("s_lshl_b32 s55, s55, 7")
    A("s_add_u32 s54, s54, s55")
    A("s_and_b32 s55, s50, 1")
    A("s_lshl_b32 s55, s55, 1")
    A("s_add_u32 s54, s54, s55")
    A("v_and_b32 v5, 3, v2")
    A("v_lshrrev_b32 v6, 2, v2")
    A("v_lshl_add_u32 v5, v5, 5, v6")
    A("v_mul_u32_u24 v6, 1280, v5")
    A("v_lshlrev_b32 v7, 1, v6")
    A("v_lshl_add_u32 v6, v3, 4, v6")
    A("v_lshl_add_u32 v7, v3, 4, v7")
    A("s_mul_i32 s54, s54, 1280")
    A("s_lshl_b32 s53, s51, 7")
    A("s_lshl_b32 s55, s54, 1")
    A("s_add_u32 s54, s54, s53")
    A("s_add_u32 s55, s55, s53")
    A("s_add_u32 s55, s55, 1280")
    srd(A, SQ, S_BQ, NB_X)
    srd(A, SO, S_OUT, NB_OUT)
    QR, YR = 16, 48
    rows = [0, 4, 8, 12, 256, 260, 264, 268]
    if Opt.wopf == "b":
        Ln = A.newlabel("L_npf")
        A("s_cmp_ge_u32 s48, 3")
        A(f"s_cbranch_scc0 {Ln}")
        srd(A, 40, S_WO, NB_WO)
        A("s_sub_u32 s57, s99, 24")
        A("s_lshl_b32 s57, s57, 1")
        A("s_add_u32 s57, s57, s48")
        A("s_sub_u32 s57, s57, 3")
        A("s_lshl_b32 s57, s57, 13")
        A("v_lshlrev_b32 v8, 7, v1")
        for i in range(7):
            A(f"buffer_load_dword v{200+i}, v8, s[40:43], s57 offen")
            A(f"s_add_u32 s57, s57, {16*8192}")
        A.label(Ln)
    for i in range(8):
        A(f"s_add_u32 s57, s54, {rows[i]*1280}")
        A(f"buffer_load_dwordx4 {vr(QR+4*i,4)}, v6, s[{SQ}:{SQ+3}], s57 offen{Opt.nt_s}")
    A("s_mov_b32 s59, 0xffff0000")
    QF = 128
    A("s_waitcnt vmcnt(0)")
    for i in range(32):
        A(f"v_lshlrev_b32 v{QF+2*i}, 16, v{QR+i}")
        A(f"v_and_b32 v{QF+2*i+1}, s59, v{QR+i}")
    A("s_lshl_b32 s57, s98, 4")
    A("s_sub_u32 s58, s57, 16")
    A("v_min_u32 v12, 47, v1")
    A("v_add_u32 v12, s58, v12")
    A("v_max_i32 v12, 0, v12")
    A("v_min_u32 v12, 127, v12")
    A("v_lshlrev_b32 v12, 7, v12")
    A("s_add_u32 s57, s57, s99")
    A("s_lshl_b32 s57, s57, 7")
    A(f"s_add_u32 s57, s57, {F4-24*128:#x}")
    A(f"s_mov_b32 s58, {F4:#x}")
    Lx = A.newlabel("L_p7")
    A("s_barrier")
    A("s_cmp_eq_u32 s48, 4")
    A(f"s_cbranch_scc0 {Lx}")
    set_flag(A, 8, "s57")
    poll(A, 14, 12, "s58", sleep=4)
    A.label(Lx)
    A("s_barrier")
    if Opt.dB:
        A(f"s_sleep {Opt.dB}")
    stamp(A, 12)
    for i in range(8):
        A(f"v_xor_b32 v8, {16*i}, v4")
        A(f"s_add_u32 m0, s56, {1024*i}")
        A(f"buffer_load_dwordx4 v8, s[{SWS}:{SWS+3}], s52 offen{SC} lds")
        if i < 7:
            A(f"s_add_u32 s52, s52, {8*4096}")
    A("v_xor_b32 v8, v2, v3")
    A("v_lshlrev_b32 v8, 4, v8")
    A("v_lshl_add_u32 v8, v3, 10, v8")
    A("v_add_u32 v8, s56, v8")
    A("s_waitcnt vmcnt(0)")
    for c in range(8):
        A(f"ds_read_b128 {vr(YR+4*c,4)}, v8 offset:{128*c}")
    A("s_waitcnt lgkmcnt(0)")
    stamp(A, 13)
    YF, OUT = 80, 96
    for i in range(8):
        for c in range(8):
            if i & 1:
                A(f"v_and_b32 v{YF+c}, s59, v{YR+4*c+i//2}")
            else:
                A(f"v_lshlrev_b32 v{YF+c}, 16, v{YR+4*c+i//2}")
        for c in range(0, 8, 2):
            A(f"v_pk_mul_f32 {vr(YF+c,2)}, {vr(YF+c,2)}, {vr(QF+8*i+c,2)}")
        for k in range(4):
            A(f"v_cvt_pk_bf16_f32 v{OUT+4*i+k}, v{YF+2*k}, v{YF+2*k+1}")
        A(f"s_add_u32 s57, s55, {rows[i]*2560}")
        A(f"buffer_store_dwordx4 {vr(OUT+4*i,4)}, v7, s[{SO}:{SO+3}], s57 offen{Opt.osc}")
    stamp(A, 14)


def build():
    A = Asm()
    k = NAME + "_kernel"
    A.raw(f".globl {k}")
    A.raw(".p2align 8")
    A.raw(f".type {k},@function")
    A.label(k)
    if Opt.hold:
        A("s_memrealtime s[64:65]")
    load_kernargs(A)
    stamp_init(A)
    A("v_lshrrev_b32 v2, 6, v0")
    A("v_and_b32 v1, 63, v0")
    A("v_readfirstlane_b32 s100, v2")
    A("s_and_b32 s98, s2, 7")
    A("s_lshr_b32 s99, s2, 3")
    A("s_cmp_ge_u32 s2, 192")
    A("s_cbranch_scc1 L_b")
    A("s_and_b32 s49, s2, 3")
    A("s_lshl_b32 s49, s49, 2")
    A("s_and_b32 s50, s99, 3")
    A("s_add_u32 s49, s49, s50")
    A("s_bfe_u32 s52, s2, 0x10002")
    A("s_lshr_b32 s53, s2, 5")
    A("s_lshl_b32 s54, s52, 1")
    A("s_add_u32 s54, s54, s53")
    A("s_lshl_b32 s55, s52, 2")
    A("s_add_u32 s55, s55, s53")
    A("s_sub_u32 s55, s55, 2")
    A("s_cmp_lt_u32 s2, 64")
    A("s_cselect_b32 s50, s54, s55")
    A("s_cselect_b32 s51, 1, 0")
    A("s_and_b32 s48, s100, 3")
    A("s_cmp_ge_u32 s100, 4")
    A("s_cbranch_scc1 L_c")
    role_loader(A)
    A.label("L_c")
    role_compute(A)
    A.label("L_b")
    A("s_cmp_ge_u32 s2, 256")
    A("s_cbranch_scc1 L_exit")
    A("s_mov_b32 s48, s100")
    A("s_cmp_ge_u32 s48, 5")
    A("s_cbranch_scc1 L_help")
    role_pre(A)
    A("s_branch L_bconv")
    A.label("L_help")
    role_helper(A)
    A.label("L_bconv")
    role_conv(A)
    A("s_bitcmp1_b32 0x32, s48")
    A("s_cbranch_scc1 L_bend")
    role_post(A)
    A.label("L_bend")
    end_wave(A)
    A.label("L_exit")
    A("s_endpgm")
    A.label("L_code_end")
    head = ["; generated by gen/f3.py",
            "; @launch grid=(256,1,1) block=(512,1,1) lds=163840"]
    txt = "\n".join(head) + '\n.amdgcn_target "amdgcn-amd-amdhsa--gfx950"\n.text\n' + A.text()
    txt += f'''.section .rodata,"a"
.p2align 6
.amdhsa_kernel {k}
  .amdhsa_next_free_vgpr 256
  .amdhsa_next_free_sgpr 102
  .amdhsa_accum_offset 256
  .amdhsa_group_segment_fixed_size 0
  .amdhsa_kernarg_size 104
  .amdhsa_user_sgpr_count 2
  .amdhsa_user_sgpr_kernarg_segment_ptr 1
  .amdhsa_system_sgpr_workgroup_id_x 1
.end_amdhsa_kernel
'''
    return txt


if __name__ == "__main__":
    args = sys.argv[2:]
    Ctx.stamps = "stamps" in args
    Opt.rot = "norot" not in args
    Opt.codepf = "nocodepf" not in args
    for a in args:
        if a.startswith("probe="):
            Opt.probe = tuple(int(x) for x in a[6:].split(","))
        if a.startswith("hold="):
            Opt.hold = int(a[5:])
        if a.startswith("dA="):
            Opt.dA = int(a[3:])
        if a.startswith("dB="):
            Opt.dB = int(a[3:])
        if a == "nowomall":
            Opt.womall = False
        if a == "noppoll":
            Opt.ppoll = False
        if a.startswith("psleep="):
            Opt.psleep = int(a[7:])
        if a.startswith("wopf="):
            Opt.wopf = a[5:]
    for a in args:
        if a.startswith("LA="):
            Opt.LA = int(a[3:])
    open(sys.argv[1], "w").write(build())
```

```python
import sys
from asm import Asm, vr, ar, sr
from roles import (WS_PHIQ, WS_PART, WS_O, WS_KVT, WS_YT, WS_STAMP, WS_SIZE, S_X, S_W, S_WPHI, S_WO, S_BQ, S_BK, S_BV,
                   S_SH, S_SSK, S_SSD, S_OUT, S_DBG, S_WS, NB_X, NB_W, NB_WPHI, NB_WO, NB_SH, NB_SSK, NB_OUT, LOG2E,
                   Ctx, load_kernargs, srd, stamp, stamp_init, softmax20)

NAME = "concat_heads__linear_kernel_hedgehog__ssm_conv_h3__prompt"
WS_PQ = WS_PHIQ
WS_FLAG = 0xF00000
F1, F2, F3, F0, F4 = (WS_FLAG + 128 * o for o in (0, 512, 1024, 1536, 1856))
WS_EPOCH = WS_FLAG + 128 * 2560 + 64
SWS = 44
SC = " sc1"
TAG = 30
SLOT = 36864
L_WP = 147456
L_Z = L_WP + 8192
L_SYNC = L_Z + 4096
L_V = 128 * 336
L_WOB = 65536
L_OT = 65536
CV_LDS = 8768
L_QCV = 3 * SLOT
B_PRE = 6 * CV_LDS


class Opt:
    rot = True
    LA = 2
    nt_s = " nt"
    codepf = True
    wopf = "no"
    osc = " nt"
    ppoll = False
    womall = True
    probe = None
    dA = 0
    hold = 0
    holdwg = -1
    dB = 0
    psleep = 2


def end_wave(A):
    if Ctx.stamps:
        stamp(A, 15, True)
        A("s_waitcnt lgkmcnt(0)")
        A("s_mov_b64 exec, -1")
        A("v_mov_b32 v2, 0")
        for k in range(16):
            A(f"v_writelane_b32 v2, s{64+2*k}, {k}")
        A("s_lshl_b32 s62, s2, 3")
        A("s_add_u32 s62, s62, s100")
        A("s_lshl_b32 s62, s62, 6")
        A(f"s_add_u32 s62, s62, {WS_STAMP:#x}")
        A("v_lshlrev_b32 v1, 2, v1")
        A("s_mov_b64 exec, 0xffff")
        A(f"buffer_store_dword v2, v1, s[{SWS}:{SWS+3}], s62 offen")
        if Opt.probe:
            Lp = A.newlabel("L_probe")
            A(f"s_cmp_eq_u32 s2, {Opt.probe[0]}")
            A(f"s_cbranch_scc0 {Lp}")
            A(f"s_cmp_eq_u32 s100, {Opt.probe[1]}")
            A(f"s_cbranch_scc0 {Lp}")
            A("v_subrev_u32 v3, s66, v2")
            A("s_sub_u32 s62, s94, s64")
            A("v_writelane_b32 v3, s62, 15")
            A("v_cmp_ne_u32 vcc, 0, v2")
            A("v_cndmask_b32 v3, 0, v3, vcc")
            A("s_mov_b64 exec, 0xfffc")
            A(f"global_store_dword v1, v3, s[{S_DBG}:{S_DBG+1}]")
            A.label(Lp)
    A("s_endpgm")


def stampw(A, k):
    stamp(A, k)
    if Ctx.stamps:
        A("s_waitcnt lgkmcnt(0)")


def poll(A, vt, voff, soff, sleep=1):
    L, Ld = A.newlabel("L_poll"), A.newlabel("L_polld")
    A("s_movk_i32 s101, 0x4000")
    A.label(L)
    A(f"buffer_load_dwordx2 {vr(vt,2)}, v{voff}, s[{SWS}:{SWS+3}], {soff} offen{SC}")
    A("s_waitcnt vmcnt(0)")
    A(f"v_cmp_eq_u64 vcc, s[{TAG}:{TAG+1}], {vr(vt,2)}")
    A("s_cmp_eq_u64 vcc, -1")
    A(f"s_cbranch_scc1 {Ld}")
    A(f"s_sleep {sleep}")
    A("s_sub_u32 s101, s101, 1")
    A("s_cmp_eq_u32 s101, 0")
    A(f"s_cbranch_scc0 {L}")
    A("s_endpgm")
    A.label(Ld)


def ppoll(A, vt, voff, soff, sleep=1, depth=4):
    if not Opt.ppoll:
        return poll(A, vt, voff, soff, sleep=sleep)
    L, Ld = A.newlabel("L_pp"), A.newlabel("L_ppd")
    ld = lambda k: f"buffer_load_dwordx2 {vr(vt+2*k,2)}, v{voff}, s[{SWS}:{SWS+3}], {soff} offen{SC}"
    A("s_movk_i32 s101, 0x4000")
    for k in range(depth - 1):
        A(ld(k))
        A(f"s_sleep {sleep}")
    A.label(L)
    for k in range(depth):
        A(ld((k + depth - 1) % depth))
        A(f"s_waitcnt vmcnt({depth-1})")
        A(f"v_cmp_eq_u64 vcc, s[{TAG}:{TAG+1}], {vr(vt+2*k,2)}")
        A("s_cmp_eq_u64 vcc, -1")
        A(f"s_cbranch_scc1 {Ld}")
        A(f"s_sleep {sleep}")
    A("s_sub_u32 s101, s101, 1")
    A("s_cmp_eq_u32 s101, 0")
    A(f"s_cbranch_scc0 {L}")
    A("s_endpgm")
    A.label(Ld)


def set_flag(A, vt, soff):
    A(f"v_mov_b32 v{vt}, s{TAG}")
    A(f"v_mov_b32 v{vt+1}, s{TAG+1}")
    A(f"v_lshlrev_b32 v{vt+2}, 3, v1")
    A("s_waitcnt vmcnt(0)")
    A("s_mov_b64 exec, 0xffff")
    A(f"buffer_store_dwordx2 {vr(vt,2)}, v{vt+2}, s[{SWS}:{SWS+3}], {soff} offen{SC}")
    A("s_mov_b64 exec, -1")


def tag_issue(A):
    A(f"s_load_dwordx2 s[{TAG}:{TAG+1}], s[{S_DBG}:{S_DBG+1}], 0")


def tag_check(A, vt):
    L, Ld = A.newlabel("L_hs"), A.newlabel("L_hsd")
    A("s_waitcnt lgkmcnt(0)")
    A(f"s_cmp_lg_u32 s{TAG}, s{TAG+1}")
    A(f"s_cbranch_scc1 {Ld}")
    A("s_movk_i32 s101, 0x4000")
    A(f"v_mov_b32 v{vt+2}, 0")
    A.label(L)
    A(f"global_load_dwordx2 {vr(vt,2)}, v{vt+2}, s[{S_DBG}:{S_DBG+1}]{SC}")
    A("s_waitcnt vmcnt(0)")
    A(f"v_readfirstlane_b32 s{TAG}, v{vt}")
    A(f"v_readfirstlane_b32 s{TAG+1}, v{vt+1}")
    A("s_nop 3")
    A(f"s_cmp_lg_u32 s{TAG}, s{TAG+1}")
    A(f"s_cbranch_scc1 {Ld}")
    A("s_sleep 8")
    A("s_sub_u32 s101, s101, 1")
    A("s_cmp_eq_u32 s101, 0")
    A(f"s_cbranch_scc0 {L}")
    A("s_endpgm")
    A.label(Ld)


def lds_arrive(A, vt, addr):
    A(f"v_mov_b32 v{vt}, {addr}")
    A(f"v_mov_b32 v{vt+1}, 1")
    A("s_waitcnt lgkmcnt(0)")
    A("s_mov_b64 exec, 1")
    A(f"ds_add_u32 v{vt}, v{vt+1}")
    A("s_mov_b64 exec, -1")


def lds_wait(A, vt, addr, n, sleep=0):
    L, Ld = A.newlabel("L_lw"), A.newlabel("L_lwd")
    if addr is not None:
        A(f"v_mov_b32 v{vt}, {addr}")
    A("s_mov_b32 s101, 0x40000")
    A.label(L)
    A(f"ds_read_b32 v{vt+1}, v{vt}")
    A("s_waitcnt lgkmcnt(0)")
    A(f"v_cmp_le_u32 vcc, {n}, v{vt+1}")
    A(f"s_cbranch_vccnz {Ld}")
    if sleep:
        A(f"s_sleep {sleep}")
    A("s_sub_u32 s101, s101, 1")
    A("s_cmp_eq_u32 s101, 0")
    A(f"s_cbranch_scc0 {L}")
    A("s_endpgm")
    A.label(Ld)


class Lgkm:
    def __init__(self, A):
        self.A, self.n, self.done, self.tag = A, 0, 0, {}

    def issue(self, text, tag=None):
        self.A(text)
        self.n += 1
        if tag is not None:
            self.tag[tag] = self.n

    def wait(self, *tags):
        need = max(self.tag[t] for t in tags)
        if need > self.done:
            self.A(f"s_waitcnt lgkmcnt({min(15, self.n - need)})")
            self.done = max(need, self.n - 15)

    def all(self):
        if self.done < self.n:
            self.A("s_waitcnt lgkmcnt(0)")
            self.done = self.n


def o_index(A):
    A("s_sub_u32 s63, s99, 8")
    A("s_lshr_b32 s62, s63, 2")
    A("s_lshl_b32 s3, s98, 2")
    A("s_add_u32 s62, s62, s3")
    A("s_and_b32 s63, s63, 3")
    A("s_lshl_b32 s63, s63, 2")
    A("s_add_u32 s63, s63, s48")


def role_loader(A):
    SX, SW, SP = 32, 36, 40
    VX, VW = 24, 28
    t0, t1, t2, t3 = 11, 12, 13, 14
    A("s_setprio 1")
    A(f"v_lshrrev_b32 v{t0}, 3, v1")
    A(f"v_mul_u32_u24 v{t0}, 1280, v{t0}")
    A(f"v_lshrrev_b32 v{t1}, 4, v1")
    A(f"v_and_b32 v{t2}, 7, v1")
    A(f"v_xor_b32 v{t1}, v{t1}, v{t2}")
    A(f"v_xor_b32 v{t2}, 4, v{t1}")
    A(f"v_lshl_add_u32 v{VX}, v{t1}, 4, v{t0}")
    A(f"v_lshl_add_u32 v{VX+1}, v{t2}, 4, v{t0}")
    A(f"v_add_u32 v{VX+2}, {2*(8*1280-1024)}, v{VX}")
    A(f"v_add_u32 v{VX+3}, {3*(8*1280-1024)}, v{VX+1}")
    A(f"v_add_u32 v{VX+1}, {8*1280-1024}, v{VX+1}")
    A("s_lshl_b32 s60, s49, 2")
    A("s_add_u32 s60, s60, s48")
    A(f"s_mul_i32 s60, s60, {32*1280}")
    if Opt.rot:
        A("s_lshl_b32 s30, s49, 2")
        A("s_bfe_u32 s30, s30, 0x40000")
        A("s_lshr_b32 s30, 0x8530, s30")
        A("s_and_b32 s30, s30, 15")
        A("s_and_b32 s31, s99, 28")
        A("s_lshr_b32 s31, 0x875320, s31")
        A("s_and_b32 s31, s31, 15")
        A("s_add_u32 s30, s30, s31")
        A("s_sub_u32 s31, s30, 10")
        A("s_cmp_ge_u32 s30, 10")
        A("s_cselect_b32 s30, s31, s30")
        A("s_lshl_b32 s31, s30, 7")
        A("s_add_u32 s60, s60, s31")
    A("s_lshl_b32 s62, s48, 12")
    A("s_mov_b32 m0, s62")
    A(f"s_mov_b32 s{SX+2}, {NB_X:#x}")
    A(f"s_mov_b32 s{SX+3}, 0x20000")
    A("s_waitcnt lgkmcnt(0)")
    A(f"s_mov_b64 s[{SX}:{SX+1}], s[{S_X}:{S_X+1}]")

    def dma_x(s):
        if s:
            A(f"s_add_u32 m0, s62, {(s % 3) * SLOT}")
        for i in range(4):
            A(f"buffer_load_dwordx4 v{VX+i}, s[{SX}:{SX+3}], s60 offen offset:{1024*i} lds")

    def dma_w(s):
        sl = (s % 3) * SLOT
        A(f"s_add_u32 m0, s63, {sl}")
        for i in range(4):
            A(f"buffer_load_dwordx4 v{VW+i}, s[{SW}:{SW+3}], s61 offen offset:{1024*i} lds")
        A(f"s_add_u32 m0, s63, {sl+4096}")
        A(f"buffer_load_dwordx4 v{VW+4}, s[{SW}:{SW+3}], s61 offen lds")
        if s < 9:
            if Opt.rot:
                A("s_add_u32 s30, s30, 1")
                A("s_cmp_eq_u32 s30, 10")
                A(f"s_cselect_b32 s31, {(-1152)&0xffffffff:#x}, s97")
                A(f"s_cselect_b32 s3, {(-9*64*3840)&0xffffffff:#x}, s96")
                A("s_add_u32 s60, s60, s31")
                A("s_add_u32 s61, s61, s3")
            else:
                A("s_add_u32 s60, s60, 128")
                A(f"s_add_u32 s61, s61, {64*3840}")

    dma_x(0)
    A("s_cmp_eq_u32 s51, 0")
    A("s_cselect_b32 s56, 1120, 0")
    A(f"v_lshlrev_b32 v{t3}, 4, v1")
    A(f"v_mul_u32_u24 v{t2}, 6554, v1")
    A("s_movk_i32 s57, 3520")
    for i in range(5):
        if i:
            A(f"v_add_u32 v{t2}, {64*6554}, v{t2}")
        A(f"v_lshrrev_b32 v{t0}, 17, v{t2}")
        A(f"v_bfe_u32 v{t1}, v{t2}, 16, 1")
        A(f"v_mad_u32_u24 v{t0}, v{t0}, s57, v{t3}")
        A(f"v_mad_u32_u24 v{VW+i}, v{t1}, s56, v{t0}")
    A(f"v_add_u32 v{VW+4}, 4096, v{VW+4}")
    A(f"s_mul_i32 s61, s48, {16*3840}")
    A("s_mul_i32 s57, s50, 160")
    A("s_add_u32 s58, s57, 1280")
    A("s_lshl_b32 s57, s57, 1")
    A("s_cmp_eq_u32 s51, 0")
    A("s_cselect_b32 s57, s58, s57")
    A("s_add_u32 s61, s61, s57")
    if Opt.rot:
        A(f"s_mov_b32 s96, {64*3840}")
        A("s_movk_i32 s97, 128")
        A("s_mul_i32 s31, s30, s96")
        A("s_add_u32 s61, s61, s31")
    A("s_mul_i32 s63, s48, 5120")
    A("s_add_u32 s63, s63, 16384")
    srd(A, SW, S_W, NB_W)
    dma_w(0)
    stamp(A, 2)
    A("s_mul_i32 s57, s50, 3200")
    A("s_lshl_b32 s57, s57, s51")
    A("s_lshl_b32 s58, s48, 11")
    A("s_add_u32 s57, s57, s58")
    srd(A, SP, S_WPHI, NB_WPHI)
    A(f"s_add_u32 m0, s58, {L_WP}")
    A(f"buffer_load_dwordx4 v{t3}, s[{SP}:{SP+3}], s57 offen lds")
    A(f"buffer_load_dwordx4 v{t3}, s[{SP}:{SP+3}], s57 offen offset:1024 lds")
    srd(A, SWS, S_WS, WS_SIZE)
    Lh = A.newlabel("L_noh")
    A("s_cmp_eq_u32 s51, 0")
    A(f"s_cbranch_scc1 {Lh}")
    A("s_mul_i32 s49, s98, 80")
    A("s_lshl_b32 s50, s99, 2")
    A("s_add_u32 s49, s49, s50")
    A("s_add_u32 s49, s49, s48")
    A("s_add_u32 s49, s49, 48")
    A(f"s_mul_i32 s56, s48, {CV_LDS}")
    A(f"s_add_u32 s56, s56, {L_QCV}")
    conv_load_h(A, t3)
    A.label(Lh)
    assert Opt.LA == 2
    issued = 0
    for s in range(10):
        while issued < min(s + Opt.LA - 1, 9):
            issued += 1
            dma_x(issued)
            dma_w(issued)
        if s == 0:
            Ls = A.newlabel("L_nosetup")
            A("s_cmp_ge_u32 s99, 8")
            A(f"s_cbranch_scc1 {Ls}")
            conv_setup(A)
            f0_lines(A, 49, 49, 12)
            A.label(Ls)
        if s == 9:
            tag_issue(A)
        A(f"s_waitcnt vmcnt({9*(issued-s)})")
        A("s_barrier")
        if s in (0, 3, 6, 9):
            stamp(A, 3 + s // 3)
    A("s_setprio 0")
    A("s_cmp_lt_u32 s99, 8")
    A("s_cbranch_scc1 L_conv")
    role_wo(A)


def role_wo(A):
    SO, SWO = 32, 36
    WR = 64
    A.label("L_wo")
    srd(A, SWO, S_WO, NB_WO)
    if Opt.wopf == "kv":
        Ls = A.newlabel("L_nopf")
        A("s_cmp_lt_u32 s99, 8")
        A(f"s_cbranch_scc1 {Ls}")
        A("s_lshl_b32 s52, s99, 2")
        A("s_add_u32 s52, s52, s48")
        A("s_sub_u32 s52, s52, 32")
        A("s_lshl_b32 s52, s52, 13")
        A(f"s_add_u32 s53, s52, {64*8192}")
        A("v_lshlrev_b32 v2, 7, v1")
        A(f"buffer_load_dword v24, v2, s[{SWO}:{SWO+3}], s52 offen")
        A(f"buffer_load_dword v25, v2, s[{SWO}:{SWO+3}], s53 offen")
        A.label(Ls)
    A("v_lshrrev_b32 v2, 2, v1")
    A("v_and_b32 v3, 3, v1")
    A("v_mul_u32_u24 v4, 1280, v2")
    A("v_lshl_add_u32 v4, v3, 4, v4")
    for i in range(1, 4):
        A(f"v_add_u32 v{4+i}, {i*(16*1280-1024)}, v4")
    A(f"v_add_u32 v8, {4*16*1280}, v4")
    A("s_lshr_b32 s50, s99, 2")
    A("s_sub_u32 s50, s50, 1")
    A("s_max_i32 s50, s50, 0")
    A("s_lshl_b32 s52, s50, 8")
    A("s_lshl_b32 s53, s48, 6")
    A("s_add_u32 s52, s52, s53")
    A("s_mov_b32 s51, s52")
    A("s_mul_i32 s53, s48, 20480")
    A("s_cmp_lt_u32 s99, 8")
    A(f"s_cselect_b32 s54, 0, {L_WOB}")
    A("s_add_u32 s53, s53, s54")

    def cbuf(c):
        return 5120 + ((c + 1) % 3) * 5120

    def chunk(c):
        b = cbuf(c)
        A(f"s_add_u32 m0, s53, {b}")
        for i in range(4):
            A(f"buffer_load_dwordx4 v{4+i}, s[{SWO}:{SWO+3}], s51 offen offset:{1024*i} lds")
        A(f"s_add_u32 m0, s53, {b+4096}")
        A(f"buffer_load_dwordx4 v8, s[{SWO}:{SWO+3}], s51 offen lds")
        A(f"s_add_u32 s51, s51, {80*1280}")

    Lj = A.newlabel("L_woj")
    chunk(0)
    A("s_cmp_lt_u32 s99, 8")
    A(f"s_cbranch_scc1 {Lj}")
    A("s_barrier")
    A.label(Lj)
    chunk(1)
    chunk(2)
    A("v_bfe_u32 v10, v1, 2, 2")
    A("v_lshrrev_b32 v11, 5, v1")
    A("v_and_b32 v12, 1, v1")
    A("v_lshlrev_b32 v12, 5, v12")
    A("v_bfe_u32 v13, v1, 4, 1")
    A("v_lshl_add_u32 v12, v13, 4, v12")
    A("v_bfe_u32 v13, v1, 1, 1")
    A("v_lshl_add_u32 v12, v13, 3, v12")
    A("v_lshl_add_u32 v12, v10, 6, v12")
    A("v_add_u32 v12, s53, v12")
    A("v_lshl_add_u32 v13, v11, 8, v12")
    A("v_mul_u32_u24 v14, 2560, v11")
    A("v_add_u32 v14, v14, v12")
    A("v_and_b32 v9, 31, v1")
    A("v_lshrrev_b32 v15, 4, v1")
    A("v_lshlrev_b32 v15, 7, v15")
    A("v_lshlrev_b32 v18, 4, v1")
    o_index(A)
    tag_check(A, 20)

    def take(c):
        b = cbuf(c)
        for hh in range(4):
            for half in range(2):
                A(f"ds_read_b64_tr_b16 {vr(WR+4*(4*c+hh)+2*half,2)}, v13 offset:{b+(20*hh+8*half)*64}")
        for half in range(2):
            A(f"ds_read_b64_tr_b16 {vr(WR+128+4*c+2*half,2)}, v14 offset:{b+(20*half+16)*64}")

    Lq2 = A.newlabel("L_woq")
    for c in range(6):
        A("s_waitcnt vmcnt(10)")
        take(c)
        A("s_waitcnt lgkmcnt(0)")
        if c + 3 < 8:
            chunk(c + 3)
    stamp(A, 14)
    A("s_cmp_lt_u32 s99, 8")
    A(f"s_cbranch_scc1 {Lq2}")
    A("s_lshr_b32 s54, s62, 3")
    A("s_lshl_b32 s54, s54, 4")
    A("s_add_u32 s54, s54, s63")
    A("s_lshl_b32 s54, s54, 9")
    A(f"s_add_u32 s54, s54, {F2:#x}")
    A("s_lshl_b32 s55, s62, 4")
    A("s_add_u32 s55, s55, s63")
    A("s_mul_i32 s55, s55, 5120")
    poll(A, 16, 15, "s54", sleep=4)
    A("s_mov_b32 m0, s53")
    A("s_add_u32 s54, s55, 4096")
    for i in range(4):
        A(f"buffer_load_dwordx4 v18, s[{SWS}:{SWS+3}], s55 offen offset:{1024*i}{SC} lds")
    A("s_add_u32 m0, s53, 4096")
    A(f"buffer_load_dwordx4 v18, s[{SWS}:{SWS+3}], s54 offen{SC} lds")
    A("s_lshl_b32 s54, s48, 2")
    A(f"s_add_u32 s54, s54, {L_SYNC+16}")
    A("s_waitcnt vmcnt(0)")
    lds_arrive(A, 16, "s54")
    stamp(A, 7)
    A("s_lshl_b32 s54, s62, 2")
    A("s_add_u32 s54, s54, s48")
    A("s_mul_i32 s55, s54, 10240")
    A(f"s_add_u32 s55, s55, {WS_PART:#x}")
    A("s_lshl_b32 s54, s54, 9")
    A(f"s_add_u32 s54, s54, {F1:#x}")
    A("v_min_u32 v19, 20, v9")
    A("v_and_b32 v20, 32, v1")
    A("v_add_u32 v19, v19, v20")
    A("v_lshlrev_b32 v20, 3, v19")
    A("v_lshlrev_b32 v19, 4, v19")
    A("v_add_u32 v21, s53, v18")
    A("v_add_u32 v21, 5120, v21")
    A("s_mov_b32 s59, 0xffff0000")
    lds_wait(A, 16, L_SYNC + 4, 4, sleep=2)
    ppoll(A, 244, 15, "s54", sleep=Opt.psleep)
    stamp(A, 12)
    PR = [24, 34, 44, 54]
    SM, TP = 224, 244
    for p in range(4):
        A(f"buffer_load_dwordx4 {vr(PR[p],4)}, v19, s[{SWS}:{SWS+3}], s55 offen{SC}")
        A(f"buffer_load_dwordx4 {vr(PR[p]+4,4)}, v19, s[{SWS}:{SWS+3}], s55 offen offset:1024{SC}")
        A(f"buffer_load_dwordx2 {vr(PR[p]+8,2)}, v20, s[{SWS}:{SWS+3}], s55 offen offset:2048{SC}")
        if p < 3:
            A("s_add_u32 s55, s55, 2560")
    A("s_setprio 3")
    for p in range(4):
        A(f"s_waitcnt vmcnt({9-3*p})")
        for i in range(10):
            d = SM + 2 * i if p == 0 else TP + 2 * (i % 5)
            A(f"v_lshlrev_b32 v{d}, 16, v{PR[p]+i}")
            A(f"v_and_b32 v{d+1}, s59, v{PR[p]+i}")
            if p:
                A(f"v_pk_add_f32 {vr(SM+2*i,2)}, {vr(SM+2*i,2)}, {vr(d,2)}")
    for q in range(5):
        A(f"ds_write_b128 v21, {vr(SM+4*q,4)} offset:{1024*q}")
    lds_arrive(A, 16, L_SYNC + 8)
    A("s_setprio 0")
    stamp(A, 13)
    A.label(Lq2)
    A("s_waitcnt vmcnt(0)")
    take(6)
    take(7)
    srd(A, SO, S_OUT, NB_OUT)
    A("s_and_b32 s54, s99, 3")
    A("s_lshl_b32 s55, s98, 2")
    A("s_add_u32 s54, s54, s55")
    A("s_lshr_b32 s55, s54, 1")
    A("s_lshl_b32 s55, s55, 12")
    A(f"s_add_u32 s55, s55, {F3:#x}")
    A("s_lshl_b32 s57, s48, 10")
    A("s_add_u32 s55, s55, s57")
    A("v_lshrrev_b32 v15, 3, v1")
    A("v_lshlrev_b32 v15, 7, v15")
    A("s_mul_i32 s57, s54, 81920")
    A(f"s_add_u32 s57, s57, {WS_O:#x}")
    A("s_lshr_b32 s58, s48, 1")
    A("s_mul_i32 s58, s58, 40960")
    A("s_and_b32 s59, s48, 1")
    A("s_lshl_b32 s59, s59, 12")
    A("s_add_u32 s58, s58, s59")
    A("s_add_u32 s57, s57, s58")
    A(f"s_add_u32 s58, s58, {L_OT}")
    A("v_mov_b32 v5, v18")
    A(f"v_add_u32 v6, {L_OT}, v5")
    A(f"v_add_u32 v7, {L_OT+40960}, v5")
    A("v_lshlrev_b32 v10, 3, v9")
    A("v_lshl_add_u32 v10, v11, 9, v10")
    A(f"v_add_u32 v10, {L_OT+32768}, v10")
    A("s_mul_i32 s56, s48, 5120")
    A("s_waitcnt lgkmcnt(0)")
    A("v_mul_u32_u24 v12, 80, v9")
    A("v_lshl_add_u32 v12, v11, 5, v12")
    A("v_add_u32 v12, s56, v12")
    A("v_mul_u32_u24 v13, 80, v2")
    A("v_lshl_add_u32 v13, v3, 4, v13")
    A("v_add_u32 v13, s56, v13")
    A("v_mul_u32_u24 v14, 2560, v2")
    A("v_lshl_add_u32 v14, v3, 4, v14")
    A(f"s_mul_i32 s59, s54, {64*2560}")
    A("s_add_u32 s59, s59, s52")
    lds_wait(A, 16, L_SYNC + 12, 4, sleep=2)
    stamp(A, 8)
    ppoll(A, 48, 15, "s55", sleep=Opt.psleep)
    A("s_barrier")
    stamp(A, 9)
    for k in range(5):
        A(f"s_add_u32 m0, s58, {8192*k}")
        for i in range(4):
            A(f"buffer_load_dwordx4 v5, s[{SWS}:{SWS+3}], s57 offen offset:{1024*i}{SC} lds")
        if k < 4:
            A("s_add_u32 s57, s57, 8192")
    if Ctx.stamps:
        A("s_waitcnt lgkmcnt(0)")
    ACC = (16, 32)
    OFB = 224
    T = Lgkm(A)

    def rdx(f):
        if f % 8 == 0:
            A(f"s_waitcnt vmcnt({16 - 4*(f//8)})")
            A("s_barrier")
        for t in range(2):
            d = OFB + 4 * ((2 * f + t) % 8)
            if f < 32:
                T.issue(f"ds_read_b128 {vr(d,4)}, v{6+t} offset:{1024*f}", (f, t))
            else:
                a = f - 32
                T.issue(f"ds_read_b64 {vr(d,2)}, v10 offset:{40960*t + 1024*a}")
                T.issue(f"ds_read_b64 {vr(d+2,2)}, v10 offset:{40960*t + 1024*a + 256}", (f, t))

    for f in range(3):
        rdx(f)
    for f in range(40):
        for t in range(2):
            T.wait((f, t))
            c = vr(ACC[t], 16) if f else "0"
            A(f"v_mfma_f32_32x32x16_bf16 {vr(ACC[t],16)}, {vr(WR+4*f,4)}, {vr(OFB+4*((2*f+t)%8),4)}, {c}")
            if t == 0 and f + 3 < 40:
                rdx(f + 3)
    stamp(A, 10)
    for t in range(2):
        for i in range(8):
            A(f"v_cvt_pk_bf16_f32 v{48+8*t+i}, v{ACC[t]+2*i}, v{ACC[t]+2*i+1}")
        for i in range(2):
            A(f"ds_write_b128 v12, {vr(48+8*t+4*i,4)} offset:{2560*t+16*i}")
    A("s_waitcnt lgkmcnt(0)")
    for i in range(4):
        A(f"ds_read_b128 {vr(64+4*i,4)}, v13 offset:{1280*i}")
    for i in range(4):
        A(f"s_waitcnt lgkmcnt({3-i})")
        A(f"buffer_store_dwordx4 {vr(64+4*i,4)}, v14, s[{SO}:{SO+3}], s59 offen{Opt.osc}")
        if i < 3:
            A(f"s_add_u32 s59, s59, {16*2560}")
    stamp(A, 11)
    end_wave(A)


def role_compute(A):
    XA, WA, AD = 144, 152, 154
    ACC = 16
    WF = (96, 116)
    XF = (136, 140)
    t0, t1, t2, t3 = 11, 12, 13, 14
    for i in range(80):
        A(f"v_mov_b32 v{ACC+i}, 0")
    A(f"v_and_b32 v{t0}, 255, v0")
    A(f"v_lshlrev_b32 v{t0}, 4, v{t0}")
    A(f"v_add_u32 v{t0}, {L_Z}, v{t0}")
    A(f"ds_write_b128 v{t0}, {vr(ACC,4)}")
    A(f"ds_write_b128 v{t0}, {vr(ACC,4)} offset:64")
    A("s_lshl_b32 s54, s48, 12")
    A(f"v_and_b32 v{t0}, 31, v1")
    A(f"v_lshrrev_b32 v{t1}, 5, v1")
    A(f"v_bfe_u32 v{t2}, v1, 1, 3")
    A(f"v_xor_b32 v{t2}, v{t2}, v{t1}")
    A(f"v_lshlrev_b32 v{t2}, 4, v{t2}")
    A(f"v_lshl_add_u32 v{t2}, v{t0}, 7, v{t2}")
    A(f"v_add_u32 v{XA}, s54, v{t2}")
    for t in range(1, 4):
        A(f"v_xor_b32 v{XA+t}, {32*t}, v{XA}")
    for t in range(4):
        A(f"v_add_u32 v{XA+4+t}, {2*SLOT}, v{XA+t}")
    R8, JJ, HH = 158, 159, 160
    A(f"v_bfe_u32 v{t0}, v1, 2, 2")
    A(f"v_lshl_add_u32 v{R8}, v{t1}, 3, v{t0}")
    A(f"v_bfe_u32 v{t2}, v1, 4, 1")
    A(f"v_bfe_u32 v{t3}, v1, 1, 1")
    A(f"v_lshl_add_u32 v{JJ}, v{t2}, 1, v{t3}")
    A(f"v_and_b32 v{HH}, 1, v1")
    A(f"v_mul_u32_u24 v{t2}, 320, v{R8}")
    A(f"v_mul_u32_u24 v{t3}, 160, v{HH}")
    A(f"v_lshl_add_u32 v{t3}, v{JJ}, 3, v{t3}")
    A(f"v_add_u32 v{WA}, v{t2}, v{t3}")
    A(f"v_add_u32 v{WA}, 16384, v{WA}")
    A(f"v_add_u32 v{WA+1}, {2*SLOT}, v{WA}")
    A("s_movk_i32 s57, 1600")
    A("s_lshl_b32 s57, s57, s51")
    A(f"v_mul_u32_u24 v{t2}, s57, v{HH}")
    A(f"v_mul_u32_u24 v{t3}, 40, v{t0}")
    A(f"v_add_u32 v{t2}, v{t2}, v{t3}")
    A(f"v_lshl_add_u32 v{t2}, v{JJ}, 3, v{t2}")
    A(f"v_add_u32 v{t2}, {L_WP}, v{t2}")
    A(f"v_mov_b32 v{t3}, {L_Z}")
    A(f"v_cmp_eq_u32 vcc, v{HH}, v{t1}")
    A(f"v_cndmask_b32 v{AD}, v{t3}, v{t2}, vcc")
    A(f"v_add_u32 v{t0}, 24, v{t2}")
    A(f"v_cndmask_b32 v{AD+3}, v{t3}, v{t0}, vcc")
    A(f"v_cmp_eq_u32 s[58:59], 0, v{JJ}")
    A("s_and_b64 s[62:63], vcc, s[58:59]")
    A("s_andn2_b64 s[58:59], vcc, s[58:59]")
    A(f"v_add_u32 v{t0}, 32, v{t2}")
    A(f"v_cndmask_b32 v{AD+1}, v{t3}, v{t0}, s[62:63]")
    A(f"v_subrev_u32 v{t0}, 8, v{t2}")
    A(f"v_cndmask_b32 v{AD+2}, v{t3}, v{t0}, s[58:59]")
    A(f"v_and_b32 v{t0}, 31, v1")
    A("s_lshl_b32 s57, s48, 5")
    A(f"v_add_u32 v{t0}, s57, v{t0}")
    A(f"v_mul_u32_u24 v8, 176, v{t0}")
    A(f"v_add_u32 v8, {L_V}, v8")
    A(f"v_mul_u32_u24 v{t3}, 80, v{t1}")
    A(f"v_add_u32 v2, v8, v{t3}")
    A(f"v_mul_u32_u24 v{t2}, 336, v{t0}")
    A(f"v_lshl_add_u32 v3, v{t3}, 1, v{t2}")
    A(f"v_mul_u32_u24 v{t0}, 336, v{R8}")
    A(f"v_mul_u32_u24 v{t1}, 5, v{HH}")
    A(f"v_add_u32 v{t1}, v{t1}, v{JJ}")
    A(f"v_lshl_add_u32 v{t0}, v{t1}, 3, v{t0}")
    A("s_mul_i32 s57, s48, 80")
    A(f"v_add_u32 v6, s57, v{t0}")
    A(f"v_lshl_add_u32 v{t0}, v{JJ}, 1, v{HH}")
    A("s_mul_i32 s57, s48, 5")
    A(f"v_add_u32 v{t1}, s57, v{t0}")
    A(f"v_cmp_gt_u32 vcc, 5, v{t0}")
    A(f"v_cndmask_b32 v{t1}, 20, v{t1}, vcc")
    A(f"v_mul_u32_u24 v{t0}, 176, v{R8}")
    A(f"v_lshl_add_u32 v{t0}, v{t1}, 3, v{t0}")
    A(f"v_add_u32 v7, {L_V}, v{t0}")
    A("v_mov_b32 v4, 0x3f803f80")
    A("v_mov_b32 v5, 0x3f803f80")
    WPF = 164
    frags = [(0, 0), (0, 1), (0, 2), (1, 0), (1, 1), (1, 2), (1, 3), (1, 4), (2, 2), (2, 3), (2, 4)]
    for r in (WPF + 4 * 2 + 2, WPF + 4 * 2 + 3, WPF + 4 * 8, WPF + 4 * 8 + 1):
        A(f"v_mov_b32 v{r}, 0")
    A(f"s_mov_b32 s60, {LOG2E:#x}")
    A(f"s_mov_b32 s61, {LOG2E:#x}")
    A("s_waitcnt lgkmcnt(0)")
    srd(A, SWS, S_WS, WS_SIZE)
    A("s_setprio 2")

    def rd_x(s, t, b):
        sl = s % 3
        return f"ds_read_b128 {vr(XF[b],4)}, v{XA + 4*(sl>>1) + t} offset:{(sl&1)*SLOT}"

    def rd_w(s, t, T, half, b):
        sl = s % 3
        return f"ds_read_b64_tr_b16 {vr(WF[b]+4*T+2*half,2)}, v{WA+(sl>>1)} offset:{(sl&1)*SLOT + (16*t+4*half)*320 + 32*T}"

    def wphi_reads(pas):
        L = []
        for fi, (Tp, u) in enumerate(frags):
            for half in range(2):
                dq = 2 * u + half
                r = WPF + 4 * fi + 2 * half
                if (Tp == 0 and dq == 5) or (Tp == 2 and dq == 4):
                    continue
                ad = {(0, 0): AD, (1, 0): AD + 1, (1, 1): AD + 2, (2, 1): AD + 3}[(Tp, dq // 5)]
                L.append(f"ds_read_b64_tr_b16 {vr(r,2)}, v{ad} offset:{dq*160 + pas*1600}")
        return L

    A("s_barrier")
    stampw(A, 3)
    A(rd_x(0, 0, 0))
    for T in range(5):
        A(rd_w(0, 0, T, 0, 0)); A(rd_w(0, 0, T, 1, 0))
    for s in range(10):
        for t in range(4):
            b = t & 1
            last = (s == 9 and t == 3)
            ns, nt = (s, t + 1) if t < 3 else (s + 1, 0)
            prev_remaining = [8, 6, 4, 2, 0]
            issued = 0
            wp = wphi_reads(0) if last else []
            for T in range(5):
                if not (t == 3 and T >= 2):
                    A(f"s_waitcnt lgkmcnt({prev_remaining[T] + issued})")
                A(f"v_mfma_f32_32x32x16_bf16 {vr(ACC+16*T,16)}, {vr(WF[b]+4*T,4)}, {vr(XF[b],4)}, {vr(ACC+16*T,16)}")
                if t < 3:
                    if T == 0:
                        A(rd_x(ns, nt, 1 - b)); issued += 1
                    A(rd_w(ns, nt, T, 0, 1 - b)); A(rd_w(ns, nt, T, 1, 1 - b)); issued += 2
                elif T == 1:
                    A("s_waitcnt lgkmcnt(0)")
                    A("s_barrier")
                    if not last:
                        A(rd_x(ns, nt, 1 - b))
                        for TT in (0, 1):
                            A(rd_w(ns, nt, TT, 0, 1 - b)); A(rd_w(ns, nt, TT, 1, 1 - b))
                    else:
                        for x in wp[:5]:
                            A(x)
                elif T >= 2:
                    if not last:
                        A(rd_w(ns, nt, T, 0, 1 - b)); A(rd_w(ns, nt, T, 1, 1 - b))
                    else:
                        for x in wp[5 * (T - 1):5 * T]:
                            A(x)
    stamp(A, 4)
    tag_issue(A)
    P = 96
    E, F, TT_ = 208, 228, 248

    def phi_mfma(src, acc):
        seen = set()
        for fi, (Tp, u) in enumerate(frags):
            c = vr(acc + 16 * Tp, 16) if Tp in seen else "0"
            seen.add(Tp)
            A(f"v_mfma_f32_32x32x16_bf16 {vr(acc+16*Tp,16)}, {vr(WPF+4*fi,4)}, {vr(src+4*u,4)}, {c}")

    for i in range(40):
        A(f"v_cvt_pk_bf16_f32 v{P+i}, v{ACC+2*i}, v{ACC+2*i+1}")
    Lq = A.newlabel("L_q")
    A("s_cmp_eq_u32 s51, 0")
    A(f"s_cbranch_scc0 {Lq}")
    mq = A.mark()
    for i in range(20):
        A(f"v_permlane32_swap_b32 v{P+i}, v{P+20+i}")
    tag_check(A, 10)
    phi_mfma(P, ACC)
    for i in range(5):
        A(f"ds_write_b128 v2, {vr(P+20+4*i,4)} offset:{16*i}")
    A("ds_write_b64 v8, v[4:5] offset:160")
    for grp, ph in ((0, 64), (1, 96)):
        softmax20(A, ACC + 20 * grp, E, F, TT_, ph)
        for i in range(5):
            A(f"ds_write_b128 v3, {vr(ph+4*i,4)} offset:{80*grp+16*i}")
    stamp(A, 5)
    lds_arrive(A, 10, L_SYNC)
    A("s_lshl_b32 s57, s50, 2")
    A("s_add_u32 s57, s57, s48")
    A("s_lshl_b32 s57, s57, 4")
    A("s_add_u32 s57, s57, s49")
    A("s_lshl_b32 s59, s57, 7")
    A(f"s_add_u32 s59, s59, {F1:#x}")
    A("s_mul_i32 s57, s57, 2560")
    A(f"s_add_u32 s57, s57, {WS_PART:#x}")
    A("v_lshlrev_b32 v2, 4, v1")
    A("v_lshlrev_b32 v3, 3, v1")
    lds_wait(A, 10, None, 4)
    FA = 64
    T = Lgkm(A)
    for u in range(10):
        if u < 8:
            for half in range(2):
                o = (16 * u + 4 * half)
                T.issue(f"ds_read_b64_tr_b16 {vr(FA+12*u+2*half,2)}, v6 offset:{o*336}")
                T.issue(f"ds_read_b64_tr_b16 {vr(FA+12*u+4+2*half,2)}, v6 offset:{o*336+32}")
                T.issue(f"ds_read_b64_tr_b16 {vr(FA+12*u+8+2*half,2)}, v7 offset:{o*176}", u)
        if u >= 2:
            uu = u - 2
            T.wait(uu)
            for TT in range(2):
                c = vr(ACC + 16 * TT, 16) if uu else "0"
                A(f"v_mfma_f32_32x32x16_bf16 {vr(ACC+16*TT,16)}, {vr(FA+12*uu+4*TT,4)}, {vr(FA+12*uu+8,4)}, {c}")
    o_index(A)
    for i in range(10):
        A(f"v_cvt_pk_bf16_f32 v{48+i}, v{ACC+2*i}, v{ACC+2*i+1}")
    A(f"buffer_store_dwordx2 v[56:57], v3, s[{SWS}:{SWS+3}], s57 offen offset:2048{SC}")
    A("s_mov_b32 exec_lo, 0x00ffffff")
    A("s_mov_b32 exec_hi, 0x00ffffff")
    A(f"buffer_store_dwordx4 v[48:51], v2, s[{SWS}:{SWS+3}], s57 offen{SC}")
    A(f"buffer_store_dwordx4 v[52:55], v2, s[{SWS}:{SWS+3}], s57 offen offset:1024{SC}")
    A("s_mov_b64 exec, -1")
    stamp(A, 6)
    role_o(A)
    end_wave(A)
    A.label(Lq)
    hq = A.mark()
    A("s_nop 1")
    tag_check(A, 10)
    phi_mfma(P, ACC)
    A(f"v_and_b32 v{t0}, 31, v1")
    A(f"v_lshrrev_b32 v{t1}, 5, v1")
    A(f"s_mov_b32 s57, {4*64*1280}")
    A(f"v_mul_lo_u32 v{t1}, s57, v{t1}")
    A(f"v_lshl_add_u32 v2, v{t0}, 4, v{t1}")
    A(f"v_lshl_add_u32 v3, v{t0}, 3, v{t1}")
    A("s_lshl_b32 s58, s49, 2")
    A("s_add_u32 s58, s58, s48")
    for x in wphi_reads(1):
        A(x)
    A("s_lshl_b32 s59, s50, 6")
    A("s_add_u32 s59, s59, s58")
    A("s_lshl_b32 s59, s59, 7")
    A(f"s_add_u32 s59, s59, {F2:#x}")
    A("s_lshl_b32 s57, s50, 9")
    A("s_add_u32 s57, s57, s58")
    A("s_mul_i32 s57, s57, 1280")
    A("s_waitcnt lgkmcnt(0)")
    phi_mfma(P + 20, 208)
    for hs in range(4):
        x = (ACC, ACC + 20, 208, 228)[hs]
        o = 64 + 10 * hs if hs < 3 else 96
        for i in range(10):
            A(f"v_cvt_pk_bf16_f32 v{o+i}, v{x+2*i}, v{x+2*i+1}")
        A(f"buffer_store_dwordx4 {vr(o,4)}, v2, s[{SWS}:{SWS+3}], s57 offen{SC}")
        A(f"buffer_store_dwordx4 {vr(o+4,4)}, v2, s[{SWS}:{SWS+3}], s57 offen offset:512{SC}")
        A(f"buffer_store_dwordx2 {vr(o+8,2)}, v3, s[{SWS}:{SWS+3}], s57 offen offset:1024{SC}")
        if hs < 3:
            A(f"s_add_u32 s57, s57, {64*1280}")
    stamp(A, 6)
    set_flag(A, 10, "s59")
    stamp(A, 7)
    A.check_seam(mq, hq)
    A("s_setprio 0")
    A("s_cmp_lt_u32 s99, 4")
    A("s_cbranch_scc1 L_wo")
    if Opt.hold:
        if Opt.holdwg >= 0:
            A(f"s_cmp_eq_u32 s2, {Opt.holdwg}")
            A("s_cbranch_scc0 L_exit")
        A.label("L_hold")
        A("s_sleep 4")
        A("s_memrealtime s[66:67]")
        A("s_waitcnt lgkmcnt(0)")
        A("s_sub_u32 s66, s66, s64")
        A(f"s_cmp_lt_u32 s66, {Opt.hold}")
        A("s_cbranch_scc1 L_hold")
    end_wave(A)


def role_o(A):
    NT = 4
    RAW, X, PQ = 64, 104, 128
    A("s_mul_i32 s53, s48, 20480")
    A(f"s_add_u32 s53, s53, {L_WOB}")
    A("v_and_b32 v4, 31, v1")
    A("v_lshl_add_u32 v5, v4, 4, s53")
    A("v_lshl_add_u32 v6, v4, 3, s53")
    A("v_and_b32 v7, 32, v1")
    A("v_lshlrev_b32 v7, 26, v7")
    A("s_lshl_b32 s54, s48, 2")
    A(f"s_add_u32 s54, s54, {L_SYNC+16}")
    A("s_mov_b32 s58, 0xffff0000")
    for t in range(NT):
        A(f"v_mov_b32 v{PQ+12*t+10}, 0")
        A(f"v_mov_b32 v{PQ+12*t+11}, 0")
    set_flag(A, 10, "s59")
    lds_arrive(A, 14, L_SYNC + 4)
    stamp(A, 7)
    lds_wait(A, 14, "s54", 1)
    stampw(A, 8)
    T = Lgkm(A)
    for t in range(NT):
        T.issue(f"ds_read_b128 {vr(RAW+10*t,4)}, v5 offset:{1280*t}")
        T.issue(f"ds_read_b128 {vr(RAW+10*t+4,4)}, v5 offset:{1280*t+512}")
        T.issue(f"ds_read_b64 {vr(RAW+10*t+8,2)}, v6 offset:{1280*t+1024}", t)
    A("s_lshl_b32 s57, s63, 2")
    A("s_mul_i32 s54, s57, 40960")
    A(f"s_add_u32 s54, s54, {WS_O:#x}")
    A("s_lshl_b32 s59, s62, 8")
    A("s_add_u32 s59, s59, s54")
    A("s_add_u32 s59, s59, 32768")
    A("s_lshl_b32 s57, s62, 10")
    A("s_add_u32 s54, s54, s57")
    A("s_lshl_b32 s50, s63, 5")
    A("s_add_u32 s50, s50, s62")
    A("s_lshl_b32 s50, s50, 7")
    A(f"s_add_u32 s50, s50, {F3:#x}")
    mx, se = 124, 126
    for t in range(NT):
        T.wait(t)
        for i in range(10):
            A(f"v_lshl_add_u32 v{X+2*i}, v{RAW+10*t+i}, 16, v7")
            A(f"v_bitop3_b32 v{X+2*i+1}, v{RAW+10*t+i}, s58, v7 bitop3:0x6a")
        A(f"v_max3_f32 v{mx}, v{X}, v{X+1}, v{X+2}")
        A(f"v_max3_f32 v{mx+1}, v{X+3}, v{X+4}, v{X+5}")
        for i in range(6, 18, 4):
            A(f"v_max3_f32 v{mx}, v{mx}, v{X+i}, v{X+i+1}")
            A(f"v_max3_f32 v{mx+1}, v{mx+1}, v{X+i+2}, v{X+i+3}")
        A(f"v_max3_f32 v{mx}, v{mx}, v{X+18}, v{X+19}")
        A(f"v_max_f32 v{mx}, v{mx}, v{mx+1}")
        A(f"v_mul_f32 v{mx}, s60, v{mx}")
        for i in range(0, 20, 2):
            A(f"v_pk_fma_f32 {vr(X+i,2)}, {vr(X+i,2)}, s[60:61], {vr(mx,2)} op_sel_hi:[1,1,0] neg_lo:[0,0,1] neg_hi:[0,0,1]")
        for i in range(20):
            A(f"v_exp_f32 v{X+i}, v{X+i}")
        A(f"v_pk_add_f32 {vr(se,2)}, {vr(X,2)}, {vr(X+2,2)}")
        A(f"v_pk_add_f32 {vr(mx,2)}, {vr(X+4,2)}, {vr(X+6,2)}")
        for i in range(8, 20, 4):
            A(f"v_pk_add_f32 {vr(se,2)}, {vr(se,2)}, {vr(X+i,2)}")
            A(f"v_pk_add_f32 {vr(mx,2)}, {vr(mx,2)}, {vr(X+i+2,2)}")
        A(f"v_pk_add_f32 {vr(se,2)}, {vr(se,2)}, {vr(mx,2)}")
        A(f"v_add_f32 v{se}, v{se}, v{se+1}")
        A(f"v_rcp_f32 v{se}, v{se}")
        for i in range(0, 20, 2):
            A(f"v_pk_mul_f32 {vr(X+i,2)}, {vr(X+i,2)}, {vr(se,2)} op_sel_hi:[1,0]")
        for i in range(10):
            A(f"v_cvt_pk_bf16_f32 v{PQ+12*t+i}, v{X+2*i}, v{X+2*i+1}")
    stamp(A, 9)
    A(f"v_add_u32 v8, {L_WOB+5120}, v2")
    A(f"v_add_u32 v9, {L_WOB+5120+40960}, v2")
    KF = 16
    A(f"v_mov_b32 v{KF+10}, 0")
    A(f"v_mov_b32 v{KF+11}, 0")
    lds_wait(A, 14, L_SYNC + 8, 4)
    stampw(A, 10)
    PR = 32
    T = Lgkm(A)
    for q in range(5):
        for p in range(4):
            T.issue(f"ds_read_b128 {vr(PR+16*q+4*p,4)}, v{8+(p>>1)} offset:{20480*(p&1)+1024*q}", q)
    for q in range(5):
        T.wait(q)
        b = PR + 16 * q
        for h in (0, 2):
            A(f"v_pk_add_f32 {vr(b+h,2)}, {vr(b+h,2)}, {vr(b+4+h,2)}")
            A(f"v_pk_add_f32 {vr(b+8+h,2)}, {vr(b+8+h,2)}, {vr(b+12+h,2)}")
        for h in (0, 2):
            A(f"v_pk_add_f32 {vr(b+h,2)}, {vr(b+h,2)}, {vr(b+8+h,2)}")
        for h in (0, 2):
            A(f"v_cvt_pk_bf16_f32 v{KF+2*q+h//2}, v{b+h}, v{b+h+1}")
    D = [176, 192, 208, 224]
    OP = [32, 40, 48, 56]

    def mf(t):
        for u in range(3):
            c = vr(D[t], 16) if u else "0"
            A(f"v_mfma_f32_32x32x16_bf16 {vr(D[t],16)}, {vr(KF+4*u,4)}, {vr(PQ+12*t+4*u,4)}, {c}")

    if Opt.dA:
        A(f"s_sleep {Opt.dA}")
    mf(0)
    mf(1)
    for t in range(NT):
        d, o = D[t], OP[t]
        A(f"v_add_f32 v10, 0x358637bd, v{d+12}")
        A("v_rcp_f32 v10, v10")
        if t + 2 < NT:
            mf(t + 2)
        for i in range(12):
            A(f"v_mul_f32 v{d+i}, v10, v{d+i}")
        for i in range(6):
            A(f"v_cvt_pk_bf16_f32 v{o+i}, v{d+2*i}, v{d+2*i+1}")
        A(f"buffer_store_dwordx4 {vr(o,4)}, v2, s[{SWS}:{SWS+3}], s54 offen{SC}")
        A("s_mov_b32 exec_hi, 0")
        A(f"buffer_store_dwordx2 {vr(o+4,2)}, v3, s[{SWS}:{SWS+3}], s59 offen{SC}")
        A("s_mov_b64 exec, -1")
        if t < NT - 1:
            A("s_add_u32 s54, s54, 40960")
            A("s_add_u32 s59, s59, 40960")
    stamp(A, 11)
    set_flag(A, 12, "s50")
    lds_arrive(A, 16, L_SYNC + 12)
    stamp(A, 12)


def b_channel(A):
    A("s_mul_i32 s49, s98, 80")
    A("s_sub_u32 s50, s99, 24")
    A("s_mul_i32 s50, s50, 6")
    A("s_add_u32 s49, s49, s50")
    A("s_add_u32 s49, s49, s48")
    A(f"s_mul_i32 s56, s48, {CV_LDS}")


def conv_load_h(A, v):
    SH = 40
    srd(A, SH, S_SSK, NB_SSK)
    A(f"v_lshlrev_b32 v{v}, 4, v1")
    A("s_lshl_b32 s50, s49, 12")
    A("s_add_u32 m0, s56, 64")
    for i in range(4):
        A(f"buffer_load_dwordx4 v{v}, s[{SH}:{SH+3}], s50 offen offset:{1024*i}{Opt.nt_s} lds")


def f0_lines(A, c0, c1, v):
    A(f"s_lshr_b32 s52, s{c0}, 6")
    A("s_mul_i32 s52, s52, 419431")
    A("s_lshr_b32 s52, s52, 16")
    A(f"s_lshr_b32 s53, s{c1}, 6")
    A("s_mul_i32 s53, s53, 419431")
    A("s_add_u32 s53, s53, 406324")
    A("s_lshr_b32 s53, s53, 16")
    A(f"v_lshrrev_b32 v{v}, 2, v1")
    A(f"v_add_u32 v{v}, s52, v{v}")
    A(f"v_min_u32 v{v}, s53, v{v}")
    A(f"v_lshlrev_b32 v{v}, 7, v{v}")
    A(f"s_mov_b32 s52, {F0:#x}")


def role_pre(A):
    SK, SV, SS = 32, 36, 40
    t0, t1, t2 = 2, 3, 4
    A("s_lshl_b32 s49, s98, 3")
    A("s_add_u32 s49, s49, s99")
    A("s_sub_u32 s49, s49, 24")
    A("s_mul_i32 s49, s49, 5")
    A("s_add_u32 s49, s49, s48")
    A("s_and_b32 s50, s49, 31")
    A("s_lshr_b32 s51, s49, 5")
    A(f"s_mul_i32 s52, s50, {64*1280}")
    A("s_lshl_b32 s53, s51, 7")
    A("s_add_u32 s52, s52, s53")
    A(f"v_lshrrev_b32 v{t0}, 3, v1")
    A(f"v_and_b32 v{t1}, 7, v1")
    A(f"v_mul_u32_u24 v{t2}, {8*1280}, v{t0}")
    A(f"v_lshl_add_u32 v{t2}, v{t1}, 4, v{t2}")
    A(f"v_add_u32 v5, s52, v{t2}")
    A(f"v_subrev_u32 v6, {3*1280}, v5")
    A(f"v_subrev_u32 v7, {2*1280}, v5")
    A(f"v_subrev_u32 v8, {1280}, v5")
    A(f"v_lshlrev_b32 v9, 6, v{t1}")
    A("s_lshl_b32 s54, s51, 9")
    A(f"s_movk_i32 s55, {4*1280}")
    A("s_waitcnt lgkmcnt(0)")
    srd(A, SK, S_BK, NB_X)
    srd(A, SV, S_BV, NB_X)
    srd(A, SS, S_SH, NB_SH)
    WR, KR, VR = 16, 32, 76
    for i in range(4):
        A(f"buffer_load_dwordx4 {vr(WR+4*i,4)}, v9, s[{SS}:{SS+3}], s54 offen offset:{16*i}")
    for i in range(3):
        A(f"buffer_load_dwordx4 {vr(KR+4*i,4)}, v{6+i}, s[{SK}:{SK+3}], 0 offen{Opt.nt_s}")

    order = []

    def ld(kind, i):
        so = "0" if i < 4 else "s55"
        if kind == "k":
            A(f"buffer_load_dwordx4 {vr(KR+12+4*i,4)}, v5, s[{SK}:{SK+3}], {so} offen offset:{1280*(i&3)}{Opt.nt_s}")
        else:
            A(f"buffer_load_dwordx4 {vr(VR+4*i,4)}, v5, s[{SV}:{SV+3}], {so} offen offset:{1280*(i&3)}{Opt.nt_s}")
        order.append((kind, i))

    for i in (5, 6, 7):
        ld("k", i)
    ld("k", 0); ld("v", 0); ld("k", 1); ld("v", 1)
    todo = [("k", 2), ("v", 2), ("k", 3), ("v", 3), ("k", 4), ("v", 4), ("v", 5), ("v", 6), ("v", 7)]
    stamp(A, 2)
    srd(A, SWS, S_WS, WS_SIZE)
    A("s_mul_i32 s56, s48, 8320")
    A(f"s_add_u32 s56, s56, {B_PRE}")
    A(f"v_mul_u32_u24 v10, 1040, v{t1}")
    A(f"v_lshl_add_u32 v10, v{t0}, 4, v10")
    A("v_add_u32 v10, s56, v10")
    A("v_lshrrev_b32 v11, 4, v1")
    A("v_lshlrev_b32 v11, 8, v11")
    A("v_and_b32 v12, 3, v1")
    A("v_lshl_add_u32 v11, v12, 6, v11")
    A("v_bfe_u32 v12, v1, 2, 2")
    A("v_lshl_add_u32 v11, v12, 3, v11")
    A("v_add_u32 v11, s56, v11")
    A(f"v_lshlrev_b32 v12, 12, v{t0}")
    A(f"v_lshl_add_u32 v12, v{t1}, 4, v12")
    A("s_lshl_b32 s57, s51, 18")
    A("s_lshl_b32 s58, s50, 7")
    A("s_add_u32 s57, s57, s58")
    A(f"s_add_u32 s57, s57, {WS_KVT:#x}")
    A("s_mov_b32 s59, 0xffff0000")
    WF, KF, VF, TA, OUT = 108, 140, 172, 180, 196

    def unpack(dst, src, n):
        for i in range(n):
            A(f"v_lshlrev_b32 v{dst+2*i}, 16, v{src+i}")
            A(f"v_and_b32 v{dst+2*i+1}, s59, v{src+i}")

    A(f"s_waitcnt vmcnt({3+len(order)})")
    ld(*todo.pop(0)); ld(*todo.pop(0))
    for c in range(8):
        A(f"v_lshlrev_b32 v{WF+c}, 16, v{WR+2*c}")
        A(f"v_and_b32 v{WF+8+c}, s59, v{WR+2*c}")
        A(f"v_lshlrev_b32 v{WF+16+c}, 16, v{WR+2*c+1}")
        A(f"v_and_b32 v{WF+24+c}, s59, v{WR+2*c+1}")
    A(f"s_waitcnt vmcnt({len(order)})")
    ld(*todo.pop(0)); ld(*todo.pop(0))
    for i in range(3):
        unpack(KF + 8 * i, KR + 4 * i, 4)
    for i in range(8):
        need = max(order.index(("k", i)), order.index(("v", i)))
        A(f"s_waitcnt vmcnt({len(order)-1-need})")
        for _ in range(2):
            if todo:
                ld(*todo.pop(0))
        if i == 2:
            b_channel(A)
            conv_load_h(A, 13)
            order.extend([None] * 4)
        unpack(KF + 8 * ((i + 3) & 3), KR + 12 + 4 * i, 4)
        unpack(VF, VR + 4 * i, 4)
        acc = TA + 8 * (i & 1)
        for j in (3, 2, 1, 0):
            kk = KF + 8 * ((i + 3 - j) & 3)
            for c in range(0, 8, 2):
                if j == 3:
                    A(f"v_pk_mul_f32 {vr(acc+c,2)}, {vr(kk+c,2)}, {vr(WF+8*j+c,2)}")
                else:
                    A(f"v_pk_fma_f32 {vr(acc+c,2)}, {vr(kk+c,2)}, {vr(WF+8*j+c,2)}, {vr(acc+c,2)}")
        for c in range(0, 8, 2):
            A(f"v_pk_mul_f32 {vr(acc+c,2)}, {vr(acc+c,2)}, {vr(VF+c,2)}")
        if i & 1:
            for c in range(8):
                A(f"v_cvt_pk_bf16_f32 v{OUT+4*c+i//2}, v{TA+c}, v{TA+8+c}")
    stamp(A, 3)
    for c in range(8):
        A(f"ds_write_b128 v10, {vr(OUT+4*c,4)} offset:{128*c}")
    A("s_waitcnt lgkmcnt(0)")
    T = Lgkm(A)
    for i in range(8):
        T.issue(f"ds_read_b64_tr_b16 {vr(16+4*i,2)}, v11 offset:{1040*i}")
        T.issue(f"ds_read_b64_tr_b16 {vr(18+4*i,2)}, v11 offset:{1040*i+32}", i)
    for i in range(8):
        T.wait(i)
        A(f"buffer_store_dwordx4 {vr(16+4*i,4)}, v12, s[{SWS}:{SWS+3}], s57 offen{SC}")
        if i < 7:
            A(f"s_add_u32 s57, s57, {8*4096}")
    A("s_waitcnt vmcnt(0)")
    stamp(A, 4)


def role_helper(A):
    SD = 40
    A("s_setprio 3")
    A("s_waitcnt lgkmcnt(0)")
    srd(A, SWS, S_WS, WS_SIZE)
    srd(A, SD, S_DBG, 256)
    Lz = A.newlabel("L_nz")
    A("s_cmp_eq_u32 s2, 192")
    A(f"s_cbranch_scc0 {Lz}")
    A("s_cmp_eq_u32 s48, 5")
    A(f"s_cbranch_scc0 {Lz}")
    A(f"s_mov_b32 s57, {WS_EPOCH:#x}")
    A("s_mov_b64 exec, 1")
    A(f"buffer_load_dword v4, off, s[{SWS}:{SWS+3}], s57{SC}")
    A("s_waitcnt vmcnt(0)")
    A("v_add_u32 v4, 1, v4")
    A("v_not_b32 v5, v4")
    A(f"buffer_store_dwordx2 v[4:5], off, s[{SD}:{SD+3}], 0{SC}")
    A(f"buffer_store_dword v4, off, s[{SWS}:{SWS+3}], s57{SC}")
    A("s_mov_b64 exec, -1")
    stamp(A, 2)
    A.label(Lz)
    if Opt.codepf:
        Lp = A.newlabel("L_npf")
        A("s_cmp_eq_u32 s48, 6")
        A(f"s_cbranch_scc0 {Lp}")
        A("s_getpc_b64 s[50:51]")
        A.label("L_pc")
        A(f"s_sub_u32 s50, s50, L_pc-{NAME}_kernel")
        A("s_subb_u32 s51, s51, 0")
        A("s_sub_u32 s52, s99, 24")
        A("s_lshl_b32 s52, s52, 13")
        A("v_lshl_add_u32 v2, v1, 7, s52")
        A(f"v_min_u32 v2, L_code_end-{NAME}_kernel-4, v2")
        A("global_load_dword v24, v2, s[50:51]")
        if Opt.womall:
            srd(A, 36, S_WO, NB_WO)
            A("s_sub_u32 s52, s2, 192")
            A("s_lshl_b32 s52, s52, 14")
            A("s_add_u32 s53, s52, 8192")
            A("v_lshlrev_b32 v2, 7, v1")
            A("buffer_load_dword v25, v2, s[36:39], s52 offen")
            A("buffer_load_dword v26, v2, s[36:39], s53 offen")
        A.label(Lp)
    A("s_setprio 0")
    L6 = A.newlabel("L_h6")
    Lx = A.newlabel("L_h67")
    A("s_cmp_eq_u32 s48, 5")
    A(f"s_cbranch_scc0 {L6}")
    b_channel(A)
    conv_load_h(A, 2)
    A("s_branch L_bconv")
    A.label(L6)
    A("s_mul_i32 s54, s98, 80")
    A("s_sub_u32 s50, s99, 24")
    A("s_mul_i32 s55, s50, 6")
    A("s_add_u32 s54, s54, s55")
    A("s_add_u32 s55, s54, 5")
    f0_lines(A, 54, 55, 12)
    A("s_lshl_b32 s58, s98, 3")
    A("s_add_u32 s58, s58, s50")
    A("s_lshl_b32 s58, s58, 7")
    A(f"s_add_u32 s58, s58, {F0:#x}")
    Lt = A.newlabel("L_h7")
    A("s_cmp_eq_u32 s48, 7")
    A(f"s_cbranch_scc0 {Lt}")
    A(f"s_mov_b64 s[{TAG}:{TAG+1}], 0")
    tag_check(A, 8)
    A.label(Lt)
    A("s_barrier")
    A("s_cmp_eq_u32 s48, 7")
    A(f"s_cbranch_scc0 {Lx}")
    set_flag(A, 8, "s58")
    poll(A, 14, 12, "s52", sleep=4)
    A.label(Lx)
    A("s_barrier")
    A("s_branch L_post")


def conv_setup(A):
    A("v_lshlrev_b32 v2, 4, v1")
    A("s_lshl_b32 s52, s49, 1")
    A("s_and_b32 s52, s52, 0xfffffffc")
    A(f"s_load_dword s55, s[{S_SSD}:{S_SSD+1}], s52")
    A(f"s_load_dword s54, s[{S_SSK}:{S_SSK+1}], s50")
    A(f"s_add_u32 s51, s50, {WS_KVT:#x}")
    for i in range(4):
        A(f"v_mov_b32 v{4+i}, 0")
    A("v_add_u32 v3, s56, v2")
    A("s_mov_b64 exec, 0xf")
    A("ds_write_b128 v3, v[4:7]")
    A("s_mov_b32 exec_lo, -1")
    A(f"ds_write_b128 v3, v[4:7] offset:{64+4096}")
    A("s_mov_b64 exec, -1")
    A("v_and_b32 v8, 1, v1")
    A("v_lshlrev_b32 v8, 5, v8")
    A("v_bfe_u32 v9, v1, 4, 1")
    A("v_lshl_add_u32 v8, v9, 4, v8")
    A("v_bfe_u32 v9, v1, 1, 1")
    A("v_lshl_add_u32 v8, v9, 3, v8")
    A("v_lshrrev_b32 v10, 5, v1")
    A("v_lshl_add_u32 v8, v10, 6, v8")
    A("v_bfe_u32 v9, v1, 2, 2")
    A("v_lshlrev_b32 v9, 3, v9")
    A("v_sub_u32 v8, v8, v9")
    A("s_add_u32 s57, s56, 32")
    A("v_add_u32 v8, s57, v8")
    A("v_bfe_u32 v9, v1, 4, 1")
    A("v_lshlrev_b32 v9, 8, v9")
    A("v_and_b32 v11, 3, v1")
    A("v_lshl_add_u32 v9, v11, 6, v9")
    A("v_bfe_u32 v11, v1, 2, 2")
    A("v_lshl_add_u32 v9, v11, 4, v9")
    A("v_lshlrev_b32 v11, 6, v10")
    A("v_sub_u32 v9, v9, v11")
    A(f"s_add_u32 s57, s56, {64+4096+512-384}")
    A("v_add_u32 v9, s57, v9")
    A("v_bfe_u32 v11, v1, 2, 1")
    A("v_bfe_u32 v12, v1, 3, 2")
    A("v_lshl_add_u32 v11, v11, 2, v12")
    A("v_and_b32 v12, 35, v1")
    A("v_lshl_add_u32 v11, v12, 3, v11")
    A("v_and_b32 v12, 1, v11")
    A("v_lshlrev_b32 v12, 4, v12")
    A("v_mov_b32 v13, 0xffff")
    A("v_lshlrev_b32 v13, v12, v13")
    A("v_lshrrev_b32 v11, 1, v11")
    for i in range(4):
        A(f"v_cmp_eq_u32 vcc, {i}, v11")
        A(f"v_cndmask_b32 v{MK+i}, 0, v13, vcc")
    A("v_bfe_u32 v11, v1, 4, 1")
    A("v_and_b32 v12, 3, v1")
    A("v_lshl_add_u32 v11, v11, 2, v12")
    A("v_add_u32 v11, 7, v11")
    A("v_and_b32 v12, 3, v11")
    A("v_bfe_u32 v13, v11, 2, 1")
    A("v_lshl_add_u32 v12, v13, 4, v12")
    A("v_and_b32 v13, 12, v1")
    A("v_add3_u32 v12, v12, v13, 32")
    A("v_subrev_u32 v13, 32, v1")
    A("v_cmp_gt_u32 vcc, 32, v1")
    A("v_cndmask_b32 v14, v13, v12, vcc")
    A("v_lshlrev_b32 v14, 2, v14")
    A("s_mov_b32 s58, 0x1111")
    A("s_mov_b32 s59, 0")


MK = 16


def role_conv(A):
    A("s_barrier")
    conv_setup(A)
    A.label("L_conv")
    NR = 20
    RA, RB, RS = 64, 144, 224
    ACCS = (32, 48)
    CAR, PUL, TMP = 20, (21, 22), 23
    OUT = (24, 28)

    def rdA(m, reg, tag):
        return [(f"ds_read_b64_tr_b16 {vr(reg,2)}, v8 offset:{128*m+32}", None),
                (f"ds_read_b64_tr_b16 {vr(reg+2,2)}, v8 offset:{128*m}", tag)]

    def rdB(b, reg, tag):
        return [(f"ds_read_b128 {vr(reg,4)}, v9 offset:{128*b}", tag)]

    def xload():
        A(f"s_add_u32 m0, s56, {64+4096+512}")
        for i in range(4):
            A(f"buffer_load_dwordx4 v2, s[{SWS}:{SWS+3}], s51 offen offset:{1024*i}{SC} lds")

    Lb, Lg = A.newlabel("L_cb"), A.newlabel("L_cg")
    A("s_waitcnt vmcnt(0)")
    A("s_cmp_ge_u32 s99, 24")
    A(f"s_cbranch_scc1 {Lb}")
    tag_check(A, 22)
    A(f"buffer_load_dwordx2 v[22:23], v12, s[{SWS}:{SWS+3}], s52 offen{SC}")
    A("s_barrier")
    A("s_waitcnt vmcnt(0)")
    A(f"v_cmp_eq_u64 vcc, s[{TAG}:{TAG+1}], v[22:23]")
    A("s_cmp_eq_u64 vcc, -1")
    Lx = A.newlabel("L_cx")
    A(f"s_cbranch_scc1 {Lx}")
    poll(A, 22, 12, "s52", sleep=8)
    A.label(Lx)
    stamp(A, 8)
    xload()
    A.label(Lb)
    A("s_waitcnt lgkmcnt(0)")
    A("s_lshl_b32 s54, s54, 16")
    A("s_lshl_b32 s53, s55, 16")
    A("s_and_b32 s55, s55, 0xffff0000")
    A("s_bitcmp1_b32 s49, 0")
    A("s_cselect_b32 s53, s55, s53")
    A("v_mov_b32 v15, s54")
    A("v_add_f32 v15, s53, v15")
    A("v_cvt_pk_bf16_f32 v15, v15, v15")
    T = Lgkm(A)
    for m in range(NR):
        for x, tg in rdA(m, RA + 4 * m, ("A", m)):
            T.issue(x, tg)
    T.wait(("A", 0))
    for k in range(4):
        A(f"v_bfi_b32 v{RA+k}, v{MK+k}, v15, v{RA+k}")
    T.all()
    A("s_cmp_ge_u32 s99, 24")
    A(f"s_cbranch_scc0 {Lg}")
    A("s_barrier")
    stamp(A, 8)
    xload()
    A.label(Lg)
    A(f"s_add_u32 s51, s50, {WS_YT:#x}")
    A(f"v_mov_b32 v{PUL[1]}, 0")

    sched = []
    for i in range(8):
        ms = list(range(4 * i + 4))
        res = [m for m in ms if m < NR and 4 * i + 3 - m < NR]
        stm = [m for m in ms if m not in res]
        sched += [(i, m) for m in res + stm]
    streams = []
    for k, (i, m) in enumerate(sched):
        b = 4 * i + 3 - m
        if m >= NR:
            streams.append((k, "A", m))
        elif b >= NR:
            streams.append((k, "B", b))
    slot_of = {k: n % 8 for n, (k, _, _) in enumerate(streams)}

    def epilogue(i):
        V = ACCS[i & 1]
        own = [f"v_add_f32_dpp v{V+4*j}, v{V+4*j+k}, v{V+4*j} row_shr:{4*k} row_mask:0xf bank_mask:0xf"
               for k in (1, 2, 3) for j in range(4)]
        car = [f"v_add_f32_dpp v{CAR}, v{V+12+k}, v{CAR} row_shl:{16-4*k} row_mask:0xf bank_mask:0xf" for k in (1, 2, 3)]
        L = [f"v_mov_b32 v{CAR}, 0"] + own[0:2] + car[0:1] + own[2:4] + car[1:2] + own[4:6] + car[2:3]
        L.append(("ds", f"ds_bpermute_b32 v{PUL[i&1]}, v14, v{CAR}", ("P", i)))
        L += own[6:]
        for k in (1, 2, 3):
            for j in (0, 1, 2):
                L.append(f"v_add_f32_dpp v{V+4*j+4}, v{V+4*j+k}, v{V+4*j+4} row_shl:{16-4*k} row_mask:0xf bank_mask:0xf")
        o = OUT[(i >> 1) & 1] + 2 * (i & 1)
        L.append(f"v_cvt_pk_bf16_f32 v{o+1}, v{V+8}, v{V+12}")
        L.append(("wait", ("P", i)))
        L.append(f"v_cndmask_b32 v{TMP}, v{PUL[i&1]}, v{PUL[1-(i&1)]}, s[58:59]")
        L.append(f"v_add_f32 v{V}, v{V}, v{TMP}")
        L.append(f"v_cvt_pk_bf16_f32 v{o}, v{V}, v{V+4}")
        if i & 1:
            L.append(f"buffer_store_dwordx4 {vr(OUT[(i>>1)&1],4)}, v2, s[{SWS}:{SWS+3}], s51 offen offset:{1024*(i>>1)}{SC}")
        return L

    def emit(x):
        if isinstance(x, tuple):
            if x[0] == "ds":
                T.issue(x[1], x[2])
            else:
                T.wait(x[1])
        else:
            A(x)

    A("s_waitcnt vmcnt(0)")
    stampw(A, 9)
    for b in range(8):
        for x, tg in rdB(b, RB + 4 * b, ("B", b)):
            T.issue(x, tg)
    nres = 8
    nst = 0
    fill = []
    first = {}
    for k, (i, m) in enumerate(sched):
        first.setdefault(i, k)
    for k, (i, m) in enumerate(sched):
        V = ACCS[i & 1]
        b = 4 * i + 3 - m
        if k == first[i]:
            while fill:
                emit(fill.pop(0))
            if i > 0:
                fill = epilogue(i - 1)
        if k in slot_of:
            T.wait(("S", k))
        if b < NR:
            T.wait(("B", b))
        ra = RA + 4 * m if m < NR else RS + 4 * slot_of[k]
        rb = RB + 4 * b if b < NR else RS + 4 * slot_of[k]
        c = vr(V, 16) if k != first[i] else "0"
        A(f"v_mfma_f32_32x32x16_bf16 {vr(V,16)}, {vr(ra,4)}, {vr(rb,4)}, {c}")
        budget = 5
        if nres < NR:
            for x, tg in rdB(nres, RB + 4 * nres, ("B", nres)):
                T.issue(x, tg)
            nres += 1
            budget -= 1
        elif nst < len(streams) and (nst < 8 or streams[nst - 8][0] < k) and streams[nst][0] - k <= 10:
            kk, kind, fr = streams[nst]
            for x, tg in (rdA if kind == "A" else rdB)(fr, RS + 4 * slot_of[kk], ("S", kk)):
                T.issue(x, tg)
                budget -= 1
            nst += 1
        if k > first[i]:
            for _ in range(budget):
                if fill:
                    emit(fill.pop(0))
    while fill:
        emit(fill.pop(0))
    stampw(A, 10)
    T.done = T.n if Ctx.stamps else T.done
    for x in epilogue(7):
        emit(x)
    A("s_waitcnt vmcnt(0)")
    stamp(A, 11)
    A("s_cmp_ge_u32 s99, 24")
    A("s_cbranch_scc1 L_bdone")
    A(f"v_mov_b32 v10, {L_SYNC+12}")
    A("v_mov_b32 v11, 1")
    A("s_mov_b64 exec, 1")
    A("ds_add_rtn_u32 v12, v10, v11")
    A("s_mov_b64 exec, -1")
    A("s_lshl_b32 s52, s98, 4")
    A("s_add_u32 s52, s52, s99")
    A("s_lshl_b32 s52, s52, 7")
    A(f"s_add_u32 s52, s52, {F4+8*128:#x}")
    A("s_waitcnt lgkmcnt(0)")
    A("v_readfirstlane_b32 s53, v12")
    A("s_cmp_eq_u32 s53, 3")
    A("s_cbranch_scc0 L_bend")
    set_flag(A, 10, "s52")
    A("s_branch L_bend")
    A.label("L_bdone")


def role_post(A):
    SQ, SO = 32, 36
    A.label("L_post")
    A("s_lshl_b32 s48, s48, 2")
    A("s_lshr_b32 s48, 0x43002100, s48")
    A("s_and_b32 s48, s48, 7")
    A("s_mul_i32 s49, s98, 40")
    A("s_sub_u32 s50, s99, 24")
    A("s_mul_i32 s50, s50, 5")
    A("s_add_u32 s49, s49, s50")
    A("s_add_u32 s49, s49, s48")
    A("s_and_b32 s50, s49, 31")
    A("s_lshr_b32 s51, s49, 5")
    A("v_lshrrev_b32 v2, 3, v1")
    A("v_and_b32 v3, 7, v1")
    A("v_lshlrev_b32 v4, 12, v2")
    A("v_lshl_add_u32 v4, v3, 4, v4")
    A("s_lshl_b32 s52, s51, 18")
    A("s_lshl_b32 s53, s50, 7")
    A("s_add_u32 s52, s52, s53")
    A(f"s_add_u32 s52, s52, {WS_YT:#x}")
    A("s_mul_i32 s56, s48, 8320")
    A(f"s_add_u32 s56, s56, {B_PRE}")
    A("s_lshr_b32 s54, s50, 3")
    A("s_lshl_b32 s54, s54, 9")
    A("s_bfe_u32 s55, s50, 0x10002")
    A("s_lshl_b32 s55, s55, 4")
    A("s_add_u32 s54, s54, s55")
    A("s_bfe_u32 s55, s50, 0x10001")
    A("s_lshl_b32 s55, s55, 7")
    A("s_add_u32 s54, s54, s55")
    A("s_and_b32 s55, s50, 1")
    A("s_lshl_b32 s55, s55, 1")
    A("s_add_u32 s54, s54, s55")
    A("v_and_b32 v5, 3, v2")
    A("v_lshrrev_b32 v6, 2, v2")
    A("v_lshl_add_u32 v5, v5, 5, v6")
    A("v_mul_u32_u24 v6, 1280, v5")
    A("v_lshlrev_b32 v7, 1, v6")
    A("v_lshl_add_u32 v6, v3, 4, v6")
    A("v_lshl_add_u32 v7, v3, 4, v7")
    A("s_mul_i32 s54, s54, 1280")
    A("s_lshl_b32 s53, s51, 7")
    A("s_lshl_b32 s55, s54, 1")
    A("s_add_u32 s54, s54, s53")
    A("s_add_u32 s55, s55, s53")
    A("s_add_u32 s55, s55, 1280")
    srd(A, SQ, S_BQ, NB_X)
    srd(A, SO, S_OUT, NB_OUT)
    QR, YR = 16, 48
    rows = [0, 4, 8, 12, 256, 260, 264, 268]
    if Opt.wopf == "b":
        Ln = A.newlabel("L_npf")
        A("s_cmp_ge_u32 s48, 3")
        A(f"s_cbranch_scc0 {Ln}")
        srd(A, 40, S_WO, NB_WO)
        A("s_sub_u32 s57, s99, 24")
        A("s_lshl_b32 s57, s57, 1")
        A("s_add_u32 s57, s57, s48")
        A("s_sub_u32 s57, s57, 3")
        A("s_lshl_b32 s57, s57, 13")
        A("v_lshlrev_b32 v8, 7, v1")
        for i in range(7):
            A(f"buffer_load_dword v{200+i}, v8, s[40:43], s57 offen")
            A(f"s_add_u32 s57, s57, {16*8192}")
        A.label(Ln)
    for i in range(8):
        A(f"s_add_u32 s57, s54, {rows[i]*1280}")
        A(f"buffer_load_dwordx4 {vr(QR+4*i,4)}, v6, s[{SQ}:{SQ+3}], s57 offen{Opt.nt_s}")
    A("s_mov_b32 s59, 0xffff0000")
    QF = 128
    A("s_waitcnt vmcnt(0)")
    for i in range(32):
        A(f"v_lshlrev_b32 v{QF+2*i}, 16, v{QR+i}")
        A(f"v_and_b32 v{QF+2*i+1}, s59, v{QR+i}")
    A("s_lshl_b32 s57, s98, 4")
    A("s_sub_u32 s58, s57, 16")
    A("v_min_u32 v12, 47, v1")
    A("v_add_u32 v12, s58, v12")
    A("v_max_i32 v12, 0, v12")
    A("v_min_u32 v12, 127, v12")
    A("v_lshlrev_b32 v12, 7, v12")
    A("s_add_u32 s57, s57, s99")
    A("s_lshl_b32 s57, s57, 7")
    A(f"s_add_u32 s57, s57, {F4-24*128:#x}")
    A(f"s_mov_b32 s58, {F4:#x}")
    Lx = A.newlabel("L_p7")
    A("s_barrier")
    A("s_cmp_eq_u32 s48, 4")
    A(f"s_cbranch_scc0 {Lx}")
    set_flag(A, 8, "s57")
    poll(A, 14, 12, "s58", sleep=4)
    A.label(Lx)
    A("s_barrier")
    if Opt.dB:
        A(f"s_sleep {Opt.dB}")
    stamp(A, 12)
    for i in range(8):
        A(f"v_xor_b32 v8, {16*i}, v4")
        A(f"s_add_u32 m0, s56, {1024*i}")
        A(f"buffer_load_dwordx4 v8, s[{SWS}:{SWS+3}], s52 offen{SC} lds")
        if i < 7:
            A(f"s_add_u32 s52, s52, {8*4096}")
    A("v_xor_b32 v8, v2, v3")
    A("v_lshlrev_b32 v8, 4, v8")
    A("v_lshl_add_u32 v8, v3, 10, v8")
    A("v_add_u32 v8, s56, v8")
    A("s_waitcnt vmcnt(0)")
    for c in range(8):
        A(f"ds_read_b128 {vr(YR+4*c,4)}, v8 offset:{128*c}")
    A("s_waitcnt lgkmcnt(0)")
    stamp(A, 13)
    YF, OUT = 80, 96
    for i in range(8):
        for c in range(8):
            if i & 1:
                A(f"v_and_b32 v{YF+c}, s59, v{YR+4*c+i//2}")
            else:
                A(f"v_lshlrev_b32 v{YF+c}, 16, v{YR+4*c+i//2}")
        for c in range(0, 8, 2):
            A(f"v_pk_mul_f32 {vr(YF+c,2)}, {vr(YF+c,2)}, {vr(QF+8*i+c,2)}")
        for k in range(4):
            A(f"v_cvt_pk_bf16_f32 v{OUT+4*i+k}, v{YF+2*k}, v{YF+2*k+1}")
        A(f"s_add_u32 s57, s55, {rows[i]*2560}")
        A(f"buffer_store_dwordx4 {vr(OUT+4*i,4)}, v7, s[{SO}:{SO+3}], s57 offen{Opt.osc}")
    stamp(A, 14)


def build():
    A = Asm()
    k = NAME + "_kernel"
    A.raw(f".globl {k}")
    A.raw(".p2align 8")
    A.raw(f".type {k},@function")
    A.label(k)
    if Opt.hold:
        A("s_memrealtime s[64:65]")
    load_kernargs(A)
    stamp_init(A)
    A("v_lshrrev_b32 v2, 6, v0")
    A("v_and_b32 v1, 63, v0")
    A("v_readfirstlane_b32 s100, v2")
    A("s_and_b32 s98, s2, 7")
    A("s_lshr_b32 s99, s2, 3")
    A("s_cmp_ge_u32 s2, 192")
    A("s_cbranch_scc1 L_b")
    A("s_and_b32 s49, s2, 3")
    A("s_lshl_b32 s49, s49, 2")
    A("s_and_b32 s50, s99, 3")
    A("s_add_u32 s49, s49, s50")
    A("s_bfe_u32 s52, s2, 0x10002")
    A("s_lshr_b32 s53, s2, 5")
    A("s_lshl_b32 s54, s52, 1")
    A("s_add_u32 s54, s54, s53")
    A("s_lshl_b32 s55, s52, 2")
    A("s_add_u32 s55, s55, s53")
    A("s_sub_u32 s55, s55, 2")
    A("s_cmp_lt_u32 s2, 64")
    A("s_cselect_b32 s50, s54, s55")
    A("s_cselect_b32 s51, 1, 0")
    A("s_and_b32 s48, s100, 3")
    A("s_cmp_ge_u32 s100, 4")
    A("s_cbranch_scc1 L_c")
    role_loader(A)
    A.label("L_c")
    role_compute(A)
    A.label("L_b")
    A("s_cmp_ge_u32 s2, 256")
    A("s_cbranch_scc1 L_exit")
    A("s_mov_b32 s48, s100")
    A("s_cmp_ge_u32 s48, 5")
    A("s_cbranch_scc1 L_help")
    role_pre(A)
    A("s_branch L_bconv")
    A.label("L_help")
    role_helper(A)
    A.label("L_bconv")
    role_conv(A)
    A("s_bitcmp1_b32 0x32, s48")
    A("s_cbranch_scc1 L_bend")
    role_post(A)
    A.label("L_bend")
    end_wave(A)
    A.label("L_exit")
    A("s_endpgm")
    A.label("L_code_end")
    head = ["; generated by gen/f3.py",
            "; @launch grid=(256,1,1) block=(512,1,1) lds=163840"]
    txt = "\n".join(head) + '\n.amdgcn_target "amdgcn-amd-amdhsa--gfx950"\n.text\n' + A.text()
    txt += f'''.section .rodata,"a"
.p2align 6
.amdhsa_kernel {k}
  .amdhsa_next_free_vgpr 256
  .amdhsa_next_free_sgpr 102
  .amdhsa_accum_offset 256
  .amdhsa_group_segment_fixed_size 0
  .amdhsa_kernarg_size 104
  .amdhsa_user_sgpr_count 2
  .amdhsa_user_sgpr_kernarg_segment_ptr 1
  .amdhsa_system_sgpr_workgroup_id_x 1
.end_amdhsa_kernel
'''
    return txt


if __name__ == "__main__":
    args = sys.argv[2:]
    Ctx.stamps = "stamps" in args
    Opt.rot = "norot" not in args
    Opt.codepf = "nocodepf" not in args
    for a in args:
        if a.startswith("probe="):
            Opt.probe = tuple(int(x) for x in a[6:].split(","))
        if a.startswith("holdwg="):
            Opt.holdwg = int(a[7:])
        if a.startswith("hold="):
            Opt.hold = int(a[5:])
        if a.startswith("dA="):
            Opt.dA = int(a[3:])
        if a.startswith("dB="):
            Opt.dB = int(a[3:])
        if a == "nowomall":
            Opt.womall = False
        if a == "noppoll":
            Opt.ppoll = False
        if a.startswith("psleep="):
            Opt.psleep = int(a[7:])
        if a.startswith("wopf="):
            Opt.wopf = a[5:]
    for a in args:
        if a.startswith("LA="):
            Opt.LA = int(a[3:])
    open(sys.argv[1], "w").write(build())
```

```python
import sys
from asm import Asm, vr, ar, sr
from roles import (WS_PHIQ, WS_PART, WS_O, WS_KVT, WS_YT, WS_STAMP, WS_SIZE, S_X, S_W, S_WPHI, S_WO, S_BQ, S_BK, S_BV,
                   S_SH, S_SSK, S_SSD, S_OUT, S_DBG, S_WS, NB_X, NB_W, NB_WPHI, NB_WO, NB_SH, NB_SSK, NB_OUT, LOG2E,
                   Ctx, load_kernargs, srd, stamp, stamp_init, softmax20)

NAME = "concat_heads__linear_kernel_hedgehog__ssm_conv_h3__prompt"
WS_PQ = WS_PHIQ
WS_FLAG = 0xF00000
F1, F2, F3, F0, F4 = (WS_FLAG + 128 * o for o in (0, 512, 1024, 1536, 1856))
WS_EPOCH = WS_FLAG + 128 * 2560 + 64
SWS = 44
SC = " sc1"
TAG = 30
SLOT = 36864
L_WP = 147456
L_Z = L_WP + 8192
L_SYNC = L_Z + 4096
L_V = 128 * 336
L_WOB = 65536
L_OT = 65536
CV_LDS = 8768
L_QCV = 3 * SLOT
B_PRE = 6 * CV_LDS


class Opt:
    rot = True
    LA = 2
    nt_s = " nt"
    codepf = True
    wopf = "no"
    osc = " nt"
    oscb = " nt"
    ppoll = False
    womall = True
    probe = None
    dA = 0
    hold = 0
    holdwg = -1
    dB = 0
    psleep = 2


def end_wave(A):
    if Ctx.stamps:
        stamp(A, 15, True)
        A("s_waitcnt lgkmcnt(0)")
        A("s_mov_b64 exec, -1")
        A("v_mov_b32 v2, 0")
        for k in range(16):
            A(f"v_writelane_b32 v2, s{64+2*k}, {k}")
        A("s_lshl_b32 s62, s2, 3")
        A("s_add_u32 s62, s62, s100")
        A("s_lshl_b32 s62, s62, 6")
        A(f"s_add_u32 s62, s62, {WS_STAMP:#x}")
        A("v_lshlrev_b32 v1, 2, v1")
        A("s_mov_b64 exec, 0xffff")
        A(f"buffer_store_dword v2, v1, s[{SWS}:{SWS+3}], s62 offen")
        if Opt.probe:
            Lp = A.newlabel("L_probe")
            A(f"s_cmp_eq_u32 s2, {Opt.probe[0]}")
            A(f"s_cbranch_scc0 {Lp}")
            A(f"s_cmp_eq_u32 s100, {Opt.probe[1]}")
            A(f"s_cbranch_scc0 {Lp}")
            A("v_subrev_u32 v3, s66, v2")
            A("s_sub_u32 s62, s94, s64")
            A("v_writelane_b32 v3, s62, 15")
            A("v_cmp_ne_u32 vcc, 0, v2")
            A("v_cndmask_b32 v3, 0, v3, vcc")
            A("s_mov_b64 exec, 0xfffc")
            A(f"global_store_dword v1, v3, s[{S_DBG}:{S_DBG+1}]")
            A.label(Lp)
    A("s_endpgm")


def stampw(A, k):
    stamp(A, k)
    if Ctx.stamps:
        A("s_waitcnt lgkmcnt(0)")


def poll(A, vt, voff, soff, sleep=1):
    L, Ld = A.newlabel("L_poll"), A.newlabel("L_polld")
    A("s_movk_i32 s101, 0x4000")
    A.label(L)
    A(f"buffer_load_dwordx2 {vr(vt,2)}, v{voff}, s[{SWS}:{SWS+3}], {soff} offen{SC}")
    A("s_waitcnt vmcnt(0)")
    A(f"v_cmp_eq_u64 vcc, s[{TAG}:{TAG+1}], {vr(vt,2)}")
    A("s_cmp_eq_u64 vcc, -1")
    A(f"s_cbranch_scc1 {Ld}")
    A(f"s_sleep {sleep}")
    A("s_sub_u32 s101, s101, 1")
    A("s_cmp_eq_u32 s101, 0")
    A(f"s_cbranch_scc0 {L}")
    A("s_endpgm")
    A.label(Ld)


def ppoll(A, vt, voff, soff, sleep=1, depth=4):
    if not Opt.ppoll:
        return poll(A, vt, voff, soff, sleep=sleep)
    L, Ld = A.newlabel("L_pp"), A.newlabel("L_ppd")
    ld = lambda k: f"buffer_load_dwordx2 {vr(vt+2*k,2)}, v{voff}, s[{SWS}:{SWS+3}], {soff} offen{SC}"
    A("s_movk_i32 s101, 0x4000")
    for k in range(depth - 1):
        A(ld(k))
        A(f"s_sleep {sleep}")
    A.label(L)
    for k in range(depth):
        A(ld((k + depth - 1) % depth))
        A(f"s_waitcnt vmcnt({depth-1})")
        A(f"v_cmp_eq_u64 vcc, s[{TAG}:{TAG+1}], {vr(vt+2*k,2)}")
        A("s_cmp_eq_u64 vcc, -1")
        A(f"s_cbranch_scc1 {Ld}")
        A(f"s_sleep {sleep}")
    A("s_sub_u32 s101, s101, 1")
    A("s_cmp_eq_u32 s101, 0")
    A(f"s_cbranch_scc0 {L}")
    A("s_endpgm")
    A.label(Ld)


def set_flag(A, vt, soff):
    A(f"v_mov_b32 v{vt}, s{TAG}")
    A(f"v_mov_b32 v{vt+1}, s{TAG+1}")
    A(f"v_lshlrev_b32 v{vt+2}, 3, v1")
    A("s_waitcnt vmcnt(0)")
    A("s_mov_b64 exec, 0xffff")
    A(f"buffer_store_dwordx2 {vr(vt,2)}, v{vt+2}, s[{SWS}:{SWS+3}], {soff} offen{SC}")
    A("s_mov_b64 exec, -1")


def tag_issue(A):
    A(f"s_load_dwordx2 s[{TAG}:{TAG+1}], s[{S_DBG}:{S_DBG+1}], 0")


def tag_check(A, vt):
    L, Ld = A.newlabel("L_hs"), A.newlabel("L_hsd")
    A("s_waitcnt lgkmcnt(0)")
    A(f"s_cmp_lg_u32 s{TAG}, s{TAG+1}")
    A(f"s_cbranch_scc1 {Ld}")
    A("s_movk_i32 s101, 0x4000")
    A(f"v_mov_b32 v{vt+2}, 0")
    A.label(L)
    A(f"global_load_dwordx2 {vr(vt,2)}, v{vt+2}, s[{S_DBG}:{S_DBG+1}]{SC}")
    A("s_waitcnt vmcnt(0)")
    A(f"v_readfirstlane_b32 s{TAG}, v{vt}")
    A(f"v_readfirstlane_b32 s{TAG+1}, v{vt+1}")
    A("s_nop 3")
    A(f"s_cmp_lg_u32 s{TAG}, s{TAG+1}")
    A(f"s_cbranch_scc1 {Ld}")
    A("s_sleep 8")
    A("s_sub_u32 s101, s101, 1")
    A("s_cmp_eq_u32 s101, 0")
    A(f"s_cbranch_scc0 {L}")
    A("s_endpgm")
    A.label(Ld)


def lds_arrive(A, vt, addr):
    A(f"v_mov_b32 v{vt}, {addr}")
    A(f"v_mov_b32 v{vt+1}, 1")
    A("s_waitcnt lgkmcnt(0)")
    A("s_mov_b64 exec, 1")
    A(f"ds_add_u32 v{vt}, v{vt+1}")
    A("s_mov_b64 exec, -1")


def lds_wait(A, vt, addr, n, sleep=0):
    L, Ld = A.newlabel("L_lw"), A.newlabel("L_lwd")
    if addr is not None:
        A(f"v_mov_b32 v{vt}, {addr}")
    A("s_mov_b32 s101, 0x40000")
    A.label(L)
    A(f"ds_read_b32 v{vt+1}, v{vt}")
    A("s_waitcnt lgkmcnt(0)")
    A(f"v_cmp_le_u32 vcc, {n}, v{vt+1}")
    A(f"s_cbranch_vccnz {Ld}")
    if sleep:
        A(f"s_sleep {sleep}")
    A("s_sub_u32 s101, s101, 1")
    A("s_cmp_eq_u32 s101, 0")
    A(f"s_cbranch_scc0 {L}")
    A("s_endpgm")
    A.label(Ld)


class Lgkm:
    def __init__(self, A):
        self.A, self.n, self.done, self.tag = A, 0, 0, {}

    def issue(self, text, tag=None):
        self.A(text)
        self.n += 1
        if tag is not None:
            self.tag[tag] = self.n

    def wait(self, *tags):
        need = max(self.tag[t] for t in tags)
        if need > self.done:
            self.A(f"s_waitcnt lgkmcnt({min(15, self.n - need)})")
            self.done = max(need, self.n - 15)

    def all(self):
        if self.done < self.n:
            self.A("s_waitcnt lgkmcnt(0)")
            self.done = self.n


def o_index(A):
    A("s_sub_u32 s63, s99, 8")
    A("s_lshr_b32 s62, s63, 2")
    A("s_lshl_b32 s3, s98, 2")
    A("s_add_u32 s62, s62, s3")
    A("s_and_b32 s63, s63, 3")
    A("s_lshl_b32 s63, s63, 2")
    A("s_add_u32 s63, s63, s48")


def role_loader(A):
    SX, SW, SP = 32, 36, 40
    VX, VW = 24, 28
    t0, t1, t2, t3 = 11, 12, 13, 14
    A("s_setprio 1")
    A(f"v_lshrrev_b32 v{t0}, 3, v1")
    A(f"v_mul_u32_u24 v{t0}, 1280, v{t0}")
    A(f"v_lshrrev_b32 v{t1}, 4, v1")
    A(f"v_and_b32 v{t2}, 7, v1")
    A(f"v_xor_b32 v{t1}, v{t1}, v{t2}")
    A(f"v_xor_b32 v{t2}, 4, v{t1}")
    A(f"v_lshl_add_u32 v{VX}, v{t1}, 4, v{t0}")
    A(f"v_lshl_add_u32 v{VX+1}, v{t2}, 4, v{t0}")
    A(f"v_add_u32 v{VX+2}, {2*(8*1280-1024)}, v{VX}")
    A(f"v_add_u32 v{VX+3}, {3*(8*1280-1024)}, v{VX+1}")
    A(f"v_add_u32 v{VX+1}, {8*1280-1024}, v{VX+1}")
    A("s_lshl_b32 s60, s49, 2")
    A("s_add_u32 s60, s60, s48")
    A(f"s_mul_i32 s60, s60, {32*1280}")
    if Opt.rot:
        A("s_lshl_b32 s30, s49, 2")
        A("s_bfe_u32 s30, s30, 0x40000")
        A("s_lshr_b32 s30, 0x8530, s30")
        A("s_and_b32 s30, s30, 15")
        A("s_and_b32 s31, s99, 28")
        A("s_lshr_b32 s31, 0x875320, s31")
        A("s_and_b32 s31, s31, 15")
        A("s_add_u32 s30, s30, s31")
        A("s_sub_u32 s31, s30, 10")
        A("s_cmp_ge_u32 s30, 10")
        A("s_cselect_b32 s30, s31, s30")
        A("s_lshl_b32 s31, s30, 7")
        A("s_add_u32 s60, s60, s31")
    A("s_lshl_b32 s62, s48, 12")
    A("s_mov_b32 m0, s62")
    A(f"s_mov_b32 s{SX+2}, {NB_X:#x}")
    A(f"s_mov_b32 s{SX+3}, 0x20000")
    A("s_waitcnt lgkmcnt(0)")
    A(f"s_mov_b64 s[{SX}:{SX+1}], s[{S_X}:{S_X+1}]")

    def dma_x(s):
        if s:
            A(f"s_add_u32 m0, s62, {(s % 3) * SLOT}")
        for i in range(4):
            A(f"buffer_load_dwordx4 v{VX+i}, s[{SX}:{SX+3}], s60 offen offset:{1024*i} lds")

    def dma_w(s):
        sl = (s % 3) * SLOT
        A(f"s_add_u32 m0, s63, {sl}")
        for i in range(4):
            A(f"buffer_load_dwordx4 v{VW+i}, s[{SW}:{SW+3}], s61 offen offset:{1024*i} lds")
        A(f"s_add_u32 m0, s63, {sl+4096}")
        A(f"buffer_load_dwordx4 v{VW+4}, s[{SW}:{SW+3}], s61 offen lds")
        if s < 9:
            if Opt.rot:
                A("s_add_u32 s30, s30, 1")
                A("s_cmp_eq_u32 s30, 10")
                A(f"s_cselect_b32 s31, {(-1152)&0xffffffff:#x}, s97")
                A(f"s_cselect_b32 s3, {(-9*64*3840)&0xffffffff:#x}, s96")
                A("s_add_u32 s60, s60, s31")
                A("s_add_u32 s61, s61, s3")
            else:
                A("s_add_u32 s60, s60, 128")
                A(f"s_add_u32 s61, s61, {64*3840}")

    dma_x(0)
    A("s_cmp_eq_u32 s51, 0")
    A("s_cselect_b32 s56, 1120, 0")
    A(f"v_lshlrev_b32 v{t3}, 4, v1")
    A(f"v_mul_u32_u24 v{t2}, 6554, v1")
    A("s_movk_i32 s57, 3520")
    for i in range(5):
        if i:
            A(f"v_add_u32 v{t2}, {64*6554}, v{t2}")
        A(f"v_lshrrev_b32 v{t0}, 17, v{t2}")
        A(f"v_bfe_u32 v{t1}, v{t2}, 16, 1")
        A(f"v_mad_u32_u24 v{t0}, v{t0}, s57, v{t3}")
        A(f"v_mad_u32_u24 v{VW+i}, v{t1}, s56, v{t0}")
    A(f"v_add_u32 v{VW+4}, 4096, v{VW+4}")
    A(f"s_mul_i32 s61, s48, {16*3840}")
    A("s_mul_i32 s57, s50, 160")
    A("s_add_u32 s58, s57, 1280")
    A("s_lshl_b32 s57, s57, 1")
    A("s_cmp_eq_u32 s51, 0")
    A("s_cselect_b32 s57, s58, s57")
    A("s_add_u32 s61, s61, s57")
    if Opt.rot:
        A(f"s_mov_b32 s96, {64*3840}")
        A("s_movk_i32 s97, 128")
        A("s_mul_i32 s31, s30, s96")
        A("s_add_u32 s61, s61, s31")
    A("s_mul_i32 s63, s48, 5120")
    A("s_add_u32 s63, s63, 16384")
    srd(A, SW, S_W, NB_W)
    dma_w(0)
    stamp(A, 2)
    A("s_mul_i32 s57, s50, 3200")
    A("s_lshl_b32 s57, s57, s51")
    A("s_lshl_b32 s58, s48, 11")
    A("s_add_u32 s57, s57, s58")
    srd(A, SP, S_WPHI, NB_WPHI)
    A(f"s_add_u32 m0, s58, {L_WP}")
    A(f"buffer_load_dwordx4 v{t3}, s[{SP}:{SP+3}], s57 offen lds")
    A(f"buffer_load_dwordx4 v{t3}, s[{SP}:{SP+3}], s57 offen offset:1024 lds")
    srd(A, SWS, S_WS, WS_SIZE)
    Lh = A.newlabel("L_noh")
    A("s_cmp_eq_u32 s51, 0")
    A(f"s_cbranch_scc1 {Lh}")
    A("s_mul_i32 s49, s98, 80")
    A("s_lshl_b32 s50, s99, 2")
    A("s_add_u32 s49, s49, s50")
    A("s_add_u32 s49, s49, s48")
    A("s_add_u32 s49, s49, 48")
    A(f"s_mul_i32 s56, s48, {CV_LDS}")
    A(f"s_add_u32 s56, s56, {L_QCV}")
    conv_load_h(A, t3)
    A.label(Lh)
    assert Opt.LA == 2
    issued = 0
    for s in range(10):
        while issued < min(s + Opt.LA - 1, 9):
            issued += 1
            dma_x(issued)
            dma_w(issued)
        if s == 0:
            Ls = A.newlabel("L_nosetup")
            A("s_cmp_ge_u32 s99, 8")
            A(f"s_cbranch_scc1 {Ls}")
            conv_setup(A)
            f0_lines(A, 49, 49, 12)
            A.label(Ls)
        if s == 9:
            tag_issue(A)
        A(f"s_waitcnt vmcnt({9*(issued-s)})")
        A("s_barrier")
        if s in (0, 3, 6, 9):
            stamp(A, 3 + s // 3)
    A("s_setprio 0")
    A("s_cmp_lt_u32 s99, 8")
    A("s_cbranch_scc1 L_conv")
    role_wo(A)


def role_wo(A):
    SO, SWO = 32, 36
    WR = 64
    A.label("L_wo")
    srd(A, SWO, S_WO, NB_WO)
    if Opt.wopf == "kv":
        Ls = A.newlabel("L_nopf")
        A("s_cmp_lt_u32 s99, 8")
        A(f"s_cbranch_scc1 {Ls}")
        A("s_lshl_b32 s52, s99, 2")
        A("s_add_u32 s52, s52, s48")
        A("s_sub_u32 s52, s52, 32")
        A("s_lshl_b32 s52, s52, 13")
        A(f"s_add_u32 s53, s52, {64*8192}")
        A("v_lshlrev_b32 v2, 7, v1")
        A(f"buffer_load_dword v24, v2, s[{SWO}:{SWO+3}], s52 offen")
        A(f"buffer_load_dword v25, v2, s[{SWO}:{SWO+3}], s53 offen")
        A.label(Ls)
    A("v_lshrrev_b32 v2, 2, v1")
    A("v_and_b32 v3, 3, v1")
    A("v_mul_u32_u24 v4, 1280, v2")
    A("v_lshl_add_u32 v4, v3, 4, v4")
    for i in range(1, 4):
        A(f"v_add_u32 v{4+i}, {i*(16*1280-1024)}, v4")
    A(f"v_add_u32 v8, {4*16*1280}, v4")
    A("s_lshr_b32 s50, s99, 2")
    A("s_sub_u32 s50, s50, 1")
    A("s_max_i32 s50, s50, 0")
    A("s_lshl_b32 s52, s50, 8")
    A("s_lshl_b32 s53, s48, 6")
    A("s_add_u32 s52, s52, s53")
    A("s_mov_b32 s51, s52")
    A("s_mul_i32 s53, s48, 20480")
    A("s_cmp_lt_u32 s99, 8")
    A(f"s_cselect_b32 s54, 0, {L_WOB}")
    A("s_add_u32 s53, s53, s54")

    def cbuf(c):
        return 5120 + ((c + 1) % 3) * 5120

    def chunk(c):
        b = cbuf(c)
        A(f"s_add_u32 m0, s53, {b}")
        for i in range(4):
            A(f"buffer_load_dwordx4 v{4+i}, s[{SWO}:{SWO+3}], s51 offen offset:{1024*i} lds")
        A(f"s_add_u32 m0, s53, {b+4096}")
        A(f"buffer_load_dwordx4 v8, s[{SWO}:{SWO+3}], s51 offen lds")
        A(f"s_add_u32 s51, s51, {80*1280}")

    Lj = A.newlabel("L_woj")
    chunk(0)
    A("s_cmp_lt_u32 s99, 8")
    A(f"s_cbranch_scc1 {Lj}")
    A("s_barrier")
    A.label(Lj)
    chunk(1)
    chunk(2)
    A("v_bfe_u32 v10, v1, 2, 2")
    A("v_lshrrev_b32 v11, 5, v1")
    A("v_and_b32 v12, 1, v1")
    A("v_lshlrev_b32 v12, 5, v12")
    A("v_bfe_u32 v13, v1, 4, 1")
    A("v_lshl_add_u32 v12, v13, 4, v12")
    A("v_bfe_u32 v13, v1, 1, 1")
    A("v_lshl_add_u32 v12, v13, 3, v12")
    A("v_lshl_add_u32 v12, v10, 6, v12")
    A("v_add_u32 v12, s53, v12")
    A("v_lshl_add_u32 v13, v11, 8, v12")
    A("v_mul_u32_u24 v14, 2560, v11")
    A("v_add_u32 v14, v14, v12")
    A("v_and_b32 v9, 31, v1")
    A("v_lshrrev_b32 v15, 4, v1")
    A("v_lshlrev_b32 v15, 7, v15")
    A("v_lshlrev_b32 v18, 4, v1")
    o_index(A)
    tag_check(A, 20)

    def take(c):
        b = cbuf(c)
        for hh in range(4):
            for half in range(2):
                A(f"ds_read_b64_tr_b16 {vr(WR+4*(4*c+hh)+2*half,2)}, v13 offset:{b+(20*hh+8*half)*64}")
        for half in range(2):
            A(f"ds_read_b64_tr_b16 {vr(WR+128+4*c+2*half,2)}, v14 offset:{b+(20*half+16)*64}")

    Lq2 = A.newlabel("L_woq")
    for c in range(6):
        A("s_waitcnt vmcnt(10)")
        take(c)
        A("s_waitcnt lgkmcnt(0)")
        if c + 3 < 8:
            chunk(c + 3)
    stamp(A, 14)
    A("s_cmp_lt_u32 s99, 8")
    A(f"s_cbranch_scc1 {Lq2}")
    A("s_lshr_b32 s54, s62, 3")
    A("s_lshl_b32 s54, s54, 4")
    A("s_add_u32 s54, s54, s63")
    A("s_lshl_b32 s54, s54, 9")
    A(f"s_add_u32 s54, s54, {F2:#x}")
    A("s_lshl_b32 s55, s62, 4")
    A("s_add_u32 s55, s55, s63")
    A("s_mul_i32 s55, s55, 5120")
    poll(A, 16, 15, "s54", sleep=4)
    A("s_mov_b32 m0, s53")
    A("s_add_u32 s54, s55, 4096")
    for i in range(4):
        A(f"buffer_load_dwordx4 v18, s[{SWS}:{SWS+3}], s55 offen offset:{1024*i}{SC} lds")
    A("s_add_u32 m0, s53, 4096")
    A(f"buffer_load_dwordx4 v18, s[{SWS}:{SWS+3}], s54 offen{SC} lds")
    A("s_lshl_b32 s54, s48, 2")
    A(f"s_add_u32 s54, s54, {L_SYNC+16}")
    A("s_waitcnt vmcnt(0)")
    lds_arrive(A, 16, "s54")
    stamp(A, 7)
    A("s_lshl_b32 s54, s62, 2")
    A("s_add_u32 s54, s54, s48")
    A("s_mul_i32 s55, s54, 10240")
    A(f"s_add_u32 s55, s55, {WS_PART:#x}")
    A("s_lshl_b32 s54, s54, 9")
    A(f"s_add_u32 s54, s54, {F1:#x}")
    A("v_min_u32 v19, 20, v9")
    A("v_and_b32 v20, 32, v1")
    A("v_add_u32 v19, v19, v20")
    A("v_lshlrev_b32 v20, 3, v19")
    A("v_lshlrev_b32 v19, 4, v19")
    A("v_add_u32 v21, s53, v18")
    A("v_add_u32 v21, 5120, v21")
    A("s_mov_b32 s59, 0xffff0000")
    lds_wait(A, 16, L_SYNC + 4, 4, sleep=2)
    ppoll(A, 244, 15, "s54", sleep=Opt.psleep)
    stamp(A, 12)
    PR = [24, 34, 44, 54]
    SM, TP = 224, 244
    for p in range(4):
        A(f"buffer_load_dwordx4 {vr(PR[p],4)}, v19, s[{SWS}:{SWS+3}], s55 offen{SC}")
        A(f"buffer_load_dwordx4 {vr(PR[p]+4,4)}, v19, s[{SWS}:{SWS+3}], s55 offen offset:1024{SC}")
        A(f"buffer_load_dwordx2 {vr(PR[p]+8,2)}, v20, s[{SWS}:{SWS+3}], s55 offen offset:2048{SC}")
        if p < 3:
            A("s_add_u32 s55, s55, 2560")
    A("s_setprio 3")
    for p in range(4):
        A(f"s_waitcnt vmcnt({9-3*p})")
        for i in range(10):
            d = SM + 2 * i if p == 0 else TP + 2 * (i % 5)
            A(f"v_lshlrev_b32 v{d}, 16, v{PR[p]+i}")
            A(f"v_and_b32 v{d+1}, s59, v{PR[p]+i}")
            if p:
                A(f"v_pk_add_f32 {vr(SM+2*i,2)}, {vr(SM+2*i,2)}, {vr(d,2)}")
    for q in range(5):
        A(f"ds_write_b128 v21, {vr(SM+4*q,4)} offset:{1024*q}")
    lds_arrive(A, 16, L_SYNC + 8)
    A("s_setprio 0")
    stamp(A, 13)
    A.label(Lq2)
    A("s_waitcnt vmcnt(0)")
    take(6)
    take(7)
    srd(A, SO, S_OUT, NB_OUT)
    A("s_and_b32 s54, s99, 3")
    A("s_lshl_b32 s55, s98, 2")
    A("s_add_u32 s54, s54, s55")
    A("s_lshr_b32 s55, s54, 1")
    A("s_lshl_b32 s55, s55, 12")
    A(f"s_add_u32 s55, s55, {F3:#x}")
    A("s_lshl_b32 s57, s48, 10")
    A("s_add_u32 s55, s55, s57")
    A("v_lshrrev_b32 v15, 3, v1")
    A("v_lshlrev_b32 v15, 7, v15")
    A("s_mul_i32 s57, s54, 81920")
    A(f"s_add_u32 s57, s57, {WS_O:#x}")
    A("s_lshr_b32 s58, s48, 1")
    A("s_mul_i32 s58, s58, 40960")
    A("s_and_b32 s59, s48, 1")
    A("s_lshl_b32 s59, s59, 12")
    A("s_add_u32 s58, s58, s59")
    A("s_add_u32 s57, s57, s58")
    A(f"s_add_u32 s58, s58, {L_OT}")
    A("v_mov_b32 v5, v18")
    A(f"v_add_u32 v6, {L_OT}, v5")
    A(f"v_add_u32 v7, {L_OT+40960}, v5")
    A("v_lshlrev_b32 v10, 3, v9")
    A("v_lshl_add_u32 v10, v11, 9, v10")
    A(f"v_add_u32 v10, {L_OT+32768}, v10")
    A("s_mul_i32 s56, s48, 5120")
    A("s_waitcnt lgkmcnt(0)")
    A("v_mul_u32_u24 v12, 80, v9")
    A("v_lshl_add_u32 v12, v11, 5, v12")
    A("v_add_u32 v12, s56, v12")
    A("v_mul_u32_u24 v13, 80, v2")
    A("v_lshl_add_u32 v13, v3, 4, v13")
    A("v_add_u32 v13, s56, v13")
    A("v_mul_u32_u24 v14, 2560, v2")
    A("v_lshl_add_u32 v14, v3, 4, v14")
    A(f"s_mul_i32 s59, s54, {64*2560}")
    A("s_add_u32 s59, s59, s52")
    lds_wait(A, 16, L_SYNC + 12, 4, sleep=2)
    stamp(A, 8)
    ppoll(A, 48, 15, "s55", sleep=Opt.psleep)
    A("s_barrier")
    stamp(A, 9)
    for k in range(5):
        A(f"s_add_u32 m0, s58, {8192*k}")
        for i in range(4):
            A(f"buffer_load_dwordx4 v5, s[{SWS}:{SWS+3}], s57 offen offset:{1024*i}{SC} lds")
        if k < 4:
            A("s_add_u32 s57, s57, 8192")
    if Ctx.stamps:
        A("s_waitcnt lgkmcnt(0)")
    ACC = (16, 32)
    OFB = 224
    T = Lgkm(A)

    def rdx(f):
        if f % 8 == 0:
            A(f"s_waitcnt vmcnt({16 - 4*(f//8)})")
            A("s_barrier")
        for t in range(2):
            d = OFB + 4 * ((2 * f + t) % 8)
            if f < 32:
                T.issue(f"ds_read_b128 {vr(d,4)}, v{6+t} offset:{1024*f}", (f, t))
            else:
                a = f - 32
                T.issue(f"ds_read_b64 {vr(d,2)}, v10 offset:{40960*t + 1024*a}")
                T.issue(f"ds_read_b64 {vr(d+2,2)}, v10 offset:{40960*t + 1024*a + 256}", (f, t))

    for f in range(3):
        rdx(f)
    for f in range(40):
        for t in range(2):
            T.wait((f, t))
            c = vr(ACC[t], 16) if f else "0"
            A(f"v_mfma_f32_32x32x16_bf16 {vr(ACC[t],16)}, {vr(WR+4*f,4)}, {vr(OFB+4*((2*f+t)%8),4)}, {c}")
            if t == 0 and f + 3 < 40:
                rdx(f + 3)
    stamp(A, 10)
    for t in range(2):
        for i in range(8):
            A(f"v_cvt_pk_bf16_f32 v{48+8*t+i}, v{ACC[t]+2*i}, v{ACC[t]+2*i+1}")
        for i in range(2):
            A(f"ds_write_b128 v12, {vr(48+8*t+4*i,4)} offset:{2560*t+16*i}")
    A("s_waitcnt lgkmcnt(0)")
    for i in range(4):
        A(f"ds_read_b128 {vr(64+4*i,4)}, v13 offset:{1280*i}")
    for i in range(4):
        A(f"s_waitcnt lgkmcnt({3-i})")
        A(f"buffer_store_dwordx4 {vr(64+4*i,4)}, v14, s[{SO}:{SO+3}], s59 offen{Opt.osc}")
        if i < 3:
            A(f"s_add_u32 s59, s59, {16*2560}")
    stamp(A, 11)
    end_wave(A)


def role_compute(A):
    XA, WA, AD = 144, 152, 154
    ACC = 16
    WF = (96, 116)
    XF = (136, 140)
    t0, t1, t2, t3 = 11, 12, 13, 14
    for i in range(80):
        A(f"v_mov_b32 v{ACC+i}, 0")
    A(f"v_and_b32 v{t0}, 255, v0")
    A(f"v_lshlrev_b32 v{t0}, 4, v{t0}")
    A(f"v_add_u32 v{t0}, {L_Z}, v{t0}")
    A(f"ds_write_b128 v{t0}, {vr(ACC,4)}")
    A(f"ds_write_b128 v{t0}, {vr(ACC,4)} offset:64")
    A("s_lshl_b32 s54, s48, 12")
    A(f"v_and_b32 v{t0}, 31, v1")
    A(f"v_lshrrev_b32 v{t1}, 5, v1")
    A(f"v_bfe_u32 v{t2}, v1, 1, 3")
    A(f"v_xor_b32 v{t2}, v{t2}, v{t1}")
    A(f"v_lshlrev_b32 v{t2}, 4, v{t2}")
    A(f"v_lshl_add_u32 v{t2}, v{t0}, 7, v{t2}")
    A(f"v_add_u32 v{XA}, s54, v{t2}")
    for t in range(1, 4):
        A(f"v_xor_b32 v{XA+t}, {32*t}, v{XA}")
    for t in range(4):
        A(f"v_add_u32 v{XA+4+t}, {2*SLOT}, v{XA+t}")
    R8, JJ, HH = 158, 159, 160
    A(f"v_bfe_u32 v{t0}, v1, 2, 2")
    A(f"v_lshl_add_u32 v{R8}, v{t1}, 3, v{t0}")
    A(f"v_bfe_u32 v{t2}, v1, 4, 1")
    A(f"v_bfe_u32 v{t3}, v1, 1, 1")
    A(f"v_lshl_add_u32 v{JJ}, v{t2}, 1, v{t3}")
    A(f"v_and_b32 v{HH}, 1, v1")
    A(f"v_mul_u32_u24 v{t2}, 320, v{R8}")
    A(f"v_mul_u32_u24 v{t3}, 160, v{HH}")
    A(f"v_lshl_add_u32 v{t3}, v{JJ}, 3, v{t3}")
    A(f"v_add_u32 v{WA}, v{t2}, v{t3}")
    A(f"v_add_u32 v{WA}, 16384, v{WA}")
    A(f"v_add_u32 v{WA+1}, {2*SLOT}, v{WA}")
    A("s_movk_i32 s57, 1600")
    A("s_lshl_b32 s57, s57, s51")
    A(f"v_mul_u32_u24 v{t2}, s57, v{HH}")
    A(f"v_mul_u32_u24 v{t3}, 40, v{t0}")
    A(f"v_add_u32 v{t2}, v{t2}, v{t3}")
    A(f"v_lshl_add_u32 v{t2}, v{JJ}, 3, v{t2}")
    A(f"v_add_u32 v{t2}, {L_WP}, v{t2}")
    A(f"v_mov_b32 v{t3}, {L_Z}")
    A(f"v_cmp_eq_u32 vcc, v{HH}, v{t1}")
    A(f"v_cndmask_b32 v{AD}, v{t3}, v{t2}, vcc")
    A(f"v_add_u32 v{t0}, 24, v{t2}")
    A(f"v_cndmask_b32 v{AD+3}, v{t3}, v{t0}, vcc")
    A(f"v_cmp_eq_u32 s[58:59], 0, v{JJ}")
    A("s_and_b64 s[62:63], vcc, s[58:59]")
    A("s_andn2_b64 s[58:59], vcc, s[58:59]")
    A(f"v_add_u32 v{t0}, 32, v{t2}")
    A(f"v_cndmask_b32 v{AD+1}, v{t3}, v{t0}, s[62:63]")
    A(f"v_subrev_u32 v{t0}, 8, v{t2}")
    A(f"v_cndmask_b32 v{AD+2}, v{t3}, v{t0}, s[58:59]")
    A(f"v_and_b32 v{t0}, 31, v1")
    A("s_lshl_b32 s57, s48, 5")
    A(f"v_add_u32 v{t0}, s57, v{t0}")
    A(f"v_mul_u32_u24 v8, 176, v{t0}")
    A(f"v_add_u32 v8, {L_V}, v8")
    A(f"v_mul_u32_u24 v{t3}, 80, v{t1}")
    A(f"v_add_u32 v2, v8, v{t3}")
    A(f"v_mul_u32_u24 v{t2}, 336, v{t0}")
    A(f"v_lshl_add_u32 v3, v{t3}, 1, v{t2}")
    A(f"v_mul_u32_u24 v{t0}, 336, v{R8}")
    A(f"v_mul_u32_u24 v{t1}, 5, v{HH}")
    A(f"v_add_u32 v{t1}, v{t1}, v{JJ}")
    A(f"v_lshl_add_u32 v{t0}, v{t1}, 3, v{t0}")
    A("s_mul_i32 s57, s48, 80")
    A(f"v_add_u32 v6, s57, v{t0}")
    A(f"v_lshl_add_u32 v{t0}, v{JJ}, 1, v{HH}")
    A("s_mul_i32 s57, s48, 5")
    A(f"v_add_u32 v{t1}, s57, v{t0}")
    A(f"v_cmp_gt_u32 vcc, 5, v{t0}")
    A(f"v_cndmask_b32 v{t1}, 20, v{t1}, vcc")
    A(f"v_mul_u32_u24 v{t0}, 176, v{R8}")
    A(f"v_lshl_add_u32 v{t0}, v{t1}, 3, v{t0}")
    A(f"v_add_u32 v7, {L_V}, v{t0}")
    A("v_mov_b32 v4, 0x3f803f80")
    A("v_mov_b32 v5, 0x3f803f80")
    WPF = 164
    frags = [(0, 0), (0, 1), (0, 2), (1, 0), (1, 1), (1, 2), (1, 3), (1, 4), (2, 2), (2, 3), (2, 4)]
    for r in (WPF + 4 * 2 + 2, WPF + 4 * 2 + 3, WPF + 4 * 8, WPF + 4 * 8 + 1):
        A(f"v_mov_b32 v{r}, 0")
    A(f"s_mov_b32 s60, {LOG2E:#x}")
    A(f"s_mov_b32 s61, {LOG2E:#x}")
    A("s_waitcnt lgkmcnt(0)")
    srd(A, SWS, S_WS, WS_SIZE)
    A("s_setprio 2")

    def rd_x(s, t, b):
        sl = s % 3
        return f"ds_read_b128 {vr(XF[b],4)}, v{XA + 4*(sl>>1) + t} offset:{(sl&1)*SLOT}"

    def rd_w(s, t, T, half, b):
        sl = s % 3
        return f"ds_read_b64_tr_b16 {vr(WF[b]+4*T+2*half,2)}, v{WA+(sl>>1)} offset:{(sl&1)*SLOT + (16*t+4*half)*320 + 32*T}"

    def wphi_reads(pas):
        L = []
        for fi, (Tp, u) in enumerate(frags):
            for half in range(2):
                dq = 2 * u + half
                r = WPF + 4 * fi + 2 * half
                if (Tp == 0 and dq == 5) or (Tp == 2 and dq == 4):
                    continue
                ad = {(0, 0): AD, (1, 0): AD + 1, (1, 1): AD + 2, (2, 1): AD + 3}[(Tp, dq // 5)]
                L.append(f"ds_read_b64_tr_b16 {vr(r,2)}, v{ad} offset:{dq*160 + pas*1600}")
        return L

    A("s_barrier")
    stampw(A, 3)
    A(rd_x(0, 0, 0))
    for T in range(5):
        A(rd_w(0, 0, T, 0, 0)); A(rd_w(0, 0, T, 1, 0))
    for s in range(10):
        for t in range(4):
            b = t & 1
            last = (s == 9 and t == 3)
            ns, nt = (s, t + 1) if t < 3 else (s + 1, 0)
            prev_remaining = [8, 6, 4, 2, 0]
            issued = 0
            wp = wphi_reads(0) if last else []
            for T in range(5):
                if not (t == 3 and T >= 2):
                    A(f"s_waitcnt lgkmcnt({prev_remaining[T] + issued})")
                A(f"v_mfma_f32_32x32x16_bf16 {vr(ACC+16*T,16)}, {vr(WF[b]+4*T,4)}, {vr(XF[b],4)}, {vr(ACC+16*T,16)}")
                if t < 3:
                    if T == 0:
                        A(rd_x(ns, nt, 1 - b)); issued += 1
                    A(rd_w(ns, nt, T, 0, 1 - b)); A(rd_w(ns, nt, T, 1, 1 - b)); issued += 2
                elif T == 1:
                    A("s_waitcnt lgkmcnt(0)")
                    A("s_barrier")
                    if not last:
                        A(rd_x(ns, nt, 1 - b))
                        for TT in (0, 1):
                            A(rd_w(ns, nt, TT, 0, 1 - b)); A(rd_w(ns, nt, TT, 1, 1 - b))
                    else:
                        for x in wp[:5]:
                            A(x)
                elif T >= 2:
                    if not last:
                        A(rd_w(ns, nt, T, 0, 1 - b)); A(rd_w(ns, nt, T, 1, 1 - b))
                    else:
                        for x in wp[5 * (T - 1):5 * T]:
                            A(x)
    stamp(A, 4)
    tag_issue(A)
    P = 96
    E, F, TT_ = 208, 228, 248

    def phi_mfma(src, acc):
        seen = set()
        for fi, (Tp, u) in enumerate(frags):
            c = vr(acc + 16 * Tp, 16) if Tp in seen else "0"
            seen.add(Tp)
            A(f"v_mfma_f32_32x32x16_bf16 {vr(acc+16*Tp,16)}, {vr(WPF+4*fi,4)}, {vr(src+4*u,4)}, {c}")

    for i in range(40):
        A(f"v_cvt_pk_bf16_f32 v{P+i}, v{ACC+2*i}, v{ACC+2*i+1}")
    Lq = A.newlabel("L_q")
    A("s_cmp_eq_u32 s51, 0")
    A(f"s_cbranch_scc0 {Lq}")
    mq = A.mark()
    for i in range(20):
        A(f"v_permlane32_swap_b32 v{P+i}, v{P+20+i}")
    tag_check(A, 10)
    phi_mfma(P, ACC)
    for i in range(5):
        A(f"ds_write_b128 v2, {vr(P+20+4*i,4)} offset:{16*i}")
    A("ds_write_b64 v8, v[4:5] offset:160")
    for grp, ph in ((0, 64), (1, 96)):
        softmax20(A, ACC + 20 * grp, E, F, TT_, ph)
        for i in range(5):
            A(f"ds_write_b128 v3, {vr(ph+4*i,4)} offset:{80*grp+16*i}")
    stamp(A, 5)
    lds_arrive(A, 10, L_SYNC)
    A("s_lshl_b32 s57, s50, 2")
    A("s_add_u32 s57, s57, s48")
    A("s_lshl_b32 s57, s57, 4")
    A("s_add_u32 s57, s57, s49")
    A("s_lshl_b32 s59, s57, 7")
    A(f"s_add_u32 s59, s59, {F1:#x}")
    A("s_mul_i32 s57, s57, 2560")
    A(f"s_add_u32 s57, s57, {WS_PART:#x}")
    A("v_lshlrev_b32 v2, 4, v1")
    A("v_lshlrev_b32 v3, 3, v1")
    lds_wait(A, 10, None, 4)
    FA = 64
    T = Lgkm(A)
    for u in range(10):
        if u < 8:
            for half in range(2):
                o = (16 * u + 4 * half)
                T.issue(f"ds_read_b64_tr_b16 {vr(FA+12*u+2*half,2)}, v6 offset:{o*336}")
                T.issue(f"ds_read_b64_tr_b16 {vr(FA+12*u+4+2*half,2)}, v6 offset:{o*336+32}")
                T.issue(f"ds_read_b64_tr_b16 {vr(FA+12*u+8+2*half,2)}, v7 offset:{o*176}", u)
        if u >= 2:
            uu = u - 2
            T.wait(uu)
            for TT in range(2):
                c = vr(ACC + 16 * TT, 16) if uu else "0"
                A(f"v_mfma_f32_32x32x16_bf16 {vr(ACC+16*TT,16)}, {vr(FA+12*uu+4*TT,4)}, {vr(FA+12*uu+8,4)}, {c}")
    o_index(A)
    for i in range(10):
        A(f"v_cvt_pk_bf16_f32 v{48+i}, v{ACC+2*i}, v{ACC+2*i+1}")
    A(f"buffer_store_dwordx2 v[56:57], v3, s[{SWS}:{SWS+3}], s57 offen offset:2048{SC}")
    A("s_mov_b32 exec_lo, 0x00ffffff")
    A("s_mov_b32 exec_hi, 0x00ffffff")
    A(f"buffer_store_dwordx4 v[48:51], v2, s[{SWS}:{SWS+3}], s57 offen{SC}")
    A(f"buffer_store_dwordx4 v[52:55], v2, s[{SWS}:{SWS+3}], s57 offen offset:1024{SC}")
    A("s_mov_b64 exec, -1")
    stamp(A, 6)
    role_o(A)
    end_wave(A)
    A.label(Lq)
    hq = A.mark()
    A("s_nop 1")
    tag_check(A, 10)
    phi_mfma(P, ACC)
    A(f"v_and_b32 v{t0}, 31, v1")
    A(f"v_lshrrev_b32 v{t1}, 5, v1")
    A(f"s_mov_b32 s57, {4*64*1280}")
    A(f"v_mul_lo_u32 v{t1}, s57, v{t1}")
    A(f"v_lshl_add_u32 v2, v{t0}, 4, v{t1}")
    A(f"v_lshl_add_u32 v3, v{t0}, 3, v{t1}")
    A("s_lshl_b32 s58, s49, 2")
    A("s_add_u32 s58, s58, s48")
    for x in wphi_reads(1):
        A(x)
    A("s_lshl_b32 s59, s50, 6")
    A("s_add_u32 s59, s59, s58")
    A("s_lshl_b32 s59, s59, 7")
    A(f"s_add_u32 s59, s59, {F2:#x}")
    A("s_lshl_b32 s57, s50, 9")
    A("s_add_u32 s57, s57, s58")
    A("s_mul_i32 s57, s57, 1280")
    A("s_waitcnt lgkmcnt(0)")
    phi_mfma(P + 20, 208)
    for hs in range(4):
        x = (ACC, ACC + 20, 208, 228)[hs]
        o = 64 + 10 * hs if hs < 3 else 96
        for i in range(10):
            A(f"v_cvt_pk_bf16_f32 v{o+i}, v{x+2*i}, v{x+2*i+1}")
        A(f"buffer_store_dwordx4 {vr(o,4)}, v2, s[{SWS}:{SWS+3}], s57 offen{SC}")
        A(f"buffer_store_dwordx4 {vr(o+4,4)}, v2, s[{SWS}:{SWS+3}], s57 offen offset:512{SC}")
        A(f"buffer_store_dwordx2 {vr(o+8,2)}, v3, s[{SWS}:{SWS+3}], s57 offen offset:1024{SC}")
        if hs < 3:
            A(f"s_add_u32 s57, s57, {64*1280}")
    stamp(A, 6)
    set_flag(A, 10, "s59")
    stamp(A, 7)
    A.check_seam(mq, hq)
    A("s_setprio 0")
    A("s_cmp_lt_u32 s99, 4")
    A("s_cbranch_scc1 L_wo")
    if Opt.hold:
        if Opt.holdwg >= 0:
            A(f"s_cmp_eq_u32 s2, {Opt.holdwg}")
            A("s_cbranch_scc0 L_exit")
        A.label("L_hold")
        A("s_sleep 4")
        A("s_memrealtime s[66:67]")
        A("s_waitcnt lgkmcnt(0)")
        A("s_sub_u32 s66, s66, s64")
        A(f"s_cmp_lt_u32 s66, {Opt.hold}")
        A("s_cbranch_scc1 L_hold")
    end_wave(A)


def role_o(A):
    NT = 4
    RAW, X, PQ = 64, 104, 128
    A("s_mul_i32 s53, s48, 20480")
    A(f"s_add_u32 s53, s53, {L_WOB}")
    A("v_and_b32 v4, 31, v1")
    A("v_lshl_add_u32 v5, v4, 4, s53")
    A("v_lshl_add_u32 v6, v4, 3, s53")
    A("v_and_b32 v7, 32, v1")
    A("v_lshlrev_b32 v7, 26, v7")
    A("s_lshl_b32 s54, s48, 2")
    A(f"s_add_u32 s54, s54, {L_SYNC+16}")
    A("s_mov_b32 s58, 0xffff0000")
    for t in range(NT):
        A(f"v_mov_b32 v{PQ+12*t+10}, 0")
        A(f"v_mov_b32 v{PQ+12*t+11}, 0")
    set_flag(A, 10, "s59")
    lds_arrive(A, 14, L_SYNC + 4)
    stamp(A, 7)
    lds_wait(A, 14, "s54", 1)
    stampw(A, 8)
    T = Lgkm(A)
    for t in range(NT):
        T.issue(f"ds_read_b128 {vr(RAW+10*t,4)}, v5 offset:{1280*t}")
        T.issue(f"ds_read_b128 {vr(RAW+10*t+4,4)}, v5 offset:{1280*t+512}")
        T.issue(f"ds_read_b64 {vr(RAW+10*t+8,2)}, v6 offset:{1280*t+1024}", t)
    A("s_lshl_b32 s57, s63, 2")
    A("s_mul_i32 s54, s57, 40960")
    A(f"s_add_u32 s54, s54, {WS_O:#x}")
    A("s_lshl_b32 s59, s62, 8")
    A("s_add_u32 s59, s59, s54")
    A("s_add_u32 s59, s59, 32768")
    A("s_lshl_b32 s57, s62, 10")
    A("s_add_u32 s54, s54, s57")
    A("s_lshl_b32 s50, s63, 5")
    A("s_add_u32 s50, s50, s62")
    A("s_lshl_b32 s50, s50, 7")
    A(f"s_add_u32 s50, s50, {F3:#x}")
    mx, se = 124, 126
    for t in range(NT):
        T.wait(t)
        for i in range(10):
            A(f"v_lshl_add_u32 v{X+2*i}, v{RAW+10*t+i}, 16, v7")
            A(f"v_bitop3_b32 v{X+2*i+1}, v{RAW+10*t+i}, s58, v7 bitop3:0x6a")
        A(f"v_max3_f32 v{mx}, v{X}, v{X+1}, v{X+2}")
        A(f"v_max3_f32 v{mx+1}, v{X+3}, v{X+4}, v{X+5}")
        for i in range(6, 18, 4):
            A(f"v_max3_f32 v{mx}, v{mx}, v{X+i}, v{X+i+1}")
            A(f"v_max3_f32 v{mx+1}, v{mx+1}, v{X+i+2}, v{X+i+3}")
        A(f"v_max3_f32 v{mx}, v{mx}, v{X+18}, v{X+19}")
        A(f"v_max_f32 v{mx}, v{mx}, v{mx+1}")
        A(f"v_mul_f32 v{mx}, s60, v{mx}")
        for i in range(0, 20, 2):
            A(f"v_pk_fma_f32 {vr(X+i,2)}, {vr(X+i,2)}, s[60:61], {vr(mx,2)} op_sel_hi:[1,1,0] neg_lo:[0,0,1] neg_hi:[0,0,1]")
        for i in range(20):
            A(f"v_exp_f32 v{X+i}, v{X+i}")
        A(f"v_pk_add_f32 {vr(se,2)}, {vr(X,2)}, {vr(X+2,2)}")
        A(f"v_pk_add_f32 {vr(mx,2)}, {vr(X+4,2)}, {vr(X+6,2)}")
        for i in range(8, 20, 4):
            A(f"v_pk_add_f32 {vr(se,2)}, {vr(se,2)}, {vr(X+i,2)}")
            A(f"v_pk_add_f32 {vr(mx,2)}, {vr(mx,2)}, {vr(X+i+2,2)}")
        A(f"v_pk_add_f32 {vr(se,2)}, {vr(se,2)}, {vr(mx,2)}")
        A(f"v_add_f32 v{se}, v{se}, v{se+1}")
        A(f"v_rcp_f32 v{se}, v{se}")
        for i in range(0, 20, 2):
            A(f"v_pk_mul_f32 {vr(X+i,2)}, {vr(X+i,2)}, {vr(se,2)} op_sel_hi:[1,0]")
        for i in range(10):
            A(f"v_cvt_pk_bf16_f32 v{PQ+12*t+i}, v{X+2*i}, v{X+2*i+1}")
    stamp(A, 9)
    A(f"v_add_u32 v8, {L_WOB+5120}, v2")
    A(f"v_add_u32 v9, {L_WOB+5120+40960}, v2")
    KF = 16
    A(f"v_mov_b32 v{KF+10}, 0")
    A(f"v_mov_b32 v{KF+11}, 0")
    lds_wait(A, 14, L_SYNC + 8, 4)
    stampw(A, 10)
    PR = 32
    T = Lgkm(A)
    for q in range(5):
        for p in range(4):
            T.issue(f"ds_read_b128 {vr(PR+16*q+4*p,4)}, v{8+(p>>1)} offset:{20480*(p&1)+1024*q}", q)
    for q in range(5):
        T.wait(q)
        b = PR + 16 * q
        for h in (0, 2):
            A(f"v_pk_add_f32 {vr(b+h,2)}, {vr(b+h,2)}, {vr(b+4+h,2)}")
            A(f"v_pk_add_f32 {vr(b+8+h,2)}, {vr(b+8+h,2)}, {vr(b+12+h,2)}")
        for h in (0, 2):
            A(f"v_pk_add_f32 {vr(b+h,2)}, {vr(b+h,2)}, {vr(b+8+h,2)}")
        for h in (0, 2):
            A(f"v_cvt_pk_bf16_f32 v{KF+2*q+h//2}, v{b+h}, v{b+h+1}")
    D = [176, 192, 208, 224]
    OP = [32, 40, 48, 56]

    def mf(t):
        for u in range(3):
            c = vr(D[t], 16) if u else "0"
            A(f"v_mfma_f32_32x32x16_bf16 {vr(D[t],16)}, {vr(KF+4*u,4)}, {vr(PQ+12*t+4*u,4)}, {c}")

    if Opt.dA:
        A(f"s_sleep {Opt.dA}")
    mf(0)
    mf(1)
    for t in range(NT):
        d, o = D[t], OP[t]
        A(f"v_add_f32 v10, 0x358637bd, v{d+12}")
        A("v_rcp_f32 v10, v10")
        if t + 2 < NT:
            mf(t + 2)
        for i in range(12):
            A(f"v_mul_f32 v{d+i}, v10, v{d+i}")
        for i in range(6):
            A(f"v_cvt_pk_bf16_f32 v{o+i}, v{d+2*i}, v{d+2*i+1}")
        A(f"buffer_store_dwordx4 {vr(o,4)}, v2, s[{SWS}:{SWS+3}], s54 offen{SC}")
        A("s_mov_b32 exec_hi, 0")
        A(f"buffer_store_dwordx2 {vr(o+4,2)}, v3, s[{SWS}:{SWS+3}], s59 offen{SC}")
        A("s_mov_b64 exec, -1")
        if t < NT - 1:
            A("s_add_u32 s54, s54, 40960")
            A("s_add_u32 s59, s59, 40960")
    stamp(A, 11)
    set_flag(A, 12, "s50")
    lds_arrive(A, 16, L_SYNC + 12)
    stamp(A, 12)


def b_channel(A):
    A("s_mul_i32 s49, s98, 80")
    A("s_sub_u32 s50, s99, 24")
    A("s_mul_i32 s50, s50, 6")
    A("s_add_u32 s49, s49, s50")
    A("s_add_u32 s49, s49, s48")
    A(f"s_mul_i32 s56, s48, {CV_LDS}")


def conv_load_h(A, v):
    SH = 40
    srd(A, SH, S_SSK, NB_SSK)
    A(f"v_lshlrev_b32 v{v}, 4, v1")
    A("s_lshl_b32 s50, s49, 12")
    A("s_add_u32 m0, s56, 64")
    for i in range(4):
        A(f"buffer_load_dwordx4 v{v}, s[{SH}:{SH+3}], s50 offen offset:{1024*i}{Opt.nt_s} lds")


def f0_lines(A, c0, c1, v):
    A(f"s_lshr_b32 s52, s{c0}, 6")
    A("s_mul_i32 s52, s52, 419431")
    A("s_lshr_b32 s52, s52, 16")
    A(f"s_lshr_b32 s53, s{c1}, 6")
    A("s_mul_i32 s53, s53, 419431")
    A("s_add_u32 s53, s53, 406324")
    A("s_lshr_b32 s53, s53, 16")
    A(f"v_lshrrev_b32 v{v}, 2, v1")
    A(f"v_add_u32 v{v}, s52, v{v}")
    A(f"v_min_u32 v{v}, s53, v{v}")
    A(f"v_lshlrev_b32 v{v}, 7, v{v}")
    A(f"s_mov_b32 s52, {F0:#x}")


def role_pre(A):
    SK, SV, SS = 32, 36, 40
    t0, t1, t2 = 2, 3, 4
    A("s_lshl_b32 s49, s98, 3")
    A("s_add_u32 s49, s49, s99")
    A("s_sub_u32 s49, s49, 24")
    A("s_mul_i32 s49, s49, 5")
    A("s_add_u32 s49, s49, s48")
    A("s_and_b32 s50, s49, 31")
    A("s_lshr_b32 s51, s49, 5")
    A(f"s_mul_i32 s52, s50, {64*1280}")
    A("s_lshl_b32 s53, s51, 7")
    A("s_add_u32 s52, s52, s53")
    A(f"v_lshrrev_b32 v{t0}, 3, v1")
    A(f"v_and_b32 v{t1}, 7, v1")
    A(f"v_mul_u32_u24 v{t2}, {8*1280}, v{t0}")
    A(f"v_lshl_add_u32 v{t2}, v{t1}, 4, v{t2}")
    A(f"v_add_u32 v5, s52, v{t2}")
    A(f"v_subrev_u32 v6, {3*1280}, v5")
    A(f"v_subrev_u32 v7, {2*1280}, v5")
    A(f"v_subrev_u32 v8, {1280}, v5")
    A(f"v_lshlrev_b32 v9, 6, v{t1}")
    A("s_lshl_b32 s54, s51, 9")
    A(f"s_movk_i32 s55, {4*1280}")
    A("s_waitcnt lgkmcnt(0)")
    srd(A, SK, S_BK, NB_X)
    srd(A, SV, S_BV, NB_X)
    srd(A, SS, S_SH, NB_SH)
    WR, KR, VR = 16, 32, 76
    for i in range(4):
        A(f"buffer_load_dwordx4 {vr(WR+4*i,4)}, v9, s[{SS}:{SS+3}], s54 offen offset:{16*i}")
    for i in range(3):
        A(f"buffer_load_dwordx4 {vr(KR+4*i,4)}, v{6+i}, s[{SK}:{SK+3}], 0 offen{Opt.nt_s}")

    order = []

    def ld(kind, i):
        so = "0" if i < 4 else "s55"
        if kind == "k":
            A(f"buffer_load_dwordx4 {vr(KR+12+4*i,4)}, v5, s[{SK}:{SK+3}], {so} offen offset:{1280*(i&3)}{Opt.nt_s}")
        else:
            A(f"buffer_load_dwordx4 {vr(VR+4*i,4)}, v5, s[{SV}:{SV+3}], {so} offen offset:{1280*(i&3)}{Opt.nt_s}")
        order.append((kind, i))

    for i in (5, 6, 7):
        ld("k", i)
    ld("k", 0); ld("v", 0); ld("k", 1); ld("v", 1)
    todo = [("k", 2), ("v", 2), ("k", 3), ("v", 3), ("k", 4), ("v", 4), ("v", 5), ("v", 6), ("v", 7)]
    stamp(A, 2)
    srd(A, SWS, S_WS, WS_SIZE)
    A("s_mul_i32 s56, s48, 8320")
    A(f"s_add_u32 s56, s56, {B_PRE}")
    A(f"v_mul_u32_u24 v10, 1040, v{t1}")
    A(f"v_lshl_add_u32 v10, v{t0}, 4, v10")
    A("v_add_u32 v10, s56, v10")
    A("v_lshrrev_b32 v11, 4, v1")
    A("v_lshlrev_b32 v11, 8, v11")
    A("v_and_b32 v12, 3, v1")
    A("v_lshl_add_u32 v11, v12, 6, v11")
    A("v_bfe_u32 v12, v1, 2, 2")
    A("v_lshl_add_u32 v11, v12, 3, v11")
    A("v_add_u32 v11, s56, v11")
    A(f"v_lshlrev_b32 v12, 12, v{t0}")
    A(f"v_lshl_add_u32 v12, v{t1}, 4, v12")
    A("s_lshl_b32 s57, s51, 18")
    A("s_lshl_b32 s58, s50, 7")
    A("s_add_u32 s57, s57, s58")
    A(f"s_add_u32 s57, s57, {WS_KVT:#x}")
    A("s_mov_b32 s59, 0xffff0000")
    WF, KF, VF, TA, OUT = 108, 140, 172, 180, 196

    def unpack(dst, src, n):
        for i in range(n):
            A(f"v_lshlrev_b32 v{dst+2*i}, 16, v{src+i}")
            A(f"v_and_b32 v{dst+2*i+1}, s59, v{src+i}")

    A(f"s_waitcnt vmcnt({3+len(order)})")
    ld(*todo.pop(0)); ld(*todo.pop(0))
    for c in range(8):
        A(f"v_lshlrev_b32 v{WF+c}, 16, v{WR+2*c}")
        A(f"v_and_b32 v{WF+8+c}, s59, v{WR+2*c}")
        A(f"v_lshlrev_b32 v{WF+16+c}, 16, v{WR+2*c+1}")
        A(f"v_and_b32 v{WF+24+c}, s59, v{WR+2*c+1}")
    A(f"s_waitcnt vmcnt({len(order)})")
    ld(*todo.pop(0)); ld(*todo.pop(0))
    for i in range(3):
        unpack(KF + 8 * i, KR + 4 * i, 4)
    for i in range(8):
        need = max(order.index(("k", i)), order.index(("v", i)))
        A(f"s_waitcnt vmcnt({len(order)-1-need})")
        for _ in range(2):
            if todo:
                ld(*todo.pop(0))
        if i == 2:
            b_channel(A)
            conv_load_h(A, 13)
            order.extend([None] * 4)
        unpack(KF + 8 * ((i + 3) & 3), KR + 12 + 4 * i, 4)
        unpack(VF, VR + 4 * i, 4)
        acc = TA + 8 * (i & 1)
        for j in (3, 2, 1, 0):
            kk = KF + 8 * ((i + 3 - j) & 3)
            for c in range(0, 8, 2):
                if j == 3:
                    A(f"v_pk_mul_f32 {vr(acc+c,2)}, {vr(kk+c,2)}, {vr(WF+8*j+c,2)}")
                else:
                    A(f"v_pk_fma_f32 {vr(acc+c,2)}, {vr(kk+c,2)}, {vr(WF+8*j+c,2)}, {vr(acc+c,2)}")
        for c in range(0, 8, 2):
            A(f"v_pk_mul_f32 {vr(acc+c,2)}, {vr(acc+c,2)}, {vr(VF+c,2)}")
        if i & 1:
            for c in range(8):
                A(f"v_cvt_pk_bf16_f32 v{OUT+4*c+i//2}, v{TA+c}, v{TA+8+c}")
    stamp(A, 3)
    for c in range(8):
        A(f"ds_write_b128 v10, {vr(OUT+4*c,4)} offset:{128*c}")
    A("s_waitcnt lgkmcnt(0)")
    T = Lgkm(A)
    for i in range(8):
        T.issue(f"ds_read_b64_tr_b16 {vr(16+4*i,2)}, v11 offset:{1040*i}")
        T.issue(f"ds_read_b64_tr_b16 {vr(18+4*i,2)}, v11 offset:{1040*i+32}", i)
    for i in range(8):
        T.wait(i)
        A(f"buffer_store_dwordx4 {vr(16+4*i,4)}, v12, s[{SWS}:{SWS+3}], s57 offen{SC}")
        if i < 7:
            A(f"s_add_u32 s57, s57, {8*4096}")
    A("s_waitcnt vmcnt(0)")
    stamp(A, 4)


def role_helper(A):
    SD = 40
    A("s_setprio 3")
    A("s_waitcnt lgkmcnt(0)")
    srd(A, SWS, S_WS, WS_SIZE)
    srd(A, SD, S_DBG, 256)
    Lz = A.newlabel("L_nz")
    A("s_cmp_eq_u32 s2, 192")
    A(f"s_cbranch_scc0 {Lz}")
    A("s_cmp_eq_u32 s48, 5")
    A(f"s_cbranch_scc0 {Lz}")
    A(f"s_mov_b32 s57, {WS_EPOCH:#x}")
    A("s_mov_b64 exec, 1")
    A(f"buffer_load_dword v4, off, s[{SWS}:{SWS+3}], s57{SC}")
    A("s_waitcnt vmcnt(0)")
    A("v_add_u32 v4, 1, v4")
    A("v_not_b32 v5, v4")
    A(f"buffer_store_dwordx2 v[4:5], off, s[{SD}:{SD+3}], 0{SC}")
    A(f"buffer_store_dword v4, off, s[{SWS}:{SWS+3}], s57{SC}")
    A("s_mov_b64 exec, -1")
    stamp(A, 2)
    A.label(Lz)
    if Opt.codepf:
        Lp = A.newlabel("L_npf")
        A("s_cmp_eq_u32 s48, 6")
        A(f"s_cbranch_scc0 {Lp}")
        A("s_getpc_b64 s[50:51]")
        A.label("L_pc")
        A(f"s_sub_u32 s50, s50, L_pc-{NAME}_kernel")
        A("s_subb_u32 s51, s51, 0")
        A("s_sub_u32 s52, s99, 24")
        A("s_lshl_b32 s52, s52, 13")
        A("v_lshl_add_u32 v2, v1, 7, s52")
        A(f"v_min_u32 v2, L_code_end-{NAME}_kernel-4, v2")
        A("global_load_dword v24, v2, s[50:51]")
        if Opt.womall:
            srd(A, 36, S_WO, NB_WO)
            A("s_sub_u32 s52, s2, 192")
            A("s_lshl_b32 s52, s52, 14")
            A("s_add_u32 s53, s52, 8192")
            A("v_lshlrev_b32 v2, 7, v1")
            A("buffer_load_dword v25, v2, s[36:39], s52 offen")
            A("buffer_load_dword v26, v2, s[36:39], s53 offen")
        A.label(Lp)
    A("s_setprio 0")
    L6 = A.newlabel("L_h6")
    Lx = A.newlabel("L_h67")
    A("s_cmp_eq_u32 s48, 5")
    A(f"s_cbranch_scc0 {L6}")
    b_channel(A)
    conv_load_h(A, 2)
    A("s_branch L_bconv")
    A.label(L6)
    A("s_mul_i32 s54, s98, 80")
    A("s_sub_u32 s50, s99, 24")
    A("s_mul_i32 s55, s50, 6")
    A("s_add_u32 s54, s54, s55")
    A("s_add_u32 s55, s54, 5")
    f0_lines(A, 54, 55, 12)
    A("s_lshl_b32 s58, s98, 3")
    A("s_add_u32 s58, s58, s50")
    A("s_lshl_b32 s58, s58, 7")
    A(f"s_add_u32 s58, s58, {F0:#x}")
    Lt = A.newlabel("L_h7")
    A("s_cmp_eq_u32 s48, 7")
    A(f"s_cbranch_scc0 {Lt}")
    A(f"s_mov_b64 s[{TAG}:{TAG+1}], 0")
    tag_check(A, 8)
    A.label(Lt)
    A("s_barrier")
    A("s_cmp_eq_u32 s48, 7")
    A(f"s_cbranch_scc0 {Lx}")
    set_flag(A, 8, "s58")
    poll(A, 14, 12, "s52", sleep=4)
    A.label(Lx)
    A("s_barrier")
    A("s_branch L_post")


def conv_setup(A):
    A("v_lshlrev_b32 v2, 4, v1")
    A("s_lshl_b32 s52, s49, 1")
    A("s_and_b32 s52, s52, 0xfffffffc")
    A(f"s_load_dword s55, s[{S_SSD}:{S_SSD+1}], s52")
    A(f"s_load_dword s54, s[{S_SSK}:{S_SSK+1}], s50")
    A(f"s_add_u32 s51, s50, {WS_KVT:#x}")
    for i in range(4):
        A(f"v_mov_b32 v{4+i}, 0")
    A("v_add_u32 v3, s56, v2")
    A("s_mov_b64 exec, 0xf")
    A("ds_write_b128 v3, v[4:7]")
    A("s_mov_b32 exec_lo, -1")
    A(f"ds_write_b128 v3, v[4:7] offset:{64+4096}")
    A("s_mov_b64 exec, -1")
    A("v_and_b32 v8, 1, v1")
    A("v_lshlrev_b32 v8, 5, v8")
    A("v_bfe_u32 v9, v1, 4, 1")
    A("v_lshl_add_u32 v8, v9, 4, v8")
    A("v_bfe_u32 v9, v1, 1, 1")
    A("v_lshl_add_u32 v8, v9, 3, v8")
    A("v_lshrrev_b32 v10, 5, v1")
    A("v_lshl_add_u32 v8, v10, 6, v8")
    A("v_bfe_u32 v9, v1, 2, 2")
    A("v_lshlrev_b32 v9, 3, v9")
    A("v_sub_u32 v8, v8, v9")
    A("s_add_u32 s57, s56, 32")
    A("v_add_u32 v8, s57, v8")
    A("v_bfe_u32 v9, v1, 4, 1")
    A("v_lshlrev_b32 v9, 8, v9")
    A("v_and_b32 v11, 3, v1")
    A("v_lshl_add_u32 v9, v11, 6, v9")
    A("v_bfe_u32 v11, v1, 2, 2")
    A("v_lshl_add_u32 v9, v11, 4, v9")
    A("v_lshlrev_b32 v11, 6, v10")
    A("v_sub_u32 v9, v9, v11")
    A(f"s_add_u32 s57, s56, {64+4096+512-384}")
    A("v_add_u32 v9, s57, v9")
    A("v_bfe_u32 v11, v1, 2, 1")
    A("v_bfe_u32 v12, v1, 3, 2")
    A("v_lshl_add_u32 v11, v11, 2, v12")
    A("v_and_b32 v12, 35, v1")
    A("v_lshl_add_u32 v11, v12, 3, v11")
    A("v_and_b32 v12, 1, v11")
    A("v_lshlrev_b32 v12, 4, v12")
    A("v_mov_b32 v13, 0xffff")
    A("v_lshlrev_b32 v13, v12, v13")
    A("v_lshrrev_b32 v11, 1, v11")
    for i in range(4):
        A(f"v_cmp_eq_u32 vcc, {i}, v11")
        A(f"v_cndmask_b32 v{MK+i}, 0, v13, vcc")
    A("v_bfe_u32 v11, v1, 4, 1")
    A("v_and_b32 v12, 3, v1")
    A("v_lshl_add_u32 v11, v11, 2, v12")
    A("v_add_u32 v11, 7, v11")
    A("v_and_b32 v12, 3, v11")
    A("v_bfe_u32 v13, v11, 2, 1")
    A("v_lshl_add_u32 v12, v13, 4, v12")
    A("v_and_b32 v13, 12, v1")
    A("v_add3_u32 v12, v12, v13, 32")
    A("v_subrev_u32 v13, 32, v1")
    A("v_cmp_gt_u32 vcc, 32, v1")
    A("v_cndmask_b32 v14, v13, v12, vcc")
    A("v_lshlrev_b32 v14, 2, v14")
    A("s_mov_b32 s58, 0x1111")
    A("s_mov_b32 s59, 0")


MK = 16


def role_conv(A):
    A("s_barrier")
    conv_setup(A)
    A.label("L_conv")
    NR = 20
    RA, RB, RS = 64, 144, 224
    ACCS = (32, 48)
    CAR, PUL, TMP = 20, (21, 22), 23
    OUT = (24, 28)

    def rdA(m, reg, tag):
        return [(f"ds_read_b64_tr_b16 {vr(reg,2)}, v8 offset:{128*m+32}", None),
                (f"ds_read_b64_tr_b16 {vr(reg+2,2)}, v8 offset:{128*m}", tag)]

    def rdB(b, reg, tag):
        return [(f"ds_read_b128 {vr(reg,4)}, v9 offset:{128*b}", tag)]

    def xload():
        A(f"s_add_u32 m0, s56, {64+4096+512}")
        for i in range(4):
            A(f"buffer_load_dwordx4 v2, s[{SWS}:{SWS+3}], s51 offen offset:{1024*i}{SC} lds")

    Lb, Lg = A.newlabel("L_cb"), A.newlabel("L_cg")
    A("s_waitcnt vmcnt(0)")
    A("s_cmp_ge_u32 s99, 24")
    A(f"s_cbranch_scc1 {Lb}")
    tag_check(A, 22)
    A(f"buffer_load_dwordx2 v[22:23], v12, s[{SWS}:{SWS+3}], s52 offen{SC}")
    A("s_barrier")
    A("s_waitcnt vmcnt(0)")
    A(f"v_cmp_eq_u64 vcc, s[{TAG}:{TAG+1}], v[22:23]")
    A("s_cmp_eq_u64 vcc, -1")
    Lx = A.newlabel("L_cx")
    A(f"s_cbranch_scc1 {Lx}")
    poll(A, 22, 12, "s52", sleep=8)
    A.label(Lx)
    stamp(A, 8)
    xload()
    A.label(Lb)
    A("s_waitcnt lgkmcnt(0)")
    A("s_lshl_b32 s54, s54, 16")
    A("s_lshl_b32 s53, s55, 16")
    A("s_and_b32 s55, s55, 0xffff0000")
    A("s_bitcmp1_b32 s49, 0")
    A("s_cselect_b32 s53, s55, s53")
    A("v_mov_b32 v15, s54")
    A("v_add_f32 v15, s53, v15")
    A("v_cvt_pk_bf16_f32 v15, v15, v15")
    T = Lgkm(A)
    for m in range(NR):
        for x, tg in rdA(m, RA + 4 * m, ("A", m)):
            T.issue(x, tg)
    T.wait(("A", 0))
    for k in range(4):
        A(f"v_bfi_b32 v{RA+k}, v{MK+k}, v15, v{RA+k}")
    T.all()
    A("s_cmp_ge_u32 s99, 24")
    A(f"s_cbranch_scc0 {Lg}")
    A("s_barrier")
    stamp(A, 8)
    xload()
    A.label(Lg)
    A(f"s_add_u32 s51, s50, {WS_YT:#x}")
    A(f"v_mov_b32 v{PUL[1]}, 0")

    sched = []
    for i in range(8):
        ms = list(range(4 * i + 4))
        res = [m for m in ms if m < NR and 4 * i + 3 - m < NR]
        stm = [m for m in ms if m not in res]
        sched += [(i, m) for m in res + stm]
    streams = []
    for k, (i, m) in enumerate(sched):
        b = 4 * i + 3 - m
        if m >= NR:
            streams.append((k, "A", m))
        elif b >= NR:
            streams.append((k, "B", b))
    slot_of = {k: n % 8 for n, (k, _, _) in enumerate(streams)}

    def epilogue(i):
        V = ACCS[i & 1]
        own = [f"v_add_f32_dpp v{V+4*j}, v{V+4*j+k}, v{V+4*j} row_shr:{4*k} row_mask:0xf bank_mask:0xf"
               for k in (1, 2, 3) for j in range(4)]
        car = [f"v_add_f32_dpp v{CAR}, v{V+12+k}, v{CAR} row_shl:{16-4*k} row_mask:0xf bank_mask:0xf" for k in (1, 2, 3)]
        L = [f"v_mov_b32 v{CAR}, 0"] + own[0:2] + car[0:1] + own[2:4] + car[1:2] + own[4:6] + car[2:3]
        L.append(("ds", f"ds_bpermute_b32 v{PUL[i&1]}, v14, v{CAR}", ("P", i)))
        L += own[6:]
        for k in (1, 2, 3):
            for j in (0, 1, 2):
                L.append(f"v_add_f32_dpp v{V+4*j+4}, v{V+4*j+k}, v{V+4*j+4} row_shl:{16-4*k} row_mask:0xf bank_mask:0xf")
        o = OUT[(i >> 1) & 1] + 2 * (i & 1)
        L.append(f"v_cvt_pk_bf16_f32 v{o+1}, v{V+8}, v{V+12}")
        L.append(("wait", ("P", i)))
        L.append(f"v_cndmask_b32 v{TMP}, v{PUL[i&1]}, v{PUL[1-(i&1)]}, s[58:59]")
        L.append(f"v_add_f32 v{V}, v{V}, v{TMP}")
        L.append(f"v_cvt_pk_bf16_f32 v{o}, v{V}, v{V+4}")
        if i & 1:
            L.append(f"buffer_store_dwordx4 {vr(OUT[(i>>1)&1],4)}, v2, s[{SWS}:{SWS+3}], s51 offen offset:{1024*(i>>1)}{SC}")
        return L

    def emit(x):
        if isinstance(x, tuple):
            if x[0] == "ds":
                T.issue(x[1], x[2])
            else:
                T.wait(x[1])
        else:
            A(x)

    A("s_waitcnt vmcnt(0)")
    stampw(A, 9)
    for b in range(8):
        for x, tg in rdB(b, RB + 4 * b, ("B", b)):
            T.issue(x, tg)
    nres = 8
    nst = 0
    fill = []
    first = {}
    for k, (i, m) in enumerate(sched):
        first.setdefault(i, k)
    for k, (i, m) in enumerate(sched):
        V = ACCS[i & 1]
        b = 4 * i + 3 - m
        if k == first[i]:
            while fill:
                emit(fill.pop(0))
            if i > 0:
                fill = epilogue(i - 1)
        if k in slot_of:
            T.wait(("S", k))
        if b < NR:
            T.wait(("B", b))
        ra = RA + 4 * m if m < NR else RS + 4 * slot_of[k]
        rb = RB + 4 * b if b < NR else RS + 4 * slot_of[k]
        c = vr(V, 16) if k != first[i] else "0"
        A(f"v_mfma_f32_32x32x16_bf16 {vr(V,16)}, {vr(ra,4)}, {vr(rb,4)}, {c}")
        budget = 5
        if nres < NR:
            for x, tg in rdB(nres, RB + 4 * nres, ("B", nres)):
                T.issue(x, tg)
            nres += 1
            budget -= 1
        elif nst < len(streams) and (nst < 8 or streams[nst - 8][0] < k) and streams[nst][0] - k <= 10:
            kk, kind, fr = streams[nst]
            for x, tg in (rdA if kind == "A" else rdB)(fr, RS + 4 * slot_of[kk], ("S", kk)):
                T.issue(x, tg)
                budget -= 1
            nst += 1
        if k > first[i]:
            for _ in range(budget):
                if fill:
                    emit(fill.pop(0))
    while fill:
        emit(fill.pop(0))
    stampw(A, 10)
    T.done = T.n if Ctx.stamps else T.done
    for x in epilogue(7):
        emit(x)
    A("s_waitcnt vmcnt(0)")
    stamp(A, 11)
    A("s_cmp_ge_u32 s99, 24")
    A("s_cbranch_scc1 L_bdone")
    A(f"v_mov_b32 v10, {L_SYNC+12}")
    A("v_mov_b32 v11, 1")
    A("s_mov_b64 exec, 1")
    A("ds_add_rtn_u32 v12, v10, v11")
    A("s_mov_b64 exec, -1")
    A("s_lshl_b32 s52, s98, 4")
    A("s_add_u32 s52, s52, s99")
    A("s_lshl_b32 s52, s52, 7")
    A(f"s_add_u32 s52, s52, {F4+8*128:#x}")
    A("s_waitcnt lgkmcnt(0)")
    A("v_readfirstlane_b32 s53, v12")
    A("s_cmp_eq_u32 s53, 3")
    A("s_cbranch_scc0 L_bend")
    set_flag(A, 10, "s52")
    A("s_branch L_bend")
    A.label("L_bdone")


def role_post(A):
    SQ, SO = 32, 36
    A.label("L_post")
    A("s_lshl_b32 s48, s48, 2")
    A("s_lshr_b32 s48, 0x43002100, s48")
    A("s_and_b32 s48, s48, 7")
    A("s_mul_i32 s49, s98, 40")
    A("s_sub_u32 s50, s99, 24")
    A("s_mul_i32 s50, s50, 5")
    A("s_add_u32 s49, s49, s50")
    A("s_add_u32 s49, s49, s48")
    A("s_and_b32 s50, s49, 31")
    A("s_lshr_b32 s51, s49, 5")
    A("v_lshrrev_b32 v2, 3, v1")
    A("v_and_b32 v3, 7, v1")
    A("v_lshlrev_b32 v4, 12, v2")
    A("v_lshl_add_u32 v4, v3, 4, v4")
    A("s_lshl_b32 s52, s51, 18")
    A("s_lshl_b32 s53, s50, 7")
    A("s_add_u32 s52, s52, s53")
    A(f"s_add_u32 s52, s52, {WS_YT:#x}")
    A("s_mul_i32 s56, s48, 8320")
    A(f"s_add_u32 s56, s56, {B_PRE}")
    A("s_lshr_b32 s54, s50, 3")
    A("s_lshl_b32 s54, s54, 9")
    A("s_bfe_u32 s55, s50, 0x10002")
    A("s_lshl_b32 s55, s55, 4")
    A("s_add_u32 s54, s54, s55")
    A("s_bfe_u32 s55, s50, 0x10001")
    A("s_lshl_b32 s55, s55, 7")
    A("s_add_u32 s54, s54, s55")
    A("s_and_b32 s55, s50, 1")
    A("s_lshl_b32 s55, s55, 1")
    A("s_add_u32 s54, s54, s55")
    A("v_and_b32 v5, 3, v2")
    A("v_lshrrev_b32 v6, 2, v2")
    A("v_lshl_add_u32 v5, v5, 5, v6")
    A("v_mul_u32_u24 v6, 1280, v5")
    A("v_lshlrev_b32 v7, 1, v6")
    A("v_lshl_add_u32 v6, v3, 4, v6")
    A("v_lshl_add_u32 v7, v3, 4, v7")
    A("s_mul_i32 s54, s54, 1280")
    A("s_lshl_b32 s53, s51, 7")
    A("s_lshl_b32 s55, s54, 1")
    A("s_add_u32 s54, s54, s53")
    A("s_add_u32 s55, s55, s53")
    A("s_add_u32 s55, s55, 1280")
    srd(A, SQ, S_BQ, NB_X)
    srd(A, SO, S_OUT, NB_OUT)
    QR, YR = 16, 48
    rows = [0, 4, 8, 12, 256, 260, 264, 268]
    if Opt.wopf == "b":
        Ln = A.newlabel("L_npf")
        A("s_cmp_ge_u32 s48, 3")
        A(f"s_cbranch_scc0 {Ln}")
        srd(A, 40, S_WO, NB_WO)
        A("s_sub_u32 s57, s99, 24")
        A("s_lshl_b32 s57, s57, 1")
        A("s_add_u32 s57, s57, s48")
        A("s_sub_u32 s57, s57, 3")
        A("s_lshl_b32 s57, s57, 13")
        A("v_lshlrev_b32 v8, 7, v1")
        for i in range(7):
            A(f"buffer_load_dword v{200+i}, v8, s[40:43], s57 offen")
            A(f"s_add_u32 s57, s57, {16*8192}")
        A.label(Ln)
    for i in range(8):
        A(f"s_add_u32 s57, s54, {rows[i]*1280}")
        A(f"buffer_load_dwordx4 {vr(QR+4*i,4)}, v6, s[{SQ}:{SQ+3}], s57 offen{Opt.nt_s}")
    A("s_mov_b32 s59, 0xffff0000")
    QF = 128
    A("s_waitcnt vmcnt(0)")
    for i in range(32):
        A(f"v_lshlrev_b32 v{QF+2*i}, 16, v{QR+i}")
        A(f"v_and_b32 v{QF+2*i+1}, s59, v{QR+i}")
    A("s_lshl_b32 s57, s98, 4")
    A("s_sub_u32 s58, s57, 16")
    A("v_min_u32 v12, 47, v1")
    A("v_add_u32 v12, s58, v12")
    A("v_max_i32 v12, 0, v12")
    A("v_min_u32 v12, 127, v12")
    A("v_lshlrev_b32 v12, 7, v12")
    A("s_add_u32 s57, s57, s99")
    A("s_lshl_b32 s57, s57, 7")
    A(f"s_add_u32 s57, s57, {F4-24*128:#x}")
    A(f"s_mov_b32 s58, {F4:#x}")
    Lx = A.newlabel("L_p7")
    A("s_barrier")
    A("s_cmp_eq_u32 s48, 4")
    A(f"s_cbranch_scc0 {Lx}")
    set_flag(A, 8, "s57")
    poll(A, 14, 12, "s58", sleep=4)
    A.label(Lx)
    A("s_barrier")
    if Opt.dB:
        A(f"s_sleep {Opt.dB}")
    stamp(A, 12)
    for i in range(8):
        A(f"v_xor_b32 v8, {16*i}, v4")
        A(f"s_add_u32 m0, s56, {1024*i}")
        A(f"buffer_load_dwordx4 v8, s[{SWS}:{SWS+3}], s52 offen{SC} lds")
        if i < 7:
            A(f"s_add_u32 s52, s52, {8*4096}")
    A("v_xor_b32 v8, v2, v3")
    A("v_lshlrev_b32 v8, 4, v8")
    A("v_lshl_add_u32 v8, v3, 10, v8")
    A("v_add_u32 v8, s56, v8")
    A("s_waitcnt vmcnt(0)")
    for c in range(8):
        A(f"ds_read_b128 {vr(YR+4*c,4)}, v8 offset:{128*c}")
    A("s_waitcnt lgkmcnt(0)")
    stamp(A, 13)
    YF, OUT = 80, 96
    for i in range(8):
        for c in range(8):
            if i & 1:
                A(f"v_and_b32 v{YF+c}, s59, v{YR+4*c+i//2}")
            else:
                A(f"v_lshlrev_b32 v{YF+c}, 16, v{YR+4*c+i//2}")
        for c in range(0, 8, 2):
            A(f"v_pk_mul_f32 {vr(YF+c,2)}, {vr(YF+c,2)}, {vr(QF+8*i+c,2)}")
        for k in range(4):
            A(f"v_cvt_pk_bf16_f32 v{OUT+4*i+k}, v{YF+2*k}, v{YF+2*k+1}")
        A(f"s_add_u32 s57, s55, {rows[i]*2560}")
        A(f"buffer_store_dwordx4 {vr(OUT+4*i,4)}, v7, s[{SO}:{SO+3}], s57 offen{Opt.oscb}")
    stamp(A, 14)


def build():
    A = Asm()
    k = NAME + "_kernel"
    A.raw(f".globl {k}")
    A.raw(".p2align 8")
    A.raw(f".type {k},@function")
    A.label(k)
    if Opt.hold:
        A("s_memrealtime s[64:65]")
    load_kernargs(A)
    stamp_init(A)
    A("v_lshrrev_b32 v2, 6, v0")
    A("v_and_b32 v1, 63, v0")
    A("v_readfirstlane_b32 s100, v2")
    A("s_and_b32 s98, s2, 7")
    A("s_lshr_b32 s99, s2, 3")
    A("s_cmp_ge_u32 s2, 192")
    A("s_cbranch_scc1 L_b")
    A("s_and_b32 s49, s2, 3")
    A("s_lshl_b32 s49, s49, 2")
    A("s_and_b32 s50, s99, 3")
    A("s_add_u32 s49, s49, s50")
    A("s_bfe_u32 s52, s2, 0x10002")
    A("s_lshr_b32 s53, s2, 5")
    A("s_lshl_b32 s54, s52, 1")
    A("s_add_u32 s54, s54, s53")
    A("s_lshl_b32 s55, s52, 2")
    A("s_add_u32 s55, s55, s53")
    A("s_sub_u32 s55, s55, 2")
    A("s_cmp_lt_u32 s2, 64")
    A("s_cselect_b32 s50, s54, s55")
    A("s_cselect_b32 s51, 1, 0")
    A("s_and_b32 s48, s100, 3")
    A("s_cmp_ge_u32 s100, 4")
    A("s_cbranch_scc1 L_c")
    role_loader(A)
    A.label("L_c")
    role_compute(A)
    A.label("L_b")
    A("s_cmp_ge_u32 s2, 256")
    A("s_cbranch_scc1 L_exit")
    A("s_mov_b32 s48, s100")
    A("s_cmp_ge_u32 s48, 5")
    A("s_cbranch_scc1 L_help")
    role_pre(A)
    A("s_branch L_bconv")
    A.label("L_help")
    role_helper(A)
    A.label("L_bconv")
    role_conv(A)
    A("s_bitcmp1_b32 0x32, s48")
    A("s_cbranch_scc1 L_bend")
    role_post(A)
    A.label("L_bend")
    end_wave(A)
    A.label("L_exit")
    A("s_endpgm")
    A.label("L_code_end")
    head = ["; generated by gen/f3.py",
            "; @launch grid=(256,1,1) block=(512,1,1) lds=163840"]
    txt = "\n".join(head) + '\n.amdgcn_target "amdgcn-amd-amdhsa--gfx950"\n.text\n' + A.text()
    txt += f'''.section .rodata,"a"
.p2align 6
.amdhsa_kernel {k}
  .amdhsa_next_free_vgpr 256
  .amdhsa_next_free_sgpr 102
  .amdhsa_accum_offset 256
  .amdhsa_group_segment_fixed_size 0
  .amdhsa_kernarg_size 104
  .amdhsa_user_sgpr_count 2
  .amdhsa_user_sgpr_kernarg_segment_ptr 1
  .amdhsa_system_sgpr_workgroup_id_x 1
.end_amdhsa_kernel
'''
    return txt


if __name__ == "__main__":
    args = sys.argv[2:]
    Ctx.stamps = "stamps" in args
    Opt.rot = "norot" not in args
    Opt.codepf = "nocodepf" not in args
    for a in args:
        if a.startswith("probe="):
            Opt.probe = tuple(int(x) for x in a[6:].split(","))
        if a.startswith("holdwg="):
            Opt.holdwg = int(a[7:])
        if a.startswith("osc="):
            Opt.osc = a[4:].replace("_", " ")
        if a.startswith("oscb="):
            Opt.oscb = a[5:].replace("_", " ")
        if a.startswith("hold="):
            Opt.hold = int(a[5:])
        if a.startswith("dA="):
            Opt.dA = int(a[3:])
        if a.startswith("dB="):
            Opt.dB = int(a[3:])
        if a == "nowomall":
            Opt.womall = False
        if a == "noppoll":
            Opt.ppoll = False
        if a.startswith("psleep="):
            Opt.psleep = int(a[7:])
        if a.startswith("wopf="):
            Opt.wopf = a[5:]
    for a in args:
        if a.startswith("LA="):
            Opt.LA = int(a[3:])
    open(sys.argv[1], "w").write(build())
```

```python
import sys
from asm import Asm, vr, ar, sr
from roles import (WS_PHIQ, WS_PART, WS_O, WS_KVT, WS_YT, WS_STAMP, WS_SIZE, S_X, S_W, S_WPHI, S_WO, S_BQ, S_BK, S_BV,
                   S_SH, S_SSK, S_SSD, S_OUT, S_DBG, S_WS, NB_X, NB_W, NB_WPHI, NB_WO, NB_SH, NB_SSK, NB_OUT, LOG2E,
                   Ctx, load_kernargs, srd, stamp, stamp_init, softmax20)

NAME = "concat_heads__linear_kernel_hedgehog__ssm_conv_h3__prompt"
WS_PQ = WS_PHIQ
WS_FLAG = 0xF00000
F1, F2, F3, F0, F4 = (WS_FLAG + 128 * o for o in (0, 512, 1024, 1536, 1856))
WS_EPOCH = WS_FLAG + 128 * 2560 + 64
SWS = 44
SC = " sc1"
TAG = 30
SLOT = 36864
L_WP = 147456
L_Z = L_WP + 8192
L_SYNC = L_Z + 4096
L_V = 128 * 336
L_WOB = 65536
L_OT = 65536
CV_LDS = 8768
L_QCV = 3 * SLOT
B_PRE = 6 * CV_LDS


class Opt:
    rot = True
    LA = 2
    nt_s = " nt"
    codepf = True
    wopf = "no"
    osc = " sc1 nt"
    oscb = " sc1 nt"
    hp = 0
    ppoll = False
    womall = True
    probe = None
    dA = 0
    hold = 0
    holdwg = -1
    dB = 0
    psleep = 2


_stamp0 = stamp


def stamp(A, k, real=False):
    if Opt.hp:
        if k == Opt.hp:
            A("s_memrealtime s[64:65]")
        return
    _stamp0(A, k, real)


def end_wave(A, holdable=False):
    if Opt.hp:
        if holdable:
            L = A.newlabel("L_hp")
            A("s_cmp_lt_u32 s99, 8")
            A("s_cbranch_scc1 L_exit")
            A.label(L)
            A("s_sleep 4")
            A("s_memrealtime s[66:67]")
            A("s_waitcnt lgkmcnt(0)")
            A("s_sub_u32 s66, s66, s64")
            A("s_cmp_lt_u32 s66, 2000")
            A(f"s_cbranch_scc1 {L}")
    elif Ctx.stamps:
        stamp(A, 15, True)
        A("s_waitcnt lgkmcnt(0)")
        A("s_mov_b64 exec, -1")
        A("v_mov_b32 v2, 0")
        for k in range(16):
            A(f"v_writelane_b32 v2, s{64+2*k}, {k}")
        A("s_lshl_b32 s62, s2, 3")
        A("s_add_u32 s62, s62, s100")
        A("s_lshl_b32 s62, s62, 6")
        A(f"s_add_u32 s62, s62, {WS_STAMP:#x}")
        A("v_lshlrev_b32 v1, 2, v1")
        A("s_mov_b64 exec, 0xffff")
        A(f"buffer_store_dword v2, v1, s[{SWS}:{SWS+3}], s62 offen")
        if Opt.probe:
            Lp = A.newlabel("L_probe")
            A(f"s_cmp_eq_u32 s2, {Opt.probe[0]}")
            A(f"s_cbranch_scc0 {Lp}")
            A(f"s_cmp_eq_u32 s100, {Opt.probe[1]}")
            A(f"s_cbranch_scc0 {Lp}")
            A("v_subrev_u32 v3, s66, v2")
            A("s_sub_u32 s62, s94, s64")
            A("v_writelane_b32 v3, s62, 15")
            A("v_cmp_ne_u32 vcc, 0, v2")
            A("v_cndmask_b32 v3, 0, v3, vcc")
            A("s_mov_b64 exec, 0xfffc")
            A(f"global_store_dword v1, v3, s[{S_DBG}:{S_DBG+1}]")
            A.label(Lp)
    A("s_endpgm")


def stampw(A, k):
    stamp(A, k)
    if Ctx.stamps:
        A("s_waitcnt lgkmcnt(0)")


def poll(A, vt, voff, soff, sleep=1):
    L, Ld = A.newlabel("L_poll"), A.newlabel("L_polld")
    A("s_movk_i32 s101, 0x4000")
    A.label(L)
    A(f"buffer_load_dwordx2 {vr(vt,2)}, v{voff}, s[{SWS}:{SWS+3}], {soff} offen{SC}")
    A("s_waitcnt vmcnt(0)")
    A(f"v_cmp_eq_u64 vcc, s[{TAG}:{TAG+1}], {vr(vt,2)}")
    A("s_cmp_eq_u64 vcc, -1")
    A(f"s_cbranch_scc1 {Ld}")
    A(f"s_sleep {sleep}")
    A("s_sub_u32 s101, s101, 1")
    A("s_cmp_eq_u32 s101, 0")
    A(f"s_cbranch_scc0 {L}")
    A("s_endpgm")
    A.label(Ld)


def ppoll(A, vt, voff, soff, sleep=1, depth=4):
    if not Opt.ppoll:
        return poll(A, vt, voff, soff, sleep=sleep)
    L, Ld = A.newlabel("L_pp"), A.newlabel("L_ppd")
    ld = lambda k: f"buffer_load_dwordx2 {vr(vt+2*k,2)}, v{voff}, s[{SWS}:{SWS+3}], {soff} offen{SC}"
    A("s_movk_i32 s101, 0x4000")
    for k in range(depth - 1):
        A(ld(k))
        A(f"s_sleep {sleep}")
    A.label(L)
    for k in range(depth):
        A(ld((k + depth - 1) % depth))
        A(f"s_waitcnt vmcnt({depth-1})")
        A(f"v_cmp_eq_u64 vcc, s[{TAG}:{TAG+1}], {vr(vt+2*k,2)}")
        A("s_cmp_eq_u64 vcc, -1")
        A(f"s_cbranch_scc1 {Ld}")
        A(f"s_sleep {sleep}")
    A("s_sub_u32 s101, s101, 1")
    A("s_cmp_eq_u32 s101, 0")
    A(f"s_cbranch_scc0 {L}")
    A("s_endpgm")
    A.label(Ld)


def set_flag(A, vt, soff):
    A(f"v_mov_b32 v{vt}, s{TAG}")
    A(f"v_mov_b32 v{vt+1}, s{TAG+1}")
    A(f"v_lshlrev_b32 v{vt+2}, 3, v1")
    A("s_waitcnt vmcnt(0)")
    A("s_mov_b64 exec, 0xffff")
    A(f"buffer_store_dwordx2 {vr(vt,2)}, v{vt+2}, s[{SWS}:{SWS+3}], {soff} offen{SC}")
    A("s_mov_b64 exec, -1")


def tag_issue(A):
    A(f"s_load_dwordx2 s[{TAG}:{TAG+1}], s[{S_DBG}:{S_DBG+1}], 0")


def tag_check(A, vt):
    L, Ld = A.newlabel("L_hs"), A.newlabel("L_hsd")
    A("s_waitcnt lgkmcnt(0)")
    A(f"s_cmp_lg_u32 s{TAG}, s{TAG+1}")
    A(f"s_cbranch_scc1 {Ld}")
    A("s_movk_i32 s101, 0x4000")
    A(f"v_mov_b32 v{vt+2}, 0")
    A.label(L)
    A(f"global_load_dwordx2 {vr(vt,2)}, v{vt+2}, s[{S_DBG}:{S_DBG+1}]{SC}")
    A("s_waitcnt vmcnt(0)")
    A(f"v_readfirstlane_b32 s{TAG}, v{vt}")
    A(f"v_readfirstlane_b32 s{TAG+1}, v{vt+1}")
    A("s_nop 3")
    A(f"s_cmp_lg_u32 s{TAG}, s{TAG+1}")
    A(f"s_cbranch_scc1 {Ld}")
    A("s_sleep 8")
    A("s_sub_u32 s101, s101, 1")
    A("s_cmp_eq_u32 s101, 0")
    A(f"s_cbranch_scc0 {L}")
    A("s_endpgm")
    A.label(Ld)


def lds_arrive(A, vt, addr):
    A(f"v_mov_b32 v{vt}, {addr}")
    A(f"v_mov_b32 v{vt+1}, 1")
    A("s_waitcnt lgkmcnt(0)")
    A("s_mov_b64 exec, 1")
    A(f"ds_add_u32 v{vt}, v{vt+1}")
    A("s_mov_b64 exec, -1")


def lds_wait(A, vt, addr, n, sleep=0):
    L, Ld = A.newlabel("L_lw"), A.newlabel("L_lwd")
    if addr is not None:
        A(f"v_mov_b32 v{vt}, {addr}")
    A("s_mov_b32 s101, 0x40000")
    A.label(L)
    A(f"ds_read_b32 v{vt+1}, v{vt}")
    A("s_waitcnt lgkmcnt(0)")
    A(f"v_cmp_le_u32 vcc, {n}, v{vt+1}")
    A(f"s_cbranch_vccnz {Ld}")
    if sleep:
        A(f"s_sleep {sleep}")
    A("s_sub_u32 s101, s101, 1")
    A("s_cmp_eq_u32 s101, 0")
    A(f"s_cbranch_scc0 {L}")
    A("s_endpgm")
    A.label(Ld)


class Lgkm:
    def __init__(self, A):
        self.A, self.n, self.done, self.tag = A, 0, 0, {}

    def issue(self, text, tag=None):
        self.A(text)
        self.n += 1
        if tag is not None:
            self.tag[tag] = self.n

    def wait(self, *tags):
        need = max(self.tag[t] for t in tags)
        if need > self.done:
            self.A(f"s_waitcnt lgkmcnt({min(15, self.n - need)})")
            self.done = max(need, self.n - 15)

    def all(self):
        if self.done < self.n:
            self.A("s_waitcnt lgkmcnt(0)")
            self.done = self.n


def o_index(A):
    A("s_sub_u32 s63, s99, 8")
    A("s_lshr_b32 s62, s63, 2")
    A("s_lshl_b32 s3, s98, 2")
    A("s_add_u32 s62, s62, s3")
    A("s_and_b32 s63, s63, 3")
    A("s_lshl_b32 s63, s63, 2")
    A("s_add_u32 s63, s63, s48")


def role_loader(A):
    SX, SW, SP = 32, 36, 40
    VX, VW = 24, 28
    t0, t1, t2, t3 = 11, 12, 13, 14
    A("s_setprio 1")
    A(f"v_lshrrev_b32 v{t0}, 3, v1")
    A(f"v_mul_u32_u24 v{t0}, 1280, v{t0}")
    A(f"v_lshrrev_b32 v{t1}, 4, v1")
    A(f"v_and_b32 v{t2}, 7, v1")
    A(f"v_xor_b32 v{t1}, v{t1}, v{t2}")
    A(f"v_xor_b32 v{t2}, 4, v{t1}")
    A(f"v_lshl_add_u32 v{VX}, v{t1}, 4, v{t0}")
    A(f"v_lshl_add_u32 v{VX+1}, v{t2}, 4, v{t0}")
    A(f"v_add_u32 v{VX+2}, {2*(8*1280-1024)}, v{VX}")
    A(f"v_add_u32 v{VX+3}, {3*(8*1280-1024)}, v{VX+1}")
    A(f"v_add_u32 v{VX+1}, {8*1280-1024}, v{VX+1}")
    A("s_lshl_b32 s60, s49, 2")
    A("s_add_u32 s60, s60, s48")
    A(f"s_mul_i32 s60, s60, {32*1280}")
    if Opt.rot:
        A("s_lshl_b32 s30, s49, 2")
        A("s_bfe_u32 s30, s30, 0x40000")
        A("s_lshr_b32 s30, 0x8530, s30")
        A("s_and_b32 s30, s30, 15")
        A("s_and_b32 s31, s99, 28")
        A("s_lshr_b32 s31, 0x875320, s31")
        A("s_and_b32 s31, s31, 15")
        A("s_add_u32 s30, s30, s31")
        A("s_sub_u32 s31, s30, 10")
        A("s_cmp_ge_u32 s30, 10")
        A("s_cselect_b32 s30, s31, s30")
        A("s_lshl_b32 s31, s30, 7")
        A("s_add_u32 s60, s60, s31")
    A("s_lshl_b32 s62, s48, 12")
    A("s_mov_b32 m0, s62")
    A(f"s_mov_b32 s{SX+2}, {NB_X:#x}")
    A(f"s_mov_b32 s{SX+3}, 0x20000")
    A("s_waitcnt lgkmcnt(0)")
    A(f"s_mov_b64 s[{SX}:{SX+1}], s[{S_X}:{S_X+1}]")

    def dma_x(s):
        if s:
            A(f"s_add_u32 m0, s62, {(s % 3) * SLOT}")
        for i in range(4):
            A(f"buffer_load_dwordx4 v{VX+i}, s[{SX}:{SX+3}], s60 offen offset:{1024*i} lds")

    def dma_w(s):
        sl = (s % 3) * SLOT
        A(f"s_add_u32 m0, s63, {sl}")
        for i in range(4):
            A(f"buffer_load_dwordx4 v{VW+i}, s[{SW}:{SW+3}], s61 offen offset:{1024*i} lds")
        A(f"s_add_u32 m0, s63, {sl+4096}")
        A(f"buffer_load_dwordx4 v{VW+4}, s[{SW}:{SW+3}], s61 offen lds")
        if s < 9:
            if Opt.rot:
                A("s_add_u32 s30, s30, 1")
                A("s_cmp_eq_u32 s30, 10")
                A(f"s_cselect_b32 s31, {(-1152)&0xffffffff:#x}, s97")
                A(f"s_cselect_b32 s3, {(-9*64*3840)&0xffffffff:#x}, s96")
                A("s_add_u32 s60, s60, s31")
                A("s_add_u32 s61, s61, s3")
            else:
                A("s_add_u32 s60, s60, 128")
                A(f"s_add_u32 s61, s61, {64*3840}")

    dma_x(0)
    A("s_cmp_eq_u32 s51, 0")
    A("s_cselect_b32 s56, 1120, 0")
    A(f"v_lshlrev_b32 v{t3}, 4, v1")
    A(f"v_mul_u32_u24 v{t2}, 6554, v1")
    A("s_movk_i32 s57, 3520")
    for i in range(5):
        if i:
            A(f"v_add_u32 v{t2}, {64*6554}, v{t2}")
        A(f"v_lshrrev_b32 v{t0}, 17, v{t2}")
        A(f"v_bfe_u32 v{t1}, v{t2}, 16, 1")
        A(f"v_mad_u32_u24 v{t0}, v{t0}, s57, v{t3}")
        A(f"v_mad_u32_u24 v{VW+i}, v{t1}, s56, v{t0}")
    A(f"v_add_u32 v{VW+4}, 4096, v{VW+4}")
    A(f"s_mul_i32 s61, s48, {16*3840}")
    A("s_mul_i32 s57, s50, 160")
    A("s_add_u32 s58, s57, 1280")
    A("s_lshl_b32 s57, s57, 1")
    A("s_cmp_eq_u32 s51, 0")
    A("s_cselect_b32 s57, s58, s57")
    A("s_add_u32 s61, s61, s57")
    if Opt.rot:
        A(f"s_mov_b32 s96, {64*3840}")
        A("s_movk_i32 s97, 128")
        A("s_mul_i32 s31, s30, s96")
        A("s_add_u32 s61, s61, s31")
    A("s_mul_i32 s63, s48, 5120")
    A("s_add_u32 s63, s63, 16384")
    srd(A, SW, S_W, NB_W)
    dma_w(0)
    stamp(A, 2)
    A("s_mul_i32 s57, s50, 3200")
    A("s_lshl_b32 s57, s57, s51")
    A("s_lshl_b32 s58, s48, 11")
    A("s_add_u32 s57, s57, s58")
    srd(A, SP, S_WPHI, NB_WPHI)
    A(f"s_add_u32 m0, s58, {L_WP}")
    A(f"buffer_load_dwordx4 v{t3}, s[{SP}:{SP+3}], s57 offen lds")
    A(f"buffer_load_dwordx4 v{t3}, s[{SP}:{SP+3}], s57 offen offset:1024 lds")
    srd(A, SWS, S_WS, WS_SIZE)
    Lh = A.newlabel("L_noh")
    A("s_cmp_eq_u32 s51, 0")
    A(f"s_cbranch_scc1 {Lh}")
    A("s_mul_i32 s49, s98, 80")
    A("s_lshl_b32 s50, s99, 2")
    A("s_add_u32 s49, s49, s50")
    A("s_add_u32 s49, s49, s48")
    A("s_add_u32 s49, s49, 48")
    A(f"s_mul_i32 s56, s48, {CV_LDS}")
    A(f"s_add_u32 s56, s56, {L_QCV}")
    conv_load_h(A, t3)
    A.label(Lh)
    assert Opt.LA == 2
    issued = 0
    for s in range(10):
        while issued < min(s + Opt.LA - 1, 9):
            issued += 1
            dma_x(issued)
            dma_w(issued)
        if s == 0:
            Ls = A.newlabel("L_nosetup")
            A("s_cmp_ge_u32 s99, 8")
            A(f"s_cbranch_scc1 {Ls}")
            conv_setup(A)
            f0_lines(A, 49, 49, 12)
            A.label(Ls)
        if s == 9:
            tag_issue(A)
        A(f"s_waitcnt vmcnt({9*(issued-s)})")
        A("s_barrier")
        if s in (0, 3, 6, 9):
            stamp(A, 3 + s // 3)
    A("s_setprio 0")
    A("s_cmp_lt_u32 s99, 8")
    A("s_cbranch_scc1 L_conv")
    role_wo(A)


def role_wo(A):
    SO, SWO = 32, 36
    WR = 64
    A.label("L_wo")
    srd(A, SWO, S_WO, NB_WO)
    if Opt.wopf == "kv":
        Ls = A.newlabel("L_nopf")
        A("s_cmp_lt_u32 s99, 8")
        A(f"s_cbranch_scc1 {Ls}")
        A("s_lshl_b32 s52, s99, 2")
        A("s_add_u32 s52, s52, s48")
        A("s_sub_u32 s52, s52, 32")
        A("s_lshl_b32 s52, s52, 13")
        A(f"s_add_u32 s53, s52, {64*8192}")
        A("v_lshlrev_b32 v2, 7, v1")
        A(f"buffer_load_dword v24, v2, s[{SWO}:{SWO+3}], s52 offen")
        A(f"buffer_load_dword v25, v2, s[{SWO}:{SWO+3}], s53 offen")
        A.label(Ls)
    A("v_lshrrev_b32 v2, 2, v1")
    A("v_and_b32 v3, 3, v1")
    A("v_mul_u32_u24 v4, 1280, v2")
    A("v_lshl_add_u32 v4, v3, 4, v4")
    for i in range(1, 4):
        A(f"v_add_u32 v{4+i}, {i*(16*1280-1024)}, v4")
    A(f"v_add_u32 v8, {4*16*1280}, v4")
    A("s_lshr_b32 s50, s99, 2")
    A("s_sub_u32 s50, s50, 1")
    A("s_max_i32 s50, s50, 0")
    A("s_lshl_b32 s52, s50, 8")
    A("s_lshl_b32 s53, s48, 6")
    A("s_add_u32 s52, s52, s53")
    A("s_mov_b32 s51, s52")
    A("s_mul_i32 s53, s48, 20480")
    A("s_cmp_lt_u32 s99, 8")
    A(f"s_cselect_b32 s54, 0, {L_WOB}")
    A("s_add_u32 s53, s53, s54")

    def cbuf(c):
        return 5120 + ((c + 1) % 3) * 5120

    def chunk(c):
        b = cbuf(c)
        A(f"s_add_u32 m0, s53, {b}")
        for i in range(4):
            A(f"buffer_load_dwordx4 v{4+i}, s[{SWO}:{SWO+3}], s51 offen offset:{1024*i} lds")
        A(f"s_add_u32 m0, s53, {b+4096}")
        A(f"buffer_load_dwordx4 v8, s[{SWO}:{SWO+3}], s51 offen lds")
        A(f"s_add_u32 s51, s51, {80*1280}")

    Lj = A.newlabel("L_woj")
    chunk(0)
    A("s_cmp_lt_u32 s99, 8")
    A(f"s_cbranch_scc1 {Lj}")
    A("s_barrier")
    A.label(Lj)
    chunk(1)
    chunk(2)
    A("v_bfe_u32 v10, v1, 2, 2")
    A("v_lshrrev_b32 v11, 5, v1")
    A("v_and_b32 v12, 1, v1")
    A("v_lshlrev_b32 v12, 5, v12")
    A("v_bfe_u32 v13, v1, 4, 1")
    A("v_lshl_add_u32 v12, v13, 4, v12")
    A("v_bfe_u32 v13, v1, 1, 1")
    A("v_lshl_add_u32 v12, v13, 3, v12")
    A("v_lshl_add_u32 v12, v10, 6, v12")
    A("v_add_u32 v12, s53, v12")
    A("v_lshl_add_u32 v13, v11, 8, v12")
    A("v_mul_u32_u24 v14, 2560, v11")
    A("v_add_u32 v14, v14, v12")
    A("v_and_b32 v9, 31, v1")
    A("v_lshrrev_b32 v15, 4, v1")
    A("v_lshlrev_b32 v15, 7, v15")
    A("v_lshlrev_b32 v18, 4, v1")
    o_index(A)
    tag_check(A, 20)

    def take(c):
        b = cbuf(c)
        for hh in range(4):
            for half in range(2):
                A(f"ds_read_b64_tr_b16 {vr(WR+4*(4*c+hh)+2*half,2)}, v13 offset:{b+(20*hh+8*half)*64}")
        for half in range(2):
            A(f"ds_read_b64_tr_b16 {vr(WR+128+4*c+2*half,2)}, v14 offset:{b+(20*half+16)*64}")

    Lq2 = A.newlabel("L_woq")
    for c in range(6):
        A("s_waitcnt vmcnt(10)")
        take(c)
        A("s_waitcnt lgkmcnt(0)")
        if c + 3 < 8:
            chunk(c + 3)
    stamp(A, 14)
    A("s_cmp_lt_u32 s99, 8")
    A(f"s_cbranch_scc1 {Lq2}")
    A("s_lshr_b32 s54, s62, 3")
    A("s_lshl_b32 s54, s54, 4")
    A("s_add_u32 s54, s54, s63")
    A("s_lshl_b32 s54, s54, 9")
    A(f"s_add_u32 s54, s54, {F2:#x}")
    A("s_lshl_b32 s55, s62, 4")
    A("s_add_u32 s55, s55, s63")
    A("s_mul_i32 s55, s55, 5120")
    poll(A, 16, 15, "s54", sleep=4)
    A("s_mov_b32 m0, s53")
    A("s_add_u32 s54, s55, 4096")
    for i in range(4):
        A(f"buffer_load_dwordx4 v18, s[{SWS}:{SWS+3}], s55 offen offset:{1024*i}{SC} lds")
    A("s_add_u32 m0, s53, 4096")
    A(f"buffer_load_dwordx4 v18, s[{SWS}:{SWS+3}], s54 offen{SC} lds")
    A("s_lshl_b32 s54, s48, 2")
    A(f"s_add_u32 s54, s54, {L_SYNC+16}")
    A("s_waitcnt vmcnt(0)")
    lds_arrive(A, 16, "s54")
    stamp(A, 7)
    A("s_lshl_b32 s54, s62, 2")
    A("s_add_u32 s54, s54, s48")
    A("s_mul_i32 s55, s54, 10240")
    A(f"s_add_u32 s55, s55, {WS_PART:#x}")
    A("s_lshl_b32 s54, s54, 9")
    A(f"s_add_u32 s54, s54, {F1:#x}")
    A("v_min_u32 v19, 20, v9")
    A("v_and_b32 v20, 32, v1")
    A("v_add_u32 v19, v19, v20")
    A("v_lshlrev_b32 v20, 3, v19")
    A("v_lshlrev_b32 v19, 4, v19")
    A("v_add_u32 v21, s53, v18")
    A("v_add_u32 v21, 5120, v21")
    A("s_mov_b32 s59, 0xffff0000")
    lds_wait(A, 16, L_SYNC + 4, 4, sleep=2)
    ppoll(A, 244, 15, "s54", sleep=Opt.psleep)
    stamp(A, 12)
    PR = [24, 34, 44, 54]
    SM, TP = 224, 244
    for p in range(4):
        A(f"buffer_load_dwordx4 {vr(PR[p],4)}, v19, s[{SWS}:{SWS+3}], s55 offen{SC}")
        A(f"buffer_load_dwordx4 {vr(PR[p]+4,4)}, v19, s[{SWS}:{SWS+3}], s55 offen offset:1024{SC}")
        A(f"buffer_load_dwordx2 {vr(PR[p]+8,2)}, v20, s[{SWS}:{SWS+3}], s55 offen offset:2048{SC}")
        if p < 3:
            A("s_add_u32 s55, s55, 2560")
    A("s_setprio 3")
    for p in range(4):
        A(f"s_waitcnt vmcnt({9-3*p})")
        for i in range(10):
            d = SM + 2 * i if p == 0 else TP + 2 * (i % 5)
            A(f"v_lshlrev_b32 v{d}, 16, v{PR[p]+i}")
            A(f"v_and_b32 v{d+1}, s59, v{PR[p]+i}")
            if p:
                A(f"v_pk_add_f32 {vr(SM+2*i,2)}, {vr(SM+2*i,2)}, {vr(d,2)}")
    for q in range(5):
        A(f"ds_write_b128 v21, {vr(SM+4*q,4)} offset:{1024*q}")
    lds_arrive(A, 16, L_SYNC + 8)
    A("s_setprio 0")
    stamp(A, 13)
    A.label(Lq2)
    A("s_waitcnt vmcnt(0)")
    take(6)
    take(7)
    srd(A, SO, S_OUT, NB_OUT)
    A("s_and_b32 s54, s99, 3")
    A("s_lshl_b32 s55, s98, 2")
    A("s_add_u32 s54, s54, s55")
    A("s_lshr_b32 s55, s54, 1")
    A("s_lshl_b32 s55, s55, 12")
    A(f"s_add_u32 s55, s55, {F3:#x}")
    A("s_lshl_b32 s57, s48, 10")
    A("s_add_u32 s55, s55, s57")
    A("v_lshrrev_b32 v15, 3, v1")
    A("v_lshlrev_b32 v15, 7, v15")
    A("s_mul_i32 s57, s54, 81920")
    A(f"s_add_u32 s57, s57, {WS_O:#x}")
    A("s_lshr_b32 s58, s48, 1")
    A("s_mul_i32 s58, s58, 40960")
    A("s_and_b32 s59, s48, 1")
    A("s_lshl_b32 s59, s59, 12")
    A("s_add_u32 s58, s58, s59")
    A("s_add_u32 s57, s57, s58")
    A(f"s_add_u32 s58, s58, {L_OT}")
    A("v_mov_b32 v5, v18")
    A(f"v_add_u32 v6, {L_OT}, v5")
    A(f"v_add_u32 v7, {L_OT+40960}, v5")
    A("v_lshlrev_b32 v10, 3, v9")
    A("v_lshl_add_u32 v10, v11, 9, v10")
    A(f"v_add_u32 v10, {L_OT+32768}, v10")
    A("s_mul_i32 s56, s48, 5120")
    A("s_waitcnt lgkmcnt(0)")
    A("v_mul_u32_u24 v12, 80, v9")
    A("v_lshl_add_u32 v12, v11, 5, v12")
    A("v_add_u32 v12, s56, v12")
    A("v_mul_u32_u24 v13, 80, v2")
    A("v_lshl_add_u32 v13, v3, 4, v13")
    A("v_add_u32 v13, s56, v13")
    A("v_mul_u32_u24 v14, 2560, v2")
    A("v_lshl_add_u32 v14, v3, 4, v14")
    A(f"s_mul_i32 s59, s54, {64*2560}")
    A("s_add_u32 s59, s59, s52")
    lds_wait(A, 16, L_SYNC + 12, 4, sleep=2)
    stamp(A, 8)
    ppoll(A, 48, 15, "s55", sleep=Opt.psleep)
    A("s_barrier")
    stamp(A, 9)
    for k in range(5):
        A(f"s_add_u32 m0, s58, {8192*k}")
        for i in range(4):
            A(f"buffer_load_dwordx4 v5, s[{SWS}:{SWS+3}], s57 offen offset:{1024*i}{SC} lds")
        if k < 4:
            A("s_add_u32 s57, s57, 8192")
    if Ctx.stamps:
        A("s_waitcnt lgkmcnt(0)")
    ACC = (16, 32)
    OFB = 224
    T = Lgkm(A)

    def rdx(f):
        if f % 8 == 0:
            A(f"s_waitcnt vmcnt({16 - 4*(f//8)})")
            A("s_barrier")
        for t in range(2):
            d = OFB + 4 * ((2 * f + t) % 8)
            if f < 32:
                T.issue(f"ds_read_b128 {vr(d,4)}, v{6+t} offset:{1024*f}", (f, t))
            else:
                a = f - 32
                T.issue(f"ds_read_b64 {vr(d,2)}, v10 offset:{40960*t + 1024*a}")
                T.issue(f"ds_read_b64 {vr(d+2,2)}, v10 offset:{40960*t + 1024*a + 256}", (f, t))

    for f in range(3):
        rdx(f)
    for f in range(40):
        for t in range(2):
            T.wait((f, t))
            c = vr(ACC[t], 16) if f else "0"
            A(f"v_mfma_f32_32x32x16_bf16 {vr(ACC[t],16)}, {vr(WR+4*f,4)}, {vr(OFB+4*((2*f+t)%8),4)}, {c}")
            if t == 0 and f + 3 < 40:
                rdx(f + 3)
    stamp(A, 10)
    for t in range(2):
        for i in range(8):
            A(f"v_cvt_pk_bf16_f32 v{48+8*t+i}, v{ACC[t]+2*i}, v{ACC[t]+2*i+1}")
        for i in range(2):
            A(f"ds_write_b128 v12, {vr(48+8*t+4*i,4)} offset:{2560*t+16*i}")
    A("s_waitcnt lgkmcnt(0)")
    for i in range(4):
        A(f"ds_read_b128 {vr(64+4*i,4)}, v13 offset:{1280*i}")
    for i in range(4):
        A(f"s_waitcnt lgkmcnt({3-i})")
        A(f"buffer_store_dwordx4 {vr(64+4*i,4)}, v14, s[{SO}:{SO+3}], s59 offen{Opt.osc}")
        if i < 3:
            A(f"s_add_u32 s59, s59, {16*2560}")
    stamp(A, 11)
    end_wave(A, True)


def role_compute(A):
    XA, WA, AD = 144, 152, 154
    ACC = 16
    WF = (96, 116)
    XF = (136, 140)
    t0, t1, t2, t3 = 11, 12, 13, 14
    for i in range(80):
        A(f"v_mov_b32 v{ACC+i}, 0")
    A(f"v_and_b32 v{t0}, 255, v0")
    A(f"v_lshlrev_b32 v{t0}, 4, v{t0}")
    A(f"v_add_u32 v{t0}, {L_Z}, v{t0}")
    A(f"ds_write_b128 v{t0}, {vr(ACC,4)}")
    A(f"ds_write_b128 v{t0}, {vr(ACC,4)} offset:64")
    A("s_lshl_b32 s54, s48, 12")
    A(f"v_and_b32 v{t0}, 31, v1")
    A(f"v_lshrrev_b32 v{t1}, 5, v1")
    A(f"v_bfe_u32 v{t2}, v1, 1, 3")
    A(f"v_xor_b32 v{t2}, v{t2}, v{t1}")
    A(f"v_lshlrev_b32 v{t2}, 4, v{t2}")
    A(f"v_lshl_add_u32 v{t2}, v{t0}, 7, v{t2}")
    A(f"v_add_u32 v{XA}, s54, v{t2}")
    for t in range(1, 4):
        A(f"v_xor_b32 v{XA+t}, {32*t}, v{XA}")
    for t in range(4):
        A(f"v_add_u32 v{XA+4+t}, {2*SLOT}, v{XA+t}")
    R8, JJ, HH = 158, 159, 160
    A(f"v_bfe_u32 v{t0}, v1, 2, 2")
    A(f"v_lshl_add_u32 v{R8}, v{t1}, 3, v{t0}")
    A(f"v_bfe_u32 v{t2}, v1, 4, 1")
    A(f"v_bfe_u32 v{t3}, v1, 1, 1")
    A(f"v_lshl_add_u32 v{JJ}, v{t2}, 1, v{t3}")
    A(f"v_and_b32 v{HH}, 1, v1")
    A(f"v_mul_u32_u24 v{t2}, 320, v{R8}")
    A(f"v_mul_u32_u24 v{t3}, 160, v{HH}")
    A(f"v_lshl_add_u32 v{t3}, v{JJ}, 3, v{t3}")
    A(f"v_add_u32 v{WA}, v{t2}, v{t3}")
    A(f"v_add_u32 v{WA}, 16384, v{WA}")
    A(f"v_add_u32 v{WA+1}, {2*SLOT}, v{WA}")
    A("s_movk_i32 s57, 1600")
    A("s_lshl_b32 s57, s57, s51")
    A(f"v_mul_u32_u24 v{t2}, s57, v{HH}")
    A(f"v_mul_u32_u24 v{t3}, 40, v{t0}")
    A(f"v_add_u32 v{t2}, v{t2}, v{t3}")
    A(f"v_lshl_add_u32 v{t2}, v{JJ}, 3, v{t2}")
    A(f"v_add_u32 v{t2}, {L_WP}, v{t2}")
    A(f"v_mov_b32 v{t3}, {L_Z}")
    A(f"v_cmp_eq_u32 vcc, v{HH}, v{t1}")
    A(f"v_cndmask_b32 v{AD}, v{t3}, v{t2}, vcc")
    A(f"v_add_u32 v{t0}, 24, v{t2}")
    A(f"v_cndmask_b32 v{AD+3}, v{t3}, v{t0}, vcc")
    A(f"v_cmp_eq_u32 s[58:59], 0, v{JJ}")
    A("s_and_b64 s[62:63], vcc, s[58:59]")
    A("s_andn2_b64 s[58:59], vcc, s[58:59]")
    A(f"v_add_u32 v{t0}, 32, v{t2}")
    A(f"v_cndmask_b32 v{AD+1}, v{t3}, v{t0}, s[62:63]")
    A(f"v_subrev_u32 v{t0}, 8, v{t2}")
    A(f"v_cndmask_b32 v{AD+2}, v{t3}, v{t0}, s[58:59]")
    A(f"v_and_b32 v{t0}, 31, v1")
    A("s_lshl_b32 s57, s48, 5")
    A(f"v_add_u32 v{t0}, s57, v{t0}")
    A(f"v_mul_u32_u24 v8, 176, v{t0}")
    A(f"v_add_u32 v8, {L_V}, v8")
    A(f"v_mul_u32_u24 v{t3}, 80, v{t1}")
    A(f"v_add_u32 v2, v8, v{t3}")
    A(f"v_mul_u32_u24 v{t2}, 336, v{t0}")
    A(f"v_lshl_add_u32 v3, v{t3}, 1, v{t2}")
    A(f"v_mul_u32_u24 v{t0}, 336, v{R8}")
    A(f"v_mul_u32_u24 v{t1}, 5, v{HH}")
    A(f"v_add_u32 v{t1}, v{t1}, v{JJ}")
    A(f"v_lshl_add_u32 v{t0}, v{t1}, 3, v{t0}")
    A("s_mul_i32 s57, s48, 80")
    A(f"v_add_u32 v6, s57, v{t0}")
    A(f"v_lshl_add_u32 v{t0}, v{JJ}, 1, v{HH}")
    A("s_mul_i32 s57, s48, 5")
    A(f"v_add_u32 v{t1}, s57, v{t0}")
    A(f"v_cmp_gt_u32 vcc, 5, v{t0}")
    A(f"v_cndmask_b32 v{t1}, 20, v{t1}, vcc")
    A(f"v_mul_u32_u24 v{t0}, 176, v{R8}")
    A(f"v_lshl_add_u32 v{t0}, v{t1}, 3, v{t0}")
    A(f"v_add_u32 v7, {L_V}, v{t0}")
    A("v_mov_b32 v4, 0x3f803f80")
    A("v_mov_b32 v5, 0x3f803f80")
    WPF = 164
    frags = [(0, 0), (0, 1), (0, 2), (1, 0), (1, 1), (1, 2), (1, 3), (1, 4), (2, 2), (2, 3), (2, 4)]
    for r in (WPF + 4 * 2 + 2, WPF + 4 * 2 + 3, WPF + 4 * 8, WPF + 4 * 8 + 1):
        A(f"v_mov_b32 v{r}, 0")
    A(f"s_mov_b32 s60, {LOG2E:#x}")
    A(f"s_mov_b32 s61, {LOG2E:#x}")
    A("s_waitcnt lgkmcnt(0)")
    srd(A, SWS, S_WS, WS_SIZE)
    A("s_setprio 2")

    def rd_x(s, t, b):
        sl = s % 3
        return f"ds_read_b128 {vr(XF[b],4)}, v{XA + 4*(sl>>1) + t} offset:{(sl&1)*SLOT}"

    def rd_w(s, t, T, half, b):
        sl = s % 3
        return f"ds_read_b64_tr_b16 {vr(WF[b]+4*T+2*half,2)}, v{WA+(sl>>1)} offset:{(sl&1)*SLOT + (16*t+4*half)*320 + 32*T}"

    def wphi_reads(pas):
        L = []
        for fi, (Tp, u) in enumerate(frags):
            for half in range(2):
                dq = 2 * u + half
                r = WPF + 4 * fi + 2 * half
                if (Tp == 0 and dq == 5) or (Tp == 2 and dq == 4):
                    continue
                ad = {(0, 0): AD, (1, 0): AD + 1, (1, 1): AD + 2, (2, 1): AD + 3}[(Tp, dq // 5)]
                L.append(f"ds_read_b64_tr_b16 {vr(r,2)}, v{ad} offset:{dq*160 + pas*1600}")
        return L

    A("s_barrier")
    stampw(A, 3)
    A(rd_x(0, 0, 0))
    for T in range(5):
        A(rd_w(0, 0, T, 0, 0)); A(rd_w(0, 0, T, 1, 0))
    for s in range(10):
        for t in range(4):
            b = t & 1
            last = (s == 9 and t == 3)
            ns, nt = (s, t + 1) if t < 3 else (s + 1, 0)
            prev_remaining = [8, 6, 4, 2, 0]
            issued = 0
            wp = wphi_reads(0) if last else []
            for T in range(5):
                if not (t == 3 and T >= 2):
                    A(f"s_waitcnt lgkmcnt({prev_remaining[T] + issued})")
                A(f"v_mfma_f32_32x32x16_bf16 {vr(ACC+16*T,16)}, {vr(WF[b]+4*T,4)}, {vr(XF[b],4)}, {vr(ACC+16*T,16)}")
                if t < 3:
                    if T == 0:
                        A(rd_x(ns, nt, 1 - b)); issued += 1
                    A(rd_w(ns, nt, T, 0, 1 - b)); A(rd_w(ns, nt, T, 1, 1 - b)); issued += 2
                elif T == 1:
                    A("s_waitcnt lgkmcnt(0)")
                    A("s_barrier")
                    if not last:
                        A(rd_x(ns, nt, 1 - b))
                        for TT in (0, 1):
                            A(rd_w(ns, nt, TT, 0, 1 - b)); A(rd_w(ns, nt, TT, 1, 1 - b))
                    else:
                        for x in wp[:5]:
                            A(x)
                elif T >= 2:
                    if not last:
                        A(rd_w(ns, nt, T, 0, 1 - b)); A(rd_w(ns, nt, T, 1, 1 - b))
                    else:
                        for x in wp[5 * (T - 1):5 * T]:
                            A(x)
    stamp(A, 4)
    tag_issue(A)
    P = 96
    E, F, TT_ = 208, 228, 248

    def phi_mfma(src, acc):
        seen = set()
        for fi, (Tp, u) in enumerate(frags):
            c = vr(acc + 16 * Tp, 16) if Tp in seen else "0"
            seen.add(Tp)
            A(f"v_mfma_f32_32x32x16_bf16 {vr(acc+16*Tp,16)}, {vr(WPF+4*fi,4)}, {vr(src+4*u,4)}, {c}")

    for i in range(40):
        A(f"v_cvt_pk_bf16_f32 v{P+i}, v{ACC+2*i}, v{ACC+2*i+1}")
    Lq = A.newlabel("L_q")
    A("s_cmp_eq_u32 s51, 0")
    A(f"s_cbranch_scc0 {Lq}")
    mq = A.mark()
    for i in range(20):
        A(f"v_permlane32_swap_b32 v{P+i}, v{P+20+i}")
    tag_check(A, 10)
    phi_mfma(P, ACC)
    for i in range(5):
        A(f"ds_write_b128 v2, {vr(P+20+4*i,4)} offset:{16*i}")
    A("ds_write_b64 v8, v[4:5] offset:160")
    for grp, ph in ((0, 64), (1, 96)):
        softmax20(A, ACC + 20 * grp, E, F, TT_, ph)
        for i in range(5):
            A(f"ds_write_b128 v3, {vr(ph+4*i,4)} offset:{80*grp+16*i}")
    stamp(A, 5)
    lds_arrive(A, 10, L_SYNC)
    A("s_lshl_b32 s57, s50, 2")
    A("s_add_u32 s57, s57, s48")
    A("s_lshl_b32 s57, s57, 4")
    A("s_add_u32 s57, s57, s49")
    A("s_lshl_b32 s59, s57, 7")
    A(f"s_add_u32 s59, s59, {F1:#x}")
    A("s_mul_i32 s57, s57, 2560")
    A(f"s_add_u32 s57, s57, {WS_PART:#x}")
    A("v_lshlrev_b32 v2, 4, v1")
    A("v_lshlrev_b32 v3, 3, v1")
    lds_wait(A, 10, None, 4)
    FA = 64
    T = Lgkm(A)
    for u in range(10):
        if u < 8:
            for half in range(2):
                o = (16 * u + 4 * half)
                T.issue(f"ds_read_b64_tr_b16 {vr(FA+12*u+2*half,2)}, v6 offset:{o*336}")
                T.issue(f"ds_read_b64_tr_b16 {vr(FA+12*u+4+2*half,2)}, v6 offset:{o*336+32}")
                T.issue(f"ds_read_b64_tr_b16 {vr(FA+12*u+8+2*half,2)}, v7 offset:{o*176}", u)
        if u >= 2:
            uu = u - 2
            T.wait(uu)
            for TT in range(2):
                c = vr(ACC + 16 * TT, 16) if uu else "0"
                A(f"v_mfma_f32_32x32x16_bf16 {vr(ACC+16*TT,16)}, {vr(FA+12*uu+4*TT,4)}, {vr(FA+12*uu+8,4)}, {c}")
    o_index(A)
    for i in range(10):
        A(f"v_cvt_pk_bf16_f32 v{48+i}, v{ACC+2*i}, v{ACC+2*i+1}")
    A(f"buffer_store_dwordx2 v[56:57], v3, s[{SWS}:{SWS+3}], s57 offen offset:2048{SC}")
    A("s_mov_b32 exec_lo, 0x00ffffff")
    A("s_mov_b32 exec_hi, 0x00ffffff")
    A(f"buffer_store_dwordx4 v[48:51], v2, s[{SWS}:{SWS+3}], s57 offen{SC}")
    A(f"buffer_store_dwordx4 v[52:55], v2, s[{SWS}:{SWS+3}], s57 offen offset:1024{SC}")
    A("s_mov_b64 exec, -1")
    stamp(A, 6)
    role_o(A)
    end_wave(A)
    A.label(Lq)
    hq = A.mark()
    A("s_nop 1")
    tag_check(A, 10)
    phi_mfma(P, ACC)
    A(f"v_and_b32 v{t0}, 31, v1")
    A(f"v_lshrrev_b32 v{t1}, 5, v1")
    A(f"s_mov_b32 s57, {4*64*1280}")
    A(f"v_mul_lo_u32 v{t1}, s57, v{t1}")
    A(f"v_lshl_add_u32 v2, v{t0}, 4, v{t1}")
    A(f"v_lshl_add_u32 v3, v{t0}, 3, v{t1}")
    A("s_lshl_b32 s58, s49, 2")
    A("s_add_u32 s58, s58, s48")
    for x in wphi_reads(1):
        A(x)
    A("s_lshl_b32 s59, s50, 6")
    A("s_add_u32 s59, s59, s58")
    A("s_lshl_b32 s59, s59, 7")
    A(f"s_add_u32 s59, s59, {F2:#x}")
    A("s_lshl_b32 s57, s50, 9")
    A("s_add_u32 s57, s57, s58")
    A("s_mul_i32 s57, s57, 1280")
    A("s_waitcnt lgkmcnt(0)")
    phi_mfma(P + 20, 208)
    for hs in range(4):
        x = (ACC, ACC + 20, 208, 228)[hs]
        o = 64 + 10 * hs if hs < 3 else 96
        for i in range(10):
            A(f"v_cvt_pk_bf16_f32 v{o+i}, v{x+2*i}, v{x+2*i+1}")
        A(f"buffer_store_dwordx4 {vr(o,4)}, v2, s[{SWS}:{SWS+3}], s57 offen{SC}")
        A(f"buffer_store_dwordx4 {vr(o+4,4)}, v2, s[{SWS}:{SWS+3}], s57 offen offset:512{SC}")
        A(f"buffer_store_dwordx2 {vr(o+8,2)}, v3, s[{SWS}:{SWS+3}], s57 offen offset:1024{SC}")
        if hs < 3:
            A(f"s_add_u32 s57, s57, {64*1280}")
    stamp(A, 6)
    set_flag(A, 10, "s59")
    stamp(A, 7)
    A.check_seam(mq, hq)
    A("s_setprio 0")
    A("s_cmp_lt_u32 s99, 4")
    A("s_cbranch_scc1 L_wo")
    if Opt.hold:
        if Opt.holdwg >= 0:
            A(f"s_cmp_eq_u32 s2, {Opt.holdwg}")
            A("s_cbranch_scc0 L_exit")
        A.label("L_hold")
        A("s_sleep 4")
        A("s_memrealtime s[66:67]")
        A("s_waitcnt lgkmcnt(0)")
        A("s_sub_u32 s66, s66, s64")
        A(f"s_cmp_lt_u32 s66, {Opt.hold}")
        A("s_cbranch_scc1 L_hold")
    end_wave(A)


def role_o(A):
    NT = 4
    RAW, X, PQ = 64, 104, 128
    A("s_mul_i32 s53, s48, 20480")
    A(f"s_add_u32 s53, s53, {L_WOB}")
    A("v_and_b32 v4, 31, v1")
    A("v_lshl_add_u32 v5, v4, 4, s53")
    A("v_lshl_add_u32 v6, v4, 3, s53")
    A("v_and_b32 v7, 32, v1")
    A("v_lshlrev_b32 v7, 26, v7")
    A("s_lshl_b32 s54, s48, 2")
    A(f"s_add_u32 s54, s54, {L_SYNC+16}")
    A("s_mov_b32 s58, 0xffff0000")
    for t in range(NT):
        A(f"v_mov_b32 v{PQ+12*t+10}, 0")
        A(f"v_mov_b32 v{PQ+12*t+11}, 0")
    set_flag(A, 10, "s59")
    lds_arrive(A, 14, L_SYNC + 4)
    stamp(A, 7)
    lds_wait(A, 14, "s54", 1)
    stampw(A, 8)
    T = Lgkm(A)
    for t in range(NT):
        T.issue(f"ds_read_b128 {vr(RAW+10*t,4)}, v5 offset:{1280*t}")
        T.issue(f"ds_read_b128 {vr(RAW+10*t+4,4)}, v5 offset:{1280*t+512}")
        T.issue(f"ds_read_b64 {vr(RAW+10*t+8,2)}, v6 offset:{1280*t+1024}", t)
    A("s_lshl_b32 s57, s63, 2")
    A("s_mul_i32 s54, s57, 40960")
    A(f"s_add_u32 s54, s54, {WS_O:#x}")
    A("s_lshl_b32 s59, s62, 8")
    A("s_add_u32 s59, s59, s54")
    A("s_add_u32 s59, s59, 32768")
    A("s_lshl_b32 s57, s62, 10")
    A("s_add_u32 s54, s54, s57")
    A("s_lshl_b32 s50, s63, 5")
    A("s_add_u32 s50, s50, s62")
    A("s_lshl_b32 s50, s50, 7")
    A(f"s_add_u32 s50, s50, {F3:#x}")
    mx, se = 124, 126
    for t in range(NT):
        T.wait(t)
        for i in range(10):
            A(f"v_lshl_add_u32 v{X+2*i}, v{RAW+10*t+i}, 16, v7")
            A(f"v_bitop3_b32 v{X+2*i+1}, v{RAW+10*t+i}, s58, v7 bitop3:0x6a")
        A(f"v_max3_f32 v{mx}, v{X}, v{X+1}, v{X+2}")
        A(f"v_max3_f32 v{mx+1}, v{X+3}, v{X+4}, v{X+5}")
        for i in range(6, 18, 4):
            A(f"v_max3_f32 v{mx}, v{mx}, v{X+i}, v{X+i+1}")
            A(f"v_max3_f32 v{mx+1}, v{mx+1}, v{X+i+2}, v{X+i+3}")
        A(f"v_max3_f32 v{mx}, v{mx}, v{X+18}, v{X+19}")
        A(f"v_max_f32 v{mx}, v{mx}, v{mx+1}")
        A(f"v_mul_f32 v{mx}, s60, v{mx}")
        for i in range(0, 20, 2):
            A(f"v_pk_fma_f32 {vr(X+i,2)}, {vr(X+i,2)}, s[60:61], {vr(mx,2)} op_sel_hi:[1,1,0] neg_lo:[0,0,1] neg_hi:[0,0,1]")
        for i in range(20):
            A(f"v_exp_f32 v{X+i}, v{X+i}")
        A(f"v_pk_add_f32 {vr(se,2)}, {vr(X,2)}, {vr(X+2,2)}")
        A(f"v_pk_add_f32 {vr(mx,2)}, {vr(X+4,2)}, {vr(X+6,2)}")
        for i in range(8, 20, 4):
            A(f"v_pk_add_f32 {vr(se,2)}, {vr(se,2)}, {vr(X+i,2)}")
            A(f"v_pk_add_f32 {vr(mx,2)}, {vr(mx,2)}, {vr(X+i+2,2)}")
        A(f"v_pk_add_f32 {vr(se,2)}, {vr(se,2)}, {vr(mx,2)}")
        A(f"v_add_f32 v{se}, v{se}, v{se+1}")
        A(f"v_rcp_f32 v{se}, v{se}")
        for i in range(0, 20, 2):
            A(f"v_pk_mul_f32 {vr(X+i,2)}, {vr(X+i,2)}, {vr(se,2)} op_sel_hi:[1,0]")
        for i in range(10):
            A(f"v_cvt_pk_bf16_f32 v{PQ+12*t+i}, v{X+2*i}, v{X+2*i+1}")
    stamp(A, 9)
    A(f"v_add_u32 v8, {L_WOB+5120}, v2")
    A(f"v_add_u32 v9, {L_WOB+5120+40960}, v2")
    KF = 16
    A(f"v_mov_b32 v{KF+10}, 0")
    A(f"v_mov_b32 v{KF+11}, 0")
    lds_wait(A, 14, L_SYNC + 8, 4)
    stampw(A, 10)
    PR = 32
    T = Lgkm(A)
    for q in range(5):
        for p in range(4):
            T.issue(f"ds_read_b128 {vr(PR+16*q+4*p,4)}, v{8+(p>>1)} offset:{20480*(p&1)+1024*q}", q)
    for q in range(5):
        T.wait(q)
        b = PR + 16 * q
        for h in (0, 2):
            A(f"v_pk_add_f32 {vr(b+h,2)}, {vr(b+h,2)}, {vr(b+4+h,2)}")
            A(f"v_pk_add_f32 {vr(b+8+h,2)}, {vr(b+8+h,2)}, {vr(b+12+h,2)}")
        for h in (0, 2):
            A(f"v_pk_add_f32 {vr(b+h,2)}, {vr(b+h,2)}, {vr(b+8+h,2)}")
        for h in (0, 2):
            A(f"v_cvt_pk_bf16_f32 v{KF+2*q+h//2}, v{b+h}, v{b+h+1}")
    D = [176, 192, 208, 224]
    OP = [32, 40, 48, 56]

    def mf(t):
        for u in range(3):
            c = vr(D[t], 16) if u else "0"
            A(f"v_mfma_f32_32x32x16_bf16 {vr(D[t],16)}, {vr(KF+4*u,4)}, {vr(PQ+12*t+4*u,4)}, {c}")

    if Opt.dA:
        A(f"s_sleep {Opt.dA}")
    mf(0)
    mf(1)
    for t in range(NT):
        d, o = D[t], OP[t]
        A(f"v_add_f32 v10, 0x358637bd, v{d+12}")
        A("v_rcp_f32 v10, v10")
        if t + 2 < NT:
            mf(t + 2)
        for i in range(12):
            A(f"v_mul_f32 v{d+i}, v10, v{d+i}")
        for i in range(6):
            A(f"v_cvt_pk_bf16_f32 v{o+i}, v{d+2*i}, v{d+2*i+1}")
        A(f"buffer_store_dwordx4 {vr(o,4)}, v2, s[{SWS}:{SWS+3}], s54 offen{SC}")
        A("s_mov_b32 exec_hi, 0")
        A(f"buffer_store_dwordx2 {vr(o+4,2)}, v3, s[{SWS}:{SWS+3}], s59 offen{SC}")
        A("s_mov_b64 exec, -1")
        if t < NT - 1:
            A("s_add_u32 s54, s54, 40960")
            A("s_add_u32 s59, s59, 40960")
    stamp(A, 11)
    set_flag(A, 12, "s50")
    lds_arrive(A, 16, L_SYNC + 12)
    stamp(A, 12)


def b_channel(A):
    A("s_mul_i32 s49, s98, 80")
    A("s_sub_u32 s50, s99, 24")
    A("s_mul_i32 s50, s50, 6")
    A("s_add_u32 s49, s49, s50")
    A("s_add_u32 s49, s49, s48")
    A(f"s_mul_i32 s56, s48, {CV_LDS}")


def conv_load_h(A, v):
    SH = 40
    srd(A, SH, S_SSK, NB_SSK)
    A(f"v_lshlrev_b32 v{v}, 4, v1")
    A("s_lshl_b32 s50, s49, 12")
    A("s_add_u32 m0, s56, 64")
    for i in range(4):
        A(f"buffer_load_dwordx4 v{v}, s[{SH}:{SH+3}], s50 offen offset:{1024*i}{Opt.nt_s} lds")


def f0_lines(A, c0, c1, v):
    A(f"s_lshr_b32 s52, s{c0}, 6")
    A("s_mul_i32 s52, s52, 419431")
    A("s_lshr_b32 s52, s52, 16")
    A(f"s_lshr_b32 s53, s{c1}, 6")
    A("s_mul_i32 s53, s53, 419431")
    A("s_add_u32 s53, s53, 406324")
    A("s_lshr_b32 s53, s53, 16")
    A(f"v_lshrrev_b32 v{v}, 2, v1")
    A(f"v_add_u32 v{v}, s52, v{v}")
    A(f"v_min_u32 v{v}, s53, v{v}")
    A(f"v_lshlrev_b32 v{v}, 7, v{v}")
    A(f"s_mov_b32 s52, {F0:#x}")


def role_pre(A):
    SK, SV, SS = 32, 36, 40
    t0, t1, t2 = 2, 3, 4
    A("s_lshl_b32 s49, s98, 3")
    A("s_add_u32 s49, s49, s99")
    A("s_sub_u32 s49, s49, 24")
    A("s_mul_i32 s49, s49, 5")
    A("s_add_u32 s49, s49, s48")
    A("s_and_b32 s50, s49, 31")
    A("s_lshr_b32 s51, s49, 5")
    A(f"s_mul_i32 s52, s50, {64*1280}")
    A("s_lshl_b32 s53, s51, 7")
    A("s_add_u32 s52, s52, s53")
    A(f"v_lshrrev_b32 v{t0}, 3, v1")
    A(f"v_and_b32 v{t1}, 7, v1")
    A(f"v_mul_u32_u24 v{t2}, {8*1280}, v{t0}")
    A(f"v_lshl_add_u32 v{t2}, v{t1}, 4, v{t2}")
    A(f"v_add_u32 v5, s52, v{t2}")
    A(f"v_subrev_u32 v6, {3*1280}, v5")
    A(f"v_subrev_u32 v7, {2*1280}, v5")
    A(f"v_subrev_u32 v8, {1280}, v5")
    A(f"v_lshlrev_b32 v9, 6, v{t1}")
    A("s_lshl_b32 s54, s51, 9")
    A(f"s_movk_i32 s55, {4*1280}")
    A("s_waitcnt lgkmcnt(0)")
    srd(A, SK, S_BK, NB_X)
    srd(A, SV, S_BV, NB_X)
    srd(A, SS, S_SH, NB_SH)
    WR, KR, VR = 16, 32, 76
    for i in range(4):
        A(f"buffer_load_dwordx4 {vr(WR+4*i,4)}, v9, s[{SS}:{SS+3}], s54 offen offset:{16*i}")
    for i in range(3):
        A(f"buffer_load_dwordx4 {vr(KR+4*i,4)}, v{6+i}, s[{SK}:{SK+3}], 0 offen{Opt.nt_s}")

    order = []

    def ld(kind, i):
        so = "0" if i < 4 else "s55"
        if kind == "k":
            A(f"buffer_load_dwordx4 {vr(KR+12+4*i,4)}, v5, s[{SK}:{SK+3}], {so} offen offset:{1280*(i&3)}{Opt.nt_s}")
        else:
            A(f"buffer_load_dwordx4 {vr(VR+4*i,4)}, v5, s[{SV}:{SV+3}], {so} offen offset:{1280*(i&3)}{Opt.nt_s}")
        order.append((kind, i))

    for i in (5, 6, 7):
        ld("k", i)
    ld("k", 0); ld("v", 0); ld("k", 1); ld("v", 1)
    todo = [("k", 2), ("v", 2), ("k", 3), ("v", 3), ("k", 4), ("v", 4), ("v", 5), ("v", 6), ("v", 7)]
    stamp(A, 2)
    srd(A, SWS, S_WS, WS_SIZE)
    A("s_mul_i32 s56, s48, 8320")
    A(f"s_add_u32 s56, s56, {B_PRE}")
    A(f"v_mul_u32_u24 v10, 1040, v{t1}")
    A(f"v_lshl_add_u32 v10, v{t0}, 4, v10")
    A("v_add_u32 v10, s56, v10")
    A("v_lshrrev_b32 v11, 4, v1")
    A("v_lshlrev_b32 v11, 8, v11")
    A("v_and_b32 v12, 3, v1")
    A("v_lshl_add_u32 v11, v12, 6, v11")
    A("v_bfe_u32 v12, v1, 2, 2")
    A("v_lshl_add_u32 v11, v12, 3, v11")
    A("v_add_u32 v11, s56, v11")
    A(f"v_lshlrev_b32 v12, 12, v{t0}")
    A(f"v_lshl_add_u32 v12, v{t1}, 4, v12")
    A("s_lshl_b32 s57, s51, 18")
    A("s_lshl_b32 s58, s50, 7")
    A("s_add_u32 s57, s57, s58")
    A(f"s_add_u32 s57, s57, {WS_KVT:#x}")
    A("s_mov_b32 s59, 0xffff0000")
    WF, KF, VF, TA, OUT = 108, 140, 172, 180, 196

    def unpack(dst, src, n):
        for i in range(n):
            A(f"v_lshlrev_b32 v{dst+2*i}, 16, v{src+i}")
            A(f"v_and_b32 v{dst+2*i+1}, s59, v{src+i}")

    A(f"s_waitcnt vmcnt({3+len(order)})")
    ld(*todo.pop(0)); ld(*todo.pop(0))
    for c in range(8):
        A(f"v_lshlrev_b32 v{WF+c}, 16, v{WR+2*c}")
        A(f"v_and_b32 v{WF+8+c}, s59, v{WR+2*c}")
        A(f"v_lshlrev_b32 v{WF+16+c}, 16, v{WR+2*c+1}")
        A(f"v_and_b32 v{WF+24+c}, s59, v{WR+2*c+1}")
    A(f"s_waitcnt vmcnt({len(order)})")
    ld(*todo.pop(0)); ld(*todo.pop(0))
    for i in range(3):
        unpack(KF + 8 * i, KR + 4 * i, 4)
    for i in range(8):
        need = max(order.index(("k", i)), order.index(("v", i)))
        A(f"s_waitcnt vmcnt({len(order)-1-need})")
        for _ in range(2):
            if todo:
                ld(*todo.pop(0))
        if i == 2:
            b_channel(A)
            conv_load_h(A, 13)
            order.extend([None] * 4)
        unpack(KF + 8 * ((i + 3) & 3), KR + 12 + 4 * i, 4)
        unpack(VF, VR + 4 * i, 4)
        acc = TA + 8 * (i & 1)
        for j in (3, 2, 1, 0):
            kk = KF + 8 * ((i + 3 - j) & 3)
            for c in range(0, 8, 2):
                if j == 3:
                    A(f"v_pk_mul_f32 {vr(acc+c,2)}, {vr(kk+c,2)}, {vr(WF+8*j+c,2)}")
                else:
                    A(f"v_pk_fma_f32 {vr(acc+c,2)}, {vr(kk+c,2)}, {vr(WF+8*j+c,2)}, {vr(acc+c,2)}")
        for c in range(0, 8, 2):
            A(f"v_pk_mul_f32 {vr(acc+c,2)}, {vr(acc+c,2)}, {vr(VF+c,2)}")
        if i & 1:
            for c in range(8):
                A(f"v_cvt_pk_bf16_f32 v{OUT+4*c+i//2}, v{TA+c}, v{TA+8+c}")
    stamp(A, 3)
    for c in range(8):
        A(f"ds_write_b128 v10, {vr(OUT+4*c,4)} offset:{128*c}")
    A("s_waitcnt lgkmcnt(0)")
    T = Lgkm(A)
    for i in range(8):
        T.issue(f"ds_read_b64_tr_b16 {vr(16+4*i,2)}, v11 offset:{1040*i}")
        T.issue(f"ds_read_b64_tr_b16 {vr(18+4*i,2)}, v11 offset:{1040*i+32}", i)
    for i in range(8):
        T.wait(i)
        A(f"buffer_store_dwordx4 {vr(16+4*i,4)}, v12, s[{SWS}:{SWS+3}], s57 offen{SC}")
        if i < 7:
            A(f"s_add_u32 s57, s57, {8*4096}")
    A("s_waitcnt vmcnt(0)")
    stamp(A, 4)


def role_helper(A):
    SD = 40
    A("s_setprio 3")
    A("s_waitcnt lgkmcnt(0)")
    srd(A, SWS, S_WS, WS_SIZE)
    srd(A, SD, S_DBG, 256)
    Lz = A.newlabel("L_nz")
    A("s_cmp_eq_u32 s2, 192")
    A(f"s_cbranch_scc0 {Lz}")
    A("s_cmp_eq_u32 s48, 5")
    A(f"s_cbranch_scc0 {Lz}")
    A(f"s_mov_b32 s57, {WS_EPOCH:#x}")
    A("s_mov_b64 exec, 1")
    A(f"buffer_load_dword v4, off, s[{SWS}:{SWS+3}], s57{SC}")
    A("s_waitcnt vmcnt(0)")
    A("v_add_u32 v4, 1, v4")
    A("v_not_b32 v5, v4")
    A(f"buffer_store_dwordx2 v[4:5], off, s[{SD}:{SD+3}], 0{SC}")
    A(f"buffer_store_dword v4, off, s[{SWS}:{SWS+3}], s57{SC}")
    A("s_mov_b64 exec, -1")
    stamp(A, 2)
    A.label(Lz)
    if Opt.codepf:
        Lp = A.newlabel("L_npf")
        A("s_cmp_eq_u32 s48, 6")
        A(f"s_cbranch_scc0 {Lp}")
        A("s_getpc_b64 s[50:51]")
        A.label("L_pc")
        A(f"s_sub_u32 s50, s50, L_pc-{NAME}_kernel")
        A("s_subb_u32 s51, s51, 0")
        A("s_sub_u32 s52, s99, 24")
        A("s_lshl_b32 s52, s52, 13")
        A("v_lshl_add_u32 v2, v1, 7, s52")
        A(f"v_min_u32 v2, L_code_end-{NAME}_kernel-4, v2")
        A("global_load_dword v24, v2, s[50:51]")
        if Opt.womall:
            srd(A, 36, S_WO, NB_WO)
            A("s_sub_u32 s52, s2, 192")
            A("s_lshl_b32 s52, s52, 14")
            A("s_add_u32 s53, s52, 8192")
            A("v_lshlrev_b32 v2, 7, v1")
            A("buffer_load_dword v25, v2, s[36:39], s52 offen")
            A("buffer_load_dword v26, v2, s[36:39], s53 offen")
        A.label(Lp)
    A("s_setprio 0")
    L6 = A.newlabel("L_h6")
    Lx = A.newlabel("L_h67")
    A("s_cmp_eq_u32 s48, 5")
    A(f"s_cbranch_scc0 {L6}")
    b_channel(A)
    conv_load_h(A, 2)
    A("s_branch L_bconv")
    A.label(L6)
    A("s_mul_i32 s54, s98, 80")
    A("s_sub_u32 s50, s99, 24")
    A("s_mul_i32 s55, s50, 6")
    A("s_add_u32 s54, s54, s55")
    A("s_add_u32 s55, s54, 5")
    f0_lines(A, 54, 55, 12)
    A("s_lshl_b32 s58, s98, 3")
    A("s_add_u32 s58, s58, s50")
    A("s_lshl_b32 s58, s58, 7")
    A(f"s_add_u32 s58, s58, {F0:#x}")
    Lt = A.newlabel("L_h7")
    A("s_cmp_eq_u32 s48, 7")
    A(f"s_cbranch_scc0 {Lt}")
    A(f"s_mov_b64 s[{TAG}:{TAG+1}], 0")
    tag_check(A, 8)
    A.label(Lt)
    A("s_barrier")
    A("s_cmp_eq_u32 s48, 7")
    A(f"s_cbranch_scc0 {Lx}")
    set_flag(A, 8, "s58")
    poll(A, 14, 12, "s52", sleep=4)
    A.label(Lx)
    A("s_barrier")
    A("s_branch L_post")


def conv_setup(A):
    A("v_lshlrev_b32 v2, 4, v1")
    A("s_lshl_b32 s52, s49, 1")
    A("s_and_b32 s52, s52, 0xfffffffc")
    A(f"s_load_dword s55, s[{S_SSD}:{S_SSD+1}], s52")
    A(f"s_load_dword s54, s[{S_SSK}:{S_SSK+1}], s50")
    A(f"s_add_u32 s51, s50, {WS_KVT:#x}")
    for i in range(4):
        A(f"v_mov_b32 v{4+i}, 0")
    A("v_add_u32 v3, s56, v2")
    A("s_mov_b64 exec, 0xf")
    A("ds_write_b128 v3, v[4:7]")
    A("s_mov_b32 exec_lo, -1")
    A(f"ds_write_b128 v3, v[4:7] offset:{64+4096}")
    A("s_mov_b64 exec, -1")
    A("v_and_b32 v8, 1, v1")
    A("v_lshlrev_b32 v8, 5, v8")
    A("v_bfe_u32 v9, v1, 4, 1")
    A("v_lshl_add_u32 v8, v9, 4, v8")
    A("v_bfe_u32 v9, v1, 1, 1")
    A("v_lshl_add_u32 v8, v9, 3, v8")
    A("v_lshrrev_b32 v10, 5, v1")
    A("v_lshl_add_u32 v8, v10, 6, v8")
    A("v_bfe_u32 v9, v1, 2, 2")
    A("v_lshlrev_b32 v9, 3, v9")
    A("v_sub_u32 v8, v8, v9")
    A("s_add_u32 s57, s56, 32")
    A("v_add_u32 v8, s57, v8")
    A("v_bfe_u32 v9, v1, 4, 1")
    A("v_lshlrev_b32 v9, 8, v9")
    A("v_and_b32 v11, 3, v1")
    A("v_lshl_add_u32 v9, v11, 6, v9")
    A("v_bfe_u32 v11, v1, 2, 2")
    A("v_lshl_add_u32 v9, v11, 4, v9")
    A("v_lshlrev_b32 v11, 6, v10")
    A("v_sub_u32 v9, v9, v11")
    A(f"s_add_u32 s57, s56, {64+4096+512-384}")
    A("v_add_u32 v9, s57, v9")
    A("v_bfe_u32 v11, v1, 2, 1")
    A("v_bfe_u32 v12, v1, 3, 2")
    A("v_lshl_add_u32 v11, v11, 2, v12")
    A("v_and_b32 v12, 35, v1")
    A("v_lshl_add_u32 v11, v12, 3, v11")
    A("v_and_b32 v12, 1, v11")
    A("v_lshlrev_b32 v12, 4, v12")
    A("v_mov_b32 v13, 0xffff")
    A("v_lshlrev_b32 v13, v12, v13")
    A("v_lshrrev_b32 v11, 1, v11")
    for i in range(4):
        A(f"v_cmp_eq_u32 vcc, {i}, v11")
        A(f"v_cndmask_b32 v{MK+i}, 0, v13, vcc")
    A("v_bfe_u32 v11, v1, 4, 1")
    A("v_and_b32 v12, 3, v1")
    A("v_lshl_add_u32 v11, v11, 2, v12")
    A("v_add_u32 v11, 7, v11")
    A("v_and_b32 v12, 3, v11")
    A("v_bfe_u32 v13, v11, 2, 1")
    A("v_lshl_add_u32 v12, v13, 4, v12")
    A("v_and_b32 v13, 12, v1")
    A("v_add3_u32 v12, v12, v13, 32")
    A("v_subrev_u32 v13, 32, v1")
    A("v_cmp_gt_u32 vcc, 32, v1")
    A("v_cndmask_b32 v14, v13, v12, vcc")
    A("v_lshlrev_b32 v14, 2, v14")
    A("s_mov_b32 s58, 0x1111")
    A("s_mov_b32 s59, 0")


MK = 16


def role_conv(A):
    A("s_barrier")
    conv_setup(A)
    A.label("L_conv")
    NR = 20
    RA, RB, RS = 64, 144, 224
    ACCS = (32, 48)
    CAR, PUL, TMP = 20, (21, 22), 23
    OUT = (24, 28)

    def rdA(m, reg, tag):
        return [(f"ds_read_b64_tr_b16 {vr(reg,2)}, v8 offset:{128*m+32}", None),
                (f"ds_read_b64_tr_b16 {vr(reg+2,2)}, v8 offset:{128*m}", tag)]

    def rdB(b, reg, tag):
        return [(f"ds_read_b128 {vr(reg,4)}, v9 offset:{128*b}", tag)]

    def xload():
        A(f"s_add_u32 m0, s56, {64+4096+512}")
        for i in range(4):
            A(f"buffer_load_dwordx4 v2, s[{SWS}:{SWS+3}], s51 offen offset:{1024*i}{SC} lds")

    Lb, Lg = A.newlabel("L_cb"), A.newlabel("L_cg")
    A("s_waitcnt vmcnt(0)")
    A("s_cmp_ge_u32 s99, 24")
    A(f"s_cbranch_scc1 {Lb}")
    tag_check(A, 22)
    A(f"buffer_load_dwordx2 v[22:23], v12, s[{SWS}:{SWS+3}], s52 offen{SC}")
    A("s_barrier")
    A("s_waitcnt vmcnt(0)")
    A(f"v_cmp_eq_u64 vcc, s[{TAG}:{TAG+1}], v[22:23]")
    A("s_cmp_eq_u64 vcc, -1")
    Lx = A.newlabel("L_cx")
    A(f"s_cbranch_scc1 {Lx}")
    poll(A, 22, 12, "s52", sleep=8)
    A.label(Lx)
    stamp(A, 8)
    xload()
    A.label(Lb)
    A("s_waitcnt lgkmcnt(0)")
    A("s_lshl_b32 s54, s54, 16")
    A("s_lshl_b32 s53, s55, 16")
    A("s_and_b32 s55, s55, 0xffff0000")
    A("s_bitcmp1_b32 s49, 0")
    A("s_cselect_b32 s53, s55, s53")
    A("v_mov_b32 v15, s54")
    A("v_add_f32 v15, s53, v15")
    A("v_cvt_pk_bf16_f32 v15, v15, v15")
    T = Lgkm(A)
    for m in range(NR):
        for x, tg in rdA(m, RA + 4 * m, ("A", m)):
            T.issue(x, tg)
    T.wait(("A", 0))
    for k in range(4):
        A(f"v_bfi_b32 v{RA+k}, v{MK+k}, v15, v{RA+k}")
    T.all()
    A("s_cmp_ge_u32 s99, 24")
    A(f"s_cbranch_scc0 {Lg}")
    A("s_barrier")
    stamp(A, 8)
    xload()
    A.label(Lg)
    A(f"s_add_u32 s51, s50, {WS_YT:#x}")
    A(f"v_mov_b32 v{PUL[1]}, 0")

    sched = []
    for i in range(8):
        ms = list(range(4 * i + 4))
        res = [m for m in ms if m < NR and 4 * i + 3 - m < NR]
        stm = [m for m in ms if m not in res]
        sched += [(i, m) for m in res + stm]
    streams = []
    for k, (i, m) in enumerate(sched):
        b = 4 * i + 3 - m
        if m >= NR:
            streams.append((k, "A", m))
        elif b >= NR:
            streams.append((k, "B", b))
    slot_of = {k: n % 8 for n, (k, _, _) in enumerate(streams)}

    def epilogue(i):
        V = ACCS[i & 1]
        own = [f"v_add_f32_dpp v{V+4*j}, v{V+4*j+k}, v{V+4*j} row_shr:{4*k} row_mask:0xf bank_mask:0xf"
               for k in (1, 2, 3) for j in range(4)]
        car = [f"v_add_f32_dpp v{CAR}, v{V+12+k}, v{CAR} row_shl:{16-4*k} row_mask:0xf bank_mask:0xf" for k in (1, 2, 3)]
        L = [f"v_mov_b32 v{CAR}, 0"] + own[0:2] + car[0:1] + own[2:4] + car[1:2] + own[4:6] + car[2:3]
        L.append(("ds", f"ds_bpermute_b32 v{PUL[i&1]}, v14, v{CAR}", ("P", i)))
        L += own[6:]
        for k in (1, 2, 3):
            for j in (0, 1, 2):
                L.append(f"v_add_f32_dpp v{V+4*j+4}, v{V+4*j+k}, v{V+4*j+4} row_shl:{16-4*k} row_mask:0xf bank_mask:0xf")
        o = OUT[(i >> 1) & 1] + 2 * (i & 1)
        L.append(f"v_cvt_pk_bf16_f32 v{o+1}, v{V+8}, v{V+12}")
        L.append(("wait", ("P", i)))
        L.append(f"v_cndmask_b32 v{TMP}, v{PUL[i&1]}, v{PUL[1-(i&1)]}, s[58:59]")
        L.append(f"v_add_f32 v{V}, v{V}, v{TMP}")
        L.append(f"v_cvt_pk_bf16_f32 v{o}, v{V}, v{V+4}")
        if i & 1:
            L.append(f"buffer_store_dwordx4 {vr(OUT[(i>>1)&1],4)}, v2, s[{SWS}:{SWS+3}], s51 offen offset:{1024*(i>>1)}{SC}")
        return L

    def emit(x):
        if isinstance(x, tuple):
            if x[0] == "ds":
                T.issue(x[1], x[2])
            else:
                T.wait(x[1])
        else:
            A(x)

    A("s_waitcnt vmcnt(0)")
    stampw(A, 9)
    for b in range(8):
        for x, tg in rdB(b, RB + 4 * b, ("B", b)):
            T.issue(x, tg)
    nres = 8
    nst = 0
    fill = []
    first = {}
    for k, (i, m) in enumerate(sched):
        first.setdefault(i, k)
    for k, (i, m) in enumerate(sched):
        V = ACCS[i & 1]
        b = 4 * i + 3 - m
        if k == first[i]:
            while fill:
                emit(fill.pop(0))
            if i > 0:
                fill = epilogue(i - 1)
        if k in slot_of:
            T.wait(("S", k))
        if b < NR:
            T.wait(("B", b))
        ra = RA + 4 * m if m < NR else RS + 4 * slot_of[k]
        rb = RB + 4 * b if b < NR else RS + 4 * slot_of[k]
        c = vr(V, 16) if k != first[i] else "0"
        A(f"v_mfma_f32_32x32x16_bf16 {vr(V,16)}, {vr(ra,4)}, {vr(rb,4)}, {c}")
        budget = 5
        if nres < NR:
            for x, tg in rdB(nres, RB + 4 * nres, ("B", nres)):
                T.issue(x, tg)
            nres += 1
            budget -= 1
        elif nst < len(streams) and (nst < 8 or streams[nst - 8][0] < k) and streams[nst][0] - k <= 10:
            kk, kind, fr = streams[nst]
            for x, tg in (rdA if kind == "A" else rdB)(fr, RS + 4 * slot_of[kk], ("S", kk)):
                T.issue(x, tg)
                budget -= 1
            nst += 1
        if k > first[i]:
            for _ in range(budget):
                if fill:
                    emit(fill.pop(0))
    while fill:
        emit(fill.pop(0))
    stampw(A, 10)
    T.done = T.n if Ctx.stamps else T.done
    for x in epilogue(7):
        emit(x)
    A("s_waitcnt vmcnt(0)")
    stamp(A, 11)
    A("s_cmp_ge_u32 s99, 24")
    A("s_cbranch_scc1 L_bdone")
    A(f"v_mov_b32 v10, {L_SYNC+12}")
    A("v_mov_b32 v11, 1")
    A("s_mov_b64 exec, 1")
    A("ds_add_rtn_u32 v12, v10, v11")
    A("s_mov_b64 exec, -1")
    A("s_lshl_b32 s52, s98, 4")
    A("s_add_u32 s52, s52, s99")
    A("s_lshl_b32 s52, s52, 7")
    A(f"s_add_u32 s52, s52, {F4+8*128:#x}")
    A("s_waitcnt lgkmcnt(0)")
    A("v_readfirstlane_b32 s53, v12")
    A("s_cmp_eq_u32 s53, 3")
    A("s_cbranch_scc0 L_bend")
    set_flag(A, 10, "s52")
    A("s_branch L_bend")
    A.label("L_bdone")


def role_post(A):
    SQ, SO = 32, 36
    A.label("L_post")
    A("s_lshl_b32 s48, s48, 2")
    A("s_lshr_b32 s48, 0x43002100, s48")
    A("s_and_b32 s48, s48, 7")
    A("s_mul_i32 s49, s98, 40")
    A("s_sub_u32 s50, s99, 24")
    A("s_mul_i32 s50, s50, 5")
    A("s_add_u32 s49, s49, s50")
    A("s_add_u32 s49, s49, s48")
    A("s_and_b32 s50, s49, 31")
    A("s_lshr_b32 s51, s49, 5")
    A("v_lshrrev_b32 v2, 3, v1")
    A("v_and_b32 v3, 7, v1")
    A("v_lshlrev_b32 v4, 12, v2")
    A("v_lshl_add_u32 v4, v3, 4, v4")
    A("s_lshl_b32 s52, s51, 18")
    A("s_lshl_b32 s53, s50, 7")
    A("s_add_u32 s52, s52, s53")
    A(f"s_add_u32 s52, s52, {WS_YT:#x}")
    A("s_mul_i32 s56, s48, 8320")
    A(f"s_add_u32 s56, s56, {B_PRE}")
    A("s_lshr_b32 s54, s50, 3")
    A("s_lshl_b32 s54, s54, 9")
    A("s_bfe_u32 s55, s50, 0x10002")
    A("s_lshl_b32 s55, s55, 4")
    A("s_add_u32 s54, s54, s55")
    A("s_bfe_u32 s55, s50, 0x10001")
    A("s_lshl_b32 s55, s55, 7")
    A("s_add_u32 s54, s54, s55")
    A("s_and_b32 s55, s50, 1")
    A("s_lshl_b32 s55, s55, 1")
    A("s_add_u32 s54, s54, s55")
    A("v_and_b32 v5, 3, v2")
    A("v_lshrrev_b32 v6, 2, v2")
    A("v_lshl_add_u32 v5, v5, 5, v6")
    A("v_mul_u32_u24 v6, 1280, v5")
    A("v_lshlrev_b32 v7, 1, v6")
    A("v_lshl_add_u32 v6, v3, 4, v6")
    A("v_lshl_add_u32 v7, v3, 4, v7")
    A("s_mul_i32 s54, s54, 1280")
    A("s_lshl_b32 s53, s51, 7")
    A("s_lshl_b32 s55, s54, 1")
    A("s_add_u32 s54, s54, s53")
    A("s_add_u32 s55, s55, s53")
    A("s_add_u32 s55, s55, 1280")
    srd(A, SQ, S_BQ, NB_X)
    srd(A, SO, S_OUT, NB_OUT)
    QR, YR = 16, 48
    rows = [0, 4, 8, 12, 256, 260, 264, 268]
    if Opt.wopf == "b":
        Ln = A.newlabel("L_npf")
        A("s_cmp_ge_u32 s48, 3")
        A(f"s_cbranch_scc0 {Ln}")
        srd(A, 40, S_WO, NB_WO)
        A("s_sub_u32 s57, s99, 24")
        A("s_lshl_b32 s57, s57, 1")
        A("s_add_u32 s57, s57, s48")
        A("s_sub_u32 s57, s57, 3")
        A("s_lshl_b32 s57, s57, 13")
        A("v_lshlrev_b32 v8, 7, v1")
        for i in range(7):
            A(f"buffer_load_dword v{200+i}, v8, s[40:43], s57 offen")
            A(f"s_add_u32 s57, s57, {16*8192}")
        A.label(Ln)
    for i in range(8):
        A(f"s_add_u32 s57, s54, {rows[i]*1280}")
        A(f"buffer_load_dwordx4 {vr(QR+4*i,4)}, v6, s[{SQ}:{SQ+3}], s57 offen{Opt.nt_s}")
    A("s_mov_b32 s59, 0xffff0000")
    QF = 128
    A("s_waitcnt vmcnt(0)")
    for i in range(32):
        A(f"v_lshlrev_b32 v{QF+2*i}, 16, v{QR+i}")
        A(f"v_and_b32 v{QF+2*i+1}, s59, v{QR+i}")
    A("s_lshl_b32 s57, s98, 4")
    A("s_sub_u32 s58, s57, 16")
    A("v_min_u32 v12, 47, v1")
    A("v_add_u32 v12, s58, v12")
    A("v_max_i32 v12, 0, v12")
    A("v_min_u32 v12, 127, v12")
    A("v_lshlrev_b32 v12, 7, v12")
    A("s_add_u32 s57, s57, s99")
    A("s_lshl_b32 s57, s57, 7")
    A(f"s_add_u32 s57, s57, {F4-24*128:#x}")
    A(f"s_mov_b32 s58, {F4:#x}")
    Lx = A.newlabel("L_p7")
    A("s_barrier")
    A("s_cmp_eq_u32 s48, 4")
    A(f"s_cbranch_scc0 {Lx}")
    set_flag(A, 8, "s57")
    poll(A, 14, 12, "s58", sleep=4)
    A.label(Lx)
    A("s_barrier")
    if Opt.dB:
        A(f"s_sleep {Opt.dB}")
    stamp(A, 12)
    for i in range(8):
        A(f"v_xor_b32 v8, {16*i}, v4")
        A(f"s_add_u32 m0, s56, {1024*i}")
        A(f"buffer_load_dwordx4 v8, s[{SWS}:{SWS+3}], s52 offen{SC} lds")
        if i < 7:
            A(f"s_add_u32 s52, s52, {8*4096}")
    A("v_xor_b32 v8, v2, v3")
    A("v_lshlrev_b32 v8, 4, v8")
    A("v_lshl_add_u32 v8, v3, 10, v8")
    A("v_add_u32 v8, s56, v8")
    A("s_waitcnt vmcnt(0)")
    for c in range(8):
        A(f"ds_read_b128 {vr(YR+4*c,4)}, v8 offset:{128*c}")
    A("s_waitcnt lgkmcnt(0)")
    stamp(A, 13)
    YF, OUT = 80, 96
    for i in range(8):
        for c in range(8):
            if i & 1:
                A(f"v_and_b32 v{YF+c}, s59, v{YR+4*c+i//2}")
            else:
                A(f"v_lshlrev_b32 v{YF+c}, 16, v{YR+4*c+i//2}")
        for c in range(0, 8, 2):
            A(f"v_pk_mul_f32 {vr(YF+c,2)}, {vr(YF+c,2)}, {vr(QF+8*i+c,2)}")
        for k in range(4):
            A(f"v_cvt_pk_bf16_f32 v{OUT+4*i+k}, v{YF+2*k}, v{YF+2*k+1}")
        A(f"s_add_u32 s57, s55, {rows[i]*2560}")
        A(f"buffer_store_dwordx4 {vr(OUT+4*i,4)}, v7, s[{SO}:{SO+3}], s57 offen{Opt.oscb}")
    stamp(A, 14)


def build():
    A = Asm()
    k = NAME + "_kernel"
    A.raw(f".globl {k}")
    A.raw(".p2align 8")
    A.raw(f".type {k},@function")
    A.label(k)
    if Opt.hold:
        A("s_memrealtime s[64:65]")
    load_kernargs(A)
    if not Opt.hp:
        stamp_init(A)
    A("v_lshrrev_b32 v2, 6, v0")
    A("v_and_b32 v1, 63, v0")
    A("v_readfirstlane_b32 s100, v2")
    A("s_and_b32 s98, s2, 7")
    A("s_lshr_b32 s99, s2, 3")
    A("s_cmp_ge_u32 s2, 192")
    A("s_cbranch_scc1 L_b")
    A("s_and_b32 s49, s2, 3")
    A("s_lshl_b32 s49, s49, 2")
    A("s_and_b32 s50, s99, 3")
    A("s_add_u32 s49, s49, s50")
    A("s_bfe_u32 s52, s2, 0x10002")
    A("s_lshr_b32 s53, s2, 5")
    A("s_lshl_b32 s54, s52, 1")
    A("s_add_u32 s54, s54, s53")
    A("s_lshl_b32 s55, s52, 2")
    A("s_add_u32 s55, s55, s53")
    A("s_sub_u32 s55, s55, 2")
    A("s_cmp_lt_u32 s2, 64")
    A("s_cselect_b32 s50, s54, s55")
    A("s_cselect_b32 s51, 1, 0")
    A("s_and_b32 s48, s100, 3")
    A("s_cmp_ge_u32 s100, 4")
    A("s_cbranch_scc1 L_c")
    role_loader(A)
    A.label("L_c")
    role_compute(A)
    A.label("L_b")
    A("s_cmp_ge_u32 s2, 256")
    A("s_cbranch_scc1 L_exit")
    A("s_mov_b32 s48, s100")
    A("s_cmp_ge_u32 s48, 5")
    A("s_cbranch_scc1 L_help")
    role_pre(A)
    A("s_branch L_bconv")
    A.label("L_help")
    role_helper(A)
    A.label("L_bconv")
    role_conv(A)
    A("s_bitcmp1_b32 0x32, s48")
    A("s_cbranch_scc1 L_bend")
    role_post(A)
    A.label("L_bend")
    end_wave(A)
    A.label("L_exit")
    A("s_endpgm")
    A.label("L_code_end")
    head = ["; generated by gen/f3.py",
            "; @launch grid=(256,1,1) block=(512,1,1) lds=163840"]
    txt = "\n".join(head) + '\n.amdgcn_target "amdgcn-amd-amdhsa--gfx950"\n.text\n' + A.text()
    txt += f'''.section .rodata,"a"
.p2align 6
.amdhsa_kernel {k}
  .amdhsa_next_free_vgpr 256
  .amdhsa_next_free_sgpr 102
  .amdhsa_accum_offset 256
  .amdhsa_group_segment_fixed_size 0
  .amdhsa_kernarg_size 104
  .amdhsa_user_sgpr_count 2
  .amdhsa_user_sgpr_kernarg_segment_ptr 1
  .amdhsa_system_sgpr_workgroup_id_x 1
.end_amdhsa_kernel
'''
    return txt


if __name__ == "__main__":
    args = sys.argv[2:]
    Ctx.stamps = "stamps" in args
    Opt.rot = "norot" not in args
    Opt.codepf = "nocodepf" not in args
    for a in args:
        if a.startswith("probe="):
            Opt.probe = tuple(int(x) for x in a[6:].split(","))
        if a.startswith("holdwg="):
            Opt.holdwg = int(a[7:])
        if a.startswith("osc="):
            Opt.osc = a[4:].replace("_", " ")
        if a.startswith("oscb="):
            Opt.oscb = a[5:].replace("_", " ")
        if a.startswith("hp="):
            Opt.hp = int(a[3:])
            Ctx.stamps = True
        if a.startswith("hold="):
            Opt.hold = int(a[5:])
        if a.startswith("dA="):
            Opt.dA = int(a[3:])
        if a.startswith("dB="):
            Opt.dB = int(a[3:])
        if a == "nowomall":
            Opt.womall = False
        if a == "noppoll":
            Opt.ppoll = False
        if a.startswith("psleep="):
            Opt.psleep = int(a[7:])
        if a.startswith("wopf="):
            Opt.wopf = a[5:]
    for a in args:
        if a.startswith("LA="):
            Opt.LA = int(a[3:])
    open(sys.argv[1], "w").write(build())
```

```python
import sys
from asm import Asm, vr, ar, sr
from roles import (WS_PHIQ, WS_PART, WS_O, WS_KVT, WS_YT, WS_STAMP, WS_SIZE, S_X, S_W, S_WPHI, S_WO, S_BQ, S_BK, S_BV,
                   S_SH, S_SSK, S_SSD, S_OUT, S_DBG, S_WS, NB_X, NB_W, NB_WPHI, NB_WO, NB_SH, NB_SSK, NB_OUT, LOG2E,
                   Ctx, load_kernargs, srd, stamp, stamp_init, softmax20)

NAME = "concat_heads__linear_kernel_hedgehog__ssm_conv_h3__prompt"
WS_PQ = WS_PHIQ
WS_FLAG = 0xF00000
F1, F2, F3, F0, F4 = (WS_FLAG + 128 * o for o in (0, 512, 1024, 1536, 1856))
WS_EPOCH = WS_FLAG + 128 * 2560 + 64
SWS = 44
SC = " sc1"
TAG = 30
SLOT = 36864
L_WP = 147456
L_Z = L_WP + 8192
L_SYNC = L_Z + 4096
L_V = 128 * 336
L_WOB = 65536
L_OT = 65536
CV_LDS = 8768
L_QCV = 3 * SLOT
B_PRE = 6 * CV_LDS


class Opt:
    rot = True
    LA = 2
    nt_s = " nt"
    codepf = True
    wopf = "no"
    osc = " sc1 nt"
    oscb = " sc1 nt"
    hp = 0
    rotA = 0x8530
    rotB = 0x875320
    gpf = 0
    gpfd = 99
    rt = False
    ppoll = False
    womall = True
    probe = None
    dA = 0
    hold = 0
    holdwg = -1
    dB = 0
    psleep = 2


_stamp0 = stamp


def stamp(A, k, real=False):
    if Opt.hp:
        if k == Opt.hp:
            A("s_memrealtime s[64:65]")
        return
    _stamp0(A, k, real or Opt.rt)


def end_wave(A, holdable=False):
    if Opt.hp:
        if holdable:
            L = A.newlabel("L_hp")
            A("s_cmp_lt_u32 s99, 8")
            A("s_cbranch_scc1 L_exit")
            A.label(L)
            A("s_sleep 4")
            A("s_memrealtime s[66:67]")
            A("s_waitcnt lgkmcnt(0)")
            A("s_sub_u32 s66, s66, s64")
            A("s_cmp_lt_u32 s66, 2000")
            A(f"s_cbranch_scc1 {L}")
    elif Ctx.stamps:
        stamp(A, 15, True)
        A("s_waitcnt lgkmcnt(0)")
        A("s_mov_b64 exec, -1")
        A("v_mov_b32 v2, 0")
        for k in range(16):
            A(f"v_writelane_b32 v2, s{64+2*k}, {k}")
        A("s_lshl_b32 s62, s2, 3")
        A("s_add_u32 s62, s62, s100")
        A("s_lshl_b32 s62, s62, 6")
        A(f"s_add_u32 s62, s62, {WS_STAMP:#x}")
        A("v_lshlrev_b32 v1, 2, v1")
        A("s_mov_b64 exec, 0xffff")
        A(f"buffer_store_dword v2, v1, s[{SWS}:{SWS+3}], s62 offen")
        if Opt.probe:
            Lp = A.newlabel("L_probe")
            A(f"s_cmp_eq_u32 s2, {Opt.probe[0]}")
            A(f"s_cbranch_scc0 {Lp}")
            A(f"s_cmp_eq_u32 s100, {Opt.probe[1]}")
            A(f"s_cbranch_scc0 {Lp}")
            A("v_subrev_u32 v3, s66, v2")
            A("s_sub_u32 s62, s94, s64")
            A("v_writelane_b32 v3, s62, 15")
            A("v_cmp_ne_u32 vcc, 0, v2")
            A("v_cndmask_b32 v3, 0, v3, vcc")
            A("s_mov_b64 exec, 0xfffc")
            A(f"global_store_dword v1, v3, s[{S_DBG}:{S_DBG+1}]")
            A.label(Lp)
    A("s_endpgm")


def stampw(A, k):
    stamp(A, k)
    if Ctx.stamps:
        A("s_waitcnt lgkmcnt(0)")


def poll(A, vt, voff, soff, sleep=1):
    L, Ld = A.newlabel("L_poll"), A.newlabel("L_polld")
    A("s_movk_i32 s101, 0x4000")
    A.label(L)
    A(f"buffer_load_dwordx2 {vr(vt,2)}, v{voff}, s[{SWS}:{SWS+3}], {soff} offen{SC}")
    A("s_waitcnt vmcnt(0)")
    A(f"v_cmp_eq_u64 vcc, s[{TAG}:{TAG+1}], {vr(vt,2)}")
    A("s_cmp_eq_u64 vcc, -1")
    A(f"s_cbranch_scc1 {Ld}")
    A(f"s_sleep {sleep}")
    A("s_sub_u32 s101, s101, 1")
    A("s_cmp_eq_u32 s101, 0")
    A(f"s_cbranch_scc0 {L}")
    A("s_endpgm")
    A.label(Ld)


def ppoll(A, vt, voff, soff, sleep=1, depth=4):
    if not Opt.ppoll:
        return poll(A, vt, voff, soff, sleep=sleep)
    L, Ld = A.newlabel("L_pp"), A.newlabel("L_ppd")
    ld = lambda k: f"buffer_load_dwordx2 {vr(vt+2*k,2)}, v{voff}, s[{SWS}:{SWS+3}], {soff} offen{SC}"
    A("s_movk_i32 s101, 0x4000")
    for k in range(depth - 1):
        A(ld(k))
        A(f"s_sleep {sleep}")
    A.label(L)
    for k in range(depth):
        A(ld((k + depth - 1) % depth))
        A(f"s_waitcnt vmcnt({depth-1})")
        A(f"v_cmp_eq_u64 vcc, s[{TAG}:{TAG+1}], {vr(vt+2*k,2)}")
        A("s_cmp_eq_u64 vcc, -1")
        A(f"s_cbranch_scc1 {Ld}")
        A(f"s_sleep {sleep}")
    A("s_sub_u32 s101, s101, 1")
    A("s_cmp_eq_u32 s101, 0")
    A(f"s_cbranch_scc0 {L}")
    A("s_endpgm")
    A.label(Ld)


def set_flag(A, vt, soff):
    A(f"v_mov_b32 v{vt}, s{TAG}")
    A(f"v_mov_b32 v{vt+1}, s{TAG+1}")
    A(f"v_lshlrev_b32 v{vt+2}, 3, v1")
    A("s_waitcnt vmcnt(0)")
    A("s_mov_b64 exec, 0xffff")
    A(f"buffer_store_dwordx2 {vr(vt,2)}, v{vt+2}, s[{SWS}:{SWS+3}], {soff} offen{SC}")
    A("s_mov_b64 exec, -1")


def tag_issue(A):
    A(f"s_load_dwordx2 s[{TAG}:{TAG+1}], s[{S_DBG}:{S_DBG+1}], 0")


def tag_check(A, vt):
    L, Ld = A.newlabel("L_hs"), A.newlabel("L_hsd")
    A("s_waitcnt lgkmcnt(0)")
    A(f"s_cmp_lg_u32 s{TAG}, s{TAG+1}")
    A(f"s_cbranch_scc1 {Ld}")
    A("s_movk_i32 s101, 0x4000")
    A(f"v_mov_b32 v{vt+2}, 0")
    A.label(L)
    A(f"global_load_dwordx2 {vr(vt,2)}, v{vt+2}, s[{S_DBG}:{S_DBG+1}]{SC}")
    A("s_waitcnt vmcnt(0)")
    A(f"v_readfirstlane_b32 s{TAG}, v{vt}")
    A(f"v_readfirstlane_b32 s{TAG+1}, v{vt+1}")
    A("s_nop 3")
    A(f"s_cmp_lg_u32 s{TAG}, s{TAG+1}")
    A(f"s_cbranch_scc1 {Ld}")
    A("s_sleep 8")
    A("s_sub_u32 s101, s101, 1")
    A("s_cmp_eq_u32 s101, 0")
    A(f"s_cbranch_scc0 {L}")
    A("s_endpgm")
    A.label(Ld)


def lds_arrive(A, vt, addr):
    A(f"v_mov_b32 v{vt}, {addr}")
    A(f"v_mov_b32 v{vt+1}, 1")
    A("s_waitcnt lgkmcnt(0)")
    A("s_mov_b64 exec, 1")
    A(f"ds_add_u32 v{vt}, v{vt+1}")
    A("s_mov_b64 exec, -1")


def lds_wait(A, vt, addr, n, sleep=0):
    L, Ld = A.newlabel("L_lw"), A.newlabel("L_lwd")
    if addr is not None:
        A(f"v_mov_b32 v{vt}, {addr}")
    A("s_mov_b32 s101, 0x40000")
    A.label(L)
    A(f"ds_read_b32 v{vt+1}, v{vt}")
    A("s_waitcnt lgkmcnt(0)")
    A(f"v_cmp_le_u32 vcc, {n}, v{vt+1}")
    A(f"s_cbranch_vccnz {Ld}")
    if sleep:
        A(f"s_sleep {sleep}")
    A("s_sub_u32 s101, s101, 1")
    A("s_cmp_eq_u32 s101, 0")
    A(f"s_cbranch_scc0 {L}")
    A("s_endpgm")
    A.label(Ld)


class Lgkm:
    def __init__(self, A):
        self.A, self.n, self.done, self.tag = A, 0, 0, {}

    def issue(self, text, tag=None):
        self.A(text)
        self.n += 1
        if tag is not None:
            self.tag[tag] = self.n

    def wait(self, *tags):
        need = max(self.tag[t] for t in tags)
        if need > self.done:
            self.A(f"s_waitcnt lgkmcnt({min(15, self.n - need)})")
            self.done = max(need, self.n - 15)

    def all(self):
        if self.done < self.n:
            self.A("s_waitcnt lgkmcnt(0)")
            self.done = self.n


def o_index(A):
    A("s_sub_u32 s63, s99, 8")
    A("s_lshr_b32 s62, s63, 2")
    A("s_lshl_b32 s3, s98, 2")
    A("s_add_u32 s62, s62, s3")
    A("s_and_b32 s63, s63, 3")
    A("s_lshl_b32 s63, s63, 2")
    A("s_add_u32 s63, s63, s48")


def role_loader(A):
    SX, SW, SP = 32, 36, 40
    VX, VW = 24, 28
    t0, t1, t2, t3 = 11, 12, 13, 14
    A("s_setprio 1")
    A(f"v_lshrrev_b32 v{t0}, 3, v1")
    A(f"v_mul_u32_u24 v{t0}, 1280, v{t0}")
    A(f"v_lshrrev_b32 v{t1}, 4, v1")
    A(f"v_and_b32 v{t2}, 7, v1")
    A(f"v_xor_b32 v{t1}, v{t1}, v{t2}")
    A(f"v_xor_b32 v{t2}, 4, v{t1}")
    A(f"v_lshl_add_u32 v{VX}, v{t1}, 4, v{t0}")
    A(f"v_lshl_add_u32 v{VX+1}, v{t2}, 4, v{t0}")
    A(f"v_add_u32 v{VX+2}, {2*(8*1280-1024)}, v{VX}")
    A(f"v_add_u32 v{VX+3}, {3*(8*1280-1024)}, v{VX+1}")
    A(f"v_add_u32 v{VX+1}, {8*1280-1024}, v{VX+1}")
    A("s_lshl_b32 s60, s49, 2")
    A("s_add_u32 s60, s60, s48")
    A(f"s_mul_i32 s60, s60, {32*1280}")
    if Opt.rot:
        A("s_lshl_b32 s30, s49, 2")
        A("s_bfe_u32 s30, s30, 0x40000")
        A(f"s_lshr_b32 s30, {Opt.rotA:#x}, s30")
        A("s_and_b32 s30, s30, 15")
        A("s_and_b32 s31, s99, 28")
        A(f"s_lshr_b32 s31, {Opt.rotB:#x}, s31")
        A("s_and_b32 s31, s31, 15")
        A("s_add_u32 s30, s30, s31")
        A("s_sub_u32 s31, s30, 10")
        A("s_cmp_ge_u32 s30, 10")
        A("s_cselect_b32 s30, s31, s30")
        A("s_lshl_b32 s31, s30, 7")
        A("s_add_u32 s60, s60, s31")
    A("s_lshl_b32 s62, s48, 12")
    A("s_mov_b32 m0, s62")
    A(f"s_mov_b32 s{SX+2}, {NB_X:#x}")
    A(f"s_mov_b32 s{SX+3}, 0x20000")
    A("s_waitcnt lgkmcnt(0)")
    A(f"s_mov_b64 s[{SX}:{SX+1}], s[{S_X}:{S_X+1}]")

    def dma_x(s):
        if s:
            A(f"s_add_u32 m0, s62, {(s % 3) * SLOT}")
        for i in range(4):
            A(f"buffer_load_dwordx4 v{VX+i}, s[{SX}:{SX+3}], s60 offen offset:{1024*i} lds")

    def dma_w(s):
        sl = (s % 3) * SLOT
        A(f"s_add_u32 m0, s63, {sl}")
        for i in range(4):
            A(f"buffer_load_dwordx4 v{VW+i}, s[{SW}:{SW+3}], s61 offen offset:{1024*i} lds")
        A(f"s_add_u32 m0, s63, {sl+4096}")
        A(f"buffer_load_dwordx4 v{VW+4}, s[{SW}:{SW+3}], s61 offen lds")
        if s < 9:
            if Opt.rot:
                A("s_add_u32 s30, s30, 1")
                A("s_cmp_eq_u32 s30, 10")
                A(f"s_cselect_b32 s31, {(-1152)&0xffffffff:#x}, s97")
                A(f"s_cselect_b32 s3, {(-9*64*3840)&0xffffffff:#x}, s96")
                A("s_add_u32 s60, s60, s31")
                A("s_add_u32 s61, s61, s3")
            else:
                A("s_add_u32 s60, s60, 128")
                A(f"s_add_u32 s61, s61, {64*3840}")

    dma_x(0)
    A("s_cmp_eq_u32 s51, 0")
    A("s_cselect_b32 s56, 1120, 0")
    A(f"v_lshlrev_b32 v{t3}, 4, v1")
    A(f"v_mul_u32_u24 v{t2}, 6554, v1")
    A("s_movk_i32 s57, 3520")
    for i in range(5):
        if i:
            A(f"v_add_u32 v{t2}, {64*6554}, v{t2}")
        A(f"v_lshrrev_b32 v{t0}, 17, v{t2}")
        A(f"v_bfe_u32 v{t1}, v{t2}, 16, 1")
        A(f"v_mad_u32_u24 v{t0}, v{t0}, s57, v{t3}")
        A(f"v_mad_u32_u24 v{VW+i}, v{t1}, s56, v{t0}")
    A(f"v_add_u32 v{VW+4}, 4096, v{VW+4}")
    A(f"s_mul_i32 s61, s48, {16*3840}")
    A("s_mul_i32 s57, s50, 160")
    A("s_add_u32 s58, s57, 1280")
    A("s_lshl_b32 s57, s57, 1")
    A("s_cmp_eq_u32 s51, 0")
    A("s_cselect_b32 s57, s58, s57")
    A("s_add_u32 s61, s61, s57")
    if Opt.rot:
        A(f"s_mov_b32 s96, {64*3840}")
        A("s_movk_i32 s97, 128")
        A("s_mul_i32 s31, s30, s96")
        A("s_add_u32 s61, s61, s31")
    A("s_mul_i32 s63, s48, 5120")
    A("s_add_u32 s63, s63, 16384")
    srd(A, SW, S_W, NB_W)
    dma_w(0)
    stamp(A, 2)
    A("s_mul_i32 s57, s50, 3200")
    A("s_lshl_b32 s57, s57, s51")
    A("s_lshl_b32 s58, s48, 11")
    A("s_add_u32 s57, s57, s58")
    srd(A, SP, S_WPHI, NB_WPHI)
    A(f"s_add_u32 m0, s58, {L_WP}")
    A(f"buffer_load_dwordx4 v{t3}, s[{SP}:{SP+3}], s57 offen lds")
    A(f"buffer_load_dwordx4 v{t3}, s[{SP}:{SP+3}], s57 offen offset:1024 lds")
    srd(A, SWS, S_WS, WS_SIZE)
    Lh = A.newlabel("L_noh")
    A("s_cmp_eq_u32 s51, 0")
    A(f"s_cbranch_scc1 {Lh}")
    A("s_mul_i32 s49, s98, 80")
    A("s_lshl_b32 s50, s99, 2")
    A("s_add_u32 s49, s49, s50")
    A("s_add_u32 s49, s49, s48")
    A("s_add_u32 s49, s49, 48")
    A(f"s_mul_i32 s56, s48, {CV_LDS}")
    A(f"s_add_u32 s56, s56, {L_QCV}")
    conv_load_h(A, t3)
    A.label(Lh)
    assert Opt.LA == 2
    issued = 0
    for s in range(10):
        while issued < min(s + Opt.LA - 1, 9):
            issued += 1
            dma_x(issued)
            dma_w(issued)
        if s == 0:
            Ls = A.newlabel("L_nosetup")
            A("s_cmp_ge_u32 s99, 8")
            A(f"s_cbranch_scc1 {Ls}")
            conv_setup(A)
            f0_lines(A, 49, 49, 12)
            A.label(Ls)
        if s == 9:
            tag_issue(A)
        A(f"s_waitcnt vmcnt({9*(issued-s)})")
        A("s_barrier")
        if s in (0, 3, 6, 9):
            stamp(A, 3 + s // 3)
    A("s_setprio 0")
    A("s_cmp_lt_u32 s99, 8")
    A("s_cbranch_scc1 L_conv")
    role_wo(A)


def role_wo(A):
    SO, SWO = 32, 36
    WR = 64
    A.label("L_wo")
    srd(A, SWO, S_WO, NB_WO)
    if Opt.wopf == "kv":
        Ls = A.newlabel("L_nopf")
        A("s_cmp_lt_u32 s99, 8")
        A(f"s_cbranch_scc1 {Ls}")
        A("s_lshl_b32 s52, s99, 2")
        A("s_add_u32 s52, s52, s48")
        A("s_sub_u32 s52, s52, 32")
        A("s_lshl_b32 s52, s52, 13")
        A(f"s_add_u32 s53, s52, {64*8192}")
        A("v_lshlrev_b32 v2, 7, v1")
        A(f"buffer_load_dword v24, v2, s[{SWO}:{SWO+3}], s52 offen")
        A(f"buffer_load_dword v25, v2, s[{SWO}:{SWO+3}], s53 offen")
        A.label(Ls)
    A("v_lshrrev_b32 v2, 2, v1")
    A("v_and_b32 v3, 3, v1")
    A("v_mul_u32_u24 v4, 1280, v2")
    A("v_lshl_add_u32 v4, v3, 4, v4")
    for i in range(1, 4):
        A(f"v_add_u32 v{4+i}, {i*(16*1280-1024)}, v4")
    A(f"v_add_u32 v8, {4*16*1280}, v4")
    A("s_lshr_b32 s50, s99, 2")
    A("s_sub_u32 s50, s50, 1")
    A("s_max_i32 s50, s50, 0")
    A("s_lshl_b32 s52, s50, 8")
    A("s_lshl_b32 s53, s48, 6")
    A("s_add_u32 s52, s52, s53")
    A("s_mov_b32 s51, s52")
    A("s_mul_i32 s53, s48, 20480")
    A("s_cmp_lt_u32 s99, 8")
    A(f"s_cselect_b32 s54, 0, {L_WOB}")
    A("s_add_u32 s53, s53, s54")

    def cbuf(c):
        return 5120 + ((c + 1) % 3) * 5120

    def chunk(c):
        b = cbuf(c)
        A(f"s_add_u32 m0, s53, {b}")
        for i in range(4):
            A(f"buffer_load_dwordx4 v{4+i}, s[{SWO}:{SWO+3}], s51 offen offset:{1024*i} lds")
        A(f"s_add_u32 m0, s53, {b+4096}")
        A(f"buffer_load_dwordx4 v8, s[{SWO}:{SWO+3}], s51 offen lds")
        A(f"s_add_u32 s51, s51, {80*1280}")

    Lj = A.newlabel("L_woj")
    chunk(0)
    A("s_cmp_lt_u32 s99, 8")
    A(f"s_cbranch_scc1 {Lj}")
    A("s_barrier")
    A.label(Lj)
    chunk(1)
    chunk(2)
    A("v_bfe_u32 v10, v1, 2, 2")
    A("v_lshrrev_b32 v11, 5, v1")
    A("v_and_b32 v12, 1, v1")
    A("v_lshlrev_b32 v12, 5, v12")
    A("v_bfe_u32 v13, v1, 4, 1")
    A("v_lshl_add_u32 v12, v13, 4, v12")
    A("v_bfe_u32 v13, v1, 1, 1")
    A("v_lshl_add_u32 v12, v13, 3, v12")
    A("v_lshl_add_u32 v12, v10, 6, v12")
    A("v_add_u32 v12, s53, v12")
    A("v_lshl_add_u32 v13, v11, 8, v12")
    A("v_mul_u32_u24 v14, 2560, v11")
    A("v_add_u32 v14, v14, v12")
    A("v_and_b32 v9, 31, v1")
    A("v_lshrrev_b32 v15, 4, v1")
    A("v_lshlrev_b32 v15, 7, v15")
    A("v_lshlrev_b32 v18, 4, v1")
    o_index(A)
    tag_check(A, 20)

    def take(c):
        b = cbuf(c)
        for hh in range(4):
            for half in range(2):
                A(f"ds_read_b64_tr_b16 {vr(WR+4*(4*c+hh)+2*half,2)}, v13 offset:{b+(20*hh+8*half)*64}")
        for half in range(2):
            A(f"ds_read_b64_tr_b16 {vr(WR+128+4*c+2*half,2)}, v14 offset:{b+(20*half+16)*64}")

    Lq2 = A.newlabel("L_woq")
    for c in range(6):
        A("s_waitcnt vmcnt(10)")
        take(c)
        A("s_waitcnt lgkmcnt(0)")
        if c + 3 < 8:
            chunk(c + 3)
    stamp(A, 14)
    A("s_cmp_lt_u32 s99, 8")
    A(f"s_cbranch_scc1 {Lq2}")
    A("s_lshr_b32 s54, s62, 3")
    A("s_lshl_b32 s54, s54, 4")
    A("s_add_u32 s54, s54, s63")
    A("s_lshl_b32 s54, s54, 9")
    A(f"s_add_u32 s54, s54, {F2:#x}")
    A("s_lshl_b32 s55, s62, 4")
    A("s_add_u32 s55, s55, s63")
    A("s_mul_i32 s55, s55, 5120")
    poll(A, 16, 15, "s54", sleep=4)
    A("s_mov_b32 m0, s53")
    A("s_add_u32 s54, s55, 4096")
    for i in range(4):
        A(f"buffer_load_dwordx4 v18, s[{SWS}:{SWS+3}], s55 offen offset:{1024*i}{SC} lds")
    A("s_add_u32 m0, s53, 4096")
    A(f"buffer_load_dwordx4 v18, s[{SWS}:{SWS+3}], s54 offen{SC} lds")
    A("s_lshl_b32 s54, s48, 2")
    A(f"s_add_u32 s54, s54, {L_SYNC+16}")
    A("s_waitcnt vmcnt(0)")
    lds_arrive(A, 16, "s54")
    stamp(A, 7)
    A("s_lshl_b32 s54, s62, 2")
    A("s_add_u32 s54, s54, s48")
    A("s_mul_i32 s55, s54, 10240")
    A(f"s_add_u32 s55, s55, {WS_PART:#x}")
    A("s_lshl_b32 s54, s54, 9")
    A(f"s_add_u32 s54, s54, {F1:#x}")
    A("v_min_u32 v19, 20, v9")
    A("v_and_b32 v20, 32, v1")
    A("v_add_u32 v19, v19, v20")
    A("v_lshlrev_b32 v20, 3, v19")
    A("v_lshlrev_b32 v19, 4, v19")
    A("v_add_u32 v21, s53, v18")
    A("v_add_u32 v21, 5120, v21")
    A("s_mov_b32 s59, 0xffff0000")
    lds_wait(A, 16, L_SYNC + 4, 4, sleep=2)
    ppoll(A, 244, 15, "s54", sleep=Opt.psleep)
    stamp(A, 12)
    PR = [24, 34, 44, 54]
    SM, TP = 224, 244
    for p in range(4):
        A(f"buffer_load_dwordx4 {vr(PR[p],4)}, v19, s[{SWS}:{SWS+3}], s55 offen{SC}")
        A(f"buffer_load_dwordx4 {vr(PR[p]+4,4)}, v19, s[{SWS}:{SWS+3}], s55 offen offset:1024{SC}")
        A(f"buffer_load_dwordx2 {vr(PR[p]+8,2)}, v20, s[{SWS}:{SWS+3}], s55 offen offset:2048{SC}")
        if p < 3:
            A("s_add_u32 s55, s55, 2560")
    A("s_setprio 3")
    for p in range(4):
        A(f"s_waitcnt vmcnt({9-3*p})")
        for i in range(10):
            d = SM + 2 * i if p == 0 else TP + 2 * (i % 5)
            A(f"v_lshlrev_b32 v{d}, 16, v{PR[p]+i}")
            A(f"v_and_b32 v{d+1}, s59, v{PR[p]+i}")
            if p:
                A(f"v_pk_add_f32 {vr(SM+2*i,2)}, {vr(SM+2*i,2)}, {vr(d,2)}")
    for q in range(5):
        A(f"ds_write_b128 v21, {vr(SM+4*q,4)} offset:{1024*q}")
    lds_arrive(A, 16, L_SYNC + 8)
    A("s_setprio 0")
    stamp(A, 13)
    A.label(Lq2)
    A("s_waitcnt vmcnt(0)")
    take(6)
    take(7)
    srd(A, SO, S_OUT, NB_OUT)
    A("s_and_b32 s54, s99, 3")
    A("s_lshl_b32 s55, s98, 2")
    A("s_add_u32 s54, s54, s55")
    A("s_lshr_b32 s55, s54, 1")
    A("s_lshl_b32 s55, s55, 12")
    A(f"s_add_u32 s55, s55, {F3:#x}")
    A("s_lshl_b32 s57, s48, 10")
    A("s_add_u32 s55, s55, s57")
    A("v_lshrrev_b32 v15, 3, v1")
    A("v_lshlrev_b32 v15, 7, v15")
    A("s_mul_i32 s57, s54, 81920")
    A(f"s_add_u32 s57, s57, {WS_O:#x}")
    A("s_lshr_b32 s58, s48, 1")
    A("s_mul_i32 s58, s58, 40960")
    A("s_and_b32 s59, s48, 1")
    A("s_lshl_b32 s59, s59, 12")
    A("s_add_u32 s58, s58, s59")
    A("s_add_u32 s57, s57, s58")
    A(f"s_add_u32 s58, s58, {L_OT}")
    A("v_mov_b32 v5, v18")
    A(f"v_add_u32 v6, {L_OT}, v5")
    A(f"v_add_u32 v7, {L_OT+40960}, v5")
    A("v_lshlrev_b32 v10, 3, v9")
    A("v_lshl_add_u32 v10, v11, 9, v10")
    A(f"v_add_u32 v10, {L_OT+32768}, v10")
    A("s_mul_i32 s56, s48, 5120")
    A("s_waitcnt lgkmcnt(0)")
    A("v_mul_u32_u24 v12, 80, v9")
    A("v_lshl_add_u32 v12, v11, 5, v12")
    A("v_add_u32 v12, s56, v12")
    A("v_mul_u32_u24 v13, 80, v2")
    A("v_lshl_add_u32 v13, v3, 4, v13")
    A("v_add_u32 v13, s56, v13")
    A("v_mul_u32_u24 v14, 2560, v2")
    A("v_lshl_add_u32 v14, v3, 4, v14")
    A(f"s_mul_i32 s59, s54, {64*2560}")
    A("s_add_u32 s59, s59, s52")
    lds_wait(A, 16, L_SYNC + 12, 4, sleep=2)
    stamp(A, 8)
    ppoll(A, 48, 15, "s55", sleep=Opt.psleep)
    A("s_barrier")
    stamp(A, 9)
    for k in range(5):
        A(f"s_add_u32 m0, s58, {8192*k}")
        for i in range(4):
            A(f"buffer_load_dwordx4 v5, s[{SWS}:{SWS+3}], s57 offen offset:{1024*i}{SC} lds")
        if k < 4:
            A("s_add_u32 s57, s57, 8192")
    if Ctx.stamps:
        A("s_waitcnt lgkmcnt(0)")
    ACC = (16, 32)
    OFB = 224
    T = Lgkm(A)

    def rdx(f):
        if f % 8 == 0:
            A(f"s_waitcnt vmcnt({16 - 4*(f//8)})")
            A("s_barrier")
        for t in range(2):
            d = OFB + 4 * ((2 * f + t) % 8)
            if f < 32:
                T.issue(f"ds_read_b128 {vr(d,4)}, v{6+t} offset:{1024*f}", (f, t))
            else:
                a = f - 32
                T.issue(f"ds_read_b64 {vr(d,2)}, v10 offset:{40960*t + 1024*a}")
                T.issue(f"ds_read_b64 {vr(d+2,2)}, v10 offset:{40960*t + 1024*a + 256}", (f, t))

    for f in range(3):
        rdx(f)
    for f in range(40):
        for t in range(2):
            T.wait((f, t))
            c = vr(ACC[t], 16) if f else "0"
            A(f"v_mfma_f32_32x32x16_bf16 {vr(ACC[t],16)}, {vr(WR+4*f,4)}, {vr(OFB+4*((2*f+t)%8),4)}, {c}")
            if t == 0 and f + 3 < 40:
                rdx(f + 3)
    stamp(A, 10)
    for t in range(2):
        for i in range(8):
            A(f"v_cvt_pk_bf16_f32 v{48+8*t+i}, v{ACC[t]+2*i}, v{ACC[t]+2*i+1}")
        for i in range(2):
            A(f"ds_write_b128 v12, {vr(48+8*t+4*i,4)} offset:{2560*t+16*i}")
    A("s_waitcnt lgkmcnt(0)")
    for i in range(4):
        A(f"ds_read_b128 {vr(64+4*i,4)}, v13 offset:{1280*i}")
    for i in range(4):
        A(f"s_waitcnt lgkmcnt({3-i})")
        A(f"buffer_store_dwordx4 {vr(64+4*i,4)}, v14, s[{SO}:{SO+3}], s59 offen{Opt.osc}")
        if i < 3:
            A(f"s_add_u32 s59, s59, {16*2560}")
    stamp(A, 11)
    end_wave(A, True)


def role_compute(A):
    XA, WA, AD = 144, 152, 154
    ACC = 16
    WF = (96, 116)
    XF = (136, 140)
    t0, t1, t2, t3 = 11, 12, 13, 14
    for i in range(80):
        A(f"v_mov_b32 v{ACC+i}, 0")
    A(f"v_and_b32 v{t0}, 255, v0")
    A(f"v_lshlrev_b32 v{t0}, 4, v{t0}")
    A(f"v_add_u32 v{t0}, {L_Z}, v{t0}")
    A(f"ds_write_b128 v{t0}, {vr(ACC,4)}")
    A(f"ds_write_b128 v{t0}, {vr(ACC,4)} offset:64")
    A("s_lshl_b32 s54, s48, 12")
    A(f"v_and_b32 v{t0}, 31, v1")
    A(f"v_lshrrev_b32 v{t1}, 5, v1")
    A(f"v_bfe_u32 v{t2}, v1, 1, 3")
    A(f"v_xor_b32 v{t2}, v{t2}, v{t1}")
    A(f"v_lshlrev_b32 v{t2}, 4, v{t2}")
    A(f"v_lshl_add_u32 v{t2}, v{t0}, 7, v{t2}")
    A(f"v_add_u32 v{XA}, s54, v{t2}")
    for t in range(1, 4):
        A(f"v_xor_b32 v{XA+t}, {32*t}, v{XA}")
    for t in range(4):
        A(f"v_add_u32 v{XA+4+t}, {2*SLOT}, v{XA+t}")
    R8, JJ, HH = 158, 159, 160
    A(f"v_bfe_u32 v{t0}, v1, 2, 2")
    A(f"v_lshl_add_u32 v{R8}, v{t1}, 3, v{t0}")
    A(f"v_bfe_u32 v{t2}, v1, 4, 1")
    A(f"v_bfe_u32 v{t3}, v1, 1, 1")
    A(f"v_lshl_add_u32 v{JJ}, v{t2}, 1, v{t3}")
    A(f"v_and_b32 v{HH}, 1, v1")
    A(f"v_mul_u32_u24 v{t2}, 320, v{R8}")
    A(f"v_mul_u32_u24 v{t3}, 160, v{HH}")
    A(f"v_lshl_add_u32 v{t3}, v{JJ}, 3, v{t3}")
    A(f"v_add_u32 v{WA}, v{t2}, v{t3}")
    A(f"v_add_u32 v{WA}, 16384, v{WA}")
    A(f"v_add_u32 v{WA+1}, {2*SLOT}, v{WA}")
    A("s_movk_i32 s57, 1600")
    A("s_lshl_b32 s57, s57, s51")
    A(f"v_mul_u32_u24 v{t2}, s57, v{HH}")
    A(f"v_mul_u32_u24 v{t3}, 40, v{t0}")
    A(f"v_add_u32 v{t2}, v{t2}, v{t3}")
    A(f"v_lshl_add_u32 v{t2}, v{JJ}, 3, v{t2}")
    A(f"v_add_u32 v{t2}, {L_WP}, v{t2}")
    A(f"v_mov_b32 v{t3}, {L_Z}")
    A(f"v_cmp_eq_u32 vcc, v{HH}, v{t1}")
    A(f"v_cndmask_b32 v{AD}, v{t3}, v{t2}, vcc")
    A(f"v_add_u32 v{t0}, 24, v{t2}")
    A(f"v_cndmask_b32 v{AD+3}, v{t3}, v{t0}, vcc")
    A(f"v_cmp_eq_u32 s[58:59], 0, v{JJ}")
    A("s_and_b64 s[62:63], vcc, s[58:59]")
    A("s_andn2_b64 s[58:59], vcc, s[58:59]")
    A(f"v_add_u32 v{t0}, 32, v{t2}")
    A(f"v_cndmask_b32 v{AD+1}, v{t3}, v{t0}, s[62:63]")
    A(f"v_subrev_u32 v{t0}, 8, v{t2}")
    A(f"v_cndmask_b32 v{AD+2}, v{t3}, v{t0}, s[58:59]")
    A(f"v_and_b32 v{t0}, 31, v1")
    A("s_lshl_b32 s57, s48, 5")
    A(f"v_add_u32 v{t0}, s57, v{t0}")
    A(f"v_mul_u32_u24 v8, 176, v{t0}")
    A(f"v_add_u32 v8, {L_V}, v8")
    A(f"v_mul_u32_u24 v{t3}, 80, v{t1}")
    A(f"v_add_u32 v2, v8, v{t3}")
    A(f"v_mul_u32_u24 v{t2}, 336, v{t0}")
    A(f"v_lshl_add_u32 v3, v{t3}, 1, v{t2}")
    A(f"v_mul_u32_u24 v{t0}, 336, v{R8}")
    A(f"v_mul_u32_u24 v{t1}, 5, v{HH}")
    A(f"v_add_u32 v{t1}, v{t1}, v{JJ}")
    A(f"v_lshl_add_u32 v{t0}, v{t1}, 3, v{t0}")
    A("s_mul_i32 s57, s48, 80")
    A(f"v_add_u32 v6, s57, v{t0}")
    A(f"v_lshl_add_u32 v{t0}, v{JJ}, 1, v{HH}")
    A("s_mul_i32 s57, s48, 5")
    A(f"v_add_u32 v{t1}, s57, v{t0}")
    A(f"v_cmp_gt_u32 vcc, 5, v{t0}")
    A(f"v_cndmask_b32 v{t1}, 20, v{t1}, vcc")
    A(f"v_mul_u32_u24 v{t0}, 176, v{R8}")
    A(f"v_lshl_add_u32 v{t0}, v{t1}, 3, v{t0}")
    A(f"v_add_u32 v7, {L_V}, v{t0}")
    A("v_mov_b32 v4, 0x3f803f80")
    A("v_mov_b32 v5, 0x3f803f80")
    WPF = 164
    frags = [(0, 0), (0, 1), (0, 2), (1, 0), (1, 1), (1, 2), (1, 3), (1, 4), (2, 2), (2, 3), (2, 4)]
    for r in (WPF + 4 * 2 + 2, WPF + 4 * 2 + 3, WPF + 4 * 8, WPF + 4 * 8 + 1):
        A(f"v_mov_b32 v{r}, 0")
    A(f"s_mov_b32 s60, {LOG2E:#x}")
    A(f"s_mov_b32 s61, {LOG2E:#x}")
    A("s_waitcnt lgkmcnt(0)")
    srd(A, SWS, S_WS, WS_SIZE)
    A("s_setprio 2")

    def rd_x(s, t, b):
        sl = s % 3
        return f"ds_read_b128 {vr(XF[b],4)}, v{XA + 4*(sl>>1) + t} offset:{(sl&1)*SLOT}"

    def rd_w(s, t, T, half, b):
        sl = s % 3
        return f"ds_read_b64_tr_b16 {vr(WF[b]+4*T+2*half,2)}, v{WA+(sl>>1)} offset:{(sl&1)*SLOT + (16*t+4*half)*320 + 32*T}"

    def wphi_reads(pas):
        L = []
        for fi, (Tp, u) in enumerate(frags):
            for half in range(2):
                dq = 2 * u + half
                r = WPF + 4 * fi + 2 * half
                if (Tp == 0 and dq == 5) or (Tp == 2 and dq == 4):
                    continue
                ad = {(0, 0): AD, (1, 0): AD + 1, (1, 1): AD + 2, (2, 1): AD + 3}[(Tp, dq // 5)]
                L.append(f"ds_read_b64_tr_b16 {vr(r,2)}, v{ad} offset:{dq*160 + pas*1600}")
        return L

    A("s_barrier")
    stampw(A, 3)
    A(rd_x(0, 0, 0))
    for T in range(5):
        A(rd_w(0, 0, T, 0, 0)); A(rd_w(0, 0, T, 1, 0))
    for s in range(10):
        for t in range(4):
            b = t & 1
            last = (s == 9 and t == 3)
            ns, nt = (s, t + 1) if t < 3 else (s + 1, 0)
            prev_remaining = [8, 6, 4, 2, 0]
            issued = 0
            wp = wphi_reads(0) if last else []
            for T in range(5):
                if not (t == 3 and T >= 2):
                    A(f"s_waitcnt lgkmcnt({prev_remaining[T] + issued})")
                A(f"v_mfma_f32_32x32x16_bf16 {vr(ACC+16*T,16)}, {vr(WF[b]+4*T,4)}, {vr(XF[b],4)}, {vr(ACC+16*T,16)}")
                if t < 3:
                    if T == 0:
                        A(rd_x(ns, nt, 1 - b)); issued += 1
                    A(rd_w(ns, nt, T, 0, 1 - b)); A(rd_w(ns, nt, T, 1, 1 - b)); issued += 2
                elif T == 1:
                    A("s_waitcnt lgkmcnt(0)")
                    A("s_barrier")
                    if not last:
                        A(rd_x(ns, nt, 1 - b))
                        for TT in (0, 1):
                            A(rd_w(ns, nt, TT, 0, 1 - b)); A(rd_w(ns, nt, TT, 1, 1 - b))
                    else:
                        for x in wp[:5]:
                            A(x)
                elif T >= 2:
                    if not last:
                        A(rd_w(ns, nt, T, 0, 1 - b)); A(rd_w(ns, nt, T, 1, 1 - b))
                    else:
                        for x in wp[5 * (T - 1):5 * T]:
                            A(x)
    stamp(A, 4)
    tag_issue(A)
    P = 96
    E, F, TT_ = 208, 228, 248

    def phi_mfma(src, acc):
        seen = set()
        for fi, (Tp, u) in enumerate(frags):
            c = vr(acc + 16 * Tp, 16) if Tp in seen else "0"
            seen.add(Tp)
            A(f"v_mfma_f32_32x32x16_bf16 {vr(acc+16*Tp,16)}, {vr(WPF+4*fi,4)}, {vr(src+4*u,4)}, {c}")

    for i in range(40):
        A(f"v_cvt_pk_bf16_f32 v{P+i}, v{ACC+2*i}, v{ACC+2*i+1}")
    Lq = A.newlabel("L_q")
    A("s_cmp_eq_u32 s51, 0")
    A(f"s_cbranch_scc0 {Lq}")
    mq = A.mark()
    for i in range(20):
        A(f"v_permlane32_swap_b32 v{P+i}, v{P+20+i}")
    tag_check(A, 10)
    phi_mfma(P, ACC)
    for i in range(5):
        A(f"ds_write_b128 v2, {vr(P+20+4*i,4)} offset:{16*i}")
    A("ds_write_b64 v8, v[4:5] offset:160")
    for grp, ph in ((0, 64), (1, 96)):
        softmax20(A, ACC + 20 * grp, E, F, TT_, ph)
        for i in range(5):
            A(f"ds_write_b128 v3, {vr(ph+4*i,4)} offset:{80*grp+16*i}")
    stamp(A, 5)
    lds_arrive(A, 10, L_SYNC)
    A("s_lshl_b32 s57, s50, 2")
    A("s_add_u32 s57, s57, s48")
    A("s_lshl_b32 s57, s57, 4")
    A("s_add_u32 s57, s57, s49")
    A("s_lshl_b32 s59, s57, 7")
    A(f"s_add_u32 s59, s59, {F1:#x}")
    A("s_mul_i32 s57, s57, 2560")
    A(f"s_add_u32 s57, s57, {WS_PART:#x}")
    A("v_lshlrev_b32 v2, 4, v1")
    A("v_lshlrev_b32 v3, 3, v1")
    lds_wait(A, 10, None, 4)
    FA = 64
    T = Lgkm(A)
    for u in range(10):
        if u < 8:
            for half in range(2):
                o = (16 * u + 4 * half)
                T.issue(f"ds_read_b64_tr_b16 {vr(FA+12*u+2*half,2)}, v6 offset:{o*336}")
                T.issue(f"ds_read_b64_tr_b16 {vr(FA+12*u+4+2*half,2)}, v6 offset:{o*336+32}")
                T.issue(f"ds_read_b64_tr_b16 {vr(FA+12*u+8+2*half,2)}, v7 offset:{o*176}", u)
        if u >= 2:
            uu = u - 2
            T.wait(uu)
            for TT in range(2):
                c = vr(ACC + 16 * TT, 16) if uu else "0"
                A(f"v_mfma_f32_32x32x16_bf16 {vr(ACC+16*TT,16)}, {vr(FA+12*uu+4*TT,4)}, {vr(FA+12*uu+8,4)}, {c}")
    o_index(A)
    for i in range(10):
        A(f"v_cvt_pk_bf16_f32 v{48+i}, v{ACC+2*i}, v{ACC+2*i+1}")
    A(f"buffer_store_dwordx2 v[56:57], v3, s[{SWS}:{SWS+3}], s57 offen offset:2048{SC}")
    A("s_mov_b32 exec_lo, 0x00ffffff")
    A("s_mov_b32 exec_hi, 0x00ffffff")
    A(f"buffer_store_dwordx4 v[48:51], v2, s[{SWS}:{SWS+3}], s57 offen{SC}")
    A(f"buffer_store_dwordx4 v[52:55], v2, s[{SWS}:{SWS+3}], s57 offen offset:1024{SC}")
    A("s_mov_b64 exec, -1")
    stamp(A, 6)
    role_o(A)
    end_wave(A)
    A.label(Lq)
    hq = A.mark()
    A("s_nop 1")
    tag_check(A, 10)
    phi_mfma(P, ACC)
    A(f"v_and_b32 v{t0}, 31, v1")
    A(f"v_lshrrev_b32 v{t1}, 5, v1")
    A(f"s_mov_b32 s57, {4*64*1280}")
    A(f"v_mul_lo_u32 v{t1}, s57, v{t1}")
    A(f"v_lshl_add_u32 v2, v{t0}, 4, v{t1}")
    A(f"v_lshl_add_u32 v3, v{t0}, 3, v{t1}")
    A("s_lshl_b32 s58, s49, 2")
    A("s_add_u32 s58, s58, s48")
    for x in wphi_reads(1):
        A(x)
    A("s_lshl_b32 s59, s50, 6")
    A("s_add_u32 s59, s59, s58")
    A("s_lshl_b32 s59, s59, 7")
    A(f"s_add_u32 s59, s59, {F2:#x}")
    A("s_lshl_b32 s57, s50, 9")
    A("s_add_u32 s57, s57, s58")
    A("s_mul_i32 s57, s57, 1280")
    A("s_waitcnt lgkmcnt(0)")
    phi_mfma(P + 20, 208)
    for hs in range(4):
        x = (ACC, ACC + 20, 208, 228)[hs]
        o = 64 + 10 * hs if hs < 3 else 96
        for i in range(10):
            A(f"v_cvt_pk_bf16_f32 v{o+i}, v{x+2*i}, v{x+2*i+1}")
        A(f"buffer_store_dwordx4 {vr(o,4)}, v2, s[{SWS}:{SWS+3}], s57 offen{SC}")
        A(f"buffer_store_dwordx4 {vr(o+4,4)}, v2, s[{SWS}:{SWS+3}], s57 offen offset:512{SC}")
        A(f"buffer_store_dwordx2 {vr(o+8,2)}, v3, s[{SWS}:{SWS+3}], s57 offen offset:1024{SC}")
        if hs < 3:
            A(f"s_add_u32 s57, s57, {64*1280}")
    stamp(A, 6)
    set_flag(A, 10, "s59")
    stamp(A, 7)
    A.check_seam(mq, hq)
    A("s_setprio 0")
    A("s_cmp_lt_u32 s99, 4")
    A("s_cbranch_scc1 L_wo")
    if Opt.hold:
        if Opt.holdwg >= 0:
            A(f"s_cmp_eq_u32 s2, {Opt.holdwg}")
            A("s_cbranch_scc0 L_exit")
        A.label("L_hold")
        A("s_sleep 4")
        A("s_memrealtime s[66:67]")
        A("s_waitcnt lgkmcnt(0)")
        A("s_sub_u32 s66, s66, s64")
        A(f"s_cmp_lt_u32 s66, {Opt.hold}")
        A("s_cbranch_scc1 L_hold")
    end_wave(A)


def role_o(A):
    NT = 4
    RAW, X, PQ = 64, 104, 128
    A("s_mul_i32 s53, s48, 20480")
    A(f"s_add_u32 s53, s53, {L_WOB}")
    A("v_and_b32 v4, 31, v1")
    A("v_lshl_add_u32 v5, v4, 4, s53")
    A("v_lshl_add_u32 v6, v4, 3, s53")
    A("v_and_b32 v7, 32, v1")
    A("v_lshlrev_b32 v7, 26, v7")
    A("s_lshl_b32 s54, s48, 2")
    A(f"s_add_u32 s54, s54, {L_SYNC+16}")
    A("s_mov_b32 s58, 0xffff0000")
    for t in range(NT):
        A(f"v_mov_b32 v{PQ+12*t+10}, 0")
        A(f"v_mov_b32 v{PQ+12*t+11}, 0")
    set_flag(A, 10, "s59")
    lds_arrive(A, 14, L_SYNC + 4)
    stamp(A, 7)
    lds_wait(A, 14, "s54", 1)
    stampw(A, 8)
    T = Lgkm(A)
    for t in range(NT):
        T.issue(f"ds_read_b128 {vr(RAW+10*t,4)}, v5 offset:{1280*t}")
        T.issue(f"ds_read_b128 {vr(RAW+10*t+4,4)}, v5 offset:{1280*t+512}")
        T.issue(f"ds_read_b64 {vr(RAW+10*t+8,2)}, v6 offset:{1280*t+1024}", t)
    A("s_lshl_b32 s57, s63, 2")
    A("s_mul_i32 s54, s57, 40960")
    A(f"s_add_u32 s54, s54, {WS_O:#x}")
    A("s_lshl_b32 s59, s62, 8")
    A("s_add_u32 s59, s59, s54")
    A("s_add_u32 s59, s59, 32768")
    A("s_lshl_b32 s57, s62, 10")
    A("s_add_u32 s54, s54, s57")
    A("s_lshl_b32 s50, s63, 5")
    A("s_add_u32 s50, s50, s62")
    A("s_lshl_b32 s50, s50, 7")
    A(f"s_add_u32 s50, s50, {F3:#x}")
    mx, se = 124, 126
    for t in range(NT):
        T.wait(t)
        for i in range(10):
            A(f"v_lshl_add_u32 v{X+2*i}, v{RAW+10*t+i}, 16, v7")
            A(f"v_bitop3_b32 v{X+2*i+1}, v{RAW+10*t+i}, s58, v7 bitop3:0x6a")
        A(f"v_max3_f32 v{mx}, v{X}, v{X+1}, v{X+2}")
        A(f"v_max3_f32 v{mx+1}, v{X+3}, v{X+4}, v{X+5}")
        for i in range(6, 18, 4):
            A(f"v_max3_f32 v{mx}, v{mx}, v{X+i}, v{X+i+1}")
            A(f"v_max3_f32 v{mx+1}, v{mx+1}, v{X+i+2}, v{X+i+3}")
        A(f"v_max3_f32 v{mx}, v{mx}, v{X+18}, v{X+19}")
        A(f"v_max_f32 v{mx}, v{mx}, v{mx+1}")
        A(f"v_mul_f32 v{mx}, s60, v{mx}")
        for i in range(0, 20, 2):
            A(f"v_pk_fma_f32 {vr(X+i,2)}, {vr(X+i,2)}, s[60:61], {vr(mx,2)} op_sel_hi:[1,1,0] neg_lo:[0,0,1] neg_hi:[0,0,1]")
        for i in range(20):
            A(f"v_exp_f32 v{X+i}, v{X+i}")
        A(f"v_pk_add_f32 {vr(se,2)}, {vr(X,2)}, {vr(X+2,2)}")
        A(f"v_pk_add_f32 {vr(mx,2)}, {vr(X+4,2)}, {vr(X+6,2)}")
        for i in range(8, 20, 4):
            A(f"v_pk_add_f32 {vr(se,2)}, {vr(se,2)}, {vr(X+i,2)}")
            A(f"v_pk_add_f32 {vr(mx,2)}, {vr(mx,2)}, {vr(X+i+2,2)}")
        A(f"v_pk_add_f32 {vr(se,2)}, {vr(se,2)}, {vr(mx,2)}")
        A(f"v_add_f32 v{se}, v{se}, v{se+1}")
        A(f"v_rcp_f32 v{se}, v{se}")
        for i in range(0, 20, 2):
            A(f"v_pk_mul_f32 {vr(X+i,2)}, {vr(X+i,2)}, {vr(se,2)} op_sel_hi:[1,0]")
        for i in range(10):
            A(f"v_cvt_pk_bf16_f32 v{PQ+12*t+i}, v{X+2*i}, v{X+2*i+1}")
    stamp(A, 9)
    A(f"v_add_u32 v8, {L_WOB+5120}, v2")
    A(f"v_add_u32 v9, {L_WOB+5120+40960}, v2")
    KF = 16
    A(f"v_mov_b32 v{KF+10}, 0")
    A(f"v_mov_b32 v{KF+11}, 0")
    lds_wait(A, 14, L_SYNC + 8, 4)
    stampw(A, 10)
    PR = 32
    T = Lgkm(A)
    for q in range(5):
        for p in range(4):
            T.issue(f"ds_read_b128 {vr(PR+16*q+4*p,4)}, v{8+(p>>1)} offset:{20480*(p&1)+1024*q}", q)
    for q in range(5):
        T.wait(q)
        b = PR + 16 * q
        for h in (0, 2):
            A(f"v_pk_add_f32 {vr(b+h,2)}, {vr(b+h,2)}, {vr(b+4+h,2)}")
            A(f"v_pk_add_f32 {vr(b+8+h,2)}, {vr(b+8+h,2)}, {vr(b+12+h,2)}")
        for h in (0, 2):
            A(f"v_pk_add_f32 {vr(b+h,2)}, {vr(b+h,2)}, {vr(b+8+h,2)}")
        for h in (0, 2):
            A(f"v_cvt_pk_bf16_f32 v{KF+2*q+h//2}, v{b+h}, v{b+h+1}")
    D = [176, 192, 208, 224]
    OP = [32, 40, 48, 56]

    def mf(t):
        for u in range(3):
            c = vr(D[t], 16) if u else "0"
            A(f"v_mfma_f32_32x32x16_bf16 {vr(D[t],16)}, {vr(KF+4*u,4)}, {vr(PQ+12*t+4*u,4)}, {c}")

    if Opt.dA:
        A(f"s_sleep {Opt.dA}")
    mf(0)
    mf(1)
    for t in range(NT):
        d, o = D[t], OP[t]
        A(f"v_add_f32 v10, 0x358637bd, v{d+12}")
        A("v_rcp_f32 v10, v10")
        if t + 2 < NT:
            mf(t + 2)
        for i in range(12):
            A(f"v_mul_f32 v{d+i}, v10, v{d+i}")
        for i in range(6):
            A(f"v_cvt_pk_bf16_f32 v{o+i}, v{d+2*i}, v{d+2*i+1}")
        A(f"buffer_store_dwordx4 {vr(o,4)}, v2, s[{SWS}:{SWS+3}], s54 offen{SC}")
        A("s_mov_b32 exec_hi, 0")
        A(f"buffer_store_dwordx2 {vr(o+4,2)}, v3, s[{SWS}:{SWS+3}], s59 offen{SC}")
        A("s_mov_b64 exec, -1")
        if t < NT - 1:
            A("s_add_u32 s54, s54, 40960")
            A("s_add_u32 s59, s59, 40960")
    stamp(A, 11)
    set_flag(A, 12, "s50")
    lds_arrive(A, 16, L_SYNC + 12)
    stamp(A, 12)


def b_channel(A):
    A("s_mul_i32 s49, s98, 80")
    A("s_sub_u32 s50, s99, 24")
    A("s_mul_i32 s50, s50, 6")
    A("s_add_u32 s49, s49, s50")
    A("s_add_u32 s49, s49, s48")
    A(f"s_mul_i32 s56, s48, {CV_LDS}")


def conv_load_h(A, v):
    SH = 40
    srd(A, SH, S_SSK, NB_SSK)
    A(f"v_lshlrev_b32 v{v}, 4, v1")
    A("s_lshl_b32 s50, s49, 12")
    A("s_add_u32 m0, s56, 64")
    for i in range(4):
        A(f"buffer_load_dwordx4 v{v}, s[{SH}:{SH+3}], s50 offen offset:{1024*i}{Opt.nt_s} lds")


def f0_lines(A, c0, c1, v):
    A(f"s_lshr_b32 s52, s{c0}, 6")
    A("s_mul_i32 s52, s52, 419431")
    A("s_lshr_b32 s52, s52, 16")
    A(f"s_lshr_b32 s53, s{c1}, 6")
    A("s_mul_i32 s53, s53, 419431")
    A("s_add_u32 s53, s53, 406324")
    A("s_lshr_b32 s53, s53, 16")
    A(f"v_lshrrev_b32 v{v}, 2, v1")
    A(f"v_add_u32 v{v}, s52, v{v}")
    A(f"v_min_u32 v{v}, s53, v{v}")
    A(f"v_lshlrev_b32 v{v}, 7, v{v}")
    A(f"s_mov_b32 s52, {F0:#x}")


def role_pre(A):
    SK, SV, SS = 32, 36, 40
    t0, t1, t2 = 2, 3, 4
    A("s_lshl_b32 s49, s98, 3")
    A("s_add_u32 s49, s49, s99")
    A("s_sub_u32 s49, s49, 24")
    A("s_mul_i32 s49, s49, 5")
    A("s_add_u32 s49, s49, s48")
    A("s_and_b32 s50, s49, 31")
    A("s_lshr_b32 s51, s49, 5")
    A(f"s_mul_i32 s52, s50, {64*1280}")
    A("s_lshl_b32 s53, s51, 7")
    A("s_add_u32 s52, s52, s53")
    A(f"v_lshrrev_b32 v{t0}, 3, v1")
    A(f"v_and_b32 v{t1}, 7, v1")
    A(f"v_mul_u32_u24 v{t2}, {8*1280}, v{t0}")
    A(f"v_lshl_add_u32 v{t2}, v{t1}, 4, v{t2}")
    A(f"v_add_u32 v5, s52, v{t2}")
    A(f"v_subrev_u32 v6, {3*1280}, v5")
    A(f"v_subrev_u32 v7, {2*1280}, v5")
    A(f"v_subrev_u32 v8, {1280}, v5")
    A(f"v_lshlrev_b32 v9, 6, v{t1}")
    A("s_lshl_b32 s54, s51, 9")
    A(f"s_movk_i32 s55, {4*1280}")
    A("s_waitcnt lgkmcnt(0)")
    srd(A, SK, S_BK, NB_X)
    srd(A, SV, S_BV, NB_X)
    srd(A, SS, S_SH, NB_SH)
    WR, KR, VR = 16, 32, 76
    for i in range(4):
        A(f"buffer_load_dwordx4 {vr(WR+4*i,4)}, v9, s[{SS}:{SS+3}], s54 offen offset:{16*i}")
    for i in range(3):
        A(f"buffer_load_dwordx4 {vr(KR+4*i,4)}, v{6+i}, s[{SK}:{SK+3}], 0 offen{Opt.nt_s}")

    order = []

    def ld(kind, i):
        so = "0" if i < 4 else "s55"
        if kind == "k":
            A(f"buffer_load_dwordx4 {vr(KR+12+4*i,4)}, v5, s[{SK}:{SK+3}], {so} offen offset:{1280*(i&3)}{Opt.nt_s}")
        else:
            A(f"buffer_load_dwordx4 {vr(VR+4*i,4)}, v5, s[{SV}:{SV+3}], {so} offen offset:{1280*(i&3)}{Opt.nt_s}")
        order.append((kind, i))

    for i in (5, 6, 7):
        ld("k", i)
    ld("k", 0); ld("v", 0); ld("k", 1); ld("v", 1)
    todo = [("k", 2), ("v", 2), ("k", 3), ("v", 3), ("k", 4), ("v", 4), ("v", 5), ("v", 6), ("v", 7)]
    stamp(A, 2)
    srd(A, SWS, S_WS, WS_SIZE)
    A("s_mul_i32 s56, s48, 8320")
    A(f"s_add_u32 s56, s56, {B_PRE}")
    A(f"v_mul_u32_u24 v10, 1040, v{t1}")
    A(f"v_lshl_add_u32 v10, v{t0}, 4, v10")
    A("v_add_u32 v10, s56, v10")
    A("v_lshrrev_b32 v11, 4, v1")
    A("v_lshlrev_b32 v11, 8, v11")
    A("v_and_b32 v12, 3, v1")
    A("v_lshl_add_u32 v11, v12, 6, v11")
    A("v_bfe_u32 v12, v1, 2, 2")
    A("v_lshl_add_u32 v11, v12, 3, v11")
    A("v_add_u32 v11, s56, v11")
    A(f"v_lshlrev_b32 v12, 12, v{t0}")
    A(f"v_lshl_add_u32 v12, v{t1}, 4, v12")
    A("s_lshl_b32 s57, s51, 18")
    A("s_lshl_b32 s58, s50, 7")
    A("s_add_u32 s57, s57, s58")
    A(f"s_add_u32 s57, s57, {WS_KVT:#x}")
    A("s_mov_b32 s59, 0xffff0000")
    WF, KF, VF, TA, OUT = 108, 140, 172, 180, 196

    def unpack(dst, src, n):
        for i in range(n):
            A(f"v_lshlrev_b32 v{dst+2*i}, 16, v{src+i}")
            A(f"v_and_b32 v{dst+2*i+1}, s59, v{src+i}")

    A(f"s_waitcnt vmcnt({3+len(order)})")
    ld(*todo.pop(0)); ld(*todo.pop(0))
    for c in range(8):
        A(f"v_lshlrev_b32 v{WF+c}, 16, v{WR+2*c}")
        A(f"v_and_b32 v{WF+8+c}, s59, v{WR+2*c}")
        A(f"v_lshlrev_b32 v{WF+16+c}, 16, v{WR+2*c+1}")
        A(f"v_and_b32 v{WF+24+c}, s59, v{WR+2*c+1}")
    A(f"s_waitcnt vmcnt({len(order)})")
    ld(*todo.pop(0)); ld(*todo.pop(0))
    for i in range(3):
        unpack(KF + 8 * i, KR + 4 * i, 4)
    for i in range(8):
        need = max(order.index(("k", i)), order.index(("v", i)))
        A(f"s_waitcnt vmcnt({len(order)-1-need})")
        for _ in range(2):
            if todo:
                ld(*todo.pop(0))
        if i == 2:
            b_channel(A)
            conv_load_h(A, 13)
            order.extend([None] * 4)
        unpack(KF + 8 * ((i + 3) & 3), KR + 12 + 4 * i, 4)
        unpack(VF, VR + 4 * i, 4)
        acc = TA + 8 * (i & 1)
        for j in (3, 2, 1, 0):
            kk = KF + 8 * ((i + 3 - j) & 3)
            for c in range(0, 8, 2):
                if j == 3:
                    A(f"v_pk_mul_f32 {vr(acc+c,2)}, {vr(kk+c,2)}, {vr(WF+8*j+c,2)}")
                else:
                    A(f"v_pk_fma_f32 {vr(acc+c,2)}, {vr(kk+c,2)}, {vr(WF+8*j+c,2)}, {vr(acc+c,2)}")
        for c in range(0, 8, 2):
            A(f"v_pk_mul_f32 {vr(acc+c,2)}, {vr(acc+c,2)}, {vr(VF+c,2)}")
        if i & 1:
            for c in range(8):
                A(f"v_cvt_pk_bf16_f32 v{OUT+4*c+i//2}, v{TA+c}, v{TA+8+c}")
    stamp(A, 3)
    for c in range(8):
        A(f"ds_write_b128 v10, {vr(OUT+4*c,4)} offset:{128*c}")
    A("s_waitcnt lgkmcnt(0)")
    T = Lgkm(A)
    for i in range(8):
        T.issue(f"ds_read_b64_tr_b16 {vr(16+4*i,2)}, v11 offset:{1040*i}")
        T.issue(f"ds_read_b64_tr_b16 {vr(18+4*i,2)}, v11 offset:{1040*i+32}", i)
    for i in range(8):
        T.wait(i)
        A(f"buffer_store_dwordx4 {vr(16+4*i,4)}, v12, s[{SWS}:{SWS+3}], s57 offen{SC}")
        if i < 7:
            A(f"s_add_u32 s57, s57, {8*4096}")
    A("s_waitcnt vmcnt(0)")
    stamp(A, 4)


def role_helper(A):
    SD = 40
    A("s_setprio 3")
    A("s_waitcnt lgkmcnt(0)")
    srd(A, SWS, S_WS, WS_SIZE)
    srd(A, SD, S_DBG, 256)
    Lz = A.newlabel("L_nz")
    A("s_cmp_eq_u32 s2, 192")
    A(f"s_cbranch_scc0 {Lz}")
    A("s_cmp_eq_u32 s48, 5")
    A(f"s_cbranch_scc0 {Lz}")
    A(f"s_mov_b32 s57, {WS_EPOCH:#x}")
    A("s_mov_b64 exec, 1")
    A(f"buffer_load_dword v4, off, s[{SWS}:{SWS+3}], s57{SC}")
    A("s_waitcnt vmcnt(0)")
    A("v_add_u32 v4, 1, v4")
    A("v_not_b32 v5, v4")
    A(f"buffer_store_dwordx2 v[4:5], off, s[{SD}:{SD+3}], 0{SC}")
    A(f"buffer_store_dword v4, off, s[{SWS}:{SWS+3}], s57{SC}")
    A("s_mov_b64 exec, -1")
    stamp(A, 2)
    A.label(Lz)
    if Opt.gpf:
        A("s_sub_u32 s50, s99, 24")
        A("s_mul_i32 s50, s50, 3")
        A("s_add_u32 s50, s50, s48")
        A("s_sub_u32 s50, s50, 5")
        A("s_and_b32 s51, s98, 3")
        A("s_lshl_b32 s51, s51, 3")
        A("s_add_u32 s51, s51, s50")
        A(f"s_mul_i32 s51, s51, {64*1280}")
        A("s_sub_u32 s52, s50, 8")
        A("s_mul_i32 s53, s52, 52")
        A("s_lshr_b32 s53, s53, 8")
        A("s_mul_i32 s53, s53, 640")
        A("s_lshl_b32 s52, s52, 7")
        A("s_add_u32 s52, s52, s53")
        A("s_lshr_b32 s53, s98, 2")
        A("s_mul_i32 s53, s53, 640")
        A("s_add_u32 s52, s52, s53")
        A("s_cmp_eq_u32 s50, 23")
        A(f"s_cselect_b32 s52, {NB_W:#x}, s52")
        A("s_cmp_lt_u32 s50, 8")
        A("s_cselect_b32 s51, s51, s52")
        A(f"s_cselect_b64 s[32:33], s[{S_X}:{S_X+1}], s[{S_W}:{S_W+1}]")
        A(f"s_mov_b32 s53, {NB_W:#x}")
        A(f"s_cselect_b32 s34, {NB_X:#x}, s53")
        A("s_mov_b32 s35, 0x20000")
        A("s_movk_i32 s53, 3840")
        A("s_cselect_b32 s52, 1280, s53")
        A(f"s_mov_b32 s53, {64*3840}")
        A("s_cselect_b32 s53, 128, s53")
        A("v_mul_u32_u24 v2, s52, v1")
        A(f"s_mul_i32 s52, s53, {Opt.gpf}")
        A("s_add_u32 s51, s51, s52")
        for k, st in enumerate(range(Opt.gpf, 10)):
            if k >= Opt.gpfd:
                A(f"s_waitcnt vmcnt({Opt.gpfd-1})")
            A(f"buffer_load_dword v{30+k}, v2, s[32:35], s51 offen")
            A("s_add_u32 s51, s51, s53")
    if Opt.codepf:
        Lp = A.newlabel("L_npf")
        A("s_cmp_eq_u32 s48, 6")
        A(f"s_cbranch_scc0 {Lp}")
        A("s_getpc_b64 s[50:51]")
        A.label("L_pc")
        A(f"s_sub_u32 s50, s50, L_pc-{NAME}_kernel")
        A("s_subb_u32 s51, s51, 0")
        A("s_sub_u32 s52, s99, 24")
        A("s_lshl_b32 s52, s52, 13")
        A("v_lshl_add_u32 v2, v1, 7, s52")
        A(f"v_min_u32 v2, L_code_end-{NAME}_kernel-4, v2")
        A("global_load_dword v24, v2, s[50:51]")
        if Opt.womall:
            srd(A, 36, S_WO, NB_WO)
            A("s_sub_u32 s52, s2, 192")
            A("s_lshl_b32 s52, s52, 14")
            A("s_add_u32 s53, s52, 8192")
            A("v_lshlrev_b32 v2, 7, v1")
            A("buffer_load_dword v25, v2, s[36:39], s52 offen")
            A("buffer_load_dword v26, v2, s[36:39], s53 offen")
        A.label(Lp)
    A("s_setprio 0")
    L6 = A.newlabel("L_h6")
    Lx = A.newlabel("L_h67")
    A("s_cmp_eq_u32 s48, 5")
    A(f"s_cbranch_scc0 {L6}")
    b_channel(A)
    conv_load_h(A, 2)
    A("s_branch L_bconv")
    A.label(L6)
    A("s_mul_i32 s54, s98, 80")
    A("s_sub_u32 s50, s99, 24")
    A("s_mul_i32 s55, s50, 6")
    A("s_add_u32 s54, s54, s55")
    A("s_add_u32 s55, s54, 5")
    f0_lines(A, 54, 55, 12)
    A("s_lshl_b32 s58, s98, 3")
    A("s_add_u32 s58, s58, s50")
    A("s_lshl_b32 s58, s58, 7")
    A(f"s_add_u32 s58, s58, {F0:#x}")
    Lt = A.newlabel("L_h7")
    A("s_cmp_eq_u32 s48, 7")
    A(f"s_cbranch_scc0 {Lt}")
    A(f"s_mov_b64 s[{TAG}:{TAG+1}], 0")
    tag_check(A, 8)
    A.label(Lt)
    A("s_barrier")
    A("s_cmp_eq_u32 s48, 7")
    A(f"s_cbranch_scc0 {Lx}")
    set_flag(A, 8, "s58")
    poll(A, 14, 12, "s52", sleep=4)
    A.label(Lx)
    A("s_barrier")
    A("s_branch L_post")


def conv_setup(A):
    A("v_lshlrev_b32 v2, 4, v1")
    A("s_lshl_b32 s52, s49, 1")
    A("s_and_b32 s52, s52, 0xfffffffc")
    A(f"s_load_dword s55, s[{S_SSD}:{S_SSD+1}], s52")
    A(f"s_load_dword s54, s[{S_SSK}:{S_SSK+1}], s50")
    A(f"s_add_u32 s51, s50, {WS_KVT:#x}")
    for i in range(4):
        A(f"v_mov_b32 v{4+i}, 0")
    A("v_add_u32 v3, s56, v2")
    A("s_mov_b64 exec, 0xf")
    A("ds_write_b128 v3, v[4:7]")
    A("s_mov_b32 exec_lo, -1")
    A(f"ds_write_b128 v3, v[4:7] offset:{64+4096}")
    A("s_mov_b64 exec, -1")
    A("v_and_b32 v8, 1, v1")
    A("v_lshlrev_b32 v8, 5, v8")
    A("v_bfe_u32 v9, v1, 4, 1")
    A("v_lshl_add_u32 v8, v9, 4, v8")
    A("v_bfe_u32 v9, v1, 1, 1")
    A("v_lshl_add_u32 v8, v9, 3, v8")
    A("v_lshrrev_b32 v10, 5, v1")
    A("v_lshl_add_u32 v8, v10, 6, v8")
    A("v_bfe_u32 v9, v1, 2, 2")
    A("v_lshlrev_b32 v9, 3, v9")
    A("v_sub_u32 v8, v8, v9")
    A("s_add_u32 s57, s56, 32")
    A("v_add_u32 v8, s57, v8")
    A("v_bfe_u32 v9, v1, 4, 1")
    A("v_lshlrev_b32 v9, 8, v9")
    A("v_and_b32 v11, 3, v1")
    A("v_lshl_add_u32 v9, v11, 6, v9")
    A("v_bfe_u32 v11, v1, 2, 2")
    A("v_lshl_add_u32 v9, v11, 4, v9")
    A("v_lshlrev_b32 v11, 6, v10")
    A("v_sub_u32 v9, v9, v11")
    A(f"s_add_u32 s57, s56, {64+4096+512-384}")
    A("v_add_u32 v9, s57, v9")
    A("v_bfe_u32 v11, v1, 2, 1")
    A("v_bfe_u32 v12, v1, 3, 2")
    A("v_lshl_add_u32 v11, v11, 2, v12")
    A("v_and_b32 v12, 35, v1")
    A("v_lshl_add_u32 v11, v12, 3, v11")
    A("v_and_b32 v12, 1, v11")
    A("v_lshlrev_b32 v12, 4, v12")
    A("v_mov_b32 v13, 0xffff")
    A("v_lshlrev_b32 v13, v12, v13")
    A("v_lshrrev_b32 v11, 1, v11")
    for i in range(4):
        A(f"v_cmp_eq_u32 vcc, {i}, v11")
        A(f"v_cndmask_b32 v{MK+i}, 0, v13, vcc")
    A("v_bfe_u32 v11, v1, 4, 1")
    A("v_and_b32 v12, 3, v1")
    A("v_lshl_add_u32 v11, v11, 2, v12")
    A("v_add_u32 v11, 7, v11")
    A("v_and_b32 v12, 3, v11")
    A("v_bfe_u32 v13, v11, 2, 1")
    A("v_lshl_add_u32 v12, v13, 4, v12")
    A("v_and_b32 v13, 12, v1")
    A("v_add3_u32 v12, v12, v13, 32")
    A("v_subrev_u32 v13, 32, v1")
    A("v_cmp_gt_u32 vcc, 32, v1")
    A("v_cndmask_b32 v14, v13, v12, vcc")
    A("v_lshlrev_b32 v14, 2, v14")
    A("s_mov_b32 s58, 0x1111")
    A("s_mov_b32 s59, 0")


MK = 16


def role_conv(A):
    A("s_barrier")
    conv_setup(A)
    A.label("L_conv")
    NR = 20
    RA, RB, RS = 64, 144, 224
    ACCS = (32, 48)
    CAR, PUL, TMP = 20, (21, 22), 23
    OUT = (24, 28)

    def rdA(m, reg, tag):
        return [(f"ds_read_b64_tr_b16 {vr(reg,2)}, v8 offset:{128*m+32}", None),
                (f"ds_read_b64_tr_b16 {vr(reg+2,2)}, v8 offset:{128*m}", tag)]

    def rdB(b, reg, tag):
        return [(f"ds_read_b128 {vr(reg,4)}, v9 offset:{128*b}", tag)]

    def xload():
        A(f"s_add_u32 m0, s56, {64+4096+512}")
        for i in range(4):
            A(f"buffer_load_dwordx4 v2, s[{SWS}:{SWS+3}], s51 offen offset:{1024*i}{SC} lds")

    Lb, Lg = A.newlabel("L_cb"), A.newlabel("L_cg")
    A("s_waitcnt vmcnt(0)")
    A("s_cmp_ge_u32 s99, 24")
    A(f"s_cbranch_scc1 {Lb}")
    tag_check(A, 22)
    A(f"buffer_load_dwordx2 v[22:23], v12, s[{SWS}:{SWS+3}], s52 offen{SC}")
    A("s_barrier")
    A("s_waitcnt vmcnt(0)")
    A(f"v_cmp_eq_u64 vcc, s[{TAG}:{TAG+1}], v[22:23]")
    A("s_cmp_eq_u64 vcc, -1")
    Lx = A.newlabel("L_cx")
    A(f"s_cbranch_scc1 {Lx}")
    poll(A, 22, 12, "s52", sleep=8)
    A.label(Lx)
    stamp(A, 8)
    xload()
    A.label(Lb)
    A("s_waitcnt lgkmcnt(0)")
    A("s_lshl_b32 s54, s54, 16")
    A("s_lshl_b32 s53, s55, 16")
    A("s_and_b32 s55, s55, 0xffff0000")
    A("s_bitcmp1_b32 s49, 0")
    A("s_cselect_b32 s53, s55, s53")
    A("v_mov_b32 v15, s54")
    A("v_add_f32 v15, s53, v15")
    A("v_cvt_pk_bf16_f32 v15, v15, v15")
    T = Lgkm(A)
    for m in range(NR):
        for x, tg in rdA(m, RA + 4 * m, ("A", m)):
            T.issue(x, tg)
    T.wait(("A", 0))
    for k in range(4):
        A(f"v_bfi_b32 v{RA+k}, v{MK+k}, v15, v{RA+k}")
    T.all()
    A("s_cmp_ge_u32 s99, 24")
    A(f"s_cbranch_scc0 {Lg}")
    A("s_barrier")
    stamp(A, 8)
    xload()
    A.label(Lg)
    A(f"s_add_u32 s51, s50, {WS_YT:#x}")
    A(f"v_mov_b32 v{PUL[1]}, 0")

    sched = []
    for i in range(8):
        ms = list(range(4 * i + 4))
        res = [m for m in ms if m < NR and 4 * i + 3 - m < NR]
        stm = [m for m in ms if m not in res]
        sched += [(i, m) for m in res + stm]
    streams = []
    for k, (i, m) in enumerate(sched):
        b = 4 * i + 3 - m
        if m >= NR:
            streams.append((k, "A", m))
        elif b >= NR:
            streams.append((k, "B", b))
    slot_of = {k: n % 8 for n, (k, _, _) in enumerate(streams)}

    def epilogue(i):
        V = ACCS[i & 1]
        own = [f"v_add_f32_dpp v{V+4*j}, v{V+4*j+k}, v{V+4*j} row_shr:{4*k} row_mask:0xf bank_mask:0xf"
               for k in (1, 2, 3) for j in range(4)]
        car = [f"v_add_f32_dpp v{CAR}, v{V+12+k}, v{CAR} row_shl:{16-4*k} row_mask:0xf bank_mask:0xf" for k in (1, 2, 3)]
        L = [f"v_mov_b32 v{CAR}, 0"] + own[0:2] + car[0:1] + own[2:4] + car[1:2] + own[4:6] + car[2:3]
        L.append(("ds", f"ds_bpermute_b32 v{PUL[i&1]}, v14, v{CAR}", ("P", i)))
        L += own[6:]
        for k in (1, 2, 3):
            for j in (0, 1, 2):
                L.append(f"v_add_f32_dpp v{V+4*j+4}, v{V+4*j+k}, v{V+4*j+4} row_shl:{16-4*k} row_mask:0xf bank_mask:0xf")
        o = OUT[(i >> 1) & 1] + 2 * (i & 1)
        L.append(f"v_cvt_pk_bf16_f32 v{o+1}, v{V+8}, v{V+12}")
        L.append(("wait", ("P", i)))
        L.append(f"v_cndmask_b32 v{TMP}, v{PUL[i&1]}, v{PUL[1-(i&1)]}, s[58:59]")
        L.append(f"v_add_f32 v{V}, v{V}, v{TMP}")
        L.append(f"v_cvt_pk_bf16_f32 v{o}, v{V}, v{V+4}")
        if i & 1:
            L.append(f"buffer_store_dwordx4 {vr(OUT[(i>>1)&1],4)}, v2, s[{SWS}:{SWS+3}], s51 offen offset:{1024*(i>>1)}{SC}")
        return L

    def emit(x):
        if isinstance(x, tuple):
            if x[0] == "ds":
                T.issue(x[1], x[2])
            else:
                T.wait(x[1])
        else:
            A(x)

    A("s_waitcnt vmcnt(0)")
    stampw(A, 9)
    for b in range(8):
        for x, tg in rdB(b, RB + 4 * b, ("B", b)):
            T.issue(x, tg)
    nres = 8
    nst = 0
    fill = []
    first = {}
    for k, (i, m) in enumerate(sched):
        first.setdefault(i, k)
    for k, (i, m) in enumerate(sched):
        V = ACCS[i & 1]
        b = 4 * i + 3 - m
        if k == first[i]:
            while fill:
                emit(fill.pop(0))
            if i > 0:
                fill = epilogue(i - 1)
        if k in slot_of:
            T.wait(("S", k))
        if b < NR:
            T.wait(("B", b))
        ra = RA + 4 * m if m < NR else RS + 4 * slot_of[k]
        rb = RB + 4 * b if b < NR else RS + 4 * slot_of[k]
        c = vr(V, 16) if k != first[i] else "0"
        A(f"v_mfma_f32_32x32x16_bf16 {vr(V,16)}, {vr(ra,4)}, {vr(rb,4)}, {c}")
        budget = 5
        if nres < NR:
            for x, tg in rdB(nres, RB + 4 * nres, ("B", nres)):
                T.issue(x, tg)
            nres += 1
            budget -= 1
        elif nst < len(streams) and (nst < 8 or streams[nst - 8][0] < k) and streams[nst][0] - k <= 10:
            kk, kind, fr = streams[nst]
            for x, tg in (rdA if kind == "A" else rdB)(fr, RS + 4 * slot_of[kk], ("S", kk)):
                T.issue(x, tg)
                budget -= 1
            nst += 1
        if k > first[i]:
            for _ in range(budget):
                if fill:
                    emit(fill.pop(0))
    while fill:
        emit(fill.pop(0))
    stampw(A, 10)
    T.done = T.n if Ctx.stamps else T.done
    for x in epilogue(7):
        emit(x)
    A("s_waitcnt vmcnt(0)")
    stamp(A, 11)
    A("s_cmp_ge_u32 s99, 24")
    A("s_cbranch_scc1 L_bdone")
    A(f"v_mov_b32 v10, {L_SYNC+12}")
    A("v_mov_b32 v11, 1")
    A("s_mov_b64 exec, 1")
    A("ds_add_rtn_u32 v12, v10, v11")
    A("s_mov_b64 exec, -1")
    A("s_lshl_b32 s52, s98, 4")
    A("s_add_u32 s52, s52, s99")
    A("s_lshl_b32 s52, s52, 7")
    A(f"s_add_u32 s52, s52, {F4+8*128:#x}")
    A("s_waitcnt lgkmcnt(0)")
    A("v_readfirstlane_b32 s53, v12")
    A("s_cmp_eq_u32 s53, 3")
    A("s_cbranch_scc0 L_bend")
    set_flag(A, 10, "s52")
    A("s_branch L_bend")
    A.label("L_bdone")


def role_post(A):
    SQ, SO = 32, 36
    A.label("L_post")
    A("s_lshl_b32 s48, s48, 2")
    A("s_lshr_b32 s48, 0x43002100, s48")
    A("s_and_b32 s48, s48, 7")
    A("s_mul_i32 s49, s98, 40")
    A("s_sub_u32 s50, s99, 24")
    A("s_mul_i32 s50, s50, 5")
    A("s_add_u32 s49, s49, s50")
    A("s_add_u32 s49, s49, s48")
    A("s_and_b32 s50, s49, 31")
    A("s_lshr_b32 s51, s49, 5")
    A("v_lshrrev_b32 v2, 3, v1")
    A("v_and_b32 v3, 7, v1")
    A("v_lshlrev_b32 v4, 12, v2")
    A("v_lshl_add_u32 v4, v3, 4, v4")
    A("s_lshl_b32 s52, s51, 18")
    A("s_lshl_b32 s53, s50, 7")
    A("s_add_u32 s52, s52, s53")
    A(f"s_add_u32 s52, s52, {WS_YT:#x}")
    A("s_mul_i32 s56, s48, 8320")
    A(f"s_add_u32 s56, s56, {B_PRE}")
    A("s_lshr_b32 s54, s50, 3")
    A("s_lshl_b32 s54, s54, 9")
    A("s_bfe_u32 s55, s50, 0x10002")
    A("s_lshl_b32 s55, s55, 4")
    A("s_add_u32 s54, s54, s55")
    A("s_bfe_u32 s55, s50, 0x10001")
    A("s_lshl_b32 s55, s55, 7")
    A("s_add_u32 s54, s54, s55")
    A("s_and_b32 s55, s50, 1")
    A("s_lshl_b32 s55, s55, 1")
    A("s_add_u32 s54, s54, s55")
    A("v_and_b32 v5, 3, v2")
    A("v_lshrrev_b32 v6, 2, v2")
    A("v_lshl_add_u32 v5, v5, 5, v6")
    A("v_mul_u32_u24 v6, 1280, v5")
    A("v_lshlrev_b32 v7, 1, v6")
    A("v_lshl_add_u32 v6, v3, 4, v6")
    A("v_lshl_add_u32 v7, v3, 4, v7")
    A("s_mul_i32 s54, s54, 1280")
    A("s_lshl_b32 s53, s51, 7")
    A("s_lshl_b32 s55, s54, 1")
    A("s_add_u32 s54, s54, s53")
    A("s_add_u32 s55, s55, s53")
    A("s_add_u32 s55, s55, 1280")
    srd(A, SQ, S_BQ, NB_X)
    srd(A, SO, S_OUT, NB_OUT)
    QR, YR = 16, 48
    rows = [0, 4, 8, 12, 256, 260, 264, 268]
    if Opt.wopf == "b":
        Ln = A.newlabel("L_npf")
        A("s_cmp_ge_u32 s48, 3")
        A(f"s_cbranch_scc0 {Ln}")
        srd(A, 40, S_WO, NB_WO)
        A("s_sub_u32 s57, s99, 24")
        A("s_lshl_b32 s57, s57, 1")
        A("s_add_u32 s57, s57, s48")
        A("s_sub_u32 s57, s57, 3")
        A("s_lshl_b32 s57, s57, 13")
        A("v_lshlrev_b32 v8, 7, v1")
        for i in range(7):
            A(f"buffer_load_dword v{200+i}, v8, s[40:43], s57 offen")
            A(f"s_add_u32 s57, s57, {16*8192}")
        A.label(Ln)
    for i in range(8):
        A(f"s_add_u32 s57, s54, {rows[i]*1280}")
        A(f"buffer_load_dwordx4 {vr(QR+4*i,4)}, v6, s[{SQ}:{SQ+3}], s57 offen{Opt.nt_s}")
    A("s_mov_b32 s59, 0xffff0000")
    QF = 128
    A("s_waitcnt vmcnt(0)")
    for i in range(32):
        A(f"v_lshlrev_b32 v{QF+2*i}, 16, v{QR+i}")
        A(f"v_and_b32 v{QF+2*i+1}, s59, v{QR+i}")
    A("s_lshl_b32 s57, s98, 4")
    A("s_sub_u32 s58, s57, 16")
    A("v_min_u32 v12, 47, v1")
    A("v_add_u32 v12, s58, v12")
    A("v_max_i32 v12, 0, v12")
    A("v_min_u32 v12, 127, v12")
    A("v_lshlrev_b32 v12, 7, v12")
    A("s_add_u32 s57, s57, s99")
    A("s_lshl_b32 s57, s57, 7")
    A(f"s_add_u32 s57, s57, {F4-24*128:#x}")
    A(f"s_mov_b32 s58, {F4:#x}")
    Lx = A.newlabel("L_p7")
    A("s_barrier")
    A("s_cmp_eq_u32 s48, 4")
    A(f"s_cbranch_scc0 {Lx}")
    set_flag(A, 8, "s57")
    poll(A, 14, 12, "s58", sleep=4)
    A.label(Lx)
    A("s_barrier")
    if Opt.dB:
        A(f"s_sleep {Opt.dB}")
    stamp(A, 12)
    for i in range(8):
        A(f"v_xor_b32 v8, {16*i}, v4")
        A(f"s_add_u32 m0, s56, {1024*i}")
        A(f"buffer_load_dwordx4 v8, s[{SWS}:{SWS+3}], s52 offen{SC} lds")
        if i < 7:
            A(f"s_add_u32 s52, s52, {8*4096}")
    A("v_xor_b32 v8, v2, v3")
    A("v_lshlrev_b32 v8, 4, v8")
    A("v_lshl_add_u32 v8, v3, 10, v8")
    A("v_add_u32 v8, s56, v8")
    A("s_waitcnt vmcnt(0)")
    for c in range(8):
        A(f"ds_read_b128 {vr(YR+4*c,4)}, v8 offset:{128*c}")
    A("s_waitcnt lgkmcnt(0)")
    stamp(A, 13)
    YF, OUT = 80, 96
    for i in range(8):
        for c in range(8):
            if i & 1:
                A(f"v_and_b32 v{YF+c}, s59, v{YR+4*c+i//2}")
            else:
                A(f"v_lshlrev_b32 v{YF+c}, 16, v{YR+4*c+i//2}")
        for c in range(0, 8, 2):
            A(f"v_pk_mul_f32 {vr(YF+c,2)}, {vr(YF+c,2)}, {vr(QF+8*i+c,2)}")
        for k in range(4):
            A(f"v_cvt_pk_bf16_f32 v{OUT+4*i+k}, v{YF+2*k}, v{YF+2*k+1}")
        A(f"s_add_u32 s57, s55, {rows[i]*2560}")
        A(f"buffer_store_dwordx4 {vr(OUT+4*i,4)}, v7, s[{SO}:{SO+3}], s57 offen{Opt.oscb}")
    stamp(A, 14)


def build():
    A = Asm()
    k = NAME + "_kernel"
    A.raw(f".globl {k}")
    A.raw(".p2align 8")
    A.raw(f".type {k},@function")
    A.label(k)
    if Opt.hold:
        A("s_memrealtime s[64:65]")
    load_kernargs(A)
    if not Opt.hp:
        stamp_init(A)
        if Opt.rt:
            A("s_waitcnt lgkmcnt(0)")
            stamp(A, 1)
    A("v_lshrrev_b32 v2, 6, v0")
    A("v_and_b32 v1, 63, v0")
    A("v_readfirstlane_b32 s100, v2")
    A("s_and_b32 s98, s2, 7")
    A("s_lshr_b32 s99, s2, 3")
    A("s_cmp_ge_u32 s2, 192")
    A("s_cbranch_scc1 L_b")
    A("s_and_b32 s49, s2, 3")
    A("s_lshl_b32 s49, s49, 2")
    A("s_and_b32 s50, s99, 3")
    A("s_add_u32 s49, s49, s50")
    A("s_bfe_u32 s52, s2, 0x10002")
    A("s_lshr_b32 s53, s2, 5")
    A("s_lshl_b32 s54, s52, 1")
    A("s_add_u32 s54, s54, s53")
    A("s_lshl_b32 s55, s52, 2")
    A("s_add_u32 s55, s55, s53")
    A("s_sub_u32 s55, s55, 2")
    A("s_cmp_lt_u32 s2, 64")
    A("s_cselect_b32 s50, s54, s55")
    A("s_cselect_b32 s51, 1, 0")
    A("s_and_b32 s48, s100, 3")
    A("s_cmp_ge_u32 s100, 4")
    A("s_cbranch_scc1 L_c")
    role_loader(A)
    A.label("L_c")
    role_compute(A)
    A.label("L_b")
    A("s_cmp_ge_u32 s2, 256")
    A("s_cbranch_scc1 L_exit")
    A("s_mov_b32 s48, s100")
    A("s_cmp_ge_u32 s48, 5")
    A("s_cbranch_scc1 L_help")
    role_pre(A)
    A("s_branch L_bconv")
    A.label("L_help")
    role_helper(A)
    A.label("L_bconv")
    role_conv(A)
    A("s_bitcmp1_b32 0x32, s48")
    A("s_cbranch_scc1 L_bend")
    role_post(A)
    A.label("L_bend")
    end_wave(A)
    A.label("L_exit")
    A("s_endpgm")
    A.label("L_code_end")
    head = ["; generated by gen/f3.py",
            "; @launch grid=(256,1,1) block=(512,1,1) lds=163840"]
    txt = "\n".join(head) + '\n.amdgcn_target "amdgcn-amd-amdhsa--gfx950"\n.text\n' + A.text()
    txt += f'''.section .rodata,"a"
.p2align 6
.amdhsa_kernel {k}
  .amdhsa_next_free_vgpr 256
  .amdhsa_next_free_sgpr 102
  .amdhsa_accum_offset 256
  .amdhsa_group_segment_fixed_size 0
  .amdhsa_kernarg_size 104
  .amdhsa_user_sgpr_count 2
  .amdhsa_user_sgpr_kernarg_segment_ptr 1
  .amdhsa_system_sgpr_workgroup_id_x 1
.end_amdhsa_kernel
'''
    return txt


if __name__ == "__main__":
    args = sys.argv[2:]
    Ctx.stamps = "stamps" in args
    Opt.rot = "norot" not in args
    Opt.codepf = "nocodepf" not in args
    for a in args:
        if a.startswith("probe="):
            Opt.probe = tuple(int(x) for x in a[6:].split(","))
        if a.startswith("holdwg="):
            Opt.holdwg = int(a[7:])
        if a.startswith("osc="):
            Opt.osc = a[4:].replace("_", " ")
        if a.startswith("oscb="):
            Opt.oscb = a[5:].replace("_", " ")
        if a.startswith("gpf="):
            Opt.gpf = int(a[4:])
        if a.startswith("gpfd="):
            Opt.gpfd = int(a[5:])
        if a.startswith("rotA="):
            Opt.rotA = int(a[5:], 16)
        if a.startswith("rotB="):
            Opt.rotB = int(a[5:], 16)
        if a == "rt":
            Opt.rt = True
        if a.startswith("hp="):
            Opt.hp = int(a[3:])
            Ctx.stamps = True
        if a.startswith("hold="):
            Opt.hold = int(a[5:])
        if a.startswith("dA="):
            Opt.dA = int(a[3:])
        if a.startswith("dB="):
            Opt.dB = int(a[3:])
        if a == "nowomall":
            Opt.womall = False
        if a == "noppoll":
            Opt.ppoll = False
        if a.startswith("psleep="):
            Opt.psleep = int(a[7:])
        if a.startswith("wopf="):
            Opt.wopf = a[5:]
    for a in args:
        if a.startswith("LA="):
            Opt.LA = int(a[3:])
    open(sys.argv[1], "w").write(build())
```

```python
import sys
from asm import Asm, vr, ar, sr
from roles import (WS_PHIQ, WS_PART, WS_O, WS_KVT, WS_YT, WS_STAMP, WS_SIZE, S_X, S_W, S_WPHI, S_WO, S_BQ, S_BK, S_BV,
                   S_SH, S_SSK, S_SSD, S_OUT, S_DBG, S_WS, NB_X, NB_W, NB_WPHI, NB_WO, NB_SH, NB_SSK, NB_OUT, LOG2E,
                   Ctx, load_kernargs, srd, stamp, stamp_init, softmax20)

NAME = "concat_heads__linear_kernel_hedgehog__ssm_conv_h3__prompt"
WS_PQ = WS_PHIQ
WS_FLAG = 0xF00000
F1, F2, F3, F0, F4 = (WS_FLAG + 128 * o for o in (0, 512, 1024, 1536, 1856))
WS_EPOCH = WS_FLAG + 128 * 2560 + 64
SWS = 44
SC = " sc1"
TAG = 30
SLOT = 36864
L_WP = 147456
L_Z = L_WP + 8192
L_SYNC = L_Z + 4096
L_V = 128 * 336
L_WOB = 69632
L_OT = 65536
CV_LDS = 8768
L_QCV = 3 * SLOT
B_PRE = 6 * CV_LDS


class Opt:
    rot = True
    LA = 2
    nt_s = " nt"
    codepf = True
    wopf = "no"
    osc = " sc1 nt"
    oscb = " sc1 nt"
    hp = 0
    qwait = True
    lidle = False
    bpos = 4
    fake16 = False
    qdelay = 0
    rotA = 0x8530
    rotB = 0x550050
    gpf = 0
    gpfd = 99
    rt = False
    ppoll = False
    womall = True
    probe = None
    dA = 0
    hold = 0
    holdwg = -1
    dB = 0
    psleep = 2


_stamp0 = stamp


def stamp(A, k, real=False):
    if Opt.hp:
        if k == Opt.hp:
            A("s_memrealtime s[64:65]")
        return
    _stamp0(A, k, real or Opt.rt)


def end_wave(A, holdable=False):
    if Opt.hp:
        if holdable:
            L = A.newlabel("L_hp")
            A("s_cmp_lt_u32 s99, 8")
            A("s_cbranch_scc1 L_exit")
            A.label(L)
            A("s_sleep 4")
            A("s_memrealtime s[66:67]")
            A("s_waitcnt lgkmcnt(0)")
            A("s_sub_u32 s66, s66, s64")
            A("s_cmp_lt_u32 s66, 2000")
            A(f"s_cbranch_scc1 {L}")
    elif Ctx.stamps:
        stamp(A, 15, True)
        A("s_waitcnt lgkmcnt(0)")
        A("s_mov_b64 exec, -1")
        A("v_mov_b32 v2, 0")
        for k in range(16):
            A(f"v_writelane_b32 v2, s{64+2*k}, {k}")
        A("s_lshl_b32 s62, s2, 3")
        A("s_add_u32 s62, s62, s100")
        A("s_lshl_b32 s62, s62, 6")
        A(f"s_add_u32 s62, s62, {WS_STAMP:#x}")
        A("v_lshlrev_b32 v1, 2, v1")
        A("s_mov_b64 exec, 0xffff")
        A(f"buffer_store_dword v2, v1, s[{SWS}:{SWS+3}], s62 offen")
        if Opt.probe:
            Lp = A.newlabel("L_probe")
            A(f"s_cmp_eq_u32 s2, {Opt.probe[0]}")
            A(f"s_cbranch_scc0 {Lp}")
            A(f"s_cmp_eq_u32 s100, {Opt.probe[1]}")
            A(f"s_cbranch_scc0 {Lp}")
            A("v_subrev_u32 v3, s66, v2")
            A("s_sub_u32 s62, s94, s64")
            A("v_writelane_b32 v3, s62, 15")
            A("v_cmp_ne_u32 vcc, 0, v2")
            A("v_cndmask_b32 v3, 0, v3, vcc")
            A("s_mov_b64 exec, 0xfffc")
            A(f"global_store_dword v1, v3, s[{S_DBG}:{S_DBG+1}]")
            A.label(Lp)
    A("s_endpgm")


def stampw(A, k):
    stamp(A, k)
    if Ctx.stamps:
        A("s_waitcnt lgkmcnt(0)")


def poll(A, vt, voff, soff, sleep=1):
    L, Ld = A.newlabel("L_poll"), A.newlabel("L_polld")
    A("s_movk_i32 s101, 0x4000")
    A.label(L)
    A(f"buffer_load_dwordx2 {vr(vt,2)}, v{voff}, s[{SWS}:{SWS+3}], {soff} offen{SC}")
    A("s_waitcnt vmcnt(0)")
    A(f"v_cmp_eq_u64 vcc, s[{TAG}:{TAG+1}], {vr(vt,2)}")
    A("s_cmp_eq_u64 vcc, -1")
    A(f"s_cbranch_scc1 {Ld}")
    A(f"s_sleep {sleep}")
    A("s_sub_u32 s101, s101, 1")
    A("s_cmp_eq_u32 s101, 0")
    A(f"s_cbranch_scc0 {L}")
    A("s_endpgm")
    A.label(Ld)


def ppoll(A, vt, voff, soff, sleep=1, depth=4):
    if not Opt.ppoll:
        return poll(A, vt, voff, soff, sleep=sleep)
    L, Ld = A.newlabel("L_pp"), A.newlabel("L_ppd")
    ld = lambda k: f"buffer_load_dwordx2 {vr(vt+2*k,2)}, v{voff}, s[{SWS}:{SWS+3}], {soff} offen{SC}"
    A("s_movk_i32 s101, 0x4000")
    for k in range(depth - 1):
        A(ld(k))
        A(f"s_sleep {sleep}")
    A.label(L)
    for k in range(depth):
        A(ld((k + depth - 1) % depth))
        A(f"s_waitcnt vmcnt({depth-1})")
        A(f"v_cmp_eq_u64 vcc, s[{TAG}:{TAG+1}], {vr(vt+2*k,2)}")
        A("s_cmp_eq_u64 vcc, -1")
        A(f"s_cbranch_scc1 {Ld}")
        A(f"s_sleep {sleep}")
    A("s_sub_u32 s101, s101, 1")
    A("s_cmp_eq_u32 s101, 0")
    A(f"s_cbranch_scc0 {L}")
    A("s_endpgm")
    A.label(Ld)


def set_flag(A, vt, soff):
    A(f"v_mov_b32 v{vt}, s{TAG}")
    A(f"v_mov_b32 v{vt+1}, s{TAG+1}")
    A(f"v_lshlrev_b32 v{vt+2}, 3, v1")
    A("s_waitcnt vmcnt(0)")
    A("s_mov_b64 exec, 0xffff")
    A(f"buffer_store_dwordx2 {vr(vt,2)}, v{vt+2}, s[{SWS}:{SWS+3}], {soff} offen{SC}")
    A("s_mov_b64 exec, -1")


def tag_issue(A):
    A(f"s_load_dwordx2 s[{TAG}:{TAG+1}], s[{S_DBG}:{S_DBG+1}], 0")


def tag_check(A, vt):
    L, Ld = A.newlabel("L_hs"), A.newlabel("L_hsd")
    A("s_waitcnt lgkmcnt(0)")
    A(f"s_cmp_lg_u32 s{TAG}, s{TAG+1}")
    A(f"s_cbranch_scc1 {Ld}")
    A("s_movk_i32 s101, 0x4000")
    A(f"v_mov_b32 v{vt+2}, 0")
    A.label(L)
    A(f"global_load_dwordx2 {vr(vt,2)}, v{vt+2}, s[{S_DBG}:{S_DBG+1}]{SC}")
    A("s_waitcnt vmcnt(0)")
    A(f"v_readfirstlane_b32 s{TAG}, v{vt}")
    A(f"v_readfirstlane_b32 s{TAG+1}, v{vt+1}")
    A("s_nop 3")
    A(f"s_cmp_lg_u32 s{TAG}, s{TAG+1}")
    A(f"s_cbranch_scc1 {Ld}")
    A("s_sleep 8")
    A("s_sub_u32 s101, s101, 1")
    A("s_cmp_eq_u32 s101, 0")
    A(f"s_cbranch_scc0 {L}")
    A("s_endpgm")
    A.label(Ld)


def lds_arrive(A, vt, addr):
    A(f"v_mov_b32 v{vt}, {addr}")
    A(f"v_mov_b32 v{vt+1}, 1")
    A("s_waitcnt lgkmcnt(0)")
    A("s_mov_b64 exec, 1")
    A(f"ds_add_u32 v{vt}, v{vt+1}")
    A("s_mov_b64 exec, -1")


def lds_wait(A, vt, addr, n, sleep=0):
    L, Ld = A.newlabel("L_lw"), A.newlabel("L_lwd")
    if addr is not None:
        A(f"v_mov_b32 v{vt}, {addr}")
    A("s_mov_b32 s101, 0x40000")
    A.label(L)
    A(f"ds_read_b32 v{vt+1}, v{vt}")
    A("s_waitcnt lgkmcnt(0)")
    A(f"v_cmp_le_u32 vcc, {n}, v{vt+1}")
    A(f"s_cbranch_vccnz {Ld}")
    if sleep:
        A(f"s_sleep {sleep}")
    A("s_sub_u32 s101, s101, 1")
    A("s_cmp_eq_u32 s101, 0")
    A(f"s_cbranch_scc0 {L}")
    A("s_endpgm")
    A.label(Ld)


class Lgkm:
    def __init__(self, A):
        self.A, self.n, self.done, self.tag = A, 0, 0, {}

    def issue(self, text, tag=None):
        self.A(text)
        self.n += 1
        if tag is not None:
            self.tag[tag] = self.n

    def wait(self, *tags):
        need = max(self.tag[t] for t in tags)
        if need > self.done:
            self.A(f"s_waitcnt lgkmcnt({min(15, self.n - need)})")
            self.done = max(need, self.n - 15)

    def all(self):
        if self.done < self.n:
            self.A("s_waitcnt lgkmcnt(0)")
            self.done = self.n


def softmax_parts(X, E, F, T, PH):
    mx, mn = T, T + 2
    mm = [f"v_max3_f32 v{mx}, v{X}, v{X+1}, v{X+2}", f"v_min3_f32 v{mn}, v{X}, v{X+1}, v{X+2}"]
    for i in range(3, 19, 2):
        mm += [f"v_max3_f32 v{mx}, v{mx}, v{X+i}, v{X+i+1}", f"v_min3_f32 v{mn}, v{mn}, v{X+i}, v{X+i+1}"]
    mm += [f"v_max_f32 v{mx}, v{mx}, v{X+19}", f"v_min_f32 v{mn}, v{mn}, v{X+19}",
           f"v_mul_f32 v{mx}, s60, v{mx}", f"v_mul_f32 v{mn}, s60, v{mn}"]
    fm, ex = [], []
    for i in range(0, 20, 2):
        fm.append(f"v_pk_fma_f32 {vr(E+i,2)}, {vr(X+i,2)}, s[60:61], {vr(mx,2)} op_sel_hi:[1,1,0] neg_lo:[0,0,1] neg_hi:[0,0,1]")
        fm.append(f"v_pk_fma_f32 {vr(F+i,2)}, {vr(X+i,2)}, s[60:61], {vr(mn,2)} op_sel_hi:[1,1,0] neg_lo:[1,0,0] neg_hi:[1,0,0]")
    for i in range(20):
        ex += [f"v_exp_f32 v{E+i}, v{E+i}", f"v_exp_f32 v{F+i}, v{F+i}"]
    se, sf = T + 4, T + 6
    sm = [f"v_pk_add_f32 {vr(se,2)}, {vr(E,2)}, {vr(E+2,2)}", f"v_pk_add_f32 {vr(sf,2)}, {vr(F,2)}, {vr(F+2,2)}"]
    for i in range(4, 20, 2):
        sm += [f"v_pk_add_f32 {vr(se,2)}, {vr(se,2)}, {vr(E+i,2)}", f"v_pk_add_f32 {vr(sf,2)}, {vr(sf,2)}, {vr(F+i,2)}"]
    fin = [f"v_add_f32 v{se}, v{se}, v{se+1}", f"v_add_f32 v{sf}, v{sf}, v{sf+1}",
           f"v_rcp_f32 v{se}, v{se}", f"v_rcp_f32 v{sf}, v{sf}"]
    tail = []
    for j in range(20):
        R, s_ = (E + 2 * j, se) if j < 10 else (F + 2 * (j - 10), sf)
        tail.append((f"v_pk_mul_f32 {vr(R,2)}, {vr(R,2)}, {vr(s_,2)} op_sel_hi:[1,0]", f"v_cvt_pk_bf16_f32 v{PH+j}, v{R}, v{R+1}"))
    return mm, fm, ex, sm, fin, tail


def merge(main, extra, every, start=0):
    out, extra = [], list(extra)
    for i, x in enumerate(main):
        out.append(x)
        if extra and i >= start and (i - start) % every == every - 1:
            out.append(extra.pop(0))
    return out + extra


def o_index(A):
    A("s_sub_u32 s63, s99, 8")
    A("s_lshr_b32 s62, s63, 2")
    A("s_lshl_b32 s3, s98, 2")
    A("s_add_u32 s62, s62, s3")
    A("s_and_b32 s63, s63, 3")
    A("s_lshl_b32 s63, s63, 2")
    A("s_add_u32 s63, s63, s48")


def role_loader(A):
    SX, SW, SP = 32, 36, 40
    VX, VW = 24, 28
    t0, t1, t2, t3 = 11, 12, 13, 14
    A("s_setprio 1")
    A(f"v_lshrrev_b32 v{t0}, 3, v1")
    A(f"v_mul_u32_u24 v{t0}, 1280, v{t0}")
    A(f"v_lshrrev_b32 v{t1}, 4, v1")
    A(f"v_and_b32 v{t2}, 7, v1")
    A(f"v_xor_b32 v{t1}, v{t1}, v{t2}")
    A(f"v_xor_b32 v{t2}, 4, v{t1}")
    A(f"v_lshl_add_u32 v{VX}, v{t1}, 4, v{t0}")
    A(f"v_lshl_add_u32 v{VX+1}, v{t2}, 4, v{t0}")
    A(f"v_add_u32 v{VX+2}, {2*(8*1280-1024)}, v{VX}")
    A(f"v_add_u32 v{VX+3}, {3*(8*1280-1024)}, v{VX+1}")
    A(f"v_add_u32 v{VX+1}, {8*1280-1024}, v{VX+1}")
    A("s_lshl_b32 s60, s49, 2")
    A("s_add_u32 s60, s60, s48")
    A(f"s_mul_i32 s60, s60, {32*1280}")
    if Opt.rot:
        A("s_lshl_b32 s30, s49, 2")
        A("s_bfe_u32 s30, s30, 0x40000")
        A(f"s_lshr_b32 s30, {Opt.rotA:#x}, s30")
        A("s_and_b32 s30, s30, 15")
        A("s_and_b32 s31, s99, 28")
        A(f"s_lshr_b32 s31, {Opt.rotB:#x}, s31")
        A("s_and_b32 s31, s31, 15")
        A("s_add_u32 s30, s30, s31")
        A("s_sub_u32 s31, s30, 10")
        A("s_cmp_ge_u32 s30, 10")
        A("s_cselect_b32 s30, s31, s30")
        A("s_lshl_b32 s31, s30, 7")
        A("s_add_u32 s60, s60, s31")
    A("s_lshl_b32 s62, s48, 12")
    A("s_mov_b32 m0, s62")
    A(f"s_mov_b32 s{SX+2}, {NB_X:#x}")
    A(f"s_mov_b32 s{SX+3}, 0x20000")
    A("s_waitcnt lgkmcnt(0)")
    A(f"s_mov_b64 s[{SX}:{SX+1}], s[{S_X}:{S_X+1}]")

    def dma_x(s):
        if s:
            A(f"s_add_u32 m0, s62, {(s % 3) * SLOT}")
        for i in range(4):
            A(f"buffer_load_dwordx4 v{VX+i}, s[{SX}:{SX+3}], s60 offen offset:{1024*i} lds")

    def dma_w(s):
        sl = (s % 3) * SLOT
        A(f"s_add_u32 m0, s63, {sl}")
        for i in range(4):
            A(f"buffer_load_dwordx4 v{VW+i}, s[{SW}:{SW+3}], s61 offen offset:{1024*i} lds")
        A(f"s_add_u32 m0, s63, {sl+4096}")
        A(f"buffer_load_dwordx4 v{VW+4}, s[{SW}:{SW+3}], s61 offen lds")
        if s < 9:
            if Opt.rot:
                A("s_add_u32 s30, s30, 1")
                A("s_cmp_eq_u32 s30, 10")
                A(f"s_cselect_b32 s31, {(-1152)&0xffffffff:#x}, s97")
                A(f"s_cselect_b32 s3, {(-9*64*3840)&0xffffffff:#x}, s96")
                A("s_add_u32 s60, s60, s31")
                A("s_add_u32 s61, s61, s3")
            else:
                A("s_add_u32 s60, s60, 128")
                A(f"s_add_u32 s61, s61, {64*3840}")

    dma_x(0)
    A("s_cmp_eq_u32 s51, 0")
    A("s_cselect_b32 s56, 1120, 0")
    A("s_add_u32 s58, s51, 1")
    A(f"v_xor_b32 v15, s58, v1")
    A(f"v_cmp_gt_u32 vcc, 32, v1")
    A("s_movk_i32 s57, 3520")
    A(f"v_cndmask_b32 v16, v15, v1, vcc")
    for i in range(5):
        src = (1, 1, 16, 15, 15)[i]
        A(f"v_add_u32 v{t2}, {64*i}, v{src}")
        A(f"v_mul_u32_u24 v{t2}, 6554, v{t2}")
        A(f"v_lshlrev_b32 v{t3}, 4, v{src}")
        A(f"v_lshrrev_b32 v{t0}, 17, v{t2}")
        A(f"v_bfe_u32 v{t1}, v{t2}, 16, 1")
        A(f"v_mad_u32_u24 v{t0}, v{t0}, s57, v{t3}")
        A(f"v_mad_u32_u24 v{VW+i}, v{t1}, s56, v{t0}")
    A(f"v_lshlrev_b32 v{t3}, 4, v1")
    A(f"v_add_u32 v{VW+4}, 4096, v{VW+4}")
    A(f"s_mul_i32 s61, s48, {16*3840}")
    A("s_mul_i32 s57, s50, 160")
    A("s_add_u32 s58, s57, 1280")
    A("s_lshl_b32 s57, s57, 1")
    A("s_cmp_eq_u32 s51, 0")
    A("s_cselect_b32 s57, s58, s57")
    A("s_add_u32 s61, s61, s57")
    if Opt.rot:
        A(f"s_mov_b32 s96, {64*3840}")
        A("s_movk_i32 s97, 128")
        A("s_mul_i32 s31, s30, s96")
        A("s_add_u32 s61, s61, s31")
    A("s_mul_i32 s63, s48, 5120")
    A("s_add_u32 s63, s63, 16384")
    srd(A, SW, S_W, NB_W)
    dma_w(0)
    stamp(A, 2)
    A("s_mul_i32 s57, s50, 3200")
    A("s_lshl_b32 s57, s57, s51")
    A("s_lshl_b32 s58, s48, 11")
    A("s_add_u32 s57, s57, s58")
    srd(A, SP, S_WPHI, NB_WPHI)
    A(f"s_add_u32 m0, s58, {L_WP}")
    A(f"buffer_load_dwordx4 v{t3}, s[{SP}:{SP+3}], s57 offen lds")
    A(f"buffer_load_dwordx4 v{t3}, s[{SP}:{SP+3}], s57 offen offset:1024 lds")
    srd(A, SWS, S_WS, WS_SIZE)
    Lh = A.newlabel("L_noh")
    A("s_cmp_eq_u32 s51, 0")
    A(f"s_cbranch_scc1 {Lh}")
    A("s_mul_i32 s49, s98, 80")
    A("s_lshl_b32 s50, s99, 2")
    A("s_add_u32 s49, s49, s50")
    A("s_add_u32 s49, s49, s48")
    A("s_add_u32 s49, s49, 48")
    A(f"s_mul_i32 s56, s48, {CV_LDS}")
    A(f"s_add_u32 s56, s56, {L_QCV}")
    A("s_lshl_b32 s50, s49, 12")
    A.label(Lh)
    assert Opt.LA == 2
    issued = 0
    for s in range(10):
        while issued < min(s + Opt.LA - 1, 9):
            issued += 1
            dma_x(issued)
            dma_w(issued)
        if s == 0:
            Ls = A.newlabel("L_nosetup")
            A("s_cmp_ge_u32 s99, 8")
            A(f"s_cbranch_scc1 {Ls}")
            conv_setup(A)
            f0_lines(A, 49, 49, 12)
            A.label(Ls)
        if s == 9:
            tag_issue(A)
        A(f"s_waitcnt vmcnt({9*(issued-s)})")
        A("s_barrier")
        if s in (0, 3, 6, 9):
            stamp(A, 3 + s // 3)
    A("s_setprio 0")
    A("s_cmp_lt_u32 s99, 8")
    A("s_cbranch_scc1 L_conv")
    role_wo(A)


def role_wo(A):
    SO, SWO = 32, 36
    WR = 64
    A.label("L_wo")
    srd(A, SWO, S_WO, NB_WO)
    if Opt.wopf == "kv":
        Ls = A.newlabel("L_nopf")
        A("s_cmp_lt_u32 s99, 8")
        A(f"s_cbranch_scc1 {Ls}")
        A("s_lshl_b32 s52, s99, 2")
        A("s_add_u32 s52, s52, s48")
        A("s_sub_u32 s52, s52, 32")
        A("s_lshl_b32 s52, s52, 13")
        A(f"s_add_u32 s53, s52, {64*8192}")
        A("v_lshlrev_b32 v2, 7, v1")
        A(f"buffer_load_dword v24, v2, s[{SWO}:{SWO+3}], s52 offen")
        A(f"buffer_load_dword v25, v2, s[{SWO}:{SWO+3}], s53 offen")
        A.label(Ls)
    A("v_lshrrev_b32 v2, 2, v1")
    A("v_and_b32 v3, 3, v1")
    A("v_mul_u32_u24 v4, 1280, v2")
    A("v_lshl_add_u32 v4, v3, 4, v4")
    for i in range(1, 4):
        A(f"v_add_u32 v{4+i}, {i*(16*1280-1024)}, v4")
    A(f"v_add_u32 v8, {4*16*1280}, v4")
    A("s_lshr_b32 s50, s99, 2")
    A("s_sub_u32 s50, s50, 1")
    A("s_max_i32 s50, s50, 0")
    A("s_lshl_b32 s52, s50, 8")
    A("s_lshl_b32 s53, s48, 6")
    A("s_add_u32 s52, s52, s53")
    A("s_mov_b32 s51, s52")
    A("s_mul_i32 s53, s48, 20480")
    A("s_cmp_lt_u32 s99, 8")
    A(f"s_cselect_b32 s54, 0, {L_WOB}")
    A("s_add_u32 s53, s53, s54")

    def cbuf(c):
        return 5120 + ((c + 1) % 3) * 5120

    def chunk(c):
        b = cbuf(c)
        A(f"s_add_u32 m0, s53, {b}")
        for i in range(4):
            A(f"buffer_load_dwordx4 v{4+i}, s[{SWO}:{SWO+3}], s51 offen offset:{1024*i} lds")
        A(f"s_add_u32 m0, s53, {b+4096}")
        A(f"buffer_load_dwordx4 v8, s[{SWO}:{SWO+3}], s51 offen lds")
        A(f"s_add_u32 s51, s51, {80*1280}")

    Lj = A.newlabel("L_woj")
    chunk(0)
    A("s_cmp_lt_u32 s99, 8")
    A(f"s_cbranch_scc1 {Lj}")
    A("s_barrier")
    if Opt.lidle:
        lds_wait(A, 16, L_SYNC, 4, sleep=4)
    A.label(Lj)
    chunk(1)
    chunk(2)
    A("v_bfe_u32 v10, v1, 2, 2")
    A("v_lshrrev_b32 v11, 5, v1")
    A("v_and_b32 v12, 1, v1")
    A("v_lshlrev_b32 v12, 5, v12")
    A("v_bfe_u32 v13, v1, 4, 1")
    A("v_lshl_add_u32 v12, v13, 4, v12")
    A("v_bfe_u32 v13, v1, 1, 1")
    A("v_lshl_add_u32 v12, v13, 3, v12")
    A("v_lshl_add_u32 v12, v10, 6, v12")
    A("v_add_u32 v12, s53, v12")
    A("v_lshl_add_u32 v13, v11, 8, v12")
    A("v_mul_u32_u24 v14, 2560, v11")
    A("v_add_u32 v14, v14, v12")
    A("v_and_b32 v9, 31, v1")
    A("v_lshrrev_b32 v15, 4, v1")
    A("v_lshlrev_b32 v15, 7, v15")
    A("v_lshlrev_b32 v18, 4, v1")
    o_index(A)
    tag_check(A, 20)

    def take(c):
        b = cbuf(c)
        for hh in range(4):
            for half in range(2):
                A(f"ds_read_b64_tr_b16 {vr(WR+4*(4*c+hh)+2*half,2)}, v13 offset:{b+(20*hh+8*half)*64}")
        for half in range(2):
            A(f"ds_read_b64_tr_b16 {vr(WR+128+4*c+2*half,2)}, v14 offset:{b+(20*half+16)*64}")

    Lq1, Lq2 = A.newlabel("L_woq"), A.newlabel("L_woq")
    A("s_cmp_lt_u32 s99, 8")
    A(f"s_cbranch_scc1 {Lq1}")
    A("s_lshr_b32 s54, s62, 2")
    A("s_lshl_b32 s54, s54, 4")
    A("s_add_u32 s54, s54, s63")
    A("s_lshl_b32 s54, s54, 8")
    A("v_lshlrev_b32 v19, 7, v11")
    A(f"s_add_u32 s54, s54, {F2:#x}")
    A("s_lshl_b32 s55, s62, 4")
    A("s_add_u32 s55, s55, s63")
    A("s_mul_i32 s55, s55, 5120")
    poll(A, 16, 19, "s54", sleep=4)
    A("s_mov_b32 m0, s53")
    A("s_add_u32 s54, s55, 4096")
    for i in range(4):
        A(f"buffer_load_dwordx4 v18, s[{SWS}:{SWS+3}], s55 offen offset:{1024*i}{SC} lds")
    A("s_add_u32 m0, s53, 4096")
    A(f"buffer_load_dwordx4 v18, s[{SWS}:{SWS+3}], s54 offen{SC} lds")
    A("s_lshl_b32 s54, s48, 2")
    A(f"s_add_u32 s54, s54, {L_SYNC+16}")
    A("s_waitcnt vmcnt(0)")
    lds_arrive(A, 16, "s54")
    stamp(A, 14)
    lds_wait(A, 16, L_SYNC, 4, sleep=4)
    A.label(Lq1)
    for c in range(3):
        A("s_waitcnt vmcnt(10)")
        take(c)
        A("s_waitcnt lgkmcnt(0)")
        chunk(c + 3)
    A("s_cmp_lt_u32 s99, 8")
    A(f"s_cbranch_scc1 {Lq2}")
    stamp(A, 7)
    A("s_lshl_b32 s54, s62, 2")
    A("s_add_u32 s54, s54, s48")
    A("s_mul_i32 s55, s54, 10240")
    A(f"s_add_u32 s55, s55, {WS_PART:#x}")
    A("s_lshl_b32 s54, s54, 9")
    A(f"s_add_u32 s54, s54, {F1:#x}")
    A("v_min_u32 v19, 20, v9")
    A("v_and_b32 v20, 32, v1")
    A("v_add_u32 v19, v19, v20")
    A("v_lshlrev_b32 v20, 3, v19")
    A("v_lshlrev_b32 v19, 4, v19")
    A("s_mul_i32 s57, s48, 5120")
    A("v_add_u32 v21, s57, v18")
    A("s_mov_b32 s59, 0xffff0000")
    lds_wait(A, 16, L_SYNC + 4, 4, sleep=2)
    ppoll(A, 244, 15, "s54", sleep=Opt.psleep)
    stamp(A, 12)
    PR = [24, 34, 44, 54]
    SM, TP = 224, 244
    for p in range(4):
        A(f"buffer_load_dwordx4 {vr(PR[p],4)}, v19, s[{SWS}:{SWS+3}], s55 offen{SC}")
        A(f"buffer_load_dwordx4 {vr(PR[p]+4,4)}, v19, s[{SWS}:{SWS+3}], s55 offen offset:1024{SC}")
        A(f"buffer_load_dwordx2 {vr(PR[p]+8,2)}, v20, s[{SWS}:{SWS+3}], s55 offen offset:2048{SC}")
        if p < 3:
            A("s_add_u32 s55, s55, 2560")
    A("s_setprio 3")
    for p in range(4):
        A(f"s_waitcnt vmcnt({9-3*p})")
        for i in range(10):
            d = SM + 2 * i if p == 0 else TP + 2 * (i % 5)
            A(f"v_lshlrev_b32 v{d}, 16, v{PR[p]+i}")
            A(f"v_and_b32 v{d+1}, s59, v{PR[p]+i}")
            if p:
                A(f"v_pk_add_f32 {vr(SM+2*i,2)}, {vr(SM+2*i,2)}, {vr(d,2)}")
    for q in range(5):
        A(f"ds_write_b128 v21, {vr(SM+4*q,4)} offset:{1024*q}")
    lds_arrive(A, 16, L_SYNC + 8)
    A("s_setprio 0")
    stamp(A, 13)
    A.label(Lq2)
    for c in range(3, 8):
        A(f"s_waitcnt vmcnt({10 if c < 6 else 5*(7-c)})")
        take(c)
        if c < 5:
            A("s_waitcnt lgkmcnt(0)")
            chunk(c + 3)
    srd(A, SO, S_OUT, NB_OUT)
    A("s_and_b32 s54, s99, 3")
    A("s_lshl_b32 s55, s98, 2")
    A("s_add_u32 s54, s54, s55")
    A("s_lshr_b32 s55, s54, 1")
    A("s_lshl_b32 s55, s55, 12")
    A(f"s_add_u32 s55, s55, {F3:#x}")
    A("s_lshl_b32 s57, s48, 10")
    A("s_add_u32 s55, s55, s57")
    A("v_lshrrev_b32 v15, 3, v1")
    A("v_lshlrev_b32 v15, 7, v15")
    A("s_mul_i32 s57, s54, 81920")
    A(f"s_add_u32 s57, s57, {WS_O:#x}")
    A("s_lshr_b32 s58, s48, 1")
    A("s_mul_i32 s58, s58, 40960")
    A("s_and_b32 s59, s48, 1")
    A("s_lshl_b32 s59, s59, 12")
    A("s_add_u32 s58, s58, s59")
    A("s_add_u32 s57, s57, s58")
    A(f"s_add_u32 s58, s58, {L_OT}")
    A("v_mov_b32 v5, v18")
    A(f"v_add_u32 v6, {L_OT}, v5")
    A(f"v_add_u32 v7, {L_OT+40960}, v5")
    A("v_lshlrev_b32 v10, 3, v9")
    A("v_lshl_add_u32 v10, v11, 9, v10")
    A(f"v_add_u32 v10, {L_OT+32768}, v10")
    A("s_mul_i32 s56, s48, 5120")
    A("s_waitcnt lgkmcnt(0)")
    A("v_mul_u32_u24 v12, 80, v9")
    A("v_lshl_add_u32 v12, v11, 5, v12")
    A("v_add_u32 v12, s56, v12")
    A("v_mul_u32_u24 v13, 80, v2")
    A("v_lshl_add_u32 v13, v3, 4, v13")
    A("v_add_u32 v13, s56, v13")
    A("v_mul_u32_u24 v14, 2560, v2")
    A("v_lshl_add_u32 v14, v3, 4, v14")
    A(f"s_mul_i32 s59, s54, {64*2560}")
    A("s_add_u32 s59, s59, s52")
    lds_wait(A, 16, L_SYNC + 12, 4, sleep=2)
    stamp(A, 8)
    ppoll(A, 48, 15, "s55", sleep=Opt.psleep)
    A("s_barrier")
    stamp(A, 9)
    for k in range(5):
        A(f"s_add_u32 m0, s58, {8192*k}")
        for i in range(4):
            A(f"buffer_load_dwordx4 v5, s[{SWS}:{SWS+3}], s57 offen offset:{1024*i}{SC} lds")
        if k < 4:
            A("s_add_u32 s57, s57, 8192")
    if Ctx.stamps:
        A("s_waitcnt lgkmcnt(0)")
    ACC = (16, 32)
    OFB = 224
    T = Lgkm(A)

    def rdx(f):
        if f % 8 == 0:
            A(f"s_waitcnt vmcnt({16 - 4*(f//8)})")
            A("s_barrier")
        for t in range(2):
            d = OFB + 4 * ((2 * f + t) % 8)
            if f < 32:
                T.issue(f"ds_read_b128 {vr(d,4)}, v{6+t} offset:{1024*f}", (f, t))
            else:
                a = f - 32
                T.issue(f"ds_read_b64 {vr(d,2)}, v10 offset:{40960*t + 1024*a}")
                T.issue(f"ds_read_b64 {vr(d+2,2)}, v10 offset:{40960*t + 1024*a + 256}", (f, t))

    for f in range(3):
        rdx(f)
    for f in range(40):
        for t in range(2):
            T.wait((f, t))
            c = vr(ACC[t], 16) if f else "0"
            A(f"v_mfma_f32_32x32x16_bf16 {vr(ACC[t],16)}, {vr(WR+4*f,4)}, {vr(OFB+4*((2*f+t)%8),4)}, {c}")
            if t == 0 and f + 3 < 40:
                rdx(f + 3)
    stamp(A, 10)
    for t in range(2):
        for i in range(8):
            A(f"v_cvt_pk_bf16_f32 v{48+8*t+i}, v{ACC[t]+2*i}, v{ACC[t]+2*i+1}")
        for i in range(2):
            A(f"ds_write_b128 v12, {vr(48+8*t+4*i,4)} offset:{2560*t+16*i}")
    A("s_waitcnt lgkmcnt(0)")
    for i in range(4):
        A(f"ds_read_b128 {vr(64+4*i,4)}, v13 offset:{1280*i}")
    for i in range(4):
        A(f"s_waitcnt lgkmcnt({3-i})")
        A(f"buffer_store_dwordx4 {vr(64+4*i,4)}, v14, s[{SO}:{SO+3}], s59 offen{Opt.osc}")
        if i < 3:
            A(f"s_add_u32 s59, s59, {16*2560}")
    stamp(A, 11)
    end_wave(A, True)


def role_compute(A):
    ACC = 16
    WF = (96, 116)
    XF = (136, 152)
    XA, WA, AD = 168, 172, 182
    t0, t1, t2, t3 = 11, 12, 13, 14
    for i in range(80):
        A(f"v_mov_b32 v{ACC+i}, 0")
    A(f"v_and_b32 v{t0}, 255, v0")
    A(f"v_lshlrev_b32 v{t0}, 4, v{t0}")
    A(f"v_add_u32 v{t0}, {L_Z}, v{t0}")
    A(f"ds_write_b128 v{t0}, {vr(ACC,4)}")
    A(f"ds_write_b128 v{t0}, {vr(ACC,4)} offset:64")
    A("s_lshr_b32 s52, s48, 1")
    A("s_and_b32 s53, s48, 1")
    S16, G4, R4, C4 = 183, 184, 185, 186
    A(f"v_and_b32 v{S16}, 15, v1")
    A(f"v_lshrrev_b32 v{G4}, 4, v1")
    A(f"v_bfe_u32 v{R4}, v1, 2, 2")
    A(f"v_and_b32 v{C4}, 3, v1")
    A(f"v_bfe_u32 v{t2}, v1, 1, 3")
    A(f"v_xor_b32 v{t2}, v{t2}, v{G4}")
    A(f"v_lshlrev_b32 v{t2}, 4, v{t2}")
    A(f"v_lshl_add_u32 v{t2}, v{S16}, 7, v{t2}")
    A("s_lshl_b32 s54, s52, 13")
    A(f"v_add_u32 v{XA}, s54, v{t2}")
    A(f"v_xor_b32 v{XA+1}, 64, v{XA}")
    A(f"v_add_u32 v{XA+2}, {2*SLOT}, v{XA}")
    A(f"v_add_u32 v{XA+3}, {2*SLOT}, v{XA+1}")
    A("s_cmp_eq_u32 s51, 0")
    A("s_cselect_b32 s55, 80, 0")
    A("s_mul_i32 s56, s53, 80")
    A("s_lshl_b32 s56, s56, s51")
    A(f"v_lshrrev_b32 v{t0}, 1, v{C4}")
    A(f"v_mul_u32_u24 v{t0}, s55, v{t0}")
    A(f"v_mad_u32_u24 v{t0}, v{C4}, 40, v{t0}")
    A(f"v_add_u32 v{t0}, s56, v{t0}")
    A(f"v_and_b32 v{t1}, 1, v{G4}")
    A("s_add_u32 s57, s51, 4")
    A(f"v_lshlrev_b32 v{t1}, s57, v{t1}")
    A(f"v_lshl_add_u32 v{t2}, v{G4}, 3, v{R4}")
    A(f"v_mul_u32_u24 v{t2}, 320, v{t2}")
    A(f"v_add_u32 v{t2}, 16384, v{t2}")
    for t in range(5):
        A(f"v_add_u32 v{t3}, {8*t}, v{t0}")
        A(f"v_xor_b32 v{t3}, v{t3}, v{t1}")
        A(f"v_add_u32 v{WA+t}, v{t2}, v{t3}")
        A(f"v_add_u32 v{WA+5+t}, {2*SLOT}, v{WA+t}")
    HD = 187
    A("s_cmp_eq_u32 s51, 0")
    A("s_cselect_b32 s55, 1, 3")
    A("s_add_u32 s57, s51, 1")
    A("s_lshl_b32 s56, s53, s57")
    A(f"v_and_b32 v{HD}, s55, v{G4}")
    A(f"v_add_u32 v{HD}, s56, v{HD}")
    A(f"v_mul_u32_u24 v{t0}, 800, v{HD}")
    A(f"v_mad_u32_u24 v{t0}, v{R4}, 40, v{t0}")
    A(f"v_add_u32 v{t0}, {L_WP}, v{t0}")
    A(f"v_mov_b32 v{t1}, {L_Z}")
    A(f"v_cmp_eq_u32 vcc, v{C4}, v{G4}")
    A(f"v_cndmask_b32 v{AD}, v{t1}, v{t0}, vcc")
    A(f"v_lshrrev_b32 v{t0}, 5, v1")
    A(f"v_lshl_add_u32 v{t0}, v{t0}, 4, v{S16}")
    A("s_lshl_b32 s57, s52, 6")
    A(f"v_add_u32 v{t0}, s57, v{t0}")
    A(f"v_mul_u32_u24 v{t1}, 208, v{t0}")
    A(f"v_mad_u32_u24 v2, v{HD}, 48, v{t1}")
    A(f"v_add_u32 v2, {L_V}, v2")
    A(f"v_mul_u32_u24 v{t3}, 80, v{HD}")
    A(f"v_mul_u32_u24 v{t2}, 336, v{t0}")
    A(f"v_add_u32 v3, v{t3}, v{t2}")
    A(f"v_lshrrev_b32 v{t1}, 5, v1")
    A(f"v_lshl_add_u32 v9, v{t1}, 3, v{R4}")
    A(f"v_bfe_u32 v{t2}, v1, 4, 1")
    A(f"v_bfe_u32 v{t3}, v1, 1, 1")
    A(f"v_lshl_add_u32 v10, v{t2}, 1, v{t3}")
    A(f"v_and_b32 v15, 1, v1")
    A(f"v_mul_u32_u24 v{t0}, 336, v9")
    A(f"v_mad_u32_u24 v{t1}, v15, 5, v10")
    A(f"v_lshl_add_u32 v{t0}, v{t1}, 3, v{t0}")
    A("s_mul_i32 s57, s48, 80")
    A(f"v_add_u32 v6, s57, v{t0}")
    A(f"v_lshl_add_u32 v{t0}, v10, 1, v15")
    A("s_mul_i32 s57, s48, 6")
    A(f"v_min_u32 v{t1}, 5, v{t0}")
    A(f"v_add_u32 v{t1}, s57, v{t1}")
    A(f"v_mul_u32_u24 v{t0}, 208, v9")
    A(f"v_lshl_add_u32 v{t0}, v{t1}, 3, v{t0}")
    A(f"v_add_u32 v7, {L_V}, v{t0}")
    WPF = 188
    for tp in range(5):
        A(f"v_mov_b32 v{WPF+12*tp+10}, 0")
        A(f"v_mov_b32 v{WPF+12*tp+11}, 0")
    A(f"s_mov_b32 s60, {LOG2E:#x}")
    A(f"s_mov_b32 s61, {LOG2E:#x}")
    A("s_waitcnt lgkmcnt(0)")
    srd(A, SWS, S_WS, WS_SIZE)
    A("s_setprio 2")

    T = Lgkm(A)

    def reads(s, ks):
        sl, b = s % 3, ks
        L = []
        for t in range(5):
            for half in range(2):
                L.append((f"ds_read_b64_tr_b16 {vr(WF[b]+4*t+2*half,2)}, v{WA+5*(sl>>1)+t} offset:{(sl&1)*SLOT + (32*ks+4*half)*320}",
                          ("w", s, ks, t) if half else None))
            if t == 0:
                for rho in range(4):
                    L.append((f"ds_read_b128 {vr(XF[b]+4*rho,4)}, v{XA+2*(sl>>1)+ks} offset:{(sl&1)*SLOT + 2048*rho}", ("x", s, ks, rho)))
        return L

    wp = []
    for tp in range(5):
        for dq in range(5):
            wp.append((f"ds_read_b64_tr_b16 {vr(WPF+12*tp+2*dq,2)}, v{AD} offset:{160*dq+8*tp}", None))

    A("s_barrier")
    stampw(A, 3)
    for x, tg in reads(0, 0):
        T.issue(x, tg)
    for s in range(10):
        for ks in range(2):
            last = (s == 9 and ks == 1)
            nxt = [] if last else (reads(s, 1) if ks == 0 else reads(s + 1, 0))
            if ks == 0 and s < 5:
                nxt += wp[5 * s:5 * s + 5]
            start = 0 if ks == 0 else Opt.bpos
            for k in range(20):
                t, rho = k // 4, k % 4
                T.wait(("w", s, ks, t), ("x", s, ks, rho))
                a_ = ACC + 20 * rho + 4 * t
                A(f"v_mfma_f32_16x16x32_bf16 {vr(a_,4)}, {vr(WF[ks]+4*t,4)}, {vr(XF[ks]+4*rho,4)}, {vr(a_,4)}")
                if ks == 1 and k == start:
                    T.all()
                    A("s_barrier")
                if k >= start and nxt:
                    T.issue(*nxt.pop(0))
            assert not nxt
    stamp(A, 4)
    tag_issue(A)
    PS = (96, 106, 118, 128)
    E, F, TT_ = 140, 160, 248

    def cvt(rho):
        L = [f"v_cvt_pk_bf16_f32 v{PS[rho]+i}, v{ACC+20*rho+2*i}, v{ACC+20*rho+2*i+1}" for i in range(10)]
        if rho & 1:
            L += [f"v_mov_b32 v{PS[rho]+10}, 0x3f803f80", f"v_mov_b32 v{PS[rho]+11}, 0x3f803f80"]
        return L

    def phi_mfma(src, acc):
        L = []
        for u in range(3):
            for tp in range(5):
                c = vr(acc + 4 * tp, 4) if u else "0"
                L.append(f"v_mfma_f32_16x16x32_bf16 {vr(acc+4*tp,4)}, {vr(WPF+12*tp+4*u,4)}, {vr(src+4*u,4)}, {c}")
        return L

    def weave(mf, va, per):
        mf, va = list(mf), list(va)
        while mf or va:
            if mf:
                A(mf.pop(0))
            for _ in range(per):
                if va:
                    A(va.pop(0))

    for x in cvt(0) + cvt(1):
        A(x)
    Lq = A.newlabel("L_q")
    A("s_cmp_eq_u32 s51, 0")
    A(f"s_cbranch_scc0 {Lq}")
    mq = A.mark()
    for i in range(10):
        A(f"v_permlane32_swap_b32 v{PS[0]+i}, v{PS[1]+i}")
    weave(phi_mfma(PS[0], ACC), cvt(2) + cvt(3) + [f"v_permlane32_swap_b32 v{PS[2]+i}, v{PS[3]+i}" for i in range(10)], 2)
    vw = [f"ds_write_b128 v2, {vr(PS[1+2*sg]+4*i,4)} offset:{32*208*sg+16*i}" for sg in range(2) for i in range(3)]

    def body(parts):
        mm, fm, ex, sm, fin, tail = parts
        L = fm[:4]
        fm2, sm2 = list(fm[4:]), list(sm)
        for k in range(0, 40, 4):
            L += ex[k:k + 2]
            if fm2:
                L.append(fm2.pop(0))
            L += ex[k + 2:k + 4]
            if fm2:
                L.append(fm2.pop(0))
            if k >= 8:
                L += [sm2.pop(0), sm2.pop(0)]
        return L + sm2 + fin

    def tail_list(tail, wr):
        L = [tail[0][0], tail[1][0]]
        for j in range(20):
            if j + 2 < 20:
                L.append(tail[j + 2][0])
            L.append(tail[j][1])
            if wr and j % 4 == 3:
                L.append(wr[j // 4])
        return L

    s0 = softmax_parts(ACC, E, F, TT_, 56)
    s1 = softmax_parts(ACC + 20, E, F, TT_, 76)
    w0 = [f"ds_write_b128 v3, {vr(56+4*i,4)} offset:{16*i}" for i in range(5)]
    w1 = [f"ds_write_b128 v3, {vr(76+4*i,4)} offset:{32*336+16*i}" for i in range(5)]
    m1 = phi_mfma(PS[2], ACC + 20)
    for x in m1[:4]:
        A(x)
    weave(m1[4:], s0[0], 2)
    stamp(A, 2)
    for x in merge(body(s0), vw, 12) + tail_list(s0[5], w0):
        A(x)
    stamp(A, 13)
    for x in s1[0] + body(s1) + tail_list(s1[5], w1):
        A(x)
    stamp(A, 5)
    lds_arrive(A, 10, L_SYNC)
    A("s_lshl_b32 s57, s50, 2")
    A("s_add_u32 s57, s57, s48")
    A("s_lshl_b32 s57, s57, 4")
    A("s_add_u32 s57, s57, s49")
    A("s_lshl_b32 s59, s57, 7")
    A(f"s_add_u32 s59, s59, {F1:#x}")
    A("s_mul_i32 s57, s57, 2560")
    A(f"s_add_u32 s57, s57, {WS_PART:#x}")
    A("v_lshlrev_b32 v2, 4, v1")
    A("v_lshlrev_b32 v3, 3, v1")
    lds_wait(A, 10, None, 4)
    tag_check(A, 12)
    FA = 64
    T = Lgkm(A)
    for u in range(10):
        if u < 8:
            for half in range(2):
                o = (16 * u + 4 * half)
                T.issue(f"ds_read_b64_tr_b16 {vr(FA+12*u+2*half,2)}, v6 offset:{o*336}")
                T.issue(f"ds_read_b64_tr_b16 {vr(FA+12*u+4+2*half,2)}, v6 offset:{o*336+32}")
                T.issue(f"ds_read_b64_tr_b16 {vr(FA+12*u+8+2*half,2)}, v7 offset:{o*208}", u)
        if u >= 2:
            uu = u - 2
            T.wait(uu)
            for TT in range(2):
                c = vr(ACC + 16 * TT, 16) if uu else "0"
                A(f"v_mfma_f32_32x32x16_bf16 {vr(ACC+16*TT,16)}, {vr(FA+12*uu+4*TT,4)}, {vr(FA+12*uu+8,4)}, {c}")
    o_index(A)
    for i in range(10):
        A(f"v_cvt_pk_bf16_f32 v{48+i}, v{ACC+2*i}, v{ACC+2*i+1}")
    A(f"buffer_store_dwordx2 v[56:57], v3, s[{SWS}:{SWS+3}], s57 offen offset:2048{SC}")
    A("s_mov_b32 exec_lo, 0x00ffffff")
    A("s_mov_b32 exec_hi, 0x00ffffff")
    A(f"buffer_store_dwordx4 v[48:51], v2, s[{SWS}:{SWS+3}], s57 offen{SC}")
    A(f"buffer_store_dwordx4 v[52:55], v2, s[{SWS}:{SWS+3}], s57 offen offset:1024{SC}")
    A("s_mov_b64 exec, -1")
    stamp(A, 6)
    role_o(A)
    end_wave(A)
    A.label(Lq)
    hq = A.mark()
    pre = [f"s_mov_b32 s57, {64*1280}",
           f"v_mul_lo_u32 v{t1}, s57, v{HD}",
           f"v_lshl_add_u32 v2, v{S16}, 4, v{t1}",
           f"v_lshl_add_u32 v3, v{S16}, 3, v{t1}",
           "s_lshl_b32 s58, s49, 1",
           "s_add_u32 s58, s58, s52",
           "s_lshl_b32 s59, s50, 1",
           "s_add_u32 s59, s59, s53",
           "s_lshl_b32 s59, s59, 5",
           "s_add_u32 s59, s59, s58",
           "s_lshl_b32 s59, s59, 7",
           f"s_add_u32 s59, s59, {F2:#x}",
           "s_lshl_b32 s57, s50, 8",
           "s_add_u32 s57, s57, s58",
           "s_mul_i32 s57, s57, 2560"]
    A("s_nop 0")
    OQ = 140

    def outq(rho):
        x, o = ACC + 20 * rho, OQ + 10 * rho
        off = 1280 * (rho >> 1)
        L = [f"v_cvt_pk_bf16_f32 v{o+i}, v{x+2*i}, v{x+2*i+1}" for i in range(10)]
        L.append(f"buffer_store_dwordx4 {vr(o,4)}, v2, s[{SWS}:{SWS+3}], s57 offen offset:{off+256*(rho&1)}{SC}")
        L.append(f"buffer_store_dwordx4 {vr(o+4,4)}, v2, s[{SWS}:{SWS+3}], s57 offen offset:{off+512+256*(rho&1)}{SC}")
        L.append(f"buffer_store_dwordx2 {vr(o+8,2)}, v3, s[{SWS}:{SWS+3}], s57 offen offset:{off+1024+128*(rho&1)}{SC}")
        return L

    weave(phi_mfma(PS[0], ACC), cvt(2) + cvt(3), 2)
    weave(phi_mfma(PS[1], ACC + 20), pre, 1)
    weave(phi_mfma(PS[2], ACC + 40), outq(0), 1)
    weave(phi_mfma(PS[3], ACC + 60), outq(1), 1)
    for x in outq(2) + outq(3):
        A(x)
    stamp(A, 6)
    tag_check(A, 10)
    set_flag(A, 10, "s59")
    stamp(A, 7)
    A.check_seam(mq, hq)
    lds_arrive(A, 14, L_SYNC)
    A("s_setprio 0")
    A("s_cmp_lt_u32 s99, 4")
    A("s_cbranch_scc1 L_wo")
    if Opt.wopf == "qs":
        srd(A, 36, S_WO, NB_WO)
        A("s_sub_u32 s57, s99, 4")
        A("s_lshl_b32 s57, s57, 2")
        A("s_add_u32 s57, s57, s48")
        A("s_lshl_b32 s57, s57, 13")
        A(f"s_add_u32 s57, s57, {240*1280}")
        A("v_lshlrev_b32 v8, 7, v1")
        for i in range(4):
            A(f"buffer_load_dword v{200+i}, v8, s[36:39], s57 offen")
            A(f"s_add_u32 s57, s57, {16*8192}")
    end_wave(A)


def role_o(A):
    NT = 4
    RAW, X, PQ = 64, 104, 128
    A("s_mul_i32 s53, s48, 20480")
    A(f"s_add_u32 s53, s53, {L_WOB}")
    A("v_and_b32 v4, 31, v1")
    A("v_lshl_add_u32 v5, v4, 4, s53")
    A("v_lshl_add_u32 v6, v4, 3, s53")
    A("v_and_b32 v7, 32, v1")
    A("v_lshlrev_b32 v7, 26, v7")
    A("s_lshl_b32 s54, s48, 2")
    A(f"s_add_u32 s54, s54, {L_SYNC+16}")
    A("s_mov_b32 s58, 0xffff0000")
    for t in range(NT):
        A(f"v_mov_b32 v{PQ+12*t+10}, 0")
        A(f"v_mov_b32 v{PQ+12*t+11}, 0")
    set_flag(A, 10, "s59")
    lds_arrive(A, 14, L_SYNC + 4)
    stamp(A, 7)
    lds_wait(A, 14, "s54", 1)
    stampw(A, 8)
    T = Lgkm(A)
    for t in range(NT):
        T.issue(f"ds_read_b128 {vr(RAW+10*t,4)}, v5 offset:{1280*t}")
        T.issue(f"ds_read_b128 {vr(RAW+10*t+4,4)}, v5 offset:{1280*t+512}")
        T.issue(f"ds_read_b64 {vr(RAW+10*t+8,2)}, v6 offset:{1280*t+1024}", t)
    A("s_lshl_b32 s57, s63, 2")
    A("s_mul_i32 s54, s57, 40960")
    A(f"s_add_u32 s54, s54, {WS_O:#x}")
    A("s_lshl_b32 s59, s62, 8")
    A("s_add_u32 s59, s59, s54")
    A("s_add_u32 s59, s59, 32768")
    A("s_lshl_b32 s57, s62, 10")
    A("s_add_u32 s54, s54, s57")
    A("s_lshl_b32 s50, s63, 5")
    A("s_add_u32 s50, s50, s62")
    A("s_lshl_b32 s50, s50, 7")
    A(f"s_add_u32 s50, s50, {F3:#x}")
    mx, se = 124, 126
    for t in range(NT):
        T.wait(t)
        for i in range(10):
            A(f"v_lshl_add_u32 v{X+2*i}, v{RAW+10*t+i}, 16, v7")
            A(f"v_bitop3_b32 v{X+2*i+1}, v{RAW+10*t+i}, s58, v7 bitop3:0x6a")
        A(f"v_max3_f32 v{mx}, v{X}, v{X+1}, v{X+2}")
        A(f"v_max3_f32 v{mx+1}, v{X+3}, v{X+4}, v{X+5}")
        for i in range(6, 18, 4):
            A(f"v_max3_f32 v{mx}, v{mx}, v{X+i}, v{X+i+1}")
            A(f"v_max3_f32 v{mx+1}, v{mx+1}, v{X+i+2}, v{X+i+3}")
        A(f"v_max3_f32 v{mx}, v{mx}, v{X+18}, v{X+19}")
        A(f"v_max_f32 v{mx}, v{mx}, v{mx+1}")
        A(f"v_mul_f32 v{mx}, s60, v{mx}")
        for i in range(0, 20, 2):
            A(f"v_pk_fma_f32 {vr(X+i,2)}, {vr(X+i,2)}, s[60:61], {vr(mx,2)} op_sel_hi:[1,1,0] neg_lo:[0,0,1] neg_hi:[0,0,1]")
        for i in range(20):
            A(f"v_exp_f32 v{X+i}, v{X+i}")
        A(f"v_pk_add_f32 {vr(se,2)}, {vr(X,2)}, {vr(X+2,2)}")
        A(f"v_pk_add_f32 {vr(mx,2)}, {vr(X+4,2)}, {vr(X+6,2)}")
        for i in range(8, 20, 4):
            A(f"v_pk_add_f32 {vr(se,2)}, {vr(se,2)}, {vr(X+i,2)}")
            A(f"v_pk_add_f32 {vr(mx,2)}, {vr(mx,2)}, {vr(X+i+2,2)}")
        A(f"v_pk_add_f32 {vr(se,2)}, {vr(se,2)}, {vr(mx,2)}")
        A(f"v_add_f32 v{se}, v{se}, v{se+1}")
        A(f"v_rcp_f32 v{se}, v{se}")
        for i in range(0, 20, 2):
            A(f"v_pk_mul_f32 {vr(X+i,2)}, {vr(X+i,2)}, {vr(se,2)} op_sel_hi:[1,0]")
        for i in range(10):
            A(f"v_cvt_pk_bf16_f32 v{PQ+12*t+i}, v{X+2*i}, v{X+2*i+1}")
    stamp(A, 9)
    KF = 16
    A(f"v_mov_b32 v{KF+10}, 0")
    A(f"v_mov_b32 v{KF+11}, 0")
    lds_wait(A, 14, L_SYNC + 8, 4)
    stampw(A, 10)
    PR = 32
    T = Lgkm(A)
    for q in range(5):
        for p in range(4):
            T.issue(f"ds_read_b128 {vr(PR+16*q+4*p,4)}, v2 offset:{5120*p+1024*q}", q)
    for q in range(5):
        T.wait(q)
        b = PR + 16 * q
        for h in (0, 2):
            A(f"v_pk_add_f32 {vr(b+h,2)}, {vr(b+h,2)}, {vr(b+4+h,2)}")
            A(f"v_pk_add_f32 {vr(b+8+h,2)}, {vr(b+8+h,2)}, {vr(b+12+h,2)}")
        for h in (0, 2):
            A(f"v_pk_add_f32 {vr(b+h,2)}, {vr(b+h,2)}, {vr(b+8+h,2)}")
        for h in (0, 2):
            A(f"v_cvt_pk_bf16_f32 v{KF+2*q+h//2}, v{b+h}, v{b+h+1}")
    D = [176, 192, 208, 224]
    OP = [32, 40, 48, 56]

    def mf(t):
        for u in range(3):
            c = vr(D[t], 16) if u else "0"
            A(f"v_mfma_f32_32x32x16_bf16 {vr(D[t],16)}, {vr(KF+4*u,4)}, {vr(PQ+12*t+4*u,4)}, {c}")

    if Opt.dA:
        A(f"s_sleep {Opt.dA}")
    mf(0)
    mf(1)
    for t in range(NT):
        d, o = D[t], OP[t]
        A(f"v_add_f32 v10, 0x358637bd, v{d+12}")
        A("v_rcp_f32 v10, v10")
        if t + 2 < NT:
            mf(t + 2)
        for i in range(12):
            A(f"v_mul_f32 v{d+i}, v10, v{d+i}")
        for i in range(6):
            A(f"v_cvt_pk_bf16_f32 v{o+i}, v{d+2*i}, v{d+2*i+1}")
        A(f"buffer_store_dwordx4 {vr(o,4)}, v2, s[{SWS}:{SWS+3}], s54 offen{SC}")
        A("s_mov_b32 exec_hi, 0")
        A(f"buffer_store_dwordx2 {vr(o+4,2)}, v3, s[{SWS}:{SWS+3}], s59 offen{SC}")
        A("s_mov_b64 exec, -1")
        if t < NT - 1:
            A("s_add_u32 s54, s54, 40960")
            A("s_add_u32 s59, s59, 40960")
    stamp(A, 11)
    set_flag(A, 12, "s50")
    lds_arrive(A, 16, L_SYNC + 12)
    stamp(A, 12)


def b_channel(A):
    A("s_mul_i32 s49, s98, 80")
    A("s_sub_u32 s50, s99, 24")
    A("s_mul_i32 s50, s50, 6")
    A("s_add_u32 s49, s49, s50")
    A("s_add_u32 s49, s49, s48")
    A(f"s_mul_i32 s56, s48, {CV_LDS}")


def conv_load_h(A, v):
    SH = 40
    srd(A, SH, S_SSK, NB_SSK)
    A(f"v_lshlrev_b32 v{v}, 4, v1")
    A("s_lshl_b32 s50, s49, 12")
    A("s_add_u32 m0, s56, 64")
    for i in range(4):
        A(f"buffer_load_dwordx4 v{v}, s[{SH}:{SH+3}], s50 offen offset:{1024*i}{Opt.nt_s} lds")


def f0_lines(A, c0, c1, v):
    A(f"s_lshr_b32 s52, s{c0}, 6")
    A("s_mul_i32 s52, s52, 419431")
    A("s_lshr_b32 s52, s52, 16")
    A(f"s_lshr_b32 s53, s{c1}, 6")
    A("s_mul_i32 s53, s53, 419431")
    A("s_add_u32 s53, s53, 406324")
    A("s_lshr_b32 s53, s53, 16")
    A(f"v_lshrrev_b32 v{v}, 2, v1")
    A(f"v_add_u32 v{v}, s52, v{v}")
    A(f"v_min_u32 v{v}, s53, v{v}")
    A(f"v_lshlrev_b32 v{v}, 7, v{v}")
    A(f"s_mov_b32 s52, {F0:#x}")


def role_pre(A):
    SK, SV, SS = 32, 36, 40
    t0, t1, t2 = 2, 3, 4
    A("s_lshl_b32 s49, s98, 3")
    A("s_add_u32 s49, s49, s99")
    A("s_sub_u32 s49, s49, 24")
    A("s_mul_i32 s49, s49, 5")
    A("s_add_u32 s49, s49, s48")
    A("s_and_b32 s50, s49, 31")
    A("s_lshr_b32 s51, s49, 5")
    A(f"s_mul_i32 s52, s50, {64*1280}")
    A("s_lshl_b32 s53, s51, 7")
    A("s_add_u32 s52, s52, s53")
    A(f"v_lshrrev_b32 v{t0}, 3, v1")
    A(f"v_and_b32 v{t1}, 7, v1")
    A(f"v_mul_u32_u24 v{t2}, {8*1280}, v{t0}")
    A(f"v_lshl_add_u32 v{t2}, v{t1}, 4, v{t2}")
    A(f"v_add_u32 v5, s52, v{t2}")
    A(f"v_subrev_u32 v6, {3*1280}, v5")
    A(f"v_subrev_u32 v7, {2*1280}, v5")
    A(f"v_subrev_u32 v8, {1280}, v5")
    A(f"v_lshlrev_b32 v9, 6, v{t1}")
    A("s_lshl_b32 s54, s51, 9")
    A(f"s_movk_i32 s55, {4*1280}")
    A("s_waitcnt lgkmcnt(0)")
    srd(A, SK, S_BK, NB_X)
    srd(A, SV, S_BV, NB_X)
    srd(A, SS, S_SH, NB_SH)
    WR, KR, VR = 16, 32, 76
    for i in range(4):
        A(f"buffer_load_dwordx4 {vr(WR+4*i,4)}, v9, s[{SS}:{SS+3}], s54 offen offset:{16*i}")
    for i in range(3):
        A(f"buffer_load_dwordx4 {vr(KR+4*i,4)}, v{6+i}, s[{SK}:{SK+3}], 0 offen{Opt.nt_s}")

    order = []

    def ld(kind, i):
        so = "0" if i < 4 else "s55"
        if kind == "k":
            A(f"buffer_load_dwordx4 {vr(KR+12+4*i,4)}, v5, s[{SK}:{SK+3}], {so} offen offset:{1280*(i&3)}{Opt.nt_s}")
        else:
            A(f"buffer_load_dwordx4 {vr(VR+4*i,4)}, v5, s[{SV}:{SV+3}], {so} offen offset:{1280*(i&3)}{Opt.nt_s}")
        order.append((kind, i))

    for i in (5, 6, 7):
        ld("k", i)
    ld("k", 0); ld("v", 0); ld("k", 1); ld("v", 1)
    todo = [("k", 2), ("v", 2), ("k", 3), ("v", 3), ("k", 4), ("v", 4), ("v", 5), ("v", 6), ("v", 7)]
    stamp(A, 2)
    srd(A, SWS, S_WS, WS_SIZE)
    A("s_mul_i32 s56, s48, 8320")
    A(f"s_add_u32 s56, s56, {B_PRE}")
    A(f"v_mul_u32_u24 v10, 1040, v{t1}")
    A(f"v_lshl_add_u32 v10, v{t0}, 4, v10")
    A("v_add_u32 v10, s56, v10")
    A("v_lshrrev_b32 v11, 4, v1")
    A("v_lshlrev_b32 v11, 8, v11")
    A("v_and_b32 v12, 3, v1")
    A("v_lshl_add_u32 v11, v12, 6, v11")
    A("v_bfe_u32 v12, v1, 2, 2")
    A("v_lshl_add_u32 v11, v12, 3, v11")
    A("v_add_u32 v11, s56, v11")
    A(f"v_lshlrev_b32 v12, 12, v{t0}")
    A(f"v_lshl_add_u32 v12, v{t1}, 4, v12")
    A("s_lshl_b32 s57, s51, 18")
    A("s_lshl_b32 s58, s50, 7")
    A("s_add_u32 s57, s57, s58")
    A(f"s_add_u32 s57, s57, {WS_KVT:#x}")
    A("s_mov_b32 s59, 0xffff0000")
    WF, KF, VF, TA, OUT = 108, 140, 172, 180, 196

    def unpack(dst, src, n):
        for i in range(n):
            A(f"v_lshlrev_b32 v{dst+2*i}, 16, v{src+i}")
            A(f"v_and_b32 v{dst+2*i+1}, s59, v{src+i}")

    A(f"s_waitcnt vmcnt({3+len(order)})")
    ld(*todo.pop(0)); ld(*todo.pop(0))
    for c in range(8):
        A(f"v_lshlrev_b32 v{WF+c}, 16, v{WR+2*c}")
        A(f"v_and_b32 v{WF+8+c}, s59, v{WR+2*c}")
        A(f"v_lshlrev_b32 v{WF+16+c}, 16, v{WR+2*c+1}")
        A(f"v_and_b32 v{WF+24+c}, s59, v{WR+2*c+1}")
    A(f"s_waitcnt vmcnt({len(order)})")
    ld(*todo.pop(0)); ld(*todo.pop(0))
    for i in range(3):
        unpack(KF + 8 * i, KR + 4 * i, 4)
    for i in range(8):
        need = max(order.index(("k", i)), order.index(("v", i)))
        A(f"s_waitcnt vmcnt({len(order)-1-need})")
        for _ in range(2):
            if todo:
                ld(*todo.pop(0))
        if i == 2:
            b_channel(A)
            conv_load_h(A, 13)
            order.extend([None] * 4)
        unpack(KF + 8 * ((i + 3) & 3), KR + 12 + 4 * i, 4)
        unpack(VF, VR + 4 * i, 4)
        acc = TA + 8 * (i & 1)
        for j in (3, 2, 1, 0):
            kk = KF + 8 * ((i + 3 - j) & 3)
            for c in range(0, 8, 2):
                if j == 3:
                    A(f"v_pk_mul_f32 {vr(acc+c,2)}, {vr(kk+c,2)}, {vr(WF+8*j+c,2)}")
                else:
                    A(f"v_pk_fma_f32 {vr(acc+c,2)}, {vr(kk+c,2)}, {vr(WF+8*j+c,2)}, {vr(acc+c,2)}")
        for c in range(0, 8, 2):
            A(f"v_pk_mul_f32 {vr(acc+c,2)}, {vr(acc+c,2)}, {vr(VF+c,2)}")
        if i & 1:
            for c in range(8):
                A(f"v_cvt_pk_bf16_f32 v{OUT+4*c+i//2}, v{TA+c}, v{TA+8+c}")
    stamp(A, 3)
    for c in range(8):
        A(f"ds_write_b128 v10, {vr(OUT+4*c,4)} offset:{128*c}")
    A("s_waitcnt lgkmcnt(0)")
    T = Lgkm(A)
    for i in range(8):
        T.issue(f"ds_read_b64_tr_b16 {vr(16+4*i,2)}, v11 offset:{1040*i}")
        T.issue(f"ds_read_b64_tr_b16 {vr(18+4*i,2)}, v11 offset:{1040*i+32}", i)
    for i in range(8):
        T.wait(i)
        A(f"buffer_store_dwordx4 {vr(16+4*i,4)}, v12, s[{SWS}:{SWS+3}], s57 offen{SC}")
        if i < 7:
            A(f"s_add_u32 s57, s57, {8*4096}")
    A("s_waitcnt vmcnt(0)")
    stamp(A, 4)


def role_helper(A):
    SD = 40
    A("s_setprio 3")
    A("s_waitcnt lgkmcnt(0)")
    srd(A, SWS, S_WS, WS_SIZE)
    srd(A, SD, S_DBG, 256)
    Lz = A.newlabel("L_nz")
    A("s_cmp_eq_u32 s2, 192")
    A(f"s_cbranch_scc0 {Lz}")
    A("s_cmp_eq_u32 s48, 5")
    A(f"s_cbranch_scc0 {Lz}")
    A(f"s_mov_b32 s57, {WS_EPOCH:#x}")
    A("s_mov_b64 exec, 1")
    A(f"buffer_load_dword v4, off, s[{SWS}:{SWS+3}], s57{SC}")
    A("s_waitcnt vmcnt(0)")
    A("v_add_u32 v4, 1, v4")
    A("v_not_b32 v5, v4")
    A(f"buffer_store_dwordx2 v[4:5], off, s[{SD}:{SD+3}], 0{SC}")
    A(f"buffer_store_dword v4, off, s[{SWS}:{SWS+3}], s57{SC}")
    A("s_mov_b64 exec, -1")
    stamp(A, 2)
    A.label(Lz)
    if Opt.gpf:
        A("s_sub_u32 s50, s99, 24")
        A("s_mul_i32 s50, s50, 3")
        A("s_add_u32 s50, s50, s48")
        A("s_sub_u32 s50, s50, 5")
        A("s_and_b32 s51, s98, 3")
        A("s_lshl_b32 s51, s51, 3")
        A("s_add_u32 s51, s51, s50")
        A(f"s_mul_i32 s51, s51, {64*1280}")
        A("s_sub_u32 s52, s50, 8")
        A("s_mul_i32 s53, s52, 52")
        A("s_lshr_b32 s53, s53, 8")
        A("s_mul_i32 s53, s53, 640")
        A("s_lshl_b32 s52, s52, 7")
        A("s_add_u32 s52, s52, s53")
        A("s_lshr_b32 s53, s98, 2")
        A("s_mul_i32 s53, s53, 640")
        A("s_add_u32 s52, s52, s53")
        A("s_cmp_eq_u32 s50, 23")
        A(f"s_cselect_b32 s52, {NB_W:#x}, s52")
        A("s_cmp_lt_u32 s50, 8")
        A("s_cselect_b32 s51, s51, s52")
        A(f"s_cselect_b64 s[32:33], s[{S_X}:{S_X+1}], s[{S_W}:{S_W+1}]")
        A(f"s_mov_b32 s53, {NB_W:#x}")
        A(f"s_cselect_b32 s34, {NB_X:#x}, s53")
        A("s_mov_b32 s35, 0x20000")
        A("s_movk_i32 s53, 3840")
        A("s_cselect_b32 s52, 1280, s53")
        A(f"s_mov_b32 s53, {64*3840}")
        A("s_cselect_b32 s53, 128, s53")
        A("v_mul_u32_u24 v2, s52, v1")
        A(f"s_mul_i32 s52, s53, {Opt.gpf}")
        A("s_add_u32 s51, s51, s52")
        for k, st in enumerate(range(Opt.gpf, 10)):
            if k >= Opt.gpfd:
                A(f"s_waitcnt vmcnt({Opt.gpfd-1})")
            A(f"buffer_load_dword v{30+k}, v2, s[32:35], s51 offen")
            A("s_add_u32 s51, s51, s53")
    if Opt.codepf:
        Lp = A.newlabel("L_npf")
        A("s_cmp_eq_u32 s48, 6")
        A(f"s_cbranch_scc0 {Lp}")
        A("s_getpc_b64 s[50:51]")
        A.label("L_pc")
        A(f"s_sub_u32 s50, s50, L_pc-{NAME}_kernel")
        A("s_subb_u32 s51, s51, 0")
        A("s_sub_u32 s52, s99, 24")
        A("s_lshl_b32 s52, s52, 13")
        A("v_lshl_add_u32 v2, v1, 7, s52")
        A(f"v_min_u32 v2, L_code_end-{NAME}_kernel-4, v2")
        A("global_load_dword v24, v2, s[50:51]")
        if Opt.womall:
            srd(A, 36, S_WO, NB_WO)
            A("s_sub_u32 s52, s2, 192")
            A("s_lshl_b32 s52, s52, 14")
            A("s_add_u32 s53, s52, 8192")
            A("v_lshlrev_b32 v2, 7, v1")
            A("buffer_load_dword v25, v2, s[36:39], s52 offen")
            A("buffer_load_dword v26, v2, s[36:39], s53 offen")
        A.label(Lp)
    A("s_setprio 0")
    L6 = A.newlabel("L_h6")
    Lx = A.newlabel("L_h67")
    A("s_cmp_eq_u32 s48, 5")
    A(f"s_cbranch_scc0 {L6}")
    b_channel(A)
    conv_load_h(A, 2)
    A("s_branch L_bconv")
    A.label(L6)
    A("s_mul_i32 s54, s98, 80")
    A("s_sub_u32 s50, s99, 24")
    A("s_mul_i32 s55, s50, 6")
    A("s_add_u32 s54, s54, s55")
    A("s_add_u32 s55, s54, 5")
    f0_lines(A, 54, 55, 12)
    A("s_lshl_b32 s58, s98, 3")
    A("s_add_u32 s58, s58, s50")
    A("s_lshl_b32 s58, s58, 7")
    A(f"s_add_u32 s58, s58, {F0:#x}")
    Lt = A.newlabel("L_h7")
    A("s_cmp_eq_u32 s48, 7")
    A(f"s_cbranch_scc0 {Lt}")
    A(f"s_mov_b64 s[{TAG}:{TAG+1}], 0")
    tag_check(A, 8)
    A.label(Lt)
    A("s_barrier")
    A("s_cmp_eq_u32 s48, 7")
    A(f"s_cbranch_scc0 {Lx}")
    set_flag(A, 8, "s58")
    poll(A, 14, 12, "s52", sleep=4)
    A.label(Lx)
    A("s_barrier")
    A("s_branch L_post")


def conv_setup(A):
    A("v_lshlrev_b32 v2, 4, v1")
    A("s_lshl_b32 s52, s49, 1")
    A("s_and_b32 s52, s52, 0xfffffffc")
    A(f"s_load_dword s55, s[{S_SSD}:{S_SSD+1}], s52")
    A(f"s_load_dword s54, s[{S_SSK}:{S_SSK+1}], s50")
    A(f"s_add_u32 s51, s50, {WS_KVT:#x}")
    for i in range(4):
        A(f"v_mov_b32 v{4+i}, 0")
    A("v_add_u32 v3, s56, v2")
    A("s_mov_b64 exec, 0xf")
    A("ds_write_b128 v3, v[4:7]")
    A("s_mov_b32 exec_lo, -1")
    A(f"ds_write_b128 v3, v[4:7] offset:{64+4096}")
    A("s_mov_b64 exec, -1")
    A("v_and_b32 v8, 1, v1")
    A("v_lshlrev_b32 v8, 5, v8")
    A("v_bfe_u32 v9, v1, 4, 1")
    A("v_lshl_add_u32 v8, v9, 4, v8")
    A("v_bfe_u32 v9, v1, 1, 1")
    A("v_lshl_add_u32 v8, v9, 3, v8")
    A("v_lshrrev_b32 v10, 5, v1")
    A("v_lshl_add_u32 v8, v10, 6, v8")
    A("v_bfe_u32 v9, v1, 2, 2")
    A("v_lshlrev_b32 v9, 3, v9")
    A("v_sub_u32 v8, v8, v9")
    A("s_add_u32 s57, s56, 32")
    A("v_add_u32 v8, s57, v8")
    A("v_bfe_u32 v9, v1, 4, 1")
    A("v_lshlrev_b32 v9, 8, v9")
    A("v_and_b32 v11, 3, v1")
    A("v_lshl_add_u32 v9, v11, 6, v9")
    A("v_bfe_u32 v11, v1, 2, 2")
    A("v_lshl_add_u32 v9, v11, 4, v9")
    A("v_lshlrev_b32 v11, 6, v10")
    A("v_sub_u32 v9, v9, v11")
    A(f"s_add_u32 s57, s56, {64+4096+512-384}")
    A("v_add_u32 v9, s57, v9")
    A("v_bfe_u32 v11, v1, 2, 1")
    A("v_bfe_u32 v12, v1, 3, 2")
    A("v_lshl_add_u32 v11, v11, 2, v12")
    A("v_and_b32 v12, 35, v1")
    A("v_lshl_add_u32 v11, v12, 3, v11")
    A("v_and_b32 v12, 1, v11")
    A("v_lshlrev_b32 v12, 4, v12")
    A("v_mov_b32 v13, 0xffff")
    A("v_lshlrev_b32 v13, v12, v13")
    A("v_lshrrev_b32 v11, 1, v11")
    for i in range(4):
        A(f"v_cmp_eq_u32 vcc, {i}, v11")
        A(f"v_cndmask_b32 v{MK+i}, 0, v13, vcc")
    A("v_bfe_u32 v11, v1, 4, 1")
    A("v_and_b32 v12, 3, v1")
    A("v_lshl_add_u32 v11, v11, 2, v12")
    A("v_add_u32 v11, 7, v11")
    A("v_and_b32 v12, 3, v11")
    A("v_bfe_u32 v13, v11, 2, 1")
    A("v_lshl_add_u32 v12, v13, 4, v12")
    A("v_and_b32 v13, 12, v1")
    A("v_add3_u32 v12, v12, v13, 32")
    A("v_subrev_u32 v13, 32, v1")
    A("v_cmp_gt_u32 vcc, 32, v1")
    A("v_cndmask_b32 v14, v13, v12, vcc")
    A("v_lshlrev_b32 v14, 2, v14")
    A("s_mov_b32 s58, 0x1111")
    A("s_mov_b32 s59, 0")


MK = 16


def role_conv(A):
    A("s_barrier")
    conv_setup(A)
    A.label("L_conv")
    NR = 20
    RA, RB, RS = 64, 144, 224
    ACCS = (32, 48)
    CAR, PUL, TMP = 20, (21, 22), 23
    OUT = (24, 28)

    def rdA(m, reg, tag):
        return [(f"ds_read_b64_tr_b16 {vr(reg,2)}, v8 offset:{128*m+32}", None),
                (f"ds_read_b64_tr_b16 {vr(reg+2,2)}, v8 offset:{128*m}", tag)]

    def rdB(b, reg, tag):
        return [(f"ds_read_b128 {vr(reg,4)}, v9 offset:{128*b}", tag)]

    def xload():
        A(f"s_add_u32 m0, s56, {64+4096+512}")
        for i in range(4):
            A(f"buffer_load_dwordx4 v2, s[{SWS}:{SWS+3}], s51 offen offset:{1024*i}{SC} lds")

    Lb, Lg = A.newlabel("L_cb"), A.newlabel("L_cg")
    A("s_waitcnt vmcnt(0)")
    A("s_cmp_ge_u32 s99, 24")
    A(f"s_cbranch_scc1 {Lb}")
    tag_check(A, 22)
    conv_load_h(A, 2)
    A(f"buffer_load_dwordx2 v[22:23], v12, s[{SWS}:{SWS+3}], s52 offen{SC}")
    A("s_barrier")
    A("s_waitcnt vmcnt(0)")
    A(f"v_cmp_eq_u64 vcc, s[{TAG}:{TAG+1}], v[22:23]")
    A("s_cmp_eq_u64 vcc, -1")
    Lx = A.newlabel("L_cx")
    A(f"s_cbranch_scc1 {Lx}")
    poll(A, 22, 12, "s52", sleep=8)
    A.label(Lx)
    stamp(A, 8)
    xload()
    A.label(Lb)
    A("s_waitcnt lgkmcnt(0)")
    A("s_lshl_b32 s54, s54, 16")
    A("s_lshl_b32 s53, s55, 16")
    A("s_and_b32 s55, s55, 0xffff0000")
    A("s_bitcmp1_b32 s49, 0")
    A("s_cselect_b32 s53, s55, s53")
    A("v_mov_b32 v15, s54")
    A("v_add_f32 v15, s53, v15")
    A("v_cvt_pk_bf16_f32 v15, v15, v15")
    T = Lgkm(A)
    for m in range(NR):
        for x, tg in rdA(m, RA + 4 * m, ("A", m)):
            T.issue(x, tg)
    T.wait(("A", 0))
    for k in range(4):
        A(f"v_bfi_b32 v{RA+k}, v{MK+k}, v15, v{RA+k}")
    T.all()
    if Opt.qwait:
        Lqd = A.newlabel("L_qd")
        A("s_cmp_ge_u32 s99, 24")
        A(f"s_cbranch_scc1 {Lqd}")
        lds_wait(A, 12, L_SYNC, 4, sleep=4)
        A.label(Lqd)
    A("s_cmp_ge_u32 s99, 24")
    A(f"s_cbranch_scc0 {Lg}")
    A("s_barrier")
    stamp(A, 8)
    xload()
    A.label(Lg)
    A(f"s_add_u32 s51, s50, {WS_YT:#x}")
    A(f"v_mov_b32 v{PUL[1]}, 0")

    sched = []
    for i in range(8):
        ms = list(range(4 * i + 4))
        res = [m for m in ms if m < NR and 4 * i + 3 - m < NR]
        stm = [m for m in ms if m not in res]
        sched += [(i, m) for m in res + stm]
    streams = []
    for k, (i, m) in enumerate(sched):
        b = 4 * i + 3 - m
        if m >= NR:
            streams.append((k, "A", m))
        elif b >= NR:
            streams.append((k, "B", b))
    slot_of = {k: n % 8 for n, (k, _, _) in enumerate(streams)}

    def epilogue(i):
        V = ACCS[i & 1]
        own = [f"v_add_f32_dpp v{V+4*j}, v{V+4*j+k}, v{V+4*j} row_shr:{4*k} row_mask:0xf bank_mask:0xf"
               for k in (1, 2, 3) for j in range(4)]
        car = [f"v_add_f32_dpp v{CAR}, v{V+12+k}, v{CAR} row_shl:{16-4*k} row_mask:0xf bank_mask:0xf" for k in (1, 2, 3)]
        L = [f"v_mov_b32 v{CAR}, 0"] + own[0:2] + car[0:1] + own[2:4] + car[1:2] + own[4:6] + car[2:3]
        L.append(("ds", f"ds_bpermute_b32 v{PUL[i&1]}, v14, v{CAR}", ("P", i)))
        L += own[6:]
        for k in (1, 2, 3):
            for j in (0, 1, 2):
                L.append(f"v_add_f32_dpp v{V+4*j+4}, v{V+4*j+k}, v{V+4*j+4} row_shl:{16-4*k} row_mask:0xf bank_mask:0xf")
        o = OUT[(i >> 1) & 1] + 2 * (i & 1)
        L.append(f"v_cvt_pk_bf16_f32 v{o+1}, v{V+8}, v{V+12}")
        L.append(("wait", ("P", i)))
        L.append(f"v_cndmask_b32 v{TMP}, v{PUL[i&1]}, v{PUL[1-(i&1)]}, s[58:59]")
        L.append(f"v_add_f32 v{V}, v{V}, v{TMP}")
        L.append(f"v_cvt_pk_bf16_f32 v{o}, v{V}, v{V+4}")
        if i & 1:
            L.append(f"buffer_store_dwordx4 {vr(OUT[(i>>1)&1],4)}, v2, s[{SWS}:{SWS+3}], s51 offen offset:{1024*(i>>1)}{SC}")
        return L

    def emit(x):
        if isinstance(x, tuple):
            if x[0] == "ds":
                T.issue(x[1], x[2])
            else:
                T.wait(x[1])
        else:
            A(x)

    A("s_waitcnt vmcnt(0)")
    stampw(A, 9)
    for b in range(8):
        for x, tg in rdB(b, RB + 4 * b, ("B", b)):
            T.issue(x, tg)
    nres = 8
    nst = 0
    fill = []
    first = {}
    for k, (i, m) in enumerate(sched):
        first.setdefault(i, k)
    for k, (i, m) in enumerate(sched):
        V = ACCS[i & 1]
        b = 4 * i + 3 - m
        if k == first[i]:
            while fill:
                emit(fill.pop(0))
            if i > 0:
                fill = epilogue(i - 1)
        if k in slot_of:
            T.wait(("S", k))
        if b < NR:
            T.wait(("B", b))
        ra = RA + 4 * m if m < NR else RS + 4 * slot_of[k]
        rb = RB + 4 * b if b < NR else RS + 4 * slot_of[k]
        c = vr(V, 16) if k != first[i] else "0"
        A(f"v_mfma_f32_32x32x16_bf16 {vr(V,16)}, {vr(ra,4)}, {vr(rb,4)}, {c}")
        budget = 5
        if nres < NR:
            for x, tg in rdB(nres, RB + 4 * nres, ("B", nres)):
                T.issue(x, tg)
            nres += 1
            budget -= 1
        elif nst < len(streams) and (nst < 8 or streams[nst - 8][0] < k) and streams[nst][0] - k <= 10:
            kk, kind, fr = streams[nst]
            for x, tg in (rdA if kind == "A" else rdB)(fr, RS + 4 * slot_of[kk], ("S", kk)):
                T.issue(x, tg)
                budget -= 1
            nst += 1
        if k > first[i]:
            for _ in range(budget):
                if fill:
                    emit(fill.pop(0))
    while fill:
        emit(fill.pop(0))
    stampw(A, 10)
    T.done = T.n if Ctx.stamps else T.done
    for x in epilogue(7):
        emit(x)
    A("s_waitcnt vmcnt(0)")
    stamp(A, 11)
    A("s_cmp_ge_u32 s99, 24")
    A("s_cbranch_scc1 L_bdone")
    A(f"v_mov_b32 v10, {L_SYNC+12}")
    A("v_mov_b32 v11, 1")
    A("s_mov_b64 exec, 1")
    A("ds_add_rtn_u32 v12, v10, v11")
    A("s_mov_b64 exec, -1")
    A("s_lshl_b32 s52, s98, 4")
    A("s_add_u32 s52, s52, s99")
    A("s_lshl_b32 s52, s52, 7")
    A(f"s_add_u32 s52, s52, {F4+8*128:#x}")
    A("s_waitcnt lgkmcnt(0)")
    A("v_readfirstlane_b32 s53, v12")
    A("s_cmp_eq_u32 s53, 3")
    A("s_cbranch_scc0 L_bend")
    set_flag(A, 10, "s52")
    A("s_branch L_bend")
    A.label("L_bdone")


def role_post(A):
    SQ, SO = 32, 36
    A.label("L_post")
    A("s_lshl_b32 s48, s48, 2")
    A("s_lshr_b32 s48, 0x43002100, s48")
    A("s_and_b32 s48, s48, 7")
    A("s_mul_i32 s49, s98, 40")
    A("s_sub_u32 s50, s99, 24")
    A("s_mul_i32 s50, s50, 5")
    A("s_add_u32 s49, s49, s50")
    A("s_add_u32 s49, s49, s48")
    A("s_and_b32 s50, s49, 31")
    A("s_lshr_b32 s51, s49, 5")
    A("v_lshrrev_b32 v2, 3, v1")
    A("v_and_b32 v3, 7, v1")
    A("v_lshlrev_b32 v4, 12, v2")
    A("v_lshl_add_u32 v4, v3, 4, v4")
    A("s_lshl_b32 s52, s51, 18")
    A("s_lshl_b32 s53, s50, 7")
    A("s_add_u32 s52, s52, s53")
    A(f"s_add_u32 s52, s52, {WS_YT:#x}")
    A("s_mul_i32 s56, s48, 8320")
    A(f"s_add_u32 s56, s56, {B_PRE}")
    A("s_lshr_b32 s54, s50, 3")
    A("s_lshl_b32 s54, s54, 9")
    A("s_bfe_u32 s55, s50, 0x10002")
    A("s_lshl_b32 s55, s55, 4")
    A("s_add_u32 s54, s54, s55")
    A("s_bfe_u32 s55, s50, 0x10001")
    A("s_lshl_b32 s55, s55, 7")
    A("s_add_u32 s54, s54, s55")
    A("s_and_b32 s55, s50, 1")
    A("s_lshl_b32 s55, s55, 1")
    A("s_add_u32 s54, s54, s55")
    A("v_and_b32 v5, 3, v2")
    A("v_lshrrev_b32 v6, 2, v2")
    A("v_lshl_add_u32 v5, v5, 5, v6")
    A("v_mul_u32_u24 v6, 1280, v5")
    A("v_lshlrev_b32 v7, 1, v6")
    A("v_lshl_add_u32 v6, v3, 4, v6")
    A("v_lshl_add_u32 v7, v3, 4, v7")
    A("s_mul_i32 s54, s54, 1280")
    A("s_lshl_b32 s53, s51, 7")
    A("s_lshl_b32 s55, s54, 1")
    A("s_add_u32 s54, s54, s53")
    A("s_add_u32 s55, s55, s53")
    A("s_add_u32 s55, s55, 1280")
    srd(A, SQ, S_BQ, NB_X)
    srd(A, SO, S_OUT, NB_OUT)
    QR, YR = 16, 48
    rows = [0, 4, 8, 12, 256, 260, 264, 268]
    if Opt.wopf == "b":
        Ln = A.newlabel("L_npf")
        A("s_cmp_ge_u32 s48, 3")
        A(f"s_cbranch_scc0 {Ln}")
        srd(A, 40, S_WO, NB_WO)
        A("s_sub_u32 s57, s99, 24")
        A("s_lshl_b32 s57, s57, 1")
        A("s_add_u32 s57, s57, s48")
        A("s_sub_u32 s57, s57, 3")
        A("s_lshl_b32 s57, s57, 13")
        A("v_lshlrev_b32 v8, 7, v1")
        for i in range(7):
            A(f"buffer_load_dword v{200+i}, v8, s[40:43], s57 offen")
            A(f"s_add_u32 s57, s57, {16*8192}")
        A.label(Ln)
    for i in range(8):
        A(f"s_add_u32 s57, s54, {rows[i]*1280}")
        A(f"buffer_load_dwordx4 {vr(QR+4*i,4)}, v6, s[{SQ}:{SQ+3}], s57 offen{Opt.nt_s}")
    A("s_mov_b32 s59, 0xffff0000")
    QF = 128
    A("s_waitcnt vmcnt(0)")
    for i in range(32):
        A(f"v_lshlrev_b32 v{QF+2*i}, 16, v{QR+i}")
        A(f"v_and_b32 v{QF+2*i+1}, s59, v{QR+i}")
    A("s_lshl_b32 s57, s98, 4")
    A("s_sub_u32 s58, s57, 16")
    A("v_min_u32 v12, 47, v1")
    A("v_add_u32 v12, s58, v12")
    A("v_max_i32 v12, 0, v12")
    A("v_min_u32 v12, 127, v12")
    A("v_lshlrev_b32 v12, 7, v12")
    A("s_add_u32 s57, s57, s99")
    A("s_lshl_b32 s57, s57, 7")
    A(f"s_add_u32 s57, s57, {F4-24*128:#x}")
    A(f"s_mov_b32 s58, {F4:#x}")
    Lx = A.newlabel("L_p7")
    A("s_barrier")
    A("s_cmp_eq_u32 s48, 4")
    A(f"s_cbranch_scc0 {Lx}")
    set_flag(A, 8, "s57")
    poll(A, 14, 12, "s58", sleep=4)
    A.label(Lx)
    A("s_barrier")
    if Opt.dB:
        A(f"s_sleep {Opt.dB}")
    stamp(A, 12)
    for i in range(8):
        A(f"v_xor_b32 v8, {16*i}, v4")
        A(f"s_add_u32 m0, s56, {1024*i}")
        A(f"buffer_load_dwordx4 v8, s[{SWS}:{SWS+3}], s52 offen{SC} lds")
        if i < 7:
            A(f"s_add_u32 s52, s52, {8*4096}")
    A("v_xor_b32 v8, v2, v3")
    A("v_lshlrev_b32 v8, 4, v8")
    A("v_lshl_add_u32 v8, v3, 10, v8")
    A("v_add_u32 v8, s56, v8")
    A("s_waitcnt vmcnt(0)")
    for c in range(8):
        A(f"ds_read_b128 {vr(YR+4*c,4)}, v8 offset:{128*c}")
    A("s_waitcnt lgkmcnt(0)")
    stamp(A, 13)
    YF, OUT = 80, 96
    for i in range(8):
        for c in range(8):
            if i & 1:
                A(f"v_and_b32 v{YF+c}, s59, v{YR+4*c+i//2}")
            else:
                A(f"v_lshlrev_b32 v{YF+c}, 16, v{YR+4*c+i//2}")
        for c in range(0, 8, 2):
            A(f"v_pk_mul_f32 {vr(YF+c,2)}, {vr(YF+c,2)}, {vr(QF+8*i+c,2)}")
        for k in range(4):
            A(f"v_cvt_pk_bf16_f32 v{OUT+4*i+k}, v{YF+2*k}, v{YF+2*k+1}")
        A(f"s_add_u32 s57, s55, {rows[i]*2560}")
        A(f"buffer_store_dwordx4 {vr(OUT+4*i,4)}, v7, s[{SO}:{SO+3}], s57 offen{Opt.oscb}")
    stamp(A, 14)


def build():
    A = Asm()
    k = NAME + "_kernel"
    A.raw(f".globl {k}")
    A.raw(".p2align 8")
    A.raw(f".type {k},@function")
    A.label(k)
    if Opt.hold:
        A("s_memrealtime s[64:65]")
    load_kernargs(A)
    if not Opt.hp:
        stamp_init(A)
        if Opt.rt:
            A("s_waitcnt lgkmcnt(0)")
            stamp(A, 1)
    A("v_lshrrev_b32 v2, 6, v0")
    A("v_and_b32 v1, 63, v0")
    A("v_readfirstlane_b32 s100, v2")
    A("s_and_b32 s98, s2, 7")
    A("s_lshr_b32 s99, s2, 3")
    A("s_cmp_ge_u32 s2, 192")
    A("s_cbranch_scc1 L_b")
    A("s_and_b32 s49, s2, 3")
    A("s_lshl_b32 s49, s49, 2")
    A("s_and_b32 s50, s99, 3")
    A("s_add_u32 s49, s49, s50")
    A("s_bfe_u32 s52, s2, 0x10002")
    A("s_lshr_b32 s53, s2, 5")
    A("s_lshl_b32 s54, s52, 1")
    A("s_add_u32 s54, s54, s53")
    A("s_lshl_b32 s55, s52, 2")
    A("s_add_u32 s55, s55, s53")
    A("s_sub_u32 s55, s55, 2")
    A("s_cmp_lt_u32 s2, 64")
    A("s_cselect_b32 s50, s54, s55")
    A("s_cselect_b32 s51, 1, 0")
    A("s_and_b32 s48, s100, 3")
    A("s_cmp_ge_u32 s100, 4")
    A("s_cbranch_scc1 L_c")
    role_loader(A)
    A.label("L_c")
    role_compute(A)
    A.label("L_b")
    A("s_cmp_ge_u32 s2, 256")
    A("s_cbranch_scc1 L_exit")
    A("s_mov_b32 s48, s100")
    A("s_cmp_ge_u32 s48, 5")
    A("s_cbranch_scc1 L_help")
    role_pre(A)
    A("s_branch L_bconv")
    A.label("L_help")
    role_helper(A)
    A.label("L_bconv")
    role_conv(A)
    A("s_bitcmp1_b32 0x32, s48")
    A("s_cbranch_scc1 L_bend")
    role_post(A)
    A.label("L_bend")
    end_wave(A)
    A.label("L_exit")
    A("s_endpgm")
    A.label("L_code_end")
    head = ["; generated by gen/f4.py",
            "; @launch grid=(256,1,1) block=(512,1,1) lds=163840"]
    txt = "\n".join(head) + '\n.amdgcn_target "amdgcn-amd-amdhsa--gfx950"\n.text\n' + A.text()
    txt += f'''.section .rodata,"a"
.p2align 6
.amdhsa_kernel {k}
  .amdhsa_next_free_vgpr 256
  .amdhsa_next_free_sgpr 102
  .amdhsa_accum_offset 256
  .amdhsa_group_segment_fixed_size 0
  .amdhsa_kernarg_size 104
  .amdhsa_user_sgpr_count 2
  .amdhsa_user_sgpr_kernarg_segment_ptr 1
  .amdhsa_system_sgpr_workgroup_id_x 1
.end_amdhsa_kernel
'''
    return txt


if __name__ == "__main__":
    args = sys.argv[2:]
    Ctx.stamps = "stamps" in args
    Opt.rot = "norot" not in args
    Opt.codepf = "nocodepf" not in args
    for a in args:
        if a.startswith("probe="):
            Opt.probe = tuple(int(x) for x in a[6:].split(","))
        if a.startswith("holdwg="):
            Opt.holdwg = int(a[7:])
        if a.startswith("osc="):
            Opt.osc = a[4:].replace("_", " ")
        if a.startswith("oscb="):
            Opt.oscb = a[5:].replace("_", " ")
        if a.startswith("gpf="):
            Opt.gpf = int(a[4:])
        if a.startswith("gpfd="):
            Opt.gpfd = int(a[5:])
        if a.startswith("rotA="):
            Opt.rotA = int(a[5:], 16)
        if a.startswith("rotB="):
            Opt.rotB = int(a[5:], 16)
        if a == "fake16":
            Opt.fake16 = True
        if a.startswith("qdelay="):
            Opt.qdelay = int(a[7:])
        if a.startswith("bpos="):
            Opt.bpos = int(a[5:])
        if a == "lidle":
            Opt.lidle = True
        if a == "noqwait":
            Opt.qwait = False
        if a == "rt":
            Opt.rt = True
        if a.startswith("hp="):
            Opt.hp = int(a[3:])
            Ctx.stamps = True
        if a.startswith("hold="):
            Opt.hold = int(a[5:])
        if a.startswith("dA="):
            Opt.dA = int(a[3:])
        if a.startswith("dB="):
            Opt.dB = int(a[3:])
        if a == "nowomall":
            Opt.womall = False
        if a == "noppoll":
            Opt.ppoll = False
        if a.startswith("psleep="):
            Opt.psleep = int(a[7:])
        if a.startswith("wopf="):
            Opt.wopf = a[5:]
    for a in args:
        if a.startswith("LA="):
            Opt.LA = int(a[3:])
    open(sys.argv[1], "w").write(build())
```

```python
import sys
from asm import Asm, vr, ar, sr
from roles import (WS_PHIQ, WS_PART, WS_O, WS_KVT, WS_YT, WS_STAMP, WS_SIZE, S_X, S_W, S_WPHI, S_WO, S_BQ, S_BK, S_BV,
                   S_SH, S_SSK, S_SSD, S_OUT, S_DBG, S_WS, NB_X, NB_W, NB_WPHI, NB_WO, NB_SH, NB_SSK, NB_OUT, LOG2E,
                   Ctx, load_kernargs, srd, stamp, stamp_init, softmax20)

NAME = "concat_heads__linear_kernel_hedgehog__ssm_conv_h3__prompt"
WS_PQ = WS_PHIQ
WS_FLAG = 0xF00000
F1, F2, F3, F0, F4 = (WS_FLAG + 128 * o for o in (0, 512, 1024, 1536, 1856))
WS_EPOCH = WS_FLAG + 128 * 2560 + 64
SWS = 44
SC = " sc1"
TAG = 30
SLOT = 36864
L_WP = 147456
L_Z = L_WP + 8192
L_SYNC = L_Z + 4096
L_V = 128 * 336
L_WOB = 69632
L_OT = 65536
CV_LDS = 8768
L_QCV = 3 * SLOT
B_PRE = 6 * CV_LDS


class Opt:
    rot = True
    LA = 2
    nt_s = " nt"
    codepf = True
    wopf = "qs"
    osc = " sc1 nt"
    oscb = " sc1 nt"
    hp = 0
    dflag = True
    prog = True
    fwarm = True
    qwait = True
    lidle = False
    bpos = 4
    fake16 = False
    qdelay = 0
    rotA = 0x8530
    rotB = 0x550050
    gpf = 0
    gpfd = 99
    rt = False
    ppoll = False
    womall = True
    probe = None
    dA = 0
    hold = 0
    holdwg = -1
    dB = 0
    psleep = 2


_stamp0 = stamp


def stamp(A, k, real=False):
    if Opt.hp:
        if k == Opt.hp:
            A("s_memrealtime s[64:65]")
        return
    _stamp0(A, k, real or Opt.rt)


def end_wave(A, holdable=False):
    if Opt.hp:
        if holdable:
            L = A.newlabel("L_hp")
            A("s_cmp_lt_u32 s99, 8")
            A("s_cbranch_scc1 L_exit")
            A.label(L)
            A("s_sleep 4")
            A("s_memrealtime s[66:67]")
            A("s_waitcnt lgkmcnt(0)")
            A("s_sub_u32 s66, s66, s64")
            A("s_cmp_lt_u32 s66, 2000")
            A(f"s_cbranch_scc1 {L}")
    elif Ctx.stamps:
        stamp(A, 15, True)
        A("s_waitcnt lgkmcnt(0)")
        A("s_mov_b64 exec, -1")
        A("v_mov_b32 v2, 0")
        for k in range(16):
            A(f"v_writelane_b32 v2, s{64+2*k}, {k}")
        A("s_lshl_b32 s62, s2, 3")
        A("s_add_u32 s62, s62, s100")
        A("s_lshl_b32 s62, s62, 6")
        A(f"s_add_u32 s62, s62, {WS_STAMP:#x}")
        A("v_lshlrev_b32 v1, 2, v1")
        A("s_mov_b64 exec, 0xffff")
        A(f"buffer_store_dword v2, v1, s[{SWS}:{SWS+3}], s62 offen")
        if Opt.probe:
            Lp = A.newlabel("L_probe")
            A(f"s_cmp_eq_u32 s2, {Opt.probe[0]}")
            A(f"s_cbranch_scc0 {Lp}")
            A(f"s_cmp_eq_u32 s100, {Opt.probe[1]}")
            A(f"s_cbranch_scc0 {Lp}")
            A("v_subrev_u32 v3, s66, v2")
            A("s_sub_u32 s62, s94, s64")
            A("v_writelane_b32 v3, s62, 15")
            A("v_cmp_ne_u32 vcc, 0, v2")
            A("v_cndmask_b32 v3, 0, v3, vcc")
            A("s_mov_b64 exec, 0xfffc")
            A(f"global_store_dword v1, v3, s[{S_DBG}:{S_DBG+1}]")
            A.label(Lp)
    A("s_endpgm")


def stampw(A, k):
    stamp(A, k)
    if Ctx.stamps:
        A("s_waitcnt lgkmcnt(0)")


def poll(A, vt, voff, soff, sleep=1):
    L, Ld = A.newlabel("L_poll"), A.newlabel("L_polld")
    A("s_movk_i32 s101, 0x4000")
    A.label(L)
    A(f"buffer_load_dwordx2 {vr(vt,2)}, v{voff}, s[{SWS}:{SWS+3}], {soff} offen{SC}")
    A("s_waitcnt vmcnt(0)")
    A(f"v_cmp_eq_u64 vcc, s[{TAG}:{TAG+1}], {vr(vt,2)}")
    A("s_cmp_eq_u64 vcc, -1")
    A(f"s_cbranch_scc1 {Ld}")
    A(f"s_sleep {sleep}")
    A("s_sub_u32 s101, s101, 1")
    A("s_cmp_eq_u32 s101, 0")
    A(f"s_cbranch_scc0 {L}")
    A("s_endpgm")
    A.label(Ld)


def ppoll(A, vt, voff, soff, sleep=1, depth=4):
    if not Opt.ppoll:
        return poll(A, vt, voff, soff, sleep=sleep)
    L, Ld = A.newlabel("L_pp"), A.newlabel("L_ppd")
    ld = lambda k: f"buffer_load_dwordx2 {vr(vt+2*k,2)}, v{voff}, s[{SWS}:{SWS+3}], {soff} offen{SC}"
    A("s_movk_i32 s101, 0x4000")
    for k in range(depth - 1):
        A(ld(k))
        A(f"s_sleep {sleep}")
    A.label(L)
    for k in range(depth):
        A(ld((k + depth - 1) % depth))
        A(f"s_waitcnt vmcnt({depth-1})")
        A(f"v_cmp_eq_u64 vcc, s[{TAG}:{TAG+1}], {vr(vt+2*k,2)}")
        A("s_cmp_eq_u64 vcc, -1")
        A(f"s_cbranch_scc1 {Ld}")
        A(f"s_sleep {sleep}")
    A("s_sub_u32 s101, s101, 1")
    A("s_cmp_eq_u32 s101, 0")
    A(f"s_cbranch_scc0 {L}")
    A("s_endpgm")
    A.label(Ld)


def set_flag(A, vt, soff):
    A(f"v_mov_b32 v{vt}, s{TAG}")
    A(f"v_mov_b32 v{vt+1}, s{TAG+1}")
    A(f"v_lshlrev_b32 v{vt+2}, 3, v1")
    A("s_waitcnt vmcnt(0)")
    A("s_mov_b64 exec, 0xffff")
    A(f"buffer_store_dwordx2 {vr(vt,2)}, v{vt+2}, s[{SWS}:{SWS+3}], {soff} offen{SC}")
    A("s_mov_b64 exec, -1")


def tag_issue(A):
    A(f"s_load_dwordx2 s[{TAG}:{TAG+1}], s[{S_DBG}:{S_DBG+1}], 0")


def tag_check(A, vt):
    L, Ld = A.newlabel("L_hs"), A.newlabel("L_hsd")
    A("s_waitcnt lgkmcnt(0)")
    A(f"s_cmp_lg_u32 s{TAG}, s{TAG+1}")
    A(f"s_cbranch_scc1 {Ld}")
    A("s_movk_i32 s101, 0x4000")
    A(f"v_mov_b32 v{vt+2}, 0")
    A.label(L)
    A(f"global_load_dwordx2 {vr(vt,2)}, v{vt+2}, s[{S_DBG}:{S_DBG+1}]{SC}")
    A("s_waitcnt vmcnt(0)")
    A(f"v_readfirstlane_b32 s{TAG}, v{vt}")
    A(f"v_readfirstlane_b32 s{TAG+1}, v{vt+1}")
    A("s_nop 3")
    A(f"s_cmp_lg_u32 s{TAG}, s{TAG+1}")
    A(f"s_cbranch_scc1 {Ld}")
    A("s_sleep 8")
    A("s_sub_u32 s101, s101, 1")
    A("s_cmp_eq_u32 s101, 0")
    A(f"s_cbranch_scc0 {L}")
    A("s_endpgm")
    A.label(Ld)


def lds_arrive(A, vt, addr):
    A(f"v_mov_b32 v{vt}, {addr}")
    A(f"v_mov_b32 v{vt+1}, 1")
    A("s_waitcnt lgkmcnt(0)")
    A("s_mov_b64 exec, 1")
    A(f"ds_add_u32 v{vt}, v{vt+1}")
    A("s_mov_b64 exec, -1")


def lds_wait(A, vt, addr, n, sleep=0):
    L, Ld = A.newlabel("L_lw"), A.newlabel("L_lwd")
    if addr is not None:
        A(f"v_mov_b32 v{vt}, {addr}")
    A("s_mov_b32 s101, 0x40000")
    A.label(L)
    A(f"ds_read_b32 v{vt+1}, v{vt}")
    A("s_waitcnt lgkmcnt(0)")
    A(f"v_cmp_le_u32 vcc, {n}, v{vt+1}")
    A(f"s_cbranch_vccnz {Ld}")
    if sleep:
        A(f"s_sleep {sleep}")
    A("s_sub_u32 s101, s101, 1")
    A("s_cmp_eq_u32 s101, 0")
    A(f"s_cbranch_scc0 {L}")
    A("s_endpgm")
    A.label(Ld)


class Lgkm:
    def __init__(self, A):
        self.A, self.n, self.done, self.tag = A, 0, 0, {}

    def issue(self, text, tag=None):
        self.A(text)
        self.n += 1
        if tag is not None:
            self.tag[tag] = self.n

    def wait(self, *tags):
        need = max(self.tag[t] for t in tags)
        if need > self.done:
            self.A(f"s_waitcnt lgkmcnt({min(15, self.n - need)})")
            self.done = max(need, self.n - 15)

    def all(self):
        if self.done < self.n:
            self.A("s_waitcnt lgkmcnt(0)")
            self.done = self.n


def softmax_parts(X, E, F, T, PH):
    mx, mn = T, T + 2
    mm = [f"v_max3_f32 v{mx}, v{X}, v{X+1}, v{X+2}", f"v_min3_f32 v{mn}, v{X}, v{X+1}, v{X+2}"]
    for i in range(3, 19, 2):
        mm += [f"v_max3_f32 v{mx}, v{mx}, v{X+i}, v{X+i+1}", f"v_min3_f32 v{mn}, v{mn}, v{X+i}, v{X+i+1}"]
    mm += [f"v_max_f32 v{mx}, v{mx}, v{X+19}", f"v_min_f32 v{mn}, v{mn}, v{X+19}",
           f"v_mul_f32 v{mx}, s60, v{mx}", f"v_mul_f32 v{mn}, s60, v{mn}"]
    fm, ex = [], []
    for i in range(0, 20, 2):
        fm.append(f"v_pk_fma_f32 {vr(E+i,2)}, {vr(X+i,2)}, s[60:61], {vr(mx,2)} op_sel_hi:[1,1,0] neg_lo:[0,0,1] neg_hi:[0,0,1]")
        fm.append(f"v_pk_fma_f32 {vr(F+i,2)}, {vr(X+i,2)}, s[60:61], {vr(mn,2)} op_sel_hi:[1,1,0] neg_lo:[1,0,0] neg_hi:[1,0,0]")
    for i in range(20):
        ex += [f"v_exp_f32 v{E+i}, v{E+i}", f"v_exp_f32 v{F+i}, v{F+i}"]
    se, sf = T + 4, T + 6
    sm = [f"v_pk_add_f32 {vr(se,2)}, {vr(E,2)}, {vr(E+2,2)}", f"v_pk_add_f32 {vr(sf,2)}, {vr(F,2)}, {vr(F+2,2)}"]
    for i in range(4, 20, 2):
        sm += [f"v_pk_add_f32 {vr(se,2)}, {vr(se,2)}, {vr(E+i,2)}", f"v_pk_add_f32 {vr(sf,2)}, {vr(sf,2)}, {vr(F+i,2)}"]
    fin = [f"v_add_f32 v{se}, v{se}, v{se+1}", f"v_add_f32 v{sf}, v{sf}, v{sf+1}",
           f"v_rcp_f32 v{se}, v{se}", f"v_rcp_f32 v{sf}, v{sf}"]
    tail = []
    for j in range(20):
        R, s_ = (E + 2 * j, se) if j < 10 else (F + 2 * (j - 10), sf)
        tail.append((f"v_pk_mul_f32 {vr(R,2)}, {vr(R,2)}, {vr(s_,2)} op_sel_hi:[1,0]", f"v_cvt_pk_bf16_f32 v{PH+j}, v{R}, v{R+1}"))
    return mm, fm, ex, sm, fin, tail


def merge(main, extra, every, start=0):
    out, extra = [], list(extra)
    for i, x in enumerate(main):
        out.append(x)
        if extra and i >= start and (i - start) % every == every - 1:
            out.append(extra.pop(0))
    return out + extra


def o_index(A):
    A("s_sub_u32 s63, s99, 8")
    A("s_lshr_b32 s62, s63, 2")
    A("s_lshl_b32 s3, s98, 2")
    A("s_add_u32 s62, s62, s3")
    A("s_and_b32 s63, s63, 3")
    A("s_lshl_b32 s63, s63, 2")
    A("s_add_u32 s63, s63, s48")


def role_loader(A):
    SX, SW, SP = 32, 36, 40
    VX, VW = 24, 28
    t0, t1, t2, t3 = 11, 12, 13, 14
    A("s_setprio 1")
    A(f"v_lshrrev_b32 v{t0}, 3, v1")
    A(f"v_mul_u32_u24 v{t0}, 1280, v{t0}")
    A(f"v_lshrrev_b32 v{t1}, 4, v1")
    A(f"v_and_b32 v{t2}, 7, v1")
    A(f"v_xor_b32 v{t1}, v{t1}, v{t2}")
    A(f"v_xor_b32 v{t2}, 4, v{t1}")
    A(f"v_lshl_add_u32 v{VX}, v{t1}, 4, v{t0}")
    A(f"v_lshl_add_u32 v{VX+1}, v{t2}, 4, v{t0}")
    A(f"v_add_u32 v{VX+2}, {2*(8*1280-1024)}, v{VX}")
    A(f"v_add_u32 v{VX+3}, {3*(8*1280-1024)}, v{VX+1}")
    A(f"v_add_u32 v{VX+1}, {8*1280-1024}, v{VX+1}")
    A("s_lshl_b32 s60, s49, 2")
    A("s_add_u32 s60, s60, s48")
    A(f"s_mul_i32 s60, s60, {32*1280}")
    if Opt.rot:
        A("s_lshl_b32 s30, s49, 2")
        A("s_bfe_u32 s30, s30, 0x40000")
        A(f"s_lshr_b32 s30, {Opt.rotA:#x}, s30")
        A("s_and_b32 s30, s30, 15")
        A("s_and_b32 s31, s99, 28")
        A(f"s_lshr_b32 s31, {Opt.rotB:#x}, s31")
        A("s_and_b32 s31, s31, 15")
        A("s_add_u32 s30, s30, s31")
        A("s_sub_u32 s31, s30, 10")
        A("s_cmp_ge_u32 s30, 10")
        A("s_cselect_b32 s30, s31, s30")
        A("s_lshl_b32 s31, s30, 7")
        A("s_add_u32 s60, s60, s31")
    A("s_lshl_b32 s62, s48, 12")
    A("s_mov_b32 m0, s62")
    A(f"s_mov_b32 s{SX+2}, {NB_X:#x}")
    A(f"s_mov_b32 s{SX+3}, 0x20000")
    A("s_waitcnt lgkmcnt(0)")
    A(f"s_mov_b64 s[{SX}:{SX+1}], s[{S_X}:{S_X+1}]")

    def dma_x(s):
        if s:
            A(f"s_add_u32 m0, s62, {(s % 3) * SLOT}")
        for i in range(4):
            A(f"buffer_load_dwordx4 v{VX+i}, s[{SX}:{SX+3}], s60 offen offset:{1024*i} lds")

    def dma_w(s):
        sl = (s % 3) * SLOT
        A(f"s_add_u32 m0, s63, {sl}")
        for i in range(4):
            A(f"buffer_load_dwordx4 v{VW+i}, s[{SW}:{SW+3}], s61 offen offset:{1024*i} lds")
        A(f"s_add_u32 m0, s63, {sl+4096}")
        A(f"buffer_load_dwordx4 v{VW+4}, s[{SW}:{SW+3}], s61 offen lds")
        if s < 9:
            if Opt.rot:
                A("s_add_u32 s30, s30, 1")
                A("s_cmp_eq_u32 s30, 10")
                A(f"s_cselect_b32 s31, {(-1152)&0xffffffff:#x}, s97")
                A(f"s_cselect_b32 s3, {(-9*64*3840)&0xffffffff:#x}, s96")
                A("s_add_u32 s60, s60, s31")
                A("s_add_u32 s61, s61, s3")
            else:
                A("s_add_u32 s60, s60, 128")
                A(f"s_add_u32 s61, s61, {64*3840}")

    dma_x(0)
    A("s_cmp_eq_u32 s51, 0")
    A("s_cselect_b32 s56, 1120, 0")
    A("s_add_u32 s58, s51, 1")
    A(f"v_xor_b32 v15, s58, v1")
    A(f"v_cmp_gt_u32 vcc, 32, v1")
    A("s_movk_i32 s57, 3520")
    A(f"v_cndmask_b32 v16, v15, v1, vcc")
    for i in range(5):
        src = (1, 1, 16, 15, 15)[i]
        A(f"v_add_u32 v{t2}, {64*i}, v{src}")
        A(f"v_mul_u32_u24 v{t2}, 6554, v{t2}")
        A(f"v_lshlrev_b32 v{t3}, 4, v{src}")
        A(f"v_lshrrev_b32 v{t0}, 17, v{t2}")
        A(f"v_bfe_u32 v{t1}, v{t2}, 16, 1")
        A(f"v_mad_u32_u24 v{t0}, v{t0}, s57, v{t3}")
        A(f"v_mad_u32_u24 v{VW+i}, v{t1}, s56, v{t0}")
    A(f"v_lshlrev_b32 v{t3}, 4, v1")
    A(f"v_add_u32 v{VW+4}, 4096, v{VW+4}")
    A(f"s_mul_i32 s61, s48, {16*3840}")
    A("s_mul_i32 s57, s50, 160")
    A("s_add_u32 s58, s57, 1280")
    A("s_lshl_b32 s57, s57, 1")
    A("s_cmp_eq_u32 s51, 0")
    A("s_cselect_b32 s57, s58, s57")
    A("s_add_u32 s61, s61, s57")
    if Opt.rot:
        A(f"s_mov_b32 s96, {64*3840}")
        A("s_movk_i32 s97, 128")
        A("s_mul_i32 s31, s30, s96")
        A("s_add_u32 s61, s61, s31")
    A("s_mul_i32 s63, s48, 5120")
    A("s_add_u32 s63, s63, 16384")
    srd(A, SW, S_W, NB_W)
    dma_w(0)
    stamp(A, 2)
    A("s_mul_i32 s57, s50, 3200")
    A("s_lshl_b32 s57, s57, s51")
    A("s_lshl_b32 s58, s48, 11")
    A("s_add_u32 s57, s57, s58")
    srd(A, SP, S_WPHI, NB_WPHI)
    A(f"s_add_u32 m0, s58, {L_WP}")
    A(f"buffer_load_dwordx4 v{t3}, s[{SP}:{SP+3}], s57 offen lds")
    A(f"buffer_load_dwordx4 v{t3}, s[{SP}:{SP+3}], s57 offen offset:1024 lds")
    srd(A, SWS, S_WS, WS_SIZE)
    Lh = A.newlabel("L_noh")
    A("s_cmp_eq_u32 s51, 0")
    A(f"s_cbranch_scc1 {Lh}")
    A("s_mul_i32 s49, s98, 80")
    A("s_lshl_b32 s50, s99, 2")
    A("s_add_u32 s49, s49, s50")
    A("s_add_u32 s49, s49, s48")
    A("s_add_u32 s49, s49, 48")
    A(f"s_mul_i32 s56, s48, {CV_LDS}")
    A(f"s_add_u32 s56, s56, {L_QCV}")
    A("s_lshl_b32 s50, s49, 12")
    A.label(Lh)
    assert Opt.LA == 2
    issued = 0
    for s in range(10):
        while issued < min(s + Opt.LA - 1, 9):
            issued += 1
            dma_x(issued)
            dma_w(issued)
        if s == 0:
            Ls = A.newlabel("L_nosetup")
            A("s_cmp_ge_u32 s99, 8")
            A(f"s_cbranch_scc1 {Ls}")
            conv_setup(A)
            f0_lines(A, 49, 49, 12)
            A.label(Ls)
        if s == 9:
            tag_issue(A)
        A(f"s_waitcnt vmcnt({9*(issued-s)})")
        A("s_barrier")
        if s in (0, 3, 6, 9):
            stamp(A, 3 + s // 3)
    A("s_setprio 0")
    A("s_cmp_lt_u32 s99, 8")
    A("s_cbranch_scc1 L_conv")
    role_wo(A)


def role_wo(A):
    SO, SWO = 32, 36
    WR = 64
    A.label("L_wo")
    srd(A, SWO, S_WO, NB_WO)
    if Opt.wopf == "kv":
        Ls = A.newlabel("L_nopf")
        A("s_cmp_lt_u32 s99, 8")
        A(f"s_cbranch_scc1 {Ls}")
        A("s_lshl_b32 s52, s99, 2")
        A("s_add_u32 s52, s52, s48")
        A("s_sub_u32 s52, s52, 32")
        A("s_lshl_b32 s52, s52, 13")
        A(f"s_add_u32 s53, s52, {64*8192}")
        A("v_lshlrev_b32 v2, 7, v1")
        A(f"buffer_load_dword v24, v2, s[{SWO}:{SWO+3}], s52 offen")
        A(f"buffer_load_dword v25, v2, s[{SWO}:{SWO+3}], s53 offen")
        A.label(Ls)
    A("v_lshrrev_b32 v2, 2, v1")
    A("v_and_b32 v3, 3, v1")
    A("v_mul_u32_u24 v4, 1280, v2")
    A("v_lshl_add_u32 v4, v3, 4, v4")
    for i in range(1, 4):
        A(f"v_add_u32 v{4+i}, {i*(16*1280-1024)}, v4")
    A(f"v_add_u32 v8, {4*16*1280}, v4")
    A("s_lshr_b32 s50, s99, 2")
    A("s_sub_u32 s50, s50, 1")
    A("s_max_i32 s50, s50, 0")
    A("s_lshl_b32 s52, s50, 8")
    A("s_lshl_b32 s53, s48, 6")
    A("s_add_u32 s52, s52, s53")
    A("s_mov_b32 s51, s52")
    A("s_mul_i32 s53, s48, 20480")
    A("s_cmp_lt_u32 s99, 8")
    A(f"s_cselect_b32 s54, 0, {L_WOB}")
    A("s_add_u32 s53, s53, s54")

    def cbuf(c):
        return 5120 + ((c + 1) % 3) * 5120

    def chunk(c):
        b = cbuf(c)
        A(f"s_add_u32 m0, s53, {b}")
        for i in range(4):
            A(f"buffer_load_dwordx4 v{4+i}, s[{SWO}:{SWO+3}], s51 offen offset:{1024*i} lds")
        A(f"s_add_u32 m0, s53, {b+4096}")
        A(f"buffer_load_dwordx4 v8, s[{SWO}:{SWO+3}], s51 offen lds")
        A(f"s_add_u32 s51, s51, {80*1280}")

    Lj = A.newlabel("L_woj")
    chunk(0)
    A("s_cmp_lt_u32 s99, 8")
    A(f"s_cbranch_scc1 {Lj}")
    A("s_barrier")
    if Opt.lidle:
        lds_wait(A, 16, L_SYNC, 4, sleep=4)
    A.label(Lj)
    chunk(1)
    chunk(2)
    A("v_bfe_u32 v10, v1, 2, 2")
    A("v_lshrrev_b32 v11, 5, v1")
    A("v_and_b32 v12, 1, v1")
    A("v_lshlrev_b32 v12, 5, v12")
    A("v_bfe_u32 v13, v1, 4, 1")
    A("v_lshl_add_u32 v12, v13, 4, v12")
    A("v_bfe_u32 v13, v1, 1, 1")
    A("v_lshl_add_u32 v12, v13, 3, v12")
    A("v_lshl_add_u32 v12, v10, 6, v12")
    A("v_add_u32 v12, s53, v12")
    A("v_lshl_add_u32 v13, v11, 8, v12")
    A("v_mul_u32_u24 v14, 2560, v11")
    A("v_add_u32 v14, v14, v12")
    A("v_and_b32 v9, 31, v1")
    A("v_lshrrev_b32 v15, 4, v1")
    A("v_lshlrev_b32 v15, 7, v15")
    A("v_lshlrev_b32 v18, 4, v1")
    o_index(A)
    tag_check(A, 20)

    def take(c):
        b = cbuf(c)
        for hh in range(4):
            for half in range(2):
                A(f"ds_read_b64_tr_b16 {vr(WR+4*(4*c+hh)+2*half,2)}, v13 offset:{b+(20*hh+8*half)*64}")
        for half in range(2):
            A(f"ds_read_b64_tr_b16 {vr(WR+128+4*c+2*half,2)}, v14 offset:{b+(20*half+16)*64}")

    Lq1, Lq2 = A.newlabel("L_woq"), A.newlabel("L_woq")
    A("s_cmp_lt_u32 s99, 8")
    A(f"s_cbranch_scc1 {Lq1}")
    A("s_lshr_b32 s54, s62, 2")
    A("s_lshl_b32 s54, s54, 4")
    A("s_add_u32 s54, s54, s63")
    A("s_lshl_b32 s54, s54, 8")
    A("v_lshlrev_b32 v19, 7, v11")
    A(f"s_add_u32 s54, s54, {F2:#x}")
    A("s_lshl_b32 s55, s62, 4")
    A("s_add_u32 s55, s55, s63")
    A("s_mul_i32 s55, s55, 5120")
    poll(A, 16, 19, "s54", sleep=4)
    A("s_mov_b32 m0, s53")
    A("s_add_u32 s54, s55, 4096")
    for i in range(4):
        A(f"buffer_load_dwordx4 v18, s[{SWS}:{SWS+3}], s55 offen offset:{1024*i}{SC} lds")
    A("s_add_u32 m0, s53, 4096")
    A(f"buffer_load_dwordx4 v18, s[{SWS}:{SWS+3}], s54 offen{SC} lds")
    A("s_lshl_b32 s54, s48, 2")
    A(f"s_add_u32 s54, s54, {L_SYNC+16}")
    A("s_waitcnt vmcnt(0)")
    lds_arrive(A, 16, "s54")
    stamp(A, 14)
    lds_wait(A, 16, L_SYNC, 4, sleep=4)
    A.label(Lq1)
    for c in range(3):
        A("s_waitcnt vmcnt(10)")
        take(c)
        A("s_waitcnt lgkmcnt(0)")
        chunk(c + 3)
    A("s_cmp_lt_u32 s99, 8")
    A(f"s_cbranch_scc1 {Lq2}")
    stamp(A, 7)
    A("s_lshl_b32 s54, s62, 2")
    A("s_add_u32 s54, s54, s48")
    A("s_mul_i32 s55, s54, 10240")
    A(f"s_add_u32 s55, s55, {WS_PART:#x}")
    A("s_lshl_b32 s54, s54, 9")
    A(f"s_add_u32 s54, s54, {F1:#x}")
    A("v_min_u32 v19, 20, v9")
    A("v_and_b32 v20, 32, v1")
    A("v_add_u32 v19, v19, v20")
    A("v_lshlrev_b32 v20, 3, v19")
    A("v_lshlrev_b32 v19, 4, v19")
    A("s_mul_i32 s57, s48, 5120")
    A("v_add_u32 v21, s57, v18")
    A("s_mov_b32 s59, 0xffff0000")
    lds_wait(A, 16, L_SYNC + 4, 4, sleep=2)
    PR = [24, 34, 44, 54]
    SM, TP = 224, 244

    def pload(p):
        so = "s55" if p < 1 else f"s{40+p}"
        A(f"buffer_load_dwordx4 {vr(PR[p],4)}, v19, s[{SWS}:{SWS+3}], {so} offen{SC}")
        A(f"buffer_load_dwordx4 {vr(PR[p]+4,4)}, v19, s[{SWS}:{SWS+3}], {so} offen offset:1024{SC}")
        A(f"buffer_load_dwordx2 {vr(PR[p]+8,2)}, v20, s[{SWS}:{SWS+3}], {so} offen offset:2048{SC}")

    for p in (1, 2, 3):
        A(f"s_add_u32 s{40+p}, s55, {2560*p}")
    if Opt.prog:
        L, Ld = A.newlabel("L_pg"), A.newlabel("L_pgd")
        A("s_mov_b64 s[56:57], 0")
        A("s_movk_i32 s101, 0x4000")
        A.label(L)
        A(f"buffer_load_dwordx2 v[16:17], v15, s[{SWS}:{SWS+3}], s54 offen{SC}")
        A("s_waitcnt vmcnt(0)")
        A(f"v_cmp_eq_u64 vcc, s[{TAG}:{TAG+1}], v[16:17]")
        A("s_andn2_b64 s[50:51], vcc, s[56:57]" if False else "s_andn2_b64 s[96:97], vcc, s[56:57]")
        A("s_mov_b64 s[56:57], vcc")
        for p in range(4):
            Ls = A.newlabel("L_pgs")
            A(f"s_bitcmp1_b64 s[96:97], {16*p}")
            A(f"s_cbranch_scc0 {Ls}")
            pload(p)
            A.label(Ls)
        A("s_cmp_eq_u64 s[56:57], -1")
        A(f"s_cbranch_scc1 {Ld}")
        A(f"s_sleep {Opt.psleep}")
        A("s_sub_u32 s101, s101, 1")
        A(f"s_cbranch_scc0 {L}")
        A("s_endpgm")
        A.label(Ld)
        stamp(A, 12)
        A("s_waitcnt vmcnt(0)")
    else:
        ppoll(A, 244, 15, "s54", sleep=Opt.psleep)
        stamp(A, 12)
        for p in range(4):
            pload(p)
    A("s_setprio 3")
    for p in range(4):
        A(f"s_waitcnt vmcnt({9-3*p})")
        for i in range(10):
            d = SM + 2 * i if p == 0 else TP + 2 * (i % 5)
            A(f"v_lshlrev_b32 v{d}, 16, v{PR[p]+i}")
            A(f"v_and_b32 v{d+1}, s59, v{PR[p]+i}")
            if p:
                A(f"v_pk_add_f32 {vr(SM+2*i,2)}, {vr(SM+2*i,2)}, {vr(d,2)}")
    for q in range(5):
        A(f"ds_write_b128 v21, {vr(SM+4*q,4)} offset:{1024*q}")
    lds_arrive(A, 16, L_SYNC + 8)
    A("s_setprio 0")
    stamp(A, 13)
    A.label(Lq2)
    for c in range(3, 8):
        A(f"s_waitcnt vmcnt({10 if c < 6 else 5*(7-c)})")
        take(c)
        if c < 5:
            A("s_waitcnt lgkmcnt(0)")
            chunk(c + 3)
    srd(A, SO, S_OUT, NB_OUT)
    A("s_and_b32 s54, s99, 3")
    A("s_lshl_b32 s55, s98, 2")
    A("s_add_u32 s54, s54, s55")
    A("s_lshr_b32 s55, s54, 1")
    A("s_lshl_b32 s55, s55, 12")
    A(f"s_add_u32 s55, s55, {F3:#x}")
    A("s_lshl_b32 s57, s48, 10")
    A("s_add_u32 s55, s55, s57")
    A("v_lshrrev_b32 v15, 3, v1")
    A("v_lshlrev_b32 v15, 7, v15")
    A("s_mul_i32 s57, s54, 81920")
    A(f"s_add_u32 s57, s57, {WS_O:#x}")
    A("s_lshr_b32 s58, s48, 1")
    A("s_mul_i32 s58, s58, 40960")
    A("s_and_b32 s59, s48, 1")
    A("s_lshl_b32 s59, s59, 12")
    A("s_add_u32 s58, s58, s59")
    A("s_add_u32 s57, s57, s58")
    A(f"s_add_u32 s58, s58, {L_OT}")
    A("v_mov_b32 v5, v18")
    A(f"v_add_u32 v6, {L_OT}, v5")
    A(f"v_add_u32 v7, {L_OT+40960}, v5")
    A("v_lshlrev_b32 v10, 3, v9")
    A("v_lshl_add_u32 v10, v11, 9, v10")
    A(f"v_add_u32 v10, {L_OT+32768}, v10")
    A("s_mul_i32 s56, s48, 5120")
    A("s_waitcnt lgkmcnt(0)")
    A("v_mul_u32_u24 v12, 80, v9")
    A("v_lshl_add_u32 v12, v11, 5, v12")
    A("v_add_u32 v12, s56, v12")
    A("v_mul_u32_u24 v13, 80, v2")
    A("v_lshl_add_u32 v13, v3, 4, v13")
    A("v_add_u32 v13, s56, v13")
    A("v_mul_u32_u24 v14, 2560, v2")
    A("v_lshl_add_u32 v14, v3, 4, v14")
    A(f"s_mul_i32 s59, s54, {64*2560}")
    A("s_add_u32 s59, s59, s52")
    lds_wait(A, 16, L_SYNC + 12, 4, sleep=2)
    stamp(A, 8)
    ppoll(A, 48, 15, "s55", sleep=Opt.psleep)
    A("s_barrier")
    stamp(A, 9)
    for k in range(5):
        A(f"s_add_u32 m0, s58, {8192*k}")
        for i in range(4):
            A(f"buffer_load_dwordx4 v5, s[{SWS}:{SWS+3}], s57 offen offset:{1024*i}{SC} lds")
        if k < 4:
            A("s_add_u32 s57, s57, 8192")
    if Ctx.stamps:
        A("s_waitcnt lgkmcnt(0)")
    ACC = (16, 32)
    OFB = 224
    T = Lgkm(A)

    def rdx(f):
        if f % 8 == 0:
            A(f"s_waitcnt vmcnt({16 - 4*(f//8)})")
            A("s_barrier")
        for t in range(2):
            d = OFB + 4 * ((2 * f + t) % 8)
            if f < 32:
                T.issue(f"ds_read_b128 {vr(d,4)}, v{6+t} offset:{1024*f}", (f, t))
            else:
                a = f - 32
                T.issue(f"ds_read_b64 {vr(d,2)}, v10 offset:{40960*t + 1024*a}")
                T.issue(f"ds_read_b64 {vr(d+2,2)}, v10 offset:{40960*t + 1024*a + 256}", (f, t))

    for f in range(3):
        rdx(f)
    for f in range(40):
        for t in range(2):
            T.wait((f, t))
            c = vr(ACC[t], 16) if f else "0"
            A(f"v_mfma_f32_32x32x16_bf16 {vr(ACC[t],16)}, {vr(WR+4*f,4)}, {vr(OFB+4*((2*f+t)%8),4)}, {c}")
            if t == 0 and f + 3 < 40:
                rdx(f + 3)
    stamp(A, 10)
    for t in range(2):
        for i in range(8):
            A(f"v_cvt_pk_bf16_f32 v{48+8*t+i}, v{ACC[t]+2*i}, v{ACC[t]+2*i+1}")
        for i in range(2):
            A(f"ds_write_b128 v12, {vr(48+8*t+4*i,4)} offset:{2560*t+16*i}")
    A("s_waitcnt lgkmcnt(0)")
    for i in range(4):
        A(f"ds_read_b128 {vr(64+4*i,4)}, v13 offset:{1280*i}")
    for i in range(4):
        A(f"s_waitcnt lgkmcnt({3-i})")
        A(f"buffer_store_dwordx4 {vr(64+4*i,4)}, v14, s[{SO}:{SO+3}], s59 offen{Opt.osc}")
        if i < 3:
            A(f"s_add_u32 s59, s59, {16*2560}")
    stamp(A, 11)
    end_wave(A, True)


def role_compute(A):
    ACC = 16
    WF = (96, 116)
    XF = (136, 152)
    XA, WA, AD = 168, 172, 182
    t0, t1, t2, t3 = 11, 12, 13, 14
    for i in range(80):
        A(f"v_mov_b32 v{ACC+i}, 0")
    A(f"v_and_b32 v{t0}, 255, v0")
    A(f"v_lshlrev_b32 v{t0}, 4, v{t0}")
    A(f"v_add_u32 v{t0}, {L_Z}, v{t0}")
    A(f"ds_write_b128 v{t0}, {vr(ACC,4)}")
    A(f"ds_write_b128 v{t0}, {vr(ACC,4)} offset:64")
    A("s_lshr_b32 s52, s48, 1")
    A("s_and_b32 s53, s48, 1")
    S16, G4, R4, C4 = 183, 184, 185, 186
    A(f"v_and_b32 v{S16}, 15, v1")
    A(f"v_lshrrev_b32 v{G4}, 4, v1")
    A(f"v_bfe_u32 v{R4}, v1, 2, 2")
    A(f"v_and_b32 v{C4}, 3, v1")
    A(f"v_bfe_u32 v{t2}, v1, 1, 3")
    A(f"v_xor_b32 v{t2}, v{t2}, v{G4}")
    A(f"v_lshlrev_b32 v{t2}, 4, v{t2}")
    A(f"v_lshl_add_u32 v{t2}, v{S16}, 7, v{t2}")
    A("s_lshl_b32 s54, s52, 13")
    A(f"v_add_u32 v{XA}, s54, v{t2}")
    A(f"v_xor_b32 v{XA+1}, 64, v{XA}")
    A(f"v_add_u32 v{XA+2}, {2*SLOT}, v{XA}")
    A(f"v_add_u32 v{XA+3}, {2*SLOT}, v{XA+1}")
    A("s_cmp_eq_u32 s51, 0")
    A("s_cselect_b32 s55, 80, 0")
    A("s_mul_i32 s56, s53, 80")
    A("s_lshl_b32 s56, s56, s51")
    A(f"v_lshrrev_b32 v{t0}, 1, v{C4}")
    A(f"v_mul_u32_u24 v{t0}, s55, v{t0}")
    A(f"v_mad_u32_u24 v{t0}, v{C4}, 40, v{t0}")
    A(f"v_add_u32 v{t0}, s56, v{t0}")
    A(f"v_and_b32 v{t1}, 1, v{G4}")
    A("s_add_u32 s57, s51, 4")
    A(f"v_lshlrev_b32 v{t1}, s57, v{t1}")
    A(f"v_lshl_add_u32 v{t2}, v{G4}, 3, v{R4}")
    A(f"v_mul_u32_u24 v{t2}, 320, v{t2}")
    A(f"v_add_u32 v{t2}, 16384, v{t2}")
    for t in range(5):
        A(f"v_add_u32 v{t3}, {8*t}, v{t0}")
        A(f"v_xor_b32 v{t3}, v{t3}, v{t1}")
        A(f"v_add_u32 v{WA+t}, v{t2}, v{t3}")
        A(f"v_add_u32 v{WA+5+t}, {2*SLOT}, v{WA+t}")
    HD = 187
    A("s_cmp_eq_u32 s51, 0")
    A("s_cselect_b32 s55, 1, 3")
    A("s_add_u32 s57, s51, 1")
    A("s_lshl_b32 s56, s53, s57")
    A(f"v_and_b32 v{HD}, s55, v{G4}")
    A(f"v_add_u32 v{HD}, s56, v{HD}")
    A(f"v_mul_u32_u24 v{t0}, 800, v{HD}")
    A(f"v_mad_u32_u24 v{t0}, v{R4}, 40, v{t0}")
    A(f"v_add_u32 v{t0}, {L_WP}, v{t0}")
    A(f"v_mov_b32 v{t1}, {L_Z}")
    A(f"v_cmp_eq_u32 vcc, v{C4}, v{G4}")
    A(f"v_cndmask_b32 v{AD}, v{t1}, v{t0}, vcc")
    A(f"v_lshrrev_b32 v{t0}, 5, v1")
    A(f"v_lshl_add_u32 v{t0}, v{t0}, 4, v{S16}")
    A("s_lshl_b32 s57, s52, 6")
    A(f"v_add_u32 v{t0}, s57, v{t0}")
    A(f"v_mul_u32_u24 v{t1}, 208, v{t0}")
    A(f"v_mad_u32_u24 v2, v{HD}, 48, v{t1}")
    A(f"v_add_u32 v2, {L_V}, v2")
    A(f"v_mul_u32_u24 v{t3}, 80, v{HD}")
    A(f"v_mul_u32_u24 v{t2}, 336, v{t0}")
    A(f"v_add_u32 v3, v{t3}, v{t2}")
    A(f"v_lshrrev_b32 v{t1}, 5, v1")
    A(f"v_lshl_add_u32 v9, v{t1}, 3, v{R4}")
    A(f"v_bfe_u32 v{t2}, v1, 4, 1")
    A(f"v_bfe_u32 v{t3}, v1, 1, 1")
    A(f"v_lshl_add_u32 v10, v{t2}, 1, v{t3}")
    A(f"v_and_b32 v15, 1, v1")
    A(f"v_mul_u32_u24 v{t0}, 336, v9")
    A(f"v_mad_u32_u24 v{t1}, v15, 5, v10")
    A(f"v_lshl_add_u32 v{t0}, v{t1}, 3, v{t0}")
    A("s_mul_i32 s57, s48, 80")
    A(f"v_add_u32 v6, s57, v{t0}")
    A(f"v_lshl_add_u32 v{t0}, v10, 1, v15")
    A("s_mul_i32 s57, s48, 6")
    A(f"v_min_u32 v{t1}, 5, v{t0}")
    A(f"v_add_u32 v{t1}, s57, v{t1}")
    A(f"v_mul_u32_u24 v{t0}, 208, v9")
    A(f"v_lshl_add_u32 v{t0}, v{t1}, 3, v{t0}")
    A(f"v_add_u32 v7, {L_V}, v{t0}")
    WPF = 188
    for tp in range(5):
        A(f"v_mov_b32 v{WPF+12*tp+10}, 0")
        A(f"v_mov_b32 v{WPF+12*tp+11}, 0")
    A(f"s_mov_b32 s60, {LOG2E:#x}")
    A(f"s_mov_b32 s61, {LOG2E:#x}")
    A("s_waitcnt lgkmcnt(0)")
    srd(A, SWS, S_WS, WS_SIZE)
    if Opt.fwarm:
        o_index(A)
        A("s_lshl_b32 s54, s62, 2")
        A("s_add_u32 s54, s54, s48")
        A("s_lshl_b32 s54, s54, 2")
        A("s_lshr_b32 s55, s62, 2")
        A("s_lshl_b32 s55, s55, 4")
        A("s_add_u32 s55, s55, s63")
        A("s_lshl_b32 s55, s55, 1")
        A("s_add_u32 s55, s55, 508")
        A("s_and_b32 s56, s99, 2")
        A("s_lshl_b32 s57, s98, 2")
        A("s_add_u32 s56, s56, s57")
        A("s_lshl_b32 s56, s56, 4")
        A("s_lshl_b32 s57, s48, 3")
        A("s_add_u32 s56, s56, s57")
        A("s_add_u32 s56, s56, 1016")
        A(f"v_mov_b32 v{t0}, s54")
        A(f"v_mov_b32 v{t1}, s55")
        A(f"v_mov_b32 v{t2}, s56")
        A("v_cmp_gt_u32 vcc, 16, v1")
        A(f"v_cndmask_b32 v{t1}, v{t1}, v{t0}, vcc")
        A("v_cmp_gt_u32 vcc, 32, v1")
        A(f"v_cndmask_b32 v{t1}, v{t2}, v{t1}, vcc")
        A(f"v_lshrrev_b32 v{t0}, 2, v1")
        A(f"v_add_u32 v{t0}, v{t0}, v{t1}")
        A(f"v_and_b32 v{t0}, 2047, v{t0}")
        A(f"v_lshlrev_b32 v{t0}, 7, v{t0}")
        A(f"s_mov_b32 s54, {WS_FLAG:#x}")
        A(f"buffer_load_dword v4, v{t0}, s[{SWS}:{SWS+3}], s54 offen{SC}")
    A("s_setprio 2")

    T = Lgkm(A)

    def reads(s, ks):
        sl, b = s % 3, ks
        L = []
        for t in range(5):
            for half in range(2):
                L.append((f"ds_read_b64_tr_b16 {vr(WF[b]+4*t+2*half,2)}, v{WA+5*(sl>>1)+t} offset:{(sl&1)*SLOT + (32*ks+4*half)*320}",
                          ("w", s, ks, t) if half else None))
            if t == 0:
                for rho in range(4):
                    L.append((f"ds_read_b128 {vr(XF[b]+4*rho,4)}, v{XA+2*(sl>>1)+ks} offset:{(sl&1)*SLOT + 2048*rho}", ("x", s, ks, rho)))
        return L

    wp = []
    for tp in range(5):
        for dq in range(5):
            wp.append((f"ds_read_b64_tr_b16 {vr(WPF+12*tp+2*dq,2)}, v{AD} offset:{160*dq+8*tp}", None))

    A("s_barrier")
    stampw(A, 3)
    for x, tg in reads(0, 0):
        T.issue(x, tg)
    for s in range(10):
        for ks in range(2):
            last = (s == 9 and ks == 1)
            nxt = [] if last else (reads(s, 1) if ks == 0 else reads(s + 1, 0))
            if ks == 0 and s < 5:
                nxt += wp[5 * s:5 * s + 5]
            start = 0 if ks == 0 else Opt.bpos
            for k in range(20):
                t, rho = k // 4, k % 4
                T.wait(("w", s, ks, t), ("x", s, ks, rho))
                a_ = ACC + 20 * rho + 4 * t
                A(f"v_mfma_f32_16x16x32_bf16 {vr(a_,4)}, {vr(WF[ks]+4*t,4)}, {vr(XF[ks]+4*rho,4)}, {vr(a_,4)}")
                if ks == 1 and k == start:
                    T.all()
                    A("s_barrier")
                if k >= start and nxt:
                    T.issue(*nxt.pop(0))
            assert not nxt
    stamp(A, 4)
    if Opt.fwarm:
        A("s_waitcnt vmcnt(0)")
    tag_issue(A)
    PS = (96, 106, 118, 128)
    E, F, TT_ = 140, 160, 248

    def cvt(rho):
        L = [f"v_cvt_pk_bf16_f32 v{PS[rho]+i}, v{ACC+20*rho+2*i}, v{ACC+20*rho+2*i+1}" for i in range(10)]
        if rho & 1:
            L += [f"v_mov_b32 v{PS[rho]+10}, 0x3f803f80", f"v_mov_b32 v{PS[rho]+11}, 0x3f803f80"]
        return L

    def phi_mfma(src, acc):
        L = []
        for u in range(3):
            for tp in range(5):
                c = vr(acc + 4 * tp, 4) if u else "0"
                L.append(f"v_mfma_f32_16x16x32_bf16 {vr(acc+4*tp,4)}, {vr(WPF+12*tp+4*u,4)}, {vr(src+4*u,4)}, {c}")
        return L

    def weave(mf, va, per):
        mf, va = list(mf), list(va)
        while mf or va:
            if mf:
                A(mf.pop(0))
            for _ in range(per):
                if va:
                    A(va.pop(0))

    for x in cvt(0) + cvt(1):
        A(x)
    Lq = A.newlabel("L_q")
    A("s_cmp_eq_u32 s51, 0")
    A(f"s_cbranch_scc0 {Lq}")
    mq = A.mark()
    for i in range(10):
        A(f"v_permlane32_swap_b32 v{PS[0]+i}, v{PS[1]+i}")
    weave(phi_mfma(PS[0], ACC), cvt(2) + cvt(3) + [f"v_permlane32_swap_b32 v{PS[2]+i}, v{PS[3]+i}" for i in range(10)], 2)
    vw = [f"ds_write_b128 v2, {vr(PS[1+2*sg]+4*i,4)} offset:{32*208*sg+16*i}" for sg in range(2) for i in range(3)]

    def body(parts):
        mm, fm, ex, sm, fin, tail = parts
        L = fm[:4]
        fm2, sm2 = list(fm[4:]), list(sm)
        for k in range(0, 40, 4):
            L += ex[k:k + 2]
            if fm2:
                L.append(fm2.pop(0))
            L += ex[k + 2:k + 4]
            if fm2:
                L.append(fm2.pop(0))
            if k >= 8:
                L += [sm2.pop(0), sm2.pop(0)]
        return L + sm2 + fin

    def tail_list(tail, wr):
        L = [tail[0][0], tail[1][0]]
        for j in range(20):
            if j + 2 < 20:
                L.append(tail[j + 2][0])
            L.append(tail[j][1])
            if wr and j % 4 == 3:
                L.append(wr[j // 4])
        return L

    s0 = softmax_parts(ACC, E, F, TT_, 56)
    s1 = softmax_parts(ACC + 20, E, F, TT_, 76)
    w0 = [f"ds_write_b128 v3, {vr(56+4*i,4)} offset:{16*i}" for i in range(5)]
    w1 = [f"ds_write_b128 v3, {vr(76+4*i,4)} offset:{32*336+16*i}" for i in range(5)]
    m1 = phi_mfma(PS[2], ACC + 20)
    for x in m1[:4]:
        A(x)
    weave(m1[4:], s0[0], 2)
    stamp(A, 2)
    for x in merge(body(s0), vw, 12) + tail_list(s0[5], w0):
        A(x)
    stamp(A, 13)
    for x in s1[0] + body(s1) + tail_list(s1[5], w1):
        A(x)
    stamp(A, 5)
    lds_arrive(A, 10, L_SYNC)
    A("s_lshl_b32 s57, s50, 2")
    A("s_add_u32 s57, s57, s48")
    A("s_lshl_b32 s57, s57, 4")
    A("s_add_u32 s57, s57, s49")
    A("s_lshl_b32 s59, s57, 7")
    A(f"s_add_u32 s59, s59, {F1:#x}")
    A("s_mul_i32 s57, s57, 2560")
    A(f"s_add_u32 s57, s57, {WS_PART:#x}")
    A("v_lshlrev_b32 v2, 4, v1")
    A("v_lshlrev_b32 v3, 3, v1")
    lds_wait(A, 10, None, 4)
    tag_check(A, 12)
    FA = 64
    T = Lgkm(A)
    for u in range(10):
        if u < 8:
            for half in range(2):
                o = (16 * u + 4 * half)
                T.issue(f"ds_read_b64_tr_b16 {vr(FA+12*u+2*half,2)}, v6 offset:{o*336}")
                T.issue(f"ds_read_b64_tr_b16 {vr(FA+12*u+4+2*half,2)}, v6 offset:{o*336+32}")
                T.issue(f"ds_read_b64_tr_b16 {vr(FA+12*u+8+2*half,2)}, v7 offset:{o*208}", u)
        if u >= 2:
            uu = u - 2
            T.wait(uu)
            for TT in range(2):
                c = vr(ACC + 16 * TT, 16) if uu else "0"
                A(f"v_mfma_f32_32x32x16_bf16 {vr(ACC+16*TT,16)}, {vr(FA+12*uu+4*TT,4)}, {vr(FA+12*uu+8,4)}, {c}")
    o_index(A)
    for i in range(10):
        A(f"v_cvt_pk_bf16_f32 v{48+i}, v{ACC+2*i}, v{ACC+2*i+1}")
    A(f"buffer_store_dwordx2 v[56:57], v3, s[{SWS}:{SWS+3}], s57 offen offset:2048{SC}")
    A("s_mov_b32 exec_lo, 0x00ffffff")
    A("s_mov_b32 exec_hi, 0x00ffffff")
    A(f"buffer_store_dwordx4 v[48:51], v2, s[{SWS}:{SWS+3}], s57 offen{SC}")
    A(f"buffer_store_dwordx4 v[52:55], v2, s[{SWS}:{SWS+3}], s57 offen offset:1024{SC}")
    A("s_mov_b64 exec, -1")
    stamp(A, 6)
    role_o(A)
    end_wave(A)
    A.label(Lq)
    hq = A.mark()
    pre = [f"s_mov_b32 s57, {64*1280}",
           f"v_mul_lo_u32 v{t1}, s57, v{HD}",
           f"v_lshl_add_u32 v2, v{S16}, 4, v{t1}",
           f"v_lshl_add_u32 v3, v{S16}, 3, v{t1}",
           "s_lshl_b32 s58, s49, 1",
           "s_add_u32 s58, s58, s52",
           "s_lshl_b32 s59, s50, 1",
           "s_add_u32 s59, s59, s53",
           "s_lshl_b32 s59, s59, 5",
           "s_add_u32 s59, s59, s58",
           "s_lshl_b32 s59, s59, 7",
           f"s_add_u32 s59, s59, {F2:#x}",
           "s_lshl_b32 s57, s50, 8",
           "s_add_u32 s57, s57, s58",
           "s_mul_i32 s57, s57, 2560"]
    A("s_nop 0")
    OQ = 140

    def outq(rho):
        x, o = ACC + 20 * rho, OQ + 10 * rho
        off = 1280 * (rho >> 1)
        L = [f"v_cvt_pk_bf16_f32 v{o+i}, v{x+2*i}, v{x+2*i+1}" for i in range(10)]
        L.append(f"buffer_store_dwordx4 {vr(o,4)}, v2, s[{SWS}:{SWS+3}], s57 offen offset:{off+256*(rho&1)}{SC}")
        L.append(f"buffer_store_dwordx4 {vr(o+4,4)}, v2, s[{SWS}:{SWS+3}], s57 offen offset:{off+512+256*(rho&1)}{SC}")
        L.append(f"buffer_store_dwordx2 {vr(o+8,2)}, v3, s[{SWS}:{SWS+3}], s57 offen offset:{off+1024+128*(rho&1)}{SC}")
        return L

    weave(phi_mfma(PS[0], ACC), pre + cvt(2), 2)
    m = phi_mfma(PS[1], ACC + 20)
    weave(m[:6], cvt(3), 2)
    weave(m[6:], outq(0), 2)
    m = phi_mfma(PS[2], ACC + 40)
    weave(m[:6], [], 0)
    weave(m[6:], outq(1), 2)
    m = phi_mfma(PS[3], ACC + 60)
    weave(m[:6], [], 0)
    weave(m[6:], outq(2), 2)
    for x in outq(3):
        A(x)
    stamp(A, 6)
    tag_check(A, 10)
    set_flag(A, 10, "s59")
    stamp(A, 7)
    A.check_seam(mq, hq)
    lds_arrive(A, 14, L_SYNC)
    A("s_setprio 0")
    A("s_cmp_lt_u32 s99, 4")
    A("s_cbranch_scc1 L_wo")
    if Opt.wopf == "qs":
        srd(A, 36, S_WO, NB_WO)
        A("s_sub_u32 s57, s99, 4")
        A("s_lshl_b32 s57, s57, 2")
        A("s_add_u32 s57, s57, s48")
        A("s_lshl_b32 s57, s57, 13")
        A(f"s_add_u32 s57, s57, {240*1280}")
        A("v_lshlrev_b32 v8, 7, v1")
        for i in range(4):
            A(f"buffer_load_dword v{200+i}, v8, s[36:39], s57 offen")
            A(f"s_add_u32 s57, s57, {16*8192}")
    end_wave(A)


def role_o(A):
    NT = 4
    RAW, X, PQ = 64, 104, 128
    A("s_mul_i32 s53, s48, 20480")
    A(f"s_add_u32 s53, s53, {L_WOB}")
    A("v_and_b32 v4, 31, v1")
    A("v_lshl_add_u32 v5, v4, 4, s53")
    A("v_lshl_add_u32 v6, v4, 3, s53")
    A("v_and_b32 v7, 32, v1")
    A("v_lshlrev_b32 v7, 26, v7")
    A("s_lshl_b32 s54, s48, 2")
    A(f"s_add_u32 s54, s54, {L_SYNC+16}")
    A("s_mov_b32 s58, 0xffff0000")
    for t in range(NT):
        A(f"v_mov_b32 v{PQ+12*t+10}, 0")
        A(f"v_mov_b32 v{PQ+12*t+11}, 0")
    A("s_mov_b32 s96, s59")
    A("s_mov_b32 s97, 0")
    if Opt.dflag:
        Lgo = A.newlabel("L_go")
        A("v_mov_b32 v14, s54")
        A("ds_read_b32 v15, v14")
        A("s_waitcnt lgkmcnt(0)")
        A("v_cmp_le_u32 vcc, 1, v15")
        A(f"s_cbranch_vccnz {Lgo}")
    set_flag(A, 10, "s96")
    lds_arrive(A, 14, L_SYNC + 4)
    A("s_mov_b32 s97, 1")
    stamp(A, 7)
    lds_wait(A, 14, "s54", 1)
    if Opt.dflag:
        A.label(Lgo)
    stampw(A, 8)
    T = Lgkm(A)
    for t in range(NT):
        T.issue(f"ds_read_b128 {vr(RAW+10*t,4)}, v5 offset:{1280*t}")
        T.issue(f"ds_read_b128 {vr(RAW+10*t+4,4)}, v5 offset:{1280*t+512}")
        T.issue(f"ds_read_b64 {vr(RAW+10*t+8,2)}, v6 offset:{1280*t+1024}", t)
    A("s_lshl_b32 s57, s63, 2")
    A("s_mul_i32 s54, s57, 40960")
    A(f"s_add_u32 s54, s54, {WS_O:#x}")
    A("s_lshl_b32 s59, s62, 8")
    A("s_add_u32 s59, s59, s54")
    A("s_add_u32 s59, s59, 32768")
    A("s_lshl_b32 s57, s62, 10")
    A("s_add_u32 s54, s54, s57")
    A("s_lshl_b32 s50, s63, 5")
    A("s_add_u32 s50, s50, s62")
    A("s_lshl_b32 s50, s50, 7")
    A(f"s_add_u32 s50, s50, {F3:#x}")
    mx, se = 124, 126
    for t in range(NT):
        T.wait(t)
        for i in range(10):
            A(f"v_lshl_add_u32 v{X+2*i}, v{RAW+10*t+i}, 16, v7")
            A(f"v_bitop3_b32 v{X+2*i+1}, v{RAW+10*t+i}, s58, v7 bitop3:0x6a")
        A(f"v_max3_f32 v{mx}, v{X}, v{X+1}, v{X+2}")
        A(f"v_max3_f32 v{mx+1}, v{X+3}, v{X+4}, v{X+5}")
        for i in range(6, 18, 4):
            A(f"v_max3_f32 v{mx}, v{mx}, v{X+i}, v{X+i+1}")
            A(f"v_max3_f32 v{mx+1}, v{mx+1}, v{X+i+2}, v{X+i+3}")
        A(f"v_max3_f32 v{mx}, v{mx}, v{X+18}, v{X+19}")
        A(f"v_max_f32 v{mx}, v{mx}, v{mx+1}")
        A(f"v_mul_f32 v{mx}, s60, v{mx}")
        for i in range(0, 20, 2):
            A(f"v_pk_fma_f32 {vr(X+i,2)}, {vr(X+i,2)}, s[60:61], {vr(mx,2)} op_sel_hi:[1,1,0] neg_lo:[0,0,1] neg_hi:[0,0,1]")
        if Opt.dflag and t == 1:
            Lsk = A.newlabel("L_sk")
            A("s_cmp_eq_u32 s97, 1")
            A(f"s_cbranch_scc1 {Lsk}")
            set_flag(A, 10, "s96")
            lds_arrive(A, 14, L_SYNC + 4)
            stampw(A, 7)
            A.label(Lsk)
        for i in range(20):
            A(f"v_exp_f32 v{X+i}, v{X+i}")
        A(f"v_pk_add_f32 {vr(se,2)}, {vr(X,2)}, {vr(X+2,2)}")
        A(f"v_pk_add_f32 {vr(mx,2)}, {vr(X+4,2)}, {vr(X+6,2)}")
        for i in range(8, 20, 4):
            A(f"v_pk_add_f32 {vr(se,2)}, {vr(se,2)}, {vr(X+i,2)}")
            A(f"v_pk_add_f32 {vr(mx,2)}, {vr(mx,2)}, {vr(X+i+2,2)}")
        A(f"v_pk_add_f32 {vr(se,2)}, {vr(se,2)}, {vr(mx,2)}")
        A(f"v_add_f32 v{se}, v{se}, v{se+1}")
        A(f"v_rcp_f32 v{se}, v{se}")
        for i in range(0, 20, 2):
            A(f"v_pk_mul_f32 {vr(X+i,2)}, {vr(X+i,2)}, {vr(se,2)} op_sel_hi:[1,0]")
        for i in range(10):
            A(f"v_cvt_pk_bf16_f32 v{PQ+12*t+i}, v{X+2*i}, v{X+2*i+1}")
    stamp(A, 9)
    KF = 16
    A(f"v_mov_b32 v{KF+10}, 0")
    A(f"v_mov_b32 v{KF+11}, 0")
    lds_wait(A, 14, L_SYNC + 8, 4)
    stampw(A, 10)
    PR = 32
    T = Lgkm(A)
    for q in range(5):
        for p in range(4):
            T.issue(f"ds_read_b128 {vr(PR+16*q+4*p,4)}, v2 offset:{5120*p+1024*q}", q)
    for q in range(5):
        T.wait(q)
        b = PR + 16 * q
        for h in (0, 2):
            A(f"v_pk_add_f32 {vr(b+h,2)}, {vr(b+h,2)}, {vr(b+4+h,2)}")
            A(f"v_pk_add_f32 {vr(b+8+h,2)}, {vr(b+8+h,2)}, {vr(b+12+h,2)}")
        for h in (0, 2):
            A(f"v_pk_add_f32 {vr(b+h,2)}, {vr(b+h,2)}, {vr(b+8+h,2)}")
        for h in (0, 2):
            A(f"v_cvt_pk_bf16_f32 v{KF+2*q+h//2}, v{b+h}, v{b+h+1}")
    D = [176, 192, 208, 224]
    OP = [32, 40, 48, 56]

    def mf(t):
        for u in range(3):
            c = vr(D[t], 16) if u else "0"
            A(f"v_mfma_f32_32x32x16_bf16 {vr(D[t],16)}, {vr(KF+4*u,4)}, {vr(PQ+12*t+4*u,4)}, {c}")

    if Opt.dA:
        A(f"s_sleep {Opt.dA}")
    mf(0)
    mf(1)
    for t in range(NT):
        d, o = D[t], OP[t]
        A(f"v_add_f32 v10, 0x358637bd, v{d+12}")
        A("v_rcp_f32 v10, v10")
        if t + 2 < NT:
            mf(t + 2)
        for i in range(12):
            A(f"v_mul_f32 v{d+i}, v10, v{d+i}")
        for i in range(6):
            A(f"v_cvt_pk_bf16_f32 v{o+i}, v{d+2*i}, v{d+2*i+1}")
        A(f"buffer_store_dwordx4 {vr(o,4)}, v2, s[{SWS}:{SWS+3}], s54 offen{SC}")
        A("s_mov_b32 exec_hi, 0")
        A(f"buffer_store_dwordx2 {vr(o+4,2)}, v3, s[{SWS}:{SWS+3}], s59 offen{SC}")
        A("s_mov_b64 exec, -1")
        if t < NT - 1:
            A("s_add_u32 s54, s54, 40960")
            A("s_add_u32 s59, s59, 40960")
    stamp(A, 11)
    set_flag(A, 12, "s50")
    lds_arrive(A, 16, L_SYNC + 12)
    stamp(A, 12)


def b_channel(A):
    A("s_mul_i32 s49, s98, 80")
    A("s_sub_u32 s50, s99, 24")
    A("s_mul_i32 s50, s50, 6")
    A("s_add_u32 s49, s49, s50")
    A("s_add_u32 s49, s49, s48")
    A(f"s_mul_i32 s56, s48, {CV_LDS}")


def conv_load_h(A, v):
    SH = 40
    srd(A, SH, S_SSK, NB_SSK)
    A(f"v_lshlrev_b32 v{v}, 4, v1")
    A("s_lshl_b32 s50, s49, 12")
    A("s_add_u32 m0, s56, 64")
    for i in range(4):
        A(f"buffer_load_dwordx4 v{v}, s[{SH}:{SH+3}], s50 offen offset:{1024*i}{Opt.nt_s} lds")


def f0_lines(A, c0, c1, v):
    A(f"s_lshr_b32 s52, s{c0}, 6")
    A("s_mul_i32 s52, s52, 419431")
    A("s_lshr_b32 s52, s52, 16")
    A(f"s_lshr_b32 s53, s{c1}, 6")
    A("s_mul_i32 s53, s53, 419431")
    A("s_add_u32 s53, s53, 406324")
    A("s_lshr_b32 s53, s53, 16")
    A(f"v_lshrrev_b32 v{v}, 2, v1")
    A(f"v_add_u32 v{v}, s52, v{v}")
    A(f"v_min_u32 v{v}, s53, v{v}")
    A(f"v_lshlrev_b32 v{v}, 7, v{v}")
    A(f"s_mov_b32 s52, {F0:#x}")


def role_pre(A):
    SK, SV, SS = 32, 36, 40
    t0, t1, t2 = 2, 3, 4
    A("s_lshl_b32 s49, s98, 3")
    A("s_add_u32 s49, s49, s99")
    A("s_sub_u32 s49, s49, 24")
    A("s_mul_i32 s49, s49, 5")
    A("s_add_u32 s49, s49, s48")
    A("s_and_b32 s50, s49, 31")
    A("s_lshr_b32 s51, s49, 5")
    A(f"s_mul_i32 s52, s50, {64*1280}")
    A("s_lshl_b32 s53, s51, 7")
    A("s_add_u32 s52, s52, s53")
    A(f"v_lshrrev_b32 v{t0}, 3, v1")
    A(f"v_and_b32 v{t1}, 7, v1")
    A(f"v_mul_u32_u24 v{t2}, {8*1280}, v{t0}")
    A(f"v_lshl_add_u32 v{t2}, v{t1}, 4, v{t2}")
    A(f"v_add_u32 v5, s52, v{t2}")
    A(f"v_subrev_u32 v6, {3*1280}, v5")
    A(f"v_subrev_u32 v7, {2*1280}, v5")
    A(f"v_subrev_u32 v8, {1280}, v5")
    A(f"v_lshlrev_b32 v9, 6, v{t1}")
    A("s_lshl_b32 s54, s51, 9")
    A(f"s_movk_i32 s55, {4*1280}")
    A("s_waitcnt lgkmcnt(0)")
    srd(A, SK, S_BK, NB_X)
    srd(A, SV, S_BV, NB_X)
    srd(A, SS, S_SH, NB_SH)
    WR, KR, VR = 16, 32, 76
    for i in range(4):
        A(f"buffer_load_dwordx4 {vr(WR+4*i,4)}, v9, s[{SS}:{SS+3}], s54 offen offset:{16*i}")
    for i in range(3):
        A(f"buffer_load_dwordx4 {vr(KR+4*i,4)}, v{6+i}, s[{SK}:{SK+3}], 0 offen{Opt.nt_s}")

    order = []

    def ld(kind, i):
        so = "0" if i < 4 else "s55"
        if kind == "k":
            A(f"buffer_load_dwordx4 {vr(KR+12+4*i,4)}, v5, s[{SK}:{SK+3}], {so} offen offset:{1280*(i&3)}{Opt.nt_s}")
        else:
            A(f"buffer_load_dwordx4 {vr(VR+4*i,4)}, v5, s[{SV}:{SV+3}], {so} offen offset:{1280*(i&3)}{Opt.nt_s}")
        order.append((kind, i))

    for i in (5, 6, 7):
        ld("k", i)
    ld("k", 0); ld("v", 0); ld("k", 1); ld("v", 1)
    todo = [("k", 2), ("v", 2), ("k", 3), ("v", 3), ("k", 4), ("v", 4), ("v", 5), ("v", 6), ("v", 7)]
    stamp(A, 2)
    srd(A, SWS, S_WS, WS_SIZE)
    A("s_mul_i32 s56, s48, 8320")
    A(f"s_add_u32 s56, s56, {B_PRE}")
    A(f"v_mul_u32_u24 v10, 1040, v{t1}")
    A(f"v_lshl_add_u32 v10, v{t0}, 4, v10")
    A("v_add_u32 v10, s56, v10")
    A("v_lshrrev_b32 v11, 4, v1")
    A("v_lshlrev_b32 v11, 8, v11")
    A("v_and_b32 v12, 3, v1")
    A("v_lshl_add_u32 v11, v12, 6, v11")
    A("v_bfe_u32 v12, v1, 2, 2")
    A("v_lshl_add_u32 v11, v12, 3, v11")
    A("v_add_u32 v11, s56, v11")
    A(f"v_lshlrev_b32 v12, 12, v{t0}")
    A(f"v_lshl_add_u32 v12, v{t1}, 4, v12")
    A("s_lshl_b32 s57, s51, 18")
    A("s_lshl_b32 s58, s50, 7")
    A("s_add_u32 s57, s57, s58")
    A(f"s_add_u32 s57, s57, {WS_KVT:#x}")
    A("s_mov_b32 s59, 0xffff0000")
    WF, KF, VF, TA, OUT = 108, 140, 172, 180, 196

    def unpack(dst, src, n):
        for i in range(n):
            A(f"v_lshlrev_b32 v{dst+2*i}, 16, v{src+i}")
            A(f"v_and_b32 v{dst+2*i+1}, s59, v{src+i}")

    A(f"s_waitcnt vmcnt({3+len(order)})")
    ld(*todo.pop(0)); ld(*todo.pop(0))
    for c in range(8):
        A(f"v_lshlrev_b32 v{WF+c}, 16, v{WR+2*c}")
        A(f"v_and_b32 v{WF+8+c}, s59, v{WR+2*c}")
        A(f"v_lshlrev_b32 v{WF+16+c}, 16, v{WR+2*c+1}")
        A(f"v_and_b32 v{WF+24+c}, s59, v{WR+2*c+1}")
    A(f"s_waitcnt vmcnt({len(order)})")
    ld(*todo.pop(0)); ld(*todo.pop(0))
    for i in range(3):
        unpack(KF + 8 * i, KR + 4 * i, 4)
    for i in range(8):
        need = max(order.index(("k", i)), order.index(("v", i)))
        A(f"s_waitcnt vmcnt({len(order)-1-need})")
        for _ in range(2):
            if todo:
                ld(*todo.pop(0))
        if i == 2:
            b_channel(A)
            conv_load_h(A, 13)
            order.extend([None] * 4)
        unpack(KF + 8 * ((i + 3) & 3), KR + 12 + 4 * i, 4)
        unpack(VF, VR + 4 * i, 4)
        acc = TA + 8 * (i & 1)
        for j in (3, 2, 1, 0):
            kk = KF + 8 * ((i + 3 - j) & 3)
            for c in range(0, 8, 2):
                if j == 3:
                    A(f"v_pk_mul_f32 {vr(acc+c,2)}, {vr(kk+c,2)}, {vr(WF+8*j+c,2)}")
                else:
                    A(f"v_pk_fma_f32 {vr(acc+c,2)}, {vr(kk+c,2)}, {vr(WF+8*j+c,2)}, {vr(acc+c,2)}")
        for c in range(0, 8, 2):
            A(f"v_pk_mul_f32 {vr(acc+c,2)}, {vr(acc+c,2)}, {vr(VF+c,2)}")
        if i & 1:
            for c in range(8):
                A(f"v_cvt_pk_bf16_f32 v{OUT+4*c+i//2}, v{TA+c}, v{TA+8+c}")
    stamp(A, 3)
    for c in range(8):
        A(f"ds_write_b128 v10, {vr(OUT+4*c,4)} offset:{128*c}")
    A("s_waitcnt lgkmcnt(0)")
    T = Lgkm(A)
    for i in range(8):
        T.issue(f"ds_read_b64_tr_b16 {vr(16+4*i,2)}, v11 offset:{1040*i}")
        T.issue(f"ds_read_b64_tr_b16 {vr(18+4*i,2)}, v11 offset:{1040*i+32}", i)
    for i in range(8):
        T.wait(i)
        A(f"buffer_store_dwordx4 {vr(16+4*i,4)}, v12, s[{SWS}:{SWS+3}], s57 offen{SC}")
        if i < 7:
            A(f"s_add_u32 s57, s57, {8*4096}")
    A("s_waitcnt vmcnt(0)")
    stamp(A, 4)


def role_helper(A):
    SD = 40
    A("s_setprio 3")
    A("s_waitcnt lgkmcnt(0)")
    srd(A, SWS, S_WS, WS_SIZE)
    srd(A, SD, S_DBG, 256)
    Lz = A.newlabel("L_nz")
    A("s_cmp_eq_u32 s2, 192")
    A(f"s_cbranch_scc0 {Lz}")
    A("s_cmp_eq_u32 s48, 5")
    A(f"s_cbranch_scc0 {Lz}")
    A(f"s_mov_b32 s57, {WS_EPOCH:#x}")
    A("s_mov_b64 exec, 1")
    A(f"buffer_load_dword v4, off, s[{SWS}:{SWS+3}], s57{SC}")
    A("s_waitcnt vmcnt(0)")
    A("v_add_u32 v4, 1, v4")
    A("v_not_b32 v5, v4")
    A(f"buffer_store_dwordx2 v[4:5], off, s[{SD}:{SD+3}], 0{SC}")
    A(f"buffer_store_dword v4, off, s[{SWS}:{SWS+3}], s57{SC}")
    A("s_mov_b64 exec, -1")
    stamp(A, 2)
    A.label(Lz)
    if Opt.gpf:
        A("s_sub_u32 s50, s99, 24")
        A("s_mul_i32 s50, s50, 3")
        A("s_add_u32 s50, s50, s48")
        A("s_sub_u32 s50, s50, 5")
        A("s_and_b32 s51, s98, 3")
        A("s_lshl_b32 s51, s51, 3")
        A("s_add_u32 s51, s51, s50")
        A(f"s_mul_i32 s51, s51, {64*1280}")
        A("s_sub_u32 s52, s50, 8")
        A("s_mul_i32 s53, s52, 52")
        A("s_lshr_b32 s53, s53, 8")
        A("s_mul_i32 s53, s53, 640")
        A("s_lshl_b32 s52, s52, 7")
        A("s_add_u32 s52, s52, s53")
        A("s_lshr_b32 s53, s98, 2")
        A("s_mul_i32 s53, s53, 640")
        A("s_add_u32 s52, s52, s53")
        A("s_cmp_eq_u32 s50, 23")
        A(f"s_cselect_b32 s52, {NB_W:#x}, s52")
        A("s_cmp_lt_u32 s50, 8")
        A("s_cselect_b32 s51, s51, s52")
        A(f"s_cselect_b64 s[32:33], s[{S_X}:{S_X+1}], s[{S_W}:{S_W+1}]")
        A(f"s_mov_b32 s53, {NB_W:#x}")
        A(f"s_cselect_b32 s34, {NB_X:#x}, s53")
        A("s_mov_b32 s35, 0x20000")
        A("s_movk_i32 s53, 3840")
        A("s_cselect_b32 s52, 1280, s53")
        A(f"s_mov_b32 s53, {64*3840}")
        A("s_cselect_b32 s53, 128, s53")
        A("v_mul_u32_u24 v2, s52, v1")
        A(f"s_mul_i32 s52, s53, {Opt.gpf}")
        A("s_add_u32 s51, s51, s52")
        for k, st in enumerate(range(Opt.gpf, 10)):
            if k >= Opt.gpfd:
                A(f"s_waitcnt vmcnt({Opt.gpfd-1})")
            A(f"buffer_load_dword v{30+k}, v2, s[32:35], s51 offen")
            A("s_add_u32 s51, s51, s53")
    if Opt.codepf:
        Lp = A.newlabel("L_npf")
        A("s_cmp_eq_u32 s48, 6")
        A(f"s_cbranch_scc0 {Lp}")
        A("s_getpc_b64 s[50:51]")
        A.label("L_pc")
        A(f"s_sub_u32 s50, s50, L_pc-{NAME}_kernel")
        A("s_subb_u32 s51, s51, 0")
        A("s_sub_u32 s52, s99, 24")
        A("s_lshl_b32 s52, s52, 13")
        A("v_lshl_add_u32 v2, v1, 7, s52")
        A(f"v_min_u32 v2, L_code_end-{NAME}_kernel-4, v2")
        A("global_load_dword v24, v2, s[50:51]")
        if Opt.womall:
            srd(A, 36, S_WO, NB_WO)
            A("s_sub_u32 s52, s2, 192")
            A("s_lshl_b32 s52, s52, 14")
            A("s_add_u32 s53, s52, 8192")
            A("v_lshlrev_b32 v2, 7, v1")
            A("buffer_load_dword v25, v2, s[36:39], s52 offen")
            A("buffer_load_dword v26, v2, s[36:39], s53 offen")
        A.label(Lp)
    A("s_setprio 0")
    L6 = A.newlabel("L_h6")
    Lx = A.newlabel("L_h67")
    A("s_cmp_eq_u32 s48, 5")
    A(f"s_cbranch_scc0 {L6}")
    b_channel(A)
    conv_load_h(A, 2)
    A("s_branch L_bconv")
    A.label(L6)
    A("s_mul_i32 s54, s98, 80")
    A("s_sub_u32 s50, s99, 24")
    A("s_mul_i32 s55, s50, 6")
    A("s_add_u32 s54, s54, s55")
    A("s_add_u32 s55, s54, 5")
    f0_lines(A, 54, 55, 12)
    A("s_lshl_b32 s58, s98, 3")
    A("s_add_u32 s58, s58, s50")
    A("s_lshl_b32 s58, s58, 7")
    A(f"s_add_u32 s58, s58, {F0:#x}")
    Lt = A.newlabel("L_h7")
    A("s_cmp_eq_u32 s48, 7")
    A(f"s_cbranch_scc0 {Lt}")
    A(f"s_mov_b64 s[{TAG}:{TAG+1}], 0")
    tag_check(A, 8)
    A.label(Lt)
    A("s_barrier")
    A("s_cmp_eq_u32 s48, 7")
    A(f"s_cbranch_scc0 {Lx}")
    set_flag(A, 8, "s58")
    poll(A, 14, 12, "s52", sleep=4)
    A.label(Lx)
    A("s_barrier")
    A("s_branch L_post")


def conv_setup(A):
    A("v_lshlrev_b32 v2, 4, v1")
    A("s_lshl_b32 s52, s49, 1")
    A("s_and_b32 s52, s52, 0xfffffffc")
    A(f"s_load_dword s55, s[{S_SSD}:{S_SSD+1}], s52")
    A(f"s_load_dword s54, s[{S_SSK}:{S_SSK+1}], s50")
    A(f"s_add_u32 s51, s50, {WS_KVT:#x}")
    for i in range(4):
        A(f"v_mov_b32 v{4+i}, 0")
    A("v_add_u32 v3, s56, v2")
    A("s_mov_b64 exec, 0xf")
    A("ds_write_b128 v3, v[4:7]")
    A("s_mov_b32 exec_lo, -1")
    A(f"ds_write_b128 v3, v[4:7] offset:{64+4096}")
    A("s_mov_b64 exec, -1")
    A("v_and_b32 v8, 1, v1")
    A("v_lshlrev_b32 v8, 5, v8")
    A("v_bfe_u32 v9, v1, 4, 1")
    A("v_lshl_add_u32 v8, v9, 4, v8")
    A("v_bfe_u32 v9, v1, 1, 1")
    A("v_lshl_add_u32 v8, v9, 3, v8")
    A("v_lshrrev_b32 v10, 5, v1")
    A("v_lshl_add_u32 v8, v10, 6, v8")
    A("v_bfe_u32 v9, v1, 2, 2")
    A("v_lshlrev_b32 v9, 3, v9")
    A("v_sub_u32 v8, v8, v9")
    A("s_add_u32 s57, s56, 32")
    A("v_add_u32 v8, s57, v8")
    A("v_bfe_u32 v9, v1, 4, 1")
    A("v_lshlrev_b32 v9, 8, v9")
    A("v_and_b32 v11, 3, v1")
    A("v_lshl_add_u32 v9, v11, 6, v9")
    A("v_bfe_u32 v11, v1, 2, 2")
    A("v_lshl_add_u32 v9, v11, 4, v9")
    A("v_lshlrev_b32 v11, 6, v10")
    A("v_sub_u32 v9, v9, v11")
    A(f"s_add_u32 s57, s56, {64+4096+512-384}")
    A("v_add_u32 v9, s57, v9")
    A("v_bfe_u32 v11, v1, 2, 1")
    A("v_bfe_u32 v12, v1, 3, 2")
    A("v_lshl_add_u32 v11, v11, 2, v12")
    A("v_and_b32 v12, 35, v1")
    A("v_lshl_add_u32 v11, v12, 3, v11")
    A("v_and_b32 v12, 1, v11")
    A("v_lshlrev_b32 v12, 4, v12")
    A("v_mov_b32 v13, 0xffff")
    A("v_lshlrev_b32 v13, v12, v13")
    A("v_lshrrev_b32 v11, 1, v11")
    for i in range(4):
        A(f"v_cmp_eq_u32 vcc, {i}, v11")
        A(f"v_cndmask_b32 v{MK+i}, 0, v13, vcc")
    A("v_bfe_u32 v11, v1, 4, 1")
    A("v_and_b32 v12, 3, v1")
    A("v_lshl_add_u32 v11, v11, 2, v12")
    A("v_add_u32 v11, 7, v11")
    A("v_and_b32 v12, 3, v11")
    A("v_bfe_u32 v13, v11, 2, 1")
    A("v_lshl_add_u32 v12, v13, 4, v12")
    A("v_and_b32 v13, 12, v1")
    A("v_add3_u32 v12, v12, v13, 32")
    A("v_subrev_u32 v13, 32, v1")
    A("v_cmp_gt_u32 vcc, 32, v1")
    A("v_cndmask_b32 v14, v13, v12, vcc")
    A("v_lshlrev_b32 v14, 2, v14")
    A("s_mov_b32 s58, 0x1111")
    A("s_mov_b32 s59, 0")


MK = 16


def role_conv(A):
    A("s_barrier")
    conv_setup(A)
    A.label("L_conv")
    NR = 20
    RA, RB, RS = 64, 144, 224
    ACCS = (32, 48)
    CAR, PUL, TMP = 20, (21, 22), 23
    OUT = (24, 28)

    def rdA(m, reg, tag):
        return [(f"ds_read_b64_tr_b16 {vr(reg,2)}, v8 offset:{128*m+32}", None),
                (f"ds_read_b64_tr_b16 {vr(reg+2,2)}, v8 offset:{128*m}", tag)]

    def rdB(b, reg, tag):
        return [(f"ds_read_b128 {vr(reg,4)}, v9 offset:{128*b}", tag)]

    def xload():
        A(f"s_add_u32 m0, s56, {64+4096+512}")
        for i in range(4):
            A(f"buffer_load_dwordx4 v2, s[{SWS}:{SWS+3}], s51 offen offset:{1024*i}{SC} lds")

    Lb, Lg = A.newlabel("L_cb"), A.newlabel("L_cg")
    A("s_waitcnt vmcnt(0)")
    A("s_cmp_ge_u32 s99, 24")
    A(f"s_cbranch_scc1 {Lb}")
    tag_check(A, 22)
    conv_load_h(A, 2)
    A(f"buffer_load_dwordx2 v[22:23], v12, s[{SWS}:{SWS+3}], s52 offen{SC}")
    A("s_barrier")
    A("s_waitcnt vmcnt(0)")
    A(f"v_cmp_eq_u64 vcc, s[{TAG}:{TAG+1}], v[22:23]")
    A("s_cmp_eq_u64 vcc, -1")
    Lx = A.newlabel("L_cx")
    A(f"s_cbranch_scc1 {Lx}")
    poll(A, 22, 12, "s52", sleep=8)
    A.label(Lx)
    stamp(A, 8)
    xload()
    A.label(Lb)
    A("s_waitcnt lgkmcnt(0)")
    A("s_lshl_b32 s54, s54, 16")
    A("s_lshl_b32 s53, s55, 16")
    A("s_and_b32 s55, s55, 0xffff0000")
    A("s_bitcmp1_b32 s49, 0")
    A("s_cselect_b32 s53, s55, s53")
    A("v_mov_b32 v15, s54")
    A("v_add_f32 v15, s53, v15")
    A("v_cvt_pk_bf16_f32 v15, v15, v15")
    T = Lgkm(A)
    for m in range(NR):
        for x, tg in rdA(m, RA + 4 * m, ("A", m)):
            T.issue(x, tg)
    T.wait(("A", 0))
    for k in range(4):
        A(f"v_bfi_b32 v{RA+k}, v{MK+k}, v15, v{RA+k}")
    T.all()
    if Opt.qwait:
        Lqd = A.newlabel("L_qd")
        A("s_cmp_ge_u32 s99, 24")
        A(f"s_cbranch_scc1 {Lqd}")
        lds_wait(A, 12, L_SYNC, 4, sleep=4)
        A.label(Lqd)
    A("s_cmp_ge_u32 s99, 24")
    A(f"s_cbranch_scc0 {Lg}")
    A("s_barrier")
    stamp(A, 8)
    xload()
    A.label(Lg)
    A(f"s_add_u32 s51, s50, {WS_YT:#x}")
    A(f"v_mov_b32 v{PUL[1]}, 0")

    sched = []
    for i in range(8):
        ms = list(range(4 * i + 4))
        res = [m for m in ms if m < NR and 4 * i + 3 - m < NR]
        stm = [m for m in ms if m not in res]
        sched += [(i, m) for m in res + stm]
    streams = []
    for k, (i, m) in enumerate(sched):
        b = 4 * i + 3 - m
        if m >= NR:
            streams.append((k, "A", m))
        elif b >= NR:
            streams.append((k, "B", b))
    slot_of = {k: n % 8 for n, (k, _, _) in enumerate(streams)}

    def epilogue(i):
        V = ACCS[i & 1]
        own = [f"v_add_f32_dpp v{V+4*j}, v{V+4*j+k}, v{V+4*j} row_shr:{4*k} row_mask:0xf bank_mask:0xf"
               for k in (1, 2, 3) for j in range(4)]
        car = [f"v_add_f32_dpp v{CAR}, v{V+12+k}, v{CAR} row_shl:{16-4*k} row_mask:0xf bank_mask:0xf" for k in (1, 2, 3)]
        L = [f"v_mov_b32 v{CAR}, 0"] + own[0:2] + car[0:1] + own[2:4] + car[1:2] + own[4:6] + car[2:3]
        L.append(("ds", f"ds_bpermute_b32 v{PUL[i&1]}, v14, v{CAR}", ("P", i)))
        L += own[6:]
        for k in (1, 2, 3):
            for j in (0, 1, 2):
                L.append(f"v_add_f32_dpp v{V+4*j+4}, v{V+4*j+k}, v{V+4*j+4} row_shl:{16-4*k} row_mask:0xf bank_mask:0xf")
        o = OUT[(i >> 1) & 1] + 2 * (i & 1)
        L.append(f"v_cvt_pk_bf16_f32 v{o+1}, v{V+8}, v{V+12}")
        L.append(("wait", ("P", i)))
        L.append(f"v_cndmask_b32 v{TMP}, v{PUL[i&1]}, v{PUL[1-(i&1)]}, s[58:59]")
        L.append(f"v_add_f32 v{V}, v{V}, v{TMP}")
        L.append(f"v_cvt_pk_bf16_f32 v{o}, v{V}, v{V+4}")
        if i & 1:
            L.append(f"buffer_store_dwordx4 {vr(OUT[(i>>1)&1],4)}, v2, s[{SWS}:{SWS+3}], s51 offen offset:{1024*(i>>1)}{SC}")
        return L

    def emit(x):
        if isinstance(x, tuple):
            if x[0] == "ds":
                T.issue(x[1], x[2])
            else:
                T.wait(x[1])
        else:
            A(x)

    A("s_waitcnt vmcnt(0)")
    stampw(A, 9)
    for b in range(8):
        for x, tg in rdB(b, RB + 4 * b, ("B", b)):
            T.issue(x, tg)
    nres = 8
    nst = 0
    fill = []
    first = {}
    for k, (i, m) in enumerate(sched):
        first.setdefault(i, k)
    for k, (i, m) in enumerate(sched):
        V = ACCS[i & 1]
        b = 4 * i + 3 - m
        if k == first[i]:
            while fill:
                emit(fill.pop(0))
            if i > 0:
                fill = epilogue(i - 1)
        if k in slot_of:
            T.wait(("S", k))
        if b < NR:
            T.wait(("B", b))
        ra = RA + 4 * m if m < NR else RS + 4 * slot_of[k]
        rb = RB + 4 * b if b < NR else RS + 4 * slot_of[k]
        c = vr(V, 16) if k != first[i] else "0"
        A(f"v_mfma_f32_32x32x16_bf16 {vr(V,16)}, {vr(ra,4)}, {vr(rb,4)}, {c}")
        budget = 5
        if nres < NR:
            for x, tg in rdB(nres, RB + 4 * nres, ("B", nres)):
                T.issue(x, tg)
            nres += 1
            budget -= 1
        elif nst < len(streams) and (nst < 8 or streams[nst - 8][0] < k) and streams[nst][0] - k <= 10:
            kk, kind, fr = streams[nst]
            for x, tg in (rdA if kind == "A" else rdB)(fr, RS + 4 * slot_of[kk], ("S", kk)):
                T.issue(x, tg)
                budget -= 1
            nst += 1
        if k > first[i]:
            for _ in range(budget):
                if fill:
                    emit(fill.pop(0))
    while fill:
        emit(fill.pop(0))
    stampw(A, 10)
    T.done = T.n if Ctx.stamps else T.done
    for x in epilogue(7):
        emit(x)
    A("s_waitcnt vmcnt(0)")
    stamp(A, 11)
    A("s_cmp_ge_u32 s99, 24")
    A("s_cbranch_scc1 L_bdone")
    A(f"v_mov_b32 v10, {L_SYNC+12}")
    A("v_mov_b32 v11, 1")
    A("s_mov_b64 exec, 1")
    A("ds_add_rtn_u32 v12, v10, v11")
    A("s_mov_b64 exec, -1")
    A("s_lshl_b32 s52, s98, 4")
    A("s_add_u32 s52, s52, s99")
    A("s_lshl_b32 s52, s52, 7")
    A(f"s_add_u32 s52, s52, {F4+8*128:#x}")
    A("s_waitcnt lgkmcnt(0)")
    A("v_readfirstlane_b32 s53, v12")
    A("s_cmp_eq_u32 s53, 3")
    A("s_cbranch_scc0 L_bend")
    set_flag(A, 10, "s52")
    A("s_branch L_bend")
    A.label("L_bdone")


def role_post(A):
    SQ, SO = 32, 36
    A.label("L_post")
    A("s_lshl_b32 s48, s48, 2")
    A("s_lshr_b32 s48, 0x43002100, s48")
    A("s_and_b32 s48, s48, 7")
    A("s_mul_i32 s49, s98, 40")
    A("s_sub_u32 s50, s99, 24")
    A("s_mul_i32 s50, s50, 5")
    A("s_add_u32 s49, s49, s50")
    A("s_add_u32 s49, s49, s48")
    A("s_and_b32 s50, s49, 31")
    A("s_lshr_b32 s51, s49, 5")
    A("v_lshrrev_b32 v2, 3, v1")
    A("v_and_b32 v3, 7, v1")
    A("v_lshlrev_b32 v4, 12, v2")
    A("v_lshl_add_u32 v4, v3, 4, v4")
    A("s_lshl_b32 s52, s51, 18")
    A("s_lshl_b32 s53, s50, 7")
    A("s_add_u32 s52, s52, s53")
    A(f"s_add_u32 s52, s52, {WS_YT:#x}")
    A("s_mul_i32 s56, s48, 8320")
    A(f"s_add_u32 s56, s56, {B_PRE}")
    A("s_lshr_b32 s54, s50, 3")
    A("s_lshl_b32 s54, s54, 9")
    A("s_bfe_u32 s55, s50, 0x10002")
    A("s_lshl_b32 s55, s55, 4")
    A("s_add_u32 s54, s54, s55")
    A("s_bfe_u32 s55, s50, 0x10001")
    A("s_lshl_b32 s55, s55, 7")
    A("s_add_u32 s54, s54, s55")
    A("s_and_b32 s55, s50, 1")
    A("s_lshl_b32 s55, s55, 1")
    A("s_add_u32 s54, s54, s55")
    A("v_and_b32 v5, 3, v2")
    A("v_lshrrev_b32 v6, 2, v2")
    A("v_lshl_add_u32 v5, v5, 5, v6")
    A("v_mul_u32_u24 v6, 1280, v5")
    A("v_lshlrev_b32 v7, 1, v6")
    A("v_lshl_add_u32 v6, v3, 4, v6")
    A("v_lshl_add_u32 v7, v3, 4, v7")
    A("s_mul_i32 s54, s54, 1280")
    A("s_lshl_b32 s53, s51, 7")
    A("s_lshl_b32 s55, s54, 1")
    A("s_add_u32 s54, s54, s53")
    A("s_add_u32 s55, s55, s53")
    A("s_add_u32 s55, s55, 1280")
    srd(A, SQ, S_BQ, NB_X)
    srd(A, SO, S_OUT, NB_OUT)
    QR, YR = 16, 48
    rows = [0, 4, 8, 12, 256, 260, 264, 268]
    if Opt.wopf == "b":
        Ln = A.newlabel("L_npf")
        A("s_cmp_ge_u32 s48, 3")
        A(f"s_cbranch_scc0 {Ln}")
        srd(A, 40, S_WO, NB_WO)
        A("s_sub_u32 s57, s99, 24")
        A("s_lshl_b32 s57, s57, 1")
        A("s_add_u32 s57, s57, s48")
        A("s_sub_u32 s57, s57, 3")
        A("s_lshl_b32 s57, s57, 13")
        A("v_lshlrev_b32 v8, 7, v1")
        for i in range(7):
            A(f"buffer_load_dword v{200+i}, v8, s[40:43], s57 offen")
            A(f"s_add_u32 s57, s57, {16*8192}")
        A.label(Ln)
    for i in range(8):
        A(f"s_add_u32 s57, s54, {rows[i]*1280}")
        A(f"buffer_load_dwordx4 {vr(QR+4*i,4)}, v6, s[{SQ}:{SQ+3}], s57 offen{Opt.nt_s}")
    A("s_mov_b32 s59, 0xffff0000")
    QF = 128
    A("s_waitcnt vmcnt(0)")
    for i in range(32):
        A(f"v_lshlrev_b32 v{QF+2*i}, 16, v{QR+i}")
        A(f"v_and_b32 v{QF+2*i+1}, s59, v{QR+i}")
    A("s_lshl_b32 s57, s98, 4")
    A("s_sub_u32 s58, s57, 16")
    A("v_min_u32 v12, 47, v1")
    A("v_add_u32 v12, s58, v12")
    A("v_max_i32 v12, 0, v12")
    A("v_min_u32 v12, 127, v12")
    A("v_lshlrev_b32 v12, 7, v12")
    A("s_add_u32 s57, s57, s99")
    A("s_lshl_b32 s57, s57, 7")
    A(f"s_add_u32 s57, s57, {F4-24*128:#x}")
    A(f"s_mov_b32 s58, {F4:#x}")
    Lx = A.newlabel("L_p7")
    A("s_barrier")
    A("s_cmp_eq_u32 s48, 4")
    A(f"s_cbranch_scc0 {Lx}")
    set_flag(A, 8, "s57")
    poll(A, 14, 12, "s58", sleep=4)
    A.label(Lx)
    A("s_barrier")
    if Opt.dB:
        A(f"s_sleep {Opt.dB}")
    stamp(A, 12)
    for i in range(8):
        A(f"v_xor_b32 v8, {16*i}, v4")
        A(f"s_add_u32 m0, s56, {1024*i}")
        A(f"buffer_load_dwordx4 v8, s[{SWS}:{SWS+3}], s52 offen{SC} lds")
        if i < 7:
            A(f"s_add_u32 s52, s52, {8*4096}")
    A("v_xor_b32 v8, v2, v3")
    A("v_lshlrev_b32 v8, 4, v8")
    A("v_lshl_add_u32 v8, v3, 10, v8")
    A("v_add_u32 v8, s56, v8")
    A("s_waitcnt vmcnt(0)")
    for c in range(8):
        A(f"ds_read_b128 {vr(YR+4*c,4)}, v8 offset:{128*c}")
    A("s_waitcnt lgkmcnt(0)")
    stamp(A, 13)
    YF, OUT = 80, 96
    for i in range(8):
        for c in range(8):
            if i & 1:
                A(f"v_and_b32 v{YF+c}, s59, v{YR+4*c+i//2}")
            else:
                A(f"v_lshlrev_b32 v{YF+c}, 16, v{YR+4*c+i//2}")
        for c in range(0, 8, 2):
            A(f"v_pk_mul_f32 {vr(YF+c,2)}, {vr(YF+c,2)}, {vr(QF+8*i+c,2)}")
        for k in range(4):
            A(f"v_cvt_pk_bf16_f32 v{OUT+4*i+k}, v{YF+2*k}, v{YF+2*k+1}")
        A(f"s_add_u32 s57, s55, {rows[i]*2560}")
        A(f"buffer_store_dwordx4 {vr(OUT+4*i,4)}, v7, s[{SO}:{SO+3}], s57 offen{Opt.oscb}")
    stamp(A, 14)


def build():
    A = Asm()
    k = NAME + "_kernel"
    A.raw(f".globl {k}")
    A.raw(".p2align 8")
    A.raw(f".type {k},@function")
    A.label(k)
    if Opt.hold:
        A("s_memrealtime s[64:65]")
    load_kernargs(A)
    if not Opt.hp:
        stamp_init(A)
        if Opt.rt:
            A("s_waitcnt lgkmcnt(0)")
            stamp(A, 1)
    A("v_lshrrev_b32 v2, 6, v0")
    A("v_and_b32 v1, 63, v0")
    A("v_readfirstlane_b32 s100, v2")
    A("s_and_b32 s98, s2, 7")
    A("s_lshr_b32 s99, s2, 3")
    A("s_cmp_ge_u32 s2, 192")
    A("s_cbranch_scc1 L_b")
    A("s_and_b32 s49, s2, 3")
    A("s_lshl_b32 s49, s49, 2")
    A("s_and_b32 s50, s99, 3")
    A("s_add_u32 s49, s49, s50")
    A("s_bfe_u32 s52, s2, 0x10002")
    A("s_lshr_b32 s53, s2, 5")
    A("s_lshl_b32 s54, s52, 1")
    A("s_add_u32 s54, s54, s53")
    A("s_lshl_b32 s55, s52, 2")
    A("s_add_u32 s55, s55, s53")
    A("s_sub_u32 s55, s55, 2")
    A("s_cmp_lt_u32 s2, 64")
    A("s_cselect_b32 s50, s54, s55")
    A("s_cselect_b32 s51, 1, 0")
    A("s_and_b32 s48, s100, 3")
    A("s_cmp_ge_u32 s100, 4")
    A("s_cbranch_scc1 L_c")
    role_loader(A)
    A.label("L_c")
    role_compute(A)
    A.label("L_b")
    A("s_cmp_ge_u32 s2, 256")
    A("s_cbranch_scc1 L_exit")
    A("s_mov_b32 s48, s100")
    A("s_cmp_ge_u32 s48, 5")
    A("s_cbranch_scc1 L_help")
    role_pre(A)
    A("s_branch L_bconv")
    A.label("L_help")
    role_helper(A)
    A.label("L_bconv")
    role_conv(A)
    A("s_bitcmp1_b32 0x32, s48")
    A("s_cbranch_scc1 L_bend")
    role_post(A)
    A.label("L_bend")
    end_wave(A)
    A.label("L_exit")
    A("s_endpgm")
    A.label("L_code_end")
    head = ["; generated by gen/f5.py",
            "; @launch grid=(256,1,1) block=(512,1,1) lds=163840"]
    txt = "\n".join(head) + '\n.amdgcn_target "amdgcn-amd-amdhsa--gfx950"\n.text\n' + A.text()
    txt += f'''.section .rodata,"a"
.p2align 6
.amdhsa_kernel {k}
  .amdhsa_next_free_vgpr 256
  .amdhsa_next_free_sgpr 102
  .amdhsa_accum_offset 256
  .amdhsa_group_segment_fixed_size 0
  .amdhsa_kernarg_size 104
  .amdhsa_user_sgpr_count 2
  .amdhsa_user_sgpr_kernarg_segment_ptr 1
  .amdhsa_system_sgpr_workgroup_id_x 1
.end_amdhsa_kernel
'''
    return txt


if __name__ == "__main__":
    args = sys.argv[2:]
    Ctx.stamps = "stamps" in args
    Opt.rot = "norot" not in args
    Opt.codepf = "nocodepf" not in args
    for a in args:
        if a.startswith("probe="):
            Opt.probe = tuple(int(x) for x in a[6:].split(","))
        if a.startswith("holdwg="):
            Opt.holdwg = int(a[7:])
        if a.startswith("osc="):
            Opt.osc = a[4:].replace("_", " ")
        if a.startswith("oscb="):
            Opt.oscb = a[5:].replace("_", " ")
        if a.startswith("gpf="):
            Opt.gpf = int(a[4:])
        if a.startswith("gpfd="):
            Opt.gpfd = int(a[5:])
        if a.startswith("rotA="):
            Opt.rotA = int(a[5:], 16)
        if a.startswith("rotB="):
            Opt.rotB = int(a[5:], 16)
        if a == "fake16":
            Opt.fake16 = True
        if a.startswith("qdelay="):
            Opt.qdelay = int(a[7:])
        if a.startswith("bpos="):
            Opt.bpos = int(a[5:])
        if a == "lidle":
            Opt.lidle = True
        if a == "noqwait":
            Opt.qwait = False
        if a == "nofwarm":
            Opt.fwarm = False
        if a == "noprog":
            Opt.prog = False
        if a == "nodflag":
            Opt.dflag = False
        if a == "rt":
            Opt.rt = True
        if a.startswith("hp="):
            Opt.hp = int(a[3:])
            Ctx.stamps = True
        if a.startswith("hold="):
            Opt.hold = int(a[5:])
        if a.startswith("dA="):
            Opt.dA = int(a[3:])
        if a.startswith("dB="):
            Opt.dB = int(a[3:])
        if a == "nowomall":
            Opt.womall = False
        if a == "noppoll":
            Opt.ppoll = False
        if a.startswith("psleep="):
            Opt.psleep = int(a[7:])
        if a.startswith("wopf="):
            Opt.wopf = a[5:]
    for a in args:
        if a.startswith("LA="):
            Opt.LA = int(a[3:])
    open(sys.argv[1], "w").write(build())
```

```python
import sys
from asm import Asm, vr, ar, sr
from roles import (WS_PHIQ, WS_PART, WS_O, WS_KVT, WS_YT, WS_STAMP, WS_SIZE, S_X, S_W, S_WPHI, S_WO, S_BQ, S_BK, S_BV,
                   S_SH, S_SSK, S_SSD, S_OUT, S_DBG, S_WS, NB_X, NB_W, NB_WPHI, NB_WO, NB_SH, NB_SSK, NB_OUT, LOG2E,
                   Ctx, load_kernargs, srd, stamp, stamp_init, softmax20)

NAME = "concat_heads__linear_kernel_hedgehog__ssm_conv_h3__prompt"
WS_PQ = WS_PHIQ
WS_FLAG = 0xF00000
F1, F2, F3, F0, F4 = (WS_FLAG + 128 * o for o in (0, 512, 1024, 1536, 1856))
WS_EPOCH = WS_FLAG + 128 * 2560 + 64
SWS = 44
SC = " sc1"
TAG = 30
SLOT = 36864
L_WP = 147456
L_Z = L_WP + 8192
L_SYNC = L_Z + 4096
L_V = 128 * 336
L_WOB = 69632
L_OT = 65536
CV_LDS = 8768
L_QCV = 3 * SLOT
B_PRE = 8 * CV_LDS
B_MB = B_PRE + 5 * 8320


class Opt:
    rot = True
    LA = 2
    nt_s = " nt"
    codepf = True
    wopf = "qs"
    osc = " sc1 nt"
    oscb = " sc1 nt"
    hp = 0
    oahead = 5
    gpf2 = 3
    hdef = True
    R = 10
    wos = 1
    lite = False
    dflag = False
    prog = True
    fwarm = True
    qwait = True
    lidle = False
    bpos = 4
    fake16 = False
    qdelay = 0
    rotA = 0x5050
    rotB = 0x550050
    gpf = 0
    gpfd = 99
    rt = False
    ppoll = False
    womall = True
    probe = None
    dA = 0
    hold = 0
    holdwg = -1
    dB = 0
    psleep = 2


_stamp0 = stamp


def stamp(A, k, real=False):
    if Opt.hp:
        if k == Opt.hp:
            A("s_memrealtime s[64:65]")
        return
    if Opt.lite and k not in (0, 15):
        return
    _stamp0(A, k, real or Opt.rt)


def end_wave(A, holdable=False):
    if Opt.hp:
        if holdable:
            L = A.newlabel("L_hp")
            A("s_cmp_lt_u32 s99, 8")
            A("s_cbranch_scc1 L_exit")
            A.label(L)
            A("s_sleep 4")
            A("s_memrealtime s[66:67]")
            A("s_waitcnt lgkmcnt(0)")
            A("s_sub_u32 s66, s66, s64")
            A("s_cmp_lt_u32 s66, 2000")
            A(f"s_cbranch_scc1 {L}")
    elif Ctx.stamps:
        stamp(A, 15, True)
        A("s_waitcnt lgkmcnt(0)")
        A("s_mov_b64 exec, -1")
        A("v_mov_b32 v2, 0")
        for k in ((0, 15) if Opt.lite else range(16)):
            A(f"v_writelane_b32 v2, s{64+2*k}, {k}")
        A("s_lshl_b32 s62, s2, 3")
        A("s_add_u32 s62, s62, s100")
        A("s_lshl_b32 s62, s62, 6")
        A(f"s_add_u32 s62, s62, {WS_STAMP:#x}")
        A("v_lshlrev_b32 v1, 2, v1")
        A("s_mov_b64 exec, 0xffff")
        A(f"buffer_store_dword v2, v1, s[{SWS}:{SWS+3}], s62 offen")
        if Opt.probe:
            Lp = A.newlabel("L_probe")
            A(f"s_cmp_eq_u32 s2, {Opt.probe[0]}")
            A(f"s_cbranch_scc0 {Lp}")
            A(f"s_cmp_eq_u32 s100, {Opt.probe[1]}")
            A(f"s_cbranch_scc0 {Lp}")
            A("v_subrev_u32 v3, s66, v2")
            A("s_sub_u32 s62, s94, s64")
            A("v_writelane_b32 v3, s62, 15")
            A("v_cmp_ne_u32 vcc, 0, v2")
            A("v_cndmask_b32 v3, 0, v3, vcc")
            A("s_mov_b64 exec, 0xfffc")
            A(f"global_store_dword v1, v3, s[{S_DBG}:{S_DBG+1}]")
            A.label(Lp)
    A("s_endpgm")


def stampw(A, k):
    stamp(A, k)
    if Ctx.stamps:
        A("s_waitcnt lgkmcnt(0)")


def poll(A, vt, voff, soff, sleep=1):
    L, Ld = A.newlabel("L_poll"), A.newlabel("L_polld")
    A("s_movk_i32 s101, 0x4000")
    A.label(L)
    A(f"buffer_load_dwordx2 {vr(vt,2)}, v{voff}, s[{SWS}:{SWS+3}], {soff} offen{SC}")
    A("s_waitcnt vmcnt(0)")
    A(f"v_cmp_eq_u64 vcc, s[{TAG}:{TAG+1}], {vr(vt,2)}")
    A("s_cmp_eq_u64 vcc, -1")
    A(f"s_cbranch_scc1 {Ld}")
    A(f"s_sleep {sleep}")
    A("s_sub_u32 s101, s101, 1")
    A("s_cmp_eq_u32 s101, 0")
    A(f"s_cbranch_scc0 {L}")
    A("s_endpgm")
    A.label(Ld)


def ppoll(A, vt, voff, soff, sleep=1, depth=4):
    if not Opt.ppoll:
        return poll(A, vt, voff, soff, sleep=sleep)
    L, Ld = A.newlabel("L_pp"), A.newlabel("L_ppd")
    ld = lambda k: f"buffer_load_dwordx2 {vr(vt+2*k,2)}, v{voff}, s[{SWS}:{SWS+3}], {soff} offen{SC}"
    A("s_movk_i32 s101, 0x4000")
    for k in range(depth - 1):
        A(ld(k))
        A(f"s_sleep {sleep}")
    A.label(L)
    for k in range(depth):
        A(ld((k + depth - 1) % depth))
        A(f"s_waitcnt vmcnt({depth-1})")
        A(f"v_cmp_eq_u64 vcc, s[{TAG}:{TAG+1}], {vr(vt+2*k,2)}")
        A("s_cmp_eq_u64 vcc, -1")
        A(f"s_cbranch_scc1 {Ld}")
        A(f"s_sleep {sleep}")
    A("s_sub_u32 s101, s101, 1")
    A("s_cmp_eq_u32 s101, 0")
    A(f"s_cbranch_scc0 {L}")
    A("s_endpgm")
    A.label(Ld)


def set_flag(A, vt, soff):
    A(f"v_mov_b32 v{vt}, s{TAG}")
    A(f"v_mov_b32 v{vt+1}, s{TAG+1}")
    A(f"v_lshlrev_b32 v{vt+2}, 3, v1")
    A("s_waitcnt vmcnt(0)")
    A("s_mov_b64 exec, 0xffff")
    A(f"buffer_store_dwordx2 {vr(vt,2)}, v{vt+2}, s[{SWS}:{SWS+3}], {soff} offen{SC}")
    A("s_mov_b64 exec, -1")


def tag_issue(A):
    A(f"s_load_dwordx2 s[{TAG}:{TAG+1}], s[{S_DBG}:{S_DBG+1}], 0")


def tag_check(A, vt):
    L, Ld = A.newlabel("L_hs"), A.newlabel("L_hsd")
    A("s_waitcnt lgkmcnt(0)")
    A(f"s_cmp_lg_u32 s{TAG}, s{TAG+1}")
    A(f"s_cbranch_scc1 {Ld}")
    A("s_movk_i32 s101, 0x4000")
    A(f"v_mov_b32 v{vt+2}, 0")
    A.label(L)
    A(f"global_load_dwordx2 {vr(vt,2)}, v{vt+2}, s[{S_DBG}:{S_DBG+1}]{SC}")
    A("s_waitcnt vmcnt(0)")
    A(f"v_readfirstlane_b32 s{TAG}, v{vt}")
    A(f"v_readfirstlane_b32 s{TAG+1}, v{vt+1}")
    A("s_nop 3")
    A(f"s_cmp_lg_u32 s{TAG}, s{TAG+1}")
    A(f"s_cbranch_scc1 {Ld}")
    A("s_sleep 8")
    A("s_sub_u32 s101, s101, 1")
    A("s_cmp_eq_u32 s101, 0")
    A(f"s_cbranch_scc0 {L}")
    A("s_endpgm")
    A.label(Ld)


def lds_arrive(A, vt, addr):
    A(f"v_mov_b32 v{vt}, {addr}")
    A(f"v_mov_b32 v{vt+1}, 1")
    A("s_waitcnt lgkmcnt(0)")
    A("s_mov_b64 exec, 1")
    A(f"ds_add_u32 v{vt}, v{vt+1}")
    A("s_mov_b64 exec, -1")


def lds_wait(A, vt, addr, n, sleep=0):
    L, Ld = A.newlabel("L_lw"), A.newlabel("L_lwd")
    if addr is not None:
        A(f"v_mov_b32 v{vt}, {addr}")
    A("s_mov_b32 s101, 0x40000")
    A.label(L)
    A(f"ds_read_b32 v{vt+1}, v{vt}")
    A("s_waitcnt lgkmcnt(0)")
    A(f"v_cmp_le_u32 vcc, {n}, v{vt+1}")
    A(f"s_cbranch_vccnz {Ld}")
    if sleep:
        A(f"s_sleep {sleep}")
    A("s_sub_u32 s101, s101, 1")
    A("s_cmp_eq_u32 s101, 0")
    A(f"s_cbranch_scc0 {L}")
    A("s_endpgm")
    A.label(Ld)


class Lgkm:
    def __init__(self, A):
        self.A, self.n, self.done, self.tag = A, 0, 0, {}

    def issue(self, text, tag=None):
        self.A(text)
        self.n += 1
        if tag is not None:
            self.tag[tag] = self.n

    def wait(self, *tags):
        need = max(self.tag[t] for t in tags)
        if need > self.done:
            self.A(f"s_waitcnt lgkmcnt({min(15, self.n - need)})")
            self.done = max(need, self.n - 15)

    def all(self):
        if self.done < self.n:
            self.A("s_waitcnt lgkmcnt(0)")
            self.done = self.n


def softmax_parts(X, E, F, T, PH):
    mx, mn = T, T + 2
    mm = [f"v_max3_f32 v{mx}, v{X}, v{X+1}, v{X+2}", f"v_min3_f32 v{mn}, v{X}, v{X+1}, v{X+2}"]
    for i in range(3, 19, 2):
        mm += [f"v_max3_f32 v{mx}, v{mx}, v{X+i}, v{X+i+1}", f"v_min3_f32 v{mn}, v{mn}, v{X+i}, v{X+i+1}"]
    mm += [f"v_max_f32 v{mx}, v{mx}, v{X+19}", f"v_min_f32 v{mn}, v{mn}, v{X+19}",
           f"v_mul_f32 v{mx}, s60, v{mx}", f"v_mul_f32 v{mn}, s60, v{mn}"]
    fm, ex = [], []
    for i in range(0, 20, 2):
        fm.append(f"v_pk_fma_f32 {vr(E+i,2)}, {vr(X+i,2)}, s[60:61], {vr(mx,2)} op_sel_hi:[1,1,0] neg_lo:[0,0,1] neg_hi:[0,0,1]")
        fm.append(f"v_pk_fma_f32 {vr(F+i,2)}, {vr(X+i,2)}, s[60:61], {vr(mn,2)} op_sel_hi:[1,1,0] neg_lo:[1,0,0] neg_hi:[1,0,0]")
    for i in range(20):
        ex += [f"v_exp_f32 v{E+i}, v{E+i}", f"v_exp_f32 v{F+i}, v{F+i}"]
    se, sf = T + 4, T + 6
    sm = [f"v_pk_add_f32 {vr(se,2)}, {vr(E,2)}, {vr(E+2,2)}", f"v_pk_add_f32 {vr(sf,2)}, {vr(F,2)}, {vr(F+2,2)}"]
    for i in range(4, 20, 2):
        sm += [f"v_pk_add_f32 {vr(se,2)}, {vr(se,2)}, {vr(E+i,2)}", f"v_pk_add_f32 {vr(sf,2)}, {vr(sf,2)}, {vr(F+i,2)}"]
    fin = [f"v_add_f32 v{se}, v{se}, v{se+1}", f"v_add_f32 v{sf}, v{sf}, v{sf+1}",
           f"v_rcp_f32 v{se}, v{se}", f"v_rcp_f32 v{sf}, v{sf}"]
    tail = []
    for j in range(20):
        R, s_ = (E + 2 * j, se) if j < 10 else (F + 2 * (j - 10), sf)
        tail.append((f"v_pk_mul_f32 {vr(R,2)}, {vr(R,2)}, {vr(s_,2)} op_sel_hi:[1,0]", f"v_cvt_pk_bf16_f32 v{PH+j}, v{R}, v{R+1}"))
    return mm, fm, ex, sm, fin, tail


def merge(main, extra, every, start=0):
    out, extra = [], list(extra)
    for i, x in enumerate(main):
        out.append(x)
        if extra and i >= start and (i - start) % every == every - 1:
            out.append(extra.pop(0))
    return out + extra


def o_index(A):
    A("s_sub_u32 s63, s99, 8")
    A("s_lshr_b32 s62, s63, 2")
    A("s_lshl_b32 s3, s98, 2")
    A("s_add_u32 s62, s62, s3")
    A("s_and_b32 s63, s63, 3")
    A("s_lshl_b32 s63, s63, 2")
    A("s_add_u32 s63, s63, s48")


def role_loader(A):
    SX, SW, SP = 32, 36, 40
    VX, VW = 24, 28
    t0, t1, t2, t3 = 11, 12, 13, 14
    A("s_setprio 1")
    A(f"v_lshrrev_b32 v{t0}, 3, v1")
    A(f"v_mul_u32_u24 v{t0}, 1280, v{t0}")
    A(f"v_lshrrev_b32 v{t1}, 4, v1")
    A(f"v_and_b32 v{t2}, 7, v1")
    A(f"v_xor_b32 v{t1}, v{t1}, v{t2}")
    A(f"v_xor_b32 v{t2}, 4, v{t1}")
    A(f"v_lshl_add_u32 v{VX}, v{t1}, 4, v{t0}")
    A(f"v_lshl_add_u32 v{VX+1}, v{t2}, 4, v{t0}")
    A(f"v_add_u32 v{VX+2}, {2*(8*1280-1024)}, v{VX}")
    A(f"v_add_u32 v{VX+3}, {3*(8*1280-1024)}, v{VX+1}")
    A(f"v_add_u32 v{VX+1}, {8*1280-1024}, v{VX+1}")
    A("s_lshl_b32 s60, s49, 2")
    A("s_add_u32 s60, s60, s48")
    A(f"s_mul_i32 s60, s60, {32*1280}")
    if Opt.rot:
        A("s_lshl_b32 s30, s49, 2")
        A("s_bfe_u32 s30, s30, 0x40000")
        A(f"s_lshr_b32 s30, {Opt.rotA:#x}, s30")
        A("s_and_b32 s30, s30, 15")
        A("s_and_b32 s31, s99, 28")
        A(f"s_lshr_b32 s31, {Opt.rotB:#x}, s31")
        A("s_and_b32 s31, s31, 15")
        A("s_add_u32 s30, s30, s31")
        A(f"s_sub_u32 s31, s30, {Opt.R}")
        A(f"s_cmp_ge_u32 s30, {Opt.R}")
        A("s_cselect_b32 s30, s31, s30")
        A("s_lshl_b32 s31, s30, 7")
        A("s_add_u32 s60, s60, s31")
    A("s_lshl_b32 s62, s48, 12")
    A("s_mov_b32 m0, s62")
    A(f"s_mov_b32 s{SX+2}, {NB_X:#x}")
    A(f"s_mov_b32 s{SX+3}, 0x20000")
    A("s_waitcnt lgkmcnt(0)")
    A(f"s_mov_b64 s[{SX}:{SX+1}], s[{S_X}:{S_X+1}]")

    def dma_x(s):
        if s:
            A(f"s_add_u32 m0, s62, {(s % 3) * SLOT}")
        for i in range(4):
            A(f"buffer_load_dwordx4 v{VX+i}, s[{SX}:{SX+3}], s60 offen offset:{1024*i} lds")

    def dma_w(s):
        sl = (s % 3) * SLOT
        A(f"s_add_u32 m0, s63, {sl}")
        for i in range(4):
            A(f"buffer_load_dwordx4 v{VW+i}, s[{SW}:{SW+3}], s61 offen offset:{1024*i} lds")
        A(f"s_add_u32 m0, s63, {sl+4096}")
        A(f"buffer_load_dwordx4 v{VW+4}, s[{SW}:{SW+3}], s61 offen lds")
        if s < 9:
            if Opt.rot and s < Opt.R - 1:
                A("s_add_u32 s30, s30, 1")
                A(f"s_cmp_eq_u32 s30, {Opt.R}")
                A(f"s_cselect_b32 s31, {(-128*(Opt.R-1))&0xffffffff:#x}, s97")
                A(f"s_cselect_b32 s3, {(-(Opt.R-1)*64*3840)&0xffffffff:#x}, s96")
                A("s_cselect_b32 s30, 0, s30")
                A("s_add_u32 s60, s60, s31")
                A("s_add_u32 s61, s61, s3")
            elif Opt.rot and s == Opt.R - 1:
                A(f"s_sub_u32 s30, {Opt.R}, s30")
                A("s_lshl_b32 s31, s30, 7")
                A("s_mul_i32 s3, s30, s96")
                A("s_add_u32 s60, s60, s31")
                A("s_add_u32 s61, s61, s3")
            else:
                A("s_add_u32 s60, s60, 128")
                A(f"s_add_u32 s61, s61, {64*3840}")

    dma_x(0)
    A("s_cmp_eq_u32 s51, 0")
    A("s_cselect_b32 s56, 1120, 0")
    A("s_add_u32 s58, s51, 1")
    A(f"v_xor_b32 v15, s58, v1")
    A(f"v_cmp_gt_u32 vcc, 32, v1")
    A("s_movk_i32 s57, 3520")
    A(f"v_cndmask_b32 v16, v15, v1, vcc")
    for i in range(5):
        src = (1, 1, 16, 15, 15)[i]
        A(f"v_add_u32 v{t2}, {64*i}, v{src}")
        A(f"v_mul_u32_u24 v{t2}, 6554, v{t2}")
        A(f"v_lshlrev_b32 v{t3}, 4, v{src}")
        A(f"v_lshrrev_b32 v{t0}, 17, v{t2}")
        A(f"v_bfe_u32 v{t1}, v{t2}, 16, 1")
        A(f"v_mad_u32_u24 v{t0}, v{t0}, s57, v{t3}")
        A(f"v_mad_u32_u24 v{VW+i}, v{t1}, s56, v{t0}")
    A(f"v_lshlrev_b32 v{t3}, 4, v1")
    A(f"v_add_u32 v{VW+4}, 4096, v{VW+4}")
    A(f"s_mul_i32 s61, s48, {16*3840}")
    A("s_mul_i32 s57, s50, 160")
    A("s_add_u32 s58, s57, 1280")
    A("s_lshl_b32 s57, s57, 1")
    A("s_cmp_eq_u32 s51, 0")
    A("s_cselect_b32 s57, s58, s57")
    A("s_add_u32 s61, s61, s57")
    if Opt.rot:
        A(f"s_mov_b32 s96, {64*3840}")
        A("s_movk_i32 s97, 128")
        A("s_mul_i32 s31, s30, s96")
        A("s_add_u32 s61, s61, s31")
    A("s_mul_i32 s63, s48, 5120")
    A("s_add_u32 s63, s63, 16384")
    srd(A, SW, S_W, NB_W)
    dma_w(0)
    stamp(A, 2)
    A("s_mul_i32 s57, s50, 3200")
    A("s_lshl_b32 s57, s57, s51")
    A("s_lshl_b32 s58, s48, 11")
    A("s_add_u32 s57, s57, s58")
    srd(A, SP, S_WPHI, NB_WPHI)
    A(f"s_add_u32 m0, s58, {L_WP}")
    A(f"buffer_load_dwordx4 v{t3}, s[{SP}:{SP+3}], s57 offen lds")
    A(f"buffer_load_dwordx4 v{t3}, s[{SP}:{SP+3}], s57 offen offset:1024 lds")
    srd(A, SWS, S_WS, WS_SIZE)
    Lh = A.newlabel("L_noh")
    A("s_cmp_eq_u32 s51, 0")
    A(f"s_cbranch_scc1 {Lh}")
    A("s_mul_i32 s49, s98, 80")
    A("s_lshl_b32 s50, s99, 2")
    A("s_add_u32 s49, s49, s50")
    A("s_add_u32 s49, s49, s48")
    A("s_add_u32 s49, s49, 48")
    A(f"s_mul_i32 s56, s48, {CV_LDS}")
    A(f"s_add_u32 s56, s56, {L_QCV}")
    A("s_lshl_b32 s50, s49, 12")
    A.label(Lh)
    assert Opt.LA == 2
    issued = 0
    for s in range(10):
        while issued < min(s + Opt.LA - 1, 9):
            issued += 1
            dma_x(issued)
            dma_w(issued)
        if s == 0:
            Ls = A.newlabel("L_nosetup")
            A("s_cmp_ge_u32 s99, 8")
            A(f"s_cbranch_scc1 {Ls}")
            conv_setup(A)
            f0_lines(A, 49, 49, 12)
            A.label(Ls)
        if s == 9:
            tag_issue(A)
        A(f"s_waitcnt vmcnt({9*(issued-s)})")
        A("s_barrier")
        if s in (0, 3, 6, 9):
            stamp(A, 3 + s // 3)
    A("s_setprio 0")
    A("s_cmp_lt_u32 s99, 8")
    A("s_cbranch_scc1 L_conv")
    role_wo(A)


def role_wo(A):
    SO, SWO = 32, 36
    WR = 64
    A.label("L_wo")
    srd(A, SWO, S_WO, NB_WO)
    if Opt.wopf == "kv":
        Ls = A.newlabel("L_nopf")
        A("s_cmp_lt_u32 s99, 8")
        A(f"s_cbranch_scc1 {Ls}")
        A("s_lshl_b32 s52, s99, 2")
        A("s_add_u32 s52, s52, s48")
        A("s_sub_u32 s52, s52, 32")
        A("s_lshl_b32 s52, s52, 13")
        A(f"s_add_u32 s53, s52, {64*8192}")
        A("v_lshlrev_b32 v2, 7, v1")
        A(f"buffer_load_dword v24, v2, s[{SWO}:{SWO+3}], s52 offen")
        A(f"buffer_load_dword v25, v2, s[{SWO}:{SWO+3}], s53 offen")
        A.label(Ls)
    A("v_lshrrev_b32 v2, 2, v1")
    A("v_and_b32 v3, 3, v1")
    A("v_mul_u32_u24 v4, 1280, v2")
    A("v_lshl_add_u32 v4, v3, 4, v4")
    for i in range(1, 4):
        A(f"v_add_u32 v{4+i}, {i*(16*1280-1024)}, v4")
    A(f"v_add_u32 v8, {4*16*1280}, v4")
    A("s_lshr_b32 s50, s99, 2")
    A("s_sub_u32 s50, s50, 1")
    A("s_max_i32 s50, s50, 0")
    A("s_lshl_b32 s52, s50, 8")
    A("s_lshl_b32 s53, s48, 6")
    A("s_add_u32 s52, s52, s53")
    A("s_mov_b32 s51, s52")
    A("s_mul_i32 s53, s48, 20480")
    A("s_cmp_lt_u32 s99, 8")
    A(f"s_cselect_b32 s54, 0, {L_WOB}")
    A("s_add_u32 s53, s53, s54")

    def cbuf(c):
        return 5120 + ((c + 1) % 3) * 5120

    def chunk(c):
        b = cbuf(c)
        A(f"s_add_u32 m0, s53, {b}")
        for i in range(4):
            A(f"buffer_load_dwordx4 v{4+i}, s[{SWO}:{SWO+3}], s51 offen offset:{1024*i} lds")
        A(f"s_add_u32 m0, s53, {b+4096}")
        A(f"buffer_load_dwordx4 v8, s[{SWO}:{SWO+3}], s51 offen lds")
        A(f"s_add_u32 s51, s51, {80*1280}")

    Lj = A.newlabel("L_woj")
    chunk(0)
    A("s_cmp_lt_u32 s99, 8")
    A(f"s_cbranch_scc1 {Lj}")
    A("s_barrier")
    if Opt.lidle:
        lds_wait(A, 16, L_SYNC, 4, sleep=4)
    A.label(Lj)
    chunk(1)
    chunk(2)
    A("v_bfe_u32 v10, v1, 2, 2")
    A("v_lshrrev_b32 v11, 5, v1")
    A("v_and_b32 v12, 1, v1")
    A("v_lshlrev_b32 v12, 5, v12")
    A("v_bfe_u32 v13, v1, 4, 1")
    A("v_lshl_add_u32 v12, v13, 4, v12")
    A("v_bfe_u32 v13, v1, 1, 1")
    A("v_lshl_add_u32 v12, v13, 3, v12")
    A("v_lshl_add_u32 v12, v10, 6, v12")
    A("v_add_u32 v12, s53, v12")
    A("v_lshl_add_u32 v13, v11, 8, v12")
    A("v_mul_u32_u24 v14, 2560, v11")
    A("v_add_u32 v14, v14, v12")
    A("v_and_b32 v9, 31, v1")
    A("v_lshrrev_b32 v15, 4, v1")
    A("v_lshlrev_b32 v15, 7, v15")
    A("v_lshlrev_b32 v18, 4, v1")
    o_index(A)
    tag_check(A, 20)

    def take(c):
        b = cbuf(c)
        for hh in range(4):
            for half in range(2):
                A(f"ds_read_b64_tr_b16 {vr(WR+4*(4*c+hh)+2*half,2)}, v13 offset:{b+(20*hh+8*half)*64}")
        for half in range(2):
            A(f"ds_read_b64_tr_b16 {vr(WR+128+4*c+2*half,2)}, v14 offset:{b+(20*half+16)*64}")

    def first3():
        for c in range(3):
            A("s_waitcnt vmcnt(10)")
            take(c)
            A("s_waitcnt lgkmcnt(0)")
            chunk(c + 3)

    if Opt.wos == 1:
        first3()
    Lq1, Lq2 = A.newlabel("L_woq"), A.newlabel("L_woq")
    A("s_cmp_lt_u32 s99, 8")
    A(f"s_cbranch_scc1 {Lq1}")
    A("s_lshr_b32 s54, s62, 2")
    A("s_lshl_b32 s54, s54, 4")
    A("s_add_u32 s54, s54, s63")
    A("s_lshl_b32 s54, s54, 8")
    A("v_lshlrev_b32 v19, 7, v11")
    A(f"s_add_u32 s54, s54, {F2:#x}")
    A("s_lshl_b32 s55, s62, 4")
    A("s_add_u32 s55, s55, s63")
    A("s_mul_i32 s55, s55, 5120")
    poll(A, 16, 19, "s54", sleep=4)
    A("s_mov_b32 m0, s53")
    A("s_add_u32 s54, s55, 4096")
    for i in range(4):
        A(f"buffer_load_dwordx4 v18, s[{SWS}:{SWS+3}], s55 offen offset:{1024*i}{SC} lds")
    A("s_add_u32 m0, s53, 4096")
    A(f"buffer_load_dwordx4 v18, s[{SWS}:{SWS+3}], s54 offen{SC} lds")
    A("s_lshl_b32 s54, s48, 2")
    A(f"s_add_u32 s54, s54, {L_SYNC+16}")
    A("s_waitcnt vmcnt(0)")
    lds_arrive(A, 16, "s54")
    stamp(A, 14)
    if Opt.wos == 2:
        lds_wait(A, 16, L_SYNC, 4, sleep=4)
    A.label(Lq1)
    if Opt.wos == 2:
        first3()
    A("s_cmp_lt_u32 s99, 8")
    A(f"s_cbranch_scc1 {Lq2}")
    stamp(A, 7)
    A("s_lshl_b32 s54, s62, 2")
    A("s_add_u32 s54, s54, s48")
    A("s_mul_i32 s55, s54, 10240")
    A(f"s_add_u32 s55, s55, {WS_PART:#x}")
    A("s_lshl_b32 s54, s54, 9")
    A(f"s_add_u32 s54, s54, {F1:#x}")
    A("v_min_u32 v19, 20, v9")
    A("v_and_b32 v20, 32, v1")
    A("v_add_u32 v19, v19, v20")
    A("v_lshlrev_b32 v20, 3, v19")
    A("v_lshlrev_b32 v19, 4, v19")
    A("s_mul_i32 s57, s48, 5120")
    A("v_add_u32 v21, s57, v18")
    A("s_mov_b32 s59, 0xffff0000")
    lds_wait(A, 16, L_SYNC + 4, 4, sleep=2)
    PR = [24, 34, 44, 54]
    SM, TP = 224, 244

    def pload(p):
        so = "s55" if p < 1 else f"s{40+p}"
        A(f"buffer_load_dwordx4 {vr(PR[p],4)}, v19, s[{SWS}:{SWS+3}], {so} offen{SC}")
        A(f"buffer_load_dwordx4 {vr(PR[p]+4,4)}, v19, s[{SWS}:{SWS+3}], {so} offen offset:1024{SC}")
        A(f"buffer_load_dwordx2 {vr(PR[p]+8,2)}, v20, s[{SWS}:{SWS+3}], {so} offen offset:2048{SC}")

    for p in (1, 2, 3):
        A(f"s_add_u32 s{40+p}, s55, {2560*p}")
    if Opt.prog:
        L, Ld = A.newlabel("L_pg"), A.newlabel("L_pgd")
        A("s_mov_b64 s[56:57], 0")
        A("s_movk_i32 s101, 0x4000")
        A.label(L)
        A(f"buffer_load_dwordx2 v[16:17], v15, s[{SWS}:{SWS+3}], s54 offen{SC}")
        A("s_waitcnt vmcnt(0)")
        A(f"v_cmp_eq_u64 vcc, s[{TAG}:{TAG+1}], v[16:17]")
        A("s_andn2_b64 s[50:51], vcc, s[56:57]" if False else "s_andn2_b64 s[96:97], vcc, s[56:57]")
        A("s_mov_b64 s[56:57], vcc")
        for p in range(4):
            Ls = A.newlabel("L_pgs")
            A(f"s_bitcmp1_b64 s[96:97], {16*p}")
            A(f"s_cbranch_scc0 {Ls}")
            pload(p)
            A.label(Ls)
        A("s_cmp_eq_u64 s[56:57], -1")
        A(f"s_cbranch_scc1 {Ld}")
        A(f"s_sleep {Opt.psleep}")
        A("s_sub_u32 s101, s101, 1")
        A(f"s_cbranch_scc0 {L}")
        A("s_endpgm")
        A.label(Ld)
        stamp(A, 12)
        A("s_waitcnt vmcnt(0)")
    else:
        ppoll(A, 244, 15, "s54", sleep=Opt.psleep)
        stamp(A, 12)
        for p in range(4):
            pload(p)
    A("s_setprio 3")
    for p in range(4):
        A(f"s_waitcnt vmcnt({9-3*p})")
        for i in range(10):
            d = SM + 2 * i if p == 0 else TP + 2 * (i % 5)
            A(f"v_lshlrev_b32 v{d}, 16, v{PR[p]+i}")
            A(f"v_and_b32 v{d+1}, s59, v{PR[p]+i}")
            if p:
                A(f"v_pk_add_f32 {vr(SM+2*i,2)}, {vr(SM+2*i,2)}, {vr(d,2)}")
    for q in range(5):
        A(f"ds_write_b128 v21, {vr(SM+4*q,4)} offset:{1024*q}")
    lds_arrive(A, 16, L_SYNC + 8)
    A("s_setprio 0")
    stamp(A, 13)
    A.label(Lq2)
    if Opt.wos == 0:
        first3()
    for c in range(3, 8):
        A(f"s_waitcnt vmcnt({10 if c < 6 else 5*(7-c)})")
        take(c)
        if c < 5:
            A("s_waitcnt lgkmcnt(0)")
            chunk(c + 3)
    srd(A, SO, S_OUT, NB_OUT)
    A("s_and_b32 s54, s99, 3")
    A("s_lshl_b32 s55, s98, 2")
    A("s_add_u32 s54, s54, s55")
    A("s_lshr_b32 s55, s54, 1")
    A("s_lshl_b32 s55, s55, 12")
    A(f"s_add_u32 s55, s55, {F3:#x}")
    A("s_lshl_b32 s57, s48, 10")
    A("s_add_u32 s55, s55, s57")
    A("v_lshrrev_b32 v15, 3, v1")
    A("v_lshlrev_b32 v15, 7, v15")
    A("s_mul_i32 s57, s54, 81920")
    A(f"s_add_u32 s57, s57, {WS_O:#x}")
    A("s_lshr_b32 s58, s48, 1")
    A("s_mul_i32 s58, s58, 40960")
    A("s_and_b32 s59, s48, 1")
    A("s_lshl_b32 s59, s59, 12")
    A("s_add_u32 s58, s58, s59")
    A("s_add_u32 s57, s57, s58")
    A(f"s_add_u32 s58, s58, {L_OT}")
    A("v_mov_b32 v5, v18")
    A(f"v_add_u32 v6, {L_OT}, v5")
    A(f"v_add_u32 v7, {L_OT+40960}, v5")
    A("v_lshlrev_b32 v10, 3, v9")
    A("v_lshl_add_u32 v10, v11, 9, v10")
    A(f"v_add_u32 v10, {L_OT+32768}, v10")
    A("s_mul_i32 s56, s48, 5120")
    A("s_waitcnt lgkmcnt(0)")
    A("v_mul_u32_u24 v12, 80, v9")
    A("v_lshl_add_u32 v12, v11, 5, v12")
    A("v_add_u32 v12, s56, v12")
    A("v_mul_u32_u24 v13, 80, v2")
    A("v_lshl_add_u32 v13, v3, 4, v13")
    A("v_add_u32 v13, s56, v13")
    A("v_mul_u32_u24 v14, 2560, v2")
    A("v_lshl_add_u32 v14, v3, 4, v14")
    A(f"s_mul_i32 s59, s54, {64*2560}")
    A("s_add_u32 s59, s59, s52")
    lds_wait(A, 16, L_SYNC + 12, 4, sleep=2)
    stamp(A, 8)
    ppoll(A, 48, 15, "s55", sleep=Opt.psleep)
    A("s_barrier")
    stamp(A, 9)
    def oissue(k):
        A(f"s_add_u32 m0, s58, {8192*k}")
        for i in range(4):
            A(f"buffer_load_dwordx4 v5, s[{SWS}:{SWS+3}], s57 offen offset:{1024*i}{SC} lds")
        if k < 4:
            A("s_add_u32 s57, s57, 8192")

    for k in range(Opt.oahead):
        oissue(k)
    if Ctx.stamps:
        A("s_waitcnt lgkmcnt(0)")
    ACC = (16, 32)
    OFB = 224
    T = Lgkm(A)

    def rdx(f):
        if f % 8 == 0:
            k = f // 8
            A(f"s_waitcnt vmcnt({4*(min(k+Opt.oahead,5)-k-1)})")
            A("s_barrier")
            if k + Opt.oahead < 5:
                oissue(k + Opt.oahead)
        for t in range(2):
            d = OFB + 4 * ((2 * f + t) % 8)
            if f < 32:
                T.issue(f"ds_read_b128 {vr(d,4)}, v{6+t} offset:{1024*f}", (f, t))
            else:
                a = f - 32
                T.issue(f"ds_read_b64 {vr(d,2)}, v10 offset:{40960*t + 1024*a}")
                T.issue(f"ds_read_b64 {vr(d+2,2)}, v10 offset:{40960*t + 1024*a + 256}", (f, t))

    for f in range(3):
        rdx(f)
    for f in range(40):
        for t in range(2):
            T.wait((f, t))
            c = vr(ACC[t], 16) if f else "0"
            A(f"v_mfma_f32_32x32x16_bf16 {vr(ACC[t],16)}, {vr(WR+4*f,4)}, {vr(OFB+4*((2*f+t)%8),4)}, {c}")
            if t == 0 and f + 3 < 40:
                rdx(f + 3)
    stamp(A, 10)
    for t in range(2):
        for i in range(8):
            A(f"v_cvt_pk_bf16_f32 v{48+8*t+i}, v{ACC[t]+2*i}, v{ACC[t]+2*i+1}")
        for i in range(2):
            A(f"ds_write_b128 v12, {vr(48+8*t+4*i,4)} offset:{2560*t+16*i}")
    A("s_waitcnt lgkmcnt(0)")
    for i in range(4):
        A(f"ds_read_b128 {vr(64+4*i,4)}, v13 offset:{1280*i}")
    for i in range(4):
        A(f"s_waitcnt lgkmcnt({3-i})")
        A(f"buffer_store_dwordx4 {vr(64+4*i,4)}, v14, s[{SO}:{SO+3}], s59 offen{Opt.osc}")
        if i < 3:
            A(f"s_add_u32 s59, s59, {16*2560}")
    stamp(A, 11)
    end_wave(A, True)


def role_compute(A):
    ACC = 16
    WF = (96, 116)
    XF = (136, 152)
    XA, WA, AD = 168, 172, 182
    t0, t1, t2, t3 = 11, 12, 13, 14
    for i in range(80):
        A(f"v_mov_b32 v{ACC+i}, 0")
    A(f"v_and_b32 v{t0}, 255, v0")
    A(f"v_lshlrev_b32 v{t0}, 4, v{t0}")
    A(f"v_add_u32 v{t0}, {L_Z}, v{t0}")
    A(f"ds_write_b128 v{t0}, {vr(ACC,4)}")
    A(f"ds_write_b128 v{t0}, {vr(ACC,4)} offset:64")
    A("s_lshr_b32 s52, s48, 1")
    A("s_and_b32 s53, s48, 1")
    S16, G4, R4, C4 = 183, 184, 185, 186
    A(f"v_and_b32 v{S16}, 15, v1")
    A(f"v_lshrrev_b32 v{G4}, 4, v1")
    A(f"v_bfe_u32 v{R4}, v1, 2, 2")
    A(f"v_and_b32 v{C4}, 3, v1")
    A(f"v_bfe_u32 v{t2}, v1, 1, 3")
    A(f"v_xor_b32 v{t2}, v{t2}, v{G4}")
    A(f"v_lshlrev_b32 v{t2}, 4, v{t2}")
    A(f"v_lshl_add_u32 v{t2}, v{S16}, 7, v{t2}")
    A("s_lshl_b32 s54, s52, 13")
    A(f"v_add_u32 v{XA}, s54, v{t2}")
    A(f"v_xor_b32 v{XA+1}, 64, v{XA}")
    A(f"v_add_u32 v{XA+2}, {2*SLOT}, v{XA}")
    A(f"v_add_u32 v{XA+3}, {2*SLOT}, v{XA+1}")
    A("s_cmp_eq_u32 s51, 0")
    A("s_cselect_b32 s55, 80, 0")
    A("s_mul_i32 s56, s53, 80")
    A("s_lshl_b32 s56, s56, s51")
    A(f"v_lshrrev_b32 v{t0}, 1, v{C4}")
    A(f"v_mul_u32_u24 v{t0}, s55, v{t0}")
    A(f"v_mad_u32_u24 v{t0}, v{C4}, 40, v{t0}")
    A(f"v_add_u32 v{t0}, s56, v{t0}")
    A(f"v_and_b32 v{t1}, 1, v{G4}")
    A("s_add_u32 s57, s51, 4")
    A(f"v_lshlrev_b32 v{t1}, s57, v{t1}")
    A(f"v_lshl_add_u32 v{t2}, v{G4}, 3, v{R4}")
    A(f"v_mul_u32_u24 v{t2}, 320, v{t2}")
    A(f"v_add_u32 v{t2}, 16384, v{t2}")
    for t in range(5):
        A(f"v_add_u32 v{t3}, {8*t}, v{t0}")
        A(f"v_xor_b32 v{t3}, v{t3}, v{t1}")
        A(f"v_add_u32 v{WA+t}, v{t2}, v{t3}")
        A(f"v_add_u32 v{WA+5+t}, {2*SLOT}, v{WA+t}")
    HD = 187
    A("s_cmp_eq_u32 s51, 0")
    A("s_cselect_b32 s55, 1, 3")
    A("s_add_u32 s57, s51, 1")
    A("s_lshl_b32 s56, s53, s57")
    A(f"v_and_b32 v{HD}, s55, v{G4}")
    A(f"v_add_u32 v{HD}, s56, v{HD}")
    A(f"v_mul_u32_u24 v{t0}, 800, v{HD}")
    A(f"v_mad_u32_u24 v{t0}, v{R4}, 40, v{t0}")
    A(f"v_add_u32 v{t0}, {L_WP}, v{t0}")
    A(f"v_mov_b32 v{t1}, {L_Z}")
    A(f"v_cmp_eq_u32 vcc, v{C4}, v{G4}")
    A(f"v_cndmask_b32 v{AD}, v{t1}, v{t0}, vcc")
    A(f"v_lshrrev_b32 v{t0}, 5, v1")
    A(f"v_lshl_add_u32 v{t0}, v{t0}, 4, v{S16}")
    A("s_lshl_b32 s57, s52, 6")
    A(f"v_add_u32 v{t0}, s57, v{t0}")
    A(f"v_mul_u32_u24 v{t1}, 208, v{t0}")
    A(f"v_mad_u32_u24 v2, v{HD}, 48, v{t1}")
    A(f"v_add_u32 v2, {L_V}, v2")
    A(f"v_mul_u32_u24 v{t3}, 80, v{HD}")
    A(f"v_mul_u32_u24 v{t2}, 336, v{t0}")
    A(f"v_add_u32 v3, v{t3}, v{t2}")
    A(f"v_lshrrev_b32 v{t1}, 5, v1")
    A(f"v_lshl_add_u32 v9, v{t1}, 3, v{R4}")
    A(f"v_bfe_u32 v{t2}, v1, 4, 1")
    A(f"v_bfe_u32 v{t3}, v1, 1, 1")
    A(f"v_lshl_add_u32 v10, v{t2}, 1, v{t3}")
    A(f"v_and_b32 v15, 1, v1")
    A(f"v_mul_u32_u24 v{t0}, 336, v9")
    A(f"v_mad_u32_u24 v{t1}, v15, 5, v10")
    A(f"v_lshl_add_u32 v{t0}, v{t1}, 3, v{t0}")
    A("s_mul_i32 s57, s48, 80")
    A(f"v_add_u32 v6, s57, v{t0}")
    A(f"v_lshl_add_u32 v{t0}, v10, 1, v15")
    A("s_mul_i32 s57, s48, 6")
    A(f"v_min_u32 v{t1}, 5, v{t0}")
    A(f"v_add_u32 v{t1}, s57, v{t1}")
    A(f"v_mul_u32_u24 v{t0}, 208, v9")
    A(f"v_lshl_add_u32 v{t0}, v{t1}, 3, v{t0}")
    A(f"v_add_u32 v7, {L_V}, v{t0}")
    WPF = 188
    for tp in range(5):
        A(f"v_mov_b32 v{WPF+12*tp+10}, 0")
        A(f"v_mov_b32 v{WPF+12*tp+11}, 0")
    A(f"s_mov_b32 s60, {LOG2E:#x}")
    A(f"s_mov_b32 s61, {LOG2E:#x}")
    A("s_waitcnt lgkmcnt(0)")
    srd(A, SWS, S_WS, WS_SIZE)
    if Opt.fwarm:
        o_index(A)
        A("s_lshl_b32 s54, s62, 2")
        A("s_add_u32 s54, s54, s48")
        A("s_lshl_b32 s54, s54, 2")
        A("s_lshr_b32 s55, s62, 2")
        A("s_lshl_b32 s55, s55, 4")
        A("s_add_u32 s55, s55, s63")
        A("s_lshl_b32 s55, s55, 1")
        A("s_add_u32 s55, s55, 508")
        A("s_and_b32 s56, s99, 2")
        A("s_lshl_b32 s57, s98, 2")
        A("s_add_u32 s56, s56, s57")
        A("s_lshl_b32 s56, s56, 4")
        A("s_lshl_b32 s57, s48, 3")
        A("s_add_u32 s56, s56, s57")
        A("s_add_u32 s56, s56, 1016")
        A(f"v_mov_b32 v{t0}, s54")
        A(f"v_mov_b32 v{t1}, s55")
        A(f"v_mov_b32 v{t2}, s56")
        A("v_cmp_gt_u32 vcc, 16, v1")
        A(f"v_cndmask_b32 v{t1}, v{t1}, v{t0}, vcc")
        A("v_cmp_gt_u32 vcc, 32, v1")
        A(f"v_cndmask_b32 v{t1}, v{t2}, v{t1}, vcc")
        A(f"v_lshrrev_b32 v{t0}, 2, v1")
        A(f"v_add_u32 v{t0}, v{t0}, v{t1}")
        A(f"v_and_b32 v{t0}, 2047, v{t0}")
        A(f"v_lshlrev_b32 v{t0}, 7, v{t0}")
        A(f"s_mov_b32 s54, {WS_FLAG:#x}")
        A(f"buffer_load_dword v4, v{t0}, s[{SWS}:{SWS+3}], s54 offen{SC}")
    A("s_setprio 2")

    T = Lgkm(A)

    def reads(s, ks):
        sl, b = s % 3, ks
        L = []
        for t in range(5):
            for half in range(2):
                L.append((f"ds_read_b64_tr_b16 {vr(WF[b]+4*t+2*half,2)}, v{WA+5*(sl>>1)+t} offset:{(sl&1)*SLOT + (32*ks+4*half)*320}",
                          ("w", s, ks, t) if half else None))
            if t == 0:
                for rho in range(4):
                    L.append((f"ds_read_b128 {vr(XF[b]+4*rho,4)}, v{XA+2*(sl>>1)+ks} offset:{(sl&1)*SLOT + 2048*rho}", ("x", s, ks, rho)))
        return L

    wp = []
    for tp in range(5):
        for dq in range(5):
            wp.append((f"ds_read_b64_tr_b16 {vr(WPF+12*tp+2*dq,2)}, v{AD} offset:{160*dq+8*tp}", None))

    A("s_barrier")
    stampw(A, 3)
    for x, tg in reads(0, 0):
        T.issue(x, tg)
    for s in range(10):
        for ks in range(2):
            last = (s == 9 and ks == 1)
            nxt = [] if last else (reads(s, 1) if ks == 0 else reads(s + 1, 0))
            if ks == 0 and s < 5:
                nxt += wp[5 * s:5 * s + 5]
            start = 0 if ks == 0 else Opt.bpos
            for k in range(20):
                t, rho = k // 4, k % 4
                T.wait(("w", s, ks, t), ("x", s, ks, rho))
                a_ = ACC + 20 * rho + 4 * t
                A(f"v_mfma_f32_16x16x32_bf16 {vr(a_,4)}, {vr(WF[ks]+4*t,4)}, {vr(XF[ks]+4*rho,4)}, {vr(a_,4)}")
                if ks == 1 and k == start:
                    T.all()
                    A("s_barrier")
                if k >= start and nxt:
                    T.issue(*nxt.pop(0))
            assert not nxt
    stamp(A, 4)
    if Opt.fwarm:
        A("s_waitcnt vmcnt(0)")
    tag_issue(A)
    PS = (96, 106, 118, 128)
    E, F, TT_ = 140, 160, 248

    def cvt(rho):
        L = [f"v_cvt_pk_bf16_f32 v{PS[rho]+i}, v{ACC+20*rho+2*i}, v{ACC+20*rho+2*i+1}" for i in range(10)]
        if rho & 1:
            L += [f"v_mov_b32 v{PS[rho]+10}, 0x3f803f80", f"v_mov_b32 v{PS[rho]+11}, 0x3f803f80"]
        return L

    def phi_mfma(src, acc):
        L = []
        for u in range(3):
            for tp in range(5):
                c = vr(acc + 4 * tp, 4) if u else "0"
                L.append(f"v_mfma_f32_16x16x32_bf16 {vr(acc+4*tp,4)}, {vr(WPF+12*tp+4*u,4)}, {vr(src+4*u,4)}, {c}")
        return L

    def weave(mf, va, per):
        mf, va = list(mf), list(va)
        while mf or va:
            if mf:
                A(mf.pop(0))
            for _ in range(per):
                if va:
                    A(va.pop(0))

    for x in cvt(0) + cvt(1):
        A(x)
    Lq = A.newlabel("L_q")
    A("s_cmp_eq_u32 s51, 0")
    A(f"s_cbranch_scc0 {Lq}")
    mq = A.mark()
    for i in range(10):
        A(f"v_permlane32_swap_b32 v{PS[0]+i}, v{PS[1]+i}")
    weave(phi_mfma(PS[0], ACC), cvt(2) + cvt(3) + [f"v_permlane32_swap_b32 v{PS[2]+i}, v{PS[3]+i}" for i in range(10)], 2)
    vw = [f"ds_write_b128 v2, {vr(PS[1+2*sg]+4*i,4)} offset:{32*208*sg+16*i}" for sg in range(2) for i in range(3)]

    def body(parts):
        mm, fm, ex, sm, fin, tail = parts
        L = fm[:4]
        fm2, sm2 = list(fm[4:]), list(sm)
        for k in range(0, 40, 4):
            L += ex[k:k + 2]
            if fm2:
                L.append(fm2.pop(0))
            L += ex[k + 2:k + 4]
            if fm2:
                L.append(fm2.pop(0))
            if k >= 8:
                L += [sm2.pop(0), sm2.pop(0)]
        return L + sm2 + fin

    def tail_list(tail, wr):
        L = [tail[0][0], tail[1][0]]
        for j in range(20):
            if j + 2 < 20:
                L.append(tail[j + 2][0])
            L.append(tail[j][1])
            if wr and j % 4 == 3:
                L.append(wr[j // 4])
        return L

    s0 = softmax_parts(ACC, E, F, TT_, 56)
    s1 = softmax_parts(ACC + 20, E, F, TT_, 76)
    w0 = [f"ds_write_b128 v3, {vr(56+4*i,4)} offset:{16*i}" for i in range(5)]
    w1 = [f"ds_write_b128 v3, {vr(76+4*i,4)} offset:{32*336+16*i}" for i in range(5)]
    m1 = phi_mfma(PS[2], ACC + 20)
    for x in m1[:4]:
        A(x)
    weave(m1[4:], s0[0], 2)
    stamp(A, 2)
    for x in merge(body(s0), vw, 12) + tail_list(s0[5], w0):
        A(x)
    stamp(A, 13)
    for x in s1[0] + body(s1) + tail_list(s1[5], w1):
        A(x)
    stamp(A, 5)
    lds_arrive(A, 10, L_SYNC)
    A("s_lshl_b32 s57, s50, 2")
    A("s_add_u32 s57, s57, s48")
    A("s_lshl_b32 s57, s57, 4")
    A("s_add_u32 s57, s57, s49")
    A("s_lshl_b32 s59, s57, 7")
    A(f"s_add_u32 s59, s59, {F1:#x}")
    A("s_mul_i32 s57, s57, 2560")
    A(f"s_add_u32 s57, s57, {WS_PART:#x}")
    A("v_lshlrev_b32 v2, 4, v1")
    A("v_lshlrev_b32 v3, 3, v1")
    lds_wait(A, 10, None, 4)
    tag_check(A, 12)
    FA = 64
    T = Lgkm(A)
    for u in range(10):
        if u < 8:
            for half in range(2):
                o = (16 * u + 4 * half)
                T.issue(f"ds_read_b64_tr_b16 {vr(FA+12*u+2*half,2)}, v6 offset:{o*336}")
                T.issue(f"ds_read_b64_tr_b16 {vr(FA+12*u+4+2*half,2)}, v6 offset:{o*336+32}")
                T.issue(f"ds_read_b64_tr_b16 {vr(FA+12*u+8+2*half,2)}, v7 offset:{o*208}", u)
        if u >= 2:
            uu = u - 2
            T.wait(uu)
            for TT in range(2):
                c = vr(ACC + 16 * TT, 16) if uu else "0"
                A(f"v_mfma_f32_32x32x16_bf16 {vr(ACC+16*TT,16)}, {vr(FA+12*uu+4*TT,4)}, {vr(FA+12*uu+8,4)}, {c}")
    o_index(A)
    for i in range(10):
        A(f"v_cvt_pk_bf16_f32 v{48+i}, v{ACC+2*i}, v{ACC+2*i+1}")
    A(f"buffer_store_dwordx2 v[56:57], v3, s[{SWS}:{SWS+3}], s57 offen offset:2048{SC}")
    A("s_mov_b32 exec_lo, 0x00ffffff")
    A("s_mov_b32 exec_hi, 0x00ffffff")
    A(f"buffer_store_dwordx4 v[48:51], v2, s[{SWS}:{SWS+3}], s57 offen{SC}")
    A(f"buffer_store_dwordx4 v[52:55], v2, s[{SWS}:{SWS+3}], s57 offen offset:1024{SC}")
    A("s_mov_b64 exec, -1")
    stamp(A, 6)
    role_o(A)
    end_wave(A)
    A.label(Lq)
    hq = A.mark()
    pre = [f"s_mov_b32 s57, {64*1280}",
           f"v_mul_lo_u32 v{t1}, s57, v{HD}",
           f"v_lshl_add_u32 v2, v{S16}, 4, v{t1}",
           f"v_lshl_add_u32 v3, v{S16}, 3, v{t1}",
           "s_lshl_b32 s58, s49, 1",
           "s_add_u32 s58, s58, s52",
           "s_lshl_b32 s59, s50, 1",
           "s_add_u32 s59, s59, s53",
           "s_lshl_b32 s59, s59, 5",
           "s_add_u32 s59, s59, s58",
           "s_lshl_b32 s59, s59, 7",
           f"s_add_u32 s59, s59, {F2:#x}",
           "s_lshl_b32 s57, s50, 8",
           "s_add_u32 s57, s57, s58",
           "s_mul_i32 s57, s57, 2560"]
    A("s_nop 0")
    OQ = 140

    def outq(rho):
        x, o = ACC + 20 * rho, OQ + 10 * rho
        off = 1280 * (rho >> 1)
        L = [f"v_cvt_pk_bf16_f32 v{o+i}, v{x+2*i}, v{x+2*i+1}" for i in range(10)]
        L.append(f"buffer_store_dwordx4 {vr(o,4)}, v2, s[{SWS}:{SWS+3}], s57 offen offset:{off+256*(rho&1)}{SC}")
        L.append(f"buffer_store_dwordx4 {vr(o+4,4)}, v2, s[{SWS}:{SWS+3}], s57 offen offset:{off+512+256*(rho&1)}{SC}")
        L.append(f"buffer_store_dwordx2 {vr(o+8,2)}, v3, s[{SWS}:{SWS+3}], s57 offen offset:{off+1024+128*(rho&1)}{SC}")
        return L

    weave(phi_mfma(PS[0], ACC), pre + cvt(2), 2)
    m = phi_mfma(PS[1], ACC + 20)
    weave(m[:6], cvt(3), 2)
    weave(m[6:], outq(0), 2)
    m = phi_mfma(PS[2], ACC + 40)
    weave(m[:6], [], 0)
    weave(m[6:], outq(1), 2)
    m = phi_mfma(PS[3], ACC + 60)
    weave(m[:6], [], 0)
    weave(m[6:], outq(2), 2)
    for x in outq(3):
        A(x)
    stamp(A, 6)
    tag_check(A, 10)
    set_flag(A, 10, "s59")
    stamp(A, 7)
    A.check_seam(mq, hq)
    lds_arrive(A, 14, L_SYNC)
    lds_wait(A, 14, None, 4, sleep=1)
    A("s_setprio 0")
    A("s_cmp_lt_u32 s99, 4")
    A("s_cbranch_scc1 L_wo")
    if Opt.wopf == "qs":
        srd(A, 36, S_WO, NB_WO)
        A("s_sub_u32 s57, s99, 4")
        A("s_lshl_b32 s57, s57, 2")
        A("s_add_u32 s57, s57, s48")
        A("s_lshl_b32 s57, s57, 13")
        A(f"s_add_u32 s57, s57, {240*1280}")
        A("v_lshlrev_b32 v8, 7, v1")
        for i in range(4):
            A(f"buffer_load_dword v{200+i}, v8, s[36:39], s57 offen")
            A(f"s_add_u32 s57, s57, {16*8192}")
    A("s_cmp_lt_u32 s48, 2")
    A("s_cbranch_scc1 L_post")
    end_wave(A)


def role_o(A):
    NT = 4
    RAW, X, PQ = 64, 104, 128
    A("s_mul_i32 s53, s48, 20480")
    A(f"s_add_u32 s53, s53, {L_WOB}")
    A("v_and_b32 v4, 31, v1")
    A("v_lshl_add_u32 v5, v4, 4, s53")
    A("v_lshl_add_u32 v6, v4, 3, s53")
    A("v_and_b32 v7, 32, v1")
    A("v_lshlrev_b32 v7, 26, v7")
    A("s_lshl_b32 s54, s48, 2")
    A(f"s_add_u32 s54, s54, {L_SYNC+16}")
    A("s_mov_b32 s58, 0xffff0000")
    for t in range(NT):
        A(f"v_mov_b32 v{PQ+12*t+10}, 0")
        A(f"v_mov_b32 v{PQ+12*t+11}, 0")
    A("s_mov_b32 s96, s59")
    A("s_mov_b32 s97, 0")
    if Opt.dflag:
        Lgo = A.newlabel("L_go")
        A("v_mov_b32 v14, s54")
        A("ds_read_b32 v15, v14")
        A("s_waitcnt lgkmcnt(0)")
        A("v_cmp_le_u32 vcc, 1, v15")
        A(f"s_cbranch_vccnz {Lgo}")
    set_flag(A, 10, "s96")
    lds_arrive(A, 14, L_SYNC + 4)
    A("s_mov_b32 s97, 1")
    stamp(A, 7)
    lds_wait(A, 14, "s54", 1)
    if Opt.dflag:
        A.label(Lgo)
    stampw(A, 8)
    T = Lgkm(A)
    for t in range(NT):
        T.issue(f"ds_read_b128 {vr(RAW+10*t,4)}, v5 offset:{1280*t}")
        T.issue(f"ds_read_b128 {vr(RAW+10*t+4,4)}, v5 offset:{1280*t+512}")
        T.issue(f"ds_read_b64 {vr(RAW+10*t+8,2)}, v6 offset:{1280*t+1024}", t)
    A("s_lshl_b32 s57, s63, 2")
    A("s_mul_i32 s54, s57, 40960")
    A(f"s_add_u32 s54, s54, {WS_O:#x}")
    A("s_lshl_b32 s59, s62, 8")
    A("s_add_u32 s59, s59, s54")
    A("s_add_u32 s59, s59, 32768")
    A("s_lshl_b32 s57, s62, 10")
    A("s_add_u32 s54, s54, s57")
    A("s_lshl_b32 s50, s63, 5")
    A("s_add_u32 s50, s50, s62")
    A("s_lshl_b32 s50, s50, 7")
    A(f"s_add_u32 s50, s50, {F3:#x}")
    mx, se = 124, 126
    for t in range(NT):
        T.wait(t)
        for i in range(10):
            A(f"v_lshl_add_u32 v{X+2*i}, v{RAW+10*t+i}, 16, v7")
            A(f"v_bitop3_b32 v{X+2*i+1}, v{RAW+10*t+i}, s58, v7 bitop3:0x6a")
        A(f"v_max3_f32 v{mx}, v{X}, v{X+1}, v{X+2}")
        A(f"v_max3_f32 v{mx+1}, v{X+3}, v{X+4}, v{X+5}")
        for i in range(6, 18, 4):
            A(f"v_max3_f32 v{mx}, v{mx}, v{X+i}, v{X+i+1}")
            A(f"v_max3_f32 v{mx+1}, v{mx+1}, v{X+i+2}, v{X+i+3}")
        A(f"v_max3_f32 v{mx}, v{mx}, v{X+18}, v{X+19}")
        A(f"v_max_f32 v{mx}, v{mx}, v{mx+1}")
        A(f"v_mul_f32 v{mx}, s60, v{mx}")
        for i in range(0, 20, 2):
            A(f"v_pk_fma_f32 {vr(X+i,2)}, {vr(X+i,2)}, s[60:61], {vr(mx,2)} op_sel_hi:[1,1,0] neg_lo:[0,0,1] neg_hi:[0,0,1]")
        if Opt.dflag and t == 1:
            Lsk = A.newlabel("L_sk")
            A("s_cmp_eq_u32 s97, 1")
            A(f"s_cbranch_scc1 {Lsk}")
            set_flag(A, 10, "s96")
            lds_arrive(A, 14, L_SYNC + 4)
            stampw(A, 7)
            A.label(Lsk)
        for i in range(20):
            A(f"v_exp_f32 v{X+i}, v{X+i}")
        A(f"v_pk_add_f32 {vr(se,2)}, {vr(X,2)}, {vr(X+2,2)}")
        A(f"v_pk_add_f32 {vr(mx,2)}, {vr(X+4,2)}, {vr(X+6,2)}")
        for i in range(8, 20, 4):
            A(f"v_pk_add_f32 {vr(se,2)}, {vr(se,2)}, {vr(X+i,2)}")
            A(f"v_pk_add_f32 {vr(mx,2)}, {vr(mx,2)}, {vr(X+i+2,2)}")
        A(f"v_pk_add_f32 {vr(se,2)}, {vr(se,2)}, {vr(mx,2)}")
        A(f"v_add_f32 v{se}, v{se}, v{se+1}")
        A(f"v_rcp_f32 v{se}, v{se}")
        for i in range(0, 20, 2):
            A(f"v_pk_mul_f32 {vr(X+i,2)}, {vr(X+i,2)}, {vr(se,2)} op_sel_hi:[1,0]")
        for i in range(10):
            A(f"v_cvt_pk_bf16_f32 v{PQ+12*t+i}, v{X+2*i}, v{X+2*i+1}")
    stamp(A, 9)
    KF = 16
    A(f"v_mov_b32 v{KF+10}, 0")
    A(f"v_mov_b32 v{KF+11}, 0")
    lds_wait(A, 14, L_SYNC + 8, 4)
    stampw(A, 10)
    PR = 32
    T = Lgkm(A)
    for q in range(5):
        for p in range(4):
            T.issue(f"ds_read_b128 {vr(PR+16*q+4*p,4)}, v2 offset:{5120*p+1024*q}", q)
    for q in range(5):
        T.wait(q)
        b = PR + 16 * q
        for h in (0, 2):
            A(f"v_pk_add_f32 {vr(b+h,2)}, {vr(b+h,2)}, {vr(b+4+h,2)}")
            A(f"v_pk_add_f32 {vr(b+8+h,2)}, {vr(b+8+h,2)}, {vr(b+12+h,2)}")
        for h in (0, 2):
            A(f"v_pk_add_f32 {vr(b+h,2)}, {vr(b+h,2)}, {vr(b+8+h,2)}")
        for h in (0, 2):
            A(f"v_cvt_pk_bf16_f32 v{KF+2*q+h//2}, v{b+h}, v{b+h+1}")
    D = [176, 192, 208, 224]
    OP = [32, 40, 48, 56]

    def mf(t):
        for u in range(3):
            c = vr(D[t], 16) if u else "0"
            A(f"v_mfma_f32_32x32x16_bf16 {vr(D[t],16)}, {vr(KF+4*u,4)}, {vr(PQ+12*t+4*u,4)}, {c}")

    if Opt.dA:
        A(f"s_sleep {Opt.dA}")
    mf(0)
    mf(1)
    for t in range(NT):
        d, o = D[t], OP[t]
        A(f"v_add_f32 v10, 0x358637bd, v{d+12}")
        A("v_rcp_f32 v10, v10")
        if t + 2 < NT:
            mf(t + 2)
        for i in range(12):
            A(f"v_mul_f32 v{d+i}, v10, v{d+i}")
        for i in range(6):
            A(f"v_cvt_pk_bf16_f32 v{o+i}, v{d+2*i}, v{d+2*i+1}")
        A(f"buffer_store_dwordx4 {vr(o,4)}, v2, s[{SWS}:{SWS+3}], s54 offen{SC}")
        A("s_mov_b32 exec_hi, 0")
        A(f"buffer_store_dwordx2 {vr(o+4,2)}, v3, s[{SWS}:{SWS+3}], s59 offen{SC}")
        A("s_mov_b64 exec, -1")
        if t < NT - 1:
            A("s_add_u32 s54, s54, 40960")
            A("s_add_u32 s59, s59, 40960")
    stamp(A, 11)
    set_flag(A, 12, "s50")
    lds_arrive(A, 16, L_SYNC + 12)
    stamp(A, 12)


def b_channel(A):
    A("s_mul_i32 s49, s98, 80")
    A("s_sub_u32 s50, s99, 24")
    A("s_mul_i32 s50, s50, 6")
    A("s_add_u32 s49, s49, s50")
    A("s_add_u32 s49, s49, s48")
    A("s_cmp_ge_u32 s48, 6")
    A("s_cselect_b32 s50, 2, 0")
    A("s_sub_u32 s49, s49, s50")
    A(f"s_mul_i32 s56, s48, {CV_LDS}")


def conv_load_h(A, v):
    SH = 40
    srd(A, SH, S_SSK, NB_SSK)
    A(f"v_lshlrev_b32 v{v}, 4, v1")
    A("s_lshl_b32 s50, s49, 12")
    A("s_add_u32 m0, s56, 64")
    for i in range(4):
        A(f"buffer_load_dwordx4 v{v}, s[{SH}:{SH+3}], s50 offen offset:{1024*i}{Opt.nt_s} lds")


def f0_lines(A, c0, c1, v):
    A(f"s_lshr_b32 s52, s{c0}, 6")
    A("s_mul_i32 s52, s52, 419431")
    A("s_lshr_b32 s52, s52, 16")
    A(f"s_lshr_b32 s53, s{c1}, 6")
    A("s_mul_i32 s53, s53, 419431")
    A("s_add_u32 s53, s53, 406324")
    A("s_lshr_b32 s53, s53, 16")
    A(f"v_lshrrev_b32 v{v}, 2, v1")
    A(f"v_add_u32 v{v}, s52, v{v}")
    A(f"v_min_u32 v{v}, s53, v{v}")
    A(f"v_lshlrev_b32 v{v}, 7, v{v}")
    A(f"s_mov_b32 s52, {F0:#x}")


def role_pre(A):
    SK, SV, SS = 32, 36, 40
    t0, t1, t2 = 2, 3, 4
    A("s_lshl_b32 s49, s98, 3")
    A("s_add_u32 s49, s49, s99")
    A("s_sub_u32 s49, s49, 24")
    A("s_mul_i32 s49, s49, 5")
    A("s_add_u32 s49, s49, s48")
    A("s_and_b32 s50, s49, 31")
    A("s_lshr_b32 s51, s49, 5")
    A(f"s_mul_i32 s52, s50, {64*1280}")
    A("s_lshl_b32 s53, s51, 7")
    A("s_add_u32 s52, s52, s53")
    A(f"v_lshrrev_b32 v{t0}, 3, v1")
    A(f"v_and_b32 v{t1}, 7, v1")
    A(f"v_mul_u32_u24 v{t2}, {8*1280}, v{t0}")
    A(f"v_lshl_add_u32 v{t2}, v{t1}, 4, v{t2}")
    A(f"v_add_u32 v5, s52, v{t2}")
    A(f"v_subrev_u32 v6, {3*1280}, v5")
    A(f"v_subrev_u32 v7, {2*1280}, v5")
    A(f"v_subrev_u32 v8, {1280}, v5")
    A(f"v_lshlrev_b32 v9, 6, v{t1}")
    A("s_lshl_b32 s54, s51, 9")
    A(f"s_movk_i32 s55, {4*1280}")
    A("s_waitcnt lgkmcnt(0)")
    srd(A, SK, S_BK, NB_X)
    srd(A, SV, S_BV, NB_X)
    srd(A, SS, S_SH, NB_SH)
    WR, KR, VR = 16, 32, 76
    for i in range(4):
        A(f"buffer_load_dwordx4 {vr(WR+4*i,4)}, v9, s[{SS}:{SS+3}], s54 offen offset:{16*i}")
    for i in range(3):
        A(f"buffer_load_dwordx4 {vr(KR+4*i,4)}, v{6+i}, s[{SK}:{SK+3}], 0 offen{Opt.nt_s}")

    order = []

    def ld(kind, i):
        so = "0" if i < 4 else "s55"
        if kind == "k":
            A(f"buffer_load_dwordx4 {vr(KR+12+4*i,4)}, v5, s[{SK}:{SK+3}], {so} offen offset:{1280*(i&3)}{Opt.nt_s}")
        else:
            A(f"buffer_load_dwordx4 {vr(VR+4*i,4)}, v5, s[{SV}:{SV+3}], {so} offen offset:{1280*(i&3)}{Opt.nt_s}")
        order.append((kind, i))

    for i in (5, 6, 7):
        ld("k", i)
    ld("k", 0); ld("v", 0); ld("k", 1); ld("v", 1)
    todo = [("k", 2), ("v", 2), ("k", 3), ("v", 3), ("k", 4), ("v", 4), ("v", 5), ("v", 6), ("v", 7)]
    stamp(A, 2)
    srd(A, SWS, S_WS, WS_SIZE)
    A("s_mul_i32 s56, s48, 8320")
    A(f"s_add_u32 s56, s56, {B_PRE}")
    A(f"v_mul_u32_u24 v10, 1040, v{t1}")
    A(f"v_lshl_add_u32 v10, v{t0}, 4, v10")
    A("v_add_u32 v10, s56, v10")
    A("v_lshrrev_b32 v11, 4, v1")
    A("v_lshlrev_b32 v11, 8, v11")
    A("v_and_b32 v12, 3, v1")
    A("v_lshl_add_u32 v11, v12, 6, v11")
    A("v_bfe_u32 v12, v1, 2, 2")
    A("v_lshl_add_u32 v11, v12, 3, v11")
    A("v_add_u32 v11, s56, v11")
    A(f"v_lshlrev_b32 v12, 12, v{t0}")
    A(f"v_lshl_add_u32 v12, v{t1}, 4, v12")
    A("s_lshl_b32 s57, s51, 18")
    A("s_lshl_b32 s58, s50, 7")
    A("s_add_u32 s57, s57, s58")
    A(f"s_add_u32 s57, s57, {WS_KVT:#x}")
    A("s_mov_b32 s59, 0xffff0000")
    WF, KF, VF, TA, OUT = 108, 140, 172, 180, 196

    def unpack(dst, src, n):
        for i in range(n):
            A(f"v_lshlrev_b32 v{dst+2*i}, 16, v{src+i}")
            A(f"v_and_b32 v{dst+2*i+1}, s59, v{src+i}")

    A(f"s_waitcnt vmcnt({3+len(order)})")
    ld(*todo.pop(0)); ld(*todo.pop(0))
    for c in range(8):
        A(f"v_lshlrev_b32 v{WF+c}, 16, v{WR+2*c}")
        A(f"v_and_b32 v{WF+8+c}, s59, v{WR+2*c}")
        A(f"v_lshlrev_b32 v{WF+16+c}, 16, v{WR+2*c+1}")
        A(f"v_and_b32 v{WF+24+c}, s59, v{WR+2*c+1}")
    A(f"s_waitcnt vmcnt({len(order)})")
    ld(*todo.pop(0)); ld(*todo.pop(0))
    for i in range(3):
        unpack(KF + 8 * i, KR + 4 * i, 4)
    for i in range(8):
        need = max(order.index(("k", i)), order.index(("v", i)))
        A(f"s_waitcnt vmcnt({len(order)-1-need})")
        for _ in range(2):
            if todo:
                ld(*todo.pop(0))
        if i == 2:
            b_channel(A)
            if Opt.hdef:
                A("s_lshl_b32 s50, s49, 12")
            else:
                conv_load_h(A, 13)
                order.extend([None] * 4)
        unpack(KF + 8 * ((i + 3) & 3), KR + 12 + 4 * i, 4)
        unpack(VF, VR + 4 * i, 4)
        acc = TA + 8 * (i & 1)
        for j in (3, 2, 1, 0):
            kk = KF + 8 * ((i + 3 - j) & 3)
            for c in range(0, 8, 2):
                if j == 3:
                    A(f"v_pk_mul_f32 {vr(acc+c,2)}, {vr(kk+c,2)}, {vr(WF+8*j+c,2)}")
                else:
                    A(f"v_pk_fma_f32 {vr(acc+c,2)}, {vr(kk+c,2)}, {vr(WF+8*j+c,2)}, {vr(acc+c,2)}")
        for c in range(0, 8, 2):
            A(f"v_pk_mul_f32 {vr(acc+c,2)}, {vr(acc+c,2)}, {vr(VF+c,2)}")
        if i & 1:
            for c in range(8):
                A(f"v_cvt_pk_bf16_f32 v{OUT+4*c+i//2}, v{TA+c}, v{TA+8+c}")
    stamp(A, 3)
    for c in range(8):
        A(f"ds_write_b128 v10, {vr(OUT+4*c,4)} offset:{128*c}")
    A("s_waitcnt lgkmcnt(0)")
    T = Lgkm(A)
    for i in range(8):
        T.issue(f"ds_read_b64_tr_b16 {vr(16+4*i,2)}, v11 offset:{1040*i}")
        T.issue(f"ds_read_b64_tr_b16 {vr(18+4*i,2)}, v11 offset:{1040*i+32}", i)
    for i in range(8):
        T.wait(i)
        A(f"buffer_store_dwordx4 {vr(16+4*i,4)}, v12, s[{SWS}:{SWS+3}], s57 offen{SC}")
        if i < 7:
            A(f"s_add_u32 s57, s57, {8*4096}")
    stamp(A, 5)


def role_helper(A):
    SD = 40
    A("s_setprio 3")
    A("s_waitcnt lgkmcnt(0)")
    srd(A, SWS, S_WS, WS_SIZE)
    srd(A, SD, S_DBG, 256)
    Lz = A.newlabel("L_nz")
    A("s_cmp_eq_u32 s2, 192")
    A(f"s_cbranch_scc0 {Lz}")
    A("s_cmp_eq_u32 s48, 5")
    A(f"s_cbranch_scc0 {Lz}")
    A(f"s_mov_b32 s57, {WS_EPOCH:#x}")
    A("s_mov_b64 exec, 1")
    A(f"buffer_load_dword v4, off, s[{SWS}:{SWS+3}], s57{SC}")
    A("s_waitcnt vmcnt(0)")
    A("v_add_u32 v4, 1, v4")
    A("v_not_b32 v5, v4")
    A(f"buffer_store_dwordx2 v[4:5], off, s[{SD}:{SD+3}], 0{SC}")
    A(f"buffer_store_dword v4, off, s[{SWS}:{SWS+3}], s57{SC}")
    A("s_mov_b64 exec, -1")
    stamp(A, 2)
    A.label(Lz)
    if Opt.gpf2:
        Lnp = A.newlabel("L_ng")
        A("s_lshl_b32 s50, s48, 3")
        A("s_add_u32 s50, s50, s99")
        A("s_sub_u32 s50, s50, 64")
        A("s_cmp_ge_u32 s50, 20")
        A(f"s_cbranch_scc1 {Lnp}")
        A("s_lshr_b32 s51, s50, 1")
        A("s_and_b32 s50, s50, 1")
        A("s_cmp_ge_u32 s51, 5")
        A("s_cselect_b32 s52, 640, 0")
        A("s_lshl_b32 s51, s51, 7")
        A("s_add_u32 s51, s51, s52")
        A("s_lshr_b32 s52, s98, 2")
        A("s_mul_i32 s52, s52, 640")
        A("s_add_u32 s51, s51, s52")
        A(f"s_mul_i32 s50, s50, {5*64*3840}")
        A("s_add_u32 s51, s51, s50")
        A(f"s_add_u32 s51, s51, {1280 + Opt.gpf2*64*3840}")
        srd(A, 32, S_W, NB_W)
        A("v_mul_u32_u24 v2, 3840, v1")
        for k in range(Opt.gpf2, 5):
            A(f"buffer_load_dword v{30+k}, v2, s[32:35], s51 offen")
            A(f"s_add_u32 s51, s51, {64*3840}")
        A.label(Lnp)
    if Opt.gpf:
        A("s_sub_u32 s50, s99, 24")
        A("s_mul_i32 s50, s50, 3")
        A("s_add_u32 s50, s50, s48")
        A("s_sub_u32 s50, s50, 5")
        A("s_and_b32 s51, s98, 3")
        A("s_lshl_b32 s51, s51, 3")
        A("s_add_u32 s51, s51, s50")
        A(f"s_mul_i32 s51, s51, {64*1280}")
        A("s_sub_u32 s52, s50, 8")
        A("s_mul_i32 s53, s52, 52")
        A("s_lshr_b32 s53, s53, 8")
        A("s_mul_i32 s53, s53, 640")
        A("s_lshl_b32 s52, s52, 7")
        A("s_add_u32 s52, s52, s53")
        A("s_lshr_b32 s53, s98, 2")
        A("s_mul_i32 s53, s53, 640")
        A("s_add_u32 s52, s52, s53")
        A("s_cmp_eq_u32 s50, 23")
        A(f"s_cselect_b32 s52, {NB_W:#x}, s52")
        A("s_cmp_lt_u32 s50, 8")
        A("s_cselect_b32 s51, s51, s52")
        A(f"s_cselect_b64 s[32:33], s[{S_X}:{S_X+1}], s[{S_W}:{S_W+1}]")
        A(f"s_mov_b32 s53, {NB_W:#x}")
        A(f"s_cselect_b32 s34, {NB_X:#x}, s53")
        A("s_mov_b32 s35, 0x20000")
        A("s_movk_i32 s53, 3840")
        A("s_cselect_b32 s52, 1280, s53")
        A(f"s_mov_b32 s53, {64*3840}")
        A("s_cselect_b32 s53, 128, s53")
        A("v_mul_u32_u24 v2, s52, v1")
        A(f"s_mul_i32 s52, s53, {Opt.gpf}")
        A("s_add_u32 s51, s51, s52")
        for k, st in enumerate(range(Opt.gpf, 10)):
            if k >= Opt.gpfd:
                A(f"s_waitcnt vmcnt({Opt.gpfd-1})")
            A(f"buffer_load_dword v{30+k}, v2, s[32:35], s51 offen")
            A("s_add_u32 s51, s51, s53")
    if Opt.codepf:
        Lp = A.newlabel("L_npf")
        A("s_cmp_eq_u32 s48, 6")
        A(f"s_cbranch_scc0 {Lp}")
        A("s_getpc_b64 s[50:51]")
        A.label("L_pc")
        A(f"s_sub_u32 s50, s50, L_pc-{NAME}_kernel")
        A("s_subb_u32 s51, s51, 0")
        A("s_sub_u32 s52, s99, 24")
        A("s_lshl_b32 s52, s52, 13")
        A("v_lshl_add_u32 v2, v1, 7, s52")
        A(f"v_min_u32 v2, L_code_end-{NAME}_kernel-4, v2")
        A("global_load_dword v24, v2, s[50:51]")
        if Opt.womall:
            srd(A, 36, S_WO, NB_WO)
            A("s_sub_u32 s52, s2, 192")
            A("s_lshl_b32 s52, s52, 14")
            A("s_add_u32 s53, s52, 8192")
            A("v_lshlrev_b32 v2, 7, v1")
            A("buffer_load_dword v25, v2, s[36:39], s52 offen")
            A("buffer_load_dword v26, v2, s[36:39], s53 offen")
        A.label(Lp)
    A("s_setprio 0")
    b_channel(A)
    if Opt.hdef:
        A("s_lshl_b32 s50, s49, 12")
    else:
        conv_load_h(A, 2)
    A(f"v_mov_b32 v4, {B_MB+256}")
    A("v_mov_b32 v5, 0")
    A("ds_write_b32 v4, v5")
    A("ds_write_b32 v4, v5 offset:512")
    A("s_cmp_eq_u32 s48, 7")
    A("s_cbranch_scc0 L_bconv")
    A(f"s_mov_b64 s[{TAG}:{TAG+1}], 0")
    tag_check(A, 8)


def conv_setup(A):
    A("v_lshlrev_b32 v2, 4, v1")
    A("s_lshl_b32 s52, s49, 1")
    A("s_and_b32 s52, s52, 0xfffffffc")
    A(f"s_load_dword s55, s[{S_SSD}:{S_SSD+1}], s52")
    A(f"s_load_dword s54, s[{S_SSK}:{S_SSK+1}], s50")
    A(f"s_add_u32 s51, s50, {WS_KVT:#x}")
    for i in range(4):
        A(f"v_mov_b32 v{4+i}, 0")
    A("v_add_u32 v3, s56, v2")
    A("s_mov_b64 exec, 0xf")
    A("ds_write_b128 v3, v[4:7]")
    A("s_mov_b32 exec_lo, -1")
    A(f"ds_write_b128 v3, v[4:7] offset:{64+4096}")
    A("s_mov_b64 exec, -1")
    A("v_and_b32 v8, 1, v1")
    A("v_lshlrev_b32 v8, 5, v8")
    A("v_bfe_u32 v9, v1, 4, 1")
    A("v_lshl_add_u32 v8, v9, 4, v8")
    A("v_bfe_u32 v9, v1, 1, 1")
    A("v_lshl_add_u32 v8, v9, 3, v8")
    A("v_lshrrev_b32 v10, 5, v1")
    A("v_lshl_add_u32 v8, v10, 6, v8")
    A("v_bfe_u32 v9, v1, 2, 2")
    A("v_lshlrev_b32 v9, 3, v9")
    A("v_sub_u32 v8, v8, v9")
    A("s_add_u32 s57, s56, 32")
    A("v_add_u32 v8, s57, v8")
    A("v_bfe_u32 v9, v1, 4, 1")
    A("v_lshlrev_b32 v9, 8, v9")
    A("v_and_b32 v11, 3, v1")
    A("v_lshl_add_u32 v9, v11, 6, v9")
    A("v_bfe_u32 v11, v1, 2, 2")
    A("v_lshl_add_u32 v9, v11, 4, v9")
    A("v_lshlrev_b32 v11, 6, v10")
    A("v_sub_u32 v9, v9, v11")
    A(f"s_add_u32 s57, s56, {64+4096+512-384}")
    A("v_add_u32 v9, s57, v9")
    A("v_bfe_u32 v11, v1, 2, 1")
    A("v_bfe_u32 v12, v1, 3, 2")
    A("v_lshl_add_u32 v11, v11, 2, v12")
    A("v_and_b32 v12, 35, v1")
    A("v_lshl_add_u32 v11, v12, 3, v11")
    A("v_and_b32 v12, 1, v11")
    A("v_lshlrev_b32 v12, 4, v12")
    A("v_mov_b32 v13, 0xffff")
    A("v_lshlrev_b32 v13, v12, v13")
    A("v_lshrrev_b32 v11, 1, v11")
    for i in range(4):
        A(f"v_cmp_eq_u32 vcc, {i}, v11")
        A(f"v_cndmask_b32 v{MK+i}, 0, v13, vcc")
    A("v_bfe_u32 v11, v1, 4, 1")
    A("v_and_b32 v12, 3, v1")
    A("v_lshl_add_u32 v11, v11, 2, v12")
    A("v_add_u32 v11, 7, v11")
    A("v_and_b32 v12, 3, v11")
    A("v_bfe_u32 v13, v11, 2, 1")
    A("v_lshl_add_u32 v12, v13, 4, v12")
    A("v_and_b32 v13, 12, v1")
    A("v_add3_u32 v12, v12, v13, 32")
    A("v_subrev_u32 v13, 32, v1")
    A("v_cmp_gt_u32 vcc, 32, v1")
    A("v_cndmask_b32 v14, v13, v12, vcc")
    A("v_lshlrev_b32 v14, 2, v14")
    A("s_mov_b32 s58, 0x1111")
    A("s_mov_b32 s59, 0")


MK = 16


def role_conv(A):
    conv_setup(A)
    A("s_sub_u32 s61, s99, 24")
    A("s_lshl_b32 s62, s98, 3")
    A("s_add_u32 s62, s62, s61")
    A("s_lshl_b32 s62, s62, 7")
    A(f"s_add_u32 s62, s62, {F0:#x}")
    A("s_mul_i32 s60, s98, 80")
    A("s_mul_i32 s61, s61, 6")
    A("s_add_u32 s60, s60, s61")
    A("s_add_u32 s61, s60, 5")
    f0_lines(A, 60, 61, 12)
    A("s_waitcnt vmcnt(0) lgkmcnt(0)")
    stamp(A, 4)
    A("s_barrier")
    if Opt.hdef:
        Lh = A.newlabel("L_hd")
        A("s_cmp_eq_u32 s48, 7")
        A(f"s_cbranch_scc0 {Lh}")
        set_flag(A, 22, "s62")
        A.label(Lh)
        A("s_barrier")
        conv_load_h(A, 2)
        A("s_waitcnt vmcnt(0)")
    else:
        A("s_cmp_eq_u32 s48, 7")
        A("s_cbranch_scc0 L_cb")
        set_flag(A, 22, "s62")
    A("s_branch L_cb")
    A.label("L_conv")
    NR = 20
    RA, RB, RS = 64, 144, 224
    ACCS = (32, 48)
    CAR, PUL, TMP = 20, (21, 22), 23
    OUT = (24, 28)

    def rdA(m, reg, tag):
        return [(f"ds_read_b64_tr_b16 {vr(reg,2)}, v8 offset:{128*m+32}", None),
                (f"ds_read_b64_tr_b16 {vr(reg+2,2)}, v8 offset:{128*m}", tag)]

    def rdB(b, reg, tag):
        return [(f"ds_read_b128 {vr(reg,4)}, v9 offset:{128*b}", tag)]

    def xload():
        A(f"s_add_u32 m0, s56, {64+4096+512}")
        for i in range(4):
            A(f"buffer_load_dwordx4 v2, s[{SWS}:{SWS+3}], s51 offen offset:{1024*i}{SC} lds")

    Lb, Lg = "L_cb", A.newlabel("L_cg")
    tag_check(A, 22)
    conv_load_h(A, 2)
    A(f"buffer_load_dwordx2 v[22:23], v12, s[{SWS}:{SWS+3}], s52 offen{SC}")
    A("s_barrier")
    A("s_waitcnt vmcnt(0)")
    A(f"v_cmp_eq_u64 vcc, s[{TAG}:{TAG+1}], v[22:23]")
    A("s_cmp_eq_u64 vcc, -1")
    Lx = A.newlabel("L_cx")
    A(f"s_cbranch_scc1 {Lx}")
    poll(A, 22, 12, "s52", sleep=8)
    A.label(Lx)
    stamp(A, 8)
    xload()
    A.label(Lb)
    A("s_waitcnt lgkmcnt(0)")
    A("s_lshl_b32 s54, s54, 16")
    A("s_lshl_b32 s53, s55, 16")
    A("s_and_b32 s55, s55, 0xffff0000")
    A("s_bitcmp1_b32 s49, 0")
    A("s_cselect_b32 s53, s55, s53")
    A("v_mov_b32 v15, s54")
    A("v_add_f32 v15, s53, v15")
    A("v_cvt_pk_bf16_f32 v15, v15, v15")
    T = Lgkm(A)
    for m in range(NR):
        for x, tg in rdA(m, RA + 4 * m, ("A", m)):
            T.issue(x, tg)
    T.wait(("A", 0))
    for k in range(4):
        A(f"v_bfi_b32 v{RA+k}, v{MK+k}, v15, v{RA+k}")
    T.all()
    if Opt.qwait:
        Lqd = A.newlabel("L_qd")
        A("s_cmp_ge_u32 s99, 24")
        A(f"s_cbranch_scc1 {Lqd}")
        lds_wait(A, 12, L_SYNC, 4, sleep=4)
        A.label(Lqd)
    A("s_cmp_ge_u32 s99, 24")
    A(f"s_cbranch_scc0 {Lg}")
    Ln7 = A.newlabel("L_n7")
    A("s_cmp_eq_u32 s48, 7")
    A(f"s_cbranch_scc0 {Ln7}")
    poll(A, 22, 12, "s52", sleep=4)
    A.label(Ln7)
    A("s_barrier")
    stamp(A, 8)
    xload()
    A("s_cmp_ge_u32 s48, 4")
    A(f"s_cbranch_scc0 {Lg}")
    A("s_setprio 1")
    A.label(Lg)
    A(f"s_add_u32 s51, s50, {WS_YT:#x}")
    A(f"v_mov_b32 v{PUL[1]}, 0")

    def epilogue(i):
        V = ACCS[i & 1]
        own = [f"v_add_f32_dpp v{V+4*j}, v{V+4*j+k}, v{V+4*j} row_shr:{4*k} row_mask:0xf bank_mask:0xf"
               for k in (1, 2, 3) for j in range(4)]
        car = [f"v_add_f32_dpp v{CAR}, v{V+12+k}, v{CAR} row_shl:{16-4*k} row_mask:0xf bank_mask:0xf" for k in (1, 2, 3)]
        L = [f"v_mov_b32 v{CAR}, 0"] + own[0:2] + car[0:1] + own[2:4] + car[1:2] + own[4:6] + car[2:3]
        L.append(("ds", f"ds_bpermute_b32 v{PUL[i&1]}, v14, v{CAR}", ("P", i)))
        L += own[6:]
        for k in (1, 2, 3):
            for j in (0, 1, 2):
                L.append(f"v_add_f32_dpp v{V+4*j+4}, v{V+4*j+k}, v{V+4*j+4} row_shl:{16-4*k} row_mask:0xf bank_mask:0xf")
        o = OUT[(i >> 1) & 1] + 2 * (i & 1)
        L.append(f"v_cvt_pk_bf16_f32 v{o+1}, v{V+8}, v{V+12}")
        L.append(("wait", ("P", i)))
        L.append(f"v_cndmask_b32 v{TMP}, v{PUL[i&1]}, v{PUL[1-(i&1)]}, s[58:59]")
        L.append(f"v_add_f32 v{V}, v{V}, v{TMP}")
        L.append(f"v_cvt_pk_bf16_f32 v{o}, v{V}, v{V+4}")
        if i & 1:
            L.append(f"buffer_store_dwordx4 {vr(OUT[(i>>1)&1],4)}, v2, s[{SWS}:{SWS+3}], s51 offen offset:{1024*(i>>1)}{SC}")
        return L

    def emit(x):
        if isinstance(x, tuple):
            if x[0] == "ds":
                T.issue(x[1], x[2])
            else:
                T.wait(x[1])
        else:
            A(x)

    A("s_waitcnt vmcnt(0)")
    stampw(A, 9)

    def stream(tiles, nres0, exit_at=None):
        T.tag.clear()
        sched = []
        for i in tiles:
            ms = list(range(4 * i + 4))
            res = [m for m in ms if m < NR and 4 * i + 3 - m < NR]
            stm = [m for m in ms if m not in res]
            if i == tiles[0]:
                res.reverse()
            sched += [(i, m) for m in res + stm]
        streams = []
        for k, (i, m) in enumerate(sched):
            b = 4 * i + 3 - m
            if m >= NR:
                streams.append((k, "A", m))
            elif b >= NR:
                streams.append((k, "B", b))
        slot_of = {k: n % 8 for n, (k, _, _) in enumerate(streams)}
        border = list(nres0) + [b for b in range(NR) if b not in nres0]
        for b in border[:8]:
            for x, tg in rdB(b, RB + 4 * b, ("B", b)):
                T.issue(x, tg)
        border = border[8:]
        nst = 0
        fill = []
        first = {}
        for k, (i, m) in enumerate(sched):
            first.setdefault(i, k)
        for k, (i, m) in enumerate(sched):
            V = ACCS[i & 1]
            b = 4 * i + 3 - m
            if k == first[i]:
                while fill:
                    emit(fill.pop(0))
                if exit_at and i == exit_at[0]:
                    A("s_cmp_ge_u32 s48, 4")
                    A(f"s_cbranch_scc1 {exit_at[1]}")
                if i > tiles[0]:
                    fill = epilogue(i - 1)
            if k in slot_of:
                T.wait(("S", k))
            if b < NR:
                T.wait(("B", b))
            ra = RA + 4 * m if m < NR else RS + 4 * slot_of[k]
            rb = RB + 4 * b if b < NR else RS + 4 * slot_of[k]
            c = vr(V, 16) if k != first[i] else "0"
            A(f"v_mfma_f32_32x32x16_bf16 {vr(V,16)}, {vr(ra,4)}, {vr(rb,4)}, {c}")
            budget = 5
            if border:
                bb = border.pop(0)
                for x, tg in rdB(bb, RB + 4 * bb, ("B", bb)):
                    T.issue(x, tg)
                budget -= 1
            if (not border or tiles[0]) and nst < len(streams) and (nst < 8 or streams[nst - 8][0] < k) and streams[nst][0] - k <= 10:
                kk, kind, fr = streams[nst]
                for x, tg in (rdA if kind == "A" else rdB)(fr, RS + 4 * slot_of[kk], ("S", kk)):
                    T.issue(x, tg)
                    budget -= 1
                nst += 1
            if k > first[i]:
                for _ in range(budget):
                    if fill:
                        emit(fill.pop(0))
        while fill:
            emit(fill.pop(0))
        stampw(A, 10)
        T.done = T.n if Ctx.stamps else T.done

    A("s_cmp_ge_u32 s48, 6")
    A("s_cbranch_scc1 L_second")
    stream(range(8), range(8), (6, "L_first"))
    for x in epilogue(7):
        emit(x)
    A("s_branch L_cdone")
    A.label("L_first")
    A("s_waitcnt lgkmcnt(0)")
    A("s_nop 10")
    T.done = T.n
    stampw(A, 10)
    for x in epilogue(5):
        emit(x)
    A("s_and_b32 s52, s48, 1")
    A("s_lshl_b32 s52, s52, 9")
    A(f"s_add_u32 s52, s52, {B_MB}")
    A("v_lshl_add_u32 v10, v1, 2, s52")
    A(f"ds_write_b32 v10, v{PUL[1]}")
    A("s_add_u32 s52, s52, 256")
    lds_arrive(A, 10, "s52")
    A("s_branch L_cdone")
    A.label("L_second")
    T.done = T.n
    stream((6, 7), range(8, 20))
    last = epilogue(7)
    for x in last[:-1]:
        emit(x)
    A("s_and_b32 s52, s48, 1")
    A("s_lshl_b32 s52, s52, 9")
    A(f"s_add_u32 s52, s52, {B_MB}")
    A("v_lshl_add_u32 v12, v1, 2, s52")
    A("s_add_u32 s52, s52, 256")
    lds_wait(A, 10, "s52", 1, sleep=2)
    A(f"ds_read_b32 v{TMP}, v12")
    A("s_waitcnt lgkmcnt(0)")
    A(f"v_cndmask_b32 v{TMP}, 0, v{TMP}, s[58:59]")
    A(f"v_add_f32 v{ACCS[0]}, v{ACCS[0]}, v{TMP}")
    A(f"v_cvt_pk_bf16_f32 v{OUT[1]}, v{ACCS[0]}, v{ACCS[0]+4}")
    A(last[-1])
    A.label("L_cdone")
    A("s_waitcnt vmcnt(0)")
    stamp(A, 11)
    A("s_cmp_ge_u32 s99, 24")
    A("s_cbranch_scc1 L_bdone")
    A(f"v_mov_b32 v10, {L_SYNC+12}")
    A("v_mov_b32 v11, 1")
    A("s_mov_b64 exec, 1")
    A("ds_add_rtn_u32 v12, v10, v11")
    A("s_mov_b64 exec, -1")
    A("s_lshl_b32 s52, s98, 4")
    A("s_add_u32 s52, s52, s99")
    A("s_lshl_b32 s52, s52, 7")
    A(f"s_add_u32 s52, s52, {F4+8*128:#x}")
    A("s_waitcnt lgkmcnt(0)")
    A("v_readfirstlane_b32 s53, v12")
    A("s_cmp_eq_u32 s53, 3")
    A("s_cbranch_scc0 L_bend")
    set_flag(A, 10, "s52")
    A("s_branch L_bend")
    A.label("L_bdone")


def role_post(A):
    SQ, SO = 32, 36
    A.label("L_post")
    A("s_setprio 0")
    A("s_and_b32 s48, s48, 3")
    A("s_sub_u32 s50, s99, 24")
    A("s_lshl_b32 s50, s50, 2")
    A("s_lshl_b32 s51, s99, 1")
    A("s_add_u32 s51, s51, 24")
    A("s_cmp_ge_u32 s99, 24")
    A("s_cselect_b32 s50, s50, s51")
    A("s_mul_i32 s49, s98, 40")
    A("s_add_u32 s49, s49, s50")
    A("s_add_u32 s49, s49, s48")
    A("s_and_b32 s50, s49, 31")
    A("s_lshr_b32 s51, s49, 5")
    A("v_lshrrev_b32 v2, 3, v1")
    A("v_and_b32 v3, 7, v1")
    A("v_lshlrev_b32 v4, 12, v2")
    A("v_lshl_add_u32 v4, v3, 4, v4")
    A("s_lshl_b32 s52, s51, 18")
    A("s_lshl_b32 s53, s50, 7")
    A("s_add_u32 s52, s52, s53")
    A(f"s_add_u32 s52, s52, {WS_YT:#x}")
    A("s_mul_i32 s56, s48, 8320")
    A(f"s_add_u32 s56, s56, {B_PRE}")
    A("s_lshr_b32 s54, s50, 3")
    A("s_lshl_b32 s54, s54, 9")
    A("s_bfe_u32 s55, s50, 0x10002")
    A("s_lshl_b32 s55, s55, 4")
    A("s_add_u32 s54, s54, s55")
    A("s_bfe_u32 s55, s50, 0x10001")
    A("s_lshl_b32 s55, s55, 7")
    A("s_add_u32 s54, s54, s55")
    A("s_and_b32 s55, s50, 1")
    A("s_lshl_b32 s55, s55, 1")
    A("s_add_u32 s54, s54, s55")
    A("v_and_b32 v5, 3, v2")
    A("v_lshrrev_b32 v6, 2, v2")
    A("v_lshl_add_u32 v5, v5, 5, v6")
    A("v_mul_u32_u24 v6, 1280, v5")
    A("v_lshlrev_b32 v7, 1, v6")
    A("v_lshl_add_u32 v6, v3, 4, v6")
    A("v_lshl_add_u32 v7, v3, 4, v7")
    A("s_mul_i32 s54, s54, 1280")
    A("s_lshl_b32 s53, s51, 7")
    A("s_lshl_b32 s55, s54, 1")
    A("s_add_u32 s54, s54, s53")
    A("s_add_u32 s55, s55, s53")
    A("s_add_u32 s55, s55, 1280")
    srd(A, SQ, S_BQ, NB_X)
    srd(A, SO, S_OUT, NB_OUT)
    QR, YR = 16, 48
    rows = [0, 4, 8, 12, 256, 260, 264, 268]
    for i in range(8):
        A(f"s_add_u32 s57, s54, {rows[i]*1280}")
        A(f"buffer_load_dwordx4 {vr(QR+4*i,4)}, v6, s[{SQ}:{SQ+3}], s57 offen{Opt.nt_s}")
    A("s_mov_b32 s59, 0xffff0000")
    QF = 128
    A("s_waitcnt vmcnt(0)")
    for i in range(32):
        A(f"v_lshlrev_b32 v{QF+2*i}, 16, v{QR+i}")
        A(f"v_and_b32 v{QF+2*i+1}, s59, v{QR+i}")
    A("s_lshl_b32 s57, s98, 4")
    A("s_sub_u32 s58, s57, 16")
    A("v_min_u32 v12, 47, v1")
    A("v_add_u32 v12, s58, v12")
    A("v_max_i32 v12, 0, v12")
    A("v_min_u32 v12, 127, v12")
    A("v_lshlrev_b32 v12, 7, v12")
    A("s_add_u32 s57, s57, s99")
    A("s_lshl_b32 s57, s57, 7")
    A(f"s_add_u32 s57, s57, {F4-24*128:#x}")
    A(f"s_mov_b32 s58, {F4:#x}")
    Lx, Lq, Ld = A.newlabel("L_p7"), A.newlabel("L_pq"), A.newlabel("L_pd")
    A("s_cmp_ge_u32 s99, 24")
    A(f"s_cbranch_scc0 {Lq}")
    A("s_barrier")
    A("s_cmp_eq_u32 s48, 3")
    A(f"s_cbranch_scc0 {Lx}")
    set_flag(A, 8, "s57")
    poll(A, 14, 12, "s58", sleep=4)
    A.label(Lx)
    A("s_barrier")
    A(f"s_branch {Ld}")
    A.label(Lq)
    A("s_barrier")
    poll(A, 14, 12, "s58", sleep=4)
    A.label(Ld)
    if Opt.dB:
        A(f"s_sleep {Opt.dB}")
    stamp(A, 12)
    for i in range(8):
        A(f"v_xor_b32 v8, {16*i}, v4")
        A(f"s_add_u32 m0, s56, {1024*i}")
        A(f"buffer_load_dwordx4 v8, s[{SWS}:{SWS+3}], s52 offen{SC} lds")
        if i < 7:
            A(f"s_add_u32 s52, s52, {8*4096}")
    A("v_xor_b32 v8, v2, v3")
    A("v_lshlrev_b32 v8, 4, v8")
    A("v_lshl_add_u32 v8, v3, 10, v8")
    A("v_add_u32 v8, s56, v8")
    A("s_waitcnt vmcnt(0)")
    for c in range(8):
        A(f"ds_read_b128 {vr(YR+4*c,4)}, v8 offset:{128*c}")
    A("s_waitcnt lgkmcnt(0)")
    stamp(A, 13)
    YF, OUT = 80, 96
    for i in range(8):
        for c in range(8):
            if i & 1:
                A(f"v_and_b32 v{YF+c}, s59, v{YR+4*c+i//2}")
            else:
                A(f"v_lshlrev_b32 v{YF+c}, 16, v{YR+4*c+i//2}")
        for c in range(0, 8, 2):
            A(f"v_pk_mul_f32 {vr(YF+c,2)}, {vr(YF+c,2)}, {vr(QF+8*i+c,2)}")
        for k in range(4):
            A(f"v_cvt_pk_bf16_f32 v{OUT+4*i+k}, v{YF+2*k}, v{YF+2*k+1}")
        A(f"s_add_u32 s57, s55, {rows[i]*2560}")
        A(f"buffer_store_dwordx4 {vr(OUT+4*i,4)}, v7, s[{SO}:{SO+3}], s57 offen{Opt.oscb}")
    stamp(A, 14)


def build():
    A = Asm()
    k = NAME + "_kernel"
    A.raw(f".globl {k}")
    A.raw(".p2align 8")
    A.raw(f".type {k},@function")
    A.label(k)
    if Opt.hold:
        A("s_memrealtime s[64:65]")
    load_kernargs(A)
    if Opt.lite:
        A("s_memrealtime s[64:65]")
    elif not Opt.hp:
        stamp_init(A)
        if Opt.rt:
            A("s_waitcnt lgkmcnt(0)")
            stamp(A, 1)
    A("v_lshrrev_b32 v2, 6, v0")
    A("v_and_b32 v1, 63, v0")
    A("v_readfirstlane_b32 s100, v2")
    A("s_and_b32 s98, s2, 7")
    A("s_lshr_b32 s99, s2, 3")
    A("s_cmp_ge_u32 s2, 192")
    A("s_cbranch_scc1 L_b")
    A("s_and_b32 s49, s2, 3")
    A("s_lshl_b32 s49, s49, 2")
    A("s_and_b32 s50, s99, 3")
    A("s_add_u32 s49, s49, s50")
    A("s_bfe_u32 s52, s2, 0x10002")
    A("s_lshr_b32 s53, s2, 5")
    A("s_lshl_b32 s54, s52, 1")
    A("s_add_u32 s54, s54, s53")
    A("s_lshl_b32 s55, s52, 2")
    A("s_add_u32 s55, s55, s53")
    A("s_sub_u32 s55, s55, 2")
    A("s_cmp_lt_u32 s2, 64")
    A("s_cselect_b32 s50, s54, s55")
    A("s_cselect_b32 s51, 1, 0")
    A("s_and_b32 s48, s100, 3")
    A("s_cmp_ge_u32 s100, 4")
    A("s_cbranch_scc1 L_c")
    role_loader(A)
    A.label("L_c")
    role_compute(A)
    A.label("L_b")
    A("s_cmp_ge_u32 s2, 256")
    A("s_cbranch_scc1 L_exit")
    A("s_mov_b32 s48, s100")
    A("s_cmp_ge_u32 s48, 5")
    A("s_cbranch_scc1 L_help")
    role_pre(A)
    A("s_branch L_bconv")
    A.label("L_help")
    role_helper(A)
    A.label("L_bconv")
    role_conv(A)
    A("s_cmp_lt_u32 s48, 4")
    A("s_cbranch_scc1 L_bend")
    role_post(A)
    A.label("L_bend")
    end_wave(A)
    A.label("L_exit")
    A("s_endpgm")
    A.label("L_code_end")
    head = ["; generated by gen/f6.py",
            "; @launch grid=(256,1,1) block=(512,1,1) lds=163840"]
    txt = "\n".join(head) + '\n.amdgcn_target "amdgcn-amd-amdhsa--gfx950"\n.text\n' + A.text()
    txt += f'''.section .rodata,"a"
.p2align 6
.amdhsa_kernel {k}
  .amdhsa_next_free_vgpr 256
  .amdhsa_next_free_sgpr 102
  .amdhsa_accum_offset 256
  .amdhsa_group_segment_fixed_size 0
  .amdhsa_kernarg_size 104
  .amdhsa_user_sgpr_count 2
  .amdhsa_user_sgpr_kernarg_segment_ptr 1
  .amdhsa_system_sgpr_workgroup_id_x 1
.end_amdhsa_kernel
'''
    return txt


if __name__ == "__main__":
    args = sys.argv[2:]
    Ctx.stamps = "stamps" in args
    Opt.rot = "norot" not in args
    Opt.codepf = "nocodepf" not in args
    for a in args:
        if a.startswith("probe="):
            Opt.probe = tuple(int(x) for x in a[6:].split(","))
        if a.startswith("holdwg="):
            Opt.holdwg = int(a[7:])
        if a.startswith("osc="):
            Opt.osc = a[4:].replace("_", " ")
        if a.startswith("oscb="):
            Opt.oscb = a[5:].replace("_", " ")
        if a.startswith("gpf="):
            Opt.gpf = int(a[4:])
        if a.startswith("gpfd="):
            Opt.gpfd = int(a[5:])
        if a.startswith("rotA="):
            Opt.rotA = int(a[5:], 16)
        if a.startswith("rotB="):
            Opt.rotB = int(a[5:], 16)
        if a == "fake16":
            Opt.fake16 = True
        if a.startswith("qdelay="):
            Opt.qdelay = int(a[7:])
        if a.startswith("bpos="):
            Opt.bpos = int(a[5:])
        if a == "lidle":
            Opt.lidle = True
        if a == "noqwait":
            Opt.qwait = False
        if a == "nofwarm":
            Opt.fwarm = False
        if a == "noprog":
            Opt.prog = False
        if a == "nodflag":
            Opt.dflag = False
        if a == "lite":
            Opt.lite = True
            Ctx.stamps = True
        if a.startswith("wos="):
            Opt.wos = int(a[4:])
        if a.startswith("R="):
            Opt.R = int(a[2:])
        if a == "nohdef":
            Opt.hdef = False
        if a.startswith("gpf2="):
            Opt.gpf2 = int(a[5:])
        if a.startswith("oahead="):
            Opt.oahead = int(a[7:])
        if a == "rt":
            Opt.rt = True
        if a.startswith("hp="):
            Opt.hp = int(a[3:])
            Ctx.stamps = True
        if a.startswith("hold="):
            Opt.hold = int(a[5:])
        if a.startswith("dA="):
            Opt.dA = int(a[3:])
        if a.startswith("dB="):
            Opt.dB = int(a[3:])
        if a == "nowomall":
            Opt.womall = False
        if a == "noppoll":
            Opt.ppoll = False
        if a.startswith("psleep="):
            Opt.psleep = int(a[7:])
        if a.startswith("wopf="):
            Opt.wopf = a[5:]
    for a in args:
        if a.startswith("LA="):
            Opt.LA = int(a[3:])
    open(sys.argv[1], "w").write(build())
```

```python
import sys
from asm import Asm, vr, ar, sr
from roles import (WS_PHIQ, WS_PART, WS_O, WS_KVT, WS_YT, WS_STAMP, WS_SIZE, S_X, S_W, S_WPHI, S_WO, S_BQ, S_BK, S_BV,
                   S_SH, S_SSK, S_SSD, S_OUT, S_DBG, S_WS, NB_X, NB_W, NB_WPHI, NB_WO, NB_SH, NB_SSK, NB_OUT, LOG2E,
                   Ctx, load_kernargs, srd, stamp, stamp_init, softmax20)

NAME = "concat_heads__linear_kernel_hedgehog__ssm_conv_h3__prompt"
WS_PQ = WS_PHIQ
WS_FLAG = 0xF00000
F1, F2, F3, F0, F4 = (WS_FLAG + 128 * o for o in (0, 512, 1024, 1536, 1856))
FW = WS_FLAG + 128 * 2048
WS_WOT = 0x400000
WS_EPOCH = WS_FLAG + 128 * 2560 + 64
SWS = 44
SC = " sc1"
TAG = 30
SLOT = 36864
L_WP = 147456
L_Z = L_WP + 8192
L_SYNC = L_Z + 4096
L_V = 128 * 336
L_WOB = 69632
L_OT = 65536
CV_LDS = 8768
L_QCV = 3 * SLOT
B_PRE = 8 * CV_LDS
B_MB = B_PRE + 5 * 8320


class Opt:
    rot = True
    LA = 2
    nt_s = " nt"
    codepf = True
    wopf = "no"
    osc = " sc1 nt"
    oscb = " sc1 nt"
    hp = 0
    wrot = False
    wfirst = 40
    bdelay = 0
    qdel = 0
    snake = False
    hpsel = "kv"
    oahead = 5
    gpf2 = 3
    hdef = 1
    R = 10
    wos = 1
    lite = False
    dflag = False
    prog = True
    fwarm = True
    qwait = True
    lidle = False
    bpos = 4
    fake16 = False
    qdelay = 0
    rotA = 0x5050
    rotB = 0x550050
    gpf = 0
    gpfd = 99
    rt = False
    ppoll = False
    womall = True
    probe = None
    dA = 0
    hold = 0
    holdwg = -1
    dB = 0
    psleep = 2


_stamp0 = stamp


def stamp(A, k, real=False):
    if Opt.hp:
        if k == Opt.hp:
            A("s_memrealtime s[64:65]")
        return
    if Opt.lite and k not in (0, 15):
        return
    _stamp0(A, k, real or Opt.rt)


def end_wave(A, holdable=False):
    if Opt.hp:
        if (holdable is True and Opt.hpsel in ("kv", "qw")) or (holdable == "b" and Opt.hpsel in ("b", "qs")):
            L = A.newlabel("L_hp")
            A("s_cmp_lt_u32 s99, 8")
            A("s_cbranch_scc1 L_exit" if Opt.hpsel in ("kv", "b") else "s_cbranch_scc0 L_exit")
            if holdable == "b":
                A("s_cmp_lt_u32 s100, 4")
                A("s_cbranch_scc1 L_exit")
            A.label(L)
            A("s_sleep 4")
            A("s_memrealtime s[66:67]")
            A("s_waitcnt lgkmcnt(0)")
            A("s_sub_u32 s66, s66, s64")
            A("s_cmp_lt_u32 s66, 2000")
            A(f"s_cbranch_scc1 {L}")
    elif Ctx.stamps:
        stamp(A, 15, True)
        A("s_waitcnt lgkmcnt(0)")
        A("s_mov_b64 exec, -1")
        A("v_mov_b32 v2, 0")
        for k in ((0, 15) if Opt.lite else range(16)):
            A(f"v_writelane_b32 v2, s{64+2*k}, {k}")
        A("s_lshl_b32 s62, s2, 3")
        A("s_add_u32 s62, s62, s100")
        A("s_lshl_b32 s62, s62, 6")
        A(f"s_add_u32 s62, s62, {WS_STAMP:#x}")
        A("v_lshlrev_b32 v1, 2, v1")
        A("s_mov_b64 exec, 0xffff")
        A(f"buffer_store_dword v2, v1, s[{SWS}:{SWS+3}], s62 offen")
        if Opt.probe:
            Lp = A.newlabel("L_probe")
            A(f"s_cmp_eq_u32 s2, {Opt.probe[0]}")
            A(f"s_cbranch_scc0 {Lp}")
            A(f"s_cmp_eq_u32 s100, {Opt.probe[1]}")
            A(f"s_cbranch_scc0 {Lp}")
            A("v_subrev_u32 v3, s66, v2")
            A("s_sub_u32 s62, s94, s64")
            A("v_writelane_b32 v3, s62, 15")
            A("v_cmp_ne_u32 vcc, 0, v2")
            A("v_cndmask_b32 v3, 0, v3, vcc")
            A("s_mov_b64 exec, 0xfffc")
            A(f"global_store_dword v1, v3, s[{S_DBG}:{S_DBG+1}]")
            A.label(Lp)
    A("s_endpgm")


def stampw(A, k):
    stamp(A, k)
    if Ctx.stamps:
        A("s_waitcnt lgkmcnt(0)")


def poll(A, vt, voff, soff, sleep=1):
    L, Ld = A.newlabel("L_poll"), A.newlabel("L_polld")
    A("s_movk_i32 s101, 0x4000")
    A.label(L)
    A(f"buffer_load_dwordx2 {vr(vt,2)}, v{voff}, s[{SWS}:{SWS+3}], {soff} offen{SC}")
    A("s_waitcnt vmcnt(0)")
    A(f"v_cmp_eq_u64 vcc, s[{TAG}:{TAG+1}], {vr(vt,2)}")
    A("s_cmp_eq_u64 vcc, -1")
    A(f"s_cbranch_scc1 {Ld}")
    A(f"s_sleep {sleep}")
    A("s_sub_u32 s101, s101, 1")
    A("s_cmp_eq_u32 s101, 0")
    A(f"s_cbranch_scc0 {L}")
    A("s_endpgm")
    A.label(Ld)


def ppoll(A, vt, voff, soff, sleep=1, depth=4):
    if not Opt.ppoll:
        return poll(A, vt, voff, soff, sleep=sleep)
    L, Ld = A.newlabel("L_pp"), A.newlabel("L_ppd")
    ld = lambda k: f"buffer_load_dwordx2 {vr(vt+2*k,2)}, v{voff}, s[{SWS}:{SWS+3}], {soff} offen{SC}"
    A("s_movk_i32 s101, 0x4000")
    for k in range(depth - 1):
        A(ld(k))
        A(f"s_sleep {sleep}")
    A.label(L)
    for k in range(depth):
        A(ld((k + depth - 1) % depth))
        A(f"s_waitcnt vmcnt({depth-1})")
        A(f"v_cmp_eq_u64 vcc, s[{TAG}:{TAG+1}], {vr(vt+2*k,2)}")
        A("s_cmp_eq_u64 vcc, -1")
        A(f"s_cbranch_scc1 {Ld}")
        A(f"s_sleep {sleep}")
    A("s_sub_u32 s101, s101, 1")
    A("s_cmp_eq_u32 s101, 0")
    A(f"s_cbranch_scc0 {L}")
    A("s_endpgm")
    A.label(Ld)


def set_flag(A, vt, soff):
    A(f"v_mov_b32 v{vt}, s{TAG}")
    A(f"v_mov_b32 v{vt+1}, s{TAG+1}")
    A(f"v_lshlrev_b32 v{vt+2}, 3, v1")
    A("s_waitcnt vmcnt(0)")
    A("s_mov_b64 exec, 0xffff")
    A(f"buffer_store_dwordx2 {vr(vt,2)}, v{vt+2}, s[{SWS}:{SWS+3}], {soff} offen{SC}")
    A("s_mov_b64 exec, -1")


def tag_issue(A):
    A(f"s_load_dwordx2 s[{TAG}:{TAG+1}], s[{S_DBG}:{S_DBG+1}], 0")


def tag_check(A, vt):
    L, Ld = A.newlabel("L_hs"), A.newlabel("L_hsd")
    A("s_waitcnt lgkmcnt(0)")
    A(f"s_cmp_lg_u32 s{TAG}, s{TAG+1}")
    A(f"s_cbranch_scc1 {Ld}")
    A("s_movk_i32 s101, 0x4000")
    A(f"v_mov_b32 v{vt+2}, 0")
    A.label(L)
    A(f"global_load_dwordx2 {vr(vt,2)}, v{vt+2}, s[{S_DBG}:{S_DBG+1}]{SC}")
    A("s_waitcnt vmcnt(0)")
    A(f"v_readfirstlane_b32 s{TAG}, v{vt}")
    A(f"v_readfirstlane_b32 s{TAG+1}, v{vt+1}")
    A("s_nop 3")
    A(f"s_cmp_lg_u32 s{TAG}, s{TAG+1}")
    A(f"s_cbranch_scc1 {Ld}")
    A("s_sleep 8")
    A("s_sub_u32 s101, s101, 1")
    A("s_cmp_eq_u32 s101, 0")
    A(f"s_cbranch_scc0 {L}")
    A("s_endpgm")
    A.label(Ld)


def lds_arrive(A, vt, addr):
    A(f"v_mov_b32 v{vt}, {addr}")
    A(f"v_mov_b32 v{vt+1}, 1")
    A("s_waitcnt lgkmcnt(0)")
    A("s_mov_b64 exec, 1")
    A(f"ds_add_u32 v{vt}, v{vt+1}")
    A("s_mov_b64 exec, -1")


def lds_wait(A, vt, addr, n, sleep=0):
    L, Ld = A.newlabel("L_lw"), A.newlabel("L_lwd")
    if addr is not None:
        A(f"v_mov_b32 v{vt}, {addr}")
    A("s_mov_b32 s101, 0x40000")
    A.label(L)
    A(f"ds_read_b32 v{vt+1}, v{vt}")
    A("s_waitcnt lgkmcnt(0)")
    A(f"v_cmp_le_u32 vcc, {n}, v{vt+1}")
    A(f"s_cbranch_vccnz {Ld}")
    if sleep:
        A(f"s_sleep {sleep}")
    A("s_sub_u32 s101, s101, 1")
    A("s_cmp_eq_u32 s101, 0")
    A(f"s_cbranch_scc0 {L}")
    A("s_endpgm")
    A.label(Ld)


class Lgkm:
    def __init__(self, A):
        self.A, self.n, self.done, self.tag = A, 0, 0, {}

    def issue(self, text, tag=None):
        self.A(text)
        self.n += 1
        if tag is not None:
            self.tag[tag] = self.n

    def wait(self, *tags):
        need = max(self.tag[t] for t in tags)
        if need > self.done:
            self.A(f"s_waitcnt lgkmcnt({min(15, self.n - need)})")
            self.done = max(need, self.n - 15)

    def all(self):
        if self.done < self.n:
            self.A("s_waitcnt lgkmcnt(0)")
            self.done = self.n


def softmax_parts(X, E, F, T, PH):
    mx, mn = T, T + 2
    mm = [f"v_max3_f32 v{mx}, v{X}, v{X+1}, v{X+2}", f"v_min3_f32 v{mn}, v{X}, v{X+1}, v{X+2}"]
    for i in range(3, 19, 2):
        mm += [f"v_max3_f32 v{mx}, v{mx}, v{X+i}, v{X+i+1}", f"v_min3_f32 v{mn}, v{mn}, v{X+i}, v{X+i+1}"]
    mm += [f"v_max_f32 v{mx}, v{mx}, v{X+19}", f"v_min_f32 v{mn}, v{mn}, v{X+19}",
           f"v_mul_f32 v{mx}, s60, v{mx}", f"v_mul_f32 v{mn}, s60, v{mn}"]
    fm, ex = [], []
    for i in range(0, 20, 2):
        fm.append(f"v_pk_fma_f32 {vr(E+i,2)}, {vr(X+i,2)}, s[60:61], {vr(mx,2)} op_sel_hi:[1,1,0] neg_lo:[0,0,1] neg_hi:[0,0,1]")
        fm.append(f"v_pk_fma_f32 {vr(F+i,2)}, {vr(X+i,2)}, s[60:61], {vr(mn,2)} op_sel_hi:[1,1,0] neg_lo:[1,0,0] neg_hi:[1,0,0]")
    for i in range(20):
        ex += [f"v_exp_f32 v{E+i}, v{E+i}", f"v_exp_f32 v{F+i}, v{F+i}"]
    se, sf = T + 4, T + 6
    sm = [f"v_pk_add_f32 {vr(se,2)}, {vr(E,2)}, {vr(E+2,2)}", f"v_pk_add_f32 {vr(sf,2)}, {vr(F,2)}, {vr(F+2,2)}"]
    for i in range(4, 20, 2):
        sm += [f"v_pk_add_f32 {vr(se,2)}, {vr(se,2)}, {vr(E+i,2)}", f"v_pk_add_f32 {vr(sf,2)}, {vr(sf,2)}, {vr(F+i,2)}"]
    fin = [f"v_add_f32 v{se}, v{se}, v{se+1}", f"v_add_f32 v{sf}, v{sf}, v{sf+1}",
           f"v_rcp_f32 v{se}, v{se}", f"v_rcp_f32 v{sf}, v{sf}"]
    tail = []
    for j in range(20):
        R, s_ = (E + 2 * j, se) if j < 10 else (F + 2 * (j - 10), sf)
        tail.append((f"v_pk_mul_f32 {vr(R,2)}, {vr(R,2)}, {vr(s_,2)} op_sel_hi:[1,0]", f"v_cvt_pk_bf16_f32 v{PH+j}, v{R}, v{R+1}"))
    return mm, fm, ex, sm, fin, tail


def merge(main, extra, every, start=0):
    out, extra = [], list(extra)
    for i, x in enumerate(main):
        out.append(x)
        if extra and i >= start and (i - start) % every == every - 1:
            out.append(extra.pop(0))
    return out + extra


def o_index(A):
    A("s_sub_u32 s63, s99, 8")
    A("s_lshr_b32 s62, s63, 2")
    A("s_lshl_b32 s3, s98, 2")
    A("s_add_u32 s62, s62, s3")
    A("s_and_b32 s63, s63, 3")
    A("s_lshl_b32 s63, s63, 2")
    A("s_add_u32 s63, s63, s48")


def role_loader(A):
    SX, SW, SP = 32, 36, 40
    VX, VW = 24, 28
    t0, t1, t2, t3 = 11, 12, 13, 14
    A("s_setprio 1")
    A(f"v_lshrrev_b32 v{t0}, 3, v1")
    A(f"v_mul_u32_u24 v{t0}, 1280, v{t0}")
    A(f"v_lshrrev_b32 v{t1}, 4, v1")
    A(f"v_and_b32 v{t2}, 7, v1")
    A(f"v_xor_b32 v{t1}, v{t1}, v{t2}")
    A(f"v_xor_b32 v{t2}, 4, v{t1}")
    A(f"v_lshl_add_u32 v{VX}, v{t1}, 4, v{t0}")
    A(f"v_lshl_add_u32 v{VX+1}, v{t2}, 4, v{t0}")
    A(f"v_add_u32 v{VX+2}, {2*(8*1280-1024)}, v{VX}")
    A(f"v_add_u32 v{VX+3}, {3*(8*1280-1024)}, v{VX+1}")
    A(f"v_add_u32 v{VX+1}, {8*1280-1024}, v{VX+1}")
    A("s_lshl_b32 s60, s49, 2")
    A("s_add_u32 s60, s60, s48")
    A(f"s_mul_i32 s60, s60, {32*1280}")
    if Opt.rot:
        A("s_lshl_b32 s30, s49, 2")
        A("s_bfe_u32 s30, s30, 0x40000")
        A(f"s_lshr_b32 s30, {Opt.rotA:#x}, s30")
        A("s_and_b32 s30, s30, 15")
        A("s_and_b32 s31, s99, 28")
        A(f"s_lshr_b32 s31, {Opt.rotB:#x}, s31")
        A("s_and_b32 s31, s31, 15")
        A("s_add_u32 s30, s30, s31")
        A(f"s_sub_u32 s31, s30, {Opt.R}")
        A(f"s_cmp_ge_u32 s30, {Opt.R}")
        A("s_cselect_b32 s30, s31, s30")
        A("s_lshl_b32 s31, s30, 7")
        A("s_add_u32 s60, s60, s31")
    A("s_lshl_b32 s62, s48, 12")
    A("s_mov_b32 m0, s62")
    A(f"s_mov_b32 s{SX+2}, {NB_X:#x}")
    A(f"s_mov_b32 s{SX+3}, 0x20000")
    A("s_waitcnt lgkmcnt(0)")
    A(f"s_mov_b64 s[{SX}:{SX+1}], s[{S_X}:{S_X+1}]")

    def dma_x(s):
        if s:
            A(f"s_add_u32 m0, s62, {(s % 3) * SLOT}")
        for i in range(4):
            A(f"buffer_load_dwordx4 v{VX+i}, s[{SX}:{SX+3}], s60 offen offset:{1024*i} lds")

    def dma_w(s):
        sl = (s % 3) * SLOT
        A(f"s_add_u32 m0, s63, {sl}")
        for i in range(4):
            A(f"buffer_load_dwordx4 v{VW+i}, s[{SW}:{SW+3}], s61 offen offset:{1024*i} lds")
        A(f"s_add_u32 m0, s63, {sl+4096}")
        A(f"buffer_load_dwordx4 v{VW+4}, s[{SW}:{SW+3}], s61 offen lds")
        if s < 9:
            if Opt.rot and s < Opt.R - 1:
                A("s_add_u32 s30, s30, 1")
                A(f"s_cmp_eq_u32 s30, {Opt.R}")
                A(f"s_cselect_b32 s31, {(-128*(Opt.R-1))&0xffffffff:#x}, s97")
                A(f"s_cselect_b32 s3, {(-(Opt.R-1)*64*3840)&0xffffffff:#x}, s96")
                A("s_cselect_b32 s30, 0, s30")
                A("s_add_u32 s60, s60, s31")
                A("s_add_u32 s61, s61, s3")
            elif Opt.rot and s == Opt.R - 1:
                A(f"s_sub_u32 s30, {Opt.R}, s30")
                A("s_lshl_b32 s31, s30, 7")
                A("s_mul_i32 s3, s30, s96")
                A("s_add_u32 s60, s60, s31")
                A("s_add_u32 s61, s61, s3")
            else:
                A("s_add_u32 s60, s60, 128")
                A(f"s_add_u32 s61, s61, {64*3840}")

    dma_x(0)
    A("s_cmp_eq_u32 s51, 0")
    A("s_cselect_b32 s56, 1120, 0")
    A("s_add_u32 s58, s51, 1")
    A(f"v_xor_b32 v15, s58, v1")
    A(f"v_cmp_gt_u32 vcc, 32, v1")
    A("s_movk_i32 s57, 3520")
    A(f"v_cndmask_b32 v16, v15, v1, vcc")
    for i in range(5):
        src = (1, 1, 16, 15, 15)[i]
        A(f"v_add_u32 v{t2}, {64*i}, v{src}")
        A(f"v_mul_u32_u24 v{t2}, 6554, v{t2}")
        A(f"v_lshlrev_b32 v{t3}, 4, v{src}")
        A(f"v_lshrrev_b32 v{t0}, 17, v{t2}")
        A(f"v_bfe_u32 v{t1}, v{t2}, 16, 1")
        A(f"v_mad_u32_u24 v{t0}, v{t0}, s57, v{t3}")
        A(f"v_mad_u32_u24 v{VW+i}, v{t1}, s56, v{t0}")
    A(f"v_lshlrev_b32 v{t3}, 4, v1")
    A(f"v_add_u32 v{VW+4}, 4096, v{VW+4}")
    A(f"s_mul_i32 s61, s48, {16*3840}")
    A("s_mul_i32 s57, s50, 160")
    A("s_add_u32 s58, s57, 1280")
    A("s_lshl_b32 s57, s57, 1")
    A("s_cmp_eq_u32 s51, 0")
    A("s_cselect_b32 s57, s58, s57")
    A("s_add_u32 s61, s61, s57")
    if Opt.rot:
        A(f"s_mov_b32 s96, {64*3840}")
        A("s_movk_i32 s97, 128")
        A("s_mul_i32 s31, s30, s96")
        A("s_add_u32 s61, s61, s31")
    A("s_mul_i32 s63, s48, 5120")
    A("s_add_u32 s63, s63, 16384")
    srd(A, SW, S_W, NB_W)
    dma_w(0)
    stamp(A, 2)
    A("s_mul_i32 s57, s50, 3200")
    A("s_lshl_b32 s57, s57, s51")
    A("s_lshl_b32 s58, s48, 11")
    A("s_add_u32 s57, s57, s58")
    srd(A, SP, S_WPHI, NB_WPHI)
    A(f"s_add_u32 m0, s58, {L_WP}")
    A(f"buffer_load_dwordx4 v{t3}, s[{SP}:{SP+3}], s57 offen lds")
    A(f"buffer_load_dwordx4 v{t3}, s[{SP}:{SP+3}], s57 offen offset:1024 lds")
    srd(A, SWS, S_WS, WS_SIZE)
    Lh = A.newlabel("L_noh")
    A("s_cmp_eq_u32 s51, 0")
    A(f"s_cbranch_scc1 {Lh}")
    A("s_mul_i32 s49, s98, 80")
    A("s_lshl_b32 s50, s99, 2")
    A("s_add_u32 s49, s49, s50")
    A("s_add_u32 s49, s49, s48")
    A("s_add_u32 s49, s49, 48")
    A(f"s_mul_i32 s56, s48, {CV_LDS}")
    A(f"s_add_u32 s56, s56, {L_QCV}")
    A("s_lshl_b32 s50, s49, 12")
    A.label(Lh)
    assert Opt.LA == 2
    issued = 0
    for s in range(10):
        while issued < min(s + Opt.LA - 1, 9):
            issued += 1
            dma_x(issued)
            dma_w(issued)
        if s == 0:
            Ls = A.newlabel("L_nosetup")
            A("s_cmp_ge_u32 s99, 8")
            A(f"s_cbranch_scc1 {Ls}")
            conv_setup(A)
            f0_lines(A, 49, 49, 12)
            A.label(Ls)
        if s == 9:
            tag_issue(A)
        A(f"s_waitcnt vmcnt({9*(issued-s)})")
        A("s_barrier")
        if s in (0, 3, 6, 9):
            stamp(A, 3 + s // 3)
    A("s_setprio 0")
    A("s_cmp_lt_u32 s99, 8")
    A("s_cbranch_scc1 L_conv")
    role_wo(A)


def role_wo(A):
    SO, SWO = 32, 36
    WR = 64
    A.label("L_wo")
    A("s_lshr_b32 s50, s99, 2")
    A("s_sub_u32 s50, s50, 1")
    A("s_max_i32 s50, s50, 0")
    A("s_lshl_b32 s50, s50, 2")
    A("s_add_u32 s50, s50, s48")
    A("s_lshl_b32 s52, s50, 6")
    A("s_mul_i32 s51, s50, 40960")
    A(f"s_add_u32 s51, s51, {WS_WOT:#x}")
    A("s_lshl_b32 s54, s50, 10")
    A(f"s_add_u32 s54, s54, {FW:#x}")
    A("v_lshrrev_b32 v15, 3, v1")
    A("v_lshlrev_b32 v15, 7, v15")
    A("v_lshlrev_b32 v18, 4, v1")
    tag_check(A, 20)
    A(f"buffer_load_dwordx2 v[16:17], v15, s[{SWS}:{SWS+3}], s54 offen{SC}")
    Lj, Lk = A.newlabel("L_woj"), A.newlabel("L_wok")
    A("s_cmp_lt_u32 s99, 8")
    A(f"s_cbranch_scc1 {Lj}")
    A("s_barrier")
    A.label(Lj)
    A("s_waitcnt vmcnt(0)")
    A(f"v_cmp_eq_u64 vcc, s[{TAG}:{TAG+1}], v[16:17]")
    A("s_cmp_eq_u64 vcc, -1")
    A(f"s_cbranch_scc1 {Lk}")
    poll(A, 16, 15, "s54", sleep=8)
    A.label(Lk)

    def wload(f0, f1):
        for f in range(f0, f1):
            if f % 4 == 0 or f == f0:
                A(f"s_add_u32 s53, s51, {4096*(f//4)}")
            A(f"buffer_load_dwordx4 {vr(WR+4*f,4)}, v18, s[{SWS}:{SWS+3}], s53 offen offset:{1024*(f&3)}{SC}")

    if Opt.wrot:
        A("s_and_b32 s55, s99, 3")
        A("s_mov_b32 s56, 4")
        for q in range(1, 4):
            A(f"s_cmp_eq_u32 s55, {q}")
            A(f"s_cbranch_scc1 L_wq{q}")
        for q in range(4):
            A.label(f"L_wq{q}")
            wload(10 * q, 10 * q + 10)
            A("s_sub_u32 s56, s56, 1")
            A("s_cmp_eq_u32 s56, 0")
            A("s_cbranch_scc1 L_wqe" if q < 3 else "s_cbranch_scc0 L_wq0")
        A.label("L_wqe")
    else:
        wload(0, Opt.wfirst)
    A("v_lshrrev_b32 v2, 2, v1")
    A("v_and_b32 v3, 3, v1")
    A("s_mul_i32 s53, s48, 20480")
    A(f"s_add_u32 s53, s53, {L_WOB}")
    A("v_lshrrev_b32 v11, 5, v1")
    A("v_and_b32 v9, 31, v1")
    A("v_lshrrev_b32 v15, 4, v1")
    A("v_lshlrev_b32 v15, 7, v15")
    o_index(A)
    Lq1, Lq2 = A.newlabel("L_woq"), A.newlabel("L_woq")
    A("s_cmp_lt_u32 s99, 8")
    A(f"s_cbranch_scc1 {Lq2}")
    A("s_lshr_b32 s54, s62, 2")
    A("s_lshl_b32 s54, s54, 4")
    A("s_add_u32 s54, s54, s63")
    A("s_lshl_b32 s54, s54, 8")
    A("v_lshlrev_b32 v19, 7, v11")
    A(f"s_add_u32 s54, s54, {F2:#x}")
    A("s_lshl_b32 s55, s62, 4")
    A("s_add_u32 s55, s55, s63")
    A("s_mul_i32 s55, s55, 5120")
    poll(A, 16, 19, "s54", sleep=4)
    A("s_mov_b32 m0, s53")
    A("s_add_u32 s54, s55, 4096")
    for i in range(4):
        A(f"buffer_load_dwordx4 v18, s[{SWS}:{SWS+3}], s55 offen offset:{1024*i}{SC} lds")
    A("s_add_u32 m0, s53, 4096")
    A(f"buffer_load_dwordx4 v18, s[{SWS}:{SWS+3}], s54 offen{SC} lds")
    A("s_lshl_b32 s54, s48, 2")
    A(f"s_add_u32 s54, s54, {L_SYNC+16}")
    A("s_waitcnt vmcnt(0)")
    lds_arrive(A, 16, "s54")
    stamp(A, 14)
    stamp(A, 7)
    A("s_lshl_b32 s54, s62, 2")
    A("s_add_u32 s54, s54, s48")
    A("s_mul_i32 s55, s54, 10240")
    A(f"s_add_u32 s55, s55, {WS_PART:#x}")
    A("s_lshl_b32 s54, s54, 9")
    A(f"s_add_u32 s54, s54, {F1:#x}")
    A("v_min_u32 v19, 20, v9")
    A("v_and_b32 v20, 32, v1")
    A("v_add_u32 v19, v19, v20")
    A("v_lshlrev_b32 v20, 3, v19")
    A("v_lshlrev_b32 v19, 4, v19")
    A("s_mul_i32 s57, s48, 5120")
    A("v_add_u32 v21, s57, v18")
    A("s_mov_b32 s59, 0xffff0000")
    lds_wait(A, 16, L_SYNC + 4, 4, sleep=2)
    PR = [24, 34, 44, 54]
    SM, TP = 224, 244

    def pload(p):
        so = "s55" if p < 1 else f"s{40+p}"
        A(f"buffer_load_dwordx4 {vr(PR[p],4)}, v19, s[{SWS}:{SWS+3}], {so} offen{SC}")
        A(f"buffer_load_dwordx4 {vr(PR[p]+4,4)}, v19, s[{SWS}:{SWS+3}], {so} offen offset:1024{SC}")
        A(f"buffer_load_dwordx2 {vr(PR[p]+8,2)}, v20, s[{SWS}:{SWS+3}], {so} offen offset:2048{SC}")

    for p in (1, 2, 3):
        A(f"s_add_u32 s{40+p}, s55, {2560*p}")
    if Opt.prog:
        L, Ld = A.newlabel("L_pg"), A.newlabel("L_pgd")
        A("s_mov_b64 s[56:57], 0")
        A("s_movk_i32 s101, 0x4000")
        A.label(L)
        A(f"buffer_load_dwordx2 v[16:17], v15, s[{SWS}:{SWS+3}], s54 offen{SC}")
        A("s_waitcnt vmcnt(0)")
        A(f"v_cmp_eq_u64 vcc, s[{TAG}:{TAG+1}], v[16:17]")
        A("s_andn2_b64 s[50:51], vcc, s[56:57]" if False else "s_andn2_b64 s[96:97], vcc, s[56:57]")
        A("s_mov_b64 s[56:57], vcc")
        for p in range(4):
            Ls = A.newlabel("L_pgs")
            A(f"s_bitcmp1_b64 s[96:97], {16*p}")
            A(f"s_cbranch_scc0 {Ls}")
            pload(p)
            A.label(Ls)
        A("s_cmp_eq_u64 s[56:57], -1")
        A(f"s_cbranch_scc1 {Ld}")
        A(f"s_sleep {Opt.psleep}")
        A("s_sub_u32 s101, s101, 1")
        A(f"s_cbranch_scc0 {L}")
        A("s_endpgm")
        A.label(Ld)
        stamp(A, 12)
        A("s_waitcnt vmcnt(0)")
    else:
        ppoll(A, 244, 15, "s54", sleep=Opt.psleep)
        stamp(A, 12)
        for p in range(4):
            pload(p)
    A("s_setprio 3")
    for p in range(4):
        A(f"s_waitcnt vmcnt({9-3*p})")
        for i in range(10):
            d = SM + 2 * i if p == 0 else TP + 2 * (i % 5)
            A(f"v_lshlrev_b32 v{d}, 16, v{PR[p]+i}")
            A(f"v_and_b32 v{d+1}, s59, v{PR[p]+i}")
            if p:
                A(f"v_pk_add_f32 {vr(SM+2*i,2)}, {vr(SM+2*i,2)}, {vr(d,2)}")
    for q in range(5):
        A(f"ds_write_b128 v21, {vr(SM+4*q,4)} offset:{1024*q}")
    lds_arrive(A, 16, L_SYNC + 8)
    A("s_setprio 0")
    stamp(A, 13)
    A.label(Lq2)
    if not Opt.wrot:
        wload(Opt.wfirst, 40)
    srd(A, SO, S_OUT, NB_OUT)
    A("s_and_b32 s54, s99, 3")
    A("s_lshl_b32 s55, s98, 2")
    A("s_add_u32 s54, s54, s55")
    A("s_lshr_b32 s55, s54, 1")
    A("s_lshl_b32 s55, s55, 12")
    A(f"s_add_u32 s55, s55, {F3:#x}")
    A("s_lshl_b32 s57, s48, 10")
    A("s_add_u32 s55, s55, s57")
    A("v_lshrrev_b32 v15, 3, v1")
    A("v_lshlrev_b32 v15, 7, v15")
    A("s_mul_i32 s57, s54, 81920")
    A(f"s_add_u32 s57, s57, {WS_O:#x}")
    A("s_lshr_b32 s58, s48, 1")
    A("s_mul_i32 s58, s58, 40960")
    A("s_and_b32 s59, s48, 1")
    A("s_lshl_b32 s59, s59, 12")
    A("s_add_u32 s58, s58, s59")
    A("s_add_u32 s57, s57, s58")
    A(f"s_add_u32 s58, s58, {L_OT}")
    A("v_mov_b32 v5, v18")
    A(f"v_add_u32 v6, {L_OT}, v5")
    A(f"v_add_u32 v7, {L_OT+40960}, v5")
    A("v_lshlrev_b32 v10, 3, v9")
    A("v_lshl_add_u32 v10, v11, 9, v10")
    A(f"v_add_u32 v10, {L_OT+32768}, v10")
    A("s_mul_i32 s56, s48, 5120")
    A("s_waitcnt lgkmcnt(0)")
    A("v_mul_u32_u24 v12, 80, v9")
    A("v_lshl_add_u32 v12, v11, 5, v12")
    A("v_add_u32 v12, s56, v12")
    A("v_mul_u32_u24 v13, 80, v2")
    A("v_lshl_add_u32 v13, v3, 4, v13")
    A("v_add_u32 v13, s56, v13")
    A("v_mul_u32_u24 v14, 2560, v2")
    A("v_lshl_add_u32 v14, v3, 4, v14")
    A(f"s_mul_i32 s59, s54, {64*2560}")
    A("s_add_u32 s59, s59, s52")
    lds_wait(A, 16, L_SYNC + 12, 4, sleep=2)
    stamp(A, 8)
    ppoll(A, 48, 15, "s55", sleep=Opt.psleep)
    A("s_barrier")
    stamp(A, 9)
    def oissue(k):
        A(f"s_add_u32 m0, s58, {8192*k}")
        for i in range(4):
            A(f"buffer_load_dwordx4 v5, s[{SWS}:{SWS+3}], s57 offen offset:{1024*i}{SC} lds")
        if k < 4:
            A("s_add_u32 s57, s57, 8192")

    for k in range(Opt.oahead):
        oissue(k)
    if Ctx.stamps:
        A("s_waitcnt lgkmcnt(0)")
    ACC = (16, 32)
    OFB = 224
    T = Lgkm(A)

    def rdx(f):
        if f % 8 == 0:
            k = f // 8
            A(f"s_waitcnt vmcnt({4*(min(k+Opt.oahead,5)-k-1)})")
            A("s_barrier")
            if k + Opt.oahead < 5:
                oissue(k + Opt.oahead)
        for t in range(2):
            d = OFB + 4 * ((2 * f + t) % 8)
            if f < 32:
                T.issue(f"ds_read_b128 {vr(d,4)}, v{6+t} offset:{1024*f}", (f, t))
            else:
                a = f - 32
                T.issue(f"ds_read_b64 {vr(d,2)}, v10 offset:{40960*t + 1024*a}")
                T.issue(f"ds_read_b64 {vr(d+2,2)}, v10 offset:{40960*t + 1024*a + 256}", (f, t))

    for f in range(3):
        rdx(f)
    for f in range(40):
        for t in range(2):
            T.wait((f, t))
            c = vr(ACC[t], 16) if f else "0"
            A(f"v_mfma_f32_32x32x16_bf16 {vr(ACC[t],16)}, {vr(WR+4*f,4)}, {vr(OFB+4*((2*f+t)%8),4)}, {c}")
            if t == 0 and f + 3 < 40:
                rdx(f + 3)
    stamp(A, 10)
    for t in range(2):
        for i in range(8):
            A(f"v_cvt_pk_bf16_f32 v{48+8*t+i}, v{ACC[t]+2*i}, v{ACC[t]+2*i+1}")
        for i in range(2):
            A(f"ds_write_b128 v12, {vr(48+8*t+4*i,4)} offset:{2560*t+16*i}")
    A("s_waitcnt lgkmcnt(0)")
    for i in range(4):
        A(f"ds_read_b128 {vr(64+4*i,4)}, v13 offset:{1280*i}")
    for i in range(4):
        A(f"s_waitcnt lgkmcnt({3-i})")
        A(f"buffer_store_dwordx4 {vr(64+4*i,4)}, v14, s[{SO}:{SO+3}], s59 offen{Opt.osc}")
        if i < 3:
            A(f"s_add_u32 s59, s59, {16*2560}")
    stamp(A, 11)
    end_wave(A, True)


def role_compute(A):
    ACC = 16
    WF = (96, 116)
    XF = (136, 152)
    XA, WA, AD = 168, 172, 182
    t0, t1, t2, t3 = 11, 12, 13, 14
    for i in range(80):
        A(f"v_mov_b32 v{ACC+i}, 0")
    A(f"v_and_b32 v{t0}, 255, v0")
    A(f"v_lshlrev_b32 v{t0}, 4, v{t0}")
    A(f"v_add_u32 v{t0}, {L_Z}, v{t0}")
    A(f"ds_write_b128 v{t0}, {vr(ACC,4)}")
    A(f"ds_write_b128 v{t0}, {vr(ACC,4)} offset:64")
    A("s_lshr_b32 s52, s48, 1")
    A("s_and_b32 s53, s48, 1")
    S16, G4, R4, C4 = 183, 184, 185, 186
    A(f"v_and_b32 v{S16}, 15, v1")
    A(f"v_lshrrev_b32 v{G4}, 4, v1")
    A(f"v_bfe_u32 v{R4}, v1, 2, 2")
    A(f"v_and_b32 v{C4}, 3, v1")
    A(f"v_bfe_u32 v{t2}, v1, 1, 3")
    A(f"v_xor_b32 v{t2}, v{t2}, v{G4}")
    A(f"v_lshlrev_b32 v{t2}, 4, v{t2}")
    A(f"v_lshl_add_u32 v{t2}, v{S16}, 7, v{t2}")
    A("s_lshl_b32 s54, s52, 13")
    A(f"v_add_u32 v{XA}, s54, v{t2}")
    A(f"v_xor_b32 v{XA+1}, 64, v{XA}")
    A(f"v_add_u32 v{XA+2}, {2*SLOT}, v{XA}")
    A(f"v_add_u32 v{XA+3}, {2*SLOT}, v{XA+1}")
    A("s_cmp_eq_u32 s51, 0")
    A("s_cselect_b32 s55, 80, 0")
    A("s_mul_i32 s56, s53, 80")
    A("s_lshl_b32 s56, s56, s51")
    A(f"v_lshrrev_b32 v{t0}, 1, v{C4}")
    A(f"v_mul_u32_u24 v{t0}, s55, v{t0}")
    A(f"v_mad_u32_u24 v{t0}, v{C4}, 40, v{t0}")
    A(f"v_add_u32 v{t0}, s56, v{t0}")
    A(f"v_and_b32 v{t1}, 1, v{G4}")
    A("s_add_u32 s57, s51, 4")
    A(f"v_lshlrev_b32 v{t1}, s57, v{t1}")
    A(f"v_lshl_add_u32 v{t2}, v{G4}, 3, v{R4}")
    A(f"v_mul_u32_u24 v{t2}, 320, v{t2}")
    A(f"v_add_u32 v{t2}, 16384, v{t2}")
    for t in range(5):
        A(f"v_add_u32 v{t3}, {8*t}, v{t0}")
        A(f"v_xor_b32 v{t3}, v{t3}, v{t1}")
        A(f"v_add_u32 v{WA+t}, v{t2}, v{t3}")
        A(f"v_add_u32 v{WA+5+t}, {2*SLOT}, v{WA+t}")
    HD = 187
    A("s_cmp_eq_u32 s51, 0")
    A("s_cselect_b32 s55, 1, 3")
    A("s_add_u32 s57, s51, 1")
    A("s_lshl_b32 s56, s53, s57")
    A(f"v_and_b32 v{HD}, s55, v{G4}")
    A(f"v_add_u32 v{HD}, s56, v{HD}")
    A(f"v_mul_u32_u24 v{t0}, 800, v{HD}")
    A(f"v_mad_u32_u24 v{t0}, v{R4}, 40, v{t0}")
    A(f"v_add_u32 v{t0}, {L_WP}, v{t0}")
    A(f"v_mov_b32 v{t1}, {L_Z}")
    A(f"v_cmp_eq_u32 vcc, v{C4}, v{G4}")
    A(f"v_cndmask_b32 v{AD}, v{t1}, v{t0}, vcc")
    A(f"v_lshrrev_b32 v{t0}, 5, v1")
    A(f"v_lshl_add_u32 v{t0}, v{t0}, 4, v{S16}")
    A("s_lshl_b32 s57, s52, 6")
    A(f"v_add_u32 v{t0}, s57, v{t0}")
    A(f"v_mul_u32_u24 v{t1}, 208, v{t0}")
    A(f"v_mad_u32_u24 v2, v{HD}, 48, v{t1}")
    A(f"v_add_u32 v2, {L_V}, v2")
    A(f"v_mul_u32_u24 v{t3}, 80, v{HD}")
    A(f"v_mul_u32_u24 v{t2}, 336, v{t0}")
    A(f"v_add_u32 v3, v{t3}, v{t2}")
    A(f"v_lshrrev_b32 v{t1}, 5, v1")
    A(f"v_lshl_add_u32 v9, v{t1}, 3, v{R4}")
    A(f"v_bfe_u32 v{t2}, v1, 4, 1")
    A(f"v_bfe_u32 v{t3}, v1, 1, 1")
    A(f"v_lshl_add_u32 v10, v{t2}, 1, v{t3}")
    A(f"v_and_b32 v15, 1, v1")
    A(f"v_mul_u32_u24 v{t0}, 336, v9")
    A(f"v_mad_u32_u24 v{t1}, v15, 5, v10")
    A(f"v_lshl_add_u32 v{t0}, v{t1}, 3, v{t0}")
    A("s_mul_i32 s57, s48, 80")
    A(f"v_add_u32 v6, s57, v{t0}")
    A(f"v_lshl_add_u32 v{t0}, v10, 1, v15")
    A("s_mul_i32 s57, s48, 6")
    A(f"v_min_u32 v{t1}, 5, v{t0}")
    A(f"v_add_u32 v{t1}, s57, v{t1}")
    A(f"v_mul_u32_u24 v{t0}, 208, v9")
    A(f"v_lshl_add_u32 v{t0}, v{t1}, 3, v{t0}")
    A(f"v_add_u32 v7, {L_V}, v{t0}")
    WPF = 188
    for tp in range(5):
        A(f"v_mov_b32 v{WPF+12*tp+10}, 0")
        A(f"v_mov_b32 v{WPF+12*tp+11}, 0")
    A(f"s_mov_b32 s60, {LOG2E:#x}")
    A(f"s_mov_b32 s61, {LOG2E:#x}")
    A("s_waitcnt lgkmcnt(0)")
    srd(A, SWS, S_WS, WS_SIZE)
    if Opt.fwarm:
        o_index(A)
        A("s_lshl_b32 s54, s62, 2")
        A("s_add_u32 s54, s54, s48")
        A("s_lshl_b32 s54, s54, 2")
        A("s_lshr_b32 s55, s62, 2")
        A("s_lshl_b32 s55, s55, 4")
        A("s_add_u32 s55, s55, s63")
        A("s_lshl_b32 s55, s55, 1")
        A("s_add_u32 s55, s55, 508")
        A("s_and_b32 s56, s99, 2")
        A("s_lshl_b32 s57, s98, 2")
        A("s_add_u32 s56, s56, s57")
        A("s_lshl_b32 s56, s56, 4")
        A("s_lshl_b32 s57, s48, 3")
        A("s_add_u32 s56, s56, s57")
        A("s_add_u32 s56, s56, 1016")
        A(f"v_mov_b32 v{t0}, s54")
        A(f"v_mov_b32 v{t1}, s55")
        A(f"v_mov_b32 v{t2}, s56")
        A("v_cmp_gt_u32 vcc, 16, v1")
        A(f"v_cndmask_b32 v{t1}, v{t1}, v{t0}, vcc")
        A("v_cmp_gt_u32 vcc, 32, v1")
        A(f"v_cndmask_b32 v{t1}, v{t2}, v{t1}, vcc")
        A(f"v_lshrrev_b32 v{t0}, 2, v1")
        A(f"v_add_u32 v{t0}, v{t0}, v{t1}")
        A(f"v_and_b32 v{t0}, 2047, v{t0}")
        A(f"v_lshlrev_b32 v{t0}, 7, v{t0}")
        A(f"s_mov_b32 s54, {WS_FLAG:#x}")
        A(f"buffer_load_dword v4, v{t0}, s[{SWS}:{SWS+3}], s54 offen{SC}")
    A("s_setprio 2")

    T = Lgkm(A)

    def reads(s, ks):
        sl, b = s % 3, ks
        L = []
        for t in range(5):
            for half in range(2):
                L.append((f"ds_read_b64_tr_b16 {vr(WF[b]+4*t+2*half,2)}, v{WA+5*(sl>>1)+t} offset:{(sl&1)*SLOT + (32*ks+4*half)*320}",
                          ("w", s, ks, t) if half else None))
            if t == 0:
                for rho in range(4):
                    L.append((f"ds_read_b128 {vr(XF[b]+4*rho,4)}, v{XA+2*(sl>>1)+ks} offset:{(sl&1)*SLOT + 2048*rho}", ("x", s, ks, rho)))
        return L

    wp = []
    for tp in range(5):
        for dq in range(5):
            wp.append((f"ds_read_b64_tr_b16 {vr(WPF+12*tp+2*dq,2)}, v{AD} offset:{160*dq+8*tp}", None))

    A("s_barrier")
    stampw(A, 3)
    for x, tg in reads(0, 0):
        T.issue(x, tg)
    for s in range(10):
        for ks in range(2):
            last = (s == 9 and ks == 1)
            nxt = [] if last else (reads(s, 1) if ks == 0 else reads(s + 1, 0))
            if ks == 0 and s < 5:
                nxt += wp[5 * s:5 * s + 5]
            start = 0 if ks == 0 else Opt.bpos
            for k in range(20):
                t, rho = k // 4, k % 4
                if Opt.snake and t & 1:
                    rho = 3 - rho
                T.wait(("w", s, ks, t), ("x", s, ks, rho))
                a_ = ACC + 20 * rho + 4 * t
                A(f"v_mfma_f32_16x16x32_bf16 {vr(a_,4)}, {vr(WF[ks]+4*t,4)}, {vr(XF[ks]+4*rho,4)}, {vr(a_,4)}")
                if ks == 1 and k == start:
                    T.all()
                    A("s_barrier")
                if k >= start and nxt:
                    T.issue(*nxt.pop(0))
            assert not nxt
    stamp(A, 4)
    if Opt.fwarm:
        A("s_waitcnt vmcnt(0)")
    tag_issue(A)
    PS = (96, 106, 118, 128)
    E, F, TT_ = 140, 160, 248

    def cvt(rho):
        L = [f"v_cvt_pk_bf16_f32 v{PS[rho]+i}, v{ACC+20*rho+2*i}, v{ACC+20*rho+2*i+1}" for i in range(10)]
        if rho & 1:
            L += [f"v_mov_b32 v{PS[rho]+10}, 0x3f803f80", f"v_mov_b32 v{PS[rho]+11}, 0x3f803f80"]
        return L

    def phi_mfma(src, acc):
        L = []
        for u in range(3):
            for tp in range(5):
                c = vr(acc + 4 * tp, 4) if u else "0"
                L.append(f"v_mfma_f32_16x16x32_bf16 {vr(acc+4*tp,4)}, {vr(WPF+12*tp+4*u,4)}, {vr(src+4*u,4)}, {c}")
        return L

    def weave(mf, va, per):
        mf, va = list(mf), list(va)
        while mf or va:
            if mf:
                A(mf.pop(0))
            for _ in range(per):
                if va:
                    A(va.pop(0))

    for x in cvt(0) + cvt(1):
        A(x)
    Lq = A.newlabel("L_q")
    A("s_cmp_eq_u32 s51, 0")
    A(f"s_cbranch_scc0 {Lq}")
    mq = A.mark()
    for i in range(10):
        A(f"v_permlane32_swap_b32 v{PS[0]+i}, v{PS[1]+i}")
    weave(phi_mfma(PS[0], ACC), cvt(2) + cvt(3) + [f"v_permlane32_swap_b32 v{PS[2]+i}, v{PS[3]+i}" for i in range(10)], 2)
    vw = [f"ds_write_b128 v2, {vr(PS[1+2*sg]+4*i,4)} offset:{32*208*sg+16*i}" for sg in range(2) for i in range(3)]

    def body(parts):
        mm, fm, ex, sm, fin, tail = parts
        L = fm[:4]
        fm2, sm2 = list(fm[4:]), list(sm)
        for k in range(0, 40, 4):
            L += ex[k:k + 2]
            if fm2:
                L.append(fm2.pop(0))
            L += ex[k + 2:k + 4]
            if fm2:
                L.append(fm2.pop(0))
            if k >= 8:
                L += [sm2.pop(0), sm2.pop(0)]
        return L + sm2 + fin

    def tail_list(tail, wr):
        L = [tail[0][0], tail[1][0]]
        for j in range(20):
            if j + 2 < 20:
                L.append(tail[j + 2][0])
            L.append(tail[j][1])
            if wr and j % 4 == 3:
                L.append(wr[j // 4])
        return L

    s0 = softmax_parts(ACC, E, F, TT_, 56)
    s1 = softmax_parts(ACC + 20, E, F, TT_, 76)
    w0 = [f"ds_write_b128 v3, {vr(56+4*i,4)} offset:{16*i}" for i in range(5)]
    w1 = [f"ds_write_b128 v3, {vr(76+4*i,4)} offset:{32*336+16*i}" for i in range(5)]
    m1 = phi_mfma(PS[2], ACC + 20)
    for x in m1[:4]:
        A(x)
    weave(m1[4:], s0[0], 2)
    stamp(A, 2)
    for x in merge(body(s0), vw, 12) + tail_list(s0[5], w0):
        A(x)
    stamp(A, 13)
    for x in s1[0] + body(s1) + tail_list(s1[5], w1):
        A(x)
    stamp(A, 5)
    lds_arrive(A, 10, L_SYNC)
    A("s_lshl_b32 s57, s50, 2")
    A("s_add_u32 s57, s57, s48")
    A("s_lshl_b32 s57, s57, 4")
    A("s_add_u32 s57, s57, s49")
    A("s_lshl_b32 s59, s57, 7")
    A(f"s_add_u32 s59, s59, {F1:#x}")
    A("s_mul_i32 s57, s57, 2560")
    A(f"s_add_u32 s57, s57, {WS_PART:#x}")
    A("v_lshlrev_b32 v2, 4, v1")
    A("v_lshlrev_b32 v3, 3, v1")
    lds_wait(A, 10, None, 4)
    tag_check(A, 12)
    FA = 64
    T = Lgkm(A)
    for u in range(10):
        if u < 8:
            for half in range(2):
                o = (16 * u + 4 * half)
                T.issue(f"ds_read_b64_tr_b16 {vr(FA+12*u+2*half,2)}, v6 offset:{o*336}")
                T.issue(f"ds_read_b64_tr_b16 {vr(FA+12*u+4+2*half,2)}, v6 offset:{o*336+32}")
                T.issue(f"ds_read_b64_tr_b16 {vr(FA+12*u+8+2*half,2)}, v7 offset:{o*208}", u)
        if u >= 2:
            uu = u - 2
            T.wait(uu)
            for TT in range(2):
                c = vr(ACC + 16 * TT, 16) if uu else "0"
                A(f"v_mfma_f32_32x32x16_bf16 {vr(ACC+16*TT,16)}, {vr(FA+12*uu+4*TT,4)}, {vr(FA+12*uu+8,4)}, {c}")
    o_index(A)
    for i in range(10):
        A(f"v_cvt_pk_bf16_f32 v{48+i}, v{ACC+2*i}, v{ACC+2*i+1}")
    A(f"buffer_store_dwordx2 v[56:57], v3, s[{SWS}:{SWS+3}], s57 offen offset:2048{SC}")
    A("s_mov_b32 exec_lo, 0x00ffffff")
    A("s_mov_b32 exec_hi, 0x00ffffff")
    A(f"buffer_store_dwordx4 v[48:51], v2, s[{SWS}:{SWS+3}], s57 offen{SC}")
    A(f"buffer_store_dwordx4 v[52:55], v2, s[{SWS}:{SWS+3}], s57 offen offset:1024{SC}")
    A("s_mov_b64 exec, -1")
    stamp(A, 6)
    role_o(A)
    end_wave(A)
    A.label(Lq)
    hq = A.mark()
    pre = [f"s_mov_b32 s57, {64*1280}",
           f"v_mul_lo_u32 v{t1}, s57, v{HD}",
           f"v_lshl_add_u32 v2, v{S16}, 4, v{t1}",
           f"v_lshl_add_u32 v3, v{S16}, 3, v{t1}",
           "s_lshl_b32 s58, s49, 1",
           "s_add_u32 s58, s58, s52",
           "s_lshl_b32 s59, s50, 1",
           "s_add_u32 s59, s59, s53",
           "s_lshl_b32 s59, s59, 5",
           "s_add_u32 s59, s59, s58",
           "s_lshl_b32 s59, s59, 7",
           f"s_add_u32 s59, s59, {F2:#x}",
           "s_lshl_b32 s57, s50, 8",
           "s_add_u32 s57, s57, s58",
           "s_mul_i32 s57, s57, 2560"]
    A("s_nop 0")
    OQ = 140

    def outq(rho):
        x, o = ACC + 20 * rho, OQ + 10 * rho
        off = 1280 * (rho >> 1)
        L = [f"v_cvt_pk_bf16_f32 v{o+i}, v{x+2*i}, v{x+2*i+1}" for i in range(10)]
        L.append(f"buffer_store_dwordx4 {vr(o,4)}, v2, s[{SWS}:{SWS+3}], s57 offen offset:{off+256*(rho&1)}{SC}")
        L.append(f"buffer_store_dwordx4 {vr(o+4,4)}, v2, s[{SWS}:{SWS+3}], s57 offen offset:{off+512+256*(rho&1)}{SC}")
        L.append(f"buffer_store_dwordx2 {vr(o+8,2)}, v3, s[{SWS}:{SWS+3}], s57 offen offset:{off+1024+128*(rho&1)}{SC}")
        return L

    weave(phi_mfma(PS[0], ACC), pre + cvt(2), 2)
    m = phi_mfma(PS[1], ACC + 20)
    weave(m[:6], cvt(3), 2)
    weave(m[6:], outq(0), 2)
    m = phi_mfma(PS[2], ACC + 40)
    weave(m[:6], [], 0)
    weave(m[6:], outq(1), 2)
    m = phi_mfma(PS[3], ACC + 60)
    weave(m[:6], [], 0)
    weave(m[6:], outq(2), 2)
    for x in outq(3):
        A(x)
    stamp(A, 6)
    tag_check(A, 10)
    set_flag(A, 10, "s59")
    stamp(A, 7)
    A.check_seam(mq, hq)
    lds_arrive(A, 14, L_SYNC)
    lds_wait(A, 14, None, 4, sleep=1)
    A("s_setprio 0")
    A("s_cmp_lt_u32 s99, 4")
    A("s_cbranch_scc1 L_wo")
    if Opt.wopf == "qs":
        srd(A, 36, S_WO, NB_WO)
        A("s_sub_u32 s57, s99, 4")
        A("s_lshl_b32 s57, s57, 2")
        A("s_add_u32 s57, s57, s48")
        A("s_lshl_b32 s57, s57, 13")
        A(f"s_add_u32 s57, s57, {240*1280}")
        A("v_lshlrev_b32 v8, 7, v1")
        for i in range(4):
            A(f"buffer_load_dword v{200+i}, v8, s[36:39], s57 offen")
            A(f"s_add_u32 s57, s57, {16*8192}")
    A("s_cmp_lt_u32 s48, 2")
    A("s_cbranch_scc1 L_post")
    end_wave(A)


def role_o(A):
    NT = 4
    RAW, X, PQ = 64, 104, 128
    A("s_mul_i32 s53, s48, 20480")
    A(f"s_add_u32 s53, s53, {L_WOB}")
    A("v_and_b32 v4, 31, v1")
    A("v_lshl_add_u32 v5, v4, 4, s53")
    A("v_lshl_add_u32 v6, v4, 3, s53")
    A("v_and_b32 v7, 32, v1")
    A("v_lshlrev_b32 v7, 26, v7")
    A("s_lshl_b32 s54, s48, 2")
    A(f"s_add_u32 s54, s54, {L_SYNC+16}")
    A("s_mov_b32 s58, 0xffff0000")
    for t in range(NT):
        A(f"v_mov_b32 v{PQ+12*t+10}, 0")
        A(f"v_mov_b32 v{PQ+12*t+11}, 0")
    A("s_mov_b32 s96, s59")
    A("s_mov_b32 s97, 0")
    if Opt.dflag:
        Lgo = A.newlabel("L_go")
        A("v_mov_b32 v14, s54")
        A("ds_read_b32 v15, v14")
        A("s_waitcnt lgkmcnt(0)")
        A("v_cmp_le_u32 vcc, 1, v15")
        A(f"s_cbranch_vccnz {Lgo}")
    set_flag(A, 10, "s96")
    lds_arrive(A, 14, L_SYNC + 4)
    A("s_mov_b32 s97, 1")
    stamp(A, 7)
    lds_wait(A, 14, "s54", 1)
    if Opt.dflag:
        A.label(Lgo)
    stampw(A, 8)
    T = Lgkm(A)
    for t in range(NT):
        T.issue(f"ds_read_b128 {vr(RAW+10*t,4)}, v5 offset:{1280*t}")
        T.issue(f"ds_read_b128 {vr(RAW+10*t+4,4)}, v5 offset:{1280*t+512}")
        T.issue(f"ds_read_b64 {vr(RAW+10*t+8,2)}, v6 offset:{1280*t+1024}", t)
    A("s_lshl_b32 s57, s63, 2")
    A("s_mul_i32 s54, s57, 40960")
    A(f"s_add_u32 s54, s54, {WS_O:#x}")
    A("s_lshl_b32 s59, s62, 8")
    A("s_add_u32 s59, s59, s54")
    A("s_add_u32 s59, s59, 32768")
    A("s_lshl_b32 s57, s62, 10")
    A("s_add_u32 s54, s54, s57")
    A("s_lshl_b32 s50, s63, 5")
    A("s_add_u32 s50, s50, s62")
    A("s_lshl_b32 s50, s50, 7")
    A(f"s_add_u32 s50, s50, {F3:#x}")
    mx, se = 124, 126
    for t in range(NT):
        T.wait(t)
        for i in range(10):
            A(f"v_lshl_add_u32 v{X+2*i}, v{RAW+10*t+i}, 16, v7")
            A(f"v_bitop3_b32 v{X+2*i+1}, v{RAW+10*t+i}, s58, v7 bitop3:0x6a")
        A(f"v_max3_f32 v{mx}, v{X}, v{X+1}, v{X+2}")
        A(f"v_max3_f32 v{mx+1}, v{X+3}, v{X+4}, v{X+5}")
        for i in range(6, 18, 4):
            A(f"v_max3_f32 v{mx}, v{mx}, v{X+i}, v{X+i+1}")
            A(f"v_max3_f32 v{mx+1}, v{mx+1}, v{X+i+2}, v{X+i+3}")
        A(f"v_max3_f32 v{mx}, v{mx}, v{X+18}, v{X+19}")
        A(f"v_max_f32 v{mx}, v{mx}, v{mx+1}")
        A(f"v_mul_f32 v{mx}, s60, v{mx}")
        for i in range(0, 20, 2):
            A(f"v_pk_fma_f32 {vr(X+i,2)}, {vr(X+i,2)}, s[60:61], {vr(mx,2)} op_sel_hi:[1,1,0] neg_lo:[0,0,1] neg_hi:[0,0,1]")
        if Opt.dflag and t == 1:
            Lsk = A.newlabel("L_sk")
            A("s_cmp_eq_u32 s97, 1")
            A(f"s_cbranch_scc1 {Lsk}")
            set_flag(A, 10, "s96")
            lds_arrive(A, 14, L_SYNC + 4)
            stampw(A, 7)
            A.label(Lsk)
        for i in range(20):
            A(f"v_exp_f32 v{X+i}, v{X+i}")
        A(f"v_pk_add_f32 {vr(se,2)}, {vr(X,2)}, {vr(X+2,2)}")
        A(f"v_pk_add_f32 {vr(mx,2)}, {vr(X+4,2)}, {vr(X+6,2)}")
        for i in range(8, 20, 4):
            A(f"v_pk_add_f32 {vr(se,2)}, {vr(se,2)}, {vr(X+i,2)}")
            A(f"v_pk_add_f32 {vr(mx,2)}, {vr(mx,2)}, {vr(X+i+2,2)}")
        A(f"v_pk_add_f32 {vr(se,2)}, {vr(se,2)}, {vr(mx,2)}")
        A(f"v_add_f32 v{se}, v{se}, v{se+1}")
        A(f"v_rcp_f32 v{se}, v{se}")
        for i in range(0, 20, 2):
            A(f"v_pk_mul_f32 {vr(X+i,2)}, {vr(X+i,2)}, {vr(se,2)} op_sel_hi:[1,0]")
        for i in range(10):
            A(f"v_cvt_pk_bf16_f32 v{PQ+12*t+i}, v{X+2*i}, v{X+2*i+1}")
    stamp(A, 9)
    KF = 16
    A(f"v_mov_b32 v{KF+10}, 0")
    A(f"v_mov_b32 v{KF+11}, 0")
    lds_wait(A, 14, L_SYNC + 8, 4)
    stampw(A, 10)
    PR = 32
    T = Lgkm(A)
    for q in range(5):
        for p in range(4):
            T.issue(f"ds_read_b128 {vr(PR+16*q+4*p,4)}, v2 offset:{5120*p+1024*q}", q)
    for q in range(5):
        T.wait(q)
        b = PR + 16 * q
        for h in (0, 2):
            A(f"v_pk_add_f32 {vr(b+h,2)}, {vr(b+h,2)}, {vr(b+4+h,2)}")
            A(f"v_pk_add_f32 {vr(b+8+h,2)}, {vr(b+8+h,2)}, {vr(b+12+h,2)}")
        for h in (0, 2):
            A(f"v_pk_add_f32 {vr(b+h,2)}, {vr(b+h,2)}, {vr(b+8+h,2)}")
        for h in (0, 2):
            A(f"v_cvt_pk_bf16_f32 v{KF+2*q+h//2}, v{b+h}, v{b+h+1}")
    D = [176, 192, 208, 224]
    OP = [32, 40, 48, 56]

    def mf(t):
        for u in range(3):
            c = vr(D[t], 16) if u else "0"
            A(f"v_mfma_f32_32x32x16_bf16 {vr(D[t],16)}, {vr(KF+4*u,4)}, {vr(PQ+12*t+4*u,4)}, {c}")

    if Opt.dA:
        A(f"s_sleep {Opt.dA}")
    mf(0)
    mf(1)
    for t in range(NT):
        d, o = D[t], OP[t]
        A(f"v_add_f32 v10, 0x358637bd, v{d+12}")
        A("v_rcp_f32 v10, v10")
        if t + 2 < NT:
            mf(t + 2)
        for i in range(12):
            A(f"v_mul_f32 v{d+i}, v10, v{d+i}")
        for i in range(6):
            A(f"v_cvt_pk_bf16_f32 v{o+i}, v{d+2*i}, v{d+2*i+1}")
        A(f"buffer_store_dwordx4 {vr(o,4)}, v2, s[{SWS}:{SWS+3}], s54 offen{SC}")
        A("s_mov_b32 exec_hi, 0")
        A(f"buffer_store_dwordx2 {vr(o+4,2)}, v3, s[{SWS}:{SWS+3}], s59 offen{SC}")
        A("s_mov_b64 exec, -1")
        if t < NT - 1:
            A("s_add_u32 s54, s54, 40960")
            A("s_add_u32 s59, s59, 40960")
    stamp(A, 11)
    set_flag(A, 12, "s50")
    lds_arrive(A, 16, L_SYNC + 12)
    stamp(A, 12)


def b_channel(A):
    A("s_mul_i32 s49, s98, 80")
    A("s_sub_u32 s50, s99, 24")
    A("s_mul_i32 s50, s50, 6")
    A("s_add_u32 s49, s49, s50")
    A("s_add_u32 s49, s49, s48")
    A("s_cmp_ge_u32 s48, 6")
    A("s_cselect_b32 s50, 2, 0")
    A("s_sub_u32 s49, s49, s50")
    A(f"s_mul_i32 s56, s48, {CV_LDS}")


def conv_load_h(A, v):
    SH = 40
    srd(A, SH, S_SSK, NB_SSK)
    A(f"v_lshlrev_b32 v{v}, 4, v1")
    A("s_lshl_b32 s50, s49, 12")
    A("s_add_u32 m0, s56, 64")
    for i in range(4):
        A(f"buffer_load_dwordx4 v{v}, s[{SH}:{SH+3}], s50 offen offset:{1024*i}{Opt.nt_s} lds")


def f0_lines(A, c0, c1, v):
    A(f"s_lshr_b32 s52, s{c0}, 6")
    A("s_mul_i32 s52, s52, 419431")
    A("s_lshr_b32 s52, s52, 16")
    A(f"s_lshr_b32 s53, s{c1}, 6")
    A("s_mul_i32 s53, s53, 419431")
    A("s_add_u32 s53, s53, 406324")
    A("s_lshr_b32 s53, s53, 16")
    A(f"v_lshrrev_b32 v{v}, 2, v1")
    A(f"v_add_u32 v{v}, s52, v{v}")
    A(f"v_min_u32 v{v}, s53, v{v}")
    A(f"v_lshlrev_b32 v{v}, 7, v{v}")
    A(f"s_mov_b32 s52, {F0:#x}")


def role_pre(A):
    SK, SV, SS = 32, 36, 40
    t0, t1, t2 = 2, 3, 4
    A("s_lshl_b32 s49, s98, 3")
    A("s_add_u32 s49, s49, s99")
    A("s_sub_u32 s49, s49, 24")
    A("s_mul_i32 s49, s49, 5")
    A("s_add_u32 s49, s49, s48")
    A("s_and_b32 s50, s49, 31")
    A("s_lshr_b32 s51, s49, 5")
    A(f"s_mul_i32 s52, s50, {64*1280}")
    A("s_lshl_b32 s53, s51, 7")
    A("s_add_u32 s52, s52, s53")
    A(f"v_lshrrev_b32 v{t0}, 3, v1")
    A(f"v_and_b32 v{t1}, 7, v1")
    A(f"v_mul_u32_u24 v{t2}, {8*1280}, v{t0}")
    A(f"v_lshl_add_u32 v{t2}, v{t1}, 4, v{t2}")
    A(f"v_add_u32 v5, s52, v{t2}")
    A(f"v_subrev_u32 v6, {3*1280}, v5")
    A(f"v_subrev_u32 v7, {2*1280}, v5")
    A(f"v_subrev_u32 v8, {1280}, v5")
    A(f"v_lshlrev_b32 v9, 6, v{t1}")
    A("s_lshl_b32 s54, s51, 9")
    A(f"s_movk_i32 s55, {4*1280}")
    A("s_waitcnt lgkmcnt(0)")
    srd(A, SK, S_BK, NB_X)
    srd(A, SV, S_BV, NB_X)
    srd(A, SS, S_SH, NB_SH)
    WR, KR, VR = 16, 32, 76
    for i in range(4):
        A(f"buffer_load_dwordx4 {vr(WR+4*i,4)}, v9, s[{SS}:{SS+3}], s54 offen offset:{16*i}")
    for i in range(3):
        A(f"buffer_load_dwordx4 {vr(KR+4*i,4)}, v{6+i}, s[{SK}:{SK+3}], 0 offen{Opt.nt_s}")

    order = []

    def ld(kind, i):
        so = "0" if i < 4 else "s55"
        if kind == "k":
            A(f"buffer_load_dwordx4 {vr(KR+12+4*i,4)}, v5, s[{SK}:{SK+3}], {so} offen offset:{1280*(i&3)}{Opt.nt_s}")
        else:
            A(f"buffer_load_dwordx4 {vr(VR+4*i,4)}, v5, s[{SV}:{SV+3}], {so} offen offset:{1280*(i&3)}{Opt.nt_s}")
        order.append((kind, i))

    for i in (5, 6, 7):
        ld("k", i)
    ld("k", 0); ld("v", 0); ld("k", 1); ld("v", 1)
    todo = [("k", 2), ("v", 2), ("k", 3), ("v", 3), ("k", 4), ("v", 4), ("v", 5), ("v", 6), ("v", 7)]
    stamp(A, 2)
    srd(A, SWS, S_WS, WS_SIZE)
    A("s_mul_i32 s56, s48, 8320")
    A(f"s_add_u32 s56, s56, {B_PRE}")
    A(f"v_mul_u32_u24 v10, 1040, v{t1}")
    A(f"v_lshl_add_u32 v10, v{t0}, 4, v10")
    A("v_add_u32 v10, s56, v10")
    A("v_lshrrev_b32 v11, 4, v1")
    A("v_lshlrev_b32 v11, 8, v11")
    A("v_and_b32 v12, 3, v1")
    A("v_lshl_add_u32 v11, v12, 6, v11")
    A("v_bfe_u32 v12, v1, 2, 2")
    A("v_lshl_add_u32 v11, v12, 3, v11")
    A("v_add_u32 v11, s56, v11")
    A(f"v_lshlrev_b32 v12, 12, v{t0}")
    A(f"v_lshl_add_u32 v12, v{t1}, 4, v12")
    A("s_lshl_b32 s57, s51, 18")
    A("s_lshl_b32 s58, s50, 7")
    A("s_add_u32 s57, s57, s58")
    A(f"s_add_u32 s57, s57, {WS_KVT:#x}")
    A("s_mov_b32 s59, 0xffff0000")
    WF, KF, VF, TA, OUT = 108, 140, 172, 180, 196

    def unpack(dst, src, n):
        for i in range(n):
            A(f"v_lshlrev_b32 v{dst+2*i}, 16, v{src+i}")
            A(f"v_and_b32 v{dst+2*i+1}, s59, v{src+i}")

    A(f"s_waitcnt vmcnt({3+len(order)})")
    ld(*todo.pop(0)); ld(*todo.pop(0))
    for c in range(8):
        A(f"v_lshlrev_b32 v{WF+c}, 16, v{WR+2*c}")
        A(f"v_and_b32 v{WF+8+c}, s59, v{WR+2*c}")
        A(f"v_lshlrev_b32 v{WF+16+c}, 16, v{WR+2*c+1}")
        A(f"v_and_b32 v{WF+24+c}, s59, v{WR+2*c+1}")
    A(f"s_waitcnt vmcnt({len(order)})")
    ld(*todo.pop(0)); ld(*todo.pop(0))
    for i in range(3):
        unpack(KF + 8 * i, KR + 4 * i, 4)
    for i in range(8):
        need = max(order.index(("k", i)), order.index(("v", i)))
        A(f"s_waitcnt vmcnt({len(order)-1-need})")
        for _ in range(2):
            if todo:
                ld(*todo.pop(0))
        if i == 2:
            b_channel(A)
            if Opt.hdef:
                A("s_lshl_b32 s50, s49, 12")
            else:
                conv_load_h(A, 13)
                order.extend([None] * 4)
        unpack(KF + 8 * ((i + 3) & 3), KR + 12 + 4 * i, 4)
        unpack(VF, VR + 4 * i, 4)
        acc = TA + 8 * (i & 1)
        for j in (3, 2, 1, 0):
            kk = KF + 8 * ((i + 3 - j) & 3)
            for c in range(0, 8, 2):
                if j == 3:
                    A(f"v_pk_mul_f32 {vr(acc+c,2)}, {vr(kk+c,2)}, {vr(WF+8*j+c,2)}")
                else:
                    A(f"v_pk_fma_f32 {vr(acc+c,2)}, {vr(kk+c,2)}, {vr(WF+8*j+c,2)}, {vr(acc+c,2)}")
        for c in range(0, 8, 2):
            A(f"v_pk_mul_f32 {vr(acc+c,2)}, {vr(acc+c,2)}, {vr(VF+c,2)}")
        if i & 1:
            for c in range(8):
                A(f"v_cvt_pk_bf16_f32 v{OUT+4*c+i//2}, v{TA+c}, v{TA+8+c}")
    stamp(A, 3)
    for c in range(8):
        A(f"ds_write_b128 v10, {vr(OUT+4*c,4)} offset:{128*c}")
    A("s_waitcnt lgkmcnt(0)")
    T = Lgkm(A)
    for i in range(8):
        T.issue(f"ds_read_b64_tr_b16 {vr(16+4*i,2)}, v11 offset:{1040*i}")
        T.issue(f"ds_read_b64_tr_b16 {vr(18+4*i,2)}, v11 offset:{1040*i+32}", i)
    for i in range(8):
        T.wait(i)
        A(f"buffer_store_dwordx4 {vr(16+4*i,4)}, v12, s[{SWS}:{SWS+3}], s57 offen{SC}")
        if i < 7:
            A(f"s_add_u32 s57, s57, {8*4096}")
    stamp(A, 5)
    if Opt.hdef == 2:
        conv_load_h(A, 13)


def role_helper(A):
    SD = 40
    A("s_setprio 3")
    A("s_waitcnt lgkmcnt(0)")
    srd(A, SWS, S_WS, WS_SIZE)
    srd(A, SD, S_DBG, 256)
    Lz = A.newlabel("L_nz")
    A("s_cmp_eq_u32 s2, 192")
    A(f"s_cbranch_scc0 {Lz}")
    A("s_cmp_eq_u32 s48, 5")
    A(f"s_cbranch_scc0 {Lz}")
    A(f"s_mov_b32 s57, {WS_EPOCH:#x}")
    A("s_mov_b64 exec, 1")
    A(f"buffer_load_dword v4, off, s[{SWS}:{SWS+3}], s57{SC}")
    A("s_waitcnt vmcnt(0)")
    A("v_add_u32 v4, 1, v4")
    A("v_not_b32 v5, v4")
    A(f"buffer_store_dwordx2 v[4:5], off, s[{SD}:{SD+3}], 0{SC}")
    A(f"buffer_store_dword v4, off, s[{SWS}:{SWS+3}], s57{SC}")
    A("s_mov_b64 exec, -1")
    stamp(A, 2)
    A.label(Lz)
    if Opt.gpf2:
        Lnp = A.newlabel("L_ng")
        A("s_lshl_b32 s50, s48, 3")
        A("s_add_u32 s50, s50, s99")
        A("s_sub_u32 s50, s50, 64")
        A("s_cmp_ge_u32 s50, 20")
        A(f"s_cbranch_scc1 {Lnp}")
        A("s_lshr_b32 s51, s50, 1")
        A("s_and_b32 s50, s50, 1")
        A("s_cmp_ge_u32 s51, 5")
        A("s_cselect_b32 s52, 640, 0")
        A("s_lshl_b32 s51, s51, 7")
        A("s_add_u32 s51, s51, s52")
        A("s_lshr_b32 s52, s98, 2")
        A("s_mul_i32 s52, s52, 640")
        A("s_add_u32 s51, s51, s52")
        A(f"s_mul_i32 s50, s50, {5*64*3840}")
        A("s_add_u32 s51, s51, s50")
        A(f"s_add_u32 s51, s51, {1280 + Opt.gpf2*64*3840}")
        srd(A, 32, S_W, NB_W)
        A("v_mul_u32_u24 v2, 3840, v1")
        for k in range(Opt.gpf2, 5):
            A(f"buffer_load_dword v{30+k}, v2, s[32:35], s51 offen")
            A(f"s_add_u32 s51, s51, {64*3840}")
        A.label(Lnp)
    if Opt.gpf:
        A("s_sub_u32 s50, s99, 24")
        A("s_mul_i32 s50, s50, 3")
        A("s_add_u32 s50, s50, s48")
        A("s_sub_u32 s50, s50, 5")
        A("s_and_b32 s51, s98, 3")
        A("s_lshl_b32 s51, s51, 3")
        A("s_add_u32 s51, s51, s50")
        A(f"s_mul_i32 s51, s51, {64*1280}")
        A("s_sub_u32 s52, s50, 8")
        A("s_mul_i32 s53, s52, 52")
        A("s_lshr_b32 s53, s53, 8")
        A("s_mul_i32 s53, s53, 640")
        A("s_lshl_b32 s52, s52, 7")
        A("s_add_u32 s52, s52, s53")
        A("s_lshr_b32 s53, s98, 2")
        A("s_mul_i32 s53, s53, 640")
        A("s_add_u32 s52, s52, s53")
        A("s_cmp_eq_u32 s50, 23")
        A(f"s_cselect_b32 s52, {NB_W:#x}, s52")
        A("s_cmp_lt_u32 s50, 8")
        A("s_cselect_b32 s51, s51, s52")
        A(f"s_cselect_b64 s[32:33], s[{S_X}:{S_X+1}], s[{S_W}:{S_W+1}]")
        A(f"s_mov_b32 s53, {NB_W:#x}")
        A(f"s_cselect_b32 s34, {NB_X:#x}, s53")
        A("s_mov_b32 s35, 0x20000")
        A("s_movk_i32 s53, 3840")
        A("s_cselect_b32 s52, 1280, s53")
        A(f"s_mov_b32 s53, {64*3840}")
        A("s_cselect_b32 s53, 128, s53")
        A("v_mul_u32_u24 v2, s52, v1")
        A(f"s_mul_i32 s52, s53, {Opt.gpf}")
        A("s_add_u32 s51, s51, s52")
        for k, st in enumerate(range(Opt.gpf, 10)):
            if k >= Opt.gpfd:
                A(f"s_waitcnt vmcnt({Opt.gpfd-1})")
            A(f"buffer_load_dword v{30+k}, v2, s[32:35], s51 offen")
            A("s_add_u32 s51, s51, s53")
    if Opt.codepf:
        Lp = A.newlabel("L_npf")
        A("s_cmp_eq_u32 s48, 6")
        A(f"s_cbranch_scc0 {Lp}")
        A("s_getpc_b64 s[50:51]")
        A.label("L_pc")
        A(f"s_sub_u32 s50, s50, L_pc-{NAME}_kernel")
        A("s_subb_u32 s51, s51, 0")
        A("s_sub_u32 s52, s99, 24")
        A("s_lshl_b32 s52, s52, 13")
        A("v_lshl_add_u32 v2, v1, 7, s52")
        A(f"v_min_u32 v2, L_code_end-{NAME}_kernel-4, v2")
        A("global_load_dword v24, v2, s[50:51]")
        A.label(Lp)
    A("s_setprio 0")
    Lnw = A.newlabel("L_nw")
    A("s_sub_u32 s51, s99, 24")
    A("s_lshl_b32 s50, s51, 1")
    A("s_add_u32 s50, s50, s48")
    A("s_sub_u32 s50, s50, 6")
    A("s_xor_b32 s51, s51, 20")
    A("s_cmp_eq_u32 s48, 5")
    A("s_cselect_b32 s50, s51, s50")
    A("s_lshl_b32 s50, s50, 3")
    A("s_add_u32 s50, s50, s98")
    A("s_cmp_ge_u32 s50, 160")
    A(f"s_cbranch_scc1 {Lnw}")
    srd(A, 36, S_WO, NB_WO)
    A("s_lshr_b32 s51, s50, 3")
    A("s_and_b32 s52, s50, 7")
    A(f"s_mul_i32 s53, s52, {80*1280}")
    A("s_lshl_b32 s54, s51, 6")
    A("s_add_u32 s53, s53, s54")
    A("v_lshrrev_b32 v2, 2, v1")
    A("v_and_b32 v3, 3, v1")
    A("v_mul_u32_u24 v4, 1280, v2")
    A("v_lshl_add_u32 v4, v3, 4, v4")
    A(f"s_mul_i32 s56, s48, {CV_LDS}")
    for i in range(5):
        A(f"s_add_u32 m0, s56, {1024*i}")
        A("buffer_load_dwordx4 v4, s[36:39], s53 offen lds")
        A(f"s_add_u32 s53, s53, {16*1280}")
    A("v_bfe_u32 v10, v1, 2, 2")
    A("v_lshrrev_b32 v11, 5, v1")
    A("v_and_b32 v12, 1, v1")
    A("v_lshlrev_b32 v12, 5, v12")
    A("v_bfe_u32 v13, v1, 4, 1")
    A("v_lshl_add_u32 v12, v13, 4, v12")
    A("v_bfe_u32 v13, v1, 1, 1")
    A("v_lshl_add_u32 v12, v13, 3, v12")
    A("v_lshl_add_u32 v12, v10, 6, v12")
    A("v_add_u32 v12, s56, v12")
    A("v_lshl_add_u32 v13, v11, 8, v12")
    A("v_mul_u32_u24 v14, 2560, v11")
    A("v_add_u32 v14, v14, v12")
    A("v_lshlrev_b32 v2, 4, v1")
    A("s_mul_i32 s53, s51, 40960")
    A(f"s_add_u32 s53, s53, {WS_WOT:#x}")
    A("s_lshl_b32 s54, s52, 10")
    A("s_add_u32 s54, s54, s53")
    A("s_add_u32 s54, s54, 32768")
    A("s_lshl_b32 s52, s52, 12")
    A("s_add_u32 s53, s53, s52")
    A("s_lshl_b32 s55, s50, 7")
    A(f"s_add_u32 s55, s55, {FW:#x}")
    A("s_waitcnt vmcnt(0)")
    for hh in range(4):
        for half in range(2):
            A(f"ds_read_b64_tr_b16 {vr(40+4*hh+2*half,2)}, v13 offset:{(20*hh+8*half)*64}")
    for half in range(2):
        A(f"ds_read_b64_tr_b16 {vr(56+2*half,2)}, v14 offset:{(20*half+16)*64}")
    A("s_waitcnt lgkmcnt(0)")
    for hh in range(4):
        A(f"buffer_store_dwordx4 {vr(40+4*hh,4)}, v2, s[{SWS}:{SWS+3}], s53 offen offset:{1024*hh}{SC}")
    A(f"buffer_store_dwordx4 v[56:59], v2, s[{SWS}:{SWS+3}], s54 offen{SC}")
    A(f"s_mov_b64 s[{TAG}:{TAG+1}], 0")
    tag_check(A, 8)
    set_flag(A, 8, "s55")
    A.label(Lnw)
    b_channel(A)
    if Opt.hdef == 1:
        A("s_lshl_b32 s50, s49, 12")
    else:
        conv_load_h(A, 2)
    A(f"v_mov_b32 v4, {B_MB+256}")
    A("v_mov_b32 v5, 0")
    A("ds_write_b32 v4, v5")
    A("ds_write_b32 v4, v5 offset:512")


def conv_setup(A):
    A("v_lshlrev_b32 v2, 4, v1")
    A("s_lshl_b32 s52, s49, 1")
    A("s_and_b32 s52, s52, 0xfffffffc")
    A(f"s_load_dword s55, s[{S_SSD}:{S_SSD+1}], s52")
    A(f"s_load_dword s54, s[{S_SSK}:{S_SSK+1}], s50")
    A(f"s_add_u32 s51, s50, {WS_KVT:#x}")
    for i in range(4):
        A(f"v_mov_b32 v{4+i}, 0")
    A("v_add_u32 v3, s56, v2")
    A("s_mov_b64 exec, 0xf")
    A("ds_write_b128 v3, v[4:7]")
    A("s_mov_b32 exec_lo, -1")
    A(f"ds_write_b128 v3, v[4:7] offset:{64+4096}")
    A("s_mov_b64 exec, -1")
    A("v_and_b32 v11, 3, v1")
    A("v_lshrrev_b32 v10, 4, v1")
    A("v_bfe_u32 v12, v1, 2, 2")
    A("v_lshlrev_b32 v8, 4, v11")
    A("v_lshl_add_u32 v8, v10, 6, v8")
    A("v_lshlrev_b32 v9, 3, v12")
    A("v_sub_u32 v8, v8, v9")
    A("s_add_u32 s57, s56, 32")
    A("v_add_u32 v8, s57, v8")
    A("v_sub_u32 v9, v11, v10")
    A("v_lshlrev_b32 v9, 6, v9")
    A("v_lshl_add_u32 v9, v12, 4, v9")
    A(f"s_add_u32 s57, s56, {64+4096+512}")
    A("v_add_u32 v9, s57, v9")
    A("v_mov_b32 v13, 0xffff")
    for i in range(4):
        A(f"v_cmp_eq_u32 vcc, {4*i}, v1")
        A(f"v_cndmask_b32 v{MK+i}, 0, v13, vcc")
    A("v_add_u32 v13, 3, v11")
    A("v_and_b32 v13, 3, v13")
    A("v_lshl_add_u32 v13, v12, 2, v13")
    A("v_add_u32 v13, 48, v13")
    A("v_subrev_u32 v14, 16, v1")
    A("v_cmp_gt_u32 vcc, 16, v1")
    A("v_cndmask_b32 v14, v14, v13, vcc")
    A("v_lshlrev_b32 v14, 2, v14")
    A("s_mov_b32 s58, 0x1111")
    A("s_mov_b32 s59, 0")


MK = 16


def role_conv(A):
    conv_setup(A)
    A("s_sub_u32 s61, s99, 24")
    A("s_lshl_b32 s62, s98, 3")
    A("s_add_u32 s62, s62, s61")
    A("s_lshl_b32 s62, s62, 7")
    A(f"s_add_u32 s62, s62, {F0:#x}")
    A("s_mul_i32 s60, s98, 80")
    A("s_mul_i32 s61, s61, 6")
    A("s_add_u32 s60, s60, s61")
    A("s_add_u32 s61, s60, 5")
    f0_lines(A, 60, 61, 12)
    A(f"s_waitcnt vmcnt({4 if Opt.hdef == 2 else 0}) lgkmcnt(0)")
    stamp(A, 4)
    A("s_barrier")
    if Opt.hdef == 1:
        Lh = A.newlabel("L_hd")
        A("s_cmp_eq_u32 s48, 7")
        A(f"s_cbranch_scc0 {Lh}")
        set_flag(A, 22, "s62")
        A.label(Lh)
        A("s_barrier")
        conv_load_h(A, 2)
        A("s_waitcnt vmcnt(0)")
    else:
        A("s_waitcnt vmcnt(0)")
        A("s_cmp_eq_u32 s48, 7")
        A("s_cbranch_scc0 L_cb")
        set_flag(A, 22, "s62")
    A("s_branch L_cb")
    A.label("L_conv")
    RA, RB = 64, 192
    ACCS = (32, 40, 48, 56)
    CAR, PUL, TMP = 20, (21, 22), 23
    OUT = (24, 28)

    def rdA(m, e):
        reg = RA + 8 * m + 4 * e
        return [(f"ds_read_b64_tr_b16 {vr(reg,2)}, v8 offset:{256*m+8*e+32}", None),
                (f"ds_read_b64_tr_b16 {vr(reg+2,2)}, v8 offset:{256*m+8*e}", ("A", m, e))]

    def xload():
        A(f"s_add_u32 m0, s56, {64+4096+512}")
        for i in range(4):
            A(f"buffer_load_dwordx4 v2, s[{SWS}:{SWS+3}], s51 offen offset:{1024*i}{SC} lds")

    Lb, Lg = "L_cb", A.newlabel("L_cg")
    tag_check(A, 22)
    conv_load_h(A, 2)
    A(f"buffer_load_dwordx2 v[22:23], v12, s[{SWS}:{SWS+3}], s52 offen{SC}")
    A("s_barrier")
    A("s_waitcnt vmcnt(0)")
    A(f"v_cmp_eq_u64 vcc, s[{TAG}:{TAG+1}], v[22:23]")
    A("s_cmp_eq_u64 vcc, -1")
    Lx = A.newlabel("L_cx")
    A(f"s_cbranch_scc1 {Lx}")
    poll(A, 22, 12, "s52", sleep=8)
    A.label(Lx)
    stamp(A, 8)
    xload()
    A.label(Lb)
    A("s_waitcnt lgkmcnt(0)")
    A("s_lshl_b32 s54, s54, 16")
    A("s_lshl_b32 s53, s55, 16")
    A("s_and_b32 s55, s55, 0xffff0000")
    A("s_bitcmp1_b32 s49, 0")
    A("s_cselect_b32 s53, s55, s53")
    A("v_mov_b32 v15, s54")
    A("v_add_f32 v15, s53, v15")
    A("v_cvt_pk_bf16_f32 v15, v15, v15")
    T = Lgkm(A)
    for m in range(16):
        for e in range(2):
            for x, tg in rdA(m, e):
                T.issue(x, tg)
    T.wait(("A", 0, 1))
    for k in range(4):
        A(f"v_bfi_b32 v{RA+k}, v{MK+k}, v15, v{RA+k}")
        A(f"v_lshlrev_b32 v{MK+k}, 16, v{MK+k}")
        A(f"v_bfi_b32 v{RA+4+k}, v{MK+k}, v15, v{RA+4+k}")
    T.all()
    if Opt.qwait:
        Lqd = A.newlabel("L_qd")
        A("s_cmp_ge_u32 s99, 24")
        A(f"s_cbranch_scc1 {Lqd}")
        lds_wait(A, 12, L_SYNC, 4, sleep=4)
        if Opt.qdel:
            A(f"s_sleep {Opt.qdel}")
        A.label(Lqd)
    A("s_cmp_ge_u32 s99, 24")
    A(f"s_cbranch_scc0 {Lg}")
    Ln7 = A.newlabel("L_n7")
    A("s_cmp_eq_u32 s48, 7")
    A(f"s_cbranch_scc0 {Ln7}")
    poll(A, 22, 12, "s52", sleep=4)
    A.label(Ln7)
    A("s_barrier")
    stamp(A, 8)
    xload()
    if Opt.bdelay:
        A(f"s_sleep {Opt.bdelay}")
    A("s_cmp_ge_u32 s48, 4")
    A(f"s_cbranch_scc0 {Lg}")
    A("s_setprio 1")
    A.label(Lg)
    A(f"s_add_u32 s51, s50, {WS_YT:#x}")
    A(f"v_mov_b32 v{PUL[1]}, 0")

    def epilogue(i):
        V = ACCS[i % 4]
        dpp = lambda d, src, op: f"v_add_f32_dpp v{d}, v{src}, v{d} {op} row_mask:0xf bank_mask:0xf"
        L = [f"v_mov_b32 v{CAR}, 0"]
        for k in (1, 2, 3):
            L += [dpp(V, V + k, f"row_shr:{4*k}"), dpp(V + 4, V + 4 + k, f"row_shr:{4*k}"), dpp(CAR, V + 4 + k, f"row_shl:{16-4*k}")]
        L.append(("ds", f"ds_bpermute_b32 v{PUL[i&1]}, v14, v{CAR}", ("P", i)))
        x = [dpp(V + 4, V + k, f"row_shl:{16-4*k}") for k in (1, 2, 3)]
        L += [x[0], "GAP", x[1], "GAP", x[2]]
        L.append(("wait", ("P", i)))
        L.append(f"v_cndmask_b32 v{TMP}, v{PUL[i&1]}, v{PUL[1-(i&1)]}, s[58:59]")
        L.append(f"v_add_f32 v{V}, v{V}, v{TMP}")
        L.append(f"v_cvt_pk_bf16_f32 v{OUT[(i>>2)&1]+(i&3)}, v{V}, v{V+4}")
        if i & 3 == 3:
            L.append(f"buffer_store_dwordx4 {vr(OUT[(i>>2)&1],4)}, v2, s[{SWS}:{SWS+3}], s51 offen offset:{1024*(i>>2)}{SC}")
        return L

    def emit(x):
        if isinstance(x, tuple):
            if x[0] == "ds":
                T.issue(x[1], x[2])
            else:
                T.wait(x[1])
        elif x != "GAP":
            A(x)

    A("s_waitcnt vmcnt(0)")
    stampw(A, 9)

    def stream(tiles, exit_at=None, keep=None):
        T.tag.clear()
        for w in range(16):
            T.issue(f"ds_read_b128 {vr(RB+4*w,4)}, v9 offset:{256*w}", ("B", w))
        fill = []
        since = 99
        for i in tiles:
            V = ACCS[i % 4]
            while fill and fill[0][0] <= i - 4:
                emit(fill.pop(0)[1])
            if exit_at and i == exit_at[0]:
                while fill and fill[0][0] <= i - 2:
                    emit(fill.pop(0)[1])
                assert len(fill) == len(epilogue(i - 1))
                A("s_cmp_ge_u32 s48, 4")
                A(f"s_cbranch_scc1 {exit_at[1]}")
            since = 0
            for w in range(i + 1):
                for e in range(2):
                    T.wait(("B", w))
                    c = vr(V + 4 * e, 4) if w else "0"
                    A(f"v_mfma_f32_16x16x32_bf16 {vr(V+4*e,4)}, {vr(RA+8*(i-w)+4*e,4)}, {vr(RB+4*w,4)}, {c}")
                    since += 1
                    left = 2 * (i + 1) - since
                    due = len([1 for t_, _x in fill if t_ <= i - 2])
                    if i == tiles[-1] or (exit_at and i == exit_at[0] - 1):
                        due = len(fill)
                    for _ in range(2 if due > left else 1):
                        if fill and (fill[0][0] < i - 1 or since >= 6):
                            emit(fill.pop(0)[1])
            ep = epilogue(i)
            if keep and i == keep[0]:
                k = [j for j, x in enumerate(ep) if isinstance(x, str) and x.startswith("v_cvt")][0]
                ep = ep[:k] + [f"v_mov_b32 v{keep[1]}, v{V}", f"v_mov_b32 v{keep[1]+1}, v{V+4}"] + ep[k + 1:]
            fill += [(i, x) for x in ep]
        stampw(A, 10)
        T.done = T.n if Ctx.stamps else T.done
        return [x for _, x in fill]

    A("s_cmp_ge_u32 s48, 6")
    A("s_cbranch_scc1 L_second")
    for x in stream(range(16), (12, "L_first")):
        emit(x)
    A("s_branch L_cdone")
    A.label("L_first")
    A("s_waitcnt lgkmcnt(0)")
    A("s_nop 6")
    T.done = T.n
    stampw(A, 10)
    for x in epilogue(11):
        emit(x)
    A("s_and_b32 s52, s48, 1")
    A("s_lshl_b32 s52, s52, 9")
    A(f"s_add_u32 s52, s52, {B_MB}")
    A("v_lshl_add_u32 v10, v1, 2, s52")
    A(f"ds_write_b32 v10, v{PUL[1]}")
    A("s_add_u32 s52, s52, 256")
    lds_arrive(A, 10, "s52")
    A("s_branch L_cdone")
    A.label("L_second")
    T.done = T.n
    last = stream(range(12, 16), keep=(12, 4))
    for x in last[:-1]:
        emit(x)
    A("s_and_b32 s52, s48, 1")
    A("s_lshl_b32 s52, s52, 9")
    A(f"s_add_u32 s52, s52, {B_MB}")
    A("v_lshl_add_u32 v12, v1, 2, s52")
    A("s_add_u32 s52, s52, 256")
    lds_wait(A, 10, "s52", 1, sleep=2)
    A(f"ds_read_b32 v{TMP}, v12")
    A("s_waitcnt lgkmcnt(0)")
    A(f"v_cndmask_b32 v{TMP}, 0, v{TMP}, s[58:59]")
    A(f"v_add_f32 v4, v4, v{TMP}")
    A(f"v_cvt_pk_bf16_f32 v{OUT[1]}, v4, v5")
    A(last[-1])
    A.label("L_cdone")
    A("s_waitcnt vmcnt(0)")
    stamp(A, 11)
    A("s_cmp_ge_u32 s99, 24")
    A("s_cbranch_scc1 L_bdone")
    A(f"v_mov_b32 v10, {L_SYNC+12}")
    A("v_mov_b32 v11, 1")
    A("s_mov_b64 exec, 1")
    A("ds_add_rtn_u32 v12, v10, v11")
    A("s_mov_b64 exec, -1")
    A("s_lshl_b32 s52, s98, 4")
    A("s_add_u32 s52, s52, s99")
    A("s_lshl_b32 s52, s52, 7")
    A(f"s_add_u32 s52, s52, {F4+8*128:#x}")
    A("s_waitcnt lgkmcnt(0)")
    A("v_readfirstlane_b32 s53, v12")
    A("s_cmp_eq_u32 s53, 3")
    A("s_cbranch_scc0 L_bend")
    set_flag(A, 10, "s52")
    A("s_branch L_bend")
    A.label("L_bdone")


def role_post(A):
    SQ, SO = 32, 36
    A.label("L_post")
    A("s_setprio 0")
    A("s_and_b32 s48, s48, 3")
    A("s_sub_u32 s50, s99, 24")
    A("s_lshl_b32 s50, s50, 2")
    A("s_lshl_b32 s51, s99, 1")
    A("s_add_u32 s51, s51, 24")
    A("s_cmp_ge_u32 s99, 24")
    A("s_cselect_b32 s50, s50, s51")
    A("s_mul_i32 s49, s98, 40")
    A("s_add_u32 s49, s49, s50")
    A("s_add_u32 s49, s49, s48")
    A("s_and_b32 s50, s49, 31")
    A("s_lshr_b32 s51, s49, 5")
    A("v_lshrrev_b32 v2, 3, v1")
    A("v_and_b32 v3, 7, v1")
    A("v_lshlrev_b32 v4, 12, v2")
    A("v_lshl_add_u32 v4, v3, 4, v4")
    A("s_lshl_b32 s52, s51, 18")
    A("s_lshl_b32 s53, s50, 7")
    A("s_add_u32 s52, s52, s53")
    A(f"s_add_u32 s52, s52, {WS_YT:#x}")
    A("s_mul_i32 s56, s48, 8320")
    A(f"s_add_u32 s56, s56, {B_PRE}")
    A("s_lshr_b32 s54, s50, 3")
    A("s_lshl_b32 s54, s54, 9")
    A("s_bfe_u32 s55, s50, 0x20001")
    A("s_lshl_b32 s55, s55, 3")
    A("s_add_u32 s54, s54, s55")
    A("s_and_b32 s55, s50, 1")
    A("s_lshl_b32 s55, s55, 1")
    A("s_add_u32 s54, s54, s55")
    A("v_and_b32 v5, 3, v2")
    A("v_lshrrev_b32 v6, 2, v2")
    A("v_lshl_add_u32 v5, v5, 5, v6")
    A("v_mul_u32_u24 v6, 1280, v5")
    A("v_lshlrev_b32 v7, 1, v6")
    A("v_lshl_add_u32 v6, v3, 4, v6")
    A("v_lshl_add_u32 v7, v3, 4, v7")
    A("s_mul_i32 s54, s54, 1280")
    A("s_lshl_b32 s53, s51, 7")
    A("s_lshl_b32 s55, s54, 1")
    A("s_add_u32 s54, s54, s53")
    A("s_add_u32 s55, s55, s53")
    A("s_add_u32 s55, s55, 1280")
    srd(A, SQ, S_BQ, NB_X)
    srd(A, SO, S_OUT, NB_OUT)
    QR, YR = 16, 48
    rows = [0, 4, 128, 132, 256, 260, 384, 388]
    for i in range(8):
        A(f"s_add_u32 s57, s54, {rows[i]*1280}")
        A(f"buffer_load_dwordx4 {vr(QR+4*i,4)}, v6, s[{SQ}:{SQ+3}], s57 offen{Opt.nt_s}")
    A("s_mov_b32 s59, 0xffff0000")
    QF = 128
    A("s_waitcnt vmcnt(0)")
    for i in range(32):
        A(f"v_lshlrev_b32 v{QF+2*i}, 16, v{QR+i}")
        A(f"v_and_b32 v{QF+2*i+1}, s59, v{QR+i}")
    A("s_lshl_b32 s57, s98, 4")
    A("s_sub_u32 s58, s57, 16")
    A("v_min_u32 v12, 47, v1")
    A("v_add_u32 v12, s58, v12")
    A("v_max_i32 v12, 0, v12")
    A("v_min_u32 v12, 127, v12")
    A("v_lshlrev_b32 v12, 7, v12")
    A("s_add_u32 s57, s57, s99")
    A("s_lshl_b32 s57, s57, 7")
    A(f"s_add_u32 s57, s57, {F4-24*128:#x}")
    A(f"s_mov_b32 s58, {F4:#x}")
    Lx, Lq, Ld = A.newlabel("L_p7"), A.newlabel("L_pq"), A.newlabel("L_pd")
    A("s_cmp_ge_u32 s99, 24")
    A(f"s_cbranch_scc0 {Lq}")
    A("s_barrier")
    A("s_cmp_eq_u32 s48, 3")
    A(f"s_cbranch_scc0 {Lx}")
    set_flag(A, 8, "s57")
    poll(A, 14, 12, "s58", sleep=4)
    A.label(Lx)
    A("s_barrier")
    A(f"s_branch {Ld}")
    A.label(Lq)
    A("s_barrier")
    poll(A, 14, 12, "s58", sleep=4)
    A.label(Ld)
    if Opt.dB:
        A(f"s_sleep {Opt.dB}")
    stamp(A, 12)
    for i in range(8):
        A(f"v_xor_b32 v8, {16*i}, v4")
        A(f"s_add_u32 m0, s56, {1024*i}")
        A(f"buffer_load_dwordx4 v8, s[{SWS}:{SWS+3}], s52 offen{SC} lds")
        if i < 7:
            A(f"s_add_u32 s52, s52, {8*4096}")
    A("v_xor_b32 v8, v2, v3")
    A("v_lshlrev_b32 v8, 4, v8")
    A("v_lshl_add_u32 v8, v3, 10, v8")
    A("v_add_u32 v8, s56, v8")
    A("s_waitcnt vmcnt(0)")
    for c in range(8):
        A(f"ds_read_b128 {vr(YR+4*c,4)}, v8 offset:{128*c}")
    A("s_waitcnt lgkmcnt(0)")
    stamp(A, 13)
    YF, OUT = 80, 96
    for i in range(8):
        for c in range(8):
            if i & 1:
                A(f"v_and_b32 v{YF+c}, s59, v{YR+4*c+i//2}")
            else:
                A(f"v_lshlrev_b32 v{YF+c}, 16, v{YR+4*c+i//2}")
        for c in range(0, 8, 2):
            A(f"v_pk_mul_f32 {vr(YF+c,2)}, {vr(YF+c,2)}, {vr(QF+8*i+c,2)}")
        for k in range(4):
            A(f"v_cvt_pk_bf16_f32 v{OUT+4*i+k}, v{YF+2*k}, v{YF+2*k+1}")
        A(f"s_add_u32 s57, s55, {rows[i]*2560}")
        A(f"buffer_store_dwordx4 {vr(OUT+4*i,4)}, v7, s[{SO}:{SO+3}], s57 offen{Opt.oscb}")
    stamp(A, 14)


def build():
    A = Asm()
    k = NAME + "_kernel"
    A.raw(f".globl {k}")
    A.raw(".p2align 8")
    A.raw(f".type {k},@function")
    A.label(k)
    if Opt.hold:
        A("s_memrealtime s[64:65]")
    load_kernargs(A)
    if Opt.lite:
        A("s_memrealtime s[64:65]")
    elif not Opt.hp:
        stamp_init(A)
        if Opt.rt:
            A("s_waitcnt lgkmcnt(0)")
            stamp(A, 1)
    A("v_lshrrev_b32 v2, 6, v0")
    A("v_and_b32 v1, 63, v0")
    A("v_readfirstlane_b32 s100, v2")
    A("s_and_b32 s98, s2, 7")
    A("s_lshr_b32 s99, s2, 3")
    A("s_cmp_ge_u32 s2, 192")
    A("s_cbranch_scc1 L_b")
    A("s_and_b32 s49, s2, 3")
    A("s_lshl_b32 s49, s49, 2")
    A("s_and_b32 s50, s99, 3")
    A("s_add_u32 s49, s49, s50")
    A("s_bfe_u32 s52, s2, 0x10002")
    A("s_lshr_b32 s53, s2, 5")
    A("s_lshl_b32 s54, s52, 1")
    A("s_add_u32 s54, s54, s53")
    A("s_lshl_b32 s55, s52, 2")
    A("s_add_u32 s55, s55, s53")
    A("s_sub_u32 s55, s55, 2")
    A("s_cmp_lt_u32 s2, 64")
    A("s_cselect_b32 s50, s54, s55")
    A("s_cselect_b32 s51, 1, 0")
    A("s_and_b32 s48, s100, 3")
    A("s_cmp_ge_u32 s100, 4")
    A("s_cbranch_scc1 L_c")
    role_loader(A)
    A.label("L_c")
    role_compute(A)
    A.label("L_b")
    A("s_cmp_ge_u32 s2, 256")
    A("s_cbranch_scc1 L_exit")
    A("s_mov_b32 s48, s100")
    A("s_cmp_ge_u32 s48, 5")
    A("s_cbranch_scc1 L_help")
    role_pre(A)
    A("s_branch L_bconv")
    A.label("L_help")
    role_helper(A)
    A.label("L_bconv")
    role_conv(A)
    A("s_cmp_lt_u32 s48, 4")
    A("s_cbranch_scc1 L_bend")
    role_post(A)
    A.label("L_bend")
    end_wave(A, "b")
    A.label("L_exit")
    A("s_endpgm")
    A.label("L_code_end")
    head = ["; generated by gen/f10.py",
            "; @launch grid=(256,1,1) block=(512,1,1) lds=163840"]
    txt = "\n".join(head) + '\n.amdgcn_target "amdgcn-amd-amdhsa--gfx950"\n.text\n' + A.text()
    txt += f'''.section .rodata,"a"
.p2align 6
.amdhsa_kernel {k}
  .amdhsa_next_free_vgpr 256
  .amdhsa_next_free_sgpr 102
  .amdhsa_accum_offset 256
  .amdhsa_group_segment_fixed_size 0
  .amdhsa_kernarg_size 104
  .amdhsa_user_sgpr_count 2
  .amdhsa_user_sgpr_kernarg_segment_ptr 1
  .amdhsa_system_sgpr_workgroup_id_x 1
.end_amdhsa_kernel
'''
    return txt


if __name__ == "__main__":
    args = sys.argv[2:]
    Ctx.stamps = "stamps" in args
    Opt.rot = "norot" not in args
    Opt.codepf = "nocodepf" not in args
    for a in args:
        if a.startswith("probe="):
            Opt.probe = tuple(int(x) for x in a[6:].split(","))
        if a.startswith("holdwg="):
            Opt.holdwg = int(a[7:])
        if a.startswith("osc="):
            Opt.osc = a[4:].replace("_", " ")
        if a.startswith("oscb="):
            Opt.oscb = a[5:].replace("_", " ")
        if a.startswith("gpf="):
            Opt.gpf = int(a[4:])
        if a.startswith("gpfd="):
            Opt.gpfd = int(a[5:])
        if a.startswith("rotA="):
            Opt.rotA = int(a[5:], 16)
        if a.startswith("rotB="):
            Opt.rotB = int(a[5:], 16)
        if a == "fake16":
            Opt.fake16 = True
        if a.startswith("qdelay="):
            Opt.qdelay = int(a[7:])
        if a.startswith("bpos="):
            Opt.bpos = int(a[5:])
        if a == "lidle":
            Opt.lidle = True
        if a == "noqwait":
            Opt.qwait = False
        if a == "nofwarm":
            Opt.fwarm = False
        if a == "noprog":
            Opt.prog = False
        if a == "nodflag":
            Opt.dflag = False
        if a == "lite":
            Opt.lite = True
            Ctx.stamps = True
        if a.startswith("wos="):
            Opt.wos = int(a[4:])
        if a.startswith("R="):
            Opt.R = int(a[2:])
        if a.startswith("hdef="):
            Opt.hdef = int(a[5:])
        if a.startswith("gpf2="):
            Opt.gpf2 = int(a[5:])
        if a.startswith("oahead="):
            Opt.oahead = int(a[7:])
        if a.startswith("hpsel="):
            Opt.hpsel = a[6:]
        if a.startswith("bdelay="):
            Opt.bdelay = int(a[7:])
        if a.startswith("qdel="):
            Opt.qdel = int(a[5:])
        if a == "snake":
            Opt.snake = True
        if a == "wrot":
            Opt.wrot = True
        if a.startswith("wfirst="):
            Opt.wfirst = int(a[7:])
        if a == "rt":
            Opt.rt = True
        if a.startswith("hp="):
            Opt.hp = int(a[3:])
            Ctx.stamps = True
        if a.startswith("hold="):
            Opt.hold = int(a[5:])
        if a.startswith("dA="):
            Opt.dA = int(a[3:])
        if a.startswith("dB="):
            Opt.dB = int(a[3:])
        if a == "nowomall":
            Opt.womall = False
        if a == "noppoll":
            Opt.ppoll = False
        if a.startswith("psleep="):
            Opt.psleep = int(a[7:])
        if a.startswith("wopf="):
            Opt.wopf = a[5:]
    for a in args:
        if a.startswith("LA="):
            Opt.LA = int(a[3:])
    open(sys.argv[1], "w").write(build())
```

```python
import sys
from asm import Asm, vr, ar, sr
from roles import (WS_PHIQ, WS_PART, WS_O, WS_KVT, WS_YT, WS_STAMP, WS_SIZE, S_X, S_W, S_WPHI, S_WO, S_BQ, S_BK, S_BV,
                   S_SH, S_SSK, S_SSD, S_OUT, S_DBG, S_WS, NB_X, NB_W, NB_WPHI, NB_WO, NB_SH, NB_SSK, NB_OUT, LOG2E,
                   Ctx, load_kernargs, srd, stamp, stamp_init, softmax20)

NAME = "concat_heads__linear_kernel_hedgehog__ssm_conv_h3__prompt"
WS_PQ = WS_PHIQ
WS_FLAG = 0xF00000
F1, F2, F3, F0, F4 = (WS_FLAG + 128 * o for o in (0, 512, 1024, 1536, 1856))
FW = WS_FLAG + 128 * 2048
WS_WOT = 0x400000
WS_EPOCH = WS_FLAG + 128 * 2560 + 64
SWS = 44
SC = " sc1"
TAG = 30
SLOT = 36864
L_WP = 147456
L_Z = L_WP + 8192
L_SYNC = L_Z + 4096
L_V = 128 * 336
L_WOB = 69632
L_OT = 65536
CV_LDS = 8768
L_QCV = 3 * SLOT
B_PRE = 8 * CV_LDS
B_MB = B_PRE + 5 * 8320


class Opt:
    rot = True
    LA = 2
    nt_s = " nt"
    codepf = True
    wopf = "no"
    osc = " sc1 nt"
    oscb = " sc1 nt"
    hp = 0
    wrot = False
    wfirst = 40
    bdelay = 0
    qdel = 0
    snake = False
    hpsel = "kv"
    oahead = 5
    gpf2 = 3
    hdef = 1
    R = 10
    wos = 1
    lite = False
    dflag = False
    prog = True
    fwarm = True
    qwait = True
    lidle = False
    bpos = 4
    fake16 = False
    qdelay = 0
    rotA = 0x5050
    rotB = 0x550050
    gpf = 0
    gpfd = 99
    rt = False
    ppoll = False
    womall = True
    probe = None
    dA = 0
    hold = 0
    holdwg = -1
    dB = 0
    psleep = 2


_stamp0 = stamp


def stamp(A, k, real=False):
    if Opt.hp:
        if k == Opt.hp:
            A("s_memrealtime s[64:65]")
        return
    if Opt.lite and k not in (0, 15):
        return
    _stamp0(A, k, real or Opt.rt)


def end_wave(A, holdable=False):
    if Opt.hp:
        if (holdable is True and Opt.hpsel in ("kv", "qw")) or (holdable == "b" and Opt.hpsel in ("b", "qs")):
            L = A.newlabel("L_hp")
            A("s_cmp_lt_u32 s99, 8")
            A("s_cbranch_scc1 L_exit" if Opt.hpsel in ("kv", "b") else "s_cbranch_scc0 L_exit")
            if holdable == "b":
                A("s_cmp_lt_u32 s100, 4")
                A("s_cbranch_scc1 L_exit")
            A.label(L)
            A("s_sleep 4")
            A("s_memrealtime s[66:67]")
            A("s_waitcnt lgkmcnt(0)")
            A("s_sub_u32 s66, s66, s64")
            A("s_cmp_lt_u32 s66, 2000")
            A(f"s_cbranch_scc1 {L}")
    elif Ctx.stamps:
        stamp(A, 15, True)
        A("s_waitcnt lgkmcnt(0)")
        A("s_mov_b64 exec, -1")
        A("v_mov_b32 v2, 0")
        for k in ((0, 15) if Opt.lite else range(16)):
            A(f"v_writelane_b32 v2, s{64+2*k}, {k}")
        A("s_lshl_b32 s62, s2, 3")
        A("s_add_u32 s62, s62, s100")
        A("s_lshl_b32 s62, s62, 6")
        A(f"s_add_u32 s62, s62, {WS_STAMP:#x}")
        A("v_lshlrev_b32 v1, 2, v1")
        A("s_mov_b64 exec, 0xffff")
        A(f"buffer_store_dword v2, v1, s[{SWS}:{SWS+3}], s62 offen")
        if Opt.probe:
            Lp = A.newlabel("L_probe")
            A(f"s_cmp_eq_u32 s2, {Opt.probe[0]}")
            A(f"s_cbranch_scc0 {Lp}")
            A(f"s_cmp_eq_u32 s100, {Opt.probe[1]}")
            A(f"s_cbranch_scc0 {Lp}")
            A("v_subrev_u32 v3, s66, v2")
            A("s_sub_u32 s62, s94, s64")
            A("v_writelane_b32 v3, s62, 15")
            A("v_cmp_ne_u32 vcc, 0, v2")
            A("v_cndmask_b32 v3, 0, v3, vcc")
            A("s_mov_b64 exec, 0xfffc")
            A(f"global_store_dword v1, v3, s[{S_DBG}:{S_DBG+1}]")
            A.label(Lp)
    A("s_endpgm")


def stampw(A, k):
    stamp(A, k)
    if Ctx.stamps:
        A("s_waitcnt lgkmcnt(0)")


def poll(A, vt, voff, soff, sleep=1):
    L, Ld = A.newlabel("L_poll"), A.newlabel("L_polld")
    A("s_movk_i32 s101, 0x4000")
    A.label(L)
    A(f"buffer_load_dwordx2 {vr(vt,2)}, v{voff}, s[{SWS}:{SWS+3}], {soff} offen{SC}")
    A("s_waitcnt vmcnt(0)")
    A(f"v_cmp_eq_u64 vcc, s[{TAG}:{TAG+1}], {vr(vt,2)}")
    A("s_cmp_eq_u64 vcc, -1")
    A(f"s_cbranch_scc1 {Ld}")
    A(f"s_sleep {sleep}")
    A("s_sub_u32 s101, s101, 1")
    A("s_cmp_eq_u32 s101, 0")
    A(f"s_cbranch_scc0 {L}")
    A("s_endpgm")
    A.label(Ld)


def ppoll(A, vt, voff, soff, sleep=1, depth=4):
    if not Opt.ppoll:
        return poll(A, vt, voff, soff, sleep=sleep)
    L, Ld = A.newlabel("L_pp"), A.newlabel("L_ppd")
    ld = lambda k: f"buffer_load_dwordx2 {vr(vt+2*k,2)}, v{voff}, s[{SWS}:{SWS+3}], {soff} offen{SC}"
    A("s_movk_i32 s101, 0x4000")
    for k in range(depth - 1):
        A(ld(k))
        A(f"s_sleep {sleep}")
    A.label(L)
    for k in range(depth):
        A(ld((k + depth - 1) % depth))
        A(f"s_waitcnt vmcnt({depth-1})")
        A(f"v_cmp_eq_u64 vcc, s[{TAG}:{TAG+1}], {vr(vt+2*k,2)}")
        A("s_cmp_eq_u64 vcc, -1")
        A(f"s_cbranch_scc1 {Ld}")
        A(f"s_sleep {sleep}")
    A("s_sub_u32 s101, s101, 1")
    A("s_cmp_eq_u32 s101, 0")
    A(f"s_cbranch_scc0 {L}")
    A("s_endpgm")
    A.label(Ld)


def set_flag(A, vt, soff):
    A(f"v_mov_b32 v{vt}, s{TAG}")
    A(f"v_mov_b32 v{vt+1}, s{TAG+1}")
    A(f"v_lshlrev_b32 v{vt+2}, 3, v1")
    A("s_waitcnt vmcnt(0)")
    A("s_mov_b64 exec, 0xffff")
    A(f"buffer_store_dwordx2 {vr(vt,2)}, v{vt+2}, s[{SWS}:{SWS+3}], {soff} offen{SC}")
    A("s_mov_b64 exec, -1")


def tag_issue(A):
    A(f"s_load_dwordx2 s[{TAG}:{TAG+1}], s[{S_DBG}:{S_DBG+1}], 0")


def tag_check(A, vt):
    L, Ld = A.newlabel("L_hs"), A.newlabel("L_hsd")
    A("s_waitcnt lgkmcnt(0)")
    A(f"s_cmp_lg_u32 s{TAG}, s{TAG+1}")
    A(f"s_cbranch_scc1 {Ld}")
    A("s_movk_i32 s101, 0x4000")
    A(f"v_mov_b32 v{vt+2}, 0")
    A.label(L)
    A(f"global_load_dwordx2 {vr(vt,2)}, v{vt+2}, s[{S_DBG}:{S_DBG+1}]{SC}")
    A("s_waitcnt vmcnt(0)")
    A(f"v_readfirstlane_b32 s{TAG}, v{vt}")
    A(f"v_readfirstlane_b32 s{TAG+1}, v{vt+1}")
    A("s_nop 3")
    A(f"s_cmp_lg_u32 s{TAG}, s{TAG+1}")
    A(f"s_cbranch_scc1 {Ld}")
    A("s_sleep 8")
    A("s_sub_u32 s101, s101, 1")
    A("s_cmp_eq_u32 s101, 0")
    A(f"s_cbranch_scc0 {L}")
    A("s_endpgm")
    A.label(Ld)


def lds_arrive(A, vt, addr):
    A(f"v_mov_b32 v{vt}, {addr}")
    A(f"v_mov_b32 v{vt+1}, 1")
    A("s_waitcnt lgkmcnt(0)")
    A("s_mov_b64 exec, 1")
    A(f"ds_add_u32 v{vt}, v{vt+1}")
    A("s_mov_b64 exec, -1")


def lds_wait(A, vt, addr, n, sleep=0):
    L, Ld = A.newlabel("L_lw"), A.newlabel("L_lwd")
    if addr is not None:
        A(f"v_mov_b32 v{vt}, {addr}")
    A("s_mov_b32 s101, 0x40000")
    A.label(L)
    A(f"ds_read_b32 v{vt+1}, v{vt}")
    A("s_waitcnt lgkmcnt(0)")
    A(f"v_cmp_le_u32 vcc, {n}, v{vt+1}")
    A(f"s_cbranch_vccnz {Ld}")
    if sleep:
        A(f"s_sleep {sleep}")
    A("s_sub_u32 s101, s101, 1")
    A("s_cmp_eq_u32 s101, 0")
    A(f"s_cbranch_scc0 {L}")
    A("s_endpgm")
    A.label(Ld)


class Lgkm:
    def __init__(self, A):
        self.A, self.n, self.done, self.tag = A, 0, 0, {}

    def issue(self, text, tag=None):
        self.A(text)
        self.n += 1
        if tag is not None:
            self.tag[tag] = self.n

    def wait(self, *tags):
        need = max(self.tag[t] for t in tags)
        if need > self.done:
            self.A(f"s_waitcnt lgkmcnt({min(15, self.n - need)})")
            self.done = max(need, self.n - 15)

    def all(self):
        if self.done < self.n:
            self.A("s_waitcnt lgkmcnt(0)")
            self.done = self.n


def softmax_parts(X, E, F, T, PH):
    mx, mn = T, T + 2
    mm = [f"v_max3_f32 v{mx}, v{X}, v{X+1}, v{X+2}", f"v_min3_f32 v{mn}, v{X}, v{X+1}, v{X+2}"]
    for i in range(3, 19, 2):
        mm += [f"v_max3_f32 v{mx}, v{mx}, v{X+i}, v{X+i+1}", f"v_min3_f32 v{mn}, v{mn}, v{X+i}, v{X+i+1}"]
    mm += [f"v_max_f32 v{mx}, v{mx}, v{X+19}", f"v_min_f32 v{mn}, v{mn}, v{X+19}",
           f"v_mul_f32 v{mx}, s60, v{mx}", f"v_mul_f32 v{mn}, s60, v{mn}"]
    fm, ex = [], []
    for i in range(0, 20, 2):
        fm.append(f"v_pk_fma_f32 {vr(E+i,2)}, {vr(X+i,2)}, s[60:61], {vr(mx,2)} op_sel_hi:[1,1,0] neg_lo:[0,0,1] neg_hi:[0,0,1]")
        fm.append(f"v_pk_fma_f32 {vr(F+i,2)}, {vr(X+i,2)}, s[60:61], {vr(mn,2)} op_sel_hi:[1,1,0] neg_lo:[1,0,0] neg_hi:[1,0,0]")
    for i in range(20):
        ex += [f"v_exp_f32 v{E+i}, v{E+i}", f"v_exp_f32 v{F+i}, v{F+i}"]
    se, sf = T + 4, T + 6
    sm = [f"v_pk_add_f32 {vr(se,2)}, {vr(E,2)}, {vr(E+2,2)}", f"v_pk_add_f32 {vr(sf,2)}, {vr(F,2)}, {vr(F+2,2)}"]
    for i in range(4, 20, 2):
        sm += [f"v_pk_add_f32 {vr(se,2)}, {vr(se,2)}, {vr(E+i,2)}", f"v_pk_add_f32 {vr(sf,2)}, {vr(sf,2)}, {vr(F+i,2)}"]
    fin = [f"v_add_f32 v{se}, v{se}, v{se+1}", f"v_add_f32 v{sf}, v{sf}, v{sf+1}",
           f"v_rcp_f32 v{se}, v{se}", f"v_rcp_f32 v{sf}, v{sf}"]
    tail = []
    for j in range(20):
        R, s_ = (E + 2 * j, se) if j < 10 else (F + 2 * (j - 10), sf)
        tail.append((f"v_pk_mul_f32 {vr(R,2)}, {vr(R,2)}, {vr(s_,2)} op_sel_hi:[1,0]", f"v_cvt_pk_bf16_f32 v{PH+j}, v{R}, v{R+1}"))
    return mm, fm, ex, sm, fin, tail


def merge(main, extra, every, start=0):
    out, extra = [], list(extra)
    for i, x in enumerate(main):
        out.append(x)
        if extra and i >= start and (i - start) % every == every - 1:
            out.append(extra.pop(0))
    return out + extra


def o_index(A):
    A("s_sub_u32 s63, s99, 8")
    A("s_lshr_b32 s62, s63, 2")
    A("s_lshl_b32 s3, s98, 2")
    A("s_add_u32 s62, s62, s3")
    A("s_and_b32 s63, s63, 3")
    A("s_lshl_b32 s63, s63, 2")
    A("s_add_u32 s63, s63, s48")


def role_loader(A):
    SX, SW, SP = 32, 36, 40
    VX, VW = 24, 28
    t0, t1, t2, t3 = 11, 12, 13, 14
    A("s_setprio 1")
    A(f"v_lshrrev_b32 v{t0}, 3, v1")
    A(f"v_mul_u32_u24 v{t0}, 1280, v{t0}")
    A(f"v_lshrrev_b32 v{t1}, 4, v1")
    A(f"v_and_b32 v{t2}, 7, v1")
    A(f"v_xor_b32 v{t1}, v{t1}, v{t2}")
    A(f"v_xor_b32 v{t2}, 4, v{t1}")
    A(f"v_lshl_add_u32 v{VX}, v{t1}, 4, v{t0}")
    A(f"v_lshl_add_u32 v{VX+1}, v{t2}, 4, v{t0}")
    A(f"v_add_u32 v{VX+2}, {2*(8*1280-1024)}, v{VX}")
    A(f"v_add_u32 v{VX+3}, {3*(8*1280-1024)}, v{VX+1}")
    A(f"v_add_u32 v{VX+1}, {8*1280-1024}, v{VX+1}")
    A("s_lshl_b32 s60, s49, 2")
    A("s_add_u32 s60, s60, s48")
    A(f"s_mul_i32 s60, s60, {32*1280}")
    if Opt.rot:
        A("s_lshl_b32 s30, s49, 2")
        A("s_bfe_u32 s30, s30, 0x40000")
        A(f"s_lshr_b32 s30, {Opt.rotA:#x}, s30")
        A("s_and_b32 s30, s30, 15")
        A("s_and_b32 s31, s99, 28")
        A(f"s_lshr_b32 s31, {Opt.rotB:#x}, s31")
        A("s_and_b32 s31, s31, 15")
        A("s_add_u32 s30, s30, s31")
        A(f"s_sub_u32 s31, s30, {Opt.R}")
        A(f"s_cmp_ge_u32 s30, {Opt.R}")
        A("s_cselect_b32 s30, s31, s30")
        A("s_lshl_b32 s31, s30, 7")
        A("s_add_u32 s60, s60, s31")
    A("s_lshl_b32 s62, s48, 12")
    A("s_mov_b32 m0, s62")
    A(f"s_mov_b32 s{SX+2}, {NB_X:#x}")
    A(f"s_mov_b32 s{SX+3}, 0x20000")
    A("s_waitcnt lgkmcnt(0)")
    A(f"s_mov_b64 s[{SX}:{SX+1}], s[{S_X}:{S_X+1}]")

    def dma_x(s):
        if s:
            A(f"s_add_u32 m0, s62, {(s % 3) * SLOT}")
        for i in range(4):
            A(f"buffer_load_dwordx4 v{VX+i}, s[{SX}:{SX+3}], s60 offen offset:{1024*i} lds")

    def dma_w(s):
        sl = (s % 3) * SLOT
        A(f"s_add_u32 m0, s63, {sl}")
        for i in range(4):
            A(f"buffer_load_dwordx4 v{VW+i}, s[{SW}:{SW+3}], s61 offen offset:{1024*i} lds")
        A(f"s_add_u32 m0, s63, {sl+4096}")
        A(f"buffer_load_dwordx4 v{VW+4}, s[{SW}:{SW+3}], s61 offen lds")
        if s < 9:
            if Opt.rot and s < Opt.R - 1:
                A("s_add_u32 s30, s30, 1")
                A(f"s_cmp_eq_u32 s30, {Opt.R}")
                A(f"s_cselect_b32 s31, {(-128*(Opt.R-1))&0xffffffff:#x}, s97")
                A(f"s_cselect_b32 s3, {(-(Opt.R-1)*64*3840)&0xffffffff:#x}, s96")
                A("s_cselect_b32 s30, 0, s30")
                A("s_add_u32 s60, s60, s31")
                A("s_add_u32 s61, s61, s3")
            elif Opt.rot and s == Opt.R - 1:
                A(f"s_sub_u32 s30, {Opt.R}, s30")
                A("s_lshl_b32 s31, s30, 7")
                A("s_mul_i32 s3, s30, s96")
                A("s_add_u32 s60, s60, s31")
                A("s_add_u32 s61, s61, s3")
            else:
                A("s_add_u32 s60, s60, 128")
                A(f"s_add_u32 s61, s61, {64*3840}")

    dma_x(0)
    A("s_cmp_eq_u32 s51, 0")
    A("s_cselect_b32 s56, 1120, 0")
    A("s_add_u32 s58, s51, 1")
    A(f"v_xor_b32 v15, s58, v1")
    A(f"v_cmp_gt_u32 vcc, 32, v1")
    A("s_movk_i32 s57, 3520")
    A(f"v_cndmask_b32 v16, v15, v1, vcc")
    for i in range(5):
        src = (1, 1, 16, 15, 15)[i]
        A(f"v_add_u32 v{t2}, {64*i}, v{src}")
        A(f"v_mul_u32_u24 v{t2}, 6554, v{t2}")
        A(f"v_lshlrev_b32 v{t3}, 4, v{src}")
        A(f"v_lshrrev_b32 v{t0}, 17, v{t2}")
        A(f"v_bfe_u32 v{t1}, v{t2}, 16, 1")
        A(f"v_mad_u32_u24 v{t0}, v{t0}, s57, v{t3}")
        A(f"v_mad_u32_u24 v{VW+i}, v{t1}, s56, v{t0}")
    A(f"v_lshlrev_b32 v{t3}, 4, v1")
    A(f"v_add_u32 v{VW+4}, 4096, v{VW+4}")
    A(f"s_mul_i32 s61, s48, {16*3840}")
    A("s_mul_i32 s57, s50, 160")
    A("s_add_u32 s58, s57, 1280")
    A("s_lshl_b32 s57, s57, 1")
    A("s_cmp_eq_u32 s51, 0")
    A("s_cselect_b32 s57, s58, s57")
    A("s_add_u32 s61, s61, s57")
    if Opt.rot:
        A(f"s_mov_b32 s96, {64*3840}")
        A("s_movk_i32 s97, 128")
        A("s_mul_i32 s31, s30, s96")
        A("s_add_u32 s61, s61, s31")
    A("s_mul_i32 s63, s48, 5120")
    A("s_add_u32 s63, s63, 16384")
    srd(A, SW, S_W, NB_W)
    dma_w(0)
    stamp(A, 2)
    A("s_mul_i32 s57, s50, 3200")
    A("s_lshl_b32 s57, s57, s51")
    A("s_lshl_b32 s58, s48, 11")
    A("s_add_u32 s57, s57, s58")
    srd(A, SP, S_WPHI, NB_WPHI)
    A(f"s_add_u32 m0, s58, {L_WP}")
    A(f"buffer_load_dwordx4 v{t3}, s[{SP}:{SP+3}], s57 offen lds")
    A(f"buffer_load_dwordx4 v{t3}, s[{SP}:{SP+3}], s57 offen offset:1024 lds")
    srd(A, SWS, S_WS, WS_SIZE)
    Lh = A.newlabel("L_noh")
    A("s_cmp_eq_u32 s51, 0")
    A(f"s_cbranch_scc1 {Lh}")
    A("s_mul_i32 s49, s98, 80")
    A("s_lshl_b32 s50, s99, 2")
    A("s_add_u32 s49, s49, s50")
    A("s_add_u32 s49, s49, s48")
    A("s_add_u32 s49, s49, 48")
    A(f"s_mul_i32 s56, s48, {CV_LDS}")
    A(f"s_add_u32 s56, s56, {L_QCV}")
    A("s_lshl_b32 s50, s49, 12")
    A.label(Lh)
    assert Opt.LA == 2
    issued = 0
    for s in range(10):
        while issued < min(s + Opt.LA - 1, 9):
            issued += 1
            dma_x(issued)
            dma_w(issued)
        if s == 0:
            Ls = A.newlabel("L_nosetup")
            A("s_cmp_ge_u32 s99, 8")
            A(f"s_cbranch_scc1 {Ls}")
            conv_setup(A)
            f0_lines(A, 49, 49, 12)
            A.label(Ls)
        if s == 9:
            tag_issue(A)
        A(f"s_waitcnt vmcnt({9*(issued-s)})")
        A("s_barrier")
        if s in (0, 3, 6, 9):
            stamp(A, 3 + s // 3)
    A("s_setprio 0")
    A("s_cmp_lt_u32 s99, 8")
    A("s_cbranch_scc1 L_conv")
    role_wo(A)


def role_wo(A):
    SO, SWO = 32, 36
    WR = 64
    A.label("L_wo")
    A("s_lshr_b32 s50, s99, 2")
    A("s_sub_u32 s50, s50, 1")
    A("s_max_i32 s50, s50, 0")
    A("s_lshl_b32 s50, s50, 2")
    A("s_add_u32 s50, s50, s48")
    A("s_lshl_b32 s52, s50, 6")
    A("s_mul_i32 s51, s50, 40960")
    A(f"s_add_u32 s51, s51, {WS_WOT:#x}")
    A("s_lshl_b32 s54, s50, 10")
    A(f"s_add_u32 s54, s54, {FW:#x}")
    A("v_lshrrev_b32 v15, 3, v1")
    A("v_lshlrev_b32 v15, 7, v15")
    A("v_lshlrev_b32 v18, 4, v1")
    tag_check(A, 20)
    A(f"buffer_load_dwordx2 v[16:17], v15, s[{SWS}:{SWS+3}], s54 offen{SC}")
    Lj, Lk = A.newlabel("L_woj"), A.newlabel("L_wok")
    A("s_cmp_lt_u32 s99, 8")
    A(f"s_cbranch_scc1 {Lj}")
    A("s_barrier")
    A.label(Lj)
    A("s_waitcnt vmcnt(0)")
    A(f"v_cmp_eq_u64 vcc, s[{TAG}:{TAG+1}], v[16:17]")
    A("s_cmp_eq_u64 vcc, -1")
    A(f"s_cbranch_scc1 {Lk}")
    poll(A, 16, 15, "s54", sleep=8)
    A.label(Lk)

    def wload(f0, f1):
        for f in range(f0, f1):
            if f % 4 == 0 or f == f0:
                A(f"s_add_u32 s53, s51, {4096*(f//4)}")
            A(f"buffer_load_dwordx4 {vr(WR+4*f,4)}, v18, s[{SWS}:{SWS+3}], s53 offen offset:{1024*(f&3)}{SC}")

    if Opt.wrot:
        A("s_and_b32 s55, s99, 3")
        A("s_mov_b32 s56, 4")
        for q in range(1, 4):
            A(f"s_cmp_eq_u32 s55, {q}")
            A(f"s_cbranch_scc1 L_wq{q}")
        for q in range(4):
            A.label(f"L_wq{q}")
            wload(10 * q, 10 * q + 10)
            A("s_sub_u32 s56, s56, 1")
            A("s_cmp_eq_u32 s56, 0")
            A("s_cbranch_scc1 L_wqe" if q < 3 else "s_cbranch_scc0 L_wq0")
        A.label("L_wqe")
    else:
        wload(0, Opt.wfirst)
    A("v_lshrrev_b32 v2, 2, v1")
    A("v_and_b32 v3, 3, v1")
    A("s_mul_i32 s53, s48, 20480")
    A(f"s_add_u32 s53, s53, {L_WOB}")
    A("v_lshrrev_b32 v11, 5, v1")
    A("v_and_b32 v9, 31, v1")
    A("v_lshrrev_b32 v15, 4, v1")
    A("v_lshlrev_b32 v15, 7, v15")
    o_index(A)
    Lq1, Lq2 = A.newlabel("L_woq"), A.newlabel("L_woq")
    A("s_cmp_lt_u32 s99, 8")
    A(f"s_cbranch_scc1 {Lq2}")
    A("s_lshr_b32 s54, s62, 2")
    A("s_lshl_b32 s54, s54, 4")
    A("s_add_u32 s54, s54, s63")
    A("s_lshl_b32 s54, s54, 8")
    A("v_lshlrev_b32 v19, 7, v11")
    A(f"s_add_u32 s54, s54, {F2:#x}")
    A("s_lshl_b32 s55, s62, 4")
    A("s_add_u32 s55, s55, s63")
    A("s_mul_i32 s55, s55, 5120")
    poll(A, 16, 19, "s54", sleep=4)
    A("s_mov_b32 m0, s53")
    A("s_add_u32 s54, s55, 4096")
    for i in range(4):
        A(f"buffer_load_dwordx4 v18, s[{SWS}:{SWS+3}], s55 offen offset:{1024*i}{SC} lds")
    A("s_add_u32 m0, s53, 4096")
    A(f"buffer_load_dwordx4 v18, s[{SWS}:{SWS+3}], s54 offen{SC} lds")
    A("s_lshl_b32 s54, s48, 2")
    A(f"s_add_u32 s54, s54, {L_SYNC+16}")
    A("s_waitcnt vmcnt(0)")
    lds_arrive(A, 16, "s54")
    stamp(A, 14)
    A("s_lshl_b32 s54, s62, 2")
    A("s_add_u32 s54, s54, s48")
    A("s_mul_i32 s55, s54, 10240")
    A(f"s_add_u32 s55, s55, {WS_PART:#x}")
    A("s_lshl_b32 s54, s54, 9")
    A(f"s_add_u32 s54, s54, {F1:#x}")
    A("v_min_u32 v19, 20, v9")
    A("v_and_b32 v20, 32, v1")
    A("v_add_u32 v19, v19, v20")
    A("v_lshlrev_b32 v20, 3, v19")
    A("v_lshlrev_b32 v19, 4, v19")
    A("s_mul_i32 s57, s48, 5120")
    A("v_add_u32 v21, s57, v18")
    A("s_mov_b32 s59, 0xffff0000")
    lds_wait(A, 16, L_SYNC + 4, 4, sleep=2)
    stamp(A, 7)
    PR = [24, 34, 44, 54]
    SM, TP = 224, 244

    def pload(p):
        so = "s55" if p < 1 else f"s{40+p}"
        A(f"buffer_load_dwordx4 {vr(PR[p],4)}, v19, s[{SWS}:{SWS+3}], {so} offen{SC}")
        A(f"buffer_load_dwordx4 {vr(PR[p]+4,4)}, v19, s[{SWS}:{SWS+3}], {so} offen offset:1024{SC}")
        A(f"buffer_load_dwordx2 {vr(PR[p]+8,2)}, v20, s[{SWS}:{SWS+3}], {so} offen offset:2048{SC}")

    for p in (1, 2, 3):
        A(f"s_add_u32 s{40+p}, s55, {2560*p}")
    if Opt.prog:
        L, Ld = A.newlabel("L_pg"), A.newlabel("L_pgd")
        A("s_mov_b64 s[56:57], 0")
        A("s_movk_i32 s101, 0x4000")
        A.label(L)
        A(f"buffer_load_dwordx2 v[16:17], v15, s[{SWS}:{SWS+3}], s54 offen{SC}")
        A("s_waitcnt vmcnt(0)")
        A(f"v_cmp_eq_u64 vcc, s[{TAG}:{TAG+1}], v[16:17]")
        A("s_andn2_b64 s[50:51], vcc, s[56:57]" if False else "s_andn2_b64 s[96:97], vcc, s[56:57]")
        A("s_mov_b64 s[56:57], vcc")
        for p in range(4):
            Ls = A.newlabel("L_pgs")
            A(f"s_bitcmp1_b64 s[96:97], {16*p}")
            A(f"s_cbranch_scc0 {Ls}")
            pload(p)
            A.label(Ls)
        A("s_cmp_eq_u64 s[56:57], -1")
        A(f"s_cbranch_scc1 {Ld}")
        A(f"s_sleep {Opt.psleep}")
        A("s_sub_u32 s101, s101, 1")
        A(f"s_cbranch_scc0 {L}")
        A("s_endpgm")
        A.label(Ld)
        stamp(A, 12)
        A("s_waitcnt vmcnt(0)")
    else:
        ppoll(A, 244, 15, "s54", sleep=Opt.psleep)
        stamp(A, 12)
        for p in range(4):
            pload(p)
    A("s_setprio 3")
    for p in range(4):
        A(f"s_waitcnt vmcnt({9-3*p})")
        for i in range(10):
            d = SM + 2 * i if p == 0 else TP + 2 * (i % 5)
            A(f"v_lshlrev_b32 v{d}, 16, v{PR[p]+i}")
            A(f"v_and_b32 v{d+1}, s59, v{PR[p]+i}")
            if p:
                A(f"v_pk_add_f32 {vr(SM+2*i,2)}, {vr(SM+2*i,2)}, {vr(d,2)}")
    for q in range(5):
        A(f"ds_write_b128 v21, {vr(SM+4*q,4)} offset:{1024*q}")
    lds_arrive(A, 16, L_SYNC + 8)
    A("s_setprio 0")
    stamp(A, 13)
    A.label(Lq2)
    if not Opt.wrot:
        wload(Opt.wfirst, 40)
    srd(A, SO, S_OUT, NB_OUT)
    A("s_and_b32 s54, s99, 3")
    A("s_lshl_b32 s55, s98, 2")
    A("s_add_u32 s54, s54, s55")
    A("s_lshr_b32 s55, s54, 1")
    A("s_lshl_b32 s55, s55, 12")
    A(f"s_add_u32 s55, s55, {F3:#x}")
    A("s_lshl_b32 s57, s48, 10")
    A("s_add_u32 s55, s55, s57")
    A("v_lshrrev_b32 v15, 3, v1")
    A("v_lshlrev_b32 v15, 7, v15")
    A("s_mul_i32 s57, s54, 81920")
    A(f"s_add_u32 s57, s57, {WS_O:#x}")
    A("s_lshr_b32 s58, s48, 1")
    A("s_mul_i32 s58, s58, 40960")
    A("s_and_b32 s59, s48, 1")
    A("s_lshl_b32 s59, s59, 12")
    A("s_add_u32 s58, s58, s59")
    A("s_add_u32 s57, s57, s58")
    A(f"s_add_u32 s58, s58, {L_OT}")
    A("v_mov_b32 v5, v18")
    A(f"v_add_u32 v6, {L_OT}, v5")
    A(f"v_add_u32 v7, {L_OT+40960}, v5")
    A("v_lshlrev_b32 v10, 3, v9")
    A("v_lshl_add_u32 v10, v11, 9, v10")
    A(f"v_add_u32 v10, {L_OT+32768}, v10")
    A("s_mul_i32 s56, s48, 5120")
    A("s_waitcnt lgkmcnt(0)")
    A("v_mul_u32_u24 v12, 80, v9")
    A("v_lshl_add_u32 v12, v11, 5, v12")
    A("v_add_u32 v12, s56, v12")
    A("v_mul_u32_u24 v13, 80, v2")
    A("v_lshl_add_u32 v13, v3, 4, v13")
    A("v_add_u32 v13, s56, v13")
    A("v_mul_u32_u24 v14, 2560, v2")
    A("v_lshl_add_u32 v14, v3, 4, v14")
    A(f"s_mul_i32 s59, s54, {64*2560}")
    A("s_add_u32 s59, s59, s52")
    lds_wait(A, 16, L_SYNC + 12, 4, sleep=2)
    stamp(A, 8)
    ppoll(A, 48, 15, "s55", sleep=Opt.psleep)
    A("s_barrier")
    stamp(A, 9)
    def oissue(k):
        A(f"s_add_u32 m0, s58, {8192*k}")
        for i in range(4):
            A(f"buffer_load_dwordx4 v5, s[{SWS}:{SWS+3}], s57 offen offset:{1024*i}{SC} lds")
        if k < 4:
            A("s_add_u32 s57, s57, 8192")

    for k in range(Opt.oahead):
        oissue(k)
    if Ctx.stamps:
        A("s_waitcnt lgkmcnt(0)")
    ACC = (16, 32)
    OFB = 224
    T = Lgkm(A)

    def rdx(f):
        if f % 8 == 0:
            k = f // 8
            A(f"s_waitcnt vmcnt({4*(min(k+Opt.oahead,5)-k-1)})")
            A("s_barrier")
            if k + Opt.oahead < 5:
                oissue(k + Opt.oahead)
        for t in range(2):
            d = OFB + 4 * ((2 * f + t) % 8)
            if f < 32:
                T.issue(f"ds_read_b128 {vr(d,4)}, v{6+t} offset:{1024*f}", (f, t))
            else:
                a = f - 32
                T.issue(f"ds_read_b64 {vr(d,2)}, v10 offset:{40960*t + 1024*a}")
                T.issue(f"ds_read_b64 {vr(d+2,2)}, v10 offset:{40960*t + 1024*a + 256}", (f, t))

    for f in range(3):
        rdx(f)
    for f in range(40):
        for t in range(2):
            T.wait((f, t))
            c = vr(ACC[t], 16) if f else "0"
            A(f"v_mfma_f32_32x32x16_bf16 {vr(ACC[t],16)}, {vr(WR+4*f,4)}, {vr(OFB+4*((2*f+t)%8),4)}, {c}")
            if t == 0 and f + 3 < 40:
                rdx(f + 3)
    stamp(A, 10)
    for t in range(2):
        for i in range(8):
            A(f"v_cvt_pk_bf16_f32 v{48+8*t+i}, v{ACC[t]+2*i}, v{ACC[t]+2*i+1}")
        for i in range(2):
            A(f"ds_write_b128 v12, {vr(48+8*t+4*i,4)} offset:{2560*t+16*i}")
    A("s_waitcnt lgkmcnt(0)")
    for i in range(4):
        A(f"ds_read_b128 {vr(64+4*i,4)}, v13 offset:{1280*i}")
    for i in range(4):
        A(f"s_waitcnt lgkmcnt({3-i})")
        A(f"buffer_store_dwordx4 {vr(64+4*i,4)}, v14, s[{SO}:{SO+3}], s59 offen{Opt.osc}")
        if i < 3:
            A(f"s_add_u32 s59, s59, {16*2560}")
    stamp(A, 11)
    end_wave(A, True)


def role_compute(A):
    ACC = 16
    WF = (96, 116)
    XF = (136, 152)
    XA, WA, AD = 168, 172, 182
    t0, t1, t2, t3 = 11, 12, 13, 14
    for i in range(80):
        A(f"v_mov_b32 v{ACC+i}, 0")
    A(f"v_and_b32 v{t0}, 255, v0")
    A(f"v_lshlrev_b32 v{t0}, 4, v{t0}")
    A(f"v_add_u32 v{t0}, {L_Z}, v{t0}")
    A(f"ds_write_b128 v{t0}, {vr(ACC,4)}")
    A(f"ds_write_b128 v{t0}, {vr(ACC,4)} offset:64")
    A("s_lshr_b32 s52, s48, 1")
    A("s_and_b32 s53, s48, 1")
    S16, G4, R4, C4 = 183, 184, 185, 186
    A(f"v_and_b32 v{S16}, 15, v1")
    A(f"v_lshrrev_b32 v{G4}, 4, v1")
    A(f"v_bfe_u32 v{R4}, v1, 2, 2")
    A(f"v_and_b32 v{C4}, 3, v1")
    A(f"v_bfe_u32 v{t2}, v1, 1, 3")
    A(f"v_xor_b32 v{t2}, v{t2}, v{G4}")
    A(f"v_lshlrev_b32 v{t2}, 4, v{t2}")
    A(f"v_lshl_add_u32 v{t2}, v{S16}, 7, v{t2}")
    A("s_lshl_b32 s54, s52, 13")
    A(f"v_add_u32 v{XA}, s54, v{t2}")
    A(f"v_xor_b32 v{XA+1}, 64, v{XA}")
    A(f"v_add_u32 v{XA+2}, {2*SLOT}, v{XA}")
    A(f"v_add_u32 v{XA+3}, {2*SLOT}, v{XA+1}")
    A("s_cmp_eq_u32 s51, 0")
    A("s_cselect_b32 s55, 80, 0")
    A("s_mul_i32 s56, s53, 80")
    A("s_lshl_b32 s56, s56, s51")
    A(f"v_lshrrev_b32 v{t0}, 1, v{C4}")
    A(f"v_mul_u32_u24 v{t0}, s55, v{t0}")
    A(f"v_mad_u32_u24 v{t0}, v{C4}, 40, v{t0}")
    A(f"v_add_u32 v{t0}, s56, v{t0}")
    A(f"v_and_b32 v{t1}, 1, v{G4}")
    A("s_add_u32 s57, s51, 4")
    A(f"v_lshlrev_b32 v{t1}, s57, v{t1}")
    A(f"v_lshl_add_u32 v{t2}, v{G4}, 3, v{R4}")
    A(f"v_mul_u32_u24 v{t2}, 320, v{t2}")
    A(f"v_add_u32 v{t2}, 16384, v{t2}")
    for t in range(5):
        A(f"v_add_u32 v{t3}, {8*t}, v{t0}")
        A(f"v_xor_b32 v{t3}, v{t3}, v{t1}")
        A(f"v_add_u32 v{WA+t}, v{t2}, v{t3}")
        A(f"v_add_u32 v{WA+5+t}, {2*SLOT}, v{WA+t}")
    HD = 187
    A("s_cmp_eq_u32 s51, 0")
    A("s_cselect_b32 s55, 1, 3")
    A("s_add_u32 s57, s51, 1")
    A("s_lshl_b32 s56, s53, s57")
    A(f"v_and_b32 v{HD}, s55, v{G4}")
    A(f"v_add_u32 v{HD}, s56, v{HD}")
    A(f"v_mul_u32_u24 v{t0}, 800, v{HD}")
    A(f"v_mad_u32_u24 v{t0}, v{R4}, 40, v{t0}")
    A(f"v_add_u32 v{t0}, {L_WP}, v{t0}")
    A(f"v_mov_b32 v{t1}, {L_Z}")
    A(f"v_cmp_eq_u32 vcc, v{C4}, v{G4}")
    A(f"v_cndmask_b32 v{AD}, v{t1}, v{t0}, vcc")
    A(f"v_lshrrev_b32 v{t0}, 5, v1")
    A(f"v_lshl_add_u32 v{t0}, v{t0}, 4, v{S16}")
    A("s_lshl_b32 s57, s52, 6")
    A(f"v_add_u32 v{t0}, s57, v{t0}")
    A(f"v_mul_u32_u24 v{t1}, 208, v{t0}")
    A(f"v_mad_u32_u24 v2, v{HD}, 48, v{t1}")
    A(f"v_add_u32 v2, {L_V}, v2")
    A(f"v_mul_u32_u24 v{t3}, 80, v{HD}")
    A(f"v_mul_u32_u24 v{t2}, 336, v{t0}")
    A(f"v_add_u32 v3, v{t3}, v{t2}")
    A(f"v_lshrrev_b32 v{t1}, 5, v1")
    A(f"v_lshl_add_u32 v9, v{t1}, 3, v{R4}")
    A(f"v_bfe_u32 v{t2}, v1, 4, 1")
    A(f"v_bfe_u32 v{t3}, v1, 1, 1")
    A(f"v_lshl_add_u32 v10, v{t2}, 1, v{t3}")
    A(f"v_and_b32 v15, 1, v1")
    A(f"v_mul_u32_u24 v{t0}, 336, v9")
    A(f"v_mad_u32_u24 v{t1}, v15, 5, v10")
    A(f"v_lshl_add_u32 v{t0}, v{t1}, 3, v{t0}")
    A("s_mul_i32 s57, s48, 80")
    A(f"v_add_u32 v6, s57, v{t0}")
    A(f"v_lshl_add_u32 v{t0}, v10, 1, v15")
    A("s_mul_i32 s57, s48, 6")
    A(f"v_min_u32 v{t1}, 5, v{t0}")
    A(f"v_add_u32 v{t1}, s57, v{t1}")
    A(f"v_mul_u32_u24 v{t0}, 208, v9")
    A(f"v_lshl_add_u32 v{t0}, v{t1}, 3, v{t0}")
    A(f"v_add_u32 v7, {L_V}, v{t0}")
    WPF = 188
    for tp in range(5):
        A(f"v_mov_b32 v{WPF+12*tp+10}, 0")
        A(f"v_mov_b32 v{WPF+12*tp+11}, 0")
    A(f"s_mov_b32 s60, {LOG2E:#x}")
    A(f"s_mov_b32 s61, {LOG2E:#x}")
    A("s_waitcnt lgkmcnt(0)")
    srd(A, SWS, S_WS, WS_SIZE)
    if Opt.fwarm:
        o_index(A)
        A("s_lshl_b32 s54, s62, 2")
        A("s_add_u32 s54, s54, s48")
        A("s_lshl_b32 s54, s54, 2")
        A("s_lshr_b32 s55, s62, 2")
        A("s_lshl_b32 s55, s55, 4")
        A("s_add_u32 s55, s55, s63")
        A("s_lshl_b32 s55, s55, 1")
        A("s_add_u32 s55, s55, 508")
        A("s_and_b32 s56, s99, 2")
        A("s_lshl_b32 s57, s98, 2")
        A("s_add_u32 s56, s56, s57")
        A("s_lshl_b32 s56, s56, 4")
        A("s_lshl_b32 s57, s48, 3")
        A("s_add_u32 s56, s56, s57")
        A("s_add_u32 s56, s56, 1016")
        A(f"v_mov_b32 v{t0}, s54")
        A(f"v_mov_b32 v{t1}, s55")
        A(f"v_mov_b32 v{t2}, s56")
        A("v_cmp_gt_u32 vcc, 16, v1")
        A(f"v_cndmask_b32 v{t1}, v{t1}, v{t0}, vcc")
        A("v_cmp_gt_u32 vcc, 32, v1")
        A(f"v_cndmask_b32 v{t1}, v{t2}, v{t1}, vcc")
        A(f"v_lshrrev_b32 v{t0}, 2, v1")
        A(f"v_add_u32 v{t0}, v{t0}, v{t1}")
        A(f"v_and_b32 v{t0}, 2047, v{t0}")
        A(f"v_lshlrev_b32 v{t0}, 7, v{t0}")
        A(f"s_mov_b32 s54, {WS_FLAG:#x}")
        A(f"buffer_load_dword v4, v{t0}, s[{SWS}:{SWS+3}], s54 offen{SC}")
    A("s_setprio 2")

    T = Lgkm(A)

    def reads(s, ks):
        sl, b = s % 3, ks
        L = []
        for t in range(5):
            for half in range(2):
                L.append((f"ds_read_b64_tr_b16 {vr(WF[b]+4*t+2*half,2)}, v{WA+5*(sl>>1)+t} offset:{(sl&1)*SLOT + (32*ks+4*half)*320}",
                          ("w", s, ks, t) if half else None))
            if t == 0:
                for rho in range(4):
                    L.append((f"ds_read_b128 {vr(XF[b]+4*rho,4)}, v{XA+2*(sl>>1)+ks} offset:{(sl&1)*SLOT + 2048*rho}", ("x", s, ks, rho)))
        return L

    wp = []
    for tp in range(5):
        for dq in range(5):
            wp.append((f"ds_read_b64_tr_b16 {vr(WPF+12*tp+2*dq,2)}, v{AD} offset:{160*dq+8*tp}", None))

    PS = (96, 106, 118, 128)
    E, F, TT_ = 140, 160, 248

    def cvt(rho):
        L = [f"v_cvt_pk_bf16_f32 v{PS[rho]+i}, v{ACC+20*rho+2*i}, v{ACC+20*rho+2*i+1}" for i in range(10)]
        if rho & 1:
            L += [f"v_mov_b32 v{PS[rho]+10}, 0x3f803f80", f"v_mov_b32 v{PS[rho]+11}, 0x3f803f80"]
        return L

    A("s_barrier")
    stampw(A, 3)
    for x, tg in reads(0, 0):
        T.issue(x, tg)
    early = cvt(0) + cvt(1)
    for s in range(10):
        for ks in range(2):
            last = (s == 9 and ks == 1)
            nxt = [] if last else (reads(s, 1) if ks == 0 else reads(s + 1, 0))
            if ks == 0 and s < 5:
                nxt += wp[5 * s:5 * s + 5]
            start = 0 if ks == 0 else Opt.bpos
            for k in range(20):
                t, rho = (k % 5, k // 5) if last else (k // 4, k % 4)
                if Opt.snake and t & 1:
                    rho = 3 - rho
                T.wait(("w", s, ks, t), ("x", s, ks, rho))
                a_ = ACC + 20 * rho + 4 * t
                A(f"v_mfma_f32_16x16x32_bf16 {vr(a_,4)}, {vr(WF[ks]+4*t,4)}, {vr(XF[ks]+4*rho,4)}, {vr(a_,4)}")
                if ks == 1 and k == start:
                    T.all()
                    A("s_barrier")
                if k >= start and nxt:
                    T.issue(*nxt.pop(0))
                if last and k >= 9:
                    for _ in range(2):
                        if early:
                            A(early.pop(0))
            assert not nxt
    stamp(A, 4)
    if Opt.fwarm:
        A("s_waitcnt vmcnt(0)")
    tag_issue(A)
    def phi_mfma(src, acc):
        L = []
        for u in range(3):
            for tp in range(5):
                c = vr(acc + 4 * tp, 4) if u else "0"
                L.append(f"v_mfma_f32_16x16x32_bf16 {vr(acc+4*tp,4)}, {vr(WPF+12*tp+4*u,4)}, {vr(src+4*u,4)}, {c}")
        return L

    def weave(mf, va, per):
        mf, va = list(mf), list(va)
        while mf or va:
            if mf:
                A(mf.pop(0))
            for _ in range(per):
                if va:
                    A(va.pop(0))

    assert not early
    Lq = A.newlabel("L_q")
    A("s_cmp_eq_u32 s51, 0")
    A(f"s_cbranch_scc0 {Lq}")
    mq = A.mark()
    for i in range(10):
        A(f"v_permlane32_swap_b32 v{PS[0]+i}, v{PS[1]+i}")
    weave(phi_mfma(PS[0], ACC), cvt(2) + cvt(3) + [f"v_permlane32_swap_b32 v{PS[2]+i}, v{PS[3]+i}" for i in range(10)], 2)
    vw = [f"ds_write_b128 v2, {vr(PS[1+2*sg]+4*i,4)} offset:{32*208*sg+16*i}" for sg in range(2) for i in range(3)]

    def body(parts):
        mm, fm, ex, sm, fin, tail = parts
        L = fm[:4]
        fm2, sm2 = list(fm[4:]), list(sm)
        for k in range(0, 40, 4):
            L += ex[k:k + 2]
            if fm2:
                L.append(fm2.pop(0))
            L += ex[k + 2:k + 4]
            if fm2:
                L.append(fm2.pop(0))
            if k >= 8:
                L += [sm2.pop(0), sm2.pop(0)]
        return L + sm2 + fin

    def tail_list(tail, wr):
        L = [tail[0][0], tail[1][0]]
        for j in range(20):
            if j + 2 < 20:
                L.append(tail[j + 2][0])
            L.append(tail[j][1])
            if wr and j % 4 == 3:
                L.append(wr[j // 4])
        return L

    s0 = softmax_parts(ACC, E, F, TT_, 56)
    s1 = softmax_parts(ACC + 20, E, F, TT_, 76)
    w0 = [f"ds_write_b128 v3, {vr(56+4*i,4)} offset:{16*i}" for i in range(5)]
    w1 = [f"ds_write_b128 v3, {vr(76+4*i,4)} offset:{32*336+16*i}" for i in range(5)]
    m1 = phi_mfma(PS[2], ACC + 20)
    for x in m1[:4]:
        A(x)
    weave(m1[4:], s0[0], 2)
    stamp(A, 2)
    for x in merge(body(s0), vw, 12) + tail_list(s0[5], w0):
        A(x)
    stamp(A, 13)
    A(f"v_mov_b32 v10, {L_SYNC}")
    A("v_mov_b32 v11, 1")
    A("s_mov_b64 exec, 1")
    A("ds_add_u32 v10, v11 offset:52")
    A("s_mov_b64 exec, -1")
    sal = ["s_lshl_b32 s57, s50, 2", "s_add_u32 s57, s57, s48", "s_lshl_b32 s57, s57, 4", "s_add_u32 s57, s57, s49",
           "s_lshl_b32 s59, s57, 7", f"s_add_u32 s59, s59, {F1:#x}", "s_mul_i32 s57, s57, 2560", f"s_add_u32 s57, s57, {WS_PART:#x}"]
    b1 = body(s1)
    for x in s1[0] + merge(b1[:60], sal, 6) + ["ds_read_b32 v12, v10 offset:52"] + b1[60:]:
        A(x)
    tag_check(A, 14)
    Lok = A.newlabel("L_s0ok")
    A("v_cmp_le_u32 vcc, 4, v12")
    A(f"s_cbranch_vccnz {Lok}")
    lds_wait(A, 12, L_SYNC + 52, 4)
    A.label(Lok)
    for x in tail_list(s1[5], w1):
        A(x)
    A("s_mov_b64 exec, 1")
    A("ds_add_u32 v10, v11")
    A("s_mov_b64 exec, -1")
    stampw(A, 5)
    T = Lgkm(A)
    T.n = 0 if (Ctx.stamps and not Opt.lite and not Opt.hp) else 0
    FAa = {0: 188, 1: 196, 4: 204, 5: 212, 2: 220, 3: 228, 6: 236, 7: 128}
    FBb = {u: 96 + 4 * u for u in range(8)}

    def rdA_(u):
        for half in range(2):
            o = (16 * u + 4 * half)
            T.issue(f"ds_read_b64_tr_b16 {vr(FAa[u]+2*half,2)}, v6 offset:{o*336}")
            T.issue(f"ds_read_b64_tr_b16 {vr(FAa[u]+4+2*half,2)}, v6 offset:{o*336+32}", ("a", u))

    def rdB_(u):
        for half in range(2):
            T.issue(f"ds_read_b64_tr_b16 {vr(FBb[u]+2*half,2)}, v7 offset:{(16*u+4*half)*208}", ("b", u))

    def pm(u, first=False):
        T.wait(("a", u), ("b", u))
        for TT in range(2):
            c = "0" if first else vr(ACC + 16 * TT, 16)
            A(f"v_mfma_f32_32x32x16_bf16 {vr(ACC+16*TT,16)}, {vr(FAa[u]+4*TT,4)}, {vr(FBb[u],4)}, {c}")

    rdB_(0); rdA_(0); rdB_(1); rdA_(1)
    pm(0, True)
    rdB_(4); rdA_(4)
    pm(1)
    rdB_(5); rdA_(5)
    T.issue("ds_read_b32 v12, v10", "c")
    pm(4)
    for u in (2, 3, 6, 7):
        rdB_(u)
    A("v_lshlrev_b32 v2, 4, v1")
    A("v_lshlrev_b32 v3, 3, v1")
    T.wait("c")
    Lok = A.newlabel("L_s1ok")
    A("v_cmp_le_u32 vcc, 4, v12")
    A(f"s_cbranch_vccnz {Lok}")
    lds_wait(A, 10, None, 4)
    A.label(Lok)
    rdA_(2); rdA_(3)
    pm(5)
    rdA_(6)
    pm(2)
    rdA_(7)
    pm(3); pm(6); pm(7)
    o_index(A)
    for i in range(10):
        A(f"v_cvt_pk_bf16_f32 v{48+i}, v{ACC+2*i}, v{ACC+2*i+1}")
    A(f"buffer_store_dwordx2 v[56:57], v3, s[{SWS}:{SWS+3}], s57 offen offset:2048{SC}")
    A("s_mov_b32 exec_lo, 0x00ffffff")
    A("s_mov_b32 exec_hi, 0x00ffffff")
    A(f"buffer_store_dwordx4 v[48:51], v2, s[{SWS}:{SWS+3}], s57 offen{SC}")
    A(f"buffer_store_dwordx4 v[52:55], v2, s[{SWS}:{SWS+3}], s57 offen offset:1024{SC}")
    A("s_mov_b64 exec, -1")
    stamp(A, 6)
    role_o(A)
    end_wave(A)
    A.label(Lq)
    hq = A.mark()
    pre = [f"s_mov_b32 s57, {64*1280}",
           f"v_mul_lo_u32 v{t1}, s57, v{HD}",
           f"v_lshl_add_u32 v2, v{S16}, 4, v{t1}",
           f"v_lshl_add_u32 v3, v{S16}, 3, v{t1}",
           "s_lshl_b32 s58, s49, 1",
           "s_add_u32 s58, s58, s52",
           "s_lshl_b32 s59, s50, 1",
           "s_add_u32 s59, s59, s53",
           "s_lshl_b32 s59, s59, 5",
           "s_add_u32 s59, s59, s58",
           "s_lshl_b32 s59, s59, 7",
           f"s_add_u32 s59, s59, {F2:#x}",
           "s_lshl_b32 s57, s50, 8",
           "s_add_u32 s57, s57, s58",
           "s_mul_i32 s57, s57, 2560"]
    A("s_nop 0")
    OQ = 140

    def outq(rho):
        x, o = ACC + 20 * rho, OQ + 10 * rho
        off = 1280 * (rho >> 1)
        L = [f"v_cvt_pk_bf16_f32 v{o+i}, v{x+2*i}, v{x+2*i+1}" for i in range(10)]
        L.append(f"buffer_store_dwordx4 {vr(o,4)}, v2, s[{SWS}:{SWS+3}], s57 offen offset:{off+256*(rho&1)}{SC}")
        L.append(f"buffer_store_dwordx4 {vr(o+4,4)}, v2, s[{SWS}:{SWS+3}], s57 offen offset:{off+512+256*(rho&1)}{SC}")
        L.append(f"buffer_store_dwordx2 {vr(o+8,2)}, v3, s[{SWS}:{SWS+3}], s57 offen offset:{off+1024+128*(rho&1)}{SC}")
        return L

    weave(phi_mfma(PS[0], ACC), pre + cvt(2), 2)
    m = phi_mfma(PS[1], ACC + 20)
    weave(m[:6], cvt(3), 2)
    weave(m[6:], outq(0), 2)
    m = phi_mfma(PS[2], ACC + 40)
    weave(m[:6], [], 0)
    weave(m[6:], outq(1), 2)
    m = phi_mfma(PS[3], ACC + 60)
    weave(m[:6], [], 0)
    weave(m[6:], outq(2), 2)
    for x in outq(3):
        A(x)
    stamp(A, 6)
    tag_check(A, 10)
    set_flag(A, 10, "s59")
    stamp(A, 7)
    A.check_seam(mq, hq)
    lds_arrive(A, 14, L_SYNC)
    lds_wait(A, 14, None, 4, sleep=1)
    A("s_setprio 0")
    A("s_cmp_lt_u32 s99, 4")
    A("s_cbranch_scc1 L_wo")
    if Opt.wopf == "qs":
        srd(A, 36, S_WO, NB_WO)
        A("s_sub_u32 s57, s99, 4")
        A("s_lshl_b32 s57, s57, 2")
        A("s_add_u32 s57, s57, s48")
        A("s_lshl_b32 s57, s57, 13")
        A(f"s_add_u32 s57, s57, {240*1280}")
        A("v_lshlrev_b32 v8, 7, v1")
        for i in range(4):
            A(f"buffer_load_dword v{200+i}, v8, s[36:39], s57 offen")
            A(f"s_add_u32 s57, s57, {16*8192}")
    A("s_cmp_lt_u32 s48, 2")
    A("s_cbranch_scc1 L_post")
    end_wave(A)


def role_o(A):
    NT = 4
    RAW, X, PQ = 64, 104, 128
    A("s_mul_i32 s53, s48, 20480")
    A(f"s_add_u32 s53, s53, {L_WOB}")
    A("v_and_b32 v4, 31, v1")
    A("v_lshl_add_u32 v5, v4, 4, s53")
    A("v_lshl_add_u32 v6, v4, 3, s53")
    A("v_and_b32 v7, 32, v1")
    A("v_lshlrev_b32 v7, 26, v7")
    A("s_lshl_b32 s54, s48, 2")
    A(f"s_add_u32 s54, s54, {L_SYNC+16}")
    A("s_mov_b32 s58, 0xffff0000")
    for t in range(NT):
        A(f"v_mov_b32 v{PQ+12*t+10}, 0")
        A(f"v_mov_b32 v{PQ+12*t+11}, 0")
    A("s_mov_b32 s96, s59")
    A("s_mov_b32 s97, 0")
    if Opt.dflag:
        Lgo = A.newlabel("L_go")
        A("v_mov_b32 v14, s54")
        A("ds_read_b32 v15, v14")
        A("s_waitcnt lgkmcnt(0)")
        A("v_cmp_le_u32 vcc, 1, v15")
        A(f"s_cbranch_vccnz {Lgo}")
    set_flag(A, 10, "s96")
    lds_arrive(A, 14, L_SYNC + 4)
    A("s_mov_b32 s97, 1")
    stamp(A, 7)
    lds_wait(A, 14, "s54", 1)
    if Opt.dflag:
        A.label(Lgo)
    stampw(A, 8)
    T = Lgkm(A)
    for t in range(NT):
        T.issue(f"ds_read_b128 {vr(RAW+10*t,4)}, v5 offset:{1280*t}")
        T.issue(f"ds_read_b128 {vr(RAW+10*t+4,4)}, v5 offset:{1280*t+512}")
        T.issue(f"ds_read_b64 {vr(RAW+10*t+8,2)}, v6 offset:{1280*t+1024}", t)
    A("s_lshl_b32 s57, s63, 2")
    A("s_mul_i32 s54, s57, 40960")
    A(f"s_add_u32 s54, s54, {WS_O:#x}")
    A("s_lshl_b32 s59, s62, 8")
    A("s_add_u32 s59, s59, s54")
    A("s_add_u32 s59, s59, 32768")
    A("s_lshl_b32 s57, s62, 10")
    A("s_add_u32 s54, s54, s57")
    A("s_lshl_b32 s50, s63, 5")
    A("s_add_u32 s50, s50, s62")
    A("s_lshl_b32 s50, s50, 7")
    A(f"s_add_u32 s50, s50, {F3:#x}")
    mx, se = 124, 126
    for t in range(NT):
        T.wait(t)
        for i in range(10):
            A(f"v_lshl_add_u32 v{X+2*i}, v{RAW+10*t+i}, 16, v7")
            A(f"v_bitop3_b32 v{X+2*i+1}, v{RAW+10*t+i}, s58, v7 bitop3:0x6a")
        A(f"v_max3_f32 v{mx}, v{X}, v{X+1}, v{X+2}")
        A(f"v_max3_f32 v{mx+1}, v{X+3}, v{X+4}, v{X+5}")
        for i in range(6, 18, 4):
            A(f"v_max3_f32 v{mx}, v{mx}, v{X+i}, v{X+i+1}")
            A(f"v_max3_f32 v{mx+1}, v{mx+1}, v{X+i+2}, v{X+i+3}")
        A(f"v_max3_f32 v{mx}, v{mx}, v{X+18}, v{X+19}")
        A(f"v_max_f32 v{mx}, v{mx}, v{mx+1}")
        A(f"v_mul_f32 v{mx}, s60, v{mx}")
        for i in range(0, 20, 2):
            A(f"v_pk_fma_f32 {vr(X+i,2)}, {vr(X+i,2)}, s[60:61], {vr(mx,2)} op_sel_hi:[1,1,0] neg_lo:[0,0,1] neg_hi:[0,0,1]")
        if Opt.dflag and t == 1:
            Lsk = A.newlabel("L_sk")
            A("s_cmp_eq_u32 s97, 1")
            A(f"s_cbranch_scc1 {Lsk}")
            set_flag(A, 10, "s96")
            lds_arrive(A, 14, L_SYNC + 4)
            stampw(A, 7)
            A.label(Lsk)
        for i in range(20):
            A(f"v_exp_f32 v{X+i}, v{X+i}")
        A(f"v_pk_add_f32 {vr(se,2)}, {vr(X,2)}, {vr(X+2,2)}")
        A(f"v_pk_add_f32 {vr(mx,2)}, {vr(X+4,2)}, {vr(X+6,2)}")
        for i in range(8, 20, 4):
            A(f"v_pk_add_f32 {vr(se,2)}, {vr(se,2)}, {vr(X+i,2)}")
            A(f"v_pk_add_f32 {vr(mx,2)}, {vr(mx,2)}, {vr(X+i+2,2)}")
        A(f"v_pk_add_f32 {vr(se,2)}, {vr(se,2)}, {vr(mx,2)}")
        A(f"v_add_f32 v{se}, v{se}, v{se+1}")
        A(f"v_rcp_f32 v{se}, v{se}")
        for i in range(0, 20, 2):
            A(f"v_pk_mul_f32 {vr(X+i,2)}, {vr(X+i,2)}, {vr(se,2)} op_sel_hi:[1,0]")
        for i in range(10):
            A(f"v_cvt_pk_bf16_f32 v{PQ+12*t+i}, v{X+2*i}, v{X+2*i+1}")
    stamp(A, 9)
    KF = 16
    A(f"v_mov_b32 v{KF+10}, 0")
    A(f"v_mov_b32 v{KF+11}, 0")
    lds_wait(A, 14, L_SYNC + 8, 4)
    stampw(A, 10)
    PR = 32
    T = Lgkm(A)
    for q in range(5):
        for p in range(4):
            T.issue(f"ds_read_b128 {vr(PR+16*q+4*p,4)}, v2 offset:{5120*p+1024*q}", q)
    for q in range(5):
        T.wait(q)
        b = PR + 16 * q
        for h in (0, 2):
            A(f"v_pk_add_f32 {vr(b+h,2)}, {vr(b+h,2)}, {vr(b+4+h,2)}")
            A(f"v_pk_add_f32 {vr(b+8+h,2)}, {vr(b+8+h,2)}, {vr(b+12+h,2)}")
        for h in (0, 2):
            A(f"v_pk_add_f32 {vr(b+h,2)}, {vr(b+h,2)}, {vr(b+8+h,2)}")
        for h in (0, 2):
            A(f"v_cvt_pk_bf16_f32 v{KF+2*q+h//2}, v{b+h}, v{b+h+1}")
    D = [176, 192, 208, 224]
    OP = [32, 40, 48, 56]

    def mf(t):
        for u in range(3):
            c = vr(D[t], 16) if u else "0"
            A(f"v_mfma_f32_32x32x16_bf16 {vr(D[t],16)}, {vr(KF+4*u,4)}, {vr(PQ+12*t+4*u,4)}, {c}")

    if Opt.dA:
        A(f"s_sleep {Opt.dA}")
    mf(0)
    mf(1)
    for t in range(NT):
        d, o = D[t], OP[t]
        A(f"v_add_f32 v10, 0x358637bd, v{d+12}")
        A("v_rcp_f32 v10, v10")
        if t + 2 < NT:
            mf(t + 2)
        if t >= 2:
            for i in range(0, 12, 2):
                A(f"v_pk_mul_f32 {vr(d+i,2)}, {vr(d+i,2)}, v[10:11] op_sel_hi:[1,0]")
        else:
            for i in range(12):
                A(f"v_mul_f32 v{d+i}, v10, v{d+i}")
        for i in range(6):
            A(f"v_cvt_pk_bf16_f32 v{o+i}, v{d+2*i}, v{d+2*i+1}")
        A(f"buffer_store_dwordx4 {vr(o,4)}, v2, s[{SWS}:{SWS+3}], s54 offen{SC}")
        A("s_mov_b32 exec_hi, 0")
        A(f"buffer_store_dwordx2 {vr(o+4,2)}, v3, s[{SWS}:{SWS+3}], s59 offen{SC}")
        A("s_mov_b64 exec, -1")
        if t < NT - 1:
            A("s_add_u32 s54, s54, 40960")
            A("s_add_u32 s59, s59, 40960")
    stamp(A, 11)
    set_flag(A, 12, "s50")
    lds_arrive(A, 16, L_SYNC + 12)
    stamp(A, 12)


def b_channel(A):
    A("s_mul_i32 s49, s98, 80")
    A("s_sub_u32 s50, s99, 24")
    A("s_mul_i32 s50, s50, 6")
    A("s_add_u32 s49, s49, s50")
    A("s_add_u32 s49, s49, s48")
    A("s_cmp_ge_u32 s48, 6")
    A("s_cselect_b32 s50, 2, 0")
    A("s_sub_u32 s49, s49, s50")
    A(f"s_mul_i32 s56, s48, {CV_LDS}")


def conv_load_h(A, v):
    SH = 40
    srd(A, SH, S_SSK, NB_SSK)
    A(f"v_lshlrev_b32 v{v}, 4, v1")
    A("s_lshl_b32 s50, s49, 12")
    A("s_add_u32 m0, s56, 64")
    for i in range(4):
        A(f"buffer_load_dwordx4 v{v}, s[{SH}:{SH+3}], s50 offen offset:{1024*i}{Opt.nt_s} lds")


def f0_lines(A, c0, c1, v):
    A(f"s_lshr_b32 s52, s{c0}, 6")
    A("s_mul_i32 s52, s52, 419431")
    A("s_lshr_b32 s52, s52, 16")
    A(f"s_lshr_b32 s53, s{c1}, 6")
    A("s_mul_i32 s53, s53, 419431")
    A("s_add_u32 s53, s53, 406324")
    A("s_lshr_b32 s53, s53, 16")
    A(f"v_lshrrev_b32 v{v}, 2, v1")
    A(f"v_add_u32 v{v}, s52, v{v}")
    A(f"v_min_u32 v{v}, s53, v{v}")
    A(f"v_lshlrev_b32 v{v}, 7, v{v}")
    A(f"s_mov_b32 s52, {F0:#x}")


def role_pre(A):
    SK, SV, SS = 32, 36, 40
    t0, t1, t2 = 2, 3, 4
    A("s_lshl_b32 s49, s98, 3")
    A("s_add_u32 s49, s49, s99")
    A("s_sub_u32 s49, s49, 24")
    A("s_mul_i32 s49, s49, 5")
    A("s_add_u32 s49, s49, s48")
    A("s_and_b32 s50, s49, 31")
    A("s_lshr_b32 s51, s49, 5")
    A(f"s_mul_i32 s52, s50, {64*1280}")
    A("s_lshl_b32 s53, s51, 7")
    A("s_add_u32 s52, s52, s53")
    A(f"v_lshrrev_b32 v{t0}, 3, v1")
    A(f"v_and_b32 v{t1}, 7, v1")
    A(f"v_mul_u32_u24 v{t2}, {8*1280}, v{t0}")
    A(f"v_lshl_add_u32 v{t2}, v{t1}, 4, v{t2}")
    A(f"v_add_u32 v5, s52, v{t2}")
    A(f"v_subrev_u32 v6, {3*1280}, v5")
    A(f"v_subrev_u32 v7, {2*1280}, v5")
    A(f"v_subrev_u32 v8, {1280}, v5")
    A(f"v_lshlrev_b32 v9, 6, v{t1}")
    A("s_lshl_b32 s54, s51, 9")
    A(f"s_movk_i32 s55, {4*1280}")
    A("s_waitcnt lgkmcnt(0)")
    srd(A, SK, S_BK, NB_X)
    srd(A, SV, S_BV, NB_X)
    srd(A, SS, S_SH, NB_SH)
    WR, KR, VR = 16, 32, 76
    for i in range(4):
        A(f"buffer_load_dwordx4 {vr(WR+4*i,4)}, v9, s[{SS}:{SS+3}], s54 offen offset:{16*i}")
    for i in range(3):
        A(f"buffer_load_dwordx4 {vr(KR+4*i,4)}, v{6+i}, s[{SK}:{SK+3}], 0 offen{Opt.nt_s}")

    order = []

    def ld(kind, i):
        so = "0" if i < 4 else "s55"
        if kind == "k":
            A(f"buffer_load_dwordx4 {vr(KR+12+4*i,4)}, v5, s[{SK}:{SK+3}], {so} offen offset:{1280*(i&3)}{Opt.nt_s}")
        else:
            A(f"buffer_load_dwordx4 {vr(VR+4*i,4)}, v5, s[{SV}:{SV+3}], {so} offen offset:{1280*(i&3)}{Opt.nt_s}")
        order.append((kind, i))

    for i in (5, 6, 7):
        ld("k", i)
    ld("k", 0); ld("v", 0); ld("k", 1); ld("v", 1)
    todo = [("k", 2), ("v", 2), ("k", 3), ("v", 3), ("k", 4), ("v", 4), ("v", 5), ("v", 6), ("v", 7)]
    stamp(A, 2)
    srd(A, SWS, S_WS, WS_SIZE)
    A("s_mul_i32 s56, s48, 8320")
    A(f"s_add_u32 s56, s56, {B_PRE}")
    A(f"v_mul_u32_u24 v10, 1040, v{t1}")
    A(f"v_lshl_add_u32 v10, v{t0}, 4, v10")
    A("v_add_u32 v10, s56, v10")
    A("v_lshrrev_b32 v11, 4, v1")
    A("v_lshlrev_b32 v11, 8, v11")
    A("v_and_b32 v12, 3, v1")
    A("v_lshl_add_u32 v11, v12, 6, v11")
    A("v_bfe_u32 v12, v1, 2, 2")
    A("v_lshl_add_u32 v11, v12, 3, v11")
    A("v_add_u32 v11, s56, v11")
    A(f"v_lshlrev_b32 v12, 12, v{t0}")
    A(f"v_lshl_add_u32 v12, v{t1}, 4, v12")
    A("s_lshl_b32 s57, s51, 18")
    A("s_lshl_b32 s58, s50, 7")
    A("s_add_u32 s57, s57, s58")
    A(f"s_add_u32 s57, s57, {WS_KVT:#x}")
    A("s_mov_b32 s59, 0xffff0000")
    WF, KF, VF, TA, OUT = 108, 140, 172, 180, 196

    def unpack(dst, src, n):
        for i in range(n):
            A(f"v_lshlrev_b32 v{dst+2*i}, 16, v{src+i}")
            A(f"v_and_b32 v{dst+2*i+1}, s59, v{src+i}")

    A(f"s_waitcnt vmcnt({3+len(order)})")
    ld(*todo.pop(0)); ld(*todo.pop(0))
    for c in range(8):
        A(f"v_lshlrev_b32 v{WF+c}, 16, v{WR+2*c}")
        A(f"v_and_b32 v{WF+8+c}, s59, v{WR+2*c}")
        A(f"v_lshlrev_b32 v{WF+16+c}, 16, v{WR+2*c+1}")
        A(f"v_and_b32 v{WF+24+c}, s59, v{WR+2*c+1}")
    A(f"s_waitcnt vmcnt({len(order)})")
    ld(*todo.pop(0)); ld(*todo.pop(0))
    for i in range(3):
        unpack(KF + 8 * i, KR + 4 * i, 4)
    for i in range(8):
        need = max(order.index(("k", i)), order.index(("v", i)))
        A(f"s_waitcnt vmcnt({len(order)-1-need})")
        for _ in range(2):
            if todo:
                ld(*todo.pop(0))
        if i == 2:
            b_channel(A)
            if Opt.hdef:
                A("s_lshl_b32 s50, s49, 12")
            else:
                conv_load_h(A, 13)
                order.extend([None] * 4)
        unpack(KF + 8 * ((i + 3) & 3), KR + 12 + 4 * i, 4)
        unpack(VF, VR + 4 * i, 4)
        acc = TA + 8 * (i & 1)
        for j in (3, 2, 1, 0):
            kk = KF + 8 * ((i + 3 - j) & 3)
            for c in range(0, 8, 2):
                if j == 3:
                    A(f"v_pk_mul_f32 {vr(acc+c,2)}, {vr(kk+c,2)}, {vr(WF+8*j+c,2)}")
                else:
                    A(f"v_pk_fma_f32 {vr(acc+c,2)}, {vr(kk+c,2)}, {vr(WF+8*j+c,2)}, {vr(acc+c,2)}")
        for c in range(0, 8, 2):
            A(f"v_pk_mul_f32 {vr(acc+c,2)}, {vr(acc+c,2)}, {vr(VF+c,2)}")
        if i & 1:
            for c in range(8):
                A(f"v_cvt_pk_bf16_f32 v{OUT+4*c+i//2}, v{TA+c}, v{TA+8+c}")
    stamp(A, 3)
    for c in range(8):
        A(f"ds_write_b128 v10, {vr(OUT+4*c,4)} offset:{128*c}")
    A("s_waitcnt lgkmcnt(0)")
    T = Lgkm(A)
    for i in range(8):
        T.issue(f"ds_read_b64_tr_b16 {vr(16+4*i,2)}, v11 offset:{1040*i}")
        T.issue(f"ds_read_b64_tr_b16 {vr(18+4*i,2)}, v11 offset:{1040*i+32}", i)
    for i in range(8):
        T.wait(i)
        A(f"buffer_store_dwordx4 {vr(16+4*i,4)}, v12, s[{SWS}:{SWS+3}], s57 offen{SC}")
        if i < 7:
            A(f"s_add_u32 s57, s57, {8*4096}")
    stamp(A, 5)
    if Opt.hdef == 2:
        conv_load_h(A, 13)


def role_helper(A):
    SD = 40
    A("s_setprio 3")
    A("s_waitcnt lgkmcnt(0)")
    srd(A, SWS, S_WS, WS_SIZE)
    srd(A, SD, S_DBG, 256)
    Lz = A.newlabel("L_nz")
    A("s_cmp_eq_u32 s2, 192")
    A(f"s_cbranch_scc0 {Lz}")
    A("s_cmp_eq_u32 s48, 5")
    A(f"s_cbranch_scc0 {Lz}")
    A(f"s_mov_b32 s57, {WS_EPOCH:#x}")
    A("s_mov_b64 exec, 1")
    A(f"buffer_load_dword v4, off, s[{SWS}:{SWS+3}], s57{SC}")
    A("s_waitcnt vmcnt(0)")
    A("v_add_u32 v4, 1, v4")
    A("v_not_b32 v5, v4")
    A(f"buffer_store_dwordx2 v[4:5], off, s[{SD}:{SD+3}], 0{SC}")
    A(f"buffer_store_dword v4, off, s[{SWS}:{SWS+3}], s57{SC}")
    A("s_mov_b64 exec, -1")
    stamp(A, 2)
    A.label(Lz)
    if Opt.gpf2:
        Lnp = A.newlabel("L_ng")
        A("s_lshl_b32 s50, s48, 3")
        A("s_add_u32 s50, s50, s99")
        A("s_sub_u32 s50, s50, 64")
        A("s_cmp_ge_u32 s50, 20")
        A(f"s_cbranch_scc1 {Lnp}")
        A("s_lshr_b32 s51, s50, 1")
        A("s_and_b32 s50, s50, 1")
        A("s_cmp_ge_u32 s51, 5")
        A("s_cselect_b32 s52, 640, 0")
        A("s_lshl_b32 s51, s51, 7")
        A("s_add_u32 s51, s51, s52")
        A("s_lshr_b32 s52, s98, 2")
        A("s_mul_i32 s52, s52, 640")
        A("s_add_u32 s51, s51, s52")
        A(f"s_mul_i32 s50, s50, {5*64*3840}")
        A("s_add_u32 s51, s51, s50")
        A(f"s_add_u32 s51, s51, {1280 + Opt.gpf2*64*3840}")
        srd(A, 32, S_W, NB_W)
        A("v_mul_u32_u24 v2, 3840, v1")
        for k in range(Opt.gpf2, 5):
            A(f"buffer_load_dword v{30+k}, v2, s[32:35], s51 offen")
            A(f"s_add_u32 s51, s51, {64*3840}")
        A.label(Lnp)
    if Opt.gpf:
        A("s_sub_u32 s50, s99, 24")
        A("s_mul_i32 s50, s50, 3")
        A("s_add_u32 s50, s50, s48")
        A("s_sub_u32 s50, s50, 5")
        A("s_and_b32 s51, s98, 3")
        A("s_lshl_b32 s51, s51, 3")
        A("s_add_u32 s51, s51, s50")
        A(f"s_mul_i32 s51, s51, {64*1280}")
        A("s_sub_u32 s52, s50, 8")
        A("s_mul_i32 s53, s52, 52")
        A("s_lshr_b32 s53, s53, 8")
        A("s_mul_i32 s53, s53, 640")
        A("s_lshl_b32 s52, s52, 7")
        A("s_add_u32 s52, s52, s53")
        A("s_lshr_b32 s53, s98, 2")
        A("s_mul_i32 s53, s53, 640")
        A("s_add_u32 s52, s52, s53")
        A("s_cmp_eq_u32 s50, 23")
        A(f"s_cselect_b32 s52, {NB_W:#x}, s52")
        A("s_cmp_lt_u32 s50, 8")
        A("s_cselect_b32 s51, s51, s52")
        A(f"s_cselect_b64 s[32:33], s[{S_X}:{S_X+1}], s[{S_W}:{S_W+1}]")
        A(f"s_mov_b32 s53, {NB_W:#x}")
        A(f"s_cselect_b32 s34, {NB_X:#x}, s53")
        A("s_mov_b32 s35, 0x20000")
        A("s_movk_i32 s53, 3840")
        A("s_cselect_b32 s52, 1280, s53")
        A(f"s_mov_b32 s53, {64*3840}")
        A("s_cselect_b32 s53, 128, s53")
        A("v_mul_u32_u24 v2, s52, v1")
        A(f"s_mul_i32 s52, s53, {Opt.gpf}")
        A("s_add_u32 s51, s51, s52")
        for k, st in enumerate(range(Opt.gpf, 10)):
            if k >= Opt.gpfd:
                A(f"s_waitcnt vmcnt({Opt.gpfd-1})")
            A(f"buffer_load_dword v{30+k}, v2, s[32:35], s51 offen")
            A("s_add_u32 s51, s51, s53")
    if Opt.codepf:
        Lp = A.newlabel("L_npf")
        A("s_cmp_eq_u32 s48, 6")
        A(f"s_cbranch_scc0 {Lp}")
        A("s_getpc_b64 s[50:51]")
        A.label("L_pc")
        A(f"s_sub_u32 s50, s50, L_pc-{NAME}_kernel")
        A("s_subb_u32 s51, s51, 0")
        A("s_sub_u32 s52, s99, 24")
        A("s_lshl_b32 s52, s52, 13")
        A("v_lshl_add_u32 v2, v1, 7, s52")
        A(f"v_min_u32 v2, L_code_end-{NAME}_kernel-4, v2")
        A("global_load_dword v24, v2, s[50:51]")
        A.label(Lp)
    A("s_setprio 0")
    Lnw = A.newlabel("L_nw")
    A("s_sub_u32 s51, s99, 24")
    A("s_lshl_b32 s50, s51, 1")
    A("s_add_u32 s50, s50, s48")
    A("s_sub_u32 s50, s50, 6")
    A("s_xor_b32 s51, s51, 20")
    A("s_cmp_eq_u32 s48, 5")
    A("s_cselect_b32 s50, s51, s50")
    A("s_lshl_b32 s50, s50, 3")
    A("s_add_u32 s50, s50, s98")
    A("s_cmp_ge_u32 s50, 160")
    A(f"s_cbranch_scc1 {Lnw}")
    srd(A, 36, S_WO, NB_WO)
    A("s_lshr_b32 s51, s50, 3")
    A("s_and_b32 s52, s50, 7")
    A(f"s_mul_i32 s53, s52, {80*1280}")
    A("s_lshl_b32 s54, s51, 6")
    A("s_add_u32 s53, s53, s54")
    A("v_lshrrev_b32 v2, 2, v1")
    A("v_and_b32 v3, 3, v1")
    A("v_mul_u32_u24 v4, 1280, v2")
    A("v_lshl_add_u32 v4, v3, 4, v4")
    A(f"s_mul_i32 s56, s48, {CV_LDS}")
    for i in range(5):
        A(f"s_add_u32 m0, s56, {1024*i}")
        A("buffer_load_dwordx4 v4, s[36:39], s53 offen lds")
        A(f"s_add_u32 s53, s53, {16*1280}")
    A("v_bfe_u32 v10, v1, 2, 2")
    A("v_lshrrev_b32 v11, 5, v1")
    A("v_and_b32 v12, 1, v1")
    A("v_lshlrev_b32 v12, 5, v12")
    A("v_bfe_u32 v13, v1, 4, 1")
    A("v_lshl_add_u32 v12, v13, 4, v12")
    A("v_bfe_u32 v13, v1, 1, 1")
    A("v_lshl_add_u32 v12, v13, 3, v12")
    A("v_lshl_add_u32 v12, v10, 6, v12")
    A("v_add_u32 v12, s56, v12")
    A("v_lshl_add_u32 v13, v11, 8, v12")
    A("v_mul_u32_u24 v14, 2560, v11")
    A("v_add_u32 v14, v14, v12")
    A("v_lshlrev_b32 v2, 4, v1")
    A("s_mul_i32 s53, s51, 40960")
    A(f"s_add_u32 s53, s53, {WS_WOT:#x}")
    A("s_lshl_b32 s54, s52, 10")
    A("s_add_u32 s54, s54, s53")
    A("s_add_u32 s54, s54, 32768")
    A("s_lshl_b32 s52, s52, 12")
    A("s_add_u32 s53, s53, s52")
    A("s_lshl_b32 s55, s50, 7")
    A(f"s_add_u32 s55, s55, {FW:#x}")
    A("s_waitcnt vmcnt(0)")
    for hh in range(4):
        for half in range(2):
            A(f"ds_read_b64_tr_b16 {vr(40+4*hh+2*half,2)}, v13 offset:{(20*hh+8*half)*64}")
    for half in range(2):
        A(f"ds_read_b64_tr_b16 {vr(56+2*half,2)}, v14 offset:{(20*half+16)*64}")
    A("s_waitcnt lgkmcnt(0)")
    for hh in range(4):
        A(f"buffer_store_dwordx4 {vr(40+4*hh,4)}, v2, s[{SWS}:{SWS+3}], s53 offen offset:{1024*hh}{SC}")
    A(f"buffer_store_dwordx4 v[56:59], v2, s[{SWS}:{SWS+3}], s54 offen{SC}")
    A(f"s_mov_b64 s[{TAG}:{TAG+1}], 0")
    tag_check(A, 8)
    set_flag(A, 8, "s55")
    A.label(Lnw)
    b_channel(A)
    if Opt.hdef == 1:
        A("s_lshl_b32 s50, s49, 12")
    else:
        conv_load_h(A, 2)
    A(f"v_mov_b32 v4, {B_MB+256}")
    A("v_mov_b32 v5, 0")
    A("ds_write_b32 v4, v5")
    A("ds_write_b32 v4, v5 offset:512")


def conv_setup(A):
    A("v_lshlrev_b32 v2, 4, v1")
    A("s_lshl_b32 s52, s49, 1")
    A("s_and_b32 s52, s52, 0xfffffffc")
    A(f"s_load_dword s55, s[{S_SSD}:{S_SSD+1}], s52")
    A(f"s_load_dword s54, s[{S_SSK}:{S_SSK+1}], s50")
    A(f"s_add_u32 s51, s50, {WS_KVT:#x}")
    for i in range(4):
        A(f"v_mov_b32 v{4+i}, 0")
    A("v_add_u32 v3, s56, v2")
    A("s_mov_b64 exec, 0xf")
    A("ds_write_b128 v3, v[4:7]")
    A("s_mov_b32 exec_lo, -1")
    A(f"ds_write_b128 v3, v[4:7] offset:{64+4096}")
    A("s_mov_b64 exec, -1")
    A("v_and_b32 v11, 3, v1")
    A("v_lshrrev_b32 v10, 4, v1")
    A("v_bfe_u32 v12, v1, 2, 2")
    A("v_lshlrev_b32 v8, 4, v11")
    A("v_lshl_add_u32 v8, v10, 6, v8")
    A("v_lshlrev_b32 v9, 3, v12")
    A("v_sub_u32 v8, v8, v9")
    A("s_add_u32 s57, s56, 32")
    A("v_add_u32 v8, s57, v8")
    A("v_sub_u32 v9, v11, v10")
    A("v_lshlrev_b32 v9, 6, v9")
    A("v_lshl_add_u32 v9, v12, 4, v9")
    A(f"s_add_u32 s57, s56, {64+4096+512}")
    A("v_add_u32 v9, s57, v9")
    A("v_mov_b32 v13, 0xffff")
    for i in range(4):
        A(f"v_cmp_eq_u32 vcc, {4*i}, v1")
        A(f"v_cndmask_b32 v{MK+i}, 0, v13, vcc")
    A("v_add_u32 v13, 3, v11")
    A("v_and_b32 v13, 3, v13")
    A("v_lshl_add_u32 v13, v12, 2, v13")
    A("v_add_u32 v13, 48, v13")
    A("v_subrev_u32 v14, 16, v1")
    A("v_cmp_gt_u32 vcc, 16, v1")
    A("v_cndmask_b32 v14, v14, v13, vcc")
    A("v_lshlrev_b32 v14, 2, v14")
    A("s_mov_b32 s58, 0x1111")
    A("s_mov_b32 s59, 0")


MK = 16


def role_conv(A):
    conv_setup(A)
    A("s_sub_u32 s61, s99, 24")
    A("s_lshl_b32 s62, s98, 3")
    A("s_add_u32 s62, s62, s61")
    A("s_lshl_b32 s62, s62, 7")
    A(f"s_add_u32 s62, s62, {F0:#x}")
    A("s_mul_i32 s60, s98, 80")
    A("s_mul_i32 s61, s61, 6")
    A("s_add_u32 s60, s60, s61")
    A("s_add_u32 s61, s60, 5")
    f0_lines(A, 60, 61, 12)
    A(f"s_waitcnt vmcnt({4 if Opt.hdef == 2 else 0}) lgkmcnt(0)")
    stamp(A, 4)
    A("s_barrier")
    if Opt.hdef == 1:
        Lh = A.newlabel("L_hd")
        A("s_cmp_eq_u32 s48, 7")
        A(f"s_cbranch_scc0 {Lh}")
        set_flag(A, 22, "s62")
        A.label(Lh)
        A("s_barrier")
        conv_load_h(A, 2)
        A("s_waitcnt vmcnt(0)")
    else:
        A("s_waitcnt vmcnt(0)")
        A("s_cmp_eq_u32 s48, 7")
        A("s_cbranch_scc0 L_cb")
        set_flag(A, 22, "s62")
    A("s_branch L_cb")
    A.label("L_conv")
    RA, RB = 64, 192
    ACCS = (32, 40, 48, 56)
    CAR, PUL, TMP = 20, (21, 22), 23
    OUT = (24, 28)

    def rdA(m, e):
        reg = RA + 8 * m + 4 * e
        return [(f"ds_read_b64_tr_b16 {vr(reg,2)}, v8 offset:{256*m+8*e+32}", None),
                (f"ds_read_b64_tr_b16 {vr(reg+2,2)}, v8 offset:{256*m+8*e}", ("A", m, e))]

    def xload():
        A(f"s_add_u32 m0, s56, {64+4096+512}")
        for i in range(4):
            A(f"buffer_load_dwordx4 v2, s[{SWS}:{SWS+3}], s51 offen offset:{1024*i}{SC} lds")

    Lb, Lg = "L_cb", A.newlabel("L_cg")
    tag_check(A, 22)
    conv_load_h(A, 2)
    A(f"buffer_load_dwordx2 v[22:23], v12, s[{SWS}:{SWS+3}], s52 offen{SC}")
    A("s_barrier")
    A("s_waitcnt vmcnt(0)")
    A(f"v_cmp_eq_u64 vcc, s[{TAG}:{TAG+1}], v[22:23]")
    A("s_cmp_eq_u64 vcc, -1")
    Lx = A.newlabel("L_cx")
    A(f"s_cbranch_scc1 {Lx}")
    poll(A, 22, 12, "s52", sleep=8)
    A.label(Lx)
    stamp(A, 8)
    xload()
    A.label(Lb)
    A("s_waitcnt lgkmcnt(0)")
    A("s_lshl_b32 s54, s54, 16")
    A("s_lshl_b32 s53, s55, 16")
    A("s_and_b32 s55, s55, 0xffff0000")
    A("s_bitcmp1_b32 s49, 0")
    A("s_cselect_b32 s53, s55, s53")
    A("v_mov_b32 v15, s54")
    A("v_add_f32 v15, s53, v15")
    A("v_cvt_pk_bf16_f32 v15, v15, v15")
    T = Lgkm(A)
    for m in range(16):
        for e in range(2):
            for x, tg in rdA(m, e):
                T.issue(x, tg)
    T.wait(("A", 0, 1))
    for k in range(4):
        A(f"v_bfi_b32 v{RA+k}, v{MK+k}, v15, v{RA+k}")
        A(f"v_lshlrev_b32 v{MK+k}, 16, v{MK+k}")
        A(f"v_bfi_b32 v{RA+4+k}, v{MK+k}, v15, v{RA+4+k}")
    T.all()
    if Opt.qwait:
        Lqd = A.newlabel("L_qd")
        A("s_cmp_ge_u32 s99, 24")
        A(f"s_cbranch_scc1 {Lqd}")
        lds_wait(A, 12, L_SYNC, 4, sleep=4)
        if Opt.qdel:
            A(f"s_sleep {Opt.qdel}")
        A.label(Lqd)
    A("s_cmp_ge_u32 s99, 24")
    A(f"s_cbranch_scc0 {Lg}")
    Ln7 = A.newlabel("L_n7")
    A("s_cmp_eq_u32 s48, 7")
    A(f"s_cbranch_scc0 {Ln7}")
    poll(A, 22, 12, "s52", sleep=4)
    A.label(Ln7)
    A("s_barrier")
    stamp(A, 8)
    xload()
    if Opt.bdelay:
        A(f"s_sleep {Opt.bdelay}")
    A("s_cmp_ge_u32 s48, 4")
    A(f"s_cbranch_scc0 {Lg}")
    A("s_setprio 1")
    A.label(Lg)
    A(f"s_add_u32 s51, s50, {WS_YT:#x}")
    A(f"v_mov_b32 v{PUL[1]}, 0")

    def epilogue(i):
        V = ACCS[i % 4]
        dpp = lambda d, src, op: f"v_add_f32_dpp v{d}, v{src}, v{d} {op} row_mask:0xf bank_mask:0xf"
        L = [f"v_mov_b32 v{CAR}, 0"]
        for k in (1, 2, 3):
            L += [dpp(V, V + k, f"row_shr:{4*k}"), dpp(V + 4, V + 4 + k, f"row_shr:{4*k}"), dpp(CAR, V + 4 + k, f"row_shl:{16-4*k}")]
        L.append(("ds", f"ds_bpermute_b32 v{PUL[i&1]}, v14, v{CAR}", ("P", i)))
        x = [dpp(V + 4, V + k, f"row_shl:{16-4*k}") for k in (1, 2, 3)]
        L += [x[0], "GAP", x[1], "GAP", x[2]]
        L.append(("wait", ("P", i)))
        L.append(f"v_cndmask_b32 v{TMP}, v{PUL[i&1]}, v{PUL[1-(i&1)]}, s[58:59]")
        L.append(f"v_add_f32 v{V}, v{V}, v{TMP}")
        L.append(f"v_cvt_pk_bf16_f32 v{OUT[(i>>2)&1]+(i&3)}, v{V}, v{V+4}")
        if i & 3 == 3:
            L.append(f"buffer_store_dwordx4 {vr(OUT[(i>>2)&1],4)}, v2, s[{SWS}:{SWS+3}], s51 offen offset:{1024*(i>>2)}{SC}")
        return L

    def emit(x):
        if isinstance(x, tuple):
            if x[0] == "ds":
                T.issue(x[1], x[2])
            else:
                T.wait(x[1])
        elif x != "GAP":
            A(x)

    A("s_waitcnt vmcnt(0)")
    stampw(A, 9)

    def stream(tiles, exit_at=None, keep=None):
        T.tag.clear()
        for w in range(16):
            T.issue(f"ds_read_b128 {vr(RB+4*w,4)}, v9 offset:{256*w}", ("B", w))
        fill = []
        since = 99
        for i in tiles:
            V = ACCS[i % 4]
            while fill and fill[0][0] <= i - 4:
                emit(fill.pop(0)[1])
            if exit_at and i == exit_at[0]:
                while fill and fill[0][0] <= i - 2:
                    emit(fill.pop(0)[1])
                assert len(fill) == len(epilogue(i - 1))
                A("s_cmp_ge_u32 s48, 4")
                A(f"s_cbranch_scc1 {exit_at[1]}")
            since = 0
            for w in range(i + 1):
                for e in range(2):
                    T.wait(("B", w))
                    c = vr(V + 4 * e, 4) if w else "0"
                    A(f"v_mfma_f32_16x16x32_bf16 {vr(V+4*e,4)}, {vr(RA+8*(i-w)+4*e,4)}, {vr(RB+4*w,4)}, {c}")
                    since += 1
                    left = 2 * (i + 1) - since
                    due = len([1 for t_, _x in fill if t_ <= i - 2])
                    if i == tiles[-1] or (exit_at and i == exit_at[0] - 1):
                        due = len(fill)
                    for _ in range(2 if due > left else 1):
                        if fill and (fill[0][0] < i - 1 or since >= 6):
                            emit(fill.pop(0)[1])
            ep = epilogue(i)
            if keep and i == keep[0]:
                k = [j for j, x in enumerate(ep) if isinstance(x, str) and x.startswith("v_cvt")][0]
                ep = ep[:k] + [f"v_mov_b32 v{keep[1]}, v{V}", f"v_mov_b32 v{keep[1]+1}, v{V+4}"] + ep[k + 1:]
            fill += [(i, x) for x in ep]
        stampw(A, 10)
        T.done = T.n if Ctx.stamps else T.done
        return [x for _, x in fill]

    A("s_cmp_ge_u32 s48, 6")
    A("s_cbranch_scc1 L_second")
    for x in stream(range(16), (12, "L_first")):
        emit(x)
    A("s_branch L_cdone")
    A.label("L_first")
    A("s_waitcnt lgkmcnt(0)")
    A("s_nop 6")
    T.done = T.n
    stampw(A, 10)
    for x in epilogue(11):
        emit(x)
    A("s_and_b32 s52, s48, 1")
    A("s_lshl_b32 s52, s52, 9")
    A(f"s_add_u32 s52, s52, {B_MB}")
    A("v_lshl_add_u32 v10, v1, 2, s52")
    A(f"ds_write_b32 v10, v{PUL[1]}")
    A("s_add_u32 s52, s52, 256")
    lds_arrive(A, 10, "s52")
    A("s_branch L_cdone")
    A.label("L_second")
    T.done = T.n
    last = stream(range(12, 16), keep=(12, 4))
    for x in last[:-1]:
        emit(x)
    A("s_and_b32 s52, s48, 1")
    A("s_lshl_b32 s52, s52, 9")
    A(f"s_add_u32 s52, s52, {B_MB}")
    A("v_lshl_add_u32 v12, v1, 2, s52")
    A("s_add_u32 s52, s52, 256")
    lds_wait(A, 10, "s52", 1, sleep=2)
    A(f"ds_read_b32 v{TMP}, v12")
    A("s_waitcnt lgkmcnt(0)")
    A(f"v_cndmask_b32 v{TMP}, 0, v{TMP}, s[58:59]")
    A(f"v_add_f32 v4, v4, v{TMP}")
    A(f"v_cvt_pk_bf16_f32 v{OUT[1]}, v4, v5")
    A(last[-1])
    A.label("L_cdone")
    A("s_waitcnt vmcnt(0)")
    stamp(A, 11)
    A("s_cmp_ge_u32 s99, 24")
    A("s_cbranch_scc1 L_bdone")
    A(f"v_mov_b32 v10, {L_SYNC+12}")
    A("v_mov_b32 v11, 1")
    A("s_mov_b64 exec, 1")
    A("ds_add_rtn_u32 v12, v10, v11")
    A("s_mov_b64 exec, -1")
    A("s_lshl_b32 s52, s98, 4")
    A("s_add_u32 s52, s52, s99")
    A("s_lshl_b32 s52, s52, 7")
    A(f"s_add_u32 s52, s52, {F4+8*128:#x}")
    A("s_waitcnt lgkmcnt(0)")
    A("v_readfirstlane_b32 s53, v12")
    A("s_cmp_eq_u32 s53, 3")
    A("s_cbranch_scc0 L_bend")
    set_flag(A, 10, "s52")
    A("s_branch L_bend")
    A.label("L_bdone")


def role_post(A):
    SQ, SO = 32, 36
    A.label("L_post")
    A("s_setprio 0")
    A("s_and_b32 s48, s48, 3")
    A("s_sub_u32 s50, s99, 24")
    A("s_lshl_b32 s50, s50, 2")
    A("s_lshl_b32 s51, s99, 1")
    A("s_add_u32 s51, s51, 24")
    A("s_cmp_ge_u32 s99, 24")
    A("s_cselect_b32 s50, s50, s51")
    A("s_mul_i32 s49, s98, 40")
    A("s_add_u32 s49, s49, s50")
    A("s_add_u32 s49, s49, s48")
    A("s_and_b32 s50, s49, 31")
    A("s_lshr_b32 s51, s49, 5")
    A("v_lshrrev_b32 v2, 3, v1")
    A("v_and_b32 v3, 7, v1")
    A("v_lshlrev_b32 v4, 12, v2")
    A("v_lshl_add_u32 v4, v3, 4, v4")
    A("s_lshl_b32 s52, s51, 18")
    A("s_lshl_b32 s53, s50, 7")
    A("s_add_u32 s52, s52, s53")
    A(f"s_add_u32 s52, s52, {WS_YT:#x}")
    A("s_mul_i32 s56, s48, 8320")
    A(f"s_add_u32 s56, s56, {B_PRE}")
    A("s_lshr_b32 s54, s50, 3")
    A("s_lshl_b32 s54, s54, 9")
    A("s_bfe_u32 s55, s50, 0x20001")
    A("s_lshl_b32 s55, s55, 3")
    A("s_add_u32 s54, s54, s55")
    A("s_and_b32 s55, s50, 1")
    A("s_lshl_b32 s55, s55, 1")
    A("s_add_u32 s54, s54, s55")
    A("v_and_b32 v5, 3, v2")
    A("v_lshrrev_b32 v6, 2, v2")
    A("v_lshl_add_u32 v5, v5, 5, v6")
    A("v_mul_u32_u24 v6, 1280, v5")
    A("v_lshlrev_b32 v7, 1, v6")
    A("v_lshl_add_u32 v6, v3, 4, v6")
    A("v_lshl_add_u32 v7, v3, 4, v7")
    A("s_mul_i32 s54, s54, 1280")
    A("s_lshl_b32 s53, s51, 7")
    A("s_lshl_b32 s55, s54, 1")
    A("s_add_u32 s54, s54, s53")
    A("s_add_u32 s55, s55, s53")
    A("s_add_u32 s55, s55, 1280")
    srd(A, SQ, S_BQ, NB_X)
    srd(A, SO, S_OUT, NB_OUT)
    QR, YR = 16, 48
    rows = [0, 4, 128, 132, 256, 260, 384, 388]
    for i in range(8):
        A(f"s_add_u32 s57, s54, {rows[i]*1280}")
        A(f"buffer_load_dwordx4 {vr(QR+4*i,4)}, v6, s[{SQ}:{SQ+3}], s57 offen{Opt.nt_s}")
    A("s_mov_b32 s59, 0xffff0000")
    QF = 128
    A("s_waitcnt vmcnt(0)")
    for i in range(32):
        A(f"v_lshlrev_b32 v{QF+2*i}, 16, v{QR+i}")
        A(f"v_and_b32 v{QF+2*i+1}, s59, v{QR+i}")
    A("s_lshl_b32 s57, s98, 4")
    A("s_sub_u32 s58, s57, 16")
    A("v_min_u32 v12, 47, v1")
    A("v_add_u32 v12, s58, v12")
    A("v_max_i32 v12, 0, v12")
    A("v_min_u32 v12, 127, v12")
    A("v_lshlrev_b32 v12, 7, v12")
    A("s_add_u32 s57, s57, s99")
    A("s_lshl_b32 s57, s57, 7")
    A(f"s_add_u32 s57, s57, {F4-24*128:#x}")
    A(f"s_mov_b32 s58, {F4:#x}")
    Lx, Lq, Ld = A.newlabel("L_p7"), A.newlabel("L_pq"), A.newlabel("L_pd")
    A("s_cmp_ge_u32 s99, 24")
    A(f"s_cbranch_scc0 {Lq}")
    A("s_barrier")
    A("s_cmp_eq_u32 s48, 3")
    A(f"s_cbranch_scc0 {Lx}")
    set_flag(A, 8, "s57")
    poll(A, 14, 12, "s58", sleep=4)
    A.label(Lx)
    A("s_barrier")
    A(f"s_branch {Ld}")
    A.label(Lq)
    A("s_barrier")
    poll(A, 14, 12, "s58", sleep=4)
    A.label(Ld)
    if Opt.dB:
        A(f"s_sleep {Opt.dB}")
    stamp(A, 12)
    for i in range(8):
        A(f"v_xor_b32 v8, {16*i}, v4")
        A(f"s_add_u32 m0, s56, {1024*i}")
        A(f"buffer_load_dwordx4 v8, s[{SWS}:{SWS+3}], s52 offen{SC} lds")
        if i < 7:
            A(f"s_add_u32 s52, s52, {8*4096}")
    A("v_xor_b32 v8, v2, v3")
    A("v_lshlrev_b32 v8, 4, v8")
    A("v_lshl_add_u32 v8, v3, 10, v8")
    A("v_add_u32 v8, s56, v8")
    A("s_waitcnt vmcnt(0)")
    for c in range(8):
        A(f"ds_read_b128 {vr(YR+4*c,4)}, v8 offset:{128*c}")
    A("s_waitcnt lgkmcnt(0)")
    stamp(A, 13)
    YF, OUT = 80, 96
    for i in range(8):
        for c in range(8):
            if i & 1:
                A(f"v_and_b32 v{YF+c}, s59, v{YR+4*c+i//2}")
            else:
                A(f"v_lshlrev_b32 v{YF+c}, 16, v{YR+4*c+i//2}")
        for c in range(0, 8, 2):
            A(f"v_pk_mul_f32 {vr(YF+c,2)}, {vr(YF+c,2)}, {vr(QF+8*i+c,2)}")
        for k in range(4):
            A(f"v_cvt_pk_bf16_f32 v{OUT+4*i+k}, v{YF+2*k}, v{YF+2*k+1}")
        A(f"s_add_u32 s57, s55, {rows[i]*2560}")
        A(f"buffer_store_dwordx4 {vr(OUT+4*i,4)}, v7, s[{SO}:{SO+3}], s57 offen{Opt.oscb}")
    stamp(A, 14)


def build():
    A = Asm()
    k = NAME + "_kernel"
    A.raw(f".globl {k}")
    A.raw(".p2align 8")
    A.raw(f".type {k},@function")
    A.label(k)
    if Opt.hold:
        A("s_memrealtime s[64:65]")
    load_kernargs(A)
    if Opt.lite:
        A("s_memrealtime s[64:65]")
    elif not Opt.hp:
        stamp_init(A)
        if Opt.rt:
            A("s_waitcnt lgkmcnt(0)")
            stamp(A, 1)
    A("v_lshrrev_b32 v2, 6, v0")
    A("v_and_b32 v1, 63, v0")
    A("v_readfirstlane_b32 s100, v2")
    A("s_and_b32 s98, s2, 7")
    A("s_lshr_b32 s99, s2, 3")
    A("s_cmp_ge_u32 s2, 192")
    A("s_cbranch_scc1 L_b")
    A("s_and_b32 s49, s2, 3")
    A("s_lshl_b32 s49, s49, 2")
    A("s_and_b32 s50, s99, 3")
    A("s_add_u32 s49, s49, s50")
    A("s_bfe_u32 s52, s2, 0x10002")
    A("s_lshr_b32 s53, s2, 5")
    A("s_lshl_b32 s54, s52, 1")
    A("s_add_u32 s54, s54, s53")
    A("s_lshl_b32 s55, s52, 2")
    A("s_add_u32 s55, s55, s53")
    A("s_sub_u32 s55, s55, 2")
    A("s_cmp_lt_u32 s2, 64")
    A("s_cselect_b32 s50, s54, s55")
    A("s_cselect_b32 s51, 1, 0")
    A("s_and_b32 s48, s100, 3")
    A("s_cmp_ge_u32 s100, 4")
    A("s_cbranch_scc1 L_c")
    role_loader(A)
    A.label("L_c")
    role_compute(A)
    A.label("L_b")
    A("s_cmp_ge_u32 s2, 256")
    A("s_cbranch_scc1 L_exit")
    A("s_mov_b32 s48, s100")
    A("s_cmp_ge_u32 s48, 5")
    A("s_cbranch_scc1 L_help")
    role_pre(A)
    A("s_branch L_bconv")
    A.label("L_help")
    role_helper(A)
    A.label("L_bconv")
    role_conv(A)
    A("s_cmp_lt_u32 s48, 4")
    A("s_cbranch_scc1 L_bend")
    role_post(A)
    A.label("L_bend")
    end_wave(A, "b")
    A.label("L_exit")
    A("s_endpgm")
    A.label("L_code_end")
    head = ["; generated by gen/f11.py",
            "; @launch grid=(256,1,1) block=(512,1,1) lds=163840"]
    txt = "\n".join(head) + '\n.amdgcn_target "amdgcn-amd-amdhsa--gfx950"\n.text\n' + A.text()
    txt += f'''.section .rodata,"a"
.p2align 6
.amdhsa_kernel {k}
  .amdhsa_next_free_vgpr 256
  .amdhsa_next_free_sgpr 102
  .amdhsa_accum_offset 256
  .amdhsa_group_segment_fixed_size 0
  .amdhsa_kernarg_size 104
  .amdhsa_user_sgpr_count 2
  .amdhsa_user_sgpr_kernarg_segment_ptr 1
  .amdhsa_system_sgpr_workgroup_id_x 1
.end_amdhsa_kernel
'''
    return txt


if __name__ == "__main__":
    args = sys.argv[2:]
    Ctx.stamps = "stamps" in args
    Opt.rot = "norot" not in args
    Opt.codepf = "nocodepf" not in args
    for a in args:
        if a.startswith("probe="):
            Opt.probe = tuple(int(x) for x in a[6:].split(","))
        if a.startswith("holdwg="):
            Opt.holdwg = int(a[7:])
        if a.startswith("osc="):
            Opt.osc = a[4:].replace("_", " ")
        if a.startswith("oscb="):
            Opt.oscb = a[5:].replace("_", " ")
        if a.startswith("gpf="):
            Opt.gpf = int(a[4:])
        if a.startswith("gpfd="):
            Opt.gpfd = int(a[5:])
        if a.startswith("rotA="):
            Opt.rotA = int(a[5:], 16)
        if a.startswith("rotB="):
            Opt.rotB = int(a[5:], 16)
        if a == "fake16":
            Opt.fake16 = True
        if a.startswith("qdelay="):
            Opt.qdelay = int(a[7:])
        if a.startswith("bpos="):
            Opt.bpos = int(a[5:])
        if a == "lidle":
            Opt.lidle = True
        if a == "noqwait":
            Opt.qwait = False
        if a == "nofwarm":
            Opt.fwarm = False
        if a == "noprog":
            Opt.prog = False
        if a == "nodflag":
            Opt.dflag = False
        if a == "lite":
            Opt.lite = True
            Ctx.stamps = True
        if a.startswith("wos="):
            Opt.wos = int(a[4:])
        if a.startswith("R="):
            Opt.R = int(a[2:])
        if a.startswith("hdef="):
            Opt.hdef = int(a[5:])
        if a.startswith("gpf2="):
            Opt.gpf2 = int(a[5:])
        if a.startswith("oahead="):
            Opt.oahead = int(a[7:])
        if a.startswith("hpsel="):
            Opt.hpsel = a[6:]
        if a.startswith("bdelay="):
            Opt.bdelay = int(a[7:])
        if a.startswith("qdel="):
            Opt.qdel = int(a[5:])
        if a == "snake":
            Opt.snake = True
        if a == "wrot":
            Opt.wrot = True
        if a.startswith("wfirst="):
            Opt.wfirst = int(a[7:])
        if a == "rt":
            Opt.rt = True
        if a.startswith("hp="):
            Opt.hp = int(a[3:])
            Ctx.stamps = True
        if a.startswith("hold="):
            Opt.hold = int(a[5:])
        if a.startswith("dA="):
            Opt.dA = int(a[3:])
        if a.startswith("dB="):
            Opt.dB = int(a[3:])
        if a == "nowomall":
            Opt.womall = False
        if a == "noppoll":
            Opt.ppoll = False
        if a.startswith("psleep="):
            Opt.psleep = int(a[7:])
        if a.startswith("wopf="):
            Opt.wopf = a[5:]
    for a in args:
        if a.startswith("LA="):
            Opt.LA = int(a[3:])
    open(sys.argv[1], "w").write(build())
```

```python
import sys
from asm import Asm, vr, ar, sr
from roles import (WS_PHIQ, WS_PART, WS_O, WS_KVT, WS_YT, WS_STAMP, WS_SIZE, S_X, S_W, S_WPHI, S_WO, S_BQ, S_BK, S_BV,
                   S_SH, S_SSK, S_SSD, S_OUT, S_DBG, S_WS, NB_X, NB_W, NB_WPHI, NB_WO, NB_SH, NB_SSK, NB_OUT, LOG2E,
                   Ctx, load_kernargs, srd, stamp, stamp_init, softmax20)

NAME = "concat_heads__linear_kernel_hedgehog__ssm_conv_h3__prompt"
WS_PQ = WS_PHIQ
WS_FLAG = 0xF00000
F1, F2, F3, F0, F4 = (WS_FLAG + 128 * o for o in (0, 512, 1024, 1536, 1856))
FW = WS_FLAG + 128 * 2048
WS_WOT = 0x400000
WS_EPOCH = WS_FLAG + 128 * 2560 + 64
SWS = 44
SC = " sc1"
TAG = 30
SLOT = 36864
L_WP = 147456
L_Z = L_WP + 8192
L_SYNC = L_Z + 4096
L_V = 128 * 336
L_WOB = 69632
L_OT = 65536
CV_LDS = 8768
L_QCV = 3 * SLOT
B_PRE = 8 * CV_LDS
B_MB = B_PRE + 5 * 8320


class Opt:
    rot = True
    LA = 2
    nt_s = " nt"
    codepf = True
    wopf = "no"
    osc = " sc1 nt"
    oscb = " sc1 nt"
    hp = 0
    only = None
    wrot = False
    wfirst = 40
    bdelay = 0
    qdel = 0
    snake = False
    hpsel = "kv"
    oahead = 5
    gpf2 = 3
    hdef = 1
    R = 10
    wos = 1
    lite = False
    dflag = False
    prog = True
    fwarm = True
    qwait = True
    lidle = False
    bpos = 4
    fake16 = False
    qdelay = 0
    rotA = 0x5050
    rotB = 0x550050
    gpf = 0
    gpfd = 99
    rt = False
    ppoll = False
    womall = True
    probe = None
    dA = 0
    hold = 0
    holdwg = -1
    dB = 0
    psleep = 2


_stamp0 = stamp


def stamp(A, k, real=False):
    if Opt.hp:
        if k == Opt.hp:
            A("s_memrealtime s[64:65]")
        return
    if Opt.lite and k not in (0, 15):
        return
    if Opt.only and k not in Opt.only:
        return
    _stamp0(A, k, real or Opt.rt)


def end_wave(A, holdable=False):
    if Opt.hp:
        if (holdable is True and Opt.hpsel in ("kv", "qw")) or (holdable == "b" and Opt.hpsel in ("b", "qs")):
            L = A.newlabel("L_hp")
            A("s_cmp_lt_u32 s99, 8")
            A("s_cbranch_scc1 L_exit" if Opt.hpsel in ("kv", "b") else "s_cbranch_scc0 L_exit")
            if holdable == "b":
                A("s_cmp_lt_u32 s100, 4")
                A("s_cbranch_scc1 L_exit")
            A.label(L)
            A("s_sleep 4")
            A("s_memrealtime s[66:67]")
            A("s_waitcnt lgkmcnt(0)")
            A("s_sub_u32 s66, s66, s64")
            A("s_cmp_lt_u32 s66, 2000")
            A(f"s_cbranch_scc1 {L}")
    elif Ctx.stamps:
        stamp(A, 15, True)
        A("s_waitcnt lgkmcnt(0)")
        A("s_mov_b64 exec, -1")
        A("v_mov_b32 v2, 0")
        for k in ((0, 15) if Opt.lite else range(16)):
            A(f"v_writelane_b32 v2, s{64+2*k}, {k}")
        A("s_lshl_b32 s62, s2, 3")
        A("s_add_u32 s62, s62, s100")
        A("s_lshl_b32 s62, s62, 6")
        A(f"s_add_u32 s62, s62, {WS_STAMP:#x}")
        A("v_lshlrev_b32 v1, 2, v1")
        A("s_mov_b64 exec, 0xffff")
        A(f"buffer_store_dword v2, v1, s[{SWS}:{SWS+3}], s62 offen")
        if Opt.probe:
            Lp = A.newlabel("L_probe")
            A(f"s_cmp_eq_u32 s2, {Opt.probe[0]}")
            A(f"s_cbranch_scc0 {Lp}")
            A(f"s_cmp_eq_u32 s100, {Opt.probe[1]}")
            A(f"s_cbranch_scc0 {Lp}")
            A("v_subrev_u32 v3, s66, v2")
            A("s_sub_u32 s62, s94, s64")
            A("v_writelane_b32 v3, s62, 15")
            A("v_cmp_ne_u32 vcc, 0, v2")
            A("v_cndmask_b32 v3, 0, v3, vcc")
            A("s_mov_b64 exec, 0xfffc")
            A(f"global_store_dword v1, v3, s[{S_DBG}:{S_DBG+1}]")
            A.label(Lp)
    A("s_endpgm")


def stampw(A, k):
    stamp(A, k)
    if Ctx.stamps:
        A("s_waitcnt lgkmcnt(0)")


def poll(A, vt, voff, soff, sleep=1):
    L, Ld = A.newlabel("L_poll"), A.newlabel("L_polld")
    A("s_movk_i32 s101, 0x4000")
    A.label(L)
    A(f"buffer_load_dwordx2 {vr(vt,2)}, v{voff}, s[{SWS}:{SWS+3}], {soff} offen{SC}")
    A("s_waitcnt vmcnt(0)")
    A(f"v_cmp_eq_u64 vcc, s[{TAG}:{TAG+1}], {vr(vt,2)}")
    A("s_cmp_eq_u64 vcc, -1")
    A(f"s_cbranch_scc1 {Ld}")
    A(f"s_sleep {sleep}")
    A("s_sub_u32 s101, s101, 1")
    A("s_cmp_eq_u32 s101, 0")
    A(f"s_cbranch_scc0 {L}")
    A("s_endpgm")
    A.label(Ld)


def ppoll(A, vt, voff, soff, sleep=1, depth=4):
    if not Opt.ppoll:
        return poll(A, vt, voff, soff, sleep=sleep)
    L, Ld = A.newlabel("L_pp"), A.newlabel("L_ppd")
    ld = lambda k: f"buffer_load_dwordx2 {vr(vt+2*k,2)}, v{voff}, s[{SWS}:{SWS+3}], {soff} offen{SC}"
    A("s_movk_i32 s101, 0x4000")
    for k in range(depth - 1):
        A(ld(k))
        A(f"s_sleep {sleep}")
    A.label(L)
    for k in range(depth):
        A(ld((k + depth - 1) % depth))
        A(f"s_waitcnt vmcnt({depth-1})")
        A(f"v_cmp_eq_u64 vcc, s[{TAG}:{TAG+1}], {vr(vt+2*k,2)}")
        A("s_cmp_eq_u64 vcc, -1")
        A(f"s_cbranch_scc1 {Ld}")
        A(f"s_sleep {sleep}")
    A("s_sub_u32 s101, s101, 1")
    A("s_cmp_eq_u32 s101, 0")
    A(f"s_cbranch_scc0 {L}")
    A("s_endpgm")
    A.label(Ld)


def set_flag(A, vt, soff):
    A(f"v_mov_b32 v{vt}, s{TAG}")
    A(f"v_mov_b32 v{vt+1}, s{TAG+1}")
    A(f"v_lshlrev_b32 v{vt+2}, 3, v1")
    A("s_waitcnt vmcnt(0)")
    A("s_mov_b64 exec, 0xffff")
    A(f"buffer_store_dwordx2 {vr(vt,2)}, v{vt+2}, s[{SWS}:{SWS+3}], {soff} offen{SC}")
    A("s_mov_b64 exec, -1")


def tag_issue(A):
    A(f"s_load_dwordx2 s[{TAG}:{TAG+1}], s[{S_DBG}:{S_DBG+1}], 0")


def tag_check(A, vt):
    L, Ld = A.newlabel("L_hs"), A.newlabel("L_hsd")
    A("s_waitcnt lgkmcnt(0)")
    A(f"s_cmp_lg_u32 s{TAG}, s{TAG+1}")
    A(f"s_cbranch_scc1 {Ld}")
    A("s_movk_i32 s101, 0x4000")
    A(f"v_mov_b32 v{vt+2}, 0")
    A.label(L)
    A(f"global_load_dwordx2 {vr(vt,2)}, v{vt+2}, s[{S_DBG}:{S_DBG+1}]{SC}")
    A("s_waitcnt vmcnt(0)")
    A(f"v_readfirstlane_b32 s{TAG}, v{vt}")
    A(f"v_readfirstlane_b32 s{TAG+1}, v{vt+1}")
    A("s_nop 3")
    A(f"s_cmp_lg_u32 s{TAG}, s{TAG+1}")
    A(f"s_cbranch_scc1 {Ld}")
    A("s_sleep 8")
    A("s_sub_u32 s101, s101, 1")
    A("s_cmp_eq_u32 s101, 0")
    A(f"s_cbranch_scc0 {L}")
    A("s_endpgm")
    A.label(Ld)


def lds_arrive(A, vt, addr):
    A(f"v_mov_b32 v{vt}, {addr}")
    A(f"v_mov_b32 v{vt+1}, 1")
    A("s_waitcnt lgkmcnt(0)")
    A("s_mov_b64 exec, 1")
    A(f"ds_add_u32 v{vt}, v{vt+1}")
    A("s_mov_b64 exec, -1")


def lds_wait(A, vt, addr, n, sleep=0):
    L, Ld = A.newlabel("L_lw"), A.newlabel("L_lwd")
    if addr is not None:
        A(f"v_mov_b32 v{vt}, {addr}")
    A("s_mov_b32 s101, 0x40000")
    A.label(L)
    A(f"ds_read_b32 v{vt+1}, v{vt}")
    A("s_waitcnt lgkmcnt(0)")
    A(f"v_cmp_le_u32 vcc, {n}, v{vt+1}")
    A(f"s_cbranch_vccnz {Ld}")
    if sleep:
        A(f"s_sleep {sleep}")
    A("s_sub_u32 s101, s101, 1")
    A("s_cmp_eq_u32 s101, 0")
    A(f"s_cbranch_scc0 {L}")
    A("s_endpgm")
    A.label(Ld)


class Lgkm:
    def __init__(self, A):
        self.A, self.n, self.done, self.tag = A, 0, 0, {}

    def issue(self, text, tag=None):
        self.A(text)
        self.n += 1
        if tag is not None:
            self.tag[tag] = self.n

    def wait(self, *tags):
        need = max(self.tag[t] for t in tags)
        if need > self.done:
            self.A(f"s_waitcnt lgkmcnt({min(15, self.n - need)})")
            self.done = max(need, self.n - 15)

    def all(self):
        if self.done < self.n:
            self.A("s_waitcnt lgkmcnt(0)")
            self.done = self.n


def softmax_parts(X, E, F, T, PH):
    mx, mn = T, T + 2
    mm = [f"v_max3_f32 v{mx}, v{X}, v{X+1}, v{X+2}", f"v_min3_f32 v{mn}, v{X}, v{X+1}, v{X+2}"]
    for i in range(3, 19, 2):
        mm += [f"v_max3_f32 v{mx}, v{mx}, v{X+i}, v{X+i+1}", f"v_min3_f32 v{mn}, v{mn}, v{X+i}, v{X+i+1}"]
    mm += [f"v_max_f32 v{mx}, v{mx}, v{X+19}", f"v_min_f32 v{mn}, v{mn}, v{X+19}",
           f"v_mul_f32 v{mx}, s60, v{mx}", f"v_mul_f32 v{mn}, s60, v{mn}"]
    fm, ex = [], []
    for i in range(0, 20, 2):
        fm.append(f"v_pk_fma_f32 {vr(E+i,2)}, {vr(X+i,2)}, s[60:61], {vr(mx,2)} op_sel_hi:[1,1,0] neg_lo:[0,0,1] neg_hi:[0,0,1]")
        fm.append(f"v_pk_fma_f32 {vr(F+i,2)}, {vr(X+i,2)}, s[60:61], {vr(mn,2)} op_sel_hi:[1,1,0] neg_lo:[1,0,0] neg_hi:[1,0,0]")
    for i in range(20):
        ex += [f"v_exp_f32 v{E+i}, v{E+i}", f"v_exp_f32 v{F+i}, v{F+i}"]
    se, sf = T + 4, T + 6
    sm = [f"v_pk_add_f32 {vr(se,2)}, {vr(E,2)}, {vr(E+2,2)}", f"v_pk_add_f32 {vr(sf,2)}, {vr(F,2)}, {vr(F+2,2)}"]
    for i in range(4, 20, 2):
        sm += [f"v_pk_add_f32 {vr(se,2)}, {vr(se,2)}, {vr(E+i,2)}", f"v_pk_add_f32 {vr(sf,2)}, {vr(sf,2)}, {vr(F+i,2)}"]
    fin = [f"v_add_f32 v{se}, v{se}, v{se+1}", f"v_add_f32 v{sf}, v{sf}, v{sf+1}",
           f"v_rcp_f32 v{se}, v{se}", f"v_rcp_f32 v{sf}, v{sf}"]
    tail = []
    for j in range(20):
        R, s_ = (E + 2 * j, se) if j < 10 else (F + 2 * (j - 10), sf)
        tail.append((f"v_pk_mul_f32 {vr(R,2)}, {vr(R,2)}, {vr(s_,2)} op_sel_hi:[1,0]", f"v_cvt_pk_bf16_f32 v{PH+j}, v{R}, v{R+1}"))
    return mm, fm, ex, sm, fin, tail


def merge(main, extra, every, start=0):
    out, extra = [], list(extra)
    for i, x in enumerate(main):
        out.append(x)
        if extra and i >= start and (i - start) % every == every - 1:
            out.append(extra.pop(0))
    return out + extra


def o_index(A):
    A("s_sub_u32 s63, s99, 8")
    A("s_lshr_b32 s62, s63, 2")
    A("s_lshl_b32 s3, s98, 2")
    A("s_add_u32 s62, s62, s3")
    A("s_and_b32 s63, s63, 3")
    A("s_lshl_b32 s63, s63, 2")
    A("s_add_u32 s63, s63, s48")


def role_loader(A):
    SX, SW, SP = 32, 36, 40
    VX, VW = 24, 28
    t0, t1, t2, t3 = 11, 12, 13, 14
    A("s_setprio 1")
    A(f"v_lshrrev_b32 v{t0}, 3, v1")
    A(f"v_mul_u32_u24 v{t0}, 1280, v{t0}")
    A(f"v_lshrrev_b32 v{t1}, 4, v1")
    A(f"v_and_b32 v{t2}, 7, v1")
    A(f"v_xor_b32 v{t1}, v{t1}, v{t2}")
    A(f"v_xor_b32 v{t2}, 4, v{t1}")
    A(f"v_lshl_add_u32 v{VX}, v{t1}, 4, v{t0}")
    A(f"v_lshl_add_u32 v{VX+1}, v{t2}, 4, v{t0}")
    A(f"v_add_u32 v{VX+2}, {2*(8*1280-1024)}, v{VX}")
    A(f"v_add_u32 v{VX+3}, {3*(8*1280-1024)}, v{VX+1}")
    A(f"v_add_u32 v{VX+1}, {8*1280-1024}, v{VX+1}")
    A("s_lshl_b32 s60, s49, 2")
    A("s_add_u32 s60, s60, s48")
    A(f"s_mul_i32 s60, s60, {32*1280}")
    if Opt.rot:
        A("s_lshl_b32 s30, s49, 2")
        A("s_bfe_u32 s30, s30, 0x40000")
        A(f"s_lshr_b32 s30, {Opt.rotA:#x}, s30")
        A("s_and_b32 s30, s30, 15")
        A("s_and_b32 s31, s99, 28")
        A(f"s_lshr_b32 s31, {Opt.rotB:#x}, s31")
        A("s_and_b32 s31, s31, 15")
        A("s_add_u32 s30, s30, s31")
        A(f"s_sub_u32 s31, s30, {Opt.R}")
        A(f"s_cmp_ge_u32 s30, {Opt.R}")
        A("s_cselect_b32 s30, s31, s30")
        A("s_lshl_b32 s31, s30, 7")
        A("s_add_u32 s60, s60, s31")
    A("s_lshl_b32 s62, s48, 12")
    A("s_mov_b32 m0, s62")
    A(f"s_mov_b32 s{SX+2}, {NB_X:#x}")
    A(f"s_mov_b32 s{SX+3}, 0x20000")
    A("s_waitcnt lgkmcnt(0)")
    A(f"s_mov_b64 s[{SX}:{SX+1}], s[{S_X}:{S_X+1}]")

    def dma_x(s):
        if s:
            A(f"s_add_u32 m0, s62, {(s % 3) * SLOT}")
        for i in range(4):
            A(f"buffer_load_dwordx4 v{VX+i}, s[{SX}:{SX+3}], s60 offen offset:{1024*i} lds")

    def dma_w(s):
        sl = (s % 3) * SLOT
        A(f"s_add_u32 m0, s63, {sl}")
        for i in range(4):
            A(f"buffer_load_dwordx4 v{VW+i}, s[{SW}:{SW+3}], s61 offen offset:{1024*i} lds")
        A(f"s_add_u32 m0, s63, {sl+4096}")
        A(f"buffer_load_dwordx4 v{VW+4}, s[{SW}:{SW+3}], s61 offen lds")
        if s < 9:
            if Opt.rot and s < Opt.R - 1:
                A("s_add_u32 s30, s30, 1")
                A(f"s_cmp_eq_u32 s30, {Opt.R}")
                A(f"s_cselect_b32 s31, {(-128*(Opt.R-1))&0xffffffff:#x}, s97")
                A(f"s_cselect_b32 s3, {(-(Opt.R-1)*64*3840)&0xffffffff:#x}, s96")
                A("s_cselect_b32 s30, 0, s30")
                A("s_add_u32 s60, s60, s31")
                A("s_add_u32 s61, s61, s3")
            elif Opt.rot and s == Opt.R - 1:
                A(f"s_sub_u32 s30, {Opt.R}, s30")
                A("s_lshl_b32 s31, s30, 7")
                A("s_mul_i32 s3, s30, s96")
                A("s_add_u32 s60, s60, s31")
                A("s_add_u32 s61, s61, s3")
            else:
                A("s_add_u32 s60, s60, 128")
                A(f"s_add_u32 s61, s61, {64*3840}")

    dma_x(0)
    A("s_cmp_eq_u32 s51, 0")
    A("s_cselect_b32 s56, 1120, 0")
    A("s_add_u32 s58, s51, 1")
    A(f"v_xor_b32 v15, s58, v1")
    A(f"v_cmp_gt_u32 vcc, 32, v1")
    A("s_movk_i32 s57, 3520")
    A(f"v_cndmask_b32 v16, v15, v1, vcc")
    for i in range(5):
        src = (1, 1, 16, 15, 15)[i]
        A(f"v_add_u32 v{t2}, {64*i}, v{src}")
        A(f"v_mul_u32_u24 v{t2}, 6554, v{t2}")
        A(f"v_lshlrev_b32 v{t3}, 4, v{src}")
        A(f"v_lshrrev_b32 v{t0}, 17, v{t2}")
        A(f"v_bfe_u32 v{t1}, v{t2}, 16, 1")
        A(f"v_mad_u32_u24 v{t0}, v{t0}, s57, v{t3}")
        A(f"v_mad_u32_u24 v{VW+i}, v{t1}, s56, v{t0}")
    A(f"v_lshlrev_b32 v{t3}, 4, v1")
    A(f"v_add_u32 v{VW+4}, 4096, v{VW+4}")
    A(f"s_mul_i32 s61, s48, {16*3840}")
    A("s_mul_i32 s57, s50, 160")
    A("s_add_u32 s58, s57, 1280")
    A("s_lshl_b32 s57, s57, 1")
    A("s_cmp_eq_u32 s51, 0")
    A("s_cselect_b32 s57, s58, s57")
    A("s_add_u32 s61, s61, s57")
    if Opt.rot:
        A(f"s_mov_b32 s96, {64*3840}")
        A("s_movk_i32 s97, 128")
        A("s_mul_i32 s31, s30, s96")
        A("s_add_u32 s61, s61, s31")
    A("s_mul_i32 s63, s48, 5120")
    A("s_add_u32 s63, s63, 16384")
    srd(A, SW, S_W, NB_W)
    dma_w(0)
    stamp(A, 2)
    A("s_mul_i32 s57, s50, 3200")
    A("s_lshl_b32 s57, s57, s51")
    A("s_lshl_b32 s58, s48, 11")
    A("s_add_u32 s57, s57, s58")
    srd(A, SP, S_WPHI, NB_WPHI)
    A(f"s_add_u32 m0, s58, {L_WP}")
    A(f"buffer_load_dwordx4 v{t3}, s[{SP}:{SP+3}], s57 offen lds")
    A(f"buffer_load_dwordx4 v{t3}, s[{SP}:{SP+3}], s57 offen offset:1024 lds")
    srd(A, SWS, S_WS, WS_SIZE)
    Lh = A.newlabel("L_noh")
    A("s_cmp_eq_u32 s51, 0")
    A(f"s_cbranch_scc1 {Lh}")
    A("s_mul_i32 s49, s98, 80")
    A("s_lshl_b32 s50, s99, 2")
    A("s_add_u32 s49, s49, s50")
    A("s_add_u32 s49, s49, s48")
    A("s_add_u32 s49, s49, 48")
    A(f"s_mul_i32 s56, s48, {CV_LDS}")
    A(f"s_add_u32 s56, s56, {L_QCV}")
    A("s_lshl_b32 s50, s49, 12")
    A.label(Lh)
    assert Opt.LA == 2
    issued = 0
    for s in range(10):
        while issued < min(s + Opt.LA - 1, 9):
            issued += 1
            dma_x(issued)
            dma_w(issued)
        if s == 0:
            Ls = A.newlabel("L_nosetup")
            A("s_cmp_ge_u32 s99, 8")
            A(f"s_cbranch_scc1 {Ls}")
            conv_setup(A)
            f0_lines(A, 49, 49, 12)
            A.label(Ls)
        if s == 9:
            tag_issue(A)
        A(f"s_waitcnt vmcnt({9*(issued-s)})")
        A("s_barrier")
        if s in (0, 3, 6, 9):
            stamp(A, 3 + s // 3)
    A("s_setprio 0")
    A("s_cmp_lt_u32 s99, 8")
    A("s_cbranch_scc1 L_conv")
    role_wo(A)


def role_wo(A):
    SO, SWO = 32, 36
    WR = 64
    A.label("L_wo")
    A("s_lshr_b32 s50, s99, 2")
    A("s_sub_u32 s50, s50, 1")
    A("s_max_i32 s50, s50, 0")
    A("s_lshl_b32 s50, s50, 2")
    A("s_add_u32 s50, s50, s48")
    A("s_lshl_b32 s52, s50, 6")
    A("s_mul_i32 s51, s50, 40960")
    A(f"s_add_u32 s51, s51, {WS_WOT:#x}")
    A("s_lshl_b32 s54, s50, 10")
    A(f"s_add_u32 s54, s54, {FW:#x}")
    A("v_lshrrev_b32 v15, 3, v1")
    A("v_lshlrev_b32 v15, 7, v15")
    A("v_lshlrev_b32 v18, 4, v1")
    tag_check(A, 20)
    A(f"buffer_load_dwordx2 v[16:17], v15, s[{SWS}:{SWS+3}], s54 offen{SC}")
    Lj, Lk = A.newlabel("L_woj"), A.newlabel("L_wok")
    A("s_cmp_lt_u32 s99, 8")
    A(f"s_cbranch_scc1 {Lj}")
    A("s_barrier")
    A.label(Lj)
    A("s_waitcnt vmcnt(0)")
    A(f"v_cmp_eq_u64 vcc, s[{TAG}:{TAG+1}], v[16:17]")
    A("s_cmp_eq_u64 vcc, -1")
    A(f"s_cbranch_scc1 {Lk}")
    poll(A, 16, 15, "s54", sleep=8)
    A.label(Lk)

    def wload(f0, f1):
        for f in range(f0, f1):
            if f % 4 == 0 or f == f0:
                A(f"s_add_u32 s53, s51, {4096*(f//4)}")
            A(f"buffer_load_dwordx4 {vr(WR+4*f,4)}, v18, s[{SWS}:{SWS+3}], s53 offen offset:{1024*(f&3)}{SC}")

    if Opt.wrot:
        if Opt.wrot == 1:
            A("s_and_b32 s55, s99, 3")
        elif Opt.wrot == 2:
            A("s_and_b32 s55, s98, 3")
        else:
            A("s_add_u32 s55, s99, s98")
            A("s_and_b32 s55, s55, 3")
        A("s_mov_b32 s56, 4")
        for q in range(1, 4):
            A(f"s_cmp_eq_u32 s55, {q}")
            A(f"s_cbranch_scc1 L_wq{q}")
        for q in range(4):
            A.label(f"L_wq{q}")
            wload(10 * q, 10 * q + 10)
            A("s_sub_u32 s56, s56, 1")
            A("s_cmp_eq_u32 s56, 0")
            A("s_cbranch_scc1 L_wqe" if q < 3 else "s_cbranch_scc0 L_wq0")
        A.label("L_wqe")
    else:
        wload(0, Opt.wfirst)
    A("v_lshrrev_b32 v2, 2, v1")
    A("v_and_b32 v3, 3, v1")
    A("s_mul_i32 s53, s48, 20480")
    A(f"s_add_u32 s53, s53, {L_WOB}")
    A("v_lshrrev_b32 v11, 5, v1")
    A("v_and_b32 v9, 31, v1")
    A("v_lshrrev_b32 v15, 4, v1")
    A("v_lshlrev_b32 v15, 7, v15")
    o_index(A)
    Lq1, Lq2 = A.newlabel("L_woq"), A.newlabel("L_woq")
    A("s_cmp_lt_u32 s99, 8")
    A(f"s_cbranch_scc1 {Lq2}")
    A("s_lshr_b32 s54, s62, 2")
    A("s_lshl_b32 s54, s54, 4")
    A("s_add_u32 s54, s54, s63")
    A("s_lshl_b32 s54, s54, 8")
    A("v_lshlrev_b32 v19, 7, v11")
    A(f"s_add_u32 s54, s54, {F2:#x}")
    A("s_lshl_b32 s55, s62, 4")
    A("s_add_u32 s55, s55, s63")
    A("s_mul_i32 s55, s55, 5120")
    poll(A, 16, 19, "s54", sleep=4)
    A("s_mov_b32 m0, s53")
    A("s_add_u32 s54, s55, 4096")
    for i in range(4):
        A(f"buffer_load_dwordx4 v18, s[{SWS}:{SWS+3}], s55 offen offset:{1024*i}{SC} lds")
    A("s_add_u32 m0, s53, 4096")
    A(f"buffer_load_dwordx4 v18, s[{SWS}:{SWS+3}], s54 offen{SC} lds")
    A("s_lshl_b32 s54, s48, 2")
    A(f"s_add_u32 s54, s54, {L_SYNC+16}")
    A("s_waitcnt vmcnt(0)")
    lds_arrive(A, 16, "s54")
    stamp(A, 14)
    A("s_lshl_b32 s54, s62, 2")
    A("s_add_u32 s54, s54, s48")
    A("s_mul_i32 s55, s54, 10240")
    A(f"s_add_u32 s55, s55, {WS_PART:#x}")
    A("s_lshl_b32 s54, s54, 9")
    A(f"s_add_u32 s54, s54, {F1:#x}")
    A("v_min_u32 v19, 20, v9")
    A("v_and_b32 v20, 32, v1")
    A("v_add_u32 v19, v19, v20")
    A("v_lshlrev_b32 v20, 3, v19")
    A("v_lshlrev_b32 v19, 4, v19")
    A("s_mul_i32 s57, s48, 5120")
    A("v_add_u32 v21, s57, v18")
    A("s_mov_b32 s59, 0xffff0000")
    lds_wait(A, 16, L_SYNC + 4, 4, sleep=2)
    stamp(A, 7)
    PR = [24, 34, 44, 54]
    SM, TP = 224, 244

    def pload(p):
        so = "s55" if p < 1 else f"s{40+p}"
        A(f"buffer_load_dwordx4 {vr(PR[p],4)}, v19, s[{SWS}:{SWS+3}], {so} offen{SC}")
        A(f"buffer_load_dwordx4 {vr(PR[p]+4,4)}, v19, s[{SWS}:{SWS+3}], {so} offen offset:1024{SC}")
        A(f"buffer_load_dwordx2 {vr(PR[p]+8,2)}, v20, s[{SWS}:{SWS+3}], {so} offen offset:2048{SC}")

    for p in (1, 2, 3):
        A(f"s_add_u32 s{40+p}, s55, {2560*p}")
    if Opt.prog:
        L, Ld = A.newlabel("L_pg"), A.newlabel("L_pgd")
        A("s_mov_b64 s[56:57], 0")
        A("s_movk_i32 s101, 0x4000")
        A.label(L)
        A(f"buffer_load_dwordx2 v[16:17], v15, s[{SWS}:{SWS+3}], s54 offen{SC}")
        A("s_waitcnt vmcnt(0)")
        A(f"v_cmp_eq_u64 vcc, s[{TAG}:{TAG+1}], v[16:17]")
        A("s_andn2_b64 s[50:51], vcc, s[56:57]" if False else "s_andn2_b64 s[96:97], vcc, s[56:57]")
        A("s_mov_b64 s[56:57], vcc")
        for p in range(4):
            Ls = A.newlabel("L_pgs")
            A(f"s_bitcmp1_b64 s[96:97], {16*p}")
            A(f"s_cbranch_scc0 {Ls}")
            pload(p)
            A.label(Ls)
        A("s_cmp_eq_u64 s[56:57], -1")
        A(f"s_cbranch_scc1 {Ld}")
        A(f"s_sleep {Opt.psleep}")
        A("s_sub_u32 s101, s101, 1")
        A(f"s_cbranch_scc0 {L}")
        A("s_endpgm")
        A.label(Ld)
        stamp(A, 12)
        A("s_waitcnt vmcnt(0)")
    else:
        ppoll(A, 244, 15, "s54", sleep=Opt.psleep)
        stamp(A, 12)
        for p in range(4):
            pload(p)
    A("s_setprio 3")
    for p in range(4):
        A(f"s_waitcnt vmcnt({9-3*p})")
        for i in range(10):
            d = SM + 2 * i if p == 0 else TP + 2 * (i % 5)
            A(f"v_lshlrev_b32 v{d}, 16, v{PR[p]+i}")
            A(f"v_and_b32 v{d+1}, s59, v{PR[p]+i}")
            if p:
                A(f"v_pk_add_f32 {vr(SM+2*i,2)}, {vr(SM+2*i,2)}, {vr(d,2)}")
    for q in range(5):
        A(f"ds_write_b128 v21, {vr(SM+4*q,4)} offset:{1024*q}")
    lds_arrive(A, 16, L_SYNC + 8)
    A("s_setprio 0")
    stamp(A, 13)
    A.label(Lq2)
    if not Opt.wrot:
        wload(Opt.wfirst, 40)
    srd(A, SO, S_OUT, NB_OUT)
    A("s_and_b32 s54, s99, 3")
    A("s_lshl_b32 s55, s98, 2")
    A("s_add_u32 s54, s54, s55")
    A("s_lshr_b32 s55, s54, 1")
    A("s_lshl_b32 s55, s55, 12")
    A(f"s_add_u32 s55, s55, {F3:#x}")
    A("s_lshl_b32 s57, s48, 10")
    A("s_add_u32 s55, s55, s57")
    A("v_lshrrev_b32 v15, 3, v1")
    A("v_lshlrev_b32 v15, 7, v15")
    A("s_mul_i32 s57, s54, 81920")
    A(f"s_add_u32 s57, s57, {WS_O:#x}")
    A("s_lshr_b32 s58, s48, 1")
    A("s_mul_i32 s58, s58, 40960")
    A("s_and_b32 s59, s48, 1")
    A("s_lshl_b32 s59, s59, 12")
    A("s_add_u32 s58, s58, s59")
    A("s_add_u32 s57, s57, s58")
    A(f"s_add_u32 s58, s58, {L_OT}")
    A("v_mov_b32 v5, v18")
    A(f"v_add_u32 v6, {L_OT}, v5")
    A(f"v_add_u32 v7, {L_OT+40960}, v5")
    A("v_lshlrev_b32 v10, 3, v9")
    A("v_lshl_add_u32 v10, v11, 9, v10")
    A(f"v_add_u32 v10, {L_OT+32768}, v10")
    A("s_mul_i32 s56, s48, 5120")
    A("s_waitcnt lgkmcnt(0)")
    A("v_mul_u32_u24 v12, 80, v9")
    A("v_lshl_add_u32 v12, v11, 5, v12")
    A("v_add_u32 v12, s56, v12")
    A("v_mul_u32_u24 v13, 80, v2")
    A("v_lshl_add_u32 v13, v3, 4, v13")
    A("v_add_u32 v13, s56, v13")
    A("v_mul_u32_u24 v14, 2560, v2")
    A("v_lshl_add_u32 v14, v3, 4, v14")
    A(f"s_mul_i32 s59, s54, {64*2560}")
    A("s_add_u32 s59, s59, s52")
    lds_wait(A, 16, L_SYNC + 12, 4, sleep=2)
    stamp(A, 8)
    ppoll(A, 48, 15, "s55", sleep=Opt.psleep)
    A("s_barrier")
    stamp(A, 9)
    def oissue(k):
        A(f"s_add_u32 m0, s58, {8192*k}")
        for i in range(4):
            A(f"buffer_load_dwordx4 v5, s[{SWS}:{SWS+3}], s57 offen offset:{1024*i}{SC} lds")
        if k < 4:
            A("s_add_u32 s57, s57, 8192")

    for k in range(Opt.oahead):
        oissue(k)
    if Ctx.stamps:
        A("s_waitcnt lgkmcnt(0)")
    ACC = (16, 32)
    OFB = 224
    T = Lgkm(A)

    def rdx(f):
        if f % 8 == 0:
            k = f // 8
            A(f"s_waitcnt vmcnt({4*(min(k+Opt.oahead,5)-k-1)})")
            A("s_barrier")
            if k + Opt.oahead < 5:
                oissue(k + Opt.oahead)
        for t in range(2):
            d = OFB + 4 * ((2 * f + t) % 8)
            if f < 32:
                T.issue(f"ds_read_b128 {vr(d,4)}, v{6+t} offset:{1024*f}", (f, t))
            else:
                a = f - 32
                T.issue(f"ds_read_b64 {vr(d,2)}, v10 offset:{40960*t + 1024*a}")
                T.issue(f"ds_read_b64 {vr(d+2,2)}, v10 offset:{40960*t + 1024*a + 256}", (f, t))

    for f in range(3):
        rdx(f)
    for f in range(40):
        for t in range(2):
            T.wait((f, t))
            c = vr(ACC[t], 16) if f else "0"
            A(f"v_mfma_f32_32x32x16_bf16 {vr(ACC[t],16)}, {vr(WR+4*f,4)}, {vr(OFB+4*((2*f+t)%8),4)}, {c}")
            if t == 0 and f + 3 < 40:
                rdx(f + 3)
    stamp(A, 10)
    for t in range(2):
        for i in range(8):
            A(f"v_cvt_pk_bf16_f32 v{48+8*t+i}, v{ACC[t]+2*i}, v{ACC[t]+2*i+1}")
        for i in range(2):
            A(f"ds_write_b128 v12, {vr(48+8*t+4*i,4)} offset:{2560*t+16*i}")
    A("s_waitcnt lgkmcnt(0)")
    for i in range(4):
        A(f"ds_read_b128 {vr(64+4*i,4)}, v13 offset:{1280*i}")
    for i in range(4):
        A(f"s_waitcnt lgkmcnt({3-i})")
        A(f"buffer_store_dwordx4 {vr(64+4*i,4)}, v14, s[{SO}:{SO+3}], s59 offen{Opt.osc}")
        if i < 3:
            A(f"s_add_u32 s59, s59, {16*2560}")
    stamp(A, 11)
    end_wave(A, True)


def role_compute(A):
    ACC = 16
    WF = (96, 116)
    XF = (136, 152)
    XA, WA, AD = 168, 172, 182
    t0, t1, t2, t3 = 11, 12, 13, 14
    for i in range(80):
        A(f"v_mov_b32 v{ACC+i}, 0")
    A(f"v_and_b32 v{t0}, 255, v0")
    A(f"v_lshlrev_b32 v{t0}, 4, v{t0}")
    A(f"v_add_u32 v{t0}, {L_Z}, v{t0}")
    A(f"ds_write_b128 v{t0}, {vr(ACC,4)}")
    A(f"ds_write_b128 v{t0}, {vr(ACC,4)} offset:64")
    A("s_lshr_b32 s52, s48, 1")
    A("s_and_b32 s53, s48, 1")
    S16, G4, R4, C4 = 183, 184, 185, 186
    A(f"v_and_b32 v{S16}, 15, v1")
    A(f"v_lshrrev_b32 v{G4}, 4, v1")
    A(f"v_bfe_u32 v{R4}, v1, 2, 2")
    A(f"v_and_b32 v{C4}, 3, v1")
    A(f"v_bfe_u32 v{t2}, v1, 1, 3")
    A(f"v_xor_b32 v{t2}, v{t2}, v{G4}")
    A(f"v_lshlrev_b32 v{t2}, 4, v{t2}")
    A(f"v_lshl_add_u32 v{t2}, v{S16}, 7, v{t2}")
    A("s_lshl_b32 s54, s52, 13")
    A(f"v_add_u32 v{XA}, s54, v{t2}")
    A(f"v_xor_b32 v{XA+1}, 64, v{XA}")
    A(f"v_add_u32 v{XA+2}, {2*SLOT}, v{XA}")
    A(f"v_add_u32 v{XA+3}, {2*SLOT}, v{XA+1}")
    A("s_cmp_eq_u32 s51, 0")
    A("s_cselect_b32 s55, 80, 0")
    A("s_mul_i32 s56, s53, 80")
    A("s_lshl_b32 s56, s56, s51")
    A(f"v_lshrrev_b32 v{t0}, 1, v{C4}")
    A(f"v_mul_u32_u24 v{t0}, s55, v{t0}")
    A(f"v_mad_u32_u24 v{t0}, v{C4}, 40, v{t0}")
    A(f"v_add_u32 v{t0}, s56, v{t0}")
    A(f"v_and_b32 v{t1}, 1, v{G4}")
    A("s_add_u32 s57, s51, 4")
    A(f"v_lshlrev_b32 v{t1}, s57, v{t1}")
    A(f"v_lshl_add_u32 v{t2}, v{G4}, 3, v{R4}")
    A(f"v_mul_u32_u24 v{t2}, 320, v{t2}")
    A(f"v_add_u32 v{t2}, 16384, v{t2}")
    for t in range(5):
        A(f"v_add_u32 v{t3}, {8*t}, v{t0}")
        A(f"v_xor_b32 v{t3}, v{t3}, v{t1}")
        A(f"v_add_u32 v{WA+t}, v{t2}, v{t3}")
        A(f"v_add_u32 v{WA+5+t}, {2*SLOT}, v{WA+t}")
    HD = 187
    A("s_cmp_eq_u32 s51, 0")
    A("s_cselect_b32 s55, 1, 3")
    A("s_add_u32 s57, s51, 1")
    A("s_lshl_b32 s56, s53, s57")
    A(f"v_and_b32 v{HD}, s55, v{G4}")
    A(f"v_add_u32 v{HD}, s56, v{HD}")
    A(f"v_mul_u32_u24 v{t0}, 800, v{HD}")
    A(f"v_mad_u32_u24 v{t0}, v{R4}, 40, v{t0}")
    A(f"v_add_u32 v{t0}, {L_WP}, v{t0}")
    A(f"v_mov_b32 v{t1}, {L_Z}")
    A(f"v_cmp_eq_u32 vcc, v{C4}, v{G4}")
    A(f"v_cndmask_b32 v{AD}, v{t1}, v{t0}, vcc")
    A(f"v_lshrrev_b32 v{t0}, 5, v1")
    A(f"v_lshl_add_u32 v{t0}, v{t0}, 4, v{S16}")
    A("s_lshl_b32 s57, s52, 6")
    A(f"v_add_u32 v{t0}, s57, v{t0}")
    A(f"v_mul_u32_u24 v{t1}, 208, v{t0}")
    A(f"v_mad_u32_u24 v2, v{HD}, 48, v{t1}")
    A(f"v_add_u32 v2, {L_V}, v2")
    A(f"v_mul_u32_u24 v{t3}, 80, v{HD}")
    A(f"v_mul_u32_u24 v{t2}, 336, v{t0}")
    A(f"v_add_u32 v3, v{t3}, v{t2}")
    A(f"v_lshrrev_b32 v{t1}, 5, v1")
    A(f"v_lshl_add_u32 v9, v{t1}, 3, v{R4}")
    A(f"v_bfe_u32 v{t2}, v1, 4, 1")
    A(f"v_bfe_u32 v{t3}, v1, 1, 1")
    A(f"v_lshl_add_u32 v10, v{t2}, 1, v{t3}")
    A(f"v_and_b32 v15, 1, v1")
    A(f"v_mul_u32_u24 v{t0}, 336, v9")
    A(f"v_mad_u32_u24 v{t1}, v15, 5, v10")
    A(f"v_lshl_add_u32 v{t0}, v{t1}, 3, v{t0}")
    A("s_mul_i32 s57, s48, 80")
    A(f"v_add_u32 v6, s57, v{t0}")
    A(f"v_lshl_add_u32 v{t0}, v10, 1, v15")
    A("s_mul_i32 s57, s48, 6")
    A(f"v_min_u32 v{t1}, 5, v{t0}")
    A(f"v_add_u32 v{t1}, s57, v{t1}")
    A(f"v_mul_u32_u24 v{t0}, 208, v9")
    A(f"v_lshl_add_u32 v{t0}, v{t1}, 3, v{t0}")
    A(f"v_add_u32 v7, {L_V}, v{t0}")
    WPF = 188
    for tp in range(5):
        A(f"v_mov_b32 v{WPF+12*tp+10}, 0")
        A(f"v_mov_b32 v{WPF+12*tp+11}, 0")
    A(f"s_mov_b32 s60, {LOG2E:#x}")
    A(f"s_mov_b32 s61, {LOG2E:#x}")
    A("s_waitcnt lgkmcnt(0)")
    srd(A, SWS, S_WS, WS_SIZE)
    if Opt.fwarm:
        o_index(A)
        A("s_lshl_b32 s54, s62, 2")
        A("s_add_u32 s54, s54, s48")
        A("s_lshl_b32 s54, s54, 2")
        A("s_lshr_b32 s55, s62, 2")
        A("s_lshl_b32 s55, s55, 4")
        A("s_add_u32 s55, s55, s63")
        A("s_lshl_b32 s55, s55, 1")
        A("s_add_u32 s55, s55, 508")
        A("s_and_b32 s56, s99, 2")
        A("s_lshl_b32 s57, s98, 2")
        A("s_add_u32 s56, s56, s57")
        A("s_lshl_b32 s56, s56, 4")
        A("s_lshl_b32 s57, s48, 3")
        A("s_add_u32 s56, s56, s57")
        A("s_add_u32 s56, s56, 1016")
        A(f"v_mov_b32 v{t0}, s54")
        A(f"v_mov_b32 v{t1}, s55")
        A(f"v_mov_b32 v{t2}, s56")
        A("v_cmp_gt_u32 vcc, 16, v1")
        A(f"v_cndmask_b32 v{t1}, v{t1}, v{t0}, vcc")
        A("v_cmp_gt_u32 vcc, 32, v1")
        A(f"v_cndmask_b32 v{t1}, v{t2}, v{t1}, vcc")
        A(f"v_lshrrev_b32 v{t0}, 2, v1")
        A(f"v_add_u32 v{t0}, v{t0}, v{t1}")
        A(f"v_and_b32 v{t0}, 2047, v{t0}")
        A(f"v_lshlrev_b32 v{t0}, 7, v{t0}")
        A(f"s_mov_b32 s54, {WS_FLAG:#x}")
        A(f"buffer_load_dword v4, v{t0}, s[{SWS}:{SWS+3}], s54 offen{SC}")
    A("s_setprio 2")

    T = Lgkm(A)

    def reads(s, ks):
        sl, b = s % 3, ks
        L = []
        for t in range(5):
            for half in range(2):
                L.append((f"ds_read_b64_tr_b16 {vr(WF[b]+4*t+2*half,2)}, v{WA+5*(sl>>1)+t} offset:{(sl&1)*SLOT + (32*ks+4*half)*320}",
                          ("w", s, ks, t) if half else None))
            if t == 0:
                for rho in range(4):
                    L.append((f"ds_read_b128 {vr(XF[b]+4*rho,4)}, v{XA+2*(sl>>1)+ks} offset:{(sl&1)*SLOT + 2048*rho}", ("x", s, ks, rho)))
        return L

    wp = []
    for tp in range(5):
        for dq in range(5):
            wp.append((f"ds_read_b64_tr_b16 {vr(WPF+12*tp+2*dq,2)}, v{AD} offset:{160*dq+8*tp}", None))

    PS = (96, 106, 118, 128)
    E, F, TT_ = 140, 160, 248

    def cvt(rho):
        L = [f"v_cvt_pk_bf16_f32 v{PS[rho]+i}, v{ACC+20*rho+2*i}, v{ACC+20*rho+2*i+1}" for i in range(10)]
        if rho & 1:
            L += [f"v_mov_b32 v{PS[rho]+10}, 0x3f803f80", f"v_mov_b32 v{PS[rho]+11}, 0x3f803f80"]
        return L

    A("s_barrier")
    stampw(A, 3)
    for x, tg in reads(0, 0):
        T.issue(x, tg)
    early = cvt(0) + cvt(1)
    for s in range(10):
        for ks in range(2):
            last = (s == 9 and ks == 1)
            nxt = [] if last else (reads(s, 1) if ks == 0 else reads(s + 1, 0))
            if ks == 0 and s < 5:
                nxt += wp[5 * s:5 * s + 5]
            start = 0 if ks == 0 else Opt.bpos
            for k in range(20):
                t, rho = (k % 5, k // 5) if last else (k // 4, k % 4)
                if Opt.snake and t & 1:
                    rho = 3 - rho
                T.wait(("w", s, ks, t), ("x", s, ks, rho))
                a_ = ACC + 20 * rho + 4 * t
                A(f"v_mfma_f32_16x16x32_bf16 {vr(a_,4)}, {vr(WF[ks]+4*t,4)}, {vr(XF[ks]+4*rho,4)}, {vr(a_,4)}")
                if ks == 1 and k == start:
                    T.all()
                    A("s_barrier")
                if k >= start and nxt:
                    T.issue(*nxt.pop(0))
                if last and k >= 9:
                    for _ in range(2):
                        if early:
                            A(early.pop(0))
            assert not nxt
    stamp(A, 4)
    if Opt.fwarm:
        A("s_waitcnt vmcnt(0)")
    tag_issue(A)
    def phi_mfma(src, acc):
        L = []
        for u in range(3):
            for tp in range(5):
                c = vr(acc + 4 * tp, 4) if u else "0"
                L.append(f"v_mfma_f32_16x16x32_bf16 {vr(acc+4*tp,4)}, {vr(WPF+12*tp+4*u,4)}, {vr(src+4*u,4)}, {c}")
        return L

    def weave(mf, va, per):
        mf, va = list(mf), list(va)
        while mf or va:
            if mf:
                A(mf.pop(0))
            for _ in range(per):
                if va:
                    A(va.pop(0))

    assert not early
    Lq = A.newlabel("L_q")
    A("s_cmp_eq_u32 s51, 0")
    A(f"s_cbranch_scc0 {Lq}")
    mq = A.mark()
    for i in range(10):
        A(f"v_permlane32_swap_b32 v{PS[0]+i}, v{PS[1]+i}")
    weave(phi_mfma(PS[0], ACC), cvt(2) + cvt(3) + [f"v_permlane32_swap_b32 v{PS[2]+i}, v{PS[3]+i}" for i in range(10)], 2)
    vw = [f"ds_write_b128 v2, {vr(PS[1+2*sg]+4*i,4)} offset:{32*208*sg+16*i}" for sg in range(2) for i in range(3)]

    def body(parts):
        mm, fm, ex, sm, fin, tail = parts
        L = fm[:4]
        fm2, sm2 = list(fm[4:]), list(sm)
        for k in range(0, 40, 4):
            L += ex[k:k + 2]
            if fm2:
                L.append(fm2.pop(0))
            L += ex[k + 2:k + 4]
            if fm2:
                L.append(fm2.pop(0))
            if k >= 8:
                L += [sm2.pop(0), sm2.pop(0)]
        return L + sm2 + fin

    def tail_list(tail, wr):
        L = [tail[0][0], tail[1][0]]
        for j in range(20):
            if j + 2 < 20:
                L.append(tail[j + 2][0])
            L.append(tail[j][1])
            if wr and j % 4 == 3:
                L.append(wr[j // 4])
        return L

    s0 = softmax_parts(ACC, E, F, TT_, 56)
    s1 = softmax_parts(ACC + 20, E, F, TT_, 76)
    w0 = [f"ds_write_b128 v3, {vr(56+4*i,4)} offset:{16*i}" for i in range(5)]
    w1 = [f"ds_write_b128 v3, {vr(76+4*i,4)} offset:{32*336+16*i}" for i in range(5)]
    m1 = phi_mfma(PS[2], ACC + 20)
    for x in m1[:4]:
        A(x)
    weave(m1[4:], s0[0], 2)
    stamp(A, 2)
    for x in merge(body(s0), vw, 12) + tail_list(s0[5], w0):
        A(x)
    stamp(A, 13)
    A(f"v_mov_b32 v10, {L_SYNC}")
    A("v_mov_b32 v11, 1")
    A("s_mov_b64 exec, 1")
    A("ds_add_u32 v10, v11 offset:52")
    A("s_mov_b64 exec, -1")
    sal = ["s_lshl_b32 s57, s50, 2", "s_add_u32 s57, s57, s48", "s_lshl_b32 s57, s57, 4", "s_add_u32 s57, s57, s49",
           "s_lshl_b32 s59, s57, 7", f"s_add_u32 s59, s59, {F1:#x}", "s_mul_i32 s57, s57, 2560", f"s_add_u32 s57, s57, {WS_PART:#x}"]
    b1 = body(s1)
    for x in s1[0] + merge(b1[:60], sal, 6) + ["ds_read_b32 v12, v10 offset:52"] + b1[60:]:
        A(x)
    tag_check(A, 14)
    Lok = A.newlabel("L_s0ok")
    A("v_cmp_le_u32 vcc, 4, v12")
    A(f"s_cbranch_vccnz {Lok}")
    lds_wait(A, 12, L_SYNC + 52, 4)
    A.label(Lok)
    for x in tail_list(s1[5], w1):
        A(x)
    A("s_mov_b64 exec, 1")
    A("ds_add_u32 v10, v11")
    A("s_mov_b64 exec, -1")
    stampw(A, 5)
    T = Lgkm(A)
    T.n = 0 if (Ctx.stamps and not Opt.lite and not Opt.hp) else 0
    FAa = {0: 188, 1: 196, 4: 204, 5: 212, 2: 220, 3: 228, 6: 236, 7: 128}
    FBb = {u: 96 + 4 * u for u in range(8)}

    def rdA_(u):
        for half in range(2):
            o = (16 * u + 4 * half)
            T.issue(f"ds_read_b64_tr_b16 {vr(FAa[u]+2*half,2)}, v6 offset:{o*336}")
            T.issue(f"ds_read_b64_tr_b16 {vr(FAa[u]+4+2*half,2)}, v6 offset:{o*336+32}", ("a", u))

    def rdB_(u):
        for half in range(2):
            T.issue(f"ds_read_b64_tr_b16 {vr(FBb[u]+2*half,2)}, v7 offset:{(16*u+4*half)*208}", ("b", u))

    def pm(u, first=False):
        T.wait(("a", u), ("b", u))
        for TT in range(2):
            c = "0" if first else vr(ACC + 16 * TT, 16)
            A(f"v_mfma_f32_32x32x16_bf16 {vr(ACC+16*TT,16)}, {vr(FAa[u]+4*TT,4)}, {vr(FBb[u],4)}, {c}")

    rdB_(0); rdA_(0); rdB_(1); rdA_(1)
    pm(0, True)
    rdB_(4); rdA_(4)
    pm(1)
    rdB_(5); rdA_(5)
    T.issue("ds_read_b32 v12, v10", "c")
    pm(4)
    for u in (2, 3, 6, 7):
        rdB_(u)
    A("v_lshlrev_b32 v2, 4, v1")
    A("v_lshlrev_b32 v3, 3, v1")
    T.wait("c")
    Lok = A.newlabel("L_s1ok")
    A("v_cmp_le_u32 vcc, 4, v12")
    A(f"s_cbranch_vccnz {Lok}")
    lds_wait(A, 10, None, 4)
    A.label(Lok)
    rdA_(2); rdA_(3)
    pm(5)
    rdA_(6)
    pm(2)
    rdA_(7)
    pm(3); pm(6); pm(7)
    o_index(A)
    for i in range(10):
        A(f"v_cvt_pk_bf16_f32 v{48+i}, v{ACC+2*i}, v{ACC+2*i+1}")
    A(f"buffer_store_dwordx2 v[56:57], v3, s[{SWS}:{SWS+3}], s57 offen offset:2048{SC}")
    A("s_mov_b32 exec_lo, 0x00ffffff")
    A("s_mov_b32 exec_hi, 0x00ffffff")
    A(f"buffer_store_dwordx4 v[48:51], v2, s[{SWS}:{SWS+3}], s57 offen{SC}")
    A(f"buffer_store_dwordx4 v[52:55], v2, s[{SWS}:{SWS+3}], s57 offen offset:1024{SC}")
    A("s_mov_b64 exec, -1")
    stamp(A, 6)
    role_o(A)
    end_wave(A)
    A.label(Lq)
    hq = A.mark()
    pre = [f"s_mov_b32 s57, {64*1280}",
           f"v_mul_lo_u32 v{t1}, s57, v{HD}",
           f"v_lshl_add_u32 v2, v{S16}, 4, v{t1}",
           f"v_lshl_add_u32 v3, v{S16}, 3, v{t1}",
           "s_lshl_b32 s58, s49, 1",
           "s_add_u32 s58, s58, s52",
           "s_lshl_b32 s59, s50, 1",
           "s_add_u32 s59, s59, s53",
           "s_lshl_b32 s59, s59, 5",
           "s_add_u32 s59, s59, s58",
           "s_lshl_b32 s59, s59, 7",
           f"s_add_u32 s59, s59, {F2:#x}",
           "s_lshl_b32 s57, s50, 8",
           "s_add_u32 s57, s57, s58",
           "s_mul_i32 s57, s57, 2560"]
    A("s_nop 0")
    OQ = 140

    def outq(rho):
        x, o = ACC + 20 * rho, OQ + 10 * rho
        off = 1280 * (rho >> 1)
        L = [f"v_cvt_pk_bf16_f32 v{o+i}, v{x+2*i}, v{x+2*i+1}" for i in range(10)]
        L.append(f"buffer_store_dwordx4 {vr(o,4)}, v2, s[{SWS}:{SWS+3}], s57 offen offset:{off+256*(rho&1)}{SC}")
        L.append(f"buffer_store_dwordx4 {vr(o+4,4)}, v2, s[{SWS}:{SWS+3}], s57 offen offset:{off+512+256*(rho&1)}{SC}")
        L.append(f"buffer_store_dwordx2 {vr(o+8,2)}, v3, s[{SWS}:{SWS+3}], s57 offen offset:{off+1024+128*(rho&1)}{SC}")
        return L

    weave(phi_mfma(PS[0], ACC), pre + cvt(2), 2)
    m = phi_mfma(PS[1], ACC + 20)
    weave(m[:6], cvt(3), 2)
    weave(m[6:], outq(0), 2)
    m = phi_mfma(PS[2], ACC + 40)
    weave(m[:6], [], 0)
    weave(m[6:], outq(1), 2)
    m = phi_mfma(PS[3], ACC + 60)
    weave(m[:6], [], 0)
    weave(m[6:], outq(2), 2)
    for x in outq(3):
        A(x)
    stamp(A, 6)
    tag_check(A, 10)
    set_flag(A, 10, "s59")
    stamp(A, 7)
    A.check_seam(mq, hq)
    lds_arrive(A, 14, L_SYNC)
    lds_wait(A, 14, None, 4, sleep=1)
    A("s_setprio 0")
    A("s_cmp_lt_u32 s99, 4")
    A("s_cbranch_scc1 L_wo")
    if Opt.wopf == "qs":
        srd(A, 36, S_WO, NB_WO)
        A("s_sub_u32 s57, s99, 4")
        A("s_lshl_b32 s57, s57, 2")
        A("s_add_u32 s57, s57, s48")
        A("s_lshl_b32 s57, s57, 13")
        A(f"s_add_u32 s57, s57, {240*1280}")
        A("v_lshlrev_b32 v8, 7, v1")
        for i in range(4):
            A(f"buffer_load_dword v{200+i}, v8, s[36:39], s57 offen")
            A(f"s_add_u32 s57, s57, {16*8192}")
    A("s_cmp_lt_u32 s48, 2")
    A("s_cbranch_scc1 L_post")
    end_wave(A)


def role_o(A):
    NT = 4
    RAW, X, PQ = 64, 104, 128
    A("s_mul_i32 s53, s48, 20480")
    A(f"s_add_u32 s53, s53, {L_WOB}")
    A("v_and_b32 v4, 31, v1")
    A("v_lshl_add_u32 v5, v4, 4, s53")
    A("v_lshl_add_u32 v6, v4, 3, s53")
    A("v_and_b32 v7, 32, v1")
    A("v_lshlrev_b32 v7, 26, v7")
    A("s_lshl_b32 s54, s48, 2")
    A(f"s_add_u32 s54, s54, {L_SYNC+16}")
    A("s_mov_b32 s58, 0xffff0000")
    for t in range(NT):
        A(f"v_mov_b32 v{PQ+12*t+10}, 0")
        A(f"v_mov_b32 v{PQ+12*t+11}, 0")
    A("s_mov_b32 s96, s59")
    A("s_mov_b32 s97, 0")
    if Opt.dflag:
        Lgo = A.newlabel("L_go")
        A("v_mov_b32 v14, s54")
        A("ds_read_b32 v15, v14")
        A("s_waitcnt lgkmcnt(0)")
        A("v_cmp_le_u32 vcc, 1, v15")
        A(f"s_cbranch_vccnz {Lgo}")
    set_flag(A, 10, "s96")
    lds_arrive(A, 14, L_SYNC + 4)
    A("s_mov_b32 s97, 1")
    stamp(A, 7)
    lds_wait(A, 14, "s54", 1)
    if Opt.dflag:
        A.label(Lgo)
    stampw(A, 8)
    T = Lgkm(A)
    for t in range(NT):
        T.issue(f"ds_read_b128 {vr(RAW+10*t,4)}, v5 offset:{1280*t}")
        T.issue(f"ds_read_b128 {vr(RAW+10*t+4,4)}, v5 offset:{1280*t+512}")
        T.issue(f"ds_read_b64 {vr(RAW+10*t+8,2)}, v6 offset:{1280*t+1024}", t)
    A("s_lshl_b32 s57, s63, 2")
    A("s_mul_i32 s54, s57, 40960")
    A(f"s_add_u32 s54, s54, {WS_O:#x}")
    A("s_lshl_b32 s59, s62, 8")
    A("s_add_u32 s59, s59, s54")
    A("s_add_u32 s59, s59, 32768")
    A("s_lshl_b32 s57, s62, 10")
    A("s_add_u32 s54, s54, s57")
    A("s_lshl_b32 s50, s63, 5")
    A("s_add_u32 s50, s50, s62")
    A("s_lshl_b32 s50, s50, 7")
    A(f"s_add_u32 s50, s50, {F3:#x}")
    mx, se = 124, 126
    for t in range(NT):
        T.wait(t)
        for i in range(10):
            A(f"v_lshl_add_u32 v{X+2*i}, v{RAW+10*t+i}, 16, v7")
            A(f"v_bitop3_b32 v{X+2*i+1}, v{RAW+10*t+i}, s58, v7 bitop3:0x6a")
        A(f"v_max3_f32 v{mx}, v{X}, v{X+1}, v{X+2}")
        A(f"v_max3_f32 v{mx+1}, v{X+3}, v{X+4}, v{X+5}")
        for i in range(6, 18, 4):
            A(f"v_max3_f32 v{mx}, v{mx}, v{X+i}, v{X+i+1}")
            A(f"v_max3_f32 v{mx+1}, v{mx+1}, v{X+i+2}, v{X+i+3}")
        A(f"v_max3_f32 v{mx}, v{mx}, v{X+18}, v{X+19}")
        A(f"v_max_f32 v{mx}, v{mx}, v{mx+1}")
        A(f"v_mul_f32 v{mx}, s60, v{mx}")
        for i in range(0, 20, 2):
            A(f"v_pk_fma_f32 {vr(X+i,2)}, {vr(X+i,2)}, s[60:61], {vr(mx,2)} op_sel_hi:[1,1,0] neg_lo:[0,0,1] neg_hi:[0,0,1]")
        if Opt.dflag and t == 1:
            Lsk = A.newlabel("L_sk")
            A("s_cmp_eq_u32 s97, 1")
            A(f"s_cbranch_scc1 {Lsk}")
            set_flag(A, 10, "s96")
            lds_arrive(A, 14, L_SYNC + 4)
            stampw(A, 7)
            A.label(Lsk)
        for i in range(20):
            A(f"v_exp_f32 v{X+i}, v{X+i}")
        A(f"v_pk_add_f32 {vr(se,2)}, {vr(X,2)}, {vr(X+2,2)}")
        A(f"v_pk_add_f32 {vr(mx,2)}, {vr(X+4,2)}, {vr(X+6,2)}")
        for i in range(8, 20, 4):
            A(f"v_pk_add_f32 {vr(se,2)}, {vr(se,2)}, {vr(X+i,2)}")
            A(f"v_pk_add_f32 {vr(mx,2)}, {vr(mx,2)}, {vr(X+i+2,2)}")
        A(f"v_pk_add_f32 {vr(se,2)}, {vr(se,2)}, {vr(mx,2)}")
        A(f"v_add_f32 v{se}, v{se}, v{se+1}")
        A(f"v_rcp_f32 v{se}, v{se}")
        for i in range(0, 20, 2):
            A(f"v_pk_mul_f32 {vr(X+i,2)}, {vr(X+i,2)}, {vr(se,2)} op_sel_hi:[1,0]")
        for i in range(10):
            A(f"v_cvt_pk_bf16_f32 v{PQ+12*t+i}, v{X+2*i}, v{X+2*i+1}")
    stamp(A, 9)
    KF = 16
    A(f"v_mov_b32 v{KF+10}, 0")
    A(f"v_mov_b32 v{KF+11}, 0")
    lds_wait(A, 14, L_SYNC + 8, 4)
    stampw(A, 10)
    PR = 32
    T = Lgkm(A)
    for q in range(5):
        for p in range(4):
            T.issue(f"ds_read_b128 {vr(PR+16*q+4*p,4)}, v2 offset:{5120*p+1024*q}", q)
    for q in range(5):
        T.wait(q)
        b = PR + 16 * q
        for h in (0, 2):
            A(f"v_pk_add_f32 {vr(b+h,2)}, {vr(b+h,2)}, {vr(b+4+h,2)}")
            A(f"v_pk_add_f32 {vr(b+8+h,2)}, {vr(b+8+h,2)}, {vr(b+12+h,2)}")
        for h in (0, 2):
            A(f"v_pk_add_f32 {vr(b+h,2)}, {vr(b+h,2)}, {vr(b+8+h,2)}")
        for h in (0, 2):
            A(f"v_cvt_pk_bf16_f32 v{KF+2*q+h//2}, v{b+h}, v{b+h+1}")
    D = [176, 192, 208, 224]
    OP = [32, 40, 48, 56]

    def mf(t):
        for u in range(3):
            c = vr(D[t], 16) if u else "0"
            A(f"v_mfma_f32_32x32x16_bf16 {vr(D[t],16)}, {vr(KF+4*u,4)}, {vr(PQ+12*t+4*u,4)}, {c}")

    if Opt.dA:
        A(f"s_sleep {Opt.dA}")
    mf(0)
    mf(1)
    for t in range(NT):
        d, o = D[t], OP[t]
        A(f"v_add_f32 v10, 0x358637bd, v{d+12}")
        A("v_rcp_f32 v10, v10")
        if t + 2 < NT:
            mf(t + 2)
        if t >= 2:
            for i in range(0, 12, 2):
                A(f"v_pk_mul_f32 {vr(d+i,2)}, {vr(d+i,2)}, v[10:11] op_sel_hi:[1,0]")
        else:
            for i in range(12):
                A(f"v_mul_f32 v{d+i}, v10, v{d+i}")
        for i in range(6):
            A(f"v_cvt_pk_bf16_f32 v{o+i}, v{d+2*i}, v{d+2*i+1}")
        A(f"buffer_store_dwordx4 {vr(o,4)}, v2, s[{SWS}:{SWS+3}], s54 offen{SC}")
        A("s_mov_b32 exec_hi, 0")
        A(f"buffer_store_dwordx2 {vr(o+4,2)}, v3, s[{SWS}:{SWS+3}], s59 offen{SC}")
        A("s_mov_b64 exec, -1")
        if t < NT - 1:
            A("s_add_u32 s54, s54, 40960")
            A("s_add_u32 s59, s59, 40960")
    stamp(A, 11)
    set_flag(A, 12, "s50")
    lds_arrive(A, 16, L_SYNC + 12)
    stamp(A, 12)


def b_channel(A):
    A("s_mul_i32 s49, s98, 80")
    A("s_sub_u32 s50, s99, 24")
    A("s_mul_i32 s50, s50, 6")
    A("s_add_u32 s49, s49, s50")
    A("s_add_u32 s49, s49, s48")
    A("s_cmp_ge_u32 s48, 6")
    A("s_cselect_b32 s50, 2, 0")
    A("s_sub_u32 s49, s49, s50")
    A(f"s_mul_i32 s56, s48, {CV_LDS}")


def conv_load_h(A, v):
    SH = 40
    srd(A, SH, S_SSK, NB_SSK)
    A(f"v_lshlrev_b32 v{v}, 4, v1")
    A("s_lshl_b32 s50, s49, 12")
    A("s_add_u32 m0, s56, 64")
    for i in range(4):
        A(f"buffer_load_dwordx4 v{v}, s[{SH}:{SH+3}], s50 offen offset:{1024*i}{Opt.nt_s} lds")


def f0_lines(A, c0, c1, v):
    A(f"s_lshr_b32 s52, s{c0}, 6")
    A("s_mul_i32 s52, s52, 419431")
    A("s_lshr_b32 s52, s52, 16")
    A(f"s_lshr_b32 s53, s{c1}, 6")
    A("s_mul_i32 s53, s53, 419431")
    A("s_add_u32 s53, s53, 406324")
    A("s_lshr_b32 s53, s53, 16")
    A(f"v_lshrrev_b32 v{v}, 2, v1")
    A(f"v_add_u32 v{v}, s52, v{v}")
    A(f"v_min_u32 v{v}, s53, v{v}")
    A(f"v_lshlrev_b32 v{v}, 7, v{v}")
    A(f"s_mov_b32 s52, {F0:#x}")


def role_pre(A):
    SK, SV, SS = 32, 36, 40
    t0, t1, t2 = 2, 3, 4
    A("s_lshl_b32 s49, s98, 3")
    A("s_add_u32 s49, s49, s99")
    A("s_sub_u32 s49, s49, 24")
    A("s_mul_i32 s49, s49, 5")
    A("s_add_u32 s49, s49, s48")
    A("s_and_b32 s50, s49, 31")
    A("s_lshr_b32 s51, s49, 5")
    A(f"s_mul_i32 s52, s50, {64*1280}")
    A("s_lshl_b32 s53, s51, 7")
    A("s_add_u32 s52, s52, s53")
    A(f"v_lshrrev_b32 v{t0}, 3, v1")
    A(f"v_and_b32 v{t1}, 7, v1")
    A(f"v_mul_u32_u24 v{t2}, {8*1280}, v{t0}")
    A(f"v_lshl_add_u32 v{t2}, v{t1}, 4, v{t2}")
    A(f"v_add_u32 v5, s52, v{t2}")
    A(f"v_subrev_u32 v6, {3*1280}, v5")
    A(f"v_subrev_u32 v7, {2*1280}, v5")
    A(f"v_subrev_u32 v8, {1280}, v5")
    A(f"v_lshlrev_b32 v9, 6, v{t1}")
    A("s_lshl_b32 s54, s51, 9")
    A(f"s_movk_i32 s55, {4*1280}")
    A("s_waitcnt lgkmcnt(0)")
    srd(A, SK, S_BK, NB_X)
    srd(A, SV, S_BV, NB_X)
    srd(A, SS, S_SH, NB_SH)
    WR, KR, VR = 16, 32, 76
    for i in range(4):
        A(f"buffer_load_dwordx4 {vr(WR+4*i,4)}, v9, s[{SS}:{SS+3}], s54 offen offset:{16*i}")
    for i in range(3):
        A(f"buffer_load_dwordx4 {vr(KR+4*i,4)}, v{6+i}, s[{SK}:{SK+3}], 0 offen{Opt.nt_s}")

    order = []

    def ld(kind, i):
        so = "0" if i < 4 else "s55"
        if kind == "k":
            A(f"buffer_load_dwordx4 {vr(KR+12+4*i,4)}, v5, s[{SK}:{SK+3}], {so} offen offset:{1280*(i&3)}{Opt.nt_s}")
        else:
            A(f"buffer_load_dwordx4 {vr(VR+4*i,4)}, v5, s[{SV}:{SV+3}], {so} offen offset:{1280*(i&3)}{Opt.nt_s}")
        order.append((kind, i))

    for i in (5, 6, 7):
        ld("k", i)
    ld("k", 0); ld("v", 0); ld("k", 1); ld("v", 1)
    todo = [("k", 2), ("v", 2), ("k", 3), ("v", 3), ("k", 4), ("v", 4), ("v", 5), ("v", 6), ("v", 7)]
    stamp(A, 2)
    srd(A, SWS, S_WS, WS_SIZE)
    A("s_mul_i32 s56, s48, 8320")
    A(f"s_add_u32 s56, s56, {B_PRE}")
    A(f"v_mul_u32_u24 v10, 1040, v{t1}")
    A(f"v_lshl_add_u32 v10, v{t0}, 4, v10")
    A("v_add_u32 v10, s56, v10")
    A("v_lshrrev_b32 v11, 4, v1")
    A("v_lshlrev_b32 v11, 8, v11")
    A("v_and_b32 v12, 3, v1")
    A("v_lshl_add_u32 v11, v12, 6, v11")
    A("v_bfe_u32 v12, v1, 2, 2")
    A("v_lshl_add_u32 v11, v12, 3, v11")
    A("v_add_u32 v11, s56, v11")
    A(f"v_lshlrev_b32 v12, 12, v{t0}")
    A(f"v_lshl_add_u32 v12, v{t1}, 4, v12")
    A("s_lshl_b32 s57, s51, 18")
    A("s_lshl_b32 s58, s50, 7")
    A("s_add_u32 s57, s57, s58")
    A(f"s_add_u32 s57, s57, {WS_KVT:#x}")
    A("s_mov_b32 s59, 0xffff0000")
    WF, KF, VF, TA, OUT = 108, 140, 172, 180, 196

    def unpack(dst, src, n):
        for i in range(n):
            A(f"v_lshlrev_b32 v{dst+2*i}, 16, v{src+i}")
            A(f"v_and_b32 v{dst+2*i+1}, s59, v{src+i}")

    A(f"s_waitcnt vmcnt({3+len(order)})")
    ld(*todo.pop(0)); ld(*todo.pop(0))
    for c in range(8):
        A(f"v_lshlrev_b32 v{WF+c}, 16, v{WR+2*c}")
        A(f"v_and_b32 v{WF+8+c}, s59, v{WR+2*c}")
        A(f"v_lshlrev_b32 v{WF+16+c}, 16, v{WR+2*c+1}")
        A(f"v_and_b32 v{WF+24+c}, s59, v{WR+2*c+1}")
    A(f"s_waitcnt vmcnt({len(order)})")
    ld(*todo.pop(0)); ld(*todo.pop(0))
    for i in range(3):
        unpack(KF + 8 * i, KR + 4 * i, 4)
    for i in range(8):
        need = max(order.index(("k", i)), order.index(("v", i)))
        A(f"s_waitcnt vmcnt({len(order)-1-need})")
        for _ in range(2):
            if todo:
                ld(*todo.pop(0))
        if i == 2:
            b_channel(A)
            if Opt.hdef:
                A("s_lshl_b32 s50, s49, 12")
            else:
                conv_load_h(A, 13)
                order.extend([None] * 4)
        unpack(KF + 8 * ((i + 3) & 3), KR + 12 + 4 * i, 4)
        unpack(VF, VR + 4 * i, 4)
        acc = TA + 8 * (i & 1)
        for j in (3, 2, 1, 0):
            kk = KF + 8 * ((i + 3 - j) & 3)
            for c in range(0, 8, 2):
                if j == 3:
                    A(f"v_pk_mul_f32 {vr(acc+c,2)}, {vr(kk+c,2)}, {vr(WF+8*j+c,2)}")
                else:
                    A(f"v_pk_fma_f32 {vr(acc+c,2)}, {vr(kk+c,2)}, {vr(WF+8*j+c,2)}, {vr(acc+c,2)}")
        for c in range(0, 8, 2):
            A(f"v_pk_mul_f32 {vr(acc+c,2)}, {vr(acc+c,2)}, {vr(VF+c,2)}")
        if i & 1:
            for c in range(8):
                A(f"v_cvt_pk_bf16_f32 v{OUT+4*c+i//2}, v{TA+c}, v{TA+8+c}")
    stamp(A, 3)
    for c in range(8):
        A(f"ds_write_b128 v10, {vr(OUT+4*c,4)} offset:{128*c}")
    A("s_waitcnt lgkmcnt(0)")
    T = Lgkm(A)
    for i in range(8):
        T.issue(f"ds_read_b64_tr_b16 {vr(16+4*i,2)}, v11 offset:{1040*i}")
        T.issue(f"ds_read_b64_tr_b16 {vr(18+4*i,2)}, v11 offset:{1040*i+32}", i)
    for i in range(8):
        T.wait(i)
        A(f"buffer_store_dwordx4 {vr(16+4*i,4)}, v12, s[{SWS}:{SWS+3}], s57 offen{SC}")
        if i < 7:
            A(f"s_add_u32 s57, s57, {8*4096}")
    stamp(A, 5)
    if Opt.hdef == 2:
        conv_load_h(A, 13)


def role_helper(A):
    SD = 40
    A("s_setprio 3")
    A("s_waitcnt lgkmcnt(0)")
    srd(A, SWS, S_WS, WS_SIZE)
    srd(A, SD, S_DBG, 256)
    Lz = A.newlabel("L_nz")
    A("s_cmp_eq_u32 s2, 192")
    A(f"s_cbranch_scc0 {Lz}")
    A("s_cmp_eq_u32 s48, 5")
    A(f"s_cbranch_scc0 {Lz}")
    A(f"s_mov_b32 s57, {WS_EPOCH:#x}")
    A("s_mov_b64 exec, 1")
    A(f"buffer_load_dword v4, off, s[{SWS}:{SWS+3}], s57{SC}")
    A("s_waitcnt vmcnt(0)")
    A("v_add_u32 v4, 1, v4")
    A("v_not_b32 v5, v4")
    A(f"buffer_store_dwordx2 v[4:5], off, s[{SD}:{SD+3}], 0{SC}")
    A(f"buffer_store_dword v4, off, s[{SWS}:{SWS+3}], s57{SC}")
    A("s_mov_b64 exec, -1")
    stamp(A, 2)
    A.label(Lz)
    if Opt.gpf2:
        Lnp = A.newlabel("L_ng")
        A("s_lshl_b32 s50, s48, 3")
        A("s_add_u32 s50, s50, s99")
        A("s_sub_u32 s50, s50, 64")
        A("s_cmp_ge_u32 s50, 20")
        A(f"s_cbranch_scc1 {Lnp}")
        A("s_lshr_b32 s51, s50, 1")
        A("s_and_b32 s50, s50, 1")
        A("s_cmp_ge_u32 s51, 5")
        A("s_cselect_b32 s52, 640, 0")
        A("s_lshl_b32 s51, s51, 7")
        A("s_add_u32 s51, s51, s52")
        A("s_lshr_b32 s52, s98, 2")
        A("s_mul_i32 s52, s52, 640")
        A("s_add_u32 s51, s51, s52")
        A(f"s_mul_i32 s50, s50, {5*64*3840}")
        A("s_add_u32 s51, s51, s50")
        A(f"s_add_u32 s51, s51, {1280 + Opt.gpf2*64*3840}")
        srd(A, 32, S_W, NB_W)
        A("v_mul_u32_u24 v2, 3840, v1")
        for k in range(Opt.gpf2, 5):
            A(f"buffer_load_dword v{30+k}, v2, s[32:35], s51 offen")
            A(f"s_add_u32 s51, s51, {64*3840}")
        A.label(Lnp)
    if Opt.gpf:
        A("s_sub_u32 s50, s99, 24")
        A("s_mul_i32 s50, s50, 3")
        A("s_add_u32 s50, s50, s48")
        A("s_sub_u32 s50, s50, 5")
        A("s_and_b32 s51, s98, 3")
        A("s_lshl_b32 s51, s51, 3")
        A("s_add_u32 s51, s51, s50")
        A(f"s_mul_i32 s51, s51, {64*1280}")
        A("s_sub_u32 s52, s50, 8")
        A("s_mul_i32 s53, s52, 52")
        A("s_lshr_b32 s53, s53, 8")
        A("s_mul_i32 s53, s53, 640")
        A("s_lshl_b32 s52, s52, 7")
        A("s_add_u32 s52, s52, s53")
        A("s_lshr_b32 s53, s98, 2")
        A("s_mul_i32 s53, s53, 640")
        A("s_add_u32 s52, s52, s53")
        A("s_cmp_eq_u32 s50, 23")
        A(f"s_cselect_b32 s52, {NB_W:#x}, s52")
        A("s_cmp_lt_u32 s50, 8")
        A("s_cselect_b32 s51, s51, s52")
        A(f"s_cselect_b64 s[32:33], s[{S_X}:{S_X+1}], s[{S_W}:{S_W+1}]")
        A(f"s_mov_b32 s53, {NB_W:#x}")
        A(f"s_cselect_b32 s34, {NB_X:#x}, s53")
        A("s_mov_b32 s35, 0x20000")
        A("s_movk_i32 s53, 3840")
        A("s_cselect_b32 s52, 1280, s53")
        A(f"s_mov_b32 s53, {64*3840}")
        A("s_cselect_b32 s53, 128, s53")
        A("v_mul_u32_u24 v2, s52, v1")
        A(f"s_mul_i32 s52, s53, {Opt.gpf}")
        A("s_add_u32 s51, s51, s52")
        for k, st in enumerate(range(Opt.gpf, 10)):
            if k >= Opt.gpfd:
                A(f"s_waitcnt vmcnt({Opt.gpfd-1})")
            A(f"buffer_load_dword v{30+k}, v2, s[32:35], s51 offen")
            A("s_add_u32 s51, s51, s53")
    if Opt.codepf:
        Lp = A.newlabel("L_npf")
        A("s_cmp_eq_u32 s48, 6")
        A(f"s_cbranch_scc0 {Lp}")
        A("s_getpc_b64 s[50:51]")
        A.label("L_pc")
        A(f"s_sub_u32 s50, s50, L_pc-{NAME}_kernel")
        A("s_subb_u32 s51, s51, 0")
        A("s_sub_u32 s52, s99, 24")
        A("s_lshl_b32 s52, s52, 13")
        A("v_lshl_add_u32 v2, v1, 7, s52")
        A(f"v_min_u32 v2, L_code_end-{NAME}_kernel-4, v2")
        A("global_load_dword v24, v2, s[50:51]")
        A.label(Lp)
    A("s_setprio 0")
    Lnw = A.newlabel("L_nw")
    A("s_sub_u32 s51, s99, 24")
    A("s_lshl_b32 s50, s51, 1")
    A("s_add_u32 s50, s50, s48")
    A("s_sub_u32 s50, s50, 6")
    A("s_xor_b32 s51, s51, 20")
    A("s_cmp_eq_u32 s48, 5")
    A("s_cselect_b32 s50, s51, s50")
    A("s_lshl_b32 s50, s50, 3")
    A("s_add_u32 s50, s50, s98")
    A("s_cmp_ge_u32 s50, 160")
    A(f"s_cbranch_scc1 {Lnw}")
    srd(A, 36, S_WO, NB_WO)
    A("s_lshr_b32 s51, s50, 3")
    A("s_and_b32 s52, s50, 7")
    A(f"s_mul_i32 s53, s52, {80*1280}")
    A("s_lshl_b32 s54, s51, 6")
    A("s_add_u32 s53, s53, s54")
    A("v_lshrrev_b32 v2, 2, v1")
    A("v_and_b32 v3, 3, v1")
    A("v_mul_u32_u24 v4, 1280, v2")
    A("v_lshl_add_u32 v4, v3, 4, v4")
    A(f"s_mul_i32 s56, s48, {CV_LDS}")
    for i in range(5):
        A(f"s_add_u32 m0, s56, {1024*i}")
        A("buffer_load_dwordx4 v4, s[36:39], s53 offen lds")
        A(f"s_add_u32 s53, s53, {16*1280}")
    A("v_bfe_u32 v10, v1, 2, 2")
    A("v_lshrrev_b32 v11, 5, v1")
    A("v_and_b32 v12, 1, v1")
    A("v_lshlrev_b32 v12, 5, v12")
    A("v_bfe_u32 v13, v1, 4, 1")
    A("v_lshl_add_u32 v12, v13, 4, v12")
    A("v_bfe_u32 v13, v1, 1, 1")
    A("v_lshl_add_u32 v12, v13, 3, v12")
    A("v_lshl_add_u32 v12, v10, 6, v12")
    A("v_add_u32 v12, s56, v12")
    A("v_lshl_add_u32 v13, v11, 8, v12")
    A("v_mul_u32_u24 v14, 2560, v11")
    A("v_add_u32 v14, v14, v12")
    A("v_lshlrev_b32 v2, 4, v1")
    A("s_mul_i32 s53, s51, 40960")
    A(f"s_add_u32 s53, s53, {WS_WOT:#x}")
    A("s_lshl_b32 s54, s52, 10")
    A("s_add_u32 s54, s54, s53")
    A("s_add_u32 s54, s54, 32768")
    A("s_lshl_b32 s52, s52, 12")
    A("s_add_u32 s53, s53, s52")
    A("s_lshl_b32 s55, s50, 7")
    A(f"s_add_u32 s55, s55, {FW:#x}")
    A("s_waitcnt vmcnt(0)")
    for hh in range(4):
        for half in range(2):
            A(f"ds_read_b64_tr_b16 {vr(40+4*hh+2*half,2)}, v13 offset:{(20*hh+8*half)*64}")
    for half in range(2):
        A(f"ds_read_b64_tr_b16 {vr(56+2*half,2)}, v14 offset:{(20*half+16)*64}")
    A("s_waitcnt lgkmcnt(0)")
    for hh in range(4):
        A(f"buffer_store_dwordx4 {vr(40+4*hh,4)}, v2, s[{SWS}:{SWS+3}], s53 offen offset:{1024*hh}{SC}")
    A(f"buffer_store_dwordx4 v[56:59], v2, s[{SWS}:{SWS+3}], s54 offen{SC}")
    A(f"s_mov_b64 s[{TAG}:{TAG+1}], 0")
    tag_check(A, 8)
    set_flag(A, 8, "s55")
    A.label(Lnw)
    b_channel(A)
    if Opt.hdef == 1:
        A("s_lshl_b32 s50, s49, 12")
    else:
        conv_load_h(A, 2)
    A(f"v_mov_b32 v4, {B_MB+256}")
    A("v_mov_b32 v5, 0")
    A("ds_write_b32 v4, v5")
    A("ds_write_b32 v4, v5 offset:512")


def conv_setup(A):
    A("v_lshlrev_b32 v2, 4, v1")
    A("s_lshl_b32 s52, s49, 1")
    A("s_and_b32 s52, s52, 0xfffffffc")
    A(f"s_load_dword s55, s[{S_SSD}:{S_SSD+1}], s52")
    A(f"s_load_dword s54, s[{S_SSK}:{S_SSK+1}], s50")
    A(f"s_add_u32 s51, s50, {WS_KVT:#x}")
    for i in range(4):
        A(f"v_mov_b32 v{4+i}, 0")
    A("v_add_u32 v3, s56, v2")
    A("s_mov_b64 exec, 0xf")
    A("ds_write_b128 v3, v[4:7]")
    A("s_mov_b32 exec_lo, -1")
    A(f"ds_write_b128 v3, v[4:7] offset:{64+4096}")
    A("s_mov_b64 exec, -1")
    A("v_and_b32 v11, 3, v1")
    A("v_lshrrev_b32 v10, 4, v1")
    A("v_bfe_u32 v12, v1, 2, 2")
    A("v_lshlrev_b32 v8, 4, v11")
    A("v_lshl_add_u32 v8, v10, 6, v8")
    A("v_lshlrev_b32 v9, 3, v12")
    A("v_sub_u32 v8, v8, v9")
    A("s_add_u32 s57, s56, 32")
    A("v_add_u32 v8, s57, v8")
    A("v_sub_u32 v9, v11, v10")
    A("v_lshlrev_b32 v9, 6, v9")
    A("v_lshl_add_u32 v9, v12, 4, v9")
    A(f"s_add_u32 s57, s56, {64+4096+512}")
    A("v_add_u32 v9, s57, v9")
    A("v_mov_b32 v13, 0xffff")
    for i in range(4):
        A(f"v_cmp_eq_u32 vcc, {4*i}, v1")
        A(f"v_cndmask_b32 v{MK+i}, 0, v13, vcc")
    A("v_add_u32 v13, 3, v11")
    A("v_and_b32 v13, 3, v13")
    A("v_lshl_add_u32 v13, v12, 2, v13")
    A("v_add_u32 v13, 48, v13")
    A("v_subrev_u32 v14, 16, v1")
    A("v_cmp_gt_u32 vcc, 16, v1")
    A("v_cndmask_b32 v14, v14, v13, vcc")
    A("v_lshlrev_b32 v14, 2, v14")
    A("s_mov_b32 s58, 0x1111")
    A("s_mov_b32 s59, 0")


MK = 16


def role_conv(A):
    conv_setup(A)
    A("s_sub_u32 s61, s99, 24")
    A("s_lshl_b32 s62, s98, 3")
    A("s_add_u32 s62, s62, s61")
    A("s_lshl_b32 s62, s62, 7")
    A(f"s_add_u32 s62, s62, {F0:#x}")
    A("s_mul_i32 s60, s98, 80")
    A("s_mul_i32 s61, s61, 6")
    A("s_add_u32 s60, s60, s61")
    A("s_add_u32 s61, s60, 5")
    f0_lines(A, 60, 61, 12)
    A(f"s_waitcnt vmcnt({4 if Opt.hdef == 2 else 0}) lgkmcnt(0)")
    stamp(A, 4)
    A("s_barrier")
    if Opt.hdef == 1:
        Lh = A.newlabel("L_hd")
        A("s_cmp_eq_u32 s48, 7")
        A(f"s_cbranch_scc0 {Lh}")
        set_flag(A, 22, "s62")
        A.label(Lh)
        A("s_barrier")
        conv_load_h(A, 2)
        A("s_waitcnt vmcnt(0)")
    else:
        A("s_waitcnt vmcnt(0)")
        A("s_cmp_eq_u32 s48, 7")
        A("s_cbranch_scc0 L_cb")
        set_flag(A, 22, "s62")
    A("s_branch L_cb")
    A.label("L_conv")
    RA, RB = 64, 192
    ACCS = (32, 40, 48, 56)
    CAR, PUL, TMP = 20, (21, 22), 23
    OUT = (24, 28)

    def rdA(m, e):
        reg = RA + 8 * m + 4 * e
        return [(f"ds_read_b64_tr_b16 {vr(reg,2)}, v8 offset:{256*m+8*e+32}", None),
                (f"ds_read_b64_tr_b16 {vr(reg+2,2)}, v8 offset:{256*m+8*e}", ("A", m, e))]

    def xload():
        A(f"s_add_u32 m0, s56, {64+4096+512}")
        for i in range(4):
            A(f"buffer_load_dwordx4 v2, s[{SWS}:{SWS+3}], s51 offen offset:{1024*i}{SC} lds")

    Lb, Lg = "L_cb", A.newlabel("L_cg")
    tag_check(A, 22)
    conv_load_h(A, 2)
    A(f"buffer_load_dwordx2 v[22:23], v12, s[{SWS}:{SWS+3}], s52 offen{SC}")
    A("s_barrier")
    A("s_waitcnt vmcnt(0)")
    A(f"v_cmp_eq_u64 vcc, s[{TAG}:{TAG+1}], v[22:23]")
    A("s_cmp_eq_u64 vcc, -1")
    Lx = A.newlabel("L_cx")
    A(f"s_cbranch_scc1 {Lx}")
    poll(A, 22, 12, "s52", sleep=8)
    A.label(Lx)
    stamp(A, 8)
    xload()
    A.label(Lb)
    A("s_waitcnt lgkmcnt(0)")
    A("s_lshl_b32 s54, s54, 16")
    A("s_lshl_b32 s53, s55, 16")
    A("s_and_b32 s55, s55, 0xffff0000")
    A("s_bitcmp1_b32 s49, 0")
    A("s_cselect_b32 s53, s55, s53")
    A("v_mov_b32 v15, s54")
    A("v_add_f32 v15, s53, v15")
    A("v_cvt_pk_bf16_f32 v15, v15, v15")
    T = Lgkm(A)
    for m in range(16):
        for e in range(2):
            for x, tg in rdA(m, e):
                T.issue(x, tg)
    T.wait(("A", 0, 1))
    for k in range(4):
        A(f"v_bfi_b32 v{RA+k}, v{MK+k}, v15, v{RA+k}")
        A(f"v_lshlrev_b32 v{MK+k}, 16, v{MK+k}")
        A(f"v_bfi_b32 v{RA+4+k}, v{MK+k}, v15, v{RA+4+k}")
    T.all()
    if Opt.qwait:
        Lqd = A.newlabel("L_qd")
        A("s_cmp_ge_u32 s99, 24")
        A(f"s_cbranch_scc1 {Lqd}")
        lds_wait(A, 12, L_SYNC, 4, sleep=4)
        if Opt.qdel:
            A(f"s_sleep {Opt.qdel}")
        A.label(Lqd)
    A("s_cmp_ge_u32 s99, 24")
    A(f"s_cbranch_scc0 {Lg}")
    Ln7 = A.newlabel("L_n7")
    A("s_cmp_eq_u32 s48, 7")
    A(f"s_cbranch_scc0 {Ln7}")
    poll(A, 22, 12, "s52", sleep=4)
    A.label(Ln7)
    A("s_barrier")
    stamp(A, 8)
    xload()
    if Opt.bdelay:
        A(f"s_sleep {Opt.bdelay}")
    A("s_cmp_ge_u32 s48, 4")
    A(f"s_cbranch_scc0 {Lg}")
    A("s_setprio 1")
    A.label(Lg)
    A(f"s_add_u32 s51, s50, {WS_YT:#x}")
    A(f"v_mov_b32 v{PUL[1]}, 0")

    def epilogue(i):
        V = ACCS[i % 4]
        dpp = lambda d, src, op: f"v_add_f32_dpp v{d}, v{src}, v{d} {op} row_mask:0xf bank_mask:0xf"
        L = [f"v_mov_b32 v{CAR}, 0"]
        for k in (1, 2, 3):
            L += [dpp(V, V + k, f"row_shr:{4*k}"), dpp(V + 4, V + 4 + k, f"row_shr:{4*k}"), dpp(CAR, V + 4 + k, f"row_shl:{16-4*k}")]
        L.append(("ds", f"ds_bpermute_b32 v{PUL[i&1]}, v14, v{CAR}", ("P", i)))
        x = [dpp(V + 4, V + k, f"row_shl:{16-4*k}") for k in (1, 2, 3)]
        L += [x[0], "GAP", x[1], "GAP", x[2]]
        L.append(("wait", ("P", i)))
        L.append(f"v_cndmask_b32 v{TMP}, v{PUL[i&1]}, v{PUL[1-(i&1)]}, s[58:59]")
        L.append(f"v_add_f32 v{V}, v{V}, v{TMP}")
        L.append(f"v_cvt_pk_bf16_f32 v{OUT[(i>>2)&1]+(i&3)}, v{V}, v{V+4}")
        if i & 3 == 3:
            L.append(f"buffer_store_dwordx4 {vr(OUT[(i>>2)&1],4)}, v2, s[{SWS}:{SWS+3}], s51 offen offset:{1024*(i>>2)}{SC}")
        return L

    def emit(x):
        if isinstance(x, tuple):
            if x[0] == "ds":
                T.issue(x[1], x[2])
            else:
                T.wait(x[1])
        elif x != "GAP":
            A(x)

    A("s_waitcnt vmcnt(0)")
    stampw(A, 9)

    def stream(tiles, exit_at=None, keep=None):
        T.tag.clear()
        for w in range(16):
            T.issue(f"ds_read_b128 {vr(RB+4*w,4)}, v9 offset:{256*w}", ("B", w))
        fill = []
        since = 99
        for i in tiles:
            V = ACCS[i % 4]
            while fill and fill[0][0] <= i - 4:
                emit(fill.pop(0)[1])
            if exit_at and i == exit_at[0]:
                while fill and fill[0][0] <= i - 2:
                    emit(fill.pop(0)[1])
                assert len(fill) == len(epilogue(i - 1))
                A("s_cmp_ge_u32 s48, 4")
                A(f"s_cbranch_scc1 {exit_at[1]}")
            since = 0
            for w in range(i + 1):
                for e in range(2):
                    T.wait(("B", w))
                    c = vr(V + 4 * e, 4) if w else "0"
                    A(f"v_mfma_f32_16x16x32_bf16 {vr(V+4*e,4)}, {vr(RA+8*(i-w)+4*e,4)}, {vr(RB+4*w,4)}, {c}")
                    since += 1
                    left = 2 * (i + 1) - since
                    due = len([1 for t_, _x in fill if t_ <= i - 2])
                    if i == tiles[-1] or (exit_at and i == exit_at[0] - 1):
                        due = len(fill)
                    for _ in range(2 if due > left else 1):
                        if fill and (fill[0][0] < i - 1 or since >= 6):
                            emit(fill.pop(0)[1])
            ep = epilogue(i)
            if keep and i == keep[0]:
                k = [j for j, x in enumerate(ep) if isinstance(x, str) and x.startswith("v_cvt")][0]
                ep = ep[:k] + [f"v_mov_b32 v{keep[1]}, v{V}", f"v_mov_b32 v{keep[1]+1}, v{V+4}"] + ep[k + 1:]
            fill += [(i, x) for x in ep]
        stampw(A, 10)
        T.done = T.n if Ctx.stamps else T.done
        return [x for _, x in fill]

    A("s_cmp_ge_u32 s48, 6")
    A("s_cbranch_scc1 L_second")
    for x in stream(range(16), (12, "L_first")):
        emit(x)
    A("s_branch L_cdone")
    A.label("L_first")
    A("s_waitcnt lgkmcnt(0)")
    A("s_nop 6")
    T.done = T.n
    stampw(A, 10)
    for x in epilogue(11):
        emit(x)
    A("s_and_b32 s52, s48, 1")
    A("s_lshl_b32 s52, s52, 9")
    A(f"s_add_u32 s52, s52, {B_MB}")
    A("v_lshl_add_u32 v10, v1, 2, s52")
    A(f"ds_write_b32 v10, v{PUL[1]}")
    A("s_add_u32 s52, s52, 256")
    lds_arrive(A, 10, "s52")
    A("s_branch L_cdone")
    A.label("L_second")
    T.done = T.n
    last = stream(range(12, 16), keep=(12, 4))
    for x in last[:-1]:
        emit(x)
    A("s_and_b32 s52, s48, 1")
    A("s_lshl_b32 s52, s52, 9")
    A(f"s_add_u32 s52, s52, {B_MB}")
    A("v_lshl_add_u32 v12, v1, 2, s52")
    A("s_add_u32 s52, s52, 256")
    lds_wait(A, 10, "s52", 1, sleep=2)
    A(f"ds_read_b32 v{TMP}, v12")
    A("s_waitcnt lgkmcnt(0)")
    A(f"v_cndmask_b32 v{TMP}, 0, v{TMP}, s[58:59]")
    A(f"v_add_f32 v4, v4, v{TMP}")
    A(f"v_cvt_pk_bf16_f32 v{OUT[1]}, v4, v5")
    A(last[-1])
    A.label("L_cdone")
    A("s_waitcnt vmcnt(0)")
    stamp(A, 11)
    A("s_cmp_ge_u32 s99, 24")
    A("s_cbranch_scc1 L_bdone")
    A(f"v_mov_b32 v10, {L_SYNC+12}")
    A("v_mov_b32 v11, 1")
    A("s_mov_b64 exec, 1")
    A("ds_add_rtn_u32 v12, v10, v11")
    A("s_mov_b64 exec, -1")
    A("s_lshl_b32 s52, s98, 4")
    A("s_add_u32 s52, s52, s99")
    A("s_lshl_b32 s52, s52, 7")
    A(f"s_add_u32 s52, s52, {F4+8*128:#x}")
    A("s_waitcnt lgkmcnt(0)")
    A("v_readfirstlane_b32 s53, v12")
    A("s_cmp_eq_u32 s53, 3")
    A("s_cbranch_scc0 L_bend")
    set_flag(A, 10, "s52")
    A("s_branch L_bend")
    A.label("L_bdone")


def role_post(A):
    SQ, SO = 32, 36
    A.label("L_post")
    A("s_setprio 0")
    A("s_and_b32 s48, s48, 3")
    A("s_sub_u32 s50, s99, 24")
    A("s_lshl_b32 s50, s50, 2")
    A("s_lshl_b32 s51, s99, 1")
    A("s_add_u32 s51, s51, 24")
    A("s_cmp_ge_u32 s99, 24")
    A("s_cselect_b32 s50, s50, s51")
    A("s_mul_i32 s49, s98, 40")
    A("s_add_u32 s49, s49, s50")
    A("s_add_u32 s49, s49, s48")
    A("s_and_b32 s50, s49, 31")
    A("s_lshr_b32 s51, s49, 5")
    A("v_lshrrev_b32 v2, 3, v1")
    A("v_and_b32 v3, 7, v1")
    A("v_lshlrev_b32 v4, 12, v2")
    A("v_lshl_add_u32 v4, v3, 4, v4")
    A("s_lshl_b32 s52, s51, 18")
    A("s_lshl_b32 s53, s50, 7")
    A("s_add_u32 s52, s52, s53")
    A(f"s_add_u32 s52, s52, {WS_YT:#x}")
    A("s_mul_i32 s56, s48, 8320")
    A(f"s_add_u32 s56, s56, {B_PRE}")
    A("s_lshr_b32 s54, s50, 3")
    A("s_lshl_b32 s54, s54, 9")
    A("s_bfe_u32 s55, s50, 0x20001")
    A("s_lshl_b32 s55, s55, 3")
    A("s_add_u32 s54, s54, s55")
    A("s_and_b32 s55, s50, 1")
    A("s_lshl_b32 s55, s55, 1")
    A("s_add_u32 s54, s54, s55")
    A("v_and_b32 v5, 3, v2")
    A("v_lshrrev_b32 v6, 2, v2")
    A("v_lshl_add_u32 v5, v5, 5, v6")
    A("v_mul_u32_u24 v6, 1280, v5")
    A("v_lshlrev_b32 v7, 1, v6")
    A("v_lshl_add_u32 v6, v3, 4, v6")
    A("v_lshl_add_u32 v7, v3, 4, v7")
    A("s_mul_i32 s54, s54, 1280")
    A("s_lshl_b32 s53, s51, 7")
    A("s_lshl_b32 s55, s54, 1")
    A("s_add_u32 s54, s54, s53")
    A("s_add_u32 s55, s55, s53")
    A("s_add_u32 s55, s55, 1280")
    srd(A, SQ, S_BQ, NB_X)
    srd(A, SO, S_OUT, NB_OUT)
    QR, YR = 16, 48
    rows = [0, 4, 128, 132, 256, 260, 384, 388]
    for i in range(8):
        A(f"s_add_u32 s57, s54, {rows[i]*1280}")
        A(f"buffer_load_dwordx4 {vr(QR+4*i,4)}, v6, s[{SQ}:{SQ+3}], s57 offen{Opt.nt_s}")
    A("s_mov_b32 s59, 0xffff0000")
    QF = 128
    A("s_waitcnt vmcnt(0)")
    for i in range(32):
        A(f"v_lshlrev_b32 v{QF+2*i}, 16, v{QR+i}")
        A(f"v_and_b32 v{QF+2*i+1}, s59, v{QR+i}")
    A("s_lshl_b32 s57, s98, 4")
    A("s_sub_u32 s58, s57, 16")
    A("v_min_u32 v12, 47, v1")
    A("v_add_u32 v12, s58, v12")
    A("v_max_i32 v12, 0, v12")
    A("v_min_u32 v12, 127, v12")
    A("v_lshlrev_b32 v12, 7, v12")
    A("s_add_u32 s57, s57, s99")
    A("s_lshl_b32 s57, s57, 7")
    A(f"s_add_u32 s57, s57, {F4-24*128:#x}")
    A(f"s_mov_b32 s58, {F4:#x}")
    Lx, Lq, Ld = A.newlabel("L_p7"), A.newlabel("L_pq"), A.newlabel("L_pd")
    A("s_cmp_ge_u32 s99, 24")
    A(f"s_cbranch_scc0 {Lq}")
    A("s_barrier")
    A("s_cmp_eq_u32 s48, 3")
    A(f"s_cbranch_scc0 {Lx}")
    set_flag(A, 8, "s57")
    poll(A, 14, 12, "s58", sleep=4)
    A.label(Lx)
    A("s_barrier")
    A(f"s_branch {Ld}")
    A.label(Lq)
    A("s_barrier")
    poll(A, 14, 12, "s58", sleep=4)
    A.label(Ld)
    if Opt.dB:
        A(f"s_sleep {Opt.dB}")
    stamp(A, 12)
    for i in range(8):
        A(f"v_xor_b32 v8, {16*i}, v4")
        A(f"s_add_u32 m0, s56, {1024*i}")
        A(f"buffer_load_dwordx4 v8, s[{SWS}:{SWS+3}], s52 offen{SC} lds")
        if i < 7:
            A(f"s_add_u32 s52, s52, {8*4096}")
    A("v_xor_b32 v8, v2, v3")
    A("v_lshlrev_b32 v8, 4, v8")
    A("v_lshl_add_u32 v8, v3, 10, v8")
    A("v_add_u32 v8, s56, v8")
    A("s_waitcnt vmcnt(0)")
    for c in range(8):
        A(f"ds_read_b128 {vr(YR+4*c,4)}, v8 offset:{128*c}")
    A("s_waitcnt lgkmcnt(0)")
    stamp(A, 13)
    YF, OUT = 80, 96
    for i in range(8):
        for c in range(8):
            if i & 1:
                A(f"v_and_b32 v{YF+c}, s59, v{YR+4*c+i//2}")
            else:
                A(f"v_lshlrev_b32 v{YF+c}, 16, v{YR+4*c+i//2}")
        for c in range(0, 8, 2):
            A(f"v_pk_mul_f32 {vr(YF+c,2)}, {vr(YF+c,2)}, {vr(QF+8*i+c,2)}")
        for k in range(4):
            A(f"v_cvt_pk_bf16_f32 v{OUT+4*i+k}, v{YF+2*k}, v{YF+2*k+1}")
        A(f"s_add_u32 s57, s55, {rows[i]*2560}")
        A(f"buffer_store_dwordx4 {vr(OUT+4*i,4)}, v7, s[{SO}:{SO+3}], s57 offen{Opt.oscb}")
    stamp(A, 14)


def build():
    A = Asm()
    k = NAME + "_kernel"
    A.raw(f".globl {k}")
    A.raw(".p2align 8")
    A.raw(f".type {k},@function")
    A.label(k)
    if Opt.hold:
        A("s_memrealtime s[64:65]")
    load_kernargs(A)
    if Opt.lite:
        A("s_memrealtime s[64:65]")
    elif not Opt.hp:
        if Opt.rt:
            for k_ in range(2, 15):
                A(f"s_mov_b32 s{64+2*k_}, 0")
            stamp(A, 0, True)
        else:
            stamp_init(A)
        if Opt.rt:
            stamp(A, 1)
    A("v_lshrrev_b32 v2, 6, v0")
    A("v_and_b32 v1, 63, v0")
    A("v_readfirstlane_b32 s100, v2")
    A("s_and_b32 s98, s2, 7")
    A("s_lshr_b32 s99, s2, 3")
    A("s_cmp_ge_u32 s2, 192")
    A("s_cbranch_scc1 L_b")
    A("s_and_b32 s49, s2, 3")
    A("s_lshl_b32 s49, s49, 2")
    A("s_and_b32 s50, s99, 3")
    A("s_add_u32 s49, s49, s50")
    A("s_bfe_u32 s52, s2, 0x10002")
    A("s_lshr_b32 s53, s2, 5")
    A("s_lshl_b32 s54, s52, 1")
    A("s_add_u32 s54, s54, s53")
    A("s_lshl_b32 s55, s52, 2")
    A("s_add_u32 s55, s55, s53")
    A("s_sub_u32 s55, s55, 2")
    A("s_cmp_lt_u32 s2, 64")
    A("s_cselect_b32 s50, s54, s55")
    A("s_cselect_b32 s51, 1, 0")
    A("s_and_b32 s48, s100, 3")
    A("s_cmp_ge_u32 s100, 4")
    A("s_cbranch_scc1 L_c")
    role_loader(A)
    A.label("L_c")
    role_compute(A)
    A.label("L_b")
    A("s_cmp_ge_u32 s2, 256")
    A("s_cbranch_scc1 L_exit")
    A("s_mov_b32 s48, s100")
    A("s_cmp_ge_u32 s48, 5")
    A("s_cbranch_scc1 L_help")
    role_pre(A)
    A("s_branch L_bconv")
    A.label("L_help")
    role_helper(A)
    A.label("L_bconv")
    role_conv(A)
    A("s_cmp_lt_u32 s48, 4")
    A("s_cbranch_scc1 L_bend")
    role_post(A)
    A.label("L_bend")
    end_wave(A, "b")
    A.label("L_exit")
    A("s_endpgm")
    A.label("L_code_end")
    head = ["; generated by gen/f11.py",
            "; @launch grid=(256,1,1) block=(512,1,1) lds=163840"]
    txt = "\n".join(head) + '\n.amdgcn_target "amdgcn-amd-amdhsa--gfx950"\n.text\n' + A.text()
    txt += f'''.section .rodata,"a"
.p2align 6
.amdhsa_kernel {k}
  .amdhsa_next_free_vgpr 256
  .amdhsa_next_free_sgpr 102
  .amdhsa_accum_offset 256
  .amdhsa_group_segment_fixed_size 0
  .amdhsa_kernarg_size 104
  .amdhsa_user_sgpr_count 2
  .amdhsa_user_sgpr_kernarg_segment_ptr 1
  .amdhsa_system_sgpr_workgroup_id_x 1
.end_amdhsa_kernel
'''
    return txt


if __name__ == "__main__":
    args = sys.argv[2:]
    Ctx.stamps = "stamps" in args
    Opt.rot = "norot" not in args
    Opt.codepf = "nocodepf" not in args
    for a in args:
        if a.startswith("probe="):
            Opt.probe = tuple(int(x) for x in a[6:].split(","))
        if a.startswith("holdwg="):
            Opt.holdwg = int(a[7:])
        if a.startswith("osc="):
            Opt.osc = a[4:].replace("_", " ")
        if a.startswith("oscb="):
            Opt.oscb = a[5:].replace("_", " ")
        if a.startswith("gpf="):
            Opt.gpf = int(a[4:])
        if a.startswith("gpfd="):
            Opt.gpfd = int(a[5:])
        if a.startswith("rotA="):
            Opt.rotA = int(a[5:], 16)
        if a.startswith("rotB="):
            Opt.rotB = int(a[5:], 16)
        if a == "fake16":
            Opt.fake16 = True
        if a.startswith("qdelay="):
            Opt.qdelay = int(a[7:])
        if a.startswith("bpos="):
            Opt.bpos = int(a[5:])
        if a == "lidle":
            Opt.lidle = True
        if a == "noqwait":
            Opt.qwait = False
        if a == "nofwarm":
            Opt.fwarm = False
        if a == "noprog":
            Opt.prog = False
        if a == "nodflag":
            Opt.dflag = False
        if a == "lite":
            Opt.lite = True
            Ctx.stamps = True
        if a.startswith("wos="):
            Opt.wos = int(a[4:])
        if a.startswith("R="):
            Opt.R = int(a[2:])
        if a.startswith("hdef="):
            Opt.hdef = int(a[5:])
        if a.startswith("gpf2="):
            Opt.gpf2 = int(a[5:])
        if a.startswith("oahead="):
            Opt.oahead = int(a[7:])
        if a.startswith("hpsel="):
            Opt.hpsel = a[6:]
        if a.startswith("bdelay="):
            Opt.bdelay = int(a[7:])
        if a.startswith("qdel="):
            Opt.qdel = int(a[5:])
        if a == "snake":
            Opt.snake = True
        if a.startswith("wrot="):
            Opt.wrot = int(a[5:])
        if a.startswith("wfirst="):
            Opt.wfirst = int(a[7:])
        if a.startswith("only="):
            Opt.only = [0, 1, 15] + [int(x) for x in a[5:].split(",")]
        if a == "rt":
            Opt.rt = True
        if a.startswith("hp="):
            Opt.hp = int(a[3:])
            Ctx.stamps = True
        if a.startswith("hold="):
            Opt.hold = int(a[5:])
        if a.startswith("dA="):
            Opt.dA = int(a[3:])
        if a.startswith("dB="):
            Opt.dB = int(a[3:])
        if a == "nowomall":
            Opt.womall = False
        if a == "noppoll":
            Opt.ppoll = False
        if a.startswith("psleep="):
            Opt.psleep = int(a[7:])
        if a.startswith("wopf="):
            Opt.wopf = a[5:]
    for a in args:
        if a.startswith("LA="):
            Opt.LA = int(a[3:])
    open(sys.argv[1], "w").write(build())
```

```python
import sys
from asm import Asm, vr, ar, sr
from roles import (WS_PHIQ, WS_PART, WS_O, WS_KVT, WS_YT, WS_STAMP, WS_SIZE, S_X, S_W, S_WPHI, S_WO, S_BQ, S_BK, S_BV,
                   S_SH, S_SSK, S_SSD, S_OUT, S_DBG, S_WS, NB_X, NB_W, NB_WPHI, NB_WO, NB_SH, NB_SSK, NB_OUT, LOG2E,
                   Ctx, load_kernargs, srd, stamp, stamp_init, softmax20)

NAME = "concat_heads__linear_kernel_hedgehog__ssm_conv_h3__prompt"
WS_PQ = WS_PHIQ
WS_FLAG = 0xF00000
F1, F2, F3, F0, F4 = (WS_FLAG + 128 * o for o in (0, 512, 1024, 1536, 1856))
FW = WS_FLAG + 128 * 2048
WS_WOT = 0x400000
WS_EPOCH = WS_FLAG + 128 * 2560 + 64
SWS = 44
SC = " sc1"
TAG = 30
SLOT = 36864
L_WP = 147456
L_Z = L_WP + 8192
L_SYNC = L_Z + 4096
L_V = 128 * 336
L_WOB = 69632
L_OT = 65536
CV_LDS = 8768
L_QCV = 3 * SLOT
B_PRE = 8 * CV_LDS
B_MB = B_PRE + 5 * 8320


class Opt:
    rot = True
    LA = 2
    nt_s = " nt"
    codepf = True
    wopf = "no"
    osc = " sc1 nt"
    oscb = " sc1 nt"
    hp = 0
    touch = 0
    tsh = 20
    only = None
    fwat = 8
    par = 0x32
    wearly = 8
    wrot = False
    wfirst = 40
    bdelay = 0
    qdel = 0
    snake = False
    hpsel = "kv"
    oahead = 5
    gpf2 = 3
    hdef = 1
    R = 10
    wos = 1
    lite = False
    dflag = False
    prog = True
    fwarm = True
    qwait = True
    lidle = False
    bpos = 4
    fake16 = False
    qdelay = 0
    rotA = 0x5050
    rotB = 0x550050
    gpf = 0
    gpfd = 99
    rt = False
    ppoll = False
    womall = True
    probe = None
    dA = 0
    hold = 0
    holdwg = -1
    dB = 0
    psleep = 2


_stamp0 = stamp


def stamp(A, k, real=False):
    if Opt.hp:
        if k == Opt.hp:
            A("s_memrealtime s[64:65]")
        return
    if Opt.lite and k not in (0, 15):
        return
    if Opt.only and k not in Opt.only:
        return
    _stamp0(A, k, real or Opt.rt)


def end_wave(A, holdable=False):
    if Opt.hp:
        if (holdable is True and Opt.hpsel in ("kv", "qw")) or (holdable == "b" and Opt.hpsel in ("b", "qs")):
            L = A.newlabel("L_hp")
            A("s_cmp_lt_u32 s99, 8")
            A("s_cbranch_scc1 L_exit" if Opt.hpsel in ("kv", "b") else "s_cbranch_scc0 L_exit")
            if holdable == "b":
                A("s_cmp_lt_u32 s100, 4")
                A("s_cbranch_scc1 L_exit")
            A.label(L)
            A("s_sleep 4")
            A("s_memrealtime s[66:67]")
            A("s_waitcnt lgkmcnt(0)")
            A("s_sub_u32 s66, s66, s64")
            A("s_cmp_lt_u32 s66, 2000")
            A(f"s_cbranch_scc1 {L}")
    elif Ctx.stamps:
        stamp(A, 15, True)
        A("s_waitcnt lgkmcnt(0)")
        A("s_mov_b64 exec, -1")
        A("v_mov_b32 v2, 0")
        for k in ((0, 15) if Opt.lite else range(16)):
            A(f"v_writelane_b32 v2, s{64+2*k}, {k}")
        A("s_lshl_b32 s62, s2, 3")
        A("s_add_u32 s62, s62, s100")
        A("s_lshl_b32 s62, s62, 6")
        A(f"s_add_u32 s62, s62, {WS_STAMP:#x}")
        A("v_lshlrev_b32 v1, 2, v1")
        A("s_mov_b64 exec, 0xffff")
        A(f"buffer_store_dword v2, v1, s[{SWS}:{SWS+3}], s62 offen")
        if Opt.probe:
            Lp = A.newlabel("L_probe")
            A(f"s_cmp_eq_u32 s2, {Opt.probe[0]}")
            A(f"s_cbranch_scc0 {Lp}")
            A(f"s_cmp_eq_u32 s100, {Opt.probe[1]}")
            A(f"s_cbranch_scc0 {Lp}")
            A("v_subrev_u32 v3, s66, v2")
            A("s_sub_u32 s62, s94, s64")
            A("v_writelane_b32 v3, s62, 15")
            A("v_cmp_ne_u32 vcc, 0, v2")
            A("v_cndmask_b32 v3, 0, v3, vcc")
            A("s_mov_b64 exec, 0xfffc")
            A(f"global_store_dword v1, v3, s[{S_DBG}:{S_DBG+1}]")
            A.label(Lp)
    A("s_endpgm")


def stampw(A, k):
    stamp(A, k)
    if Ctx.stamps:
        A("s_waitcnt lgkmcnt(0)")


def poll(A, vt, voff, soff, sleep=1):
    L, Ld = A.newlabel("L_poll"), A.newlabel("L_polld")
    A("s_movk_i32 s101, 0x4000")
    A.label(L)
    A(f"buffer_load_dwordx2 {vr(vt,2)}, v{voff}, s[{SWS}:{SWS+3}], {soff} offen{SC}")
    A("s_waitcnt vmcnt(0)")
    A(f"v_cmp_eq_u64 vcc, s[{TAG}:{TAG+1}], {vr(vt,2)}")
    A("s_cmp_eq_u64 vcc, -1")
    A(f"s_cbranch_scc1 {Ld}")
    A(f"s_sleep {sleep}")
    A("s_sub_u32 s101, s101, 1")
    A("s_cmp_eq_u32 s101, 0")
    A(f"s_cbranch_scc0 {L}")
    A("s_endpgm")
    A.label(Ld)


def ppoll(A, vt, voff, soff, sleep=1, depth=4):
    if not Opt.ppoll:
        return poll(A, vt, voff, soff, sleep=sleep)
    L, Ld = A.newlabel("L_pp"), A.newlabel("L_ppd")
    ld = lambda k: f"buffer_load_dwordx2 {vr(vt+2*k,2)}, v{voff}, s[{SWS}:{SWS+3}], {soff} offen{SC}"
    A("s_movk_i32 s101, 0x4000")
    for k in range(depth - 1):
        A(ld(k))
        A(f"s_sleep {sleep}")
    A.label(L)
    for k in range(depth):
        A(ld((k + depth - 1) % depth))
        A(f"s_waitcnt vmcnt({depth-1})")
        A(f"v_cmp_eq_u64 vcc, s[{TAG}:{TAG+1}], {vr(vt+2*k,2)}")
        A("s_cmp_eq_u64 vcc, -1")
        A(f"s_cbranch_scc1 {Ld}")
        A(f"s_sleep {sleep}")
    A("s_sub_u32 s101, s101, 1")
    A("s_cmp_eq_u32 s101, 0")
    A(f"s_cbranch_scc0 {L}")
    A("s_endpgm")
    A.label(Ld)


def set_flag(A, vt, soff):
    A(f"v_mov_b32 v{vt}, s{TAG}")
    A(f"v_mov_b32 v{vt+1}, s{TAG+1}")
    A(f"v_lshlrev_b32 v{vt+2}, 3, v1")
    A("s_waitcnt vmcnt(0)")
    A("s_mov_b64 exec, 0xffff")
    A(f"buffer_store_dwordx2 {vr(vt,2)}, v{vt+2}, s[{SWS}:{SWS+3}], {soff} offen{SC}")
    A("s_mov_b64 exec, -1")


def tag_issue(A):
    A(f"s_load_dwordx2 s[{TAG}:{TAG+1}], s[{S_DBG}:{S_DBG+1}], 0")


def tag_check(A, vt):
    L, Ld = A.newlabel("L_hs"), A.newlabel("L_hsd")
    A("s_waitcnt lgkmcnt(0)")
    A(f"s_cmp_lg_u32 s{TAG}, s{TAG+1}")
    A(f"s_cbranch_scc1 {Ld}")
    A("s_movk_i32 s101, 0x4000")
    A(f"v_mov_b32 v{vt+2}, 0")
    A.label(L)
    A(f"global_load_dwordx2 {vr(vt,2)}, v{vt+2}, s[{S_DBG}:{S_DBG+1}]{SC}")
    A("s_waitcnt vmcnt(0)")
    A(f"v_readfirstlane_b32 s{TAG}, v{vt}")
    A(f"v_readfirstlane_b32 s{TAG+1}, v{vt+1}")
    A("s_nop 3")
    A(f"s_cmp_lg_u32 s{TAG}, s{TAG+1}")
    A(f"s_cbranch_scc1 {Ld}")
    A("s_sleep 8")
    A("s_sub_u32 s101, s101, 1")
    A("s_cmp_eq_u32 s101, 0")
    A(f"s_cbranch_scc0 {L}")
    A("s_endpgm")
    A.label(Ld)


def lds_arrive(A, vt, addr):
    A(f"v_mov_b32 v{vt}, {addr}")
    A(f"v_mov_b32 v{vt+1}, 1")
    A("s_waitcnt lgkmcnt(0)")
    A("s_mov_b64 exec, 1")
    A(f"ds_add_u32 v{vt}, v{vt+1}")
    A("s_mov_b64 exec, -1")


def lds_wait(A, vt, addr, n, sleep=0):
    L, Ld = A.newlabel("L_lw"), A.newlabel("L_lwd")
    if addr is not None:
        A(f"v_mov_b32 v{vt}, {addr}")
    A("s_mov_b32 s101, 0x40000")
    A.label(L)
    A(f"ds_read_b32 v{vt+1}, v{vt}")
    A("s_waitcnt lgkmcnt(0)")
    A(f"v_cmp_le_u32 vcc, {n}, v{vt+1}")
    A(f"s_cbranch_vccnz {Ld}")
    if sleep:
        A(f"s_sleep {sleep}")
    A("s_sub_u32 s101, s101, 1")
    A("s_cmp_eq_u32 s101, 0")
    A(f"s_cbranch_scc0 {L}")
    A("s_endpgm")
    A.label(Ld)


class Lgkm:
    def __init__(self, A):
        self.A, self.n, self.done, self.tag = A, 0, 0, {}

    def issue(self, text, tag=None):
        self.A(text)
        self.n += 1
        if tag is not None:
            self.tag[tag] = self.n

    def wait(self, *tags):
        need = max(self.tag[t] for t in tags)
        if need > self.done:
            self.A(f"s_waitcnt lgkmcnt({min(15, self.n - need)})")
            self.done = max(need, self.n - 15)

    def all(self):
        if self.done < self.n:
            self.A("s_waitcnt lgkmcnt(0)")
            self.done = self.n


def softmax_parts(X, E, F, T, PH):
    mx, mn = T, T + 2
    mm = [f"v_max3_f32 v{mx}, v{X}, v{X+1}, v{X+2}", f"v_min3_f32 v{mn}, v{X}, v{X+1}, v{X+2}"]
    for i in range(3, 19, 2):
        mm += [f"v_max3_f32 v{mx}, v{mx}, v{X+i}, v{X+i+1}", f"v_min3_f32 v{mn}, v{mn}, v{X+i}, v{X+i+1}"]
    mm += [f"v_max_f32 v{mx}, v{mx}, v{X+19}", f"v_min_f32 v{mn}, v{mn}, v{X+19}",
           f"v_mul_f32 v{mx}, s60, v{mx}", f"v_mul_f32 v{mn}, s60, v{mn}"]
    fm, ex = [], []
    for i in range(0, 20, 2):
        fm.append(f"v_pk_fma_f32 {vr(E+i,2)}, {vr(X+i,2)}, s[60:61], {vr(mx,2)} op_sel_hi:[1,1,0] neg_lo:[0,0,1] neg_hi:[0,0,1]")
        fm.append(f"v_pk_fma_f32 {vr(F+i,2)}, {vr(X+i,2)}, s[60:61], {vr(mn,2)} op_sel_hi:[1,1,0] neg_lo:[1,0,0] neg_hi:[1,0,0]")
    for i in range(20):
        ex += [f"v_exp_f32 v{E+i}, v{E+i}", f"v_exp_f32 v{F+i}, v{F+i}"]
    se, sf = T + 4, T + 6
    sm = [f"v_pk_add_f32 {vr(se,2)}, {vr(E,2)}, {vr(E+2,2)}", f"v_pk_add_f32 {vr(sf,2)}, {vr(F,2)}, {vr(F+2,2)}"]
    for i in range(4, 20, 2):
        sm += [f"v_pk_add_f32 {vr(se,2)}, {vr(se,2)}, {vr(E+i,2)}", f"v_pk_add_f32 {vr(sf,2)}, {vr(sf,2)}, {vr(F+i,2)}"]
    fin = [f"v_add_f32 v{se}, v{se}, v{se+1}", f"v_add_f32 v{sf}, v{sf}, v{sf+1}",
           f"v_rcp_f32 v{se}, v{se}", f"v_rcp_f32 v{sf}, v{sf}"]
    tail = []
    for j in range(20):
        R, s_ = (E + 2 * j, se) if j < 10 else (F + 2 * (j - 10), sf)
        tail.append((f"v_pk_mul_f32 {vr(R,2)}, {vr(R,2)}, {vr(s_,2)} op_sel_hi:[1,0]", f"v_cvt_pk_bf16_f32 v{PH+j}, v{R}, v{R+1}"))
    return mm, fm, ex, sm, fin, tail


def merge(main, extra, every, start=0):
    out, extra = [], list(extra)
    for i, x in enumerate(main):
        out.append(x)
        if extra and i >= start and (i - start) % every == every - 1:
            out.append(extra.pop(0))
    return out + extra


def touch(A, v, sd, shift):
    A(f"v_lshlrev_b32 v{v}, {shift}, v1")
    A(f"buffer_load_dword v{v+1}, v{v}, s[{SWS}:{SWS+3}], 0 offen")
    srd(A, sd, S_OUT, NB_OUT)
    A(f"buffer_load_dword v{v+2}, v{v}, s[{sd}:{sd+3}], 0 offen")


def o_index(A):
    A("s_sub_u32 s63, s99, 8")
    A("s_lshr_b32 s62, s63, 2")
    A("s_lshl_b32 s3, s98, 2")
    A("s_add_u32 s62, s62, s3")
    A("s_and_b32 s63, s63, 3")
    A("s_lshl_b32 s63, s63, 2")
    A("s_add_u32 s63, s63, s48")


WR = 64


def wo_index(A):
    A("s_lshr_b32 s50, s99, 2")
    A("s_sub_u32 s50, s50, 1")
    A("s_max_i32 s50, s50, 0")
    A("s_lshl_b32 s50, s50, 2")
    A("s_add_u32 s50, s50, s48")
    A("s_lshl_b32 s52, s50, 6")
    A("s_mul_i32 s51, s50, 40960")
    A(f"s_add_u32 s51, s51, {WS_WOT:#x}")
    A("s_lshl_b32 s54, s50, 10")
    A(f"s_add_u32 s54, s54, {FW:#x}")
    A("v_lshlrev_b32 v18, 4, v1")


def wload(A, f0, f1):
    for f in range(f0, f1):
        if f % 4 == 0 or f == f0:
            A(f"s_add_u32 s53, s51, {4096*(f//4)}")
        A(f"buffer_load_dwordx4 {vr(WR+4*f,4)}, v18, s[{SWS}:{SWS+3}], s53 offen offset:{1024*(f&3)}{SC}")


def role_loader(A):
    SX, SW, SP = 32, 36, 40
    VX, VW = 24, 28
    t0, t1, t2, t3 = 11, 12, 13, 14
    A("s_setprio 1")
    A(f"v_lshrrev_b32 v{t0}, 3, v1")
    A(f"v_mul_u32_u24 v{t0}, 1280, v{t0}")
    A(f"v_lshrrev_b32 v{t1}, 4, v1")
    A(f"v_and_b32 v{t2}, 7, v1")
    A(f"v_xor_b32 v{t1}, v{t1}, v{t2}")
    A(f"v_xor_b32 v{t2}, 4, v{t1}")
    A(f"v_lshl_add_u32 v{VX}, v{t1}, 4, v{t0}")
    A(f"v_lshl_add_u32 v{VX+1}, v{t2}, 4, v{t0}")
    A(f"v_add_u32 v{VX+2}, {2*(8*1280-1024)}, v{VX}")
    A(f"v_add_u32 v{VX+3}, {3*(8*1280-1024)}, v{VX+1}")
    A(f"v_add_u32 v{VX+1}, {8*1280-1024}, v{VX+1}")
    A("s_lshl_b32 s60, s49, 2")
    A("s_add_u32 s60, s60, s48")
    A(f"s_mul_i32 s60, s60, {32*1280}")
    A("s_lshr_b32 s30, s99, 2")
    A(f"s_lshr_b32 s30, {Opt.par:#x}, s30")
    A("s_xor_b32 s30, s30, s49")
    A("s_and_b32 s30, s30, 1")
    A("s_mul_i32 s31, s30, 640")
    A("s_add_u32 s60, s60, s31")
    A("s_lshl_b32 s62, s48, 12")
    A("s_mov_b32 m0, s62")
    A(f"s_mov_b32 s{SX+2}, {NB_X:#x}")
    A(f"s_mov_b32 s{SX+3}, 0x20000")
    A("s_waitcnt lgkmcnt(0)")
    A(f"s_mov_b64 s[{SX}:{SX+1}], s[{S_X}:{S_X+1}]")

    def dma_x(s):
        if s:
            A(f"s_add_u32 m0, s62, {(s % 3) * SLOT}")
        for i in range(4):
            A(f"buffer_load_dwordx4 v{VX+i}, s[{SX}:{SX+3}], s60 offen offset:{1024*i} lds")

    def dma_w(s):
        sl = (s % 3) * SLOT
        A(f"s_add_u32 m0, s63, {sl}")
        for i in range(4):
            A(f"buffer_load_dwordx4 v{VW+i}, s[{SW}:{SW+3}], s61 offen offset:{1024*i} lds")
        A(f"s_add_u32 m0, s63, {sl+4096}")
        A(f"buffer_load_dwordx4 v{VW+4}, s[{SW}:{SW+3}], s61 offen lds")
        if s < 9:
            if s == 4:
                A("s_add_u32 s60, s60, s97")
                A("s_add_u32 s61, s61, s96")
            else:
                A("s_add_u32 s60, s60, 128")
                A(f"s_add_u32 s61, s61, {64*3840}")

    dma_x(0)
    A("s_cmp_eq_u32 s51, 0")
    A("s_cselect_b32 s56, 1120, 0")
    A("s_add_u32 s58, s51, 1")
    A(f"v_xor_b32 v15, s58, v1")
    A(f"v_cmp_gt_u32 vcc, 32, v1")
    A("s_movk_i32 s57, 3520")
    A(f"v_cndmask_b32 v16, v15, v1, vcc")
    for i in range(5):
        src = (1, 1, 16, 15, 15)[i]
        A(f"v_add_u32 v{t2}, {64*i}, v{src}")
        A(f"v_mul_u32_u24 v{t2}, 6554, v{t2}")
        A(f"v_lshlrev_b32 v{t3}, 4, v{src}")
        A(f"v_lshrrev_b32 v{t0}, 17, v{t2}")
        A(f"v_bfe_u32 v{t1}, v{t2}, 16, 1")
        A(f"v_mad_u32_u24 v{t0}, v{t0}, s57, v{t3}")
        A(f"v_mad_u32_u24 v{VW+i}, v{t1}, s56, v{t0}")
    A(f"v_lshlrev_b32 v{t3}, 4, v1")
    A(f"v_add_u32 v{VW+4}, 4096, v{VW+4}")
    A(f"s_mul_i32 s61, s48, {16*3840}")
    A("s_mul_i32 s57, s50, 160")
    A("s_add_u32 s58, s57, 1280")
    A("s_lshl_b32 s57, s57, 1")
    A("s_cmp_eq_u32 s51, 0")
    A("s_cselect_b32 s57, s58, s57")
    A("s_add_u32 s61, s61, s57")
    A(f"s_mul_i32 s96, s30, {5*64*3840}")
    A("s_add_u32 s61, s61, s96")
    A("s_mul_i32 s63, s48, 5120")
    A("s_add_u32 s63, s63, 16384")
    srd(A, SW, S_W, NB_W)
    dma_w(0)
    stamp(A, 2)
    A("s_lshl_b32 s96, s96, 1")
    A(f"s_sub_u32 s96, {64*3840}, s96")
    A("s_lshl_b32 s97, s31, 1")
    A("s_sub_u32 s97, 128, s97")
    A("s_mul_i32 s57, s50, 3200")
    A("s_lshl_b32 s57, s57, s51")
    A("s_lshl_b32 s58, s48, 11")
    A("s_add_u32 s57, s57, s58")
    srd(A, SP, S_WPHI, NB_WPHI)
    A(f"s_add_u32 m0, s58, {L_WP}")
    A(f"buffer_load_dwordx4 v{t3}, s[{SP}:{SP+3}], s57 offen lds")
    A(f"buffer_load_dwordx4 v{t3}, s[{SP}:{SP+3}], s57 offen offset:1024 lds")
    srd(A, SWS, S_WS, WS_SIZE)
    Lh = A.newlabel("L_noh")
    A("s_cmp_eq_u32 s51, 0")
    A(f"s_cbranch_scc1 {Lh}")
    A("s_mul_i32 s49, s98, 80")
    A("s_lshl_b32 s50, s99, 2")
    A("s_add_u32 s49, s49, s50")
    A("s_add_u32 s49, s49, s48")
    A("s_add_u32 s49, s49, 48")
    A(f"s_mul_i32 s56, s48, {CV_LDS}")
    A(f"s_add_u32 s56, s56, {L_QCV}")
    A("s_lshl_b32 s50, s49, 12")
    A.label(Lh)
    assert Opt.LA == 2
    issued = 0
    for s in range(10):
        while issued < min(s + Opt.LA - 1, 9):
            issued += 1
            dma_x(issued)
            dma_w(issued)
        if s == 0:
            Ls = A.newlabel("L_nosetup")
            A("s_cmp_ge_u32 s99, 8")
            A(f"s_cbranch_scc1 {Ls}")
            conv_setup(A)
            f0_lines(A, 49, 49, 12)
            A.label(Ls)
        if s == 6:
            tag_issue(A)
        if s == Opt.fwat:
            Lf = A.newlabel("L_nofw")
            A("s_cmp_lt_u32 s99, 8")
            A(f"s_cbranch_scc1 {Lf}")
            wo_index(A)
            A(f"s_add_u32 s42, s{S_WS}, s54")
            A(f"s_addc_u32 s43, s{S_WS+1}, 0")
            for k in range(8):
                A(f"s_load_dwordx2 s[{4+2*k}:{5+2*k}], s[42:43], {128*k}")
            A.label(Lf)
        if s == 9:
            A("s_cmp_lt_u32 s99, 8")
            A("s_cbranch_scc1 L_q9")
            A("s_waitcnt lgkmcnt(0)")
            A("s_mov_b32 s3, 0")
            for k in range(8):
                A(f"s_cmp_eq_u64 s[{4+2*k}:{5+2*k}], s[{TAG}:{TAG+1}]")
                A("s_addc_u32 s3, s3, 0")
            A(f"s_cmp_lg_u32 s{TAG}, s{TAG+1}")
            A("s_addc_u32 s3, s3, 0")
            A("s_cmp_eq_u32 s3, 9")
            A("s_cbranch_scc0 L_q9")
            wload(A, 0, Opt.wearly)
            A(f"s_waitcnt vmcnt({Opt.wearly})")
            A("s_barrier")
            stamp(A, 6)
            wload(A, Opt.wearly, Opt.wearly + 2)
            A("s_barrier")
            A("s_setprio 0")
            A("s_branch L_wrest")
            A.label("L_q9")
        A(f"s_waitcnt vmcnt({9*(issued-s)})")
        A("s_barrier")
        if s in (0, 3, 6, 9):
            stamp(A, 3 + s // 3)
    A("s_setprio 0")
    A("s_cmp_lt_u32 s99, 8")
    A("s_cbranch_scc1 L_conv")
    role_wo(A)


def role_wo(A):
    SO, SWO = 32, 36
    A.label("L_wo")
    wo_index(A)
    A("v_lshrrev_b32 v15, 3, v1")
    A("v_lshlrev_b32 v15, 7, v15")
    A("v_lshlrev_b32 v18, 4, v1")
    tag_check(A, 20)
    A(f"buffer_load_dwordx2 v[16:17], v15, s[{SWS}:{SWS+3}], s54 offen{SC}")
    Lj, Lk = A.newlabel("L_woj"), A.newlabel("L_wok")
    A("s_cmp_lt_u32 s99, 8")
    A(f"s_cbranch_scc1 {Lj}")
    A("s_barrier")
    A.label(Lj)
    A("s_waitcnt vmcnt(0)")
    A(f"v_cmp_eq_u64 vcc, s[{TAG}:{TAG+1}], v[16:17]")
    A("s_cmp_eq_u64 vcc, -1")
    A(f"s_cbranch_scc1 {Lk}")
    poll(A, 16, 15, "s54", sleep=8)
    A.label(Lk)

    wload(A, 0, Opt.wearly + 2)
    A.label("L_wrest")
    wload(A, Opt.wearly + 2, Opt.wfirst)
    A("v_lshrrev_b32 v2, 2, v1")
    A("v_and_b32 v3, 3, v1")
    A("s_mul_i32 s53, s48, 20480")
    A(f"s_add_u32 s53, s53, {L_WOB}")
    A("v_lshrrev_b32 v11, 5, v1")
    A("v_and_b32 v9, 31, v1")
    A("v_lshrrev_b32 v15, 4, v1")
    A("v_lshlrev_b32 v15, 7, v15")
    o_index(A)
    Lq1, Lq2 = A.newlabel("L_woq"), A.newlabel("L_woq")
    A("s_cmp_lt_u32 s99, 8")
    A(f"s_cbranch_scc1 {Lq2}")
    A("s_lshr_b32 s54, s62, 2")
    A("s_lshl_b32 s54, s54, 4")
    A("s_add_u32 s54, s54, s63")
    A("s_lshl_b32 s54, s54, 8")
    A("v_lshlrev_b32 v19, 7, v11")
    A(f"s_add_u32 s54, s54, {F2:#x}")
    A("s_lshl_b32 s55, s62, 4")
    A("s_add_u32 s55, s55, s63")
    A("s_mul_i32 s55, s55, 5120")
    poll(A, 16, 19, "s54", sleep=4)
    A("s_mov_b32 m0, s53")
    A("s_add_u32 s54, s55, 4096")
    for i in range(4):
        A(f"buffer_load_dwordx4 v18, s[{SWS}:{SWS+3}], s55 offen offset:{1024*i}{SC} lds")
    A("s_add_u32 m0, s53, 4096")
    A(f"buffer_load_dwordx4 v18, s[{SWS}:{SWS+3}], s54 offen{SC} lds")
    A("s_lshl_b32 s54, s48, 2")
    A(f"s_add_u32 s54, s54, {L_SYNC+16}")
    A("s_waitcnt vmcnt(0)")
    lds_arrive(A, 16, "s54")
    stamp(A, 14)
    A("s_lshl_b32 s54, s62, 2")
    A("s_add_u32 s54, s54, s48")
    A("s_mul_i32 s55, s54, 10240")
    A(f"s_add_u32 s55, s55, {WS_PART:#x}")
    A("s_lshl_b32 s54, s54, 9")
    A(f"s_add_u32 s54, s54, {F1:#x}")
    A("v_min_u32 v19, 20, v9")
    A("v_and_b32 v20, 32, v1")
    A("v_add_u32 v19, v19, v20")
    A("v_lshlrev_b32 v20, 3, v19")
    A("v_lshlrev_b32 v19, 4, v19")
    A("s_mul_i32 s57, s48, 5120")
    A("v_add_u32 v21, s57, v18")
    A("s_mov_b32 s59, 0xffff0000")
    lds_wait(A, 16, L_SYNC + 4, 4, sleep=2)
    stamp(A, 7)
    PR = [24, 34, 44, 54]
    SM, TP = 224, 244

    def pload(p):
        so = "s55" if p < 1 else f"s{40+p}"
        A(f"buffer_load_dwordx4 {vr(PR[p],4)}, v19, s[{SWS}:{SWS+3}], {so} offen{SC}")
        A(f"buffer_load_dwordx4 {vr(PR[p]+4,4)}, v19, s[{SWS}:{SWS+3}], {so} offen offset:1024{SC}")
        A(f"buffer_load_dwordx2 {vr(PR[p]+8,2)}, v20, s[{SWS}:{SWS+3}], {so} offen offset:2048{SC}")

    for p in (1, 2, 3):
        A(f"s_add_u32 s{40+p}, s55, {2560*p}")
    if Opt.prog:
        L, Ld = A.newlabel("L_pg"), A.newlabel("L_pgd")
        A("s_mov_b64 s[56:57], 0")
        A("s_movk_i32 s101, 0x4000")
        A.label(L)
        A(f"buffer_load_dwordx2 v[16:17], v15, s[{SWS}:{SWS+3}], s54 offen{SC}")
        A("s_waitcnt vmcnt(0)")
        A(f"v_cmp_eq_u64 vcc, s[{TAG}:{TAG+1}], v[16:17]")
        A("s_andn2_b64 s[50:51], vcc, s[56:57]" if False else "s_andn2_b64 s[96:97], vcc, s[56:57]")
        A("s_mov_b64 s[56:57], vcc")
        for p in range(4):
            Ls = A.newlabel("L_pgs")
            A(f"s_bitcmp1_b64 s[96:97], {16*p}")
            A(f"s_cbranch_scc0 {Ls}")
            pload(p)
            A.label(Ls)
        A("s_cmp_eq_u64 s[56:57], -1")
        A(f"s_cbranch_scc1 {Ld}")
        A(f"s_sleep {Opt.psleep}")
        A("s_sub_u32 s101, s101, 1")
        A(f"s_cbranch_scc0 {L}")
        A("s_endpgm")
        A.label(Ld)
        stamp(A, 12)
        A("s_waitcnt vmcnt(0)")
    else:
        ppoll(A, 244, 15, "s54", sleep=Opt.psleep)
        stamp(A, 12)
        for p in range(4):
            pload(p)
    A("s_setprio 3")
    for p in range(4):
        A(f"s_waitcnt vmcnt({9-3*p})")
        for i in range(10):
            d = SM + 2 * i if p == 0 else TP + 2 * (i % 5)
            A(f"v_lshlrev_b32 v{d}, 16, v{PR[p]+i}")
            A(f"v_and_b32 v{d+1}, s59, v{PR[p]+i}")
            if p:
                A(f"v_pk_add_f32 {vr(SM+2*i,2)}, {vr(SM+2*i,2)}, {vr(d,2)}")
    for q in range(5):
        A(f"ds_write_b128 v21, {vr(SM+4*q,4)} offset:{1024*q}")
    lds_arrive(A, 16, L_SYNC + 8)
    A("s_setprio 0")
    stamp(A, 13)
    A.label(Lq2)
    wload(A, Opt.wfirst, 40)
    srd(A, SO, S_OUT, NB_OUT)
    A("s_and_b32 s54, s99, 3")
    A("s_lshl_b32 s55, s98, 2")
    A("s_add_u32 s54, s54, s55")
    A("s_lshr_b32 s55, s54, 1")
    A("s_lshl_b32 s55, s55, 12")
    A(f"s_add_u32 s55, s55, {F3:#x}")
    A("s_lshl_b32 s57, s48, 10")
    A("s_add_u32 s55, s55, s57")
    A("v_lshrrev_b32 v15, 3, v1")
    A("v_lshlrev_b32 v15, 7, v15")
    A("s_mul_i32 s57, s54, 81920")
    A(f"s_add_u32 s57, s57, {WS_O:#x}")
    A("s_lshr_b32 s58, s48, 1")
    A("s_mul_i32 s58, s58, 40960")
    A("s_and_b32 s59, s48, 1")
    A("s_lshl_b32 s59, s59, 12")
    A("s_add_u32 s58, s58, s59")
    A("s_add_u32 s57, s57, s58")
    A(f"s_add_u32 s58, s58, {L_OT}")
    A("v_mov_b32 v5, v18")
    A(f"v_add_u32 v6, {L_OT}, v5")
    A(f"v_add_u32 v7, {L_OT+40960}, v5")
    A("v_lshlrev_b32 v10, 3, v9")
    A("v_lshl_add_u32 v10, v11, 9, v10")
    A(f"v_add_u32 v10, {L_OT+32768}, v10")
    A("s_mul_i32 s56, s48, 5120")
    A("s_waitcnt lgkmcnt(0)")
    A("v_mul_u32_u24 v12, 80, v9")
    A("v_lshl_add_u32 v12, v11, 5, v12")
    A("v_add_u32 v12, s56, v12")
    A("v_mul_u32_u24 v13, 80, v2")
    A("v_lshl_add_u32 v13, v3, 4, v13")
    A("v_add_u32 v13, s56, v13")
    A("v_mul_u32_u24 v14, 2560, v2")
    A("v_lshl_add_u32 v14, v3, 4, v14")
    A(f"s_mul_i32 s59, s54, {64*2560}")
    A("s_add_u32 s59, s59, s52")
    lds_wait(A, 16, L_SYNC + 12, 4, sleep=2)
    stamp(A, 8)
    ppoll(A, 48, 15, "s55", sleep=Opt.psleep)
    A("s_barrier")
    stamp(A, 9)
    def oissue(k):
        A(f"s_add_u32 m0, s58, {8192*k}")
        for i in range(4):
            A(f"buffer_load_dwordx4 v5, s[{SWS}:{SWS+3}], s57 offen offset:{1024*i}{SC} lds")
        if k < 4:
            A("s_add_u32 s57, s57, 8192")

    for k in range(Opt.oahead):
        oissue(k)
    if Ctx.stamps:
        A("s_waitcnt lgkmcnt(0)")
    ACC = (16, 32)
    OFB = 224
    T = Lgkm(A)

    def rdx(f):
        if f % 8 == 0:
            k = f // 8
            A(f"s_waitcnt vmcnt({4*(min(k+Opt.oahead,5)-k-1)})")
            A("s_barrier")
            if k + Opt.oahead < 5:
                oissue(k + Opt.oahead)
        for t in range(2):
            d = OFB + 4 * ((2 * f + t) % 8)
            if f < 32:
                T.issue(f"ds_read_b128 {vr(d,4)}, v{6+t} offset:{1024*f}", (f, t))
            else:
                a = f - 32
                T.issue(f"ds_read_b64 {vr(d,2)}, v10 offset:{40960*t + 1024*a}")
                T.issue(f"ds_read_b64 {vr(d+2,2)}, v10 offset:{40960*t + 1024*a + 256}", (f, t))

    for f in range(3):
        rdx(f)
    for f in range(40):
        for t in range(2):
            T.wait((f, t))
            c = vr(ACC[t], 16) if f else "0"
            A(f"v_mfma_f32_32x32x16_bf16 {vr(ACC[t],16)}, {vr(WR+4*f,4)}, {vr(OFB+4*((2*f+t)%8),4)}, {c}")
            if t == 0 and f + 3 < 40:
                rdx(f + 3)
    stamp(A, 10)
    for t in range(2):
        for i in range(8):
            A(f"v_cvt_pk_bf16_f32 v{48+8*t+i}, v{ACC[t]+2*i}, v{ACC[t]+2*i+1}")
        for i in range(2):
            A(f"ds_write_b128 v12, {vr(48+8*t+4*i,4)} offset:{2560*t+16*i}")
    A("s_waitcnt lgkmcnt(0)")
    for i in range(4):
        A(f"ds_read_b128 {vr(64+4*i,4)}, v13 offset:{1280*i}")
    for i in range(4):
        A(f"s_waitcnt lgkmcnt({3-i})")
        A(f"buffer_store_dwordx4 {vr(64+4*i,4)}, v14, s[{SO}:{SO+3}], s59 offen{Opt.osc}")
        if i < 3:
            A(f"s_add_u32 s59, s59, {16*2560}")
    stamp(A, 11)
    end_wave(A, True)


def role_compute(A):
    ACC = 16
    WF = (96, 116)
    XF = (136, 152)
    XA, WA, AD = 168, 172, 182
    t0, t1, t2, t3 = 11, 12, 13, 14
    for i in range(80):
        A(f"v_mov_b32 v{ACC+i}, 0")
    A(f"v_and_b32 v{t0}, 255, v0")
    A(f"v_lshlrev_b32 v{t0}, 4, v{t0}")
    A(f"v_add_u32 v{t0}, {L_Z}, v{t0}")
    A(f"ds_write_b128 v{t0}, {vr(ACC,4)}")
    A(f"ds_write_b128 v{t0}, {vr(ACC,4)} offset:64")
    A("s_lshr_b32 s52, s48, 1")
    A("s_and_b32 s53, s48, 1")
    S16, G4, R4, C4 = 183, 184, 185, 186
    A(f"v_and_b32 v{S16}, 15, v1")
    A(f"v_lshrrev_b32 v{G4}, 4, v1")
    A(f"v_bfe_u32 v{R4}, v1, 2, 2")
    A(f"v_and_b32 v{C4}, 3, v1")
    A(f"v_bfe_u32 v{t2}, v1, 1, 3")
    A(f"v_xor_b32 v{t2}, v{t2}, v{G4}")
    A(f"v_lshlrev_b32 v{t2}, 4, v{t2}")
    A(f"v_lshl_add_u32 v{t2}, v{S16}, 7, v{t2}")
    A("s_lshl_b32 s54, s52, 13")
    A(f"v_add_u32 v{XA}, s54, v{t2}")
    A(f"v_xor_b32 v{XA+1}, 64, v{XA}")
    A(f"v_add_u32 v{XA+2}, {2*SLOT}, v{XA}")
    A(f"v_add_u32 v{XA+3}, {2*SLOT}, v{XA+1}")
    A("s_cmp_eq_u32 s51, 0")
    A("s_cselect_b32 s55, 80, 0")
    A("s_mul_i32 s56, s53, 80")
    A("s_lshl_b32 s56, s56, s51")
    A(f"v_lshrrev_b32 v{t0}, 1, v{C4}")
    A(f"v_mul_u32_u24 v{t0}, s55, v{t0}")
    A(f"v_mad_u32_u24 v{t0}, v{C4}, 40, v{t0}")
    A(f"v_add_u32 v{t0}, s56, v{t0}")
    A(f"v_and_b32 v{t1}, 1, v{G4}")
    A("s_add_u32 s57, s51, 4")
    A(f"v_lshlrev_b32 v{t1}, s57, v{t1}")
    A(f"v_lshl_add_u32 v{t2}, v{G4}, 3, v{R4}")
    A(f"v_mul_u32_u24 v{t2}, 320, v{t2}")
    A(f"v_add_u32 v{t2}, 16384, v{t2}")
    for t in range(5):
        A(f"v_add_u32 v{t3}, {8*t}, v{t0}")
        A(f"v_xor_b32 v{t3}, v{t3}, v{t1}")
        A(f"v_add_u32 v{WA+t}, v{t2}, v{t3}")
        A(f"v_add_u32 v{WA+5+t}, {2*SLOT}, v{WA+t}")
    HD = 187
    A("s_cmp_eq_u32 s51, 0")
    A("s_cselect_b32 s55, 1, 3")
    A("s_add_u32 s57, s51, 1")
    A("s_lshl_b32 s56, s53, s57")
    A(f"v_and_b32 v{HD}, s55, v{G4}")
    A(f"v_add_u32 v{HD}, s56, v{HD}")
    A(f"v_mul_u32_u24 v{t0}, 800, v{HD}")
    A(f"v_mad_u32_u24 v{t0}, v{R4}, 40, v{t0}")
    A(f"v_add_u32 v{t0}, {L_WP}, v{t0}")
    A(f"v_mov_b32 v{t1}, {L_Z}")
    A(f"v_cmp_eq_u32 vcc, v{C4}, v{G4}")
    A(f"v_cndmask_b32 v{AD}, v{t1}, v{t0}, vcc")
    A(f"v_lshrrev_b32 v{t0}, 5, v1")
    A(f"v_lshl_add_u32 v{t0}, v{t0}, 4, v{S16}")
    A("s_lshl_b32 s57, s52, 6")
    A(f"v_add_u32 v{t0}, s57, v{t0}")
    A(f"v_mul_u32_u24 v{t1}, 208, v{t0}")
    A(f"v_mad_u32_u24 v2, v{HD}, 48, v{t1}")
    A(f"v_add_u32 v2, {L_V}, v2")
    A(f"v_mul_u32_u24 v{t3}, 80, v{HD}")
    A(f"v_mul_u32_u24 v{t2}, 336, v{t0}")
    A(f"v_add_u32 v3, v{t3}, v{t2}")
    A(f"v_lshrrev_b32 v{t1}, 5, v1")
    A(f"v_lshl_add_u32 v9, v{t1}, 3, v{R4}")
    A(f"v_bfe_u32 v{t2}, v1, 4, 1")
    A(f"v_bfe_u32 v{t3}, v1, 1, 1")
    A(f"v_lshl_add_u32 v10, v{t2}, 1, v{t3}")
    A(f"v_and_b32 v15, 1, v1")
    A(f"v_mul_u32_u24 v{t0}, 336, v9")
    A(f"v_mad_u32_u24 v{t1}, v15, 5, v10")
    A(f"v_lshl_add_u32 v{t0}, v{t1}, 3, v{t0}")
    A("s_mul_i32 s57, s48, 80")
    A(f"v_add_u32 v6, s57, v{t0}")
    A(f"v_lshl_add_u32 v{t0}, v10, 1, v15")
    A("s_mul_i32 s57, s48, 6")
    A(f"v_min_u32 v{t1}, 5, v{t0}")
    A(f"v_add_u32 v{t1}, s57, v{t1}")
    A(f"v_mul_u32_u24 v{t0}, 208, v9")
    A(f"v_lshl_add_u32 v{t0}, v{t1}, 3, v{t0}")
    A(f"v_add_u32 v7, {L_V}, v{t0}")
    WPF = 188
    for tp in range(5):
        A(f"v_mov_b32 v{WPF+12*tp+10}, 0")
        A(f"v_mov_b32 v{WPF+12*tp+11}, 0")
    A(f"s_mov_b32 s60, {LOG2E:#x}")
    A(f"s_mov_b32 s61, {LOG2E:#x}")
    A("s_waitcnt lgkmcnt(0)")
    srd(A, SWS, S_WS, WS_SIZE)
    if Opt.touch & 1:
        Lt = A.newlabel("L_nt")
        A("s_cmp_eq_u32 s48, 0")
        A(f"s_cbranch_scc0 {Lt}")
        touch(A, 248, 32, Opt.tsh)
        A.label(Lt)
    if Opt.fwarm:
        o_index(A)
        A("s_lshl_b32 s54, s62, 2")
        A("s_add_u32 s54, s54, s48")
        A("s_lshl_b32 s54, s54, 2")
        A("s_lshr_b32 s55, s62, 2")
        A("s_lshl_b32 s55, s55, 4")
        A("s_add_u32 s55, s55, s63")
        A("s_lshl_b32 s55, s55, 1")
        A("s_add_u32 s55, s55, 508")
        A("s_and_b32 s56, s99, 2")
        A("s_lshl_b32 s57, s98, 2")
        A("s_add_u32 s56, s56, s57")
        A("s_lshl_b32 s56, s56, 4")
        A("s_lshl_b32 s57, s48, 3")
        A("s_add_u32 s56, s56, s57")
        A("s_add_u32 s56, s56, 1016")
        A(f"v_mov_b32 v{t0}, s54")
        A(f"v_mov_b32 v{t1}, s55")
        A(f"v_mov_b32 v{t2}, s56")
        A("v_cmp_gt_u32 vcc, 16, v1")
        A(f"v_cndmask_b32 v{t1}, v{t1}, v{t0}, vcc")
        A("v_cmp_gt_u32 vcc, 32, v1")
        A(f"v_cndmask_b32 v{t1}, v{t2}, v{t1}, vcc")
        A(f"v_lshrrev_b32 v{t0}, 2, v1")
        A(f"v_add_u32 v{t0}, v{t0}, v{t1}")
        A(f"v_and_b32 v{t0}, 2047, v{t0}")
        A(f"v_lshlrev_b32 v{t0}, 7, v{t0}")
        A(f"s_mov_b32 s54, {WS_FLAG:#x}")
        A(f"buffer_load_dword v4, v{t0}, s[{SWS}:{SWS+3}], s54 offen{SC}")
    A("s_setprio 2")

    T = Lgkm(A)

    def reads(s, ks):
        sl, b = s % 3, ks
        L = []
        for t in range(5):
            for half in range(2):
                L.append((f"ds_read_b64_tr_b16 {vr(WF[b]+4*t+2*half,2)}, v{WA+5*(sl>>1)+t} offset:{(sl&1)*SLOT + (32*ks+4*half)*320}",
                          ("w", s, ks, t) if half else None))
            if t == 0:
                for rho in range(4):
                    L.append((f"ds_read_b128 {vr(XF[b]+4*rho,4)}, v{XA+2*(sl>>1)+ks} offset:{(sl&1)*SLOT + 2048*rho}", ("x", s, ks, rho)))
        return L

    wp = []
    for tp in range(5):
        for dq in range(5):
            wp.append((f"ds_read_b64_tr_b16 {vr(WPF+12*tp+2*dq,2)}, v{AD} offset:{160*dq+8*tp}", None))

    PS = (96, 106, 118, 128)
    E, F, TT_ = 140, 160, 248

    def cvt(rho):
        L = [f"v_cvt_pk_bf16_f32 v{PS[rho]+i}, v{ACC+20*rho+2*i}, v{ACC+20*rho+2*i+1}" for i in range(10)]
        if rho & 1:
            L += [f"v_mov_b32 v{PS[rho]+10}, 0x3f803f80", f"v_mov_b32 v{PS[rho]+11}, 0x3f803f80"]
        return L

    A("s_barrier")
    stampw(A, 3)
    for x, tg in reads(0, 0):
        T.issue(x, tg)
    early = cvt(0) + cvt(1)
    for s in range(10):
        for ks in range(2):
            last = (s == 9 and ks == 1)
            nxt = [] if last else (reads(s, 1) if ks == 0 else reads(s + 1, 0))
            if ks == 0 and s < 5:
                nxt += wp[5 * s:5 * s + 5]
            start = 0 if ks == 0 else Opt.bpos
            for k in range(20):
                t, rho = (k % 5, k // 5) if last else (k // 4, k % 4)
                if Opt.snake and t & 1:
                    rho = 3 - rho
                T.wait(("w", s, ks, t), ("x", s, ks, rho))
                a_ = ACC + 20 * rho + 4 * t
                A(f"v_mfma_f32_16x16x32_bf16 {vr(a_,4)}, {vr(WF[ks]+4*t,4)}, {vr(XF[ks]+4*rho,4)}, {vr(a_,4)}")
                if ks == 1 and k == start:
                    T.all()
                    A("s_barrier")
                if k >= start and nxt:
                    T.issue(*nxt.pop(0))
                if last and k >= 9:
                    for _ in range(2):
                        if early:
                            A(early.pop(0))
            assert not nxt
    stamp(A, 4)
    if Opt.fwarm:
        A("s_waitcnt vmcnt(0)")
    tag_issue(A)
    def phi_mfma(src, acc):
        L = []
        for u in range(3):
            for tp in range(5):
                c = vr(acc + 4 * tp, 4) if u else "0"
                L.append(f"v_mfma_f32_16x16x32_bf16 {vr(acc+4*tp,4)}, {vr(WPF+12*tp+4*u,4)}, {vr(src+4*u,4)}, {c}")
        return L

    def weave(mf, va, per):
        mf, va = list(mf), list(va)
        while mf or va:
            if mf:
                A(mf.pop(0))
            for _ in range(per):
                if va:
                    A(va.pop(0))

    assert not early
    Lq = A.newlabel("L_q")
    A("s_cmp_eq_u32 s51, 0")
    A(f"s_cbranch_scc0 {Lq}")
    mq = A.mark()
    for i in range(10):
        A(f"v_permlane32_swap_b32 v{PS[0]+i}, v{PS[1]+i}")
    weave(phi_mfma(PS[0], ACC), cvt(2) + cvt(3) + [f"v_permlane32_swap_b32 v{PS[2]+i}, v{PS[3]+i}" for i in range(10)], 2)
    vw = [f"ds_write_b128 v2, {vr(PS[1+2*sg]+4*i,4)} offset:{32*208*sg+16*i}" for sg in range(2) for i in range(3)]

    def body(parts):
        mm, fm, ex, sm, fin, tail = parts
        L = fm[:4]
        fm2, sm2 = list(fm[4:]), list(sm)
        for k in range(0, 40, 4):
            L += ex[k:k + 2]
            if fm2:
                L.append(fm2.pop(0))
            L += ex[k + 2:k + 4]
            if fm2:
                L.append(fm2.pop(0))
            if k >= 8:
                L += [sm2.pop(0), sm2.pop(0)]
        return L + sm2 + fin

    def tail_list(tail, wr):
        L = [tail[0][0], tail[1][0]]
        for j in range(20):
            if j + 2 < 20:
                L.append(tail[j + 2][0])
            L.append(tail[j][1])
            if wr and j % 4 == 3:
                L.append(wr[j // 4])
        return L

    s0 = softmax_parts(ACC, E, F, TT_, 56)
    s1 = softmax_parts(ACC + 20, E, F, TT_, 76)
    w0 = [f"ds_write_b128 v3, {vr(56+4*i,4)} offset:{16*i}" for i in range(5)]
    w1 = [f"ds_write_b128 v3, {vr(76+4*i,4)} offset:{32*336+16*i}" for i in range(5)]
    m1 = phi_mfma(PS[2], ACC + 20)
    for x in m1[:4]:
        A(x)
    weave(m1[4:], s0[0], 2)
    stamp(A, 2)
    for x in merge(body(s0), vw, 12) + tail_list(s0[5], w0):
        A(x)
    stamp(A, 13)
    A(f"v_mov_b32 v10, {L_SYNC}")
    A("v_mov_b32 v11, 1")
    A("s_mov_b64 exec, 1")
    A("ds_add_u32 v10, v11 offset:52")
    A("s_mov_b64 exec, -1")
    sal = ["s_lshl_b32 s57, s50, 2", "s_add_u32 s57, s57, s48", "s_lshl_b32 s57, s57, 4", "s_add_u32 s57, s57, s49",
           "s_lshl_b32 s59, s57, 7", f"s_add_u32 s59, s59, {F1:#x}", "s_mul_i32 s57, s57, 2560", f"s_add_u32 s57, s57, {WS_PART:#x}"]
    b1 = body(s1)
    for x in s1[0] + merge(b1[:60], sal, 6) + ["ds_read_b32 v12, v10 offset:52"] + b1[60:]:
        A(x)
    tag_check(A, 14)
    Lok = A.newlabel("L_s0ok")
    A("v_cmp_le_u32 vcc, 4, v12")
    A(f"s_cbranch_vccnz {Lok}")
    lds_wait(A, 12, L_SYNC + 52, 4)
    A.label(Lok)
    for x in tail_list(s1[5], w1):
        A(x)
    A("s_mov_b64 exec, 1")
    A("ds_add_u32 v10, v11")
    A("s_mov_b64 exec, -1")
    stampw(A, 5)
    T = Lgkm(A)
    T.n = 0 if (Ctx.stamps and not Opt.lite and not Opt.hp) else 0
    FAa = {0: 188, 1: 196, 4: 204, 5: 212, 2: 220, 3: 228, 6: 236, 7: 128}
    FBb = {u: 96 + 4 * u for u in range(8)}

    def rdA_(u):
        for half in range(2):
            o = (16 * u + 4 * half)
            T.issue(f"ds_read_b64_tr_b16 {vr(FAa[u]+2*half,2)}, v6 offset:{o*336}")
            T.issue(f"ds_read_b64_tr_b16 {vr(FAa[u]+4+2*half,2)}, v6 offset:{o*336+32}", ("a", u))

    def rdB_(u):
        for half in range(2):
            T.issue(f"ds_read_b64_tr_b16 {vr(FBb[u]+2*half,2)}, v7 offset:{(16*u+4*half)*208}", ("b", u))

    def pm(u, first=False):
        T.wait(("a", u), ("b", u))
        for TT in range(2):
            c = "0" if first else vr(ACC + 16 * TT, 16)
            A(f"v_mfma_f32_32x32x16_bf16 {vr(ACC+16*TT,16)}, {vr(FAa[u]+4*TT,4)}, {vr(FBb[u],4)}, {c}")

    rdB_(0); rdA_(0); rdB_(1); rdA_(1)
    pm(0, True)
    rdB_(4); rdA_(4)
    pm(1)
    rdB_(5); rdA_(5)
    T.issue("ds_read_b32 v12, v10", "c")
    pm(4)
    for u in (2, 3, 6, 7):
        rdB_(u)
    A("v_lshlrev_b32 v2, 4, v1")
    A("v_lshlrev_b32 v3, 3, v1")
    T.wait("c")
    Lok = A.newlabel("L_s1ok")
    A("v_cmp_le_u32 vcc, 4, v12")
    A(f"s_cbranch_vccnz {Lok}")
    lds_wait(A, 10, None, 4)
    A.label(Lok)
    rdA_(2); rdA_(3)
    pm(5)
    rdA_(6)
    pm(2)
    rdA_(7)
    pm(3); pm(6); pm(7)
    o_index(A)
    for i in range(10):
        A(f"v_cvt_pk_bf16_f32 v{48+i}, v{ACC+2*i}, v{ACC+2*i+1}")
    A(f"buffer_store_dwordx2 v[56:57], v3, s[{SWS}:{SWS+3}], s57 offen offset:2048{SC}")
    A("s_mov_b32 exec_lo, 0x00ffffff")
    A("s_mov_b32 exec_hi, 0x00ffffff")
    A(f"buffer_store_dwordx4 v[48:51], v2, s[{SWS}:{SWS+3}], s57 offen{SC}")
    A(f"buffer_store_dwordx4 v[52:55], v2, s[{SWS}:{SWS+3}], s57 offen offset:1024{SC}")
    A("s_mov_b64 exec, -1")
    stamp(A, 6)
    role_o(A)
    end_wave(A)
    A.label(Lq)
    hq = A.mark()
    pre = [f"s_mov_b32 s57, {64*1280}",
           f"v_mul_lo_u32 v{t1}, s57, v{HD}",
           f"v_lshl_add_u32 v2, v{S16}, 4, v{t1}",
           f"v_lshl_add_u32 v3, v{S16}, 3, v{t1}",
           "s_lshl_b32 s58, s49, 1",
           "s_add_u32 s58, s58, s52",
           "s_lshl_b32 s59, s50, 1",
           "s_add_u32 s59, s59, s53",
           "s_lshl_b32 s59, s59, 5",
           "s_add_u32 s59, s59, s58",
           "s_lshl_b32 s59, s59, 7",
           f"s_add_u32 s59, s59, {F2:#x}",
           "s_lshl_b32 s57, s50, 8",
           "s_add_u32 s57, s57, s58",
           "s_mul_i32 s57, s57, 2560"]
    A("s_nop 0")
    OQ = 140

    def outq(rho):
        x, o = ACC + 20 * rho, OQ + 10 * rho
        off = 1280 * (rho >> 1)
        L = [f"v_cvt_pk_bf16_f32 v{o+i}, v{x+2*i}, v{x+2*i+1}" for i in range(10)]
        L.append(f"buffer_store_dwordx4 {vr(o,4)}, v2, s[{SWS}:{SWS+3}], s57 offen offset:{off+256*(rho&1)}{SC}")
        L.append(f"buffer_store_dwordx4 {vr(o+4,4)}, v2, s[{SWS}:{SWS+3}], s57 offen offset:{off+512+256*(rho&1)}{SC}")
        L.append(f"buffer_store_dwordx2 {vr(o+8,2)}, v3, s[{SWS}:{SWS+3}], s57 offen offset:{off+1024+128*(rho&1)}{SC}")
        return L

    weave(phi_mfma(PS[0], ACC), pre + cvt(2), 2)
    m = phi_mfma(PS[1], ACC + 20)
    weave(m[:6], cvt(3), 2)
    weave(m[6:], outq(0), 2)
    m = phi_mfma(PS[2], ACC + 40)
    weave(m[:6], [], 0)
    weave(m[6:], outq(1), 2)
    m = phi_mfma(PS[3], ACC + 60)
    weave(m[:6], [], 0)
    weave(m[6:], outq(2), 2)
    for x in outq(3):
        A(x)
    stamp(A, 6)
    tag_check(A, 10)
    set_flag(A, 10, "s59")
    stamp(A, 7)
    A.check_seam(mq, hq)
    lds_arrive(A, 14, L_SYNC)
    lds_wait(A, 14, None, 4, sleep=1)
    A("s_setprio 0")
    A("s_cmp_lt_u32 s99, 4")
    A("s_cbranch_scc1 L_wo")
    if Opt.wopf == "qs":
        srd(A, 36, S_WO, NB_WO)
        A("s_sub_u32 s57, s99, 4")
        A("s_lshl_b32 s57, s57, 2")
        A("s_add_u32 s57, s57, s48")
        A("s_lshl_b32 s57, s57, 13")
        A(f"s_add_u32 s57, s57, {240*1280}")
        A("v_lshlrev_b32 v8, 7, v1")
        for i in range(4):
            A(f"buffer_load_dword v{200+i}, v8, s[36:39], s57 offen")
            A(f"s_add_u32 s57, s57, {16*8192}")
    A("s_cmp_lt_u32 s48, 2")
    A("s_cbranch_scc1 L_post")
    end_wave(A)


def role_o(A):
    NT = 4
    RAW, X, PQ = 64, 104, 128
    A("s_mul_i32 s53, s48, 20480")
    A(f"s_add_u32 s53, s53, {L_WOB}")
    A("v_and_b32 v4, 31, v1")
    A("v_lshl_add_u32 v5, v4, 4, s53")
    A("v_lshl_add_u32 v6, v4, 3, s53")
    A("v_and_b32 v7, 32, v1")
    A("v_lshlrev_b32 v7, 26, v7")
    A("s_lshl_b32 s54, s48, 2")
    A(f"s_add_u32 s54, s54, {L_SYNC+16}")
    A("s_mov_b32 s58, 0xffff0000")
    for t in range(NT):
        A(f"v_mov_b32 v{PQ+12*t+10}, 0")
        A(f"v_mov_b32 v{PQ+12*t+11}, 0")
    A("s_mov_b32 s96, s59")
    A("s_mov_b32 s97, 0")
    if Opt.dflag:
        Lgo = A.newlabel("L_go")
        A("v_mov_b32 v14, s54")
        A("ds_read_b32 v15, v14")
        A("s_waitcnt lgkmcnt(0)")
        A("v_cmp_le_u32 vcc, 1, v15")
        A(f"s_cbranch_vccnz {Lgo}")
    set_flag(A, 10, "s96")
    lds_arrive(A, 14, L_SYNC + 4)
    A("s_mov_b32 s97, 1")
    stamp(A, 7)
    lds_wait(A, 14, "s54", 1)
    if Opt.dflag:
        A.label(Lgo)
    stampw(A, 8)
    T = Lgkm(A)
    for t in range(NT):
        T.issue(f"ds_read_b128 {vr(RAW+10*t,4)}, v5 offset:{1280*t}")
        T.issue(f"ds_read_b128 {vr(RAW+10*t+4,4)}, v5 offset:{1280*t+512}")
        T.issue(f"ds_read_b64 {vr(RAW+10*t+8,2)}, v6 offset:{1280*t+1024}", t)
    A("s_lshl_b32 s57, s63, 2")
    A("s_mul_i32 s54, s57, 40960")
    A(f"s_add_u32 s54, s54, {WS_O:#x}")
    A("s_lshl_b32 s59, s62, 8")
    A("s_add_u32 s59, s59, s54")
    A("s_add_u32 s59, s59, 32768")
    A("s_lshl_b32 s57, s62, 10")
    A("s_add_u32 s54, s54, s57")
    A("s_lshl_b32 s50, s63, 5")
    A("s_add_u32 s50, s50, s62")
    A("s_lshl_b32 s50, s50, 7")
    A(f"s_add_u32 s50, s50, {F3:#x}")
    mx, se = 124, 126
    for t in range(NT):
        T.wait(t)
        for i in range(10):
            A(f"v_lshl_add_u32 v{X+2*i}, v{RAW+10*t+i}, 16, v7")
            A(f"v_bitop3_b32 v{X+2*i+1}, v{RAW+10*t+i}, s58, v7 bitop3:0x6a")
        A(f"v_max3_f32 v{mx}, v{X}, v{X+1}, v{X+2}")
        A(f"v_max3_f32 v{mx+1}, v{X+3}, v{X+4}, v{X+5}")
        for i in range(6, 18, 4):
            A(f"v_max3_f32 v{mx}, v{mx}, v{X+i}, v{X+i+1}")
            A(f"v_max3_f32 v{mx+1}, v{mx+1}, v{X+i+2}, v{X+i+3}")
        A(f"v_max3_f32 v{mx}, v{mx}, v{X+18}, v{X+19}")
        A(f"v_max_f32 v{mx}, v{mx}, v{mx+1}")
        A(f"v_mul_f32 v{mx}, s60, v{mx}")
        for i in range(0, 20, 2):
            A(f"v_pk_fma_f32 {vr(X+i,2)}, {vr(X+i,2)}, s[60:61], {vr(mx,2)} op_sel_hi:[1,1,0] neg_lo:[0,0,1] neg_hi:[0,0,1]")
        if Opt.dflag and t == 1:
            Lsk = A.newlabel("L_sk")
            A("s_cmp_eq_u32 s97, 1")
            A(f"s_cbranch_scc1 {Lsk}")
            set_flag(A, 10, "s96")
            lds_arrive(A, 14, L_SYNC + 4)
            stampw(A, 7)
            A.label(Lsk)
        for i in range(20):
            A(f"v_exp_f32 v{X+i}, v{X+i}")
        A(f"v_pk_add_f32 {vr(se,2)}, {vr(X,2)}, {vr(X+2,2)}")
        A(f"v_pk_add_f32 {vr(mx,2)}, {vr(X+4,2)}, {vr(X+6,2)}")
        for i in range(8, 20, 4):
            A(f"v_pk_add_f32 {vr(se,2)}, {vr(se,2)}, {vr(X+i,2)}")
            A(f"v_pk_add_f32 {vr(mx,2)}, {vr(mx,2)}, {vr(X+i+2,2)}")
        A(f"v_pk_add_f32 {vr(se,2)}, {vr(se,2)}, {vr(mx,2)}")
        A(f"v_add_f32 v{se}, v{se}, v{se+1}")
        A(f"v_rcp_f32 v{se}, v{se}")
        for i in range(0, 20, 2):
            A(f"v_pk_mul_f32 {vr(X+i,2)}, {vr(X+i,2)}, {vr(se,2)} op_sel_hi:[1,0]")
        for i in range(10):
            A(f"v_cvt_pk_bf16_f32 v{PQ+12*t+i}, v{X+2*i}, v{X+2*i+1}")
    stamp(A, 9)
    KF = 16
    A(f"v_mov_b32 v{KF+10}, 0")
    A(f"v_mov_b32 v{KF+11}, 0")
    lds_wait(A, 14, L_SYNC + 8, 4)
    stampw(A, 10)
    PR = 32
    T = Lgkm(A)
    for q in range(5):
        for p in range(4):
            T.issue(f"ds_read_b128 {vr(PR+16*q+4*p,4)}, v2 offset:{5120*p+1024*q}", q)
    for q in range(5):
        T.wait(q)
        b = PR + 16 * q
        for h in (0, 2):
            A(f"v_pk_add_f32 {vr(b+h,2)}, {vr(b+h,2)}, {vr(b+4+h,2)}")
            A(f"v_pk_add_f32 {vr(b+8+h,2)}, {vr(b+8+h,2)}, {vr(b+12+h,2)}")
        for h in (0, 2):
            A(f"v_pk_add_f32 {vr(b+h,2)}, {vr(b+h,2)}, {vr(b+8+h,2)}")
        for h in (0, 2):
            A(f"v_cvt_pk_bf16_f32 v{KF+2*q+h//2}, v{b+h}, v{b+h+1}")
    D = [176, 192, 208, 224]
    OP = [32, 40, 48, 56]

    def mf(t):
        for u in range(3):
            c = vr(D[t], 16) if u else "0"
            A(f"v_mfma_f32_32x32x16_bf16 {vr(D[t],16)}, {vr(KF+4*u,4)}, {vr(PQ+12*t+4*u,4)}, {c}")

    if Opt.dA:
        A(f"s_sleep {Opt.dA}")
    mf(0)
    mf(1)
    for t in range(NT):
        d, o = D[t], OP[t]
        A(f"v_add_f32 v10, 0x358637bd, v{d+12}")
        A("v_rcp_f32 v10, v10")
        if t + 2 < NT:
            mf(t + 2)
        if t >= 2:
            for i in range(0, 12, 2):
                A(f"v_pk_mul_f32 {vr(d+i,2)}, {vr(d+i,2)}, v[10:11] op_sel_hi:[1,0]")
        else:
            for i in range(12):
                A(f"v_mul_f32 v{d+i}, v10, v{d+i}")
        for i in range(6):
            A(f"v_cvt_pk_bf16_f32 v{o+i}, v{d+2*i}, v{d+2*i+1}")
        A(f"buffer_store_dwordx4 {vr(o,4)}, v2, s[{SWS}:{SWS+3}], s54 offen{SC}")
        A("s_mov_b32 exec_hi, 0")
        A(f"buffer_store_dwordx2 {vr(o+4,2)}, v3, s[{SWS}:{SWS+3}], s59 offen{SC}")
        A("s_mov_b64 exec, -1")
        if t < NT - 1:
            A("s_add_u32 s54, s54, 40960")
            A("s_add_u32 s59, s59, 40960")
    stamp(A, 11)
    set_flag(A, 12, "s50")
    lds_arrive(A, 16, L_SYNC + 12)
    stamp(A, 12)


def b_channel(A):
    A("s_mul_i32 s49, s98, 80")
    A("s_sub_u32 s50, s99, 24")
    A("s_mul_i32 s50, s50, 6")
    A("s_add_u32 s49, s49, s50")
    A("s_add_u32 s49, s49, s48")
    A("s_cmp_ge_u32 s48, 6")
    A("s_cselect_b32 s50, 2, 0")
    A("s_sub_u32 s49, s49, s50")
    A(f"s_mul_i32 s56, s48, {CV_LDS}")


def conv_load_h(A, v):
    SH = 40
    srd(A, SH, S_SSK, NB_SSK)
    A(f"v_lshlrev_b32 v{v}, 4, v1")
    A("s_lshl_b32 s50, s49, 12")
    A("s_add_u32 m0, s56, 64")
    for i in range(4):
        A(f"buffer_load_dwordx4 v{v}, s[{SH}:{SH+3}], s50 offen offset:{1024*i}{Opt.nt_s} lds")


def f0_lines(A, c0, c1, v):
    A(f"s_lshr_b32 s52, s{c0}, 6")
    A("s_mul_i32 s52, s52, 419431")
    A("s_lshr_b32 s52, s52, 16")
    A(f"s_lshr_b32 s53, s{c1}, 6")
    A("s_mul_i32 s53, s53, 419431")
    A("s_add_u32 s53, s53, 406324")
    A("s_lshr_b32 s53, s53, 16")
    A(f"v_lshrrev_b32 v{v}, 2, v1")
    A(f"v_add_u32 v{v}, s52, v{v}")
    A(f"v_min_u32 v{v}, s53, v{v}")
    A(f"v_lshlrev_b32 v{v}, 7, v{v}")
    A(f"s_mov_b32 s52, {F0:#x}")


def role_pre(A):
    SK, SV, SS = 32, 36, 40
    t0, t1, t2 = 2, 3, 4
    A("s_lshl_b32 s49, s98, 3")
    A("s_add_u32 s49, s49, s99")
    A("s_sub_u32 s49, s49, 24")
    A("s_mul_i32 s49, s49, 5")
    A("s_add_u32 s49, s49, s48")
    A("s_and_b32 s50, s49, 31")
    A("s_lshr_b32 s51, s49, 5")
    A(f"s_mul_i32 s52, s50, {64*1280}")
    A("s_lshl_b32 s53, s51, 7")
    A("s_add_u32 s52, s52, s53")
    A(f"v_lshrrev_b32 v{t0}, 3, v1")
    A(f"v_and_b32 v{t1}, 7, v1")
    A(f"v_mul_u32_u24 v{t2}, {8*1280}, v{t0}")
    A(f"v_lshl_add_u32 v{t2}, v{t1}, 4, v{t2}")
    A(f"v_add_u32 v5, s52, v{t2}")
    A(f"v_subrev_u32 v6, {3*1280}, v5")
    A(f"v_subrev_u32 v7, {2*1280}, v5")
    A(f"v_subrev_u32 v8, {1280}, v5")
    A(f"v_lshlrev_b32 v9, 6, v{t1}")
    A("s_lshl_b32 s54, s51, 9")
    A(f"s_movk_i32 s55, {4*1280}")
    A("s_waitcnt lgkmcnt(0)")
    srd(A, SK, S_BK, NB_X)
    srd(A, SV, S_BV, NB_X)
    srd(A, SS, S_SH, NB_SH)
    WR, KR, VR = 16, 32, 76
    for i in range(4):
        A(f"buffer_load_dwordx4 {vr(WR+4*i,4)}, v9, s[{SS}:{SS+3}], s54 offen offset:{16*i}")
    for i in range(3):
        A(f"buffer_load_dwordx4 {vr(KR+4*i,4)}, v{6+i}, s[{SK}:{SK+3}], 0 offen{Opt.nt_s}")

    order = []

    def ld(kind, i):
        so = "0" if i < 4 else "s55"
        if kind == "k":
            A(f"buffer_load_dwordx4 {vr(KR+12+4*i,4)}, v5, s[{SK}:{SK+3}], {so} offen offset:{1280*(i&3)}{Opt.nt_s}")
        else:
            A(f"buffer_load_dwordx4 {vr(VR+4*i,4)}, v5, s[{SV}:{SV+3}], {so} offen offset:{1280*(i&3)}{Opt.nt_s}")
        order.append((kind, i))

    for i in (5, 6, 7):
        ld("k", i)
    ld("k", 0); ld("v", 0); ld("k", 1); ld("v", 1)
    todo = [("k", 2), ("v", 2), ("k", 3), ("v", 3), ("k", 4), ("v", 4), ("v", 5), ("v", 6), ("v", 7)]
    stamp(A, 2)
    srd(A, SWS, S_WS, WS_SIZE)
    A("s_mul_i32 s56, s48, 8320")
    A(f"s_add_u32 s56, s56, {B_PRE}")
    A(f"v_mul_u32_u24 v10, 1040, v{t1}")
    A(f"v_lshl_add_u32 v10, v{t0}, 4, v10")
    A("v_add_u32 v10, s56, v10")
    A("v_lshrrev_b32 v11, 4, v1")
    A("v_lshlrev_b32 v11, 8, v11")
    A("v_and_b32 v12, 3, v1")
    A("v_lshl_add_u32 v11, v12, 6, v11")
    A("v_bfe_u32 v12, v1, 2, 2")
    A("v_lshl_add_u32 v11, v12, 3, v11")
    A("v_add_u32 v11, s56, v11")
    A(f"v_lshlrev_b32 v12, 12, v{t0}")
    A(f"v_lshl_add_u32 v12, v{t1}, 4, v12")
    A("s_lshl_b32 s57, s51, 18")
    A("s_lshl_b32 s58, s50, 7")
    A("s_add_u32 s57, s57, s58")
    A(f"s_add_u32 s57, s57, {WS_KVT:#x}")
    A("s_mov_b32 s59, 0xffff0000")
    WF, KF, VF, TA, OUT = 108, 140, 172, 180, 196

    def unpack(dst, src, n):
        for i in range(n):
            A(f"v_lshlrev_b32 v{dst+2*i}, 16, v{src+i}")
            A(f"v_and_b32 v{dst+2*i+1}, s59, v{src+i}")

    A(f"s_waitcnt vmcnt({3+len(order)})")
    ld(*todo.pop(0)); ld(*todo.pop(0))
    for c in range(8):
        A(f"v_lshlrev_b32 v{WF+c}, 16, v{WR+2*c}")
        A(f"v_and_b32 v{WF+8+c}, s59, v{WR+2*c}")
        A(f"v_lshlrev_b32 v{WF+16+c}, 16, v{WR+2*c+1}")
        A(f"v_and_b32 v{WF+24+c}, s59, v{WR+2*c+1}")
    A(f"s_waitcnt vmcnt({len(order)})")
    ld(*todo.pop(0)); ld(*todo.pop(0))
    for i in range(3):
        unpack(KF + 8 * i, KR + 4 * i, 4)
    for i in range(8):
        need = max(order.index(("k", i)), order.index(("v", i)))
        A(f"s_waitcnt vmcnt({len(order)-1-need})")
        for _ in range(2):
            if todo:
                ld(*todo.pop(0))
        if i == 2:
            b_channel(A)
            if Opt.hdef:
                A("s_lshl_b32 s50, s49, 12")
            else:
                conv_load_h(A, 13)
                order.extend([None] * 4)
        unpack(KF + 8 * ((i + 3) & 3), KR + 12 + 4 * i, 4)
        unpack(VF, VR + 4 * i, 4)
        acc = TA + 8 * (i & 1)
        for j in (3, 2, 1, 0):
            kk = KF + 8 * ((i + 3 - j) & 3)
            for c in range(0, 8, 2):
                if j == 3:
                    A(f"v_pk_mul_f32 {vr(acc+c,2)}, {vr(kk+c,2)}, {vr(WF+8*j+c,2)}")
                else:
                    A(f"v_pk_fma_f32 {vr(acc+c,2)}, {vr(kk+c,2)}, {vr(WF+8*j+c,2)}, {vr(acc+c,2)}")
        for c in range(0, 8, 2):
            A(f"v_pk_mul_f32 {vr(acc+c,2)}, {vr(acc+c,2)}, {vr(VF+c,2)}")
        if i & 1:
            for c in range(8):
                A(f"v_cvt_pk_bf16_f32 v{OUT+4*c+i//2}, v{TA+c}, v{TA+8+c}")
    stamp(A, 3)
    for c in range(8):
        A(f"ds_write_b128 v10, {vr(OUT+4*c,4)} offset:{128*c}")
    A("s_waitcnt lgkmcnt(0)")
    T = Lgkm(A)
    for i in range(8):
        T.issue(f"ds_read_b64_tr_b16 {vr(16+4*i,2)}, v11 offset:{1040*i}")
        T.issue(f"ds_read_b64_tr_b16 {vr(18+4*i,2)}, v11 offset:{1040*i+32}", i)
    for i in range(8):
        T.wait(i)
        A(f"buffer_store_dwordx4 {vr(16+4*i,4)}, v12, s[{SWS}:{SWS+3}], s57 offen{SC}")
        if i < 7:
            A(f"s_add_u32 s57, s57, {8*4096}")
    stamp(A, 5)
    if Opt.hdef == 2:
        conv_load_h(A, 13)


def role_helper(A):
    SD = 40
    A("s_setprio 3")
    A("s_waitcnt lgkmcnt(0)")
    srd(A, SWS, S_WS, WS_SIZE)
    srd(A, SD, S_DBG, 256)
    Lz = A.newlabel("L_nz")
    A("s_cmp_eq_u32 s2, 192")
    A(f"s_cbranch_scc0 {Lz}")
    A("s_cmp_eq_u32 s48, 5")
    A(f"s_cbranch_scc0 {Lz}")
    A(f"s_mov_b32 s57, {WS_EPOCH:#x}")
    A("s_mov_b64 exec, 1")
    A(f"buffer_load_dword v4, off, s[{SWS}:{SWS+3}], s57{SC}")
    A("s_waitcnt vmcnt(0)")
    A("v_add_u32 v4, 1, v4")
    A("v_not_b32 v5, v4")
    A(f"buffer_store_dwordx2 v[4:5], off, s[{SD}:{SD+3}], 0{SC}")
    A(f"buffer_store_dword v4, off, s[{SWS}:{SWS+3}], s57{SC}")
    A("s_mov_b64 exec, -1")
    stamp(A, 2)
    A.label(Lz)
    if Opt.touch & 2:
        Lt = A.newlabel("L_nt")
        A("s_cmp_eq_u32 s48, 5")
        A(f"s_cbranch_scc0 {Lt}")
        touch(A, 26, 32, Opt.tsh)
        for k_, (b_, n_) in enumerate(((S_BQ, NB_X), (S_SSK, NB_SSK))):
            srd(A, 32, b_, n_)
            A(f"buffer_load_dword v29, v26, s[32:35], 0 offen")
        A.label(Lt)
    Lnw = A.newlabel("L_nw")
    A("s_sub_u32 s61, s99, 24")
    A("s_lshl_b32 s60, s61, 1")
    A("s_add_u32 s60, s60, s48")
    A("s_sub_u32 s60, s60, 6")
    A("s_xor_b32 s61, s61, 20")
    A("s_cmp_eq_u32 s48, 5")
    A("s_cselect_b32 s60, s61, s60")
    A("s_lshl_b32 s60, s60, 3")
    A("s_add_u32 s60, s60, s98")
    A("s_cmp_ge_u32 s60, 160")
    A(f"s_cbranch_scc1 {Lnw}_a")
    srd(A, 36, S_WO, NB_WO)
    A("s_lshr_b32 s61, s60, 3")
    A("s_and_b32 s62, s60, 7")
    A(f"s_mul_i32 s53, s62, {80*1280}")
    A("s_lshl_b32 s54, s61, 6")
    A("s_add_u32 s53, s53, s54")
    A("v_lshrrev_b32 v2, 2, v1")
    A("v_and_b32 v3, 3, v1")
    A("v_mul_u32_u24 v4, 1280, v2")
    A("v_lshl_add_u32 v4, v3, 4, v4")
    A(f"s_mul_i32 s56, s48, {CV_LDS}")
    for i in range(5):
        A(f"s_add_u32 m0, s56, {1024*i}")
        A("buffer_load_dwordx4 v4, s[36:39], s53 offen lds")
        A(f"s_add_u32 s53, s53, {16*1280}")
    A.label(Lnw + "_a")
    if Opt.gpf2:
        Lnp = A.newlabel("L_ng")
        A("s_lshl_b32 s50, s48, 3")
        A("s_add_u32 s50, s50, s99")
        A("s_sub_u32 s50, s50, 64")
        A("s_cmp_ge_u32 s50, 20")
        A(f"s_cbranch_scc1 {Lnp}")
        A("s_lshr_b32 s51, s50, 1")
        A("s_and_b32 s50, s50, 1")
        A("s_cmp_ge_u32 s51, 5")
        A("s_cselect_b32 s52, 640, 0")
        A("s_lshl_b32 s51, s51, 7")
        A("s_add_u32 s51, s51, s52")
        A("s_lshr_b32 s52, s98, 2")
        A("s_mul_i32 s52, s52, 640")
        A("s_add_u32 s51, s51, s52")
        A(f"s_mul_i32 s50, s50, {5*64*3840}")
        A("s_add_u32 s51, s51, s50")
        A(f"s_add_u32 s51, s51, {1280 + Opt.gpf2*64*3840}")
        srd(A, 32, S_W, NB_W)
        A("v_mul_u32_u24 v2, 3840, v1")
        for k in range(Opt.gpf2, 5):
            A(f"buffer_load_dword v{30+k}, v2, s[32:35], s51 offen")
            A(f"s_add_u32 s51, s51, {64*3840}")
        A.label(Lnp)
    if Opt.gpf:
        A("s_sub_u32 s50, s99, 24")
        A("s_mul_i32 s50, s50, 3")
        A("s_add_u32 s50, s50, s48")
        A("s_sub_u32 s50, s50, 5")
        A("s_and_b32 s51, s98, 3")
        A("s_lshl_b32 s51, s51, 3")
        A("s_add_u32 s51, s51, s50")
        A(f"s_mul_i32 s51, s51, {64*1280}")
        A("s_sub_u32 s52, s50, 8")
        A("s_mul_i32 s53, s52, 52")
        A("s_lshr_b32 s53, s53, 8")
        A("s_mul_i32 s53, s53, 640")
        A("s_lshl_b32 s52, s52, 7")
        A("s_add_u32 s52, s52, s53")
        A("s_lshr_b32 s53, s98, 2")
        A("s_mul_i32 s53, s53, 640")
        A("s_add_u32 s52, s52, s53")
        A("s_cmp_eq_u32 s50, 23")
        A(f"s_cselect_b32 s52, {NB_W:#x}, s52")
        A("s_cmp_lt_u32 s50, 8")
        A("s_cselect_b32 s51, s51, s52")
        A(f"s_cselect_b64 s[32:33], s[{S_X}:{S_X+1}], s[{S_W}:{S_W+1}]")
        A(f"s_mov_b32 s53, {NB_W:#x}")
        A(f"s_cselect_b32 s34, {NB_X:#x}, s53")
        A("s_mov_b32 s35, 0x20000")
        A("s_movk_i32 s53, 3840")
        A("s_cselect_b32 s52, 1280, s53")
        A(f"s_mov_b32 s53, {64*3840}")
        A("s_cselect_b32 s53, 128, s53")
        A("v_mul_u32_u24 v2, s52, v1")
        A(f"s_mul_i32 s52, s53, {Opt.gpf}")
        A("s_add_u32 s51, s51, s52")
        for k, st in enumerate(range(Opt.gpf, 10)):
            if k >= Opt.gpfd:
                A(f"s_waitcnt vmcnt({Opt.gpfd-1})")
            A(f"buffer_load_dword v{30+k}, v2, s[32:35], s51 offen")
            A("s_add_u32 s51, s51, s53")
    if Opt.codepf:
        Lp = A.newlabel("L_npf")
        A("s_cmp_eq_u32 s48, 6")
        A(f"s_cbranch_scc0 {Lp}")
        A("s_getpc_b64 s[50:51]")
        A.label("L_pc")
        A(f"s_sub_u32 s50, s50, L_pc-{NAME}_kernel")
        A("s_subb_u32 s51, s51, 0")
        A("s_sub_u32 s52, s99, 24")
        A("s_lshl_b32 s52, s52, 13")
        A("v_lshl_add_u32 v2, v1, 7, s52")
        A(f"v_min_u32 v2, L_code_end-{NAME}_kernel-4, v2")
        A("global_load_dword v24, v2, s[50:51]")
        A.label(Lp)
    A("s_cmp_ge_u32 s60, 160")
    A(f"s_cbranch_scc1 {Lnw}")
    A("v_bfe_u32 v10, v1, 2, 2")
    A("v_lshrrev_b32 v11, 5, v1")
    A("v_and_b32 v12, 1, v1")
    A("v_lshlrev_b32 v12, 5, v12")
    A("v_bfe_u32 v13, v1, 4, 1")
    A("v_lshl_add_u32 v12, v13, 4, v12")
    A("v_bfe_u32 v13, v1, 1, 1")
    A("v_lshl_add_u32 v12, v13, 3, v12")
    A("v_lshl_add_u32 v12, v10, 6, v12")
    A("v_add_u32 v12, s56, v12")
    A("v_lshl_add_u32 v13, v11, 8, v12")
    A("v_mul_u32_u24 v14, 2560, v11")
    A("v_add_u32 v14, v14, v12")
    A("v_lshlrev_b32 v2, 4, v1")
    A("s_mul_i32 s53, s61, 40960")
    A(f"s_add_u32 s53, s53, {WS_WOT:#x}")
    A("s_lshl_b32 s54, s62, 10")
    A("s_add_u32 s54, s54, s53")
    A("s_add_u32 s54, s54, 32768")
    A("s_lshl_b32 s62, s62, 12")
    A("s_add_u32 s53, s53, s62")
    A("s_lshl_b32 s55, s60, 7")
    A(f"s_add_u32 s55, s55, {FW:#x}")
    A("s_waitcnt vmcnt(0)")
    for hh in range(4):
        for half in range(2):
            A(f"ds_read_b64_tr_b16 {vr(40+4*hh+2*half,2)}, v13 offset:{(20*hh+8*half)*64}")
    for half in range(2):
        A(f"ds_read_b64_tr_b16 {vr(56+2*half,2)}, v14 offset:{(20*half+16)*64}")
    A("s_waitcnt lgkmcnt(0)")
    for hh in range(4):
        A(f"buffer_store_dwordx4 {vr(40+4*hh,4)}, v2, s[{SWS}:{SWS+3}], s53 offen offset:{1024*hh}{SC}")
    A(f"buffer_store_dwordx4 v[56:59], v2, s[{SWS}:{SWS+3}], s54 offen{SC}")
    A(f"s_mov_b64 s[{TAG}:{TAG+1}], 0")
    tag_check(A, 8)
    set_flag(A, 8, "s55")
    A.label(Lnw)
    A("s_setprio 0")
    b_channel(A)
    if Opt.hdef == 1:
        A("s_lshl_b32 s50, s49, 12")
    else:
        conv_load_h(A, 2)
    A(f"v_mov_b32 v4, {B_MB+256}")
    A("v_mov_b32 v5, 0")
    A("ds_write_b32 v4, v5")
    A("ds_write_b32 v4, v5 offset:512")


def conv_setup(A):
    A("v_lshlrev_b32 v2, 4, v1")
    A("s_lshl_b32 s52, s49, 1")
    A("s_and_b32 s52, s52, 0xfffffffc")
    A(f"s_load_dword s55, s[{S_SSD}:{S_SSD+1}], s52")
    A(f"s_load_dword s54, s[{S_SSK}:{S_SSK+1}], s50")
    A(f"s_add_u32 s51, s50, {WS_KVT:#x}")
    for i in range(4):
        A(f"v_mov_b32 v{4+i}, 0")
    A("v_add_u32 v3, s56, v2")
    A("s_mov_b64 exec, 0xf")
    A("ds_write_b128 v3, v[4:7]")
    A("s_mov_b32 exec_lo, -1")
    A(f"ds_write_b128 v3, v[4:7] offset:{64+4096}")
    A("s_mov_b64 exec, -1")
    A("v_and_b32 v11, 3, v1")
    A("v_lshrrev_b32 v10, 4, v1")
    A("v_bfe_u32 v12, v1, 2, 2")
    A("v_lshlrev_b32 v8, 4, v11")
    A("v_lshl_add_u32 v8, v10, 6, v8")
    A("v_lshlrev_b32 v9, 3, v12")
    A("v_sub_u32 v8, v8, v9")
    A("s_add_u32 s57, s56, 32")
    A("v_add_u32 v8, s57, v8")
    A("v_sub_u32 v9, v11, v10")
    A("v_lshlrev_b32 v9, 6, v9")
    A("v_lshl_add_u32 v9, v12, 4, v9")
    A(f"s_add_u32 s57, s56, {64+4096+512}")
    A("v_add_u32 v9, s57, v9")
    A("v_mov_b32 v13, 0xffff")
    for i in range(4):
        A(f"v_cmp_eq_u32 vcc, {4*i}, v1")
        A(f"v_cndmask_b32 v{MK+i}, 0, v13, vcc")
    A("v_add_u32 v13, 3, v11")
    A("v_and_b32 v13, 3, v13")
    A("v_lshl_add_u32 v13, v12, 2, v13")
    A("v_add_u32 v13, 48, v13")
    A("v_subrev_u32 v14, 16, v1")
    A("v_cmp_gt_u32 vcc, 16, v1")
    A("v_cndmask_b32 v14, v14, v13, vcc")
    A("v_lshlrev_b32 v14, 2, v14")
    A("s_mov_b32 s58, 0x1111")
    A("s_mov_b32 s59, 0")


MK = 16


def role_conv(A):
    conv_setup(A)
    A("s_sub_u32 s61, s99, 24")
    A("s_lshl_b32 s62, s98, 3")
    A("s_add_u32 s62, s62, s61")
    A("s_lshl_b32 s62, s62, 7")
    A(f"s_add_u32 s62, s62, {F0:#x}")
    A("s_mul_i32 s60, s98, 80")
    A("s_mul_i32 s61, s61, 6")
    A("s_add_u32 s60, s60, s61")
    A("s_add_u32 s61, s60, 5")
    f0_lines(A, 60, 61, 12)
    A(f"s_waitcnt vmcnt({4 if Opt.hdef == 2 else 0}) lgkmcnt(0)")
    stamp(A, 4)
    A("s_barrier")
    if Opt.hdef == 1:
        Lh = A.newlabel("L_hd")
        A("s_cmp_eq_u32 s48, 7")
        A(f"s_cbranch_scc0 {Lh}")
        set_flag(A, 22, "s62")
        A.label(Lh)
        A("s_barrier")
        conv_load_h(A, 2)
        A("s_waitcnt vmcnt(0)")
    else:
        A("s_waitcnt vmcnt(0)")
        A("s_cmp_eq_u32 s48, 7")
        A("s_cbranch_scc0 L_cb")
        set_flag(A, 22, "s62")
    A("s_branch L_cb")
    A.label("L_conv")
    RA, RB = 64, 192
    ACCS = (32, 40, 48, 56)
    CAR, PUL, TMP = 20, (21, 22), 23
    OUT = (24, 28)

    def rdA(m, e):
        reg = RA + 8 * m + 4 * e
        return [(f"ds_read_b64_tr_b16 {vr(reg,2)}, v8 offset:{256*m+8*e+32}", None),
                (f"ds_read_b64_tr_b16 {vr(reg+2,2)}, v8 offset:{256*m+8*e}", ("A", m, e))]

    def xload():
        A(f"s_add_u32 m0, s56, {64+4096+512}")
        for i in range(4):
            A(f"buffer_load_dwordx4 v2, s[{SWS}:{SWS+3}], s51 offen offset:{1024*i}{SC} lds")

    Lb, Lg = "L_cb", A.newlabel("L_cg")
    tag_check(A, 22)
    conv_load_h(A, 2)
    A(f"buffer_load_dwordx2 v[22:23], v12, s[{SWS}:{SWS+3}], s52 offen{SC}")
    A("s_barrier")
    A("s_waitcnt vmcnt(0)")
    A(f"v_cmp_eq_u64 vcc, s[{TAG}:{TAG+1}], v[22:23]")
    A("s_cmp_eq_u64 vcc, -1")
    Lx = A.newlabel("L_cx")
    A(f"s_cbranch_scc1 {Lx}")
    poll(A, 22, 12, "s52", sleep=8)
    A.label(Lx)
    stamp(A, 8)
    xload()
    A.label(Lb)
    A("s_waitcnt lgkmcnt(0)")
    A("s_lshl_b32 s54, s54, 16")
    A("s_lshl_b32 s53, s55, 16")
    A("s_and_b32 s55, s55, 0xffff0000")
    A("s_bitcmp1_b32 s49, 0")
    A("s_cselect_b32 s53, s55, s53")
    A("v_mov_b32 v15, s54")
    A("v_add_f32 v15, s53, v15")
    A("v_cvt_pk_bf16_f32 v15, v15, v15")
    T = Lgkm(A)
    for m in range(16):
        for e in range(2):
            for x, tg in rdA(m, e):
                T.issue(x, tg)
    T.wait(("A", 0, 1))
    for k in range(4):
        A(f"v_bfi_b32 v{RA+k}, v{MK+k}, v15, v{RA+k}")
        A(f"v_lshlrev_b32 v{MK+k}, 16, v{MK+k}")
        A(f"v_bfi_b32 v{RA+4+k}, v{MK+k}, v15, v{RA+4+k}")
    T.all()
    if Opt.qwait:
        Lqd = A.newlabel("L_qd")
        A("s_cmp_ge_u32 s99, 24")
        A(f"s_cbranch_scc1 {Lqd}")
        lds_wait(A, 12, L_SYNC, 4, sleep=4)
        if Opt.qdel:
            A(f"s_sleep {Opt.qdel}")
        A.label(Lqd)
    A("s_cmp_ge_u32 s99, 24")
    A(f"s_cbranch_scc0 {Lg}")
    Ln7 = A.newlabel("L_n7")
    A("s_cmp_eq_u32 s48, 7")
    A(f"s_cbranch_scc0 {Ln7}")
    poll(A, 22, 12, "s52", sleep=4)
    A.label(Ln7)
    A("s_barrier")
    stamp(A, 8)
    xload()
    if Opt.bdelay:
        A(f"s_sleep {Opt.bdelay}")
    A("s_cmp_ge_u32 s48, 4")
    A(f"s_cbranch_scc0 {Lg}")
    A("s_setprio 1")
    A.label(Lg)
    A(f"s_add_u32 s51, s50, {WS_YT:#x}")
    A(f"v_mov_b32 v{PUL[1]}, 0")

    def epilogue(i):
        V = ACCS[i % 4]
        dpp = lambda d, src, op: f"v_add_f32_dpp v{d}, v{src}, v{d} {op} row_mask:0xf bank_mask:0xf"
        L = [f"v_mov_b32 v{CAR}, 0"]
        for k in (1, 2, 3):
            L += [dpp(V, V + k, f"row_shr:{4*k}"), dpp(V + 4, V + 4 + k, f"row_shr:{4*k}"), dpp(CAR, V + 4 + k, f"row_shl:{16-4*k}")]
        L.append(("ds", f"ds_bpermute_b32 v{PUL[i&1]}, v14, v{CAR}", ("P", i)))
        x = [dpp(V + 4, V + k, f"row_shl:{16-4*k}") for k in (1, 2, 3)]
        L += [x[0], "GAP", x[1], "GAP", x[2]]
        L.append(("wait", ("P", i)))
        L.append(f"v_cndmask_b32 v{TMP}, v{PUL[i&1]}, v{PUL[1-(i&1)]}, s[58:59]")
        L.append(f"v_add_f32 v{V}, v{V}, v{TMP}")
        L.append(f"v_cvt_pk_bf16_f32 v{OUT[(i>>2)&1]+(i&3)}, v{V}, v{V+4}")
        if i & 3 == 3:
            L.append(f"buffer_store_dwordx4 {vr(OUT[(i>>2)&1],4)}, v2, s[{SWS}:{SWS+3}], s51 offen offset:{1024*(i>>2)}{SC}")
        return L

    def emit(x):
        if isinstance(x, tuple):
            if x[0] == "ds":
                T.issue(x[1], x[2])
            else:
                T.wait(x[1])
        elif x != "GAP":
            A(x)

    A("s_waitcnt vmcnt(0)")
    stampw(A, 9)

    def stream(tiles, exit_at=None, keep=None):
        T.tag.clear()
        for w in range(16):
            T.issue(f"ds_read_b128 {vr(RB+4*w,4)}, v9 offset:{256*w}", ("B", w))
        fill = []
        since = 99
        for i in tiles:
            V = ACCS[i % 4]
            while fill and fill[0][0] <= i - 4:
                emit(fill.pop(0)[1])
            if exit_at and i == exit_at[0]:
                while fill and fill[0][0] <= i - 2:
                    emit(fill.pop(0)[1])
                assert len(fill) == len(epilogue(i - 1))
                A("s_cmp_ge_u32 s48, 4")
                A(f"s_cbranch_scc1 {exit_at[1]}")
            since = 0
            for w in range(i + 1):
                for e in range(2):
                    T.wait(("B", w))
                    c = vr(V + 4 * e, 4) if w else "0"
                    A(f"v_mfma_f32_16x16x32_bf16 {vr(V+4*e,4)}, {vr(RA+8*(i-w)+4*e,4)}, {vr(RB+4*w,4)}, {c}")
                    since += 1
                    left = 2 * (i + 1) - since
                    due = len([1 for t_, _x in fill if t_ <= i - 2])
                    if i == tiles[-1] or (exit_at and i == exit_at[0] - 1):
                        due = len(fill)
                    for _ in range(2 if due > left else 1):
                        if fill and (fill[0][0] < i - 1 or since >= 6):
                            emit(fill.pop(0)[1])
            ep = epilogue(i)
            if keep and i == keep[0]:
                k = [j for j, x in enumerate(ep) if isinstance(x, str) and x.startswith("v_cvt")][0]
                ep = ep[:k] + [f"v_mov_b32 v{keep[1]}, v{V}", f"v_mov_b32 v{keep[1]+1}, v{V+4}"] + ep[k + 1:]
            fill += [(i, x) for x in ep]
        stampw(A, 10)
        T.done = T.n if Ctx.stamps else T.done
        return [x for _, x in fill]

    A("s_cmp_ge_u32 s48, 6")
    A("s_cbranch_scc1 L_second")
    for x in stream(range(16), (12, "L_first")):
        emit(x)
    A("s_branch L_cdone")
    A.label("L_first")
    A("s_waitcnt lgkmcnt(0)")
    A("s_nop 6")
    T.done = T.n
    stampw(A, 10)
    for x in epilogue(11):
        emit(x)
    A("s_and_b32 s52, s48, 1")
    A("s_lshl_b32 s52, s52, 9")
    A(f"s_add_u32 s52, s52, {B_MB}")
    A("v_lshl_add_u32 v10, v1, 2, s52")
    A(f"ds_write_b32 v10, v{PUL[1]}")
    A("s_add_u32 s52, s52, 256")
    lds_arrive(A, 10, "s52")
    A("s_branch L_cdone")
    A.label("L_second")
    T.done = T.n
    last = stream(range(12, 16), keep=(12, 4))
    for x in last[:-1]:
        emit(x)
    A("s_and_b32 s52, s48, 1")
    A("s_lshl_b32 s52, s52, 9")
    A(f"s_add_u32 s52, s52, {B_MB}")
    A("v_lshl_add_u32 v12, v1, 2, s52")
    A("s_add_u32 s52, s52, 256")
    lds_wait(A, 10, "s52", 1, sleep=2)
    A(f"ds_read_b32 v{TMP}, v12")
    A("s_waitcnt lgkmcnt(0)")
    A(f"v_cndmask_b32 v{TMP}, 0, v{TMP}, s[58:59]")
    A(f"v_add_f32 v4, v4, v{TMP}")
    A(f"v_cvt_pk_bf16_f32 v{OUT[1]}, v4, v5")
    A(last[-1])
    A.label("L_cdone")
    A("s_waitcnt vmcnt(0)")
    stamp(A, 11)
    A("s_cmp_ge_u32 s99, 24")
    A("s_cbranch_scc1 L_bdone")
    A(f"v_mov_b32 v10, {L_SYNC+12}")
    A("v_mov_b32 v11, 1")
    A("s_mov_b64 exec, 1")
    A("ds_add_rtn_u32 v12, v10, v11")
    A("s_mov_b64 exec, -1")
    A("s_lshl_b32 s52, s98, 4")
    A("s_add_u32 s52, s52, s99")
    A("s_lshl_b32 s52, s52, 7")
    A(f"s_add_u32 s52, s52, {F4+8*128:#x}")
    A("s_waitcnt lgkmcnt(0)")
    A("v_readfirstlane_b32 s53, v12")
    A("s_cmp_eq_u32 s53, 3")
    A("s_cbranch_scc0 L_bend")
    set_flag(A, 10, "s52")
    A("s_branch L_bend")
    A.label("L_bdone")


def role_post(A):
    SQ, SO = 32, 36
    A.label("L_post")
    A("s_setprio 0")
    A("s_and_b32 s48, s48, 3")
    A("s_sub_u32 s50, s99, 24")
    A("s_lshl_b32 s50, s50, 2")
    A("s_lshl_b32 s51, s99, 1")
    A("s_add_u32 s51, s51, 24")
    A("s_cmp_ge_u32 s99, 24")
    A("s_cselect_b32 s50, s50, s51")
    A("s_mul_i32 s49, s98, 40")
    A("s_add_u32 s49, s49, s50")
    A("s_add_u32 s49, s49, s48")
    A("s_and_b32 s50, s49, 31")
    A("s_lshr_b32 s51, s49, 5")
    A("v_lshrrev_b32 v2, 3, v1")
    A("v_and_b32 v3, 7, v1")
    A("v_lshlrev_b32 v4, 12, v2")
    A("v_lshl_add_u32 v4, v3, 4, v4")
    A("s_lshl_b32 s52, s51, 18")
    A("s_lshl_b32 s53, s50, 7")
    A("s_add_u32 s52, s52, s53")
    A(f"s_add_u32 s52, s52, {WS_YT:#x}")
    A("s_mul_i32 s56, s48, 8320")
    A(f"s_add_u32 s56, s56, {B_PRE}")
    A("s_lshr_b32 s54, s50, 3")
    A("s_lshl_b32 s54, s54, 9")
    A("s_bfe_u32 s55, s50, 0x20001")
    A("s_lshl_b32 s55, s55, 3")
    A("s_add_u32 s54, s54, s55")
    A("s_and_b32 s55, s50, 1")
    A("s_lshl_b32 s55, s55, 1")
    A("s_add_u32 s54, s54, s55")
    A("v_and_b32 v5, 3, v2")
    A("v_lshrrev_b32 v6, 2, v2")
    A("v_lshl_add_u32 v5, v5, 5, v6")
    A("v_mul_u32_u24 v6, 1280, v5")
    A("v_lshlrev_b32 v7, 1, v6")
    A("v_lshl_add_u32 v6, v3, 4, v6")
    A("v_lshl_add_u32 v7, v3, 4, v7")
    A("s_mul_i32 s54, s54, 1280")
    A("s_lshl_b32 s53, s51, 7")
    A("s_lshl_b32 s55, s54, 1")
    A("s_add_u32 s54, s54, s53")
    A("s_add_u32 s55, s55, s53")
    A("s_add_u32 s55, s55, 1280")
    srd(A, SQ, S_BQ, NB_X)
    srd(A, SO, S_OUT, NB_OUT)
    QR, YR = 16, 48
    rows = [0, 4, 128, 132, 256, 260, 384, 388]
    for i in range(8):
        A(f"s_add_u32 s57, s54, {rows[i]*1280}")
        A(f"buffer_load_dwordx4 {vr(QR+4*i,4)}, v6, s[{SQ}:{SQ+3}], s57 offen{Opt.nt_s}")
    A("s_mov_b32 s59, 0xffff0000")
    QF = 128
    A("s_waitcnt vmcnt(0)")
    for i in range(32):
        A(f"v_lshlrev_b32 v{QF+2*i}, 16, v{QR+i}")
        A(f"v_and_b32 v{QF+2*i+1}, s59, v{QR+i}")
    A("s_lshl_b32 s57, s98, 4")
    A("s_sub_u32 s58, s57, 16")
    A("v_min_u32 v12, 47, v1")
    A("v_add_u32 v12, s58, v12")
    A("v_max_i32 v12, 0, v12")
    A("v_min_u32 v12, 127, v12")
    A("v_lshlrev_b32 v12, 7, v12")
    A("s_add_u32 s57, s57, s99")
    A("s_lshl_b32 s57, s57, 7")
    A(f"s_add_u32 s57, s57, {F4-24*128:#x}")
    A(f"s_mov_b32 s58, {F4:#x}")
    Lx, Lq, Ld = A.newlabel("L_p7"), A.newlabel("L_pq"), A.newlabel("L_pd")
    A("s_cmp_ge_u32 s99, 24")
    A(f"s_cbranch_scc0 {Lq}")
    A("s_barrier")
    A("s_cmp_eq_u32 s48, 3")
    A(f"s_cbranch_scc0 {Lx}")
    set_flag(A, 8, "s57")
    poll(A, 14, 12, "s58", sleep=4)
    A.label(Lx)
    A("s_barrier")
    A(f"s_branch {Ld}")
    A.label(Lq)
    A("s_barrier")
    poll(A, 14, 12, "s58", sleep=4)
    A.label(Ld)
    if Opt.dB:
        A(f"s_sleep {Opt.dB}")
    stamp(A, 12)
    for i in range(8):
        A(f"v_xor_b32 v8, {16*i}, v4")
        A(f"s_add_u32 m0, s56, {1024*i}")
        A(f"buffer_load_dwordx4 v8, s[{SWS}:{SWS+3}], s52 offen{SC} lds")
        if i < 7:
            A(f"s_add_u32 s52, s52, {8*4096}")
    A("v_xor_b32 v8, v2, v3")
    A("v_lshlrev_b32 v8, 4, v8")
    A("v_lshl_add_u32 v8, v3, 10, v8")
    A("v_add_u32 v8, s56, v8")
    A("s_waitcnt vmcnt(0)")
    for c in range(8):
        A(f"ds_read_b128 {vr(YR+4*c,4)}, v8 offset:{128*c}")
    A("s_waitcnt lgkmcnt(0)")
    stamp(A, 13)
    YF, OUT = 80, 96
    for i in range(8):
        for c in range(8):
            if i & 1:
                A(f"v_and_b32 v{YF+c}, s59, v{YR+4*c+i//2}")
            else:
                A(f"v_lshlrev_b32 v{YF+c}, 16, v{YR+4*c+i//2}")
        for c in range(0, 8, 2):
            A(f"v_pk_mul_f32 {vr(YF+c,2)}, {vr(YF+c,2)}, {vr(QF+8*i+c,2)}")
        for k in range(4):
            A(f"v_cvt_pk_bf16_f32 v{OUT+4*i+k}, v{YF+2*k}, v{YF+2*k+1}")
        A(f"s_add_u32 s57, s55, {rows[i]*2560}")
        A(f"buffer_store_dwordx4 {vr(OUT+4*i,4)}, v7, s[{SO}:{SO+3}], s57 offen{Opt.oscb}")
    stamp(A, 14)


def build():
    A = Asm()
    k = NAME + "_kernel"
    A.raw(f".globl {k}")
    A.raw(".p2align 8")
    A.raw(f".type {k},@function")
    A.label(k)
    if Opt.hold:
        A("s_memrealtime s[64:65]")
    load_kernargs(A)
    if Opt.lite:
        A("s_memrealtime s[64:65]")
    elif not Opt.hp:
        if Opt.rt:
            for k_ in range(2, 15):
                A(f"s_mov_b32 s{64+2*k_}, 0")
            stamp(A, 0, True)
        else:
            stamp_init(A)
        if Opt.rt:
            stamp(A, 1)
    A("v_lshrrev_b32 v2, 6, v0")
    A("v_and_b32 v1, 63, v0")
    A("v_readfirstlane_b32 s100, v2")
    A("s_and_b32 s98, s2, 7")
    A("s_lshr_b32 s99, s2, 3")
    A("s_cmp_ge_u32 s2, 192")
    A("s_cbranch_scc1 L_b")
    A("s_and_b32 s49, s2, 3")
    A("s_lshl_b32 s49, s49, 2")
    A("s_and_b32 s50, s99, 3")
    A("s_add_u32 s49, s49, s50")
    A("s_bfe_u32 s52, s2, 0x10002")
    A("s_lshr_b32 s53, s2, 5")
    A("s_lshl_b32 s54, s52, 1")
    A("s_add_u32 s54, s54, s53")
    A("s_lshl_b32 s55, s52, 2")
    A("s_add_u32 s55, s55, s53")
    A("s_sub_u32 s55, s55, 2")
    A("s_cmp_lt_u32 s2, 64")
    A("s_cselect_b32 s50, s54, s55")
    A("s_cselect_b32 s51, 1, 0")
    A("s_and_b32 s48, s100, 3")
    A("s_cmp_ge_u32 s100, 4")
    A("s_cbranch_scc1 L_c")
    role_loader(A)
    A.label("L_c")
    role_compute(A)
    A.label("L_b")
    A("s_cmp_ge_u32 s2, 256")
    A("s_cbranch_scc1 L_exit")
    A("s_mov_b32 s48, s100")
    A("s_cmp_ge_u32 s48, 5")
    A("s_cbranch_scc1 L_help")
    role_pre(A)
    A("s_branch L_bconv")
    A.label("L_help")
    role_helper(A)
    A.label("L_bconv")
    role_conv(A)
    A("s_cmp_lt_u32 s48, 4")
    A("s_cbranch_scc1 L_bend")
    role_post(A)
    A.label("L_bend")
    end_wave(A, "b")
    A.label("L_exit")
    A("s_endpgm")
    A.label("L_code_end")
    head = ["; generated by gen/f13.py",
            "; @launch grid=(256,1,1) block=(512,1,1) lds=163840"]
    txt = "\n".join(head) + '\n.amdgcn_target "amdgcn-amd-amdhsa--gfx950"\n.text\n' + A.text()
    txt += f'''.section .rodata,"a"
.p2align 6
.amdhsa_kernel {k}
  .amdhsa_next_free_vgpr 256
  .amdhsa_next_free_sgpr 102
  .amdhsa_accum_offset 256
  .amdhsa_group_segment_fixed_size 0
  .amdhsa_kernarg_size 104
  .amdhsa_user_sgpr_count 2
  .amdhsa_user_sgpr_kernarg_segment_ptr 1
  .amdhsa_system_sgpr_workgroup_id_x 1
.end_amdhsa_kernel
'''
    return txt


if __name__ == "__main__":
    args = sys.argv[2:]
    Ctx.stamps = "stamps" in args
    Opt.rot = "norot" not in args
    Opt.codepf = "nocodepf" not in args
    for a in args:
        if a.startswith("probe="):
            Opt.probe = tuple(int(x) for x in a[6:].split(","))
        if a.startswith("holdwg="):
            Opt.holdwg = int(a[7:])
        if a.startswith("osc="):
            Opt.osc = a[4:].replace("_", " ")
        if a.startswith("oscb="):
            Opt.oscb = a[5:].replace("_", " ")
        if a.startswith("gpf="):
            Opt.gpf = int(a[4:])
        if a.startswith("gpfd="):
            Opt.gpfd = int(a[5:])
        if a.startswith("rotA="):
            Opt.rotA = int(a[5:], 16)
        if a.startswith("rotB="):
            Opt.rotB = int(a[5:], 16)
        if a == "fake16":
            Opt.fake16 = True
        if a.startswith("qdelay="):
            Opt.qdelay = int(a[7:])
        if a.startswith("bpos="):
            Opt.bpos = int(a[5:])
        if a == "lidle":
            Opt.lidle = True
        if a == "noqwait":
            Opt.qwait = False
        if a == "nofwarm":
            Opt.fwarm = False
        if a == "noprog":
            Opt.prog = False
        if a == "nodflag":
            Opt.dflag = False
        if a == "lite":
            Opt.lite = True
            Ctx.stamps = True
        if a.startswith("wos="):
            Opt.wos = int(a[4:])
        if a.startswith("R="):
            Opt.R = int(a[2:])
        if a.startswith("hdef="):
            Opt.hdef = int(a[5:])
        if a.startswith("gpf2="):
            Opt.gpf2 = int(a[5:])
        if a.startswith("oahead="):
            Opt.oahead = int(a[7:])
        if a.startswith("hpsel="):
            Opt.hpsel = a[6:]
        if a.startswith("bdelay="):
            Opt.bdelay = int(a[7:])
        if a.startswith("qdel="):
            Opt.qdel = int(a[5:])
        if a == "snake":
            Opt.snake = True
        if a == "wrot":
            Opt.wrot = True
        if a.startswith("wfirst="):
            Opt.wfirst = int(a[7:])
        if a.startswith("wearly="):
            Opt.wearly = int(a[7:])
        if a.startswith("fwat="):
            Opt.fwat = int(a[5:])
        if a.startswith("only="):
            Opt.only = [0, 1, 15] + [int(x) for x in a[5:].split(",")]
        if a.startswith("touch="):
            Opt.touch = int(a[6:])
        if a.startswith("tsh="):
            Opt.tsh = int(a[4:])
        if a == "rt":
            Opt.rt = True
        if a.startswith("hp="):
            Opt.hp = int(a[3:])
            Ctx.stamps = True
        if a.startswith("hold="):
            Opt.hold = int(a[5:])
        if a.startswith("dA="):
            Opt.dA = int(a[3:])
        if a.startswith("dB="):
            Opt.dB = int(a[3:])
        if a == "nowomall":
            Opt.womall = False
        if a == "noppoll":
            Opt.ppoll = False
        if a.startswith("psleep="):
            Opt.psleep = int(a[7:])
        if a.startswith("wopf="):
            Opt.wopf = a[5:]
    for a in args:
        if a.startswith("LA="):
            Opt.LA = int(a[3:])
    open(sys.argv[1], "w").write(build())
```

```python
import sys
from asm import Asm, vr, ar, sr
from roles import (WS_PHIQ, WS_PART, WS_O, WS_KVT, WS_YT, WS_STAMP, WS_SIZE, S_X, S_W, S_WPHI, S_WO, S_BQ, S_BK, S_BV,
                   S_SH, S_SSK, S_SSD, S_OUT, S_DBG, S_WS, NB_X, NB_W, NB_WPHI, NB_WO, NB_SH, NB_SSK, NB_OUT, LOG2E,
                   Ctx, load_kernargs, srd, stamp, stamp_init, softmax20)

NAME = "concat_heads__linear_kernel_hedgehog__ssm_conv_h3__prompt"
WS_PQ = WS_PHIQ
WS_FLAG = 0xF00000
F1, F2, F3, F0, F4 = (WS_FLAG + 128 * o for o in (0, 512, 1024, 1536, 1856))
FW = WS_FLAG + 128 * 2048
WS_WOT = 0x400000
WS_EPOCH = WS_FLAG + 128 * 2560 + 64
SWS = 44
SC = " sc1"
TAG = 30
SLOT = 36864
L_WP = 147456
L_Z = L_WP + 8192
L_SYNC = L_Z + 4096
L_V = 128 * 336
L_WOB = 69632
L_OT = 65536
CV_LDS = 8768
L_QCV = 3 * SLOT
B_PRE = 8 * CV_LDS
B_MB = B_PRE + 5 * 8320


class Opt:
    rot = True
    LA = 2
    nt_s = " nt"
    codepf = True
    wopf = "no"
    osc = " sc1 nt"
    oscb = " sc1 nt"
    hp = 0
    wthr = 0
    wstr = 40960
    wback = False
    ldw = SC
    ldo = SC
    ldp = SC
    touch = 0
    tsh = 20
    only = None
    fwat = 8
    par = 0x32
    wearly = 8
    wrot = False
    wfirst = 40
    bdelay = 0
    qdel = 0
    snake = False
    hpsel = "kv"
    oahead = 5
    gpf2 = 3
    hdef = 1
    R = 10
    wos = 1
    lite = False
    dflag = False
    prog = True
    fwarm = True
    qwait = True
    lidle = False
    bpos = 4
    fake16 = False
    qdelay = 0
    rotA = 0x5050
    rotB = 0x550050
    gpf = 0
    gpfd = 99
    rt = False
    ppoll = False
    womall = True
    probe = None
    dA = 0
    hold = 0
    holdwg = -1
    dB = 0
    psleep = 2


_stamp0 = stamp


def stamp(A, k, real=False):
    if Opt.hp:
        if k == Opt.hp:
            A("s_memrealtime s[64:65]")
        return
    if Opt.lite and k not in (0, 15):
        return
    if Opt.only and k not in Opt.only:
        return
    _stamp0(A, k, real or Opt.rt)


def end_wave(A, holdable=False):
    if Opt.hp:
        if (holdable is True and Opt.hpsel in ("kv", "qw")) or (holdable == "b" and Opt.hpsel in ("b", "qs")):
            L = A.newlabel("L_hp")
            A("s_cmp_lt_u32 s99, 8")
            A("s_cbranch_scc1 L_exit" if Opt.hpsel in ("kv", "b") else "s_cbranch_scc0 L_exit")
            if holdable == "b":
                A("s_cmp_lt_u32 s100, 4")
                A("s_cbranch_scc1 L_exit")
            A.label(L)
            A("s_sleep 4")
            A("s_memrealtime s[66:67]")
            A("s_waitcnt lgkmcnt(0)")
            A("s_sub_u32 s66, s66, s64")
            A("s_cmp_lt_u32 s66, 2000")
            A(f"s_cbranch_scc1 {L}")
    elif Ctx.stamps:
        stamp(A, 15, True)
        A("s_waitcnt lgkmcnt(0)")
        A("s_mov_b64 exec, -1")
        A("v_mov_b32 v2, 0")
        for k in ((0, 15) if Opt.lite else range(16)):
            A(f"v_writelane_b32 v2, s{64+2*k}, {k}")
        A("s_lshl_b32 s62, s2, 3")
        A("s_add_u32 s62, s62, s100")
        A("s_lshl_b32 s62, s62, 6")
        A(f"s_add_u32 s62, s62, {WS_STAMP:#x}")
        A("v_lshlrev_b32 v1, 2, v1")
        A("s_mov_b64 exec, 0xffff")
        A(f"buffer_store_dword v2, v1, s[{SWS}:{SWS+3}], s62 offen")
        if Opt.probe:
            Lp = A.newlabel("L_probe")
            A(f"s_cmp_eq_u32 s2, {Opt.probe[0]}")
            A(f"s_cbranch_scc0 {Lp}")
            A(f"s_cmp_eq_u32 s100, {Opt.probe[1]}")
            A(f"s_cbranch_scc0 {Lp}")
            A("v_subrev_u32 v3, s66, v2")
            A("s_sub_u32 s62, s94, s64")
            A("v_writelane_b32 v3, s62, 15")
            A("v_cmp_ne_u32 vcc, 0, v2")
            A("v_cndmask_b32 v3, 0, v3, vcc")
            A("s_mov_b64 exec, 0xfffc")
            A(f"global_store_dword v1, v3, s[{S_DBG}:{S_DBG+1}]")
            A.label(Lp)
    A("s_endpgm")


def stampw(A, k):
    stamp(A, k)
    if Ctx.stamps:
        A("s_waitcnt lgkmcnt(0)")


def poll(A, vt, voff, soff, sleep=1):
    L, Ld = A.newlabel("L_poll"), A.newlabel("L_polld")
    A("s_movk_i32 s101, 0x4000")
    A.label(L)
    A(f"buffer_load_dwordx2 {vr(vt,2)}, v{voff}, s[{SWS}:{SWS+3}], {soff} offen{SC}")
    A("s_waitcnt vmcnt(0)")
    A(f"v_cmp_eq_u64 vcc, s[{TAG}:{TAG+1}], {vr(vt,2)}")
    A("s_cmp_eq_u64 vcc, -1")
    A(f"s_cbranch_scc1 {Ld}")
    A(f"s_sleep {sleep}")
    A("s_sub_u32 s101, s101, 1")
    A("s_cmp_eq_u32 s101, 0")
    A(f"s_cbranch_scc0 {L}")
    A("s_endpgm")
    A.label(Ld)


def ppoll(A, vt, voff, soff, sleep=1, depth=4):
    if not Opt.ppoll:
        return poll(A, vt, voff, soff, sleep=sleep)
    L, Ld = A.newlabel("L_pp"), A.newlabel("L_ppd")
    ld = lambda k: f"buffer_load_dwordx2 {vr(vt+2*k,2)}, v{voff}, s[{SWS}:{SWS+3}], {soff} offen{SC}"
    A("s_movk_i32 s101, 0x4000")
    for k in range(depth - 1):
        A(ld(k))
        A(f"s_sleep {sleep}")
    A.label(L)
    for k in range(depth):
        A(ld((k + depth - 1) % depth))
        A(f"s_waitcnt vmcnt({depth-1})")
        A(f"v_cmp_eq_u64 vcc, s[{TAG}:{TAG+1}], {vr(vt+2*k,2)}")
        A("s_cmp_eq_u64 vcc, -1")
        A(f"s_cbranch_scc1 {Ld}")
        A(f"s_sleep {sleep}")
    A("s_sub_u32 s101, s101, 1")
    A("s_cmp_eq_u32 s101, 0")
    A(f"s_cbranch_scc0 {L}")
    A("s_endpgm")
    A.label(Ld)


def set_flag(A, vt, soff):
    A(f"v_mov_b32 v{vt}, s{TAG}")
    A(f"v_mov_b32 v{vt+1}, s{TAG+1}")
    A(f"v_lshlrev_b32 v{vt+2}, 3, v1")
    A("s_waitcnt vmcnt(0)")
    A("s_mov_b64 exec, 0xffff")
    A(f"buffer_store_dwordx2 {vr(vt,2)}, v{vt+2}, s[{SWS}:{SWS+3}], {soff} offen{SC}")
    A("s_mov_b64 exec, -1")


def tag_issue(A):
    A(f"s_load_dwordx2 s[{TAG}:{TAG+1}], s[{S_DBG}:{S_DBG+1}], 0")


def tag_check(A, vt):
    L, Ld = A.newlabel("L_hs"), A.newlabel("L_hsd")
    A("s_waitcnt lgkmcnt(0)")
    A(f"s_cmp_lg_u32 s{TAG}, s{TAG+1}")
    A(f"s_cbranch_scc1 {Ld}")
    A("s_movk_i32 s101, 0x4000")
    A(f"v_mov_b32 v{vt+2}, 0")
    A.label(L)
    A(f"global_load_dwordx2 {vr(vt,2)}, v{vt+2}, s[{S_DBG}:{S_DBG+1}]{SC}")
    A("s_waitcnt vmcnt(0)")
    A(f"v_readfirstlane_b32 s{TAG}, v{vt}")
    A(f"v_readfirstlane_b32 s{TAG+1}, v{vt+1}")
    A("s_nop 3")
    A(f"s_cmp_lg_u32 s{TAG}, s{TAG+1}")
    A(f"s_cbranch_scc1 {Ld}")
    A("s_sleep 8")
    A("s_sub_u32 s101, s101, 1")
    A("s_cmp_eq_u32 s101, 0")
    A(f"s_cbranch_scc0 {L}")
    A("s_endpgm")
    A.label(Ld)


def lds_arrive(A, vt, addr):
    A(f"v_mov_b32 v{vt}, {addr}")
    A(f"v_mov_b32 v{vt+1}, 1")
    A("s_waitcnt lgkmcnt(0)")
    A("s_mov_b64 exec, 1")
    A(f"ds_add_u32 v{vt}, v{vt+1}")
    A("s_mov_b64 exec, -1")


def lds_wait(A, vt, addr, n, sleep=0):
    L, Ld = A.newlabel("L_lw"), A.newlabel("L_lwd")
    if addr is not None:
        A(f"v_mov_b32 v{vt}, {addr}")
    A("s_mov_b32 s101, 0x40000")
    A.label(L)
    A(f"ds_read_b32 v{vt+1}, v{vt}")
    A("s_waitcnt lgkmcnt(0)")
    A(f"v_cmp_le_u32 vcc, {n}, v{vt+1}")
    A(f"s_cbranch_vccnz {Ld}")
    if sleep:
        A(f"s_sleep {sleep}")
    A("s_sub_u32 s101, s101, 1")
    A("s_cmp_eq_u32 s101, 0")
    A(f"s_cbranch_scc0 {L}")
    A("s_endpgm")
    A.label(Ld)


class Lgkm:
    def __init__(self, A):
        self.A, self.n, self.done, self.tag = A, 0, 0, {}

    def issue(self, text, tag=None):
        self.A(text)
        self.n += 1
        if tag is not None:
            self.tag[tag] = self.n

    def wait(self, *tags):
        need = max(self.tag[t] for t in tags)
        if need > self.done:
            self.A(f"s_waitcnt lgkmcnt({min(15, self.n - need)})")
            self.done = max(need, self.n - 15)

    def all(self):
        if self.done < self.n:
            self.A("s_waitcnt lgkmcnt(0)")
            self.done = self.n


def softmax_parts(X, E, F, T, PH):
    mx, mn = T, T + 2
    mm = [f"v_max3_f32 v{mx}, v{X}, v{X+1}, v{X+2}", f"v_min3_f32 v{mn}, v{X}, v{X+1}, v{X+2}"]
    for i in range(3, 19, 2):
        mm += [f"v_max3_f32 v{mx}, v{mx}, v{X+i}, v{X+i+1}", f"v_min3_f32 v{mn}, v{mn}, v{X+i}, v{X+i+1}"]
    mm += [f"v_max_f32 v{mx}, v{mx}, v{X+19}", f"v_min_f32 v{mn}, v{mn}, v{X+19}",
           f"v_mul_f32 v{mx}, s60, v{mx}", f"v_mul_f32 v{mn}, s60, v{mn}"]
    fm, ex = [], []
    for i in range(0, 20, 2):
        fm.append(f"v_pk_fma_f32 {vr(E+i,2)}, {vr(X+i,2)}, s[60:61], {vr(mx,2)} op_sel_hi:[1,1,0] neg_lo:[0,0,1] neg_hi:[0,0,1]")
        fm.append(f"v_pk_fma_f32 {vr(F+i,2)}, {vr(X+i,2)}, s[60:61], {vr(mn,2)} op_sel_hi:[1,1,0] neg_lo:[1,0,0] neg_hi:[1,0,0]")
    for i in range(20):
        ex += [f"v_exp_f32 v{E+i}, v{E+i}", f"v_exp_f32 v{F+i}, v{F+i}"]
    se, sf = T + 4, T + 6
    sm = [f"v_pk_add_f32 {vr(se,2)}, {vr(E,2)}, {vr(E+2,2)}", f"v_pk_add_f32 {vr(sf,2)}, {vr(F,2)}, {vr(F+2,2)}"]
    for i in range(4, 20, 2):
        sm += [f"v_pk_add_f32 {vr(se,2)}, {vr(se,2)}, {vr(E+i,2)}", f"v_pk_add_f32 {vr(sf,2)}, {vr(sf,2)}, {vr(F+i,2)}"]
    fin = [f"v_add_f32 v{se}, v{se}, v{se+1}", f"v_add_f32 v{sf}, v{sf}, v{sf+1}",
           f"v_rcp_f32 v{se}, v{se}", f"v_rcp_f32 v{sf}, v{sf}"]
    tail = []
    for j in range(20):
        R, s_ = (E + 2 * j, se) if j < 10 else (F + 2 * (j - 10), sf)
        tail.append((f"v_pk_mul_f32 {vr(R,2)}, {vr(R,2)}, {vr(s_,2)} op_sel_hi:[1,0]", f"v_cvt_pk_bf16_f32 v{PH+j}, v{R}, v{R+1}"))
    return mm, fm, ex, sm, fin, tail


def merge(main, extra, every, start=0):
    out, extra = [], list(extra)
    for i, x in enumerate(main):
        out.append(x)
        if extra and i >= start and (i - start) % every == every - 1:
            out.append(extra.pop(0))
    return out + extra


def touch(A, v, sd, shift):
    A(f"v_lshlrev_b32 v{v}, {shift}, v1")
    A(f"buffer_load_dword v{v+1}, v{v}, s[{SWS}:{SWS+3}], 0 offen")
    srd(A, sd, S_OUT, NB_OUT)
    A(f"buffer_load_dword v{v+2}, v{v}, s[{sd}:{sd+3}], 0 offen")


def o_index(A):
    A("s_sub_u32 s63, s99, 8")
    A("s_lshr_b32 s62, s63, 2")
    A("s_lshl_b32 s3, s98, 2")
    A("s_add_u32 s62, s62, s3")
    A("s_and_b32 s63, s63, 3")
    A("s_lshl_b32 s63, s63, 2")
    A("s_add_u32 s63, s63, s48")


WR = 64


def wo_index(A):
    A("s_lshr_b32 s50, s99, 2")
    A("s_sub_u32 s50, s50, 1")
    A("s_max_i32 s50, s50, 0")
    A("s_lshl_b32 s50, s50, 2")
    A("s_add_u32 s50, s50, s48")
    A("s_lshl_b32 s52, s50, 6")
    A(f"s_mul_i32 s51, s50, {Opt.wstr}")
    A(f"s_add_u32 s51, s51, {WS_WOT:#x}")
    A("s_lshl_b32 s54, s50, 10")
    A(f"s_add_u32 s54, s54, {FW:#x}")
    A("v_lshlrev_b32 v18, 4, v1")


def wload(A, f0, f1):
    for f in range(f0, f1):
        if Opt.wthr and f >= Opt.wearly + 2:
            A(f"s_waitcnt vmcnt({Opt.wthr-1})")
        if f % 4 == 0 or f == f0:
            A(f"s_add_u32 s53, s51, {4096*(f//4)}")
        A(f"buffer_load_dwordx4 {vr(WR+4*f,4)}, v18, s[{SWS}:{SWS+3}], s53 offen offset:{1024*(f&3)}{Opt.ldw}")


def role_loader(A):
    SX, SW, SP = 32, 36, 40
    VX, VW = 24, 28
    t0, t1, t2, t3 = 11, 12, 13, 14
    A("s_setprio 1")
    A(f"v_lshrrev_b32 v{t0}, 3, v1")
    A(f"v_mul_u32_u24 v{t0}, 1280, v{t0}")
    A(f"v_lshrrev_b32 v{t1}, 4, v1")
    A(f"v_and_b32 v{t2}, 7, v1")
    A(f"v_xor_b32 v{t1}, v{t1}, v{t2}")
    A(f"v_xor_b32 v{t2}, 4, v{t1}")
    A(f"v_lshl_add_u32 v{VX}, v{t1}, 4, v{t0}")
    A(f"v_lshl_add_u32 v{VX+1}, v{t2}, 4, v{t0}")
    A(f"v_add_u32 v{VX+2}, {2*(8*1280-1024)}, v{VX}")
    A(f"v_add_u32 v{VX+3}, {3*(8*1280-1024)}, v{VX+1}")
    A(f"v_add_u32 v{VX+1}, {8*1280-1024}, v{VX+1}")
    A("s_lshl_b32 s60, s49, 2")
    A("s_add_u32 s60, s60, s48")
    A(f"s_mul_i32 s60, s60, {32*1280}")
    A("s_lshr_b32 s30, s99, 2")
    A(f"s_lshr_b32 s30, {Opt.par:#x}, s30")
    A("s_xor_b32 s30, s30, s49")
    A("s_and_b32 s30, s30, 1")
    A("s_mul_i32 s31, s30, 640")
    A("s_add_u32 s60, s60, s31")
    A("s_lshl_b32 s62, s48, 12")
    A("s_mov_b32 m0, s62")
    A(f"s_mov_b32 s{SX+2}, {NB_X:#x}")
    A(f"s_mov_b32 s{SX+3}, 0x20000")
    A("s_waitcnt lgkmcnt(0)")
    A(f"s_mov_b64 s[{SX}:{SX+1}], s[{S_X}:{S_X+1}]")

    def dma_x(s):
        if s:
            A(f"s_add_u32 m0, s62, {(s % 3) * SLOT}")
        for i in range(4):
            A(f"buffer_load_dwordx4 v{VX+i}, s[{SX}:{SX+3}], s60 offen offset:{1024*i} lds")

    def dma_w(s):
        sl = (s % 3) * SLOT
        A(f"s_add_u32 m0, s63, {sl}")
        for i in range(4):
            A(f"buffer_load_dwordx4 v{VW+i}, s[{SW}:{SW+3}], s61 offen offset:{1024*i} lds")
        A(f"s_add_u32 m0, s63, {sl+4096}")
        A(f"buffer_load_dwordx4 v{VW+4}, s[{SW}:{SW+3}], s61 offen lds")
        if s < 9:
            if s == 4:
                A("s_add_u32 s60, s60, s97")
                A("s_add_u32 s61, s61, s96")
            else:
                A("s_add_u32 s60, s60, 128")
                A(f"s_add_u32 s61, s61, {64*3840}")

    dma_x(0)
    A("s_cmp_eq_u32 s51, 0")
    A("s_cselect_b32 s56, 1120, 0")
    A("s_add_u32 s58, s51, 1")
    A(f"v_xor_b32 v15, s58, v1")
    A(f"v_cmp_gt_u32 vcc, 32, v1")
    A("s_movk_i32 s57, 3520")
    A(f"v_cndmask_b32 v16, v15, v1, vcc")
    for i in range(5):
        src = (1, 1, 16, 15, 15)[i]
        A(f"v_add_u32 v{t2}, {64*i}, v{src}")
        A(f"v_mul_u32_u24 v{t2}, 6554, v{t2}")
        A(f"v_lshlrev_b32 v{t3}, 4, v{src}")
        A(f"v_lshrrev_b32 v{t0}, 17, v{t2}")
        A(f"v_bfe_u32 v{t1}, v{t2}, 16, 1")
        A(f"v_mad_u32_u24 v{t0}, v{t0}, s57, v{t3}")
        A(f"v_mad_u32_u24 v{VW+i}, v{t1}, s56, v{t0}")
    A(f"v_lshlrev_b32 v{t3}, 4, v1")
    A(f"v_add_u32 v{VW+4}, 4096, v{VW+4}")
    A(f"s_mul_i32 s61, s48, {16*3840}")
    A("s_mul_i32 s57, s50, 160")
    A("s_add_u32 s58, s57, 1280")
    A("s_lshl_b32 s57, s57, 1")
    A("s_cmp_eq_u32 s51, 0")
    A("s_cselect_b32 s57, s58, s57")
    A("s_add_u32 s61, s61, s57")
    A(f"s_mul_i32 s96, s30, {5*64*3840}")
    A("s_add_u32 s61, s61, s96")
    A("s_mul_i32 s63, s48, 5120")
    A("s_add_u32 s63, s63, 16384")
    srd(A, SW, S_W, NB_W)
    dma_w(0)
    stamp(A, 2)
    A("s_lshl_b32 s96, s96, 1")
    A(f"s_sub_u32 s96, {64*3840}, s96")
    A("s_lshl_b32 s97, s31, 1")
    A("s_sub_u32 s97, 128, s97")
    A("s_mul_i32 s57, s50, 3200")
    A("s_lshl_b32 s57, s57, s51")
    A("s_lshl_b32 s58, s48, 11")
    A("s_add_u32 s57, s57, s58")
    srd(A, SP, S_WPHI, NB_WPHI)
    A(f"s_add_u32 m0, s58, {L_WP}")
    A(f"buffer_load_dwordx4 v{t3}, s[{SP}:{SP+3}], s57 offen lds")
    A(f"buffer_load_dwordx4 v{t3}, s[{SP}:{SP+3}], s57 offen offset:1024 lds")
    srd(A, SWS, S_WS, WS_SIZE)
    Lh = A.newlabel("L_noh")
    A("s_cmp_eq_u32 s51, 0")
    A(f"s_cbranch_scc1 {Lh}")
    A("s_mul_i32 s49, s98, 80")
    A("s_lshl_b32 s50, s99, 2")
    A("s_add_u32 s49, s49, s50")
    A("s_add_u32 s49, s49, s48")
    A("s_add_u32 s49, s49, 48")
    A(f"s_mul_i32 s56, s48, {CV_LDS}")
    A(f"s_add_u32 s56, s56, {L_QCV}")
    A("s_lshl_b32 s50, s49, 12")
    A.label(Lh)
    assert Opt.LA == 2
    issued = 0
    for s in range(10):
        while issued < min(s + Opt.LA - 1, 9):
            issued += 1
            dma_x(issued)
            dma_w(issued)
        if s == 0:
            Ls = A.newlabel("L_nosetup")
            A("s_cmp_ge_u32 s99, 8")
            A(f"s_cbranch_scc1 {Ls}")
            conv_setup(A)
            f0_lines(A, 49, 49, 12)
            A.label(Ls)
        if s == 6:
            tag_issue(A)
        if s == Opt.fwat:
            Lf = A.newlabel("L_nofw")
            A("s_cmp_lt_u32 s99, 8")
            A(f"s_cbranch_scc1 {Lf}")
            wo_index(A)
            A(f"s_add_u32 s42, s{S_WS}, s54")
            A(f"s_addc_u32 s43, s{S_WS+1}, 0")
            for k in range(8):
                A(f"s_load_dwordx2 s[{4+2*k}:{5+2*k}], s[42:43], {128*k}")
            A.label(Lf)
        if s == 9:
            A("s_cmp_lt_u32 s99, 8")
            A("s_cbranch_scc1 L_q9")
            A("s_waitcnt lgkmcnt(0)")
            A("s_mov_b32 s3, 0")
            for k in range(8):
                A(f"s_cmp_eq_u64 s[{4+2*k}:{5+2*k}], s[{TAG}:{TAG+1}]")
                A("s_addc_u32 s3, s3, 0")
            A(f"s_cmp_lg_u32 s{TAG}, s{TAG+1}")
            A("s_addc_u32 s3, s3, 0")
            A("s_cmp_eq_u32 s3, 9")
            A("s_cbranch_scc0 L_q9")
            wload(A, 0, Opt.wearly)
            A(f"s_waitcnt vmcnt({Opt.wearly})")
            A("s_barrier")
            stamp(A, 6)
            wload(A, Opt.wearly, Opt.wearly + 2)
            A("s_barrier")
            A("s_setprio 0")
            A("s_branch L_wrest")
            A.label("L_q9")
        A(f"s_waitcnt vmcnt({9*(issued-s)})")
        A("s_barrier")
        if s in (0, 3, 6, 9):
            stamp(A, 3 + s // 3)
    A("s_setprio 0")
    A("s_cmp_lt_u32 s99, 8")
    A("s_cbranch_scc1 L_conv")
    role_wo(A)


def role_wo(A):
    SO, SWO = 32, 36
    A.label("L_wo")
    wo_index(A)
    A("v_lshrrev_b32 v15, 3, v1")
    A("v_lshlrev_b32 v15, 7, v15")
    A("v_lshlrev_b32 v18, 4, v1")
    tag_check(A, 20)
    A(f"buffer_load_dwordx2 v[16:17], v15, s[{SWS}:{SWS+3}], s54 offen{SC}")
    Lj, Lk = A.newlabel("L_woj"), A.newlabel("L_wok")
    A("s_cmp_lt_u32 s99, 8")
    A(f"s_cbranch_scc1 {Lj}")
    A("s_barrier")
    A.label(Lj)
    A("s_waitcnt vmcnt(0)")
    A(f"v_cmp_eq_u64 vcc, s[{TAG}:{TAG+1}], v[16:17]")
    A("s_cmp_eq_u64 vcc, -1")
    A(f"s_cbranch_scc1 {Lk}")
    poll(A, 16, 15, "s54", sleep=8)
    A.label(Lk)

    wload(A, 0, Opt.wearly + 2)
    A.label("L_wrest")
    wload(A, Opt.wearly + 2, Opt.wfirst)
    A("v_lshrrev_b32 v2, 2, v1")
    A("v_and_b32 v3, 3, v1")
    A("s_mul_i32 s53, s48, 20480")
    A(f"s_add_u32 s53, s53, {L_WOB}")
    A("v_lshrrev_b32 v11, 5, v1")
    A("v_and_b32 v9, 31, v1")
    A("v_lshrrev_b32 v15, 4, v1")
    A("v_lshlrev_b32 v15, 7, v15")
    o_index(A)
    Lq1, Lq2 = A.newlabel("L_woq"), A.newlabel("L_woq")
    A("s_cmp_lt_u32 s99, 8")
    A(f"s_cbranch_scc1 {Lq2}")
    A("s_lshr_b32 s54, s62, 2")
    A("s_lshl_b32 s54, s54, 4")
    A("s_add_u32 s54, s54, s63")
    A("s_lshl_b32 s54, s54, 8")
    A("v_lshlrev_b32 v19, 7, v11")
    A(f"s_add_u32 s54, s54, {F2:#x}")
    A("s_lshl_b32 s55, s62, 4")
    A("s_add_u32 s55, s55, s63")
    A("s_mul_i32 s55, s55, 5120")
    poll(A, 16, 19, "s54", sleep=4)
    A("s_mov_b32 m0, s53")
    A("s_add_u32 s54, s55, 4096")
    for i in range(4):
        A(f"buffer_load_dwordx4 v18, s[{SWS}:{SWS+3}], s55 offen offset:{1024*i}{SC} lds")
    A("s_add_u32 m0, s53, 4096")
    A(f"buffer_load_dwordx4 v18, s[{SWS}:{SWS+3}], s54 offen{SC} lds")
    A("s_lshl_b32 s54, s48, 2")
    A(f"s_add_u32 s54, s54, {L_SYNC+16}")
    A("s_waitcnt vmcnt(0)")
    lds_arrive(A, 16, "s54")
    stamp(A, 14)
    A("s_lshl_b32 s54, s62, 2")
    A("s_add_u32 s54, s54, s48")
    A("s_mul_i32 s55, s54, 10240")
    A(f"s_add_u32 s55, s55, {WS_PART:#x}")
    A("s_lshl_b32 s54, s54, 9")
    A(f"s_add_u32 s54, s54, {F1:#x}")
    A("v_min_u32 v19, 20, v9")
    A("v_and_b32 v20, 32, v1")
    A("v_add_u32 v19, v19, v20")
    A("v_lshlrev_b32 v20, 3, v19")
    A("v_lshlrev_b32 v19, 4, v19")
    A("s_mul_i32 s57, s48, 5120")
    A("v_add_u32 v21, s57, v18")
    A("s_mov_b32 s59, 0xffff0000")
    lds_wait(A, 16, L_SYNC + 4, 4, sleep=2)
    stamp(A, 7)
    PR = [24, 34, 44, 54]
    SM, TP = 224, 244

    def pload(p):
        so = "s55" if p < 1 else f"s{40+p}"
        A(f"buffer_load_dwordx4 {vr(PR[p],4)}, v19, s[{SWS}:{SWS+3}], {so} offen{Opt.ldp}")
        A(f"buffer_load_dwordx4 {vr(PR[p]+4,4)}, v19, s[{SWS}:{SWS+3}], {so} offen offset:1024{Opt.ldp}")
        A(f"buffer_load_dwordx2 {vr(PR[p]+8,2)}, v20, s[{SWS}:{SWS+3}], {so} offen offset:2048{Opt.ldp}")

    for p in (1, 2, 3):
        A(f"s_add_u32 s{40+p}, s55, {2560*p}")
    if Opt.prog:
        L, Ld = A.newlabel("L_pg"), A.newlabel("L_pgd")
        A("s_mov_b64 s[56:57], 0")
        A("s_movk_i32 s101, 0x4000")
        A.label(L)
        A(f"buffer_load_dwordx2 v[16:17], v15, s[{SWS}:{SWS+3}], s54 offen{SC}")
        A("s_waitcnt vmcnt(0)")
        A(f"v_cmp_eq_u64 vcc, s[{TAG}:{TAG+1}], v[16:17]")
        A("s_andn2_b64 s[50:51], vcc, s[56:57]" if False else "s_andn2_b64 s[96:97], vcc, s[56:57]")
        A("s_mov_b64 s[56:57], vcc")
        for p in range(4):
            Ls = A.newlabel("L_pgs")
            A(f"s_bitcmp1_b64 s[96:97], {16*p}")
            A(f"s_cbranch_scc0 {Ls}")
            pload(p)
            A.label(Ls)
        A("s_cmp_eq_u64 s[56:57], -1")
        A(f"s_cbranch_scc1 {Ld}")
        A(f"s_sleep {Opt.psleep}")
        A("s_sub_u32 s101, s101, 1")
        A(f"s_cbranch_scc0 {L}")
        A("s_endpgm")
        A.label(Ld)
        stamp(A, 12)
        A("s_waitcnt vmcnt(0)")
    else:
        ppoll(A, 244, 15, "s54", sleep=Opt.psleep)
        stamp(A, 12)
        for p in range(4):
            pload(p)
    A("s_setprio 3")
    for p in range(4):
        A(f"s_waitcnt vmcnt({9-3*p})")
        for i in range(10):
            d = SM + 2 * i if p == 0 else TP + 2 * (i % 5)
            A(f"v_lshlrev_b32 v{d}, 16, v{PR[p]+i}")
            A(f"v_and_b32 v{d+1}, s59, v{PR[p]+i}")
            if p:
                A(f"v_pk_add_f32 {vr(SM+2*i,2)}, {vr(SM+2*i,2)}, {vr(d,2)}")
    for q in range(5):
        A(f"ds_write_b128 v21, {vr(SM+4*q,4)} offset:{1024*q}")
    lds_arrive(A, 16, L_SYNC + 8)
    A("s_setprio 0")
    stamp(A, 13)
    A.label(Lq2)
    wload(A, Opt.wfirst, 40)
    srd(A, SO, S_OUT, NB_OUT)
    A("s_and_b32 s54, s99, 3")
    A("s_lshl_b32 s55, s98, 2")
    A("s_add_u32 s54, s54, s55")
    A("s_lshr_b32 s55, s54, 1")
    A("s_lshl_b32 s55, s55, 12")
    A(f"s_add_u32 s55, s55, {F3:#x}")
    A("s_lshl_b32 s57, s48, 10")
    A("s_add_u32 s55, s55, s57")
    A("v_lshrrev_b32 v15, 3, v1")
    A("v_lshlrev_b32 v15, 7, v15")
    A("s_mul_i32 s57, s54, 81920")
    A(f"s_add_u32 s57, s57, {WS_O:#x}")
    A("s_lshr_b32 s58, s48, 1")
    A("s_mul_i32 s58, s58, 40960")
    A("s_and_b32 s59, s48, 1")
    A("s_lshl_b32 s59, s59, 12")
    A("s_add_u32 s58, s58, s59")
    A("s_add_u32 s57, s57, s58")
    A(f"s_add_u32 s58, s58, {L_OT}")
    A("v_mov_b32 v5, v18")
    A(f"v_add_u32 v6, {L_OT}, v5")
    A(f"v_add_u32 v7, {L_OT+40960}, v5")
    A("v_lshlrev_b32 v10, 3, v9")
    A("v_lshl_add_u32 v10, v11, 9, v10")
    A(f"v_add_u32 v10, {L_OT+32768}, v10")
    A("s_mul_i32 s56, s48, 5120")
    A("s_waitcnt lgkmcnt(0)")
    A("v_mul_u32_u24 v12, 80, v9")
    A("v_lshl_add_u32 v12, v11, 5, v12")
    A("v_add_u32 v12, s56, v12")
    A("v_mul_u32_u24 v13, 80, v2")
    A("v_lshl_add_u32 v13, v3, 4, v13")
    A("v_add_u32 v13, s56, v13")
    A("v_mul_u32_u24 v14, 2560, v2")
    A("v_lshl_add_u32 v14, v3, 4, v14")
    A(f"s_mul_i32 s59, s54, {64*2560}")
    A("s_add_u32 s59, s59, s52")
    lds_wait(A, 16, L_SYNC + 12, 4, sleep=2)
    stamp(A, 8)
    ppoll(A, 48, 15, "s55", sleep=Opt.psleep)
    A("s_barrier")
    stamp(A, 9)
    def oissue(k):
        A(f"s_add_u32 m0, s58, {8192*k}")
        for i in range(4):
            A(f"buffer_load_dwordx4 v5, s[{SWS}:{SWS+3}], s57 offen offset:{1024*i}{Opt.ldo} lds")
        if k < 4:
            A("s_add_u32 s57, s57, 8192")

    for k in range(Opt.oahead):
        oissue(k)
    if Ctx.stamps:
        A("s_waitcnt lgkmcnt(0)")
    ACC = (16, 32)
    OFB = 224
    T = Lgkm(A)

    def rdx(f):
        if f % 8 == 0:
            k = f // 8
            A(f"s_waitcnt vmcnt({4*(min(k+Opt.oahead,5)-k-1)})")
            A("s_barrier")
            if k + Opt.oahead < 5:
                oissue(k + Opt.oahead)
        for t in range(2):
            d = OFB + 4 * ((2 * f + t) % 8)
            if f < 32:
                T.issue(f"ds_read_b128 {vr(d,4)}, v{6+t} offset:{1024*f}", (f, t))
            else:
                a = f - 32
                T.issue(f"ds_read_b64 {vr(d,2)}, v10 offset:{40960*t + 1024*a}")
                T.issue(f"ds_read_b64 {vr(d+2,2)}, v10 offset:{40960*t + 1024*a + 256}", (f, t))

    for f in range(3):
        rdx(f)
    for f in range(40):
        for t in range(2):
            T.wait((f, t))
            c = vr(ACC[t], 16) if f else "0"
            A(f"v_mfma_f32_32x32x16_bf16 {vr(ACC[t],16)}, {vr(WR+4*f,4)}, {vr(OFB+4*((2*f+t)%8),4)}, {c}")
            if t == 0 and f + 3 < 40:
                rdx(f + 3)
    stamp(A, 10)
    for t in range(2):
        for i in range(8):
            A(f"v_cvt_pk_bf16_f32 v{48+8*t+i}, v{ACC[t]+2*i}, v{ACC[t]+2*i+1}")
        for i in range(2):
            A(f"ds_write_b128 v12, {vr(48+8*t+4*i,4)} offset:{2560*t+16*i}")
    A("s_waitcnt lgkmcnt(0)")
    for i in range(4):
        A(f"ds_read_b128 {vr(64+4*i,4)}, v13 offset:{1280*i}")
    for i in range(4):
        A(f"s_waitcnt lgkmcnt({3-i})")
        A(f"buffer_store_dwordx4 {vr(64+4*i,4)}, v14, s[{SO}:{SO+3}], s59 offen{Opt.osc}")
        if i < 3:
            A(f"s_add_u32 s59, s59, {16*2560}")
    stamp(A, 11)
    end_wave(A, True)


def role_compute(A):
    ACC = 16
    WF = (96, 116)
    XF = (136, 152)
    XA, WA, AD = 168, 172, 182
    t0, t1, t2, t3 = 11, 12, 13, 14
    for i in range(80):
        A(f"v_mov_b32 v{ACC+i}, 0")
    A(f"v_and_b32 v{t0}, 255, v0")
    A(f"v_lshlrev_b32 v{t0}, 4, v{t0}")
    A(f"v_add_u32 v{t0}, {L_Z}, v{t0}")
    A(f"ds_write_b128 v{t0}, {vr(ACC,4)}")
    A(f"ds_write_b128 v{t0}, {vr(ACC,4)} offset:64")
    A("s_lshr_b32 s52, s48, 1")
    A("s_and_b32 s53, s48, 1")
    S16, G4, R4, C4 = 183, 184, 185, 186
    A(f"v_and_b32 v{S16}, 15, v1")
    A(f"v_lshrrev_b32 v{G4}, 4, v1")
    A(f"v_bfe_u32 v{R4}, v1, 2, 2")
    A(f"v_and_b32 v{C4}, 3, v1")
    A(f"v_bfe_u32 v{t2}, v1, 1, 3")
    A(f"v_xor_b32 v{t2}, v{t2}, v{G4}")
    A(f"v_lshlrev_b32 v{t2}, 4, v{t2}")
    A(f"v_lshl_add_u32 v{t2}, v{S16}, 7, v{t2}")
    A("s_lshl_b32 s54, s52, 13")
    A(f"v_add_u32 v{XA}, s54, v{t2}")
    A(f"v_xor_b32 v{XA+1}, 64, v{XA}")
    A(f"v_add_u32 v{XA+2}, {2*SLOT}, v{XA}")
    A(f"v_add_u32 v{XA+3}, {2*SLOT}, v{XA+1}")
    A("s_cmp_eq_u32 s51, 0")
    A("s_cselect_b32 s55, 80, 0")
    A("s_mul_i32 s56, s53, 80")
    A("s_lshl_b32 s56, s56, s51")
    A(f"v_lshrrev_b32 v{t0}, 1, v{C4}")
    A(f"v_mul_u32_u24 v{t0}, s55, v{t0}")
    A(f"v_mad_u32_u24 v{t0}, v{C4}, 40, v{t0}")
    A(f"v_add_u32 v{t0}, s56, v{t0}")
    A(f"v_and_b32 v{t1}, 1, v{G4}")
    A("s_add_u32 s57, s51, 4")
    A(f"v_lshlrev_b32 v{t1}, s57, v{t1}")
    A(f"v_lshl_add_u32 v{t2}, v{G4}, 3, v{R4}")
    A(f"v_mul_u32_u24 v{t2}, 320, v{t2}")
    A(f"v_add_u32 v{t2}, 16384, v{t2}")
    for t in range(5):
        A(f"v_add_u32 v{t3}, {8*t}, v{t0}")
        A(f"v_xor_b32 v{t3}, v{t3}, v{t1}")
        A(f"v_add_u32 v{WA+t}, v{t2}, v{t3}")
        A(f"v_add_u32 v{WA+5+t}, {2*SLOT}, v{WA+t}")
    HD = 187
    A("s_cmp_eq_u32 s51, 0")
    A("s_cselect_b32 s55, 1, 3")
    A("s_add_u32 s57, s51, 1")
    A("s_lshl_b32 s56, s53, s57")
    A(f"v_and_b32 v{HD}, s55, v{G4}")
    A(f"v_add_u32 v{HD}, s56, v{HD}")
    A(f"v_mul_u32_u24 v{t0}, 800, v{HD}")
    A(f"v_mad_u32_u24 v{t0}, v{R4}, 40, v{t0}")
    A(f"v_add_u32 v{t0}, {L_WP}, v{t0}")
    A(f"v_mov_b32 v{t1}, {L_Z}")
    A(f"v_cmp_eq_u32 vcc, v{C4}, v{G4}")
    A(f"v_cndmask_b32 v{AD}, v{t1}, v{t0}, vcc")
    A(f"v_lshrrev_b32 v{t0}, 5, v1")
    A(f"v_lshl_add_u32 v{t0}, v{t0}, 4, v{S16}")
    A("s_lshl_b32 s57, s52, 6")
    A(f"v_add_u32 v{t0}, s57, v{t0}")
    A(f"v_mul_u32_u24 v{t1}, 208, v{t0}")
    A(f"v_mad_u32_u24 v2, v{HD}, 48, v{t1}")
    A(f"v_add_u32 v2, {L_V}, v2")
    A(f"v_mul_u32_u24 v{t3}, 80, v{HD}")
    A(f"v_mul_u32_u24 v{t2}, 336, v{t0}")
    A(f"v_add_u32 v3, v{t3}, v{t2}")
    A(f"v_lshrrev_b32 v{t1}, 5, v1")
    A(f"v_lshl_add_u32 v9, v{t1}, 3, v{R4}")
    A(f"v_bfe_u32 v{t2}, v1, 4, 1")
    A(f"v_bfe_u32 v{t3}, v1, 1, 1")
    A(f"v_lshl_add_u32 v10, v{t2}, 1, v{t3}")
    A(f"v_and_b32 v15, 1, v1")
    A(f"v_mul_u32_u24 v{t0}, 336, v9")
    A(f"v_mad_u32_u24 v{t1}, v15, 5, v10")
    A(f"v_lshl_add_u32 v{t0}, v{t1}, 3, v{t0}")
    A("s_mul_i32 s57, s48, 80")
    A(f"v_add_u32 v6, s57, v{t0}")
    A(f"v_lshl_add_u32 v{t0}, v10, 1, v15")
    A("s_mul_i32 s57, s48, 6")
    A(f"v_min_u32 v{t1}, 5, v{t0}")
    A(f"v_add_u32 v{t1}, s57, v{t1}")
    A(f"v_mul_u32_u24 v{t0}, 208, v9")
    A(f"v_lshl_add_u32 v{t0}, v{t1}, 3, v{t0}")
    A(f"v_add_u32 v7, {L_V}, v{t0}")
    WPF = 188
    for tp in range(5):
        A(f"v_mov_b32 v{WPF+12*tp+10}, 0")
        A(f"v_mov_b32 v{WPF+12*tp+11}, 0")
    A(f"s_mov_b32 s60, {LOG2E:#x}")
    A(f"s_mov_b32 s61, {LOG2E:#x}")
    A("s_waitcnt lgkmcnt(0)")
    srd(A, SWS, S_WS, WS_SIZE)
    if Opt.touch & 1:
        Lt = A.newlabel("L_nt")
        A("s_cmp_eq_u32 s48, 0")
        A(f"s_cbranch_scc0 {Lt}")
        touch(A, 248, 32, Opt.tsh)
        A.label(Lt)
    if Opt.fwarm:
        o_index(A)
        A("s_lshl_b32 s54, s62, 2")
        A("s_add_u32 s54, s54, s48")
        A("s_lshl_b32 s54, s54, 2")
        A("s_lshr_b32 s55, s62, 2")
        A("s_lshl_b32 s55, s55, 4")
        A("s_add_u32 s55, s55, s63")
        A("s_lshl_b32 s55, s55, 1")
        A("s_add_u32 s55, s55, 508")
        A("s_and_b32 s56, s99, 2")
        A("s_lshl_b32 s57, s98, 2")
        A("s_add_u32 s56, s56, s57")
        A("s_lshl_b32 s56, s56, 4")
        A("s_lshl_b32 s57, s48, 3")
        A("s_add_u32 s56, s56, s57")
        A("s_add_u32 s56, s56, 1016")
        A(f"v_mov_b32 v{t0}, s54")
        A(f"v_mov_b32 v{t1}, s55")
        A(f"v_mov_b32 v{t2}, s56")
        A("v_cmp_gt_u32 vcc, 16, v1")
        A(f"v_cndmask_b32 v{t1}, v{t1}, v{t0}, vcc")
        A("v_cmp_gt_u32 vcc, 32, v1")
        A(f"v_cndmask_b32 v{t1}, v{t2}, v{t1}, vcc")
        A(f"v_lshrrev_b32 v{t0}, 2, v1")
        A(f"v_add_u32 v{t0}, v{t0}, v{t1}")
        A(f"v_and_b32 v{t0}, 2047, v{t0}")
        A(f"v_lshlrev_b32 v{t0}, 7, v{t0}")
        A(f"s_mov_b32 s54, {WS_FLAG:#x}")
        A(f"buffer_load_dword v4, v{t0}, s[{SWS}:{SWS+3}], s54 offen{SC}")
    A("s_setprio 2")

    T = Lgkm(A)

    def reads(s, ks):
        sl, b = s % 3, ks
        L = []
        for t in range(5):
            for half in range(2):
                L.append((f"ds_read_b64_tr_b16 {vr(WF[b]+4*t+2*half,2)}, v{WA+5*(sl>>1)+t} offset:{(sl&1)*SLOT + (32*ks+4*half)*320}",
                          ("w", s, ks, t) if half else None))
            if t == 0:
                for rho in range(4):
                    L.append((f"ds_read_b128 {vr(XF[b]+4*rho,4)}, v{XA+2*(sl>>1)+ks} offset:{(sl&1)*SLOT + 2048*rho}", ("x", s, ks, rho)))
        return L

    wp = []
    for tp in range(5):
        for dq in range(5):
            wp.append((f"ds_read_b64_tr_b16 {vr(WPF+12*tp+2*dq,2)}, v{AD} offset:{160*dq+8*tp}", None))

    PS = (96, 106, 118, 128)
    E, F, TT_ = 140, 160, 248

    def cvt(rho):
        L = [f"v_cvt_pk_bf16_f32 v{PS[rho]+i}, v{ACC+20*rho+2*i}, v{ACC+20*rho+2*i+1}" for i in range(10)]
        if rho & 1:
            L += [f"v_mov_b32 v{PS[rho]+10}, 0x3f803f80", f"v_mov_b32 v{PS[rho]+11}, 0x3f803f80"]
        return L

    A("s_barrier")
    stampw(A, 3)
    for x, tg in reads(0, 0):
        T.issue(x, tg)
    early = cvt(0) + cvt(1)
    for s in range(10):
        for ks in range(2):
            last = (s == 9 and ks == 1)
            nxt = [] if last else (reads(s, 1) if ks == 0 else reads(s + 1, 0))
            if ks == 0 and s < 5:
                nxt += wp[5 * s:5 * s + 5]
            start = 0 if ks == 0 else Opt.bpos
            for k in range(20):
                t, rho = (k % 5, k // 5) if last else (k // 4, k % 4)
                if Opt.snake and t & 1:
                    rho = 3 - rho
                T.wait(("w", s, ks, t), ("x", s, ks, rho))
                a_ = ACC + 20 * rho + 4 * t
                A(f"v_mfma_f32_16x16x32_bf16 {vr(a_,4)}, {vr(WF[ks]+4*t,4)}, {vr(XF[ks]+4*rho,4)}, {vr(a_,4)}")
                if ks == 1 and k == start:
                    T.all()
                    A("s_barrier")
                if k >= start and nxt:
                    T.issue(*nxt.pop(0))
                if last and k >= 9:
                    for _ in range(2):
                        if early:
                            A(early.pop(0))
            assert not nxt
    stamp(A, 4)
    if Opt.fwarm:
        A("s_waitcnt vmcnt(0)")
    tag_issue(A)
    def phi_mfma(src, acc):
        L = []
        for u in range(3):
            for tp in range(5):
                c = vr(acc + 4 * tp, 4) if u else "0"
                L.append(f"v_mfma_f32_16x16x32_bf16 {vr(acc+4*tp,4)}, {vr(WPF+12*tp+4*u,4)}, {vr(src+4*u,4)}, {c}")
        return L

    def weave(mf, va, per):
        mf, va = list(mf), list(va)
        while mf or va:
            if mf:
                A(mf.pop(0))
            for _ in range(per):
                if va:
                    A(va.pop(0))

    assert not early
    Lq = A.newlabel("L_q")
    A("s_cmp_eq_u32 s51, 0")
    A(f"s_cbranch_scc0 {Lq}")
    mq = A.mark()
    for i in range(10):
        A(f"v_permlane32_swap_b32 v{PS[0]+i}, v{PS[1]+i}")
    weave(phi_mfma(PS[0], ACC), cvt(2) + cvt(3) + [f"v_permlane32_swap_b32 v{PS[2]+i}, v{PS[3]+i}" for i in range(10)], 2)
    vw = [f"ds_write_b128 v2, {vr(PS[1+2*sg]+4*i,4)} offset:{32*208*sg+16*i}" for sg in range(2) for i in range(3)]

    def body(parts):
        mm, fm, ex, sm, fin, tail = parts
        L = fm[:4]
        fm2, sm2 = list(fm[4:]), list(sm)
        for k in range(0, 40, 4):
            L += ex[k:k + 2]
            if fm2:
                L.append(fm2.pop(0))
            L += ex[k + 2:k + 4]
            if fm2:
                L.append(fm2.pop(0))
            if k >= 8:
                L += [sm2.pop(0), sm2.pop(0)]
        return L + sm2 + fin

    def tail_list(tail, wr):
        L = [tail[0][0], tail[1][0]]
        for j in range(20):
            if j + 2 < 20:
                L.append(tail[j + 2][0])
            L.append(tail[j][1])
            if wr and j % 4 == 3:
                L.append(wr[j // 4])
        return L

    s0 = softmax_parts(ACC, E, F, TT_, 56)
    s1 = softmax_parts(ACC + 20, E, F, TT_, 76)
    w0 = [f"ds_write_b128 v3, {vr(56+4*i,4)} offset:{16*i}" for i in range(5)]
    w1 = [f"ds_write_b128 v3, {vr(76+4*i,4)} offset:{32*336+16*i}" for i in range(5)]
    m1 = phi_mfma(PS[2], ACC + 20)
    for x in m1[:4]:
        A(x)
    weave(m1[4:], s0[0], 2)
    stamp(A, 2)
    for x in merge(body(s0), vw, 12) + tail_list(s0[5], w0):
        A(x)
    stamp(A, 13)
    A(f"v_mov_b32 v10, {L_SYNC}")
    A("v_mov_b32 v11, 1")
    A("s_mov_b64 exec, 1")
    A("ds_add_u32 v10, v11 offset:52")
    A("s_mov_b64 exec, -1")
    sal = ["s_lshl_b32 s57, s50, 2", "s_add_u32 s57, s57, s48", "s_lshl_b32 s57, s57, 4", "s_add_u32 s57, s57, s49",
           "s_lshl_b32 s59, s57, 7", f"s_add_u32 s59, s59, {F1:#x}", "s_mul_i32 s57, s57, 2560", f"s_add_u32 s57, s57, {WS_PART:#x}"]
    b1 = body(s1)
    for x in s1[0] + merge(b1[:60], sal, 6) + ["ds_read_b32 v12, v10 offset:52"] + b1[60:]:
        A(x)
    tag_check(A, 14)
    Lok = A.newlabel("L_s0ok")
    A("v_cmp_le_u32 vcc, 4, v12")
    A(f"s_cbranch_vccnz {Lok}")
    lds_wait(A, 12, L_SYNC + 52, 4)
    A.label(Lok)
    for x in tail_list(s1[5], w1):
        A(x)
    A("s_mov_b64 exec, 1")
    A("ds_add_u32 v10, v11")
    A("s_mov_b64 exec, -1")
    stampw(A, 5)
    T = Lgkm(A)
    T.n = 0 if (Ctx.stamps and not Opt.lite and not Opt.hp) else 0
    FAa = {0: 188, 1: 196, 4: 204, 5: 212, 2: 220, 3: 228, 6: 236, 7: 128}
    FBb = {u: 96 + 4 * u for u in range(8)}

    def rdA_(u):
        for half in range(2):
            o = (16 * u + 4 * half)
            T.issue(f"ds_read_b64_tr_b16 {vr(FAa[u]+2*half,2)}, v6 offset:{o*336}")
            T.issue(f"ds_read_b64_tr_b16 {vr(FAa[u]+4+2*half,2)}, v6 offset:{o*336+32}", ("a", u))

    def rdB_(u):
        for half in range(2):
            T.issue(f"ds_read_b64_tr_b16 {vr(FBb[u]+2*half,2)}, v7 offset:{(16*u+4*half)*208}", ("b", u))

    def pm(u, first=False):
        T.wait(("a", u), ("b", u))
        for TT in range(2):
            c = "0" if first else vr(ACC + 16 * TT, 16)
            A(f"v_mfma_f32_32x32x16_bf16 {vr(ACC+16*TT,16)}, {vr(FAa[u]+4*TT,4)}, {vr(FBb[u],4)}, {c}")

    rdB_(0); rdA_(0); rdB_(1); rdA_(1)
    pm(0, True)
    rdB_(4); rdA_(4)
    pm(1)
    rdB_(5); rdA_(5)
    T.issue("ds_read_b32 v12, v10", "c")
    pm(4)
    for u in (2, 3, 6, 7):
        rdB_(u)
    A("v_lshlrev_b32 v2, 4, v1")
    A("v_lshlrev_b32 v3, 3, v1")
    T.wait("c")
    Lok = A.newlabel("L_s1ok")
    A("v_cmp_le_u32 vcc, 4, v12")
    A(f"s_cbranch_vccnz {Lok}")
    lds_wait(A, 10, None, 4)
    A.label(Lok)
    rdA_(2); rdA_(3)
    pm(5)
    rdA_(6)
    pm(2)
    rdA_(7)
    pm(3); pm(6); pm(7)
    o_index(A)
    for i in range(10):
        A(f"v_cvt_pk_bf16_f32 v{48+i}, v{ACC+2*i}, v{ACC+2*i+1}")
    A(f"buffer_store_dwordx2 v[56:57], v3, s[{SWS}:{SWS+3}], s57 offen offset:2048{SC}")
    A("s_mov_b32 exec_lo, 0x00ffffff")
    A("s_mov_b32 exec_hi, 0x00ffffff")
    A(f"buffer_store_dwordx4 v[48:51], v2, s[{SWS}:{SWS+3}], s57 offen{SC}")
    A(f"buffer_store_dwordx4 v[52:55], v2, s[{SWS}:{SWS+3}], s57 offen offset:1024{SC}")
    A("s_mov_b64 exec, -1")
    stamp(A, 6)
    role_o(A)
    end_wave(A)
    A.label(Lq)
    hq = A.mark()
    pre = [f"s_mov_b32 s57, {64*1280}",
           f"v_mul_lo_u32 v{t1}, s57, v{HD}",
           f"v_lshl_add_u32 v2, v{S16}, 4, v{t1}",
           f"v_lshl_add_u32 v3, v{S16}, 3, v{t1}",
           "s_lshl_b32 s58, s49, 1",
           "s_add_u32 s58, s58, s52",
           "s_lshl_b32 s59, s50, 1",
           "s_add_u32 s59, s59, s53",
           "s_lshl_b32 s59, s59, 5",
           "s_add_u32 s59, s59, s58",
           "s_lshl_b32 s59, s59, 7",
           f"s_add_u32 s59, s59, {F2:#x}",
           "s_lshl_b32 s57, s50, 8",
           "s_add_u32 s57, s57, s58",
           "s_mul_i32 s57, s57, 2560"]
    A("s_nop 0")
    OQ = 140

    def outq(rho):
        x, o = ACC + 20 * rho, OQ + 10 * rho
        off = 1280 * (rho >> 1)
        L = [f"v_cvt_pk_bf16_f32 v{o+i}, v{x+2*i}, v{x+2*i+1}" for i in range(10)]
        L.append(f"buffer_store_dwordx4 {vr(o,4)}, v2, s[{SWS}:{SWS+3}], s57 offen offset:{off+256*(rho&1)}{SC}")
        L.append(f"buffer_store_dwordx4 {vr(o+4,4)}, v2, s[{SWS}:{SWS+3}], s57 offen offset:{off+512+256*(rho&1)}{SC}")
        L.append(f"buffer_store_dwordx2 {vr(o+8,2)}, v3, s[{SWS}:{SWS+3}], s57 offen offset:{off+1024+128*(rho&1)}{SC}")
        return L

    weave(phi_mfma(PS[0], ACC), pre + cvt(2), 2)
    m = phi_mfma(PS[1], ACC + 20)
    weave(m[:6], cvt(3), 2)
    weave(m[6:], outq(0), 2)
    m = phi_mfma(PS[2], ACC + 40)
    weave(m[:6], [], 0)
    weave(m[6:], outq(1), 2)
    m = phi_mfma(PS[3], ACC + 60)
    weave(m[:6], [], 0)
    weave(m[6:], outq(2), 2)
    for x in outq(3):
        A(x)
    stamp(A, 6)
    tag_check(A, 10)
    set_flag(A, 10, "s59")
    stamp(A, 7)
    A.check_seam(mq, hq)
    lds_arrive(A, 14, L_SYNC)
    lds_wait(A, 14, None, 4, sleep=1)
    A("s_setprio 0")
    A("s_cmp_lt_u32 s99, 4")
    A("s_cbranch_scc1 L_wo")
    if Opt.wopf == "qs":
        srd(A, 36, S_WO, NB_WO)
        A("s_sub_u32 s57, s99, 4")
        A("s_lshl_b32 s57, s57, 2")
        A("s_add_u32 s57, s57, s48")
        A("s_lshl_b32 s57, s57, 13")
        A(f"s_add_u32 s57, s57, {240*1280}")
        A("v_lshlrev_b32 v8, 7, v1")
        for i in range(4):
            A(f"buffer_load_dword v{200+i}, v8, s[36:39], s57 offen")
            A(f"s_add_u32 s57, s57, {16*8192}")
    A("s_cmp_lt_u32 s48, 2")
    A("s_cbranch_scc1 L_post")
    end_wave(A)


def role_o(A):
    NT = 4
    RAW, X, PQ = 64, 104, 128
    A("s_mul_i32 s53, s48, 20480")
    A(f"s_add_u32 s53, s53, {L_WOB}")
    A("v_and_b32 v4, 31, v1")
    A("v_lshl_add_u32 v5, v4, 4, s53")
    A("v_lshl_add_u32 v6, v4, 3, s53")
    A("v_and_b32 v7, 32, v1")
    A("v_lshlrev_b32 v7, 26, v7")
    A("s_lshl_b32 s54, s48, 2")
    A(f"s_add_u32 s54, s54, {L_SYNC+16}")
    A("s_mov_b32 s58, 0xffff0000")
    for t in range(NT):
        A(f"v_mov_b32 v{PQ+12*t+10}, 0")
        A(f"v_mov_b32 v{PQ+12*t+11}, 0")
    A("s_mov_b32 s96, s59")
    A("s_mov_b32 s97, 0")
    if Opt.dflag:
        Lgo = A.newlabel("L_go")
        A("v_mov_b32 v14, s54")
        A("ds_read_b32 v15, v14")
        A("s_waitcnt lgkmcnt(0)")
        A("v_cmp_le_u32 vcc, 1, v15")
        A(f"s_cbranch_vccnz {Lgo}")
    set_flag(A, 10, "s96")
    lds_arrive(A, 14, L_SYNC + 4)
    A("s_mov_b32 s97, 1")
    stamp(A, 7)
    lds_wait(A, 14, "s54", 1)
    if Opt.dflag:
        A.label(Lgo)
    stampw(A, 8)
    T = Lgkm(A)
    for t in range(NT):
        T.issue(f"ds_read_b128 {vr(RAW+10*t,4)}, v5 offset:{1280*t}")
        T.issue(f"ds_read_b128 {vr(RAW+10*t+4,4)}, v5 offset:{1280*t+512}")
        T.issue(f"ds_read_b64 {vr(RAW+10*t+8,2)}, v6 offset:{1280*t+1024}", t)
    A("s_lshl_b32 s57, s63, 2")
    A("s_mul_i32 s54, s57, 40960")
    A(f"s_add_u32 s54, s54, {WS_O:#x}")
    A("s_lshl_b32 s59, s62, 8")
    A("s_add_u32 s59, s59, s54")
    A("s_add_u32 s59, s59, 32768")
    A("s_lshl_b32 s57, s62, 10")
    A("s_add_u32 s54, s54, s57")
    A("s_lshl_b32 s50, s63, 5")
    A("s_add_u32 s50, s50, s62")
    A("s_lshl_b32 s50, s50, 7")
    A(f"s_add_u32 s50, s50, {F3:#x}")
    mx, se = 124, 126
    for t in range(NT):
        T.wait(t)
        for i in range(10):
            A(f"v_lshl_add_u32 v{X+2*i}, v{RAW+10*t+i}, 16, v7")
            A(f"v_bitop3_b32 v{X+2*i+1}, v{RAW+10*t+i}, s58, v7 bitop3:0x6a")
        A(f"v_max3_f32 v{mx}, v{X}, v{X+1}, v{X+2}")
        A(f"v_max3_f32 v{mx+1}, v{X+3}, v{X+4}, v{X+5}")
        for i in range(6, 18, 4):
            A(f"v_max3_f32 v{mx}, v{mx}, v{X+i}, v{X+i+1}")
            A(f"v_max3_f32 v{mx+1}, v{mx+1}, v{X+i+2}, v{X+i+3}")
        A(f"v_max3_f32 v{mx}, v{mx}, v{X+18}, v{X+19}")
        A(f"v_max_f32 v{mx}, v{mx}, v{mx+1}")
        A(f"v_mul_f32 v{mx}, s60, v{mx}")
        for i in range(0, 20, 2):
            A(f"v_pk_fma_f32 {vr(X+i,2)}, {vr(X+i,2)}, s[60:61], {vr(mx,2)} op_sel_hi:[1,1,0] neg_lo:[0,0,1] neg_hi:[0,0,1]")
        if Opt.dflag and t == 1:
            Lsk = A.newlabel("L_sk")
            A("s_cmp_eq_u32 s97, 1")
            A(f"s_cbranch_scc1 {Lsk}")
            set_flag(A, 10, "s96")
            lds_arrive(A, 14, L_SYNC + 4)
            stampw(A, 7)
            A.label(Lsk)
        for i in range(20):
            A(f"v_exp_f32 v{X+i}, v{X+i}")
        A(f"v_pk_add_f32 {vr(se,2)}, {vr(X,2)}, {vr(X+2,2)}")
        A(f"v_pk_add_f32 {vr(mx,2)}, {vr(X+4,2)}, {vr(X+6,2)}")
        for i in range(8, 20, 4):
            A(f"v_pk_add_f32 {vr(se,2)}, {vr(se,2)}, {vr(X+i,2)}")
            A(f"v_pk_add_f32 {vr(mx,2)}, {vr(mx,2)}, {vr(X+i+2,2)}")
        A(f"v_pk_add_f32 {vr(se,2)}, {vr(se,2)}, {vr(mx,2)}")
        A(f"v_add_f32 v{se}, v{se}, v{se+1}")
        A(f"v_rcp_f32 v{se}, v{se}")
        for i in range(0, 20, 2):
            A(f"v_pk_mul_f32 {vr(X+i,2)}, {vr(X+i,2)}, {vr(se,2)} op_sel_hi:[1,0]")
        for i in range(10):
            A(f"v_cvt_pk_bf16_f32 v{PQ+12*t+i}, v{X+2*i}, v{X+2*i+1}")
    stamp(A, 9)
    KF = 16
    A(f"v_mov_b32 v{KF+10}, 0")
    A(f"v_mov_b32 v{KF+11}, 0")
    lds_wait(A, 14, L_SYNC + 8, 4)
    stampw(A, 10)
    PR = 32
    T = Lgkm(A)
    for q in range(5):
        for p in range(4):
            T.issue(f"ds_read_b128 {vr(PR+16*q+4*p,4)}, v2 offset:{5120*p+1024*q}", q)
    for q in range(5):
        T.wait(q)
        b = PR + 16 * q
        for h in (0, 2):
            A(f"v_pk_add_f32 {vr(b+h,2)}, {vr(b+h,2)}, {vr(b+4+h,2)}")
            A(f"v_pk_add_f32 {vr(b+8+h,2)}, {vr(b+8+h,2)}, {vr(b+12+h,2)}")
        for h in (0, 2):
            A(f"v_pk_add_f32 {vr(b+h,2)}, {vr(b+h,2)}, {vr(b+8+h,2)}")
        for h in (0, 2):
            A(f"v_cvt_pk_bf16_f32 v{KF+2*q+h//2}, v{b+h}, v{b+h+1}")
    D = [176, 192, 208, 224]
    OP = [32, 40, 48, 56]

    def mf(t):
        for u in range(3):
            c = vr(D[t], 16) if u else "0"
            A(f"v_mfma_f32_32x32x16_bf16 {vr(D[t],16)}, {vr(KF+4*u,4)}, {vr(PQ+12*t+4*u,4)}, {c}")

    if Opt.dA:
        A(f"s_sleep {Opt.dA}")
    mf(0)
    mf(1)
    for t in range(NT):
        d, o = D[t], OP[t]
        A(f"v_add_f32 v10, 0x358637bd, v{d+12}")
        A("v_rcp_f32 v10, v10")
        if t + 2 < NT:
            mf(t + 2)
        if t >= 2:
            for i in range(0, 12, 2):
                A(f"v_pk_mul_f32 {vr(d+i,2)}, {vr(d+i,2)}, v[10:11] op_sel_hi:[1,0]")
        else:
            for i in range(12):
                A(f"v_mul_f32 v{d+i}, v10, v{d+i}")
        for i in range(6):
            A(f"v_cvt_pk_bf16_f32 v{o+i}, v{d+2*i}, v{d+2*i+1}")
        A(f"buffer_store_dwordx4 {vr(o,4)}, v2, s[{SWS}:{SWS+3}], s54 offen{SC}")
        A("s_mov_b32 exec_hi, 0")
        A(f"buffer_store_dwordx2 {vr(o+4,2)}, v3, s[{SWS}:{SWS+3}], s59 offen{SC}")
        A("s_mov_b64 exec, -1")
        if t < NT - 1:
            A("s_add_u32 s54, s54, 40960")
            A("s_add_u32 s59, s59, 40960")
    stamp(A, 11)
    set_flag(A, 12, "s50")
    lds_arrive(A, 16, L_SYNC + 12)
    stamp(A, 12)


def b_channel(A):
    A("s_mul_i32 s49, s98, 80")
    A("s_sub_u32 s50, s99, 24")
    A("s_mul_i32 s50, s50, 6")
    A("s_add_u32 s49, s49, s50")
    A("s_add_u32 s49, s49, s48")
    A("s_cmp_ge_u32 s48, 6")
    A("s_cselect_b32 s50, 2, 0")
    A("s_sub_u32 s49, s49, s50")
    A(f"s_mul_i32 s56, s48, {CV_LDS}")


def conv_load_h(A, v):
    SH = 40
    srd(A, SH, S_SSK, NB_SSK)
    A(f"v_lshlrev_b32 v{v}, 4, v1")
    A("s_lshl_b32 s50, s49, 12")
    A("s_add_u32 m0, s56, 64")
    for i in range(4):
        A(f"buffer_load_dwordx4 v{v}, s[{SH}:{SH+3}], s50 offen offset:{1024*i}{Opt.nt_s} lds")


def f0_lines(A, c0, c1, v):
    A(f"s_lshr_b32 s52, s{c0}, 6")
    A("s_mul_i32 s52, s52, 419431")
    A("s_lshr_b32 s52, s52, 16")
    A(f"s_lshr_b32 s53, s{c1}, 6")
    A("s_mul_i32 s53, s53, 419431")
    A("s_add_u32 s53, s53, 406324")
    A("s_lshr_b32 s53, s53, 16")
    A(f"v_lshrrev_b32 v{v}, 2, v1")
    A(f"v_add_u32 v{v}, s52, v{v}")
    A(f"v_min_u32 v{v}, s53, v{v}")
    A(f"v_lshlrev_b32 v{v}, 7, v{v}")
    A(f"s_mov_b32 s52, {F0:#x}")


def role_pre(A):
    SK, SV, SS = 32, 36, 40
    t0, t1, t2 = 2, 3, 4
    A("s_lshl_b32 s49, s98, 3")
    A("s_add_u32 s49, s49, s99")
    A("s_sub_u32 s49, s49, 24")
    A("s_mul_i32 s49, s49, 5")
    A("s_add_u32 s49, s49, s48")
    A("s_and_b32 s50, s49, 31")
    A("s_lshr_b32 s51, s49, 5")
    A(f"s_mul_i32 s52, s50, {64*1280}")
    A("s_lshl_b32 s53, s51, 7")
    A("s_add_u32 s52, s52, s53")
    A(f"v_lshrrev_b32 v{t0}, 3, v1")
    A(f"v_and_b32 v{t1}, 7, v1")
    A(f"v_mul_u32_u24 v{t2}, {8*1280}, v{t0}")
    A(f"v_lshl_add_u32 v{t2}, v{t1}, 4, v{t2}")
    A(f"v_add_u32 v5, s52, v{t2}")
    A(f"v_subrev_u32 v6, {3*1280}, v5")
    A(f"v_subrev_u32 v7, {2*1280}, v5")
    A(f"v_subrev_u32 v8, {1280}, v5")
    A(f"v_lshlrev_b32 v9, 6, v{t1}")
    A("s_lshl_b32 s54, s51, 9")
    A(f"s_movk_i32 s55, {4*1280}")
    A("s_waitcnt lgkmcnt(0)")
    srd(A, SK, S_BK, NB_X)
    srd(A, SV, S_BV, NB_X)
    srd(A, SS, S_SH, NB_SH)
    WR, KR, VR = 16, 32, 76
    for i in range(4):
        A(f"buffer_load_dwordx4 {vr(WR+4*i,4)}, v9, s[{SS}:{SS+3}], s54 offen offset:{16*i}")
    for i in range(3):
        A(f"buffer_load_dwordx4 {vr(KR+4*i,4)}, v{6+i}, s[{SK}:{SK+3}], 0 offen{Opt.nt_s}")

    order = []

    def ld(kind, i):
        so = "0" if i < 4 else "s55"
        if kind == "k":
            A(f"buffer_load_dwordx4 {vr(KR+12+4*i,4)}, v5, s[{SK}:{SK+3}], {so} offen offset:{1280*(i&3)}{Opt.nt_s}")
        else:
            A(f"buffer_load_dwordx4 {vr(VR+4*i,4)}, v5, s[{SV}:{SV+3}], {so} offen offset:{1280*(i&3)}{Opt.nt_s}")
        order.append((kind, i))

    for i in (5, 6, 7):
        ld("k", i)
    ld("k", 0); ld("v", 0); ld("k", 1); ld("v", 1)
    todo = [("k", 2), ("v", 2), ("k", 3), ("v", 3), ("k", 4), ("v", 4), ("v", 5), ("v", 6), ("v", 7)]
    stamp(A, 2)
    srd(A, SWS, S_WS, WS_SIZE)
    A("s_mul_i32 s56, s48, 8320")
    A(f"s_add_u32 s56, s56, {B_PRE}")
    A(f"v_mul_u32_u24 v10, 1040, v{t1}")
    A(f"v_lshl_add_u32 v10, v{t0}, 4, v10")
    A("v_add_u32 v10, s56, v10")
    A("v_lshrrev_b32 v11, 4, v1")
    A("v_lshlrev_b32 v11, 8, v11")
    A("v_and_b32 v12, 3, v1")
    A("v_lshl_add_u32 v11, v12, 6, v11")
    A("v_bfe_u32 v12, v1, 2, 2")
    A("v_lshl_add_u32 v11, v12, 3, v11")
    A("v_add_u32 v11, s56, v11")
    A(f"v_lshlrev_b32 v12, 12, v{t0}")
    A(f"v_lshl_add_u32 v12, v{t1}, 4, v12")
    A("s_lshl_b32 s57, s51, 18")
    A("s_lshl_b32 s58, s50, 7")
    A("s_add_u32 s57, s57, s58")
    A(f"s_add_u32 s57, s57, {WS_KVT:#x}")
    A("s_mov_b32 s59, 0xffff0000")
    WF, KF, VF, TA, OUT = 108, 140, 172, 180, 196

    def unpack(dst, src, n):
        for i in range(n):
            A(f"v_lshlrev_b32 v{dst+2*i}, 16, v{src+i}")
            A(f"v_and_b32 v{dst+2*i+1}, s59, v{src+i}")

    A(f"s_waitcnt vmcnt({3+len(order)})")
    ld(*todo.pop(0)); ld(*todo.pop(0))
    for c in range(8):
        A(f"v_lshlrev_b32 v{WF+c}, 16, v{WR+2*c}")
        A(f"v_and_b32 v{WF+8+c}, s59, v{WR+2*c}")
        A(f"v_lshlrev_b32 v{WF+16+c}, 16, v{WR+2*c+1}")
        A(f"v_and_b32 v{WF+24+c}, s59, v{WR+2*c+1}")
    A(f"s_waitcnt vmcnt({len(order)})")
    ld(*todo.pop(0)); ld(*todo.pop(0))
    for i in range(3):
        unpack(KF + 8 * i, KR + 4 * i, 4)
    for i in range(8):
        need = max(order.index(("k", i)), order.index(("v", i)))
        A(f"s_waitcnt vmcnt({len(order)-1-need})")
        for _ in range(2):
            if todo:
                ld(*todo.pop(0))
        if i == 2:
            b_channel(A)
            if Opt.hdef:
                A("s_lshl_b32 s50, s49, 12")
            else:
                conv_load_h(A, 13)
                order.extend([None] * 4)
        unpack(KF + 8 * ((i + 3) & 3), KR + 12 + 4 * i, 4)
        unpack(VF, VR + 4 * i, 4)
        acc = TA + 8 * (i & 1)
        for j in (3, 2, 1, 0):
            kk = KF + 8 * ((i + 3 - j) & 3)
            for c in range(0, 8, 2):
                if j == 3:
                    A(f"v_pk_mul_f32 {vr(acc+c,2)}, {vr(kk+c,2)}, {vr(WF+8*j+c,2)}")
                else:
                    A(f"v_pk_fma_f32 {vr(acc+c,2)}, {vr(kk+c,2)}, {vr(WF+8*j+c,2)}, {vr(acc+c,2)}")
        for c in range(0, 8, 2):
            A(f"v_pk_mul_f32 {vr(acc+c,2)}, {vr(acc+c,2)}, {vr(VF+c,2)}")
        if i & 1:
            for c in range(8):
                A(f"v_cvt_pk_bf16_f32 v{OUT+4*c+i//2}, v{TA+c}, v{TA+8+c}")
    stamp(A, 3)
    for c in range(8):
        A(f"ds_write_b128 v10, {vr(OUT+4*c,4)} offset:{128*c}")
    A("s_waitcnt lgkmcnt(0)")
    T = Lgkm(A)
    for i in range(8):
        T.issue(f"ds_read_b64_tr_b16 {vr(16+4*i,2)}, v11 offset:{1040*i}")
        T.issue(f"ds_read_b64_tr_b16 {vr(18+4*i,2)}, v11 offset:{1040*i+32}", i)
    for i in range(8):
        T.wait(i)
        A(f"buffer_store_dwordx4 {vr(16+4*i,4)}, v12, s[{SWS}:{SWS+3}], s57 offen{SC}")
        if i < 7:
            A(f"s_add_u32 s57, s57, {8*4096}")
    stamp(A, 5)
    if Opt.hdef == 2:
        conv_load_h(A, 13)


def role_helper(A):
    SD = 40
    A("s_setprio 3")
    A("s_waitcnt lgkmcnt(0)")
    srd(A, SWS, S_WS, WS_SIZE)
    srd(A, SD, S_DBG, 256)
    Lz = A.newlabel("L_nz")
    A("s_cmp_eq_u32 s2, 192")
    A(f"s_cbranch_scc0 {Lz}")
    A("s_cmp_eq_u32 s48, 5")
    A(f"s_cbranch_scc0 {Lz}")
    A(f"s_mov_b32 s57, {WS_EPOCH:#x}")
    A("s_mov_b64 exec, 1")
    A(f"buffer_load_dword v4, off, s[{SWS}:{SWS+3}], s57{SC}")
    A("s_waitcnt vmcnt(0)")
    A("v_add_u32 v4, 1, v4")
    A("v_not_b32 v5, v4")
    A(f"buffer_store_dwordx2 v[4:5], off, s[{SD}:{SD+3}], 0{SC}")
    A(f"buffer_store_dword v4, off, s[{SWS}:{SWS+3}], s57{SC}")
    A("s_mov_b64 exec, -1")
    stamp(A, 2)
    A.label(Lz)
    if Opt.touch & 2:
        Lt = A.newlabel("L_nt")
        A("s_cmp_eq_u32 s48, 5")
        A(f"s_cbranch_scc0 {Lt}")
        touch(A, 26, 32, Opt.tsh)
        for k_, (b_, n_) in enumerate(((S_BQ, NB_X), (S_SSK, NB_SSK))):
            srd(A, 32, b_, n_)
            A(f"buffer_load_dword v29, v26, s[32:35], 0 offen")
        A.label(Lt)
    Lnw = A.newlabel("L_nw")
    A("s_sub_u32 s61, s99, 24")
    A("s_lshl_b32 s60, s61, 1")
    A("s_add_u32 s60, s60, s48")
    A("s_sub_u32 s60, s60, 6")
    A("s_xor_b32 s61, s61, 20")
    A("s_cmp_eq_u32 s48, 5")
    A("s_cselect_b32 s60, s61, s60")
    A("s_lshl_b32 s60, s60, 3")
    A("s_add_u32 s60, s60, s98")
    A("s_cmp_ge_u32 s60, 160")
    A(f"s_cbranch_scc1 {Lnw}_a")
    srd(A, 36, S_WO, NB_WO)
    A("s_lshr_b32 s61, s60, 3")
    A("s_and_b32 s62, s60, 7")
    A(f"s_mul_i32 s53, s62, {80*1280}")
    A("s_lshl_b32 s54, s61, 6")
    A("s_add_u32 s53, s53, s54")
    A("v_lshrrev_b32 v2, 2, v1")
    A("v_and_b32 v3, 3, v1")
    A("v_mul_u32_u24 v4, 1280, v2")
    A("v_lshl_add_u32 v4, v3, 4, v4")
    A(f"s_mul_i32 s56, s48, {CV_LDS}")
    for i in range(5):
        A(f"s_add_u32 m0, s56, {1024*i}")
        A("buffer_load_dwordx4 v4, s[36:39], s53 offen lds")
        A(f"s_add_u32 s53, s53, {16*1280}")
    A.label(Lnw + "_a")
    if Opt.gpf2:
        Lnp = A.newlabel("L_ng")
        A("s_lshl_b32 s50, s48, 3")
        A("s_add_u32 s50, s50, s99")
        A("s_sub_u32 s50, s50, 64")
        A("s_cmp_ge_u32 s50, 20")
        A(f"s_cbranch_scc1 {Lnp}")
        A("s_lshr_b32 s51, s50, 1")
        A("s_and_b32 s50, s50, 1")
        A("s_cmp_ge_u32 s51, 5")
        A("s_cselect_b32 s52, 640, 0")
        A("s_lshl_b32 s51, s51, 7")
        A("s_add_u32 s51, s51, s52")
        A("s_lshr_b32 s52, s98, 2")
        A("s_mul_i32 s52, s52, 640")
        A("s_add_u32 s51, s51, s52")
        A(f"s_mul_i32 s50, s50, {5*64*3840}")
        A("s_add_u32 s51, s51, s50")
        A(f"s_add_u32 s51, s51, {1280 + Opt.gpf2*64*3840}")
        srd(A, 32, S_W, NB_W)
        A("v_mul_u32_u24 v2, 3840, v1")
        for k in range(Opt.gpf2, 5):
            A(f"buffer_load_dword v{30+k}, v2, s[32:35], s51 offen")
            A(f"s_add_u32 s51, s51, {64*3840}")
        A.label(Lnp)
    if Opt.gpf:
        A("s_sub_u32 s50, s99, 24")
        A("s_mul_i32 s50, s50, 3")
        A("s_add_u32 s50, s50, s48")
        A("s_sub_u32 s50, s50, 5")
        A("s_and_b32 s51, s98, 3")
        A("s_lshl_b32 s51, s51, 3")
        A("s_add_u32 s51, s51, s50")
        A(f"s_mul_i32 s51, s51, {64*1280}")
        A("s_sub_u32 s52, s50, 8")
        A("s_mul_i32 s53, s52, 52")
        A("s_lshr_b32 s53, s53, 8")
        A("s_mul_i32 s53, s53, 640")
        A("s_lshl_b32 s52, s52, 7")
        A("s_add_u32 s52, s52, s53")
        A("s_lshr_b32 s53, s98, 2")
        A("s_mul_i32 s53, s53, 640")
        A("s_add_u32 s52, s52, s53")
        A("s_cmp_eq_u32 s50, 23")
        A(f"s_cselect_b32 s52, {NB_W:#x}, s52")
        A("s_cmp_lt_u32 s50, 8")
        A("s_cselect_b32 s51, s51, s52")
        A(f"s_cselect_b64 s[32:33], s[{S_X}:{S_X+1}], s[{S_W}:{S_W+1}]")
        A(f"s_mov_b32 s53, {NB_W:#x}")
        A(f"s_cselect_b32 s34, {NB_X:#x}, s53")
        A("s_mov_b32 s35, 0x20000")
        A("s_movk_i32 s53, 3840")
        A("s_cselect_b32 s52, 1280, s53")
        A(f"s_mov_b32 s53, {64*3840}")
        A("s_cselect_b32 s53, 128, s53")
        A("v_mul_u32_u24 v2, s52, v1")
        A(f"s_mul_i32 s52, s53, {Opt.gpf}")
        A("s_add_u32 s51, s51, s52")
        for k, st in enumerate(range(Opt.gpf, 10)):
            if k >= Opt.gpfd:
                A(f"s_waitcnt vmcnt({Opt.gpfd-1})")
            A(f"buffer_load_dword v{30+k}, v2, s[32:35], s51 offen")
            A("s_add_u32 s51, s51, s53")
    if Opt.codepf:
        Lp = A.newlabel("L_npf")
        A("s_cmp_eq_u32 s48, 6")
        A(f"s_cbranch_scc0 {Lp}")
        A("s_getpc_b64 s[50:51]")
        A.label("L_pc")
        A(f"s_sub_u32 s50, s50, L_pc-{NAME}_kernel")
        A("s_subb_u32 s51, s51, 0")
        A("s_sub_u32 s52, s99, 24")
        A("s_lshl_b32 s52, s52, 13")
        A("v_lshl_add_u32 v2, v1, 7, s52")
        A(f"v_min_u32 v2, L_code_end-{NAME}_kernel-4, v2")
        A("global_load_dword v24, v2, s[50:51]")
        A.label(Lp)
    A("s_cmp_ge_u32 s60, 160")
    A(f"s_cbranch_scc1 {Lnw}")
    A("v_bfe_u32 v10, v1, 2, 2")
    A("v_lshrrev_b32 v11, 5, v1")
    A("v_and_b32 v12, 1, v1")
    A("v_lshlrev_b32 v12, 5, v12")
    A("v_bfe_u32 v13, v1, 4, 1")
    A("v_lshl_add_u32 v12, v13, 4, v12")
    A("v_bfe_u32 v13, v1, 1, 1")
    A("v_lshl_add_u32 v12, v13, 3, v12")
    A("v_lshl_add_u32 v12, v10, 6, v12")
    A("v_add_u32 v12, s56, v12")
    A("v_lshl_add_u32 v13, v11, 8, v12")
    A("v_mul_u32_u24 v14, 2560, v11")
    A("v_add_u32 v14, v14, v12")
    A("v_lshlrev_b32 v2, 4, v1")
    A(f"s_mul_i32 s53, s61, {Opt.wstr}")
    A(f"s_add_u32 s53, s53, {WS_WOT:#x}")
    A("s_lshl_b32 s54, s62, 10")
    A("s_add_u32 s54, s54, s53")
    A("s_add_u32 s54, s54, 32768")
    A("s_lshl_b32 s62, s62, 12")
    A("s_add_u32 s53, s53, s62")
    A("s_lshl_b32 s55, s60, 7")
    A(f"s_add_u32 s55, s55, {FW:#x}")
    A("s_waitcnt vmcnt(0)")
    for hh in range(4):
        for half in range(2):
            A(f"ds_read_b64_tr_b16 {vr(40+4*hh+2*half,2)}, v13 offset:{(20*hh+8*half)*64}")
    for half in range(2):
        A(f"ds_read_b64_tr_b16 {vr(56+2*half,2)}, v14 offset:{(20*half+16)*64}")
    A("s_waitcnt lgkmcnt(0)")
    for hh in range(4):
        A(f"buffer_store_dwordx4 {vr(40+4*hh,4)}, v2, s[{SWS}:{SWS+3}], s53 offen offset:{1024*hh}{SC}")
    A(f"buffer_store_dwordx4 v[56:59], v2, s[{SWS}:{SWS+3}], s54 offen{SC}")
    A(f"s_mov_b64 s[{TAG}:{TAG+1}], 0")
    tag_check(A, 8)
    set_flag(A, 8, "s55")
    if Opt.wback:
        A("v_lshlrev_b32 v2, 7, v1")
        A("s_mov_b32 exec_hi, 0")
        A(f"buffer_load_dword v24, v2, s[{SWS}:{SWS+3}], s53 offen{SC}")
        A("s_mov_b32 exec_lo, 0xff")
        A(f"buffer_load_dword v25, v2, s[{SWS}:{SWS+3}], s54 offen{SC}")
        A("s_mov_b64 exec, -1")
    A.label(Lnw)
    A("s_setprio 0")
    b_channel(A)
    if Opt.hdef == 1:
        A("s_lshl_b32 s50, s49, 12")
    else:
        conv_load_h(A, 2)
    A(f"v_mov_b32 v4, {B_MB+256}")
    A("v_mov_b32 v5, 0")
    A("ds_write_b32 v4, v5")
    A("ds_write_b32 v4, v5 offset:512")


def conv_setup(A):
    A("v_lshlrev_b32 v2, 4, v1")
    A("s_lshl_b32 s52, s49, 1")
    A("s_and_b32 s52, s52, 0xfffffffc")
    A(f"s_load_dword s55, s[{S_SSD}:{S_SSD+1}], s52")
    A(f"s_load_dword s54, s[{S_SSK}:{S_SSK+1}], s50")
    A(f"s_add_u32 s51, s50, {WS_KVT:#x}")
    for i in range(4):
        A(f"v_mov_b32 v{4+i}, 0")
    A("v_add_u32 v3, s56, v2")
    A("s_mov_b64 exec, 0xf")
    A("ds_write_b128 v3, v[4:7]")
    A("s_mov_b32 exec_lo, -1")
    A(f"ds_write_b128 v3, v[4:7] offset:{64+4096}")
    A("s_mov_b64 exec, -1")
    A("v_and_b32 v11, 3, v1")
    A("v_lshrrev_b32 v10, 4, v1")
    A("v_bfe_u32 v12, v1, 2, 2")
    A("v_lshlrev_b32 v8, 4, v11")
    A("v_lshl_add_u32 v8, v10, 6, v8")
    A("v_lshlrev_b32 v9, 3, v12")
    A("v_sub_u32 v8, v8, v9")
    A("s_add_u32 s57, s56, 32")
    A("v_add_u32 v8, s57, v8")
    A("v_sub_u32 v9, v11, v10")
    A("v_lshlrev_b32 v9, 6, v9")
    A("v_lshl_add_u32 v9, v12, 4, v9")
    A(f"s_add_u32 s57, s56, {64+4096+512}")
    A("v_add_u32 v9, s57, v9")
    A("v_mov_b32 v13, 0xffff")
    for i in range(4):
        A(f"v_cmp_eq_u32 vcc, {4*i}, v1")
        A(f"v_cndmask_b32 v{MK+i}, 0, v13, vcc")
    A("v_add_u32 v13, 3, v11")
    A("v_and_b32 v13, 3, v13")
    A("v_lshl_add_u32 v13, v12, 2, v13")
    A("v_add_u32 v13, 48, v13")
    A("v_subrev_u32 v14, 16, v1")
    A("v_cmp_gt_u32 vcc, 16, v1")
    A("v_cndmask_b32 v14, v14, v13, vcc")
    A("v_lshlrev_b32 v14, 2, v14")
    A("s_mov_b32 s58, 0x1111")
    A("s_mov_b32 s59, 0")


MK = 16


def role_conv(A):
    conv_setup(A)
    A("s_sub_u32 s61, s99, 24")
    A("s_lshl_b32 s62, s98, 3")
    A("s_add_u32 s62, s62, s61")
    A("s_lshl_b32 s62, s62, 7")
    A(f"s_add_u32 s62, s62, {F0:#x}")
    A("s_mul_i32 s60, s98, 80")
    A("s_mul_i32 s61, s61, 6")
    A("s_add_u32 s60, s60, s61")
    A("s_add_u32 s61, s60, 5")
    f0_lines(A, 60, 61, 12)
    A(f"s_waitcnt vmcnt({4 if Opt.hdef == 2 else 0}) lgkmcnt(0)")
    stamp(A, 4)
    A("s_barrier")
    if Opt.hdef == 1:
        Lh = A.newlabel("L_hd")
        A("s_cmp_eq_u32 s48, 7")
        A(f"s_cbranch_scc0 {Lh}")
        set_flag(A, 22, "s62")
        A.label(Lh)
        A("s_barrier")
        conv_load_h(A, 2)
        A("s_waitcnt vmcnt(0)")
    else:
        A("s_waitcnt vmcnt(0)")
        A("s_cmp_eq_u32 s48, 7")
        A("s_cbranch_scc0 L_cb")
        set_flag(A, 22, "s62")
    A("s_branch L_cb")
    A.label("L_conv")
    RA, RB = 64, 192
    ACCS = (32, 40, 48, 56)
    CAR, PUL, TMP = 20, (21, 22), 23
    OUT = (24, 28)

    def rdA(m, e):
        reg = RA + 8 * m + 4 * e
        return [(f"ds_read_b64_tr_b16 {vr(reg,2)}, v8 offset:{256*m+8*e+32}", None),
                (f"ds_read_b64_tr_b16 {vr(reg+2,2)}, v8 offset:{256*m+8*e}", ("A", m, e))]

    def xload():
        A(f"s_add_u32 m0, s56, {64+4096+512}")
        for i in range(4):
            A(f"buffer_load_dwordx4 v2, s[{SWS}:{SWS+3}], s51 offen offset:{1024*i}{SC} lds")

    Lb, Lg = "L_cb", A.newlabel("L_cg")
    tag_check(A, 22)
    conv_load_h(A, 2)
    A(f"buffer_load_dwordx2 v[22:23], v12, s[{SWS}:{SWS+3}], s52 offen{SC}")
    A("s_barrier")
    A("s_waitcnt vmcnt(0)")
    A(f"v_cmp_eq_u64 vcc, s[{TAG}:{TAG+1}], v[22:23]")
    A("s_cmp_eq_u64 vcc, -1")
    Lx = A.newlabel("L_cx")
    A(f"s_cbranch_scc1 {Lx}")
    poll(A, 22, 12, "s52", sleep=8)
    A.label(Lx)
    stamp(A, 8)
    xload()
    A.label(Lb)
    A("s_waitcnt lgkmcnt(0)")
    A("s_lshl_b32 s54, s54, 16")
    A("s_lshl_b32 s53, s55, 16")
    A("s_and_b32 s55, s55, 0xffff0000")
    A("s_bitcmp1_b32 s49, 0")
    A("s_cselect_b32 s53, s55, s53")
    A("v_mov_b32 v15, s54")
    A("v_add_f32 v15, s53, v15")
    A("v_cvt_pk_bf16_f32 v15, v15, v15")
    T = Lgkm(A)
    for m in range(16):
        for e in range(2):
            for x, tg in rdA(m, e):
                T.issue(x, tg)
    T.wait(("A", 0, 1))
    for k in range(4):
        A(f"v_bfi_b32 v{RA+k}, v{MK+k}, v15, v{RA+k}")
        A(f"v_lshlrev_b32 v{MK+k}, 16, v{MK+k}")
        A(f"v_bfi_b32 v{RA+4+k}, v{MK+k}, v15, v{RA+4+k}")
    T.all()
    if Opt.qwait:
        Lqd = A.newlabel("L_qd")
        A("s_cmp_ge_u32 s99, 24")
        A(f"s_cbranch_scc1 {Lqd}")
        lds_wait(A, 12, L_SYNC, 4, sleep=4)
        if Opt.qdel:
            A(f"s_sleep {Opt.qdel}")
        A.label(Lqd)
    A("s_cmp_ge_u32 s99, 24")
    A(f"s_cbranch_scc0 {Lg}")
    Ln7 = A.newlabel("L_n7")
    A("s_cmp_eq_u32 s48, 7")
    A(f"s_cbranch_scc0 {Ln7}")
    poll(A, 22, 12, "s52", sleep=4)
    A.label(Ln7)
    A("s_barrier")
    stamp(A, 8)
    xload()
    if Opt.bdelay:
        A(f"s_sleep {Opt.bdelay}")
    A("s_cmp_ge_u32 s48, 4")
    A(f"s_cbranch_scc0 {Lg}")
    A("s_setprio 1")
    A.label(Lg)
    A(f"s_add_u32 s51, s50, {WS_YT:#x}")
    A(f"v_mov_b32 v{PUL[1]}, 0")

    def epilogue(i):
        V = ACCS[i % 4]
        dpp = lambda d, src, op: f"v_add_f32_dpp v{d}, v{src}, v{d} {op} row_mask:0xf bank_mask:0xf"
        L = [f"v_mov_b32 v{CAR}, 0"]
        for k in (1, 2, 3):
            L += [dpp(V, V + k, f"row_shr:{4*k}"), dpp(V + 4, V + 4 + k, f"row_shr:{4*k}"), dpp(CAR, V + 4 + k, f"row_shl:{16-4*k}")]
        L.append(("ds", f"ds_bpermute_b32 v{PUL[i&1]}, v14, v{CAR}", ("P", i)))
        x = [dpp(V + 4, V + k, f"row_shl:{16-4*k}") for k in (1, 2, 3)]
        L += [x[0], "GAP", x[1], "GAP", x[2]]
        L.append(("wait", ("P", i)))
        L.append(f"v_cndmask_b32 v{TMP}, v{PUL[i&1]}, v{PUL[1-(i&1)]}, s[58:59]")
        L.append(f"v_add_f32 v{V}, v{V}, v{TMP}")
        L.append(f"v_cvt_pk_bf16_f32 v{OUT[(i>>2)&1]+(i&3)}, v{V}, v{V+4}")
        if i & 3 == 3:
            L.append(f"buffer_store_dwordx4 {vr(OUT[(i>>2)&1],4)}, v2, s[{SWS}:{SWS+3}], s51 offen offset:{1024*(i>>2)}{SC}")
        return L

    def emit(x):
        if isinstance(x, tuple):
            if x[0] == "ds":
                T.issue(x[1], x[2])
            else:
                T.wait(x[1])
        elif x != "GAP":
            A(x)

    A("s_waitcnt vmcnt(0)")
    stampw(A, 9)

    def stream(tiles, exit_at=None, keep=None):
        T.tag.clear()
        for w in range(16):
            T.issue(f"ds_read_b128 {vr(RB+4*w,4)}, v9 offset:{256*w}", ("B", w))
        fill = []
        since = 99
        for i in tiles:
            V = ACCS[i % 4]
            while fill and fill[0][0] <= i - 4:
                emit(fill.pop(0)[1])
            if exit_at and i == exit_at[0]:
                while fill and fill[0][0] <= i - 2:
                    emit(fill.pop(0)[1])
                assert len(fill) == len(epilogue(i - 1))
                A("s_cmp_ge_u32 s48, 4")
                A(f"s_cbranch_scc1 {exit_at[1]}")
            since = 0
            for w in range(i + 1):
                for e in range(2):
                    T.wait(("B", w))
                    c = vr(V + 4 * e, 4) if w else "0"
                    A(f"v_mfma_f32_16x16x32_bf16 {vr(V+4*e,4)}, {vr(RA+8*(i-w)+4*e,4)}, {vr(RB+4*w,4)}, {c}")
                    since += 1
                    left = 2 * (i + 1) - since
                    due = len([1 for t_, _x in fill if t_ <= i - 2])
                    if i == tiles[-1] or (exit_at and i == exit_at[0] - 1):
                        due = len(fill)
                    for _ in range(2 if due > left else 1):
                        if fill and (fill[0][0] < i - 1 or since >= 6):
                            emit(fill.pop(0)[1])
            ep = epilogue(i)
            if keep and i == keep[0]:
                k = [j for j, x in enumerate(ep) if isinstance(x, str) and x.startswith("v_cvt")][0]
                ep = ep[:k] + [f"v_mov_b32 v{keep[1]}, v{V}", f"v_mov_b32 v{keep[1]+1}, v{V+4}"] + ep[k + 1:]
            fill += [(i, x) for x in ep]
        stampw(A, 10)
        T.done = T.n if Ctx.stamps else T.done
        return [x for _, x in fill]

    A("s_cmp_ge_u32 s48, 6")
    A("s_cbranch_scc1 L_second")
    for x in stream(range(16), (12, "L_first")):
        emit(x)
    A("s_branch L_cdone")
    A.label("L_first")
    A("s_waitcnt lgkmcnt(0)")
    A("s_nop 6")
    T.done = T.n
    stampw(A, 10)
    for x in epilogue(11):
        emit(x)
    A("s_and_b32 s52, s48, 1")
    A("s_lshl_b32 s52, s52, 9")
    A(f"s_add_u32 s52, s52, {B_MB}")
    A("v_lshl_add_u32 v10, v1, 2, s52")
    A(f"ds_write_b32 v10, v{PUL[1]}")
    A("s_add_u32 s52, s52, 256")
    lds_arrive(A, 10, "s52")
    A("s_branch L_cdone")
    A.label("L_second")
    T.done = T.n
    last = stream(range(12, 16), keep=(12, 4))
    for x in last[:-1]:
        emit(x)
    A("s_and_b32 s52, s48, 1")
    A("s_lshl_b32 s52, s52, 9")
    A(f"s_add_u32 s52, s52, {B_MB}")
    A("v_lshl_add_u32 v12, v1, 2, s52")
    A("s_add_u32 s52, s52, 256")
    lds_wait(A, 10, "s52", 1, sleep=2)
    A(f"ds_read_b32 v{TMP}, v12")
    A("s_waitcnt lgkmcnt(0)")
    A(f"v_cndmask_b32 v{TMP}, 0, v{TMP}, s[58:59]")
    A(f"v_add_f32 v4, v4, v{TMP}")
    A(f"v_cvt_pk_bf16_f32 v{OUT[1]}, v4, v5")
    A(last[-1])
    A.label("L_cdone")
    A("s_waitcnt vmcnt(0)")
    stamp(A, 11)
    A("s_cmp_ge_u32 s99, 24")
    A("s_cbranch_scc1 L_bdone")
    A(f"v_mov_b32 v10, {L_SYNC+12}")
    A("v_mov_b32 v11, 1")
    A("s_mov_b64 exec, 1")
    A("ds_add_rtn_u32 v12, v10, v11")
    A("s_mov_b64 exec, -1")
    A("s_lshl_b32 s52, s98, 4")
    A("s_add_u32 s52, s52, s99")
    A("s_lshl_b32 s52, s52, 7")
    A(f"s_add_u32 s52, s52, {F4+8*128:#x}")
    A("s_waitcnt lgkmcnt(0)")
    A("v_readfirstlane_b32 s53, v12")
    A("s_cmp_eq_u32 s53, 3")
    A("s_cbranch_scc0 L_bend")
    set_flag(A, 10, "s52")
    A("s_branch L_bend")
    A.label("L_bdone")


def role_post(A):
    SQ, SO = 32, 36
    A.label("L_post")
    A("s_setprio 0")
    A("s_and_b32 s48, s48, 3")
    A("s_sub_u32 s50, s99, 24")
    A("s_lshl_b32 s50, s50, 2")
    A("s_lshl_b32 s51, s99, 1")
    A("s_add_u32 s51, s51, 24")
    A("s_cmp_ge_u32 s99, 24")
    A("s_cselect_b32 s50, s50, s51")
    A("s_mul_i32 s49, s98, 40")
    A("s_add_u32 s49, s49, s50")
    A("s_add_u32 s49, s49, s48")
    A("s_and_b32 s50, s49, 31")
    A("s_lshr_b32 s51, s49, 5")
    A("v_lshrrev_b32 v2, 3, v1")
    A("v_and_b32 v3, 7, v1")
    A("v_lshlrev_b32 v4, 12, v2")
    A("v_lshl_add_u32 v4, v3, 4, v4")
    A("s_lshl_b32 s52, s51, 18")
    A("s_lshl_b32 s53, s50, 7")
    A("s_add_u32 s52, s52, s53")
    A(f"s_add_u32 s52, s52, {WS_YT:#x}")
    A("s_mul_i32 s56, s48, 8320")
    A(f"s_add_u32 s56, s56, {B_PRE}")
    A("s_lshr_b32 s54, s50, 3")
    A("s_lshl_b32 s54, s54, 9")
    A("s_bfe_u32 s55, s50, 0x20001")
    A("s_lshl_b32 s55, s55, 3")
    A("s_add_u32 s54, s54, s55")
    A("s_and_b32 s55, s50, 1")
    A("s_lshl_b32 s55, s55, 1")
    A("s_add_u32 s54, s54, s55")
    A("v_and_b32 v5, 3, v2")
    A("v_lshrrev_b32 v6, 2, v2")
    A("v_lshl_add_u32 v5, v5, 5, v6")
    A("v_mul_u32_u24 v6, 1280, v5")
    A("v_lshlrev_b32 v7, 1, v6")
    A("v_lshl_add_u32 v6, v3, 4, v6")
    A("v_lshl_add_u32 v7, v3, 4, v7")
    A("s_mul_i32 s54, s54, 1280")
    A("s_lshl_b32 s53, s51, 7")
    A("s_lshl_b32 s55, s54, 1")
    A("s_add_u32 s54, s54, s53")
    A("s_add_u32 s55, s55, s53")
    A("s_add_u32 s55, s55, 1280")
    srd(A, SQ, S_BQ, NB_X)
    srd(A, SO, S_OUT, NB_OUT)
    QR, YR = 16, 48
    rows = [0, 4, 128, 132, 256, 260, 384, 388]
    for i in range(8):
        A(f"s_add_u32 s57, s54, {rows[i]*1280}")
        A(f"buffer_load_dwordx4 {vr(QR+4*i,4)}, v6, s[{SQ}:{SQ+3}], s57 offen{Opt.nt_s}")
    A("s_mov_b32 s59, 0xffff0000")
    QF = 128
    A("s_waitcnt vmcnt(0)")
    for i in range(32):
        A(f"v_lshlrev_b32 v{QF+2*i}, 16, v{QR+i}")
        A(f"v_and_b32 v{QF+2*i+1}, s59, v{QR+i}")
    A("s_lshl_b32 s57, s98, 4")
    A("s_sub_u32 s58, s57, 16")
    A("v_min_u32 v12, 47, v1")
    A("v_add_u32 v12, s58, v12")
    A("v_max_i32 v12, 0, v12")
    A("v_min_u32 v12, 127, v12")
    A("v_lshlrev_b32 v12, 7, v12")
    A("s_add_u32 s57, s57, s99")
    A("s_lshl_b32 s57, s57, 7")
    A(f"s_add_u32 s57, s57, {F4-24*128:#x}")
    A(f"s_mov_b32 s58, {F4:#x}")
    Lx, Lq, Ld = A.newlabel("L_p7"), A.newlabel("L_pq"), A.newlabel("L_pd")
    A("s_cmp_ge_u32 s99, 24")
    A(f"s_cbranch_scc0 {Lq}")
    A("s_barrier")
    A("s_cmp_eq_u32 s48, 3")
    A(f"s_cbranch_scc0 {Lx}")
    set_flag(A, 8, "s57")
    poll(A, 14, 12, "s58", sleep=4)
    A.label(Lx)
    A("s_barrier")
    A(f"s_branch {Ld}")
    A.label(Lq)
    A("s_barrier")
    poll(A, 14, 12, "s58", sleep=4)
    A.label(Ld)
    if Opt.dB:
        A(f"s_sleep {Opt.dB}")
    stamp(A, 12)
    for i in range(8):
        A(f"v_xor_b32 v8, {16*i}, v4")
        A(f"s_add_u32 m0, s56, {1024*i}")
        A(f"buffer_load_dwordx4 v8, s[{SWS}:{SWS+3}], s52 offen{SC} lds")
        if i < 7:
            A(f"s_add_u32 s52, s52, {8*4096}")
    A("v_xor_b32 v8, v2, v3")
    A("v_lshlrev_b32 v8, 4, v8")
    A("v_lshl_add_u32 v8, v3, 10, v8")
    A("v_add_u32 v8, s56, v8")
    A("s_waitcnt vmcnt(0)")
    for c in range(8):
        A(f"ds_read_b128 {vr(YR+4*c,4)}, v8 offset:{128*c}")
    A("s_waitcnt lgkmcnt(0)")
    stamp(A, 13)
    YF, OUT = 80, 96
    for i in range(8):
        for c in range(8):
            if i & 1:
                A(f"v_and_b32 v{YF+c}, s59, v{YR+4*c+i//2}")
            else:
                A(f"v_lshlrev_b32 v{YF+c}, 16, v{YR+4*c+i//2}")
        for c in range(0, 8, 2):
            A(f"v_pk_mul_f32 {vr(YF+c,2)}, {vr(YF+c,2)}, {vr(QF+8*i+c,2)}")
        for k in range(4):
            A(f"v_cvt_pk_bf16_f32 v{OUT+4*i+k}, v{YF+2*k}, v{YF+2*k+1}")
        A(f"s_add_u32 s57, s55, {rows[i]*2560}")
        A(f"buffer_store_dwordx4 {vr(OUT+4*i,4)}, v7, s[{SO}:{SO+3}], s57 offen{Opt.oscb}")
    stamp(A, 14)


def build():
    A = Asm()
    k = NAME + "_kernel"
    A.raw(f".globl {k}")
    A.raw(".p2align 8")
    A.raw(f".type {k},@function")
    A.label(k)
    if Opt.hold:
        A("s_memrealtime s[64:65]")
    load_kernargs(A)
    if Opt.lite:
        A("s_memrealtime s[64:65]")
    elif not Opt.hp:
        if Opt.rt:
            for k_ in range(2, 15):
                A(f"s_mov_b32 s{64+2*k_}, 0")
            stamp(A, 0, True)
        else:
            stamp_init(A)
        if Opt.rt:
            stamp(A, 1)
    A("v_lshrrev_b32 v2, 6, v0")
    A("v_and_b32 v1, 63, v0")
    A("v_readfirstlane_b32 s100, v2")
    A("s_and_b32 s98, s2, 7")
    A("s_lshr_b32 s99, s2, 3")
    A("s_cmp_ge_u32 s2, 192")
    A("s_cbranch_scc1 L_b")
    A("s_and_b32 s49, s2, 3")
    A("s_lshl_b32 s49, s49, 2")
    A("s_and_b32 s50, s99, 3")
    A("s_add_u32 s49, s49, s50")
    A("s_bfe_u32 s52, s2, 0x10002")
    A("s_lshr_b32 s53, s2, 5")
    A("s_lshl_b32 s54, s52, 1")
    A("s_add_u32 s54, s54, s53")
    A("s_lshl_b32 s55, s52, 2")
    A("s_add_u32 s55, s55, s53")
    A("s_sub_u32 s55, s55, 2")
    A("s_cmp_lt_u32 s2, 64")
    A("s_cselect_b32 s50, s54, s55")
    A("s_cselect_b32 s51, 1, 0")
    A("s_and_b32 s48, s100, 3")
    A("s_cmp_ge_u32 s100, 4")
    A("s_cbranch_scc1 L_c")
    role_loader(A)
    A.label("L_c")
    role_compute(A)
    A.label("L_b")
    A("s_cmp_ge_u32 s2, 256")
    A("s_cbranch_scc1 L_exit")
    A("s_mov_b32 s48, s100")
    A("s_cmp_ge_u32 s48, 5")
    A("s_cbranch_scc1 L_help")
    role_pre(A)
    A("s_branch L_bconv")
    A.label("L_help")
    role_helper(A)
    A.label("L_bconv")
    role_conv(A)
    A("s_cmp_lt_u32 s48, 4")
    A("s_cbranch_scc1 L_bend")
    role_post(A)
    A.label("L_bend")
    end_wave(A, "b")
    A.label("L_exit")
    A("s_endpgm")
    A.label("L_code_end")
    head = ["; generated by gen/f13.py",
            "; @launch grid=(256,1,1) block=(512,1,1) lds=163840"]
    txt = "\n".join(head) + '\n.amdgcn_target "amdgcn-amd-amdhsa--gfx950"\n.text\n' + A.text()
    txt += f'''.section .rodata,"a"
.p2align 6
.amdhsa_kernel {k}
  .amdhsa_next_free_vgpr 256
  .amdhsa_next_free_sgpr 102
  .amdhsa_accum_offset 256
  .amdhsa_group_segment_fixed_size 0
  .amdhsa_kernarg_size 104
  .amdhsa_user_sgpr_count 2
  .amdhsa_user_sgpr_kernarg_segment_ptr 1
  .amdhsa_system_sgpr_workgroup_id_x 1
.end_amdhsa_kernel
'''
    return txt


if __name__ == "__main__":
    args = sys.argv[2:]
    Ctx.stamps = "stamps" in args
    Opt.rot = "norot" not in args
    Opt.codepf = "nocodepf" not in args
    for a in args:
        if a.startswith("probe="):
            Opt.probe = tuple(int(x) for x in a[6:].split(","))
        if a.startswith("holdwg="):
            Opt.holdwg = int(a[7:])
        if a.startswith("osc="):
            Opt.osc = a[4:].replace("_", " ")
        if a.startswith("oscb="):
            Opt.oscb = a[5:].replace("_", " ")
        if a.startswith("gpf="):
            Opt.gpf = int(a[4:])
        if a.startswith("gpfd="):
            Opt.gpfd = int(a[5:])
        if a.startswith("rotA="):
            Opt.rotA = int(a[5:], 16)
        if a.startswith("rotB="):
            Opt.rotB = int(a[5:], 16)
        if a == "fake16":
            Opt.fake16 = True
        if a.startswith("qdelay="):
            Opt.qdelay = int(a[7:])
        if a.startswith("bpos="):
            Opt.bpos = int(a[5:])
        if a == "lidle":
            Opt.lidle = True
        if a == "noqwait":
            Opt.qwait = False
        if a == "nofwarm":
            Opt.fwarm = False
        if a == "noprog":
            Opt.prog = False
        if a == "nodflag":
            Opt.dflag = False
        if a == "lite":
            Opt.lite = True
            Ctx.stamps = True
        if a.startswith("wos="):
            Opt.wos = int(a[4:])
        if a.startswith("R="):
            Opt.R = int(a[2:])
        if a.startswith("hdef="):
            Opt.hdef = int(a[5:])
        if a.startswith("gpf2="):
            Opt.gpf2 = int(a[5:])
        if a.startswith("oahead="):
            Opt.oahead = int(a[7:])
        if a.startswith("hpsel="):
            Opt.hpsel = a[6:]
        if a.startswith("bdelay="):
            Opt.bdelay = int(a[7:])
        if a.startswith("qdel="):
            Opt.qdel = int(a[5:])
        if a == "snake":
            Opt.snake = True
        if a == "wrot":
            Opt.wrot = True
        if a.startswith("wfirst="):
            Opt.wfirst = int(a[7:])
        if a.startswith("wearly="):
            Opt.wearly = int(a[7:])
        if a.startswith("fwat="):
            Opt.fwat = int(a[5:])
        if a.startswith("only="):
            Opt.only = [0, 1, 15] + [int(x) for x in a[5:].split(",")]
        if a.startswith("touch="):
            Opt.touch = int(a[6:])
        if a.startswith("tsh="):
            Opt.tsh = int(a[4:])
        for nm in ("ldw", "ldo", "ldp"):
            if a.startswith(nm + "="):
                setattr(Opt, nm, a[4:].replace("_", " "))
        if a == "wback":
            Opt.wback = True
        if a.startswith("wthr="):
            Opt.wthr = int(a[5:])
        if a.startswith("wstr="):
            Opt.wstr = int(a[5:])
        if a == "rt":
            Opt.rt = True
        if a.startswith("hp="):
            Opt.hp = int(a[3:])
            Ctx.stamps = True
        if a.startswith("hold="):
            Opt.hold = int(a[5:])
        if a.startswith("dA="):
            Opt.dA = int(a[3:])
        if a.startswith("dB="):
            Opt.dB = int(a[3:])
        if a == "nowomall":
            Opt.womall = False
        if a == "noppoll":
            Opt.ppoll = False
        if a.startswith("psleep="):
            Opt.psleep = int(a[7:])
        if a.startswith("wopf="):
            Opt.wopf = a[5:]
    for a in args:
        if a.startswith("LA="):
            Opt.LA = int(a[3:])
    open(sys.argv[1], "w").write(build())
```

```python
import sys
from asm import Asm, vr, ar, sr
from roles import (WS_PHIQ, WS_PART, WS_O, WS_KVT, WS_YT, WS_STAMP, WS_SIZE, S_X, S_W, S_WPHI, S_WO, S_BQ, S_BK, S_BV,
                   S_SH, S_SSK, S_SSD, S_OUT, S_DBG, S_WS, NB_X, NB_W, NB_WPHI, NB_WO, NB_SH, NB_SSK, NB_OUT, LOG2E,
                   Ctx, load_kernargs, srd, stamp, stamp_init, softmax20)

NAME = "concat_heads__linear_kernel_hedgehog__ssm_conv_h3__prompt"
WS_PQ = WS_PHIQ
WS_FLAG = 0xF00000
F1, F2, F3, F0, F4 = (WS_FLAG + 128 * o for o in (0, 512, 1024, 1536, 1856))
FW = WS_FLAG + 128 * 2048
WS_WOT = 0x400000
WS_EPOCH = WS_FLAG + 128 * 2560 + 64
SWS = 44
SC = " sc1"
TAG = 30
SLOT = 36864
L_WP = 147456
L_Z = L_WP + 8192
L_SYNC = L_Z + 4096
L_V = 128 * 336
L_WOB = 69632
L_OT = 65536
CV_LDS = 8768
L_QCV = 3 * SLOT
B_PRE = 8 * CV_LDS
B_MB = B_PRE + 5 * 8320


class Opt:
    rot = True
    LA = 2
    ntk = " nt"
    nth = " nt"
    ntq = " nt"
    codepf = True
    wopf = "no"
    osc = " sc1 nt"
    oscb = " sc1 nt"
    hp = 0
    wmid = 32
    lprio = 0
    lprio0 = 1
    stw = SC
    noearly = False
    fullout = True
    wthr = 0
    wstr = 40960
    wback = 0
    ldw = SC
    ldo = SC
    ldp = SC
    touch = 0
    tsh = 20
    only = None
    fwat = 8
    par = 0x32
    wearly = 8
    wrot = False
    wfirst = 26
    bdelay = 0
    qdel = 0
    snake = False
    hpsel = "kv"
    oahead = 5
    gpf2 = 3
    hdef = 1
    R = 10
    wos = 1
    lite = False
    dflag = False
    prog = True
    fwarm = True
    qwait = True
    lidle = False
    bpos = 4
    fake16 = False
    qdelay = 0
    rotA = 0x5050
    rotB = 0x550050
    gpf = 0
    gpfd = 99
    rt = False
    ppoll = False
    womall = True
    probe = None
    dA = 0
    hold = 0
    holdwg = -1
    dB = 0
    psleep = 2


_stamp0 = stamp


def stamp(A, k, real=False):
    if Opt.hp:
        if k == Opt.hp:
            A("s_memrealtime s[64:65]")
        return
    if Opt.lite and k not in (0, 15):
        return
    if Opt.only and k not in Opt.only:
        return
    _stamp0(A, k, real or Opt.rt)


def end_wave(A, holdable=False):
    if Opt.hp:
        if (holdable is True and Opt.hpsel in ("kv", "qw")) or (holdable == "b" and Opt.hpsel in ("b", "qs")):
            L = A.newlabel("L_hp")
            A("s_cmp_lt_u32 s99, 8")
            A("s_cbranch_scc1 L_exit" if Opt.hpsel in ("kv", "b") else "s_cbranch_scc0 L_exit")
            if holdable == "b":
                A("s_cmp_lt_u32 s100, 4")
                A("s_cbranch_scc1 L_exit")
            A.label(L)
            A("s_sleep 4")
            A("s_memrealtime s[66:67]")
            A("s_waitcnt lgkmcnt(0)")
            A("s_sub_u32 s66, s66, s64")
            A("s_cmp_lt_u32 s66, 2000")
            A(f"s_cbranch_scc1 {L}")
    elif Ctx.stamps:
        A("s_waitcnt vmcnt(0)")
        stamp(A, 15, True)
        A("s_waitcnt lgkmcnt(0)")
        A("s_mov_b64 exec, -1")
        A("v_mov_b32 v2, 0")
        for k in ((0, 15) if Opt.lite else range(16)):
            A(f"v_writelane_b32 v2, s{64+2*k}, {k}")
        A("s_lshl_b32 s62, s2, 3")
        A("s_add_u32 s62, s62, s100")
        A("s_lshl_b32 s62, s62, 6")
        A(f"s_add_u32 s62, s62, {WS_STAMP:#x}")
        A("v_lshlrev_b32 v1, 2, v1")
        A("s_mov_b64 exec, 0xffff")
        A(f"buffer_store_dword v2, v1, s[{SWS}:{SWS+3}], s62 offen")
        if Opt.probe:
            Lp = A.newlabel("L_probe")
            A(f"s_cmp_eq_u32 s2, {Opt.probe[0]}")
            A(f"s_cbranch_scc0 {Lp}")
            A(f"s_cmp_eq_u32 s100, {Opt.probe[1]}")
            A(f"s_cbranch_scc0 {Lp}")
            A("v_subrev_u32 v3, s66, v2")
            A("s_sub_u32 s62, s94, s64")
            A("v_writelane_b32 v3, s62, 15")
            A("v_cmp_ne_u32 vcc, 0, v2")
            A("v_cndmask_b32 v3, 0, v3, vcc")
            A("s_mov_b64 exec, 0xfffc")
            A(f"global_store_dword v1, v3, s[{S_DBG}:{S_DBG+1}]")
            A.label(Lp)
    A("s_endpgm")


def stampw(A, k):
    stamp(A, k)
    if Ctx.stamps:
        A("s_waitcnt lgkmcnt(0)")


def poll(A, vt, voff, soff, sleep=1):
    L, Ld = A.newlabel("L_poll"), A.newlabel("L_polld")
    A("s_movk_i32 s101, 0x4000")
    A.label(L)
    A(f"buffer_load_dwordx2 {vr(vt,2)}, v{voff}, s[{SWS}:{SWS+3}], {soff} offen{SC}")
    A("s_waitcnt vmcnt(0)")
    A(f"v_cmp_eq_u64 vcc, s[{TAG}:{TAG+1}], {vr(vt,2)}")
    A("s_cmp_eq_u64 vcc, -1")
    A(f"s_cbranch_scc1 {Ld}")
    A(f"s_sleep {sleep}")
    A("s_sub_u32 s101, s101, 1")
    A("s_cmp_eq_u32 s101, 0")
    A(f"s_cbranch_scc0 {L}")
    A("s_endpgm")
    A.label(Ld)


def ppoll(A, vt, voff, soff, sleep=1, depth=4):
    if not Opt.ppoll:
        return poll(A, vt, voff, soff, sleep=sleep)
    L, Ld = A.newlabel("L_pp"), A.newlabel("L_ppd")
    ld = lambda k: f"buffer_load_dwordx2 {vr(vt+2*k,2)}, v{voff}, s[{SWS}:{SWS+3}], {soff} offen{SC}"
    A("s_movk_i32 s101, 0x4000")
    for k in range(depth - 1):
        A(ld(k))
        A(f"s_sleep {sleep}")
    A.label(L)
    for k in range(depth):
        A(ld((k + depth - 1) % depth))
        A(f"s_waitcnt vmcnt({depth-1})")
        A(f"v_cmp_eq_u64 vcc, s[{TAG}:{TAG+1}], {vr(vt+2*k,2)}")
        A("s_cmp_eq_u64 vcc, -1")
        A(f"s_cbranch_scc1 {Ld}")
        A(f"s_sleep {sleep}")
    A("s_sub_u32 s101, s101, 1")
    A("s_cmp_eq_u32 s101, 0")
    A(f"s_cbranch_scc0 {L}")
    A("s_endpgm")
    A.label(Ld)


def set_flag(A, vt, soff):
    A(f"v_mov_b32 v{vt}, s{TAG}")
    A(f"v_mov_b32 v{vt+1}, s{TAG+1}")
    A(f"v_lshlrev_b32 v{vt+2}, 3, v1")
    A("s_waitcnt vmcnt(0)")
    A("s_mov_b64 exec, 0xffff")
    A(f"buffer_store_dwordx2 {vr(vt,2)}, v{vt+2}, s[{SWS}:{SWS+3}], {soff} offen{SC}")
    A("s_mov_b64 exec, -1")


def tag_issue(A):
    A(f"s_load_dwordx2 s[{TAG}:{TAG+1}], s[{S_DBG}:{S_DBG+1}], 0")


def tag_check(A, vt):
    L, Ld = A.newlabel("L_hs"), A.newlabel("L_hsd")
    A("s_waitcnt lgkmcnt(0)")
    A(f"s_cmp_lg_u32 s{TAG}, s{TAG+1}")
    A(f"s_cbranch_scc1 {Ld}")
    A("s_movk_i32 s101, 0x4000")
    A(f"v_mov_b32 v{vt+2}, 0")
    A.label(L)
    A(f"global_load_dwordx2 {vr(vt,2)}, v{vt+2}, s[{S_DBG}:{S_DBG+1}]{SC}")
    A("s_waitcnt vmcnt(0)")
    A(f"v_readfirstlane_b32 s{TAG}, v{vt}")
    A(f"v_readfirstlane_b32 s{TAG+1}, v{vt+1}")
    A("s_nop 3")
    A(f"s_cmp_lg_u32 s{TAG}, s{TAG+1}")
    A(f"s_cbranch_scc1 {Ld}")
    A("s_sleep 8")
    A("s_sub_u32 s101, s101, 1")
    A("s_cmp_eq_u32 s101, 0")
    A(f"s_cbranch_scc0 {L}")
    A("s_endpgm")
    A.label(Ld)


def lds_arrive(A, vt, addr):
    A(f"v_mov_b32 v{vt}, {addr}")
    A(f"v_mov_b32 v{vt+1}, 1")
    A("s_waitcnt lgkmcnt(0)")
    A("s_mov_b64 exec, 1")
    A(f"ds_add_u32 v{vt}, v{vt+1}")
    A("s_mov_b64 exec, -1")


def lds_wait(A, vt, addr, n, sleep=0):
    L, Ld = A.newlabel("L_lw"), A.newlabel("L_lwd")
    if addr is not None:
        A(f"v_mov_b32 v{vt}, {addr}")
    A("s_mov_b32 s101, 0x40000")
    A.label(L)
    A(f"ds_read_b32 v{vt+1}, v{vt}")
    A("s_waitcnt lgkmcnt(0)")
    A(f"v_cmp_le_u32 vcc, {n}, v{vt+1}")
    A(f"s_cbranch_vccnz {Ld}")
    if sleep:
        A(f"s_sleep {sleep}")
    A("s_sub_u32 s101, s101, 1")
    A("s_cmp_eq_u32 s101, 0")
    A(f"s_cbranch_scc0 {L}")
    A("s_endpgm")
    A.label(Ld)


class Lgkm:
    def __init__(self, A):
        self.A, self.n, self.done, self.tag = A, 0, 0, {}

    def issue(self, text, tag=None):
        self.A(text)
        self.n += 1
        if tag is not None:
            self.tag[tag] = self.n

    def wait(self, *tags):
        need = max(self.tag[t] for t in tags)
        if need > self.done:
            self.A(f"s_waitcnt lgkmcnt({min(15, self.n - need)})")
            self.done = max(need, self.n - 15)

    def all(self):
        if self.done < self.n:
            self.A("s_waitcnt lgkmcnt(0)")
            self.done = self.n


def softmax_parts(X, E, F, T, PH):
    mx, mn = T, T + 2
    mm = [f"v_max3_f32 v{mx}, v{X}, v{X+1}, v{X+2}", f"v_min3_f32 v{mn}, v{X}, v{X+1}, v{X+2}"]
    for i in range(3, 19, 2):
        mm += [f"v_max3_f32 v{mx}, v{mx}, v{X+i}, v{X+i+1}", f"v_min3_f32 v{mn}, v{mn}, v{X+i}, v{X+i+1}"]
    mm += [f"v_max_f32 v{mx}, v{mx}, v{X+19}", f"v_min_f32 v{mn}, v{mn}, v{X+19}",
           f"v_mul_f32 v{mx}, s60, v{mx}", f"v_mul_f32 v{mn}, s60, v{mn}"]
    fm, ex = [], []
    for i in range(0, 20, 2):
        fm.append(f"v_pk_fma_f32 {vr(E+i,2)}, {vr(X+i,2)}, s[60:61], {vr(mx,2)} op_sel_hi:[1,1,0] neg_lo:[0,0,1] neg_hi:[0,0,1]")
        fm.append(f"v_pk_fma_f32 {vr(F+i,2)}, {vr(X+i,2)}, s[60:61], {vr(mn,2)} op_sel_hi:[1,1,0] neg_lo:[1,0,0] neg_hi:[1,0,0]")
    for i in range(20):
        ex += [f"v_exp_f32 v{E+i}, v{E+i}", f"v_exp_f32 v{F+i}, v{F+i}"]
    se, sf = T + 4, T + 6
    sm = [f"v_pk_add_f32 {vr(se,2)}, {vr(E,2)}, {vr(E+2,2)}", f"v_pk_add_f32 {vr(sf,2)}, {vr(F,2)}, {vr(F+2,2)}"]
    for i in range(4, 20, 2):
        sm += [f"v_pk_add_f32 {vr(se,2)}, {vr(se,2)}, {vr(E+i,2)}", f"v_pk_add_f32 {vr(sf,2)}, {vr(sf,2)}, {vr(F+i,2)}"]
    fin = [f"v_add_f32 v{se}, v{se}, v{se+1}", f"v_add_f32 v{sf}, v{sf}, v{sf+1}",
           f"v_rcp_f32 v{se}, v{se}", f"v_rcp_f32 v{sf}, v{sf}"]
    tail = []
    for j in range(20):
        R, s_ = (E + 2 * j, se) if j < 10 else (F + 2 * (j - 10), sf)
        tail.append((f"v_pk_mul_f32 {vr(R,2)}, {vr(R,2)}, {vr(s_,2)} op_sel_hi:[1,0]", f"v_cvt_pk_bf16_f32 v{PH+j}, v{R}, v{R+1}"))
    return mm, fm, ex, sm, fin, tail


def merge(main, extra, every, start=0):
    out, extra = [], list(extra)
    for i, x in enumerate(main):
        out.append(x)
        if extra and i >= start and (i - start) % every == every - 1:
            out.append(extra.pop(0))
    return out + extra


def touch(A, v, sd, shift):
    A(f"v_lshlrev_b32 v{v}, {shift}, v1")
    A(f"buffer_load_dword v{v+1}, v{v}, s[{SWS}:{SWS+3}], 0 offen")
    srd(A, sd, S_OUT, NB_OUT)
    A(f"buffer_load_dword v{v+2}, v{v}, s[{sd}:{sd+3}], 0 offen")


def o_index(A):
    A("s_sub_u32 s63, s99, 8")
    A("s_lshr_b32 s62, s63, 2")
    A("s_lshl_b32 s3, s98, 2")
    A("s_add_u32 s62, s62, s3")
    A("s_and_b32 s63, s63, 3")
    A("s_lshl_b32 s63, s63, 2")
    A("s_add_u32 s63, s63, s48")


WR = 64


def wo_index(A):
    A("s_lshr_b32 s50, s99, 2")
    A("s_sub_u32 s50, s50, 1")
    A("s_max_i32 s50, s50, 0")
    A("s_lshl_b32 s50, s50, 2")
    A("s_add_u32 s50, s50, s48")
    A("s_lshl_b32 s52, s50, 6")
    A(f"s_mul_i32 s51, s50, {Opt.wstr}")
    A(f"s_add_u32 s51, s51, {WS_WOT:#x}")
    A("s_lshl_b32 s54, s50, 10")
    A(f"s_add_u32 s54, s54, {FW:#x}")
    A("v_lshlrev_b32 v18, 4, v1")


def wload(A, f0, f1):
    for f in range(f0, f1):
        if Opt.wthr and f >= Opt.wearly + 2:
            A(f"s_waitcnt vmcnt({Opt.wthr-1})")
        if Opt.only and f in (14, 22, 30, 38):
            stamp(A, {14: 2, 22: 3, 30: 4, 38: 5}[f])
        if f % 4 == 0 or f == f0:
            A(f"s_add_u32 s53, s51, {4096*(f//4)}")
        A(f"buffer_load_dwordx4 {vr(WR+4*f,4)}, v18, s[{SWS}:{SWS+3}], s53 offen offset:{1024*(f&3)}{Opt.ldw}")


def role_loader(A):
    SX, SW, SP = 32, 36, 40
    VX, VW = 24, 28
    t0, t1, t2, t3 = 11, 12, 13, 14
    A(f"s_setprio {Opt.lprio0}")
    A(f"v_lshrrev_b32 v{t0}, 3, v1")
    A(f"v_mul_u32_u24 v{t0}, 1280, v{t0}")
    A(f"v_lshrrev_b32 v{t1}, 4, v1")
    A(f"v_and_b32 v{t2}, 7, v1")
    A(f"v_xor_b32 v{t1}, v{t1}, v{t2}")
    A(f"v_xor_b32 v{t2}, 4, v{t1}")
    A(f"v_lshl_add_u32 v{VX}, v{t1}, 4, v{t0}")
    A(f"v_lshl_add_u32 v{VX+1}, v{t2}, 4, v{t0}")
    A(f"v_add_u32 v{VX+2}, {2*(8*1280-1024)}, v{VX}")
    A(f"v_add_u32 v{VX+3}, {3*(8*1280-1024)}, v{VX+1}")
    A(f"v_add_u32 v{VX+1}, {8*1280-1024}, v{VX+1}")
    A("s_lshl_b32 s60, s49, 2")
    A("s_add_u32 s60, s60, s48")
    A(f"s_mul_i32 s60, s60, {32*1280}")
    A("s_lshr_b32 s30, s99, 2")
    A(f"s_lshr_b32 s30, {Opt.par:#x}, s30")
    A("s_xor_b32 s30, s30, s49")
    A("s_and_b32 s30, s30, 1")
    A("s_mul_i32 s31, s30, 640")
    A("s_add_u32 s60, s60, s31")
    A("s_lshl_b32 s62, s48, 12")
    A("s_mov_b32 m0, s62")
    A(f"s_mov_b32 s{SX+2}, {NB_X:#x}")
    A(f"s_mov_b32 s{SX+3}, 0x20000")
    A("s_waitcnt lgkmcnt(0)")
    A(f"s_mov_b64 s[{SX}:{SX+1}], s[{S_X}:{S_X+1}]")

    def dma_x(s):
        if s:
            A(f"s_add_u32 m0, s62, {(s % 3) * SLOT}")
        for i in range(4):
            A(f"buffer_load_dwordx4 v{VX+i}, s[{SX}:{SX+3}], s60 offen offset:{1024*i} lds")

    def dma_w(s):
        sl = (s % 3) * SLOT
        A(f"s_add_u32 m0, s63, {sl}")
        for i in range(4):
            A(f"buffer_load_dwordx4 v{VW+i}, s[{SW}:{SW+3}], s61 offen offset:{1024*i} lds")
        A(f"s_add_u32 m0, s63, {sl+4096}")
        A(f"buffer_load_dwordx4 v{VW+4}, s[{SW}:{SW+3}], s61 offen lds")
        if s < 9:
            if s == 4:
                A("s_add_u32 s60, s60, s97")
                A("s_add_u32 s61, s61, s96")
            else:
                A("s_add_u32 s60, s60, 128")
                A(f"s_add_u32 s61, s61, {64*3840}")

    dma_x(0)
    A("s_cmp_eq_u32 s51, 0")
    A("s_cselect_b32 s56, 1120, 0")
    A("s_add_u32 s58, s51, 1")
    A(f"v_xor_b32 v15, s58, v1")
    A(f"v_cmp_gt_u32 vcc, 32, v1")
    A("s_movk_i32 s57, 3520")
    A(f"v_cndmask_b32 v16, v15, v1, vcc")
    for i in range(5):
        src = (1, 1, 16, 15, 15)[i]
        A(f"v_add_u32 v{t2}, {64*i}, v{src}")
        A(f"v_mul_u32_u24 v{t2}, 6554, v{t2}")
        A(f"v_lshlrev_b32 v{t3}, 4, v{src}")
        A(f"v_lshrrev_b32 v{t0}, 17, v{t2}")
        A(f"v_bfe_u32 v{t1}, v{t2}, 16, 1")
        A(f"v_mad_u32_u24 v{t0}, v{t0}, s57, v{t3}")
        A(f"v_mad_u32_u24 v{VW+i}, v{t1}, s56, v{t0}")
    A(f"v_lshlrev_b32 v{t3}, 4, v1")
    A(f"v_add_u32 v{VW+4}, 4096, v{VW+4}")
    A(f"s_mul_i32 s61, s48, {16*3840}")
    A("s_mul_i32 s57, s50, 160")
    A("s_add_u32 s58, s57, 1280")
    A("s_lshl_b32 s57, s57, 1")
    A("s_cmp_eq_u32 s51, 0")
    A("s_cselect_b32 s57, s58, s57")
    A("s_add_u32 s61, s61, s57")
    A(f"s_mul_i32 s96, s30, {5*64*3840}")
    A("s_add_u32 s61, s61, s96")
    A("s_mul_i32 s63, s48, 5120")
    A("s_add_u32 s63, s63, 16384")
    srd(A, SW, S_W, NB_W)
    dma_w(0)
    stamp(A, 2)
    A("s_lshl_b32 s96, s96, 1")
    A(f"s_sub_u32 s96, {64*3840}, s96")
    A("s_lshl_b32 s97, s31, 1")
    A("s_sub_u32 s97, 128, s97")
    A("s_mul_i32 s57, s50, 3200")
    A("s_lshl_b32 s57, s57, s51")
    A("s_lshl_b32 s58, s48, 11")
    A("s_add_u32 s57, s57, s58")
    srd(A, SP, S_WPHI, NB_WPHI)
    A(f"s_add_u32 m0, s58, {L_WP}")
    A(f"buffer_load_dwordx4 v{t3}, s[{SP}:{SP+3}], s57 offen lds")
    A(f"buffer_load_dwordx4 v{t3}, s[{SP}:{SP+3}], s57 offen offset:1024 lds")
    srd(A, SWS, S_WS, WS_SIZE)
    Lh = A.newlabel("L_noh")
    A("s_cmp_eq_u32 s51, 0")
    A(f"s_cbranch_scc1 {Lh}")
    A("s_mul_i32 s49, s98, 80")
    A("s_lshl_b32 s50, s99, 2")
    A("s_add_u32 s49, s49, s50")
    A("s_add_u32 s49, s49, s48")
    A("s_add_u32 s49, s49, 48")
    A(f"s_mul_i32 s56, s48, {CV_LDS}")
    A(f"s_add_u32 s56, s56, {L_QCV}")
    A("s_lshl_b32 s50, s49, 12")
    A.label(Lh)
    assert Opt.LA == 2
    issued = 0
    for s in range(10):
        while issued < min(s + Opt.LA - 1, 9):
            issued += 1
            dma_x(issued)
            dma_w(issued)
        if s == 0:
            Ls = A.newlabel("L_nosetup")
            A("s_cmp_ge_u32 s99, 8")
            A(f"s_cbranch_scc1 {Ls}")
            conv_setup(A)
            f0_lines(A, 49, 49, 12)
            A.label(Ls)
        if s == 6:
            tag_issue(A)
        if s == Opt.fwat:
            Lf = A.newlabel("L_nofw")
            A("s_cmp_lt_u32 s99, 8")
            A(f"s_cbranch_scc1 {Lf}")
            wo_index(A)
            A(f"s_add_u32 s42, s{S_WS}, s54")
            A(f"s_addc_u32 s43, s{S_WS+1}, 0")
            for k in range(8):
                A(f"s_load_dwordx2 s[{4+2*k}:{5+2*k}], s[42:43], {128*k}")
            A.label(Lf)
        if s == 9:
            A("s_cmp_lt_u32 s99, 8")
            A("s_cbranch_scc1 L_q9")
            A("s_waitcnt lgkmcnt(0)")
            A("s_mov_b32 s3, 0")
            for k in range(8):
                A(f"s_cmp_eq_u64 s[{4+2*k}:{5+2*k}], s[{TAG}:{TAG+1}]")
                A("s_addc_u32 s3, s3, 0")
            A(f"s_cmp_lg_u32 s{TAG}, s{TAG+1}")
            A("s_addc_u32 s3, s3, 0")
            A(f"s_cmp_eq_u32 s3, {19 if Opt.noearly else 9}")
            A("s_cbranch_scc0 L_q9")
            wload(A, 0, Opt.wearly)
            A(f"s_waitcnt vmcnt({Opt.wearly})")
            A("s_barrier")
            stamp(A, 6)
            wload(A, Opt.wearly, Opt.wearly + 2)
            A("s_barrier")
            A("s_branch L_wrest")
            A.label("L_q9")
        A(f"s_waitcnt vmcnt({9*(issued-s)})")
        A("s_barrier")
        if s in (0, 3, 6, 9):
            stamp(A, 3 + s // 3)
    A("s_setprio 0")
    A("s_cmp_lt_u32 s99, 8")
    A("s_cbranch_scc1 L_conv")
    role_wo(A)


def role_wo(A):
    SO, SWO = 32, 36
    A.label("L_wo")
    A(f"s_setprio {Opt.lprio}")
    wo_index(A)
    A("v_lshrrev_b32 v15, 3, v1")
    A("v_lshlrev_b32 v15, 7, v15")
    A("v_lshlrev_b32 v18, 4, v1")
    tag_check(A, 20)
    A(f"buffer_load_dwordx2 v[16:17], v15, s[{SWS}:{SWS+3}], s54 offen{SC}")
    Lj, Lk = A.newlabel("L_woj"), A.newlabel("L_wok")
    A("s_cmp_lt_u32 s99, 8")
    A(f"s_cbranch_scc1 {Lj}")
    A("s_barrier")
    A.label(Lj)
    A("s_waitcnt vmcnt(0)")
    A(f"v_cmp_eq_u64 vcc, s[{TAG}:{TAG+1}], v[16:17]")
    A("s_cmp_eq_u64 vcc, -1")
    A(f"s_cbranch_scc1 {Lk}")
    poll(A, 16, 15, "s54", sleep=8)
    A.label(Lk)

    wload(A, 0, Opt.wearly + 2)
    A.label("L_wrest")
    A(f"s_setprio {Opt.lprio}")
    wload(A, Opt.wearly + 2, Opt.wfirst)
    A("v_lshrrev_b32 v2, 2, v1")
    A("v_and_b32 v3, 3, v1")
    A("s_mul_i32 s53, s48, 20480")
    A(f"s_add_u32 s53, s53, {L_WOB}")
    A("v_lshrrev_b32 v11, 5, v1")
    A("v_and_b32 v9, 31, v1")
    A("v_lshrrev_b32 v15, 4, v1")
    A("v_lshlrev_b32 v15, 7, v15")
    o_index(A)
    Lq1, Lq2 = A.newlabel("L_woq"), A.newlabel("L_woq")
    A("s_cmp_lt_u32 s99, 8")
    A(f"s_cbranch_scc1 {Lq2}")
    A("s_lshr_b32 s54, s62, 2")
    A("s_lshl_b32 s54, s54, 4")
    A("s_add_u32 s54, s54, s63")
    A("s_lshl_b32 s54, s54, 8")
    A("v_lshlrev_b32 v19, 7, v11")
    A(f"s_add_u32 s54, s54, {F2:#x}")
    A("s_lshl_b32 s55, s62, 4")
    A("s_add_u32 s55, s55, s63")
    A("s_mul_i32 s55, s55, 5120")
    poll(A, 16, 19, "s54", sleep=4)
    A("s_mov_b32 m0, s53")
    A("s_add_u32 s54, s55, 4096")
    for i in range(4):
        A(f"buffer_load_dwordx4 v18, s[{SWS}:{SWS+3}], s55 offen offset:{1024*i}{SC} lds")
    A("s_add_u32 m0, s53, 4096")
    A(f"buffer_load_dwordx4 v18, s[{SWS}:{SWS+3}], s54 offen{SC} lds")
    A("s_lshl_b32 s54, s48, 2")
    A(f"s_add_u32 s54, s54, {L_SYNC+16}")
    A("s_waitcnt vmcnt(0)")
    lds_arrive(A, 16, "s54")
    stamp(A, 14)
    A("s_lshl_b32 s54, s62, 2")
    A("s_add_u32 s54, s54, s48")
    A("s_mul_i32 s55, s54, 10240")
    A(f"s_add_u32 s55, s55, {WS_PART:#x}")
    A("s_lshl_b32 s54, s54, 9")
    A(f"s_add_u32 s54, s54, {F1:#x}")
    A("v_min_u32 v19, 20, v9")
    A("v_and_b32 v20, 32, v1")
    A("v_add_u32 v19, v19, v20")
    A("v_lshlrev_b32 v20, 3, v19")
    A("v_lshlrev_b32 v19, 4, v19")
    A("s_mul_i32 s57, s48, 5120")
    A("v_add_u32 v21, s57, v18")
    A("s_mov_b32 s59, 0xffff0000")
    lds_wait(A, 16, L_SYNC + 4, 4, sleep=2)
    stamp(A, 7)
    wload(A, Opt.wfirst, max(Opt.wmid, Opt.wfirst))
    PR = [24, 34, 44, 54]
    SM, TP = 224, 244

    def pload(p):
        so = "s55" if p < 1 else f"s{40+p}"
        A(f"buffer_load_dwordx4 {vr(PR[p],4)}, v19, s[{SWS}:{SWS+3}], {so} offen{Opt.ldp}")
        A(f"buffer_load_dwordx4 {vr(PR[p]+4,4)}, v19, s[{SWS}:{SWS+3}], {so} offen offset:1024{Opt.ldp}")
        A(f"buffer_load_dwordx2 {vr(PR[p]+8,2)}, v20, s[{SWS}:{SWS+3}], {so} offen offset:2048{Opt.ldp}")

    for p in (1, 2, 3):
        A(f"s_add_u32 s{40+p}, s55, {2560*p}")
    if Opt.prog:
        L, Ld = A.newlabel("L_pg"), A.newlabel("L_pgd")
        A("s_mov_b64 s[56:57], 0")
        A("s_movk_i32 s101, 0x4000")
        A.label(L)
        A(f"buffer_load_dwordx2 v[16:17], v15, s[{SWS}:{SWS+3}], s54 offen{SC}")
        A("s_waitcnt vmcnt(0)")
        A(f"v_cmp_eq_u64 vcc, s[{TAG}:{TAG+1}], v[16:17]")
        A("s_andn2_b64 s[50:51], vcc, s[56:57]" if False else "s_andn2_b64 s[96:97], vcc, s[56:57]")
        A("s_mov_b64 s[56:57], vcc")
        for p in range(4):
            Ls = A.newlabel("L_pgs")
            A(f"s_bitcmp1_b64 s[96:97], {16*p}")
            A(f"s_cbranch_scc0 {Ls}")
            pload(p)
            A.label(Ls)
        A("s_cmp_eq_u64 s[56:57], -1")
        A(f"s_cbranch_scc1 {Ld}")
        A(f"s_sleep {Opt.psleep}")
        A("s_sub_u32 s101, s101, 1")
        A(f"s_cbranch_scc0 {L}")
        A("s_endpgm")
        A.label(Ld)
        stamp(A, 12)
        A("s_waitcnt vmcnt(0)")
    else:
        ppoll(A, 244, 15, "s54", sleep=Opt.psleep)
        stamp(A, 12)
        for p in range(4):
            pload(p)
    A("s_setprio 3")
    for p in range(4):
        A(f"s_waitcnt vmcnt({9-3*p})")
        for i in range(10):
            d = SM + 2 * i if p == 0 else TP + 2 * (i % 5)
            A(f"v_lshlrev_b32 v{d}, 16, v{PR[p]+i}")
            A(f"v_and_b32 v{d+1}, s59, v{PR[p]+i}")
            if p:
                A(f"v_pk_add_f32 {vr(SM+2*i,2)}, {vr(SM+2*i,2)}, {vr(d,2)}")
    for q in range(5):
        A(f"ds_write_b128 v21, {vr(SM+4*q,4)} offset:{1024*q}")
    lds_arrive(A, 16, L_SYNC + 8)
    A("s_setprio 0")
    stamp(A, 13)
    if Opt.wmid > Opt.wfirst:
        Lq3 = A.newlabel("L_woq")
        A(f"s_branch {Lq3}")
    A.label(Lq2)
    if Opt.wmid > Opt.wfirst:
        wload(A, Opt.wfirst, Opt.wmid)
        A.label(Lq3)
    wload(A, max(Opt.wmid, Opt.wfirst), 40)
    srd(A, SO, S_OUT, NB_OUT)
    A("s_and_b32 s54, s99, 3")
    A("s_lshl_b32 s55, s98, 2")
    A("s_add_u32 s54, s54, s55")
    A("s_lshr_b32 s55, s54, 1")
    A("s_lshl_b32 s55, s55, 12")
    A(f"s_add_u32 s55, s55, {F3:#x}")
    A("s_lshl_b32 s57, s48, 10")
    A("s_add_u32 s55, s55, s57")
    A("v_lshrrev_b32 v15, 3, v1")
    A("v_lshlrev_b32 v15, 7, v15")
    A("s_mul_i32 s57, s54, 81920")
    A(f"s_add_u32 s57, s57, {WS_O:#x}")
    A("s_lshr_b32 s58, s48, 1")
    A("s_mul_i32 s58, s58, 40960")
    A("s_and_b32 s59, s48, 1")
    A("s_lshl_b32 s59, s59, 12")
    A("s_add_u32 s58, s58, s59")
    A("s_add_u32 s57, s57, s58")
    A(f"s_add_u32 s58, s58, {L_OT}")
    A("v_mov_b32 v5, v18")
    A(f"v_add_u32 v6, {L_OT}, v5")
    A(f"v_add_u32 v7, {L_OT+40960}, v5")
    A("v_lshlrev_b32 v10, 3, v9")
    A("v_lshl_add_u32 v10, v11, 9, v10")
    A(f"v_add_u32 v10, {L_OT+32768}, v10")
    if Opt.fullout:
        A("s_lshl_b32 s56, s48, 6")
        A("s_waitcnt lgkmcnt(0)")
        A("v_mul_u32_u24 v12, 272, v9")
        A("v_lshl_add_u32 v12, v11, 5, v12")
        A("v_add_u32 v12, s56, v12")
        A("v_lshrrev_b32 v2, 4, v1")
        A("v_and_b32 v3, 15, v1")
        A("v_mul_u32_u24 v13, 272, v2")
        A("v_lshl_add_u32 v13, v3, 4, v13")
        A(f"s_mul_i32 s59, s48, {16*272}")
        A("v_add_u32 v13, s59, v13")
        A("v_mul_u32_u24 v14, 2560, v2")
        A("v_lshl_add_u32 v14, v3, 4, v14")
        A("s_lshl_b32 s59, s54, 2")
        A("s_add_u32 s59, s59, s48")
        A(f"s_mul_i32 s59, s59, {16*2560}")
        A("s_add_u32 s59, s59, s52")
        A("s_sub_u32 s59, s59, s56")
    else:
        A("s_mul_i32 s56, s48, 5120")
        A("s_waitcnt lgkmcnt(0)")
        A("v_mul_u32_u24 v12, 80, v9")
        A("v_lshl_add_u32 v12, v11, 5, v12")
        A("v_add_u32 v12, s56, v12")
        A("v_mul_u32_u24 v13, 80, v2")
        A("v_lshl_add_u32 v13, v3, 4, v13")
        A("v_add_u32 v13, s56, v13")
        A("v_mul_u32_u24 v14, 2560, v2")
        A("v_lshl_add_u32 v14, v3, 4, v14")
        A(f"s_mul_i32 s59, s54, {64*2560}")
        A("s_add_u32 s59, s59, s52")
    lds_wait(A, 16, L_SYNC + 12, 4, sleep=2)
    stamp(A, 8)
    ppoll(A, 48, 15, "s55", sleep=Opt.psleep)
    A("s_barrier")
    stamp(A, 9)
    def oissue(k):
        A(f"s_add_u32 m0, s58, {8192*k}")
        for i in range(4):
            A(f"buffer_load_dwordx4 v5, s[{SWS}:{SWS+3}], s57 offen offset:{1024*i}{Opt.ldo} lds")
        if k < 4:
            A("s_add_u32 s57, s57, 8192")

    for k in range(Opt.oahead):
        oissue(k)
    if Ctx.stamps:
        A("s_waitcnt lgkmcnt(0)")
    ACC = (16, 32)
    OFB = 224
    T = Lgkm(A)

    def rdx(f):
        if f % 8 == 0:
            k = f // 8
            A(f"s_waitcnt vmcnt({4*(min(k+Opt.oahead,5)-k-1)})")
            A("s_barrier")
            if k + Opt.oahead < 5:
                oissue(k + Opt.oahead)
        for t in range(2):
            d = OFB + 4 * ((2 * f + t) % 8)
            if f < 32:
                T.issue(f"ds_read_b128 {vr(d,4)}, v{6+t} offset:{1024*f}", (f, t))
            else:
                a = f - 32
                T.issue(f"ds_read_b64 {vr(d,2)}, v10 offset:{40960*t + 1024*a}")
                T.issue(f"ds_read_b64 {vr(d+2,2)}, v10 offset:{40960*t + 1024*a + 256}", (f, t))

    for f in range(3):
        rdx(f)
    for f in range(40):
        for t in range(2):
            T.wait((f, t))
            c = vr(ACC[t], 16) if f else "0"
            A(f"v_mfma_f32_32x32x16_bf16 {vr(ACC[t],16)}, {vr(WR+4*f,4)}, {vr(OFB+4*((2*f+t)%8),4)}, {c}")
            if t == 0 and f + 3 < 40:
                rdx(f + 3)
    stamp(A, 10)
    for t in range(2):
        for i in range(8):
            A(f"v_cvt_pk_bf16_f32 v{48+8*t+i}, v{ACC[t]+2*i}, v{ACC[t]+2*i+1}")
        for i in range(2):
            A(f"ds_write_b128 v12, {vr(48+8*t+4*i,4)} offset:{(32*272 if Opt.fullout else 2560)*t+16*i}")
    A("s_waitcnt lgkmcnt(0)")
    if Opt.fullout:
        A("s_barrier")
    for i in range(4):
        A(f"ds_read_b128 {vr(64+4*i,4)}, v13 offset:{(4*272 if Opt.fullout else 1280)*i}")
    for i in range(4):
        A(f"s_waitcnt lgkmcnt({3-i})")
        A(f"buffer_store_dwordx4 {vr(64+4*i,4)}, v14, s[{SO}:{SO+3}], s59 offen{Opt.osc}")
        if i < 3:
            A(f"s_add_u32 s59, s59, {(4 if Opt.fullout else 16)*2560}")
    stamp(A, 11)
    end_wave(A, True)


def role_compute(A):
    ACC = 16
    WF = (96, 116)
    XF = (136, 152)
    XA, WA, AD = 168, 172, 182
    t0, t1, t2, t3 = 11, 12, 13, 14
    for i in range(80):
        A(f"v_mov_b32 v{ACC+i}, 0")
    A(f"v_and_b32 v{t0}, 255, v0")
    A(f"v_lshlrev_b32 v{t0}, 4, v{t0}")
    A(f"v_add_u32 v{t0}, {L_Z}, v{t0}")
    A(f"ds_write_b128 v{t0}, {vr(ACC,4)}")
    A(f"ds_write_b128 v{t0}, {vr(ACC,4)} offset:64")
    A("s_lshr_b32 s52, s48, 1")
    A("s_and_b32 s53, s48, 1")
    S16, G4, R4, C4 = 183, 184, 185, 186
    A(f"v_and_b32 v{S16}, 15, v1")
    A(f"v_lshrrev_b32 v{G4}, 4, v1")
    A(f"v_bfe_u32 v{R4}, v1, 2, 2")
    A(f"v_and_b32 v{C4}, 3, v1")
    A(f"v_bfe_u32 v{t2}, v1, 1, 3")
    A(f"v_xor_b32 v{t2}, v{t2}, v{G4}")
    A(f"v_lshlrev_b32 v{t2}, 4, v{t2}")
    A(f"v_lshl_add_u32 v{t2}, v{S16}, 7, v{t2}")
    A("s_lshl_b32 s54, s52, 13")
    A(f"v_add_u32 v{XA}, s54, v{t2}")
    A(f"v_xor_b32 v{XA+1}, 64, v{XA}")
    A(f"v_add_u32 v{XA+2}, {2*SLOT}, v{XA}")
    A(f"v_add_u32 v{XA+3}, {2*SLOT}, v{XA+1}")
    A("s_cmp_eq_u32 s51, 0")
    A("s_cselect_b32 s55, 80, 0")
    A("s_mul_i32 s56, s53, 80")
    A("s_lshl_b32 s56, s56, s51")
    A(f"v_lshrrev_b32 v{t0}, 1, v{C4}")
    A(f"v_mul_u32_u24 v{t0}, s55, v{t0}")
    A(f"v_mad_u32_u24 v{t0}, v{C4}, 40, v{t0}")
    A(f"v_add_u32 v{t0}, s56, v{t0}")
    A(f"v_and_b32 v{t1}, 1, v{G4}")
    A("s_add_u32 s57, s51, 4")
    A(f"v_lshlrev_b32 v{t1}, s57, v{t1}")
    A(f"v_lshl_add_u32 v{t2}, v{G4}, 3, v{R4}")
    A(f"v_mul_u32_u24 v{t2}, 320, v{t2}")
    A(f"v_add_u32 v{t2}, 16384, v{t2}")
    for t in range(5):
        A(f"v_add_u32 v{t3}, {8*t}, v{t0}")
        A(f"v_xor_b32 v{t3}, v{t3}, v{t1}")
        A(f"v_add_u32 v{WA+t}, v{t2}, v{t3}")
        A(f"v_add_u32 v{WA+5+t}, {2*SLOT}, v{WA+t}")
    HD = 187
    A("s_cmp_eq_u32 s51, 0")
    A("s_cselect_b32 s55, 1, 3")
    A("s_add_u32 s57, s51, 1")
    A("s_lshl_b32 s56, s53, s57")
    A(f"v_and_b32 v{HD}, s55, v{G4}")
    A(f"v_add_u32 v{HD}, s56, v{HD}")
    A(f"v_mul_u32_u24 v{t0}, 800, v{HD}")
    A(f"v_mad_u32_u24 v{t0}, v{R4}, 40, v{t0}")
    A(f"v_add_u32 v{t0}, {L_WP}, v{t0}")
    A(f"v_mov_b32 v{t1}, {L_Z}")
    A(f"v_cmp_eq_u32 vcc, v{C4}, v{G4}")
    A(f"v_cndmask_b32 v{AD}, v{t1}, v{t0}, vcc")
    A(f"v_lshrrev_b32 v{t0}, 5, v1")
    A(f"v_lshl_add_u32 v{t0}, v{t0}, 4, v{S16}")
    A("s_lshl_b32 s57, s52, 6")
    A(f"v_add_u32 v{t0}, s57, v{t0}")
    A(f"v_mul_u32_u24 v{t1}, 208, v{t0}")
    A(f"v_mad_u32_u24 v2, v{HD}, 48, v{t1}")
    A(f"v_add_u32 v2, {L_V}, v2")
    A(f"v_mul_u32_u24 v{t3}, 80, v{HD}")
    A(f"v_mul_u32_u24 v{t2}, 336, v{t0}")
    A(f"v_add_u32 v3, v{t3}, v{t2}")
    A(f"v_lshrrev_b32 v{t1}, 5, v1")
    A(f"v_lshl_add_u32 v9, v{t1}, 3, v{R4}")
    A(f"v_bfe_u32 v{t2}, v1, 4, 1")
    A(f"v_bfe_u32 v{t3}, v1, 1, 1")
    A(f"v_lshl_add_u32 v10, v{t2}, 1, v{t3}")
    A(f"v_and_b32 v15, 1, v1")
    A(f"v_mul_u32_u24 v{t0}, 336, v9")
    A(f"v_mad_u32_u24 v{t1}, v15, 5, v10")
    A(f"v_lshl_add_u32 v{t0}, v{t1}, 3, v{t0}")
    A("s_mul_i32 s57, s48, 80")
    A(f"v_add_u32 v6, s57, v{t0}")
    A(f"v_lshl_add_u32 v{t0}, v10, 1, v15")
    A("s_mul_i32 s57, s48, 6")
    A(f"v_min_u32 v{t1}, 5, v{t0}")
    A(f"v_add_u32 v{t1}, s57, v{t1}")
    A(f"v_mul_u32_u24 v{t0}, 208, v9")
    A(f"v_lshl_add_u32 v{t0}, v{t1}, 3, v{t0}")
    A(f"v_add_u32 v7, {L_V}, v{t0}")
    WPF = 188
    for tp in range(5):
        A(f"v_mov_b32 v{WPF+12*tp+10}, 0")
        A(f"v_mov_b32 v{WPF+12*tp+11}, 0")
    A(f"s_mov_b32 s60, {LOG2E:#x}")
    A(f"s_mov_b32 s61, {LOG2E:#x}")
    A("s_waitcnt lgkmcnt(0)")
    srd(A, SWS, S_WS, WS_SIZE)
    if Opt.touch & 1:
        Lt = A.newlabel("L_nt")
        A("s_cmp_eq_u32 s48, 0")
        A(f"s_cbranch_scc0 {Lt}")
        touch(A, 248, 32, Opt.tsh)
        A.label(Lt)
    if Opt.fwarm:
        o_index(A)
        A("s_lshl_b32 s54, s62, 2")
        A("s_add_u32 s54, s54, s48")
        A("s_lshl_b32 s54, s54, 2")
        A("s_lshr_b32 s55, s62, 2")
        A("s_lshl_b32 s55, s55, 4")
        A("s_add_u32 s55, s55, s63")
        A("s_lshl_b32 s55, s55, 1")
        A("s_add_u32 s55, s55, 508")
        A("s_and_b32 s56, s99, 2")
        A("s_lshl_b32 s57, s98, 2")
        A("s_add_u32 s56, s56, s57")
        A("s_lshl_b32 s56, s56, 4")
        A("s_lshl_b32 s57, s48, 3")
        A("s_add_u32 s56, s56, s57")
        A("s_add_u32 s56, s56, 1016")
        A(f"v_mov_b32 v{t0}, s54")
        A(f"v_mov_b32 v{t1}, s55")
        A(f"v_mov_b32 v{t2}, s56")
        A("v_cmp_gt_u32 vcc, 16, v1")
        A(f"v_cndmask_b32 v{t1}, v{t1}, v{t0}, vcc")
        A("v_cmp_gt_u32 vcc, 32, v1")
        A(f"v_cndmask_b32 v{t1}, v{t2}, v{t1}, vcc")
        A(f"v_lshrrev_b32 v{t0}, 2, v1")
        A(f"v_add_u32 v{t0}, v{t0}, v{t1}")
        A(f"v_and_b32 v{t0}, 2047, v{t0}")
        A(f"v_lshlrev_b32 v{t0}, 7, v{t0}")
        A(f"s_mov_b32 s54, {WS_FLAG:#x}")
        A(f"buffer_load_dword v4, v{t0}, s[{SWS}:{SWS+3}], s54 offen{SC}")
    A("s_setprio 2")

    T = Lgkm(A)

    def reads(s, ks):
        sl, b = s % 3, ks
        L = []
        for t in range(5):
            for half in range(2):
                L.append((f"ds_read_b64_tr_b16 {vr(WF[b]+4*t+2*half,2)}, v{WA+5*(sl>>1)+t} offset:{(sl&1)*SLOT + (32*ks+4*half)*320}",
                          ("w", s, ks, t) if half else None))
            if t == 0:
                for rho in range(4):
                    L.append((f"ds_read_b128 {vr(XF[b]+4*rho,4)}, v{XA+2*(sl>>1)+ks} offset:{(sl&1)*SLOT + 2048*rho}", ("x", s, ks, rho)))
        return L

    wp = []
    for tp in range(5):
        for dq in range(5):
            wp.append((f"ds_read_b64_tr_b16 {vr(WPF+12*tp+2*dq,2)}, v{AD} offset:{160*dq+8*tp}", None))

    PS = (96, 106, 118, 128)
    E, F, TT_ = 140, 160, 248

    def cvt(rho):
        L = [f"v_cvt_pk_bf16_f32 v{PS[rho]+i}, v{ACC+20*rho+2*i}, v{ACC+20*rho+2*i+1}" for i in range(10)]
        if rho & 1:
            L += [f"v_mov_b32 v{PS[rho]+10}, 0x3f803f80", f"v_mov_b32 v{PS[rho]+11}, 0x3f803f80"]
        return L

    A("s_barrier")
    stampw(A, 3)
    for x, tg in reads(0, 0):
        T.issue(x, tg)
    early = cvt(0) + cvt(1)
    for s in range(10):
        for ks in range(2):
            last = (s == 9 and ks == 1)
            nxt = [] if last else (reads(s, 1) if ks == 0 else reads(s + 1, 0))
            if ks == 0 and s < 5:
                nxt += wp[5 * s:5 * s + 5]
            start = 0 if ks == 0 else Opt.bpos
            for k in range(20):
                t, rho = (k % 5, k // 5) if last else (k // 4, k % 4)
                if Opt.snake and t & 1:
                    rho = 3 - rho
                T.wait(("w", s, ks, t), ("x", s, ks, rho))
                a_ = ACC + 20 * rho + 4 * t
                A(f"v_mfma_f32_16x16x32_bf16 {vr(a_,4)}, {vr(WF[ks]+4*t,4)}, {vr(XF[ks]+4*rho,4)}, {vr(a_,4)}")
                if ks == 1 and k == start:
                    T.all()
                    A("s_barrier")
                if k >= start and nxt:
                    T.issue(*nxt.pop(0))
                if last and k >= 9:
                    for _ in range(2):
                        if early:
                            A(early.pop(0))
            assert not nxt
    stamp(A, 4)
    if Opt.fwarm:
        A("s_waitcnt vmcnt(0)")
    tag_issue(A)
    def phi_mfma(src, acc):
        L = []
        for u in range(3):
            for tp in range(5):
                c = vr(acc + 4 * tp, 4) if u else "0"
                L.append(f"v_mfma_f32_16x16x32_bf16 {vr(acc+4*tp,4)}, {vr(WPF+12*tp+4*u,4)}, {vr(src+4*u,4)}, {c}")
        return L

    def weave(mf, va, per):
        mf, va = list(mf), list(va)
        while mf or va:
            if mf:
                A(mf.pop(0))
            for _ in range(per):
                if va:
                    A(va.pop(0))

    assert not early
    Lq = A.newlabel("L_q")
    A("s_cmp_eq_u32 s51, 0")
    A(f"s_cbranch_scc0 {Lq}")
    mq = A.mark()
    for i in range(10):
        A(f"v_permlane32_swap_b32 v{PS[0]+i}, v{PS[1]+i}")
    weave(phi_mfma(PS[0], ACC), cvt(2) + cvt(3) + [f"v_permlane32_swap_b32 v{PS[2]+i}, v{PS[3]+i}" for i in range(10)], 2)
    vw = [f"ds_write_b128 v2, {vr(PS[1+2*sg]+4*i,4)} offset:{32*208*sg+16*i}" for sg in range(2) for i in range(3)]

    def body(parts):
        mm, fm, ex, sm, fin, tail = parts
        L = fm[:4]
        fm2, sm2 = list(fm[4:]), list(sm)
        for k in range(0, 40, 4):
            L += ex[k:k + 2]
            if fm2:
                L.append(fm2.pop(0))
            L += ex[k + 2:k + 4]
            if fm2:
                L.append(fm2.pop(0))
            if k >= 8:
                L += [sm2.pop(0), sm2.pop(0)]
        return L + sm2 + fin

    def tail_list(tail, wr):
        L = [tail[0][0], tail[1][0]]
        for j in range(20):
            if j + 2 < 20:
                L.append(tail[j + 2][0])
            L.append(tail[j][1])
            if wr and j % 4 == 3:
                L.append(wr[j // 4])
        return L

    s0 = softmax_parts(ACC, E, F, TT_, 56)
    s1 = softmax_parts(ACC + 20, E, F, TT_, 76)
    w0 = [f"ds_write_b128 v3, {vr(56+4*i,4)} offset:{16*i}" for i in range(5)]
    w1 = [f"ds_write_b128 v3, {vr(76+4*i,4)} offset:{32*336+16*i}" for i in range(5)]
    m1 = phi_mfma(PS[2], ACC + 20)
    for x in m1[:4]:
        A(x)
    weave(m1[4:], s0[0], 2)
    stamp(A, 2)
    for x in merge(body(s0), vw, 12) + tail_list(s0[5], w0):
        A(x)
    stamp(A, 13)
    A(f"v_mov_b32 v10, {L_SYNC}")
    A("v_mov_b32 v11, 1")
    A("s_mov_b64 exec, 1")
    A("ds_add_u32 v10, v11 offset:52")
    A("s_mov_b64 exec, -1")
    sal = ["s_lshl_b32 s57, s50, 2", "s_add_u32 s57, s57, s48", "s_lshl_b32 s57, s57, 4", "s_add_u32 s57, s57, s49",
           "s_lshl_b32 s59, s57, 7", f"s_add_u32 s59, s59, {F1:#x}", "s_mul_i32 s57, s57, 2560", f"s_add_u32 s57, s57, {WS_PART:#x}"]
    b1 = body(s1)
    for x in s1[0] + merge(b1[:60], sal, 6) + ["ds_read_b32 v12, v10 offset:52"] + b1[60:]:
        A(x)
    tag_check(A, 14)
    Lok = A.newlabel("L_s0ok")
    A("v_cmp_le_u32 vcc, 4, v12")
    A(f"s_cbranch_vccnz {Lok}")
    lds_wait(A, 12, L_SYNC + 52, 4)
    A.label(Lok)
    for x in tail_list(s1[5], w1):
        A(x)
    A("s_mov_b64 exec, 1")
    A("ds_add_u32 v10, v11")
    A("s_mov_b64 exec, -1")
    stampw(A, 5)
    T = Lgkm(A)
    T.n = 0 if (Ctx.stamps and not Opt.lite and not Opt.hp) else 0
    FAa = {0: 188, 1: 196, 4: 204, 5: 212, 2: 220, 3: 228, 6: 236, 7: 128}
    FBb = {u: 96 + 4 * u for u in range(8)}

    def rdA_(u):
        for half in range(2):
            o = (16 * u + 4 * half)
            T.issue(f"ds_read_b64_tr_b16 {vr(FAa[u]+2*half,2)}, v6 offset:{o*336}")
            T.issue(f"ds_read_b64_tr_b16 {vr(FAa[u]+4+2*half,2)}, v6 offset:{o*336+32}", ("a", u))

    def rdB_(u):
        for half in range(2):
            T.issue(f"ds_read_b64_tr_b16 {vr(FBb[u]+2*half,2)}, v7 offset:{(16*u+4*half)*208}", ("b", u))

    def pm(u, first=False):
        T.wait(("a", u), ("b", u))
        for TT in range(2):
            c = "0" if first else vr(ACC + 16 * TT, 16)
            A(f"v_mfma_f32_32x32x16_bf16 {vr(ACC+16*TT,16)}, {vr(FAa[u]+4*TT,4)}, {vr(FBb[u],4)}, {c}")

    rdB_(0); rdA_(0); rdB_(1); rdA_(1)
    pm(0, True)
    rdB_(4); rdA_(4)
    pm(1)
    rdB_(5); rdA_(5)
    T.issue("ds_read_b32 v12, v10", "c")
    pm(4)
    for u in (2, 3, 6, 7):
        rdB_(u)
    A("v_lshlrev_b32 v2, 4, v1")
    A("v_lshlrev_b32 v3, 3, v1")
    T.wait("c")
    Lok = A.newlabel("L_s1ok")
    A("v_cmp_le_u32 vcc, 4, v12")
    A(f"s_cbranch_vccnz {Lok}")
    lds_wait(A, 10, None, 4)
    A.label(Lok)
    rdA_(2); rdA_(3)
    pm(5)
    rdA_(6)
    pm(2)
    rdA_(7)
    pm(3); pm(6); pm(7)
    o_index(A)
    for i in range(10):
        A(f"v_cvt_pk_bf16_f32 v{48+i}, v{ACC+2*i}, v{ACC+2*i+1}")
    A(f"buffer_store_dwordx2 v[56:57], v3, s[{SWS}:{SWS+3}], s57 offen offset:2048{SC}")
    A("s_mov_b32 exec_lo, 0x00ffffff")
    A("s_mov_b32 exec_hi, 0x00ffffff")
    A(f"buffer_store_dwordx4 v[48:51], v2, s[{SWS}:{SWS+3}], s57 offen{SC}")
    A(f"buffer_store_dwordx4 v[52:55], v2, s[{SWS}:{SWS+3}], s57 offen offset:1024{SC}")
    A("s_mov_b64 exec, -1")
    stamp(A, 6)
    role_o(A)
    end_wave(A)
    A.label(Lq)
    hq = A.mark()
    pre = [f"s_mov_b32 s57, {64*1280}",
           f"v_mul_lo_u32 v{t1}, s57, v{HD}",
           f"v_lshl_add_u32 v2, v{S16}, 4, v{t1}",
           f"v_lshl_add_u32 v3, v{S16}, 3, v{t1}",
           "s_lshl_b32 s58, s49, 1",
           "s_add_u32 s58, s58, s52",
           "s_lshl_b32 s59, s50, 1",
           "s_add_u32 s59, s59, s53",
           "s_lshl_b32 s59, s59, 5",
           "s_add_u32 s59, s59, s58",
           "s_lshl_b32 s59, s59, 7",
           f"s_add_u32 s59, s59, {F2:#x}",
           "s_lshl_b32 s57, s50, 8",
           "s_add_u32 s57, s57, s58",
           "s_mul_i32 s57, s57, 2560"]
    A("s_nop 0")
    OQ = 140

    def outq(rho):
        x, o = ACC + 20 * rho, OQ + 10 * rho
        off = 1280 * (rho >> 1)
        L = [f"v_cvt_pk_bf16_f32 v{o+i}, v{x+2*i}, v{x+2*i+1}" for i in range(10)]
        L.append(f"buffer_store_dwordx4 {vr(o,4)}, v2, s[{SWS}:{SWS+3}], s57 offen offset:{off+256*(rho&1)}{SC}")
        L.append(f"buffer_store_dwordx4 {vr(o+4,4)}, v2, s[{SWS}:{SWS+3}], s57 offen offset:{off+512+256*(rho&1)}{SC}")
        L.append(f"buffer_store_dwordx2 {vr(o+8,2)}, v3, s[{SWS}:{SWS+3}], s57 offen offset:{off+1024+128*(rho&1)}{SC}")
        return L

    weave(phi_mfma(PS[0], ACC), pre + cvt(2), 2)
    m = phi_mfma(PS[1], ACC + 20)
    weave(m[:6], cvt(3), 2)
    weave(m[6:], outq(0), 2)
    m = phi_mfma(PS[2], ACC + 40)
    weave(m[:6], [], 0)
    weave(m[6:], outq(1), 2)
    m = phi_mfma(PS[3], ACC + 60)
    weave(m[:6], [], 0)
    weave(m[6:], outq(2), 2)
    for x in outq(3):
        A(x)
    stamp(A, 6)
    tag_check(A, 10)
    set_flag(A, 10, "s59")
    stamp(A, 7)
    A.check_seam(mq, hq)
    lds_arrive(A, 14, L_SYNC)
    lds_wait(A, 14, None, 4, sleep=1)
    A("s_setprio 0")
    A("s_cmp_lt_u32 s99, 4")
    A("s_cbranch_scc1 L_wo")
    if Opt.wopf == "qs":
        srd(A, 36, S_WO, NB_WO)
        A("s_sub_u32 s57, s99, 4")
        A("s_lshl_b32 s57, s57, 2")
        A("s_add_u32 s57, s57, s48")
        A("s_lshl_b32 s57, s57, 13")
        A(f"s_add_u32 s57, s57, {240*1280}")
        A("v_lshlrev_b32 v8, 7, v1")
        for i in range(4):
            A(f"buffer_load_dword v{200+i}, v8, s[36:39], s57 offen")
            A(f"s_add_u32 s57, s57, {16*8192}")
    A("s_cmp_lt_u32 s48, 2")
    A("s_cbranch_scc1 L_post")
    end_wave(A)


def role_o(A):
    NT = 4
    RAW, X, PQ = 64, 104, 128
    A("s_mul_i32 s53, s48, 20480")
    A(f"s_add_u32 s53, s53, {L_WOB}")
    A("v_and_b32 v4, 31, v1")
    A("v_lshl_add_u32 v5, v4, 4, s53")
    A("v_lshl_add_u32 v6, v4, 3, s53")
    A("v_and_b32 v7, 32, v1")
    A("v_lshlrev_b32 v7, 26, v7")
    A("s_lshl_b32 s54, s48, 2")
    A(f"s_add_u32 s54, s54, {L_SYNC+16}")
    A("s_mov_b32 s58, 0xffff0000")
    for t in range(NT):
        A(f"v_mov_b32 v{PQ+12*t+10}, 0")
        A(f"v_mov_b32 v{PQ+12*t+11}, 0")
    A("s_mov_b32 s96, s59")
    A("s_mov_b32 s97, 0")
    if Opt.dflag:
        Lgo = A.newlabel("L_go")
        A("v_mov_b32 v14, s54")
        A("ds_read_b32 v15, v14")
        A("s_waitcnt lgkmcnt(0)")
        A("v_cmp_le_u32 vcc, 1, v15")
        A(f"s_cbranch_vccnz {Lgo}")
    set_flag(A, 10, "s96")
    lds_arrive(A, 14, L_SYNC + 4)
    A("s_mov_b32 s97, 1")
    stamp(A, 7)
    lds_wait(A, 14, "s54", 1)
    if Opt.dflag:
        A.label(Lgo)
    stampw(A, 8)
    T = Lgkm(A)
    for t in range(NT):
        T.issue(f"ds_read_b128 {vr(RAW+10*t,4)}, v5 offset:{1280*t}")
        T.issue(f"ds_read_b128 {vr(RAW+10*t+4,4)}, v5 offset:{1280*t+512}")
        T.issue(f"ds_read_b64 {vr(RAW+10*t+8,2)}, v6 offset:{1280*t+1024}", t)
    A("s_lshl_b32 s57, s63, 2")
    A("s_mul_i32 s54, s57, 40960")
    A(f"s_add_u32 s54, s54, {WS_O:#x}")
    A("s_lshl_b32 s59, s62, 8")
    A("s_add_u32 s59, s59, s54")
    A("s_add_u32 s59, s59, 32768")
    A("s_lshl_b32 s57, s62, 10")
    A("s_add_u32 s54, s54, s57")
    A("s_lshl_b32 s50, s63, 5")
    A("s_add_u32 s50, s50, s62")
    A("s_lshl_b32 s50, s50, 7")
    A(f"s_add_u32 s50, s50, {F3:#x}")
    mx, se = 124, 126
    for t in range(NT):
        T.wait(t)
        for i in range(10):
            A(f"v_lshl_add_u32 v{X+2*i}, v{RAW+10*t+i}, 16, v7")
            A(f"v_bitop3_b32 v{X+2*i+1}, v{RAW+10*t+i}, s58, v7 bitop3:0x6a")
        A(f"v_max3_f32 v{mx}, v{X}, v{X+1}, v{X+2}")
        A(f"v_max3_f32 v{mx+1}, v{X+3}, v{X+4}, v{X+5}")
        for i in range(6, 18, 4):
            A(f"v_max3_f32 v{mx}, v{mx}, v{X+i}, v{X+i+1}")
            A(f"v_max3_f32 v{mx+1}, v{mx+1}, v{X+i+2}, v{X+i+3}")
        A(f"v_max3_f32 v{mx}, v{mx}, v{X+18}, v{X+19}")
        A(f"v_max_f32 v{mx}, v{mx}, v{mx+1}")
        A(f"v_mul_f32 v{mx}, s60, v{mx}")
        for i in range(0, 20, 2):
            A(f"v_pk_fma_f32 {vr(X+i,2)}, {vr(X+i,2)}, s[60:61], {vr(mx,2)} op_sel_hi:[1,1,0] neg_lo:[0,0,1] neg_hi:[0,0,1]")
        if Opt.dflag and t == 1:
            Lsk = A.newlabel("L_sk")
            A("s_cmp_eq_u32 s97, 1")
            A(f"s_cbranch_scc1 {Lsk}")
            set_flag(A, 10, "s96")
            lds_arrive(A, 14, L_SYNC + 4)
            stampw(A, 7)
            A.label(Lsk)
        for i in range(20):
            A(f"v_exp_f32 v{X+i}, v{X+i}")
        A(f"v_pk_add_f32 {vr(se,2)}, {vr(X,2)}, {vr(X+2,2)}")
        A(f"v_pk_add_f32 {vr(mx,2)}, {vr(X+4,2)}, {vr(X+6,2)}")
        for i in range(8, 20, 4):
            A(f"v_pk_add_f32 {vr(se,2)}, {vr(se,2)}, {vr(X+i,2)}")
            A(f"v_pk_add_f32 {vr(mx,2)}, {vr(mx,2)}, {vr(X+i+2,2)}")
        A(f"v_pk_add_f32 {vr(se,2)}, {vr(se,2)}, {vr(mx,2)}")
        A(f"v_add_f32 v{se}, v{se}, v{se+1}")
        A(f"v_rcp_f32 v{se}, v{se}")
        for i in range(0, 20, 2):
            A(f"v_pk_mul_f32 {vr(X+i,2)}, {vr(X+i,2)}, {vr(se,2)} op_sel_hi:[1,0]")
        for i in range(10):
            A(f"v_cvt_pk_bf16_f32 v{PQ+12*t+i}, v{X+2*i}, v{X+2*i+1}")
    stamp(A, 9)
    KF = 16
    A(f"v_mov_b32 v{KF+10}, 0")
    A(f"v_mov_b32 v{KF+11}, 0")
    lds_wait(A, 14, L_SYNC + 8, 4)
    stampw(A, 10)
    PR = 32
    T = Lgkm(A)
    for q in range(5):
        for p in range(4):
            T.issue(f"ds_read_b128 {vr(PR+16*q+4*p,4)}, v2 offset:{5120*p+1024*q}", q)
    for q in range(5):
        T.wait(q)
        b = PR + 16 * q
        for h in (0, 2):
            A(f"v_pk_add_f32 {vr(b+h,2)}, {vr(b+h,2)}, {vr(b+4+h,2)}")
            A(f"v_pk_add_f32 {vr(b+8+h,2)}, {vr(b+8+h,2)}, {vr(b+12+h,2)}")
        for h in (0, 2):
            A(f"v_pk_add_f32 {vr(b+h,2)}, {vr(b+h,2)}, {vr(b+8+h,2)}")
        for h in (0, 2):
            A(f"v_cvt_pk_bf16_f32 v{KF+2*q+h//2}, v{b+h}, v{b+h+1}")
    D = [176, 192, 208, 224]
    OP = [32, 40, 48, 56]

    def mf(t):
        for u in range(3):
            c = vr(D[t], 16) if u else "0"
            A(f"v_mfma_f32_32x32x16_bf16 {vr(D[t],16)}, {vr(KF+4*u,4)}, {vr(PQ+12*t+4*u,4)}, {c}")

    if Opt.dA:
        A(f"s_sleep {Opt.dA}")
    mf(0)
    mf(1)
    for t in range(NT):
        d, o = D[t], OP[t]
        A(f"v_add_f32 v10, 0x358637bd, v{d+12}")
        A("v_rcp_f32 v10, v10")
        if t + 2 < NT:
            mf(t + 2)
        if t >= 2:
            for i in range(0, 12, 2):
                A(f"v_pk_mul_f32 {vr(d+i,2)}, {vr(d+i,2)}, v[10:11] op_sel_hi:[1,0]")
        else:
            for i in range(12):
                A(f"v_mul_f32 v{d+i}, v10, v{d+i}")
        for i in range(6):
            A(f"v_cvt_pk_bf16_f32 v{o+i}, v{d+2*i}, v{d+2*i+1}")
        A(f"buffer_store_dwordx4 {vr(o,4)}, v2, s[{SWS}:{SWS+3}], s54 offen{SC}")
        A("s_mov_b32 exec_hi, 0")
        A(f"buffer_store_dwordx2 {vr(o+4,2)}, v3, s[{SWS}:{SWS+3}], s59 offen{SC}")
        A("s_mov_b64 exec, -1")
        if t < NT - 1:
            A("s_add_u32 s54, s54, 40960")
            A("s_add_u32 s59, s59, 40960")
    stamp(A, 11)
    set_flag(A, 12, "s50")
    lds_arrive(A, 16, L_SYNC + 12)
    stamp(A, 12)


def b_channel(A):
    A("s_mul_i32 s49, s98, 80")
    A("s_sub_u32 s50, s99, 24")
    A("s_mul_i32 s50, s50, 6")
    A("s_add_u32 s49, s49, s50")
    A("s_add_u32 s49, s49, s48")
    A("s_cmp_ge_u32 s48, 6")
    A("s_cselect_b32 s50, 2, 0")
    A("s_sub_u32 s49, s49, s50")
    A(f"s_mul_i32 s56, s48, {CV_LDS}")


def conv_load_h(A, v):
    SH = 40
    srd(A, SH, S_SSK, NB_SSK)
    A(f"v_lshlrev_b32 v{v}, 4, v1")
    A("s_lshl_b32 s50, s49, 12")
    A("s_add_u32 m0, s56, 64")
    for i in range(4):
        A(f"buffer_load_dwordx4 v{v}, s[{SH}:{SH+3}], s50 offen offset:{1024*i}{Opt.nth} lds")


def f0_lines(A, c0, c1, v):
    A(f"s_lshr_b32 s52, s{c0}, 6")
    A("s_mul_i32 s52, s52, 419431")
    A("s_lshr_b32 s52, s52, 16")
    A(f"s_lshr_b32 s53, s{c1}, 6")
    A("s_mul_i32 s53, s53, 419431")
    A("s_add_u32 s53, s53, 406324")
    A("s_lshr_b32 s53, s53, 16")
    A(f"v_lshrrev_b32 v{v}, 2, v1")
    A(f"v_add_u32 v{v}, s52, v{v}")
    A(f"v_min_u32 v{v}, s53, v{v}")
    A(f"v_lshlrev_b32 v{v}, 7, v{v}")
    A(f"s_mov_b32 s52, {F0:#x}")


def role_pre(A):
    SK, SV, SS = 32, 36, 40
    t0, t1, t2 = 2, 3, 4
    A("s_lshl_b32 s49, s98, 3")
    A("s_add_u32 s49, s49, s99")
    A("s_sub_u32 s49, s49, 24")
    A("s_mul_i32 s49, s49, 5")
    A("s_add_u32 s49, s49, s48")
    A("s_and_b32 s50, s49, 31")
    A("s_lshr_b32 s51, s49, 5")
    A(f"s_mul_i32 s52, s50, {64*1280}")
    A("s_lshl_b32 s53, s51, 7")
    A("s_add_u32 s52, s52, s53")
    A(f"v_lshrrev_b32 v{t0}, 3, v1")
    A(f"v_and_b32 v{t1}, 7, v1")
    A(f"v_mul_u32_u24 v{t2}, {8*1280}, v{t0}")
    A(f"v_lshl_add_u32 v{t2}, v{t1}, 4, v{t2}")
    A(f"v_add_u32 v5, s52, v{t2}")
    A(f"v_subrev_u32 v6, {3*1280}, v5")
    A(f"v_subrev_u32 v7, {2*1280}, v5")
    A(f"v_subrev_u32 v8, {1280}, v5")
    A(f"v_lshlrev_b32 v9, 6, v{t1}")
    A("s_lshl_b32 s54, s51, 9")
    A(f"s_movk_i32 s55, {4*1280}")
    A("s_waitcnt lgkmcnt(0)")
    srd(A, SK, S_BK, NB_X)
    srd(A, SV, S_BV, NB_X)
    srd(A, SS, S_SH, NB_SH)
    WR, KR, VR = 16, 32, 76
    for i in range(4):
        A(f"buffer_load_dwordx4 {vr(WR+4*i,4)}, v9, s[{SS}:{SS+3}], s54 offen offset:{16*i}")
    for i in range(3):
        A(f"buffer_load_dwordx4 {vr(KR+4*i,4)}, v{6+i}, s[{SK}:{SK+3}], 0 offen{Opt.ntk}")

    order = []

    def ld(kind, i):
        so = "0" if i < 4 else "s55"
        if kind == "k":
            A(f"buffer_load_dwordx4 {vr(KR+12+4*i,4)}, v5, s[{SK}:{SK+3}], {so} offen offset:{1280*(i&3)}{Opt.ntk}")
        else:
            A(f"buffer_load_dwordx4 {vr(VR+4*i,4)}, v5, s[{SV}:{SV+3}], {so} offen offset:{1280*(i&3)}{Opt.ntk}")
        order.append((kind, i))

    for i in (5, 6, 7):
        ld("k", i)
    ld("k", 0); ld("v", 0); ld("k", 1); ld("v", 1)
    todo = [("k", 2), ("v", 2), ("k", 3), ("v", 3), ("k", 4), ("v", 4), ("v", 5), ("v", 6), ("v", 7)]
    stamp(A, 2)
    srd(A, SWS, S_WS, WS_SIZE)
    A("s_mul_i32 s56, s48, 8320")
    A(f"s_add_u32 s56, s56, {B_PRE}")
    A(f"v_mul_u32_u24 v10, 1040, v{t1}")
    A(f"v_lshl_add_u32 v10, v{t0}, 4, v10")
    A("v_add_u32 v10, s56, v10")
    A("v_lshrrev_b32 v11, 4, v1")
    A("v_lshlrev_b32 v11, 8, v11")
    A("v_and_b32 v12, 3, v1")
    A("v_lshl_add_u32 v11, v12, 6, v11")
    A("v_bfe_u32 v12, v1, 2, 2")
    A("v_lshl_add_u32 v11, v12, 3, v11")
    A("v_add_u32 v11, s56, v11")
    A(f"v_lshlrev_b32 v12, 12, v{t0}")
    A(f"v_lshl_add_u32 v12, v{t1}, 4, v12")
    A("s_lshl_b32 s57, s51, 18")
    A("s_lshl_b32 s58, s50, 7")
    A("s_add_u32 s57, s57, s58")
    A(f"s_add_u32 s57, s57, {WS_KVT:#x}")
    A("s_mov_b32 s59, 0xffff0000")
    WF, KF, VF, TA, OUT = 108, 140, 172, 180, 196

    def unpack(dst, src, n):
        for i in range(n):
            A(f"v_lshlrev_b32 v{dst+2*i}, 16, v{src+i}")
            A(f"v_and_b32 v{dst+2*i+1}, s59, v{src+i}")

    A(f"s_waitcnt vmcnt({3+len(order)})")
    ld(*todo.pop(0)); ld(*todo.pop(0))
    for c in range(8):
        A(f"v_lshlrev_b32 v{WF+c}, 16, v{WR+2*c}")
        A(f"v_and_b32 v{WF+8+c}, s59, v{WR+2*c}")
        A(f"v_lshlrev_b32 v{WF+16+c}, 16, v{WR+2*c+1}")
        A(f"v_and_b32 v{WF+24+c}, s59, v{WR+2*c+1}")
    A(f"s_waitcnt vmcnt({len(order)})")
    ld(*todo.pop(0)); ld(*todo.pop(0))
    for i in range(3):
        unpack(KF + 8 * i, KR + 4 * i, 4)
    for i in range(8):
        need = max(order.index(("k", i)), order.index(("v", i)))
        A(f"s_waitcnt vmcnt({len(order)-1-need})")
        for _ in range(2):
            if todo:
                ld(*todo.pop(0))
        if i == 2:
            b_channel(A)
            if Opt.hdef:
                A("s_lshl_b32 s50, s49, 12")
            else:
                conv_load_h(A, 13)
                order.extend([None] * 4)
        unpack(KF + 8 * ((i + 3) & 3), KR + 12 + 4 * i, 4)
        unpack(VF, VR + 4 * i, 4)
        acc = TA + 8 * (i & 1)
        for j in (3, 2, 1, 0):
            kk = KF + 8 * ((i + 3 - j) & 3)
            for c in range(0, 8, 2):
                if j == 3:
                    A(f"v_pk_mul_f32 {vr(acc+c,2)}, {vr(kk+c,2)}, {vr(WF+8*j+c,2)}")
                else:
                    A(f"v_pk_fma_f32 {vr(acc+c,2)}, {vr(kk+c,2)}, {vr(WF+8*j+c,2)}, {vr(acc+c,2)}")
        for c in range(0, 8, 2):
            A(f"v_pk_mul_f32 {vr(acc+c,2)}, {vr(acc+c,2)}, {vr(VF+c,2)}")
        if i & 1:
            for c in range(8):
                A(f"v_cvt_pk_bf16_f32 v{OUT+4*c+i//2}, v{TA+c}, v{TA+8+c}")
    stamp(A, 3)
    for c in range(8):
        A(f"ds_write_b128 v10, {vr(OUT+4*c,4)} offset:{128*c}")
    A("s_waitcnt lgkmcnt(0)")
    T = Lgkm(A)
    for i in range(8):
        T.issue(f"ds_read_b64_tr_b16 {vr(16+4*i,2)}, v11 offset:{1040*i}")
        T.issue(f"ds_read_b64_tr_b16 {vr(18+4*i,2)}, v11 offset:{1040*i+32}", i)
    for i in range(8):
        T.wait(i)
        A(f"buffer_store_dwordx4 {vr(16+4*i,4)}, v12, s[{SWS}:{SWS+3}], s57 offen{SC}")
        if i < 7:
            A(f"s_add_u32 s57, s57, {8*4096}")
    stamp(A, 5)
    if Opt.hdef == 2:
        conv_load_h(A, 13)


def role_helper(A):
    SD = 40
    A("s_setprio 3")
    A("s_waitcnt lgkmcnt(0)")
    srd(A, SWS, S_WS, WS_SIZE)
    srd(A, SD, S_DBG, 256)
    Lz = A.newlabel("L_nz")
    A("s_cmp_eq_u32 s2, 192")
    A(f"s_cbranch_scc0 {Lz}")
    A("s_cmp_eq_u32 s48, 5")
    A(f"s_cbranch_scc0 {Lz}")
    A(f"s_mov_b32 s57, {WS_EPOCH:#x}")
    A("s_mov_b64 exec, 1")
    A(f"buffer_load_dword v4, off, s[{SWS}:{SWS+3}], s57{SC}")
    A("s_waitcnt vmcnt(0)")
    A("v_add_u32 v4, 1, v4")
    A("v_not_b32 v5, v4")
    A(f"buffer_store_dwordx2 v[4:5], off, s[{SD}:{SD+3}], 0{SC}")
    A(f"buffer_store_dword v4, off, s[{SWS}:{SWS+3}], s57{SC}")
    A("s_mov_b64 exec, -1")
    stamp(A, 2)
    A.label(Lz)
    if Opt.touch & 2:
        Lt = A.newlabel("L_nt")
        A("s_cmp_eq_u32 s48, 5")
        A(f"s_cbranch_scc0 {Lt}")
        touch(A, 26, 32, Opt.tsh)
        for k_, (b_, n_) in enumerate(((S_BQ, NB_X), (S_SSK, NB_SSK))):
            srd(A, 32, b_, n_)
            A(f"buffer_load_dword v29, v26, s[32:35], 0 offen")
        A.label(Lt)
    Lnw = A.newlabel("L_nw")
    A("s_sub_u32 s61, s99, 24")
    A("s_lshl_b32 s60, s61, 1")
    A("s_add_u32 s60, s60, s48")
    A("s_sub_u32 s60, s60, 6")
    A("s_xor_b32 s61, s61, 20")
    A("s_cmp_eq_u32 s48, 5")
    A("s_cselect_b32 s60, s61, s60")
    A("s_lshl_b32 s60, s60, 3")
    A("s_add_u32 s60, s60, s98")
    A("s_cmp_ge_u32 s60, 160")
    A(f"s_cbranch_scc1 {Lnw}_a")
    srd(A, 36, S_WO, NB_WO)
    A("s_lshr_b32 s61, s60, 3")
    A("s_and_b32 s62, s60, 7")
    A(f"s_mul_i32 s53, s62, {80*1280}")
    A("s_lshl_b32 s54, s61, 6")
    A("s_add_u32 s53, s53, s54")
    A("v_lshrrev_b32 v2, 2, v1")
    A("v_and_b32 v3, 3, v1")
    A("v_mul_u32_u24 v4, 1280, v2")
    A("v_lshl_add_u32 v4, v3, 4, v4")
    A(f"s_mul_i32 s56, s48, {CV_LDS}")
    for i in range(5):
        A(f"s_add_u32 m0, s56, {1024*i}")
        A("buffer_load_dwordx4 v4, s[36:39], s53 offen lds")
        A(f"s_add_u32 s53, s53, {16*1280}")
    A.label(Lnw + "_a")
    if Opt.gpf2:
        Lnp = A.newlabel("L_ng")
        A("s_lshl_b32 s50, s48, 3")
        A("s_add_u32 s50, s50, s99")
        A("s_sub_u32 s50, s50, 64")
        A("s_cmp_ge_u32 s50, 20")
        A(f"s_cbranch_scc1 {Lnp}")
        A("s_lshr_b32 s51, s50, 1")
        A("s_and_b32 s50, s50, 1")
        A("s_cmp_ge_u32 s51, 5")
        A("s_cselect_b32 s52, 640, 0")
        A("s_lshl_b32 s51, s51, 7")
        A("s_add_u32 s51, s51, s52")
        A("s_lshr_b32 s52, s98, 2")
        A("s_mul_i32 s52, s52, 640")
        A("s_add_u32 s51, s51, s52")
        A(f"s_mul_i32 s50, s50, {5*64*3840}")
        A("s_add_u32 s51, s51, s50")
        A(f"s_add_u32 s51, s51, {1280 + Opt.gpf2*64*3840}")
        srd(A, 32, S_W, NB_W)
        A("v_mul_u32_u24 v2, 3840, v1")
        for k in range(Opt.gpf2, 5):
            A(f"buffer_load_dword v{30+k}, v2, s[32:35], s51 offen")
            A(f"s_add_u32 s51, s51, {64*3840}")
        A.label(Lnp)
    if Opt.gpf:
        A("s_sub_u32 s50, s99, 24")
        A("s_mul_i32 s50, s50, 3")
        A("s_add_u32 s50, s50, s48")
        A("s_sub_u32 s50, s50, 5")
        A("s_and_b32 s51, s98, 3")
        A("s_lshl_b32 s51, s51, 3")
        A("s_add_u32 s51, s51, s50")
        A(f"s_mul_i32 s51, s51, {64*1280}")
        A("s_sub_u32 s52, s50, 8")
        A("s_mul_i32 s53, s52, 52")
        A("s_lshr_b32 s53, s53, 8")
        A("s_mul_i32 s53, s53, 640")
        A("s_lshl_b32 s52, s52, 7")
        A("s_add_u32 s52, s52, s53")
        A("s_lshr_b32 s53, s98, 2")
        A("s_mul_i32 s53, s53, 640")
        A("s_add_u32 s52, s52, s53")
        A("s_cmp_eq_u32 s50, 23")
        A(f"s_cselect_b32 s52, {NB_W:#x}, s52")
        A("s_cmp_lt_u32 s50, 8")
        A("s_cselect_b32 s51, s51, s52")
        A(f"s_cselect_b64 s[32:33], s[{S_X}:{S_X+1}], s[{S_W}:{S_W+1}]")
        A(f"s_mov_b32 s53, {NB_W:#x}")
        A(f"s_cselect_b32 s34, {NB_X:#x}, s53")
        A("s_mov_b32 s35, 0x20000")
        A("s_movk_i32 s53, 3840")
        A("s_cselect_b32 s52, 1280, s53")
        A(f"s_mov_b32 s53, {64*3840}")
        A("s_cselect_b32 s53, 128, s53")
        A("v_mul_u32_u24 v2, s52, v1")
        A(f"s_mul_i32 s52, s53, {Opt.gpf}")
        A("s_add_u32 s51, s51, s52")
        for k, st in enumerate(range(Opt.gpf, 10)):
            if k >= Opt.gpfd:
                A(f"s_waitcnt vmcnt({Opt.gpfd-1})")
            A(f"buffer_load_dword v{30+k}, v2, s[32:35], s51 offen")
            A("s_add_u32 s51, s51, s53")
    if Opt.codepf:
        Lp = A.newlabel("L_npf")
        A("s_cmp_eq_u32 s48, 6")
        A(f"s_cbranch_scc0 {Lp}")
        A("s_getpc_b64 s[50:51]")
        A.label("L_pc")
        A(f"s_sub_u32 s50, s50, L_pc-{NAME}_kernel")
        A("s_subb_u32 s51, s51, 0")
        A("s_sub_u32 s52, s99, 24")
        A("s_lshl_b32 s52, s52, 13")
        A("v_lshl_add_u32 v2, v1, 7, s52")
        A(f"v_min_u32 v2, L_code_end-{NAME}_kernel-4, v2")
        A("global_load_dword v24, v2, s[50:51]")
        A.label(Lp)
    A("s_cmp_ge_u32 s60, 160")
    A(f"s_cbranch_scc1 {Lnw}")
    A("v_bfe_u32 v10, v1, 2, 2")
    A("v_lshrrev_b32 v11, 5, v1")
    A("v_and_b32 v12, 1, v1")
    A("v_lshlrev_b32 v12, 5, v12")
    A("v_bfe_u32 v13, v1, 4, 1")
    A("v_lshl_add_u32 v12, v13, 4, v12")
    A("v_bfe_u32 v13, v1, 1, 1")
    A("v_lshl_add_u32 v12, v13, 3, v12")
    A("v_lshl_add_u32 v12, v10, 6, v12")
    A("v_add_u32 v12, s56, v12")
    A("v_lshl_add_u32 v13, v11, 8, v12")
    A("v_mul_u32_u24 v14, 2560, v11")
    A("v_add_u32 v14, v14, v12")
    A("v_lshlrev_b32 v2, 4, v1")
    A(f"s_mul_i32 s53, s61, {Opt.wstr}")
    A(f"s_add_u32 s53, s53, {WS_WOT:#x}")
    A("s_lshl_b32 s54, s62, 10")
    A("s_add_u32 s54, s54, s53")
    A("s_add_u32 s54, s54, 32768")
    A("s_lshl_b32 s62, s62, 12")
    A("s_add_u32 s53, s53, s62")
    A("s_lshl_b32 s55, s60, 7")
    A(f"s_add_u32 s55, s55, {FW:#x}")
    if Opt.wback == 2:
        A("v_lshlrev_b32 v5, 7, v1")
        A("s_mov_b32 exec_hi, 0")
        A(f"buffer_load_dword v24, v5, s[{SWS}:{SWS+3}], s53 offen")
        A("s_mov_b32 exec_lo, 0xff")
        A(f"buffer_load_dword v25, v5, s[{SWS}:{SWS+3}], s54 offen")
        A("s_mov_b64 exec, -1")
    A("s_waitcnt vmcnt(0)")
    for hh in range(4):
        for half in range(2):
            A(f"ds_read_b64_tr_b16 {vr(40+4*hh+2*half,2)}, v13 offset:{(20*hh+8*half)*64}")
    for half in range(2):
        A(f"ds_read_b64_tr_b16 {vr(56+2*half,2)}, v14 offset:{(20*half+16)*64}")
    A("s_waitcnt lgkmcnt(0)")
    for hh in range(4):
        A(f"buffer_store_dwordx4 {vr(40+4*hh,4)}, v2, s[{SWS}:{SWS+3}], s53 offen offset:{1024*hh}{Opt.stw}")
    A(f"buffer_store_dwordx4 v[56:59], v2, s[{SWS}:{SWS+3}], s54 offen{Opt.stw}")
    A(f"s_mov_b64 s[{TAG}:{TAG+1}], 0")
    tag_check(A, 8)
    set_flag(A, 8, "s55")
    if Opt.wback == 1:
        A("v_lshlrev_b32 v5, 7, v1")
        A("s_mov_b32 exec_hi, 0")
        A(f"buffer_load_dword v24, v5, s[{SWS}:{SWS+3}], s53 offen")
        A("s_mov_b32 exec_lo, 0xff")
        A(f"buffer_load_dword v25, v5, s[{SWS}:{SWS+3}], s54 offen")
        A("s_mov_b64 exec, -1")
    A.label(Lnw)
    A("s_setprio 0")
    b_channel(A)
    if Opt.hdef == 1:
        A("s_lshl_b32 s50, s49, 12")
    else:
        conv_load_h(A, 2)
    A(f"v_mov_b32 v4, {B_MB+256}")
    A("v_mov_b32 v5, 0")
    A("ds_write_b32 v4, v5")
    A("ds_write_b32 v4, v5 offset:512")


def conv_setup(A):
    A("v_lshlrev_b32 v2, 4, v1")
    A("s_lshl_b32 s52, s49, 1")
    A("s_and_b32 s52, s52, 0xfffffffc")
    A(f"s_load_dword s55, s[{S_SSD}:{S_SSD+1}], s52")
    A(f"s_load_dword s54, s[{S_SSK}:{S_SSK+1}], s50")
    A(f"s_add_u32 s51, s50, {WS_KVT:#x}")
    for i in range(4):
        A(f"v_mov_b32 v{4+i}, 0")
    A("v_add_u32 v3, s56, v2")
    A("s_mov_b64 exec, 0xf")
    A("ds_write_b128 v3, v[4:7]")
    A("s_mov_b32 exec_lo, -1")
    A(f"ds_write_b128 v3, v[4:7] offset:{64+4096}")
    A("s_mov_b64 exec, -1")
    A("v_and_b32 v11, 3, v1")
    A("v_lshrrev_b32 v10, 4, v1")
    A("v_bfe_u32 v12, v1, 2, 2")
    A("v_lshlrev_b32 v8, 4, v11")
    A("v_lshl_add_u32 v8, v10, 6, v8")
    A("v_lshlrev_b32 v9, 3, v12")
    A("v_sub_u32 v8, v8, v9")
    A("s_add_u32 s57, s56, 32")
    A("v_add_u32 v8, s57, v8")
    A("v_sub_u32 v9, v11, v10")
    A("v_lshlrev_b32 v9, 6, v9")
    A("v_lshl_add_u32 v9, v12, 4, v9")
    A(f"s_add_u32 s57, s56, {64+4096+512}")
    A("v_add_u32 v9, s57, v9")
    A("v_mov_b32 v13, 0xffff")
    for i in range(4):
        A(f"v_cmp_eq_u32 vcc, {4*i}, v1")
        A(f"v_cndmask_b32 v{MK+i}, 0, v13, vcc")
    A("v_add_u32 v13, 3, v11")
    A("v_and_b32 v13, 3, v13")
    A("v_lshl_add_u32 v13, v12, 2, v13")
    A("v_add_u32 v13, 48, v13")
    A("v_subrev_u32 v14, 16, v1")
    A("v_cmp_gt_u32 vcc, 16, v1")
    A("v_cndmask_b32 v14, v14, v13, vcc")
    A("v_lshlrev_b32 v14, 2, v14")
    A("s_mov_b32 s58, 0x1111")
    A("s_mov_b32 s59, 0")


MK = 16


def role_conv(A):
    conv_setup(A)
    A("s_sub_u32 s61, s99, 24")
    A("s_lshl_b32 s62, s98, 3")
    A("s_add_u32 s62, s62, s61")
    A("s_lshl_b32 s62, s62, 7")
    A(f"s_add_u32 s62, s62, {F0:#x}")
    A("s_mul_i32 s60, s98, 80")
    A("s_mul_i32 s61, s61, 6")
    A("s_add_u32 s60, s60, s61")
    A("s_add_u32 s61, s60, 5")
    f0_lines(A, 60, 61, 12)
    A(f"s_waitcnt vmcnt({4 if Opt.hdef == 2 else 0}) lgkmcnt(0)")
    stamp(A, 4)
    A("s_barrier")
    if Opt.hdef == 1:
        Lh = A.newlabel("L_hd")
        A("s_cmp_eq_u32 s48, 7")
        A(f"s_cbranch_scc0 {Lh}")
        set_flag(A, 22, "s62")
        A.label(Lh)
        A("s_barrier")
        conv_load_h(A, 2)
        A("s_waitcnt vmcnt(0)")
    else:
        A("s_waitcnt vmcnt(0)")
        A("s_cmp_eq_u32 s48, 7")
        A("s_cbranch_scc0 L_cb")
        set_flag(A, 22, "s62")
    A("s_branch L_cb")
    A.label("L_conv")
    RA, RB = 64, 192
    ACCS = (32, 40, 48, 56)
    CAR, PUL, TMP = 20, (21, 22), 23
    OUT = (24, 28)

    def rdA(m, e):
        reg = RA + 8 * m + 4 * e
        return [(f"ds_read_b64_tr_b16 {vr(reg,2)}, v8 offset:{256*m+8*e+32}", None),
                (f"ds_read_b64_tr_b16 {vr(reg+2,2)}, v8 offset:{256*m+8*e}", ("A", m, e))]

    def xload():
        A(f"s_add_u32 m0, s56, {64+4096+512}")
        for i in range(4):
            A(f"buffer_load_dwordx4 v2, s[{SWS}:{SWS+3}], s51 offen offset:{1024*i}{SC} lds")

    Lb, Lg = "L_cb", A.newlabel("L_cg")
    tag_check(A, 22)
    conv_load_h(A, 2)
    A(f"buffer_load_dwordx2 v[22:23], v12, s[{SWS}:{SWS+3}], s52 offen{SC}")
    A("s_barrier")
    A("s_waitcnt vmcnt(0)")
    A(f"v_cmp_eq_u64 vcc, s[{TAG}:{TAG+1}], v[22:23]")
    A("s_cmp_eq_u64 vcc, -1")
    Lx = A.newlabel("L_cx")
    A(f"s_cbranch_scc1 {Lx}")
    poll(A, 22, 12, "s52", sleep=8)
    A.label(Lx)
    stamp(A, 8)
    xload()
    A.label(Lb)
    A("s_waitcnt lgkmcnt(0)")
    A("s_lshl_b32 s54, s54, 16")
    A("s_lshl_b32 s53, s55, 16")
    A("s_and_b32 s55, s55, 0xffff0000")
    A("s_bitcmp1_b32 s49, 0")
    A("s_cselect_b32 s53, s55, s53")
    A("v_mov_b32 v15, s54")
    A("v_add_f32 v15, s53, v15")
    A("v_cvt_pk_bf16_f32 v15, v15, v15")
    T = Lgkm(A)
    for m in range(16):
        for e in range(2):
            for x, tg in rdA(m, e):
                T.issue(x, tg)
    T.wait(("A", 0, 1))
    for k in range(4):
        A(f"v_bfi_b32 v{RA+k}, v{MK+k}, v15, v{RA+k}")
        A(f"v_lshlrev_b32 v{MK+k}, 16, v{MK+k}")
        A(f"v_bfi_b32 v{RA+4+k}, v{MK+k}, v15, v{RA+4+k}")
    T.all()
    if Opt.qwait:
        Lqd = A.newlabel("L_qd")
        A("s_cmp_ge_u32 s99, 24")
        A(f"s_cbranch_scc1 {Lqd}")
        lds_wait(A, 12, L_SYNC, 4, sleep=4)
        if Opt.qdel:
            A(f"s_sleep {Opt.qdel}")
        A.label(Lqd)
    A("s_cmp_ge_u32 s99, 24")
    A(f"s_cbranch_scc0 {Lg}")
    Ln7 = A.newlabel("L_n7")
    A("s_cmp_eq_u32 s48, 7")
    A(f"s_cbranch_scc0 {Ln7}")
    poll(A, 22, 12, "s52", sleep=4)
    A.label(Ln7)
    A("s_barrier")
    stamp(A, 8)
    xload()
    if Opt.bdelay:
        A(f"s_sleep {Opt.bdelay}")
    A("s_cmp_ge_u32 s48, 4")
    A(f"s_cbranch_scc0 {Lg}")
    A("s_setprio 1")
    A.label(Lg)
    A(f"s_add_u32 s51, s50, {WS_YT:#x}")
    A(f"v_mov_b32 v{PUL[1]}, 0")

    def epilogue(i):
        V = ACCS[i % 4]
        dpp = lambda d, src, op: f"v_add_f32_dpp v{d}, v{src}, v{d} {op} row_mask:0xf bank_mask:0xf"
        L = [f"v_mov_b32 v{CAR}, 0"]
        for k in (1, 2, 3):
            L += [dpp(V, V + k, f"row_shr:{4*k}"), dpp(V + 4, V + 4 + k, f"row_shr:{4*k}"), dpp(CAR, V + 4 + k, f"row_shl:{16-4*k}")]
        L.append(("ds", f"ds_bpermute_b32 v{PUL[i&1]}, v14, v{CAR}", ("P", i)))
        x = [dpp(V + 4, V + k, f"row_shl:{16-4*k}") for k in (1, 2, 3)]
        L += [x[0], "GAP", x[1], "GAP", x[2]]
        L.append(("wait", ("P", i)))
        L.append(f"v_cndmask_b32 v{TMP}, v{PUL[i&1]}, v{PUL[1-(i&1)]}, s[58:59]")
        L.append(f"v_add_f32 v{V}, v{V}, v{TMP}")
        L.append(f"v_cvt_pk_bf16_f32 v{OUT[(i>>2)&1]+(i&3)}, v{V}, v{V+4}")
        if i & 3 == 3:
            L.append(f"buffer_store_dwordx4 {vr(OUT[(i>>2)&1],4)}, v2, s[{SWS}:{SWS+3}], s51 offen offset:{1024*(i>>2)}{SC}")
        return L

    def emit(x):
        if isinstance(x, tuple):
            if x[0] == "ds":
                T.issue(x[1], x[2])
            else:
                T.wait(x[1])
        elif x != "GAP":
            A(x)

    A("s_waitcnt vmcnt(0)")
    stampw(A, 9)

    def stream(tiles, exit_at=None, keep=None):
        T.tag.clear()
        for w in range(16):
            T.issue(f"ds_read_b128 {vr(RB+4*w,4)}, v9 offset:{256*w}", ("B", w))
        fill = []
        since = 99
        for i in tiles:
            V = ACCS[i % 4]
            while fill and fill[0][0] <= i - 4:
                emit(fill.pop(0)[1])
            if exit_at and i == exit_at[0]:
                while fill and fill[0][0] <= i - 2:
                    emit(fill.pop(0)[1])
                assert len(fill) == len(epilogue(i - 1))
                A("s_cmp_ge_u32 s48, 4")
                A(f"s_cbranch_scc1 {exit_at[1]}")
            since = 0
            for w in range(i + 1):
                for e in range(2):
                    T.wait(("B", w))
                    c = vr(V + 4 * e, 4) if w else "0"
                    A(f"v_mfma_f32_16x16x32_bf16 {vr(V+4*e,4)}, {vr(RA+8*(i-w)+4*e,4)}, {vr(RB+4*w,4)}, {c}")
                    since += 1
                    left = 2 * (i + 1) - since
                    due = len([1 for t_, _x in fill if t_ <= i - 2])
                    if i == tiles[-1] or (exit_at and i == exit_at[0] - 1):
                        due = len(fill)
                    for _ in range(2 if due > left else 1):
                        if fill and (fill[0][0] < i - 1 or since >= 6):
                            emit(fill.pop(0)[1])
            ep = epilogue(i)
            if keep and i == keep[0]:
                k = [j for j, x in enumerate(ep) if isinstance(x, str) and x.startswith("v_cvt")][0]
                ep = ep[:k] + [f"v_mov_b32 v{keep[1]}, v{V}", f"v_mov_b32 v{keep[1]+1}, v{V+4}"] + ep[k + 1:]
            fill += [(i, x) for x in ep]
        stampw(A, 10)
        T.done = T.n if Ctx.stamps else T.done
        return [x for _, x in fill]

    A("s_cmp_ge_u32 s48, 6")
    A("s_cbranch_scc1 L_second")
    for x in stream(range(16), (12, "L_first")):
        emit(x)
    A("s_branch L_cdone")
    A.label("L_first")
    A("s_waitcnt lgkmcnt(0)")
    A("s_nop 6")
    T.done = T.n
    stampw(A, 10)
    for x in epilogue(11):
        emit(x)
    A("s_and_b32 s52, s48, 1")
    A("s_lshl_b32 s52, s52, 9")
    A(f"s_add_u32 s52, s52, {B_MB}")
    A("v_lshl_add_u32 v10, v1, 2, s52")
    A(f"ds_write_b32 v10, v{PUL[1]}")
    A("s_add_u32 s52, s52, 256")
    lds_arrive(A, 10, "s52")
    A("s_branch L_cdone")
    A.label("L_second")
    T.done = T.n
    last = stream(range(12, 16), keep=(12, 4))
    for x in last[:-1]:
        emit(x)
    A("s_and_b32 s52, s48, 1")
    A("s_lshl_b32 s52, s52, 9")
    A(f"s_add_u32 s52, s52, {B_MB}")
    A("v_lshl_add_u32 v12, v1, 2, s52")
    A("s_add_u32 s52, s52, 256")
    lds_wait(A, 10, "s52", 1, sleep=2)
    A(f"ds_read_b32 v{TMP}, v12")
    A("s_waitcnt lgkmcnt(0)")
    A(f"v_cndmask_b32 v{TMP}, 0, v{TMP}, s[58:59]")
    A(f"v_add_f32 v4, v4, v{TMP}")
    A(f"v_cvt_pk_bf16_f32 v{OUT[1]}, v4, v5")
    A(last[-1])
    A.label("L_cdone")
    A("s_waitcnt vmcnt(0)")
    stamp(A, 11)
    A("s_cmp_ge_u32 s99, 24")
    A("s_cbranch_scc1 L_bdone")
    A(f"v_mov_b32 v10, {L_SYNC+12}")
    A("v_mov_b32 v11, 1")
    A("s_mov_b64 exec, 1")
    A("ds_add_rtn_u32 v12, v10, v11")
    A("s_mov_b64 exec, -1")
    A("s_lshl_b32 s52, s98, 4")
    A("s_add_u32 s52, s52, s99")
    A("s_lshl_b32 s52, s52, 7")
    A(f"s_add_u32 s52, s52, {F4+8*128:#x}")
    A("s_waitcnt lgkmcnt(0)")
    A("v_readfirstlane_b32 s53, v12")
    A("s_cmp_eq_u32 s53, 3")
    A("s_cbranch_scc0 L_bend")
    set_flag(A, 10, "s52")
    A("s_branch L_bend")
    A.label("L_bdone")


def role_post(A):
    SQ, SO = 32, 36
    A.label("L_post")
    A("s_setprio 0")
    A("s_and_b32 s48, s48, 3")
    A("s_sub_u32 s50, s99, 24")
    A("s_lshl_b32 s50, s50, 2")
    A("s_lshl_b32 s51, s99, 1")
    A("s_add_u32 s51, s51, 24")
    A("s_cmp_ge_u32 s99, 24")
    A("s_cselect_b32 s50, s50, s51")
    A("s_mul_i32 s49, s98, 40")
    A("s_add_u32 s49, s49, s50")
    A("s_add_u32 s49, s49, s48")
    A("s_and_b32 s50, s49, 31")
    A("s_lshr_b32 s51, s49, 5")
    A("v_lshrrev_b32 v2, 3, v1")
    A("v_and_b32 v3, 7, v1")
    A("v_lshlrev_b32 v4, 12, v2")
    A("v_lshl_add_u32 v4, v3, 4, v4")
    A("s_lshl_b32 s52, s51, 18")
    A("s_lshl_b32 s53, s50, 7")
    A("s_add_u32 s52, s52, s53")
    A(f"s_add_u32 s52, s52, {WS_YT:#x}")
    A("s_mul_i32 s56, s48, 8320")
    A(f"s_add_u32 s56, s56, {B_PRE}")
    A("s_lshr_b32 s54, s50, 3")
    A("s_lshl_b32 s54, s54, 9")
    A("s_bfe_u32 s55, s50, 0x20001")
    A("s_lshl_b32 s55, s55, 3")
    A("s_add_u32 s54, s54, s55")
    A("s_and_b32 s55, s50, 1")
    A("s_lshl_b32 s55, s55, 1")
    A("s_add_u32 s54, s54, s55")
    A("v_and_b32 v5, 3, v2")
    A("v_lshrrev_b32 v6, 2, v2")
    A("v_lshl_add_u32 v5, v5, 5, v6")
    A("v_mul_u32_u24 v6, 1280, v5")
    A("v_lshlrev_b32 v7, 1, v6")
    A("v_lshl_add_u32 v6, v3, 4, v6")
    A("v_lshl_add_u32 v7, v3, 4, v7")
    A("s_mul_i32 s54, s54, 1280")
    A("s_lshl_b32 s53, s51, 7")
    A("s_lshl_b32 s55, s54, 1")
    A("s_add_u32 s54, s54, s53")
    A("s_add_u32 s55, s55, s53")
    A("s_add_u32 s55, s55, 1280")
    srd(A, SQ, S_BQ, NB_X)
    srd(A, SO, S_OUT, NB_OUT)
    QR, YR = 16, 48
    rows = [0, 4, 128, 132, 256, 260, 384, 388]
    for i in range(8):
        A(f"s_add_u32 s57, s54, {rows[i]*1280}")
        A(f"buffer_load_dwordx4 {vr(QR+4*i,4)}, v6, s[{SQ}:{SQ+3}], s57 offen{Opt.ntq}")
    A("s_mov_b32 s59, 0xffff0000")
    QF = 128
    A("s_waitcnt vmcnt(0)")
    for i in range(32):
        A(f"v_lshlrev_b32 v{QF+2*i}, 16, v{QR+i}")
        A(f"v_and_b32 v{QF+2*i+1}, s59, v{QR+i}")
    A("s_lshl_b32 s57, s98, 4")
    A("s_sub_u32 s58, s57, 16")
    A("v_min_u32 v12, 47, v1")
    A("v_add_u32 v12, s58, v12")
    A("v_max_i32 v12, 0, v12")
    A("v_min_u32 v12, 127, v12")
    A("v_lshlrev_b32 v12, 7, v12")
    A("s_add_u32 s57, s57, s99")
    A("s_lshl_b32 s57, s57, 7")
    A(f"s_add_u32 s57, s57, {F4-24*128:#x}")
    A(f"s_mov_b32 s58, {F4:#x}")
    Lx, Lq, Ld = A.newlabel("L_p7"), A.newlabel("L_pq"), A.newlabel("L_pd")
    A("s_cmp_ge_u32 s99, 24")
    A(f"s_cbranch_scc0 {Lq}")
    A("s_barrier")
    A("s_cmp_eq_u32 s48, 3")
    A(f"s_cbranch_scc0 {Lx}")
    set_flag(A, 8, "s57")
    poll(A, 14, 12, "s58", sleep=4)
    A.label(Lx)
    A("s_barrier")
    A(f"s_branch {Ld}")
    A.label(Lq)
    A("s_barrier")
    poll(A, 14, 12, "s58", sleep=4)
    A.label(Ld)
    if Opt.dB:
        A(f"s_sleep {Opt.dB}")
    stamp(A, 12)
    for i in range(8):
        A(f"v_xor_b32 v8, {16*i}, v4")
        A(f"s_add_u32 m0, s56, {1024*i}")
        A(f"buffer_load_dwordx4 v8, s[{SWS}:{SWS+3}], s52 offen{SC} lds")
        if i < 7:
            A(f"s_add_u32 s52, s52, {8*4096}")
    A("v_xor_b32 v8, v2, v3")
    A("v_lshlrev_b32 v8, 4, v8")
    A("v_lshl_add_u32 v8, v3, 10, v8")
    A("v_add_u32 v8, s56, v8")
    A("s_waitcnt vmcnt(0)")
    for c in range(8):
        A(f"ds_read_b128 {vr(YR+4*c,4)}, v8 offset:{128*c}")
    A("s_waitcnt lgkmcnt(0)")
    stamp(A, 13)
    YF, OUT = 80, 96
    for i in range(8):
        for c in range(8):
            if i & 1:
                A(f"v_and_b32 v{YF+c}, s59, v{YR+4*c+i//2}")
            else:
                A(f"v_lshlrev_b32 v{YF+c}, 16, v{YR+4*c+i//2}")
        for c in range(0, 8, 2):
            A(f"v_pk_mul_f32 {vr(YF+c,2)}, {vr(YF+c,2)}, {vr(QF+8*i+c,2)}")
        for k in range(4):
            A(f"v_cvt_pk_bf16_f32 v{OUT+4*i+k}, v{YF+2*k}, v{YF+2*k+1}")
        A(f"s_add_u32 s57, s55, {rows[i]*2560}")
        A(f"buffer_store_dwordx4 {vr(OUT+4*i,4)}, v7, s[{SO}:{SO+3}], s57 offen{Opt.oscb}")
    stamp(A, 14)


def build():
    A = Asm()
    k = NAME + "_kernel"
    A.raw(f".globl {k}")
    A.raw(".p2align 8")
    A.raw(f".type {k},@function")
    A.label(k)
    if Opt.hold:
        A("s_memrealtime s[64:65]")
    load_kernargs(A)
    if Opt.lite:
        A("s_memrealtime s[64:65]")
    elif not Opt.hp:
        if Opt.rt:
            for k_ in range(2, 15):
                A(f"s_mov_b32 s{64+2*k_}, 0")
            stamp(A, 0, True)
        else:
            stamp_init(A)
        if Opt.rt:
            stamp(A, 1)
    A("v_lshrrev_b32 v2, 6, v0")
    A("v_and_b32 v1, 63, v0")
    A("v_readfirstlane_b32 s100, v2")
    A("s_and_b32 s98, s2, 7")
    A("s_lshr_b32 s99, s2, 3")
    A("s_cmp_ge_u32 s2, 192")
    A("s_cbranch_scc1 L_b")
    A("s_and_b32 s49, s2, 3")
    A("s_lshl_b32 s49, s49, 2")
    A("s_and_b32 s50, s99, 3")
    A("s_add_u32 s49, s49, s50")
    A("s_bfe_u32 s52, s2, 0x10002")
    A("s_lshr_b32 s53, s2, 5")
    A("s_lshl_b32 s54, s52, 1")
    A("s_add_u32 s54, s54, s53")
    A("s_lshl_b32 s55, s52, 2")
    A("s_add_u32 s55, s55, s53")
    A("s_sub_u32 s55, s55, 2")
    A("s_cmp_lt_u32 s2, 64")
    A("s_cselect_b32 s50, s54, s55")
    A("s_cselect_b32 s51, 1, 0")
    A("s_and_b32 s48, s100, 3")
    A("s_cmp_ge_u32 s100, 4")
    A("s_cbranch_scc1 L_c")
    role_loader(A)
    A.label("L_c")
    role_compute(A)
    A.label("L_b")
    A("s_cmp_ge_u32 s2, 256")
    A("s_cbranch_scc1 L_exit")
    A("s_mov_b32 s48, s100")
    A("s_cmp_ge_u32 s48, 5")
    A("s_cbranch_scc1 L_help")
    role_pre(A)
    A("s_branch L_bconv")
    A.label("L_help")
    role_helper(A)
    A.label("L_bconv")
    role_conv(A)
    A("s_cmp_lt_u32 s48, 4")
    A("s_cbranch_scc1 L_bend")
    role_post(A)
    A.label("L_bend")
    end_wave(A, "b")
    A.label("L_exit")
    A("s_endpgm")
    A.label("L_code_end")
    head = ["; generated by gen/f13.py",
            "; @launch grid=(256,1,1) block=(512,1,1) lds=163840"]
    txt = "\n".join(head) + '\n.amdgcn_target "amdgcn-amd-amdhsa--gfx950"\n.text\n' + A.text()
    txt += f'''.section .rodata,"a"
.p2align 6
.amdhsa_kernel {k}
  .amdhsa_next_free_vgpr 256
  .amdhsa_next_free_sgpr 102
  .amdhsa_accum_offset 256
  .amdhsa_group_segment_fixed_size 0
  .amdhsa_kernarg_size 104
  .amdhsa_user_sgpr_count 2
  .amdhsa_user_sgpr_kernarg_segment_ptr 1
  .amdhsa_system_sgpr_workgroup_id_x 1
.end_amdhsa_kernel
'''
    return txt


if __name__ == "__main__":
    args = sys.argv[2:]
    Ctx.stamps = "stamps" in args
    Opt.rot = "norot" not in args
    Opt.codepf = "nocodepf" not in args
    for a in args:
        if a.startswith("probe="):
            Opt.probe = tuple(int(x) for x in a[6:].split(","))
        if a.startswith("holdwg="):
            Opt.holdwg = int(a[7:])
        if a.startswith("osc="):
            Opt.osc = a[4:].replace("_", " ")
        if a.startswith("oscb="):
            Opt.oscb = a[5:].replace("_", " ")
        if a.startswith("gpf="):
            Opt.gpf = int(a[4:])
        if a.startswith("gpfd="):
            Opt.gpfd = int(a[5:])
        if a.startswith("rotA="):
            Opt.rotA = int(a[5:], 16)
        if a.startswith("rotB="):
            Opt.rotB = int(a[5:], 16)
        if a == "fake16":
            Opt.fake16 = True
        if a.startswith("qdelay="):
            Opt.qdelay = int(a[7:])
        if a.startswith("bpos="):
            Opt.bpos = int(a[5:])
        if a == "lidle":
            Opt.lidle = True
        if a == "noqwait":
            Opt.qwait = False
        if a == "nofwarm":
            Opt.fwarm = False
        if a == "noprog":
            Opt.prog = False
        if a == "dflag":
            Opt.dflag = True
        if a == "lite":
            Opt.lite = True
            Ctx.stamps = True
        if a.startswith("wos="):
            Opt.wos = int(a[4:])
        if a.startswith("R="):
            Opt.R = int(a[2:])
        if a.startswith("hdef="):
            Opt.hdef = int(a[5:])
        if a.startswith("gpf2="):
            Opt.gpf2 = int(a[5:])
        if a.startswith("oahead="):
            Opt.oahead = int(a[7:])
        if a.startswith("hpsel="):
            Opt.hpsel = a[6:]
        if a.startswith("bdelay="):
            Opt.bdelay = int(a[7:])
        if a.startswith("qdel="):
            Opt.qdel = int(a[5:])
        if a == "snake":
            Opt.snake = True
        if a == "wrot":
            Opt.wrot = True
        if a.startswith("wfirst="):
            Opt.wfirst = int(a[7:])
        if a.startswith("wearly="):
            Opt.wearly = int(a[7:])
        if a.startswith("fwat="):
            Opt.fwat = int(a[5:])
        if a.startswith("only="):
            Opt.only = [0, 1, 15] + [int(x) for x in a[5:].split(",")]
        if a.startswith("touch="):
            Opt.touch = int(a[6:])
        if a.startswith("tsh="):
            Opt.tsh = int(a[4:])
        for nm in ("ldw", "ldo", "ldp", "stw", "ntk", "nth", "ntq"):
            if a.startswith(nm + "="):
                setattr(Opt, nm, a[4:].replace("_", " "))
        if a.startswith("wback="):
            Opt.wback = int(a[6:])
        if a.startswith("wthr="):
            Opt.wthr = int(a[5:])
        if a.startswith("wstr="):
            Opt.wstr = int(a[5:])
        if a == "fullout":
            Opt.fullout = True
        if a == "noearly":
            Opt.noearly = True
        if a.startswith("lprio="):
            Opt.lprio = int(a[6:])
        if a.startswith("lprio0="):
            Opt.lprio0 = int(a[7:])
        if a.startswith("wmid="):
            Opt.wmid = int(a[5:])
        if a == "rt":
            Opt.rt = True
        if a.startswith("hp="):
            Opt.hp = int(a[3:])
            Ctx.stamps = True
        if a.startswith("hold="):
            Opt.hold = int(a[5:])
        if a.startswith("dA="):
            Opt.dA = int(a[3:])
        if a.startswith("dB="):
            Opt.dB = int(a[3:])
        if a == "nowomall":
            Opt.womall = False
        if a == "noppoll":
            Opt.ppoll = False
        if a.startswith("psleep="):
            Opt.psleep = int(a[7:])
        if a.startswith("wopf="):
            Opt.wopf = a[5:]
    for a in args:
        if a.startswith("LA="):
            Opt.LA = int(a[3:])
    open(sys.argv[1], "w").write(build())
```

```python
import sys
from asm import Asm, vr, ar, sr
from roles import (WS_PHIQ, WS_PART, WS_O, WS_KVT, WS_YT, WS_STAMP, WS_SIZE, S_X, S_W, S_WPHI, S_WO, S_BQ, S_BK, S_BV,
                   S_SH, S_SSK, S_SSD, S_OUT, S_DBG, S_WS, NB_X, NB_W, NB_WPHI, NB_WO, NB_SH, NB_SSK, NB_OUT, LOG2E,
                   Ctx, load_kernargs, srd, stamp, stamp_init, softmax20)

NAME = "concat_heads__linear_kernel_hedgehog__ssm_conv_h3__prompt"
WS_PQ = WS_PHIQ
WS_FLAG = 0xF00000
F1, F2, F3, F0, F4 = (WS_FLAG + 128 * o for o in (0, 512, 1024, 1536, 1856))
FW = WS_FLAG + 128 * 2048
WS_WOT = 0x400000
WS_EPOCH = WS_FLAG + 128 * 2560 + 64
SWS = 44
SC = " sc1"
TAG = 30
SLOT = 36864
L_WP = 147456
L_Z = L_WP + 8192
L_SYNC = L_Z + 4096
L_V = 128 * 336
L_WOB = 69632
L_OT = 65536
CV_LDS = 8768
L_QCV = 3 * SLOT
B_PRE = 8 * CV_LDS
B_MB = B_PRE + 5 * 8320


class Opt:
    rot = True
    LA = 2
    ntk = " nt"
    nth = " nt"
    ntq = " nt"
    codepf = True
    wopf = "no"
    osc = " sc1 nt"
    oscb = " sc1 nt"
    hp = 0
    pfm = []
    pfw = []
    pfx = []
    wmid = 32
    lprio = 0
    lprio0 = 1
    stw = SC
    noearly = False
    fullout = True
    wthr = 0
    wstr = 40960
    wback = 0
    ldw = SC
    ldo = SC
    ldp = SC
    touch = 0
    tsh = 20
    only = None
    fwat = 8
    par = 0x32
    wearly = 8
    wrot = False
    wfirst = 26
    bdelay = 0
    qdel = 0
    snake = False
    hpsel = "kv"
    oahead = 5
    gpf2 = 3
    hdef = 1
    R = 10
    wos = 1
    lite = False
    dflag = False
    prog = True
    fwarm = True
    qwait = True
    lidle = False
    bpos = 4
    fake16 = False
    qdelay = 0
    rotA = 0x5050
    rotB = 0x550050
    gpf = 0
    gpfd = 99
    rt = False
    ppoll = False
    womall = True
    probe = None
    dA = 0
    hold = 0
    holdwg = -1
    dB = 0
    psleep = 2


_stamp0 = stamp


def stamp(A, k, real=False):
    if Opt.hp:
        if k == Opt.hp:
            A("s_memrealtime s[64:65]")
        return
    if Opt.lite and k not in (0, 15):
        return
    if Opt.only and k not in Opt.only:
        return
    _stamp0(A, k, real or Opt.rt)


def end_wave(A, holdable=False):
    if Opt.hp:
        if (holdable is True and Opt.hpsel in ("kv", "qw")) or (holdable == "b" and Opt.hpsel in ("b", "qs")):
            L = A.newlabel("L_hp")
            A("s_cmp_lt_u32 s99, 8")
            A("s_cbranch_scc1 L_exit" if Opt.hpsel in ("kv", "b") else "s_cbranch_scc0 L_exit")
            if holdable == "b":
                A("s_cmp_lt_u32 s100, 4")
                A("s_cbranch_scc1 L_exit")
            A.label(L)
            A("s_sleep 4")
            A("s_memrealtime s[66:67]")
            A("s_waitcnt lgkmcnt(0)")
            A("s_sub_u32 s66, s66, s64")
            A("s_cmp_lt_u32 s66, 2000")
            A(f"s_cbranch_scc1 {L}")
    elif Ctx.stamps:
        A("s_waitcnt vmcnt(0)")
        stamp(A, 15, True)
        A("s_waitcnt lgkmcnt(0)")
        A("s_mov_b64 exec, -1")
        A("v_mov_b32 v2, 0")
        for k in ((0, 15) if Opt.lite else range(16)):
            A(f"v_writelane_b32 v2, s{64+2*k}, {k}")
        A("s_lshl_b32 s62, s2, 3")
        A("s_add_u32 s62, s62, s100")
        A("s_lshl_b32 s62, s62, 6")
        A(f"s_add_u32 s62, s62, {WS_STAMP:#x}")
        A("v_lshlrev_b32 v1, 2, v1")
        A("s_mov_b64 exec, 0xffff")
        A(f"buffer_store_dword v2, v1, s[{SWS}:{SWS+3}], s62 offen")
        if Opt.probe:
            Lp = A.newlabel("L_probe")
            A(f"s_cmp_eq_u32 s2, {Opt.probe[0]}")
            A(f"s_cbranch_scc0 {Lp}")
            A(f"s_cmp_eq_u32 s100, {Opt.probe[1]}")
            A(f"s_cbranch_scc0 {Lp}")
            A("v_subrev_u32 v3, s66, v2")
            A("s_sub_u32 s62, s94, s64")
            A("v_writelane_b32 v3, s62, 15")
            A("v_cmp_ne_u32 vcc, 0, v2")
            A("v_cndmask_b32 v3, 0, v3, vcc")
            A("s_mov_b64 exec, 0xfffc")
            A(f"global_store_dword v1, v3, s[{S_DBG}:{S_DBG+1}]")
            A.label(Lp)
    A("s_endpgm")


def stampw(A, k):
    stamp(A, k)
    if Ctx.stamps:
        A("s_waitcnt lgkmcnt(0)")


def poll(A, vt, voff, soff, sleep=1):
    L, Ld = A.newlabel("L_poll"), A.newlabel("L_polld")
    A("s_movk_i32 s101, 0x4000")
    A.label(L)
    A(f"buffer_load_dwordx2 {vr(vt,2)}, v{voff}, s[{SWS}:{SWS+3}], {soff} offen{SC}")
    A("s_waitcnt vmcnt(0)")
    A(f"v_cmp_eq_u64 vcc, s[{TAG}:{TAG+1}], {vr(vt,2)}")
    A("s_cmp_eq_u64 vcc, -1")
    A(f"s_cbranch_scc1 {Ld}")
    A(f"s_sleep {sleep}")
    A("s_sub_u32 s101, s101, 1")
    A("s_cmp_eq_u32 s101, 0")
    A(f"s_cbranch_scc0 {L}")
    A("s_endpgm")
    A.label(Ld)


def ppoll(A, vt, voff, soff, sleep=1, depth=4):
    if not Opt.ppoll:
        return poll(A, vt, voff, soff, sleep=sleep)
    L, Ld = A.newlabel("L_pp"), A.newlabel("L_ppd")
    ld = lambda k: f"buffer_load_dwordx2 {vr(vt+2*k,2)}, v{voff}, s[{SWS}:{SWS+3}], {soff} offen{SC}"
    A("s_movk_i32 s101, 0x4000")
    for k in range(depth - 1):
        A(ld(k))
        A(f"s_sleep {sleep}")
    A.label(L)
    for k in range(depth):
        A(ld((k + depth - 1) % depth))
        A(f"s_waitcnt vmcnt({depth-1})")
        A(f"v_cmp_eq_u64 vcc, s[{TAG}:{TAG+1}], {vr(vt+2*k,2)}")
        A("s_cmp_eq_u64 vcc, -1")
        A(f"s_cbranch_scc1 {Ld}")
        A(f"s_sleep {sleep}")
    A("s_sub_u32 s101, s101, 1")
    A("s_cmp_eq_u32 s101, 0")
    A(f"s_cbranch_scc0 {L}")
    A("s_endpgm")
    A.label(Ld)


def set_flag(A, vt, soff):
    A(f"v_mov_b32 v{vt}, s{TAG}")
    A(f"v_mov_b32 v{vt+1}, s{TAG+1}")
    A(f"v_lshlrev_b32 v{vt+2}, 3, v1")
    A("s_waitcnt vmcnt(0)")
    A("s_mov_b64 exec, 0xffff")
    A(f"buffer_store_dwordx2 {vr(vt,2)}, v{vt+2}, s[{SWS}:{SWS+3}], {soff} offen{SC}")
    A("s_mov_b64 exec, -1")


def tag_issue(A):
    A(f"s_load_dwordx2 s[{TAG}:{TAG+1}], s[{S_DBG}:{S_DBG+1}], 0")


def tag_check(A, vt):
    L, Ld = A.newlabel("L_hs"), A.newlabel("L_hsd")
    A("s_waitcnt lgkmcnt(0)")
    A(f"s_cmp_lg_u32 s{TAG}, s{TAG+1}")
    A(f"s_cbranch_scc1 {Ld}")
    A("s_movk_i32 s101, 0x4000")
    A(f"v_mov_b32 v{vt+2}, 0")
    A.label(L)
    A(f"global_load_dwordx2 {vr(vt,2)}, v{vt+2}, s[{S_DBG}:{S_DBG+1}]{SC}")
    A("s_waitcnt vmcnt(0)")
    A(f"v_readfirstlane_b32 s{TAG}, v{vt}")
    A(f"v_readfirstlane_b32 s{TAG+1}, v{vt+1}")
    A("s_nop 3")
    A(f"s_cmp_lg_u32 s{TAG}, s{TAG+1}")
    A(f"s_cbranch_scc1 {Ld}")
    A("s_sleep 8")
    A("s_sub_u32 s101, s101, 1")
    A("s_cmp_eq_u32 s101, 0")
    A(f"s_cbranch_scc0 {L}")
    A("s_endpgm")
    A.label(Ld)


def lds_arrive(A, vt, addr):
    A(f"v_mov_b32 v{vt}, {addr}")
    A(f"v_mov_b32 v{vt+1}, 1")
    A("s_waitcnt lgkmcnt(0)")
    A("s_mov_b64 exec, 1")
    A(f"ds_add_u32 v{vt}, v{vt+1}")
    A("s_mov_b64 exec, -1")


def lds_wait(A, vt, addr, n, sleep=0):
    L, Ld = A.newlabel("L_lw"), A.newlabel("L_lwd")
    if addr is not None:
        A(f"v_mov_b32 v{vt}, {addr}")
    A("s_mov_b32 s101, 0x40000")
    A.label(L)
    A(f"ds_read_b32 v{vt+1}, v{vt}")
    A("s_waitcnt lgkmcnt(0)")
    A(f"v_cmp_le_u32 vcc, {n}, v{vt+1}")
    A(f"s_cbranch_vccnz {Ld}")
    if sleep:
        A(f"s_sleep {sleep}")
    A("s_sub_u32 s101, s101, 1")
    A("s_cmp_eq_u32 s101, 0")
    A(f"s_cbranch_scc0 {L}")
    A("s_endpgm")
    A.label(Ld)


class Lgkm:
    def __init__(self, A):
        self.A, self.n, self.done, self.tag = A, 0, 0, {}

    def issue(self, text, tag=None):
        self.A(text)
        self.n += 1
        if tag is not None:
            self.tag[tag] = self.n

    def wait(self, *tags):
        need = max(self.tag[t] for t in tags)
        if need > self.done:
            self.A(f"s_waitcnt lgkmcnt({min(15, self.n - need)})")
            self.done = max(need, self.n - 15)

    def all(self):
        if self.done < self.n:
            self.A("s_waitcnt lgkmcnt(0)")
            self.done = self.n


def softmax_parts(X, E, F, T, PH):
    mx, mn = T, T + 2
    mm = [f"v_max3_f32 v{mx}, v{X}, v{X+1}, v{X+2}", f"v_min3_f32 v{mn}, v{X}, v{X+1}, v{X+2}"]
    for i in range(3, 19, 2):
        mm += [f"v_max3_f32 v{mx}, v{mx}, v{X+i}, v{X+i+1}", f"v_min3_f32 v{mn}, v{mn}, v{X+i}, v{X+i+1}"]
    mm += [f"v_max_f32 v{mx}, v{mx}, v{X+19}", f"v_min_f32 v{mn}, v{mn}, v{X+19}",
           f"v_mul_f32 v{mx}, s60, v{mx}", f"v_mul_f32 v{mn}, s60, v{mn}"]
    fm, ex = [], []
    for i in range(0, 20, 2):
        fm.append(f"v_pk_fma_f32 {vr(E+i,2)}, {vr(X+i,2)}, s[60:61], {vr(mx,2)} op_sel_hi:[1,1,0] neg_lo:[0,0,1] neg_hi:[0,0,1]")
        fm.append(f"v_pk_fma_f32 {vr(F+i,2)}, {vr(X+i,2)}, s[60:61], {vr(mn,2)} op_sel_hi:[1,1,0] neg_lo:[1,0,0] neg_hi:[1,0,0]")
    for i in range(20):
        ex += [f"v_exp_f32 v{E+i}, v{E+i}", f"v_exp_f32 v{F+i}, v{F+i}"]
    se, sf = T + 4, T + 6
    sm = [f"v_pk_add_f32 {vr(se,2)}, {vr(E,2)}, {vr(E+2,2)}", f"v_pk_add_f32 {vr(sf,2)}, {vr(F,2)}, {vr(F+2,2)}"]
    for i in range(4, 20, 2):
        sm += [f"v_pk_add_f32 {vr(se,2)}, {vr(se,2)}, {vr(E+i,2)}", f"v_pk_add_f32 {vr(sf,2)}, {vr(sf,2)}, {vr(F+i,2)}"]
    fin = [f"v_add_f32 v{se}, v{se}, v{se+1}", f"v_add_f32 v{sf}, v{sf}, v{sf+1}",
           f"v_rcp_f32 v{se}, v{se}", f"v_rcp_f32 v{sf}, v{sf}"]
    tail = []
    for j in range(20):
        R, s_ = (E + 2 * j, se) if j < 10 else (F + 2 * (j - 10), sf)
        tail.append((f"v_pk_mul_f32 {vr(R,2)}, {vr(R,2)}, {vr(s_,2)} op_sel_hi:[1,0]", f"v_cvt_pk_bf16_f32 v{PH+j}, v{R}, v{R+1}"))
    return mm, fm, ex, sm, fin, tail


def merge(main, extra, every, start=0):
    out, extra = [], list(extra)
    for i, x in enumerate(main):
        out.append(x)
        if extra and i >= start and (i - start) % every == every - 1:
            out.append(extra.pop(0))
    return out + extra


def touch(A, v, sd, shift):
    A(f"v_lshlrev_b32 v{v}, {shift}, v1")
    A(f"buffer_load_dword v{v+1}, v{v}, s[{SWS}:{SWS+3}], 0 offen")
    srd(A, sd, S_OUT, NB_OUT)
    A(f"buffer_load_dword v{v+2}, v{v}, s[{sd}:{sd+3}], 0 offen")


def o_index(A):
    A("s_sub_u32 s63, s99, 8")
    A("s_lshr_b32 s62, s63, 2")
    A("s_lshl_b32 s3, s98, 2")
    A("s_add_u32 s62, s62, s3")
    A("s_and_b32 s63, s63, 3")
    A("s_lshl_b32 s63, s63, 2")
    A("s_add_u32 s63, s63, s48")


WR = 64


def wo_index(A):
    A("s_lshr_b32 s50, s99, 2")
    A("s_sub_u32 s50, s50, 1")
    A("s_max_i32 s50, s50, 0")
    A("s_lshl_b32 s50, s50, 2")
    A("s_add_u32 s50, s50, s48")
    A("s_lshl_b32 s52, s50, 6")
    A(f"s_mul_i32 s51, s50, {Opt.wstr}")
    A(f"s_add_u32 s51, s51, {WS_WOT:#x}")
    A("s_lshl_b32 s54, s50, 10")
    A(f"s_add_u32 s54, s54, {FW:#x}")
    A("v_lshlrev_b32 v18, 4, v1")


def wload(A, f0, f1):
    for f in range(f0, f1):
        if Opt.wthr and f >= Opt.wearly + 2:
            A(f"s_waitcnt vmcnt({Opt.wthr-1})")
        if Opt.only and f in (14, 22, 30, 38):
            stamp(A, {14: 2, 22: 3, 30: 4, 38: 5}[f])
        if f % 4 == 0 or f == f0:
            A(f"s_add_u32 s53, s51, {4096*(f//4)}")
        A(f"buffer_load_dwordx4 {vr(WR+4*f,4)}, v18, s[{SWS}:{SWS+3}], s53 offen offset:{1024*(f&3)}{Opt.ldw}")


def role_loader(A):
    SX, SW, SP = 32, 36, 40
    VX, VW = 24, 28
    t0, t1, t2, t3 = 11, 12, 13, 14
    A(f"s_setprio {Opt.lprio0}")
    A(f"v_lshrrev_b32 v{t0}, 3, v1")
    A(f"v_mul_u32_u24 v{t0}, 1280, v{t0}")
    A(f"v_lshrrev_b32 v{t1}, 4, v1")
    A(f"v_and_b32 v{t2}, 7, v1")
    A(f"v_xor_b32 v{t1}, v{t1}, v{t2}")
    A(f"v_xor_b32 v{t2}, 4, v{t1}")
    A(f"v_lshl_add_u32 v{VX}, v{t1}, 4, v{t0}")
    A(f"v_lshl_add_u32 v{VX+1}, v{t2}, 4, v{t0}")
    A(f"v_add_u32 v{VX+2}, {2*(8*1280-1024)}, v{VX}")
    A(f"v_add_u32 v{VX+3}, {3*(8*1280-1024)}, v{VX+1}")
    A(f"v_add_u32 v{VX+1}, {8*1280-1024}, v{VX+1}")
    A("s_lshl_b32 s60, s49, 2")
    A("s_add_u32 s60, s60, s48")
    A(f"s_mul_i32 s60, s60, {32*1280}")
    A("s_lshr_b32 s30, s99, 2")
    A(f"s_lshr_b32 s30, {Opt.par:#x}, s30")
    A("s_xor_b32 s30, s30, s49")
    A("s_and_b32 s30, s30, 1")
    A("s_mul_i32 s31, s30, 640")
    A("s_add_u32 s60, s60, s31")
    A("s_lshl_b32 s62, s48, 12")
    A("s_mov_b32 m0, s62")
    A(f"s_mov_b32 s{SX+2}, {NB_X:#x}")
    A(f"s_mov_b32 s{SX+3}, 0x20000")
    A("s_waitcnt lgkmcnt(0)")
    A(f"s_mov_b64 s[{SX}:{SX+1}], s[{S_X}:{S_X+1}]")

    def dma_x(s):
        if s:
            A(f"s_add_u32 m0, s62, {(s % 3) * SLOT}")
        for i in range(4):
            A(f"buffer_load_dwordx4 v{VX+i}, s[{SX}:{SX+3}], s60 offen offset:{1024*i} lds")

    def dma_w(s):
        sl = (s % 3) * SLOT
        A(f"s_add_u32 m0, s63, {sl}")
        for i in range(4):
            A(f"buffer_load_dwordx4 v{VW+i}, s[{SW}:{SW+3}], s61 offen offset:{1024*i} lds")
        A(f"s_add_u32 m0, s63, {sl+4096}")
        A(f"buffer_load_dwordx4 v{VW+4}, s[{SW}:{SW+3}], s61 offen lds")
        if s < 9:
            if s == 4:
                A("s_add_u32 s60, s60, s97")
                A("s_add_u32 s61, s61, s96")
            else:
                A("s_add_u32 s60, s60, 128")
                A(f"s_add_u32 s61, s61, {64*3840}")

    dma_x(0)
    A("s_cmp_eq_u32 s51, 0")
    A("s_cselect_b32 s56, 1120, 0")
    A("s_add_u32 s58, s51, 1")
    A(f"v_xor_b32 v15, s58, v1")
    A(f"v_cmp_gt_u32 vcc, 32, v1")
    A("s_movk_i32 s57, 3520")
    A(f"v_cndmask_b32 v16, v15, v1, vcc")
    for i in range(5):
        src = (1, 1, 16, 15, 15)[i]
        A(f"v_add_u32 v{t2}, {64*i}, v{src}")
        A(f"v_mul_u32_u24 v{t2}, 6554, v{t2}")
        A(f"v_lshlrev_b32 v{t3}, 4, v{src}")
        A(f"v_lshrrev_b32 v{t0}, 17, v{t2}")
        A(f"v_bfe_u32 v{t1}, v{t2}, 16, 1")
        A(f"v_mad_u32_u24 v{t0}, v{t0}, s57, v{t3}")
        A(f"v_mad_u32_u24 v{VW+i}, v{t1}, s56, v{t0}")
    A(f"v_lshlrev_b32 v{t3}, 4, v1")
    A(f"v_add_u32 v{VW+4}, 4096, v{VW+4}")
    A(f"s_mul_i32 s61, s48, {16*3840}")
    A("s_mul_i32 s57, s50, 160")
    A("s_add_u32 s58, s57, 1280")
    A("s_lshl_b32 s57, s57, 1")
    A("s_cmp_eq_u32 s51, 0")
    A("s_cselect_b32 s57, s58, s57")
    A("s_add_u32 s61, s61, s57")
    A(f"s_mul_i32 s96, s30, {5*64*3840}")
    A("s_add_u32 s61, s61, s96")
    A("s_mul_i32 s63, s48, 5120")
    A("s_add_u32 s63, s63, 16384")
    srd(A, SW, S_W, NB_W)
    dma_w(0)
    stamp(A, 2)
    A("s_lshl_b32 s96, s96, 1")
    A(f"s_sub_u32 s96, {64*3840}, s96")
    A("s_lshl_b32 s97, s31, 1")
    A("s_sub_u32 s97, 128, s97")
    A("s_mul_i32 s57, s50, 3200")
    A("s_lshl_b32 s57, s57, s51")
    A("s_lshl_b32 s58, s48, 11")
    A("s_add_u32 s57, s57, s58")
    srd(A, SP, S_WPHI, NB_WPHI)
    A(f"s_add_u32 m0, s58, {L_WP}")
    A(f"buffer_load_dwordx4 v{t3}, s[{SP}:{SP+3}], s57 offen lds")
    A(f"buffer_load_dwordx4 v{t3}, s[{SP}:{SP+3}], s57 offen offset:1024 lds")
    srd(A, SWS, S_WS, WS_SIZE)
    Lh = A.newlabel("L_noh")
    A("s_cmp_eq_u32 s51, 0")
    A(f"s_cbranch_scc1 {Lh}")
    A("s_mul_i32 s49, s98, 80")
    A("s_lshl_b32 s50, s99, 2")
    A("s_add_u32 s49, s49, s50")
    A("s_add_u32 s49, s49, s48")
    A("s_add_u32 s49, s49, 48")
    A(f"s_mul_i32 s56, s48, {CV_LDS}")
    A(f"s_add_u32 s56, s56, {L_QCV}")
    A("s_lshl_b32 s50, s49, 12")
    A.label(Lh)
    assert Opt.LA == 2
    issued = 0
    for s in range(10):
        while issued < min(s + Opt.LA - 1, 9):
            issued += 1
            dma_x(issued)
            dma_w(issued)
        if s == 0:
            Ls = A.newlabel("L_nosetup")
            A("s_cmp_ge_u32 s99, 8")
            A(f"s_cbranch_scc1 {Ls}")
            conv_setup(A)
            f0_lines(A, 49, 49, 12)
            A.label(Ls)
        if s == 6:
            tag_issue(A)
        if s == Opt.fwat:
            Lf = A.newlabel("L_nofw")
            A("s_cmp_lt_u32 s99, 8")
            A(f"s_cbranch_scc1 {Lf}")
            wo_index(A)
            A(f"s_add_u32 s42, s{S_WS}, s54")
            A(f"s_addc_u32 s43, s{S_WS+1}, 0")
            for k in range(8):
                A(f"s_load_dwordx2 s[{4+2*k}:{5+2*k}], s[42:43], {128*k}")
            A.label(Lf)
        if s == 9:
            A("s_cmp_lt_u32 s99, 8")
            A("s_cbranch_scc1 L_q9")
            A("s_waitcnt lgkmcnt(0)")
            A("s_mov_b32 s3, 0")
            for k in range(8):
                A(f"s_cmp_eq_u64 s[{4+2*k}:{5+2*k}], s[{TAG}:{TAG+1}]")
                A("s_addc_u32 s3, s3, 0")
            A(f"s_cmp_lg_u32 s{TAG}, s{TAG+1}")
            A("s_addc_u32 s3, s3, 0")
            A(f"s_cmp_eq_u32 s3, {19 if Opt.noearly else 9}")
            A("s_cbranch_scc0 L_q9")
            wload(A, 0, Opt.wearly)
            A(f"s_waitcnt vmcnt({Opt.wearly})")
            A("s_barrier")
            stamp(A, 6)
            wload(A, Opt.wearly, Opt.wearly + 2)
            A("s_barrier")
            A("s_branch L_wrest")
            A.label("L_q9")
        A(f"s_waitcnt vmcnt({9*(issued-s)})")
        A("s_barrier")
        if s in (0, 3, 6, 9):
            stamp(A, 3 + s // 3)
    A("s_setprio 0")
    A("s_cmp_lt_u32 s99, 8")
    A("s_cbranch_scc1 L_conv")
    role_wo(A)


def role_wo(A):
    SO, SWO = 32, 36
    A.label("L_wo")
    A(f"s_setprio {Opt.lprio}")
    wo_index(A)
    A("v_lshrrev_b32 v15, 3, v1")
    A("v_lshlrev_b32 v15, 7, v15")
    A("v_lshlrev_b32 v18, 4, v1")
    tag_check(A, 20)
    A(f"buffer_load_dwordx2 v[16:17], v15, s[{SWS}:{SWS+3}], s54 offen{SC}")
    Lj, Lk = A.newlabel("L_woj"), A.newlabel("L_wok")
    A("s_cmp_lt_u32 s99, 8")
    A(f"s_cbranch_scc1 {Lj}")
    A("s_barrier")
    A.label(Lj)
    A("s_waitcnt vmcnt(0)")
    A(f"v_cmp_eq_u64 vcc, s[{TAG}:{TAG+1}], v[16:17]")
    A("s_cmp_eq_u64 vcc, -1")
    A(f"s_cbranch_scc1 {Lk}")
    poll(A, 16, 15, "s54", sleep=8)
    A.label(Lk)

    wload(A, 0, Opt.wearly + 2)
    A.label("L_wrest")
    A(f"s_setprio {Opt.lprio}")
    wload(A, Opt.wearly + 2, Opt.wfirst)
    A("v_lshrrev_b32 v2, 2, v1")
    A("v_and_b32 v3, 3, v1")
    A("s_mul_i32 s53, s48, 20480")
    A(f"s_add_u32 s53, s53, {L_WOB}")
    A("v_lshrrev_b32 v11, 5, v1")
    A("v_and_b32 v9, 31, v1")
    A("v_lshrrev_b32 v15, 4, v1")
    A("v_lshlrev_b32 v15, 7, v15")
    o_index(A)
    Lq1, Lq2 = A.newlabel("L_woq"), A.newlabel("L_woq")
    A("s_cmp_lt_u32 s99, 8")
    A(f"s_cbranch_scc1 {Lq2}")
    A("s_lshr_b32 s54, s62, 2")
    A("s_lshl_b32 s54, s54, 4")
    A("s_add_u32 s54, s54, s63")
    A("s_lshl_b32 s54, s54, 8")
    A("v_lshlrev_b32 v19, 7, v11")
    A(f"s_add_u32 s54, s54, {F2:#x}")
    A("s_lshl_b32 s55, s62, 4")
    A("s_add_u32 s55, s55, s63")
    A("s_mul_i32 s55, s55, 5120")
    poll(A, 16, 19, "s54", sleep=4)
    A("s_mov_b32 m0, s53")
    A("s_add_u32 s54, s55, 4096")
    for i in range(4):
        A(f"buffer_load_dwordx4 v18, s[{SWS}:{SWS+3}], s55 offen offset:{1024*i}{SC} lds")
    A("s_add_u32 m0, s53, 4096")
    A(f"buffer_load_dwordx4 v18, s[{SWS}:{SWS+3}], s54 offen{SC} lds")
    A("s_lshl_b32 s54, s48, 2")
    A(f"s_add_u32 s54, s54, {L_SYNC+16}")
    A("s_waitcnt vmcnt(0)")
    lds_arrive(A, 16, "s54")
    stamp(A, 14)
    A("s_lshl_b32 s54, s62, 2")
    A("s_add_u32 s54, s54, s48")
    A("s_mul_i32 s55, s54, 10240")
    A(f"s_add_u32 s55, s55, {WS_PART:#x}")
    A("s_lshl_b32 s54, s54, 9")
    A(f"s_add_u32 s54, s54, {F1:#x}")
    A("v_min_u32 v19, 20, v9")
    A("v_and_b32 v20, 32, v1")
    A("v_add_u32 v19, v19, v20")
    A("v_lshlrev_b32 v20, 3, v19")
    A("v_lshlrev_b32 v19, 4, v19")
    A("s_mul_i32 s57, s48, 5120")
    A("v_add_u32 v21, s57, v18")
    A("s_mov_b32 s59, 0xffff0000")
    lds_wait(A, 16, L_SYNC + 4, 4, sleep=2)
    stamp(A, 7)
    wload(A, Opt.wfirst, max(Opt.wmid, Opt.wfirst))
    PR = [24, 34, 44, 54]
    SM, TP = 224, 244

    def pload(p):
        so = "s55" if p < 1 else f"s{40+p}"
        A(f"buffer_load_dwordx4 {vr(PR[p],4)}, v19, s[{SWS}:{SWS+3}], {so} offen{Opt.ldp}")
        A(f"buffer_load_dwordx4 {vr(PR[p]+4,4)}, v19, s[{SWS}:{SWS+3}], {so} offen offset:1024{Opt.ldp}")
        A(f"buffer_load_dwordx2 {vr(PR[p]+8,2)}, v20, s[{SWS}:{SWS+3}], {so} offen offset:2048{Opt.ldp}")

    for p in (1, 2, 3):
        A(f"s_add_u32 s{40+p}, s55, {2560*p}")
    if Opt.prog:
        L, Ld = A.newlabel("L_pg"), A.newlabel("L_pgd")
        A("s_mov_b64 s[56:57], 0")
        A("s_movk_i32 s101, 0x4000")
        A.label(L)
        A(f"buffer_load_dwordx2 v[16:17], v15, s[{SWS}:{SWS+3}], s54 offen{SC}")
        A("s_waitcnt vmcnt(0)")
        A(f"v_cmp_eq_u64 vcc, s[{TAG}:{TAG+1}], v[16:17]")
        A("s_andn2_b64 s[50:51], vcc, s[56:57]" if False else "s_andn2_b64 s[96:97], vcc, s[56:57]")
        A("s_mov_b64 s[56:57], vcc")
        for p in range(4):
            Ls = A.newlabel("L_pgs")
            A(f"s_bitcmp1_b64 s[96:97], {16*p}")
            A(f"s_cbranch_scc0 {Ls}")
            pload(p)
            A.label(Ls)
        A("s_cmp_eq_u64 s[56:57], -1")
        A(f"s_cbranch_scc1 {Ld}")
        A(f"s_sleep {Opt.psleep}")
        A("s_sub_u32 s101, s101, 1")
        A(f"s_cbranch_scc0 {L}")
        A("s_endpgm")
        A.label(Ld)
        stamp(A, 12)
        A("s_waitcnt vmcnt(0)")
    else:
        ppoll(A, 244, 15, "s54", sleep=Opt.psleep)
        stamp(A, 12)
        for p in range(4):
            pload(p)
    A("s_setprio 3")
    for p in range(4):
        A(f"s_waitcnt vmcnt({9-3*p})")
        for i in range(10):
            d = SM + 2 * i if p == 0 else TP + 2 * (i % 5)
            A(f"v_lshlrev_b32 v{d}, 16, v{PR[p]+i}")
            A(f"v_and_b32 v{d+1}, s59, v{PR[p]+i}")
            if p:
                A(f"v_pk_add_f32 {vr(SM+2*i,2)}, {vr(SM+2*i,2)}, {vr(d,2)}")
    for q in range(5):
        A(f"ds_write_b128 v21, {vr(SM+4*q,4)} offset:{1024*q}")
    lds_arrive(A, 16, L_SYNC + 8)
    A("s_setprio 0")
    stamp(A, 13)
    if Opt.wmid > Opt.wfirst:
        Lq3 = A.newlabel("L_woq")
        A(f"s_branch {Lq3}")
    A.label(Lq2)
    if Opt.wmid > Opt.wfirst:
        wload(A, Opt.wfirst, Opt.wmid)
        A.label(Lq3)
    wload(A, max(Opt.wmid, Opt.wfirst), 40)
    srd(A, SO, S_OUT, NB_OUT)
    A("s_and_b32 s54, s99, 3")
    A("s_lshl_b32 s55, s98, 2")
    A("s_add_u32 s54, s54, s55")
    A("s_lshr_b32 s55, s54, 1")
    A("s_lshl_b32 s55, s55, 12")
    A(f"s_add_u32 s55, s55, {F3:#x}")
    A("s_lshl_b32 s57, s48, 10")
    A("s_add_u32 s55, s55, s57")
    A("v_lshrrev_b32 v15, 3, v1")
    A("v_lshlrev_b32 v15, 7, v15")
    A("s_mul_i32 s57, s54, 81920")
    A(f"s_add_u32 s57, s57, {WS_O:#x}")
    A("s_lshr_b32 s58, s48, 1")
    A("s_mul_i32 s58, s58, 40960")
    A("s_and_b32 s59, s48, 1")
    A("s_lshl_b32 s59, s59, 12")
    A("s_add_u32 s58, s58, s59")
    A("s_add_u32 s57, s57, s58")
    A(f"s_add_u32 s58, s58, {L_OT}")
    A("v_mov_b32 v5, v18")
    A(f"v_add_u32 v6, {L_OT}, v5")
    A(f"v_add_u32 v7, {L_OT+40960}, v5")
    A("v_lshlrev_b32 v10, 3, v9")
    A("v_lshl_add_u32 v10, v11, 9, v10")
    A(f"v_add_u32 v10, {L_OT+32768}, v10")
    if Opt.fullout:
        A("s_lshl_b32 s56, s48, 6")
        A("s_waitcnt lgkmcnt(0)")
        A("v_mul_u32_u24 v12, 272, v9")
        A("v_lshl_add_u32 v12, v11, 5, v12")
        A("v_add_u32 v12, s56, v12")
        A("v_lshrrev_b32 v2, 4, v1")
        A("v_and_b32 v3, 15, v1")
        A("v_mul_u32_u24 v13, 272, v2")
        A("v_lshl_add_u32 v13, v3, 4, v13")
        A(f"s_mul_i32 s59, s48, {16*272}")
        A("v_add_u32 v13, s59, v13")
        A("v_mul_u32_u24 v14, 2560, v2")
        A("v_lshl_add_u32 v14, v3, 4, v14")
        A("s_lshl_b32 s59, s54, 2")
        A("s_add_u32 s59, s59, s48")
        A(f"s_mul_i32 s59, s59, {16*2560}")
        A("s_add_u32 s59, s59, s52")
        A("s_sub_u32 s59, s59, s56")
    else:
        A("s_mul_i32 s56, s48, 5120")
        A("s_waitcnt lgkmcnt(0)")
        A("v_mul_u32_u24 v12, 80, v9")
        A("v_lshl_add_u32 v12, v11, 5, v12")
        A("v_add_u32 v12, s56, v12")
        A("v_mul_u32_u24 v13, 80, v2")
        A("v_lshl_add_u32 v13, v3, 4, v13")
        A("v_add_u32 v13, s56, v13")
        A("v_mul_u32_u24 v14, 2560, v2")
        A("v_lshl_add_u32 v14, v3, 4, v14")
        A(f"s_mul_i32 s59, s54, {64*2560}")
        A("s_add_u32 s59, s59, s52")
    lds_wait(A, 16, L_SYNC + 12, 4, sleep=2)
    stamp(A, 8)
    ppoll(A, 48, 15, "s55", sleep=Opt.psleep)
    A("s_barrier")
    stamp(A, 9)
    def oissue(k):
        A(f"s_add_u32 m0, s58, {8192*k}")
        for i in range(4):
            A(f"buffer_load_dwordx4 v5, s[{SWS}:{SWS+3}], s57 offen offset:{1024*i}{Opt.ldo} lds")
        if k < 4:
            A("s_add_u32 s57, s57, 8192")

    for k in range(Opt.oahead):
        oissue(k)
    if Ctx.stamps:
        A("s_waitcnt lgkmcnt(0)")
    ACC = (16, 32)
    OFB = 224
    T = Lgkm(A)

    def rdx(f):
        if f % 8 == 0:
            k = f // 8
            A(f"s_waitcnt vmcnt({4*(min(k+Opt.oahead,5)-k-1)})")
            A("s_barrier")
            if k + Opt.oahead < 5:
                oissue(k + Opt.oahead)
        for t in range(2):
            d = OFB + 4 * ((2 * f + t) % 8)
            if f < 32:
                T.issue(f"ds_read_b128 {vr(d,4)}, v{6+t} offset:{1024*f}", (f, t))
            else:
                a = f - 32
                T.issue(f"ds_read_b64 {vr(d,2)}, v10 offset:{40960*t + 1024*a}")
                T.issue(f"ds_read_b64 {vr(d+2,2)}, v10 offset:{40960*t + 1024*a + 256}", (f, t))

    for f in range(3):
        rdx(f)
    for f in range(40):
        for t in range(2):
            T.wait((f, t))
            c = vr(ACC[t], 16) if f else "0"
            A(f"v_mfma_f32_32x32x16_bf16 {vr(ACC[t],16)}, {vr(WR+4*f,4)}, {vr(OFB+4*((2*f+t)%8),4)}, {c}")
            if t == 0 and f + 3 < 40:
                rdx(f + 3)
    stamp(A, 10)
    for t in range(2):
        for i in range(8):
            A(f"v_cvt_pk_bf16_f32 v{48+8*t+i}, v{ACC[t]+2*i}, v{ACC[t]+2*i+1}")
        for i in range(2):
            A(f"ds_write_b128 v12, {vr(48+8*t+4*i,4)} offset:{(32*272 if Opt.fullout else 2560)*t+16*i}")
    A("s_waitcnt lgkmcnt(0)")
    if Opt.fullout:
        A("s_barrier")
    for i in range(4):
        A(f"ds_read_b128 {vr(64+4*i,4)}, v13 offset:{(4*272 if Opt.fullout else 1280)*i}")
    for i in range(4):
        A(f"s_waitcnt lgkmcnt({3-i})")
        A(f"buffer_store_dwordx4 {vr(64+4*i,4)}, v14, s[{SO}:{SO+3}], s59 offen{Opt.osc}")
        if i < 3:
            A(f"s_add_u32 s59, s59, {(4 if Opt.fullout else 16)*2560}")
    stamp(A, 11)
    end_wave(A, True)


def role_compute(A):
    ACC = 16
    WF = (96, 116)
    XF = (136, 152)
    XA, WA, AD = 168, 172, 182
    t0, t1, t2, t3 = 11, 12, 13, 14
    for i in range(80):
        A(f"v_mov_b32 v{ACC+i}, 0")
    A(f"v_and_b32 v{t0}, 255, v0")
    A(f"v_lshlrev_b32 v{t0}, 4, v{t0}")
    A(f"v_add_u32 v{t0}, {L_Z}, v{t0}")
    A(f"ds_write_b128 v{t0}, {vr(ACC,4)}")
    A(f"ds_write_b128 v{t0}, {vr(ACC,4)} offset:64")
    A("s_lshr_b32 s52, s48, 1")
    A("s_and_b32 s53, s48, 1")
    S16, G4, R4, C4 = 183, 184, 185, 186
    A(f"v_and_b32 v{S16}, 15, v1")
    A(f"v_lshrrev_b32 v{G4}, 4, v1")
    A(f"v_bfe_u32 v{R4}, v1, 2, 2")
    A(f"v_and_b32 v{C4}, 3, v1")
    A(f"v_bfe_u32 v{t2}, v1, 1, 3")
    A(f"v_xor_b32 v{t2}, v{t2}, v{G4}")
    A(f"v_lshlrev_b32 v{t2}, 4, v{t2}")
    A(f"v_lshl_add_u32 v{t2}, v{S16}, 7, v{t2}")
    A("s_lshl_b32 s54, s52, 13")
    A(f"v_add_u32 v{XA}, s54, v{t2}")
    A(f"v_xor_b32 v{XA+1}, 64, v{XA}")
    A(f"v_add_u32 v{XA+2}, {2*SLOT}, v{XA}")
    A(f"v_add_u32 v{XA+3}, {2*SLOT}, v{XA+1}")
    A("s_cmp_eq_u32 s51, 0")
    A("s_cselect_b32 s55, 80, 0")
    A("s_mul_i32 s56, s53, 80")
    A("s_lshl_b32 s56, s56, s51")
    A(f"v_lshrrev_b32 v{t0}, 1, v{C4}")
    A(f"v_mul_u32_u24 v{t0}, s55, v{t0}")
    A(f"v_mad_u32_u24 v{t0}, v{C4}, 40, v{t0}")
    A(f"v_add_u32 v{t0}, s56, v{t0}")
    A(f"v_and_b32 v{t1}, 1, v{G4}")
    A("s_add_u32 s57, s51, 4")
    A(f"v_lshlrev_b32 v{t1}, s57, v{t1}")
    A(f"v_lshl_add_u32 v{t2}, v{G4}, 3, v{R4}")
    A(f"v_mul_u32_u24 v{t2}, 320, v{t2}")
    A(f"v_add_u32 v{t2}, 16384, v{t2}")
    for t in range(5):
        A(f"v_add_u32 v{t3}, {8*t}, v{t0}")
        A(f"v_xor_b32 v{t3}, v{t3}, v{t1}")
        A(f"v_add_u32 v{WA+t}, v{t2}, v{t3}")
        A(f"v_add_u32 v{WA+5+t}, {2*SLOT}, v{WA+t}")
    HD = 187
    A("s_cmp_eq_u32 s51, 0")
    A("s_cselect_b32 s55, 1, 3")
    A("s_add_u32 s57, s51, 1")
    A("s_lshl_b32 s56, s53, s57")
    A(f"v_and_b32 v{HD}, s55, v{G4}")
    A(f"v_add_u32 v{HD}, s56, v{HD}")
    A(f"v_mul_u32_u24 v{t0}, 800, v{HD}")
    A(f"v_mad_u32_u24 v{t0}, v{R4}, 40, v{t0}")
    A(f"v_add_u32 v{t0}, {L_WP}, v{t0}")
    A(f"v_mov_b32 v{t1}, {L_Z}")
    A(f"v_cmp_eq_u32 vcc, v{C4}, v{G4}")
    A(f"v_cndmask_b32 v{AD}, v{t1}, v{t0}, vcc")
    A(f"v_lshrrev_b32 v{t0}, 5, v1")
    A(f"v_lshl_add_u32 v{t0}, v{t0}, 4, v{S16}")
    A("s_lshl_b32 s57, s52, 6")
    A(f"v_add_u32 v{t0}, s57, v{t0}")
    A(f"v_mul_u32_u24 v{t1}, 208, v{t0}")
    A(f"v_mad_u32_u24 v2, v{HD}, 48, v{t1}")
    A(f"v_add_u32 v2, {L_V}, v2")
    A(f"v_mul_u32_u24 v{t3}, 80, v{HD}")
    A(f"v_mul_u32_u24 v{t2}, 336, v{t0}")
    A(f"v_add_u32 v3, v{t3}, v{t2}")
    A(f"v_lshrrev_b32 v{t1}, 5, v1")
    A(f"v_lshl_add_u32 v9, v{t1}, 3, v{R4}")
    A(f"v_bfe_u32 v{t2}, v1, 4, 1")
    A(f"v_bfe_u32 v{t3}, v1, 1, 1")
    A(f"v_lshl_add_u32 v10, v{t2}, 1, v{t3}")
    A(f"v_and_b32 v15, 1, v1")
    A(f"v_mul_u32_u24 v{t0}, 336, v9")
    A(f"v_mad_u32_u24 v{t1}, v15, 5, v10")
    A(f"v_lshl_add_u32 v{t0}, v{t1}, 3, v{t0}")
    A("s_mul_i32 s57, s48, 80")
    A(f"v_add_u32 v6, s57, v{t0}")
    A(f"v_lshl_add_u32 v{t0}, v10, 1, v15")
    A("s_mul_i32 s57, s48, 6")
    A(f"v_min_u32 v{t1}, 5, v{t0}")
    A(f"v_add_u32 v{t1}, s57, v{t1}")
    A(f"v_mul_u32_u24 v{t0}, 208, v9")
    A(f"v_lshl_add_u32 v{t0}, v{t1}, 3, v{t0}")
    A(f"v_add_u32 v7, {L_V}, v{t0}")
    WPF = 188
    for tp in range(5):
        A(f"v_mov_b32 v{WPF+12*tp+10}, 0")
        A(f"v_mov_b32 v{WPF+12*tp+11}, 0")
    A(f"s_mov_b32 s60, {LOG2E:#x}")
    A(f"s_mov_b32 s61, {LOG2E:#x}")
    A("s_waitcnt lgkmcnt(0)")
    srd(A, SWS, S_WS, WS_SIZE)
    if Opt.touch & 1:
        Lt = A.newlabel("L_nt")
        A("s_cmp_eq_u32 s48, 0")
        A(f"s_cbranch_scc0 {Lt}")
        touch(A, 248, 32, Opt.tsh)
        A.label(Lt)
    if Opt.fwarm:
        o_index(A)
        A("s_lshl_b32 s54, s62, 2")
        A("s_add_u32 s54, s54, s48")
        A("s_lshl_b32 s54, s54, 2")
        A("s_lshr_b32 s55, s62, 2")
        A("s_lshl_b32 s55, s55, 4")
        A("s_add_u32 s55, s55, s63")
        A("s_lshl_b32 s55, s55, 1")
        A("s_add_u32 s55, s55, 508")
        A("s_and_b32 s56, s99, 2")
        A("s_lshl_b32 s57, s98, 2")
        A("s_add_u32 s56, s56, s57")
        A("s_lshl_b32 s56, s56, 4")
        A("s_lshl_b32 s57, s48, 3")
        A("s_add_u32 s56, s56, s57")
        A("s_add_u32 s56, s56, 1016")
        A(f"v_mov_b32 v{t0}, s54")
        A(f"v_mov_b32 v{t1}, s55")
        A(f"v_mov_b32 v{t2}, s56")
        A("v_cmp_gt_u32 vcc, 16, v1")
        A(f"v_cndmask_b32 v{t1}, v{t1}, v{t0}, vcc")
        A("v_cmp_gt_u32 vcc, 32, v1")
        A(f"v_cndmask_b32 v{t1}, v{t2}, v{t1}, vcc")
        A(f"v_lshrrev_b32 v{t0}, 2, v1")
        A(f"v_add_u32 v{t0}, v{t0}, v{t1}")
        A(f"v_and_b32 v{t0}, 2047, v{t0}")
        A(f"v_lshlrev_b32 v{t0}, 7, v{t0}")
        A(f"s_mov_b32 s54, {WS_FLAG:#x}")
        A(f"buffer_load_dword v4, v{t0}, s[{SWS}:{SWS+3}], s54 offen{SC}")
    A("s_setprio 2")

    T = Lgkm(A)

    def reads(s, ks):
        sl, b = s % 3, ks
        L = []
        for t in range(5):
            for half in range(2):
                L.append((f"ds_read_b64_tr_b16 {vr(WF[b]+4*t+2*half,2)}, v{WA+5*(sl>>1)+t} offset:{(sl&1)*SLOT + (32*ks+4*half)*320}",
                          ("w", s, ks, t) if half else None))
            if t == 0:
                for rho in range(4):
                    L.append((f"ds_read_b128 {vr(XF[b]+4*rho,4)}, v{XA+2*(sl>>1)+ks} offset:{(sl&1)*SLOT + 2048*rho}", ("x", s, ks, rho)))
        return L

    wp = []
    for tp in range(5):
        for dq in range(5):
            wp.append((f"ds_read_b64_tr_b16 {vr(WPF+12*tp+2*dq,2)}, v{AD} offset:{160*dq+8*tp}", None))

    PS = (96, 106, 118, 128)
    E, F, TT_ = 140, 160, 248

    def cvt(rho):
        L = [f"v_cvt_pk_bf16_f32 v{PS[rho]+i}, v{ACC+20*rho+2*i}, v{ACC+20*rho+2*i+1}" for i in range(10)]
        if rho & 1:
            L += [f"v_mov_b32 v{PS[rho]+10}, 0x3f803f80", f"v_mov_b32 v{PS[rho]+11}, 0x3f803f80"]
        return L

    A("s_barrier")
    stampw(A, 3)
    for x, tg in reads(0, 0):
        T.issue(x, tg)
    early = cvt(0) + cvt(1)
    for s in range(10):
        for ks in range(2):
            last = (s == 9 and ks == 1)
            nxt = [] if last else (reads(s, 1) if ks == 0 else reads(s + 1, 0))
            if ks == 0 and s < 5:
                nxt += wp[5 * s:5 * s + 5]
            start = 0 if ks == 0 else Opt.bpos
            for k in range(20):
                t, rho = (k % 5, k // 5) if last else (k // 4, k % 4)
                if Opt.snake and t & 1:
                    rho = 3 - rho
                T.wait(("w", s, ks, t), ("x", s, ks, rho))
                a_ = ACC + 20 * rho + 4 * t
                A(f"v_mfma_f32_16x16x32_bf16 {vr(a_,4)}, {vr(WF[ks]+4*t,4)}, {vr(XF[ks]+4*rho,4)}, {vr(a_,4)}")
                if ks == 1 and k == start:
                    T.all()
                    A("s_barrier")
                if k >= start and nxt:
                    T.issue(*nxt.pop(0))
                if last and k >= 9:
                    for _ in range(2):
                        if early:
                            A(early.pop(0))
            assert not nxt
    stamp(A, 4)
    if Opt.fwarm:
        A("s_waitcnt vmcnt(0)")
    tag_issue(A)
    def phi_mfma(src, acc):
        L = []
        for u in range(3):
            for tp in range(5):
                c = vr(acc + 4 * tp, 4) if u else "0"
                L.append(f"v_mfma_f32_16x16x32_bf16 {vr(acc+4*tp,4)}, {vr(WPF+12*tp+4*u,4)}, {vr(src+4*u,4)}, {c}")
        return L

    def weave(mf, va, per):
        mf, va = list(mf), list(va)
        while mf or va:
            if mf:
                A(mf.pop(0))
            for _ in range(per):
                if va:
                    A(va.pop(0))

    assert not early
    Lq = A.newlabel("L_q")
    A("s_cmp_eq_u32 s51, 0")
    A(f"s_cbranch_scc0 {Lq}")
    mq = A.mark()
    for i in range(10):
        A(f"v_permlane32_swap_b32 v{PS[0]+i}, v{PS[1]+i}")
    weave(phi_mfma(PS[0], ACC), cvt(2) + cvt(3) + [f"v_permlane32_swap_b32 v{PS[2]+i}, v{PS[3]+i}" for i in range(10)], 2)
    vw = [f"ds_write_b128 v2, {vr(PS[1+2*sg]+4*i,4)} offset:{32*208*sg+16*i}" for sg in range(2) for i in range(3)]

    def body(parts):
        mm, fm, ex, sm, fin, tail = parts
        L = fm[:4]
        fm2, sm2 = list(fm[4:]), list(sm)
        for k in range(0, 40, 4):
            L += ex[k:k + 2]
            if fm2:
                L.append(fm2.pop(0))
            L += ex[k + 2:k + 4]
            if fm2:
                L.append(fm2.pop(0))
            if k >= 8:
                L += [sm2.pop(0), sm2.pop(0)]
        return L + sm2 + fin

    def tail_list(tail, wr):
        L = [tail[0][0], tail[1][0]]
        for j in range(20):
            if j + 2 < 20:
                L.append(tail[j + 2][0])
            L.append(tail[j][1])
            if wr and j % 4 == 3:
                L.append(wr[j // 4])
        return L

    s0 = softmax_parts(ACC, E, F, TT_, 56)
    s1 = softmax_parts(ACC + 20, E, F, TT_, 76)
    w0 = [f"ds_write_b128 v3, {vr(56+4*i,4)} offset:{16*i}" for i in range(5)]
    w1 = [f"ds_write_b128 v3, {vr(76+4*i,4)} offset:{32*336+16*i}" for i in range(5)]
    m1 = phi_mfma(PS[2], ACC + 20)
    for x in m1[:4]:
        A(x)
    weave(m1[4:], s0[0], 2)
    stamp(A, 2)
    for x in merge(body(s0), vw, 12) + tail_list(s0[5], w0):
        A(x)
    stamp(A, 13)
    A(f"v_mov_b32 v10, {L_SYNC}")
    A("v_mov_b32 v11, 1")
    A("s_mov_b64 exec, 1")
    A("ds_add_u32 v10, v11 offset:52")
    A("s_mov_b64 exec, -1")
    sal = ["s_lshl_b32 s57, s50, 2", "s_add_u32 s57, s57, s48", "s_lshl_b32 s57, s57, 4", "s_add_u32 s57, s57, s49",
           "s_lshl_b32 s59, s57, 7", f"s_add_u32 s59, s59, {F1:#x}", "s_mul_i32 s57, s57, 2560", f"s_add_u32 s57, s57, {WS_PART:#x}"]
    b1 = body(s1)
    for x in s1[0] + merge(b1[:60], sal, 6) + ["ds_read_b32 v12, v10 offset:52"] + b1[60:]:
        A(x)
    tag_check(A, 14)
    Lok = A.newlabel("L_s0ok")
    A("v_cmp_le_u32 vcc, 4, v12")
    A(f"s_cbranch_vccnz {Lok}")
    lds_wait(A, 12, L_SYNC + 52, 4)
    A.label(Lok)
    for x in tail_list(s1[5], w1):
        A(x)
    A("s_mov_b64 exec, 1")
    A("ds_add_u32 v10, v11")
    A("s_mov_b64 exec, -1")
    stampw(A, 5)
    T = Lgkm(A)
    T.n = 0 if (Ctx.stamps and not Opt.lite and not Opt.hp) else 0
    FAa = {0: 188, 1: 196, 4: 204, 5: 212, 2: 220, 3: 228, 6: 236, 7: 128}
    FBb = {u: 96 + 4 * u for u in range(8)}

    def rdA_(u):
        for half in range(2):
            o = (16 * u + 4 * half)
            T.issue(f"ds_read_b64_tr_b16 {vr(FAa[u]+2*half,2)}, v6 offset:{o*336}")
            T.issue(f"ds_read_b64_tr_b16 {vr(FAa[u]+4+2*half,2)}, v6 offset:{o*336+32}", ("a", u))

    def rdB_(u):
        for half in range(2):
            T.issue(f"ds_read_b64_tr_b16 {vr(FBb[u]+2*half,2)}, v7 offset:{(16*u+4*half)*208}", ("b", u))

    def pm(u, first=False):
        T.wait(("a", u), ("b", u))
        for TT in range(2):
            c = "0" if first else vr(ACC + 16 * TT, 16)
            A(f"v_mfma_f32_32x32x16_bf16 {vr(ACC+16*TT,16)}, {vr(FAa[u]+4*TT,4)}, {vr(FBb[u],4)}, {c}")

    rdB_(0); rdA_(0); rdB_(1); rdA_(1)
    pm(0, True)
    rdB_(4); rdA_(4)
    pm(1)
    rdB_(5); rdA_(5)
    T.issue("ds_read_b32 v12, v10", "c")
    pm(4)
    for u in (2, 3, 6, 7):
        rdB_(u)
    A("v_lshlrev_b32 v2, 4, v1")
    A("v_lshlrev_b32 v3, 3, v1")
    T.wait("c")
    Lok = A.newlabel("L_s1ok")
    A("v_cmp_le_u32 vcc, 4, v12")
    A(f"s_cbranch_vccnz {Lok}")
    lds_wait(A, 10, None, 4)
    A.label(Lok)
    rdA_(2); rdA_(3)
    pm(5)
    rdA_(6)
    pm(2)
    rdA_(7)
    pm(3); pm(6); pm(7)
    o_index(A)
    for i in range(10):
        A(f"v_cvt_pk_bf16_f32 v{48+i}, v{ACC+2*i}, v{ACC+2*i+1}")
    A(f"buffer_store_dwordx2 v[56:57], v3, s[{SWS}:{SWS+3}], s57 offen offset:2048{SC}")
    A("s_mov_b32 exec_lo, 0x00ffffff")
    A("s_mov_b32 exec_hi, 0x00ffffff")
    A(f"buffer_store_dwordx4 v[48:51], v2, s[{SWS}:{SWS+3}], s57 offen{SC}")
    A(f"buffer_store_dwordx4 v[52:55], v2, s[{SWS}:{SWS+3}], s57 offen offset:1024{SC}")
    A("s_mov_b64 exec, -1")
    stamp(A, 6)
    role_o(A)
    end_wave(A)
    A.label(Lq)
    hq = A.mark()
    pre = [f"s_mov_b32 s57, {64*1280}",
           f"v_mul_lo_u32 v{t1}, s57, v{HD}",
           f"v_lshl_add_u32 v2, v{S16}, 4, v{t1}",
           f"v_lshl_add_u32 v3, v{S16}, 3, v{t1}",
           "s_lshl_b32 s58, s49, 1",
           "s_add_u32 s58, s58, s52",
           "s_lshl_b32 s59, s50, 1",
           "s_add_u32 s59, s59, s53",
           "s_lshl_b32 s59, s59, 5",
           "s_add_u32 s59, s59, s58",
           "s_lshl_b32 s59, s59, 7",
           f"s_add_u32 s59, s59, {F2:#x}",
           "s_lshl_b32 s57, s50, 8",
           "s_add_u32 s57, s57, s58",
           "s_mul_i32 s57, s57, 2560"]
    A("s_nop 0")
    OQ = 140

    def outq(rho):
        x, o = ACC + 20 * rho, OQ + 10 * rho
        off = 1280 * (rho >> 1)
        L = [f"v_cvt_pk_bf16_f32 v{o+i}, v{x+2*i}, v{x+2*i+1}" for i in range(10)]
        L.append(f"buffer_store_dwordx4 {vr(o,4)}, v2, s[{SWS}:{SWS+3}], s57 offen offset:{off+256*(rho&1)}{SC}")
        L.append(f"buffer_store_dwordx4 {vr(o+4,4)}, v2, s[{SWS}:{SWS+3}], s57 offen offset:{off+512+256*(rho&1)}{SC}")
        L.append(f"buffer_store_dwordx2 {vr(o+8,2)}, v3, s[{SWS}:{SWS+3}], s57 offen offset:{off+1024+128*(rho&1)}{SC}")
        return L

    weave(phi_mfma(PS[0], ACC), pre + cvt(2), 2)
    m = phi_mfma(PS[1], ACC + 20)
    weave(m[:6], cvt(3), 2)
    weave(m[6:], outq(0), 2)
    m = phi_mfma(PS[2], ACC + 40)
    weave(m[:6], [], 0)
    weave(m[6:], outq(1), 2)
    m = phi_mfma(PS[3], ACC + 60)
    weave(m[:6], [], 0)
    weave(m[6:], outq(2), 2)
    for x in outq(3):
        A(x)
    stamp(A, 6)
    tag_check(A, 10)
    set_flag(A, 10, "s59")
    stamp(A, 7)
    A.check_seam(mq, hq)
    lds_arrive(A, 14, L_SYNC)
    lds_wait(A, 14, None, 4, sleep=1)
    A("s_setprio 0")
    A("s_cmp_lt_u32 s99, 4")
    A("s_cbranch_scc1 L_wo")
    if Opt.wopf == "qs":
        srd(A, 36, S_WO, NB_WO)
        A("s_sub_u32 s57, s99, 4")
        A("s_lshl_b32 s57, s57, 2")
        A("s_add_u32 s57, s57, s48")
        A("s_lshl_b32 s57, s57, 13")
        A(f"s_add_u32 s57, s57, {240*1280}")
        A("v_lshlrev_b32 v8, 7, v1")
        for i in range(4):
            A(f"buffer_load_dword v{200+i}, v8, s[36:39], s57 offen")
            A(f"s_add_u32 s57, s57, {16*8192}")
    A("s_cmp_lt_u32 s48, 2")
    A("s_cbranch_scc1 L_post")
    end_wave(A)


def role_o(A):
    NT = 4
    RAW, X, PQ = 64, 104, 128
    A("s_mul_i32 s53, s48, 20480")
    A(f"s_add_u32 s53, s53, {L_WOB}")
    A("v_and_b32 v4, 31, v1")
    A("v_lshl_add_u32 v5, v4, 4, s53")
    A("v_lshl_add_u32 v6, v4, 3, s53")
    A("v_and_b32 v7, 32, v1")
    A("v_lshlrev_b32 v7, 26, v7")
    A("s_lshl_b32 s54, s48, 2")
    A(f"s_add_u32 s54, s54, {L_SYNC+16}")
    A("s_mov_b32 s58, 0xffff0000")
    for t in range(NT):
        A(f"v_mov_b32 v{PQ+12*t+10}, 0")
        A(f"v_mov_b32 v{PQ+12*t+11}, 0")
    A("s_mov_b32 s96, s59")
    A("s_mov_b32 s97, 0")
    if Opt.dflag:
        Lgo = A.newlabel("L_go")
        A("v_mov_b32 v14, s54")
        A("ds_read_b32 v15, v14")
        A("s_waitcnt lgkmcnt(0)")
        A("v_cmp_le_u32 vcc, 1, v15")
        A(f"s_cbranch_vccnz {Lgo}")
    set_flag(A, 10, "s96")
    lds_arrive(A, 14, L_SYNC + 4)
    A("s_mov_b32 s97, 1")
    stamp(A, 7)
    lds_wait(A, 14, "s54", 1)
    if Opt.dflag:
        A.label(Lgo)
    stampw(A, 8)
    T = Lgkm(A)
    for t in range(NT):
        T.issue(f"ds_read_b128 {vr(RAW+10*t,4)}, v5 offset:{1280*t}")
        T.issue(f"ds_read_b128 {vr(RAW+10*t+4,4)}, v5 offset:{1280*t+512}")
        T.issue(f"ds_read_b64 {vr(RAW+10*t+8,2)}, v6 offset:{1280*t+1024}", t)
    A("s_lshl_b32 s57, s63, 2")
    A("s_mul_i32 s54, s57, 40960")
    A(f"s_add_u32 s54, s54, {WS_O:#x}")
    A("s_lshl_b32 s59, s62, 8")
    A("s_add_u32 s59, s59, s54")
    A("s_add_u32 s59, s59, 32768")
    A("s_lshl_b32 s57, s62, 10")
    A("s_add_u32 s54, s54, s57")
    A("s_lshl_b32 s50, s63, 5")
    A("s_add_u32 s50, s50, s62")
    A("s_lshl_b32 s50, s50, 7")
    A(f"s_add_u32 s50, s50, {F3:#x}")
    mx, se = 124, 126
    for t in range(NT):
        T.wait(t)
        for i in range(10):
            A(f"v_lshl_add_u32 v{X+2*i}, v{RAW+10*t+i}, 16, v7")
            A(f"v_bitop3_b32 v{X+2*i+1}, v{RAW+10*t+i}, s58, v7 bitop3:0x6a")
        A(f"v_max3_f32 v{mx}, v{X}, v{X+1}, v{X+2}")
        A(f"v_max3_f32 v{mx+1}, v{X+3}, v{X+4}, v{X+5}")
        for i in range(6, 18, 4):
            A(f"v_max3_f32 v{mx}, v{mx}, v{X+i}, v{X+i+1}")
            A(f"v_max3_f32 v{mx+1}, v{mx+1}, v{X+i+2}, v{X+i+3}")
        A(f"v_max3_f32 v{mx}, v{mx}, v{X+18}, v{X+19}")
        A(f"v_max_f32 v{mx}, v{mx}, v{mx+1}")
        A(f"v_mul_f32 v{mx}, s60, v{mx}")
        for i in range(0, 20, 2):
            A(f"v_pk_fma_f32 {vr(X+i,2)}, {vr(X+i,2)}, s[60:61], {vr(mx,2)} op_sel_hi:[1,1,0] neg_lo:[0,0,1] neg_hi:[0,0,1]")
        if Opt.dflag and t == 1:
            Lsk = A.newlabel("L_sk")
            A("s_cmp_eq_u32 s97, 1")
            A(f"s_cbranch_scc1 {Lsk}")
            set_flag(A, 10, "s96")
            lds_arrive(A, 14, L_SYNC + 4)
            stampw(A, 7)
            A.label(Lsk)
        for i in range(20):
            A(f"v_exp_f32 v{X+i}, v{X+i}")
        A(f"v_pk_add_f32 {vr(se,2)}, {vr(X,2)}, {vr(X+2,2)}")
        A(f"v_pk_add_f32 {vr(mx,2)}, {vr(X+4,2)}, {vr(X+6,2)}")
        for i in range(8, 20, 4):
            A(f"v_pk_add_f32 {vr(se,2)}, {vr(se,2)}, {vr(X+i,2)}")
            A(f"v_pk_add_f32 {vr(mx,2)}, {vr(mx,2)}, {vr(X+i+2,2)}")
        A(f"v_pk_add_f32 {vr(se,2)}, {vr(se,2)}, {vr(mx,2)}")
        A(f"v_add_f32 v{se}, v{se}, v{se+1}")
        A(f"v_rcp_f32 v{se}, v{se}")
        for i in range(0, 20, 2):
            A(f"v_pk_mul_f32 {vr(X+i,2)}, {vr(X+i,2)}, {vr(se,2)} op_sel_hi:[1,0]")
        for i in range(10):
            A(f"v_cvt_pk_bf16_f32 v{PQ+12*t+i}, v{X+2*i}, v{X+2*i+1}")
    stamp(A, 9)
    KF = 16
    A(f"v_mov_b32 v{KF+10}, 0")
    A(f"v_mov_b32 v{KF+11}, 0")
    lds_wait(A, 14, L_SYNC + 8, 4)
    stampw(A, 10)
    PR = 32
    T = Lgkm(A)
    for q in range(5):
        for p in range(4):
            T.issue(f"ds_read_b128 {vr(PR+16*q+4*p,4)}, v2 offset:{5120*p+1024*q}", q)
    for q in range(5):
        T.wait(q)
        b = PR + 16 * q
        for h in (0, 2):
            A(f"v_pk_add_f32 {vr(b+h,2)}, {vr(b+h,2)}, {vr(b+4+h,2)}")
            A(f"v_pk_add_f32 {vr(b+8+h,2)}, {vr(b+8+h,2)}, {vr(b+12+h,2)}")
        for h in (0, 2):
            A(f"v_pk_add_f32 {vr(b+h,2)}, {vr(b+h,2)}, {vr(b+8+h,2)}")
        for h in (0, 2):
            A(f"v_cvt_pk_bf16_f32 v{KF+2*q+h//2}, v{b+h}, v{b+h+1}")
    D = [176, 192, 208, 224]
    OP = [32, 40, 48, 56]

    def mf(t):
        for u in range(3):
            c = vr(D[t], 16) if u else "0"
            A(f"v_mfma_f32_32x32x16_bf16 {vr(D[t],16)}, {vr(KF+4*u,4)}, {vr(PQ+12*t+4*u,4)}, {c}")

    if Opt.dA:
        A(f"s_sleep {Opt.dA}")
    mf(0)
    mf(1)
    for t in range(NT):
        d, o = D[t], OP[t]
        A(f"v_add_f32 v10, 0x358637bd, v{d+12}")
        A("v_rcp_f32 v10, v10")
        if t + 2 < NT:
            mf(t + 2)
        if t >= 2:
            for i in range(0, 12, 2):
                A(f"v_pk_mul_f32 {vr(d+i,2)}, {vr(d+i,2)}, v[10:11] op_sel_hi:[1,0]")
        else:
            for i in range(12):
                A(f"v_mul_f32 v{d+i}, v10, v{d+i}")
        for i in range(6):
            A(f"v_cvt_pk_bf16_f32 v{o+i}, v{d+2*i}, v{d+2*i+1}")
        A(f"buffer_store_dwordx4 {vr(o,4)}, v2, s[{SWS}:{SWS+3}], s54 offen{SC}")
        A("s_mov_b32 exec_hi, 0")
        A(f"buffer_store_dwordx2 {vr(o+4,2)}, v3, s[{SWS}:{SWS+3}], s59 offen{SC}")
        A("s_mov_b64 exec, -1")
        if t < NT - 1:
            A("s_add_u32 s54, s54, 40960")
            A("s_add_u32 s59, s59, 40960")
    stamp(A, 11)
    set_flag(A, 12, "s50")
    lds_arrive(A, 16, L_SYNC + 12)
    stamp(A, 12)


def b_channel(A):
    A("s_mul_i32 s49, s98, 80")
    A("s_sub_u32 s50, s99, 24")
    A("s_mul_i32 s50, s50, 6")
    A("s_add_u32 s49, s49, s50")
    A("s_add_u32 s49, s49, s48")
    A("s_cmp_ge_u32 s48, 6")
    A("s_cselect_b32 s50, 2, 0")
    A("s_sub_u32 s49, s49, s50")
    A(f"s_mul_i32 s56, s48, {CV_LDS}")


def conv_load_h(A, v):
    SH = 40
    srd(A, SH, S_SSK, NB_SSK)
    A(f"v_lshlrev_b32 v{v}, 4, v1")
    A("s_lshl_b32 s50, s49, 12")
    A("s_add_u32 m0, s56, 64")
    for i in range(4):
        A(f"buffer_load_dwordx4 v{v}, s[{SH}:{SH+3}], s50 offen offset:{1024*i}{Opt.nth} lds")


def f0_lines(A, c0, c1, v):
    A(f"s_lshr_b32 s52, s{c0}, 6")
    A("s_mul_i32 s52, s52, 419431")
    A("s_lshr_b32 s52, s52, 16")
    A(f"s_lshr_b32 s53, s{c1}, 6")
    A("s_mul_i32 s53, s53, 419431")
    A("s_add_u32 s53, s53, 406324")
    A("s_lshr_b32 s53, s53, 16")
    A(f"v_lshrrev_b32 v{v}, 2, v1")
    A(f"v_add_u32 v{v}, s52, v{v}")
    A(f"v_min_u32 v{v}, s53, v{v}")
    A(f"v_lshlrev_b32 v{v}, 7, v{v}")
    A(f"s_mov_b32 s52, {F0:#x}")


def role_pre(A):
    SK, SV, SS = 32, 36, 40
    t0, t1, t2 = 2, 3, 4
    A("s_lshl_b32 s49, s98, 3")
    A("s_add_u32 s49, s49, s99")
    A("s_sub_u32 s49, s49, 24")
    A("s_mul_i32 s49, s49, 5")
    A("s_add_u32 s49, s49, s48")
    A("s_and_b32 s50, s49, 31")
    A("s_lshr_b32 s51, s49, 5")
    A(f"s_mul_i32 s52, s50, {64*1280}")
    A("s_lshl_b32 s53, s51, 7")
    A("s_add_u32 s52, s52, s53")
    A(f"v_lshrrev_b32 v{t0}, 3, v1")
    A(f"v_and_b32 v{t1}, 7, v1")
    A(f"v_mul_u32_u24 v{t2}, {8*1280}, v{t0}")
    A(f"v_lshl_add_u32 v{t2}, v{t1}, 4, v{t2}")
    A(f"v_add_u32 v5, s52, v{t2}")
    A(f"v_subrev_u32 v6, {3*1280}, v5")
    A(f"v_subrev_u32 v7, {2*1280}, v5")
    A(f"v_subrev_u32 v8, {1280}, v5")
    A(f"v_lshlrev_b32 v9, 6, v{t1}")
    A("s_lshl_b32 s54, s51, 9")
    A(f"s_movk_i32 s55, {4*1280}")
    A("s_waitcnt lgkmcnt(0)")
    srd(A, SK, S_BK, NB_X)
    srd(A, SV, S_BV, NB_X)
    srd(A, SS, S_SH, NB_SH)
    WR, KR, VR = 16, 32, 76
    for i in range(4):
        A(f"buffer_load_dwordx4 {vr(WR+4*i,4)}, v9, s[{SS}:{SS+3}], s54 offen offset:{16*i}")
    for i in range(3):
        A(f"buffer_load_dwordx4 {vr(KR+4*i,4)}, v{6+i}, s[{SK}:{SK+3}], 0 offen{Opt.ntk}")

    order = []

    def ld(kind, i):
        so = "0" if i < 4 else "s55"
        if kind == "k":
            A(f"buffer_load_dwordx4 {vr(KR+12+4*i,4)}, v5, s[{SK}:{SK+3}], {so} offen offset:{1280*(i&3)}{Opt.ntk}")
        else:
            A(f"buffer_load_dwordx4 {vr(VR+4*i,4)}, v5, s[{SV}:{SV+3}], {so} offen offset:{1280*(i&3)}{Opt.ntk}")
        order.append((kind, i))

    for i in (5, 6, 7):
        ld("k", i)
    ld("k", 0); ld("v", 0); ld("k", 1); ld("v", 1)
    todo = [("k", 2), ("v", 2), ("k", 3), ("v", 3), ("k", 4), ("v", 4), ("v", 5), ("v", 6), ("v", 7)]
    stamp(A, 2)
    srd(A, SWS, S_WS, WS_SIZE)
    A("s_mul_i32 s56, s48, 8320")
    A(f"s_add_u32 s56, s56, {B_PRE}")
    A(f"v_mul_u32_u24 v10, 1040, v{t1}")
    A(f"v_lshl_add_u32 v10, v{t0}, 4, v10")
    A("v_add_u32 v10, s56, v10")
    A("v_lshrrev_b32 v11, 4, v1")
    A("v_lshlrev_b32 v11, 8, v11")
    A("v_and_b32 v12, 3, v1")
    A("v_lshl_add_u32 v11, v12, 6, v11")
    A("v_bfe_u32 v12, v1, 2, 2")
    A("v_lshl_add_u32 v11, v12, 3, v11")
    A("v_add_u32 v11, s56, v11")
    A(f"v_lshlrev_b32 v12, 12, v{t0}")
    A(f"v_lshl_add_u32 v12, v{t1}, 4, v12")
    A("s_lshl_b32 s57, s51, 18")
    A("s_lshl_b32 s58, s50, 7")
    A("s_add_u32 s57, s57, s58")
    A(f"s_add_u32 s57, s57, {WS_KVT:#x}")
    A("s_mov_b32 s59, 0xffff0000")
    WF, KF, VF, TA, OUT = 108, 140, 172, 180, 196

    def unpack(dst, src, n):
        for i in range(n):
            A(f"v_lshlrev_b32 v{dst+2*i}, 16, v{src+i}")
            A(f"v_and_b32 v{dst+2*i+1}, s59, v{src+i}")

    A(f"s_waitcnt vmcnt({3+len(order)})")
    ld(*todo.pop(0)); ld(*todo.pop(0))
    for c in range(8):
        A(f"v_lshlrev_b32 v{WF+c}, 16, v{WR+2*c}")
        A(f"v_and_b32 v{WF+8+c}, s59, v{WR+2*c}")
        A(f"v_lshlrev_b32 v{WF+16+c}, 16, v{WR+2*c+1}")
        A(f"v_and_b32 v{WF+24+c}, s59, v{WR+2*c+1}")
    A(f"s_waitcnt vmcnt({len(order)})")
    ld(*todo.pop(0)); ld(*todo.pop(0))
    for i in range(3):
        unpack(KF + 8 * i, KR + 4 * i, 4)
    for i in range(8):
        need = max(order.index(("k", i)), order.index(("v", i)))
        A(f"s_waitcnt vmcnt({len(order)-1-need})")
        for _ in range(2):
            if todo:
                ld(*todo.pop(0))
        if i == 2:
            b_channel(A)
            if Opt.hdef:
                A("s_lshl_b32 s50, s49, 12")
            else:
                conv_load_h(A, 13)
                order.extend([None] * 4)
        unpack(KF + 8 * ((i + 3) & 3), KR + 12 + 4 * i, 4)
        unpack(VF, VR + 4 * i, 4)
        acc = TA + 8 * (i & 1)
        for j in (3, 2, 1, 0):
            kk = KF + 8 * ((i + 3 - j) & 3)
            for c in range(0, 8, 2):
                if j == 3:
                    A(f"v_pk_mul_f32 {vr(acc+c,2)}, {vr(kk+c,2)}, {vr(WF+8*j+c,2)}")
                else:
                    A(f"v_pk_fma_f32 {vr(acc+c,2)}, {vr(kk+c,2)}, {vr(WF+8*j+c,2)}, {vr(acc+c,2)}")
        for c in range(0, 8, 2):
            A(f"v_pk_mul_f32 {vr(acc+c,2)}, {vr(acc+c,2)}, {vr(VF+c,2)}")
        if i & 1:
            for c in range(8):
                A(f"v_cvt_pk_bf16_f32 v{OUT+4*c+i//2}, v{TA+c}, v{TA+8+c}")
    stamp(A, 3)
    for c in range(8):
        A(f"ds_write_b128 v10, {vr(OUT+4*c,4)} offset:{128*c}")
    A("s_waitcnt lgkmcnt(0)")
    T = Lgkm(A)
    for i in range(8):
        T.issue(f"ds_read_b64_tr_b16 {vr(16+4*i,2)}, v11 offset:{1040*i}")
        T.issue(f"ds_read_b64_tr_b16 {vr(18+4*i,2)}, v11 offset:{1040*i+32}", i)
    for i in range(8):
        T.wait(i)
        A(f"buffer_store_dwordx4 {vr(16+4*i,4)}, v12, s[{SWS}:{SWS+3}], s57 offen{SC}")
        if i < 7:
            A(f"s_add_u32 s57, s57, {8*4096}")
    stamp(A, 5)
    if Opt.hdef == 2:
        conv_load_h(A, 13)


def role_helper(A):
    SD = 40
    A("s_setprio 3")
    A("s_waitcnt lgkmcnt(0)")
    srd(A, SWS, S_WS, WS_SIZE)
    srd(A, SD, S_DBG, 256)
    Lz = A.newlabel("L_nz")
    A("s_cmp_eq_u32 s2, 192")
    A(f"s_cbranch_scc0 {Lz}")
    A("s_cmp_eq_u32 s48, 5")
    A(f"s_cbranch_scc0 {Lz}")
    A(f"s_mov_b32 s57, {WS_EPOCH:#x}")
    A("s_mov_b64 exec, 1")
    A(f"buffer_load_dword v4, off, s[{SWS}:{SWS+3}], s57{SC}")
    A("s_waitcnt vmcnt(0)")
    A("v_add_u32 v4, 1, v4")
    A("v_not_b32 v5, v4")
    A(f"buffer_store_dwordx2 v[4:5], off, s[{SD}:{SD+3}], 0{SC}")
    A(f"buffer_store_dword v4, off, s[{SWS}:{SWS+3}], s57{SC}")
    A("s_mov_b64 exec, -1")
    stamp(A, 2)
    A.label(Lz)
    if Opt.touch & 2:
        Lt = A.newlabel("L_nt")
        A("s_cmp_eq_u32 s48, 5")
        A(f"s_cbranch_scc0 {Lt}")
        touch(A, 26, 32, Opt.tsh)
        for k_, (b_, n_) in enumerate(((S_BQ, NB_X), (S_SSK, NB_SSK))):
            srd(A, 32, b_, n_)
            A(f"buffer_load_dword v29, v26, s[32:35], 0 offen")
        A.label(Lt)
    Lnw = A.newlabel("L_nw")
    A("s_sub_u32 s61, s99, 24")
    A("s_lshl_b32 s60, s61, 1")
    A("s_add_u32 s60, s60, s48")
    A("s_sub_u32 s60, s60, 6")
    A("s_xor_b32 s61, s61, 20")
    A("s_cmp_eq_u32 s48, 5")
    A("s_cselect_b32 s60, s61, s60")
    A("s_lshl_b32 s60, s60, 3")
    A("s_add_u32 s60, s60, s98")
    A("s_cmp_ge_u32 s60, 160")
    A(f"s_cbranch_scc1 {Lnw}_a")
    srd(A, 36, S_WO, NB_WO)
    A("s_lshr_b32 s61, s60, 3")
    A("s_and_b32 s62, s60, 7")
    A(f"s_mul_i32 s53, s62, {80*1280}")
    A("s_lshl_b32 s54, s61, 6")
    A("s_add_u32 s53, s53, s54")
    A("v_lshrrev_b32 v2, 2, v1")
    A("v_and_b32 v3, 3, v1")
    A("v_mul_u32_u24 v4, 1280, v2")
    A("v_lshl_add_u32 v4, v3, 4, v4")
    A(f"s_mul_i32 s56, s48, {CV_LDS}")
    for i in range(5):
        A(f"s_add_u32 m0, s56, {1024*i}")
        A("buffer_load_dwordx4 v4, s[36:39], s53 offen lds")
        A(f"s_add_u32 s53, s53, {16*1280}")
    A.label(Lnw + "_a")
    if Opt.pfm:
        Le_ = A.newlabel("L_pme")
        A("s_and_b32 s50, s98, 3")
        A("s_lshr_b32 s51, s98, 2")
        A("s_and_b32 s52, s99, 3")
        A("s_lshl_b32 s53, s50, 1")
        A("s_add_u32 s53, s53, s51")
        A("s_lshl_b32 s53, s53, 2")
        A("s_add_u32 s53, s53, s52")
        A(f"s_mul_i32 s53, s53, {64*1280}")
        A("s_lshl_b32 s50, s50, 2")
        A("s_add_u32 s50, s50, s52")
        A("s_mul_i32 s52, s50, 52")
        A("s_lshr_b32 s52, s52, 8")
        A("s_add_u32 s52, s52, s51")
        A("s_mul_i32 s52, s52, 640")
        A("s_lshl_b32 s51, s50, 7")
        A("s_add_u32 s52, s52, s51")
        A("s_cmp_eq_u32 s50, 15")
        A(f"s_cselect_b32 s52, {NB_W:#x}, s52")
        A("s_cmp_lt_u32 s99, 28")
        A("s_cselect_b32 s51, s53, s52")
        A(f"s_cselect_b64 s[32:33], s[{S_X}:{S_X+1}], s[{S_W}:{S_W+1}]")
        A(f"s_mov_b32 s53, {NB_W:#x}")
        A(f"s_cselect_b32 s34, {NB_X:#x}, s53")
        A("s_mov_b32 s35, 0x20000")
        A("s_movk_i32 s53, 3840")
        A("s_cselect_b32 s52, 1280, s53")
        A(f"s_mov_b32 s53, {64*3840}")
        A("s_cselect_b32 s53, 128, s53")
        A("v_mul_u32_u24 v2, s52, v1")
        A("s_sub_u32 s50, s48, 5")
        A("s_lshl_b32 s50, s50, 2")
        for k in range(len(Opt.pfm) // 3):
            tab = Opt.pfm[3 * k] | Opt.pfm[3 * k + 1] << 4 | Opt.pfm[3 * k + 2] << 8
            A(f"s_lshr_b32 s52, {tab:#x}, s50")
            A("s_and_b32 s52, s52, 15")
            A("s_cmp_ge_u32 s52, 10")
            A(f"s_cbranch_scc1 {Le_}")
            A("s_mul_i32 s52, s52, s53")
            A("s_add_u32 s52, s52, s51")
            A(f"buffer_load_dword v{30+k}, v2, s[32:35], s52 offen")
        A.label(Le_)
    if Opt.pfw or Opt.pfx:
        Lx_, Le_ = A.newlabel("L_pfx"), A.newlabel("L_pfe")
        A("s_cmp_eq_u32 s48, 5")
        A(f"s_cbranch_scc1 {Lx_}")
        A("s_lshl_b32 s50, s48, 3")
        A("s_add_u32 s50, s50, s99")
        A("s_sub_u32 s50, s50, 72")
        A("s_cmp_eq_u32 s50, 15")
        A(f"s_cbranch_scc1 {Le_}")
        A("s_mul_i32 s51, s50, 52")
        A("s_lshr_b32 s51, s51, 8")
        A("s_lshr_b32 s52, s98, 2")
        A("s_add_u32 s51, s51, s52")
        A("s_mul_i32 s51, s51, 640")
        A("s_lshl_b32 s50, s50, 7")
        A("s_add_u32 s51, s51, s50")
        srd(A, 32, S_W, NB_W)
        A("v_mul_u32_u24 v2, 3840, v1")
        for k, st in enumerate(Opt.pfw):
            A(f"s_add_u32 s50, s51, {st*64*3840}")
            A(f"buffer_load_dword v{30+k}, v2, s[32:35], s50 offen")
        A(f"s_branch {Le_}")
        A.label(Lx_)
        if Opt.pfx:
            A("s_and_b32 s51, s98, 3")
            A("s_lshl_b32 s51, s51, 3")
            A("s_add_u32 s51, s51, s99")
            A("s_sub_u32 s51, s51, 24")
            A(f"s_mul_i32 s51, s51, {64*1280}")
            srd(A, 32, S_X, NB_X)
            A("v_mul_u32_u24 v2, 1280, v1")
            for k, st in enumerate(Opt.pfx):
                A(f"buffer_load_dword v{30+k}, v2, s[32:35], s51 offen offset:{128*st}")
        A.label(Le_)
    if Opt.gpf2:
        Lnp = A.newlabel("L_ng")
        A("s_lshl_b32 s50, s48, 3")
        A("s_add_u32 s50, s50, s99")
        A("s_sub_u32 s50, s50, 64")
        A("s_cmp_ge_u32 s50, 20")
        A(f"s_cbranch_scc1 {Lnp}")
        A("s_lshr_b32 s51, s50, 1")
        A("s_and_b32 s50, s50, 1")
        A("s_cmp_ge_u32 s51, 5")
        A("s_cselect_b32 s52, 640, 0")
        A("s_lshl_b32 s51, s51, 7")
        A("s_add_u32 s51, s51, s52")
        A("s_lshr_b32 s52, s98, 2")
        A("s_mul_i32 s52, s52, 640")
        A("s_add_u32 s51, s51, s52")
        A(f"s_mul_i32 s50, s50, {5*64*3840}")
        A("s_add_u32 s51, s51, s50")
        A(f"s_add_u32 s51, s51, {1280 + Opt.gpf2*64*3840}")
        srd(A, 32, S_W, NB_W)
        A("v_mul_u32_u24 v2, 3840, v1")
        for k in range(Opt.gpf2, 5):
            A(f"buffer_load_dword v{30+k}, v2, s[32:35], s51 offen")
            A(f"s_add_u32 s51, s51, {64*3840}")
        A.label(Lnp)
    if Opt.gpf:
        A("s_sub_u32 s50, s99, 24")
        A("s_mul_i32 s50, s50, 3")
        A("s_add_u32 s50, s50, s48")
        A("s_sub_u32 s50, s50, 5")
        A("s_and_b32 s51, s98, 3")
        A("s_lshl_b32 s51, s51, 3")
        A("s_add_u32 s51, s51, s50")
        A(f"s_mul_i32 s51, s51, {64*1280}")
        A("s_sub_u32 s52, s50, 8")
        A("s_mul_i32 s53, s52, 52")
        A("s_lshr_b32 s53, s53, 8")
        A("s_mul_i32 s53, s53, 640")
        A("s_lshl_b32 s52, s52, 7")
        A("s_add_u32 s52, s52, s53")
        A("s_lshr_b32 s53, s98, 2")
        A("s_mul_i32 s53, s53, 640")
        A("s_add_u32 s52, s52, s53")
        A("s_cmp_eq_u32 s50, 23")
        A(f"s_cselect_b32 s52, {NB_W:#x}, s52")
        A("s_cmp_lt_u32 s50, 8")
        A("s_cselect_b32 s51, s51, s52")
        A(f"s_cselect_b64 s[32:33], s[{S_X}:{S_X+1}], s[{S_W}:{S_W+1}]")
        A(f"s_mov_b32 s53, {NB_W:#x}")
        A(f"s_cselect_b32 s34, {NB_X:#x}, s53")
        A("s_mov_b32 s35, 0x20000")
        A("s_movk_i32 s53, 3840")
        A("s_cselect_b32 s52, 1280, s53")
        A(f"s_mov_b32 s53, {64*3840}")
        A("s_cselect_b32 s53, 128, s53")
        A("v_mul_u32_u24 v2, s52, v1")
        A(f"s_mul_i32 s52, s53, {Opt.gpf}")
        A("s_add_u32 s51, s51, s52")
        for k, st in enumerate(range(Opt.gpf, 10)):
            if k >= Opt.gpfd:
                A(f"s_waitcnt vmcnt({Opt.gpfd-1})")
            A(f"buffer_load_dword v{30+k}, v2, s[32:35], s51 offen")
            A("s_add_u32 s51, s51, s53")
    if Opt.codepf:
        Lp = A.newlabel("L_npf")
        A("s_cmp_eq_u32 s48, 6")
        A(f"s_cbranch_scc0 {Lp}")
        A("s_getpc_b64 s[50:51]")
        A.label("L_pc")
        A(f"s_sub_u32 s50, s50, L_pc-{NAME}_kernel")
        A("s_subb_u32 s51, s51, 0")
        A("s_sub_u32 s52, s99, 24")
        A("s_lshl_b32 s52, s52, 13")
        A("v_lshl_add_u32 v2, v1, 7, s52")
        A(f"v_min_u32 v2, L_code_end-{NAME}_kernel-4, v2")
        A("global_load_dword v24, v2, s[50:51]")
        A.label(Lp)
    A("s_cmp_ge_u32 s60, 160")
    A(f"s_cbranch_scc1 {Lnw}")
    A("v_bfe_u32 v10, v1, 2, 2")
    A("v_lshrrev_b32 v11, 5, v1")
    A("v_and_b32 v12, 1, v1")
    A("v_lshlrev_b32 v12, 5, v12")
    A("v_bfe_u32 v13, v1, 4, 1")
    A("v_lshl_add_u32 v12, v13, 4, v12")
    A("v_bfe_u32 v13, v1, 1, 1")
    A("v_lshl_add_u32 v12, v13, 3, v12")
    A("v_lshl_add_u32 v12, v10, 6, v12")
    A("v_add_u32 v12, s56, v12")
    A("v_lshl_add_u32 v13, v11, 8, v12")
    A("v_mul_u32_u24 v14, 2560, v11")
    A("v_add_u32 v14, v14, v12")
    A("v_lshlrev_b32 v2, 4, v1")
    A(f"s_mul_i32 s53, s61, {Opt.wstr}")
    A(f"s_add_u32 s53, s53, {WS_WOT:#x}")
    A("s_lshl_b32 s54, s62, 10")
    A("s_add_u32 s54, s54, s53")
    A("s_add_u32 s54, s54, 32768")
    A("s_lshl_b32 s62, s62, 12")
    A("s_add_u32 s53, s53, s62")
    A("s_lshl_b32 s55, s60, 7")
    A(f"s_add_u32 s55, s55, {FW:#x}")
    if Opt.wback == 2:
        A("v_lshlrev_b32 v5, 7, v1")
        A("s_mov_b32 exec_hi, 0")
        A(f"buffer_load_dword v24, v5, s[{SWS}:{SWS+3}], s53 offen")
        A("s_mov_b32 exec_lo, 0xff")
        A(f"buffer_load_dword v25, v5, s[{SWS}:{SWS+3}], s54 offen")
        A("s_mov_b64 exec, -1")
    A("s_waitcnt vmcnt(0)")
    for hh in range(4):
        for half in range(2):
            A(f"ds_read_b64_tr_b16 {vr(40+4*hh+2*half,2)}, v13 offset:{(20*hh+8*half)*64}")
    for half in range(2):
        A(f"ds_read_b64_tr_b16 {vr(56+2*half,2)}, v14 offset:{(20*half+16)*64}")
    A("s_waitcnt lgkmcnt(0)")
    for hh in range(4):
        A(f"buffer_store_dwordx4 {vr(40+4*hh,4)}, v2, s[{SWS}:{SWS+3}], s53 offen offset:{1024*hh}{Opt.stw}")
    A(f"buffer_store_dwordx4 v[56:59], v2, s[{SWS}:{SWS+3}], s54 offen{Opt.stw}")
    A(f"s_mov_b64 s[{TAG}:{TAG+1}], 0")
    tag_check(A, 8)
    set_flag(A, 8, "s55")
    if Opt.wback == 1:
        A("v_lshlrev_b32 v5, 7, v1")
        A("s_mov_b32 exec_hi, 0")
        A(f"buffer_load_dword v24, v5, s[{SWS}:{SWS+3}], s53 offen")
        A("s_mov_b32 exec_lo, 0xff")
        A(f"buffer_load_dword v25, v5, s[{SWS}:{SWS+3}], s54 offen")
        A("s_mov_b64 exec, -1")
    A.label(Lnw)
    A("s_setprio 0")
    b_channel(A)
    if Opt.hdef == 1:
        A("s_lshl_b32 s50, s49, 12")
    else:
        conv_load_h(A, 2)
    A(f"v_mov_b32 v4, {B_MB+256}")
    A("v_mov_b32 v5, 0")
    A("ds_write_b32 v4, v5")
    A("ds_write_b32 v4, v5 offset:512")


def conv_setup(A):
    A("v_lshlrev_b32 v2, 4, v1")
    A("s_lshl_b32 s52, s49, 1")
    A("s_and_b32 s52, s52, 0xfffffffc")
    A(f"s_load_dword s55, s[{S_SSD}:{S_SSD+1}], s52")
    A(f"s_load_dword s54, s[{S_SSK}:{S_SSK+1}], s50")
    A(f"s_add_u32 s51, s50, {WS_KVT:#x}")
    for i in range(4):
        A(f"v_mov_b32 v{4+i}, 0")
    A("v_add_u32 v3, s56, v2")
    A("s_mov_b64 exec, 0xf")
    A("ds_write_b128 v3, v[4:7]")
    A("s_mov_b32 exec_lo, -1")
    A(f"ds_write_b128 v3, v[4:7] offset:{64+4096}")
    A("s_mov_b64 exec, -1")
    A("v_and_b32 v11, 3, v1")
    A("v_lshrrev_b32 v10, 4, v1")
    A("v_bfe_u32 v12, v1, 2, 2")
    A("v_lshlrev_b32 v8, 4, v11")
    A("v_lshl_add_u32 v8, v10, 6, v8")
    A("v_lshlrev_b32 v9, 3, v12")
    A("v_sub_u32 v8, v8, v9")
    A("s_add_u32 s57, s56, 32")
    A("v_add_u32 v8, s57, v8")
    A("v_sub_u32 v9, v11, v10")
    A("v_lshlrev_b32 v9, 6, v9")
    A("v_lshl_add_u32 v9, v12, 4, v9")
    A(f"s_add_u32 s57, s56, {64+4096+512}")
    A("v_add_u32 v9, s57, v9")
    A("v_mov_b32 v13, 0xffff")
    for i in range(4):
        A(f"v_cmp_eq_u32 vcc, {4*i}, v1")
        A(f"v_cndmask_b32 v{MK+i}, 0, v13, vcc")
    A("v_add_u32 v13, 3, v11")
    A("v_and_b32 v13, 3, v13")
    A("v_lshl_add_u32 v13, v12, 2, v13")
    A("v_add_u32 v13, 48, v13")
    A("v_subrev_u32 v14, 16, v1")
    A("v_cmp_gt_u32 vcc, 16, v1")
    A("v_cndmask_b32 v14, v14, v13, vcc")
    A("v_lshlrev_b32 v14, 2, v14")
    A("s_mov_b32 s58, 0x1111")
    A("s_mov_b32 s59, 0")


MK = 16


def role_conv(A):
    conv_setup(A)
    A("s_sub_u32 s61, s99, 24")
    A("s_lshl_b32 s62, s98, 3")
    A("s_add_u32 s62, s62, s61")
    A("s_lshl_b32 s62, s62, 7")
    A(f"s_add_u32 s62, s62, {F0:#x}")
    A("s_mul_i32 s60, s98, 80")
    A("s_mul_i32 s61, s61, 6")
    A("s_add_u32 s60, s60, s61")
    A("s_add_u32 s61, s60, 5")
    f0_lines(A, 60, 61, 12)
    A(f"s_waitcnt vmcnt({4 if Opt.hdef == 2 else 0}) lgkmcnt(0)")
    stamp(A, 4)
    A("s_barrier")
    if Opt.hdef == 1:
        Lh = A.newlabel("L_hd")
        A("s_cmp_eq_u32 s48, 7")
        A(f"s_cbranch_scc0 {Lh}")
        set_flag(A, 22, "s62")
        A.label(Lh)
        A("s_barrier")
        conv_load_h(A, 2)
        A("s_waitcnt vmcnt(0)")
    else:
        A("s_waitcnt vmcnt(0)")
        A("s_cmp_eq_u32 s48, 7")
        A("s_cbranch_scc0 L_cb")
        set_flag(A, 22, "s62")
    A("s_branch L_cb")
    A.label("L_conv")
    RA, RB = 64, 192
    ACCS = (32, 40, 48, 56)
    CAR, PUL, TMP = 20, (21, 22), 23
    OUT = (24, 28)

    def rdA(m, e):
        reg = RA + 8 * m + 4 * e
        return [(f"ds_read_b64_tr_b16 {vr(reg,2)}, v8 offset:{256*m+8*e+32}", None),
                (f"ds_read_b64_tr_b16 {vr(reg+2,2)}, v8 offset:{256*m+8*e}", ("A", m, e))]

    def xload():
        A(f"s_add_u32 m0, s56, {64+4096+512}")
        for i in range(4):
            A(f"buffer_load_dwordx4 v2, s[{SWS}:{SWS+3}], s51 offen offset:{1024*i}{SC} lds")

    Lb, Lg = "L_cb", A.newlabel("L_cg")
    tag_check(A, 22)
    conv_load_h(A, 2)
    A(f"buffer_load_dwordx2 v[22:23], v12, s[{SWS}:{SWS+3}], s52 offen{SC}")
    A("s_barrier")
    A("s_waitcnt vmcnt(0)")
    A(f"v_cmp_eq_u64 vcc, s[{TAG}:{TAG+1}], v[22:23]")
    A("s_cmp_eq_u64 vcc, -1")
    Lx = A.newlabel("L_cx")
    A(f"s_cbranch_scc1 {Lx}")
    poll(A, 22, 12, "s52", sleep=8)
    A.label(Lx)
    stamp(A, 8)
    xload()
    A.label(Lb)
    A("s_waitcnt lgkmcnt(0)")
    A("s_lshl_b32 s54, s54, 16")
    A("s_lshl_b32 s53, s55, 16")
    A("s_and_b32 s55, s55, 0xffff0000")
    A("s_bitcmp1_b32 s49, 0")
    A("s_cselect_b32 s53, s55, s53")
    A("v_mov_b32 v15, s54")
    A("v_add_f32 v15, s53, v15")
    A("v_cvt_pk_bf16_f32 v15, v15, v15")
    T = Lgkm(A)
    for m in range(16):
        for e in range(2):
            for x, tg in rdA(m, e):
                T.issue(x, tg)
    T.wait(("A", 0, 1))
    for k in range(4):
        A(f"v_bfi_b32 v{RA+k}, v{MK+k}, v15, v{RA+k}")
        A(f"v_lshlrev_b32 v{MK+k}, 16, v{MK+k}")
        A(f"v_bfi_b32 v{RA+4+k}, v{MK+k}, v15, v{RA+4+k}")
    T.all()
    if Opt.qwait:
        Lqd = A.newlabel("L_qd")
        A("s_cmp_ge_u32 s99, 24")
        A(f"s_cbranch_scc1 {Lqd}")
        lds_wait(A, 12, L_SYNC, 4, sleep=4)
        if Opt.qdel:
            A(f"s_sleep {Opt.qdel}")
        A.label(Lqd)
    A("s_cmp_ge_u32 s99, 24")
    A(f"s_cbranch_scc0 {Lg}")
    Ln7 = A.newlabel("L_n7")
    A("s_cmp_eq_u32 s48, 7")
    A(f"s_cbranch_scc0 {Ln7}")
    poll(A, 22, 12, "s52", sleep=4)
    A.label(Ln7)
    A("s_barrier")
    stamp(A, 8)
    xload()
    if Opt.bdelay:
        A(f"s_sleep {Opt.bdelay}")
    A("s_cmp_ge_u32 s48, 4")
    A(f"s_cbranch_scc0 {Lg}")
    A("s_setprio 1")
    A.label(Lg)
    A(f"s_add_u32 s51, s50, {WS_YT:#x}")
    A(f"v_mov_b32 v{PUL[1]}, 0")

    def epilogue(i):
        V = ACCS[i % 4]
        dpp = lambda d, src, op: f"v_add_f32_dpp v{d}, v{src}, v{d} {op} row_mask:0xf bank_mask:0xf"
        L = [f"v_mov_b32 v{CAR}, 0"]
        for k in (1, 2, 3):
            L += [dpp(V, V + k, f"row_shr:{4*k}"), dpp(V + 4, V + 4 + k, f"row_shr:{4*k}"), dpp(CAR, V + 4 + k, f"row_shl:{16-4*k}")]
        L.append(("ds", f"ds_bpermute_b32 v{PUL[i&1]}, v14, v{CAR}", ("P", i)))
        x = [dpp(V + 4, V + k, f"row_shl:{16-4*k}") for k in (1, 2, 3)]
        L += [x[0], "GAP", x[1], "GAP", x[2]]
        L.append(("wait", ("P", i)))
        L.append(f"v_cndmask_b32 v{TMP}, v{PUL[i&1]}, v{PUL[1-(i&1)]}, s[58:59]")
        L.append(f"v_add_f32 v{V}, v{V}, v{TMP}")
        L.append(f"v_cvt_pk_bf16_f32 v{OUT[(i>>2)&1]+(i&3)}, v{V}, v{V+4}")
        if i & 3 == 3:
            L.append(f"buffer_store_dwordx4 {vr(OUT[(i>>2)&1],4)}, v2, s[{SWS}:{SWS+3}], s51 offen offset:{1024*(i>>2)}{SC}")
        return L

    def emit(x):
        if isinstance(x, tuple):
            if x[0] == "ds":
                T.issue(x[1], x[2])
            else:
                T.wait(x[1])
        elif x != "GAP":
            A(x)

    A("s_waitcnt vmcnt(0)")
    stampw(A, 9)

    def stream(tiles, exit_at=None, keep=None):
        T.tag.clear()
        for w in range(16):
            T.issue(f"ds_read_b128 {vr(RB+4*w,4)}, v9 offset:{256*w}", ("B", w))
        fill = []
        since = 99
        for i in tiles:
            V = ACCS[i % 4]
            while fill and fill[0][0] <= i - 4:
                emit(fill.pop(0)[1])
            if exit_at and i == exit_at[0]:
                while fill and fill[0][0] <= i - 2:
                    emit(fill.pop(0)[1])
                assert len(fill) == len(epilogue(i - 1))
                A("s_cmp_ge_u32 s48, 4")
                A(f"s_cbranch_scc1 {exit_at[1]}")
            since = 0
            for w in range(i + 1):
                for e in range(2):
                    T.wait(("B", w))
                    c = vr(V + 4 * e, 4) if w else "0"
                    A(f"v_mfma_f32_16x16x32_bf16 {vr(V+4*e,4)}, {vr(RA+8*(i-w)+4*e,4)}, {vr(RB+4*w,4)}, {c}")
                    since += 1
                    left = 2 * (i + 1) - since
                    due = len([1 for t_, _x in fill if t_ <= i - 2])
                    if i == tiles[-1] or (exit_at and i == exit_at[0] - 1):
                        due = len(fill)
                    for _ in range(2 if due > left else 1):
                        if fill and (fill[0][0] < i - 1 or since >= 6):
                            emit(fill.pop(0)[1])
            ep = epilogue(i)
            if keep and i == keep[0]:
                k = [j for j, x in enumerate(ep) if isinstance(x, str) and x.startswith("v_cvt")][0]
                ep = ep[:k] + [f"v_mov_b32 v{keep[1]}, v{V}", f"v_mov_b32 v{keep[1]+1}, v{V+4}"] + ep[k + 1:]
            fill += [(i, x) for x in ep]
        stampw(A, 10)
        T.done = T.n if Ctx.stamps else T.done
        return [x for _, x in fill]

    A("s_cmp_ge_u32 s48, 6")
    A("s_cbranch_scc1 L_second")
    for x in stream(range(16), (12, "L_first")):
        emit(x)
    A("s_branch L_cdone")
    A.label("L_first")
    A("s_waitcnt lgkmcnt(0)")
    A("s_nop 6")
    T.done = T.n
    stampw(A, 10)
    for x in epilogue(11):
        emit(x)
    A("s_and_b32 s52, s48, 1")
    A("s_lshl_b32 s52, s52, 9")
    A(f"s_add_u32 s52, s52, {B_MB}")
    A("v_lshl_add_u32 v10, v1, 2, s52")
    A(f"ds_write_b32 v10, v{PUL[1]}")
    A("s_add_u32 s52, s52, 256")
    lds_arrive(A, 10, "s52")
    A("s_branch L_cdone")
    A.label("L_second")
    T.done = T.n
    last = stream(range(12, 16), keep=(12, 4))
    for x in last[:-1]:
        emit(x)
    A("s_and_b32 s52, s48, 1")
    A("s_lshl_b32 s52, s52, 9")
    A(f"s_add_u32 s52, s52, {B_MB}")
    A("v_lshl_add_u32 v12, v1, 2, s52")
    A("s_add_u32 s52, s52, 256")
    lds_wait(A, 10, "s52", 1, sleep=2)
    A(f"ds_read_b32 v{TMP}, v12")
    A("s_waitcnt lgkmcnt(0)")
    A(f"v_cndmask_b32 v{TMP}, 0, v{TMP}, s[58:59]")
    A(f"v_add_f32 v4, v4, v{TMP}")
    A(f"v_cvt_pk_bf16_f32 v{OUT[1]}, v4, v5")
    A(last[-1])
    A.label("L_cdone")
    A("s_waitcnt vmcnt(0)")
    stamp(A, 11)
    A("s_cmp_ge_u32 s99, 24")
    A("s_cbranch_scc1 L_bdone")
    A(f"v_mov_b32 v10, {L_SYNC+12}")
    A("v_mov_b32 v11, 1")
    A("s_mov_b64 exec, 1")
    A("ds_add_rtn_u32 v12, v10, v11")
    A("s_mov_b64 exec, -1")
    A("s_lshl_b32 s52, s98, 4")
    A("s_add_u32 s52, s52, s99")
    A("s_lshl_b32 s52, s52, 7")
    A(f"s_add_u32 s52, s52, {F4+8*128:#x}")
    A("s_waitcnt lgkmcnt(0)")
    A("v_readfirstlane_b32 s53, v12")
    A("s_cmp_eq_u32 s53, 3")
    A("s_cbranch_scc0 L_bend")
    set_flag(A, 10, "s52")
    A("s_branch L_bend")
    A.label("L_bdone")


def role_post(A):
    SQ, SO = 32, 36
    A.label("L_post")
    A("s_setprio 0")
    A("s_and_b32 s48, s48, 3")
    A("s_sub_u32 s50, s99, 24")
    A("s_lshl_b32 s50, s50, 2")
    A("s_lshl_b32 s51, s99, 1")
    A("s_add_u32 s51, s51, 24")
    A("s_cmp_ge_u32 s99, 24")
    A("s_cselect_b32 s50, s50, s51")
    A("s_mul_i32 s49, s98, 40")
    A("s_add_u32 s49, s49, s50")
    A("s_add_u32 s49, s49, s48")
    A("s_and_b32 s50, s49, 31")
    A("s_lshr_b32 s51, s49, 5")
    A("v_lshrrev_b32 v2, 3, v1")
    A("v_and_b32 v3, 7, v1")
    A("v_lshlrev_b32 v4, 12, v2")
    A("v_lshl_add_u32 v4, v3, 4, v4")
    A("s_lshl_b32 s52, s51, 18")
    A("s_lshl_b32 s53, s50, 7")
    A("s_add_u32 s52, s52, s53")
    A(f"s_add_u32 s52, s52, {WS_YT:#x}")
    A("s_mul_i32 s56, s48, 8320")
    A(f"s_add_u32 s56, s56, {B_PRE}")
    A("s_lshr_b32 s54, s50, 3")
    A("s_lshl_b32 s54, s54, 9")
    A("s_bfe_u32 s55, s50, 0x20001")
    A("s_lshl_b32 s55, s55, 3")
    A("s_add_u32 s54, s54, s55")
    A("s_and_b32 s55, s50, 1")
    A("s_lshl_b32 s55, s55, 1")
    A("s_add_u32 s54, s54, s55")
    A("v_and_b32 v5, 3, v2")
    A("v_lshrrev_b32 v6, 2, v2")
    A("v_lshl_add_u32 v5, v5, 5, v6")
    A("v_mul_u32_u24 v6, 1280, v5")
    A("v_lshlrev_b32 v7, 1, v6")
    A("v_lshl_add_u32 v6, v3, 4, v6")
    A("v_lshl_add_u32 v7, v3, 4, v7")
    A("s_mul_i32 s54, s54, 1280")
    A("s_lshl_b32 s53, s51, 7")
    A("s_lshl_b32 s55, s54, 1")
    A("s_add_u32 s54, s54, s53")
    A("s_add_u32 s55, s55, s53")
    A("s_add_u32 s55, s55, 1280")
    srd(A, SQ, S_BQ, NB_X)
    srd(A, SO, S_OUT, NB_OUT)
    QR, YR = 16, 48
    rows = [0, 4, 128, 132, 256, 260, 384, 388]
    for i in range(8):
        A(f"s_add_u32 s57, s54, {rows[i]*1280}")
        A(f"buffer_load_dwordx4 {vr(QR+4*i,4)}, v6, s[{SQ}:{SQ+3}], s57 offen{Opt.ntq}")
    A("s_mov_b32 s59, 0xffff0000")
    QF = 128
    A("s_waitcnt vmcnt(0)")
    for i in range(32):
        A(f"v_lshlrev_b32 v{QF+2*i}, 16, v{QR+i}")
        A(f"v_and_b32 v{QF+2*i+1}, s59, v{QR+i}")
    A("s_lshl_b32 s57, s98, 4")
    A("s_sub_u32 s58, s57, 16")
    A("v_min_u32 v12, 47, v1")
    A("v_add_u32 v12, s58, v12")
    A("v_max_i32 v12, 0, v12")
    A("v_min_u32 v12, 127, v12")
    A("v_lshlrev_b32 v12, 7, v12")
    A("s_add_u32 s57, s57, s99")
    A("s_lshl_b32 s57, s57, 7")
    A(f"s_add_u32 s57, s57, {F4-24*128:#x}")
    A(f"s_mov_b32 s58, {F4:#x}")
    Lx, Lq, Ld = A.newlabel("L_p7"), A.newlabel("L_pq"), A.newlabel("L_pd")
    A("s_cmp_ge_u32 s99, 24")
    A(f"s_cbranch_scc0 {Lq}")
    A("s_barrier")
    A("s_cmp_eq_u32 s48, 3")
    A(f"s_cbranch_scc0 {Lx}")
    set_flag(A, 8, "s57")
    poll(A, 14, 12, "s58", sleep=4)
    A.label(Lx)
    A("s_barrier")
    A(f"s_branch {Ld}")
    A.label(Lq)
    A("s_barrier")
    poll(A, 14, 12, "s58", sleep=4)
    A.label(Ld)
    if Opt.dB:
        A(f"s_sleep {Opt.dB}")
    stamp(A, 12)
    for i in range(8):
        A(f"v_xor_b32 v8, {16*i}, v4")
        A(f"s_add_u32 m0, s56, {1024*i}")
        A(f"buffer_load_dwordx4 v8, s[{SWS}:{SWS+3}], s52 offen{SC} lds")
        if i < 7:
            A(f"s_add_u32 s52, s52, {8*4096}")
    A("v_xor_b32 v8, v2, v3")
    A("v_lshlrev_b32 v8, 4, v8")
    A("v_lshl_add_u32 v8, v3, 10, v8")
    A("v_add_u32 v8, s56, v8")
    A("s_waitcnt vmcnt(0)")
    for c in range(8):
        A(f"ds_read_b128 {vr(YR+4*c,4)}, v8 offset:{128*c}")
    A("s_waitcnt lgkmcnt(0)")
    stamp(A, 13)
    YF, OUT = 80, 96
    for i in range(8):
        for c in range(8):
            if i & 1:
                A(f"v_and_b32 v{YF+c}, s59, v{YR+4*c+i//2}")
            else:
                A(f"v_lshlrev_b32 v{YF+c}, 16, v{YR+4*c+i//2}")
        for c in range(0, 8, 2):
            A(f"v_pk_mul_f32 {vr(YF+c,2)}, {vr(YF+c,2)}, {vr(QF+8*i+c,2)}")
        for k in range(4):
            A(f"v_cvt_pk_bf16_f32 v{OUT+4*i+k}, v{YF+2*k}, v{YF+2*k+1}")
        A(f"s_add_u32 s57, s55, {rows[i]*2560}")
        A(f"buffer_store_dwordx4 {vr(OUT+4*i,4)}, v7, s[{SO}:{SO+3}], s57 offen{Opt.oscb}")
    stamp(A, 14)


def build():
    A = Asm()
    k = NAME + "_kernel"
    A.raw(f".globl {k}")
    A.raw(".p2align 8")
    A.raw(f".type {k},@function")
    A.label(k)
    if Opt.hold:
        A("s_memrealtime s[64:65]")
    load_kernargs(A)
    if Opt.lite:
        A("s_memrealtime s[64:65]")
    elif not Opt.hp:
        if Opt.rt:
            for k_ in range(2, 15):
                A(f"s_mov_b32 s{64+2*k_}, 0")
            stamp(A, 0, True)
        else:
            stamp_init(A)
        if Opt.rt:
            stamp(A, 1)
    A("v_lshrrev_b32 v2, 6, v0")
    A("v_and_b32 v1, 63, v0")
    A("v_readfirstlane_b32 s100, v2")
    A("s_and_b32 s98, s2, 7")
    A("s_lshr_b32 s99, s2, 3")
    A("s_cmp_ge_u32 s2, 192")
    A("s_cbranch_scc1 L_b")
    A("s_and_b32 s49, s2, 3")
    A("s_lshl_b32 s49, s49, 2")
    A("s_and_b32 s50, s99, 3")
    A("s_add_u32 s49, s49, s50")
    A("s_bfe_u32 s52, s2, 0x10002")
    A("s_lshr_b32 s53, s2, 5")
    A("s_lshl_b32 s54, s52, 1")
    A("s_add_u32 s54, s54, s53")
    A("s_lshl_b32 s55, s52, 2")
    A("s_add_u32 s55, s55, s53")
    A("s_sub_u32 s55, s55, 2")
    A("s_cmp_lt_u32 s2, 64")
    A("s_cselect_b32 s50, s54, s55")
    A("s_cselect_b32 s51, 1, 0")
    A("s_and_b32 s48, s100, 3")
    A("s_cmp_ge_u32 s100, 4")
    A("s_cbranch_scc1 L_c")
    role_loader(A)
    A.label("L_c")
    role_compute(A)
    A.label("L_b")
    A("s_cmp_ge_u32 s2, 256")
    A("s_cbranch_scc1 L_exit")
    A("s_mov_b32 s48, s100")
    A("s_cmp_ge_u32 s48, 5")
    A("s_cbranch_scc1 L_help")
    role_pre(A)
    A("s_branch L_bconv")
    A.label("L_help")
    role_helper(A)
    A.label("L_bconv")
    role_conv(A)
    A("s_cmp_lt_u32 s48, 4")
    A("s_cbranch_scc1 L_bend")
    role_post(A)
    A.label("L_bend")
    end_wave(A, "b")
    A.label("L_exit")
    A("s_endpgm")
    A.label("L_code_end")
    head = ["; generated by gen/f13.py",
            "; @launch grid=(256,1,1) block=(512,1,1) lds=163840"]
    txt = "\n".join(head) + '\n.amdgcn_target "amdgcn-amd-amdhsa--gfx950"\n.text\n' + A.text()
    txt += f'''.section .rodata,"a"
.p2align 6
.amdhsa_kernel {k}
  .amdhsa_next_free_vgpr 256
  .amdhsa_next_free_sgpr 102
  .amdhsa_accum_offset 256
  .amdhsa_group_segment_fixed_size 0
  .amdhsa_kernarg_size 104
  .amdhsa_user_sgpr_count 2
  .amdhsa_user_sgpr_kernarg_segment_ptr 1
  .amdhsa_system_sgpr_workgroup_id_x 1
.end_amdhsa_kernel
'''
    return txt


if __name__ == "__main__":
    args = sys.argv[2:]
    Ctx.stamps = "stamps" in args
    Opt.rot = "norot" not in args
    Opt.codepf = "nocodepf" not in args
    for a in args:
        if a.startswith("probe="):
            Opt.probe = tuple(int(x) for x in a[6:].split(","))
        if a.startswith("holdwg="):
            Opt.holdwg = int(a[7:])
        if a.startswith("osc="):
            Opt.osc = a[4:].replace("_", " ")
        if a.startswith("oscb="):
            Opt.oscb = a[5:].replace("_", " ")
        if a.startswith("gpf="):
            Opt.gpf = int(a[4:])
        if a.startswith("gpfd="):
            Opt.gpfd = int(a[5:])
        if a.startswith("rotA="):
            Opt.rotA = int(a[5:], 16)
        if a.startswith("rotB="):
            Opt.rotB = int(a[5:], 16)
        if a == "fake16":
            Opt.fake16 = True
        if a.startswith("qdelay="):
            Opt.qdelay = int(a[7:])
        if a.startswith("bpos="):
            Opt.bpos = int(a[5:])
        if a == "lidle":
            Opt.lidle = True
        if a == "noqwait":
            Opt.qwait = False
        if a == "nofwarm":
            Opt.fwarm = False
        if a == "noprog":
            Opt.prog = False
        if a == "dflag":
            Opt.dflag = True
        if a == "lite":
            Opt.lite = True
            Ctx.stamps = True
        if a.startswith("wos="):
            Opt.wos = int(a[4:])
        if a.startswith("R="):
            Opt.R = int(a[2:])
        if a.startswith("hdef="):
            Opt.hdef = int(a[5:])
        if a.startswith("gpf2="):
            Opt.gpf2 = int(a[5:])
        if a.startswith("oahead="):
            Opt.oahead = int(a[7:])
        if a.startswith("hpsel="):
            Opt.hpsel = a[6:]
        if a.startswith("bdelay="):
            Opt.bdelay = int(a[7:])
        if a.startswith("qdel="):
            Opt.qdel = int(a[5:])
        if a == "snake":
            Opt.snake = True
        if a == "wrot":
            Opt.wrot = True
        if a.startswith("wfirst="):
            Opt.wfirst = int(a[7:])
        if a.startswith("wearly="):
            Opt.wearly = int(a[7:])
        if a.startswith("fwat="):
            Opt.fwat = int(a[5:])
        if a.startswith("only="):
            Opt.only = [0, 1, 15] + [int(x) for x in a[5:].split(",")]
        if a.startswith("touch="):
            Opt.touch = int(a[6:])
        if a.startswith("tsh="):
            Opt.tsh = int(a[4:])
        for nm in ("ldw", "ldo", "ldp", "stw", "ntk", "nth", "ntq"):
            if a.startswith(nm + "="):
                setattr(Opt, nm, a[4:].replace("_", " "))
        if a.startswith("wback="):
            Opt.wback = int(a[6:])
        if a.startswith("wthr="):
            Opt.wthr = int(a[5:])
        if a.startswith("wstr="):
            Opt.wstr = int(a[5:])
        if a == "fullout":
            Opt.fullout = True
        if a == "noearly":
            Opt.noearly = True
        if a.startswith("lprio="):
            Opt.lprio = int(a[6:])
        if a.startswith("lprio0="):
            Opt.lprio0 = int(a[7:])
        if a.startswith("wmid="):
            Opt.wmid = int(a[5:])
        if a.startswith("pfw="):
            Opt.pfw = [int(c) for c in a[4:]]
            Opt.gpf2 = 0
        if a.startswith("pfx="):
            Opt.pfx = [int(c) for c in a[4:]]
            Opt.gpf2 = 0
        if a.startswith("pfm="):
            Opt.pfm = [int(c, 16) for c in a[4:]]
        if a == "rt":
            Opt.rt = True
        if a.startswith("hp="):
            Opt.hp = int(a[3:])
            Ctx.stamps = True
        if a.startswith("hold="):
            Opt.hold = int(a[5:])
        if a.startswith("dA="):
            Opt.dA = int(a[3:])
        if a.startswith("dB="):
            Opt.dB = int(a[3:])
        if a == "nowomall":
            Opt.womall = False
        if a == "noppoll":
            Opt.ppoll = False
        if a.startswith("psleep="):
            Opt.psleep = int(a[7:])
        if a.startswith("wopf="):
            Opt.wopf = a[5:]
    for a in args:
        if a.startswith("LA="):
            Opt.LA = int(a[3:])
    open(sys.argv[1], "w").write(build())
```

```python
import sys
from asm import Asm, vr, ar, sr
from roles import (WS_PHIQ, WS_PART, WS_O, WS_KVT, WS_YT, WS_STAMP, WS_SIZE, S_X, S_W, S_WPHI, S_WO, S_BQ, S_BK, S_BV,
                   S_SH, S_SSK, S_SSD, S_OUT, S_DBG, S_WS, NB_X, NB_W, NB_WPHI, NB_WO, NB_SH, NB_SSK, NB_OUT, LOG2E,
                   Ctx, load_kernargs, srd, stamp, stamp_init, softmax20)

NAME = "concat_heads__linear_kernel_hedgehog__ssm_conv_h3__prompt"
WS_PQ = WS_PHIQ
WS_FLAG = 0xF00000
F1, F2, F3, F0, F4 = (WS_FLAG + 128 * o for o in (0, 512, 1024, 1536, 1856))
FW = WS_FLAG + 128 * 2048
WS_WOT = 0x400000
WS_EPOCH = WS_FLAG + 128 * 2560 + 64
SWS = 44
SC = " sc1"
TAG = 30
SLOT = 36864
L_WP = 147456
L_Z = L_WP + 8192
L_SYNC = L_Z + 4096
L_V = 128 * 336
L_WOB = 69632
L_OT = 65536
CV_LDS = 8768
L_QCV = 3 * SLOT
B_PRE = 8 * CV_LDS
B_MB = B_PRE + 5 * 8320


class Opt:
    rot = True
    LA = 2
    ntk = ""
    nth = " nt"
    ntq = " nt"
    codepf = True
    wopf = "no"
    osc = " sc1 nt"
    oscb = " sc1 nt"
    hp = 0
    bwarm = 2
    f0s = 4
    tgs = 8
    f2s = 4
    f4s = 4
    tagl = 0
    wpk = 22
    qlate = 1
    wbf = 6
    pfm = [2, 7, 15]
    pfw = []
    pfx = []
    wmid = 32
    lprio = 0
    lprio0 = 1
    stw = SC
    noearly = False
    fullout = True
    wthr = 0
    wstr = 40960
    wback = 0
    ldw = SC
    ldo = SC
    ldp = SC
    touch = 0
    tsh = 20
    only = None
    fwat = 9
    par = 0x32
    wearly = 0
    wrot = False
    wfirst = 26
    bdelay = 0
    qdel = 0
    snake = False
    hpsel = "kv"
    oahead = 5
    gpf2 = 3
    hdef = 1
    R = 10
    wos = 1
    lite = False
    dflag = False
    prog = True
    fwarm = True
    qwait = False
    lidle = False
    bpos = 4
    fake16 = False
    qdelay = 0
    rotA = 0x5050
    rotB = 0x550050
    gpf = 0
    gpfd = 99
    rt = False
    ppoll = False
    womall = True
    probe = None
    dA = 0
    hold = 0
    holdwg = -1
    dB = 0
    psleep = 2


_stamp0 = stamp


def stamp(A, k, real=False):
    if Opt.hp:
        if k == Opt.hp:
            A("s_memrealtime s[64:65]")
        return
    if Opt.lite and k not in (0, 15):
        return
    if Opt.only and k not in Opt.only:
        return
    _stamp0(A, k, real or Opt.rt)


def end_wave(A, holdable=False):
    if Opt.hp:
        if (holdable is True and Opt.hpsel in ("kv", "qw")) or (holdable == "b" and Opt.hpsel in ("b", "qs")):
            L = A.newlabel("L_hp")
            A("s_cmp_lt_u32 s99, 8")
            A("s_cbranch_scc1 L_exit" if Opt.hpsel in ("kv", "b") else "s_cbranch_scc0 L_exit")
            if holdable == "b":
                A("s_cmp_lt_u32 s100, 4")
                A("s_cbranch_scc1 L_exit")
            A.label(L)
            A("s_sleep 4")
            A("s_memrealtime s[66:67]")
            A("s_waitcnt lgkmcnt(0)")
            A("s_sub_u32 s66, s66, s64")
            A("s_cmp_lt_u32 s66, 2000")
            A(f"s_cbranch_scc1 {L}")
    elif Ctx.stamps:
        A("s_waitcnt vmcnt(0)")
        stamp(A, 15, True)
        A("s_waitcnt lgkmcnt(0)")
        A("s_mov_b64 exec, -1")
        A("v_mov_b32 v2, 0")
        for k in ((0, 15) if Opt.lite else range(16)):
            A(f"v_writelane_b32 v2, s{64+2*k}, {k}")
        A("s_lshl_b32 s62, s2, 3")
        A("s_add_u32 s62, s62, s100")
        A("s_lshl_b32 s62, s62, 6")
        A(f"s_add_u32 s62, s62, {WS_STAMP:#x}")
        A("v_lshlrev_b32 v1, 2, v1")
        A("s_mov_b64 exec, 0xffff")
        A(f"buffer_store_dword v2, v1, s[{SWS}:{SWS+3}], s62 offen")
        if Opt.probe:
            Lp = A.newlabel("L_probe")
            A(f"s_cmp_eq_u32 s2, {Opt.probe[0]}")
            A(f"s_cbranch_scc0 {Lp}")
            A(f"s_cmp_eq_u32 s100, {Opt.probe[1]}")
            A(f"s_cbranch_scc0 {Lp}")
            A("v_subrev_u32 v3, s66, v2")
            A("s_sub_u32 s62, s94, s64")
            A("v_writelane_b32 v3, s62, 15")
            A("v_cmp_ne_u32 vcc, 0, v2")
            A("v_cndmask_b32 v3, 0, v3, vcc")
            A("s_mov_b64 exec, 0xfffc")
            A(f"global_store_dword v1, v3, s[{S_DBG}:{S_DBG+1}]")
            A.label(Lp)
    A("s_endpgm")


def stampw(A, k):
    stamp(A, k)
    if Ctx.stamps:
        A("s_waitcnt lgkmcnt(0)")


def poll(A, vt, voff, soff, sleep=1):
    L, Ld = A.newlabel("L_poll"), A.newlabel("L_polld")
    A("s_movk_i32 s101, 0x4000")
    A.label(L)
    A(f"buffer_load_dwordx2 {vr(vt,2)}, v{voff}, s[{SWS}:{SWS+3}], {soff} offen{SC}")
    A("s_waitcnt vmcnt(0)")
    A(f"v_cmp_eq_u64 vcc, s[{TAG}:{TAG+1}], {vr(vt,2)}")
    A("s_cmp_eq_u64 vcc, -1")
    A(f"s_cbranch_scc1 {Ld}")
    A(f"s_sleep {sleep}")
    A("s_sub_u32 s101, s101, 1")
    A("s_cmp_eq_u32 s101, 0")
    A(f"s_cbranch_scc0 {L}")
    A("s_endpgm")
    A.label(Ld)


def ppoll(A, vt, voff, soff, sleep=1, depth=4):
    if not Opt.ppoll:
        return poll(A, vt, voff, soff, sleep=sleep)
    L, Ld = A.newlabel("L_pp"), A.newlabel("L_ppd")
    ld = lambda k: f"buffer_load_dwordx2 {vr(vt+2*k,2)}, v{voff}, s[{SWS}:{SWS+3}], {soff} offen{SC}"
    A("s_movk_i32 s101, 0x4000")
    for k in range(depth - 1):
        A(ld(k))
        A(f"s_sleep {sleep}")
    A.label(L)
    for k in range(depth):
        A(ld((k + depth - 1) % depth))
        A(f"s_waitcnt vmcnt({depth-1})")
        A(f"v_cmp_eq_u64 vcc, s[{TAG}:{TAG+1}], {vr(vt+2*k,2)}")
        A("s_cmp_eq_u64 vcc, -1")
        A(f"s_cbranch_scc1 {Ld}")
        A(f"s_sleep {sleep}")
    A("s_sub_u32 s101, s101, 1")
    A("s_cmp_eq_u32 s101, 0")
    A(f"s_cbranch_scc0 {L}")
    A("s_endpgm")
    A.label(Ld)


def set_flag(A, vt, soff):
    A(f"v_mov_b32 v{vt}, s{TAG}")
    A(f"v_mov_b32 v{vt+1}, s{TAG+1}")
    A(f"v_lshlrev_b32 v{vt+2}, 3, v1")
    A("s_waitcnt vmcnt(0)")
    A("s_mov_b64 exec, 0xffff")
    A(f"buffer_store_dwordx2 {vr(vt,2)}, v{vt+2}, s[{SWS}:{SWS+3}], {soff} offen{SC}")
    A("s_mov_b64 exec, -1")


def tag_issue(A):
    A(f"s_load_dwordx2 s[{TAG}:{TAG+1}], s[{S_DBG}:{S_DBG+1}], 0")


def tag_check(A, vt):
    L, Ld = A.newlabel("L_hs"), A.newlabel("L_hsd")
    A("s_waitcnt lgkmcnt(0)")
    A(f"s_cmp_lg_u32 s{TAG}, s{TAG+1}")
    A(f"s_cbranch_scc1 {Ld}")
    A("s_movk_i32 s101, 0x4000")
    A(f"v_mov_b32 v{vt+2}, 0")
    A.label(L)
    A(f"global_load_dwordx2 {vr(vt,2)}, v{vt+2}, s[{S_DBG}:{S_DBG+1}]{SC}")
    A("s_waitcnt vmcnt(0)")
    A(f"v_readfirstlane_b32 s{TAG}, v{vt}")
    A(f"v_readfirstlane_b32 s{TAG+1}, v{vt+1}")
    A("s_nop 3")
    A(f"s_cmp_lg_u32 s{TAG}, s{TAG+1}")
    A(f"s_cbranch_scc1 {Ld}")
    A(f"s_sleep {Opt.tgs}")
    A("s_sub_u32 s101, s101, 1")
    A("s_cmp_eq_u32 s101, 0")
    A(f"s_cbranch_scc0 {L}")
    A("s_endpgm")
    A.label(Ld)


def lds_arrive(A, vt, addr):
    A(f"v_mov_b32 v{vt}, {addr}")
    A(f"v_mov_b32 v{vt+1}, 1")
    A("s_waitcnt lgkmcnt(0)")
    A("s_mov_b64 exec, 1")
    A(f"ds_add_u32 v{vt}, v{vt+1}")
    A("s_mov_b64 exec, -1")


def lds_wait(A, vt, addr, n, sleep=0):
    L, Ld = A.newlabel("L_lw"), A.newlabel("L_lwd")
    if addr is not None:
        A(f"v_mov_b32 v{vt}, {addr}")
    A("s_mov_b32 s101, 0x40000")
    A.label(L)
    A(f"ds_read_b32 v{vt+1}, v{vt}")
    A("s_waitcnt lgkmcnt(0)")
    A(f"v_cmp_le_u32 vcc, {n}, v{vt+1}")
    A(f"s_cbranch_vccnz {Ld}")
    if sleep:
        A(f"s_sleep {sleep}")
    A("s_sub_u32 s101, s101, 1")
    A("s_cmp_eq_u32 s101, 0")
    A(f"s_cbranch_scc0 {L}")
    A("s_endpgm")
    A.label(Ld)


class Lgkm:
    def __init__(self, A):
        self.A, self.n, self.done, self.tag = A, 0, 0, {}

    def issue(self, text, tag=None):
        self.A(text)
        self.n += 1
        if tag is not None:
            self.tag[tag] = self.n

    def wait(self, *tags):
        need = max(self.tag[t] for t in tags)
        if need > self.done:
            self.A(f"s_waitcnt lgkmcnt({min(15, self.n - need)})")
            self.done = max(need, self.n - 15)

    def all(self):
        if self.done < self.n:
            self.A("s_waitcnt lgkmcnt(0)")
            self.done = self.n


def softmax_parts(X, E, F, T, PH):
    mx, mn = T, T + 2
    mm = [f"v_max3_f32 v{mx}, v{X}, v{X+1}, v{X+2}", f"v_min3_f32 v{mn}, v{X}, v{X+1}, v{X+2}"]
    for i in range(3, 19, 2):
        mm += [f"v_max3_f32 v{mx}, v{mx}, v{X+i}, v{X+i+1}", f"v_min3_f32 v{mn}, v{mn}, v{X+i}, v{X+i+1}"]
    mm += [f"v_max_f32 v{mx}, v{mx}, v{X+19}", f"v_min_f32 v{mn}, v{mn}, v{X+19}",
           f"v_mul_f32 v{mx}, s60, v{mx}", f"v_mul_f32 v{mn}, s60, v{mn}"]
    fm, ex = [], []
    for i in range(0, 20, 2):
        fm.append(f"v_pk_fma_f32 {vr(E+i,2)}, {vr(X+i,2)}, s[60:61], {vr(mx,2)} op_sel_hi:[1,1,0] neg_lo:[0,0,1] neg_hi:[0,0,1]")
        fm.append(f"v_pk_fma_f32 {vr(F+i,2)}, {vr(X+i,2)}, s[60:61], {vr(mn,2)} op_sel_hi:[1,1,0] neg_lo:[1,0,0] neg_hi:[1,0,0]")
    for i in range(20):
        ex += [f"v_exp_f32 v{E+i}, v{E+i}", f"v_exp_f32 v{F+i}, v{F+i}"]
    se, sf = T + 4, T + 6
    sm = [f"v_pk_add_f32 {vr(se,2)}, {vr(E,2)}, {vr(E+2,2)}", f"v_pk_add_f32 {vr(sf,2)}, {vr(F,2)}, {vr(F+2,2)}"]
    for i in range(4, 20, 2):
        sm += [f"v_pk_add_f32 {vr(se,2)}, {vr(se,2)}, {vr(E+i,2)}", f"v_pk_add_f32 {vr(sf,2)}, {vr(sf,2)}, {vr(F+i,2)}"]
    fin = [f"v_add_f32 v{se}, v{se}, v{se+1}", f"v_add_f32 v{sf}, v{sf}, v{sf+1}",
           f"v_rcp_f32 v{se}, v{se}", f"v_rcp_f32 v{sf}, v{sf}"]
    tail = []
    for j in range(20):
        R, s_ = (E + 2 * j, se) if j < 10 else (F + 2 * (j - 10), sf)
        tail.append((f"v_pk_mul_f32 {vr(R,2)}, {vr(R,2)}, {vr(s_,2)} op_sel_hi:[1,0]", f"v_cvt_pk_bf16_f32 v{PH+j}, v{R}, v{R+1}"))
    return mm, fm, ex, sm, fin, tail


def merge(main, extra, every, start=0):
    out, extra = [], list(extra)
    for i, x in enumerate(main):
        out.append(x)
        if extra and i >= start and (i - start) % every == every - 1:
            out.append(extra.pop(0))
    return out + extra


def touch(A, v, sd, shift):
    A(f"v_lshlrev_b32 v{v}, {shift}, v1")
    A(f"buffer_load_dword v{v+1}, v{v}, s[{SWS}:{SWS+3}], 0 offen")
    srd(A, sd, S_OUT, NB_OUT)
    A(f"buffer_load_dword v{v+2}, v{v}, s[{sd}:{sd+3}], 0 offen")


def o_index(A):
    A("s_sub_u32 s63, s99, 8")
    A("s_lshr_b32 s62, s63, 2")
    A("s_lshl_b32 s3, s98, 2")
    A("s_add_u32 s62, s62, s3")
    A("s_and_b32 s63, s63, 3")
    A("s_lshl_b32 s63, s63, 2")
    A("s_add_u32 s63, s63, s48")


WR = 64


def wo_index(A):
    A("s_lshr_b32 s50, s99, 2")
    A("s_sub_u32 s50, s50, 1")
    A("s_max_i32 s50, s50, 0")
    A("s_lshl_b32 s50, s50, 2")
    A("s_add_u32 s50, s50, s48")
    A("s_lshl_b32 s52, s50, 6")
    A(f"s_mul_i32 s51, s50, {Opt.wstr}")
    A(f"s_add_u32 s51, s51, {WS_WOT:#x}")
    A("s_lshl_b32 s54, s50, 10")
    A(f"s_add_u32 s54, s54, {FW:#x}")
    A("v_lshlrev_b32 v18, 4, v1")


def wload(A, f0, f1):
    for f in range(f0, f1):
        if Opt.wthr and f >= Opt.wbf:
            A(f"s_waitcnt vmcnt({Opt.wthr-1})")
        if Opt.only and f in (14, 22, 30, 38):
            stamp(A, {14: 2, 22: 3, 30: 4, 38: 5}[f])
        if f % 4 == 0 or f == f0:
            A(f"s_add_u32 s53, s51, {4096*(f//4)}")
        A(f"buffer_load_dwordx4 {vr(WR+4*f,4)}, v18, s[{SWS}:{SWS+3}], s53 offen offset:{1024*(f&3)}{Opt.ldw}")


def role_loader(A):
    SX, SW, SP = 32, 36, 40
    VX, VW = 24, 28
    t0, t1, t2, t3 = 11, 12, 13, 14
    A(f"s_setprio {Opt.lprio0}")
    A(f"v_lshrrev_b32 v{t0}, 3, v1")
    A(f"v_mul_u32_u24 v{t0}, 1280, v{t0}")
    A(f"v_lshrrev_b32 v{t1}, 4, v1")
    A(f"v_and_b32 v{t2}, 7, v1")
    A(f"v_xor_b32 v{t1}, v{t1}, v{t2}")
    A(f"v_xor_b32 v{t2}, 4, v{t1}")
    A(f"v_lshl_add_u32 v{VX}, v{t1}, 4, v{t0}")
    A(f"v_lshl_add_u32 v{VX+1}, v{t2}, 4, v{t0}")
    A(f"v_add_u32 v{VX+2}, {2*(8*1280-1024)}, v{VX}")
    A(f"v_add_u32 v{VX+3}, {3*(8*1280-1024)}, v{VX+1}")
    A(f"v_add_u32 v{VX+1}, {8*1280-1024}, v{VX+1}")
    A("s_lshl_b32 s60, s49, 2")
    A("s_add_u32 s60, s60, s48")
    A(f"s_mul_i32 s60, s60, {32*1280}")
    A("s_lshr_b32 s30, s99, 2")
    A(f"s_lshr_b32 s30, {Opt.par:#x}, s30")
    A("s_xor_b32 s30, s30, s49")
    A("s_and_b32 s30, s30, 1")
    A("s_mul_i32 s31, s30, 640")
    A("s_add_u32 s60, s60, s31")
    A("s_lshl_b32 s62, s48, 12")
    A("s_mov_b32 m0, s62")
    A(f"s_mov_b32 s{SX+2}, {NB_X:#x}")
    A(f"s_mov_b32 s{SX+3}, 0x20000")
    A("s_waitcnt lgkmcnt(0)")
    A(f"s_mov_b64 s[{SX}:{SX+1}], s[{S_X}:{S_X+1}]")

    def dma_x(s):
        if s:
            A(f"s_add_u32 m0, s62, {(s % 3) * SLOT}")
        for i in range(4):
            A(f"buffer_load_dwordx4 v{VX+i}, s[{SX}:{SX+3}], s60 offen offset:{1024*i} lds")

    def dma_w(s):
        sl = (s % 3) * SLOT
        A(f"s_add_u32 m0, s63, {sl}")
        for i in range(4):
            A(f"buffer_load_dwordx4 v{VW+i}, s[{SW}:{SW+3}], s61 offen offset:{1024*i} lds")
        A(f"s_add_u32 m0, s63, {sl+4096}")
        A(f"buffer_load_dwordx4 v{VW+4}, s[{SW}:{SW+3}], s61 offen lds")
        if s < 9:
            if s == 4:
                A("s_add_u32 s60, s60, s97")
                A("s_add_u32 s61, s61, s96")
            else:
                A("s_add_u32 s60, s60, 128")
                A(f"s_add_u32 s61, s61, {64*3840}")

    dma_x(0)
    A("s_cmp_eq_u32 s51, 0")
    A("s_cselect_b32 s56, 1120, 0")
    A("s_add_u32 s58, s51, 1")
    A(f"v_xor_b32 v15, s58, v1")
    A(f"v_cmp_gt_u32 vcc, 32, v1")
    A("s_movk_i32 s57, 3520")
    A(f"v_cndmask_b32 v16, v15, v1, vcc")
    for i in range(5):
        src = (1, 1, 16, 15, 15)[i]
        A(f"v_add_u32 v{t2}, {64*i}, v{src}")
        A(f"v_mul_u32_u24 v{t2}, 6554, v{t2}")
        A(f"v_lshlrev_b32 v{t3}, 4, v{src}")
        A(f"v_lshrrev_b32 v{t0}, 17, v{t2}")
        A(f"v_bfe_u32 v{t1}, v{t2}, 16, 1")
        A(f"v_mad_u32_u24 v{t0}, v{t0}, s57, v{t3}")
        A(f"v_mad_u32_u24 v{VW+i}, v{t1}, s56, v{t0}")
    A(f"v_lshlrev_b32 v{t3}, 4, v1")
    A(f"v_add_u32 v{VW+4}, 4096, v{VW+4}")
    A(f"s_mul_i32 s61, s48, {16*3840}")
    A("s_mul_i32 s57, s50, 160")
    A("s_add_u32 s58, s57, 1280")
    A("s_lshl_b32 s57, s57, 1")
    A("s_cmp_eq_u32 s51, 0")
    A("s_cselect_b32 s57, s58, s57")
    A("s_add_u32 s61, s61, s57")
    A(f"s_mul_i32 s96, s30, {5*64*3840}")
    A("s_add_u32 s61, s61, s96")
    A("s_mul_i32 s63, s48, 5120")
    A("s_add_u32 s63, s63, 16384")
    srd(A, SW, S_W, NB_W)
    dma_w(0)
    stamp(A, 2)
    A("s_lshl_b32 s96, s96, 1")
    A(f"s_sub_u32 s96, {64*3840}, s96")
    A("s_lshl_b32 s97, s31, 1")
    A("s_sub_u32 s97, 128, s97")
    A("s_mul_i32 s57, s50, 3200")
    A("s_lshl_b32 s57, s57, s51")
    A("s_lshl_b32 s58, s48, 11")
    A("s_add_u32 s57, s57, s58")
    srd(A, SP, S_WPHI, NB_WPHI)
    A(f"s_add_u32 m0, s58, {L_WP}")
    A(f"buffer_load_dwordx4 v{t3}, s[{SP}:{SP+3}], s57 offen lds")
    A(f"buffer_load_dwordx4 v{t3}, s[{SP}:{SP+3}], s57 offen offset:1024 lds")
    srd(A, SWS, S_WS, WS_SIZE)
    Lh = A.newlabel("L_noh")
    A("s_cmp_eq_u32 s51, 0")
    A(f"s_cbranch_scc1 {Lh}")
    A("s_mul_i32 s49, s98, 80")
    A("s_lshl_b32 s50, s99, 2")
    A("s_add_u32 s49, s49, s50")
    A("s_add_u32 s49, s49, s48")
    A("s_add_u32 s49, s49, 48")
    A(f"s_mul_i32 s56, s48, {CV_LDS}")
    A(f"s_add_u32 s56, s56, {L_QCV}")
    A("s_lshl_b32 s50, s49, 12")
    A.label(Lh)
    assert Opt.LA == 2
    issued = 0
    for s in range(10):
        while issued < min(s + Opt.LA - 1, 9):
            issued += 1
            dma_x(issued)
            dma_w(issued)
        if s == 0:
            Ls = A.newlabel("L_nosetup")
            A("s_cmp_ge_u32 s99, 8")
            A(f"s_cbranch_scc1 {Ls}")
            conv_setup(A)
            f0_lines(A, 49, 49, 12)
            A.label(Ls)
        if s == 6:
            tag_issue(A)
        if s == Opt.fwat:
            Lf = A.newlabel("L_nofw")
            A("s_cmp_lt_u32 s99, 8")
            A(f"s_cbranch_scc1 {Lf}")
            wo_index(A)
            A(f"s_add_u32 s42, s{S_WS}, s54")
            A(f"s_addc_u32 s43, s{S_WS+1}, 0")
            for k in range(8):
                A(f"s_load_dwordx2 s[{4+2*k}:{5+2*k}], s[42:43], {128*k}")
            A.label(Lf)
        def fast_check():
            A("s_cmp_lt_u32 s99, 8")
            A("s_cbranch_scc1 L_q9")
            A("s_waitcnt lgkmcnt(0)")
            A("s_mov_b32 s3, 0")
            for k in range(8):
                A(f"s_cmp_eq_u64 s[{4+2*k}:{5+2*k}], s[{TAG}:{TAG+1}]")
                A("s_addc_u32 s3, s3, 0")
            A(f"s_cmp_lg_u32 s{TAG}, s{TAG+1}")
            A("s_addc_u32 s3, s3, 0")
            A(f"s_cmp_eq_u32 s3, {19 if Opt.noearly else 9}")
            A("s_cbranch_scc0 L_q9")

        if s == 9 and Opt.wearly:
            fast_check()
            wload(A, 0, Opt.wearly)
            A(f"s_waitcnt vmcnt({Opt.wearly})")
            A("s_barrier")
            stamp(A, 6)
            wload(A, Opt.wearly, Opt.wbf)
            A("s_barrier")
            A("s_branch L_wrest")
            A.label("L_q9")
        A(f"s_waitcnt vmcnt({9*(issued-s)})")
        A("s_barrier")
        if s in (0, 3, 6, 9):
            stamp(A, 3 + s // 3)
        if s == 9 and not Opt.wearly:
            fast_check()
            wload(A, 0, Opt.wbf)
            A("s_barrier")
            A("s_branch L_wrest")
            A.label("L_q9")
    A("s_setprio 0")
    A("s_cmp_lt_u32 s99, 8")
    A("s_cbranch_scc1 L_conv")
    role_wo(A)


def role_wo(A):
    SO, SWO = 32, 36
    A.label("L_wo")
    A(f"s_setprio {Opt.lprio}")
    wo_index(A)
    A("v_lshrrev_b32 v15, 3, v1")
    A("v_lshlrev_b32 v15, 7, v15")
    A("v_lshlrev_b32 v18, 4, v1")
    tag_check(A, 20)
    A(f"buffer_load_dwordx2 v[16:17], v15, s[{SWS}:{SWS+3}], s54 offen{SC}")
    Lj, Lk = A.newlabel("L_woj"), A.newlabel("L_wok")
    A("s_cmp_lt_u32 s99, 8")
    A(f"s_cbranch_scc1 {Lj}")
    A("s_barrier")
    A.label(Lj)
    A("s_waitcnt vmcnt(0)")
    A(f"v_cmp_eq_u64 vcc, s[{TAG}:{TAG+1}], v[16:17]")
    A("s_cmp_eq_u64 vcc, -1")
    A(f"s_cbranch_scc1 {Lk}")
    poll(A, 16, 15, "s54", sleep=8)
    A.label(Lk)

    wload(A, 0, Opt.wbf)
    A.label("L_wrest")
    A(f"s_setprio {Opt.lprio}")
    wload(A, Opt.wbf, Opt.wpk if Opt.wpk else Opt.wfirst)
    A("v_lshrrev_b32 v2, 2, v1")
    A("v_and_b32 v3, 3, v1")
    A("s_mul_i32 s58, s48, 20480")
    A(f"s_add_u32 s58, s58, {L_WOB}")
    A("v_lshrrev_b32 v11, 5, v1")
    A("v_and_b32 v9, 31, v1")
    A("v_lshrrev_b32 v15, 4, v1")
    A("v_lshlrev_b32 v15, 7, v15")
    o_index(A)
    Lq1, Lq2 = A.newlabel("L_woq"), A.newlabel("L_woq")
    A("s_cmp_lt_u32 s99, 8")
    A(f"s_cbranch_scc1 {Lq2}")
    A("s_lshr_b32 s54, s62, 2")
    A("s_lshl_b32 s54, s54, 4")
    A("s_add_u32 s54, s54, s63")
    A("s_lshl_b32 s54, s54, 8")
    A("v_lshlrev_b32 v19, 7, v11")
    A(f"s_add_u32 s54, s54, {F2:#x}")
    A("s_lshl_b32 s55, s62, 4")
    A("s_add_u32 s55, s55, s63")
    A("s_mul_i32 s55, s55, 5120")

    def pqdma():
        A("s_mov_b32 m0, s58")
        A("s_add_u32 s56, s55, 4096")
        for i in range(4):
            A(f"buffer_load_dwordx4 v18, s[{SWS}:{SWS+3}], s55 offen offset:{1024*i}{SC} lds")
        A("s_add_u32 m0, s58, 4096")
        A(f"buffer_load_dwordx4 v18, s[{SWS}:{SWS+3}], s56 offen{SC} lds")

    Lslow, Ljn = A.newlabel("L_pqs"), A.newlabel("L_pqj")
    if Opt.wpk:
        A(f"buffer_load_dwordx2 v[16:17], v19, s[{SWS}:{SWS+3}], s54 offen{SC}")
        wload(A, Opt.wpk, Opt.wpk + 4)
        A("s_waitcnt vmcnt(4)")
        A(f"v_cmp_eq_u64 vcc, s[{TAG}:{TAG+1}], v[16:17]")
        A("s_cmp_eq_u64 vcc, -1")
        A(f"s_cbranch_scc0 {Lslow}")
        pqdma()
        wload(A, Opt.wpk + 4, Opt.wfirst)
        A(f"s_waitcnt vmcnt({Opt.wfirst - Opt.wpk - 4})")
        A(f"s_branch {Ljn}")
        A.label(Lslow)
        wload(A, Opt.wpk + 4, Opt.wfirst)
    poll(A, 16, 19, "s54", sleep=Opt.f2s)
    pqdma()
    A("s_waitcnt vmcnt(0)")
    A.label(Ljn)
    A("s_lshl_b32 s54, s48, 2")
    A(f"s_add_u32 s54, s54, {L_SYNC+16}")
    lds_arrive(A, 16, "s54")
    stamp(A, 14)
    A("s_lshl_b32 s54, s62, 2")
    A("s_add_u32 s54, s54, s48")
    A("s_mul_i32 s55, s54, 10240")
    A(f"s_add_u32 s55, s55, {WS_PART:#x}")
    A("s_lshl_b32 s54, s54, 9")
    A(f"s_add_u32 s54, s54, {F1:#x}")
    A("v_min_u32 v19, 20, v9")
    A("v_and_b32 v20, 32, v1")
    A("v_add_u32 v19, v19, v20")
    A("v_lshlrev_b32 v20, 3, v19")
    A("v_lshlrev_b32 v19, 4, v19")
    A("s_mul_i32 s57, s48, 5120")
    A("v_add_u32 v21, s57, v18")
    A("s_mov_b32 s59, 0xffff0000")
    lds_wait(A, 16, L_SYNC + 4, 4, sleep=2)
    stamp(A, 7)
    wload(A, Opt.wfirst, max(Opt.wmid, Opt.wfirst))
    PR = [24, 34, 44, 54]
    SM, TP = 224, 244

    def pload(p):
        so = "s55" if p < 1 else f"s{40+p}"
        A(f"buffer_load_dwordx4 {vr(PR[p],4)}, v19, s[{SWS}:{SWS+3}], {so} offen{Opt.ldp}")
        A(f"buffer_load_dwordx4 {vr(PR[p]+4,4)}, v19, s[{SWS}:{SWS+3}], {so} offen offset:1024{Opt.ldp}")
        A(f"buffer_load_dwordx2 {vr(PR[p]+8,2)}, v20, s[{SWS}:{SWS+3}], {so} offen offset:2048{Opt.ldp}")

    for p in (1, 2, 3):
        A(f"s_add_u32 s{40+p}, s55, {2560*p}")
    if Opt.prog:
        L, Ld = A.newlabel("L_pg"), A.newlabel("L_pgd")
        A("s_mov_b64 s[56:57], 0")
        A("s_movk_i32 s101, 0x4000")
        A.label(L)
        A(f"buffer_load_dwordx2 v[16:17], v15, s[{SWS}:{SWS+3}], s54 offen{SC}")
        A("s_waitcnt vmcnt(0)")
        A(f"v_cmp_eq_u64 vcc, s[{TAG}:{TAG+1}], v[16:17]")
        A("s_andn2_b64 s[50:51], vcc, s[56:57]" if False else "s_andn2_b64 s[96:97], vcc, s[56:57]")
        A("s_mov_b64 s[56:57], vcc")
        for p in range(4):
            Ls = A.newlabel("L_pgs")
            A(f"s_bitcmp1_b64 s[96:97], {16*p}")
            A(f"s_cbranch_scc0 {Ls}")
            pload(p)
            A.label(Ls)
        A("s_cmp_eq_u64 s[56:57], -1")
        A(f"s_cbranch_scc1 {Ld}")
        A(f"s_sleep {Opt.psleep}")
        A("s_sub_u32 s101, s101, 1")
        A(f"s_cbranch_scc0 {L}")
        A("s_endpgm")
        A.label(Ld)
        stamp(A, 12)
        A("s_waitcnt vmcnt(0)")
    else:
        ppoll(A, 244, 15, "s54", sleep=Opt.psleep)
        stamp(A, 12)
        for p in range(4):
            pload(p)
    A("s_setprio 3")
    for p in range(4):
        A(f"s_waitcnt vmcnt({9-3*p})")
        for i in range(10):
            d = SM + 2 * i if p == 0 else TP + 2 * (i % 5)
            A(f"v_lshlrev_b32 v{d}, 16, v{PR[p]+i}")
            A(f"v_and_b32 v{d+1}, s59, v{PR[p]+i}")
            if p:
                A(f"v_pk_add_f32 {vr(SM+2*i,2)}, {vr(SM+2*i,2)}, {vr(d,2)}")
    for q in range(5):
        A(f"ds_write_b128 v21, {vr(SM+4*q,4)} offset:{1024*q}")
    lds_arrive(A, 16, L_SYNC + 8)
    A("s_setprio 0")
    stamp(A, 13)
    if Opt.wmid > Opt.wfirst:
        Lq3 = A.newlabel("L_woq")
        A(f"s_branch {Lq3}")
    A.label(Lq2)
    if Opt.wmid > Opt.wfirst:
        wload(A, Opt.wpk if Opt.wpk else Opt.wfirst, Opt.wmid)
        A.label(Lq3)
    wload(A, max(Opt.wmid, Opt.wfirst), 40)
    srd(A, SO, S_OUT, NB_OUT)
    A("s_and_b32 s54, s99, 3")
    A("s_lshl_b32 s55, s98, 2")
    A("s_add_u32 s54, s54, s55")
    A("s_lshr_b32 s55, s54, 1")
    A("s_lshl_b32 s55, s55, 12")
    A(f"s_add_u32 s55, s55, {F3:#x}")
    A("s_lshl_b32 s57, s48, 10")
    A("s_add_u32 s55, s55, s57")
    A("v_lshrrev_b32 v15, 3, v1")
    A("v_lshlrev_b32 v15, 7, v15")
    A("s_mul_i32 s57, s54, 81920")
    A(f"s_add_u32 s57, s57, {WS_O:#x}")
    A("s_lshr_b32 s58, s48, 1")
    A("s_mul_i32 s58, s58, 40960")
    A("s_and_b32 s59, s48, 1")
    A("s_lshl_b32 s59, s59, 12")
    A("s_add_u32 s58, s58, s59")
    A("s_add_u32 s57, s57, s58")
    A(f"s_add_u32 s58, s58, {L_OT}")
    A("v_mov_b32 v5, v18")
    A(f"v_add_u32 v6, {L_OT}, v5")
    A(f"v_add_u32 v7, {L_OT+40960}, v5")
    A("v_lshlrev_b32 v10, 3, v9")
    A("v_lshl_add_u32 v10, v11, 9, v10")
    A(f"v_add_u32 v10, {L_OT+32768}, v10")
    if Opt.fullout:
        A("s_lshl_b32 s56, s48, 6")
        A("s_waitcnt lgkmcnt(0)")
        A("v_mul_u32_u24 v12, 272, v9")
        A("v_lshl_add_u32 v12, v11, 5, v12")
        A("v_add_u32 v12, s56, v12")
        A("v_lshrrev_b32 v2, 4, v1")
        A("v_and_b32 v3, 15, v1")
        A("v_mul_u32_u24 v13, 272, v2")
        A("v_lshl_add_u32 v13, v3, 4, v13")
        A(f"s_mul_i32 s59, s48, {16*272}")
        A("v_add_u32 v13, s59, v13")
        A("v_mul_u32_u24 v14, 2560, v2")
        A("v_lshl_add_u32 v14, v3, 4, v14")
        A("s_lshl_b32 s59, s54, 2")
        A("s_add_u32 s59, s59, s48")
        A(f"s_mul_i32 s59, s59, {16*2560}")
        A("s_add_u32 s59, s59, s52")
        A("s_sub_u32 s59, s59, s56")
    else:
        A("s_mul_i32 s56, s48, 5120")
        A("s_waitcnt lgkmcnt(0)")
        A("v_mul_u32_u24 v12, 80, v9")
        A("v_lshl_add_u32 v12, v11, 5, v12")
        A("v_add_u32 v12, s56, v12")
        A("v_mul_u32_u24 v13, 80, v2")
        A("v_lshl_add_u32 v13, v3, 4, v13")
        A("v_add_u32 v13, s56, v13")
        A("v_mul_u32_u24 v14, 2560, v2")
        A("v_lshl_add_u32 v14, v3, 4, v14")
        A(f"s_mul_i32 s59, s54, {64*2560}")
        A("s_add_u32 s59, s59, s52")
    lds_wait(A, 16, L_SYNC + 12, 4, sleep=2)
    stamp(A, 8)
    ppoll(A, 48, 15, "s55", sleep=Opt.psleep)
    A("s_barrier")
    stamp(A, 9)
    def oissue(k):
        A(f"s_add_u32 m0, s58, {8192*k}")
        for i in range(4):
            A(f"buffer_load_dwordx4 v5, s[{SWS}:{SWS+3}], s57 offen offset:{1024*i}{Opt.ldo} lds")
        if k < 4:
            A("s_add_u32 s57, s57, 8192")

    for k in range(Opt.oahead):
        oissue(k)
    if Ctx.stamps:
        A("s_waitcnt lgkmcnt(0)")
    ACC = (16, 32)
    OFB = 224
    T = Lgkm(A)

    def rdx(f):
        if f % 8 == 0:
            k = f // 8
            A(f"s_waitcnt vmcnt({4*(min(k+Opt.oahead,5)-k-1)})")
            A("s_barrier")
            if k + Opt.oahead < 5:
                oissue(k + Opt.oahead)
        for t in range(2):
            d = OFB + 4 * ((2 * f + t) % 8)
            if f < 32:
                T.issue(f"ds_read_b128 {vr(d,4)}, v{6+t} offset:{1024*f}", (f, t))
            else:
                a = f - 32
                T.issue(f"ds_read_b64 {vr(d,2)}, v10 offset:{40960*t + 1024*a}")
                T.issue(f"ds_read_b64 {vr(d+2,2)}, v10 offset:{40960*t + 1024*a + 256}", (f, t))

    for f in range(3):
        rdx(f)
    for f in range(40):
        for t in range(2):
            T.wait((f, t))
            c = vr(ACC[t], 16) if f else "0"
            A(f"v_mfma_f32_32x32x16_bf16 {vr(ACC[t],16)}, {vr(WR+4*f,4)}, {vr(OFB+4*((2*f+t)%8),4)}, {c}")
            if t == 0 and f + 3 < 40:
                rdx(f + 3)
    stamp(A, 10)
    for t in range(2):
        for i in range(8):
            A(f"v_cvt_pk_bf16_f32 v{48+8*t+i}, v{ACC[t]+2*i}, v{ACC[t]+2*i+1}")
        for i in range(2):
            A(f"ds_write_b128 v12, {vr(48+8*t+4*i,4)} offset:{(32*272 if Opt.fullout else 2560)*t+16*i}")
    A("s_waitcnt lgkmcnt(0)")
    if Opt.fullout:
        A("s_barrier")
    for i in range(4):
        A(f"ds_read_b128 {vr(64+4*i,4)}, v13 offset:{(4*272 if Opt.fullout else 1280)*i}")
    for i in range(4):
        A(f"s_waitcnt lgkmcnt({3-i})")
        A(f"buffer_store_dwordx4 {vr(64+4*i,4)}, v14, s[{SO}:{SO+3}], s59 offen{Opt.osc}")
        if i < 3:
            A(f"s_add_u32 s59, s59, {(4 if Opt.fullout else 16)*2560}")
    stamp(A, 11)
    end_wave(A, True)


def role_compute(A):
    ACC = 16
    WF = (96, 116)
    XF = (136, 152)
    XA, WA, AD = 168, 172, 182
    t0, t1, t2, t3 = 11, 12, 13, 14
    for i in range(80):
        A(f"v_mov_b32 v{ACC+i}, 0")
    A(f"v_and_b32 v{t0}, 255, v0")
    A(f"v_lshlrev_b32 v{t0}, 4, v{t0}")
    A(f"v_add_u32 v{t0}, {L_Z}, v{t0}")
    A(f"ds_write_b128 v{t0}, {vr(ACC,4)}")
    A(f"ds_write_b128 v{t0}, {vr(ACC,4)} offset:64")
    A("s_lshr_b32 s52, s48, 1")
    A("s_and_b32 s53, s48, 1")
    S16, G4, R4, C4 = 183, 184, 185, 186
    A(f"v_and_b32 v{S16}, 15, v1")
    A(f"v_lshrrev_b32 v{G4}, 4, v1")
    A(f"v_bfe_u32 v{R4}, v1, 2, 2")
    A(f"v_and_b32 v{C4}, 3, v1")
    A(f"v_bfe_u32 v{t2}, v1, 1, 3")
    A(f"v_xor_b32 v{t2}, v{t2}, v{G4}")
    A(f"v_lshlrev_b32 v{t2}, 4, v{t2}")
    A(f"v_lshl_add_u32 v{t2}, v{S16}, 7, v{t2}")
    A("s_lshl_b32 s54, s52, 13")
    A(f"v_add_u32 v{XA}, s54, v{t2}")
    A(f"v_xor_b32 v{XA+1}, 64, v{XA}")
    A(f"v_add_u32 v{XA+2}, {2*SLOT}, v{XA}")
    A(f"v_add_u32 v{XA+3}, {2*SLOT}, v{XA+1}")
    A("s_cmp_eq_u32 s51, 0")
    A("s_cselect_b32 s55, 80, 0")
    A("s_mul_i32 s56, s53, 80")
    A("s_lshl_b32 s56, s56, s51")
    A(f"v_lshrrev_b32 v{t0}, 1, v{C4}")
    A(f"v_mul_u32_u24 v{t0}, s55, v{t0}")
    A(f"v_mad_u32_u24 v{t0}, v{C4}, 40, v{t0}")
    A(f"v_add_u32 v{t0}, s56, v{t0}")
    A(f"v_and_b32 v{t1}, 1, v{G4}")
    A("s_add_u32 s57, s51, 4")
    A(f"v_lshlrev_b32 v{t1}, s57, v{t1}")
    A(f"v_lshl_add_u32 v{t2}, v{G4}, 3, v{R4}")
    A(f"v_mul_u32_u24 v{t2}, 320, v{t2}")
    A(f"v_add_u32 v{t2}, 16384, v{t2}")
    for t in range(5):
        A(f"v_add_u32 v{t3}, {8*t}, v{t0}")
        A(f"v_xor_b32 v{t3}, v{t3}, v{t1}")
        A(f"v_add_u32 v{WA+t}, v{t2}, v{t3}")
        A(f"v_add_u32 v{WA+5+t}, {2*SLOT}, v{WA+t}")
    HD = 187
    A("s_cmp_eq_u32 s51, 0")
    A("s_cselect_b32 s55, 1, 3")
    A("s_add_u32 s57, s51, 1")
    A("s_lshl_b32 s56, s53, s57")
    A(f"v_and_b32 v{HD}, s55, v{G4}")
    A(f"v_add_u32 v{HD}, s56, v{HD}")
    A(f"v_mul_u32_u24 v{t0}, 800, v{HD}")
    A(f"v_mad_u32_u24 v{t0}, v{R4}, 40, v{t0}")
    A(f"v_add_u32 v{t0}, {L_WP}, v{t0}")
    A(f"v_mov_b32 v{t1}, {L_Z}")
    A(f"v_cmp_eq_u32 vcc, v{C4}, v{G4}")
    A(f"v_cndmask_b32 v{AD}, v{t1}, v{t0}, vcc")
    A(f"v_lshrrev_b32 v{t0}, 5, v1")
    A(f"v_lshl_add_u32 v{t0}, v{t0}, 4, v{S16}")
    A("s_lshl_b32 s57, s52, 6")
    A(f"v_add_u32 v{t0}, s57, v{t0}")
    A(f"v_mul_u32_u24 v{t1}, 208, v{t0}")
    A(f"v_mad_u32_u24 v2, v{HD}, 48, v{t1}")
    A(f"v_add_u32 v2, {L_V}, v2")
    A(f"v_mul_u32_u24 v{t3}, 80, v{HD}")
    A(f"v_mul_u32_u24 v{t2}, 336, v{t0}")
    A(f"v_add_u32 v3, v{t3}, v{t2}")
    A(f"v_lshrrev_b32 v{t1}, 5, v1")
    A(f"v_lshl_add_u32 v9, v{t1}, 3, v{R4}")
    A(f"v_bfe_u32 v{t2}, v1, 4, 1")
    A(f"v_bfe_u32 v{t3}, v1, 1, 1")
    A(f"v_lshl_add_u32 v10, v{t2}, 1, v{t3}")
    A(f"v_and_b32 v15, 1, v1")
    A(f"v_mul_u32_u24 v{t0}, 336, v9")
    A(f"v_mad_u32_u24 v{t1}, v15, 5, v10")
    A(f"v_lshl_add_u32 v{t0}, v{t1}, 3, v{t0}")
    A("s_mul_i32 s57, s48, 80")
    A(f"v_add_u32 v6, s57, v{t0}")
    A(f"v_lshl_add_u32 v{t0}, v10, 1, v15")
    A("s_mul_i32 s57, s48, 6")
    A(f"v_min_u32 v{t1}, 5, v{t0}")
    A(f"v_add_u32 v{t1}, s57, v{t1}")
    A(f"v_mul_u32_u24 v{t0}, 208, v9")
    A(f"v_lshl_add_u32 v{t0}, v{t1}, 3, v{t0}")
    A(f"v_add_u32 v7, {L_V}, v{t0}")
    WPF = 188
    for tp in range(5):
        A(f"v_mov_b32 v{WPF+12*tp+10}, 0")
        A(f"v_mov_b32 v{WPF+12*tp+11}, 0")
    A(f"s_mov_b32 s60, {LOG2E:#x}")
    A(f"s_mov_b32 s61, {LOG2E:#x}")
    A("s_waitcnt lgkmcnt(0)")
    srd(A, SWS, S_WS, WS_SIZE)
    if Opt.touch & 1:
        Lt = A.newlabel("L_nt")
        A("s_cmp_eq_u32 s48, 0")
        A(f"s_cbranch_scc0 {Lt}")
        touch(A, 248, 32, Opt.tsh)
        A.label(Lt)
    if Opt.fwarm:
        o_index(A)
        A("s_lshl_b32 s54, s62, 2")
        A("s_add_u32 s54, s54, s48")
        A("s_lshl_b32 s54, s54, 2")
        A("s_lshr_b32 s55, s62, 2")
        A("s_lshl_b32 s55, s55, 4")
        A("s_add_u32 s55, s55, s63")
        A("s_lshl_b32 s55, s55, 1")
        A("s_add_u32 s55, s55, 508")
        A("s_and_b32 s56, s99, 2")
        A("s_lshl_b32 s57, s98, 2")
        A("s_add_u32 s56, s56, s57")
        A("s_lshl_b32 s56, s56, 4")
        A("s_lshl_b32 s57, s48, 3")
        A("s_add_u32 s56, s56, s57")
        A("s_add_u32 s56, s56, 1016")
        A(f"v_mov_b32 v{t0}, s54")
        A(f"v_mov_b32 v{t1}, s55")
        A(f"v_mov_b32 v{t2}, s56")
        A("v_cmp_gt_u32 vcc, 16, v1")
        A(f"v_cndmask_b32 v{t1}, v{t1}, v{t0}, vcc")
        A("v_cmp_gt_u32 vcc, 32, v1")
        A(f"v_cndmask_b32 v{t1}, v{t2}, v{t1}, vcc")
        A(f"v_lshrrev_b32 v{t0}, 2, v1")
        A(f"v_add_u32 v{t0}, v{t0}, v{t1}")
        A(f"v_and_b32 v{t0}, 2047, v{t0}")
        A(f"v_lshlrev_b32 v{t0}, 7, v{t0}")
        A(f"s_mov_b32 s54, {WS_FLAG:#x}")
        A(f"buffer_load_dword v4, v{t0}, s[{SWS}:{SWS+3}], s54 offen{SC}")
    A("s_setprio 2")

    T = Lgkm(A)

    def reads(s, ks):
        sl, b = s % 3, ks
        L = []
        for t in range(5):
            for half in range(2):
                L.append((f"ds_read_b64_tr_b16 {vr(WF[b]+4*t+2*half,2)}, v{WA+5*(sl>>1)+t} offset:{(sl&1)*SLOT + (32*ks+4*half)*320}",
                          ("w", s, ks, t) if half else None))
            if t == 0:
                for rho in range(4):
                    L.append((f"ds_read_b128 {vr(XF[b]+4*rho,4)}, v{XA+2*(sl>>1)+ks} offset:{(sl&1)*SLOT + 2048*rho}", ("x", s, ks, rho)))
        return L

    wp = []
    for tp in range(5):
        for dq in range(5):
            wp.append((f"ds_read_b64_tr_b16 {vr(WPF+12*tp+2*dq,2)}, v{AD} offset:{160*dq+8*tp}", None))

    PS = (96, 106, 118, 128)
    E, F, TT_ = 140, 160, 248

    def cvt(rho):
        L = [f"v_cvt_pk_bf16_f32 v{PS[rho]+i}, v{ACC+20*rho+2*i}, v{ACC+20*rho+2*i+1}" for i in range(10)]
        if rho & 1:
            L += [f"v_mov_b32 v{PS[rho]+10}, 0x3f803f80", f"v_mov_b32 v{PS[rho]+11}, 0x3f803f80"]
        return L

    A("s_barrier")
    stampw(A, 3)
    for x, tg in reads(0, 0):
        T.issue(x, tg)
    early = cvt(0) + cvt(1)
    for s in range(10):
        for ks in range(2):
            last = (s == 9 and ks == 1)
            nxt = [] if last else (reads(s, 1) if ks == 0 else reads(s + 1, 0))
            if ks == 0 and s < 5:
                nxt += wp[5 * s:5 * s + 5]
            start = 0 if ks == 0 else Opt.bpos
            for k in range(20):
                t, rho = (k % 5, k // 5) if last else (k // 4, k % 4)
                if Opt.snake and t & 1:
                    rho = 3 - rho
                T.wait(("w", s, ks, t), ("x", s, ks, rho))
                a_ = ACC + 20 * rho + 4 * t
                A(f"v_mfma_f32_16x16x32_bf16 {vr(a_,4)}, {vr(WF[ks]+4*t,4)}, {vr(XF[ks]+4*rho,4)}, {vr(a_,4)}")
                if ks == 1 and k == start:
                    T.all()
                    A("s_barrier")
                if k >= start and nxt:
                    T.issue(*nxt.pop(0))
                if last and k >= 9:
                    for _ in range(2):
                        if early:
                            A(early.pop(0))
            assert not nxt
    stamp(A, 4)
    if Opt.fwarm:
        A("s_waitcnt vmcnt(0)")
    tag_issue(A)
    def phi_mfma(src, acc):
        L = []
        for u in range(3):
            for tp in range(5):
                c = vr(acc + 4 * tp, 4) if u else "0"
                L.append(f"v_mfma_f32_16x16x32_bf16 {vr(acc+4*tp,4)}, {vr(WPF+12*tp+4*u,4)}, {vr(src+4*u,4)}, {c}")
        return L

    def weave(mf, va, per):
        mf, va = list(mf), list(va)
        while mf or va:
            if mf:
                A(mf.pop(0))
            for _ in range(per):
                if va:
                    A(va.pop(0))

    assert not early
    Lq = A.newlabel("L_q")
    A("s_cmp_eq_u32 s51, 0")
    A(f"s_cbranch_scc0 {Lq}")
    mq = A.mark()
    for i in range(10):
        A(f"v_permlane32_swap_b32 v{PS[0]+i}, v{PS[1]+i}")
    weave(phi_mfma(PS[0], ACC), cvt(2) + cvt(3) + [f"v_permlane32_swap_b32 v{PS[2]+i}, v{PS[3]+i}" for i in range(10)], 2)
    vw = [f"ds_write_b128 v2, {vr(PS[1+2*sg]+4*i,4)} offset:{32*208*sg+16*i}" for sg in range(2) for i in range(3)]

    def body(parts):
        mm, fm, ex, sm, fin, tail = parts
        L = fm[:4]
        fm2, sm2 = list(fm[4:]), list(sm)
        for k in range(0, 40, 4):
            L += ex[k:k + 2]
            if fm2:
                L.append(fm2.pop(0))
            L += ex[k + 2:k + 4]
            if fm2:
                L.append(fm2.pop(0))
            if k >= 8:
                L += [sm2.pop(0), sm2.pop(0)]
        return L + sm2 + fin

    def tail_list(tail, wr):
        L = [tail[0][0], tail[1][0]]
        for j in range(20):
            if j + 2 < 20:
                L.append(tail[j + 2][0])
            L.append(tail[j][1])
            if wr and j % 4 == 3:
                L.append(wr[j // 4])
        return L

    s0 = softmax_parts(ACC, E, F, TT_, 56)
    s1 = softmax_parts(ACC + 20, E, F, TT_, 76)
    w0 = [f"ds_write_b128 v3, {vr(56+4*i,4)} offset:{16*i}" for i in range(5)]
    w1 = [f"ds_write_b128 v3, {vr(76+4*i,4)} offset:{32*336+16*i}" for i in range(5)]
    m1 = phi_mfma(PS[2], ACC + 20)
    for x in m1[:4]:
        A(x)
    weave(m1[4:], s0[0], 2)
    stamp(A, 2)
    for x in merge(body(s0), vw, 12) + tail_list(s0[5], w0):
        A(x)
    stamp(A, 13)
    A(f"v_mov_b32 v10, {L_SYNC}")
    A("v_mov_b32 v11, 1")
    A("s_mov_b64 exec, 1")
    A("ds_add_u32 v10, v11 offset:52")
    A("s_mov_b64 exec, -1")
    sal = ["s_lshl_b32 s57, s50, 2", "s_add_u32 s57, s57, s48", "s_lshl_b32 s57, s57, 4", "s_add_u32 s57, s57, s49",
           "s_lshl_b32 s59, s57, 7", f"s_add_u32 s59, s59, {F1:#x}", "s_mul_i32 s57, s57, 2560", f"s_add_u32 s57, s57, {WS_PART:#x}"]
    b1 = body(s1)
    for x in s1[0] + merge(b1[:60], sal, 6) + ["ds_read_b32 v12, v10 offset:52"] + b1[60:]:
        A(x)
    tag_check(A, 14)
    Lok = A.newlabel("L_s0ok")
    A("v_cmp_le_u32 vcc, 4, v12")
    A(f"s_cbranch_vccnz {Lok}")
    lds_wait(A, 12, L_SYNC + 52, 4)
    A.label(Lok)
    for x in tail_list(s1[5], w1):
        A(x)
    A("s_mov_b64 exec, 1")
    A("ds_add_u32 v10, v11")
    A("s_mov_b64 exec, -1")
    stampw(A, 5)
    T = Lgkm(A)
    T.n = 0 if (Ctx.stamps and not Opt.lite and not Opt.hp) else 0
    FAa = {0: 188, 1: 196, 4: 204, 5: 212, 2: 220, 3: 228, 6: 236, 7: 128}
    FBb = {u: 96 + 4 * u for u in range(8)}

    def rdA_(u):
        for half in range(2):
            o = (16 * u + 4 * half)
            T.issue(f"ds_read_b64_tr_b16 {vr(FAa[u]+2*half,2)}, v6 offset:{o*336}")
            T.issue(f"ds_read_b64_tr_b16 {vr(FAa[u]+4+2*half,2)}, v6 offset:{o*336+32}", ("a", u))

    def rdB_(u):
        for half in range(2):
            T.issue(f"ds_read_b64_tr_b16 {vr(FBb[u]+2*half,2)}, v7 offset:{(16*u+4*half)*208}", ("b", u))

    def pm(u, first=False):
        T.wait(("a", u), ("b", u))
        for TT in range(2):
            c = "0" if first else vr(ACC + 16 * TT, 16)
            A(f"v_mfma_f32_32x32x16_bf16 {vr(ACC+16*TT,16)}, {vr(FAa[u]+4*TT,4)}, {vr(FBb[u],4)}, {c}")

    rdB_(0); rdA_(0); rdB_(1); rdA_(1)
    pm(0, True)
    rdB_(4); rdA_(4)
    pm(1)
    rdB_(5); rdA_(5)
    T.issue("ds_read_b32 v12, v10", "c")
    pm(4)
    for u in (2, 3, 6, 7):
        rdB_(u)
    A("v_lshlrev_b32 v2, 4, v1")
    A("v_lshlrev_b32 v3, 3, v1")
    T.wait("c")
    Lok = A.newlabel("L_s1ok")
    A("v_cmp_le_u32 vcc, 4, v12")
    A(f"s_cbranch_vccnz {Lok}")
    lds_wait(A, 10, None, 4)
    A.label(Lok)
    rdA_(2); rdA_(3)
    pm(5)
    rdA_(6)
    pm(2)
    rdA_(7)
    pm(3); pm(6); pm(7)
    o_index(A)
    for i in range(10):
        A(f"v_cvt_pk_bf16_f32 v{48+i}, v{ACC+2*i}, v{ACC+2*i+1}")
    A(f"buffer_store_dwordx2 v[56:57], v3, s[{SWS}:{SWS+3}], s57 offen offset:2048{SC}")
    A("s_mov_b32 exec_lo, 0x00ffffff")
    A("s_mov_b32 exec_hi, 0x00ffffff")
    A(f"buffer_store_dwordx4 v[48:51], v2, s[{SWS}:{SWS+3}], s57 offen{SC}")
    A(f"buffer_store_dwordx4 v[52:55], v2, s[{SWS}:{SWS+3}], s57 offen offset:1024{SC}")
    A("s_mov_b64 exec, -1")
    stamp(A, 6)
    role_o(A)
    end_wave(A)
    A.label(Lq)
    hq = A.mark()
    pre = [f"s_mov_b32 s57, {64*1280}",
           f"v_mul_lo_u32 v{t1}, s57, v{HD}",
           f"v_lshl_add_u32 v2, v{S16}, 4, v{t1}",
           f"v_lshl_add_u32 v3, v{S16}, 3, v{t1}",
           "s_lshl_b32 s58, s49, 1",
           "s_add_u32 s58, s58, s52",
           "s_lshl_b32 s59, s50, 1",
           "s_add_u32 s59, s59, s53",
           "s_lshl_b32 s59, s59, 5",
           "s_add_u32 s59, s59, s58",
           "s_lshl_b32 s59, s59, 7",
           f"s_add_u32 s59, s59, {F2:#x}",
           "s_lshl_b32 s57, s50, 8",
           "s_add_u32 s57, s57, s58",
           "s_mul_i32 s57, s57, 2560"]
    A("s_nop 0")
    OQ = 140

    def outq(rho):
        x, o = ACC + 20 * rho, OQ + 10 * rho
        off = 1280 * (rho >> 1)
        L = [f"v_cvt_pk_bf16_f32 v{o+i}, v{x+2*i}, v{x+2*i+1}" for i in range(10)]
        L.append(f"buffer_store_dwordx4 {vr(o,4)}, v2, s[{SWS}:{SWS+3}], s57 offen offset:{off+256*(rho&1)}{SC}")
        L.append(f"buffer_store_dwordx4 {vr(o+4,4)}, v2, s[{SWS}:{SWS+3}], s57 offen offset:{off+512+256*(rho&1)}{SC}")
        L.append(f"buffer_store_dwordx2 {vr(o+8,2)}, v3, s[{SWS}:{SWS+3}], s57 offen offset:{off+1024+128*(rho&1)}{SC}")
        return L

    weave(phi_mfma(PS[0], ACC), pre + cvt(2), 2)
    m = phi_mfma(PS[1], ACC + 20)
    weave(m[:6], cvt(3), 2)
    weave(m[6:], outq(0), 2)
    m = phi_mfma(PS[2], ACC + 40)
    weave(m[:6], [], 0)
    weave(m[6:], outq(1), 2)
    m = phi_mfma(PS[3], ACC + 60)
    weave(m[:6], [], 0)
    weave(m[6:], outq(2), 2)
    for x in outq(3):
        A(x)
    stamp(A, 6)
    tag_check(A, 10)
    set_flag(A, 10, "s59")
    stamp(A, 7)
    A.check_seam(mq, hq)
    lds_arrive(A, 14, L_SYNC)
    lds_wait(A, 14, None, 8 if Opt.qlate else 4, sleep=2)
    A("s_setprio 0")
    A("s_cmp_lt_u32 s99, 4")
    A("s_cbranch_scc1 L_wo")
    if Opt.wopf == "qs":
        srd(A, 36, S_WO, NB_WO)
        A("s_sub_u32 s57, s99, 4")
        A("s_lshl_b32 s57, s57, 2")
        A("s_add_u32 s57, s57, s48")
        A("s_lshl_b32 s57, s57, 13")
        A(f"s_add_u32 s57, s57, {240*1280}")
        A("v_lshlrev_b32 v8, 7, v1")
        for i in range(4):
            A(f"buffer_load_dword v{200+i}, v8, s[36:39], s57 offen")
            A(f"s_add_u32 s57, s57, {16*8192}")
    A("s_cmp_lt_u32 s48, 2")
    A("s_cbranch_scc1 L_post")
    end_wave(A)


def role_o(A):
    NT = 4
    RAW, X, PQ = 64, 104, 128
    A("s_mul_i32 s53, s48, 20480")
    A(f"s_add_u32 s53, s53, {L_WOB}")
    A("v_and_b32 v4, 31, v1")
    A("v_lshl_add_u32 v5, v4, 4, s53")
    A("v_lshl_add_u32 v6, v4, 3, s53")
    A("v_and_b32 v7, 32, v1")
    A("v_lshlrev_b32 v7, 26, v7")
    A("s_lshl_b32 s54, s48, 2")
    A(f"s_add_u32 s54, s54, {L_SYNC+16}")
    A("s_mov_b32 s58, 0xffff0000")
    for t in range(NT):
        A(f"v_mov_b32 v{PQ+12*t+10}, 0")
        A(f"v_mov_b32 v{PQ+12*t+11}, 0")
    A("s_mov_b32 s96, s59")
    A("s_mov_b32 s97, 0")
    if Opt.dflag:
        Lgo = A.newlabel("L_go")
        A("v_mov_b32 v14, s54")
        A("ds_read_b32 v15, v14")
        A("s_waitcnt lgkmcnt(0)")
        A("v_cmp_le_u32 vcc, 1, v15")
        A(f"s_cbranch_vccnz {Lgo}")
    set_flag(A, 10, "s96")
    lds_arrive(A, 14, L_SYNC + 4)
    A("s_mov_b32 s97, 1")
    stamp(A, 7)
    lds_wait(A, 14, "s54", 1)
    if Opt.dflag:
        A.label(Lgo)
    stampw(A, 8)
    T = Lgkm(A)
    for t in range(NT):
        T.issue(f"ds_read_b128 {vr(RAW+10*t,4)}, v5 offset:{1280*t}")
        T.issue(f"ds_read_b128 {vr(RAW+10*t+4,4)}, v5 offset:{1280*t+512}")
        T.issue(f"ds_read_b64 {vr(RAW+10*t+8,2)}, v6 offset:{1280*t+1024}", t)
    A("s_lshl_b32 s57, s63, 2")
    A("s_mul_i32 s54, s57, 40960")
    A(f"s_add_u32 s54, s54, {WS_O:#x}")
    A("s_lshl_b32 s59, s62, 8")
    A("s_add_u32 s59, s59, s54")
    A("s_add_u32 s59, s59, 32768")
    A("s_lshl_b32 s57, s62, 10")
    A("s_add_u32 s54, s54, s57")
    A("s_lshl_b32 s50, s63, 5")
    A("s_add_u32 s50, s50, s62")
    A("s_lshl_b32 s50, s50, 7")
    A(f"s_add_u32 s50, s50, {F3:#x}")
    mx, se = 124, 126
    for t in range(NT):
        T.wait(t)
        for i in range(10):
            A(f"v_lshl_add_u32 v{X+2*i}, v{RAW+10*t+i}, 16, v7")
            A(f"v_bitop3_b32 v{X+2*i+1}, v{RAW+10*t+i}, s58, v7 bitop3:0x6a")
        A(f"v_max3_f32 v{mx}, v{X}, v{X+1}, v{X+2}")
        A(f"v_max3_f32 v{mx+1}, v{X+3}, v{X+4}, v{X+5}")
        for i in range(6, 18, 4):
            A(f"v_max3_f32 v{mx}, v{mx}, v{X+i}, v{X+i+1}")
            A(f"v_max3_f32 v{mx+1}, v{mx+1}, v{X+i+2}, v{X+i+3}")
        A(f"v_max3_f32 v{mx}, v{mx}, v{X+18}, v{X+19}")
        A(f"v_max_f32 v{mx}, v{mx}, v{mx+1}")
        A(f"v_mul_f32 v{mx}, s60, v{mx}")
        for i in range(0, 20, 2):
            A(f"v_pk_fma_f32 {vr(X+i,2)}, {vr(X+i,2)}, s[60:61], {vr(mx,2)} op_sel_hi:[1,1,0] neg_lo:[0,0,1] neg_hi:[0,0,1]")
        if Opt.dflag and t == 1:
            Lsk = A.newlabel("L_sk")
            A("s_cmp_eq_u32 s97, 1")
            A(f"s_cbranch_scc1 {Lsk}")
            set_flag(A, 10, "s96")
            lds_arrive(A, 14, L_SYNC + 4)
            stampw(A, 7)
            A.label(Lsk)
        for i in range(20):
            A(f"v_exp_f32 v{X+i}, v{X+i}")
        A(f"v_pk_add_f32 {vr(se,2)}, {vr(X,2)}, {vr(X+2,2)}")
        A(f"v_pk_add_f32 {vr(mx,2)}, {vr(X+4,2)}, {vr(X+6,2)}")
        for i in range(8, 20, 4):
            A(f"v_pk_add_f32 {vr(se,2)}, {vr(se,2)}, {vr(X+i,2)}")
            A(f"v_pk_add_f32 {vr(mx,2)}, {vr(mx,2)}, {vr(X+i+2,2)}")
        A(f"v_pk_add_f32 {vr(se,2)}, {vr(se,2)}, {vr(mx,2)}")
        A(f"v_add_f32 v{se}, v{se}, v{se+1}")
        A(f"v_rcp_f32 v{se}, v{se}")
        for i in range(0, 20, 2):
            A(f"v_pk_mul_f32 {vr(X+i,2)}, {vr(X+i,2)}, {vr(se,2)} op_sel_hi:[1,0]")
        for i in range(10):
            A(f"v_cvt_pk_bf16_f32 v{PQ+12*t+i}, v{X+2*i}, v{X+2*i+1}")
    stamp(A, 9)
    KF = 16
    A(f"v_mov_b32 v{KF+10}, 0")
    A(f"v_mov_b32 v{KF+11}, 0")
    lds_wait(A, 14, L_SYNC + 8, 4)
    stampw(A, 10)
    PR = 32
    T = Lgkm(A)
    for q in range(5):
        for p in range(4):
            T.issue(f"ds_read_b128 {vr(PR+16*q+4*p,4)}, v2 offset:{5120*p+1024*q}", q)
    for q in range(5):
        T.wait(q)
        b = PR + 16 * q
        for h in (0, 2):
            A(f"v_pk_add_f32 {vr(b+h,2)}, {vr(b+h,2)}, {vr(b+4+h,2)}")
            A(f"v_pk_add_f32 {vr(b+8+h,2)}, {vr(b+8+h,2)}, {vr(b+12+h,2)}")
        for h in (0, 2):
            A(f"v_pk_add_f32 {vr(b+h,2)}, {vr(b+h,2)}, {vr(b+8+h,2)}")
        for h in (0, 2):
            A(f"v_cvt_pk_bf16_f32 v{KF+2*q+h//2}, v{b+h}, v{b+h+1}")
    D = [176, 192, 208, 224]
    OP = [32, 40, 48, 56]

    def mf(t):
        for u in range(3):
            c = vr(D[t], 16) if u else "0"
            A(f"v_mfma_f32_32x32x16_bf16 {vr(D[t],16)}, {vr(KF+4*u,4)}, {vr(PQ+12*t+4*u,4)}, {c}")

    if Opt.dA:
        A(f"s_sleep {Opt.dA}")
    mf(0)
    mf(1)
    for t in range(NT):
        d, o = D[t], OP[t]
        A(f"v_add_f32 v10, 0x358637bd, v{d+12}")
        A("v_rcp_f32 v10, v10")
        if t + 2 < NT:
            mf(t + 2)
        if t >= 2:
            for i in range(0, 12, 2):
                A(f"v_pk_mul_f32 {vr(d+i,2)}, {vr(d+i,2)}, v[10:11] op_sel_hi:[1,0]")
        else:
            for i in range(12):
                A(f"v_mul_f32 v{d+i}, v10, v{d+i}")
        for i in range(6):
            A(f"v_cvt_pk_bf16_f32 v{o+i}, v{d+2*i}, v{d+2*i+1}")
        A(f"buffer_store_dwordx4 {vr(o,4)}, v2, s[{SWS}:{SWS+3}], s54 offen{SC}")
        A("s_mov_b32 exec_hi, 0")
        A(f"buffer_store_dwordx2 {vr(o+4,2)}, v3, s[{SWS}:{SWS+3}], s59 offen{SC}")
        A("s_mov_b64 exec, -1")
        if t < NT - 1:
            A("s_add_u32 s54, s54, 40960")
            A("s_add_u32 s59, s59, 40960")
    stamp(A, 11)
    set_flag(A, 12, "s50")
    lds_arrive(A, 16, L_SYNC + 12)
    stamp(A, 12)


def b_channel(A):
    A("s_mul_i32 s49, s98, 80")
    A("s_sub_u32 s50, s99, 24")
    A("s_mul_i32 s50, s50, 6")
    A("s_add_u32 s49, s49, s50")
    A("s_add_u32 s49, s49, s48")
    A("s_cmp_ge_u32 s48, 6")
    A("s_cselect_b32 s50, 2, 0")
    A("s_sub_u32 s49, s49, s50")
    A(f"s_mul_i32 s56, s48, {CV_LDS}")


def conv_load_h(A, v):
    SH = 40
    srd(A, SH, S_SSK, NB_SSK)
    A(f"v_lshlrev_b32 v{v}, 4, v1")
    A("s_lshl_b32 s50, s49, 12")
    A("s_add_u32 m0, s56, 64")
    for i in range(4):
        A(f"buffer_load_dwordx4 v{v}, s[{SH}:{SH+3}], s50 offen offset:{1024*i}{Opt.nth} lds")


def f0_lines(A, c0, c1, v):
    A(f"s_lshr_b32 s52, s{c0}, 6")
    A("s_mul_i32 s52, s52, 419431")
    A("s_lshr_b32 s52, s52, 16")
    A(f"s_lshr_b32 s53, s{c1}, 6")
    A("s_mul_i32 s53, s53, 419431")
    A("s_add_u32 s53, s53, 406324")
    A("s_lshr_b32 s53, s53, 16")
    A(f"v_lshrrev_b32 v{v}, 2, v1")
    A(f"v_add_u32 v{v}, s52, v{v}")
    A(f"v_min_u32 v{v}, s53, v{v}")
    A(f"v_lshlrev_b32 v{v}, 7, v{v}")
    A(f"s_mov_b32 s52, {F0:#x}")


def role_pre(A):
    SK, SV, SS = 32, 36, 40
    t0, t1, t2 = 2, 3, 4
    A("s_lshl_b32 s49, s98, 3")
    A("s_add_u32 s49, s49, s99")
    A("s_sub_u32 s49, s49, 24")
    A("s_mul_i32 s49, s49, 5")
    A("s_add_u32 s49, s49, s48")
    A("s_and_b32 s50, s49, 31")
    A("s_lshr_b32 s51, s49, 5")
    A(f"s_mul_i32 s52, s50, {64*1280}")
    A("s_lshl_b32 s53, s51, 7")
    A("s_add_u32 s52, s52, s53")
    A(f"v_lshrrev_b32 v{t0}, 3, v1")
    A(f"v_and_b32 v{t1}, 7, v1")
    A(f"v_mul_u32_u24 v{t2}, {8*1280}, v{t0}")
    A(f"v_lshl_add_u32 v{t2}, v{t1}, 4, v{t2}")
    A(f"v_add_u32 v5, s52, v{t2}")
    A(f"v_subrev_u32 v6, {3*1280}, v5")
    A(f"v_subrev_u32 v7, {2*1280}, v5")
    A(f"v_subrev_u32 v8, {1280}, v5")
    A(f"v_lshlrev_b32 v9, 6, v{t1}")
    A("s_lshl_b32 s54, s51, 9")
    A(f"s_movk_i32 s55, {4*1280}")
    A("s_waitcnt lgkmcnt(0)")
    srd(A, SK, S_BK, NB_X)
    srd(A, SV, S_BV, NB_X)
    srd(A, SS, S_SH, NB_SH)
    WR, KR, VR = 16, 32, 76
    for i in range(4):
        A(f"buffer_load_dwordx4 {vr(WR+4*i,4)}, v9, s[{SS}:{SS+3}], s54 offen offset:{16*i}")
    for i in range(3):
        A(f"buffer_load_dwordx4 {vr(KR+4*i,4)}, v{6+i}, s[{SK}:{SK+3}], 0 offen{Opt.ntk}")

    order = []

    def ld(kind, i):
        so = "0" if i < 4 else "s55"
        if kind == "k":
            A(f"buffer_load_dwordx4 {vr(KR+12+4*i,4)}, v5, s[{SK}:{SK+3}], {so} offen offset:{1280*(i&3)}{Opt.ntk}")
        else:
            A(f"buffer_load_dwordx4 {vr(VR+4*i,4)}, v5, s[{SV}:{SV+3}], {so} offen offset:{1280*(i&3)}{Opt.ntk}")
        order.append((kind, i))

    for i in (5, 6, 7):
        ld("k", i)
    ld("k", 0); ld("v", 0); ld("k", 1); ld("v", 1)
    todo = [("k", 2), ("v", 2), ("k", 3), ("v", 3), ("k", 4), ("v", 4), ("v", 5), ("v", 6), ("v", 7)]
    stamp(A, 2)
    srd(A, SWS, S_WS, WS_SIZE)
    A("s_mul_i32 s56, s48, 8320")
    A(f"s_add_u32 s56, s56, {B_PRE}")
    A(f"v_mul_u32_u24 v10, 1040, v{t1}")
    A(f"v_lshl_add_u32 v10, v{t0}, 4, v10")
    A("v_add_u32 v10, s56, v10")
    A("v_lshrrev_b32 v11, 4, v1")
    A("v_lshlrev_b32 v11, 8, v11")
    A("v_and_b32 v12, 3, v1")
    A("v_lshl_add_u32 v11, v12, 6, v11")
    A("v_bfe_u32 v12, v1, 2, 2")
    A("v_lshl_add_u32 v11, v12, 3, v11")
    A("v_add_u32 v11, s56, v11")
    A(f"v_lshlrev_b32 v12, 12, v{t0}")
    A(f"v_lshl_add_u32 v12, v{t1}, 4, v12")
    A("s_lshl_b32 s57, s51, 18")
    A("s_lshl_b32 s58, s50, 7")
    A("s_add_u32 s57, s57, s58")
    A(f"s_add_u32 s57, s57, {WS_KVT:#x}")
    A("s_mov_b32 s59, 0xffff0000")
    WF, KF, VF, TA, OUT = 108, 140, 172, 180, 196

    def unpack(dst, src, n):
        for i in range(n):
            A(f"v_lshlrev_b32 v{dst+2*i}, 16, v{src+i}")
            A(f"v_and_b32 v{dst+2*i+1}, s59, v{src+i}")

    A(f"s_waitcnt vmcnt({3+len(order)})")
    ld(*todo.pop(0)); ld(*todo.pop(0))
    for c in range(8):
        A(f"v_lshlrev_b32 v{WF+c}, 16, v{WR+2*c}")
        A(f"v_and_b32 v{WF+8+c}, s59, v{WR+2*c}")
        A(f"v_lshlrev_b32 v{WF+16+c}, 16, v{WR+2*c+1}")
        A(f"v_and_b32 v{WF+24+c}, s59, v{WR+2*c+1}")
    A(f"s_waitcnt vmcnt({len(order)})")
    ld(*todo.pop(0)); ld(*todo.pop(0))
    for i in range(3):
        unpack(KF + 8 * i, KR + 4 * i, 4)
    for i in range(8):
        need = max(order.index(("k", i)), order.index(("v", i)))
        A(f"s_waitcnt vmcnt({len(order)-1-need})")
        for _ in range(2):
            if todo:
                ld(*todo.pop(0))
        if i == 2:
            b_channel(A)
            if Opt.hdef:
                A("s_lshl_b32 s50, s49, 12")
            else:
                conv_load_h(A, 13)
                order.extend([None] * 4)
        unpack(KF + 8 * ((i + 3) & 3), KR + 12 + 4 * i, 4)
        unpack(VF, VR + 4 * i, 4)
        acc = TA + 8 * (i & 1)
        for j in (3, 2, 1, 0):
            kk = KF + 8 * ((i + 3 - j) & 3)
            for c in range(0, 8, 2):
                if j == 3:
                    A(f"v_pk_mul_f32 {vr(acc+c,2)}, {vr(kk+c,2)}, {vr(WF+8*j+c,2)}")
                else:
                    A(f"v_pk_fma_f32 {vr(acc+c,2)}, {vr(kk+c,2)}, {vr(WF+8*j+c,2)}, {vr(acc+c,2)}")
        for c in range(0, 8, 2):
            A(f"v_pk_mul_f32 {vr(acc+c,2)}, {vr(acc+c,2)}, {vr(VF+c,2)}")
        if i & 1:
            for c in range(8):
                A(f"v_cvt_pk_bf16_f32 v{OUT+4*c+i//2}, v{TA+c}, v{TA+8+c}")
    stamp(A, 3)
    for c in range(8):
        A(f"ds_write_b128 v10, {vr(OUT+4*c,4)} offset:{128*c}")
    A("s_waitcnt lgkmcnt(0)")
    T = Lgkm(A)
    for i in range(8):
        T.issue(f"ds_read_b64_tr_b16 {vr(16+4*i,2)}, v11 offset:{1040*i}")
        T.issue(f"ds_read_b64_tr_b16 {vr(18+4*i,2)}, v11 offset:{1040*i+32}", i)
    for i in range(8):
        T.wait(i)
        A(f"buffer_store_dwordx4 {vr(16+4*i,4)}, v12, s[{SWS}:{SWS+3}], s57 offen{SC}")
        if i < 7:
            A(f"s_add_u32 s57, s57, {8*4096}")
    stamp(A, 5)
    if Opt.hdef == 2:
        conv_load_h(A, 13)


def role_helper(A):
    SD = 40
    A("s_setprio 3")
    A("s_waitcnt lgkmcnt(0)")
    srd(A, SWS, S_WS, WS_SIZE)
    srd(A, SD, S_DBG, 256)
    Lz = A.newlabel("L_nz")
    A("s_cmp_eq_u32 s2, 192")
    A(f"s_cbranch_scc0 {Lz}")
    A("s_cmp_eq_u32 s48, 5")
    A(f"s_cbranch_scc0 {Lz}")
    A(f"s_mov_b32 s57, {WS_EPOCH:#x}")
    A("s_mov_b64 exec, 1")
    A(f"buffer_load_dword v4, off, s[{SWS}:{SWS+3}], s57{SC}")
    A("s_waitcnt vmcnt(0)")
    A("v_add_u32 v4, 1, v4")
    A("v_not_b32 v5, v4")
    A(f"buffer_store_dwordx2 v[4:5], off, s[{SD}:{SD+3}], 0{SC}")
    A(f"buffer_store_dword v4, off, s[{SWS}:{SWS+3}], s57{SC}")
    A("s_mov_b64 exec, -1")
    stamp(A, 2)
    A.label(Lz)
    if Opt.touch & 2:
        Lt = A.newlabel("L_nt")
        A("s_cmp_eq_u32 s48, 5")
        A(f"s_cbranch_scc0 {Lt}")
        touch(A, 26, 32, Opt.tsh)
        for k_, (b_, n_) in enumerate(((S_BQ, NB_X), (S_SSK, NB_SSK))):
            srd(A, 32, b_, n_)
            A(f"buffer_load_dword v29, v26, s[32:35], 0 offen")
        A.label(Lt)
    if Opt.codepf:
        Lp = A.newlabel("L_npf")
        A("s_cmp_eq_u32 s48, 6")
        A(f"s_cbranch_scc0 {Lp}")
        A("s_getpc_b64 s[50:51]")
        A.label("L_pc")
        A(f"s_sub_u32 s50, s50, L_pc-{NAME}_kernel")
        A("s_subb_u32 s51, s51, 0")
        A("s_sub_u32 s52, s99, 24")
        A("s_lshl_b32 s52, s52, 13")
        A("v_lshl_add_u32 v2, v1, 7, s52")
        A(f"v_min_u32 v2, L_code_end-{NAME}_kernel-4, v2")
        A("global_load_dword v24, v2, s[50:51]")
        A.label(Lp)
    if Opt.bwarm:
        Lw_ = A.newlabel("L_bw")
        A("s_cmp_eq_u32 s48, 7")
        A(f"s_cbranch_scc0 {Lw_}")
        A("s_sub_u32 s61, s99, 24")
        A("s_mul_i32 s60, s98, 80")
        A("s_mul_i32 s61, s61, 6")
        A("s_add_u32 s60, s60, s61")
        A("s_add_u32 s61, s60, 5")
        f0_lines(A, 60, 61, 12)
        A(f"buffer_load_dword v26, v12, s[{SWS}:{SWS+3}], s52 offen{SC}")
        if Opt.bwarm > 1:
            A("s_lshl_b32 s57, s98, 4")
            A("s_sub_u32 s58, s57, 16")
            A("v_min_u32 v12, 47, v1")
            A("v_add_u32 v12, s58, v12")
            A("v_max_i32 v12, 0, v12")
            A("v_min_u32 v12, 127, v12")
            A("v_lshlrev_b32 v12, 7, v12")
            A(f"s_mov_b32 s58, {F4:#x}")
            A(f"buffer_load_dword v27, v12, s[{SWS}:{SWS+3}], s58 offen{SC}")
        A.label(Lw_)
    Lnw = A.newlabel("L_nw")
    A("s_sub_u32 s61, s99, 24")
    A("s_lshl_b32 s60, s61, 1")
    A("s_add_u32 s60, s60, s48")
    A("s_sub_u32 s60, s60, 6")
    A("s_xor_b32 s61, s61, 20")
    A("s_cmp_eq_u32 s48, 5")
    A("s_cselect_b32 s60, s61, s60")
    A("s_lshl_b32 s60, s60, 3")
    A("s_add_u32 s60, s60, s98")
    A("s_cmp_ge_u32 s60, 160")
    A(f"s_cbranch_scc1 {Lnw}_a")
    srd(A, 36, S_WO, NB_WO)
    A("s_lshr_b32 s61, s60, 3")
    A("s_and_b32 s62, s60, 7")
    A(f"s_mul_i32 s53, s62, {80*1280}")
    A("s_lshl_b32 s54, s61, 6")
    A("s_add_u32 s53, s53, s54")
    A("v_lshrrev_b32 v2, 2, v1")
    A("v_and_b32 v3, 3, v1")
    A("v_mul_u32_u24 v4, 1280, v2")
    A("v_lshl_add_u32 v4, v3, 4, v4")
    A(f"s_mul_i32 s56, s48, {CV_LDS}")
    for i in range(5):
        A(f"s_add_u32 m0, s56, {1024*i}")
        A("buffer_load_dwordx4 v4, s[36:39], s53 offen lds")
        A(f"s_add_u32 s53, s53, {16*1280}")
    A.label(Lnw + "_a")
    if Opt.pfm:
        Le_ = A.newlabel("L_pme")
        A("s_and_b32 s50, s98, 3")
        A("s_lshr_b32 s51, s98, 2")
        A("s_and_b32 s52, s99, 3")
        A("s_lshl_b32 s53, s50, 1")
        A("s_add_u32 s53, s53, s51")
        A("s_lshl_b32 s53, s53, 2")
        A("s_add_u32 s53, s53, s52")
        A(f"s_mul_i32 s53, s53, {64*1280}")
        A("s_lshl_b32 s50, s50, 2")
        A("s_add_u32 s50, s50, s52")
        A("s_mul_i32 s52, s50, 52")
        A("s_lshr_b32 s52, s52, 8")
        A("s_add_u32 s52, s52, s51")
        A("s_mul_i32 s52, s52, 640")
        A("s_lshl_b32 s51, s50, 7")
        A("s_add_u32 s52, s52, s51")
        A("s_cmp_eq_u32 s50, 15")
        A(f"s_cselect_b32 s52, {NB_W:#x}, s52")
        A("s_cmp_lt_u32 s99, 28")
        A("s_cselect_b32 s51, s53, s52")
        A(f"s_cselect_b64 s[32:33], s[{S_X}:{S_X+1}], s[{S_W}:{S_W+1}]")
        A(f"s_mov_b32 s53, {NB_W:#x}")
        A(f"s_cselect_b32 s34, {NB_X:#x}, s53")
        A("s_mov_b32 s35, 0x20000")
        A("s_movk_i32 s53, 3840")
        A("s_cselect_b32 s52, 1280, s53")
        A(f"s_mov_b32 s53, {64*3840}")
        A("s_cselect_b32 s53, 128, s53")
        A("v_mul_u32_u24 v2, s52, v1")
        A("s_sub_u32 s50, s48, 5")
        A("s_lshl_b32 s50, s50, 2")
        for k in range(len(Opt.pfm) // 3):
            tab = Opt.pfm[3 * k] | Opt.pfm[3 * k + 1] << 4 | Opt.pfm[3 * k + 2] << 8
            A(f"s_lshr_b32 s54, {tab:#x}, s50")
            A("s_and_b32 s54, s54, 15")
            A("s_mul_i32 s52, s54, s53")
            A("s_cmp_ge_u32 s54, 10")
            A("s_cselect_b32 s52, 0x1000000, s52")
            A("s_add_u32 s52, s52, s51")
            A(f"buffer_load_dword v{30+k}, v2, s[32:35], s52 offen")
        A.label(Le_)
    if Opt.pfw or Opt.pfx:
        Lx_, Le_ = A.newlabel("L_pfx"), A.newlabel("L_pfe")
        A("s_cmp_eq_u32 s48, 5")
        A(f"s_cbranch_scc1 {Lx_}")
        A("s_lshl_b32 s50, s48, 3")
        A("s_add_u32 s50, s50, s99")
        A("s_sub_u32 s50, s50, 72")
        A("s_cmp_eq_u32 s50, 15")
        A(f"s_cbranch_scc1 {Le_}")
        A("s_mul_i32 s51, s50, 52")
        A("s_lshr_b32 s51, s51, 8")
        A("s_lshr_b32 s52, s98, 2")
        A("s_add_u32 s51, s51, s52")
        A("s_mul_i32 s51, s51, 640")
        A("s_lshl_b32 s50, s50, 7")
        A("s_add_u32 s51, s51, s50")
        srd(A, 32, S_W, NB_W)
        A("v_mul_u32_u24 v2, 3840, v1")
        for k, st in enumerate(Opt.pfw):
            A(f"s_add_u32 s50, s51, {st*64*3840}")
            A(f"buffer_load_dword v{30+k}, v2, s[32:35], s50 offen")
        A(f"s_branch {Le_}")
        A.label(Lx_)
        if Opt.pfx:
            A("s_and_b32 s51, s98, 3")
            A("s_lshl_b32 s51, s51, 3")
            A("s_add_u32 s51, s51, s99")
            A("s_sub_u32 s51, s51, 24")
            A(f"s_mul_i32 s51, s51, {64*1280}")
            srd(A, 32, S_X, NB_X)
            A("v_mul_u32_u24 v2, 1280, v1")
            for k, st in enumerate(Opt.pfx):
                A(f"buffer_load_dword v{30+k}, v2, s[32:35], s51 offen offset:{128*st}")
        A.label(Le_)
    if Opt.gpf2:
        Lnp = A.newlabel("L_ng")
        A("s_lshl_b32 s50, s48, 3")
        A("s_add_u32 s50, s50, s99")
        A("s_sub_u32 s50, s50, 64")
        A("s_cmp_ge_u32 s50, 20")
        A("s_cselect_b32 s53, 0x1000000, 0")
        A("s_lshr_b32 s51, s50, 1")
        A("s_and_b32 s50, s50, 1")
        A("s_cmp_ge_u32 s51, 5")
        A("s_cselect_b32 s52, 640, 0")
        A("s_lshl_b32 s51, s51, 7")
        A("s_add_u32 s51, s51, s52")
        A("s_lshr_b32 s52, s98, 2")
        A("s_mul_i32 s52, s52, 640")
        A("s_add_u32 s51, s51, s52")
        A(f"s_mul_i32 s50, s50, {5*64*3840}")
        A("s_add_u32 s51, s51, s50")
        A("s_add_u32 s51, s51, s53")
        A(f"s_add_u32 s51, s51, {1280 + Opt.gpf2*64*3840}")
        srd(A, 32, S_W, NB_W)
        A("v_mul_u32_u24 v2, 3840, v1")
        for k in range(Opt.gpf2, 5):
            A(f"buffer_load_dword v{30+k}, v2, s[32:35], s51 offen")
            A(f"s_add_u32 s51, s51, {64*3840}")
        A.label(Lnp)
    if Opt.gpf:
        A("s_sub_u32 s50, s99, 24")
        A("s_mul_i32 s50, s50, 3")
        A("s_add_u32 s50, s50, s48")
        A("s_sub_u32 s50, s50, 5")
        A("s_and_b32 s51, s98, 3")
        A("s_lshl_b32 s51, s51, 3")
        A("s_add_u32 s51, s51, s50")
        A(f"s_mul_i32 s51, s51, {64*1280}")
        A("s_sub_u32 s52, s50, 8")
        A("s_mul_i32 s53, s52, 52")
        A("s_lshr_b32 s53, s53, 8")
        A("s_mul_i32 s53, s53, 640")
        A("s_lshl_b32 s52, s52, 7")
        A("s_add_u32 s52, s52, s53")
        A("s_lshr_b32 s53, s98, 2")
        A("s_mul_i32 s53, s53, 640")
        A("s_add_u32 s52, s52, s53")
        A("s_cmp_eq_u32 s50, 23")
        A(f"s_cselect_b32 s52, {NB_W:#x}, s52")
        A("s_cmp_lt_u32 s50, 8")
        A("s_cselect_b32 s51, s51, s52")
        A(f"s_cselect_b64 s[32:33], s[{S_X}:{S_X+1}], s[{S_W}:{S_W+1}]")
        A(f"s_mov_b32 s53, {NB_W:#x}")
        A(f"s_cselect_b32 s34, {NB_X:#x}, s53")
        A("s_mov_b32 s35, 0x20000")
        A("s_movk_i32 s53, 3840")
        A("s_cselect_b32 s52, 1280, s53")
        A(f"s_mov_b32 s53, {64*3840}")
        A("s_cselect_b32 s53, 128, s53")
        A("v_mul_u32_u24 v2, s52, v1")
        A(f"s_mul_i32 s52, s53, {Opt.gpf}")
        A("s_add_u32 s51, s51, s52")
        for k, st in enumerate(range(Opt.gpf, 10)):
            if k >= Opt.gpfd:
                A(f"s_waitcnt vmcnt({Opt.gpfd-1})")
            A(f"buffer_load_dword v{30+k}, v2, s[32:35], s51 offen")
            A("s_add_u32 s51, s51, s53")
    A("s_cmp_ge_u32 s60, 160")
    A(f"s_cbranch_scc1 {Lnw}")
    A("v_bfe_u32 v10, v1, 2, 2")
    A("v_lshrrev_b32 v11, 5, v1")
    A("v_and_b32 v12, 1, v1")
    A("v_lshlrev_b32 v12, 5, v12")
    A("v_bfe_u32 v13, v1, 4, 1")
    A("v_lshl_add_u32 v12, v13, 4, v12")
    A("v_bfe_u32 v13, v1, 1, 1")
    A("v_lshl_add_u32 v12, v13, 3, v12")
    A("v_lshl_add_u32 v12, v10, 6, v12")
    A("v_add_u32 v12, s56, v12")
    A("v_lshl_add_u32 v13, v11, 8, v12")
    A("v_mul_u32_u24 v14, 2560, v11")
    A("v_add_u32 v14, v14, v12")
    A("v_lshlrev_b32 v2, 4, v1")
    A(f"s_mul_i32 s53, s61, {Opt.wstr}")
    A(f"s_add_u32 s53, s53, {WS_WOT:#x}")
    A("s_lshl_b32 s54, s62, 10")
    A("s_add_u32 s54, s54, s53")
    A("s_add_u32 s54, s54, 32768")
    A("s_lshl_b32 s62, s62, 12")
    A("s_add_u32 s53, s53, s62")
    A("s_lshl_b32 s55, s60, 7")
    A(f"s_add_u32 s55, s55, {FW:#x}")
    if Opt.wback == 2:
        A("v_lshlrev_b32 v5, 7, v1")
        A("s_mov_b32 exec_hi, 0")
        A(f"buffer_load_dword v24, v5, s[{SWS}:{SWS+3}], s53 offen")
        A("s_mov_b32 exec_lo, 0xff")
        A(f"buffer_load_dword v25, v5, s[{SWS}:{SWS+3}], s54 offen")
        A("s_mov_b64 exec, -1")
    assert not (Opt.pfw or Opt.pfx or Opt.gpf)
    A(f"s_waitcnt vmcnt({len(Opt.pfm)//3 + (5-Opt.gpf2 if Opt.gpf2 else 0)})")
    for hh in range(4):
        for half in range(2):
            A(f"ds_read_b64_tr_b16 {vr(40+4*hh+2*half,2)}, v13 offset:{(20*hh+8*half)*64}")
    for half in range(2):
        A(f"ds_read_b64_tr_b16 {vr(56+2*half,2)}, v14 offset:{(20*half+16)*64}")
    A("s_waitcnt lgkmcnt(0)")
    for hh in range(4):
        A(f"buffer_store_dwordx4 {vr(40+4*hh,4)}, v2, s[{SWS}:{SWS+3}], s53 offen offset:{1024*hh}{Opt.stw}")
    A(f"buffer_store_dwordx4 v[56:59], v2, s[{SWS}:{SWS+3}], s54 offen{Opt.stw}")
    A(f"s_mov_b64 s[{TAG}:{TAG+1}], 0")
    if Opt.tagl:
        A("s_waitcnt vmcnt(0)")
    tag_check(A, 8)
    set_flag(A, 8, "s55")
    stamp(A, 3)
    if Opt.wback == 1:
        A("v_lshlrev_b32 v5, 7, v1")
        A("s_mov_b32 exec_hi, 0")
        A(f"buffer_load_dword v24, v5, s[{SWS}:{SWS+3}], s53 offen")
        A("s_mov_b32 exec_lo, 0xff")
        A(f"buffer_load_dword v25, v5, s[{SWS}:{SWS+3}], s54 offen")
        A("s_mov_b64 exec, -1")
    A.label(Lnw)
    A("s_setprio 0")
    b_channel(A)
    if Opt.hdef == 1:
        A("s_lshl_b32 s50, s49, 12")
    else:
        conv_load_h(A, 2)
    A(f"v_mov_b32 v4, {B_MB+256}")
    A("v_mov_b32 v5, 0")
    A("ds_write_b32 v4, v5")
    A("ds_write_b32 v4, v5 offset:512")


def conv_setup(A):
    A("v_lshlrev_b32 v2, 4, v1")
    A("s_lshl_b32 s52, s49, 1")
    A("s_and_b32 s52, s52, 0xfffffffc")
    A(f"s_load_dword s55, s[{S_SSD}:{S_SSD+1}], s52")
    A(f"s_load_dword s54, s[{S_SSK}:{S_SSK+1}], s50")
    A(f"s_add_u32 s51, s50, {WS_KVT:#x}")
    for i in range(4):
        A(f"v_mov_b32 v{4+i}, 0")
    A("v_add_u32 v3, s56, v2")
    A("s_mov_b64 exec, 0xf")
    A("ds_write_b128 v3, v[4:7]")
    A("s_mov_b32 exec_lo, -1")
    A(f"ds_write_b128 v3, v[4:7] offset:{64+4096}")
    A("s_mov_b64 exec, -1")
    A("v_and_b32 v11, 3, v1")
    A("v_lshrrev_b32 v10, 4, v1")
    A("v_bfe_u32 v12, v1, 2, 2")
    A("v_lshlrev_b32 v8, 4, v11")
    A("v_lshl_add_u32 v8, v10, 6, v8")
    A("v_lshlrev_b32 v9, 3, v12")
    A("v_sub_u32 v8, v8, v9")
    A("s_add_u32 s57, s56, 32")
    A("v_add_u32 v8, s57, v8")
    A("v_sub_u32 v9, v11, v10")
    A("v_lshlrev_b32 v9, 6, v9")
    A("v_lshl_add_u32 v9, v12, 4, v9")
    A(f"s_add_u32 s57, s56, {64+4096+512}")
    A("v_add_u32 v9, s57, v9")
    A("v_mov_b32 v13, 0xffff")
    for i in range(4):
        A(f"v_cmp_eq_u32 vcc, {4*i}, v1")
        A(f"v_cndmask_b32 v{MK+i}, 0, v13, vcc")
    A("v_add_u32 v13, 3, v11")
    A("v_and_b32 v13, 3, v13")
    A("v_lshl_add_u32 v13, v12, 2, v13")
    A("v_add_u32 v13, 48, v13")
    A("v_subrev_u32 v14, 16, v1")
    A("v_cmp_gt_u32 vcc, 16, v1")
    A("v_cndmask_b32 v14, v14, v13, vcc")
    A("v_lshlrev_b32 v14, 2, v14")
    A("s_mov_b32 s58, 0x1111")
    A("s_mov_b32 s59, 0")


MK = 16


def role_conv(A):
    conv_setup(A)
    A("s_sub_u32 s61, s99, 24")
    A("s_lshl_b32 s62, s98, 3")
    A("s_add_u32 s62, s62, s61")
    A("s_lshl_b32 s62, s62, 7")
    A(f"s_add_u32 s62, s62, {F0:#x}")
    A("s_mul_i32 s60, s98, 80")
    A("s_mul_i32 s61, s61, 6")
    A("s_add_u32 s60, s60, s61")
    A("s_add_u32 s61, s60, 5")
    f0_lines(A, 60, 61, 12)
    A(f"s_waitcnt vmcnt({4 if Opt.hdef == 2 else 0}) lgkmcnt(0)")
    stamp(A, 4)
    A("s_barrier")
    if Opt.hdef == 1:
        Lh = A.newlabel("L_hd")
        A("s_cmp_eq_u32 s48, 7")
        A(f"s_cbranch_scc0 {Lh}")
        set_flag(A, 22, "s62")
        A.label(Lh)
        A("s_barrier")
        conv_load_h(A, 2)
        A("s_waitcnt vmcnt(0)")
    else:
        A("s_waitcnt vmcnt(0)")
        A("s_cmp_eq_u32 s48, 7")
        A("s_cbranch_scc0 L_cb")
        set_flag(A, 22, "s62")
    A("s_branch L_cb")
    A.label("L_conv")
    RA, RB = 64, 192
    ACCS = (32, 40, 48, 56)
    CAR, PUL, TMP = 20, (21, 22), 23
    OUT = (24, 28)

    def rdA(m, e):
        reg = RA + 8 * m + 4 * e
        return [(f"ds_read_b64_tr_b16 {vr(reg,2)}, v8 offset:{256*m+8*e+32}", None),
                (f"ds_read_b64_tr_b16 {vr(reg+2,2)}, v8 offset:{256*m+8*e}", ("A", m, e))]

    def xload():
        A(f"s_add_u32 m0, s56, {64+4096+512}")
        for i in range(4):
            A(f"buffer_load_dwordx4 v2, s[{SWS}:{SWS+3}], s51 offen offset:{1024*i}{SC} lds")

    Lb, Lg = "L_cb", A.newlabel("L_cg")
    tag_check(A, 22)
    if Opt.qlate == 1:
        conv_load_h(A, 2)
        A("s_barrier")
        lds_wait(A, 22, L_SYNC, 4, sleep=2)
        A(f"buffer_load_dwordx2 v[22:23], v12, s[{SWS}:{SWS+3}], s52 offen{SC}")
        A("s_waitcnt vmcnt(0)")
    elif Opt.qlate == 2:
        A("s_barrier")
        lds_wait(A, 22, L_SYNC, 4, sleep=2)
        A(f"buffer_load_dwordx2 v[22:23], v12, s[{SWS}:{SWS+3}], s52 offen{SC}")
        conv_load_h(A, 2)
        A("s_waitcnt vmcnt(4)")
    else:
        conv_load_h(A, 2)
        A(f"buffer_load_dwordx2 v[22:23], v12, s[{SWS}:{SWS+3}], s52 offen{SC}")
        A("s_barrier")
        A("s_waitcnt vmcnt(0)")
    A(f"v_cmp_eq_u64 vcc, s[{TAG}:{TAG+1}], v[22:23]")
    A("s_cmp_eq_u64 vcc, -1")
    Lx = A.newlabel("L_cx")
    A(f"s_cbranch_scc1 {Lx}")
    poll(A, 22, 12, "s52", sleep=8)
    A.label(Lx)
    stamp(A, 8)
    xload()
    if Opt.qlate:
        lds_arrive(A, 22, L_SYNC)
        A("s_waitcnt vmcnt(4)")
    A.label(Lb)
    A("s_waitcnt lgkmcnt(0)")
    A("s_lshl_b32 s54, s54, 16")
    A("s_lshl_b32 s53, s55, 16")
    A("s_and_b32 s55, s55, 0xffff0000")
    A("s_bitcmp1_b32 s49, 0")
    A("s_cselect_b32 s53, s55, s53")
    A("v_mov_b32 v15, s54")
    A("v_add_f32 v15, s53, v15")
    A("v_cvt_pk_bf16_f32 v15, v15, v15")
    T = Lgkm(A)
    for m in range(16):
        for e in range(2):
            for x, tg in rdA(m, e):
                T.issue(x, tg)
    T.wait(("A", 0, 1))
    for k in range(4):
        A(f"v_bfi_b32 v{RA+k}, v{MK+k}, v15, v{RA+k}")
        A(f"v_lshlrev_b32 v{MK+k}, 16, v{MK+k}")
        A(f"v_bfi_b32 v{RA+4+k}, v{MK+k}, v15, v{RA+4+k}")
    T.all()
    if Opt.qwait:
        Lqd = A.newlabel("L_qd")
        A("s_cmp_ge_u32 s99, 24")
        A(f"s_cbranch_scc1 {Lqd}")
        lds_wait(A, 12, L_SYNC, 4, sleep=4)
        if Opt.qdel:
            A(f"s_sleep {Opt.qdel}")
        A.label(Lqd)
    A("s_cmp_ge_u32 s99, 24")
    A(f"s_cbranch_scc0 {Lg}")
    Ln7 = A.newlabel("L_n7")
    A("s_cmp_eq_u32 s48, 7")
    A(f"s_cbranch_scc0 {Ln7}")
    poll(A, 22, 12, "s52", sleep=Opt.f0s)
    A.label(Ln7)
    A("s_barrier")
    stamp(A, 8)
    xload()
    if Opt.bdelay:
        A(f"s_sleep {Opt.bdelay}")
    A("s_cmp_ge_u32 s48, 4")
    A(f"s_cbranch_scc0 {Lg}")
    A("s_setprio 1")
    A.label(Lg)
    A(f"s_add_u32 s51, s50, {WS_YT:#x}")
    A(f"v_mov_b32 v{PUL[1]}, 0")

    def epilogue(i):
        V = ACCS[i % 4]
        dpp = lambda d, src, op: f"v_add_f32_dpp v{d}, v{src}, v{d} {op} row_mask:0xf bank_mask:0xf"
        L = [f"v_mov_b32 v{CAR}, 0"]
        for k in (1, 2, 3):
            L += [dpp(V, V + k, f"row_shr:{4*k}"), dpp(V + 4, V + 4 + k, f"row_shr:{4*k}"), dpp(CAR, V + 4 + k, f"row_shl:{16-4*k}")]
        L.append(("ds", f"ds_bpermute_b32 v{PUL[i&1]}, v14, v{CAR}", ("P", i)))
        x = [dpp(V + 4, V + k, f"row_shl:{16-4*k}") for k in (1, 2, 3)]
        L += [x[0], "GAP", x[1], "GAP", x[2]]
        L.append(("wait", ("P", i)))
        L.append(f"v_cndmask_b32 v{TMP}, v{PUL[i&1]}, v{PUL[1-(i&1)]}, s[58:59]")
        L.append(f"v_add_f32 v{V}, v{V}, v{TMP}")
        L.append(f"v_cvt_pk_bf16_f32 v{OUT[(i>>2)&1]+(i&3)}, v{V}, v{V+4}")
        if i & 3 == 3:
            L.append(f"buffer_store_dwordx4 {vr(OUT[(i>>2)&1],4)}, v2, s[{SWS}:{SWS+3}], s51 offen offset:{1024*(i>>2)}{SC}")
        return L

    def emit(x):
        if isinstance(x, tuple):
            if x[0] == "ds":
                T.issue(x[1], x[2])
            else:
                T.wait(x[1])
        elif x != "GAP":
            A(x)

    A("s_waitcnt vmcnt(0)")
    stampw(A, 9)

    def stream(tiles, exit_at=None, keep=None):
        T.tag.clear()
        for w in range(16):
            T.issue(f"ds_read_b128 {vr(RB+4*w,4)}, v9 offset:{256*w}", ("B", w))
        fill = []
        since = 99
        for i in tiles:
            V = ACCS[i % 4]
            while fill and fill[0][0] <= i - 4:
                emit(fill.pop(0)[1])
            if exit_at and i == exit_at[0]:
                while fill and fill[0][0] <= i - 2:
                    emit(fill.pop(0)[1])
                assert len(fill) == len(epilogue(i - 1))
                A("s_cmp_ge_u32 s48, 4")
                A(f"s_cbranch_scc1 {exit_at[1]}")
            since = 0
            for w in range(i + 1):
                for e in range(2):
                    T.wait(("B", w))
                    c = vr(V + 4 * e, 4) if w else "0"
                    A(f"v_mfma_f32_16x16x32_bf16 {vr(V+4*e,4)}, {vr(RA+8*(i-w)+4*e,4)}, {vr(RB+4*w,4)}, {c}")
                    since += 1
                    left = 2 * (i + 1) - since
                    due = len([1 for t_, _x in fill if t_ <= i - 2])
                    if i == tiles[-1] or (exit_at and i == exit_at[0] - 1):
                        due = len(fill)
                    for _ in range(2 if due > left else 1):
                        if fill and (fill[0][0] < i - 1 or since >= 6):
                            emit(fill.pop(0)[1])
            ep = epilogue(i)
            if keep and i == keep[0]:
                k = [j for j, x in enumerate(ep) if isinstance(x, str) and x.startswith("v_cvt")][0]
                ep = ep[:k] + [f"v_mov_b32 v{keep[1]}, v{V}", f"v_mov_b32 v{keep[1]+1}, v{V+4}"] + ep[k + 1:]
            fill += [(i, x) for x in ep]
        stampw(A, 10)
        T.done = T.n if Ctx.stamps else T.done
        return [x for _, x in fill]

    A("s_cmp_ge_u32 s48, 6")
    A("s_cbranch_scc1 L_second")
    for x in stream(range(16), (12, "L_first")):
        emit(x)
    A("s_branch L_cdone")
    A.label("L_first")
    A("s_waitcnt lgkmcnt(0)")
    A("s_nop 6")
    T.done = T.n
    stampw(A, 10)
    for x in epilogue(11):
        emit(x)
    A("s_and_b32 s52, s48, 1")
    A("s_lshl_b32 s52, s52, 9")
    A(f"s_add_u32 s52, s52, {B_MB}")
    A("v_lshl_add_u32 v10, v1, 2, s52")
    A(f"ds_write_b32 v10, v{PUL[1]}")
    A("s_add_u32 s52, s52, 256")
    lds_arrive(A, 10, "s52")
    A("s_branch L_cdone")
    A.label("L_second")
    T.done = T.n
    last = stream(range(12, 16), keep=(12, 4))
    for x in last[:-1]:
        emit(x)
    A("s_and_b32 s52, s48, 1")
    A("s_lshl_b32 s52, s52, 9")
    A(f"s_add_u32 s52, s52, {B_MB}")
    A("v_lshl_add_u32 v12, v1, 2, s52")
    A("s_add_u32 s52, s52, 256")
    lds_wait(A, 10, "s52", 1, sleep=2)
    A(f"ds_read_b32 v{TMP}, v12")
    A("s_waitcnt lgkmcnt(0)")
    A(f"v_cndmask_b32 v{TMP}, 0, v{TMP}, s[58:59]")
    A(f"v_add_f32 v4, v4, v{TMP}")
    A(f"v_cvt_pk_bf16_f32 v{OUT[1]}, v4, v5")
    A(last[-1])
    A.label("L_cdone")
    A("s_waitcnt vmcnt(0)")
    stamp(A, 11)
    A("s_cmp_ge_u32 s99, 24")
    A("s_cbranch_scc1 L_bdone")
    A(f"v_mov_b32 v10, {L_SYNC+12}")
    A("v_mov_b32 v11, 1")
    A("s_mov_b64 exec, 1")
    A("ds_add_rtn_u32 v12, v10, v11")
    A("s_mov_b64 exec, -1")
    A("s_lshl_b32 s52, s98, 4")
    A("s_add_u32 s52, s52, s99")
    A("s_lshl_b32 s52, s52, 7")
    A(f"s_add_u32 s52, s52, {F4+8*128:#x}")
    A("s_waitcnt lgkmcnt(0)")
    A("v_readfirstlane_b32 s53, v12")
    A("s_cmp_eq_u32 s53, 3")
    A("s_cbranch_scc0 L_bend")
    set_flag(A, 10, "s52")
    A("s_branch L_bend")
    A.label("L_bdone")


def role_post(A):
    SQ, SO = 32, 36
    A.label("L_post")
    A("s_setprio 0")
    A("s_and_b32 s48, s48, 3")
    A("s_sub_u32 s50, s99, 24")
    A("s_lshl_b32 s50, s50, 2")
    A("s_lshl_b32 s51, s99, 1")
    A("s_add_u32 s51, s51, 24")
    A("s_cmp_ge_u32 s99, 24")
    A("s_cselect_b32 s50, s50, s51")
    A("s_mul_i32 s49, s98, 40")
    A("s_add_u32 s49, s49, s50")
    A("s_add_u32 s49, s49, s48")
    A("s_and_b32 s50, s49, 31")
    A("s_lshr_b32 s51, s49, 5")
    A("v_lshrrev_b32 v2, 3, v1")
    A("v_and_b32 v3, 7, v1")
    A("v_lshlrev_b32 v4, 12, v2")
    A("v_lshl_add_u32 v4, v3, 4, v4")
    A("s_lshl_b32 s52, s51, 18")
    A("s_lshl_b32 s53, s50, 7")
    A("s_add_u32 s52, s52, s53")
    A(f"s_add_u32 s52, s52, {WS_YT:#x}")
    A("s_mul_i32 s56, s48, 8320")
    A(f"s_add_u32 s56, s56, {B_PRE}")
    A("s_lshr_b32 s54, s50, 3")
    A("s_lshl_b32 s54, s54, 9")
    A("s_bfe_u32 s55, s50, 0x20001")
    A("s_lshl_b32 s55, s55, 3")
    A("s_add_u32 s54, s54, s55")
    A("s_and_b32 s55, s50, 1")
    A("s_lshl_b32 s55, s55, 1")
    A("s_add_u32 s54, s54, s55")
    A("v_and_b32 v5, 3, v2")
    A("v_lshrrev_b32 v6, 2, v2")
    A("v_lshl_add_u32 v5, v5, 5, v6")
    A("v_mul_u32_u24 v6, 1280, v5")
    A("v_lshlrev_b32 v7, 1, v6")
    A("v_lshl_add_u32 v6, v3, 4, v6")
    A("v_lshl_add_u32 v7, v3, 4, v7")
    A("s_mul_i32 s54, s54, 1280")
    A("s_lshl_b32 s53, s51, 7")
    A("s_lshl_b32 s55, s54, 1")
    A("s_add_u32 s54, s54, s53")
    A("s_add_u32 s55, s55, s53")
    A("s_add_u32 s55, s55, 1280")
    srd(A, SQ, S_BQ, NB_X)
    srd(A, SO, S_OUT, NB_OUT)
    QR, YR = 16, 48
    rows = [0, 4, 128, 132, 256, 260, 384, 388]
    for i in range(8):
        A(f"s_add_u32 s57, s54, {rows[i]*1280}")
        A(f"buffer_load_dwordx4 {vr(QR+4*i,4)}, v6, s[{SQ}:{SQ+3}], s57 offen{Opt.ntq}")
    A("s_mov_b32 s59, 0xffff0000")
    QF = 128
    A("s_waitcnt vmcnt(0)")
    for i in range(32):
        A(f"v_lshlrev_b32 v{QF+2*i}, 16, v{QR+i}")
        A(f"v_and_b32 v{QF+2*i+1}, s59, v{QR+i}")
    A("s_lshl_b32 s57, s98, 4")
    A("s_sub_u32 s58, s57, 16")
    A("v_min_u32 v12, 47, v1")
    A("v_add_u32 v12, s58, v12")
    A("v_max_i32 v12, 0, v12")
    A("v_min_u32 v12, 127, v12")
    A("v_lshlrev_b32 v12, 7, v12")
    A("s_add_u32 s57, s57, s99")
    A("s_lshl_b32 s57, s57, 7")
    A(f"s_add_u32 s57, s57, {F4-24*128:#x}")
    A(f"s_mov_b32 s58, {F4:#x}")
    Lx, Lq, Ld = A.newlabel("L_p7"), A.newlabel("L_pq"), A.newlabel("L_pd")
    A("s_cmp_ge_u32 s99, 24")
    A(f"s_cbranch_scc0 {Lq}")
    A("s_barrier")
    A("s_cmp_eq_u32 s48, 3")
    A(f"s_cbranch_scc0 {Lx}")
    set_flag(A, 8, "s57")
    poll(A, 14, 12, "s58", sleep=Opt.f4s)
    A.label(Lx)
    A("s_barrier")
    A(f"s_branch {Ld}")
    A.label(Lq)
    A("s_barrier")
    poll(A, 14, 12, "s58", sleep=Opt.f4s)
    A.label(Ld)
    if Opt.dB:
        A(f"s_sleep {Opt.dB}")
    stamp(A, 12)
    for i in range(8):
        A(f"v_xor_b32 v8, {16*i}, v4")
        A(f"s_add_u32 m0, s56, {1024*i}")
        A(f"buffer_load_dwordx4 v8, s[{SWS}:{SWS+3}], s52 offen{SC} lds")
        if i < 7:
            A(f"s_add_u32 s52, s52, {8*4096}")
    A("v_xor_b32 v8, v2, v3")
    A("v_lshlrev_b32 v8, 4, v8")
    A("v_lshl_add_u32 v8, v3, 10, v8")
    A("v_add_u32 v8, s56, v8")
    A("s_waitcnt vmcnt(0)")
    for c in range(8):
        A(f"ds_read_b128 {vr(YR+4*c,4)}, v8 offset:{128*c}")
    A("s_waitcnt lgkmcnt(0)")
    stamp(A, 13)
    YF, OUT = 80, 96
    for i in range(8):
        for c in range(8):
            if i & 1:
                A(f"v_and_b32 v{YF+c}, s59, v{YR+4*c+i//2}")
            else:
                A(f"v_lshlrev_b32 v{YF+c}, 16, v{YR+4*c+i//2}")
        for c in range(0, 8, 2):
            A(f"v_pk_mul_f32 {vr(YF+c,2)}, {vr(YF+c,2)}, {vr(QF+8*i+c,2)}")
        for k in range(4):
            A(f"v_cvt_pk_bf16_f32 v{OUT+4*i+k}, v{YF+2*k}, v{YF+2*k+1}")
        A(f"s_add_u32 s57, s55, {rows[i]*2560}")
        A(f"buffer_store_dwordx4 {vr(OUT+4*i,4)}, v7, s[{SO}:{SO+3}], s57 offen{Opt.oscb}")
    stamp(A, 14)


def build():
    A = Asm()
    k = NAME + "_kernel"
    A.raw(f".globl {k}")
    A.raw(".p2align 8")
    A.raw(f".type {k},@function")
    A.label(k)
    if Opt.hold:
        A("s_memrealtime s[64:65]")
    load_kernargs(A)
    if Opt.lite:
        A("s_memrealtime s[64:65]")
    elif not Opt.hp:
        if Opt.rt:
            for k_ in range(2, 15):
                A(f"s_mov_b32 s{64+2*k_}, 0")
            stamp(A, 0, True)
        else:
            stamp_init(A)
        if Opt.rt:
            stamp(A, 1)
    A("v_lshrrev_b32 v2, 6, v0")
    A("v_and_b32 v1, 63, v0")
    A("v_readfirstlane_b32 s100, v2")
    A("s_and_b32 s98, s2, 7")
    A("s_lshr_b32 s99, s2, 3")
    A("s_cmp_ge_u32 s2, 192")
    A("s_cbranch_scc1 L_b")
    A("s_and_b32 s49, s2, 3")
    A("s_lshl_b32 s49, s49, 2")
    A("s_and_b32 s50, s99, 3")
    A("s_add_u32 s49, s49, s50")
    A("s_bfe_u32 s52, s2, 0x10002")
    A("s_lshr_b32 s53, s2, 5")
    A("s_lshl_b32 s54, s52, 1")
    A("s_add_u32 s54, s54, s53")
    A("s_lshl_b32 s55, s52, 2")
    A("s_add_u32 s55, s55, s53")
    A("s_sub_u32 s55, s55, 2")
    A("s_cmp_lt_u32 s2, 64")
    A("s_cselect_b32 s50, s54, s55")
    A("s_cselect_b32 s51, 1, 0")
    A("s_and_b32 s48, s100, 3")
    A("s_cmp_ge_u32 s100, 4")
    A("s_cbranch_scc1 L_c")
    role_loader(A)
    A.label("L_c")
    role_compute(A)
    A.label("L_b")
    A("s_cmp_ge_u32 s2, 256")
    A("s_cbranch_scc1 L_exit")
    A("s_mov_b32 s48, s100")
    A("s_cmp_ge_u32 s48, 5")
    A("s_cbranch_scc1 L_help")
    role_pre(A)
    A("s_branch L_bconv")
    A.label("L_help")
    role_helper(A)
    A.label("L_bconv")
    role_conv(A)
    A("s_cmp_lt_u32 s48, 4")
    A("s_cbranch_scc1 L_bend")
    role_post(A)
    A.label("L_bend")
    end_wave(A, "b")
    A.label("L_exit")
    A("s_endpgm")
    A.label("L_code_end")
    head = ["; generated by gen/f15.py",
            "; @launch grid=(256,1,1) block=(512,1,1) lds=163840"]
    txt = "\n".join(head) + '\n.amdgcn_target "amdgcn-amd-amdhsa--gfx950"\n.text\n' + A.text()
    txt += f'''.section .rodata,"a"
.p2align 6
.amdhsa_kernel {k}
  .amdhsa_next_free_vgpr 256
  .amdhsa_next_free_sgpr 102
  .amdhsa_accum_offset 256
  .amdhsa_group_segment_fixed_size 0
  .amdhsa_kernarg_size 104
  .amdhsa_user_sgpr_count 2
  .amdhsa_user_sgpr_kernarg_segment_ptr 1
  .amdhsa_system_sgpr_workgroup_id_x 1
.end_amdhsa_kernel
'''
    return txt


if __name__ == "__main__":
    args = sys.argv[2:]
    Ctx.stamps = "stamps" in args
    Opt.rot = "norot" not in args
    Opt.codepf = "nocodepf" not in args
    for a in args:
        if a.startswith("probe="):
            Opt.probe = tuple(int(x) for x in a[6:].split(","))
        if a.startswith("holdwg="):
            Opt.holdwg = int(a[7:])
        if a.startswith("osc="):
            Opt.osc = a[4:].replace("_", " ")
        if a.startswith("oscb="):
            Opt.oscb = a[5:].replace("_", " ")
        if a.startswith("gpf="):
            Opt.gpf = int(a[4:])
        if a.startswith("gpfd="):
            Opt.gpfd = int(a[5:])
        if a.startswith("rotA="):
            Opt.rotA = int(a[5:], 16)
        if a.startswith("rotB="):
            Opt.rotB = int(a[5:], 16)
        if a == "fake16":
            Opt.fake16 = True
        if a.startswith("qdelay="):
            Opt.qdelay = int(a[7:])
        if a.startswith("bpos="):
            Opt.bpos = int(a[5:])
        if a == "lidle":
            Opt.lidle = True
        if a == "qwait":
            Opt.qwait = True
        if a == "nofwarm":
            Opt.fwarm = False
        if a == "noprog":
            Opt.prog = False
        if a == "dflag":
            Opt.dflag = True
        if a == "lite":
            Opt.lite = True
            Ctx.stamps = True
        if a.startswith("wos="):
            Opt.wos = int(a[4:])
        if a.startswith("R="):
            Opt.R = int(a[2:])
        if a.startswith("hdef="):
            Opt.hdef = int(a[5:])
        if a.startswith("gpf2="):
            Opt.gpf2 = int(a[5:])
        if a.startswith("oahead="):
            Opt.oahead = int(a[7:])
        if a.startswith("hpsel="):
            Opt.hpsel = a[6:]
        if a.startswith("bdelay="):
            Opt.bdelay = int(a[7:])
        if a.startswith("qdel="):
            Opt.qdel = int(a[5:])
        if a == "snake":
            Opt.snake = True
        if a == "wrot":
            Opt.wrot = True
        if a.startswith("wfirst="):
            Opt.wfirst = int(a[7:])
        if a.startswith("wearly="):
            Opt.wearly = int(a[7:])
        if a.startswith("fwat="):
            Opt.fwat = int(a[5:])
        if a.startswith("only="):
            Opt.only = [0, 1, 15] + [int(x) for x in a[5:].split(",")]
        if a.startswith("touch="):
            Opt.touch = int(a[6:])
        if a.startswith("tsh="):
            Opt.tsh = int(a[4:])
        for nm in ("ldw", "ldo", "ldp", "stw", "ntk", "nth", "ntq"):
            if a.startswith(nm + "="):
                setattr(Opt, nm, a[4:].replace("_", " "))
        if a.startswith("wback="):
            Opt.wback = int(a[6:])
        if a.startswith("wthr="):
            Opt.wthr = int(a[5:])
        if a.startswith("wstr="):
            Opt.wstr = int(a[5:])
        if a == "fullout":
            Opt.fullout = True
        if a == "noearly":
            Opt.noearly = True
        if a.startswith("lprio="):
            Opt.lprio = int(a[6:])
        if a.startswith("lprio0="):
            Opt.lprio0 = int(a[7:])
        if a.startswith("wmid="):
            Opt.wmid = int(a[5:])
        if a.startswith("pfw="):
            Opt.pfw = [int(c) for c in a[4:]]
            Opt.gpf2 = 0
        if a.startswith("pfx="):
            Opt.pfx = [int(c) for c in a[4:]]
            Opt.gpf2 = 0
        if a.startswith("pfm="):
            Opt.pfm = [int(c, 16) for c in a[4:]]
        if a.startswith("wbf="):
            Opt.wbf = int(a[4:])
        if a.startswith("qlate="):
            Opt.qlate = int(a[6:])
        if a.startswith("wpk="):
            Opt.wpk = int(a[4:])
        for nm in ("f0s", "tgs", "f2s", "f4s", "tagl"):
            if a.startswith(nm + "="):
                setattr(Opt, nm, int(a.split("=")[1]))
        if a.startswith("bwarm="):
            Opt.bwarm = int(a[6:])
        if a == "rt":
            Opt.rt = True
        if a.startswith("hp="):
            Opt.hp = int(a[3:])
            Ctx.stamps = True
        if a.startswith("hold="):
            Opt.hold = int(a[5:])
        if a.startswith("dA="):
            Opt.dA = int(a[3:])
        if a.startswith("dB="):
            Opt.dB = int(a[3:])
        if a == "nowomall":
            Opt.womall = False
        if a == "noppoll":
            Opt.ppoll = False
        if a.startswith("psleep="):
            Opt.psleep = int(a[7:])
        if a.startswith("wopf="):
            Opt.wopf = a[5:]
    for a in args:
        if a.startswith("LA="):
            Opt.LA = int(a[3:])
    open(sys.argv[1], "w").write(build())
```

```python
import sys
from asm import Asm, vr, ar, sr
from roles import (WS_PHIQ, WS_PART, WS_O, WS_KVT, WS_YT, WS_STAMP, WS_SIZE, S_X, S_W, S_WPHI, S_WO, S_BQ, S_BK, S_BV,
                   S_SH, S_SSK, S_SSD, S_OUT, S_DBG, S_WS, NB_X, NB_W, NB_WPHI, NB_WO, NB_SH, NB_SSK, NB_OUT, LOG2E,
                   Ctx, load_kernargs, srd, stamp, stamp_init, softmax20)

NAME = "concat_heads__linear_kernel_hedgehog__ssm_conv_h3__prompt"
WS_PQ = WS_PHIQ
WS_PART, WS_O, WS_KVT, WS_YT = 0x380000, 0x4C0000, 0x740000, 0xA40000
WS_FLAG = 0xF00000
F1, F2, F3, F0, F4 = (WS_FLAG + 128 * o for o in (0, 512, 1024, 1536, 1856))
FW = WS_FLAG + 128 * 2048
WS_WOT = 0x280000
WS_EPOCH = WS_FLAG + 128 * 2560 + 64
SWS = 44
SC = " sc1"
TAG = 30
SLOT = 36864
L_WP = 147456
L_Z = L_WP + 8192
L_SYNC = L_Z + 4096
L_V = 128 * 336
L_WOB = 69632
L_OT = 65536
CV_LDS = 8768
L_QCV = 3 * SLOT
B_PRE = 8 * CV_LDS
B_MB = B_PRE + 5 * 8320


class Opt:
    rot = True
    LA = 2
    ntk = ""
    nth = " nt"
    ntq = " nt"
    codepf = True
    wopf = "no"
    osc = " nt"
    oscb = " nt"
    hp = 0
    fww = 0
    f2all = 0
    f1all = 0
    lag = 0
    qpipe = 0
    pft = []
    npft = 0
    pqsync = 0
    p3 = 1
    pit = 4352
    bwarm = 2
    f0s = 4
    tgs = 8
    f2s = 4
    f4s = 4
    tagl = 0
    wpk = 22
    qlate = 1
    wbf = 6
    pfm = [2, 7, 15]
    pfw = []
    pfx = []
    wmid = 32
    lprio = 0
    lprio0 = 1
    stw = SC
    noearly = False
    fullout = True
    wthr = 0
    wstr = 40960
    wback = 0
    ldw = SC
    ldo = SC
    ldp = SC
    touch = 0
    tsh = 20
    only = None
    fwat = 9
    par = 0x32
    wearly = 0
    wrot = False
    wfirst = 26
    bdelay = 0
    qdel = 0
    snake = False
    hpsel = "kv"
    oahead = 5
    gpf2 = 3
    hdef = 1
    R = 10
    wos = 1
    lite = False
    dflag = False
    prog = True
    fwarm = True
    qwait = False
    lidle = False
    bpos = 4
    fake16 = False
    qdelay = 0
    rotA = 0x5050
    rotB = 0x550050
    gpf = 0
    gpfd = 99
    rt = False
    ppoll = False
    womall = True
    probe = None
    dA = 0
    hold = 0
    holdwg = -1
    dB = 0
    psleep = 2


_stamp0 = stamp


def stamp(A, k, real=False):
    if Opt.hp:
        if k == Opt.hp:
            A("s_memrealtime s[64:65]")
        return
    if Opt.lite and k not in (0, 15):
        return
    if Opt.only and k not in Opt.only:
        return
    _stamp0(A, k, real or Opt.rt)


def end_wave(A, holdable=False):
    if Opt.hp:
        if (holdable is True and Opt.hpsel in ("kv", "qw")) or (holdable == "b" and Opt.hpsel in ("b", "qs")):
            L = A.newlabel("L_hp")
            A("s_cmp_lt_u32 s99, 8")
            A("s_cbranch_scc1 L_exit" if Opt.hpsel in ("kv", "b") else "s_cbranch_scc0 L_exit")
            if holdable == "b":
                A("s_cmp_lt_u32 s100, 4")
                A("s_cbranch_scc1 L_exit")
            A.label(L)
            A("s_sleep 4")
            A("s_memrealtime s[66:67]")
            A("s_waitcnt lgkmcnt(0)")
            A("s_sub_u32 s66, s66, s64")
            A("s_cmp_lt_u32 s66, 2000")
            A(f"s_cbranch_scc1 {L}")
    elif Ctx.stamps:
        A("s_waitcnt vmcnt(0)")
        stamp(A, 15, True)
        A("s_waitcnt lgkmcnt(0)")
        A("s_mov_b64 exec, -1")
        A("v_mov_b32 v2, 0")
        for k in ((0, 15) if Opt.lite else range(16)):
            A(f"v_writelane_b32 v2, s{64+2*k}, {k}")
        A("s_lshl_b32 s62, s2, 3")
        A("s_add_u32 s62, s62, s100")
        A("s_lshl_b32 s62, s62, 6")
        A(f"s_add_u32 s62, s62, {WS_STAMP:#x}")
        A("v_lshlrev_b32 v1, 2, v1")
        A("s_mov_b64 exec, 0xffff")
        A(f"buffer_store_dword v2, v1, s[{SWS}:{SWS+3}], s62 offen")
        if Opt.probe:
            Lp = A.newlabel("L_probe")
            A(f"s_cmp_eq_u32 s2, {Opt.probe[0]}")
            A(f"s_cbranch_scc0 {Lp}")
            A(f"s_cmp_eq_u32 s100, {Opt.probe[1]}")
            A(f"s_cbranch_scc0 {Lp}")
            A("v_subrev_u32 v3, s66, v2")
            A("s_sub_u32 s62, s94, s64")
            A("v_writelane_b32 v3, s62, 15")
            A("v_cmp_ne_u32 vcc, 0, v2")
            A("v_cndmask_b32 v3, 0, v3, vcc")
            A("s_mov_b64 exec, 0xfffc")
            A(f"global_store_dword v1, v3, s[{S_DBG}:{S_DBG+1}]")
            A.label(Lp)
    A("s_endpgm")


def stampw(A, k):
    stamp(A, k)
    if Ctx.stamps:
        A("s_waitcnt lgkmcnt(0)")


def poll(A, vt, voff, soff, sleep=1):
    L, Ld = A.newlabel("L_poll"), A.newlabel("L_polld")
    A("s_movk_i32 s101, 0x4000")
    A.label(L)
    A(f"buffer_load_dwordx2 {vr(vt,2)}, v{voff}, s[{SWS}:{SWS+3}], {soff} offen{SC}")
    A("s_waitcnt vmcnt(0)")
    A(f"v_cmp_eq_u64 vcc, s[{TAG}:{TAG+1}], {vr(vt,2)}")
    A("s_cmp_eq_u64 vcc, -1")
    A(f"s_cbranch_scc1 {Ld}")
    A(f"s_sleep {sleep}")
    A("s_sub_u32 s101, s101, 1")
    A("s_cmp_eq_u32 s101, 0")
    A(f"s_cbranch_scc0 {L}")
    A("s_endpgm")
    A.label(Ld)


def ppoll(A, vt, voff, soff, sleep=1, depth=4):
    if not Opt.ppoll:
        return poll(A, vt, voff, soff, sleep=sleep)
    L, Ld = A.newlabel("L_pp"), A.newlabel("L_ppd")
    ld = lambda k: f"buffer_load_dwordx2 {vr(vt+2*k,2)}, v{voff}, s[{SWS}:{SWS+3}], {soff} offen{SC}"
    A("s_movk_i32 s101, 0x4000")
    for k in range(depth - 1):
        A(ld(k))
        A(f"s_sleep {sleep}")
    A.label(L)
    for k in range(depth):
        A(ld((k + depth - 1) % depth))
        A(f"s_waitcnt vmcnt({depth-1})")
        A(f"v_cmp_eq_u64 vcc, s[{TAG}:{TAG+1}], {vr(vt+2*k,2)}")
        A("s_cmp_eq_u64 vcc, -1")
        A(f"s_cbranch_scc1 {Ld}")
        A(f"s_sleep {sleep}")
    A("s_sub_u32 s101, s101, 1")
    A("s_cmp_eq_u32 s101, 0")
    A(f"s_cbranch_scc0 {L}")
    A("s_endpgm")
    A.label(Ld)


def set_flag(A, vt, soff):
    A(f"v_mov_b32 v{vt}, s{TAG}")
    A(f"v_mov_b32 v{vt+1}, s{TAG+1}")
    A(f"v_lshlrev_b32 v{vt+2}, 3, v1")
    A("s_waitcnt vmcnt(0)")
    A("s_mov_b64 exec, 0xffff")
    A(f"buffer_store_dwordx2 {vr(vt,2)}, v{vt+2}, s[{SWS}:{SWS+3}], {soff} offen{SC}")
    A("s_mov_b64 exec, -1")


def tag_issue(A):
    A(f"s_load_dwordx2 s[{TAG}:{TAG+1}], s[{S_DBG}:{S_DBG+1}], 0")


def tag_check(A, vt):
    L, Ld = A.newlabel("L_hs"), A.newlabel("L_hsd")
    A("s_waitcnt lgkmcnt(0)")
    A(f"s_cmp_lg_u32 s{TAG}, s{TAG+1}")
    A(f"s_cbranch_scc1 {Ld}")
    A("s_movk_i32 s101, 0x4000")
    A(f"v_mov_b32 v{vt+2}, 0")
    A.label(L)
    A(f"global_load_dwordx2 {vr(vt,2)}, v{vt+2}, s[{S_DBG}:{S_DBG+1}]{SC}")
    A("s_waitcnt vmcnt(0)")
    A(f"v_readfirstlane_b32 s{TAG}, v{vt}")
    A(f"v_readfirstlane_b32 s{TAG+1}, v{vt+1}")
    A("s_nop 3")
    A(f"s_cmp_lg_u32 s{TAG}, s{TAG+1}")
    A(f"s_cbranch_scc1 {Ld}")
    A(f"s_sleep {Opt.tgs}")
    A("s_sub_u32 s101, s101, 1")
    A("s_cmp_eq_u32 s101, 0")
    A(f"s_cbranch_scc0 {L}")
    A("s_endpgm")
    A.label(Ld)


def lds_arrive(A, vt, addr):
    A(f"v_mov_b32 v{vt}, {addr}")
    A(f"v_mov_b32 v{vt+1}, 1")
    A("s_waitcnt lgkmcnt(0)")
    A("s_mov_b64 exec, 1")
    A(f"ds_add_u32 v{vt}, v{vt+1}")
    A("s_mov_b64 exec, -1")


def lds_wait(A, vt, addr, n, sleep=0):
    L, Ld = A.newlabel("L_lw"), A.newlabel("L_lwd")
    if addr is not None:
        A(f"v_mov_b32 v{vt}, {addr}")
    A("s_mov_b32 s101, 0x40000")
    A.label(L)
    A(f"ds_read_b32 v{vt+1}, v{vt}")
    A("s_waitcnt lgkmcnt(0)")
    A(f"v_cmp_le_u32 vcc, {n}, v{vt+1}")
    A(f"s_cbranch_vccnz {Ld}")
    if sleep:
        A(f"s_sleep {sleep}")
    A("s_sub_u32 s101, s101, 1")
    A("s_cmp_eq_u32 s101, 0")
    A(f"s_cbranch_scc0 {L}")
    A("s_endpgm")
    A.label(Ld)


class Lgkm:
    def __init__(self, A):
        self.A, self.n, self.done, self.tag = A, 0, 0, {}

    def issue(self, text, tag=None):
        self.A(text)
        self.n += 1
        if tag is not None:
            self.tag[tag] = self.n

    def wait(self, *tags):
        need = max(self.tag[t] for t in tags)
        if need > self.done:
            self.A(f"s_waitcnt lgkmcnt({min(15, self.n - need)})")
            self.done = max(need, self.n - 15)

    def all(self):
        if self.done < self.n:
            self.A("s_waitcnt lgkmcnt(0)")
            self.done = self.n


def softmax_parts(X, E, F, T, PH):
    mx, mn = T, T + 2
    mm = [f"v_max3_f32 v{mx}, v{X}, v{X+1}, v{X+2}", f"v_min3_f32 v{mn}, v{X}, v{X+1}, v{X+2}"]
    for i in range(3, 19, 2):
        mm += [f"v_max3_f32 v{mx}, v{mx}, v{X+i}, v{X+i+1}", f"v_min3_f32 v{mn}, v{mn}, v{X+i}, v{X+i+1}"]
    mm += [f"v_max_f32 v{mx}, v{mx}, v{X+19}", f"v_min_f32 v{mn}, v{mn}, v{X+19}",
           f"v_mul_f32 v{mx}, s60, v{mx}", f"v_mul_f32 v{mn}, s60, v{mn}"]
    fm, ex = [], []
    for i in range(0, 20, 2):
        fm.append(f"v_pk_fma_f32 {vr(E+i,2)}, {vr(X+i,2)}, s[60:61], {vr(mx,2)} op_sel_hi:[1,1,0] neg_lo:[0,0,1] neg_hi:[0,0,1]")
        fm.append(f"v_pk_fma_f32 {vr(F+i,2)}, {vr(X+i,2)}, s[60:61], {vr(mn,2)} op_sel_hi:[1,1,0] neg_lo:[1,0,0] neg_hi:[1,0,0]")
    for i in range(20):
        ex += [f"v_exp_f32 v{E+i}, v{E+i}", f"v_exp_f32 v{F+i}, v{F+i}"]
    se, sf = T + 4, T + 6
    sm = [f"v_pk_add_f32 {vr(se,2)}, {vr(E,2)}, {vr(E+2,2)}", f"v_pk_add_f32 {vr(sf,2)}, {vr(F,2)}, {vr(F+2,2)}"]
    for i in range(4, 20, 2):
        sm += [f"v_pk_add_f32 {vr(se,2)}, {vr(se,2)}, {vr(E+i,2)}", f"v_pk_add_f32 {vr(sf,2)}, {vr(sf,2)}, {vr(F+i,2)}"]
    fin = [f"v_add_f32 v{se}, v{se}, v{se+1}", f"v_add_f32 v{sf}, v{sf}, v{sf+1}",
           f"v_rcp_f32 v{se}, v{se}", f"v_rcp_f32 v{sf}, v{sf}"]
    tail = []
    for j in range(20):
        R, s_ = (E + 2 * j, se) if j < 10 else (F + 2 * (j - 10), sf)
        tail.append((f"v_pk_mul_f32 {vr(R,2)}, {vr(R,2)}, {vr(s_,2)} op_sel_hi:[1,0]", f"v_cvt_pk_bf16_f32 v{PH+j}, v{R}, v{R+1}"))
    return mm, fm, ex, sm, fin, tail


def merge(main, extra, every, start=0):
    out, extra = [], list(extra)
    for i, x in enumerate(main):
        out.append(x)
        if extra and i >= start and (i - start) % every == every - 1:
            out.append(extra.pop(0))
    return out + extra


def touch(A, v, sd, shift):
    A(f"v_lshlrev_b32 v{v}, {shift}, v1")
    A(f"buffer_load_dword v{v+1}, v{v}, s[{SWS}:{SWS+3}], 0 offen")
    srd(A, sd, S_OUT, NB_OUT)
    A(f"buffer_load_dword v{v+2}, v{v}, s[{sd}:{sd+3}], 0 offen")


def o_index(A):
    A("s_sub_u32 s63, s99, 8")
    A("s_lshr_b32 s62, s63, 2")
    A("s_lshl_b32 s3, s98, 2")
    A("s_add_u32 s62, s62, s3")
    A("s_and_b32 s63, s63, 3")
    A("s_lshl_b32 s63, s63, 2")
    A("s_add_u32 s63, s63, s48")


WR = 64


def wo_index(A):
    A("s_lshr_b32 s50, s99, 2")
    A("s_sub_u32 s50, s50, 1")
    A("s_max_i32 s50, s50, 0")
    A("s_lshl_b32 s50, s50, 2")
    A("s_add_u32 s50, s50, s48")
    A("s_lshl_b32 s52, s50, 6")
    A(f"s_mul_i32 s51, s50, {Opt.wstr}")
    A(f"s_add_u32 s51, s51, {WS_WOT:#x}")
    A("s_lshl_b32 s54, s50, 10")
    A(f"s_add_u32 s54, s54, {FW:#x}")
    A("v_lshlrev_b32 v18, 4, v1")


def wload(A, f0, f1):
    for f in range(f0, f1):
        if Opt.wthr and f >= Opt.wbf:
            A(f"s_waitcnt vmcnt({Opt.wthr-1})")
        if Opt.only and f in (14, 22, 30, 38):
            stamp(A, {14: 2, 22: 3, 30: 4, 38: 5}[f])
        if f % 4 == 0 or f == f0:
            A(f"s_add_u32 s53, s51, {4096*(f//4)}")
        A(f"buffer_load_dwordx4 {vr(WR+4*f,4)}, v18, s[{SWS}:{SWS+3}], s53 offen offset:{1024*(f&3)}{Opt.ldw}")


def role_loader(A):
    SX, SW, SP = 32, 36, 40
    VX, VW = 24, 28
    t0, t1, t2, t3 = 11, 12, 13, 14
    A(f"s_setprio {Opt.lprio0}")
    A(f"v_lshrrev_b32 v{t0}, 3, v1")
    A(f"v_mul_u32_u24 v{t0}, 1280, v{t0}")
    A(f"v_lshrrev_b32 v{t1}, 4, v1")
    A(f"v_and_b32 v{t2}, 7, v1")
    A(f"v_xor_b32 v{t1}, v{t1}, v{t2}")
    A(f"v_xor_b32 v{t2}, 4, v{t1}")
    A(f"v_lshl_add_u32 v{VX}, v{t1}, 4, v{t0}")
    A(f"v_lshl_add_u32 v{VX+1}, v{t2}, 4, v{t0}")
    A(f"v_add_u32 v{VX+2}, {2*(8*1280-1024)}, v{VX}")
    A(f"v_add_u32 v{VX+3}, {3*(8*1280-1024)}, v{VX+1}")
    A(f"v_add_u32 v{VX+1}, {8*1280-1024}, v{VX+1}")
    A("s_lshl_b32 s60, s49, 2")
    A("s_add_u32 s60, s60, s48")
    A(f"s_mul_i32 s60, s60, {32*1280}")
    A("s_lshr_b32 s30, s99, 2")
    A(f"s_lshr_b32 s30, {Opt.par:#x}, s30")
    A("s_xor_b32 s30, s30, s49")
    A("s_and_b32 s30, s30, 1")
    A("s_mul_i32 s31, s30, 640")
    A("s_add_u32 s60, s60, s31")
    A("s_lshl_b32 s62, s48, 12")
    A("s_mov_b32 m0, s62")
    A(f"s_mov_b32 s{SX+2}, {NB_X:#x}")
    A(f"s_mov_b32 s{SX+3}, 0x20000")
    A("s_waitcnt lgkmcnt(0)")
    A(f"s_mov_b64 s[{SX}:{SX+1}], s[{S_X}:{S_X+1}]")

    def dma_x(s):
        if s:
            A(f"s_add_u32 m0, s62, {(s % 3) * SLOT}")
        for i in range(4):
            A(f"buffer_load_dwordx4 v{VX+i}, s[{SX}:{SX+3}], s60 offen offset:{1024*i} lds")

    def dma_w(s):
        sl = (s % 3) * SLOT
        A(f"s_add_u32 m0, s63, {sl}")
        for i in range(4):
            A(f"buffer_load_dwordx4 v{VW+i}, s[{SW}:{SW+3}], s61 offen offset:{1024*i} lds")
        A(f"s_add_u32 m0, s63, {sl+4096}")
        A(f"buffer_load_dwordx4 v{VW+4}, s[{SW}:{SW+3}], s61 offen lds")
        if s < 9:
            if s == 4:
                A("s_add_u32 s60, s60, s97")
                A("s_add_u32 s61, s61, s96")
            else:
                A("s_add_u32 s60, s60, 128")
                A(f"s_add_u32 s61, s61, {64*3840}")

    dma_x(0)
    A("s_cmp_eq_u32 s51, 0")
    A("s_cselect_b32 s56, 1120, 0")
    A("s_add_u32 s58, s51, 1")
    A(f"v_xor_b32 v15, s58, v1")
    A(f"v_cmp_gt_u32 vcc, 32, v1")
    A("s_movk_i32 s57, 3520")
    A(f"v_cndmask_b32 v16, v15, v1, vcc")
    for i in range(5):
        src = (1, 1, 16, 15, 15)[i]
        A(f"v_add_u32 v{t2}, {64*i}, v{src}")
        A(f"v_mul_u32_u24 v{t2}, 6554, v{t2}")
        A(f"v_lshlrev_b32 v{t3}, 4, v{src}")
        A(f"v_lshrrev_b32 v{t0}, 17, v{t2}")
        A(f"v_bfe_u32 v{t1}, v{t2}, 16, 1")
        A(f"v_mad_u32_u24 v{t0}, v{t0}, s57, v{t3}")
        A(f"v_mad_u32_u24 v{VW+i}, v{t1}, s56, v{t0}")
    A(f"v_lshlrev_b32 v{t3}, 4, v1")
    A(f"v_add_u32 v{VW+4}, 4096, v{VW+4}")
    A(f"s_mul_i32 s61, s48, {16*3840}")
    A("s_mul_i32 s57, s50, 160")
    A("s_add_u32 s58, s57, 1280")
    A("s_lshl_b32 s57, s57, 1")
    A("s_cmp_eq_u32 s51, 0")
    A("s_cselect_b32 s57, s58, s57")
    A("s_add_u32 s61, s61, s57")
    A(f"s_mul_i32 s96, s30, {5*64*3840}")
    A("s_add_u32 s61, s61, s96")
    A("s_mul_i32 s63, s48, 5120")
    A("s_add_u32 s63, s63, 16384")
    srd(A, SW, S_W, NB_W)
    dma_w(0)
    stamp(A, 2)
    A("s_lshl_b32 s96, s96, 1")
    A(f"s_sub_u32 s96, {64*3840}, s96")
    A("s_lshl_b32 s97, s31, 1")
    A("s_sub_u32 s97, 128, s97")
    A("s_mul_i32 s57, s50, 3200")
    A("s_lshl_b32 s57, s57, s51")
    A("s_lshl_b32 s58, s48, 11")
    A("s_add_u32 s57, s57, s58")
    srd(A, SP, S_WPHI, NB_WPHI)
    A(f"s_add_u32 m0, s58, {L_WP}")
    A(f"buffer_load_dwordx4 v{t3}, s[{SP}:{SP+3}], s57 offen lds")
    A(f"buffer_load_dwordx4 v{t3}, s[{SP}:{SP+3}], s57 offen offset:1024 lds")
    srd(A, SWS, S_WS, WS_SIZE)
    Lh = A.newlabel("L_noh")
    A("s_cmp_eq_u32 s51, 0")
    A(f"s_cbranch_scc1 {Lh}")
    A("s_mul_i32 s49, s98, 80")
    A("s_lshl_b32 s50, s99, 2")
    A("s_add_u32 s49, s49, s50")
    A("s_add_u32 s49, s49, s48")
    A("s_add_u32 s49, s49, 48")
    A(f"s_mul_i32 s56, s48, {CV_LDS}")
    A(f"s_add_u32 s56, s56, {L_QCV}")
    A("s_lshl_b32 s50, s49, 12")
    A.label(Lh)
    assert Opt.LA == 2
    issued = 0
    for s in range(10):
        while issued < min(s + Opt.LA - 1, 9):
            issued += 1
            dma_x(issued)
            dma_w(issued)
        if s == 0:
            Ls = A.newlabel("L_nosetup")
            A("s_cmp_ge_u32 s99, 8")
            A(f"s_cbranch_scc1 {Ls}")
            conv_setup(A)
            f0_lines(A, 49, 49, 12)
            A.label(Ls)
        if s == 6:
            tag_issue(A)
        if s == Opt.fwat:
            Lf = A.newlabel("L_nofw")
            A("s_cmp_lt_u32 s99, 8")
            A(f"s_cbranch_scc1 {Lf}")
            wo_index(A)
            A(f"s_add_u32 s42, s{S_WS}, s54")
            A(f"s_addc_u32 s43, s{S_WS+1}, 0")
            for k in range(8):
                A(f"s_load_dwordx2 s[{4+2*k}:{5+2*k}], s[42:43], {128*k}")
            A.label(Lf)
        def fast_check():
            A("s_cmp_lt_u32 s99, 8")
            A("s_cbranch_scc1 L_q9")
            A("s_waitcnt lgkmcnt(0)")
            A("s_mov_b32 s3, 0")
            for k in range(8):
                A(f"s_cmp_eq_u64 s[{4+2*k}:{5+2*k}], s[{TAG}:{TAG+1}]")
                A("s_addc_u32 s3, s3, 0")
            A(f"s_cmp_lg_u32 s{TAG}, s{TAG+1}")
            A("s_addc_u32 s3, s3, 0")
            A(f"s_cmp_eq_u32 s3, {19 if Opt.noearly else 9}")
            A("s_cbranch_scc0 L_q9")

        if s == 9 and Opt.wearly:
            fast_check()
            wload(A, 0, Opt.wearly)
            A(f"s_waitcnt vmcnt({Opt.wearly})")
            A("s_barrier")
            stamp(A, 6)
            wload(A, Opt.wearly, Opt.wbf)
            A("s_barrier")
            A("s_branch L_wrest")
            A.label("L_q9")
        A(f"s_waitcnt vmcnt({9*(issued-s)})")
        A("s_barrier")
        if s in (0, 3, 6, 9):
            stamp(A, 3 + s // 3)
        if s == 9 and not Opt.wearly:
            fast_check()
            wload(A, 0, Opt.wbf)
            A("s_barrier")
            A("s_branch L_wrest")
            A.label("L_q9")
    A("s_setprio 0")
    A("s_cmp_lt_u32 s99, 8")
    A("s_cbranch_scc1 L_conv")
    role_wo(A)


def role_wo(A):
    SO, SWO = 32, 36
    A.label("L_wo")
    A(f"s_setprio {Opt.lprio}")
    wo_index(A)
    A("v_lshrrev_b32 v15, 3, v1")
    A("v_lshlrev_b32 v15, 7, v15")
    A("v_lshlrev_b32 v18, 4, v1")
    tag_check(A, 20)
    A(f"buffer_load_dwordx2 v[16:17], v15, s[{SWS}:{SWS+3}], s54 offen{SC}")
    Lj, Lk = A.newlabel("L_woj"), A.newlabel("L_wok")
    A("s_cmp_lt_u32 s99, 8")
    A(f"s_cbranch_scc1 {Lj}")
    A("s_barrier")
    A.label(Lj)
    A("s_waitcnt vmcnt(0)")
    A(f"v_cmp_eq_u64 vcc, s[{TAG}:{TAG+1}], v[16:17]")
    A("s_cmp_eq_u64 vcc, -1")
    A(f"s_cbranch_scc1 {Lk}")
    poll(A, 16, 15, "s54", sleep=8)
    A.label(Lk)

    wload(A, 0, Opt.wbf)
    A.label("L_wrest")
    A(f"s_setprio {Opt.lprio}")
    wload(A, Opt.wbf, Opt.wpk if Opt.wpk else Opt.wfirst)
    A("v_lshrrev_b32 v2, 2, v1")
    A("v_and_b32 v3, 3, v1")
    A("s_mul_i32 s58, s48, 20480")
    A(f"s_add_u32 s58, s58, {L_WOB}")
    A("v_lshrrev_b32 v11, 5, v1")
    A("v_and_b32 v9, 31, v1")
    A("v_lshrrev_b32 v15, 4, v1")
    A("v_lshlrev_b32 v15, 7, v15")
    o_index(A)
    Lq1, Lq2 = A.newlabel("L_woq"), A.newlabel("L_woq")
    A("s_cmp_lt_u32 s99, 8")
    A(f"s_cbranch_scc1 {Lq2}")
    A("s_lshr_b32 s54, s62, 2")
    A("s_lshl_b32 s54, s54, 4")
    A("s_add_u32 s54, s54, s63")
    A("s_lshl_b32 s54, s54, 8")
    if Opt.f2all:
        A("s_and_b32 s54, s54, 0xfffffc00")
        A("v_lshrrev_b32 v19, 3, v1")
        A("v_lshlrev_b32 v19, 7, v19")
    else:
        A("v_lshlrev_b32 v19, 7, v11")
    A(f"s_add_u32 s54, s54, {F2:#x}")
    A("s_lshl_b32 s55, s62, 4")
    A("s_add_u32 s55, s55, s63")
    A("s_mul_i32 s55, s55, 5120")

    def pqdma():
        A("s_mov_b32 m0, s58")
        A("s_add_u32 s56, s55, 4096")
        for i in range(4):
            A(f"buffer_load_dwordx4 v18, s[{SWS}:{SWS+3}], s55 offen offset:{1024*i}{SC} lds")
        A("s_add_u32 m0, s58, 4096")
        A(f"buffer_load_dwordx4 v18, s[{SWS}:{SWS+3}], s56 offen{SC} lds")

    Lslow, Ljn = A.newlabel("L_pqs"), A.newlabel("L_pqj")
    if Opt.wpk:
        A(f"buffer_load_dwordx2 v[16:17], v19, s[{SWS}:{SWS+3}], s54 offen{SC}")
        wload(A, Opt.wpk, Opt.wpk + 4)
        A("s_waitcnt vmcnt(4)")
        A(f"v_cmp_eq_u64 vcc, s[{TAG}:{TAG+1}], v[16:17]")
        A("s_cmp_eq_u64 vcc, -1")
        A(f"s_cbranch_scc0 {Lslow}")
        pqdma()
        wload(A, Opt.wpk + 4, Opt.wfirst)
        A(f"s_waitcnt vmcnt({Opt.wfirst - Opt.wpk - 4})")
        A(f"s_branch {Ljn}")
        A.label(Lslow)
        wload(A, Opt.wpk + 4, Opt.wfirst)
    if Opt.lag:
        stamp(A, 4)
    poll(A, 16, 19, "s54", sleep=Opt.f2s)
    if Opt.lag:
        stamp(A, 5)
    pqdma()
    A("s_waitcnt vmcnt(0)")
    A.label(Ljn)
    A("s_lshl_b32 s54, s48, 2")
    A(f"s_add_u32 s54, s54, {L_SYNC+16}")
    lds_arrive(A, 16, "s54")
    if Opt.pqsync:
        lds_arrive(A, 16, L_SYNC + 4)
    stamp(A, 14)
    A("s_lshl_b32 s54, s62, 2")
    A("s_add_u32 s54, s54, s48")
    A("s_mul_i32 s55, s54, 10240")
    A(f"s_add_u32 s55, s55, {WS_PART:#x}")
    A("s_lshl_b32 s54, s54, 9")
    if Opt.f1all:
        A("s_and_b32 s54, s54, 0xfffff800")
        A("v_lshrrev_b32 v15, 2, v1")
        A("v_lshlrev_b32 v15, 7, v15")
    A(f"s_add_u32 s54, s54, {F1:#x}")
    A("v_min_u32 v19, 20, v9")
    A("v_and_b32 v20, 32, v1")
    A("v_add_u32 v19, v19, v20")
    A("v_lshlrev_b32 v20, 3, v19")
    A("v_lshlrev_b32 v19, 4, v19")
    A("s_mul_i32 s57, s48, 5120")
    A("v_add_u32 v21, s57, v18")
    A("s_mov_b32 s59, 0xffff0000")
    lds_wait(A, 16, L_SYNC + 4, 8 if Opt.pqsync else 4, sleep=2)
    stamp(A, 7)
    wload(A, Opt.wfirst, max(Opt.wmid, Opt.wfirst))
    PR = [24, 34, 44, 54]
    SM, TP = 224, 244

    def pload(p):
        so = "s55" if p < 1 else f"s{40+p}"
        A(f"buffer_load_dwordx4 {vr(PR[p],4)}, v19, s[{SWS}:{SWS+3}], {so} offen{Opt.ldp}")
        A(f"buffer_load_dwordx4 {vr(PR[p]+4,4)}, v19, s[{SWS}:{SWS+3}], {so} offen offset:1024{Opt.ldp}")
        A(f"buffer_load_dwordx2 {vr(PR[p]+8,2)}, v20, s[{SWS}:{SWS+3}], {so} offen offset:2048{Opt.ldp}")

    for p in (1, 2, 3):
        A(f"s_add_u32 s{40+p}, s55, {2560*p}")
    if Opt.prog:
        L, Ld = A.newlabel("L_pg"), A.newlabel("L_pgd")
        A("s_mov_b64 s[56:57], 0")
        A("s_movk_i32 s101, 0x4000")
        A.label(L)
        A(f"buffer_load_dwordx2 v[16:17], v15, s[{SWS}:{SWS+3}], s54 offen{SC}")
        A("s_waitcnt vmcnt(0)")
        A(f"v_cmp_eq_u64 vcc, s[{TAG}:{TAG+1}], v[16:17]")
        A("s_andn2_b64 s[50:51], vcc, s[56:57]" if False else "s_andn2_b64 s[96:97], vcc, s[56:57]")
        A("s_mov_b64 s[56:57], vcc")
        for p in range(4):
            Ls = A.newlabel("L_pgs")
            A(f"s_bitcmp1_b64 s[96:97], {16*p}")
            A(f"s_cbranch_scc0 {Ls}")
            pload(p)
            A.label(Ls)
        A("s_cmp_eq_u64 s[56:57], -1")
        A(f"s_cbranch_scc1 {Ld}")
        A(f"s_sleep {Opt.psleep}")
        A("s_sub_u32 s101, s101, 1")
        A(f"s_cbranch_scc0 {L}")
        A("s_endpgm")
        A.label(Ld)
        stamp(A, 12)
        A("s_waitcnt vmcnt(0)")
    else:
        ppoll(A, 244, 15, "s54", sleep=Opt.psleep)
        stamp(A, 12)
        for p in range(4):
            pload(p)
    A("s_setprio 3")
    for p in range(4):
        A(f"s_waitcnt vmcnt({9-3*p})")
        for i in range(10):
            d = SM + 2 * i if p == 0 else TP + 2 * (i % 5)
            A(f"v_lshlrev_b32 v{d}, 16, v{PR[p]+i}")
            A(f"v_and_b32 v{d+1}, s59, v{PR[p]+i}")
            if p:
                A(f"v_pk_add_f32 {vr(SM+2*i,2)}, {vr(SM+2*i,2)}, {vr(d,2)}")
    for q in range(5):
        A(f"ds_write_b128 v21, {vr(SM+4*q,4)} offset:{1024*q}")
    lds_arrive(A, 16, L_SYNC + 8)
    A("s_setprio 0")
    stamp(A, 13)
    if True:
        Lq3 = A.newlabel("L_woq")
        A(f"s_branch {Lq3}")
    A.label(Lq2)
    if True:
        wload(A, Opt.wpk if Opt.wpk else Opt.wfirst, max(Opt.wmid, Opt.wfirst))
        A.label(Lq3)
    wload(A, max(Opt.wmid, Opt.wfirst), 40)
    srd(A, SO, S_OUT, NB_OUT)
    A("s_and_b32 s54, s99, 3")
    A("s_lshl_b32 s55, s98, 2")
    A("s_add_u32 s54, s54, s55")
    A("s_lshr_b32 s55, s54, 1")
    A("s_lshl_b32 s55, s55, 12")
    A(f"s_add_u32 s55, s55, {F3:#x}")
    A("s_lshl_b32 s57, s48, 10")
    A("s_add_u32 s55, s55, s57")
    A("v_lshrrev_b32 v15, 3, v1")
    A("v_lshlrev_b32 v15, 7, v15")
    A("s_mul_i32 s57, s54, 81920")
    A(f"s_add_u32 s57, s57, {WS_O:#x}")
    A("s_lshr_b32 s58, s48, 1")
    A("s_mul_i32 s58, s58, 40960")
    A("s_and_b32 s59, s48, 1")
    A("s_lshl_b32 s59, s59, 12")
    A("s_add_u32 s58, s58, s59")
    A("s_add_u32 s57, s57, s58")
    A(f"s_add_u32 s58, s58, {L_OT}")
    A("v_mov_b32 v5, v18")
    A(f"v_add_u32 v6, {L_OT}, v5")
    A(f"v_add_u32 v7, {L_OT+40960}, v5")
    A("v_lshlrev_b32 v10, 3, v9")
    A("v_lshl_add_u32 v10, v11, 9, v10")
    A(f"v_add_u32 v10, {L_OT+32768}, v10")
    if Opt.fullout:
        A("s_lshl_b32 s56, s48, 6")
        A("s_waitcnt lgkmcnt(0)")
        A("v_mul_u32_u24 v12, 272, v9")
        A("v_lshl_add_u32 v12, v11, 5, v12")
        A("v_add_u32 v12, s56, v12")
        A("v_lshrrev_b32 v2, 4, v1")
        A("v_and_b32 v3, 15, v1")
        A("v_mul_u32_u24 v13, 272, v2")
        A("v_lshl_add_u32 v13, v3, 4, v13")
        A(f"s_mul_i32 s59, s48, {16*272}")
        A("v_add_u32 v13, s59, v13")
        A("v_mul_u32_u24 v14, 2560, v2")
        A("v_lshl_add_u32 v14, v3, 4, v14")
        A("s_lshl_b32 s59, s54, 2")
        A("s_add_u32 s59, s59, s48")
        A(f"s_mul_i32 s59, s59, {16*2560}")
        A("s_add_u32 s59, s59, s52")
        A("s_sub_u32 s59, s59, s56")
    else:
        A("s_mul_i32 s56, s48, 5120")
        A("s_waitcnt lgkmcnt(0)")
        A("v_mul_u32_u24 v12, 80, v9")
        A("v_lshl_add_u32 v12, v11, 5, v12")
        A("v_add_u32 v12, s56, v12")
        A("v_mul_u32_u24 v13, 80, v2")
        A("v_lshl_add_u32 v13, v3, 4, v13")
        A("v_add_u32 v13, s56, v13")
        A("v_mul_u32_u24 v14, 2560, v2")
        A("v_lshl_add_u32 v14, v3, 4, v14")
        A(f"s_mul_i32 s59, s54, {64*2560}")
        A("s_add_u32 s59, s59, s52")
    lds_wait(A, 16, L_SYNC + 12, 4, sleep=2)
    stamp(A, 8)
    ppoll(A, 48, 15, "s55", sleep=Opt.psleep)
    A("s_barrier")
    stamp(A, 9)
    def oissue(k):
        A(f"s_add_u32 m0, s58, {8192*k}")
        for i in range(4):
            A(f"buffer_load_dwordx4 v5, s[{SWS}:{SWS+3}], s57 offen offset:{1024*i}{Opt.ldo} lds")
        if k < 4:
            A("s_add_u32 s57, s57, 8192")

    for k in range(Opt.oahead):
        oissue(k)
    if Ctx.stamps:
        A("s_waitcnt lgkmcnt(0)")
    ACC = (16, 32)
    OFB = 224
    T = Lgkm(A)

    def rdx(f):
        if f % 8 == 0:
            k = f // 8
            A(f"s_waitcnt vmcnt({4*(min(k+Opt.oahead,5)-k-1)})")
            A("s_barrier")
            if k + Opt.oahead < 5:
                oissue(k + Opt.oahead)
        for t in range(2):
            d = OFB + 4 * ((2 * f + t) % 8)
            if f < 32:
                T.issue(f"ds_read_b128 {vr(d,4)}, v{6+t} offset:{1024*f}", (f, t))
            else:
                a = f - 32
                T.issue(f"ds_read_b64 {vr(d,2)}, v10 offset:{40960*t + 1024*a}")
                T.issue(f"ds_read_b64 {vr(d+2,2)}, v10 offset:{40960*t + 1024*a + 256}", (f, t))

    for f in range(3):
        rdx(f)
    for f in range(40):
        for t in range(2):
            T.wait((f, t))
            c = vr(ACC[t], 16) if f else "0"
            A(f"v_mfma_f32_32x32x16_bf16 {vr(ACC[t],16)}, {vr(WR+4*f,4)}, {vr(OFB+4*((2*f+t)%8),4)}, {c}")
            if t == 0 and f + 3 < 40:
                rdx(f + 3)
    stamp(A, 10)
    for t in range(2):
        for i in range(8):
            A(f"v_cvt_pk_bf16_f32 v{48+8*t+i}, v{ACC[t]+2*i}, v{ACC[t]+2*i+1}")
        for i in range(2):
            A(f"ds_write_b128 v12, {vr(48+8*t+4*i,4)} offset:{(32*272 if Opt.fullout else 2560)*t+16*i}")
    A("s_waitcnt lgkmcnt(0)")
    if Opt.fullout:
        A("s_barrier")
    for i in range(4):
        A(f"ds_read_b128 {vr(64+4*i,4)}, v13 offset:{(4*272 if Opt.fullout else 1280)*i}")
    for i in range(4):
        A(f"s_waitcnt lgkmcnt({3-i})")
        A(f"buffer_store_dwordx4 {vr(64+4*i,4)}, v14, s[{SO}:{SO+3}], s59 offen{Opt.osc}")
        if i < 3:
            A(f"s_add_u32 s59, s59, {(4 if Opt.fullout else 16)*2560}")
    stamp(A, 11)
    end_wave(A, True)


def role_compute(A):
    ACC = 16
    WF = (96, 116)
    XF = (136, 152)
    XA, WA, AD = 168, 172, 182
    t0, t1, t2, t3 = 11, 12, 13, 14
    for i in range(80):
        A(f"v_mov_b32 v{ACC+i}, 0")
    A(f"v_and_b32 v{t0}, 255, v0")
    A(f"v_lshlrev_b32 v{t0}, 4, v{t0}")
    A(f"v_add_u32 v{t0}, {L_Z}, v{t0}")
    A(f"ds_write_b128 v{t0}, {vr(ACC,4)}")
    A(f"ds_write_b128 v{t0}, {vr(ACC,4)} offset:64")
    A("s_lshr_b32 s52, s48, 1")
    A("s_and_b32 s53, s48, 1")
    S16, G4, R4, C4 = 183, 184, 185, 186
    A(f"v_and_b32 v{S16}, 15, v1")
    A(f"v_lshrrev_b32 v{G4}, 4, v1")
    A(f"v_bfe_u32 v{R4}, v1, 2, 2")
    A(f"v_and_b32 v{C4}, 3, v1")
    A(f"v_bfe_u32 v{t2}, v1, 1, 3")
    A(f"v_xor_b32 v{t2}, v{t2}, v{G4}")
    A(f"v_lshlrev_b32 v{t2}, 4, v{t2}")
    A(f"v_lshl_add_u32 v{t2}, v{S16}, 7, v{t2}")
    A("s_lshl_b32 s54, s52, 13")
    A(f"v_add_u32 v{XA}, s54, v{t2}")
    A(f"v_xor_b32 v{XA+1}, 64, v{XA}")
    A(f"v_add_u32 v{XA+2}, {2*SLOT}, v{XA}")
    A(f"v_add_u32 v{XA+3}, {2*SLOT}, v{XA+1}")
    A("s_cmp_eq_u32 s51, 0")
    A("s_cselect_b32 s55, 80, 0")
    A("s_mul_i32 s56, s53, 80")
    A("s_lshl_b32 s56, s56, s51")
    A(f"v_lshrrev_b32 v{t0}, 1, v{C4}")
    A(f"v_mul_u32_u24 v{t0}, s55, v{t0}")
    A(f"v_mad_u32_u24 v{t0}, v{C4}, 40, v{t0}")
    A(f"v_add_u32 v{t0}, s56, v{t0}")
    A(f"v_and_b32 v{t1}, 1, v{G4}")
    A("s_add_u32 s57, s51, 4")
    A(f"v_lshlrev_b32 v{t1}, s57, v{t1}")
    A(f"v_lshl_add_u32 v{t2}, v{G4}, 3, v{R4}")
    A(f"v_mul_u32_u24 v{t2}, 320, v{t2}")
    A(f"v_add_u32 v{t2}, 16384, v{t2}")
    for t in range(5):
        A(f"v_add_u32 v{t3}, {8*t}, v{t0}")
        A(f"v_xor_b32 v{t3}, v{t3}, v{t1}")
        A(f"v_add_u32 v{WA+t}, v{t2}, v{t3}")
        A(f"v_add_u32 v{WA+5+t}, {2*SLOT}, v{WA+t}")
    HD = 187
    A("s_cmp_eq_u32 s51, 0")
    A("s_cselect_b32 s55, 1, 3")
    A("s_add_u32 s57, s51, 1")
    A("s_lshl_b32 s56, s53, s57")
    A(f"v_and_b32 v{HD}, s55, v{G4}")
    A(f"v_add_u32 v{HD}, s56, v{HD}")
    A(f"v_mul_u32_u24 v{t0}, 800, v{HD}")
    A(f"v_mad_u32_u24 v{t0}, v{R4}, 40, v{t0}")
    A(f"v_add_u32 v{t0}, {L_WP}, v{t0}")
    A(f"v_mov_b32 v{t1}, {L_Z}")
    A(f"v_cmp_eq_u32 vcc, v{C4}, v{G4}")
    A(f"v_cndmask_b32 v{AD}, v{t1}, v{t0}, vcc")
    A(f"v_lshrrev_b32 v{t0}, 5, v1")
    A(f"v_lshl_add_u32 v{t0}, v{t0}, 4, v{S16}")
    A("s_lshl_b32 s57, s52, 6")
    A(f"v_add_u32 v{t0}, s57, v{t0}")
    A(f"v_mul_u32_u24 v{t1}, 208, v{t0}")
    A(f"v_mad_u32_u24 v2, v{HD}, 48, v{t1}")
    A(f"v_add_u32 v2, {L_V}, v2")
    A(f"v_mul_u32_u24 v{t3}, 80, v{HD}")
    A(f"v_mul_u32_u24 v{t2}, 336, v{t0}")
    A(f"v_add_u32 v3, v{t3}, v{t2}")
    A(f"v_lshrrev_b32 v{t1}, 5, v1")
    A(f"v_lshl_add_u32 v9, v{t1}, 3, v{R4}")
    A(f"v_bfe_u32 v{t2}, v1, 4, 1")
    A(f"v_bfe_u32 v{t3}, v1, 1, 1")
    A(f"v_lshl_add_u32 v10, v{t2}, 1, v{t3}")
    A(f"v_and_b32 v15, 1, v1")
    A(f"v_mul_u32_u24 v{t0}, 336, v9")
    A(f"v_mad_u32_u24 v{t1}, v15, 5, v10")
    A(f"v_lshl_add_u32 v{t0}, v{t1}, 3, v{t0}")
    A("s_mul_i32 s57, s48, 80")
    A(f"v_add_u32 v6, s57, v{t0}")
    A(f"v_lshl_add_u32 v{t0}, v10, 1, v15")
    A("s_mul_i32 s57, s48, 6")
    A(f"v_min_u32 v{t1}, 5, v{t0}")
    A(f"v_add_u32 v{t1}, s57, v{t1}")
    A(f"v_mul_u32_u24 v{t0}, 208, v9")
    A(f"v_lshl_add_u32 v{t0}, v{t1}, 3, v{t0}")
    A(f"v_add_u32 v7, {L_V}, v{t0}")
    WPF = 188
    for tp in range(5):
        A(f"v_mov_b32 v{WPF+12*tp+10}, 0")
        A(f"v_mov_b32 v{WPF+12*tp+11}, 0")
    A(f"s_mov_b32 s60, {LOG2E:#x}")
    A(f"s_mov_b32 s61, {LOG2E:#x}")
    A("s_waitcnt lgkmcnt(0)")
    srd(A, SWS, S_WS, WS_SIZE)
    if Opt.touch & 1:
        Lt = A.newlabel("L_nt")
        A("s_cmp_eq_u32 s48, 0")
        A(f"s_cbranch_scc0 {Lt}")
        touch(A, 248, 32, Opt.tsh)
        A.label(Lt)
    if Opt.fwarm:
        o_index(A)
        A("s_lshl_b32 s54, s62, 2")
        A("s_add_u32 s54, s54, s48")
        A("s_lshl_b32 s54, s54, 2")
        A("s_lshr_b32 s55, s62, 2")
        A("s_lshl_b32 s55, s55, 4")
        A("s_add_u32 s55, s55, s63")
        A("s_lshl_b32 s55, s55, 1")
        A("s_add_u32 s55, s55, 508")
        A("s_and_b32 s56, s99, 2")
        A("s_lshl_b32 s57, s98, 2")
        A("s_add_u32 s56, s56, s57")
        A("s_lshl_b32 s56, s56, 4")
        A("s_lshl_b32 s57, s48, 3")
        A("s_add_u32 s56, s56, s57")
        A("s_add_u32 s56, s56, 1016")
        A(f"v_mov_b32 v{t0}, s54")
        A(f"v_mov_b32 v{t1}, s55")
        A(f"v_mov_b32 v{t2}, s56")
        A("v_cmp_gt_u32 vcc, 16, v1")
        A(f"v_cndmask_b32 v{t1}, v{t1}, v{t0}, vcc")
        A("v_cmp_gt_u32 vcc, 32, v1")
        A(f"v_cndmask_b32 v{t1}, v{t2}, v{t1}, vcc")
        A(f"v_lshrrev_b32 v{t0}, 2, v1")
        A(f"v_add_u32 v{t0}, v{t0}, v{t1}")
        A(f"v_and_b32 v{t0}, 2047, v{t0}")
        A(f"v_lshlrev_b32 v{t0}, 7, v{t0}")
        A(f"s_mov_b32 s54, {WS_FLAG:#x}")
        A(f"buffer_load_dword v4, v{t0}, s[{SWS}:{SWS+3}], s54 offen{SC}")
        if Opt.fww:
            A("s_lshr_b32 s54, s99, 2")
            A("s_sub_u32 s54, s54, 1")
            A("s_max_i32 s54, s54, 0")
            A("s_lshl_b32 s54, s54, 2")
            A("s_add_u32 s54, s54, s48")
            A("s_lshl_b32 s54, s54, 10")
            A(f"s_add_u32 s54, s54, {FW:#x}")
            A(f"v_lshrrev_b32 v{t0}, 3, v1")
            A(f"v_lshlrev_b32 v{t0}, 7, v{t0}")
            A(f"buffer_load_dword v5, v{t0}, s[{SWS}:{SWS+3}], s54 offen{SC}")
    A("s_setprio 2")

    T = Lgkm(A)

    def reads(s, ks):
        sl, b = s % 3, ks
        L = []
        for t in range(5):
            for half in range(2):
                L.append((f"ds_read_b64_tr_b16 {vr(WF[b]+4*t+2*half,2)}, v{WA+5*(sl>>1)+t} offset:{(sl&1)*SLOT + (32*ks+4*half)*320}",
                          ("w", s, ks, t) if half else None))
            if t == 0:
                for rho in range(4):
                    L.append((f"ds_read_b128 {vr(XF[b]+4*rho,4)}, v{XA+2*(sl>>1)+ks} offset:{(sl&1)*SLOT + 2048*rho}", ("x", s, ks, rho)))
        return L

    wp = []
    for tp in range(5):
        for dq in range(5):
            wp.append((f"ds_read_b64_tr_b16 {vr(WPF+12*tp+2*dq,2)}, v{AD} offset:{160*dq+8*tp}", None))

    PS = (96, 106, 118, 128)
    E, F, TT_ = 140, 160, 248

    def cvt(rho):
        L = [f"v_cvt_pk_bf16_f32 v{PS[rho]+i}, v{ACC+20*rho+2*i}, v{ACC+20*rho+2*i+1}" for i in range(10)]
        if rho & 1:
            L += [f"v_mov_b32 v{PS[rho]+10}, 0x3f803f80", f"v_mov_b32 v{PS[rho]+11}, 0x3f803f80"]
        return L

    A("s_barrier")
    stampw(A, 3)
    for x, tg in reads(0, 0):
        T.issue(x, tg)
    early = cvt(0) + cvt(1)
    for s in range(10):
        for ks in range(2):
            last = (s == 9 and ks == 1)
            nxt = [] if last else (reads(s, 1) if ks == 0 else reads(s + 1, 0))
            if ks == 0 and s < 5:
                nxt += wp[5 * s:5 * s + 5]
            start = 0 if ks == 0 else Opt.bpos
            for k in range(20):
                t, rho = (k % 5, k // 5) if last else (k // 4, k % 4)
                if Opt.snake and t & 1:
                    rho = 3 - rho
                T.wait(("w", s, ks, t), ("x", s, ks, rho))
                a_ = ACC + 20 * rho + 4 * t
                A(f"v_mfma_f32_16x16x32_bf16 {vr(a_,4)}, {vr(WF[ks]+4*t,4)}, {vr(XF[ks]+4*rho,4)}, {vr(a_,4)}")
                if ks == 1 and k == start:
                    T.all()
                    A("s_barrier")
                if k >= start and nxt:
                    T.issue(*nxt.pop(0))
                if last and k >= 9:
                    for _ in range(2):
                        if early:
                            A(early.pop(0))
            assert not nxt
    stamp(A, 4)
    if Opt.fwarm:
        A("s_waitcnt vmcnt(0)")
    tag_issue(A)
    def phi_mfma(src, acc):
        L = []
        for u in range(3):
            for tp in range(5):
                c = vr(acc + 4 * tp, 4) if u else "0"
                L.append(f"v_mfma_f32_16x16x32_bf16 {vr(acc+4*tp,4)}, {vr(WPF+12*tp+4*u,4)}, {vr(src+4*u,4)}, {c}")
        return L

    def weave(mf, va, per):
        mf, va = list(mf), list(va)
        while mf or va:
            if mf:
                A(mf.pop(0))
            for _ in range(per):
                if va:
                    A(va.pop(0))

    assert not early
    Lq = A.newlabel("L_q")
    A("s_cmp_eq_u32 s51, 0")
    A(f"s_cbranch_scc0 {Lq}")
    mq = A.mark()
    for i in range(10):
        A(f"v_permlane32_swap_b32 v{PS[0]+i}, v{PS[1]+i}")
    weave(phi_mfma(PS[0], ACC), cvt(2) + cvt(3) + [f"v_permlane32_swap_b32 v{PS[2]+i}, v{PS[3]+i}" for i in range(10)], 2)
    vw = [f"ds_write_b128 v2, {vr(PS[1+2*sg]+4*i,4)} offset:{32*208*sg+16*i}" for sg in range(2) for i in range(3)]

    def body(parts):
        mm, fm, ex, sm, fin, tail = parts
        L = fm[:4]
        fm2, sm2 = list(fm[4:]), list(sm)
        for k in range(0, 40, 4):
            L += ex[k:k + 2]
            if fm2:
                L.append(fm2.pop(0))
            L += ex[k + 2:k + 4]
            if fm2:
                L.append(fm2.pop(0))
            if k >= 8:
                L += [sm2.pop(0), sm2.pop(0)]
        return L + sm2 + fin

    def tail_list(tail, wr):
        L = [tail[0][0], tail[1][0]]
        for j in range(20):
            if j + 2 < 20:
                L.append(tail[j + 2][0])
            L.append(tail[j][1])
            if wr and j % 4 == 3:
                L.append(wr[j // 4])
        return L

    s0 = softmax_parts(ACC, E, F, TT_, 56)
    s1 = softmax_parts(ACC + 20, E, F, TT_, 76)
    w0 = [f"ds_write_b128 v3, {vr(56+4*i,4)} offset:{16*i}" for i in range(5)]
    w1 = [f"ds_write_b128 v3, {vr(76+4*i,4)} offset:{32*336+16*i}" for i in range(5)]
    m1 = phi_mfma(PS[2], ACC + 20)
    for x in m1[:4]:
        A(x)
    weave(m1[4:], s0[0], 2)
    stamp(A, 2)
    for x in merge(body(s0), vw, 12) + tail_list(s0[5], w0):
        A(x)
    stamp(A, 13)
    A(f"v_mov_b32 v10, {L_SYNC}")
    A("v_mov_b32 v11, 1")
    A("s_mov_b64 exec, 1")
    A("ds_add_u32 v10, v11 offset:52")
    A("s_mov_b64 exec, -1")
    sal = ["s_lshl_b32 s57, s50, 2", "s_add_u32 s57, s57, s48", "s_lshl_b32 s57, s57, 4", "s_add_u32 s57, s57, s49",
           "s_lshl_b32 s59, s57, 7", f"s_add_u32 s59, s59, {F1:#x}", "s_mul_i32 s57, s57, 2560", f"s_add_u32 s57, s57, {WS_PART:#x}"]
    b1 = body(s1)
    for x in s1[0] + merge(b1[:60], sal, 6) + ["ds_read_b32 v12, v10 offset:52"] + b1[60:]:
        A(x)
    tag_check(A, 14)
    Lok = A.newlabel("L_s0ok")
    A("v_cmp_le_u32 vcc, 4, v12")
    A(f"s_cbranch_vccnz {Lok}")
    lds_wait(A, 12, L_SYNC + 52, 4)
    A.label(Lok)
    for x in tail_list(s1[5], w1):
        A(x)
    A("s_mov_b64 exec, 1")
    A("ds_add_u32 v10, v11")
    A("s_mov_b64 exec, -1")
    stampw(A, 5)
    T = Lgkm(A)
    T.n = 0 if (Ctx.stamps and not Opt.lite and not Opt.hp) else 0
    FAa = {0: 188, 1: 196, 4: 204, 5: 212, 2: 220, 3: 228, 6: 236, 7: 128}
    FBb = {u: 96 + 4 * u for u in range(8)}

    def rdA_(u):
        for half in range(2):
            o = (16 * u + 4 * half)
            T.issue(f"ds_read_b64_tr_b16 {vr(FAa[u]+2*half,2)}, v6 offset:{o*336}")
            T.issue(f"ds_read_b64_tr_b16 {vr(FAa[u]+4+2*half,2)}, v6 offset:{o*336+32}", ("a", u))

    def rdB_(u):
        for half in range(2):
            T.issue(f"ds_read_b64_tr_b16 {vr(FBb[u]+2*half,2)}, v7 offset:{(16*u+4*half)*208}", ("b", u))

    def pm(u, first=False):
        T.wait(("a", u), ("b", u))
        for TT in range(2):
            c = "0" if first else vr(ACC + 16 * TT, 16)
            A(f"v_mfma_f32_32x32x16_bf16 {vr(ACC+16*TT,16)}, {vr(FAa[u]+4*TT,4)}, {vr(FBb[u],4)}, {c}")

    rdB_(0); rdA_(0); rdB_(1); rdA_(1)
    pm(0, True)
    rdB_(4); rdA_(4)
    pm(1)
    rdB_(5); rdA_(5)
    T.issue("ds_read_b32 v12, v10", "c")
    pm(4)
    for u in (2, 3, 6, 7):
        rdB_(u)
    A("v_lshlrev_b32 v2, 4, v1")
    A("v_lshlrev_b32 v3, 3, v1")
    T.wait("c")
    Lok = A.newlabel("L_s1ok")
    A("v_cmp_le_u32 vcc, 4, v12")
    A(f"s_cbranch_vccnz {Lok}")
    lds_wait(A, 10, None, 4)
    A.label(Lok)
    rdA_(2); rdA_(3)
    pm(5)
    rdA_(6)
    pm(2)
    rdA_(7)
    pm(3); pm(6); pm(7)
    o_index(A)
    for i in range(10):
        A(f"v_cvt_pk_bf16_f32 v{48+i}, v{ACC+2*i}, v{ACC+2*i+1}")
    A(f"buffer_store_dwordx2 v[56:57], v3, s[{SWS}:{SWS+3}], s57 offen offset:2048{SC}")
    A("s_mov_b32 exec_lo, 0x00ffffff")
    A("s_mov_b32 exec_hi, 0x00ffffff")
    A(f"buffer_store_dwordx4 v[48:51], v2, s[{SWS}:{SWS+3}], s57 offen{SC}")
    A(f"buffer_store_dwordx4 v[52:55], v2, s[{SWS}:{SWS+3}], s57 offen offset:1024{SC}")
    A("s_mov_b64 exec, -1")
    stamp(A, 6)
    role_o(A)
    end_wave(A)
    A.label(Lq)
    hq = A.mark()
    pre = [f"s_mov_b32 s57, {64*1280}",
           f"v_mul_lo_u32 v{t1}, s57, v{HD}",
           f"v_lshl_add_u32 v2, v{S16}, 4, v{t1}",
           f"v_lshl_add_u32 v3, v{S16}, 3, v{t1}",
           "s_lshl_b32 s58, s49, 1",
           "s_add_u32 s58, s58, s52",
           "s_lshl_b32 s59, s50, 1",
           "s_add_u32 s59, s59, s53",
           "s_lshl_b32 s59, s59, 5",
           "s_add_u32 s59, s59, s58",
           "s_lshl_b32 s59, s59, 7",
           f"s_add_u32 s59, s59, {F2:#x}",
           "s_lshl_b32 s57, s50, 8",
           "s_add_u32 s57, s57, s58",
           "s_mul_i32 s57, s57, 2560"]
    A("s_nop 0")
    OQ = 140

    def outq(rho):
        x, o = ACC + 20 * rho, OQ + 10 * rho
        off = 1280 * (rho >> 1)
        L = [f"v_cvt_pk_bf16_f32 v{o+i}, v{x+2*i}, v{x+2*i+1}" for i in range(10)]
        L.append(f"buffer_store_dwordx4 {vr(o,4)}, v2, s[{SWS}:{SWS+3}], s57 offen offset:{off+256*(rho&1)}{SC}")
        L.append(f"buffer_store_dwordx4 {vr(o+4,4)}, v2, s[{SWS}:{SWS+3}], s57 offen offset:{off+512+256*(rho&1)}{SC}")
        L.append(f"buffer_store_dwordx2 {vr(o+8,2)}, v3, s[{SWS}:{SWS+3}], s57 offen offset:{off+1024+128*(rho&1)}{SC}")
        return L

    weave(phi_mfma(PS[0], ACC), pre + cvt(2), 2)
    m = phi_mfma(PS[1], ACC + 20)
    weave(m[:6], cvt(3), 2)
    weave(m[6:], outq(0), 2)
    m = phi_mfma(PS[2], ACC + 40)
    weave(m[:6], [], 0)
    weave(m[6:], outq(1), 2)
    m = phi_mfma(PS[3], ACC + 60)
    weave(m[:6], [], 0)
    weave(m[6:], outq(2), 2)
    for x in outq(3):
        A(x)
    stamp(A, 6)
    tag_check(A, 10)
    set_flag(A, 10, "s59")
    stamp(A, 7)
    A.check_seam(mq, hq)
    lds_arrive(A, 14, L_SYNC)
    lds_wait(A, 14, None, 8 if Opt.qlate else 4, sleep=2)
    A("s_setprio 0")
    A("s_cmp_lt_u32 s99, 4")
    A("s_cbranch_scc1 L_wo")
    if Opt.wopf == "qs":
        srd(A, 36, S_WO, NB_WO)
        A("s_sub_u32 s57, s99, 4")
        A("s_lshl_b32 s57, s57, 2")
        A("s_add_u32 s57, s57, s48")
        A("s_lshl_b32 s57, s57, 13")
        A(f"s_add_u32 s57, s57, {240*1280}")
        A("v_lshlrev_b32 v8, 7, v1")
        for i in range(4):
            A(f"buffer_load_dword v{200+i}, v8, s[36:39], s57 offen")
            A(f"s_add_u32 s57, s57, {16*8192}")
    A(f"s_cmp_lt_u32 s48, {4 if Opt.p3 else 2}")
    A("s_cbranch_scc1 L_post")
    end_wave(A)


def role_o(A):
    NT = 4
    RAW, X, PQ = 64, 104, 128
    A("s_mul_i32 s53, s48, 20480")
    A(f"s_add_u32 s53, s53, {L_WOB}")
    A("v_and_b32 v4, 31, v1")
    A("v_lshl_add_u32 v5, v4, 4, s53")
    A("v_lshl_add_u32 v6, v4, 3, s53")
    A("v_and_b32 v7, 32, v1")
    A("v_lshlrev_b32 v7, 26, v7")
    A("s_lshl_b32 s54, s48, 2")
    A(f"s_add_u32 s54, s54, {L_SYNC+16}")
    A("s_mov_b32 s58, 0xffff0000")
    for t in range(NT):
        A(f"v_mov_b32 v{PQ+12*t+10}, 0")
        A(f"v_mov_b32 v{PQ+12*t+11}, 0")
    A("s_mov_b32 s96, s59")
    A("s_mov_b32 s97, 0")
    if Opt.dflag:
        Lgo = A.newlabel("L_go")
        A("v_mov_b32 v14, s54")
        A("ds_read_b32 v15, v14")
        A("s_waitcnt lgkmcnt(0)")
        A("v_cmp_le_u32 vcc, 1, v15")
        A(f"s_cbranch_vccnz {Lgo}")
    set_flag(A, 10, "s96")
    lds_arrive(A, 14, L_SYNC + 4)
    A("s_mov_b32 s97, 1")
    stamp(A, 7)
    lds_wait(A, 14, "s54", 1)
    if Opt.dflag:
        A.label(Lgo)
    stampw(A, 8)
    T = Lgkm(A)
    for t in range(NT):
        T.issue(f"ds_read_b128 {vr(RAW+10*t,4)}, v5 offset:{1280*t}")
        T.issue(f"ds_read_b128 {vr(RAW+10*t+4,4)}, v5 offset:{1280*t+512}")
        T.issue(f"ds_read_b64 {vr(RAW+10*t+8,2)}, v6 offset:{1280*t+1024}", t)
    A("s_lshl_b32 s57, s63, 2")
    A("s_mul_i32 s54, s57, 40960")
    A(f"s_add_u32 s54, s54, {WS_O:#x}")
    A("s_lshl_b32 s59, s62, 8")
    A("s_add_u32 s59, s59, s54")
    A("s_add_u32 s59, s59, 32768")
    A("s_lshl_b32 s57, s62, 10")
    A("s_add_u32 s54, s54, s57")
    A("s_lshl_b32 s50, s63, 5")
    A("s_add_u32 s50, s50, s62")
    A("s_lshl_b32 s50, s50, 7")
    A(f"s_add_u32 s50, s50, {F3:#x}")
    if Opt.qpipe:
        XS = (176, 200, 104, 224)

        def stA(t):
            X_, m = XS[t], XS[t] + 20
            L = []
            for i in range(10):
                r = RAW + 10 * t + i
                L += [f"v_lshl_add_u32 v{X_+2*i}, v{r}, 16, v7", f"v_bitop3_b32 v{X_+2*i+1}, v{r}, s58, v7 bitop3:0x6a"]
            L += [f"v_max3_f32 v{m}, v{X_}, v{X_+1}, v{X_+2}", f"v_max3_f32 v{m+1}, v{X_+3}, v{X_+4}, v{X_+5}"]
            for i in range(6, 18, 4):
                L += [f"v_max3_f32 v{m}, v{m}, v{X_+i}, v{X_+i+1}", f"v_max3_f32 v{m+1}, v{m+1}, v{X_+i+2}, v{X_+i+3}"]
            L += [f"v_max3_f32 v{m}, v{m}, v{X_+18}, v{X_+19}", f"v_max_f32 v{m}, v{m}, v{m+1}", f"v_mul_f32 v{m}, s60, v{m}"]
            L += [f"v_pk_fma_f32 {vr(X_+i,2)}, {vr(X_+i,2)}, s[60:61], {vr(m,2)} op_sel_hi:[1,1,0] neg_lo:[0,0,1] neg_hi:[0,0,1]" for i in range(0, 20, 2)]
            return L

        def stC(t):
            X_, m, e = XS[t], XS[t] + 20, XS[t] + 22
            L = [f"v_pk_add_f32 {vr(e,2)}, {vr(X_,2)}, {vr(X_+2,2)}", f"v_pk_add_f32 {vr(m,2)}, {vr(X_+4,2)}, {vr(X_+6,2)}"]
            for i in range(8, 20, 4):
                L += [f"v_pk_add_f32 {vr(e,2)}, {vr(e,2)}, {vr(X_+i,2)}", f"v_pk_add_f32 {vr(m,2)}, {vr(m,2)}, {vr(X_+i+2,2)}"]
            L += [f"v_pk_add_f32 {vr(e,2)}, {vr(e,2)}, {vr(m,2)}", f"v_add_f32 v{e}, v{e}, v{e+1}", f"v_rcp_f32 v{e}, v{e}"]
            L += [f"v_pk_mul_f32 {vr(X_+i,2)}, {vr(X_+i,2)}, {vr(e,2)} op_sel_hi:[1,0]" for i in range(0, 20, 2)]
            L += [f"v_cvt_pk_bf16_f32 v{PQ+12*t+i}, v{X_+2*i}, v{X_+2*i+1}" for i in range(10)]
            return L

        def zipl(p, q):
            out = []
            while p or q:
                if p:
                    out.append(p.pop(0))
                if q:
                    out.append(q.pop(0))
            return out

        T.wait(0)
        for x in stA(0):
            A(x)
        T.all()
        for t in range(NT):
            rest = zipl(stA(t + 1) if t + 1 < NT else [], stC(t - 1) if t else [])
            n = len(rest)
            for i in range(20):
                A(f"v_exp_f32 v{XS[t]+i}, v{XS[t]+i}")
                for x in rest[i * n // 20:(i + 1) * n // 20]:
                    A(x)
        for x in stC(NT - 1):
            A(x)
    else:
        mx, se = 124, 126
        for t in range(NT):
            T.wait(t)
            for i in range(10):
                A(f"v_lshl_add_u32 v{X+2*i}, v{RAW+10*t+i}, 16, v7")
                A(f"v_bitop3_b32 v{X+2*i+1}, v{RAW+10*t+i}, s58, v7 bitop3:0x6a")
            A(f"v_max3_f32 v{mx}, v{X}, v{X+1}, v{X+2}")
            A(f"v_max3_f32 v{mx+1}, v{X+3}, v{X+4}, v{X+5}")
            for i in range(6, 18, 4):
                A(f"v_max3_f32 v{mx}, v{mx}, v{X+i}, v{X+i+1}")
                A(f"v_max3_f32 v{mx+1}, v{mx+1}, v{X+i+2}, v{X+i+3}")
            A(f"v_max3_f32 v{mx}, v{mx}, v{X+18}, v{X+19}")
            A(f"v_max_f32 v{mx}, v{mx}, v{mx+1}")
            A(f"v_mul_f32 v{mx}, s60, v{mx}")
            for i in range(0, 20, 2):
                A(f"v_pk_fma_f32 {vr(X+i,2)}, {vr(X+i,2)}, s[60:61], {vr(mx,2)} op_sel_hi:[1,1,0] neg_lo:[0,0,1] neg_hi:[0,0,1]")
            if Opt.dflag and t == 1:
                Lsk = A.newlabel("L_sk")
                A("s_cmp_eq_u32 s97, 1")
                A(f"s_cbranch_scc1 {Lsk}")
                set_flag(A, 10, "s96")
                lds_arrive(A, 14, L_SYNC + 4)
                stampw(A, 7)
                A.label(Lsk)
            for i in range(20):
                A(f"v_exp_f32 v{X+i}, v{X+i}")
            A(f"v_pk_add_f32 {vr(se,2)}, {vr(X,2)}, {vr(X+2,2)}")
            A(f"v_pk_add_f32 {vr(mx,2)}, {vr(X+4,2)}, {vr(X+6,2)}")
            for i in range(8, 20, 4):
                A(f"v_pk_add_f32 {vr(se,2)}, {vr(se,2)}, {vr(X+i,2)}")
                A(f"v_pk_add_f32 {vr(mx,2)}, {vr(mx,2)}, {vr(X+i+2,2)}")
            A(f"v_pk_add_f32 {vr(se,2)}, {vr(se,2)}, {vr(mx,2)}")
            A(f"v_add_f32 v{se}, v{se}, v{se+1}")
            A(f"v_rcp_f32 v{se}, v{se}")
            for i in range(0, 20, 2):
                A(f"v_pk_mul_f32 {vr(X+i,2)}, {vr(X+i,2)}, {vr(se,2)} op_sel_hi:[1,0]")
            for i in range(10):
                A(f"v_cvt_pk_bf16_f32 v{PQ+12*t+i}, v{X+2*i}, v{X+2*i+1}")
    stamp(A, 9)
    KF = 16
    A(f"v_mov_b32 v{KF+10}, 0")
    A(f"v_mov_b32 v{KF+11}, 0")
    lds_wait(A, 14, L_SYNC + 8, 4)
    stampw(A, 10)
    PR = 32
    T = Lgkm(A)
    for q in range(5):
        for p in range(4):
            T.issue(f"ds_read_b128 {vr(PR+16*q+4*p,4)}, v2 offset:{5120*p+1024*q}", q)
    for q in range(5):
        T.wait(q)
        b = PR + 16 * q
        for h in (0, 2):
            A(f"v_pk_add_f32 {vr(b+h,2)}, {vr(b+h,2)}, {vr(b+4+h,2)}")
            A(f"v_pk_add_f32 {vr(b+8+h,2)}, {vr(b+8+h,2)}, {vr(b+12+h,2)}")
        for h in (0, 2):
            A(f"v_pk_add_f32 {vr(b+h,2)}, {vr(b+h,2)}, {vr(b+8+h,2)}")
        for h in (0, 2):
            A(f"v_cvt_pk_bf16_f32 v{KF+2*q+h//2}, v{b+h}, v{b+h+1}")
    D = [176, 192, 208, 224]
    OP = [32, 40, 48, 56]

    def mf(t):
        for u in range(3):
            c = vr(D[t], 16) if u else "0"
            A(f"v_mfma_f32_32x32x16_bf16 {vr(D[t],16)}, {vr(KF+4*u,4)}, {vr(PQ+12*t+4*u,4)}, {c}")

    if Opt.dA:
        A(f"s_sleep {Opt.dA}")
    mf(0)
    mf(1)
    for t in range(NT):
        d, o = D[t], OP[t]
        A(f"v_add_f32 v10, 0x358637bd, v{d+12}")
        A("v_rcp_f32 v10, v10")
        if t + 2 < NT:
            mf(t + 2)
        if t >= 2:
            for i in range(0, 12, 2):
                A(f"v_pk_mul_f32 {vr(d+i,2)}, {vr(d+i,2)}, v[10:11] op_sel_hi:[1,0]")
        else:
            for i in range(12):
                A(f"v_mul_f32 v{d+i}, v10, v{d+i}")
        for i in range(6):
            A(f"v_cvt_pk_bf16_f32 v{o+i}, v{d+2*i}, v{d+2*i+1}")
        A(f"buffer_store_dwordx4 {vr(o,4)}, v2, s[{SWS}:{SWS+3}], s54 offen{SC}")
        A("s_mov_b32 exec_hi, 0")
        A(f"buffer_store_dwordx2 {vr(o+4,2)}, v3, s[{SWS}:{SWS+3}], s59 offen{SC}")
        A("s_mov_b64 exec, -1")
        if t < NT - 1:
            A("s_add_u32 s54, s54, 40960")
            A("s_add_u32 s59, s59, 40960")
    stamp(A, 11)
    set_flag(A, 12, "s50")
    lds_arrive(A, 16, L_SYNC + 12)
    stamp(A, 12)


def b_channel(A):
    A("s_mul_i32 s49, s98, 80")
    A("s_sub_u32 s50, s99, 24")
    A("s_mul_i32 s50, s50, 6")
    A("s_add_u32 s49, s49, s50")
    A("s_add_u32 s49, s49, s48")
    A("s_cmp_ge_u32 s48, 6")
    A("s_cselect_b32 s50, 2, 0")
    A("s_sub_u32 s49, s49, s50")
    A(f"s_mul_i32 s56, s48, {CV_LDS}")


def conv_load_h(A, v):
    SH = 40
    srd(A, SH, S_SSK, NB_SSK)
    A(f"v_lshlrev_b32 v{v}, 4, v1")
    A("s_lshl_b32 s50, s49, 12")
    A("s_add_u32 m0, s56, 64")
    for i in range(4):
        A(f"buffer_load_dwordx4 v{v}, s[{SH}:{SH+3}], s50 offen offset:{1024*i}{Opt.nth} lds")


def f0_lines(A, c0, c1, v):
    A(f"s_lshr_b32 s52, s{c0}, 6")
    A("s_mul_i32 s52, s52, 419431")
    A("s_lshr_b32 s52, s52, 16")
    A(f"s_lshr_b32 s53, s{c1}, 6")
    A("s_mul_i32 s53, s53, 419431")
    A("s_add_u32 s53, s53, 406324")
    A("s_lshr_b32 s53, s53, 16")
    A(f"v_lshrrev_b32 v{v}, 2, v1")
    A(f"v_add_u32 v{v}, s52, v{v}")
    A(f"v_min_u32 v{v}, s53, v{v}")
    A(f"v_lshlrev_b32 v{v}, 7, v{v}")
    A(f"s_mov_b32 s52, {F0:#x}")


def role_pre(A):
    SK, SV, SS = 32, 36, 40
    t0, t1, t2 = 2, 3, 4
    A("s_lshl_b32 s49, s98, 3")
    A("s_add_u32 s49, s49, s99")
    A("s_sub_u32 s49, s49, 24")
    A("s_mul_i32 s49, s49, 5")
    A("s_add_u32 s49, s49, s48")
    A("s_and_b32 s50, s49, 31")
    A("s_lshr_b32 s51, s49, 5")
    A(f"s_mul_i32 s52, s50, {64*1280}")
    A("s_lshl_b32 s53, s51, 7")
    A("s_add_u32 s52, s52, s53")
    A(f"v_lshrrev_b32 v{t0}, 3, v1")
    A(f"v_and_b32 v{t1}, 7, v1")
    A(f"v_mul_u32_u24 v{t2}, {8*1280}, v{t0}")
    A(f"v_lshl_add_u32 v{t2}, v{t1}, 4, v{t2}")
    A(f"v_add_u32 v5, s52, v{t2}")
    A(f"v_subrev_u32 v6, {3*1280}, v5")
    A(f"v_subrev_u32 v7, {2*1280}, v5")
    A(f"v_subrev_u32 v8, {1280}, v5")
    A(f"v_lshlrev_b32 v9, 6, v{t1}")
    A("s_lshl_b32 s54, s51, 9")
    A(f"s_movk_i32 s55, {4*1280}")
    A("s_waitcnt lgkmcnt(0)")
    srd(A, SK, S_BK, NB_X)
    srd(A, SV, S_BV, NB_X)
    srd(A, SS, S_SH, NB_SH)
    WR, KR, VR = 16, 32, 76
    for i in range(4):
        A(f"buffer_load_dwordx4 {vr(WR+4*i,4)}, v9, s[{SS}:{SS+3}], s54 offen offset:{16*i}")
    for i in range(3):
        A(f"buffer_load_dwordx4 {vr(KR+4*i,4)}, v{6+i}, s[{SK}:{SK+3}], 0 offen{Opt.ntk}")

    order = []

    def ld(kind, i):
        so = "0" if i < 4 else "s55"
        if kind == "k":
            A(f"buffer_load_dwordx4 {vr(KR+12+4*i,4)}, v5, s[{SK}:{SK+3}], {so} offen offset:{1280*(i&3)}{Opt.ntk}")
        else:
            A(f"buffer_load_dwordx4 {vr(VR+4*i,4)}, v5, s[{SV}:{SV+3}], {so} offen offset:{1280*(i&3)}{Opt.ntk}")
        order.append((kind, i))

    for i in (5, 6, 7):
        ld("k", i)
    ld("k", 0); ld("v", 0); ld("k", 1); ld("v", 1)
    todo = [("k", 2), ("v", 2), ("k", 3), ("v", 3), ("k", 4), ("v", 4), ("v", 5), ("v", 6), ("v", 7)]
    stamp(A, 2)
    srd(A, SWS, S_WS, WS_SIZE)
    A("s_mul_i32 s56, s48, 8320")
    A(f"s_add_u32 s56, s56, {B_PRE}")
    A(f"v_mul_u32_u24 v10, 1040, v{t1}")
    A(f"v_lshl_add_u32 v10, v{t0}, 4, v10")
    A("v_add_u32 v10, s56, v10")
    A("v_lshrrev_b32 v11, 4, v1")
    A("v_lshlrev_b32 v11, 8, v11")
    A("v_and_b32 v12, 3, v1")
    A("v_lshl_add_u32 v11, v12, 6, v11")
    A("v_bfe_u32 v12, v1, 2, 2")
    A("v_lshl_add_u32 v11, v12, 3, v11")
    A("v_add_u32 v11, s56, v11")
    A(f"v_mul_u32_u24 v12, {Opt.pit}, v{t0}")
    A(f"v_lshl_add_u32 v12, v{t1}, 4, v12")
    A(f"s_mul_i32 s57, s51, {64*Opt.pit}")
    A("s_lshl_b32 s58, s50, 7")
    A("s_add_u32 s57, s57, s58")
    A(f"s_add_u32 s57, s57, {WS_KVT:#x}")
    A("s_mov_b32 s59, 0xffff0000")
    WF, KF, VF, TA, OUT = 108, 140, 172, 180, 196

    def unpack(dst, src, n):
        for i in range(n):
            A(f"v_lshlrev_b32 v{dst+2*i}, 16, v{src+i}")
            A(f"v_and_b32 v{dst+2*i+1}, s59, v{src+i}")

    A(f"s_waitcnt vmcnt({3+len(order)})")
    ld(*todo.pop(0)); ld(*todo.pop(0))
    for c in range(8):
        A(f"v_lshlrev_b32 v{WF+c}, 16, v{WR+2*c}")
        A(f"v_and_b32 v{WF+8+c}, s59, v{WR+2*c}")
        A(f"v_lshlrev_b32 v{WF+16+c}, 16, v{WR+2*c+1}")
        A(f"v_and_b32 v{WF+24+c}, s59, v{WR+2*c+1}")
    A(f"s_waitcnt vmcnt({len(order)})")
    ld(*todo.pop(0)); ld(*todo.pop(0))
    for i in range(3):
        unpack(KF + 8 * i, KR + 4 * i, 4)
    for i in range(8):
        need = max(order.index(("k", i)), order.index(("v", i)))
        A(f"s_waitcnt vmcnt({len(order)-1-need})")
        for _ in range(2):
            if todo:
                ld(*todo.pop(0))
        if i == 2:
            b_channel(A)
            if Opt.hdef:
                A("s_lshl_b32 s50, s49, 12")
            else:
                conv_load_h(A, 13)
                order.extend([None] * 4)
        unpack(KF + 8 * ((i + 3) & 3), KR + 12 + 4 * i, 4)
        unpack(VF, VR + 4 * i, 4)
        acc = TA + 8 * (i & 1)
        for j in (3, 2, 1, 0):
            kk = KF + 8 * ((i + 3 - j) & 3)
            for c in range(0, 8, 2):
                if j == 3:
                    A(f"v_pk_mul_f32 {vr(acc+c,2)}, {vr(kk+c,2)}, {vr(WF+8*j+c,2)}")
                else:
                    A(f"v_pk_fma_f32 {vr(acc+c,2)}, {vr(kk+c,2)}, {vr(WF+8*j+c,2)}, {vr(acc+c,2)}")
        for c in range(0, 8, 2):
            A(f"v_pk_mul_f32 {vr(acc+c,2)}, {vr(acc+c,2)}, {vr(VF+c,2)}")
        if i & 1:
            for c in range(8):
                A(f"v_cvt_pk_bf16_f32 v{OUT+4*c+i//2}, v{TA+c}, v{TA+8+c}")
    stamp(A, 3)
    for c in range(8):
        A(f"ds_write_b128 v10, {vr(OUT+4*c,4)} offset:{128*c}")
    A("s_waitcnt lgkmcnt(0)")
    T = Lgkm(A)
    for i in range(8):
        T.issue(f"ds_read_b64_tr_b16 {vr(16+4*i,2)}, v11 offset:{1040*i}")
        T.issue(f"ds_read_b64_tr_b16 {vr(18+4*i,2)}, v11 offset:{1040*i+32}", i)
    for i in range(8):
        T.wait(i)
        A(f"buffer_store_dwordx4 {vr(16+4*i,4)}, v12, s[{SWS}:{SWS+3}], s57 offen{SC}")
        if i < 7:
            A(f"s_add_u32 s57, s57, {8*Opt.pit}")
    stamp(A, 5)
    if Opt.hdef == 2:
        conv_load_h(A, 13)


def role_helper(A):
    SD = 40
    A("s_setprio 3")
    A("s_waitcnt lgkmcnt(0)")
    srd(A, SWS, S_WS, WS_SIZE)
    srd(A, SD, S_DBG, 256)
    Lz = A.newlabel("L_nz")
    A("s_cmp_eq_u32 s2, 192")
    A(f"s_cbranch_scc0 {Lz}")
    A("s_cmp_eq_u32 s48, 5")
    A(f"s_cbranch_scc0 {Lz}")
    A(f"s_mov_b32 s57, {WS_EPOCH:#x}")
    A("s_mov_b64 exec, 1")
    A(f"buffer_load_dword v4, off, s[{SWS}:{SWS+3}], s57{SC}")
    A("s_waitcnt vmcnt(0)")
    A("v_add_u32 v4, 1, v4")
    A("v_not_b32 v5, v4")
    A(f"buffer_store_dwordx2 v[4:5], off, s[{SD}:{SD+3}], 0{SC}")
    A(f"buffer_store_dword v4, off, s[{SWS}:{SWS+3}], s57{SC}")
    A("s_mov_b64 exec, -1")
    stamp(A, 2)
    A.label(Lz)
    if Opt.touch & 2:
        Lt = A.newlabel("L_nt")
        A("s_cmp_eq_u32 s48, 5")
        A(f"s_cbranch_scc0 {Lt}")
        touch(A, 26, 32, Opt.tsh)
        for k_, (b_, n_) in enumerate(((S_BQ, NB_X), (S_SSK, NB_SSK))):
            srd(A, 32, b_, n_)
            A(f"buffer_load_dword v29, v26, s[32:35], 0 offen")
        A.label(Lt)
    if Opt.codepf:
        Lp = A.newlabel("L_npf")
        A("s_cmp_eq_u32 s48, 6")
        A(f"s_cbranch_scc0 {Lp}")
        A("s_getpc_b64 s[50:51]")
        A.label("L_pc")
        A(f"s_sub_u32 s50, s50, L_pc-{NAME}_kernel")
        A("s_subb_u32 s51, s51, 0")
        A("s_sub_u32 s52, s99, 24")
        A("s_lshl_b32 s52, s52, 13")
        A("v_lshl_add_u32 v2, v1, 7, s52")
        A(f"v_min_u32 v2, L_code_end-{NAME}_kernel-4, v2")
        A("global_load_dword v24, v2, s[50:51]")
        A.label(Lp)
    if Opt.bwarm:
        Lw_ = A.newlabel("L_bw")
        A("s_cmp_eq_u32 s48, 7")
        A(f"s_cbranch_scc0 {Lw_}")
        A("s_sub_u32 s61, s99, 24")
        A("s_mul_i32 s60, s98, 80")
        A("s_mul_i32 s61, s61, 6")
        A("s_add_u32 s60, s60, s61")
        A("s_add_u32 s61, s60, 5")
        f0_lines(A, 60, 61, 12)
        A(f"buffer_load_dword v26, v12, s[{SWS}:{SWS+3}], s52 offen{SC}")
        if Opt.bwarm > 1:
            A("s_lshl_b32 s57, s98, 4")
            A("s_sub_u32 s58, s57, 16")
            A("v_min_u32 v12, 47, v1")
            A("v_add_u32 v12, s58, v12")
            A("v_max_i32 v12, 0, v12")
            A("v_min_u32 v12, 127, v12")
            A("v_lshlrev_b32 v12, 7, v12")
            A(f"s_mov_b32 s58, {F4:#x}")
            A(f"buffer_load_dword v27, v12, s[{SWS}:{SWS+3}], s58 offen{SC}")
        A.label(Lw_)
    Lnw = A.newlabel("L_nw")
    A("s_sub_u32 s61, s99, 24")
    A("s_lshl_b32 s60, s61, 1")
    A("s_add_u32 s60, s60, s48")
    A("s_sub_u32 s60, s60, 6")
    A("s_xor_b32 s61, s61, 20")
    A("s_cmp_eq_u32 s48, 5")
    A("s_cselect_b32 s60, s61, s60")
    A("s_lshl_b32 s60, s60, 3")
    A("s_add_u32 s60, s60, s98")
    A("s_cmp_ge_u32 s60, 160")
    A(f"s_cbranch_scc1 {Lnw}_a")
    srd(A, 36, S_WO, NB_WO)
    A("s_lshr_b32 s61, s60, 3")
    A("s_and_b32 s62, s60, 7")
    A(f"s_mul_i32 s53, s62, {80*1280}")
    A("s_lshl_b32 s54, s61, 6")
    A("s_add_u32 s53, s53, s54")
    A("v_lshrrev_b32 v2, 2, v1")
    A("v_and_b32 v3, 3, v1")
    A("v_mul_u32_u24 v4, 1280, v2")
    A("v_lshl_add_u32 v4, v3, 4, v4")
    A(f"s_mul_i32 s56, s48, {CV_LDS}")
    for i in range(5):
        A(f"s_add_u32 m0, s56, {1024*i}")
        A("buffer_load_dwordx4 v4, s[36:39], s53 offen lds")
        A(f"s_add_u32 s53, s53, {16*1280}")
    A.label(Lnw + "_a")
    if Opt.pfm:
        Le_ = A.newlabel("L_pme")
        A("s_and_b32 s50, s98, 3")
        A("s_lshr_b32 s51, s98, 2")
        A("s_and_b32 s52, s99, 3")
        A("s_lshl_b32 s53, s50, 1")
        A("s_add_u32 s53, s53, s51")
        A("s_lshl_b32 s53, s53, 2")
        A("s_add_u32 s53, s53, s52")
        A(f"s_mul_i32 s53, s53, {64*1280}")
        A("s_lshl_b32 s50, s50, 2")
        A("s_add_u32 s50, s50, s52")
        A("s_mul_i32 s52, s50, 52")
        A("s_lshr_b32 s52, s52, 8")
        A("s_add_u32 s52, s52, s51")
        A("s_mul_i32 s52, s52, 640")
        A("s_lshl_b32 s51, s50, 7")
        A("s_add_u32 s52, s52, s51")
        A("s_cmp_eq_u32 s50, 15")
        A(f"s_cselect_b32 s52, {NB_W:#x}, s52")
        A("s_cmp_lt_u32 s99, 28")
        A("s_cselect_b32 s51, s53, s52")
        A(f"s_cselect_b64 s[32:33], s[{S_X}:{S_X+1}], s[{S_W}:{S_W+1}]")
        A(f"s_mov_b32 s53, {NB_W:#x}")
        A(f"s_cselect_b32 s34, {NB_X:#x}, s53")
        A("s_mov_b32 s35, 0x20000")
        A("s_movk_i32 s53, 3840")
        A("s_cselect_b32 s52, 1280, s53")
        A(f"s_mov_b32 s53, {64*3840}")
        A("s_cselect_b32 s53, 128, s53")
        A("v_mul_u32_u24 v2, s52, v1")
        A("s_sub_u32 s50, s48, 5")
        A("s_lshl_b32 s50, s50, 2")
        for k in range(len(Opt.pfm) // 3):
            tab = Opt.pfm[3 * k] | Opt.pfm[3 * k + 1] << 4 | Opt.pfm[3 * k + 2] << 8
            A(f"s_lshr_b32 s54, {tab:#x}, s50")
            A("s_and_b32 s54, s54, 15")
            A("s_mul_i32 s52, s54, s53")
            A("s_cmp_ge_u32 s54, 10")
            A("s_cselect_b32 s52, 0x1000000, s52")
            A("s_add_u32 s52, s52, s51")
            A(f"buffer_load_dword v{30+k}, v2, s[32:35], s52 offen")
        A.label(Le_)
    if Opt.pfw or Opt.pfx:
        Lx_, Le_ = A.newlabel("L_pfx"), A.newlabel("L_pfe")
        A("s_cmp_eq_u32 s48, 5")
        A(f"s_cbranch_scc1 {Lx_}")
        A("s_lshl_b32 s50, s48, 3")
        A("s_add_u32 s50, s50, s99")
        A("s_sub_u32 s50, s50, 72")
        A("s_cmp_eq_u32 s50, 15")
        A(f"s_cbranch_scc1 {Le_}")
        A("s_mul_i32 s51, s50, 52")
        A("s_lshr_b32 s51, s51, 8")
        A("s_lshr_b32 s52, s98, 2")
        A("s_add_u32 s51, s51, s52")
        A("s_mul_i32 s51, s51, 640")
        A("s_lshl_b32 s50, s50, 7")
        A("s_add_u32 s51, s51, s50")
        srd(A, 32, S_W, NB_W)
        A("v_mul_u32_u24 v2, 3840, v1")
        for k, st in enumerate(Opt.pfw):
            A(f"s_add_u32 s50, s51, {st*64*3840}")
            A(f"buffer_load_dword v{30+k}, v2, s[32:35], s50 offen")
        A(f"s_branch {Le_}")
        A.label(Lx_)
        if Opt.pfx:
            A("s_and_b32 s51, s98, 3")
            A("s_lshl_b32 s51, s51, 3")
            A("s_add_u32 s51, s51, s99")
            A("s_sub_u32 s51, s51, 24")
            A(f"s_mul_i32 s51, s51, {64*1280}")
            srd(A, 32, S_X, NB_X)
            A("v_mul_u32_u24 v2, 1280, v1")
            for k, st in enumerate(Opt.pfx):
                A(f"buffer_load_dword v{30+k}, v2, s[32:35], s51 offen offset:{128*st}")
        A.label(Le_)
    if Opt.pft:
        tasks = []
        for st, which in Opt.pft:
            for c in (range(5) if which == "q" else range(5, 15)):
                tasks += [(st, c), (st + 5, c)]
        nsl = -(-len(tasks) // 24)
        tasks += [(15, 0)] * (24 * nsl - len(tasks))
        srd(A, 32, S_W, NB_W)
        A("v_mul_u32_u24 v2, 3840, v1")
        A("s_lshr_b32 s51, s98, 2")
        A("s_sub_u32 s50, s99, 24")
        A("s_lshl_b32 s50, s50, 3")
        for k in range(nsl):
            tab = [sum((tasks[24*k + 8*w + j][0] << 4 | tasks[24*k + 8*w + j][1]) << (8 * j) for j in range(8)) for w in range(3)]
            A(f"s_mov_b32 s52, {tab[0] & 0xffffffff:#x}")
            A(f"s_mov_b32 s53, {tab[0] >> 32:#x}")
            for w in (1, 2):
                A(f"s_cmp_eq_u32 s48, {5+w}")
                A(f"s_cselect_b32 s52, {tab[w] & 0xffffffff:#x}, s52")
                A(f"s_cselect_b32 s53, {tab[w] >> 32:#x}, s53")
            A("s_lshr_b64 s[52:53], s[52:53], s50")
            A("s_bfe_u32 s53, s52, 0x40004")
            A("s_and_b32 s52, s52, 15")
            A("s_mul_i32 s54, s52, 52")
            A("s_lshr_b32 s54, s54, 8")
            A("s_add_u32 s54, s54, s51")
            A("s_mul_i32 s54, s54, 640")
            A("s_lshl_b32 s52, s52, 7")
            A("s_add_u32 s52, s52, s54")
            A(f"s_mul_i32 s53, s53, {64*3840}")
            A("s_add_u32 s52, s52, s53")
            A(f"buffer_load_dword v{34+k}, v2, s[32:35], s52 offen")
        Opt.npft = nsl
    if Opt.gpf2:
        Lnp = A.newlabel("L_ng")
        A("s_lshl_b32 s50, s48, 3")
        A("s_add_u32 s50, s50, s99")
        A("s_sub_u32 s50, s50, 64")
        A("s_cmp_ge_u32 s50, 20")
        A("s_cselect_b32 s53, 0x1000000, 0")
        A("s_lshr_b32 s51, s50, 1")
        A("s_and_b32 s50, s50, 1")
        A("s_cmp_ge_u32 s51, 5")
        A("s_cselect_b32 s52, 640, 0")
        A("s_lshl_b32 s51, s51, 7")
        A("s_add_u32 s51, s51, s52")
        A("s_lshr_b32 s52, s98, 2")
        A("s_mul_i32 s52, s52, 640")
        A("s_add_u32 s51, s51, s52")
        A(f"s_mul_i32 s50, s50, {5*64*3840}")
        A("s_add_u32 s51, s51, s50")
        A("s_add_u32 s51, s51, s53")
        A(f"s_add_u32 s51, s51, {1280 + Opt.gpf2*64*3840}")
        srd(A, 32, S_W, NB_W)
        A("v_mul_u32_u24 v2, 3840, v1")
        for k in range(Opt.gpf2, 5):
            A(f"buffer_load_dword v{30+k}, v2, s[32:35], s51 offen")
            A(f"s_add_u32 s51, s51, {64*3840}")
        A.label(Lnp)
    if Opt.gpf:
        A("s_sub_u32 s50, s99, 24")
        A("s_mul_i32 s50, s50, 3")
        A("s_add_u32 s50, s50, s48")
        A("s_sub_u32 s50, s50, 5")
        A("s_and_b32 s51, s98, 3")
        A("s_lshl_b32 s51, s51, 3")
        A("s_add_u32 s51, s51, s50")
        A(f"s_mul_i32 s51, s51, {64*1280}")
        A("s_sub_u32 s52, s50, 8")
        A("s_mul_i32 s53, s52, 52")
        A("s_lshr_b32 s53, s53, 8")
        A("s_mul_i32 s53, s53, 640")
        A("s_lshl_b32 s52, s52, 7")
        A("s_add_u32 s52, s52, s53")
        A("s_lshr_b32 s53, s98, 2")
        A("s_mul_i32 s53, s53, 640")
        A("s_add_u32 s52, s52, s53")
        A("s_cmp_eq_u32 s50, 23")
        A(f"s_cselect_b32 s52, {NB_W:#x}, s52")
        A("s_cmp_lt_u32 s50, 8")
        A("s_cselect_b32 s51, s51, s52")
        A(f"s_cselect_b64 s[32:33], s[{S_X}:{S_X+1}], s[{S_W}:{S_W+1}]")
        A(f"s_mov_b32 s53, {NB_W:#x}")
        A(f"s_cselect_b32 s34, {NB_X:#x}, s53")
        A("s_mov_b32 s35, 0x20000")
        A("s_movk_i32 s53, 3840")
        A("s_cselect_b32 s52, 1280, s53")
        A(f"s_mov_b32 s53, {64*3840}")
        A("s_cselect_b32 s53, 128, s53")
        A("v_mul_u32_u24 v2, s52, v1")
        A(f"s_mul_i32 s52, s53, {Opt.gpf}")
        A("s_add_u32 s51, s51, s52")
        for k, st in enumerate(range(Opt.gpf, 10)):
            if k >= Opt.gpfd:
                A(f"s_waitcnt vmcnt({Opt.gpfd-1})")
            A(f"buffer_load_dword v{30+k}, v2, s[32:35], s51 offen")
            A("s_add_u32 s51, s51, s53")
    A("s_cmp_ge_u32 s60, 160")
    A(f"s_cbranch_scc1 {Lnw}")
    A("v_bfe_u32 v10, v1, 2, 2")
    A("v_lshrrev_b32 v11, 5, v1")
    A("v_and_b32 v12, 1, v1")
    A("v_lshlrev_b32 v12, 5, v12")
    A("v_bfe_u32 v13, v1, 4, 1")
    A("v_lshl_add_u32 v12, v13, 4, v12")
    A("v_bfe_u32 v13, v1, 1, 1")
    A("v_lshl_add_u32 v12, v13, 3, v12")
    A("v_lshl_add_u32 v12, v10, 6, v12")
    A("v_add_u32 v12, s56, v12")
    A("v_lshl_add_u32 v13, v11, 8, v12")
    A("v_mul_u32_u24 v14, 2560, v11")
    A("v_add_u32 v14, v14, v12")
    A("v_lshlrev_b32 v2, 4, v1")
    A(f"s_mul_i32 s53, s61, {Opt.wstr}")
    A(f"s_add_u32 s53, s53, {WS_WOT:#x}")
    A("s_lshl_b32 s54, s62, 10")
    A("s_add_u32 s54, s54, s53")
    A("s_add_u32 s54, s54, 32768")
    A("s_lshl_b32 s62, s62, 12")
    A("s_add_u32 s53, s53, s62")
    A("s_lshl_b32 s55, s60, 7")
    A(f"s_add_u32 s55, s55, {FW:#x}")
    if Opt.wback == 2:
        A("v_lshlrev_b32 v5, 7, v1")
        A("s_mov_b32 exec_hi, 0")
        A(f"buffer_load_dword v24, v5, s[{SWS}:{SWS+3}], s53 offen")
        A("s_mov_b32 exec_lo, 0xff")
        A(f"buffer_load_dword v25, v5, s[{SWS}:{SWS+3}], s54 offen")
        A("s_mov_b64 exec, -1")
    assert not (Opt.pfw or Opt.pfx or Opt.gpf)
    A(f"s_waitcnt vmcnt({len(Opt.pfm)//3 + (5-Opt.gpf2 if Opt.gpf2 else 0) + Opt.npft})")
    for hh in range(4):
        for half in range(2):
            A(f"ds_read_b64_tr_b16 {vr(40+4*hh+2*half,2)}, v13 offset:{(20*hh+8*half)*64}")
    for half in range(2):
        A(f"ds_read_b64_tr_b16 {vr(56+2*half,2)}, v14 offset:{(20*half+16)*64}")
    A("s_waitcnt lgkmcnt(0)")
    for hh in range(4):
        A(f"buffer_store_dwordx4 {vr(40+4*hh,4)}, v2, s[{SWS}:{SWS+3}], s53 offen offset:{1024*hh}{Opt.stw}")
    A(f"buffer_store_dwordx4 v[56:59], v2, s[{SWS}:{SWS+3}], s54 offen{Opt.stw}")
    A(f"s_mov_b64 s[{TAG}:{TAG+1}], 0")
    if Opt.tagl:
        A("s_waitcnt vmcnt(0)")
    tag_check(A, 8)
    set_flag(A, 8, "s55")
    stamp(A, 3)
    if Opt.wback == 1:
        A("v_lshlrev_b32 v5, 7, v1")
        A("s_mov_b32 exec_hi, 0")
        A(f"buffer_load_dword v24, v5, s[{SWS}:{SWS+3}], s53 offen")
        A("s_mov_b32 exec_lo, 0xff")
        A(f"buffer_load_dword v25, v5, s[{SWS}:{SWS+3}], s54 offen")
        A("s_mov_b64 exec, -1")
    A.label(Lnw)
    A("s_setprio 0")
    b_channel(A)
    if Opt.hdef == 1:
        A("s_lshl_b32 s50, s49, 12")
    else:
        conv_load_h(A, 2)
    A(f"v_mov_b32 v4, {B_MB+256}")
    A("v_mov_b32 v5, 0")
    A("ds_write_b32 v4, v5")
    A("ds_write_b32 v4, v5 offset:512")


def conv_setup(A):
    A("v_lshlrev_b32 v2, 4, v1")
    A("s_lshl_b32 s52, s49, 1")
    A("s_and_b32 s52, s52, 0xfffffffc")
    A(f"s_load_dword s55, s[{S_SSD}:{S_SSD+1}], s52")
    A(f"s_load_dword s54, s[{S_SSK}:{S_SSK+1}], s50")
    A(f"s_mul_i32 s51, s49, {Opt.pit}")
    A(f"s_add_u32 s51, s51, {WS_KVT:#x}")
    for i in range(4):
        A(f"v_mov_b32 v{4+i}, 0")
    A("v_add_u32 v3, s56, v2")
    A("s_mov_b64 exec, 0xf")
    A("ds_write_b128 v3, v[4:7]")
    A("s_mov_b32 exec_lo, -1")
    A(f"ds_write_b128 v3, v[4:7] offset:{64+4096}")
    A("s_mov_b64 exec, -1")
    A("v_and_b32 v11, 3, v1")
    A("v_lshrrev_b32 v10, 4, v1")
    A("v_bfe_u32 v12, v1, 2, 2")
    A("v_lshlrev_b32 v8, 4, v11")
    A("v_lshl_add_u32 v8, v10, 6, v8")
    A("v_lshlrev_b32 v9, 3, v12")
    A("v_sub_u32 v8, v8, v9")
    A("s_add_u32 s57, s56, 32")
    A("v_add_u32 v8, s57, v8")
    A("v_sub_u32 v9, v11, v10")
    A("v_lshlrev_b32 v9, 6, v9")
    A("v_lshl_add_u32 v9, v12, 4, v9")
    A(f"s_add_u32 s57, s56, {64+4096+512}")
    A("v_add_u32 v9, s57, v9")
    A("v_mov_b32 v13, 0xffff")
    for i in range(4):
        A(f"v_cmp_eq_u32 vcc, {4*i}, v1")
        A(f"v_cndmask_b32 v{MK+i}, 0, v13, vcc")
    A("v_add_u32 v13, 3, v11")
    A("v_and_b32 v13, 3, v13")
    A("v_lshl_add_u32 v13, v12, 2, v13")
    A("v_add_u32 v13, 48, v13")
    A("v_subrev_u32 v14, 16, v1")
    A("v_cmp_gt_u32 vcc, 16, v1")
    A("v_cndmask_b32 v14, v14, v13, vcc")
    A("v_lshlrev_b32 v14, 2, v14")
    A("s_mov_b32 s58, 0x1111")
    A("s_mov_b32 s59, 0")


MK = 16


def role_conv(A):
    conv_setup(A)
    A("s_sub_u32 s61, s99, 24")
    A("s_lshl_b32 s62, s98, 3")
    A("s_add_u32 s62, s62, s61")
    A("s_lshl_b32 s62, s62, 7")
    A(f"s_add_u32 s62, s62, {F0:#x}")
    A("s_mul_i32 s60, s98, 80")
    A("s_mul_i32 s61, s61, 6")
    A("s_add_u32 s60, s60, s61")
    A("s_add_u32 s61, s60, 5")
    f0_lines(A, 60, 61, 12)
    A(f"s_waitcnt vmcnt({4 if Opt.hdef == 2 else 0}) lgkmcnt(0)")
    stamp(A, 4)
    A("s_barrier")
    if Opt.hdef == 1:
        Lh = A.newlabel("L_hd")
        A("s_cmp_eq_u32 s48, 7")
        A(f"s_cbranch_scc0 {Lh}")
        set_flag(A, 22, "s62")
        A.label(Lh)
        A("s_barrier")
        conv_load_h(A, 2)
        A("s_waitcnt vmcnt(0)")
    else:
        A("s_waitcnt vmcnt(0)")
        A("s_cmp_eq_u32 s48, 7")
        A("s_cbranch_scc0 L_cb")
        set_flag(A, 22, "s62")
    A("s_branch L_cb")
    A.label("L_conv")
    RA, RB = 64, 192
    ACCS = (32, 40, 48, 56)
    CAR, PUL, TMP = 20, (21, 22), 23
    OUT = (24, 28)

    def rdA(m, e):
        reg = RA + 8 * m + 4 * e
        return [(f"ds_read_b64_tr_b16 {vr(reg,2)}, v8 offset:{256*m+8*e+32}", None),
                (f"ds_read_b64_tr_b16 {vr(reg+2,2)}, v8 offset:{256*m+8*e}", ("A", m, e))]

    def xload():
        A(f"s_add_u32 m0, s56, {64+4096+512}")
        for i in range(4):
            A(f"buffer_load_dwordx4 v2, s[{SWS}:{SWS+3}], s51 offen offset:{1024*i}{SC} lds")

    Lb, Lg = "L_cb", A.newlabel("L_cg")
    tag_check(A, 22)
    if Opt.qlate == 1:
        conv_load_h(A, 2)
        A("s_barrier")
        lds_wait(A, 22, L_SYNC, 4, sleep=2)
        A(f"buffer_load_dwordx2 v[22:23], v12, s[{SWS}:{SWS+3}], s52 offen{SC}")
        A("s_waitcnt vmcnt(0)")
    elif Opt.qlate == 2:
        A("s_barrier")
        lds_wait(A, 22, L_SYNC, 4, sleep=2)
        A(f"buffer_load_dwordx2 v[22:23], v12, s[{SWS}:{SWS+3}], s52 offen{SC}")
        conv_load_h(A, 2)
        A("s_waitcnt vmcnt(4)")
    else:
        conv_load_h(A, 2)
        A(f"buffer_load_dwordx2 v[22:23], v12, s[{SWS}:{SWS+3}], s52 offen{SC}")
        A("s_barrier")
        A("s_waitcnt vmcnt(0)")
    A(f"v_cmp_eq_u64 vcc, s[{TAG}:{TAG+1}], v[22:23]")
    A("s_cmp_eq_u64 vcc, -1")
    Lx = A.newlabel("L_cx")
    A(f"s_cbranch_scc1 {Lx}")
    poll(A, 22, 12, "s52", sleep=8)
    A.label(Lx)
    stamp(A, 8)
    xload()
    if Opt.qlate:
        lds_arrive(A, 22, L_SYNC)
        A("s_waitcnt vmcnt(4)")
    A.label(Lb)
    A("s_waitcnt lgkmcnt(0)")
    A("s_lshl_b32 s54, s54, 16")
    A("s_lshl_b32 s53, s55, 16")
    A("s_and_b32 s55, s55, 0xffff0000")
    A("s_bitcmp1_b32 s49, 0")
    A("s_cselect_b32 s53, s55, s53")
    A("v_mov_b32 v15, s54")
    A("v_add_f32 v15, s53, v15")
    A("v_cvt_pk_bf16_f32 v15, v15, v15")
    T = Lgkm(A)
    for m in range(16):
        for e in range(2):
            for x, tg in rdA(m, e):
                T.issue(x, tg)
    T.wait(("A", 0, 1))
    for k in range(4):
        A(f"v_bfi_b32 v{RA+k}, v{MK+k}, v15, v{RA+k}")
        A(f"v_lshlrev_b32 v{MK+k}, 16, v{MK+k}")
        A(f"v_bfi_b32 v{RA+4+k}, v{MK+k}, v15, v{RA+4+k}")
    T.all()
    if Opt.qwait:
        Lqd = A.newlabel("L_qd")
        A("s_cmp_ge_u32 s99, 24")
        A(f"s_cbranch_scc1 {Lqd}")
        lds_wait(A, 12, L_SYNC, 4, sleep=4)
        if Opt.qdel:
            A(f"s_sleep {Opt.qdel}")
        A.label(Lqd)
    A("s_cmp_ge_u32 s99, 24")
    A(f"s_cbranch_scc0 {Lg}")
    Ln7 = A.newlabel("L_n7")
    A("s_cmp_eq_u32 s48, 7")
    A(f"s_cbranch_scc0 {Ln7}")
    poll(A, 22, 12, "s52", sleep=Opt.f0s)
    A.label(Ln7)
    A("s_barrier")
    stamp(A, 8)
    xload()
    if Opt.bdelay:
        A(f"s_sleep {Opt.bdelay}")
    A("s_cmp_ge_u32 s48, 4")
    A(f"s_cbranch_scc0 {Lg}")
    A("s_setprio 1")
    A.label(Lg)
    A(f"s_add_u32 s51, s51, {WS_YT-WS_KVT:#x}")
    A(f"v_mov_b32 v{PUL[1]}, 0")

    def epilogue(i):
        V = ACCS[i % 4]
        dpp = lambda d, src, op: f"v_add_f32_dpp v{d}, v{src}, v{d} {op} row_mask:0xf bank_mask:0xf"
        L = [f"v_mov_b32 v{CAR}, 0"]
        for k in (1, 2, 3):
            L += [dpp(V, V + k, f"row_shr:{4*k}"), dpp(V + 4, V + 4 + k, f"row_shr:{4*k}"), dpp(CAR, V + 4 + k, f"row_shl:{16-4*k}")]
        L.append(("ds", f"ds_bpermute_b32 v{PUL[i&1]}, v14, v{CAR}", ("P", i)))
        x = [dpp(V + 4, V + k, f"row_shl:{16-4*k}") for k in (1, 2, 3)]
        L += [x[0], "GAP", x[1], "GAP", x[2]]
        L.append(("wait", ("P", i)))
        L.append(f"v_cndmask_b32 v{TMP}, v{PUL[i&1]}, v{PUL[1-(i&1)]}, s[58:59]")
        L.append(f"v_add_f32 v{V}, v{V}, v{TMP}")
        L.append(f"v_cvt_pk_bf16_f32 v{OUT[(i>>2)&1]+(i&3)}, v{V}, v{V+4}")
        if i & 3 == 3:
            L.append(f"buffer_store_dwordx4 {vr(OUT[(i>>2)&1],4)}, v2, s[{SWS}:{SWS+3}], s51 offen offset:{1024*(i>>2)}{SC}")
        return L

    def emit(x):
        if isinstance(x, tuple):
            if x[0] == "ds":
                T.issue(x[1], x[2])
            else:
                T.wait(x[1])
        elif x != "GAP":
            A(x)

    A("s_waitcnt vmcnt(0)")
    stampw(A, 9)

    def stream(tiles, exit_at=None, keep=None):
        T.tag.clear()
        for w in range(16):
            T.issue(f"ds_read_b128 {vr(RB+4*w,4)}, v9 offset:{256*w}", ("B", w))
        fill = []
        since = 99
        for i in tiles:
            V = ACCS[i % 4]
            while fill and fill[0][0] <= i - 4:
                emit(fill.pop(0)[1])
            if exit_at and i == exit_at[0]:
                while fill and fill[0][0] <= i - 2:
                    emit(fill.pop(0)[1])
                assert len(fill) == len(epilogue(i - 1))
                A("s_cmp_ge_u32 s48, 4")
                A(f"s_cbranch_scc1 {exit_at[1]}")
            since = 0
            for w in range(i + 1):
                for e in range(2):
                    T.wait(("B", w))
                    c = vr(V + 4 * e, 4) if w else "0"
                    A(f"v_mfma_f32_16x16x32_bf16 {vr(V+4*e,4)}, {vr(RA+8*(i-w)+4*e,4)}, {vr(RB+4*w,4)}, {c}")
                    since += 1
                    left = 2 * (i + 1) - since
                    due = len([1 for t_, _x in fill if t_ <= i - 2])
                    if i == tiles[-1] or (exit_at and i == exit_at[0] - 1):
                        due = len(fill)
                    for _ in range(2 if due > left else 1):
                        if fill and (fill[0][0] < i - 1 or since >= 6):
                            emit(fill.pop(0)[1])
            ep = epilogue(i)
            if keep and i == keep[0]:
                k = [j for j, x in enumerate(ep) if isinstance(x, str) and x.startswith("v_cvt")][0]
                ep = ep[:k] + [f"v_mov_b32 v{keep[1]}, v{V}", f"v_mov_b32 v{keep[1]+1}, v{V+4}"] + ep[k + 1:]
            fill += [(i, x) for x in ep]
        stampw(A, 10)
        T.done = T.n if Ctx.stamps else T.done
        return [x for _, x in fill]

    A("s_cmp_ge_u32 s48, 6")
    A("s_cbranch_scc1 L_second")
    for x in stream(range(16), (12, "L_first")):
        emit(x)
    A("s_branch L_cdone")
    A.label("L_first")
    A("s_waitcnt lgkmcnt(0)")
    A("s_nop 6")
    T.done = T.n
    stampw(A, 10)
    for x in epilogue(11):
        emit(x)
    A("s_and_b32 s52, s48, 1")
    A("s_lshl_b32 s52, s52, 9")
    A(f"s_add_u32 s52, s52, {B_MB}")
    A("v_lshl_add_u32 v10, v1, 2, s52")
    A(f"ds_write_b32 v10, v{PUL[1]}")
    A("s_add_u32 s52, s52, 256")
    lds_arrive(A, 10, "s52")
    A("s_branch L_cdone")
    A.label("L_second")
    T.done = T.n
    last = stream(range(12, 16), keep=(12, 4))
    for x in last[:-1]:
        emit(x)
    A("s_and_b32 s52, s48, 1")
    A("s_lshl_b32 s52, s52, 9")
    A(f"s_add_u32 s52, s52, {B_MB}")
    A("v_lshl_add_u32 v12, v1, 2, s52")
    A("s_add_u32 s52, s52, 256")
    lds_wait(A, 10, "s52", 1, sleep=2)
    A(f"ds_read_b32 v{TMP}, v12")
    A("s_waitcnt lgkmcnt(0)")
    A(f"v_cndmask_b32 v{TMP}, 0, v{TMP}, s[58:59]")
    A(f"v_add_f32 v4, v4, v{TMP}")
    A(f"v_cvt_pk_bf16_f32 v{OUT[1]}, v4, v5")
    A(last[-1])
    A.label("L_cdone")
    A("s_waitcnt vmcnt(0)")
    stamp(A, 11)
    A("s_cmp_ge_u32 s99, 24")
    A("s_cbranch_scc1 L_bdone")
    A(f"v_mov_b32 v10, {L_SYNC+12}")
    A("v_mov_b32 v11, 1")
    A("s_mov_b64 exec, 1")
    A("ds_add_rtn_u32 v12, v10, v11")
    A("s_mov_b64 exec, -1")
    A("s_lshl_b32 s52, s98, 4")
    A("s_add_u32 s52, s52, s99")
    A("s_lshl_b32 s52, s52, 7")
    A(f"s_add_u32 s52, s52, {F4+8*128:#x}")
    A("s_waitcnt lgkmcnt(0)")
    A("v_readfirstlane_b32 s53, v12")
    A("s_cmp_eq_u32 s53, 3")
    A("s_cbranch_scc0 L_bend")
    set_flag(A, 10, "s52")
    A("s_branch L_bend")
    A.label("L_bdone")


def role_post(A):
    SQ, SO = 32, 36
    A.label("L_post")
    A("s_setprio 0")
    A("s_and_b32 s48, s48, 3")
    if Opt.p3:
        A("s_mul_i32 s50, s99, 3")
        A("s_sub_u32 s50, s50, 73")
        A("s_lshl_b32 s51, s99, 2")
        A("s_add_u32 s51, s51, 8")
    else:
        A("s_sub_u32 s50, s99, 24")
        A("s_lshl_b32 s50, s50, 2")
        A("s_lshl_b32 s51, s99, 1")
        A("s_add_u32 s51, s51, 24")
    A("s_cmp_ge_u32 s99, 24")
    A("s_cselect_b32 s50, s50, s51")
    A("s_mul_i32 s49, s98, 40")
    A("s_add_u32 s49, s49, s50")
    A("s_add_u32 s49, s49, s48")
    A("s_and_b32 s50, s49, 31")
    A("s_lshr_b32 s51, s49, 5")
    A("v_lshrrev_b32 v2, 3, v1")
    A("v_and_b32 v3, 7, v1")
    A(f"v_mul_u32_u24 v4, {Opt.pit}, v2")
    A("v_lshl_add_u32 v4, v3, 4, v4")
    A(f"s_mul_i32 s52, s51, {64*Opt.pit}")
    A("s_lshl_b32 s53, s50, 7")
    A("s_add_u32 s52, s52, s53")
    A(f"s_add_u32 s52, s52, {WS_YT:#x}")
    A("s_mul_i32 s56, s48, 8320")
    A(f"s_add_u32 s56, s56, {B_PRE}")
    A("s_lshr_b32 s54, s50, 3")
    A("s_lshl_b32 s54, s54, 9")
    A("s_bfe_u32 s55, s50, 0x20001")
    A("s_lshl_b32 s55, s55, 3")
    A("s_add_u32 s54, s54, s55")
    A("s_and_b32 s55, s50, 1")
    A("s_lshl_b32 s55, s55, 1")
    A("s_add_u32 s54, s54, s55")
    A("v_and_b32 v5, 3, v2")
    A("v_lshrrev_b32 v6, 2, v2")
    A("v_lshl_add_u32 v5, v5, 5, v6")
    A("v_mul_u32_u24 v6, 1280, v5")
    A("v_lshlrev_b32 v7, 1, v6")
    A("v_lshl_add_u32 v6, v3, 4, v6")
    A("v_lshl_add_u32 v7, v3, 4, v7")
    A("s_mul_i32 s54, s54, 1280")
    A("s_lshl_b32 s53, s51, 7")
    A("s_lshl_b32 s55, s54, 1")
    A("s_add_u32 s54, s54, s53")
    A("s_add_u32 s55, s55, s53")
    A("s_add_u32 s55, s55, 1280")
    srd(A, SQ, S_BQ, NB_X)
    srd(A, SO, S_OUT, NB_OUT)
    QR, YR = 16, 48
    rows = [0, 4, 128, 132, 256, 260, 384, 388]
    for i in range(8):
        A(f"s_add_u32 s57, s54, {rows[i]*1280}")
        A(f"buffer_load_dwordx4 {vr(QR+4*i,4)}, v6, s[{SQ}:{SQ+3}], s57 offen{Opt.ntq}")
    A("s_mov_b32 s59, 0xffff0000")
    QF = 128
    A("s_waitcnt vmcnt(0)")
    for i in range(32):
        A(f"v_lshlrev_b32 v{QF+2*i}, 16, v{QR+i}")
        A(f"v_and_b32 v{QF+2*i+1}, s59, v{QR+i}")
    A("s_lshl_b32 s57, s98, 4")
    A("s_sub_u32 s58, s57, 16")
    A("v_min_u32 v12, 47, v1")
    A("v_add_u32 v12, s58, v12")
    A("v_max_i32 v12, 0, v12")
    A("v_min_u32 v12, 127, v12")
    A("v_lshlrev_b32 v12, 7, v12")
    A("s_add_u32 s57, s57, s99")
    A("s_lshl_b32 s57, s57, 7")
    A(f"s_add_u32 s57, s57, {F4-24*128:#x}")
    A(f"s_mov_b32 s58, {F4:#x}")
    Lx, Lq, Ld = A.newlabel("L_p7"), A.newlabel("L_pq"), A.newlabel("L_pd")
    A("s_cmp_ge_u32 s99, 24")
    A(f"s_cbranch_scc0 {Lq}")
    A("s_barrier")
    A("s_cmp_eq_u32 s48, 3")
    A(f"s_cbranch_scc0 {Lx}")
    set_flag(A, 8, "s57")
    poll(A, 14, 12, "s58", sleep=Opt.f4s)
    A.label(Lx)
    A("s_barrier")
    A(f"s_branch {Ld}")
    A.label(Lq)
    A("s_barrier")
    A("s_cmp_eq_u32 s48, 0")
    A(f"s_cbranch_scc0 {Lx}")
    poll(A, 14, 12, "s58", sleep=Opt.f4s)
    A(f"s_branch {Lx}")
    A.label(Ld)
    if Opt.dB:
        A(f"s_sleep {Opt.dB}")
    stamp(A, 12)
    for i in range(8):
        A(f"v_xor_b32 v8, {16*i}, v4")
        A(f"s_add_u32 m0, s56, {1024*i}")
        A(f"buffer_load_dwordx4 v8, s[{SWS}:{SWS+3}], s52 offen{SC} lds")
        if i < 7:
            A(f"s_add_u32 s52, s52, {8*Opt.pit}")
    A("v_xor_b32 v8, v2, v3")
    A("v_lshlrev_b32 v8, 4, v8")
    A("v_lshl_add_u32 v8, v3, 10, v8")
    A("v_add_u32 v8, s56, v8")
    A("s_waitcnt vmcnt(0)")
    for c in range(8):
        A(f"ds_read_b128 {vr(YR+4*c,4)}, v8 offset:{128*c}")
    A("s_waitcnt lgkmcnt(0)")
    stamp(A, 13)
    YF, OUT = 80, 96
    for i in range(8):
        for c in range(8):
            if i & 1:
                A(f"v_and_b32 v{YF+c}, s59, v{YR+4*c+i//2}")
            else:
                A(f"v_lshlrev_b32 v{YF+c}, 16, v{YR+4*c+i//2}")
        for c in range(0, 8, 2):
            A(f"v_pk_mul_f32 {vr(YF+c,2)}, {vr(YF+c,2)}, {vr(QF+8*i+c,2)}")
        for k in range(4):
            A(f"v_cvt_pk_bf16_f32 v{OUT+4*i+k}, v{YF+2*k}, v{YF+2*k+1}")
        A(f"s_add_u32 s57, s55, {rows[i]*2560}")
        A(f"buffer_store_dwordx4 {vr(OUT+4*i,4)}, v7, s[{SO}:{SO+3}], s57 offen{Opt.oscb}")
    stamp(A, 14)


def build():
    A = Asm()
    k = NAME + "_kernel"
    A.raw(f".globl {k}")
    A.raw(".p2align 8")
    A.raw(f".type {k},@function")
    A.label(k)
    if Opt.hold:
        A("s_memrealtime s[64:65]")
    load_kernargs(A)
    if Opt.lite:
        A("s_memrealtime s[64:65]")
    elif not Opt.hp:
        if Opt.rt:
            for k_ in range(2, 15):
                A(f"s_mov_b32 s{64+2*k_}, 0")
            stamp(A, 0, True)
        else:
            stamp_init(A)
        if Opt.rt:
            stamp(A, 1)
    A("v_lshrrev_b32 v2, 6, v0")
    A("v_and_b32 v1, 63, v0")
    A("v_readfirstlane_b32 s100, v2")
    A("s_and_b32 s98, s2, 7")
    A("s_lshr_b32 s99, s2, 3")
    A("s_cmp_ge_u32 s2, 192")
    A("s_cbranch_scc1 L_b")
    A("s_and_b32 s49, s2, 3")
    A("s_lshl_b32 s49, s49, 2")
    A("s_and_b32 s50, s99, 3")
    A("s_add_u32 s49, s49, s50")
    A("s_bfe_u32 s52, s2, 0x10002")
    A("s_lshr_b32 s53, s2, 5")
    A("s_lshl_b32 s54, s52, 1")
    A("s_add_u32 s54, s54, s53")
    A("s_lshl_b32 s55, s52, 2")
    A("s_add_u32 s55, s55, s53")
    A("s_sub_u32 s55, s55, 2")
    A("s_cmp_lt_u32 s2, 64")
    A("s_cselect_b32 s50, s54, s55")
    A("s_cselect_b32 s51, 1, 0")
    A("s_and_b32 s48, s100, 3")
    A("s_cmp_ge_u32 s100, 4")
    A("s_cbranch_scc1 L_c")
    role_loader(A)
    A.label("L_c")
    role_compute(A)
    A.label("L_b")
    A("s_cmp_ge_u32 s2, 256")
    A("s_cbranch_scc1 L_exit")
    A("s_mov_b32 s48, s100")
    A("s_cmp_ge_u32 s48, 5")
    A("s_cbranch_scc1 L_help")
    role_pre(A)
    A("s_branch L_bconv")
    A.label("L_help")
    role_helper(A)
    A.label("L_bconv")
    role_conv(A)
    A(f"s_cmp_lt_u32 s48, {5 if Opt.p3 else 4}")
    A("s_cbranch_scc1 L_bend")
    role_post(A)
    A.label("L_bend")
    end_wave(A, "b")
    A.label("L_exit")
    A("s_endpgm")
    A.label("L_code_end")
    head = [
        "; Hedgehog linear attention (cols 0..639) + H3 long convolution (cols 640..1279), one persistent launch.",
        "; Written with the generator script gen/f15.py (hand-scheduled instruction lists, own wait-state pass).",
        "; kernarg (s[0:1]): x, wqkv, w_phi, wo, q, k, v, shift_k, ssm_k, ssm_D, out, debug, ws (8 bytes each).",
        "; 256 workgroups x 8 waves, one per CU; wg = 8 i + x:",
        ";   i 0..7   Q : 128x160 tile of x@Wq -> pq (bf16) ; then 4 conv channels ; i<4 also a wo tile, i>=4 gate tiles",
        ";   i 8..23  KV: 128x160 tile of x@[Wk|Wv] -> softmax features -> partial phi_k^T [v 1] ; o = num/den ; wo tile",
        ";   i 24..31 B : shift conv * v (transposed), wo in fragment order, 6 conv channels, gate tiles",
        "; waves 0..3 of Q/KV stream operands (LDS DMA), waves 4..7 compute.  Hand-offs between workgroups go through",
        "; d_ws with write-through stores and one flag line per producer; flags carry this launch's tag (epoch word + 1,",
        "; published in d_debug).  The long convolution is a polyphase Toeplitz product on the matrix cores.",
        "; @launch grid=(256,1,1) block=(512,1,1) lds=163840"]
    txt = "\n".join(head) + '\n.amdgcn_target "amdgcn-amd-amdhsa--gfx950"\n.text\n' + A.text()
    txt += f'''.section .rodata,"a"
.p2align 6
.amdhsa_kernel {k}
  .amdhsa_next_free_vgpr 256
  .amdhsa_next_free_sgpr 102
  .amdhsa_accum_offset 256
  .amdhsa_group_segment_fixed_size 0
  .amdhsa_kernarg_size 104
  .amdhsa_user_sgpr_count 2
  .amdhsa_user_sgpr_kernarg_segment_ptr 1
  .amdhsa_system_sgpr_workgroup_id_x 1
.end_amdhsa_kernel
'''
    return txt


if __name__ == "__main__":
    args = sys.argv[2:]
    Ctx.stamps = "stamps" in args
    Opt.rot = "norot" not in args
    Opt.codepf = "nocodepf" not in args
    for a in args:
        if a.startswith("probe="):
            Opt.probe = tuple(int(x) for x in a[6:].split(","))
        if a.startswith("holdwg="):
            Opt.holdwg = int(a[7:])
        if a.startswith("osc="):
            Opt.osc = a[4:].replace("_", " ")
        if a.startswith("oscb="):
            Opt.oscb = a[5:].replace("_", " ")
        if a.startswith("gpf="):
            Opt.gpf = int(a[4:])
        if a.startswith("gpfd="):
            Opt.gpfd = int(a[5:])
        if a.startswith("rotA="):
            Opt.rotA = int(a[5:], 16)
        if a.startswith("rotB="):
            Opt.rotB = int(a[5:], 16)
        if a == "fake16":
            Opt.fake16 = True
        if a.startswith("qdelay="):
            Opt.qdelay = int(a[7:])
        if a.startswith("bpos="):
            Opt.bpos = int(a[5:])
        if a == "lidle":
            Opt.lidle = True
        if a == "qwait":
            Opt.qwait = True
        if a == "nofwarm":
            Opt.fwarm = False
        if a == "noprog":
            Opt.prog = False
        if a == "dflag":
            Opt.dflag = True
        if a == "lite":
            Opt.lite = True
            Ctx.stamps = True
        if a.startswith("wos="):
            Opt.wos = int(a[4:])
        if a.startswith("R="):
            Opt.R = int(a[2:])
        if a.startswith("hdef="):
            Opt.hdef = int(a[5:])
        if a.startswith("gpf2="):
            Opt.gpf2 = int(a[5:])
        if a.startswith("oahead="):
            Opt.oahead = int(a[7:])
        if a.startswith("hpsel="):
            Opt.hpsel = a[6:]
        if a.startswith("bdelay="):
            Opt.bdelay = int(a[7:])
        if a.startswith("qdel="):
            Opt.qdel = int(a[5:])
        if a == "snake":
            Opt.snake = True
        if a == "wrot":
            Opt.wrot = True
        if a.startswith("wfirst="):
            Opt.wfirst = int(a[7:])
        if a.startswith("wearly="):
            Opt.wearly = int(a[7:])
        if a.startswith("fwat="):
            Opt.fwat = int(a[5:])
        if a.startswith("only="):
            Opt.only = [0, 1, 15] + [int(x) for x in a[5:].split(",")]
        if a.startswith("touch="):
            Opt.touch = int(a[6:])
        if a.startswith("tsh="):
            Opt.tsh = int(a[4:])
        for nm in ("ldw", "ldo", "ldp", "stw", "ntk", "nth", "ntq"):
            if a.startswith(nm + "="):
                setattr(Opt, nm, a[4:].replace("_", " "))
        if a.startswith("wback="):
            Opt.wback = int(a[6:])
        if a.startswith("wthr="):
            Opt.wthr = int(a[5:])
        if a.startswith("wstr="):
            Opt.wstr = int(a[5:])
        if a == "fullout":
            Opt.fullout = True
        if a == "noearly":
            Opt.noearly = True
        if a.startswith("lprio="):
            Opt.lprio = int(a[6:])
        if a.startswith("lprio0="):
            Opt.lprio0 = int(a[7:])
        if a.startswith("wmid="):
            Opt.wmid = int(a[5:])
        if a.startswith("pfw="):
            Opt.pfw = [int(c) for c in a[4:]]
            Opt.gpf2 = 0
        if a.startswith("pfx="):
            Opt.pfx = [int(c) for c in a[4:]]
            Opt.gpf2 = 0
        if a.startswith("pfm="):
            Opt.pfm = [int(c, 16) for c in a[4:]]
        if a.startswith("wbf="):
            Opt.wbf = int(a[4:])
        if a.startswith("qlate="):
            Opt.qlate = int(a[6:])
        if a.startswith("wpk="):
            Opt.wpk = int(a[4:])
        for nm in ("f0s", "tgs", "f2s", "f4s", "tagl", "pit", "p3", "pqsync", "qpipe", "lag", "f2all", "f1all", "fww"):
            if a.startswith(nm + "="):
                setattr(Opt, nm, int(a.split("=")[1]))
        if a.startswith("bwarm="):
            Opt.bwarm = int(a[6:])
        if a.startswith("pft="):
            v_ = a[4:]
            Opt.pft = [(int(v_[i]), v_[i + 1]) for i in range(0, len(v_), 2)]
            Opt.gpf2 = 0
        if a == "rt":
            Opt.rt = True
        if a.startswith("hp="):
            Opt.hp = int(a[3:])
            Ctx.stamps = True
        if a.startswith("hold="):
            Opt.hold = int(a[5:])
        if a.startswith("dA="):
            Opt.dA = int(a[3:])
        if a.startswith("dB="):
            Opt.dB = int(a[3:])
        if a == "nowomall":
            Opt.womall = False
        if a == "noppoll":
            Opt.ppoll = False
        if a.startswith("psleep="):
            Opt.psleep = int(a[7:])
        if a.startswith("wopf="):
            Opt.wopf = a[5:]
    for a in args:
        if a.startswith("LA="):
            Opt.LA = int(a[3:])
    open(sys.argv[1], "w").write(build())
```

```python
import sys
from asm import Asm, vr, ar, sr
from roles import (WS_PHIQ, WS_PART, WS_O, WS_KVT, WS_YT, WS_STAMP, WS_SIZE, S_X, S_W, S_WPHI, S_WO, S_BQ, S_BK, S_BV,
                   S_SH, S_SSK, S_SSD, S_OUT, S_DBG, S_WS, NB_X, NB_W, NB_WPHI, NB_WO, NB_SH, NB_SSK, NB_OUT, LOG2E,
                   Ctx, load_kernargs, srd, stamp, stamp_init, softmax20)

NAME = "concat_heads__linear_kernel_hedgehog__ssm_conv_h3__prompt"
WS_PQ = WS_PHIQ
WS_PART, WS_O, WS_KVT, WS_YT = 0x380000, 0x4C0000, 0x740000, 0xA40000
WS_FLAG = 0xF00000
F1, F2, F3, F0, F4 = (WS_FLAG + 128 * o for o in (0, 512, 1024, 1536, 1856))
FW = WS_FLAG + 128 * 2048
WS_WOT = 0x280000
WS_EPOCH = WS_FLAG + 128 * 2560 + 64
SWS = 44
SC = " sc1"
TAG = 30
SLOT = 36864
L_WP = 147456
L_Z = L_WP + 8192
L_SYNC = L_Z + 4096
L_V = 128 * 336
L_WOB = 69632
L_OT = 65536
CV_LDS = 8768
L_QCV = 3 * SLOT
B_PRE = 8 * CV_LDS
B_MB = B_PRE + 5 * 8320


class Opt:
    rot = True
    LA = 2
    ntk = ""
    nth = " nt"
    ntq = " nt"
    codepf = True
    wopf = "no"
    osc = " sc1 nt"
    oscb = " sc1 nt"
    hp = 0
    hq = 1
    lws = 0
    fww = 0
    f2all = 0
    f1all = 0
    lag = 0
    qpipe = 0
    pft = []
    npft = 0
    pqsync = 0
    p3 = 1
    pit = 4352
    bwarm = 2
    f0s = 4
    tgs = 8
    f2s = 4
    f4s = 4
    tagl = 0
    wpk = 22
    qlate = 1
    wbf = 6
    pfm = [2, 7, 15]
    pfw = []
    pfx = []
    wmid = 32
    lprio = 0
    lprio0 = 1
    stw = SC
    noearly = False
    fullout = True
    wthr = 0
    wstr = 40960
    wback = 0
    ldw = SC
    ldo = SC
    ldp = SC
    touch = 0
    tsh = 20
    only = None
    fwat = 9
    par = 0x32
    wearly = 0
    wrot = False
    wfirst = 26
    bdelay = 0
    qdel = 0
    snake = False
    hpsel = "kv"
    oahead = 5
    gpf2 = 3
    hdef = 1
    R = 10
    wos = 1
    lite = False
    dflag = False
    prog = True
    fwarm = True
    qwait = False
    lidle = False
    bpos = 4
    fake16 = False
    qdelay = 0
    rotA = 0x5050
    rotB = 0x550050
    gpf = 0
    gpfd = 99
    rt = False
    ppoll = False
    womall = True
    probe = None
    dA = 0
    hold = 0
    holdwg = -1
    dB = 0
    psleep = 2


_stamp0 = stamp


def stamp(A, k, real=False):
    if Opt.hp:
        if k == Opt.hp:
            A("s_memrealtime s[64:65]")
        return
    if Opt.lite and k not in (0, 15):
        return
    if Opt.only and k not in Opt.only:
        return
    _stamp0(A, k, real or Opt.rt)


def end_wave(A, holdable=False):
    if Opt.hp:
        if (holdable is True and Opt.hpsel in ("kv", "qw")) or (holdable == "b" and Opt.hpsel in ("b", "qs")):
            L = A.newlabel("L_hp")
            A("s_cmp_lt_u32 s99, 8")
            A("s_cbranch_scc1 L_exit" if Opt.hpsel in ("kv", "b") else "s_cbranch_scc0 L_exit")
            if holdable == "b":
                A("s_cmp_lt_u32 s100, 4")
                A("s_cbranch_scc1 L_exit")
            A.label(L)
            A("s_sleep 4")
            A("s_memrealtime s[66:67]")
            A("s_waitcnt lgkmcnt(0)")
            A("s_sub_u32 s66, s66, s64")
            A("s_cmp_lt_u32 s66, 2000")
            A(f"s_cbranch_scc1 {L}")
    elif Ctx.stamps:
        A("s_waitcnt vmcnt(0)")
        stamp(A, 15, True)
        A("s_waitcnt lgkmcnt(0)")
        A("s_mov_b64 exec, -1")
        A("v_mov_b32 v2, 0")
        for k in ((0, 15) if Opt.lite else range(16)):
            A(f"v_writelane_b32 v2, s{64+2*k}, {k}")
        A("s_lshl_b32 s62, s2, 3")
        A("s_add_u32 s62, s62, s100")
        A("s_lshl_b32 s62, s62, 6")
        A(f"s_add_u32 s62, s62, {WS_STAMP:#x}")
        A("v_lshlrev_b32 v1, 2, v1")
        A("s_mov_b64 exec, 0xffff")
        A(f"buffer_store_dword v2, v1, s[{SWS}:{SWS+3}], s62 offen sc1")
        if Opt.probe:
            Lp = A.newlabel("L_probe")
            A(f"s_cmp_eq_u32 s2, {Opt.probe[0]}")
            A(f"s_cbranch_scc0 {Lp}")
            A(f"s_cmp_eq_u32 s100, {Opt.probe[1]}")
            A(f"s_cbranch_scc0 {Lp}")
            A("v_subrev_u32 v3, s66, v2")
            A("s_sub_u32 s62, s94, s64")
            A("v_writelane_b32 v3, s62, 15")
            A("v_cmp_ne_u32 vcc, 0, v2")
            A("v_cndmask_b32 v3, 0, v3, vcc")
            A("s_mov_b64 exec, 0xfffc")
            A(f"global_store_dword v1, v3, s[{S_DBG}:{S_DBG+1}]")
            A.label(Lp)
    A("s_endpgm")


def stampw(A, k):
    stamp(A, k)
    if Ctx.stamps:
        A("s_waitcnt lgkmcnt(0)")


def poll(A, vt, voff, soff, sleep=1):
    L, Ld = A.newlabel("L_poll"), A.newlabel("L_polld")
    A("s_movk_i32 s101, 0x4000")
    A.label(L)
    A(f"buffer_load_dwordx2 {vr(vt,2)}, v{voff}, s[{SWS}:{SWS+3}], {soff} offen{SC}")
    A("s_waitcnt vmcnt(0)")
    A(f"v_cmp_eq_u64 vcc, s[{TAG}:{TAG+1}], {vr(vt,2)}")
    A("s_cmp_eq_u64 vcc, -1")
    A(f"s_cbranch_scc1 {Ld}")
    A(f"s_sleep {sleep}")
    A("s_sub_u32 s101, s101, 1")
    A("s_cmp_eq_u32 s101, 0")
    A(f"s_cbranch_scc0 {L}")
    A("s_endpgm")
    A.label(Ld)


def ppoll(A, vt, voff, soff, sleep=1, depth=4):
    if not Opt.ppoll:
        return poll(A, vt, voff, soff, sleep=sleep)
    L, Ld = A.newlabel("L_pp"), A.newlabel("L_ppd")
    ld = lambda k: f"buffer_load_dwordx2 {vr(vt+2*k,2)}, v{voff}, s[{SWS}:{SWS+3}], {soff} offen{SC}"
    A("s_movk_i32 s101, 0x4000")
    for k in range(depth - 1):
        A(ld(k))
        A(f"s_sleep {sleep}")
    A.label(L)
    for k in range(depth):
        A(ld((k + depth - 1) % depth))
        A(f"s_waitcnt vmcnt({depth-1})")
        A(f"v_cmp_eq_u64 vcc, s[{TAG}:{TAG+1}], {vr(vt+2*k,2)}")
        A("s_cmp_eq_u64 vcc, -1")
        A(f"s_cbranch_scc1 {Ld}")
        A(f"s_sleep {sleep}")
    A("s_sub_u32 s101, s101, 1")
    A("s_cmp_eq_u32 s101, 0")
    A(f"s_cbranch_scc0 {L}")
    A("s_endpgm")
    A.label(Ld)


def set_flag(A, vt, soff):
    A(f"v_mov_b32 v{vt}, s{TAG}")
    A(f"v_mov_b32 v{vt+1}, s{TAG+1}")
    A(f"v_lshlrev_b32 v{vt+2}, 3, v1")
    A("s_waitcnt vmcnt(0)")
    A("s_mov_b64 exec, 0xffff")
    A(f"buffer_store_dwordx2 {vr(vt,2)}, v{vt+2}, s[{SWS}:{SWS+3}], {soff} offen{SC}")
    A("s_mov_b64 exec, -1")


def tag_issue(A):
    A(f"s_load_dwordx2 s[{TAG}:{TAG+1}], s[{S_DBG}:{S_DBG+1}], 0")


def tag_check(A, vt):
    L, Ld = A.newlabel("L_hs"), A.newlabel("L_hsd")
    A("s_waitcnt lgkmcnt(0)")
    A(f"s_cmp_lg_u32 s{TAG}, s{TAG+1}")
    A(f"s_cbranch_scc1 {Ld}")
    A("s_movk_i32 s101, 0x4000")
    A(f"v_mov_b32 v{vt+2}, 0")
    A.label(L)
    A(f"global_load_dwordx2 {vr(vt,2)}, v{vt+2}, s[{S_DBG}:{S_DBG+1}]{SC}")
    A("s_waitcnt vmcnt(0)")
    A(f"v_readfirstlane_b32 s{TAG}, v{vt}")
    A(f"v_readfirstlane_b32 s{TAG+1}, v{vt+1}")
    A("s_nop 3")
    A(f"s_cmp_lg_u32 s{TAG}, s{TAG+1}")
    A(f"s_cbranch_scc1 {Ld}")
    A(f"s_sleep {Opt.tgs}")
    A("s_sub_u32 s101, s101, 1")
    A("s_cmp_eq_u32 s101, 0")
    A(f"s_cbranch_scc0 {L}")
    A("s_endpgm")
    A.label(Ld)


def lds_arrive(A, vt, addr):
    A(f"v_mov_b32 v{vt}, {addr}")
    A(f"v_mov_b32 v{vt+1}, 1")
    A("s_waitcnt lgkmcnt(0)")
    A("s_mov_b64 exec, 1")
    A(f"ds_add_u32 v{vt}, v{vt+1}")
    A("s_mov_b64 exec, -1")


def lds_wait(A, vt, addr, n, sleep=0):
    L, Ld = A.newlabel("L_lw"), A.newlabel("L_lwd")
    if addr is not None:
        A(f"v_mov_b32 v{vt}, {addr}")
    A("s_mov_b32 s101, 0x40000")
    A.label(L)
    A(f"ds_read_b32 v{vt+1}, v{vt}")
    A("s_waitcnt lgkmcnt(0)")
    A(f"v_cmp_le_u32 vcc, {n}, v{vt+1}")
    A(f"s_cbranch_vccnz {Ld}")
    if max(sleep, Opt.lws):
        A(f"s_sleep {max(sleep, Opt.lws)}")
    A("s_sub_u32 s101, s101, 1")
    A("s_cmp_eq_u32 s101, 0")
    A(f"s_cbranch_scc0 {L}")
    A("s_endpgm")
    A.label(Ld)


class Lgkm:
    def __init__(self, A):
        self.A, self.n, self.done, self.tag = A, 0, 0, {}

    def issue(self, text, tag=None):
        self.A(text)
        self.n += 1
        if tag is not None:
            self.tag[tag] = self.n

    def wait(self, *tags):
        need = max(self.tag[t] for t in tags)
        if need > self.done:
            self.A(f"s_waitcnt lgkmcnt({min(15, self.n - need)})")
            self.done = max(need, self.n - 15)

    def all(self):
        if self.done < self.n:
            self.A("s_waitcnt lgkmcnt(0)")
            self.done = self.n


def softmax_parts(X, E, F, T, PH):
    mx, mn = T, T + 2
    mm = [f"v_max3_f32 v{mx}, v{X}, v{X+1}, v{X+2}", f"v_min3_f32 v{mn}, v{X}, v{X+1}, v{X+2}"]
    for i in range(3, 19, 2):
        mm += [f"v_max3_f32 v{mx}, v{mx}, v{X+i}, v{X+i+1}", f"v_min3_f32 v{mn}, v{mn}, v{X+i}, v{X+i+1}"]
    mm += [f"v_max_f32 v{mx}, v{mx}, v{X+19}", f"v_min_f32 v{mn}, v{mn}, v{X+19}",
           f"v_mul_f32 v{mx}, s60, v{mx}", f"v_mul_f32 v{mn}, s60, v{mn}"]
    fm, ex = [], []
    for i in range(0, 20, 2):
        fm.append(f"v_pk_fma_f32 {vr(E+i,2)}, {vr(X+i,2)}, s[60:61], {vr(mx,2)} op_sel_hi:[1,1,0] neg_lo:[0,0,1] neg_hi:[0,0,1]")
        fm.append(f"v_pk_fma_f32 {vr(F+i,2)}, {vr(X+i,2)}, s[60:61], {vr(mn,2)} op_sel_hi:[1,1,0] neg_lo:[1,0,0] neg_hi:[1,0,0]")
    for i in range(20):
        ex += [f"v_exp_f32 v{E+i}, v{E+i}", f"v_exp_f32 v{F+i}, v{F+i}"]
    se, sf = T + 4, T + 6
    sm = [f"v_pk_add_f32 {vr(se,2)}, {vr(E,2)}, {vr(E+2,2)}", f"v_pk_add_f32 {vr(sf,2)}, {vr(F,2)}, {vr(F+2,2)}"]
    for i in range(4, 20, 2):
        sm += [f"v_pk_add_f32 {vr(se,2)}, {vr(se,2)}, {vr(E+i,2)}", f"v_pk_add_f32 {vr(sf,2)}, {vr(sf,2)}, {vr(F+i,2)}"]
    fin = [f"v_add_f32 v{se}, v{se}, v{se+1}", f"v_add_f32 v{sf}, v{sf}, v{sf+1}",
           f"v_rcp_f32 v{se}, v{se}", f"v_rcp_f32 v{sf}, v{sf}"]
    tail = []
    for j in range(20):
        R, s_ = (E + 2 * j, se) if j < 10 else (F + 2 * (j - 10), sf)
        tail.append((f"v_pk_mul_f32 {vr(R,2)}, {vr(R,2)}, {vr(s_,2)} op_sel_hi:[1,0]", f"v_cvt_pk_bf16_f32 v{PH+j}, v{R}, v{R+1}"))
    return mm, fm, ex, sm, fin, tail


def merge(main, extra, every, start=0):
    out, extra = [], list(extra)
    for i, x in enumerate(main):
        out.append(x)
        if extra and i >= start and (i - start) % every == every - 1:
            out.append(extra.pop(0))
    return out + extra


def touch(A, v, sd, shift):
    A(f"v_lshlrev_b32 v{v}, {shift}, v1")
    A(f"buffer_load_dword v{v+1}, v{v}, s[{SWS}:{SWS+3}], 0 offen")
    srd(A, sd, S_OUT, NB_OUT)
    A(f"buffer_load_dword v{v+2}, v{v}, s[{sd}:{sd+3}], 0 offen")


def o_index(A):
    A("s_sub_u32 s63, s99, 8")
    A("s_lshr_b32 s62, s63, 2")
    A("s_lshl_b32 s3, s98, 2")
    A("s_add_u32 s62, s62, s3")
    A("s_and_b32 s63, s63, 3")
    A("s_lshl_b32 s63, s63, 2")
    A("s_add_u32 s63, s63, s48")


WR = 64


def wo_index(A):
    A("s_lshr_b32 s50, s99, 2")
    A("s_sub_u32 s50, s50, 1")
    A("s_max_i32 s50, s50, 0")
    A("s_lshl_b32 s50, s50, 2")
    A("s_add_u32 s50, s50, s48")
    A("s_lshl_b32 s52, s50, 6")
    A(f"s_mul_i32 s51, s50, {Opt.wstr}")
    A(f"s_add_u32 s51, s51, {WS_WOT:#x}")
    A("s_lshl_b32 s54, s50, 10")
    A(f"s_add_u32 s54, s54, {FW:#x}")
    A("v_lshlrev_b32 v18, 4, v1")


def wload(A, f0, f1):
    for f in range(f0, f1):
        if Opt.wthr and f >= Opt.wbf:
            A(f"s_waitcnt vmcnt({Opt.wthr-1})")
        if Opt.only and f in (14, 22, 30, 38):
            stamp(A, {14: 2, 22: 3, 30: 4, 38: 5}[f])
        if f % 4 == 0 or f == f0:
            A(f"s_add_u32 s53, s51, {4096*(f//4)}")
        A(f"buffer_load_dwordx4 {vr(WR+4*f,4)}, v18, s[{SWS}:{SWS+3}], s53 offen offset:{1024*(f&3)}{Opt.ldw}")


def role_loader(A):
    SX, SW, SP = 32, 36, 40
    VX, VW = 24, 28
    t0, t1, t2, t3 = 11, 12, 13, 14
    A(f"s_setprio {Opt.lprio0}")
    A(f"v_lshrrev_b32 v{t0}, 3, v1")
    A(f"v_mul_u32_u24 v{t0}, 1280, v{t0}")
    A(f"v_lshrrev_b32 v{t1}, 4, v1")
    A(f"v_and_b32 v{t2}, 7, v1")
    A(f"v_xor_b32 v{t1}, v{t1}, v{t2}")
    A(f"v_xor_b32 v{t2}, 4, v{t1}")
    A(f"v_lshl_add_u32 v{VX}, v{t1}, 4, v{t0}")
    A(f"v_lshl_add_u32 v{VX+1}, v{t2}, 4, v{t0}")
    A(f"v_add_u32 v{VX+2}, {2*(8*1280-1024)}, v{VX}")
    A(f"v_add_u32 v{VX+3}, {3*(8*1280-1024)}, v{VX+1}")
    A(f"v_add_u32 v{VX+1}, {8*1280-1024}, v{VX+1}")
    A("s_lshl_b32 s60, s49, 2")
    A("s_add_u32 s60, s60, s48")
    A(f"s_mul_i32 s60, s60, {32*1280}")
    A("s_lshr_b32 s30, s99, 2")
    A(f"s_lshr_b32 s30, {Opt.par:#x}, s30")
    A("s_xor_b32 s30, s30, s49")
    A("s_and_b32 s30, s30, 1")
    A("s_mul_i32 s31, s30, 640")
    A("s_add_u32 s60, s60, s31")
    A("s_lshl_b32 s62, s48, 12")
    A("s_mov_b32 m0, s62")
    A(f"s_mov_b32 s{SX+2}, {NB_X:#x}")
    A(f"s_mov_b32 s{SX+3}, 0x20000")
    A("s_waitcnt lgkmcnt(0)")
    A(f"s_mov_b64 s[{SX}:{SX+1}], s[{S_X}:{S_X+1}]")

    def dma_x(s):
        if s:
            A(f"s_add_u32 m0, s62, {(s % 3) * SLOT}")
        for i in range(4):
            A(f"buffer_load_dwordx4 v{VX+i}, s[{SX}:{SX+3}], s60 offen offset:{1024*i} lds")

    def dma_w(s):
        sl = (s % 3) * SLOT
        A(f"s_add_u32 m0, s63, {sl}")
        for i in range(4):
            A(f"buffer_load_dwordx4 v{VW+i}, s[{SW}:{SW+3}], s61 offen offset:{1024*i} lds")
        A(f"s_add_u32 m0, s63, {sl+4096}")
        A(f"buffer_load_dwordx4 v{VW+4}, s[{SW}:{SW+3}], s61 offen lds")
        if s < 9:
            if s == 4:
                A("s_add_u32 s60, s60, s97")
                A("s_add_u32 s61, s61, s96")
            else:
                A("s_add_u32 s60, s60, 128")
                A(f"s_add_u32 s61, s61, {64*3840}")

    dma_x(0)
    A("s_cmp_eq_u32 s51, 0")
    A("s_cselect_b32 s56, 1120, 0")
    A("s_add_u32 s58, s51, 1")
    A(f"v_xor_b32 v15, s58, v1")
    A(f"v_cmp_gt_u32 vcc, 32, v1")
    A("s_movk_i32 s57, 3520")
    A(f"v_cndmask_b32 v16, v15, v1, vcc")
    for i in range(5):
        src = (1, 1, 16, 15, 15)[i]
        A(f"v_add_u32 v{t2}, {64*i}, v{src}")
        A(f"v_mul_u32_u24 v{t2}, 6554, v{t2}")
        A(f"v_lshlrev_b32 v{t3}, 4, v{src}")
        A(f"v_lshrrev_b32 v{t0}, 17, v{t2}")
        A(f"v_bfe_u32 v{t1}, v{t2}, 16, 1")
        A(f"v_mad_u32_u24 v{t0}, v{t0}, s57, v{t3}")
        A(f"v_mad_u32_u24 v{VW+i}, v{t1}, s56, v{t0}")
    A(f"v_lshlrev_b32 v{t3}, 4, v1")
    A(f"v_add_u32 v{VW+4}, 4096, v{VW+4}")
    A(f"s_mul_i32 s61, s48, {16*3840}")
    A("s_mul_i32 s57, s50, 160")
    A("s_add_u32 s58, s57, 1280")
    A("s_lshl_b32 s57, s57, 1")
    A("s_cmp_eq_u32 s51, 0")
    A("s_cselect_b32 s57, s58, s57")
    A("s_add_u32 s61, s61, s57")
    A(f"s_mul_i32 s96, s30, {5*64*3840}")
    A("s_add_u32 s61, s61, s96")
    A("s_mul_i32 s63, s48, 5120")
    A("s_add_u32 s63, s63, 16384")
    srd(A, SW, S_W, NB_W)
    dma_w(0)
    stamp(A, 2)
    A("s_lshl_b32 s96, s96, 1")
    A(f"s_sub_u32 s96, {64*3840}, s96")
    A("s_lshl_b32 s97, s31, 1")
    A("s_sub_u32 s97, 128, s97")
    A("s_mul_i32 s57, s50, 3200")
    A("s_lshl_b32 s57, s57, s51")
    A("s_lshl_b32 s58, s48, 11")
    A("s_add_u32 s57, s57, s58")
    srd(A, SP, S_WPHI, NB_WPHI)
    A(f"s_add_u32 m0, s58, {L_WP}")
    A(f"buffer_load_dwordx4 v{t3}, s[{SP}:{SP+3}], s57 offen lds")
    A(f"buffer_load_dwordx4 v{t3}, s[{SP}:{SP+3}], s57 offen offset:1024 lds")
    srd(A, SWS, S_WS, WS_SIZE)
    Lh = A.newlabel("L_noh")
    A("s_cmp_eq_u32 s51, 0")
    A(f"s_cbranch_scc1 {Lh}")
    A("s_mul_i32 s49, s98, 80")
    A("s_lshl_b32 s50, s99, 2")
    A("s_add_u32 s49, s49, s50")
    A("s_add_u32 s49, s49, s48")
    A("s_add_u32 s49, s49, 48")
    A(f"s_mul_i32 s56, s48, {CV_LDS}")
    A(f"s_add_u32 s56, s56, {L_QCV}")
    A("s_lshl_b32 s50, s49, 12")
    A.label(Lh)
    assert Opt.LA == 2
    issued = 0
    for s in range(10):
        while issued < min(s + Opt.LA - 1, 9):
            issued += 1
            dma_x(issued)
            dma_w(issued)
        if s == 0:
            Ls = A.newlabel("L_nosetup")
            A("s_cmp_ge_u32 s99, 8")
            A(f"s_cbranch_scc1 {Ls}")
            conv_setup(A)
            f0_lines(A, 49, 49, 12)
            A.label(Ls)
        if s == 6:
            tag_issue(A)
        if s == Opt.fwat:
            Lf = A.newlabel("L_nofw")
            A("s_cmp_lt_u32 s99, 8")
            A(f"s_cbranch_scc1 {Lf}")
            wo_index(A)
            A(f"s_add_u32 s42, s{S_WS}, s54")
            A(f"s_addc_u32 s43, s{S_WS+1}, 0")
            for k in range(8):
                A(f"s_load_dwordx2 s[{4+2*k}:{5+2*k}], s[42:43], {128*k}")
            A.label(Lf)
        def fast_check():
            A("s_cmp_lt_u32 s99, 8")
            A("s_cbranch_scc1 L_q9")
            A("s_waitcnt lgkmcnt(0)")
            A("s_mov_b32 s3, 0")
            for k in range(8):
                A(f"s_cmp_eq_u64 s[{4+2*k}:{5+2*k}], s[{TAG}:{TAG+1}]")
                A("s_addc_u32 s3, s3, 0")
            A(f"s_cmp_lg_u32 s{TAG}, s{TAG+1}")
            A("s_addc_u32 s3, s3, 0")
            A(f"s_cmp_eq_u32 s3, {19 if Opt.noearly else 9}")
            A("s_cbranch_scc0 L_q9")

        if s == 9 and Opt.wearly:
            fast_check()
            wload(A, 0, Opt.wearly)
            A(f"s_waitcnt vmcnt({Opt.wearly})")
            A("s_barrier")
            stamp(A, 6)
            wload(A, Opt.wearly, Opt.wbf)
            A("s_barrier")
            A("s_branch L_wrest")
            A.label("L_q9")
        A(f"s_waitcnt vmcnt({9*(issued-s)})")
        A("s_barrier")
        if s in (0, 3, 6, 9):
            stamp(A, 3 + s // 3)
        if s == 9 and not Opt.wearly:
            fast_check()
            wload(A, 0, Opt.wbf)
            A("s_barrier")
            A("s_branch L_wrest")
            A.label("L_q9")
    A("s_setprio 0")
    A("s_cmp_lt_u32 s99, 8")
    A("s_cbranch_scc1 L_conv")
    role_wo(A)


def role_wo(A):
    SO, SWO = 32, 36
    A.label("L_wo")
    A(f"s_setprio {Opt.lprio}")
    wo_index(A)
    A("v_lshrrev_b32 v15, 3, v1")
    A("v_lshlrev_b32 v15, 7, v15")
    A("v_lshlrev_b32 v18, 4, v1")
    tag_check(A, 20)
    A(f"buffer_load_dwordx2 v[16:17], v15, s[{SWS}:{SWS+3}], s54 offen{SC}")
    Lj, Lk = A.newlabel("L_woj"), A.newlabel("L_wok")
    A("s_cmp_lt_u32 s99, 8")
    A(f"s_cbranch_scc1 {Lj}")
    A("s_barrier")
    A.label(Lj)
    A("s_waitcnt vmcnt(0)")
    A(f"v_cmp_eq_u64 vcc, s[{TAG}:{TAG+1}], v[16:17]")
    A("s_cmp_eq_u64 vcc, -1")
    A(f"s_cbranch_scc1 {Lk}")
    poll(A, 16, 15, "s54", sleep=8)
    A.label(Lk)

    wload(A, 0, Opt.wbf)
    A.label("L_wrest")
    A(f"s_setprio {Opt.lprio}")
    wload(A, Opt.wbf, Opt.wpk if Opt.wpk else Opt.wfirst)
    A("v_lshrrev_b32 v2, 2, v1")
    A("v_and_b32 v3, 3, v1")
    A("s_mul_i32 s58, s48, 20480")
    A(f"s_add_u32 s58, s58, {L_WOB}")
    A("v_lshrrev_b32 v11, 5, v1")
    A("v_and_b32 v9, 31, v1")
    A("v_lshrrev_b32 v15, 4, v1")
    A("v_lshlrev_b32 v15, 7, v15")
    o_index(A)
    Lq1, Lq2 = A.newlabel("L_woq"), A.newlabel("L_woq")
    A("s_cmp_lt_u32 s99, 8")
    A(f"s_cbranch_scc1 {Lq2}")
    A("s_lshr_b32 s54, s62, 2")
    A("s_lshl_b32 s54, s54, 4")
    A("s_add_u32 s54, s54, s63")
    A("s_lshl_b32 s54, s54, 8")
    if Opt.f2all:
        A("s_and_b32 s54, s54, 0xfffffc00")
        A("v_lshrrev_b32 v19, 3, v1")
        A("v_lshlrev_b32 v19, 7, v19")
    else:
        A("v_lshlrev_b32 v19, 7, v11")
    A(f"s_add_u32 s54, s54, {F2:#x}")
    A("s_lshl_b32 s55, s62, 4")
    A("s_add_u32 s55, s55, s63")
    A("s_mul_i32 s55, s55, 5120")

    def pqdma():
        A("s_mov_b32 m0, s58")
        A("s_add_u32 s56, s55, 4096")
        for i in range(4):
            A(f"buffer_load_dwordx4 v18, s[{SWS}:{SWS+3}], s55 offen offset:{1024*i}{SC} lds")
        A("s_add_u32 m0, s58, 4096")
        A(f"buffer_load_dwordx4 v18, s[{SWS}:{SWS+3}], s56 offen{SC} lds")

    Lslow, Ljn = A.newlabel("L_pqs"), A.newlabel("L_pqj")
    if Opt.wpk:
        A(f"buffer_load_dwordx2 v[16:17], v19, s[{SWS}:{SWS+3}], s54 offen{SC}")
        wload(A, Opt.wpk, Opt.wpk + 4)
        A("s_waitcnt vmcnt(4)")
        A(f"v_cmp_eq_u64 vcc, s[{TAG}:{TAG+1}], v[16:17]")
        A("s_cmp_eq_u64 vcc, -1")
        A(f"s_cbranch_scc0 {Lslow}")
        pqdma()
        wload(A, Opt.wpk + 4, Opt.wfirst)
        A(f"s_waitcnt vmcnt({Opt.wfirst - Opt.wpk - 4})")
        A(f"s_branch {Ljn}")
        A.label(Lslow)
        wload(A, Opt.wpk + 4, Opt.wfirst)
    if Opt.lag:
        stamp(A, 4)
    poll(A, 16, 19, "s54", sleep=Opt.f2s)
    if Opt.lag:
        stamp(A, 5)
    pqdma()
    A("s_waitcnt vmcnt(0)")
    A.label(Ljn)
    A("s_lshl_b32 s54, s48, 2")
    A(f"s_add_u32 s54, s54, {L_SYNC+16}")
    lds_arrive(A, 16, "s54")
    if Opt.pqsync:
        lds_arrive(A, 16, L_SYNC + 4)
    stamp(A, 14)
    A("s_lshl_b32 s54, s62, 2")
    A("s_add_u32 s54, s54, s48")
    A("s_mul_i32 s55, s54, 10240")
    A(f"s_add_u32 s55, s55, {WS_PART:#x}")
    A("s_lshl_b32 s54, s54, 9")
    if Opt.f1all:
        A("s_and_b32 s54, s54, 0xfffff800")
        A("v_lshrrev_b32 v15, 2, v1")
        A("v_lshlrev_b32 v15, 7, v15")
    A(f"s_add_u32 s54, s54, {F1:#x}")
    A("v_min_u32 v19, 20, v9")
    A("v_and_b32 v20, 32, v1")
    A("v_add_u32 v19, v19, v20")
    A("v_lshlrev_b32 v20, 3, v19")
    A("v_lshlrev_b32 v19, 4, v19")
    A("s_mul_i32 s57, s48, 5120")
    A("v_add_u32 v21, s57, v18")
    A("s_mov_b32 s59, 0xffff0000")
    lds_wait(A, 16, L_SYNC + 4, 8 if Opt.pqsync else 4, sleep=2)
    stamp(A, 7)
    wload(A, Opt.wfirst, max(Opt.wmid, Opt.wfirst))
    PR = [24, 34, 44, 54]
    SM, TP = 224, 244

    def pload(p):
        so = "s55" if p < 1 else f"s{40+p}"
        A(f"buffer_load_dwordx4 {vr(PR[p],4)}, v19, s[{SWS}:{SWS+3}], {so} offen{Opt.ldp}")
        A(f"buffer_load_dwordx4 {vr(PR[p]+4,4)}, v19, s[{SWS}:{SWS+3}], {so} offen offset:1024{Opt.ldp}")
        A(f"buffer_load_dwordx2 {vr(PR[p]+8,2)}, v20, s[{SWS}:{SWS+3}], {so} offen offset:2048{Opt.ldp}")

    for p in (1, 2, 3):
        A(f"s_add_u32 s{40+p}, s55, {2560*p}")
    if Opt.prog:
        L, Ld = A.newlabel("L_pg"), A.newlabel("L_pgd")
        A("s_mov_b64 s[56:57], 0")
        A("s_movk_i32 s101, 0x4000")
        A.label(L)
        A(f"buffer_load_dwordx2 v[16:17], v15, s[{SWS}:{SWS+3}], s54 offen{SC}")
        A("s_waitcnt vmcnt(0)")
        A(f"v_cmp_eq_u64 vcc, s[{TAG}:{TAG+1}], v[16:17]")
        A("s_andn2_b64 s[50:51], vcc, s[56:57]" if False else "s_andn2_b64 s[96:97], vcc, s[56:57]")
        A("s_mov_b64 s[56:57], vcc")
        for p in range(4):
            Ls = A.newlabel("L_pgs")
            A(f"s_bitcmp1_b64 s[96:97], {16*p}")
            A(f"s_cbranch_scc0 {Ls}")
            pload(p)
            A.label(Ls)
        A("s_cmp_eq_u64 s[56:57], -1")
        A(f"s_cbranch_scc1 {Ld}")
        A(f"s_sleep {Opt.psleep}")
        A("s_sub_u32 s101, s101, 1")
        A(f"s_cbranch_scc0 {L}")
        A("s_endpgm")
        A.label(Ld)
        stamp(A, 12)
        A("s_waitcnt vmcnt(0)")
    else:
        ppoll(A, 244, 15, "s54", sleep=Opt.psleep)
        stamp(A, 12)
        for p in range(4):
            pload(p)
    A("s_setprio 3")
    for p in range(4):
        A(f"s_waitcnt vmcnt({9-3*p})")
        for i in range(10):
            d = SM + 2 * i if p == 0 else TP + 2 * (i % 5)
            A(f"v_lshlrev_b32 v{d}, 16, v{PR[p]+i}")
            A(f"v_and_b32 v{d+1}, s59, v{PR[p]+i}")
            if p:
                A(f"v_pk_add_f32 {vr(SM+2*i,2)}, {vr(SM+2*i,2)}, {vr(d,2)}")
    for q in range(5):
        A(f"ds_write_b128 v21, {vr(SM+4*q,4)} offset:{1024*q}")
    lds_arrive(A, 16, L_SYNC + 8)
    A("s_setprio 0")
    stamp(A, 13)
    if True:
        Lq3 = A.newlabel("L_woq")
        A(f"s_branch {Lq3}")
    A.label(Lq2)
    if True:
        wload(A, Opt.wpk if Opt.wpk else Opt.wfirst, max(Opt.wmid, Opt.wfirst))
        A.label(Lq3)
    wload(A, max(Opt.wmid, Opt.wfirst), 40)
    srd(A, SO, S_OUT, NB_OUT)
    A("s_and_b32 s54, s99, 3")
    A("s_lshl_b32 s55, s98, 2")
    A("s_add_u32 s54, s54, s55")
    A("s_lshr_b32 s55, s54, 1")
    A("s_lshl_b32 s55, s55, 12")
    A(f"s_add_u32 s55, s55, {F3:#x}")
    A("s_lshl_b32 s57, s48, 10")
    A("s_add_u32 s55, s55, s57")
    A("v_lshrrev_b32 v15, 3, v1")
    A("v_lshlrev_b32 v15, 7, v15")
    A("s_mul_i32 s57, s54, 81920")
    A(f"s_add_u32 s57, s57, {WS_O:#x}")
    A("s_lshr_b32 s58, s48, 1")
    A("s_mul_i32 s58, s58, 40960")
    A("s_and_b32 s59, s48, 1")
    A("s_lshl_b32 s59, s59, 12")
    A("s_add_u32 s58, s58, s59")
    A("s_add_u32 s57, s57, s58")
    A(f"s_add_u32 s58, s58, {L_OT}")
    A("v_mov_b32 v5, v18")
    A(f"v_add_u32 v6, {L_OT}, v5")
    A(f"v_add_u32 v7, {L_OT+40960}, v5")
    A("v_lshlrev_b32 v10, 3, v9")
    A("v_lshl_add_u32 v10, v11, 9, v10")
    A(f"v_add_u32 v10, {L_OT+32768}, v10")
    if Opt.fullout:
        A("s_lshl_b32 s56, s48, 6")
        A("s_waitcnt lgkmcnt(0)")
        A("v_mul_u32_u24 v12, 272, v9")
        A("v_lshl_add_u32 v12, v11, 5, v12")
        A("v_add_u32 v12, s56, v12")
        A("v_lshrrev_b32 v2, 4, v1")
        A("v_and_b32 v3, 15, v1")
        A("v_mul_u32_u24 v13, 272, v2")
        A("v_lshl_add_u32 v13, v3, 4, v13")
        A(f"s_mul_i32 s59, s48, {16*272}")
        A("v_add_u32 v13, s59, v13")
        A("v_mul_u32_u24 v14, 2560, v2")
        A("v_lshl_add_u32 v14, v3, 4, v14")
        A("s_lshl_b32 s59, s54, 2")
        A("s_add_u32 s59, s59, s48")
        A(f"s_mul_i32 s59, s59, {16*2560}")
        A("s_add_u32 s59, s59, s52")
        A("s_sub_u32 s59, s59, s56")
    else:
        A("s_mul_i32 s56, s48, 5120")
        A("s_waitcnt lgkmcnt(0)")
        A("v_mul_u32_u24 v12, 80, v9")
        A("v_lshl_add_u32 v12, v11, 5, v12")
        A("v_add_u32 v12, s56, v12")
        A("v_mul_u32_u24 v13, 80, v2")
        A("v_lshl_add_u32 v13, v3, 4, v13")
        A("v_add_u32 v13, s56, v13")
        A("v_mul_u32_u24 v14, 2560, v2")
        A("v_lshl_add_u32 v14, v3, 4, v14")
        A(f"s_mul_i32 s59, s54, {64*2560}")
        A("s_add_u32 s59, s59, s52")
    lds_wait(A, 16, L_SYNC + 12, 4, sleep=2)
    stamp(A, 8)
    ppoll(A, 48, 15, "s55", sleep=Opt.psleep)
    A("s_barrier")
    stamp(A, 9)
    def oissue(k):
        A(f"s_add_u32 m0, s58, {8192*k}")
        for i in range(4):
            A(f"buffer_load_dwordx4 v5, s[{SWS}:{SWS+3}], s57 offen offset:{1024*i}{Opt.ldo} lds")
        if k < 4:
            A("s_add_u32 s57, s57, 8192")

    for k in range(Opt.oahead):
        oissue(k)
    if Ctx.stamps:
        A("s_waitcnt lgkmcnt(0)")
    ACC = (16, 32)
    OFB = 224
    T = Lgkm(A)

    def rdx(f):
        if f % 8 == 0:
            k = f // 8
            A(f"s_waitcnt vmcnt({4*(min(k+Opt.oahead,5)-k-1)})")
            A("s_barrier")
            if k + Opt.oahead < 5:
                oissue(k + Opt.oahead)
        for t in range(2):
            d = OFB + 4 * ((2 * f + t) % 8)
            if f < 32:
                T.issue(f"ds_read_b128 {vr(d,4)}, v{6+t} offset:{1024*f}", (f, t))
            else:
                a = f - 32
                T.issue(f"ds_read_b64 {vr(d,2)}, v10 offset:{40960*t + 1024*a}")
                T.issue(f"ds_read_b64 {vr(d+2,2)}, v10 offset:{40960*t + 1024*a + 256}", (f, t))

    for f in range(3):
        rdx(f)
    for f in range(40):
        for t in range(2):
            T.wait((f, t))
            c = vr(ACC[t], 16) if f else "0"
            A(f"v_mfma_f32_32x32x16_bf16 {vr(ACC[t],16)}, {vr(WR+4*f,4)}, {vr(OFB+4*((2*f+t)%8),4)}, {c}")
            if t == 0 and f + 3 < 40:
                rdx(f + 3)
    stamp(A, 10)
    for t in range(2):
        for i in range(8):
            A(f"v_cvt_pk_bf16_f32 v{48+8*t+i}, v{ACC[t]+2*i}, v{ACC[t]+2*i+1}")
        for i in range(2):
            A(f"ds_write_b128 v12, {vr(48+8*t+4*i,4)} offset:{(32*272 if Opt.fullout else 2560)*t+16*i}")
    A("s_waitcnt lgkmcnt(0)")
    if Opt.fullout:
        A("s_barrier")
    for i in range(4):
        A(f"ds_read_b128 {vr(64+4*i,4)}, v13 offset:{(4*272 if Opt.fullout else 1280)*i}")
    for i in range(4):
        A(f"s_waitcnt lgkmcnt({3-i})")
        A(f"buffer_store_dwordx4 {vr(64+4*i,4)}, v14, s[{SO}:{SO+3}], s59 offen{Opt.osc}")
        if i < 3:
            A(f"s_add_u32 s59, s59, {(4 if Opt.fullout else 16)*2560}")
    stamp(A, 11)
    end_wave(A, True)


def role_compute(A):
    ACC = 16
    WF = (96, 116)
    XF = (136, 152)
    XA, WA, AD = 168, 172, 182
    t0, t1, t2, t3 = 11, 12, 13, 14
    for i in range(80):
        A(f"v_mov_b32 v{ACC+i}, 0")
    A(f"v_and_b32 v{t0}, 255, v0")
    A(f"v_lshlrev_b32 v{t0}, 4, v{t0}")
    A(f"v_add_u32 v{t0}, {L_Z}, v{t0}")
    A(f"ds_write_b128 v{t0}, {vr(ACC,4)}")
    A(f"ds_write_b128 v{t0}, {vr(ACC,4)} offset:64")
    A("s_lshr_b32 s52, s48, 1")
    A("s_and_b32 s53, s48, 1")
    S16, G4, R4, C4 = 183, 184, 185, 186
    A(f"v_and_b32 v{S16}, 15, v1")
    A(f"v_lshrrev_b32 v{G4}, 4, v1")
    A(f"v_bfe_u32 v{R4}, v1, 2, 2")
    A(f"v_and_b32 v{C4}, 3, v1")
    A(f"v_bfe_u32 v{t2}, v1, 1, 3")
    A(f"v_xor_b32 v{t2}, v{t2}, v{G4}")
    A(f"v_lshlrev_b32 v{t2}, 4, v{t2}")
    A(f"v_lshl_add_u32 v{t2}, v{S16}, 7, v{t2}")
    A("s_lshl_b32 s54, s52, 13")
    A(f"v_add_u32 v{XA}, s54, v{t2}")
    A(f"v_xor_b32 v{XA+1}, 64, v{XA}")
    A(f"v_add_u32 v{XA+2}, {2*SLOT}, v{XA}")
    A(f"v_add_u32 v{XA+3}, {2*SLOT}, v{XA+1}")
    A("s_cmp_eq_u32 s51, 0")
    A("s_cselect_b32 s55, 80, 0")
    A("s_mul_i32 s56, s53, 80")
    A("s_lshl_b32 s56, s56, s51")
    A(f"v_lshrrev_b32 v{t0}, 1, v{C4}")
    A(f"v_mul_u32_u24 v{t0}, s55, v{t0}")
    A(f"v_mad_u32_u24 v{t0}, v{C4}, 40, v{t0}")
    A(f"v_add_u32 v{t0}, s56, v{t0}")
    A(f"v_and_b32 v{t1}, 1, v{G4}")
    A("s_add_u32 s57, s51, 4")
    A(f"v_lshlrev_b32 v{t1}, s57, v{t1}")
    A(f"v_lshl_add_u32 v{t2}, v{G4}, 3, v{R4}")
    A(f"v_mul_u32_u24 v{t2}, 320, v{t2}")
    A(f"v_add_u32 v{t2}, 16384, v{t2}")
    for t in range(5):
        A(f"v_add_u32 v{t3}, {8*t}, v{t0}")
        A(f"v_xor_b32 v{t3}, v{t3}, v{t1}")
        A(f"v_add_u32 v{WA+t}, v{t2}, v{t3}")
        A(f"v_add_u32 v{WA+5+t}, {2*SLOT}, v{WA+t}")
    HD = 187
    A("s_cmp_eq_u32 s51, 0")
    A("s_cselect_b32 s55, 1, 3")
    A("s_add_u32 s57, s51, 1")
    A("s_lshl_b32 s56, s53, s57")
    A(f"v_and_b32 v{HD}, s55, v{G4}")
    A(f"v_add_u32 v{HD}, s56, v{HD}")
    A(f"v_mul_u32_u24 v{t0}, 800, v{HD}")
    A(f"v_mad_u32_u24 v{t0}, v{R4}, 40, v{t0}")
    A(f"v_add_u32 v{t0}, {L_WP}, v{t0}")
    A(f"v_mov_b32 v{t1}, {L_Z}")
    A(f"v_cmp_eq_u32 vcc, v{C4}, v{G4}")
    A(f"v_cndmask_b32 v{AD}, v{t1}, v{t0}, vcc")
    A(f"v_lshrrev_b32 v{t0}, 5, v1")
    A(f"v_lshl_add_u32 v{t0}, v{t0}, 4, v{S16}")
    A("s_lshl_b32 s57, s52, 6")
    A(f"v_add_u32 v{t0}, s57, v{t0}")
    A(f"v_mul_u32_u24 v{t1}, 208, v{t0}")
    A(f"v_mad_u32_u24 v2, v{HD}, 48, v{t1}")
    A(f"v_add_u32 v2, {L_V}, v2")
    A(f"v_mul_u32_u24 v{t3}, 80, v{HD}")
    A(f"v_mul_u32_u24 v{t2}, 336, v{t0}")
    A(f"v_add_u32 v3, v{t3}, v{t2}")
    A(f"v_lshrrev_b32 v{t1}, 5, v1")
    A(f"v_lshl_add_u32 v9, v{t1}, 3, v{R4}")
    A(f"v_bfe_u32 v{t2}, v1, 4, 1")
    A(f"v_bfe_u32 v{t3}, v1, 1, 1")
    A(f"v_lshl_add_u32 v10, v{t2}, 1, v{t3}")
    A(f"v_and_b32 v15, 1, v1")
    A(f"v_mul_u32_u24 v{t0}, 336, v9")
    A(f"v_mad_u32_u24 v{t1}, v15, 5, v10")
    A(f"v_lshl_add_u32 v{t0}, v{t1}, 3, v{t0}")
    A("s_mul_i32 s57, s48, 80")
    A(f"v_add_u32 v6, s57, v{t0}")
    A(f"v_lshl_add_u32 v{t0}, v10, 1, v15")
    A("s_mul_i32 s57, s48, 6")
    A(f"v_min_u32 v{t1}, 5, v{t0}")
    A(f"v_add_u32 v{t1}, s57, v{t1}")
    A(f"v_mul_u32_u24 v{t0}, 208, v9")
    A(f"v_lshl_add_u32 v{t0}, v{t1}, 3, v{t0}")
    A(f"v_add_u32 v7, {L_V}, v{t0}")
    WPF = 188
    for tp in range(5):
        A(f"v_mov_b32 v{WPF+12*tp+10}, 0")
        A(f"v_mov_b32 v{WPF+12*tp+11}, 0")
    A(f"s_mov_b32 s60, {LOG2E:#x}")
    A(f"s_mov_b32 s61, {LOG2E:#x}")
    A("s_waitcnt lgkmcnt(0)")
    srd(A, SWS, S_WS, WS_SIZE)
    if Opt.touch & 1:
        Lt = A.newlabel("L_nt")
        A("s_cmp_eq_u32 s48, 0")
        A(f"s_cbranch_scc0 {Lt}")
        touch(A, 248, 32, Opt.tsh)
        A.label(Lt)
    if Opt.fwarm:
        o_index(A)
        A("s_lshl_b32 s54, s62, 2")
        A("s_add_u32 s54, s54, s48")
        A("s_lshl_b32 s54, s54, 2")
        A("s_lshr_b32 s55, s62, 2")
        A("s_lshl_b32 s55, s55, 4")
        A("s_add_u32 s55, s55, s63")
        A("s_lshl_b32 s55, s55, 1")
        A("s_add_u32 s55, s55, 508")
        A("s_and_b32 s56, s99, 2")
        A("s_lshl_b32 s57, s98, 2")
        A("s_add_u32 s56, s56, s57")
        A("s_lshl_b32 s56, s56, 4")
        A("s_lshl_b32 s57, s48, 3")
        A("s_add_u32 s56, s56, s57")
        A("s_add_u32 s56, s56, 1016")
        A(f"v_mov_b32 v{t0}, s54")
        A(f"v_mov_b32 v{t1}, s55")
        A(f"v_mov_b32 v{t2}, s56")
        A("v_cmp_gt_u32 vcc, 16, v1")
        A(f"v_cndmask_b32 v{t1}, v{t1}, v{t0}, vcc")
        A("v_cmp_gt_u32 vcc, 32, v1")
        A(f"v_cndmask_b32 v{t1}, v{t2}, v{t1}, vcc")
        A(f"v_lshrrev_b32 v{t0}, 2, v1")
        A(f"v_add_u32 v{t0}, v{t0}, v{t1}")
        A(f"v_and_b32 v{t0}, 2047, v{t0}")
        A(f"v_lshlrev_b32 v{t0}, 7, v{t0}")
        A(f"s_mov_b32 s54, {WS_FLAG:#x}")
        A(f"buffer_load_dword v4, v{t0}, s[{SWS}:{SWS+3}], s54 offen{SC}")
        if Opt.fww:
            A("s_lshr_b32 s54, s99, 2")
            A("s_sub_u32 s54, s54, 1")
            A("s_max_i32 s54, s54, 0")
            A("s_lshl_b32 s54, s54, 2")
            A("s_add_u32 s54, s54, s48")
            A("s_lshl_b32 s54, s54, 10")
            A(f"s_add_u32 s54, s54, {FW:#x}")
            A(f"v_lshrrev_b32 v{t0}, 3, v1")
            A(f"v_lshlrev_b32 v{t0}, 7, v{t0}")
            A(f"buffer_load_dword v5, v{t0}, s[{SWS}:{SWS+3}], s54 offen{SC}")
    A("s_setprio 2")

    T = Lgkm(A)

    def reads(s, ks):
        sl, b = s % 3, ks
        L = []
        for t in range(5):
            for half in range(2):
                L.append((f"ds_read_b64_tr_b16 {vr(WF[b]+4*t+2*half,2)}, v{WA+5*(sl>>1)+t} offset:{(sl&1)*SLOT + (32*ks+4*half)*320}",
                          ("w", s, ks, t) if half else None))
            if t == 0:
                for rho in range(4):
                    L.append((f"ds_read_b128 {vr(XF[b]+4*rho,4)}, v{XA+2*(sl>>1)+ks} offset:{(sl&1)*SLOT + 2048*rho}", ("x", s, ks, rho)))
        return L

    wp = []
    for tp in range(5):
        for dq in range(5):
            wp.append((f"ds_read_b64_tr_b16 {vr(WPF+12*tp+2*dq,2)}, v{AD} offset:{160*dq+8*tp}", None))

    PS = (96, 106, 118, 128)
    E, F, TT_ = 140, 160, 248

    def cvt(rho):
        L = [f"v_cvt_pk_bf16_f32 v{PS[rho]+i}, v{ACC+20*rho+2*i}, v{ACC+20*rho+2*i+1}" for i in range(10)]
        if rho & 1:
            L += [f"v_mov_b32 v{PS[rho]+10}, 0x3f803f80", f"v_mov_b32 v{PS[rho]+11}, 0x3f803f80"]
        return L

    A("s_barrier")
    stampw(A, 3)
    for x, tg in reads(0, 0):
        T.issue(x, tg)
    early = cvt(0) + cvt(1)
    for s in range(10):
        for ks in range(2):
            last = (s == 9 and ks == 1)
            nxt = [] if last else (reads(s, 1) if ks == 0 else reads(s + 1, 0))
            if ks == 0 and s < 5:
                nxt += wp[5 * s:5 * s + 5]
            start = 0 if ks == 0 else Opt.bpos
            for k in range(20):
                t, rho = (k % 5, k // 5) if last else (k // 4, k % 4)
                if Opt.snake and t & 1:
                    rho = 3 - rho
                T.wait(("w", s, ks, t), ("x", s, ks, rho))
                a_ = ACC + 20 * rho + 4 * t
                A(f"v_mfma_f32_16x16x32_bf16 {vr(a_,4)}, {vr(WF[ks]+4*t,4)}, {vr(XF[ks]+4*rho,4)}, {vr(a_,4)}")
                if ks == 1 and k == start:
                    T.all()
                    A("s_barrier")
                if k >= start and nxt:
                    T.issue(*nxt.pop(0))
                if last and k >= 9:
                    for _ in range(2):
                        if early:
                            A(early.pop(0))
            assert not nxt
    stamp(A, 4)
    if Opt.fwarm:
        A("s_waitcnt vmcnt(0)")
    tag_issue(A)
    def phi_mfma(src, acc):
        L = []
        for u in range(3):
            for tp in range(5):
                c = vr(acc + 4 * tp, 4) if u else "0"
                L.append(f"v_mfma_f32_16x16x32_bf16 {vr(acc+4*tp,4)}, {vr(WPF+12*tp+4*u,4)}, {vr(src+4*u,4)}, {c}")
        return L

    def weave(mf, va, per):
        mf, va = list(mf), list(va)
        while mf or va:
            if mf:
                A(mf.pop(0))
            for _ in range(per):
                if va:
                    A(va.pop(0))

    assert not early
    Lq = A.newlabel("L_q")
    A("s_cmp_eq_u32 s51, 0")
    A(f"s_cbranch_scc0 {Lq}")
    mq = A.mark()
    for i in range(10):
        A(f"v_permlane32_swap_b32 v{PS[0]+i}, v{PS[1]+i}")
    weave(phi_mfma(PS[0], ACC), cvt(2) + cvt(3) + [f"v_permlane32_swap_b32 v{PS[2]+i}, v{PS[3]+i}" for i in range(10)], 2)
    vw = [f"ds_write_b128 v2, {vr(PS[1+2*sg]+4*i,4)} offset:{32*208*sg+16*i}" for sg in range(2) for i in range(3)]

    def body(parts):
        mm, fm, ex, sm, fin, tail = parts
        L = fm[:4]
        fm2, sm2 = list(fm[4:]), list(sm)
        for k in range(0, 40, 4):
            L += ex[k:k + 2]
            if fm2:
                L.append(fm2.pop(0))
            L += ex[k + 2:k + 4]
            if fm2:
                L.append(fm2.pop(0))
            if k >= 8:
                L += [sm2.pop(0), sm2.pop(0)]
        return L + sm2 + fin

    def tail_list(tail, wr):
        L = [tail[0][0], tail[1][0]]
        for j in range(20):
            if j + 2 < 20:
                L.append(tail[j + 2][0])
            L.append(tail[j][1])
            if wr and j % 4 == 3:
                L.append(wr[j // 4])
        return L

    s0 = softmax_parts(ACC, E, F, TT_, 56)
    s1 = softmax_parts(ACC + 20, E, F, TT_, 76)
    w0 = [f"ds_write_b128 v3, {vr(56+4*i,4)} offset:{16*i}" for i in range(5)]
    w1 = [f"ds_write_b128 v3, {vr(76+4*i,4)} offset:{32*336+16*i}" for i in range(5)]
    m1 = phi_mfma(PS[2], ACC + 20)
    for x in m1[:4]:
        A(x)
    weave(m1[4:], s0[0], 2)
    stamp(A, 2)
    for x in merge(body(s0), vw, 12) + tail_list(s0[5], w0):
        A(x)
    stamp(A, 13)
    A(f"v_mov_b32 v10, {L_SYNC}")
    A("v_mov_b32 v11, 1")
    A("s_mov_b64 exec, 1")
    A("ds_add_u32 v10, v11 offset:52")
    A("s_mov_b64 exec, -1")
    sal = ["s_lshl_b32 s57, s50, 2", "s_add_u32 s57, s57, s48", "s_lshl_b32 s57, s57, 4", "s_add_u32 s57, s57, s49",
           "s_lshl_b32 s59, s57, 7", f"s_add_u32 s59, s59, {F1:#x}", "s_mul_i32 s57, s57, 2560", f"s_add_u32 s57, s57, {WS_PART:#x}"]
    b1 = body(s1)
    for x in s1[0] + merge(b1[:60], sal, 6) + ["ds_read_b32 v12, v10 offset:52"] + b1[60:]:
        A(x)
    tag_check(A, 14)
    Lok = A.newlabel("L_s0ok")
    A("v_cmp_le_u32 vcc, 4, v12")
    A(f"s_cbranch_vccnz {Lok}")
    lds_wait(A, 12, L_SYNC + 52, 4)
    A.label(Lok)
    for x in tail_list(s1[5], w1):
        A(x)
    A("s_mov_b64 exec, 1")
    A("ds_add_u32 v10, v11")
    A("s_mov_b64 exec, -1")
    stampw(A, 5)
    T = Lgkm(A)
    T.n = 0 if (Ctx.stamps and not Opt.lite and not Opt.hp) else 0
    FAa = {0: 188, 1: 196, 4: 204, 5: 212, 2: 220, 3: 228, 6: 236, 7: 128}
    FBb = {u: 96 + 4 * u for u in range(8)}

    def rdA_(u):
        for half in range(2):
            o = (16 * u + 4 * half)
            T.issue(f"ds_read_b64_tr_b16 {vr(FAa[u]+2*half,2)}, v6 offset:{o*336}")
            T.issue(f"ds_read_b64_tr_b16 {vr(FAa[u]+4+2*half,2)}, v6 offset:{o*336+32}", ("a", u))

    def rdB_(u):
        for half in range(2):
            T.issue(f"ds_read_b64_tr_b16 {vr(FBb[u]+2*half,2)}, v7 offset:{(16*u+4*half)*208}", ("b", u))

    def pm(u, first=False):
        T.wait(("a", u), ("b", u))
        for TT in range(2):
            c = "0" if first else vr(ACC + 16 * TT, 16)
            A(f"v_mfma_f32_32x32x16_bf16 {vr(ACC+16*TT,16)}, {vr(FAa[u]+4*TT,4)}, {vr(FBb[u],4)}, {c}")

    rdB_(0); rdA_(0); rdB_(1); rdA_(1)
    pm(0, True)
    rdB_(4); rdA_(4)
    pm(1)
    rdB_(5); rdA_(5)
    T.issue("ds_read_b32 v12, v10", "c")
    pm(4)
    for u in (2, 3, 6, 7):
        rdB_(u)
    A("v_lshlrev_b32 v2, 4, v1")
    A("v_lshlrev_b32 v3, 3, v1")
    T.wait("c")
    Lok = A.newlabel("L_s1ok")
    A("v_cmp_le_u32 vcc, 4, v12")
    A(f"s_cbranch_vccnz {Lok}")
    lds_wait(A, 10, None, 4)
    A.label(Lok)
    rdA_(2); rdA_(3)
    pm(5)
    rdA_(6)
    pm(2)
    rdA_(7)
    pm(3); pm(6); pm(7)
    o_index(A)
    for i in range(10):
        A(f"v_cvt_pk_bf16_f32 v{48+i}, v{ACC+2*i}, v{ACC+2*i+1}")
    A(f"buffer_store_dwordx2 v[56:57], v3, s[{SWS}:{SWS+3}], s57 offen offset:2048{SC}")
    A("s_mov_b32 exec_lo, 0x00ffffff")
    A("s_mov_b32 exec_hi, 0x00ffffff")
    A(f"buffer_store_dwordx4 v[48:51], v2, s[{SWS}:{SWS+3}], s57 offen{SC}")
    A(f"buffer_store_dwordx4 v[52:55], v2, s[{SWS}:{SWS+3}], s57 offen offset:1024{SC}")
    A("s_mov_b64 exec, -1")
    stamp(A, 6)
    role_o(A)
    end_wave(A)
    A.label(Lq)
    hq = A.mark()
    pre = [f"s_mov_b32 s57, {64*1280}",
           f"v_mul_lo_u32 v{t1}, s57, v{HD}",
           f"v_lshl_add_u32 v2, v{S16}, 4, v{t1}",
           f"v_lshl_add_u32 v3, v{S16}, 3, v{t1}",
           "s_lshl_b32 s58, s49, 1",
           "s_add_u32 s58, s58, s52",
           "s_lshl_b32 s59, s50, 1",
           "s_add_u32 s59, s59, s53",
           "s_lshl_b32 s59, s59, 5",
           "s_add_u32 s59, s59, s58",
           "s_lshl_b32 s59, s59, 7",
           f"s_add_u32 s59, s59, {F2:#x}",
           "s_lshl_b32 s57, s50, 8",
           "s_add_u32 s57, s57, s58",
           "s_mul_i32 s57, s57, 2560"]
    A("s_nop 0")
    OQ = 140

    def outq(rho):
        x, o = ACC + 20 * rho, OQ + 10 * rho
        off = 1280 * (rho >> 1)
        L = [f"v_cvt_pk_bf16_f32 v{o+i}, v{x+2*i}, v{x+2*i+1}" for i in range(10)]
        L.append(f"buffer_store_dwordx4 {vr(o,4)}, v2, s[{SWS}:{SWS+3}], s57 offen offset:{off+256*(rho&1)}{SC}")
        L.append(f"buffer_store_dwordx4 {vr(o+4,4)}, v2, s[{SWS}:{SWS+3}], s57 offen offset:{off+512+256*(rho&1)}{SC}")
        L.append(f"buffer_store_dwordx2 {vr(o+8,2)}, v3, s[{SWS}:{SWS+3}], s57 offen offset:{off+1024+128*(rho&1)}{SC}")
        return L

    weave(phi_mfma(PS[0], ACC), pre + cvt(2), 2)
    m = phi_mfma(PS[1], ACC + 20)
    weave(m[:6], cvt(3), 2)
    weave(m[6:], outq(0), 2)
    m = phi_mfma(PS[2], ACC + 40)
    weave(m[:6], [], 0)
    weave(m[6:], outq(1), 2)
    m = phi_mfma(PS[3], ACC + 60)
    weave(m[:6], [], 0)
    weave(m[6:], outq(2), 2)
    for x in outq(3):
        A(x)
    stamp(A, 6)
    tag_check(A, 10)
    set_flag(A, 10, "s59")
    stamp(A, 7)
    A.check_seam(mq, hq)
    lds_arrive(A, 14, L_SYNC)
    lds_wait(A, 14, None, 8 if Opt.qlate else 4, sleep=2)
    A("s_setprio 0")
    A("s_cmp_lt_u32 s99, 4")
    A("s_cbranch_scc1 L_wo")
    if Opt.wopf == "qs":
        srd(A, 36, S_WO, NB_WO)
        A("s_sub_u32 s57, s99, 4")
        A("s_lshl_b32 s57, s57, 2")
        A("s_add_u32 s57, s57, s48")
        A("s_lshl_b32 s57, s57, 13")
        A(f"s_add_u32 s57, s57, {240*1280}")
        A("v_lshlrev_b32 v8, 7, v1")
        for i in range(4):
            A(f"buffer_load_dword v{200+i}, v8, s[36:39], s57 offen")
            A(f"s_add_u32 s57, s57, {16*8192}")
    A(f"s_cmp_lt_u32 s48, {4 if Opt.p3 else 2}")
    A("s_cbranch_scc1 L_post")
    end_wave(A)


def role_o(A):
    NT = 4
    RAW, X, PQ = 64, 104, 128
    A("s_mul_i32 s53, s48, 20480")
    A(f"s_add_u32 s53, s53, {L_WOB}")
    A("v_and_b32 v4, 31, v1")
    A("v_lshl_add_u32 v5, v4, 4, s53")
    A("v_lshl_add_u32 v6, v4, 3, s53")
    A("v_and_b32 v7, 32, v1")
    A("v_lshlrev_b32 v7, 26, v7")
    A("s_lshl_b32 s54, s48, 2")
    A(f"s_add_u32 s54, s54, {L_SYNC+16}")
    A("s_mov_b32 s58, 0xffff0000")
    for t in range(NT):
        A(f"v_mov_b32 v{PQ+12*t+10}, 0")
        A(f"v_mov_b32 v{PQ+12*t+11}, 0")
    A("s_mov_b32 s96, s59")
    A("s_mov_b32 s97, 0")
    if Opt.dflag:
        Lgo = A.newlabel("L_go")
        A("v_mov_b32 v14, s54")
        A("ds_read_b32 v15, v14")
        A("s_waitcnt lgkmcnt(0)")
        A("v_cmp_le_u32 vcc, 1, v15")
        A(f"s_cbranch_vccnz {Lgo}")
    set_flag(A, 10, "s96")
    lds_arrive(A, 14, L_SYNC + 4)
    A("s_mov_b32 s97, 1")
    stamp(A, 7)
    lds_wait(A, 14, "s54", 1)
    if Opt.dflag:
        A.label(Lgo)
    stampw(A, 8)
    T = Lgkm(A)
    for t in range(NT):
        T.issue(f"ds_read_b128 {vr(RAW+10*t,4)}, v5 offset:{1280*t}")
        T.issue(f"ds_read_b128 {vr(RAW+10*t+4,4)}, v5 offset:{1280*t+512}")
        T.issue(f"ds_read_b64 {vr(RAW+10*t+8,2)}, v6 offset:{1280*t+1024}", t)
    A("s_lshl_b32 s57, s63, 2")
    A("s_mul_i32 s54, s57, 40960")
    A(f"s_add_u32 s54, s54, {WS_O:#x}")
    A("s_lshl_b32 s59, s62, 8")
    A("s_add_u32 s59, s59, s54")
    A("s_add_u32 s59, s59, 32768")
    A("s_lshl_b32 s57, s62, 10")
    A("s_add_u32 s54, s54, s57")
    A("s_lshl_b32 s50, s63, 5")
    A("s_add_u32 s50, s50, s62")
    A("s_lshl_b32 s50, s50, 7")
    A(f"s_add_u32 s50, s50, {F3:#x}")
    if Opt.qpipe:
        XS = (176, 200, 104, 224)

        def stA(t):
            X_, m = XS[t], XS[t] + 20
            L = []
            for i in range(10):
                r = RAW + 10 * t + i
                L += [f"v_lshl_add_u32 v{X_+2*i}, v{r}, 16, v7", f"v_bitop3_b32 v{X_+2*i+1}, v{r}, s58, v7 bitop3:0x6a"]
            L += [f"v_max3_f32 v{m}, v{X_}, v{X_+1}, v{X_+2}", f"v_max3_f32 v{m+1}, v{X_+3}, v{X_+4}, v{X_+5}"]
            for i in range(6, 18, 4):
                L += [f"v_max3_f32 v{m}, v{m}, v{X_+i}, v{X_+i+1}", f"v_max3_f32 v{m+1}, v{m+1}, v{X_+i+2}, v{X_+i+3}"]
            L += [f"v_max3_f32 v{m}, v{m}, v{X_+18}, v{X_+19}", f"v_max_f32 v{m}, v{m}, v{m+1}", f"v_mul_f32 v{m}, s60, v{m}"]
            L += [f"v_pk_fma_f32 {vr(X_+i,2)}, {vr(X_+i,2)}, s[60:61], {vr(m,2)} op_sel_hi:[1,1,0] neg_lo:[0,0,1] neg_hi:[0,0,1]" for i in range(0, 20, 2)]
            return L

        def stC(t):
            X_, m, e = XS[t], XS[t] + 20, XS[t] + 22
            L = [f"v_pk_add_f32 {vr(e,2)}, {vr(X_,2)}, {vr(X_+2,2)}", f"v_pk_add_f32 {vr(m,2)}, {vr(X_+4,2)}, {vr(X_+6,2)}"]
            for i in range(8, 20, 4):
                L += [f"v_pk_add_f32 {vr(e,2)}, {vr(e,2)}, {vr(X_+i,2)}", f"v_pk_add_f32 {vr(m,2)}, {vr(m,2)}, {vr(X_+i+2,2)}"]
            L += [f"v_pk_add_f32 {vr(e,2)}, {vr(e,2)}, {vr(m,2)}", f"v_add_f32 v{e}, v{e}, v{e+1}", f"v_rcp_f32 v{e}, v{e}"]
            L += [f"v_pk_mul_f32 {vr(X_+i,2)}, {vr(X_+i,2)}, {vr(e,2)} op_sel_hi:[1,0]" for i in range(0, 20, 2)]
            L += [f"v_cvt_pk_bf16_f32 v{PQ+12*t+i}, v{X_+2*i}, v{X_+2*i+1}" for i in range(10)]
            return L

        def zipl(p, q):
            out = []
            while p or q:
                if p:
                    out.append(p.pop(0))
                if q:
                    out.append(q.pop(0))
            return out

        T.wait(0)
        for x in stA(0):
            A(x)
        T.all()
        for t in range(NT):
            rest = zipl(stA(t + 1) if t + 1 < NT else [], stC(t - 1) if t else [])
            n = len(rest)
            for i in range(20):
                A(f"v_exp_f32 v{XS[t]+i}, v{XS[t]+i}")
                for x in rest[i * n // 20:(i + 1) * n // 20]:
                    A(x)
        for x in stC(NT - 1):
            A(x)
    else:
        mx, se = 124, 126
        for t in range(NT):
            T.wait(t)
            for i in range(10):
                A(f"v_lshl_add_u32 v{X+2*i}, v{RAW+10*t+i}, 16, v7")
                A(f"v_bitop3_b32 v{X+2*i+1}, v{RAW+10*t+i}, s58, v7 bitop3:0x6a")
            A(f"v_max3_f32 v{mx}, v{X}, v{X+1}, v{X+2}")
            A(f"v_max3_f32 v{mx+1}, v{X+3}, v{X+4}, v{X+5}")
            for i in range(6, 18, 4):
                A(f"v_max3_f32 v{mx}, v{mx}, v{X+i}, v{X+i+1}")
                A(f"v_max3_f32 v{mx+1}, v{mx+1}, v{X+i+2}, v{X+i+3}")
            A(f"v_max3_f32 v{mx}, v{mx}, v{X+18}, v{X+19}")
            A(f"v_max_f32 v{mx}, v{mx}, v{mx+1}")
            A(f"v_mul_f32 v{mx}, s60, v{mx}")
            for i in range(0, 20, 2):
                A(f"v_pk_fma_f32 {vr(X+i,2)}, {vr(X+i,2)}, s[60:61], {vr(mx,2)} op_sel_hi:[1,1,0] neg_lo:[0,0,1] neg_hi:[0,0,1]")
            if Opt.dflag and t == 1:
                Lsk = A.newlabel("L_sk")
                A("s_cmp_eq_u32 s97, 1")
                A(f"s_cbranch_scc1 {Lsk}")
                set_flag(A, 10, "s96")
                lds_arrive(A, 14, L_SYNC + 4)
                stampw(A, 7)
                A.label(Lsk)
            for i in range(20):
                A(f"v_exp_f32 v{X+i}, v{X+i}")
            A(f"v_pk_add_f32 {vr(se,2)}, {vr(X,2)}, {vr(X+2,2)}")
            A(f"v_pk_add_f32 {vr(mx,2)}, {vr(X+4,2)}, {vr(X+6,2)}")
            for i in range(8, 20, 4):
                A(f"v_pk_add_f32 {vr(se,2)}, {vr(se,2)}, {vr(X+i,2)}")
                A(f"v_pk_add_f32 {vr(mx,2)}, {vr(mx,2)}, {vr(X+i+2,2)}")
            A(f"v_pk_add_f32 {vr(se,2)}, {vr(se,2)}, {vr(mx,2)}")
            A(f"v_add_f32 v{se}, v{se}, v{se+1}")
            A(f"v_rcp_f32 v{se}, v{se}")
            for i in range(0, 20, 2):
                A(f"v_pk_mul_f32 {vr(X+i,2)}, {vr(X+i,2)}, {vr(se,2)} op_sel_hi:[1,0]")
            for i in range(10):
                A(f"v_cvt_pk_bf16_f32 v{PQ+12*t+i}, v{X+2*i}, v{X+2*i+1}")
    stamp(A, 9)
    KF = 16
    A(f"v_mov_b32 v{KF+10}, 0")
    A(f"v_mov_b32 v{KF+11}, 0")
    lds_wait(A, 14, L_SYNC + 8, 4)
    stampw(A, 10)
    PR = 32
    T = Lgkm(A)
    for q in range(5):
        for p in range(4):
            T.issue(f"ds_read_b128 {vr(PR+16*q+4*p,4)}, v2 offset:{5120*p+1024*q}", q)
    for q in range(5):
        T.wait(q)
        b = PR + 16 * q
        for h in (0, 2):
            A(f"v_pk_add_f32 {vr(b+h,2)}, {vr(b+h,2)}, {vr(b+4+h,2)}")
            A(f"v_pk_add_f32 {vr(b+8+h,2)}, {vr(b+8+h,2)}, {vr(b+12+h,2)}")
        for h in (0, 2):
            A(f"v_pk_add_f32 {vr(b+h,2)}, {vr(b+h,2)}, {vr(b+8+h,2)}")
        for h in (0, 2):
            A(f"v_cvt_pk_bf16_f32 v{KF+2*q+h//2}, v{b+h}, v{b+h+1}")
    D = [176, 192, 208, 224]
    OP = [32, 40, 48, 56]

    def mf(t):
        for u in range(3):
            c = vr(D[t], 16) if u else "0"
            A(f"v_mfma_f32_32x32x16_bf16 {vr(D[t],16)}, {vr(KF+4*u,4)}, {vr(PQ+12*t+4*u,4)}, {c}")

    if Opt.dA:
        A(f"s_sleep {Opt.dA}")
    mf(0)
    mf(1)
    for t in range(NT):
        d, o = D[t], OP[t]
        A(f"v_add_f32 v10, 0x358637bd, v{d+12}")
        A("v_rcp_f32 v10, v10")
        if t + 2 < NT:
            mf(t + 2)
        if t >= 2:
            for i in range(0, 12, 2):
                A(f"v_pk_mul_f32 {vr(d+i,2)}, {vr(d+i,2)}, v[10:11] op_sel_hi:[1,0]")
        else:
            for i in range(12):
                A(f"v_mul_f32 v{d+i}, v10, v{d+i}")
        for i in range(6):
            A(f"v_cvt_pk_bf16_f32 v{o+i}, v{d+2*i}, v{d+2*i+1}")
        A(f"buffer_store_dwordx4 {vr(o,4)}, v2, s[{SWS}:{SWS+3}], s54 offen{SC}")
        A("s_mov_b32 exec_hi, 0")
        A(f"buffer_store_dwordx2 {vr(o+4,2)}, v3, s[{SWS}:{SWS+3}], s59 offen{SC}")
        A("s_mov_b64 exec, -1")
        if t < NT - 1:
            A("s_add_u32 s54, s54, 40960")
            A("s_add_u32 s59, s59, 40960")
    stamp(A, 11)
    set_flag(A, 12, "s50")
    lds_arrive(A, 16, L_SYNC + 12)
    stamp(A, 12)


def b_channel(A):
    A("s_mul_i32 s49, s98, 80")
    A("s_sub_u32 s50, s99, 24")
    A("s_mul_i32 s50, s50, 6")
    A("s_add_u32 s49, s49, s50")
    A("s_add_u32 s49, s49, s48")
    A("s_cmp_ge_u32 s48, 6")
    A("s_cselect_b32 s50, 2, 0")
    A("s_sub_u32 s49, s49, s50")
    A(f"s_mul_i32 s56, s48, {CV_LDS}")


def conv_load_h(A, v):
    SH = 40
    srd(A, SH, S_SSK, NB_SSK)
    A(f"v_lshlrev_b32 v{v}, 4, v1")
    A("s_lshl_b32 s50, s49, 12")
    A("s_add_u32 m0, s56, 64")
    for i in range(4):
        A(f"buffer_load_dwordx4 v{v}, s[{SH}:{SH+3}], s50 offen offset:{1024*i}{Opt.nth} lds")


def f0_lines(A, c0, c1, v):
    A(f"s_lshr_b32 s52, s{c0}, 6")
    A("s_mul_i32 s52, s52, 419431")
    A("s_lshr_b32 s52, s52, 16")
    A(f"s_lshr_b32 s53, s{c1}, 6")
    A("s_mul_i32 s53, s53, 419431")
    A("s_add_u32 s53, s53, 406324")
    A("s_lshr_b32 s53, s53, 16")
    A(f"v_lshrrev_b32 v{v}, 2, v1")
    A(f"v_add_u32 v{v}, s52, v{v}")
    A(f"v_min_u32 v{v}, s53, v{v}")
    A(f"v_lshlrev_b32 v{v}, 7, v{v}")
    A(f"s_mov_b32 s52, {F0:#x}")


def role_pre(A):
    SK, SV, SS = 32, 36, 40
    t0, t1, t2 = 2, 3, 4
    A("s_lshl_b32 s49, s98, 3")
    A("s_add_u32 s49, s49, s99")
    A("s_sub_u32 s49, s49, 24")
    A("s_mul_i32 s49, s49, 5")
    A("s_add_u32 s49, s49, s48")
    A("s_and_b32 s50, s49, 31")
    A("s_lshr_b32 s51, s49, 5")
    A(f"s_mul_i32 s52, s50, {64*1280}")
    A("s_lshl_b32 s53, s51, 7")
    A("s_add_u32 s52, s52, s53")
    A(f"v_lshrrev_b32 v{t0}, 3, v1")
    A(f"v_and_b32 v{t1}, 7, v1")
    A(f"v_mul_u32_u24 v{t2}, {8*1280}, v{t0}")
    A(f"v_lshl_add_u32 v{t2}, v{t1}, 4, v{t2}")
    A(f"v_add_u32 v5, s52, v{t2}")
    A(f"v_subrev_u32 v6, {3*1280}, v5")
    A(f"v_subrev_u32 v7, {2*1280}, v5")
    A(f"v_subrev_u32 v8, {1280}, v5")
    A(f"v_lshlrev_b32 v9, 6, v{t1}")
    A("s_lshl_b32 s54, s51, 9")
    A(f"s_movk_i32 s55, {4*1280}")
    A("s_waitcnt lgkmcnt(0)")
    srd(A, SK, S_BK, NB_X)
    srd(A, SV, S_BV, NB_X)
    srd(A, SS, S_SH, NB_SH)
    WR, KR, VR = 16, 32, 76
    for i in range(4):
        A(f"buffer_load_dwordx4 {vr(WR+4*i,4)}, v9, s[{SS}:{SS+3}], s54 offen offset:{16*i}")
    for i in range(3):
        A(f"buffer_load_dwordx4 {vr(KR+4*i,4)}, v{6+i}, s[{SK}:{SK+3}], 0 offen{Opt.ntk}")

    order = []

    def ld(kind, i):
        so = "0" if i < 4 else "s55"
        if kind == "k":
            A(f"buffer_load_dwordx4 {vr(KR+12+4*i,4)}, v5, s[{SK}:{SK+3}], {so} offen offset:{1280*(i&3)}{Opt.ntk}")
        else:
            A(f"buffer_load_dwordx4 {vr(VR+4*i,4)}, v5, s[{SV}:{SV+3}], {so} offen offset:{1280*(i&3)}{Opt.ntk}")
        order.append((kind, i))

    for i in (5, 6, 7):
        ld("k", i)
    ld("k", 0); ld("v", 0); ld("k", 1); ld("v", 1)
    todo = [("k", 2), ("v", 2), ("k", 3), ("v", 3), ("k", 4), ("v", 4), ("v", 5), ("v", 6), ("v", 7)]
    stamp(A, 2)
    srd(A, SWS, S_WS, WS_SIZE)
    A("s_mul_i32 s56, s48, 8320")
    A(f"s_add_u32 s56, s56, {B_PRE}")
    A(f"v_mul_u32_u24 v10, 1040, v{t1}")
    A(f"v_lshl_add_u32 v10, v{t0}, 4, v10")
    A("v_add_u32 v10, s56, v10")
    A("v_lshrrev_b32 v11, 4, v1")
    A("v_lshlrev_b32 v11, 8, v11")
    A("v_and_b32 v12, 3, v1")
    A("v_lshl_add_u32 v11, v12, 6, v11")
    A("v_bfe_u32 v12, v1, 2, 2")
    A("v_lshl_add_u32 v11, v12, 3, v11")
    A("v_add_u32 v11, s56, v11")
    A(f"v_mul_u32_u24 v12, {Opt.pit}, v{t0}")
    A(f"v_lshl_add_u32 v12, v{t1}, 4, v12")
    A(f"s_mul_i32 s57, s51, {64*Opt.pit}")
    A("s_lshl_b32 s58, s50, 7")
    A("s_add_u32 s57, s57, s58")
    A(f"s_add_u32 s57, s57, {WS_KVT:#x}")
    A("s_mov_b32 s59, 0xffff0000")
    WF, KF, VF, TA, OUT = 108, 140, 172, 180, 196

    def unpack(dst, src, n):
        for i in range(n):
            A(f"v_lshlrev_b32 v{dst+2*i}, 16, v{src+i}")
            A(f"v_and_b32 v{dst+2*i+1}, s59, v{src+i}")

    A(f"s_waitcnt vmcnt({3+len(order)})")
    ld(*todo.pop(0)); ld(*todo.pop(0))
    for c in range(8):
        A(f"v_lshlrev_b32 v{WF+c}, 16, v{WR+2*c}")
        A(f"v_and_b32 v{WF+8+c}, s59, v{WR+2*c}")
        A(f"v_lshlrev_b32 v{WF+16+c}, 16, v{WR+2*c+1}")
        A(f"v_and_b32 v{WF+24+c}, s59, v{WR+2*c+1}")
    A(f"s_waitcnt vmcnt({len(order)})")
    ld(*todo.pop(0)); ld(*todo.pop(0))
    for i in range(3):
        unpack(KF + 8 * i, KR + 4 * i, 4)
    for i in range(8):
        need = max(order.index(("k", i)), order.index(("v", i)))
        A(f"s_waitcnt vmcnt({len(order)-1-need})")
        for _ in range(2):
            if todo:
                ld(*todo.pop(0))
        if i == 2:
            b_channel(A)
            if Opt.hdef:
                A("s_lshl_b32 s50, s49, 12")
            else:
                conv_load_h(A, 13)
                order.extend([None] * 4)
        unpack(KF + 8 * ((i + 3) & 3), KR + 12 + 4 * i, 4)
        unpack(VF, VR + 4 * i, 4)
        acc = TA + 8 * (i & 1)
        for j in (3, 2, 1, 0):
            kk = KF + 8 * ((i + 3 - j) & 3)
            for c in range(0, 8, 2):
                if j == 3:
                    A(f"v_pk_mul_f32 {vr(acc+c,2)}, {vr(kk+c,2)}, {vr(WF+8*j+c,2)}")
                else:
                    A(f"v_pk_fma_f32 {vr(acc+c,2)}, {vr(kk+c,2)}, {vr(WF+8*j+c,2)}, {vr(acc+c,2)}")
        for c in range(0, 8, 2):
            A(f"v_pk_mul_f32 {vr(acc+c,2)}, {vr(acc+c,2)}, {vr(VF+c,2)}")
        if i & 1:
            for c in range(8):
                A(f"v_cvt_pk_bf16_f32 v{OUT+4*c+i//2}, v{TA+c}, v{TA+8+c}")
    stamp(A, 3)
    for c in range(8):
        A(f"ds_write_b128 v10, {vr(OUT+4*c,4)} offset:{128*c}")
    A("s_waitcnt lgkmcnt(0)")
    T = Lgkm(A)
    for i in range(8):
        T.issue(f"ds_read_b64_tr_b16 {vr(16+4*i,2)}, v11 offset:{1040*i}")
        T.issue(f"ds_read_b64_tr_b16 {vr(18+4*i,2)}, v11 offset:{1040*i+32}", i)
    for i in range(8):
        T.wait(i)
        A(f"buffer_store_dwordx4 {vr(16+4*i,4)}, v12, s[{SWS}:{SWS+3}], s57 offen{SC}")
        if i < 7:
            A(f"s_add_u32 s57, s57, {8*Opt.pit}")
    stamp(A, 5)
    if Opt.hdef == 2:
        conv_load_h(A, 13)


def role_helper(A):
    SD = 40
    A("s_setprio 3")
    A("s_waitcnt lgkmcnt(0)")
    srd(A, SWS, S_WS, WS_SIZE)
    srd(A, SD, S_DBG, 256)
    Lz = A.newlabel("L_nz")
    A("s_cmp_eq_u32 s2, 192")
    A(f"s_cbranch_scc0 {Lz}")
    A("s_cmp_eq_u32 s48, 5")
    A(f"s_cbranch_scc0 {Lz}")
    A(f"s_mov_b32 s57, {WS_EPOCH:#x}")
    A("s_mov_b64 exec, 1")
    A(f"buffer_load_dword v4, off, s[{SWS}:{SWS+3}], s57{SC}")
    A("s_waitcnt vmcnt(0)")
    A("v_add_u32 v4, 1, v4")
    A("v_not_b32 v5, v4")
    A(f"buffer_store_dwordx2 v[4:5], off, s[{SD}:{SD+3}], 0{SC}")
    A(f"buffer_store_dword v4, off, s[{SWS}:{SWS+3}], s57{SC}")
    A("s_mov_b64 exec, -1")
    stamp(A, 2)
    A.label(Lz)
    if Opt.touch & 2:
        Lt = A.newlabel("L_nt")
        A("s_cmp_eq_u32 s48, 5")
        A(f"s_cbranch_scc0 {Lt}")
        touch(A, 26, 32, Opt.tsh)
        for k_, (b_, n_) in enumerate(((S_BQ, NB_X), (S_SSK, NB_SSK))):
            srd(A, 32, b_, n_)
            A(f"buffer_load_dword v29, v26, s[32:35], 0 offen")
        A.label(Lt)
    if Opt.codepf:
        Lp = A.newlabel("L_npf")
        A("s_cmp_eq_u32 s48, 6")
        A(f"s_cbranch_scc0 {Lp}")
        A("s_getpc_b64 s[50:51]")
        A.label("L_pc")
        A(f"s_sub_u32 s50, s50, L_pc-{NAME}_kernel")
        A("s_subb_u32 s51, s51, 0")
        A("s_sub_u32 s52, s99, 24")
        A("s_lshl_b32 s52, s52, 13")
        A("v_lshl_add_u32 v2, v1, 7, s52")
        A(f"v_min_u32 v2, L_code_end-{NAME}_kernel-4, v2")
        A("global_load_dword v24, v2, s[50:51]")
        A.label(Lp)
    if Opt.bwarm:
        Lw_ = A.newlabel("L_bw")
        A("s_cmp_eq_u32 s48, 7")
        A(f"s_cbranch_scc0 {Lw_}")
        A("s_sub_u32 s61, s99, 24")
        A("s_mul_i32 s60, s98, 80")
        A("s_mul_i32 s61, s61, 6")
        A("s_add_u32 s60, s60, s61")
        A("s_add_u32 s61, s60, 5")
        f0_lines(A, 60, 61, 12)
        A(f"buffer_load_dword v26, v12, s[{SWS}:{SWS+3}], s52 offen{SC}")
        if Opt.bwarm > 1:
            A("s_lshl_b32 s57, s98, 4")
            A("s_sub_u32 s58, s57, 16")
            A("v_min_u32 v12, 47, v1")
            A("v_add_u32 v12, s58, v12")
            A("v_max_i32 v12, 0, v12")
            A("v_min_u32 v12, 127, v12")
            A("v_lshlrev_b32 v12, 7, v12")
            A(f"s_mov_b32 s58, {F4:#x}")
            A(f"buffer_load_dword v27, v12, s[{SWS}:{SWS+3}], s58 offen{SC}")
        A.label(Lw_)
    Lnw = A.newlabel("L_nw")
    A("s_sub_u32 s61, s99, 24")
    A("s_lshl_b32 s60, s61, 1")
    A("s_add_u32 s60, s60, s48")
    A("s_sub_u32 s60, s60, 6")
    A("s_xor_b32 s61, s61, 20")
    A("s_cmp_eq_u32 s48, 5")
    A("s_cselect_b32 s60, s61, s60")
    A("s_lshl_b32 s60, s60, 3")
    A("s_add_u32 s60, s60, s98")
    A("s_cmp_ge_u32 s60, 160")
    A(f"s_cbranch_scc1 {Lnw}_a")
    srd(A, 36, S_WO, NB_WO)
    A("s_lshr_b32 s61, s60, 3")
    A("s_and_b32 s62, s60, 7")
    A(f"s_mul_i32 s53, s62, {80*1280}")
    A("s_lshl_b32 s54, s61, 6")
    A("s_add_u32 s53, s53, s54")
    A("v_lshrrev_b32 v2, 2, v1")
    A("v_and_b32 v3, 3, v1")
    A("v_mul_u32_u24 v4, 1280, v2")
    A("v_lshl_add_u32 v4, v3, 4, v4")
    A(f"s_mul_i32 s56, s48, {CV_LDS}")
    for i in range(5):
        A(f"s_add_u32 m0, s56, {1024*i}")
        A("buffer_load_dwordx4 v4, s[36:39], s53 offen lds")
        A(f"s_add_u32 s53, s53, {16*1280}")
    A.label(Lnw + "_a")
    if Opt.pfm:
        Le_ = A.newlabel("L_pme")
        A("s_and_b32 s50, s98, 3")
        A("s_lshr_b32 s51, s98, 2")
        A("s_and_b32 s52, s99, 3")
        A("s_lshl_b32 s53, s50, 1")
        A("s_add_u32 s53, s53, s51")
        A("s_lshl_b32 s53, s53, 2")
        A("s_add_u32 s53, s53, s52")
        A(f"s_mul_i32 s53, s53, {64*1280}")
        A("s_lshl_b32 s50, s50, 2")
        A("s_add_u32 s50, s50, s52")
        A("s_mul_i32 s52, s50, 52")
        A("s_lshr_b32 s52, s52, 8")
        A("s_add_u32 s52, s52, s51")
        A("s_mul_i32 s52, s52, 640")
        A("s_lshl_b32 s51, s50, 7")
        A("s_add_u32 s52, s52, s51")
        A("s_cmp_eq_u32 s50, 15")
        A(f"s_cselect_b32 s52, {NB_W:#x}, s52")
        A("s_cmp_lt_u32 s99, 28")
        A("s_cselect_b32 s51, s53, s52")
        A(f"s_cselect_b64 s[32:33], s[{S_X}:{S_X+1}], s[{S_W}:{S_W+1}]")
        A(f"s_mov_b32 s53, {NB_W:#x}")
        A(f"s_cselect_b32 s34, {NB_X:#x}, s53")
        A("s_mov_b32 s35, 0x20000")
        A("s_movk_i32 s53, 3840")
        A("s_cselect_b32 s52, 1280, s53")
        A(f"s_mov_b32 s53, {64*3840}")
        A("s_cselect_b32 s53, 128, s53")
        A("v_mul_u32_u24 v2, s52, v1")
        A("s_sub_u32 s50, s48, 5")
        A("s_lshl_b32 s50, s50, 2")
        for k in range(len(Opt.pfm) // 3):
            tab = Opt.pfm[3 * k] | Opt.pfm[3 * k + 1] << 4 | Opt.pfm[3 * k + 2] << 8
            A(f"s_lshr_b32 s54, {tab:#x}, s50")
            A("s_and_b32 s54, s54, 15")
            A("s_mul_i32 s52, s54, s53")
            A("s_cmp_ge_u32 s54, 10")
            A("s_cselect_b32 s52, 0x1000000, s52")
            A("s_add_u32 s52, s52, s51")
            A(f"buffer_load_dword v{30+k}, v2, s[32:35], s52 offen")
        A.label(Le_)
    if Opt.pfw or Opt.pfx:
        Lx_, Le_ = A.newlabel("L_pfx"), A.newlabel("L_pfe")
        A("s_cmp_eq_u32 s48, 5")
        A(f"s_cbranch_scc1 {Lx_}")
        A("s_lshl_b32 s50, s48, 3")
        A("s_add_u32 s50, s50, s99")
        A("s_sub_u32 s50, s50, 72")
        A("s_cmp_eq_u32 s50, 15")
        A(f"s_cbranch_scc1 {Le_}")
        A("s_mul_i32 s51, s50, 52")
        A("s_lshr_b32 s51, s51, 8")
        A("s_lshr_b32 s52, s98, 2")
        A("s_add_u32 s51, s51, s52")
        A("s_mul_i32 s51, s51, 640")
        A("s_lshl_b32 s50, s50, 7")
        A("s_add_u32 s51, s51, s50")
        srd(A, 32, S_W, NB_W)
        A("v_mul_u32_u24 v2, 3840, v1")
        for k, st in enumerate(Opt.pfw):
            A(f"s_add_u32 s50, s51, {st*64*3840}")
            A(f"buffer_load_dword v{30+k}, v2, s[32:35], s50 offen")
        A(f"s_branch {Le_}")
        A.label(Lx_)
        if Opt.pfx:
            A("s_and_b32 s51, s98, 3")
            A("s_lshl_b32 s51, s51, 3")
            A("s_add_u32 s51, s51, s99")
            A("s_sub_u32 s51, s51, 24")
            A(f"s_mul_i32 s51, s51, {64*1280}")
            srd(A, 32, S_X, NB_X)
            A("v_mul_u32_u24 v2, 1280, v1")
            for k, st in enumerate(Opt.pfx):
                A(f"buffer_load_dword v{30+k}, v2, s[32:35], s51 offen offset:{128*st}")
        A.label(Le_)
    if Opt.pft:
        tasks = []
        for st, which in Opt.pft:
            for c in (range(5) if which == "q" else range(5, 15)):
                tasks += [(st, c), (st + 5, c)]
        nsl = -(-len(tasks) // 24)
        tasks += [(15, 0)] * (24 * nsl - len(tasks))
        srd(A, 32, S_W, NB_W)
        A("v_mul_u32_u24 v2, 3840, v1")
        A("s_lshr_b32 s51, s98, 2")
        A("s_sub_u32 s50, s99, 24")
        A("s_lshl_b32 s50, s50, 3")
        for k in range(nsl):
            tab = [sum((tasks[24*k + 8*w + j][0] << 4 | tasks[24*k + 8*w + j][1]) << (8 * j) for j in range(8)) for w in range(3)]
            A(f"s_mov_b32 s52, {tab[0] & 0xffffffff:#x}")
            A(f"s_mov_b32 s53, {tab[0] >> 32:#x}")
            for w in (1, 2):
                A(f"s_cmp_eq_u32 s48, {5+w}")
                A(f"s_cselect_b32 s52, {tab[w] & 0xffffffff:#x}, s52")
                A(f"s_cselect_b32 s53, {tab[w] >> 32:#x}, s53")
            A("s_lshr_b64 s[52:53], s[52:53], s50")
            A("s_bfe_u32 s53, s52, 0x40004")
            A("s_and_b32 s52, s52, 15")
            A("s_mul_i32 s54, s52, 52")
            A("s_lshr_b32 s54, s54, 8")
            A("s_add_u32 s54, s54, s51")
            A("s_mul_i32 s54, s54, 640")
            A("s_lshl_b32 s52, s52, 7")
            A("s_add_u32 s52, s52, s54")
            A(f"s_mul_i32 s53, s53, {64*3840}")
            A("s_add_u32 s52, s52, s53")
            A(f"buffer_load_dword v{34+k}, v2, s[32:35], s52 offen")
        Opt.npft = nsl
    if Opt.gpf2:
        Lnp = A.newlabel("L_ng")
        A("s_lshl_b32 s50, s48, 3")
        A("s_add_u32 s50, s50, s99")
        A("s_sub_u32 s50, s50, 64")
        A("s_cmp_ge_u32 s50, 20")
        A("s_cselect_b32 s53, 0x1000000, 0")
        A("s_lshr_b32 s51, s50, 1")
        A("s_and_b32 s50, s50, 1")
        A("s_cmp_ge_u32 s51, 5")
        A("s_cselect_b32 s52, 640, 0")
        A("s_lshl_b32 s51, s51, 7")
        A("s_add_u32 s51, s51, s52")
        A("s_lshr_b32 s52, s98, 2")
        A("s_mul_i32 s52, s52, 640")
        A("s_add_u32 s51, s51, s52")
        A(f"s_mul_i32 s50, s50, {5*64*3840}")
        A("s_add_u32 s51, s51, s50")
        A("s_add_u32 s51, s51, s53")
        A(f"s_add_u32 s51, s51, {1280 + Opt.gpf2*64*3840}")
        srd(A, 32, S_W, NB_W)
        A("v_mul_u32_u24 v2, 3840, v1")
        for k in range(Opt.gpf2, 5):
            A(f"buffer_load_dword v{30+k}, v2, s[32:35], s51 offen")
            A(f"s_add_u32 s51, s51, {64*3840}")
        A.label(Lnp)
    if Opt.gpf:
        A("s_sub_u32 s50, s99, 24")
        A("s_mul_i32 s50, s50, 3")
        A("s_add_u32 s50, s50, s48")
        A("s_sub_u32 s50, s50, 5")
        A("s_and_b32 s51, s98, 3")
        A("s_lshl_b32 s51, s51, 3")
        A("s_add_u32 s51, s51, s50")
        A(f"s_mul_i32 s51, s51, {64*1280}")
        A("s_sub_u32 s52, s50, 8")
        A("s_mul_i32 s53, s52, 52")
        A("s_lshr_b32 s53, s53, 8")
        A("s_mul_i32 s53, s53, 640")
        A("s_lshl_b32 s52, s52, 7")
        A("s_add_u32 s52, s52, s53")
        A("s_lshr_b32 s53, s98, 2")
        A("s_mul_i32 s53, s53, 640")
        A("s_add_u32 s52, s52, s53")
        A("s_cmp_eq_u32 s50, 23")
        A(f"s_cselect_b32 s52, {NB_W:#x}, s52")
        A("s_cmp_lt_u32 s50, 8")
        A("s_cselect_b32 s51, s51, s52")
        A(f"s_cselect_b64 s[32:33], s[{S_X}:{S_X+1}], s[{S_W}:{S_W+1}]")
        A(f"s_mov_b32 s53, {NB_W:#x}")
        A(f"s_cselect_b32 s34, {NB_X:#x}, s53")
        A("s_mov_b32 s35, 0x20000")
        A("s_movk_i32 s53, 3840")
        A("s_cselect_b32 s52, 1280, s53")
        A(f"s_mov_b32 s53, {64*3840}")
        A("s_cselect_b32 s53, 128, s53")
        A("v_mul_u32_u24 v2, s52, v1")
        A(f"s_mul_i32 s52, s53, {Opt.gpf}")
        A("s_add_u32 s51, s51, s52")
        for k, st in enumerate(range(Opt.gpf, 10)):
            if k >= Opt.gpfd:
                A(f"s_waitcnt vmcnt({Opt.gpfd-1})")
            A(f"buffer_load_dword v{30+k}, v2, s[32:35], s51 offen")
            A("s_add_u32 s51, s51, s53")
    A("s_cmp_ge_u32 s60, 160")
    A(f"s_cbranch_scc1 {Lnw}")
    A("v_bfe_u32 v10, v1, 2, 2")
    A("v_lshrrev_b32 v11, 5, v1")
    A("v_and_b32 v12, 1, v1")
    A("v_lshlrev_b32 v12, 5, v12")
    A("v_bfe_u32 v13, v1, 4, 1")
    A("v_lshl_add_u32 v12, v13, 4, v12")
    A("v_bfe_u32 v13, v1, 1, 1")
    A("v_lshl_add_u32 v12, v13, 3, v12")
    A("v_lshl_add_u32 v12, v10, 6, v12")
    A("v_add_u32 v12, s56, v12")
    A("v_lshl_add_u32 v13, v11, 8, v12")
    A("v_mul_u32_u24 v14, 2560, v11")
    A("v_add_u32 v14, v14, v12")
    A("v_lshlrev_b32 v2, 4, v1")
    A(f"s_mul_i32 s53, s61, {Opt.wstr}")
    A(f"s_add_u32 s53, s53, {WS_WOT:#x}")
    A("s_lshl_b32 s54, s62, 10")
    A("s_add_u32 s54, s54, s53")
    A("s_add_u32 s54, s54, 32768")
    A("s_lshl_b32 s62, s62, 12")
    A("s_add_u32 s53, s53, s62")
    A("s_lshl_b32 s55, s60, 7")
    A(f"s_add_u32 s55, s55, {FW:#x}")
    if Opt.wback == 2:
        A("v_lshlrev_b32 v5, 7, v1")
        A("s_mov_b32 exec_hi, 0")
        A(f"buffer_load_dword v24, v5, s[{SWS}:{SWS+3}], s53 offen")
        A("s_mov_b32 exec_lo, 0xff")
        A(f"buffer_load_dword v25, v5, s[{SWS}:{SWS+3}], s54 offen")
        A("s_mov_b64 exec, -1")
    assert not (Opt.pfw or Opt.pfx or Opt.gpf)
    A(f"s_waitcnt vmcnt({len(Opt.pfm)//3 + (5-Opt.gpf2 if Opt.gpf2 else 0) + Opt.npft})")
    for hh in range(4):
        for half in range(2):
            A(f"ds_read_b64_tr_b16 {vr(40+4*hh+2*half,2)}, v13 offset:{(20*hh+8*half)*64}")
    for half in range(2):
        A(f"ds_read_b64_tr_b16 {vr(56+2*half,2)}, v14 offset:{(20*half+16)*64}")
    A("s_waitcnt lgkmcnt(0)")
    for hh in range(4):
        A(f"buffer_store_dwordx4 {vr(40+4*hh,4)}, v2, s[{SWS}:{SWS+3}], s53 offen offset:{1024*hh}{Opt.stw}")
    A(f"buffer_store_dwordx4 v[56:59], v2, s[{SWS}:{SWS+3}], s54 offen{Opt.stw}")
    A(f"s_mov_b64 s[{TAG}:{TAG+1}], 0")
    if Opt.tagl:
        A("s_waitcnt vmcnt(0)")
    tag_check(A, 8)
    set_flag(A, 8, "s55")
    stamp(A, 3)
    if Opt.wback == 1:
        A("v_lshlrev_b32 v5, 7, v1")
        A("s_mov_b32 exec_hi, 0")
        A(f"buffer_load_dword v24, v5, s[{SWS}:{SWS+3}], s53 offen")
        A("s_mov_b32 exec_lo, 0xff")
        A(f"buffer_load_dword v25, v5, s[{SWS}:{SWS+3}], s54 offen")
        A("s_mov_b64 exec, -1")
    A.label(Lnw)
    A("s_setprio 0")
    b_channel(A)
    if Opt.hdef == 1:
        A("s_lshl_b32 s50, s49, 12")
    else:
        conv_load_h(A, 2)
    A(f"v_mov_b32 v4, {B_MB+256}")
    A("v_mov_b32 v5, 0")
    A("ds_write_b32 v4, v5")
    A("ds_write_b32 v4, v5 offset:512")


def conv_setup(A):
    A("v_lshlrev_b32 v2, 4, v1")
    A("s_lshl_b32 s52, s49, 1")
    A("s_and_b32 s52, s52, 0xfffffffc")
    A(f"s_load_dword s55, s[{S_SSD}:{S_SSD+1}], s52")
    A(f"s_load_dword s54, s[{S_SSK}:{S_SSK+1}], s50")
    A(f"s_mul_i32 s51, s49, {Opt.pit}")
    A(f"s_add_u32 s51, s51, {WS_KVT:#x}")
    for i in range(4):
        A(f"v_mov_b32 v{4+i}, 0")
    A("v_add_u32 v3, s56, v2")
    A("s_mov_b64 exec, 0xf")
    A("ds_write_b128 v3, v[4:7]")
    A("s_mov_b32 exec_lo, -1")
    A(f"ds_write_b128 v3, v[4:7] offset:{64+4096}")
    A("s_mov_b64 exec, -1")
    A("v_and_b32 v11, 3, v1")
    A("v_lshrrev_b32 v10, 4, v1")
    A("v_bfe_u32 v12, v1, 2, 2")
    A("v_lshlrev_b32 v8, 4, v11")
    A("v_lshl_add_u32 v8, v10, 6, v8")
    A("v_lshlrev_b32 v9, 3, v12")
    A("v_sub_u32 v8, v8, v9")
    A("s_add_u32 s57, s56, 32")
    A("v_add_u32 v8, s57, v8")
    A("v_sub_u32 v9, v11, v10")
    A("v_lshlrev_b32 v9, 6, v9")
    A("v_lshl_add_u32 v9, v12, 4, v9")
    A(f"s_add_u32 s57, s56, {64+4096+512}")
    A("v_add_u32 v9, s57, v9")
    A("v_mov_b32 v13, 0xffff")
    for i in range(4):
        A(f"v_cmp_eq_u32 vcc, {4*i}, v1")
        A(f"v_cndmask_b32 v{MK+i}, 0, v13, vcc")
    A("v_add_u32 v13, 3, v11")
    A("v_and_b32 v13, 3, v13")
    A("v_lshl_add_u32 v13, v12, 2, v13")
    A("v_add_u32 v13, 48, v13")
    A("v_subrev_u32 v14, 16, v1")
    A("v_cmp_gt_u32 vcc, 16, v1")
    A("v_cndmask_b32 v14, v14, v13, vcc")
    A("v_lshlrev_b32 v14, 2, v14")
    A("s_mov_b32 s58, 0x1111")
    A("s_mov_b32 s59, 0")


MK = 16


def role_conv(A):
    conv_setup(A)
    A("s_sub_u32 s61, s99, 24")
    A("s_lshl_b32 s62, s98, 3")
    A("s_add_u32 s62, s62, s61")
    A("s_lshl_b32 s62, s62, 7")
    A(f"s_add_u32 s62, s62, {F0:#x}")
    A("s_mul_i32 s60, s98, 80")
    A("s_mul_i32 s61, s61, 6")
    A("s_add_u32 s60, s60, s61")
    A("s_add_u32 s61, s60, 5")
    f0_lines(A, 60, 61, 12)
    A(f"s_waitcnt vmcnt({4 if Opt.hdef == 2 else 0}) lgkmcnt(0)")
    stamp(A, 4)
    A("s_barrier")
    def xload():
        A(f"s_add_u32 m0, s56, {64+4096+512}")
        for i in range(4):
            A(f"buffer_load_dwordx4 v2, s[{SWS}:{SWS+3}], s51 offen offset:{1024*i}{SC} lds")

    Lh, Ln7 = A.newlabel("L_hd"), A.newlabel("L_n7")
    A("s_cmp_eq_u32 s48, 7")
    A(f"s_cbranch_scc0 {Lh}")
    set_flag(A, 22, "s62")
    A.label(Lh)
    A("s_barrier")
    conv_load_h(A, 2)
    A("s_cmp_eq_u32 s48, 7")
    A(f"s_cbranch_scc0 {Ln7}")
    if Opt.hq == 2:
        A("s_waitcnt vmcnt(0)")
    poll(A, 26, 12, "s52", sleep=Opt.f0s)
    A.label(Ln7)
    A("s_barrier")
    stamp(A, 8)
    xload()
    A("s_waitcnt vmcnt(4)")
    A("s_cmp_ge_u32 s48, 4")
    A("s_cbranch_scc0 L_cb")
    A("s_setprio 1")
    A("s_branch L_cb")
    A.label("L_conv")
    RA, RB = 64, 192
    ACCS = (32, 40, 48, 56)
    CAR, PUL, TMP = 20, (21, 22), 23
    OUT = (24, 28)

    def rdA(m, e):
        reg = RA + 8 * m + 4 * e
        return [(f"ds_read_b64_tr_b16 {vr(reg,2)}, v8 offset:{256*m+8*e+32}", None),
                (f"ds_read_b64_tr_b16 {vr(reg+2,2)}, v8 offset:{256*m+8*e}", ("A", m, e))]

    Lb, Lg = "L_cb", A.newlabel("L_cg")
    tag_check(A, 22)
    if Opt.qlate == 1:
        conv_load_h(A, 2)
        A("s_barrier")
        lds_wait(A, 22, L_SYNC, 4, sleep=2)
        A(f"buffer_load_dwordx2 v[22:23], v12, s[{SWS}:{SWS+3}], s52 offen{SC}")
        A("s_waitcnt vmcnt(0)")
    elif Opt.qlate == 2:
        A("s_barrier")
        lds_wait(A, 22, L_SYNC, 4, sleep=2)
        A(f"buffer_load_dwordx2 v[22:23], v12, s[{SWS}:{SWS+3}], s52 offen{SC}")
        conv_load_h(A, 2)
        A("s_waitcnt vmcnt(4)")
    else:
        conv_load_h(A, 2)
        A(f"buffer_load_dwordx2 v[22:23], v12, s[{SWS}:{SWS+3}], s52 offen{SC}")
        A("s_barrier")
        A("s_waitcnt vmcnt(0)")
    A(f"v_cmp_eq_u64 vcc, s[{TAG}:{TAG+1}], v[22:23]")
    A("s_cmp_eq_u64 vcc, -1")
    Lx = A.newlabel("L_cx")
    A(f"s_cbranch_scc1 {Lx}")
    poll(A, 22, 12, "s52", sleep=8)
    A.label(Lx)
    stamp(A, 8)
    xload()
    if Opt.qlate:
        lds_arrive(A, 22, L_SYNC)
        A("s_waitcnt vmcnt(4)")
    A.label(Lb)
    A("s_waitcnt lgkmcnt(0)")
    A("s_lshl_b32 s54, s54, 16")
    A("s_lshl_b32 s53, s55, 16")
    A("s_and_b32 s55, s55, 0xffff0000")
    A("s_bitcmp1_b32 s49, 0")
    A("s_cselect_b32 s53, s55, s53")
    A("v_mov_b32 v15, s54")
    A("v_add_f32 v15, s53, v15")
    A("v_cvt_pk_bf16_f32 v15, v15, v15")
    T = Lgkm(A)
    for m in range(16):
        for e in range(2):
            for x, tg in rdA(m, e):
                T.issue(x, tg)
    T.wait(("A", 0, 1))
    for k in range(4):
        A(f"v_bfi_b32 v{RA+k}, v{MK+k}, v15, v{RA+k}")
        A(f"v_lshlrev_b32 v{MK+k}, 16, v{MK+k}")
        A(f"v_bfi_b32 v{RA+4+k}, v{MK+k}, v15, v{RA+4+k}")
    T.all()
    A(f"s_add_u32 s51, s51, {WS_YT-WS_KVT:#x}")
    A(f"v_mov_b32 v{PUL[1]}, 0")

    def epilogue(i):
        V = ACCS[i % 4]
        dpp = lambda d, src, op: f"v_add_f32_dpp v{d}, v{src}, v{d} {op} row_mask:0xf bank_mask:0xf"
        L = [f"v_mov_b32 v{CAR}, 0"]
        for k in (1, 2, 3):
            L += [dpp(V, V + k, f"row_shr:{4*k}"), dpp(V + 4, V + 4 + k, f"row_shr:{4*k}"), dpp(CAR, V + 4 + k, f"row_shl:{16-4*k}")]
        L.append(("ds", f"ds_bpermute_b32 v{PUL[i&1]}, v14, v{CAR}", ("P", i)))
        x = [dpp(V + 4, V + k, f"row_shl:{16-4*k}") for k in (1, 2, 3)]
        L += [x[0], "GAP", x[1], "GAP", x[2]]
        L.append(("wait", ("P", i)))
        L.append(f"v_cndmask_b32 v{TMP}, v{PUL[i&1]}, v{PUL[1-(i&1)]}, s[58:59]")
        L.append(f"v_add_f32 v{V}, v{V}, v{TMP}")
        L.append(f"v_cvt_pk_bf16_f32 v{OUT[(i>>2)&1]+(i&3)}, v{V}, v{V+4}")
        if i & 3 == 3:
            L.append(f"buffer_store_dwordx4 {vr(OUT[(i>>2)&1],4)}, v2, s[{SWS}:{SWS+3}], s51 offen offset:{1024*(i>>2)}{SC}")
        return L

    def emit(x):
        if isinstance(x, tuple):
            if x[0] == "ds":
                T.issue(x[1], x[2])
            else:
                T.wait(x[1])
        elif x != "GAP":
            A(x)

    A("s_waitcnt vmcnt(0)")
    stampw(A, 9)

    def stream(tiles, exit_at=None, keep=None):
        T.tag.clear()
        for w in range(16):
            T.issue(f"ds_read_b128 {vr(RB+4*w,4)}, v9 offset:{256*w}", ("B", w))
        fill = []
        since = 99
        for i in tiles:
            V = ACCS[i % 4]
            while fill and fill[0][0] <= i - 4:
                emit(fill.pop(0)[1])
            if exit_at and i == exit_at[0]:
                while fill and fill[0][0] <= i - 2:
                    emit(fill.pop(0)[1])
                assert len(fill) == len(epilogue(i - 1))
                A("s_cmp_ge_u32 s48, 4")
                A(f"s_cbranch_scc1 {exit_at[1]}")
            since = 0
            for w in range(i + 1):
                for e in range(2):
                    T.wait(("B", w))
                    c = vr(V + 4 * e, 4) if w else "0"
                    A(f"v_mfma_f32_16x16x32_bf16 {vr(V+4*e,4)}, {vr(RA+8*(i-w)+4*e,4)}, {vr(RB+4*w,4)}, {c}")
                    since += 1
                    left = 2 * (i + 1) - since
                    due = len([1 for t_, _x in fill if t_ <= i - 2])
                    if i == tiles[-1] or (exit_at and i == exit_at[0] - 1):
                        due = len(fill)
                    for _ in range(2 if due > left else 1):
                        if fill and (fill[0][0] < i - 1 or since >= 6):
                            emit(fill.pop(0)[1])
            ep = epilogue(i)
            if keep and i == keep[0]:
                k = [j for j, x in enumerate(ep) if isinstance(x, str) and x.startswith("v_cvt")][0]
                ep = ep[:k] + [f"v_mov_b32 v{keep[1]}, v{V}", f"v_mov_b32 v{keep[1]+1}, v{V+4}"] + ep[k + 1:]
            fill += [(i, x) for x in ep]
        stampw(A, 10)
        T.done = T.n if Ctx.stamps else T.done
        return [x for _, x in fill]

    A("s_cmp_ge_u32 s48, 6")
    A("s_cbranch_scc1 L_second")
    for x in stream(range(16), (12, "L_first")):
        emit(x)
    A("s_branch L_cdone")
    A.label("L_first")
    A("s_waitcnt lgkmcnt(0)")
    A("s_nop 6")
    T.done = T.n
    stampw(A, 10)
    for x in epilogue(11):
        emit(x)
    A("s_and_b32 s52, s48, 1")
    A("s_lshl_b32 s52, s52, 9")
    A(f"s_add_u32 s52, s52, {B_MB}")
    A("v_lshl_add_u32 v10, v1, 2, s52")
    A(f"ds_write_b32 v10, v{PUL[1]}")
    A("s_add_u32 s52, s52, 256")
    lds_arrive(A, 10, "s52")
    A("s_branch L_cdone")
    A.label("L_second")
    T.done = T.n
    last = stream(range(12, 16), keep=(12, 4))
    for x in last[:-1]:
        emit(x)
    A("s_and_b32 s52, s48, 1")
    A("s_lshl_b32 s52, s52, 9")
    A(f"s_add_u32 s52, s52, {B_MB}")
    A("v_lshl_add_u32 v12, v1, 2, s52")
    A("s_add_u32 s52, s52, 256")
    lds_wait(A, 10, "s52", 1, sleep=2)
    A(f"ds_read_b32 v{TMP}, v12")
    A("s_waitcnt lgkmcnt(0)")
    A(f"v_cndmask_b32 v{TMP}, 0, v{TMP}, s[58:59]")
    A(f"v_add_f32 v4, v4, v{TMP}")
    A(f"v_cvt_pk_bf16_f32 v{OUT[1]}, v4, v5")
    A(last[-1])
    A.label("L_cdone")
    A("s_waitcnt vmcnt(0)")
    stamp(A, 11)
    A("s_cmp_ge_u32 s99, 24")
    A("s_cbranch_scc1 L_bdone")
    A(f"v_mov_b32 v10, {L_SYNC+12}")
    A("v_mov_b32 v11, 1")
    A("s_mov_b64 exec, 1")
    A("ds_add_rtn_u32 v12, v10, v11")
    A("s_mov_b64 exec, -1")
    A("s_lshl_b32 s52, s98, 4")
    A("s_add_u32 s52, s52, s99")
    A("s_lshl_b32 s52, s52, 7")
    A(f"s_add_u32 s52, s52, {F4+8*128:#x}")
    A("s_waitcnt lgkmcnt(0)")
    A("v_readfirstlane_b32 s53, v12")
    A("s_cmp_eq_u32 s53, 3")
    A("s_cbranch_scc0 L_bend")
    set_flag(A, 10, "s52")
    A("s_branch L_bend")
    A.label("L_bdone")


def role_post(A):
    SQ, SO = 32, 36
    A.label("L_post")
    A("s_setprio 0")
    A("s_and_b32 s48, s48, 3")
    if Opt.p3:
        A("s_mul_i32 s50, s99, 3")
        A("s_sub_u32 s50, s50, 73")
        A("s_lshl_b32 s51, s99, 2")
        A("s_add_u32 s51, s51, 8")
    else:
        A("s_sub_u32 s50, s99, 24")
        A("s_lshl_b32 s50, s50, 2")
        A("s_lshl_b32 s51, s99, 1")
        A("s_add_u32 s51, s51, 24")
    A("s_cmp_ge_u32 s99, 24")
    A("s_cselect_b32 s50, s50, s51")
    A("s_mul_i32 s49, s98, 40")
    A("s_add_u32 s49, s49, s50")
    A("s_add_u32 s49, s49, s48")
    A("s_and_b32 s50, s49, 31")
    A("s_lshr_b32 s51, s49, 5")
    A("v_lshrrev_b32 v2, 3, v1")
    A("v_and_b32 v3, 7, v1")
    A(f"v_mul_u32_u24 v4, {Opt.pit}, v2")
    A("v_lshl_add_u32 v4, v3, 4, v4")
    A(f"s_mul_i32 s52, s51, {64*Opt.pit}")
    A("s_lshl_b32 s53, s50, 7")
    A("s_add_u32 s52, s52, s53")
    A(f"s_add_u32 s52, s52, {WS_YT:#x}")
    A("s_mul_i32 s56, s48, 8320")
    A(f"s_add_u32 s56, s56, {B_PRE}")
    A("s_lshr_b32 s54, s50, 3")
    A("s_lshl_b32 s54, s54, 9")
    A("s_bfe_u32 s55, s50, 0x20001")
    A("s_lshl_b32 s55, s55, 3")
    A("s_add_u32 s54, s54, s55")
    A("s_and_b32 s55, s50, 1")
    A("s_lshl_b32 s55, s55, 1")
    A("s_add_u32 s54, s54, s55")
    A("v_and_b32 v5, 3, v2")
    A("v_lshrrev_b32 v6, 2, v2")
    A("v_lshl_add_u32 v5, v5, 5, v6")
    A("v_mul_u32_u24 v6, 1280, v5")
    A("v_lshlrev_b32 v7, 1, v6")
    A("v_lshl_add_u32 v6, v3, 4, v6")
    A("v_lshl_add_u32 v7, v3, 4, v7")
    A("s_mul_i32 s54, s54, 1280")
    A("s_lshl_b32 s53, s51, 7")
    A("s_lshl_b32 s55, s54, 1")
    A("s_add_u32 s54, s54, s53")
    A("s_add_u32 s55, s55, s53")
    A("s_add_u32 s55, s55, 1280")
    srd(A, SQ, S_BQ, NB_X)
    srd(A, SO, S_OUT, NB_OUT)
    QR, YR = 16, 48
    rows = [0, 4, 128, 132, 256, 260, 384, 388]
    for i in range(8):
        A(f"s_add_u32 s57, s54, {rows[i]*1280}")
        A(f"buffer_load_dwordx4 {vr(QR+4*i,4)}, v6, s[{SQ}:{SQ+3}], s57 offen{Opt.ntq}")
    A("s_mov_b32 s59, 0xffff0000")
    QF = 128
    A("s_waitcnt vmcnt(0)")
    for i in range(32):
        A(f"v_lshlrev_b32 v{QF+2*i}, 16, v{QR+i}")
        A(f"v_and_b32 v{QF+2*i+1}, s59, v{QR+i}")
    A("s_lshl_b32 s57, s98, 4")
    A("s_sub_u32 s58, s57, 16")
    A("v_min_u32 v12, 47, v1")
    A("v_add_u32 v12, s58, v12")
    A("v_max_i32 v12, 0, v12")
    A("v_min_u32 v12, 127, v12")
    A("v_lshlrev_b32 v12, 7, v12")
    A("s_add_u32 s57, s57, s99")
    A("s_lshl_b32 s57, s57, 7")
    A(f"s_add_u32 s57, s57, {F4-24*128:#x}")
    A(f"s_mov_b32 s58, {F4:#x}")
    Lx, Lq, Ld = A.newlabel("L_p7"), A.newlabel("L_pq"), A.newlabel("L_pd")
    A("s_cmp_ge_u32 s99, 24")
    A(f"s_cbranch_scc0 {Lq}")
    A("s_barrier")
    A("s_cmp_eq_u32 s48, 3")
    A(f"s_cbranch_scc0 {Lx}")
    set_flag(A, 8, "s57")
    poll(A, 14, 12, "s58", sleep=Opt.f4s)
    A.label(Lx)
    A("s_barrier")
    A(f"s_branch {Ld}")
    A.label(Lq)
    A("s_barrier")
    A("s_cmp_eq_u32 s48, 0")
    A(f"s_cbranch_scc0 {Lx}")
    poll(A, 14, 12, "s58", sleep=Opt.f4s)
    A(f"s_branch {Lx}")
    A.label(Ld)
    if Opt.dB:
        A(f"s_sleep {Opt.dB}")
    stamp(A, 12)
    for i in range(8):
        A(f"v_xor_b32 v8, {16*i}, v4")
        A(f"s_add_u32 m0, s56, {1024*i}")
        A(f"buffer_load_dwordx4 v8, s[{SWS}:{SWS+3}], s52 offen{SC} lds")
        if i < 7:
            A(f"s_add_u32 s52, s52, {8*Opt.pit}")
    A("v_xor_b32 v8, v2, v3")
    A("v_lshlrev_b32 v8, 4, v8")
    A("v_lshl_add_u32 v8, v3, 10, v8")
    A("v_add_u32 v8, s56, v8")
    A("s_waitcnt vmcnt(0)")
    for c in range(8):
        A(f"ds_read_b128 {vr(YR+4*c,4)}, v8 offset:{128*c}")
    A("s_waitcnt lgkmcnt(0)")
    stamp(A, 13)
    YF, OUT = 80, 96
    for i in range(8):
        for c in range(8):
            if i & 1:
                A(f"v_and_b32 v{YF+c}, s59, v{YR+4*c+i//2}")
            else:
                A(f"v_lshlrev_b32 v{YF+c}, 16, v{YR+4*c+i//2}")
        for c in range(0, 8, 2):
            A(f"v_pk_mul_f32 {vr(YF+c,2)}, {vr(YF+c,2)}, {vr(QF+8*i+c,2)}")
        for k in range(4):
            A(f"v_cvt_pk_bf16_f32 v{OUT+4*i+k}, v{YF+2*k}, v{YF+2*k+1}")
        A(f"s_add_u32 s57, s55, {rows[i]*2560}")
        A(f"buffer_store_dwordx4 {vr(OUT+4*i,4)}, v7, s[{SO}:{SO+3}], s57 offen{Opt.oscb}")
    stamp(A, 14)


def build():
    A = Asm()
    k = NAME + "_kernel"
    A.raw(f".globl {k}")
    A.raw(".p2align 8")
    A.raw(f".type {k},@function")
    A.label(k)
    if Opt.hold:
        A("s_memrealtime s[64:65]")
    load_kernargs(A)
    if Opt.lite:
        A("s_memrealtime s[64:65]")
    elif not Opt.hp:
        if Opt.rt:
            for k_ in range(2, 15):
                A(f"s_mov_b32 s{64+2*k_}, 0")
            stamp(A, 0, True)
        else:
            stamp_init(A)
        if Opt.rt:
            stamp(A, 1)
    A("v_lshrrev_b32 v2, 6, v0")
    A("v_and_b32 v1, 63, v0")
    A("v_readfirstlane_b32 s100, v2")
    A("s_and_b32 s98, s2, 7")
    A("s_lshr_b32 s99, s2, 3")
    A("s_cmp_ge_u32 s2, 192")
    A("s_cbranch_scc1 L_b")
    A("s_and_b32 s49, s2, 3")
    A("s_lshl_b32 s49, s49, 2")
    A("s_and_b32 s50, s99, 3")
    A("s_add_u32 s49, s49, s50")
    A("s_bfe_u32 s52, s2, 0x10002")
    A("s_lshr_b32 s53, s2, 5")
    A("s_lshl_b32 s54, s52, 1")
    A("s_add_u32 s54, s54, s53")
    A("s_lshl_b32 s55, s52, 2")
    A("s_add_u32 s55, s55, s53")
    A("s_sub_u32 s55, s55, 2")
    A("s_cmp_lt_u32 s2, 64")
    A("s_cselect_b32 s50, s54, s55")
    A("s_cselect_b32 s51, 1, 0")
    A("s_and_b32 s48, s100, 3")
    A("s_cmp_ge_u32 s100, 4")
    A("s_cbranch_scc1 L_c")
    role_loader(A)
    A.label("L_c")
    role_compute(A)
    A.label("L_b")
    A("s_cmp_ge_u32 s2, 256")
    A("s_cbranch_scc1 L_exit")
    A("s_mov_b32 s48, s100")
    A("s_cmp_ge_u32 s48, 5")
    A("s_cbranch_scc1 L_help")
    role_pre(A)
    A("s_branch L_bconv")
    A.label("L_help")
    role_helper(A)
    A.label("L_bconv")
    role_conv(A)
    A(f"s_cmp_lt_u32 s48, {5 if Opt.p3 else 4}")
    A("s_cbranch_scc1 L_bend")
    role_post(A)
    A.label("L_bend")
    end_wave(A, "b")
    A.label("L_exit")
    A("s_endpgm")
    A.label("L_code_end")
    head = [
        "; Hedgehog linear attention (cols 0..639) + H3 long convolution (cols 640..1279), one persistent launch.",
        "; Written with the generator script gen/f20.py (hand-scheduled instruction lists, own wait-state pass).",
        "; kernarg (s[0:1]): x, wqkv, w_phi, wo, q, k, v, shift_k, ssm_k, ssm_D, out, debug, ws (8 bytes each).",
        "; 256 workgroups x 8 waves, one per CU; wg = 8 i + x:",
        ";   i 0..7   Q : 128x160 tile of x@Wq -> pq (bf16) ; then 4 conv channels ; i<4 also a wo tile, i>=4 gate tiles",
        ";   i 8..23  KV: 128x160 tile of x@[Wk|Wv] -> softmax features -> partial phi_k^T [v 1] ; o = num/den ; wo tile",
        ";   i 24..31 B : shift conv * v (transposed), wo in fragment order, 6 conv channels, gate tiles",
        "; waves 0..3 of Q/KV stream operands (LDS DMA), waves 4..7 compute.  Hand-offs between workgroups go through",
        "; d_ws with write-through stores and one flag line per producer; flags carry this launch's tag (epoch word + 1,",
        "; published in d_debug).  The long convolution is a polyphase Toeplitz product on the matrix cores.",
        "; @launch grid=(256,1,1) block=(512,1,1) lds=163840"]
    txt = "\n".join(head) + '\n.amdgcn_target "amdgcn-amd-amdhsa--gfx950"\n.text\n' + A.text()
    txt += f'''.section .rodata,"a"
.p2align 6
.amdhsa_kernel {k}
  .amdhsa_next_free_vgpr 256
  .amdhsa_next_free_sgpr 102
  .amdhsa_accum_offset 256
  .amdhsa_group_segment_fixed_size 0
  .amdhsa_kernarg_size 104
  .amdhsa_user_sgpr_count 2
  .amdhsa_user_sgpr_kernarg_segment_ptr 1
  .amdhsa_system_sgpr_workgroup_id_x 1
.end_amdhsa_kernel
'''
    return txt


if __name__ == "__main__":
    args = sys.argv[2:]
    Ctx.stamps = "stamps" in args
    Opt.rot = "norot" not in args
    Opt.codepf = "nocodepf" not in args
    for a in args:
        if a.startswith("probe="):
            Opt.probe = tuple(int(x) for x in a[6:].split(","))
        if a.startswith("holdwg="):
            Opt.holdwg = int(a[7:])
        if a.startswith("osc="):
            Opt.osc = a[4:].replace("_", " ")
        if a.startswith("oscb="):
            Opt.oscb = a[5:].replace("_", " ")
        if a.startswith("gpf="):
            Opt.gpf = int(a[4:])
        if a.startswith("gpfd="):
            Opt.gpfd = int(a[5:])
        if a.startswith("rotA="):
            Opt.rotA = int(a[5:], 16)
        if a.startswith("rotB="):
            Opt.rotB = int(a[5:], 16)
        if a == "fake16":
            Opt.fake16 = True
        if a.startswith("qdelay="):
            Opt.qdelay = int(a[7:])
        if a.startswith("bpos="):
            Opt.bpos = int(a[5:])
        if a == "lidle":
            Opt.lidle = True
        if a == "qwait":
            Opt.qwait = True
        if a == "nofwarm":
            Opt.fwarm = False
        if a == "noprog":
            Opt.prog = False
        if a == "dflag":
            Opt.dflag = True
        if a == "lite":
            Opt.lite = True
            Ctx.stamps = True
        if a.startswith("wos="):
            Opt.wos = int(a[4:])
        if a.startswith("R="):
            Opt.R = int(a[2:])
        if a.startswith("hdef="):
            Opt.hdef = int(a[5:])
        if a.startswith("gpf2="):
            Opt.gpf2 = int(a[5:])
        if a.startswith("oahead="):
            Opt.oahead = int(a[7:])
        if a.startswith("hpsel="):
            Opt.hpsel = a[6:]
        if a.startswith("bdelay="):
            Opt.bdelay = int(a[7:])
        if a.startswith("qdel="):
            Opt.qdel = int(a[5:])
        if a == "snake":
            Opt.snake = True
        if a == "wrot":
            Opt.wrot = True
        if a.startswith("wfirst="):
            Opt.wfirst = int(a[7:])
        if a.startswith("wearly="):
            Opt.wearly = int(a[7:])
        if a.startswith("fwat="):
            Opt.fwat = int(a[5:])
        if a.startswith("only="):
            Opt.only = [0, 1, 15] + [int(x) for x in a[5:].split(",")]
        if a.startswith("touch="):
            Opt.touch = int(a[6:])
        if a.startswith("tsh="):
            Opt.tsh = int(a[4:])
        for nm in ("ldw", "ldo", "ldp", "stw", "ntk", "nth", "ntq"):
            if a.startswith(nm + "="):
                setattr(Opt, nm, a[4:].replace("_", " "))
        if a.startswith("wback="):
            Opt.wback = int(a[6:])
        if a.startswith("wthr="):
            Opt.wthr = int(a[5:])
        if a.startswith("wstr="):
            Opt.wstr = int(a[5:])
        if a == "fullout":
            Opt.fullout = True
        if a == "noearly":
            Opt.noearly = True
        if a.startswith("lprio="):
            Opt.lprio = int(a[6:])
        if a.startswith("lprio0="):
            Opt.lprio0 = int(a[7:])
        if a.startswith("wmid="):
            Opt.wmid = int(a[5:])
        if a.startswith("pfw="):
            Opt.pfw = [int(c) for c in a[4:]]
            Opt.gpf2 = 0
        if a.startswith("pfx="):
            Opt.pfx = [int(c) for c in a[4:]]
            Opt.gpf2 = 0
        if a.startswith("pfm="):
            Opt.pfm = [int(c, 16) for c in a[4:]]
        if a.startswith("wbf="):
            Opt.wbf = int(a[4:])
        if a.startswith("qlate="):
            Opt.qlate = int(a[6:])
        if a.startswith("wpk="):
            Opt.wpk = int(a[4:])
        for nm in ("f0s", "tgs", "f2s", "f4s", "tagl", "pit", "p3", "pqsync", "qpipe", "lag", "f2all", "f1all", "fww", "lws", "hq"):
            if a.startswith(nm + "="):
                setattr(Opt, nm, int(a.split("=")[1]))
        if a.startswith("bwarm="):
            Opt.bwarm = int(a[6:])
        if a.startswith("pft="):
            v_ = a[4:]
            Opt.pft = [(int(v_[i]), v_[i + 1]) for i in range(0, len(v_), 2)]
            Opt.gpf2 = 0
        if a.startswith("par="):
            Opt.par = int(a[4:], 16)
        if a == "rt":
            Opt.rt = True
        if a.startswith("hp="):
            Opt.hp = int(a[3:])
            Ctx.stamps = True
        if a.startswith("hold="):
            Opt.hold = int(a[5:])
        if a.startswith("dA="):
            Opt.dA = int(a[3:])
        if a.startswith("dB="):
            Opt.dB = int(a[3:])
        if a == "nowomall":
            Opt.womall = False
        if a == "noppoll":
            Opt.ppoll = False
        if a.startswith("psleep="):
            Opt.psleep = int(a[7:])
        if a.startswith("wopf="):
            Opt.wopf = a[5:]
    for a in args:
        if a.startswith("LA="):
            Opt.LA = int(a[3:])
    open(sys.argv[1], "w").write(build())
```

```python
import sys
from asm import Asm, vr, ar, sr
from roles import (WS_PHIQ, WS_PART, WS_O, WS_KVT, WS_YT, WS_STAMP, WS_SIZE, S_X, S_W, S_WPHI, S_WO, S_BQ, S_BK, S_BV,
                   S_SH, S_SSK, S_SSD, S_OUT, S_DBG, S_WS, NB_X, NB_W, NB_WPHI, NB_WO, NB_SH, NB_SSK, NB_OUT, LOG2E,
                   Ctx, load_kernargs, srd, stamp, stamp_init, softmax20)

NAME = "concat_heads__linear_kernel_hedgehog__ssm_conv_h3__prompt"
WS_PQ = WS_PHIQ
WS_PART, WS_O, WS_KVT, WS_YT = 0x380000, 0x4C0000, 0x740000, 0xA40000
WS_FLAG = 0xF00000
F1, F2, F3, F0, F4 = (WS_FLAG + 128 * o for o in (0, 512, 1024, 1536, 1856))
FW = WS_FLAG + 128 * 2048
WS_WOT = 0x280000
WS_EPOCH = WS_FLAG + 128 * 2560 + 64
SWS = 44
SC = " sc1"
TAG = 30
SLOT = 36864
L_WP = 147456
L_Z = L_WP + 8192
L_SYNC = L_Z + 4096
L_V = 128 * 336
L_WOB = 69632
L_OT = 65536
CV_LDS = 8768
L_QCV = 3 * SLOT
B_PRE = 8 * CV_LDS
B_MB = B_PRE + 5 * 8320


class Opt:
    rot = True
    LA = 2
    ntk = ""
    nth = " nt"
    ntq = " nt"
    codepf = True
    wopf = "no"
    osc = " sc1 nt"
    oscb = " sc1 nt"
    hp = 0
    oa = 10
    oe = 1
    obar = [0, 8, 16, 32, 48, 64]
    jit = 0
    jitp = 8
    mdelay = 0
    hq = 1
    lws = 0
    fww = 0
    f2all = 0
    f1all = 0
    lag = 0
    qpipe = 0
    pft = []
    npft = 0
    pqsync = 0
    p3 = 1
    pit = 4352
    bwarm = 2
    f0s = 4
    tgs = 8
    f2s = 4
    f4s = 4
    tagl = 0
    wpk = 22
    qlate = 1
    wbf = 6
    pfm = [2, 7, 15]
    pfw = []
    pfx = []
    wmid = 32
    lprio = 0
    lprio0 = 1
    stw = SC
    noearly = False
    fullout = True
    wthr = 0
    wstr = 40960
    wback = 0
    ldw = SC
    ldo = SC
    ldp = SC
    touch = 0
    tsh = 20
    only = None
    fwat = 9
    par = 0x32
    wearly = 0
    wrot = False
    wfirst = 26
    bdelay = 0
    qdel = 0
    snake = False
    hpsel = "kv"
    oahead = 5
    gpf2 = 3
    hdef = 1
    R = 10
    wos = 1
    lite = False
    dflag = False
    prog = True
    fwarm = True
    qwait = False
    lidle = False
    bpos = 4
    fake16 = False
    qdelay = 0
    rotA = 0x5050
    rotB = 0x550050
    gpf = 0
    gpfd = 99
    rt = False
    ppoll = False
    womall = True
    probe = None
    dA = 0
    hold = 0
    holdwg = -1
    dB = 0
    psleep = 2


_stamp0 = stamp


_site = [0]


def stamp(A, k, real=False):
    if Opt.jit:
        _site[0] += 1
        L = A.newlabel("L_jit")
        A("s_lshl_b32 s101, s2, 3")
        A("s_add_u32 s101, s101, s100")
        A(f"s_add_u32 s101, s101, {(_site[0] * 7919 + Opt.jit * 104729) & 0xffffff}")
        A("s_mul_i32 s101, s101, 0x9e3779b1")
        A(f"s_cmp_lt_u32 s101, {0x100000000 // Opt.jitp:#x}")
        A(f"s_cbranch_scc0 {L}")
        A("s_sleep 100")
        A.label(L)
        return
    if Opt.hp:
        if k == Opt.hp:
            A("s_memrealtime s[64:65]")
        return
    if Opt.lite and k not in (0, 15):
        return
    if Opt.only and k not in Opt.only:
        return
    _stamp0(A, k, real or Opt.rt)


def end_wave(A, holdable=False):
    if Opt.hp:
        if (holdable is True and Opt.hpsel in ("kv", "qw")) or (holdable == "b" and Opt.hpsel in ("b", "qs")):
            L = A.newlabel("L_hp")
            A("s_cmp_lt_u32 s99, 8")
            A("s_cbranch_scc1 L_exit" if Opt.hpsel in ("kv", "b") else "s_cbranch_scc0 L_exit")
            if holdable == "b":
                A("s_cmp_lt_u32 s100, 4")
                A("s_cbranch_scc1 L_exit")
            A.label(L)
            A("s_sleep 4")
            A("s_memrealtime s[66:67]")
            A("s_waitcnt lgkmcnt(0)")
            A("s_sub_u32 s66, s66, s64")
            A("s_cmp_lt_u32 s66, 2000")
            A(f"s_cbranch_scc1 {L}")
    elif Ctx.stamps:
        A("s_waitcnt vmcnt(0)")
        stamp(A, 15, True)
        A("s_waitcnt lgkmcnt(0)")
        A("s_mov_b64 exec, -1")
        A("v_mov_b32 v2, 0")
        for k in ((0, 15) if Opt.lite else range(16)):
            A(f"v_writelane_b32 v2, s{64+2*k}, {k}")
        A("s_lshl_b32 s62, s2, 3")
        A("s_add_u32 s62, s62, s100")
        A("s_lshl_b32 s62, s62, 6")
        A(f"s_add_u32 s62, s62, {WS_STAMP:#x}")
        A("v_lshlrev_b32 v1, 2, v1")
        A("s_mov_b64 exec, 0xffff")
        A(f"buffer_store_dword v2, v1, s[{SWS}:{SWS+3}], s62 offen sc1")
        if Opt.probe:
            Lp = A.newlabel("L_probe")
            A(f"s_cmp_eq_u32 s2, {Opt.probe[0]}")
            A(f"s_cbranch_scc0 {Lp}")
            A(f"s_cmp_eq_u32 s100, {Opt.probe[1]}")
            A(f"s_cbranch_scc0 {Lp}")
            A("v_subrev_u32 v3, s66, v2")
            A("s_sub_u32 s62, s94, s64")
            A("v_writelane_b32 v3, s62, 15")
            A("v_cmp_ne_u32 vcc, 0, v2")
            A("v_cndmask_b32 v3, 0, v3, vcc")
            A("s_mov_b64 exec, 0xfffc")
            A(f"global_store_dword v1, v3, s[{S_DBG}:{S_DBG+1}]")
            A.label(Lp)
    A("s_endpgm")


def stampw(A, k):
    stamp(A, k)
    if Ctx.stamps:
        A("s_waitcnt lgkmcnt(0)")


def poll(A, vt, voff, soff, sleep=1):
    L, Ld = A.newlabel("L_poll"), A.newlabel("L_polld")
    A("s_movk_i32 s101, 0x4000")
    A.label(L)
    A(f"buffer_load_dwordx2 {vr(vt,2)}, v{voff}, s[{SWS}:{SWS+3}], {soff} offen{SC}")
    A("s_waitcnt vmcnt(0)")
    A(f"v_cmp_eq_u64 vcc, s[{TAG}:{TAG+1}], {vr(vt,2)}")
    A("s_cmp_eq_u64 vcc, -1")
    A(f"s_cbranch_scc1 {Ld}")
    A(f"s_sleep {sleep}")
    A("s_sub_u32 s101, s101, 1")
    A("s_cmp_eq_u32 s101, 0")
    A(f"s_cbranch_scc0 {L}")
    A("s_endpgm")
    A.label(Ld)


def ppoll(A, vt, voff, soff, sleep=1, depth=4):
    if not Opt.ppoll:
        return poll(A, vt, voff, soff, sleep=sleep)
    L, Ld = A.newlabel("L_pp"), A.newlabel("L_ppd")
    ld = lambda k: f"buffer_load_dwordx2 {vr(vt+2*k,2)}, v{voff}, s[{SWS}:{SWS+3}], {soff} offen{SC}"
    A("s_movk_i32 s101, 0x4000")
    for k in range(depth - 1):
        A(ld(k))
        A(f"s_sleep {sleep}")
    A.label(L)
    for k in range(depth):
        A(ld((k + depth - 1) % depth))
        A(f"s_waitcnt vmcnt({depth-1})")
        A(f"v_cmp_eq_u64 vcc, s[{TAG}:{TAG+1}], {vr(vt+2*k,2)}")
        A("s_cmp_eq_u64 vcc, -1")
        A(f"s_cbranch_scc1 {Ld}")
        A(f"s_sleep {sleep}")
    A("s_sub_u32 s101, s101, 1")
    A("s_cmp_eq_u32 s101, 0")
    A(f"s_cbranch_scc0 {L}")
    A("s_endpgm")
    A.label(Ld)


def set_flag(A, vt, soff):
    A(f"v_mov_b32 v{vt}, s{TAG}")
    A(f"v_mov_b32 v{vt+1}, s{TAG+1}")
    A(f"v_lshlrev_b32 v{vt+2}, 3, v1")
    A("s_waitcnt vmcnt(0)")
    A("s_mov_b64 exec, 0xffff")
    A(f"buffer_store_dwordx2 {vr(vt,2)}, v{vt+2}, s[{SWS}:{SWS+3}], {soff} offen{SC}")
    A("s_mov_b64 exec, -1")


def tag_issue(A):
    A(f"s_load_dwordx2 s[{TAG}:{TAG+1}], s[{S_DBG}:{S_DBG+1}], 0")


def tag_check(A, vt):
    L, Ld = A.newlabel("L_hs"), A.newlabel("L_hsd")
    A("s_waitcnt lgkmcnt(0)")
    A(f"s_cmp_lg_u32 s{TAG}, s{TAG+1}")
    A(f"s_cbranch_scc1 {Ld}")
    A("s_movk_i32 s101, 0x4000")
    A(f"v_mov_b32 v{vt+2}, 0")
    A.label(L)
    A(f"global_load_dwordx2 {vr(vt,2)}, v{vt+2}, s[{S_DBG}:{S_DBG+1}]{SC}")
    A("s_waitcnt vmcnt(0)")
    A(f"v_readfirstlane_b32 s{TAG}, v{vt}")
    A(f"v_readfirstlane_b32 s{TAG+1}, v{vt+1}")
    A("s_nop 3")
    A(f"s_cmp_lg_u32 s{TAG}, s{TAG+1}")
    A(f"s_cbranch_scc1 {Ld}")
    A(f"s_sleep {Opt.tgs}")
    A("s_sub_u32 s101, s101, 1")
    A("s_cmp_eq_u32 s101, 0")
    A(f"s_cbranch_scc0 {L}")
    A("s_endpgm")
    A.label(Ld)


def lds_arrive(A, vt, addr):
    A(f"v_mov_b32 v{vt}, {addr}")
    A(f"v_mov_b32 v{vt+1}, 1")
    A("s_waitcnt lgkmcnt(0)")
    A("s_mov_b64 exec, 1")
    A(f"ds_add_u32 v{vt}, v{vt+1}")
    A("s_mov_b64 exec, -1")


def lds_wait(A, vt, addr, n, sleep=0):
    L, Ld = A.newlabel("L_lw"), A.newlabel("L_lwd")
    if addr is not None:
        A(f"v_mov_b32 v{vt}, {addr}")
    A("s_mov_b32 s101, 0x40000")
    A.label(L)
    A(f"ds_read_b32 v{vt+1}, v{vt}")
    A("s_waitcnt lgkmcnt(0)")
    A(f"v_cmp_le_u32 vcc, {n}, v{vt+1}")
    A(f"s_cbranch_vccnz {Ld}")
    if max(sleep, Opt.lws):
        A(f"s_sleep {max(sleep, Opt.lws)}")
    A("s_sub_u32 s101, s101, 1")
    A("s_cmp_eq_u32 s101, 0")
    A(f"s_cbranch_scc0 {L}")
    A("s_endpgm")
    A.label(Ld)


class Lgkm:
    def __init__(self, A):
        self.A, self.n, self.done, self.tag = A, 0, 0, {}

    def issue(self, text, tag=None):
        self.A(text)
        self.n += 1
        if tag is not None:
            self.tag[tag] = self.n

    def wait(self, *tags):
        need = max(self.tag[t] for t in tags)
        if need > self.done:
            self.A(f"s_waitcnt lgkmcnt({min(15, self.n - need)})")
            self.done = max(need, self.n - 15)

    def all(self):
        if self.done < self.n:
            self.A("s_waitcnt lgkmcnt(0)")
            self.done = self.n


def softmax_parts(X, E, F, T, PH):
    mx, mn = T, T + 2
    mm = [f"v_max3_f32 v{mx}, v{X}, v{X+1}, v{X+2}", f"v_min3_f32 v{mn}, v{X}, v{X+1}, v{X+2}"]
    for i in range(3, 19, 2):
        mm += [f"v_max3_f32 v{mx}, v{mx}, v{X+i}, v{X+i+1}", f"v_min3_f32 v{mn}, v{mn}, v{X+i}, v{X+i+1}"]
    mm += [f"v_max_f32 v{mx}, v{mx}, v{X+19}", f"v_min_f32 v{mn}, v{mn}, v{X+19}",
           f"v_mul_f32 v{mx}, s60, v{mx}", f"v_mul_f32 v{mn}, s60, v{mn}"]
    fm, ex = [], []
    for i in range(0, 20, 2):
        fm.append(f"v_pk_fma_f32 {vr(E+i,2)}, {vr(X+i,2)}, s[60:61], {vr(mx,2)} op_sel_hi:[1,1,0] neg_lo:[0,0,1] neg_hi:[0,0,1]")
        fm.append(f"v_pk_fma_f32 {vr(F+i,2)}, {vr(X+i,2)}, s[60:61], {vr(mn,2)} op_sel_hi:[1,1,0] neg_lo:[1,0,0] neg_hi:[1,0,0]")
    for i in range(20):
        ex += [f"v_exp_f32 v{E+i}, v{E+i}", f"v_exp_f32 v{F+i}, v{F+i}"]
    se, sf = T + 4, T + 6
    sm = [f"v_pk_add_f32 {vr(se,2)}, {vr(E,2)}, {vr(E+2,2)}", f"v_pk_add_f32 {vr(sf,2)}, {vr(F,2)}, {vr(F+2,2)}"]
    for i in range(4, 20, 2):
        sm += [f"v_pk_add_f32 {vr(se,2)}, {vr(se,2)}, {vr(E+i,2)}", f"v_pk_add_f32 {vr(sf,2)}, {vr(sf,2)}, {vr(F+i,2)}"]
    fin = [f"v_add_f32 v{se}, v{se}, v{se+1}", f"v_add_f32 v{sf}, v{sf}, v{sf+1}",
           f"v_rcp_f32 v{se}, v{se}", f"v_rcp_f32 v{sf}, v{sf}"]
    tail = []
    for j in range(20):
        R, s_ = (E + 2 * j, se) if j < 10 else (F + 2 * (j - 10), sf)
        tail.append((f"v_pk_mul_f32 {vr(R,2)}, {vr(R,2)}, {vr(s_,2)} op_sel_hi:[1,0]", f"v_cvt_pk_bf16_f32 v{PH+j}, v{R}, v{R+1}"))
    return mm, fm, ex, sm, fin, tail


def merge(main, extra, every, start=0):
    out, extra = [], list(extra)
    for i, x in enumerate(main):
        out.append(x)
        if extra and i >= start and (i - start) % every == every - 1:
            out.append(extra.pop(0))
    return out + extra


def touch(A, v, sd, shift):
    A(f"v_lshlrev_b32 v{v}, {shift}, v1")
    A(f"buffer_load_dword v{v+1}, v{v}, s[{SWS}:{SWS+3}], 0 offen")
    srd(A, sd, S_OUT, NB_OUT)
    A(f"buffer_load_dword v{v+2}, v{v}, s[{sd}:{sd+3}], 0 offen")


def o_index(A):
    A("s_sub_u32 s63, s99, 8")
    A("s_lshr_b32 s62, s63, 2")
    A("s_lshl_b32 s3, s98, 2")
    A("s_add_u32 s62, s62, s3")
    A("s_and_b32 s63, s63, 3")
    A("s_lshl_b32 s63, s63, 2")
    A("s_add_u32 s63, s63, s48")


WR = 64


def wo_index(A):
    A("s_lshr_b32 s50, s99, 2")
    A("s_sub_u32 s50, s50, 1")
    A("s_max_i32 s50, s50, 0")
    A("s_lshl_b32 s50, s50, 2")
    A("s_add_u32 s50, s50, s48")
    A("s_lshl_b32 s52, s50, 6")
    A(f"s_mul_i32 s51, s50, {Opt.wstr}")
    A(f"s_add_u32 s51, s51, {WS_WOT:#x}")
    A("s_lshl_b32 s54, s50, 10")
    A(f"s_add_u32 s54, s54, {FW:#x}")
    A("v_lshlrev_b32 v18, 4, v1")


def wload(A, f0, f1):
    for f in range(f0, f1):
        if Opt.wthr and f >= Opt.wbf:
            A(f"s_waitcnt vmcnt({Opt.wthr-1})")
        if Opt.only and f in (14, 22, 30, 38):
            stamp(A, {14: 2, 22: 3, 30: 4, 38: 5}[f])
        if f % 4 == 0 or f == f0:
            A(f"s_add_u32 s53, s51, {4096*(f//4)}")
        A(f"buffer_load_dwordx4 {vr(WR+4*f,4)}, v18, s[{SWS}:{SWS+3}], s53 offen offset:{1024*(f&3)}{Opt.ldw}")


def role_loader(A):
    SX, SW, SP = 32, 36, 40
    VX, VW = 24, 28
    t0, t1, t2, t3 = 11, 12, 13, 14
    A(f"s_setprio {Opt.lprio0}")
    A(f"v_lshrrev_b32 v{t0}, 3, v1")
    A(f"v_mul_u32_u24 v{t0}, 1280, v{t0}")
    A(f"v_lshrrev_b32 v{t1}, 4, v1")
    A(f"v_and_b32 v{t2}, 7, v1")
    A(f"v_xor_b32 v{t1}, v{t1}, v{t2}")
    A(f"v_xor_b32 v{t2}, 4, v{t1}")
    A(f"v_lshl_add_u32 v{VX}, v{t1}, 4, v{t0}")
    A(f"v_lshl_add_u32 v{VX+1}, v{t2}, 4, v{t0}")
    A(f"v_add_u32 v{VX+2}, {2*(8*1280-1024)}, v{VX}")
    A(f"v_add_u32 v{VX+3}, {3*(8*1280-1024)}, v{VX+1}")
    A(f"v_add_u32 v{VX+1}, {8*1280-1024}, v{VX+1}")
    A("s_lshl_b32 s60, s49, 2")
    A("s_add_u32 s60, s60, s48")
    A(f"s_mul_i32 s60, s60, {32*1280}")
    A("s_lshr_b32 s30, s99, 2")
    A(f"s_lshr_b32 s30, {Opt.par:#x}, s30")
    A("s_xor_b32 s30, s30, s49")
    A("s_and_b32 s30, s30, 1")
    A("s_mul_i32 s31, s30, 640")
    A("s_add_u32 s60, s60, s31")
    A("s_lshl_b32 s62, s48, 12")
    A("s_mov_b32 m0, s62")
    A(f"s_mov_b32 s{SX+2}, {NB_X:#x}")
    A(f"s_mov_b32 s{SX+3}, 0x20000")
    A("s_waitcnt lgkmcnt(0)")
    A(f"s_mov_b64 s[{SX}:{SX+1}], s[{S_X}:{S_X+1}]")

    def dma_x(s):
        if s:
            A(f"s_add_u32 m0, s62, {(s % 3) * SLOT}")
        for i in range(4):
            A(f"buffer_load_dwordx4 v{VX+i}, s[{SX}:{SX+3}], s60 offen offset:{1024*i} lds")

    def dma_w(s):
        sl = (s % 3) * SLOT
        A(f"s_add_u32 m0, s63, {sl}")
        for i in range(4):
            A(f"buffer_load_dwordx4 v{VW+i}, s[{SW}:{SW+3}], s61 offen offset:{1024*i} lds")
        A(f"s_add_u32 m0, s63, {sl+4096}")
        A(f"buffer_load_dwordx4 v{VW+4}, s[{SW}:{SW+3}], s61 offen lds")
        if s < 9:
            if s == 4:
                A("s_add_u32 s60, s60, s97")
                A("s_add_u32 s61, s61, s96")
            else:
                A("s_add_u32 s60, s60, 128")
                A(f"s_add_u32 s61, s61, {64*3840}")

    dma_x(0)
    A("s_cmp_eq_u32 s51, 0")
    A("s_cselect_b32 s56, 1120, 0")
    A("s_add_u32 s58, s51, 1")
    A(f"v_xor_b32 v15, s58, v1")
    A(f"v_cmp_gt_u32 vcc, 32, v1")
    A("s_movk_i32 s57, 3520")
    A(f"v_cndmask_b32 v16, v15, v1, vcc")
    for i in range(5):
        src = (1, 1, 16, 15, 15)[i]
        A(f"v_add_u32 v{t2}, {64*i}, v{src}")
        A(f"v_mul_u32_u24 v{t2}, 6554, v{t2}")
        A(f"v_lshlrev_b32 v{t3}, 4, v{src}")
        A(f"v_lshrrev_b32 v{t0}, 17, v{t2}")
        A(f"v_bfe_u32 v{t1}, v{t2}, 16, 1")
        A(f"v_mad_u32_u24 v{t0}, v{t0}, s57, v{t3}")
        A(f"v_mad_u32_u24 v{VW+i}, v{t1}, s56, v{t0}")
    A(f"v_lshlrev_b32 v{t3}, 4, v1")
    A(f"v_add_u32 v{VW+4}, 4096, v{VW+4}")
    A(f"s_mul_i32 s61, s48, {16*3840}")
    A("s_mul_i32 s57, s50, 160")
    A("s_add_u32 s58, s57, 1280")
    A("s_lshl_b32 s57, s57, 1")
    A("s_cmp_eq_u32 s51, 0")
    A("s_cselect_b32 s57, s58, s57")
    A("s_add_u32 s61, s61, s57")
    A(f"s_mul_i32 s96, s30, {5*64*3840}")
    A("s_add_u32 s61, s61, s96")
    A("s_mul_i32 s63, s48, 5120")
    A("s_add_u32 s63, s63, 16384")
    srd(A, SW, S_W, NB_W)
    dma_w(0)
    stamp(A, 2)
    A("s_lshl_b32 s96, s96, 1")
    A(f"s_sub_u32 s96, {64*3840}, s96")
    A("s_lshl_b32 s97, s31, 1")
    A("s_sub_u32 s97, 128, s97")
    A("s_mul_i32 s57, s50, 3200")
    A("s_lshl_b32 s57, s57, s51")
    A("s_lshl_b32 s58, s48, 11")
    A("s_add_u32 s57, s57, s58")
    srd(A, SP, S_WPHI, NB_WPHI)
    A(f"s_add_u32 m0, s58, {L_WP}")
    A(f"buffer_load_dwordx4 v{t3}, s[{SP}:{SP+3}], s57 offen lds")
    A(f"buffer_load_dwordx4 v{t3}, s[{SP}:{SP+3}], s57 offen offset:1024 lds")
    srd(A, SWS, S_WS, WS_SIZE)
    Lh = A.newlabel("L_noh")
    A("s_cmp_eq_u32 s51, 0")
    A(f"s_cbranch_scc1 {Lh}")
    A("s_mul_i32 s49, s98, 80")
    A("s_lshl_b32 s50, s99, 2")
    A("s_add_u32 s49, s49, s50")
    A("s_add_u32 s49, s49, s48")
    A("s_add_u32 s49, s49, 48")
    A(f"s_mul_i32 s56, s48, {CV_LDS}")
    A(f"s_add_u32 s56, s56, {L_QCV}")
    A("s_lshl_b32 s50, s49, 12")
    A.label(Lh)
    assert Opt.LA == 2
    issued = 0
    for s in range(10):
        while issued < min(s + Opt.LA - 1, 9):
            issued += 1
            dma_x(issued)
            dma_w(issued)
        if s == 0:
            Ls = A.newlabel("L_nosetup")
            A("s_cmp_ge_u32 s99, 8")
            A(f"s_cbranch_scc1 {Ls}")
            conv_setup(A)
            f0_lines(A, 49, 49, 12)
            A.label(Ls)
        if s == 6:
            tag_issue(A)
        if s == Opt.fwat:
            Lf = A.newlabel("L_nofw")
            A("s_cmp_lt_u32 s99, 8")
            A(f"s_cbranch_scc1 {Lf}")
            wo_index(A)
            A(f"s_add_u32 s42, s{S_WS}, s54")
            A(f"s_addc_u32 s43, s{S_WS+1}, 0")
            for k in range(8):
                A(f"s_load_dwordx2 s[{4+2*k}:{5+2*k}], s[42:43], {128*k}")
            A.label(Lf)
        def fast_check():
            A("s_cmp_lt_u32 s99, 8")
            A("s_cbranch_scc1 L_q9")
            A("s_waitcnt lgkmcnt(0)")
            A("s_mov_b32 s3, 0")
            for k in range(8):
                A(f"s_cmp_eq_u64 s[{4+2*k}:{5+2*k}], s[{TAG}:{TAG+1}]")
                A("s_addc_u32 s3, s3, 0")
            A(f"s_cmp_lg_u32 s{TAG}, s{TAG+1}")
            A("s_addc_u32 s3, s3, 0")
            A(f"s_cmp_eq_u32 s3, {19 if Opt.noearly else 9}")
            A("s_cbranch_scc0 L_q9")

        if s == 9 and Opt.wearly:
            fast_check()
            wload(A, 0, Opt.wearly)
            A(f"s_waitcnt vmcnt({Opt.wearly})")
            A("s_barrier")
            stamp(A, 6)
            wload(A, Opt.wearly, Opt.wbf)
            A("s_barrier")
            A("s_branch L_wrest")
            A.label("L_q9")
        A(f"s_waitcnt vmcnt({9*(issued-s)})")
        A("s_barrier")
        if s in (0, 3, 6, 9):
            stamp(A, 3 + s // 3)
        if s == 9 and not Opt.wearly:
            fast_check()
            wload(A, 0, Opt.wbf)
            A("s_barrier")
            A("s_branch L_wrest")
            A.label("L_q9")
    A("s_setprio 0")
    A("s_cmp_lt_u32 s99, 8")
    A("s_cbranch_scc1 L_conv")
    role_wo(A)


def role_wo(A):
    SO, SWO = 32, 36
    A.label("L_wo")
    A(f"s_setprio {Opt.lprio}")
    wo_index(A)
    A("v_lshrrev_b32 v15, 3, v1")
    A("v_lshlrev_b32 v15, 7, v15")
    A("v_lshlrev_b32 v18, 4, v1")
    tag_check(A, 20)
    A(f"buffer_load_dwordx2 v[16:17], v15, s[{SWS}:{SWS+3}], s54 offen{SC}")
    Lj, Lk = A.newlabel("L_woj"), A.newlabel("L_wok")
    A("s_cmp_lt_u32 s99, 8")
    A(f"s_cbranch_scc1 {Lj}")
    A("s_barrier")
    A.label(Lj)
    A("s_waitcnt vmcnt(0)")
    A(f"v_cmp_eq_u64 vcc, s[{TAG}:{TAG+1}], v[16:17]")
    A("s_cmp_eq_u64 vcc, -1")
    A(f"s_cbranch_scc1 {Lk}")
    poll(A, 16, 15, "s54", sleep=8)
    A.label(Lk)

    wload(A, 0, Opt.wbf)
    A.label("L_wrest")
    A(f"s_setprio {Opt.lprio}")
    wload(A, Opt.wbf, Opt.wpk if Opt.wpk else Opt.wfirst)
    A("v_lshrrev_b32 v2, 2, v1")
    A("v_and_b32 v3, 3, v1")
    A("s_mul_i32 s58, s48, 20480")
    A(f"s_add_u32 s58, s58, {L_WOB}")
    A("v_lshrrev_b32 v11, 5, v1")
    A("v_and_b32 v9, 31, v1")
    A("v_lshrrev_b32 v15, 4, v1")
    A("v_lshlrev_b32 v15, 7, v15")
    o_index(A)
    Lq1, Lq2 = A.newlabel("L_woq"), A.newlabel("L_woq")
    A("s_cmp_lt_u32 s99, 8")
    A(f"s_cbranch_scc1 {Lq2}")
    A("s_lshr_b32 s54, s62, 2")
    A("s_lshl_b32 s54, s54, 4")
    A("s_add_u32 s54, s54, s63")
    A("s_lshl_b32 s54, s54, 8")
    if Opt.f2all:
        A("s_and_b32 s54, s54, 0xfffffc00")
        A("v_lshrrev_b32 v19, 3, v1")
        A("v_lshlrev_b32 v19, 7, v19")
    else:
        A("v_lshlrev_b32 v19, 7, v11")
    A(f"s_add_u32 s54, s54, {F2:#x}")
    A("s_lshl_b32 s55, s62, 4")
    A("s_add_u32 s55, s55, s63")
    A("s_mul_i32 s55, s55, 5120")

    def pqdma():
        A("s_mov_b32 m0, s58")
        A("s_add_u32 s56, s55, 4096")
        for i in range(4):
            A(f"buffer_load_dwordx4 v18, s[{SWS}:{SWS+3}], s55 offen offset:{1024*i}{SC} lds")
        A("s_add_u32 m0, s58, 4096")
        A(f"buffer_load_dwordx4 v18, s[{SWS}:{SWS+3}], s56 offen{SC} lds")

    Lslow, Ljn = A.newlabel("L_pqs"), A.newlabel("L_pqj")
    if Opt.wpk:
        A(f"buffer_load_dwordx2 v[16:17], v19, s[{SWS}:{SWS+3}], s54 offen{SC}")
        wload(A, Opt.wpk, Opt.wpk + 4)
        A("s_waitcnt vmcnt(4)")
        A(f"v_cmp_eq_u64 vcc, s[{TAG}:{TAG+1}], v[16:17]")
        A("s_cmp_eq_u64 vcc, -1")
        A(f"s_cbranch_scc0 {Lslow}")
        pqdma()
        wload(A, Opt.wpk + 4, Opt.wfirst)
        A(f"s_waitcnt vmcnt({Opt.wfirst - Opt.wpk - 4})")
        A(f"s_branch {Ljn}")
        A.label(Lslow)
        wload(A, Opt.wpk + 4, Opt.wfirst)
    if Opt.lag:
        stamp(A, 4)
    poll(A, 16, 19, "s54", sleep=Opt.f2s)
    if Opt.lag:
        stamp(A, 5)
    pqdma()
    A("s_waitcnt vmcnt(0)")
    A.label(Ljn)
    A("s_lshl_b32 s54, s48, 2")
    A(f"s_add_u32 s54, s54, {L_SYNC+16}")
    lds_arrive(A, 16, "s54")
    if Opt.pqsync:
        lds_arrive(A, 16, L_SYNC + 4)
    stamp(A, 14)
    A("s_lshl_b32 s54, s62, 2")
    A("s_add_u32 s54, s54, s48")
    A("s_mul_i32 s55, s54, 10240")
    A(f"s_add_u32 s55, s55, {WS_PART:#x}")
    A("s_lshl_b32 s54, s54, 9")
    if Opt.f1all:
        A("s_and_b32 s54, s54, 0xfffff800")
        A("v_lshrrev_b32 v15, 2, v1")
        A("v_lshlrev_b32 v15, 7, v15")
    A(f"s_add_u32 s54, s54, {F1:#x}")
    A("v_min_u32 v19, 20, v9")
    A("v_and_b32 v20, 32, v1")
    A("v_add_u32 v19, v19, v20")
    A("v_lshlrev_b32 v20, 3, v19")
    A("v_lshlrev_b32 v19, 4, v19")
    A("s_mul_i32 s57, s48, 5120")
    A("v_add_u32 v21, s57, v18")
    A("s_mov_b32 s59, 0xffff0000")
    lds_wait(A, 16, L_SYNC + 4, 8 if Opt.pqsync else 4, sleep=2)
    stamp(A, 7)
    wload(A, Opt.wfirst, max(Opt.wmid, Opt.wfirst))
    PR = [24, 34, 44, 54]
    SM, TP = 224, 244

    def pload(p):
        so = "s55" if p < 1 else f"s{40+p}"
        A(f"buffer_load_dwordx4 {vr(PR[p],4)}, v19, s[{SWS}:{SWS+3}], {so} offen{Opt.ldp}")
        A(f"buffer_load_dwordx4 {vr(PR[p]+4,4)}, v19, s[{SWS}:{SWS+3}], {so} offen offset:1024{Opt.ldp}")
        A(f"buffer_load_dwordx2 {vr(PR[p]+8,2)}, v20, s[{SWS}:{SWS+3}], {so} offen offset:2048{Opt.ldp}")

    for p in (1, 2, 3):
        A(f"s_add_u32 s{40+p}, s55, {2560*p}")
    if Opt.prog:
        L, Ld = A.newlabel("L_pg"), A.newlabel("L_pgd")
        A("s_mov_b64 s[56:57], 0")
        A("s_movk_i32 s101, 0x4000")
        A.label(L)
        A(f"buffer_load_dwordx2 v[16:17], v15, s[{SWS}:{SWS+3}], s54 offen{SC}")
        A("s_waitcnt vmcnt(0)")
        A(f"v_cmp_eq_u64 vcc, s[{TAG}:{TAG+1}], v[16:17]")
        A("s_andn2_b64 s[50:51], vcc, s[56:57]" if False else "s_andn2_b64 s[96:97], vcc, s[56:57]")
        A("s_mov_b64 s[56:57], vcc")
        for p in range(4):
            Ls = A.newlabel("L_pgs")
            A(f"s_bitcmp1_b64 s[96:97], {16*p}")
            A(f"s_cbranch_scc0 {Ls}")
            pload(p)
            A.label(Ls)
        A("s_cmp_eq_u64 s[56:57], -1")
        A(f"s_cbranch_scc1 {Ld}")
        A(f"s_sleep {Opt.psleep}")
        A("s_sub_u32 s101, s101, 1")
        A(f"s_cbranch_scc0 {L}")
        A("s_endpgm")
        A.label(Ld)
        stamp(A, 12)
        A("s_waitcnt vmcnt(0)")
    else:
        ppoll(A, 244, 15, "s54", sleep=Opt.psleep)
        stamp(A, 12)
        for p in range(4):
            pload(p)
    A("s_setprio 3")
    for p in range(4):
        A(f"s_waitcnt vmcnt({9-3*p})")
        for i in range(10):
            d = SM + 2 * i if p == 0 else TP + 2 * (i % 5)
            A(f"v_lshlrev_b32 v{d}, 16, v{PR[p]+i}")
            A(f"v_and_b32 v{d+1}, s59, v{PR[p]+i}")
            if p:
                A(f"v_pk_add_f32 {vr(SM+2*i,2)}, {vr(SM+2*i,2)}, {vr(d,2)}")
    for q in range(5):
        A(f"ds_write_b128 v21, {vr(SM+4*q,4)} offset:{1024*q}")
    lds_arrive(A, 16, L_SYNC + 8)
    A("s_setprio 0")
    stamp(A, 13)
    if True:
        Lq3 = A.newlabel("L_woq")
        A(f"s_branch {Lq3}")
    A.label(Lq2)
    if True:
        wload(A, Opt.wpk if Opt.wpk else Opt.wfirst, max(Opt.wmid, Opt.wfirst))
        A.label(Lq3)
    wload(A, max(Opt.wmid, Opt.wfirst), 40)
    srd(A, SO, S_OUT, NB_OUT)
    A("s_and_b32 s54, s99, 3")
    A("s_lshl_b32 s55, s98, 2")
    A("s_add_u32 s54, s54, s55")
    A("s_lshr_b32 s55, s54, 1")
    A("s_lshl_b32 s55, s55, 12")
    A(f"s_add_u32 s55, s55, {F3:#x}")
    A("s_lshl_b32 s57, s48, 10")
    A("s_add_u32 s55, s55, s57")
    A("v_lshrrev_b32 v15, 3, v1")
    A("v_lshlrev_b32 v15, 7, v15")
    A("s_mul_i32 s57, s54, 81920")
    A(f"s_add_u32 s57, s57, {WS_O:#x}")
    A("s_lshl_b32 s58, s48, 10")
    A("s_add_u32 s57, s57, s58")
    A(f"s_add_u32 s58, s58, {L_OT}")
    A("v_mov_b32 v5, v18")
    A(f"v_add_u32 v6, {L_OT}, v5")
    A(f"v_add_u32 v7, {L_OT+40960}, v5")
    A("v_lshlrev_b32 v10, 3, v9")
    A("v_lshl_add_u32 v10, v11, 9, v10")
    A(f"v_add_u32 v10, {L_OT+32768}, v10")
    if Opt.fullout:
        A("s_lshl_b32 s56, s48, 6")
        A("s_waitcnt lgkmcnt(0)")
        A("v_mul_u32_u24 v12, 272, v9")
        A("v_lshl_add_u32 v12, v11, 5, v12")
        A("v_add_u32 v12, s56, v12")
        A("v_lshrrev_b32 v2, 4, v1")
        A("v_and_b32 v3, 15, v1")
        A("v_mul_u32_u24 v13, 272, v2")
        A("v_lshl_add_u32 v13, v3, 4, v13")
        A(f"s_mul_i32 s59, s48, {8*272}")
        A("v_add_u32 v13, s59, v13")
        A("v_mul_u32_u24 v14, 2560, v2")
        A("v_lshl_add_u32 v14, v3, 4, v14")
        A("s_lshl_b32 s59, s54, 3")
        A("s_add_u32 s59, s59, s48")
        A(f"s_mul_i32 s59, s59, {8*2560}")
        A("s_add_u32 s59, s59, s52")
        A("s_sub_u32 s59, s59, s56")
    else:
        A("s_mul_i32 s56, s48, 5120")
        A("s_waitcnt lgkmcnt(0)")
        A("v_mul_u32_u24 v12, 80, v9")
        A("v_lshl_add_u32 v12, v11, 5, v12")
        A("v_add_u32 v12, s56, v12")
        A("v_mul_u32_u24 v13, 80, v2")
        A("v_lshl_add_u32 v13, v3, 4, v13")
        A("v_add_u32 v13, s56, v13")
        A("v_mul_u32_u24 v14, 2560, v2")
        A("v_lshl_add_u32 v14, v3, 4, v14")
        A(f"s_mul_i32 s59, s54, {64*2560}")
        A("s_add_u32 s59, s59, s52")
    lds_wait(A, 16, L_SYNC + 12, 4, sleep=2)
    stamp(A, 8)
    ppoll(A, 48, 15, "s55", sleep=Opt.psleep)
    A("s_barrier")
    stamp(A, 9)
    nis = [0]

    def oissue():
        j = nis[0]
        A(f"s_add_u32 m0, s58, {4096*j}")
        A(f"buffer_load_dwordx4 v5, s[{SWS}:{SWS+3}], s57 offen{Opt.ldo} lds")
        if j < 19:
            A("s_add_u32 s57, s57, 4096")
        nis[0] += 1

    for j in range(Opt.oa):
        oissue()
    if Ctx.stamps:
        A("s_waitcnt lgkmcnt(0)")
    ACC = (16, 32)
    OFB = 224
    T = Lgkm(A)
    bars = Opt.obar + [80]

    def rdx(n):
        if n in bars:
            nxt = bars[bars.index(n) + 1]
            if n == bars[-2]:
                T.wait("W")
            assert nis[0] >= nxt // 4
            A(f"s_waitcnt vmcnt({nis[0] - nxt // 4})")
            A("s_barrier")
        t, f = n // 40, n % 40
        d = OFB + 4 * (n % 8)
        if f < 32:
            T.issue(f"ds_read_b128 {vr(d,4)}, v{6+t} offset:{1024*f}", n)
        else:
            a = f - 32
            T.issue(f"ds_read_b64 {vr(d,2)}, v10 offset:{40960*t + 1024*a}")
            T.issue(f"ds_read_b64 {vr(d+2,2)}, v10 offset:{40960*t + 1024*a + 256}", n)

    def stage(t):
        L = [f"v_cvt_pk_bf16_f32 v{48+i}, v{ACC[t]+2*i}, v{ACC[t]+2*i+1}" for i in range(8)]
        return L[:4] + [("ds", f"ds_write_b128 v12, v[48:51] offset:{32*272*t}", None)] + L[4:] + \
            [("ds", f"ds_write_b128 v12, v[52:55] offset:{32*272*t+16}", "W")]

    def out(t):
        L = [("ds", f"ds_read_b128 {vr(56+4*i,4)}, v13 offset:{32*272*t+4*272*i}", ("R", i)) for i in range(2)]
        L += [None, None]
        for i in range(2):
            L += [("wait", ("R", i)), f"buffer_store_dwordx4 {vr(56+4*i,4)}, v14, s[{SO}:{SO+3}], s59 offen{Opt.osc}",
                  f"s_add_u32 s59, s59, {(4 if i == 0 else 28)*2560}"]
        return L

    def emit(x):
        if isinstance(x, tuple):
            T.issue(x[1], x[2]) if x[0] == "ds" else T.wait(x[1])
        elif x:
            A(x)

    PF = 6
    for n in range(PF):
        rdx(n)
    fill = []
    for n in range(80):
        t, f = n // 40, n % 40
        T.wait(n)
        c = vr(ACC[t], 16) if f else "0"
        A(f"v_mfma_f32_32x32x16_bf16 {vr(ACC[t],16)}, {vr(WR+4*f,4)}, {vr(OFB+4*(n%8),4)}, {c}")
        if nis[0] < 20 and n % Opt.oe == 0:
            oissue()
        if n + PF < 80:
            rdx(n + PF)
        if n == 44:
            fill = stage(0)
        if n + PF == bars[-2]:
            assert not fill
            fill = out(0)
        for _ in range(2 if n < 56 else 1):
            if fill:
                emit(fill.pop(0))
    assert not fill
    stampw(A, 10)
    for x in stage(1):
        emit(x)
    A("s_waitcnt lgkmcnt(0)")
    T.done = T.n
    A("s_barrier")
    for x in out(1):
        emit(x)
    stamp(A, 11)
    end_wave(A, True)


def role_compute(A):
    ACC = 16
    WF = (96, 116)
    XF = (136, 152)
    XA, WA, AD = 168, 172, 182
    t0, t1, t2, t3 = 11, 12, 13, 14
    for i in range(80):
        A(f"v_mov_b32 v{ACC+i}, 0")
    A(f"v_and_b32 v{t0}, 255, v0")
    A(f"v_lshlrev_b32 v{t0}, 4, v{t0}")
    A(f"v_add_u32 v{t0}, {L_Z}, v{t0}")
    A(f"ds_write_b128 v{t0}, {vr(ACC,4)}")
    A(f"ds_write_b128 v{t0}, {vr(ACC,4)} offset:64")
    A("s_lshr_b32 s52, s48, 1")
    A("s_and_b32 s53, s48, 1")
    S16, G4, R4, C4 = 183, 184, 185, 186
    A(f"v_and_b32 v{S16}, 15, v1")
    A(f"v_lshrrev_b32 v{G4}, 4, v1")
    A(f"v_bfe_u32 v{R4}, v1, 2, 2")
    A(f"v_and_b32 v{C4}, 3, v1")
    A(f"v_bfe_u32 v{t2}, v1, 1, 3")
    A(f"v_xor_b32 v{t2}, v{t2}, v{G4}")
    A(f"v_lshlrev_b32 v{t2}, 4, v{t2}")
    A(f"v_lshl_add_u32 v{t2}, v{S16}, 7, v{t2}")
    A("s_lshl_b32 s54, s52, 13")
    A(f"v_add_u32 v{XA}, s54, v{t2}")
    A(f"v_xor_b32 v{XA+1}, 64, v{XA}")
    A(f"v_add_u32 v{XA+2}, {2*SLOT}, v{XA}")
    A(f"v_add_u32 v{XA+3}, {2*SLOT}, v{XA+1}")
    A("s_cmp_eq_u32 s51, 0")
    A("s_cselect_b32 s55, 80, 0")
    A("s_mul_i32 s56, s53, 80")
    A("s_lshl_b32 s56, s56, s51")
    A(f"v_lshrrev_b32 v{t0}, 1, v{C4}")
    A(f"v_mul_u32_u24 v{t0}, s55, v{t0}")
    A(f"v_mad_u32_u24 v{t0}, v{C4}, 40, v{t0}")
    A(f"v_add_u32 v{t0}, s56, v{t0}")
    A(f"v_and_b32 v{t1}, 1, v{G4}")
    A("s_add_u32 s57, s51, 4")
    A(f"v_lshlrev_b32 v{t1}, s57, v{t1}")
    A(f"v_lshl_add_u32 v{t2}, v{G4}, 3, v{R4}")
    A(f"v_mul_u32_u24 v{t2}, 320, v{t2}")
    A(f"v_add_u32 v{t2}, 16384, v{t2}")
    for t in range(5):
        A(f"v_add_u32 v{t3}, {8*t}, v{t0}")
        A(f"v_xor_b32 v{t3}, v{t3}, v{t1}")
        A(f"v_add_u32 v{WA+t}, v{t2}, v{t3}")
        A(f"v_add_u32 v{WA+5+t}, {2*SLOT}, v{WA+t}")
    HD = 187
    A("s_cmp_eq_u32 s51, 0")
    A("s_cselect_b32 s55, 1, 3")
    A("s_add_u32 s57, s51, 1")
    A("s_lshl_b32 s56, s53, s57")
    A(f"v_and_b32 v{HD}, s55, v{G4}")
    A(f"v_add_u32 v{HD}, s56, v{HD}")
    A(f"v_mul_u32_u24 v{t0}, 800, v{HD}")
    A(f"v_mad_u32_u24 v{t0}, v{R4}, 40, v{t0}")
    A(f"v_add_u32 v{t0}, {L_WP}, v{t0}")
    A(f"v_mov_b32 v{t1}, {L_Z}")
    A(f"v_cmp_eq_u32 vcc, v{C4}, v{G4}")
    A(f"v_cndmask_b32 v{AD}, v{t1}, v{t0}, vcc")
    A(f"v_lshrrev_b32 v{t0}, 5, v1")
    A(f"v_lshl_add_u32 v{t0}, v{t0}, 4, v{S16}")
    A("s_lshl_b32 s57, s52, 6")
    A(f"v_add_u32 v{t0}, s57, v{t0}")
    A(f"v_mul_u32_u24 v{t1}, 208, v{t0}")
    A(f"v_mad_u32_u24 v2, v{HD}, 48, v{t1}")
    A(f"v_add_u32 v2, {L_V}, v2")
    A(f"v_mul_u32_u24 v{t3}, 80, v{HD}")
    A(f"v_mul_u32_u24 v{t2}, 336, v{t0}")
    A(f"v_add_u32 v3, v{t3}, v{t2}")
    A(f"v_lshrrev_b32 v{t1}, 5, v1")
    A(f"v_lshl_add_u32 v9, v{t1}, 3, v{R4}")
    A(f"v_bfe_u32 v{t2}, v1, 4, 1")
    A(f"v_bfe_u32 v{t3}, v1, 1, 1")
    A(f"v_lshl_add_u32 v10, v{t2}, 1, v{t3}")
    A(f"v_and_b32 v15, 1, v1")
    A(f"v_mul_u32_u24 v{t0}, 336, v9")
    A(f"v_mad_u32_u24 v{t1}, v15, 5, v10")
    A(f"v_lshl_add_u32 v{t0}, v{t1}, 3, v{t0}")
    A("s_mul_i32 s57, s48, 80")
    A(f"v_add_u32 v6, s57, v{t0}")
    A(f"v_lshl_add_u32 v{t0}, v10, 1, v15")
    A("s_mul_i32 s57, s48, 6")
    A(f"v_min_u32 v{t1}, 5, v{t0}")
    A(f"v_add_u32 v{t1}, s57, v{t1}")
    A(f"v_mul_u32_u24 v{t0}, 208, v9")
    A(f"v_lshl_add_u32 v{t0}, v{t1}, 3, v{t0}")
    A(f"v_add_u32 v7, {L_V}, v{t0}")
    WPF = 188
    for tp in range(5):
        A(f"v_mov_b32 v{WPF+12*tp+10}, 0")
        A(f"v_mov_b32 v{WPF+12*tp+11}, 0")
    A(f"s_mov_b32 s60, {LOG2E:#x}")
    A(f"s_mov_b32 s61, {LOG2E:#x}")
    A("s_waitcnt lgkmcnt(0)")
    srd(A, SWS, S_WS, WS_SIZE)
    if Opt.touch & 1:
        Lt = A.newlabel("L_nt")
        A("s_cmp_eq_u32 s48, 0")
        A(f"s_cbranch_scc0 {Lt}")
        touch(A, 248, 32, Opt.tsh)
        A.label(Lt)
    if Opt.fwarm:
        o_index(A)
        A("s_lshl_b32 s54, s62, 2")
        A("s_add_u32 s54, s54, s48")
        A("s_lshl_b32 s54, s54, 2")
        A("s_lshr_b32 s55, s62, 2")
        A("s_lshl_b32 s55, s55, 4")
        A("s_add_u32 s55, s55, s63")
        A("s_lshl_b32 s55, s55, 1")
        A("s_add_u32 s55, s55, 508")
        A("s_and_b32 s56, s99, 2")
        A("s_lshl_b32 s57, s98, 2")
        A("s_add_u32 s56, s56, s57")
        A("s_lshl_b32 s56, s56, 4")
        A("s_lshl_b32 s57, s48, 3")
        A("s_add_u32 s56, s56, s57")
        A("s_add_u32 s56, s56, 1016")
        A(f"v_mov_b32 v{t0}, s54")
        A(f"v_mov_b32 v{t1}, s55")
        A(f"v_mov_b32 v{t2}, s56")
        A("v_cmp_gt_u32 vcc, 16, v1")
        A(f"v_cndmask_b32 v{t1}, v{t1}, v{t0}, vcc")
        A("v_cmp_gt_u32 vcc, 32, v1")
        A(f"v_cndmask_b32 v{t1}, v{t2}, v{t1}, vcc")
        A(f"v_lshrrev_b32 v{t0}, 2, v1")
        A(f"v_add_u32 v{t0}, v{t0}, v{t1}")
        A(f"v_and_b32 v{t0}, 2047, v{t0}")
        A(f"v_lshlrev_b32 v{t0}, 7, v{t0}")
        A(f"s_mov_b32 s54, {WS_FLAG:#x}")
        A(f"buffer_load_dword v4, v{t0}, s[{SWS}:{SWS+3}], s54 offen{SC}")
        if Opt.fww:
            A("s_lshr_b32 s54, s99, 2")
            A("s_sub_u32 s54, s54, 1")
            A("s_max_i32 s54, s54, 0")
            A("s_lshl_b32 s54, s54, 2")
            A("s_add_u32 s54, s54, s48")
            A("s_lshl_b32 s54, s54, 10")
            A(f"s_add_u32 s54, s54, {FW:#x}")
            A(f"v_lshrrev_b32 v{t0}, 3, v1")
            A(f"v_lshlrev_b32 v{t0}, 7, v{t0}")
            A(f"buffer_load_dword v5, v{t0}, s[{SWS}:{SWS+3}], s54 offen{SC}")
    A("s_setprio 2")

    T = Lgkm(A)

    def reads(s, ks):
        sl, b = s % 3, ks
        L = []
        for t in range(5):
            for half in range(2):
                L.append((f"ds_read_b64_tr_b16 {vr(WF[b]+4*t+2*half,2)}, v{WA+5*(sl>>1)+t} offset:{(sl&1)*SLOT + (32*ks+4*half)*320}",
                          ("w", s, ks, t) if half else None))
            if t == 0:
                for rho in range(4):
                    L.append((f"ds_read_b128 {vr(XF[b]+4*rho,4)}, v{XA+2*(sl>>1)+ks} offset:{(sl&1)*SLOT + 2048*rho}", ("x", s, ks, rho)))
        return L

    wp = []
    for tp in range(5):
        for dq in range(5):
            wp.append((f"ds_read_b64_tr_b16 {vr(WPF+12*tp+2*dq,2)}, v{AD} offset:{160*dq+8*tp}", None))

    PS = (96, 106, 118, 128)
    E, F, TT_ = 140, 160, 248

    def cvt(rho):
        L = [f"v_cvt_pk_bf16_f32 v{PS[rho]+i}, v{ACC+20*rho+2*i}, v{ACC+20*rho+2*i+1}" for i in range(10)]
        if rho & 1:
            L += [f"v_mov_b32 v{PS[rho]+10}, 0x3f803f80", f"v_mov_b32 v{PS[rho]+11}, 0x3f803f80"]
        return L

    A("s_barrier")
    stampw(A, 3)
    for x, tg in reads(0, 0):
        T.issue(x, tg)
    early = cvt(0) + cvt(1)
    for s in range(10):
        for ks in range(2):
            last = (s == 9 and ks == 1)
            nxt = [] if last else (reads(s, 1) if ks == 0 else reads(s + 1, 0))
            if ks == 0 and s < 5:
                nxt += wp[5 * s:5 * s + 5]
            start = 0 if ks == 0 else Opt.bpos
            for k in range(20):
                t, rho = (k % 5, k // 5) if last else (k // 4, k % 4)
                if Opt.snake and t & 1:
                    rho = 3 - rho
                T.wait(("w", s, ks, t), ("x", s, ks, rho))
                a_ = ACC + 20 * rho + 4 * t
                A(f"v_mfma_f32_16x16x32_bf16 {vr(a_,4)}, {vr(WF[ks]+4*t,4)}, {vr(XF[ks]+4*rho,4)}, {vr(a_,4)}")
                if ks == 1 and k == start:
                    T.all()
                    A("s_barrier")
                if k >= start and nxt:
                    T.issue(*nxt.pop(0))
                if last and k >= 9:
                    for _ in range(2):
                        if early:
                            A(early.pop(0))
            assert not nxt
    stamp(A, 4)
    if Opt.fwarm:
        A("s_waitcnt vmcnt(0)")
    tag_issue(A)
    def phi_mfma(src, acc):
        L = []
        for u in range(3):
            for tp in range(5):
                c = vr(acc + 4 * tp, 4) if u else "0"
                L.append(f"v_mfma_f32_16x16x32_bf16 {vr(acc+4*tp,4)}, {vr(WPF+12*tp+4*u,4)}, {vr(src+4*u,4)}, {c}")
        return L

    def weave(mf, va, per):
        mf, va = list(mf), list(va)
        while mf or va:
            if mf:
                A(mf.pop(0))
            for _ in range(per):
                if va:
                    A(va.pop(0))

    assert not early
    Lq = A.newlabel("L_q")
    A("s_cmp_eq_u32 s51, 0")
    A(f"s_cbranch_scc0 {Lq}")
    mq = A.mark()
    for i in range(10):
        A(f"v_permlane32_swap_b32 v{PS[0]+i}, v{PS[1]+i}")
    weave(phi_mfma(PS[0], ACC), cvt(2) + cvt(3) + [f"v_permlane32_swap_b32 v{PS[2]+i}, v{PS[3]+i}" for i in range(10)], 2)
    vw = [f"ds_write_b128 v2, {vr(PS[1+2*sg]+4*i,4)} offset:{32*208*sg+16*i}" for sg in range(2) for i in range(3)]

    def body(parts):
        mm, fm, ex, sm, fin, tail = parts
        L = fm[:4]
        fm2, sm2 = list(fm[4:]), list(sm)
        for k in range(0, 40, 4):
            L += ex[k:k + 2]
            if fm2:
                L.append(fm2.pop(0))
            L += ex[k + 2:k + 4]
            if fm2:
                L.append(fm2.pop(0))
            if k >= 8:
                L += [sm2.pop(0), sm2.pop(0)]
        return L + sm2 + fin

    def tail_list(tail, wr):
        L = [tail[0][0], tail[1][0]]
        for j in range(20):
            if j + 2 < 20:
                L.append(tail[j + 2][0])
            L.append(tail[j][1])
            if wr and j % 4 == 3:
                L.append(wr[j // 4])
        return L

    s0 = softmax_parts(ACC, E, F, TT_, 56)
    s1 = softmax_parts(ACC + 20, E, F, TT_, 76)
    w0 = [f"ds_write_b128 v3, {vr(56+4*i,4)} offset:{16*i}" for i in range(5)]
    w1 = [f"ds_write_b128 v3, {vr(76+4*i,4)} offset:{32*336+16*i}" for i in range(5)]
    m1 = phi_mfma(PS[2], ACC + 20)
    for x in m1[:4]:
        A(x)
    weave(m1[4:], s0[0], 2)
    stamp(A, 2)
    for x in merge(body(s0), vw, 12) + tail_list(s0[5], w0):
        A(x)
    stamp(A, 13)
    A(f"v_mov_b32 v10, {L_SYNC}")
    A("v_mov_b32 v11, 1")
    A("s_mov_b64 exec, 1")
    A("ds_add_u32 v10, v11 offset:52")
    A("s_mov_b64 exec, -1")
    sal = ["s_lshl_b32 s57, s50, 2", "s_add_u32 s57, s57, s48", "s_lshl_b32 s57, s57, 4", "s_add_u32 s57, s57, s49",
           "s_lshl_b32 s59, s57, 7", f"s_add_u32 s59, s59, {F1:#x}", "s_mul_i32 s57, s57, 2560", f"s_add_u32 s57, s57, {WS_PART:#x}"]
    b1 = body(s1)
    for x in s1[0] + merge(b1[:60], sal, 6) + ["ds_read_b32 v12, v10 offset:52"] + b1[60:]:
        A(x)
    tag_check(A, 14)
    Lok = A.newlabel("L_s0ok")
    A("v_cmp_le_u32 vcc, 4, v12")
    A(f"s_cbranch_vccnz {Lok}")
    lds_wait(A, 12, L_SYNC + 52, 4)
    A.label(Lok)
    for x in tail_list(s1[5], w1):
        A(x)
    A("s_mov_b64 exec, 1")
    A("ds_add_u32 v10, v11")
    A("s_mov_b64 exec, -1")
    stampw(A, 5)
    T = Lgkm(A)
    T.n = 0 if (Ctx.stamps and not Opt.lite and not Opt.hp) else 0
    FAa = {0: 188, 1: 196, 4: 204, 5: 212, 2: 220, 3: 228, 6: 236, 7: 128}
    FBb = {u: 96 + 4 * u for u in range(8)}

    def rdA_(u):
        for half in range(2):
            o = (16 * u + 4 * half)
            T.issue(f"ds_read_b64_tr_b16 {vr(FAa[u]+2*half,2)}, v6 offset:{o*336}")
            T.issue(f"ds_read_b64_tr_b16 {vr(FAa[u]+4+2*half,2)}, v6 offset:{o*336+32}", ("a", u))

    def rdB_(u):
        for half in range(2):
            T.issue(f"ds_read_b64_tr_b16 {vr(FBb[u]+2*half,2)}, v7 offset:{(16*u+4*half)*208}", ("b", u))

    def pm(u, first=False):
        T.wait(("a", u), ("b", u))
        for TT in range(2):
            c = "0" if first else vr(ACC + 16 * TT, 16)
            A(f"v_mfma_f32_32x32x16_bf16 {vr(ACC+16*TT,16)}, {vr(FAa[u]+4*TT,4)}, {vr(FBb[u],4)}, {c}")

    rdB_(0); rdA_(0); rdB_(1); rdA_(1)
    pm(0, True)
    rdB_(4); rdA_(4)
    pm(1)
    rdB_(5); rdA_(5)
    T.issue("ds_read_b32 v12, v10", "c")
    pm(4)
    for u in (2, 3, 6, 7):
        rdB_(u)
    A("v_lshlrev_b32 v2, 4, v1")
    A("v_lshlrev_b32 v3, 3, v1")
    T.wait("c")
    Lok = A.newlabel("L_s1ok")
    A("v_cmp_le_u32 vcc, 4, v12")
    A(f"s_cbranch_vccnz {Lok}")
    lds_wait(A, 10, None, 4)
    A.label(Lok)
    rdA_(2); rdA_(3)
    pm(5)
    rdA_(6)
    pm(2)
    rdA_(7)
    pm(3); pm(6); pm(7)
    o_index(A)
    for i in range(10):
        A(f"v_cvt_pk_bf16_f32 v{48+i}, v{ACC+2*i}, v{ACC+2*i+1}")
    A(f"buffer_store_dwordx2 v[56:57], v3, s[{SWS}:{SWS+3}], s57 offen offset:2048{SC}")
    A("s_mov_b32 exec_lo, 0x00ffffff")
    A("s_mov_b32 exec_hi, 0x00ffffff")
    A(f"buffer_store_dwordx4 v[48:51], v2, s[{SWS}:{SWS+3}], s57 offen{SC}")
    A(f"buffer_store_dwordx4 v[52:55], v2, s[{SWS}:{SWS+3}], s57 offen offset:1024{SC}")
    A("s_mov_b64 exec, -1")
    stamp(A, 6)
    role_o(A)
    end_wave(A)
    A.label(Lq)
    hq = A.mark()
    pre = [f"s_mov_b32 s57, {64*1280}",
           f"v_mul_lo_u32 v{t1}, s57, v{HD}",
           f"v_lshl_add_u32 v2, v{S16}, 4, v{t1}",
           f"v_lshl_add_u32 v3, v{S16}, 3, v{t1}",
           "s_lshl_b32 s58, s49, 1",
           "s_add_u32 s58, s58, s52",
           "s_lshl_b32 s59, s50, 1",
           "s_add_u32 s59, s59, s53",
           "s_lshl_b32 s59, s59, 5",
           "s_add_u32 s59, s59, s58",
           "s_lshl_b32 s59, s59, 7",
           f"s_add_u32 s59, s59, {F2:#x}",
           "s_lshl_b32 s57, s50, 8",
           "s_add_u32 s57, s57, s58",
           "s_mul_i32 s57, s57, 2560"]
    A("s_nop 0")
    OQ = 140

    def outq(rho):
        x, o = ACC + 20 * rho, OQ + 10 * rho
        off = 1280 * (rho >> 1)
        L = [f"v_cvt_pk_bf16_f32 v{o+i}, v{x+2*i}, v{x+2*i+1}" for i in range(10)]
        L.append(f"buffer_store_dwordx4 {vr(o,4)}, v2, s[{SWS}:{SWS+3}], s57 offen offset:{off+256*(rho&1)}{SC}")
        L.append(f"buffer_store_dwordx4 {vr(o+4,4)}, v2, s[{SWS}:{SWS+3}], s57 offen offset:{off+512+256*(rho&1)}{SC}")
        L.append(f"buffer_store_dwordx2 {vr(o+8,2)}, v3, s[{SWS}:{SWS+3}], s57 offen offset:{off+1024+128*(rho&1)}{SC}")
        return L

    weave(phi_mfma(PS[0], ACC), pre + cvt(2), 2)
    m = phi_mfma(PS[1], ACC + 20)
    weave(m[:6], cvt(3), 2)
    weave(m[6:], outq(0), 2)
    m = phi_mfma(PS[2], ACC + 40)
    weave(m[:6], [], 0)
    weave(m[6:], outq(1), 2)
    m = phi_mfma(PS[3], ACC + 60)
    weave(m[:6], [], 0)
    weave(m[6:], outq(2), 2)
    for x in outq(3):
        A(x)
    stamp(A, 6)
    if Opt.qlate == 3:
        lds_arrive(A, 14, L_SYNC + 52)
    tag_check(A, 10)
    set_flag(A, 10, "s59")
    stamp(A, 7)
    A.check_seam(mq, hq)
    lds_arrive(A, 14, L_SYNC)
    lds_wait(A, 14, None, 8 if Opt.qlate else 4, sleep=2)
    A("s_setprio 0")
    A("s_cmp_lt_u32 s99, 4")
    A("s_cbranch_scc1 L_wo")
    if Opt.wopf == "qs":
        srd(A, 36, S_WO, NB_WO)
        A("s_sub_u32 s57, s99, 4")
        A("s_lshl_b32 s57, s57, 2")
        A("s_add_u32 s57, s57, s48")
        A("s_lshl_b32 s57, s57, 13")
        A(f"s_add_u32 s57, s57, {240*1280}")
        A("v_lshlrev_b32 v8, 7, v1")
        for i in range(4):
            A(f"buffer_load_dword v{200+i}, v8, s[36:39], s57 offen")
            A(f"s_add_u32 s57, s57, {16*8192}")
    A(f"s_cmp_lt_u32 s48, {4 if Opt.p3 else 2}")
    A("s_cbranch_scc1 L_post")
    end_wave(A)


def role_o(A):
    NT = 4
    RAW, X, PQ = 64, 104, 128
    A("s_mul_i32 s53, s48, 20480")
    A(f"s_add_u32 s53, s53, {L_WOB}")
    A("v_and_b32 v4, 31, v1")
    A("v_lshl_add_u32 v5, v4, 4, s53")
    A("v_lshl_add_u32 v6, v4, 3, s53")
    A("v_and_b32 v7, 32, v1")
    A("v_lshlrev_b32 v7, 26, v7")
    A("s_lshl_b32 s54, s48, 2")
    A(f"s_add_u32 s54, s54, {L_SYNC+16}")
    A("s_mov_b32 s58, 0xffff0000")
    for t in range(NT):
        A(f"v_mov_b32 v{PQ+12*t+10}, 0")
        A(f"v_mov_b32 v{PQ+12*t+11}, 0")
    A("s_mov_b32 s96, s59")
    A("s_mov_b32 s97, 0")
    if Opt.dflag:
        Lgo = A.newlabel("L_go")
        A("v_mov_b32 v14, s54")
        A("ds_read_b32 v15, v14")
        A("s_waitcnt lgkmcnt(0)")
        A("v_cmp_le_u32 vcc, 1, v15")
        A(f"s_cbranch_vccnz {Lgo}")
    set_flag(A, 10, "s96")
    lds_arrive(A, 14, L_SYNC + 4)
    A("s_mov_b32 s97, 1")
    stamp(A, 7)
    lds_wait(A, 14, "s54", 1)
    if Opt.dflag:
        A.label(Lgo)
    stampw(A, 8)
    T = Lgkm(A)
    for t in range(NT):
        T.issue(f"ds_read_b128 {vr(RAW+10*t,4)}, v5 offset:{1280*t}")
        T.issue(f"ds_read_b128 {vr(RAW+10*t+4,4)}, v5 offset:{1280*t+512}")
        T.issue(f"ds_read_b64 {vr(RAW+10*t+8,2)}, v6 offset:{1280*t+1024}", t)
    A("s_lshl_b32 s57, s63, 2")
    A("s_mul_i32 s54, s57, 40960")
    A(f"s_add_u32 s54, s54, {WS_O:#x}")
    A("s_lshl_b32 s59, s62, 8")
    A("s_add_u32 s59, s59, s54")
    A("s_add_u32 s59, s59, 32768")
    A("s_lshl_b32 s57, s62, 10")
    A("s_add_u32 s54, s54, s57")
    A("s_lshl_b32 s50, s63, 5")
    A("s_add_u32 s50, s50, s62")
    A("s_lshl_b32 s50, s50, 7")
    A(f"s_add_u32 s50, s50, {F3:#x}")
    if Opt.qpipe:
        XS = (176, 200, 104, 224)

        def stA(t):
            X_, m = XS[t], XS[t] + 20
            L = []
            for i in range(10):
                r = RAW + 10 * t + i
                L += [f"v_lshl_add_u32 v{X_+2*i}, v{r}, 16, v7", f"v_bitop3_b32 v{X_+2*i+1}, v{r}, s58, v7 bitop3:0x6a"]
            L += [f"v_max3_f32 v{m}, v{X_}, v{X_+1}, v{X_+2}", f"v_max3_f32 v{m+1}, v{X_+3}, v{X_+4}, v{X_+5}"]
            for i in range(6, 18, 4):
                L += [f"v_max3_f32 v{m}, v{m}, v{X_+i}, v{X_+i+1}", f"v_max3_f32 v{m+1}, v{m+1}, v{X_+i+2}, v{X_+i+3}"]
            L += [f"v_max3_f32 v{m}, v{m}, v{X_+18}, v{X_+19}", f"v_max_f32 v{m}, v{m}, v{m+1}", f"v_mul_f32 v{m}, s60, v{m}"]
            L += [f"v_pk_fma_f32 {vr(X_+i,2)}, {vr(X_+i,2)}, s[60:61], {vr(m,2)} op_sel_hi:[1,1,0] neg_lo:[0,0,1] neg_hi:[0,0,1]" for i in range(0, 20, 2)]
            return L

        def stC(t):
            X_, m, e = XS[t], XS[t] + 20, XS[t] + 22
            L = [f"v_pk_add_f32 {vr(e,2)}, {vr(X_,2)}, {vr(X_+2,2)}", f"v_pk_add_f32 {vr(m,2)}, {vr(X_+4,2)}, {vr(X_+6,2)}"]
            for i in range(8, 20, 4):
                L += [f"v_pk_add_f32 {vr(e,2)}, {vr(e,2)}, {vr(X_+i,2)}", f"v_pk_add_f32 {vr(m,2)}, {vr(m,2)}, {vr(X_+i+2,2)}"]
            L += [f"v_pk_add_f32 {vr(e,2)}, {vr(e,2)}, {vr(m,2)}", f"v_add_f32 v{e}, v{e}, v{e+1}", f"v_rcp_f32 v{e}, v{e}"]
            L += [f"v_pk_mul_f32 {vr(X_+i,2)}, {vr(X_+i,2)}, {vr(e,2)} op_sel_hi:[1,0]" for i in range(0, 20, 2)]
            L += [f"v_cvt_pk_bf16_f32 v{PQ+12*t+i}, v{X_+2*i}, v{X_+2*i+1}" for i in range(10)]
            return L

        def zipl(p, q):
            out = []
            while p or q:
                if p:
                    out.append(p.pop(0))
                if q:
                    out.append(q.pop(0))
            return out

        T.wait(0)
        for x in stA(0):
            A(x)
        T.all()
        for t in range(NT):
            rest = zipl(stA(t + 1) if t + 1 < NT else [], stC(t - 1) if t else [])
            n = len(rest)
            for i in range(20):
                A(f"v_exp_f32 v{XS[t]+i}, v{XS[t]+i}")
                for x in rest[i * n // 20:(i + 1) * n // 20]:
                    A(x)
        for x in stC(NT - 1):
            A(x)
    else:
        mx, se = 124, 126
        for t in range(NT):
            T.wait(t)
            for i in range(10):
                A(f"v_lshl_add_u32 v{X+2*i}, v{RAW+10*t+i}, 16, v7")
                A(f"v_bitop3_b32 v{X+2*i+1}, v{RAW+10*t+i}, s58, v7 bitop3:0x6a")
            A(f"v_max3_f32 v{mx}, v{X}, v{X+1}, v{X+2}")
            A(f"v_max3_f32 v{mx+1}, v{X+3}, v{X+4}, v{X+5}")
            for i in range(6, 18, 4):
                A(f"v_max3_f32 v{mx}, v{mx}, v{X+i}, v{X+i+1}")
                A(f"v_max3_f32 v{mx+1}, v{mx+1}, v{X+i+2}, v{X+i+3}")
            A(f"v_max3_f32 v{mx}, v{mx}, v{X+18}, v{X+19}")
            A(f"v_max_f32 v{mx}, v{mx}, v{mx+1}")
            A(f"v_mul_f32 v{mx}, s60, v{mx}")
            for i in range(0, 20, 2):
                A(f"v_pk_fma_f32 {vr(X+i,2)}, {vr(X+i,2)}, s[60:61], {vr(mx,2)} op_sel_hi:[1,1,0] neg_lo:[0,0,1] neg_hi:[0,0,1]")
            if Opt.dflag and t == 1:
                Lsk = A.newlabel("L_sk")
                A("s_cmp_eq_u32 s97, 1")
                A(f"s_cbranch_scc1 {Lsk}")
                set_flag(A, 10, "s96")
                lds_arrive(A, 14, L_SYNC + 4)
                stampw(A, 7)
                A.label(Lsk)
            for i in range(20):
                A(f"v_exp_f32 v{X+i}, v{X+i}")
            A(f"v_pk_add_f32 {vr(se,2)}, {vr(X,2)}, {vr(X+2,2)}")
            A(f"v_pk_add_f32 {vr(mx,2)}, {vr(X+4,2)}, {vr(X+6,2)}")
            for i in range(8, 20, 4):
                A(f"v_pk_add_f32 {vr(se,2)}, {vr(se,2)}, {vr(X+i,2)}")
                A(f"v_pk_add_f32 {vr(mx,2)}, {vr(mx,2)}, {vr(X+i+2,2)}")
            A(f"v_pk_add_f32 {vr(se,2)}, {vr(se,2)}, {vr(mx,2)}")
            A(f"v_add_f32 v{se}, v{se}, v{se+1}")
            A(f"v_rcp_f32 v{se}, v{se}")
            for i in range(0, 20, 2):
                A(f"v_pk_mul_f32 {vr(X+i,2)}, {vr(X+i,2)}, {vr(se,2)} op_sel_hi:[1,0]")
            for i in range(10):
                A(f"v_cvt_pk_bf16_f32 v{PQ+12*t+i}, v{X+2*i}, v{X+2*i+1}")
    stamp(A, 9)
    KF = 16
    A(f"v_mov_b32 v{KF+10}, 0")
    A(f"v_mov_b32 v{KF+11}, 0")
    lds_wait(A, 14, L_SYNC + 8, 4)
    stampw(A, 10)
    PR = 32
    T = Lgkm(A)
    for q in range(5):
        for p in range(4):
            T.issue(f"ds_read_b128 {vr(PR+16*q+4*p,4)}, v2 offset:{5120*p+1024*q}", q)
    for q in range(5):
        T.wait(q)
        b = PR + 16 * q
        for h in (0, 2):
            A(f"v_pk_add_f32 {vr(b+h,2)}, {vr(b+h,2)}, {vr(b+4+h,2)}")
            A(f"v_pk_add_f32 {vr(b+8+h,2)}, {vr(b+8+h,2)}, {vr(b+12+h,2)}")
        for h in (0, 2):
            A(f"v_pk_add_f32 {vr(b+h,2)}, {vr(b+h,2)}, {vr(b+8+h,2)}")
        for h in (0, 2):
            A(f"v_cvt_pk_bf16_f32 v{KF+2*q+h//2}, v{b+h}, v{b+h+1}")
    D = [176, 192, 208, 224]
    OP = [32, 40, 48, 56]

    def mf(t):
        for u in range(3):
            c = vr(D[t], 16) if u else "0"
            A(f"v_mfma_f32_32x32x16_bf16 {vr(D[t],16)}, {vr(KF+4*u,4)}, {vr(PQ+12*t+4*u,4)}, {c}")

    if Opt.dA:
        A(f"s_sleep {Opt.dA}")
    mf(0)
    mf(1)
    for t in range(NT):
        d, o = D[t], OP[t]
        A(f"v_add_f32 v10, 0x358637bd, v{d+12}")
        A("v_rcp_f32 v10, v10")
        if t + 2 < NT:
            mf(t + 2)
        if t >= 2:
            for i in range(0, 12, 2):
                A(f"v_pk_mul_f32 {vr(d+i,2)}, {vr(d+i,2)}, v[10:11] op_sel_hi:[1,0]")
        else:
            for i in range(12):
                A(f"v_mul_f32 v{d+i}, v10, v{d+i}")
        for i in range(6):
            A(f"v_cvt_pk_bf16_f32 v{o+i}, v{d+2*i}, v{d+2*i+1}")
        A(f"buffer_store_dwordx4 {vr(o,4)}, v2, s[{SWS}:{SWS+3}], s54 offen{SC}")
        A("s_mov_b32 exec_hi, 0")
        A(f"buffer_store_dwordx2 {vr(o+4,2)}, v3, s[{SWS}:{SWS+3}], s59 offen{SC}")
        A("s_mov_b64 exec, -1")
        if t < NT - 1:
            A("s_add_u32 s54, s54, 40960")
            A("s_add_u32 s59, s59, 40960")
    stamp(A, 11)
    set_flag(A, 12, "s50")
    lds_arrive(A, 16, L_SYNC + 12)
    stamp(A, 12)


def b_channel(A):
    A("s_mul_i32 s49, s98, 80")
    A("s_sub_u32 s50, s99, 24")
    A("s_mul_i32 s50, s50, 6")
    A("s_add_u32 s49, s49, s50")
    A("s_add_u32 s49, s49, s48")
    A("s_cmp_ge_u32 s48, 6")
    A("s_cselect_b32 s50, 2, 0")
    A("s_sub_u32 s49, s49, s50")
    A(f"s_mul_i32 s56, s48, {CV_LDS}")


def conv_load_h(A, v):
    SH = 40
    srd(A, SH, S_SSK, NB_SSK)
    A(f"v_lshlrev_b32 v{v}, 4, v1")
    A("s_lshl_b32 s50, s49, 12")
    A("s_add_u32 m0, s56, 64")
    for i in range(4):
        A(f"buffer_load_dwordx4 v{v}, s[{SH}:{SH+3}], s50 offen offset:{1024*i}{Opt.nth} lds")


def f0_lines(A, c0, c1, v):
    A(f"s_lshr_b32 s52, s{c0}, 6")
    A("s_mul_i32 s52, s52, 419431")
    A("s_lshr_b32 s52, s52, 16")
    A(f"s_lshr_b32 s53, s{c1}, 6")
    A("s_mul_i32 s53, s53, 419431")
    A("s_add_u32 s53, s53, 406324")
    A("s_lshr_b32 s53, s53, 16")
    A(f"v_lshrrev_b32 v{v}, 2, v1")
    A(f"v_add_u32 v{v}, s52, v{v}")
    A(f"v_min_u32 v{v}, s53, v{v}")
    A(f"v_lshlrev_b32 v{v}, 7, v{v}")
    A(f"s_mov_b32 s52, {F0:#x}")


def role_pre(A):
    SK, SV, SS = 32, 36, 40
    t0, t1, t2 = 2, 3, 4
    A("s_lshl_b32 s49, s98, 3")
    A("s_add_u32 s49, s49, s99")
    A("s_sub_u32 s49, s49, 24")
    A("s_mul_i32 s49, s49, 5")
    A("s_add_u32 s49, s49, s48")
    A("s_and_b32 s50, s49, 31")
    A("s_lshr_b32 s51, s49, 5")
    A(f"s_mul_i32 s52, s50, {64*1280}")
    A("s_lshl_b32 s53, s51, 7")
    A("s_add_u32 s52, s52, s53")
    A(f"v_lshrrev_b32 v{t0}, 3, v1")
    A(f"v_and_b32 v{t1}, 7, v1")
    A(f"v_mul_u32_u24 v{t2}, {8*1280}, v{t0}")
    A(f"v_lshl_add_u32 v{t2}, v{t1}, 4, v{t2}")
    A(f"v_add_u32 v5, s52, v{t2}")
    A(f"v_subrev_u32 v6, {3*1280}, v5")
    A(f"v_subrev_u32 v7, {2*1280}, v5")
    A(f"v_subrev_u32 v8, {1280}, v5")
    A(f"v_lshlrev_b32 v9, 6, v{t1}")
    A("s_lshl_b32 s54, s51, 9")
    A(f"s_movk_i32 s55, {4*1280}")
    A("s_waitcnt lgkmcnt(0)")
    srd(A, SK, S_BK, NB_X)
    srd(A, SV, S_BV, NB_X)
    srd(A, SS, S_SH, NB_SH)
    WR, KR, VR = 16, 32, 76
    for i in range(4):
        A(f"buffer_load_dwordx4 {vr(WR+4*i,4)}, v9, s[{SS}:{SS+3}], s54 offen offset:{16*i}")
    for i in range(3):
        A(f"buffer_load_dwordx4 {vr(KR+4*i,4)}, v{6+i}, s[{SK}:{SK+3}], 0 offen{Opt.ntk}")

    order = []

    def ld(kind, i):
        so = "0" if i < 4 else "s55"
        if kind == "k":
            A(f"buffer_load_dwordx4 {vr(KR+12+4*i,4)}, v5, s[{SK}:{SK+3}], {so} offen offset:{1280*(i&3)}{Opt.ntk}")
        else:
            A(f"buffer_load_dwordx4 {vr(VR+4*i,4)}, v5, s[{SV}:{SV+3}], {so} offen offset:{1280*(i&3)}{Opt.ntk}")
        order.append((kind, i))

    for i in (5, 6, 7):
        ld("k", i)
    ld("k", 0); ld("v", 0); ld("k", 1); ld("v", 1)
    todo = [("k", 2), ("v", 2), ("k", 3), ("v", 3), ("k", 4), ("v", 4), ("v", 5), ("v", 6), ("v", 7)]
    stamp(A, 2)
    srd(A, SWS, S_WS, WS_SIZE)
    A("s_mul_i32 s56, s48, 8320")
    A(f"s_add_u32 s56, s56, {B_PRE}")
    A(f"v_mul_u32_u24 v10, 1040, v{t1}")
    A(f"v_lshl_add_u32 v10, v{t0}, 4, v10")
    A("v_add_u32 v10, s56, v10")
    A("v_lshrrev_b32 v11, 4, v1")
    A("v_lshlrev_b32 v11, 8, v11")
    A("v_and_b32 v12, 3, v1")
    A("v_lshl_add_u32 v11, v12, 6, v11")
    A("v_bfe_u32 v12, v1, 2, 2")
    A("v_lshl_add_u32 v11, v12, 3, v11")
    A("v_add_u32 v11, s56, v11")
    A(f"v_mul_u32_u24 v12, {Opt.pit}, v{t0}")
    A(f"v_lshl_add_u32 v12, v{t1}, 4, v12")
    A(f"s_mul_i32 s57, s51, {64*Opt.pit}")
    A("s_lshl_b32 s58, s50, 7")
    A("s_add_u32 s57, s57, s58")
    A(f"s_add_u32 s57, s57, {WS_KVT:#x}")
    A("s_mov_b32 s59, 0xffff0000")
    WF, KF, VF, TA, OUT = 108, 140, 172, 180, 196

    def unpack(dst, src, n):
        for i in range(n):
            A(f"v_lshlrev_b32 v{dst+2*i}, 16, v{src+i}")
            A(f"v_and_b32 v{dst+2*i+1}, s59, v{src+i}")

    A(f"s_waitcnt vmcnt({3+len(order)})")
    ld(*todo.pop(0)); ld(*todo.pop(0))
    for c in range(8):
        A(f"v_lshlrev_b32 v{WF+c}, 16, v{WR+2*c}")
        A(f"v_and_b32 v{WF+8+c}, s59, v{WR+2*c}")
        A(f"v_lshlrev_b32 v{WF+16+c}, 16, v{WR+2*c+1}")
        A(f"v_and_b32 v{WF+24+c}, s59, v{WR+2*c+1}")
    A(f"s_waitcnt vmcnt({len(order)})")
    ld(*todo.pop(0)); ld(*todo.pop(0))
    for i in range(3):
        unpack(KF + 8 * i, KR + 4 * i, 4)
    for i in range(8):
        need = max(order.index(("k", i)), order.index(("v", i)))
        A(f"s_waitcnt vmcnt({len(order)-1-need})")
        for _ in range(2):
            if todo:
                ld(*todo.pop(0))
        if i == 2:
            b_channel(A)
            if Opt.hdef:
                A("s_lshl_b32 s50, s49, 12")
            else:
                conv_load_h(A, 13)
                order.extend([None] * 4)
        unpack(KF + 8 * ((i + 3) & 3), KR + 12 + 4 * i, 4)
        unpack(VF, VR + 4 * i, 4)
        acc = TA + 8 * (i & 1)
        for j in (3, 2, 1, 0):
            kk = KF + 8 * ((i + 3 - j) & 3)
            for c in range(0, 8, 2):
                if j == 3:
                    A(f"v_pk_mul_f32 {vr(acc+c,2)}, {vr(kk+c,2)}, {vr(WF+8*j+c,2)}")
                else:
                    A(f"v_pk_fma_f32 {vr(acc+c,2)}, {vr(kk+c,2)}, {vr(WF+8*j+c,2)}, {vr(acc+c,2)}")
        for c in range(0, 8, 2):
            A(f"v_pk_mul_f32 {vr(acc+c,2)}, {vr(acc+c,2)}, {vr(VF+c,2)}")
        if i & 1:
            for c in range(8):
                A(f"v_cvt_pk_bf16_f32 v{OUT+4*c+i//2}, v{TA+c}, v{TA+8+c}")
    stamp(A, 3)
    for c in range(8):
        A(f"ds_write_b128 v10, {vr(OUT+4*c,4)} offset:{128*c}")
    A("s_waitcnt lgkmcnt(0)")
    T = Lgkm(A)
    for i in range(8):
        T.issue(f"ds_read_b64_tr_b16 {vr(16+4*i,2)}, v11 offset:{1040*i}")
        T.issue(f"ds_read_b64_tr_b16 {vr(18+4*i,2)}, v11 offset:{1040*i+32}", i)
    for i in range(8):
        T.wait(i)
        A(f"buffer_store_dwordx4 {vr(16+4*i,4)}, v12, s[{SWS}:{SWS+3}], s57 offen{SC}")
        if i < 7:
            A(f"s_add_u32 s57, s57, {8*Opt.pit}")
    stamp(A, 5)
    if Opt.hdef == 2:
        conv_load_h(A, 13)


def role_helper(A):
    SD = 40
    A("s_setprio 3")
    A("s_waitcnt lgkmcnt(0)")
    srd(A, SWS, S_WS, WS_SIZE)
    srd(A, SD, S_DBG, 256)
    Lz = A.newlabel("L_nz")
    A("s_cmp_eq_u32 s2, 192")
    A(f"s_cbranch_scc0 {Lz}")
    A("s_cmp_eq_u32 s48, 5")
    A(f"s_cbranch_scc0 {Lz}")
    A(f"s_mov_b32 s57, {WS_EPOCH:#x}")
    A("s_mov_b64 exec, 1")
    for _ in range(Opt.mdelay):
        A("s_sleep 127")
    A(f"buffer_load_dword v4, off, s[{SWS}:{SWS+3}], s57{SC}")
    A("s_waitcnt vmcnt(0)")
    A("v_add_u32 v4, 1, v4")
    A("v_not_b32 v5, v4")
    A(f"buffer_store_dwordx2 v[4:5], off, s[{SD}:{SD+3}], 0{SC}")
    A(f"buffer_store_dword v4, off, s[{SWS}:{SWS+3}], s57{SC}")
    A("s_mov_b64 exec, -1")
    stamp(A, 2)
    A.label(Lz)
    if Opt.touch & 2:
        Lt = A.newlabel("L_nt")
        A("s_cmp_eq_u32 s48, 5")
        A(f"s_cbranch_scc0 {Lt}")
        touch(A, 26, 32, Opt.tsh)
        for k_, (b_, n_) in enumerate(((S_BQ, NB_X), (S_SSK, NB_SSK))):
            srd(A, 32, b_, n_)
            A(f"buffer_load_dword v29, v26, s[32:35], 0 offen")
        A.label(Lt)
    if Opt.codepf:
        Lp = A.newlabel("L_npf")
        A("s_cmp_eq_u32 s48, 6")
        A(f"s_cbranch_scc0 {Lp}")
        A("s_getpc_b64 s[50:51]")
        A.label("L_pc")
        A(f"s_sub_u32 s50, s50, L_pc-{NAME}_kernel")
        A("s_subb_u32 s51, s51, 0")
        A("s_sub_u32 s52, s99, 24")
        A("s_lshl_b32 s52, s52, 13")
        A("v_lshl_add_u32 v2, v1, 7, s52")
        A(f"v_min_u32 v2, L_code_end-{NAME}_kernel-4, v2")
        A("global_load_dword v24, v2, s[50:51]")
        A.label(Lp)
    if Opt.bwarm:
        Lw_ = A.newlabel("L_bw")
        A("s_cmp_eq_u32 s48, 7")
        A(f"s_cbranch_scc0 {Lw_}")
        A("s_sub_u32 s61, s99, 24")
        A("s_mul_i32 s60, s98, 80")
        A("s_mul_i32 s61, s61, 6")
        A("s_add_u32 s60, s60, s61")
        A("s_add_u32 s61, s60, 5")
        f0_lines(A, 60, 61, 12)
        A(f"buffer_load_dword v26, v12, s[{SWS}:{SWS+3}], s52 offen{SC}")
        if Opt.bwarm > 1:
            A("s_lshl_b32 s57, s98, 4")
            A("s_sub_u32 s58, s57, 16")
            A("v_min_u32 v12, 47, v1")
            A("v_add_u32 v12, s58, v12")
            A("v_max_i32 v12, 0, v12")
            A("v_min_u32 v12, 127, v12")
            A("v_lshlrev_b32 v12, 7, v12")
            A(f"s_mov_b32 s58, {F4:#x}")
            A(f"buffer_load_dword v27, v12, s[{SWS}:{SWS+3}], s58 offen{SC}")
        A.label(Lw_)
    Lnw = A.newlabel("L_nw")
    A("s_sub_u32 s61, s99, 24")
    A("s_lshl_b32 s60, s61, 1")
    A("s_add_u32 s60, s60, s48")
    A("s_sub_u32 s60, s60, 6")
    A("s_xor_b32 s61, s61, 20")
    A("s_cmp_eq_u32 s48, 5")
    A("s_cselect_b32 s60, s61, s60")
    A("s_lshl_b32 s60, s60, 3")
    A("s_add_u32 s60, s60, s98")
    A("s_cmp_ge_u32 s60, 160")
    A(f"s_cbranch_scc1 {Lnw}_a")
    srd(A, 36, S_WO, NB_WO)
    A("s_lshr_b32 s61, s60, 3")
    A("s_and_b32 s62, s60, 7")
    A(f"s_mul_i32 s53, s62, {80*1280}")
    A("s_lshl_b32 s54, s61, 6")
    A("s_add_u32 s53, s53, s54")
    A("v_lshrrev_b32 v2, 2, v1")
    A("v_and_b32 v3, 3, v1")
    A("v_mul_u32_u24 v4, 1280, v2")
    A("v_lshl_add_u32 v4, v3, 4, v4")
    A(f"s_mul_i32 s56, s48, {CV_LDS}")
    for i in range(5):
        A(f"s_add_u32 m0, s56, {1024*i}")
        A("buffer_load_dwordx4 v4, s[36:39], s53 offen lds")
        A(f"s_add_u32 s53, s53, {16*1280}")
    A.label(Lnw + "_a")
    if Opt.pfm:
        Le_ = A.newlabel("L_pme")
        A("s_and_b32 s50, s98, 3")
        A("s_lshr_b32 s51, s98, 2")
        A("s_and_b32 s52, s99, 3")
        A("s_lshl_b32 s53, s50, 1")
        A("s_add_u32 s53, s53, s51")
        A("s_lshl_b32 s53, s53, 2")
        A("s_add_u32 s53, s53, s52")
        A(f"s_mul_i32 s53, s53, {64*1280}")
        A("s_lshl_b32 s50, s50, 2")
        A("s_add_u32 s50, s50, s52")
        A("s_mul_i32 s52, s50, 52")
        A("s_lshr_b32 s52, s52, 8")
        A("s_add_u32 s52, s52, s51")
        A("s_mul_i32 s52, s52, 640")
        A("s_lshl_b32 s51, s50, 7")
        A("s_add_u32 s52, s52, s51")
        A("s_cmp_eq_u32 s50, 15")
        A(f"s_cselect_b32 s52, {NB_W:#x}, s52")
        A("s_cmp_lt_u32 s99, 28")
        A("s_cselect_b32 s51, s53, s52")
        A(f"s_cselect_b64 s[32:33], s[{S_X}:{S_X+1}], s[{S_W}:{S_W+1}]")
        A(f"s_mov_b32 s53, {NB_W:#x}")
        A(f"s_cselect_b32 s34, {NB_X:#x}, s53")
        A("s_mov_b32 s35, 0x20000")
        A("s_movk_i32 s53, 3840")
        A("s_cselect_b32 s52, 1280, s53")
        A(f"s_mov_b32 s53, {64*3840}")
        A("s_cselect_b32 s53, 128, s53")
        A("v_mul_u32_u24 v2, s52, v1")
        A("s_sub_u32 s50, s48, 5")
        A("s_lshl_b32 s50, s50, 2")
        for k in range(len(Opt.pfm) // 3):
            tab = Opt.pfm[3 * k] | Opt.pfm[3 * k + 1] << 4 | Opt.pfm[3 * k + 2] << 8
            A(f"s_lshr_b32 s54, {tab:#x}, s50")
            A("s_and_b32 s54, s54, 15")
            A("s_mul_i32 s52, s54, s53")
            A("s_cmp_ge_u32 s54, 10")
            A("s_cselect_b32 s52, 0x1000000, s52")
            A("s_add_u32 s52, s52, s51")
            A(f"buffer_load_dword v{30+k}, v2, s[32:35], s52 offen")
        A.label(Le_)
    if Opt.pfw or Opt.pfx:
        Lx_, Le_ = A.newlabel("L_pfx"), A.newlabel("L_pfe")
        A("s_cmp_eq_u32 s48, 5")
        A(f"s_cbranch_scc1 {Lx_}")
        A("s_lshl_b32 s50, s48, 3")
        A("s_add_u32 s50, s50, s99")
        A("s_sub_u32 s50, s50, 72")
        A("s_cmp_eq_u32 s50, 15")
        A(f"s_cbranch_scc1 {Le_}")
        A("s_mul_i32 s51, s50, 52")
        A("s_lshr_b32 s51, s51, 8")
        A("s_lshr_b32 s52, s98, 2")
        A("s_add_u32 s51, s51, s52")
        A("s_mul_i32 s51, s51, 640")
        A("s_lshl_b32 s50, s50, 7")
        A("s_add_u32 s51, s51, s50")
        srd(A, 32, S_W, NB_W)
        A("v_mul_u32_u24 v2, 3840, v1")
        for k, st in enumerate(Opt.pfw):
            A(f"s_add_u32 s50, s51, {st*64*3840}")
            A(f"buffer_load_dword v{30+k}, v2, s[32:35], s50 offen")
        A(f"s_branch {Le_}")
        A.label(Lx_)
        if Opt.pfx:
            A("s_and_b32 s51, s98, 3")
            A("s_lshl_b32 s51, s51, 3")
            A("s_add_u32 s51, s51, s99")
            A("s_sub_u32 s51, s51, 24")
            A(f"s_mul_i32 s51, s51, {64*1280}")
            srd(A, 32, S_X, NB_X)
            A("v_mul_u32_u24 v2, 1280, v1")
            for k, st in enumerate(Opt.pfx):
                A(f"buffer_load_dword v{30+k}, v2, s[32:35], s51 offen offset:{128*st}")
        A.label(Le_)
    if Opt.pft:
        tasks = []
        for st, which in Opt.pft:
            for c in (range(5) if which == "q" else range(5, 15)):
                tasks += [(st, c), (st + 5, c)]
        nsl = -(-len(tasks) // 24)
        tasks += [(15, 0)] * (24 * nsl - len(tasks))
        srd(A, 32, S_W, NB_W)
        A("v_mul_u32_u24 v2, 3840, v1")
        A("s_lshr_b32 s51, s98, 2")
        A("s_sub_u32 s50, s99, 24")
        A("s_lshl_b32 s50, s50, 3")
        for k in range(nsl):
            tab = [sum((tasks[24*k + 8*w + j][0] << 4 | tasks[24*k + 8*w + j][1]) << (8 * j) for j in range(8)) for w in range(3)]
            A(f"s_mov_b32 s52, {tab[0] & 0xffffffff:#x}")
            A(f"s_mov_b32 s53, {tab[0] >> 32:#x}")
            for w in (1, 2):
                A(f"s_cmp_eq_u32 s48, {5+w}")
                A(f"s_cselect_b32 s52, {tab[w] & 0xffffffff:#x}, s52")
                A(f"s_cselect_b32 s53, {tab[w] >> 32:#x}, s53")
            A("s_lshr_b64 s[52:53], s[52:53], s50")
            A("s_bfe_u32 s53, s52, 0x40004")
            A("s_and_b32 s52, s52, 15")
            A("s_mul_i32 s54, s52, 52")
            A("s_lshr_b32 s54, s54, 8")
            A("s_add_u32 s54, s54, s51")
            A("s_mul_i32 s54, s54, 640")
            A("s_lshl_b32 s52, s52, 7")
            A("s_add_u32 s52, s52, s54")
            A(f"s_mul_i32 s53, s53, {64*3840}")
            A("s_add_u32 s52, s52, s53")
            A(f"buffer_load_dword v{34+k}, v2, s[32:35], s52 offen")
        Opt.npft = nsl
    if Opt.gpf2:
        Lnp = A.newlabel("L_ng")
        A("s_lshl_b32 s50, s48, 3")
        A("s_add_u32 s50, s50, s99")
        A("s_sub_u32 s50, s50, 64")
        A("s_cmp_ge_u32 s50, 20")
        A("s_cselect_b32 s53, 0x1000000, 0")
        A("s_lshr_b32 s51, s50, 1")
        A("s_and_b32 s50, s50, 1")
        A("s_cmp_ge_u32 s51, 5")
        A("s_cselect_b32 s52, 640, 0")
        A("s_lshl_b32 s51, s51, 7")
        A("s_add_u32 s51, s51, s52")
        A("s_lshr_b32 s52, s98, 2")
        A("s_mul_i32 s52, s52, 640")
        A("s_add_u32 s51, s51, s52")
        A(f"s_mul_i32 s50, s50, {5*64*3840}")
        A("s_add_u32 s51, s51, s50")
        A("s_add_u32 s51, s51, s53")
        A(f"s_add_u32 s51, s51, {1280 + Opt.gpf2*64*3840}")
        srd(A, 32, S_W, NB_W)
        A("v_mul_u32_u24 v2, 3840, v1")
        for k in range(Opt.gpf2, 5):
            A(f"buffer_load_dword v{30+k}, v2, s[32:35], s51 offen")
            A(f"s_add_u32 s51, s51, {64*3840}")
        A.label(Lnp)
    if Opt.gpf:
        A("s_sub_u32 s50, s99, 24")
        A("s_mul_i32 s50, s50, 3")
        A("s_add_u32 s50, s50, s48")
        A("s_sub_u32 s50, s50, 5")
        A("s_and_b32 s51, s98, 3")
        A("s_lshl_b32 s51, s51, 3")
        A("s_add_u32 s51, s51, s50")
        A(f"s_mul_i32 s51, s51, {64*1280}")
        A("s_sub_u32 s52, s50, 8")
        A("s_mul_i32 s53, s52, 52")
        A("s_lshr_b32 s53, s53, 8")
        A("s_mul_i32 s53, s53, 640")
        A("s_lshl_b32 s52, s52, 7")
        A("s_add_u32 s52, s52, s53")
        A("s_lshr_b32 s53, s98, 2")
        A("s_mul_i32 s53, s53, 640")
        A("s_add_u32 s52, s52, s53")
        A("s_cmp_eq_u32 s50, 23")
        A(f"s_cselect_b32 s52, {NB_W:#x}, s52")
        A("s_cmp_lt_u32 s50, 8")
        A("s_cselect_b32 s51, s51, s52")
        A(f"s_cselect_b64 s[32:33], s[{S_X}:{S_X+1}], s[{S_W}:{S_W+1}]")
        A(f"s_mov_b32 s53, {NB_W:#x}")
        A(f"s_cselect_b32 s34, {NB_X:#x}, s53")
        A("s_mov_b32 s35, 0x20000")
        A("s_movk_i32 s53, 3840")
        A("s_cselect_b32 s52, 1280, s53")
        A(f"s_mov_b32 s53, {64*3840}")
        A("s_cselect_b32 s53, 128, s53")
        A("v_mul_u32_u24 v2, s52, v1")
        A(f"s_mul_i32 s52, s53, {Opt.gpf}")
        A("s_add_u32 s51, s51, s52")
        for k, st in enumerate(range(Opt.gpf, 10)):
            if k >= Opt.gpfd:
                A(f"s_waitcnt vmcnt({Opt.gpfd-1})")
            A(f"buffer_load_dword v{30+k}, v2, s[32:35], s51 offen")
            A("s_add_u32 s51, s51, s53")
    A("s_cmp_ge_u32 s60, 160")
    A(f"s_cbranch_scc1 {Lnw}")
    A("v_bfe_u32 v10, v1, 2, 2")
    A("v_lshrrev_b32 v11, 5, v1")
    A("v_and_b32 v12, 1, v1")
    A("v_lshlrev_b32 v12, 5, v12")
    A("v_bfe_u32 v13, v1, 4, 1")
    A("v_lshl_add_u32 v12, v13, 4, v12")
    A("v_bfe_u32 v13, v1, 1, 1")
    A("v_lshl_add_u32 v12, v13, 3, v12")
    A("v_lshl_add_u32 v12, v10, 6, v12")
    A("v_add_u32 v12, s56, v12")
    A("v_lshl_add_u32 v13, v11, 8, v12")
    A("v_mul_u32_u24 v14, 2560, v11")
    A("v_add_u32 v14, v14, v12")
    A("v_lshlrev_b32 v2, 4, v1")
    A(f"s_mul_i32 s53, s61, {Opt.wstr}")
    A(f"s_add_u32 s53, s53, {WS_WOT:#x}")
    A("s_lshl_b32 s54, s62, 10")
    A("s_add_u32 s54, s54, s53")
    A("s_add_u32 s54, s54, 32768")
    A("s_lshl_b32 s62, s62, 12")
    A("s_add_u32 s53, s53, s62")
    A("s_lshl_b32 s55, s60, 7")
    A(f"s_add_u32 s55, s55, {FW:#x}")
    if Opt.wback == 2:
        A("v_lshlrev_b32 v5, 7, v1")
        A("s_mov_b32 exec_hi, 0")
        A(f"buffer_load_dword v24, v5, s[{SWS}:{SWS+3}], s53 offen")
        A("s_mov_b32 exec_lo, 0xff")
        A(f"buffer_load_dword v25, v5, s[{SWS}:{SWS+3}], s54 offen")
        A("s_mov_b64 exec, -1")
    assert not (Opt.pfw or Opt.pfx or Opt.gpf)
    A(f"s_waitcnt vmcnt({len(Opt.pfm)//3 + (5-Opt.gpf2 if Opt.gpf2 else 0) + Opt.npft})")
    for hh in range(4):
        for half in range(2):
            A(f"ds_read_b64_tr_b16 {vr(40+4*hh+2*half,2)}, v13 offset:{(20*hh+8*half)*64}")
    for half in range(2):
        A(f"ds_read_b64_tr_b16 {vr(56+2*half,2)}, v14 offset:{(20*half+16)*64}")
    A("s_waitcnt lgkmcnt(0)")
    for hh in range(4):
        A(f"buffer_store_dwordx4 {vr(40+4*hh,4)}, v2, s[{SWS}:{SWS+3}], s53 offen offset:{1024*hh}{Opt.stw}")
    A(f"buffer_store_dwordx4 v[56:59], v2, s[{SWS}:{SWS+3}], s54 offen{Opt.stw}")
    A(f"s_mov_b64 s[{TAG}:{TAG+1}], 0")
    if Opt.tagl:
        A("s_waitcnt vmcnt(0)")
    tag_check(A, 8)
    set_flag(A, 8, "s55")
    stamp(A, 3)
    if Opt.wback == 1:
        A("v_lshlrev_b32 v5, 7, v1")
        A("s_mov_b32 exec_hi, 0")
        A(f"buffer_load_dword v24, v5, s[{SWS}:{SWS+3}], s53 offen")
        A("s_mov_b32 exec_lo, 0xff")
        A(f"buffer_load_dword v25, v5, s[{SWS}:{SWS+3}], s54 offen")
        A("s_mov_b64 exec, -1")
    A.label(Lnw)
    A("s_setprio 0")
    b_channel(A)
    if Opt.hdef == 1:
        A("s_lshl_b32 s50, s49, 12")
    else:
        conv_load_h(A, 2)
    A(f"v_mov_b32 v4, {B_MB+256}")
    A("v_mov_b32 v5, 0")
    A("ds_write_b32 v4, v5")
    A("ds_write_b32 v4, v5 offset:512")


def conv_setup(A):
    A("v_lshlrev_b32 v2, 4, v1")
    A("s_lshl_b32 s52, s49, 1")
    A("s_and_b32 s52, s52, 0xfffffffc")
    A(f"s_load_dword s55, s[{S_SSD}:{S_SSD+1}], s52")
    A(f"s_load_dword s54, s[{S_SSK}:{S_SSK+1}], s50")
    A(f"s_mul_i32 s51, s49, {Opt.pit}")
    A(f"s_add_u32 s51, s51, {WS_KVT:#x}")
    for i in range(4):
        A(f"v_mov_b32 v{4+i}, 0")
    A("v_add_u32 v3, s56, v2")
    A("s_mov_b64 exec, 0xf")
    A("ds_write_b128 v3, v[4:7]")
    A("s_mov_b32 exec_lo, -1")
    A(f"ds_write_b128 v3, v[4:7] offset:{64+4096}")
    A("s_mov_b64 exec, -1")
    A("v_and_b32 v11, 3, v1")
    A("v_lshrrev_b32 v10, 4, v1")
    A("v_bfe_u32 v12, v1, 2, 2")
    A("v_lshlrev_b32 v8, 4, v11")
    A("v_lshl_add_u32 v8, v10, 6, v8")
    A("v_lshlrev_b32 v9, 3, v12")
    A("v_sub_u32 v8, v8, v9")
    A("s_add_u32 s57, s56, 32")
    A("v_add_u32 v8, s57, v8")
    A("v_sub_u32 v9, v11, v10")
    A("v_lshlrev_b32 v9, 6, v9")
    A("v_lshl_add_u32 v9, v12, 4, v9")
    A(f"s_add_u32 s57, s56, {64+4096+512}")
    A("v_add_u32 v9, s57, v9")
    A("v_mov_b32 v13, 0xffff")
    for i in range(4):
        A(f"v_cmp_eq_u32 vcc, {4*i}, v1")
        A(f"v_cndmask_b32 v{MK+i}, 0, v13, vcc")
    A("v_add_u32 v13, 3, v11")
    A("v_and_b32 v13, 3, v13")
    A("v_lshl_add_u32 v13, v12, 2, v13")
    A("v_add_u32 v13, 48, v13")
    A("v_subrev_u32 v14, 16, v1")
    A("v_cmp_gt_u32 vcc, 16, v1")
    A("v_cndmask_b32 v14, v14, v13, vcc")
    A("v_lshlrev_b32 v14, 2, v14")
    A("s_mov_b32 s58, 0x1111")
    A("s_mov_b32 s59, 0")


MK = 16


def role_conv(A):
    conv_setup(A)
    A("s_sub_u32 s61, s99, 24")
    A("s_lshl_b32 s62, s98, 3")
    A("s_add_u32 s62, s62, s61")
    A("s_lshl_b32 s62, s62, 7")
    A(f"s_add_u32 s62, s62, {F0:#x}")
    A("s_mul_i32 s60, s98, 80")
    A("s_mul_i32 s61, s61, 6")
    A("s_add_u32 s60, s60, s61")
    A("s_add_u32 s61, s60, 5")
    f0_lines(A, 60, 61, 12)
    A(f"s_waitcnt vmcnt({4 if Opt.hdef == 2 else 0}) lgkmcnt(0)")
    stamp(A, 4)
    A("s_barrier")
    def xload():
        A(f"s_add_u32 m0, s56, {64+4096+512}")
        for i in range(4):
            A(f"buffer_load_dwordx4 v2, s[{SWS}:{SWS+3}], s51 offen offset:{1024*i}{SC} lds")

    Lh, Ln7 = A.newlabel("L_hd"), A.newlabel("L_n7")
    A("s_cmp_eq_u32 s48, 7")
    A(f"s_cbranch_scc0 {Lh}")
    set_flag(A, 22, "s62")
    A.label(Lh)
    A("s_barrier")
    conv_load_h(A, 2)
    A("s_cmp_eq_u32 s48, 7")
    A(f"s_cbranch_scc0 {Ln7}")
    if Opt.hq == 2:
        A("s_waitcnt vmcnt(0)")
    poll(A, 26, 12, "s52", sleep=Opt.f0s)
    A.label(Ln7)
    A("s_barrier")
    stamp(A, 8)
    xload()
    A("s_waitcnt vmcnt(4)")
    A("s_cmp_ge_u32 s48, 4")
    A("s_cbranch_scc0 L_cb")
    A("s_setprio 1")
    A("s_branch L_cb")
    A.label("L_conv")
    RA, RB = 64, 192
    ACCS = (32, 40, 48, 56)
    CAR, PUL, TMP = 20, (21, 22), 23
    OUT = (24, 28)

    def rdA(m, e):
        reg = RA + 8 * m + 4 * e
        return [(f"ds_read_b64_tr_b16 {vr(reg,2)}, v8 offset:{256*m+8*e+32}", None),
                (f"ds_read_b64_tr_b16 {vr(reg+2,2)}, v8 offset:{256*m+8*e}", ("A", m, e))]

    Lb, Lg = "L_cb", A.newlabel("L_cg")
    tag_check(A, 22)
    if Opt.qlate in (1, 3):
        conv_load_h(A, 2)
        A("s_barrier")
        lds_wait(A, 22, L_SYNC + (52 if Opt.qlate == 3 else 0), 4, sleep=2)
        A(f"buffer_load_dwordx2 v[22:23], v12, s[{SWS}:{SWS+3}], s52 offen{SC}")
        A("s_waitcnt vmcnt(0)")
    elif Opt.qlate == 2:
        A("s_barrier")
        lds_wait(A, 22, L_SYNC, 4, sleep=2)
        A(f"buffer_load_dwordx2 v[22:23], v12, s[{SWS}:{SWS+3}], s52 offen{SC}")
        conv_load_h(A, 2)
        A("s_waitcnt vmcnt(4)")
    else:
        conv_load_h(A, 2)
        A(f"buffer_load_dwordx2 v[22:23], v12, s[{SWS}:{SWS+3}], s52 offen{SC}")
        A("s_barrier")
        A("s_waitcnt vmcnt(0)")
    A(f"v_cmp_eq_u64 vcc, s[{TAG}:{TAG+1}], v[22:23]")
    A("s_cmp_eq_u64 vcc, -1")
    Lx = A.newlabel("L_cx")
    A(f"s_cbranch_scc1 {Lx}")
    poll(A, 22, 12, "s52", sleep=8)
    A.label(Lx)
    if Opt.qlate == 3:
        lds_wait(A, 22, L_SYNC, 4, sleep=1)
    stamp(A, 8)
    xload()
    if Opt.qlate:
        lds_arrive(A, 22, L_SYNC)
        A("s_waitcnt vmcnt(4)")
    A.label(Lb)
    A("s_waitcnt lgkmcnt(0)")
    A("s_lshl_b32 s54, s54, 16")
    A("s_lshl_b32 s53, s55, 16")
    A("s_and_b32 s55, s55, 0xffff0000")
    A("s_bitcmp1_b32 s49, 0")
    A("s_cselect_b32 s53, s55, s53")
    A("v_mov_b32 v15, s54")
    A("v_add_f32 v15, s53, v15")
    A("v_cvt_pk_bf16_f32 v15, v15, v15")
    T = Lgkm(A)
    for m in range(16):
        for e in range(2):
            for x, tg in rdA(m, e):
                T.issue(x, tg)
    T.wait(("A", 0, 1))
    for k in range(4):
        A(f"v_bfi_b32 v{RA+k}, v{MK+k}, v15, v{RA+k}")
        A(f"v_lshlrev_b32 v{MK+k}, 16, v{MK+k}")
        A(f"v_bfi_b32 v{RA+4+k}, v{MK+k}, v15, v{RA+4+k}")
    T.all()
    A(f"s_add_u32 s51, s51, {WS_YT-WS_KVT:#x}")
    A(f"v_mov_b32 v{PUL[1]}, 0")

    def epilogue(i):
        V = ACCS[i % 4]
        dpp = lambda d, src, op: f"v_add_f32_dpp v{d}, v{src}, v{d} {op} row_mask:0xf bank_mask:0xf"
        L = [f"v_mov_b32 v{CAR}, 0"]
        for k in (1, 2, 3):
            L += [dpp(V, V + k, f"row_shr:{4*k}"), dpp(V + 4, V + 4 + k, f"row_shr:{4*k}"), dpp(CAR, V + 4 + k, f"row_shl:{16-4*k}")]
        L.append(("ds", f"ds_bpermute_b32 v{PUL[i&1]}, v14, v{CAR}", ("P", i)))
        x = [dpp(V + 4, V + k, f"row_shl:{16-4*k}") for k in (1, 2, 3)]
        L += [x[0], "GAP", x[1], "GAP", x[2]]
        L.append(("wait", ("P", i)))
        L.append(f"v_cndmask_b32 v{TMP}, v{PUL[i&1]}, v{PUL[1-(i&1)]}, s[58:59]")
        L.append(f"v_add_f32 v{V}, v{V}, v{TMP}")
        L.append(f"v_cvt_pk_bf16_f32 v{OUT[(i>>2)&1]+(i&3)}, v{V}, v{V+4}")
        if i & 3 == 3:
            L.append(f"buffer_store_dwordx4 {vr(OUT[(i>>2)&1],4)}, v2, s[{SWS}:{SWS+3}], s51 offen offset:{1024*(i>>2)}{SC}")
        return L

    def emit(x):
        if isinstance(x, tuple):
            if x[0] == "ds":
                T.issue(x[1], x[2])
            else:
                T.wait(x[1])
        elif x != "GAP":
            A(x)

    A("s_waitcnt vmcnt(0)")
    stampw(A, 9)

    def stream(tiles, exit_at=None, keep=None):
        T.tag.clear()
        for w in range(16):
            T.issue(f"ds_read_b128 {vr(RB+4*w,4)}, v9 offset:{256*w}", ("B", w))
        fill = []
        since = 99
        for i in tiles:
            V = ACCS[i % 4]
            while fill and fill[0][0] <= i - 4:
                emit(fill.pop(0)[1])
            if exit_at and i == exit_at[0]:
                while fill and fill[0][0] <= i - 2:
                    emit(fill.pop(0)[1])
                assert len(fill) == len(epilogue(i - 1))
                A("s_cmp_ge_u32 s48, 4")
                A(f"s_cbranch_scc1 {exit_at[1]}")
            since = 0
            for w in range(i + 1):
                for e in range(2):
                    T.wait(("B", w))
                    c = vr(V + 4 * e, 4) if w else "0"
                    A(f"v_mfma_f32_16x16x32_bf16 {vr(V+4*e,4)}, {vr(RA+8*(i-w)+4*e,4)}, {vr(RB+4*w,4)}, {c}")
                    since += 1
                    left = 2 * (i + 1) - since
                    due = len([1 for t_, _x in fill if t_ <= i - 2])
                    if i == tiles[-1] or (exit_at and i == exit_at[0] - 1):
                        due = len(fill)
                    for _ in range(2 if due > left else 1):
                        if fill and (fill[0][0] < i - 1 or since >= 6):
                            emit(fill.pop(0)[1])
            ep = epilogue(i)
            if keep and i == keep[0]:
                k = [j for j, x in enumerate(ep) if isinstance(x, str) and x.startswith("v_cvt")][0]
                ep = ep[:k] + [f"v_mov_b32 v{keep[1]}, v{V}", f"v_mov_b32 v{keep[1]+1}, v{V+4}"] + ep[k + 1:]
            fill += [(i, x) for x in ep]
        stampw(A, 10)
        T.done = T.n if Ctx.stamps else T.done
        return [x for _, x in fill]

    A("s_cmp_ge_u32 s48, 6")
    A("s_cbranch_scc1 L_second")
    for x in stream(range(16), (12, "L_first")):
        emit(x)
    A("s_branch L_cdone")
    A.label("L_first")
    A("s_waitcnt lgkmcnt(0)")
    A("s_nop 6")
    T.done = T.n
    stampw(A, 10)
    for x in epilogue(11):
        emit(x)
    A("s_and_b32 s52, s48, 1")
    A("s_lshl_b32 s52, s52, 9")
    A(f"s_add_u32 s52, s52, {B_MB}")
    A("v_lshl_add_u32 v10, v1, 2, s52")
    A(f"ds_write_b32 v10, v{PUL[1]}")
    A("s_add_u32 s52, s52, 256")
    lds_arrive(A, 10, "s52")
    A("s_branch L_cdone")
    A.label("L_second")
    T.done = T.n
    last = stream(range(12, 16), keep=(12, 4))
    for x in last[:-1]:
        emit(x)
    A("s_and_b32 s52, s48, 1")
    A("s_lshl_b32 s52, s52, 9")
    A(f"s_add_u32 s52, s52, {B_MB}")
    A("v_lshl_add_u32 v12, v1, 2, s52")
    A("s_add_u32 s52, s52, 256")
    lds_wait(A, 10, "s52", 1, sleep=2)
    A(f"ds_read_b32 v{TMP}, v12")
    A("s_waitcnt lgkmcnt(0)")
    A(f"v_cndmask_b32 v{TMP}, 0, v{TMP}, s[58:59]")
    A(f"v_add_f32 v4, v4, v{TMP}")
    A(f"v_cvt_pk_bf16_f32 v{OUT[1]}, v4, v5")
    A(last[-1])
    A.label("L_cdone")
    A("s_waitcnt vmcnt(0)")
    stamp(A, 11)
    A("s_cmp_ge_u32 s99, 24")
    A("s_cbranch_scc1 L_bdone")
    A(f"v_mov_b32 v10, {L_SYNC+12}")
    A("v_mov_b32 v11, 1")
    A("s_mov_b64 exec, 1")
    A("ds_add_rtn_u32 v12, v10, v11")
    A("s_mov_b64 exec, -1")
    A("s_lshl_b32 s52, s98, 4")
    A("s_add_u32 s52, s52, s99")
    A("s_lshl_b32 s52, s52, 7")
    A(f"s_add_u32 s52, s52, {F4+8*128:#x}")
    A("s_waitcnt lgkmcnt(0)")
    A("v_readfirstlane_b32 s53, v12")
    A("s_cmp_eq_u32 s53, 3")
    A("s_cbranch_scc0 L_bend")
    set_flag(A, 10, "s52")
    A("s_branch L_bend")
    A.label("L_bdone")


def role_post(A):
    SQ, SO = 32, 36
    A.label("L_post")
    A("s_setprio 0")
    A("s_and_b32 s48, s48, 3")
    if Opt.p3:
        A("s_mul_i32 s50, s99, 3")
        A("s_sub_u32 s50, s50, 73")
        A("s_lshl_b32 s51, s99, 2")
        A("s_add_u32 s51, s51, 8")
    else:
        A("s_sub_u32 s50, s99, 24")
        A("s_lshl_b32 s50, s50, 2")
        A("s_lshl_b32 s51, s99, 1")
        A("s_add_u32 s51, s51, 24")
    A("s_cmp_ge_u32 s99, 24")
    A("s_cselect_b32 s50, s50, s51")
    A("s_mul_i32 s49, s98, 40")
    A("s_add_u32 s49, s49, s50")
    A("s_add_u32 s49, s49, s48")
    A("s_and_b32 s50, s49, 31")
    A("s_lshr_b32 s51, s49, 5")
    A("v_lshrrev_b32 v2, 3, v1")
    A("v_and_b32 v3, 7, v1")
    A(f"v_mul_u32_u24 v4, {Opt.pit}, v2")
    A("v_lshl_add_u32 v4, v3, 4, v4")
    A(f"s_mul_i32 s52, s51, {64*Opt.pit}")
    A("s_lshl_b32 s53, s50, 7")
    A("s_add_u32 s52, s52, s53")
    A(f"s_add_u32 s52, s52, {WS_YT:#x}")
    A("s_mul_i32 s56, s48, 8320")
    A(f"s_add_u32 s56, s56, {B_PRE}")
    A("s_lshr_b32 s54, s50, 3")
    A("s_lshl_b32 s54, s54, 9")
    A("s_bfe_u32 s55, s50, 0x20001")
    A("s_lshl_b32 s55, s55, 3")
    A("s_add_u32 s54, s54, s55")
    A("s_and_b32 s55, s50, 1")
    A("s_lshl_b32 s55, s55, 1")
    A("s_add_u32 s54, s54, s55")
    A("v_and_b32 v5, 3, v2")
    A("v_lshrrev_b32 v6, 2, v2")
    A("v_lshl_add_u32 v5, v5, 5, v6")
    A("v_mul_u32_u24 v6, 1280, v5")
    A("v_lshlrev_b32 v7, 1, v6")
    A("v_lshl_add_u32 v6, v3, 4, v6")
    A("v_lshl_add_u32 v7, v3, 4, v7")
    A("s_mul_i32 s54, s54, 1280")
    A("s_lshl_b32 s53, s51, 7")
    A("s_lshl_b32 s55, s54, 1")
    A("s_add_u32 s54, s54, s53")
    A("s_add_u32 s55, s55, s53")
    A("s_add_u32 s55, s55, 1280")
    srd(A, SQ, S_BQ, NB_X)
    srd(A, SO, S_OUT, NB_OUT)
    QR, YR = 16, 48
    rows = [0, 4, 128, 132, 256, 260, 384, 388]
    for i in range(8):
        A(f"s_add_u32 s57, s54, {rows[i]*1280}")
        A(f"buffer_load_dwordx4 {vr(QR+4*i,4)}, v6, s[{SQ}:{SQ+3}], s57 offen{Opt.ntq}")
    A("s_mov_b32 s59, 0xffff0000")
    QF = 128
    A("s_waitcnt vmcnt(0)")
    for i in range(32):
        A(f"v_lshlrev_b32 v{QF+2*i}, 16, v{QR+i}")
        A(f"v_and_b32 v{QF+2*i+1}, s59, v{QR+i}")
    A("s_lshl_b32 s57, s98, 4")
    A("s_sub_u32 s58, s57, 16")
    A("v_min_u32 v12, 47, v1")
    A("v_add_u32 v12, s58, v12")
    A("v_max_i32 v12, 0, v12")
    A("v_min_u32 v12, 127, v12")
    A("v_lshlrev_b32 v12, 7, v12")
    A("s_add_u32 s57, s57, s99")
    A("s_lshl_b32 s57, s57, 7")
    A(f"s_add_u32 s57, s57, {F4-24*128:#x}")
    A(f"s_mov_b32 s58, {F4:#x}")
    Lx, Lq, Ld = A.newlabel("L_p7"), A.newlabel("L_pq"), A.newlabel("L_pd")
    A("s_cmp_ge_u32 s99, 24")
    A(f"s_cbranch_scc0 {Lq}")
    A("s_barrier")
    A("s_cmp_eq_u32 s48, 3")
    A(f"s_cbranch_scc0 {Lx}")
    set_flag(A, 8, "s57")
    poll(A, 14, 12, "s58", sleep=Opt.f4s)
    A.label(Lx)
    A("s_barrier")
    A(f"s_branch {Ld}")
    A.label(Lq)
    A("s_barrier")
    A("s_cmp_eq_u32 s48, 0")
    A(f"s_cbranch_scc0 {Lx}")
    poll(A, 14, 12, "s58", sleep=Opt.f4s)
    A(f"s_branch {Lx}")
    A.label(Ld)
    if Opt.dB:
        A(f"s_sleep {Opt.dB}")
    stamp(A, 12)
    for i in range(8):
        A(f"v_xor_b32 v8, {16*i}, v4")
        A(f"s_add_u32 m0, s56, {1024*i}")
        A(f"buffer_load_dwordx4 v8, s[{SWS}:{SWS+3}], s52 offen{SC} lds")
        if i < 7:
            A(f"s_add_u32 s52, s52, {8*Opt.pit}")
    A("v_xor_b32 v8, v2, v3")
    A("v_lshlrev_b32 v8, 4, v8")
    A("v_lshl_add_u32 v8, v3, 10, v8")
    A("v_add_u32 v8, s56, v8")
    A("s_waitcnt vmcnt(0)")
    for c in range(8):
        A(f"ds_read_b128 {vr(YR+4*c,4)}, v8 offset:{128*c}")
    A("s_waitcnt lgkmcnt(0)")
    stamp(A, 13)
    YF, OUT = 80, 96
    for i in range(8):
        for c in range(8):
            if i & 1:
                A(f"v_and_b32 v{YF+c}, s59, v{YR+4*c+i//2}")
            else:
                A(f"v_lshlrev_b32 v{YF+c}, 16, v{YR+4*c+i//2}")
        for c in range(0, 8, 2):
            A(f"v_pk_mul_f32 {vr(YF+c,2)}, {vr(YF+c,2)}, {vr(QF+8*i+c,2)}")
        for k in range(4):
            A(f"v_cvt_pk_bf16_f32 v{OUT+4*i+k}, v{YF+2*k}, v{YF+2*k+1}")
        A(f"s_add_u32 s57, s55, {rows[i]*2560}")
        A(f"buffer_store_dwordx4 {vr(OUT+4*i,4)}, v7, s[{SO}:{SO+3}], s57 offen{Opt.oscb}")
    stamp(A, 14)


def build():
    A = Asm()
    k = NAME + "_kernel"
    A.raw(f".globl {k}")
    A.raw(".p2align 8")
    A.raw(f".type {k},@function")
    A.label(k)
    if Opt.hold:
        A("s_memrealtime s[64:65]")
    load_kernargs(A)
    if Opt.lite:
        A("s_memrealtime s[64:65]")
    elif not Opt.hp:
        if Opt.rt:
            for k_ in range(2, 15):
                A(f"s_mov_b32 s{64+2*k_}, 0")
            stamp(A, 0, True)
        else:
            stamp_init(A)
        if Opt.rt:
            stamp(A, 1)
    A("v_lshrrev_b32 v2, 6, v0")
    A("v_and_b32 v1, 63, v0")
    A("v_readfirstlane_b32 s100, v2")
    A("s_and_b32 s98, s2, 7")
    A("s_lshr_b32 s99, s2, 3")
    A("s_cmp_ge_u32 s2, 192")
    A("s_cbranch_scc1 L_b")
    A("s_and_b32 s49, s2, 3")
    A("s_lshl_b32 s49, s49, 2")
    A("s_and_b32 s50, s99, 3")
    A("s_add_u32 s49, s49, s50")
    A("s_bfe_u32 s52, s2, 0x10002")
    A("s_lshr_b32 s53, s2, 5")
    A("s_lshl_b32 s54, s52, 1")
    A("s_add_u32 s54, s54, s53")
    A("s_lshl_b32 s55, s52, 2")
    A("s_add_u32 s55, s55, s53")
    A("s_sub_u32 s55, s55, 2")
    A("s_cmp_lt_u32 s2, 64")
    A("s_cselect_b32 s50, s54, s55")
    A("s_cselect_b32 s51, 1, 0")
    A("s_and_b32 s48, s100, 3")
    A("s_cmp_ge_u32 s100, 4")
    A("s_cbranch_scc1 L_c")
    role_loader(A)
    A.label("L_c")
    role_compute(A)
    A.label("L_b")
    A("s_cmp_ge_u32 s2, 256")
    A("s_cbranch_scc1 L_exit")
    A("s_mov_b32 s48, s100")
    A("s_cmp_ge_u32 s48, 5")
    A("s_cbranch_scc1 L_help")
    role_pre(A)
    A("s_branch L_bconv")
    A.label("L_help")
    role_helper(A)
    A.label("L_bconv")
    role_conv(A)
    A(f"s_cmp_lt_u32 s48, {5 if Opt.p3 else 4}")
    A("s_cbranch_scc1 L_bend")
    role_post(A)
    A.label("L_bend")
    end_wave(A, "b")
    A.label("L_exit")
    A("s_endpgm")
    A.label("L_code_end")
    head = [
        "; Hedgehog linear attention (cols 0..639) + H3 long convolution (cols 640..1279), one persistent launch.",
        "; Written with the generator script gen/f21.py (hand-scheduled instruction lists, own wait-state pass).",
        "; kernarg (s[0:1]): x, wqkv, w_phi, wo, q, k, v, shift_k, ssm_k, ssm_D, out, debug, ws (8 bytes each).",
        "; 256 workgroups x 8 waves, one per CU; wg = 8 i + x:",
        ";   i 0..7   Q : 128x160 tile of x@Wq -> pq (bf16) ; then 4 conv channels ; i<4 also a wo tile, i>=4 gate tiles",
        ";   i 8..23  KV: 128x160 tile of x@[Wk|Wv] -> softmax features -> partial phi_k^T [v 1] ; o = num/den ; wo tile",
        ";   i 24..31 B : shift conv * v (transposed), wo in fragment order, 6 conv channels, gate tiles",
        "; waves 0..3 of Q/KV stream operands (LDS DMA), waves 4..7 compute.  Hand-offs between workgroups go through",
        "; d_ws with write-through stores and one flag line per producer; flags carry this launch's tag (epoch word + 1,",
        "; published in d_debug).  The long convolution is a polyphase Toeplitz product on the matrix cores.",
        "; @launch grid=(256,1,1) block=(512,1,1) lds=163840"]
    txt = "\n".join(head) + '\n.amdgcn_target "amdgcn-amd-amdhsa--gfx950"\n.text\n' + A.text()
    txt += f'''.section .rodata,"a"
.p2align 6
.amdhsa_kernel {k}
  .amdhsa_next_free_vgpr 256
  .amdhsa_next_free_sgpr 102
  .amdhsa_accum_offset 256
  .amdhsa_group_segment_fixed_size 0
  .amdhsa_kernarg_size 104
  .amdhsa_user_sgpr_count 2
  .amdhsa_user_sgpr_kernarg_segment_ptr 1
  .amdhsa_system_sgpr_workgroup_id_x 1
.end_amdhsa_kernel
'''
    return txt


if __name__ == "__main__":
    args = sys.argv[2:]
    Ctx.stamps = "stamps" in args
    Opt.rot = "norot" not in args
    Opt.codepf = "nocodepf" not in args
    for a in args:
        if a.startswith("probe="):
            Opt.probe = tuple(int(x) for x in a[6:].split(","))
        if a.startswith("holdwg="):
            Opt.holdwg = int(a[7:])
        if a.startswith("osc="):
            Opt.osc = a[4:].replace("_", " ")
        if a.startswith("oscb="):
            Opt.oscb = a[5:].replace("_", " ")
        if a.startswith("gpf="):
            Opt.gpf = int(a[4:])
        if a.startswith("gpfd="):
            Opt.gpfd = int(a[5:])
        if a.startswith("rotA="):
            Opt.rotA = int(a[5:], 16)
        if a.startswith("rotB="):
            Opt.rotB = int(a[5:], 16)
        if a == "fake16":
            Opt.fake16 = True
        if a.startswith("qdelay="):
            Opt.qdelay = int(a[7:])
        if a.startswith("bpos="):
            Opt.bpos = int(a[5:])
        if a == "lidle":
            Opt.lidle = True
        if a == "qwait":
            Opt.qwait = True
        if a == "nofwarm":
            Opt.fwarm = False
        if a == "noprog":
            Opt.prog = False
        if a == "dflag":
            Opt.dflag = True
        if a == "lite":
            Opt.lite = True
            Ctx.stamps = True
        if a.startswith("wos="):
            Opt.wos = int(a[4:])
        if a.startswith("R="):
            Opt.R = int(a[2:])
        if a.startswith("hdef="):
            Opt.hdef = int(a[5:])
        if a.startswith("gpf2="):
            Opt.gpf2 = int(a[5:])
        if a.startswith("oahead="):
            Opt.oahead = int(a[7:])
        if a.startswith("hpsel="):
            Opt.hpsel = a[6:]
        if a.startswith("bdelay="):
            Opt.bdelay = int(a[7:])
        if a.startswith("qdel="):
            Opt.qdel = int(a[5:])
        if a == "snake":
            Opt.snake = True
        if a == "wrot":
            Opt.wrot = True
        if a.startswith("wfirst="):
            Opt.wfirst = int(a[7:])
        if a.startswith("wearly="):
            Opt.wearly = int(a[7:])
        if a.startswith("fwat="):
            Opt.fwat = int(a[5:])
        if a.startswith("only="):
            Opt.only = [0, 1, 15] + [int(x) for x in a[5:].split(",")]
        if a.startswith("touch="):
            Opt.touch = int(a[6:])
        if a.startswith("tsh="):
            Opt.tsh = int(a[4:])
        for nm in ("ldw", "ldo", "ldp", "stw", "ntk", "nth", "ntq"):
            if a.startswith(nm + "="):
                setattr(Opt, nm, a[4:].replace("_", " "))
        if a.startswith("wback="):
            Opt.wback = int(a[6:])
        if a.startswith("wthr="):
            Opt.wthr = int(a[5:])
        if a.startswith("wstr="):
            Opt.wstr = int(a[5:])
        if a == "fullout":
            Opt.fullout = True
        if a == "noearly":
            Opt.noearly = True
        if a.startswith("lprio="):
            Opt.lprio = int(a[6:])
        if a.startswith("lprio0="):
            Opt.lprio0 = int(a[7:])
        if a.startswith("wmid="):
            Opt.wmid = int(a[5:])
        if a.startswith("pfw="):
            Opt.pfw = [int(c) for c in a[4:]]
            Opt.gpf2 = 0
        if a.startswith("pfx="):
            Opt.pfx = [int(c) for c in a[4:]]
            Opt.gpf2 = 0
        if a.startswith("pfm="):
            Opt.pfm = [int(c, 16) for c in a[4:]]
        if a.startswith("wbf="):
            Opt.wbf = int(a[4:])
        if a.startswith("qlate="):
            Opt.qlate = int(a[6:])
        if a.startswith("wpk="):
            Opt.wpk = int(a[4:])
        for nm in ("f0s", "tgs", "f2s", "f4s", "tagl", "pit", "p3", "pqsync", "qpipe", "lag", "f2all", "f1all", "fww", "lws", "hq", "jit", "jitp", "mdelay", "oa", "oe"):
            if a.startswith(nm + "="):
                setattr(Opt, nm, int(a.split("=")[1]))
        if a.startswith("bwarm="):
            Opt.bwarm = int(a[6:])
        if a.startswith("pft="):
            v_ = a[4:]
            Opt.pft = [(int(v_[i]), v_[i + 1]) for i in range(0, len(v_), 2)]
            Opt.gpf2 = 0
        if a.startswith("par="):
            Opt.par = int(a[4:], 16)
        if a.startswith("obar="):
            Opt.obar = [int(x) for x in a[5:].split(",")]
        if a == "rt":
            Opt.rt = True
        if a.startswith("hp="):
            Opt.hp = int(a[3:])
            Ctx.stamps = True
        if a.startswith("hold="):
            Opt.hold = int(a[5:])
        if a.startswith("dA="):
            Opt.dA = int(a[3:])
        if a.startswith("dB="):
            Opt.dB = int(a[3:])
        if a == "nowomall":
            Opt.womall = False
        if a == "noppoll":
            Opt.ppoll = False
        if a.startswith("psleep="):
            Opt.psleep = int(a[7:])
        if a.startswith("wopf="):
            Opt.wopf = a[5:]
    for a in args:
        if a.startswith("LA="):
            Opt.LA = int(a[3:])
    open(sys.argv[1], "w").write(build())
```

```python
import sys
from asm import Asm, vr, ar, sr
from roles import (WS_PHIQ, WS_PART, WS_O, WS_KVT, WS_YT, WS_STAMP, WS_SIZE, S_X, S_W, S_WPHI, S_WO, S_BQ, S_BK, S_BV,
                   S_SH, S_SSK, S_SSD, S_OUT, S_DBG, S_WS, NB_X, NB_W, NB_WPHI, NB_WO, NB_SH, NB_SSK, NB_OUT, LOG2E,
                   Ctx, load_kernargs, srd, stamp, stamp_init, softmax20)

NAME = "concat_heads__linear_kernel_hedgehog__ssm_conv_h3__prompt"
WS_PQ = WS_PHIQ
WS_PART, WS_O, WS_KVT, WS_YT = 0x380000, 0x4C0000, 0x740000, 0xA40000
WS_FLAG = 0xF00000
F1, F2, F3, F0, F4 = (WS_FLAG + 128 * o for o in (0, 512, 1024, 1536, 1856))
FW = WS_FLAG + 128 * 2048
WS_WOT = 0x280000
WS_EPOCH = WS_FLAG + 128 * 2560 + 64
SWS = 44
SC = " sc1"
TAG = 30
SLOT = 36864
L_WP = 147456
L_Z = L_WP + 8192
L_SYNC = L_Z + 4096
L_V = 128 * 336
L_WOB = 69632
L_OT = 65536
CV_LDS = 8768
L_QCV = 3 * SLOT
B_PRE = 8 * CV_LDS
B_MB = B_PRE + 5 * 8320


class Opt:
    rot = True
    LA = 2
    ntk = ""
    nth = " nt"
    ntq = " nt"
    codepf = True
    wopf = "no"
    osc = " sc1 nt"
    oscb = " sc1 nt"
    hp = 0
    gate = 0
    al = 1
    alr = 3
    wdel = 0
    dlt = 0
    rot4 = 0
    oa = 10
    oe = 1
    obar = [0, 8, 16, 32, 48, 64]
    jit = 0
    jitp = 8
    mdelay = 0
    hq = 1
    lws = 0
    fww = 0
    f2all = 0
    f1all = 0
    lag = 0
    qpipe = 0
    pft = []
    npft = 0
    pqsync = 0
    p3 = 1
    pit = 4352
    bwarm = 2
    f0s = 4
    tgs = 8
    f2s = 4
    f4s = 4
    tagl = 0
    wpk = 22
    qlate = 1
    wbf = 6
    pfm = [2, 7, 15]
    pfw = []
    pfx = []
    wmid = 32
    lprio = 0
    lprio0 = 1
    stw = SC
    noearly = False
    fullout = True
    wthr = 0
    wstr = 40960
    wback = 0
    ldw = SC
    ldo = SC
    ldp = SC
    touch = 0
    tsh = 20
    only = None
    fwat = 9
    par = 0x32
    wearly = 0
    wrot = False
    wfirst = 26
    bdelay = 0
    qdel = 0
    snake = False
    hpsel = "kv"
    oahead = 5
    gpf2 = 3
    hdef = 1
    R = 10
    wos = 1
    lite = False
    dflag = False
    prog = True
    fwarm = True
    qwait = False
    lidle = False
    bpos = 4
    fake16 = False
    qdelay = 0
    rotA = 0x5050
    rotB = 0x550050
    gpf = 0
    gpfd = 99
    rt = False
    ppoll = False
    womall = True
    probe = None
    dA = 0
    hold = 0
    holdwg = -1
    dB = 0
    psleep = 2


_stamp0 = stamp


_site = [0]


def stamp(A, k, real=False):
    if Opt.jit:
        _site[0] += 1
        L = A.newlabel("L_jit")
        A("s_lshl_b32 s101, s2, 3")
        A("s_add_u32 s101, s101, s100")
        A(f"s_add_u32 s101, s101, {(_site[0] * 7919 + Opt.jit * 104729) & 0xffffff}")
        A("s_mul_i32 s101, s101, 0x9e3779b1")
        A(f"s_cmp_lt_u32 s101, {0x100000000 // Opt.jitp:#x}")
        A(f"s_cbranch_scc0 {L}")
        A("s_sleep 100")
        A.label(L)
        return
    if Opt.hp:
        if k == Opt.hp:
            A("s_memrealtime s[64:65]")
        return
    if Opt.lite and k not in (0, 15):
        return
    if Opt.only and k not in Opt.only:
        return
    _stamp0(A, k, real or Opt.rt)


def end_wave(A, holdable=False):
    if Opt.hp:
        if (holdable is True and Opt.hpsel in ("kv", "qw")) or (holdable == "b" and Opt.hpsel in ("b", "qs")):
            L = A.newlabel("L_hp")
            A("s_cmp_lt_u32 s99, 8")
            A("s_cbranch_scc1 L_exit" if Opt.hpsel in ("kv", "b") else "s_cbranch_scc0 L_exit")
            if holdable == "b":
                A("s_cmp_lt_u32 s100, 4")
                A("s_cbranch_scc1 L_exit")
            A.label(L)
            A("s_sleep 4")
            A("s_memrealtime s[66:67]")
            A("s_waitcnt lgkmcnt(0)")
            A("s_sub_u32 s66, s66, s64")
            A("s_cmp_lt_u32 s66, 2000")
            A(f"s_cbranch_scc1 {L}")
    elif Ctx.stamps:
        A("s_waitcnt vmcnt(0)")
        stamp(A, 15, True)
        A("s_waitcnt lgkmcnt(0)")
        A("s_mov_b64 exec, -1")
        A("v_mov_b32 v2, 0")
        for k in ((0, 15) if Opt.lite else range(16)):
            A(f"v_writelane_b32 v2, s{64+2*k}, {k}")
        A("s_lshl_b32 s62, s2, 3")
        A("s_add_u32 s62, s62, s100")
        A("s_lshl_b32 s62, s62, 6")
        A(f"s_add_u32 s62, s62, {WS_STAMP:#x}")
        A("v_lshlrev_b32 v1, 2, v1")
        A("s_mov_b64 exec, 0xffff")
        A(f"buffer_store_dword v2, v1, s[{SWS}:{SWS+3}], s62 offen sc1")
        if Opt.probe:
            Lp = A.newlabel("L_probe")
            A(f"s_cmp_eq_u32 s2, {Opt.probe[0]}")
            A(f"s_cbranch_scc0 {Lp}")
            A(f"s_cmp_eq_u32 s100, {Opt.probe[1]}")
            A(f"s_cbranch_scc0 {Lp}")
            A("v_subrev_u32 v3, s66, v2")
            A("s_sub_u32 s62, s94, s64")
            A("v_writelane_b32 v3, s62, 15")
            A("v_cmp_ne_u32 vcc, 0, v2")
            A("v_cndmask_b32 v3, 0, v3, vcc")
            A("s_mov_b64 exec, 0xfffc")
            A(f"global_store_dword v1, v3, s[{S_DBG}:{S_DBG+1}]")
            A.label(Lp)
    A("s_endpgm")


def stampw(A, k):
    stamp(A, k)
    if Ctx.stamps:
        A("s_waitcnt lgkmcnt(0)")


def poll(A, vt, voff, soff, sleep=1):
    L, Ld = A.newlabel("L_poll"), A.newlabel("L_polld")
    A("s_mov_b32 s101, 0x10000")
    A.label(L)
    A(f"buffer_load_dwordx2 {vr(vt,2)}, v{voff}, s[{SWS}:{SWS+3}], {soff} offen{SC}")
    A("s_waitcnt vmcnt(0)")
    A(f"v_cmp_eq_u64 vcc, s[{TAG}:{TAG+1}], {vr(vt,2)}")
    A("s_cmp_eq_u64 vcc, -1")
    A(f"s_cbranch_scc1 {Ld}")
    A(f"s_sleep {sleep}")
    A("s_sub_u32 s101, s101, 1")
    A("s_cmp_eq_u32 s101, 0")
    A(f"s_cbranch_scc0 {L}")
    A("s_endpgm")
    A.label(Ld)


def ppoll(A, vt, voff, soff, sleep=1, depth=4):
    if not Opt.ppoll:
        return poll(A, vt, voff, soff, sleep=sleep)
    L, Ld = A.newlabel("L_pp"), A.newlabel("L_ppd")
    ld = lambda k: f"buffer_load_dwordx2 {vr(vt+2*k,2)}, v{voff}, s[{SWS}:{SWS+3}], {soff} offen{SC}"
    A("s_mov_b32 s101, 0x10000")
    for k in range(depth - 1):
        A(ld(k))
        A(f"s_sleep {sleep}")
    A.label(L)
    for k in range(depth):
        A(ld((k + depth - 1) % depth))
        A(f"s_waitcnt vmcnt({depth-1})")
        A(f"v_cmp_eq_u64 vcc, s[{TAG}:{TAG+1}], {vr(vt+2*k,2)}")
        A("s_cmp_eq_u64 vcc, -1")
        A(f"s_cbranch_scc1 {Ld}")
        A(f"s_sleep {sleep}")
    A("s_sub_u32 s101, s101, 1")
    A("s_cmp_eq_u32 s101, 0")
    A(f"s_cbranch_scc0 {L}")
    A("s_endpgm")
    A.label(Ld)


def set_flag(A, vt, soff):
    A(f"v_mov_b32 v{vt}, s{TAG}")
    A(f"v_mov_b32 v{vt+1}, s{TAG+1}")
    A(f"v_lshlrev_b32 v{vt+2}, 3, v1")
    A("s_waitcnt vmcnt(0)")
    A("s_mov_b64 exec, 0xffff")
    A(f"buffer_store_dwordx2 {vr(vt,2)}, v{vt+2}, s[{SWS}:{SWS+3}], {soff} offen{SC}")
    A("s_mov_b64 exec, -1")


def tag_issue(A):
    A(f"s_load_dwordx2 s[{TAG}:{TAG+1}], s[{S_DBG}:{S_DBG+1}], 0")


def tag_check(A, vt):
    L, Ld = A.newlabel("L_hs"), A.newlabel("L_hsd")
    A("s_waitcnt lgkmcnt(0)")
    A(f"s_cmp_lg_u32 s{TAG}, s{TAG+1}")
    A(f"s_cbranch_scc1 {Ld}")
    A("s_mov_b32 s101, 0x10000")
    A(f"v_mov_b32 v{vt+2}, 0")
    A.label(L)
    A(f"global_load_dwordx2 {vr(vt,2)}, v{vt+2}, s[{S_DBG}:{S_DBG+1}]{SC}")
    A("s_waitcnt vmcnt(0)")
    A(f"v_readfirstlane_b32 s{TAG}, v{vt}")
    A(f"v_readfirstlane_b32 s{TAG+1}, v{vt+1}")
    A("s_nop 3")
    A(f"s_cmp_lg_u32 s{TAG}, s{TAG+1}")
    A(f"s_cbranch_scc1 {Ld}")
    A(f"s_sleep {Opt.tgs}")
    A("s_sub_u32 s101, s101, 1")
    A("s_cmp_eq_u32 s101, 0")
    A(f"s_cbranch_scc0 {L}")
    A("s_endpgm")
    A.label(Ld)


def lds_arrive(A, vt, addr):
    A(f"v_mov_b32 v{vt}, {addr}")
    A(f"v_mov_b32 v{vt+1}, 1")
    A("s_waitcnt lgkmcnt(0)")
    A("s_mov_b64 exec, 1")
    A(f"ds_add_u32 v{vt}, v{vt+1}")
    A("s_mov_b64 exec, -1")


def lds_wait(A, vt, addr, n, sleep=0):
    L, Ld = A.newlabel("L_lw"), A.newlabel("L_lwd")
    if addr is not None:
        A(f"v_mov_b32 v{vt}, {addr}")
    A("s_mov_b32 s101, 0x200000")
    A.label(L)
    A(f"ds_read_b32 v{vt+1}, v{vt}")
    A("s_waitcnt lgkmcnt(0)")
    A(f"v_cmp_le_u32 vcc, {n}, v{vt+1}")
    A(f"s_cbranch_vccnz {Ld}")
    if max(sleep, Opt.lws):
        A(f"s_sleep {max(sleep, Opt.lws)}")
    A("s_sub_u32 s101, s101, 1")
    A("s_cmp_eq_u32 s101, 0")
    A(f"s_cbranch_scc0 {L}")
    A("s_endpgm")
    A.label(Ld)


class Lgkm:
    def __init__(self, A):
        self.A, self.n, self.done, self.tag = A, 0, 0, {}

    def issue(self, text, tag=None):
        self.A(text)
        self.n += 1
        if tag is not None:
            self.tag[tag] = self.n

    def wait(self, *tags):
        need = max(self.tag[t] for t in tags)
        if need > self.done:
            self.A(f"s_waitcnt lgkmcnt({min(15, self.n - need)})")
            self.done = max(need, self.n - 15)

    def all(self):
        if self.done < self.n:
            self.A("s_waitcnt lgkmcnt(0)")
            self.done = self.n


def softmax_parts(X, E, F, T, PH):
    mx, mn = T, T + 2
    mm = [f"v_max3_f32 v{mx}, v{X}, v{X+1}, v{X+2}", f"v_min3_f32 v{mn}, v{X}, v{X+1}, v{X+2}"]
    for i in range(3, 19, 2):
        mm += [f"v_max3_f32 v{mx}, v{mx}, v{X+i}, v{X+i+1}", f"v_min3_f32 v{mn}, v{mn}, v{X+i}, v{X+i+1}"]
    mm += [f"v_max_f32 v{mx}, v{mx}, v{X+19}", f"v_min_f32 v{mn}, v{mn}, v{X+19}",
           f"v_mul_f32 v{mx}, s60, v{mx}", f"v_mul_f32 v{mn}, s60, v{mn}"]
    fm, ex = [], []
    for i in range(0, 20, 2):
        fm.append(f"v_pk_fma_f32 {vr(E+i,2)}, {vr(X+i,2)}, s[60:61], {vr(mx,2)} op_sel_hi:[1,1,0] neg_lo:[0,0,1] neg_hi:[0,0,1]")
        fm.append(f"v_pk_fma_f32 {vr(F+i,2)}, {vr(X+i,2)}, s[60:61], {vr(mn,2)} op_sel_hi:[1,1,0] neg_lo:[1,0,0] neg_hi:[1,0,0]")
    for i in range(20):
        ex += [f"v_exp_f32 v{E+i}, v{E+i}", f"v_exp_f32 v{F+i}, v{F+i}"]
    se, sf = T + 4, T + 6
    sm = [f"v_pk_add_f32 {vr(se,2)}, {vr(E,2)}, {vr(E+2,2)}", f"v_pk_add_f32 {vr(sf,2)}, {vr(F,2)}, {vr(F+2,2)}"]
    for i in range(4, 20, 2):
        sm += [f"v_pk_add_f32 {vr(se,2)}, {vr(se,2)}, {vr(E+i,2)}", f"v_pk_add_f32 {vr(sf,2)}, {vr(sf,2)}, {vr(F+i,2)}"]
    fin = [f"v_add_f32 v{se}, v{se}, v{se+1}", f"v_add_f32 v{sf}, v{sf}, v{sf+1}",
           f"v_rcp_f32 v{se}, v{se}", f"v_rcp_f32 v{sf}, v{sf}"]
    tail = []
    for j in range(20):
        R, s_ = (E + 2 * j, se) if j < 10 else (F + 2 * (j - 10), sf)
        tail.append((f"v_pk_mul_f32 {vr(R,2)}, {vr(R,2)}, {vr(s_,2)} op_sel_hi:[1,0]", f"v_cvt_pk_bf16_f32 v{PH+j}, v{R}, v{R+1}"))
    return mm, fm, ex, sm, fin, tail


def merge(main, extra, every, start=0):
    out, extra = [], list(extra)
    for i, x in enumerate(main):
        out.append(x)
        if extra and i >= start and (i - start) % every == every - 1:
            out.append(extra.pop(0))
    return out + extra


def touch(A, v, sd, shift):
    A(f"v_lshlrev_b32 v{v}, {shift}, v1")
    A(f"buffer_load_dword v{v+1}, v{v}, s[{SWS}:{SWS+3}], 0 offen")
    srd(A, sd, S_OUT, NB_OUT)
    A(f"buffer_load_dword v{v+2}, v{v}, s[{sd}:{sd+3}], 0 offen")


def o_index(A):
    A("s_sub_u32 s63, s99, 8")
    A("s_lshr_b32 s62, s63, 2")
    A("s_lshl_b32 s3, s98, 2")
    A("s_add_u32 s62, s62, s3")
    A("s_and_b32 s63, s63, 3")
    A("s_lshl_b32 s63, s63, 2")
    A("s_add_u32 s63, s63, s48")


WR = 64


def wo_index(A):
    A("s_lshr_b32 s50, s99, 2")
    A("s_sub_u32 s50, s50, 1")
    A("s_max_i32 s50, s50, 0")
    A("s_lshl_b32 s50, s50, 2")
    A("s_add_u32 s50, s50, s48")
    A("s_lshl_b32 s52, s50, 6")
    A(f"s_mul_i32 s51, s50, {Opt.wstr}")
    A(f"s_add_u32 s51, s51, {WS_WOT:#x}")
    A("s_lshl_b32 s54, s50, 10")
    A(f"s_add_u32 s54, s54, {FW:#x}")
    A("v_lshlrev_b32 v18, 4, v1")


def wload(A, f0, f1):
    for f in range(f0, f1):
        if Opt.wthr and f >= Opt.wbf:
            A(f"s_waitcnt vmcnt({Opt.wthr-1})")
        if Opt.only and f in (14, 22, 30, 38):
            stamp(A, {14: 2, 22: 3, 30: 4, 38: 5}[f])
        if f % 4 == 0 or f == f0:
            A(f"s_add_u32 s53, s51, {4096*(f//4)}")
        A(f"buffer_load_dwordx4 {vr(WR+4*f,4)}, v18, s[{SWS}:{SWS+3}], s53 offen offset:{1024*(f&3)}{Opt.ldw}")


def role_loader(A):
    SX, SW, SP = 32, 36, 40
    VX, VW = 24, 28
    t0, t1, t2, t3 = 11, 12, 13, 14
    A(f"s_setprio {Opt.lprio0}")
    A(f"v_lshrrev_b32 v{t0}, 3, v1")
    A(f"v_mul_u32_u24 v{t0}, 1280, v{t0}")
    A(f"v_lshrrev_b32 v{t1}, 4, v1")
    A(f"v_and_b32 v{t2}, 7, v1")
    A(f"v_xor_b32 v{t1}, v{t1}, v{t2}")
    A(f"v_xor_b32 v{t2}, 4, v{t1}")
    A(f"v_lshl_add_u32 v{VX}, v{t1}, 4, v{t0}")
    A(f"v_lshl_add_u32 v{VX+1}, v{t2}, 4, v{t0}")
    A(f"v_add_u32 v{VX+2}, {2*(8*1280-1024)}, v{VX}")
    A(f"v_add_u32 v{VX+3}, {3*(8*1280-1024)}, v{VX+1}")
    A(f"v_add_u32 v{VX+1}, {8*1280-1024}, v{VX+1}")
    A("s_lshl_b32 s60, s49, 2")
    A("s_add_u32 s60, s60, s48")
    A(f"s_mul_i32 s60, s60, {32*1280}")
    if Opt.dlt:
        A("s_lshr_b32 s30, s99, 2")
        A(f"s_lshr_b32 s30, {Opt.par:#x}, s30")
        A("s_xor_b32 s30, s30, s49")
        A("s_and_b32 s30, s30, 1")
        A("s_mul_i32 s30, s30, 5")
        A("s_lshl_b32 s31, s98, 2")
        A(f"s_lshr_b32 s31, {Opt.dlt:#x}, s31")
        A("s_and_b32 s31, s31, 7")
        A("s_add_u32 s30, s30, s31")
        A("s_lshl_b32 s31, s30, 7")
        A("s_add_u32 s60, s60, s31")
        A("s_mov_b32 s3, s30")
    elif Opt.rot4:
        A("s_lshl_b32 s30, s49, 2")
        A("s_and_b32 s30, s30, 15")
        A(f"s_lshr_b32 s30, {Opt.rotA:#x}, s30")
        A("s_and_b32 s30, s30, 15")
        A("s_and_b32 s31, s99, 28")
        A(f"s_lshr_b32 s31, {Opt.rotB:#x}, s31")
        A("s_and_b32 s31, s31, 15")
        A("s_add_u32 s30, s30, s31")
        A("s_sub_u32 s31, s30, 10")
        A("s_cmp_ge_u32 s30, 10")
        A("s_cselect_b32 s30, s31, s30")
        A("s_lshl_b32 s31, s30, 7")
        A("s_add_u32 s60, s60, s31")
        A("s_mov_b32 s3, s30")
    else:
        A("s_lshr_b32 s30, s99, 2")
        A(f"s_lshr_b32 s30, {Opt.par:#x}, s30")
        A("s_xor_b32 s30, s30, s49")
        A("s_and_b32 s30, s30, 1")
        A("s_mul_i32 s31, s30, 640")
        A("s_add_u32 s60, s60, s31")
    A("s_lshl_b32 s62, s48, 12")
    A("s_mov_b32 m0, s62")
    A(f"s_mov_b32 s{SX+2}, {NB_X:#x}")
    A(f"s_mov_b32 s{SX+3}, 0x20000")
    A("s_waitcnt lgkmcnt(0)")
    A(f"s_mov_b64 s[{SX}:{SX+1}], s[{S_X}:{S_X+1}]")

    def dma_x(s):
        if s:
            A(f"s_add_u32 m0, s62, {(s % 3) * SLOT}")
        for i in range(4):
            A(f"buffer_load_dwordx4 v{VX+i}, s[{SX}:{SX+3}], s60 offen offset:{1024*i} lds")

    def dma_w(s):
        sl = (s % 3) * SLOT
        A(f"s_add_u32 m0, s63, {sl}")
        for i in range(4):
            A(f"buffer_load_dwordx4 v{VW+i}, s[{SW}:{SW+3}], s61 offen offset:{1024*i} lds")
        A(f"s_add_u32 m0, s63, {sl+4096}")
        A(f"buffer_load_dwordx4 v{VW+4}, s[{SW}:{SW+3}], s61 offen lds")
        if s < 9:
            if Opt.rot4:
                A(f"s_cmp_eq_u32 s3, {9-s}")
                A(f"s_cselect_b32 s96, {10*64*3840}, 0")
                A("s_cselect_b32 s97, 1280, 0")
                A("s_sub_u32 s60, s60, s97")
                A("s_sub_u32 s61, s61, s96")
                A("s_add_u32 s60, s60, 128")
                A(f"s_add_u32 s61, s61, {64*3840}")
            elif s == 4:
                A("s_add_u32 s60, s60, s97")
                A("s_add_u32 s61, s61, s96")
            else:
                A("s_add_u32 s60, s60, 128")
                A(f"s_add_u32 s61, s61, {64*3840}")

    dma_x(0)
    A("s_cmp_eq_u32 s51, 0")
    A("s_cselect_b32 s56, 1120, 0")
    A("s_add_u32 s58, s51, 1")
    A(f"v_xor_b32 v15, s58, v1")
    A(f"v_cmp_gt_u32 vcc, 32, v1")
    A("s_movk_i32 s57, 3520")
    A(f"v_cndmask_b32 v16, v15, v1, vcc")
    for i in range(5):
        src = (1, 1, 16, 15, 15)[i]
        A(f"v_add_u32 v{t2}, {64*i}, v{src}")
        A(f"v_mul_u32_u24 v{t2}, 6554, v{t2}")
        A(f"v_lshlrev_b32 v{t3}, 4, v{src}")
        A(f"v_lshrrev_b32 v{t0}, 17, v{t2}")
        A(f"v_bfe_u32 v{t1}, v{t2}, 16, 1")
        A(f"v_mad_u32_u24 v{t0}, v{t0}, s57, v{t3}")
        A(f"v_mad_u32_u24 v{VW+i}, v{t1}, s56, v{t0}")
    A(f"v_lshlrev_b32 v{t3}, 4, v1")
    A(f"v_add_u32 v{VW+4}, 4096, v{VW+4}")
    A(f"s_mul_i32 s61, s48, {16*3840}")
    A("s_mul_i32 s57, s50, 160")
    A("s_add_u32 s58, s57, 1280")
    A("s_lshl_b32 s57, s57, 1")
    A("s_cmp_eq_u32 s51, 0")
    A("s_cselect_b32 s57, s58, s57")
    A("s_add_u32 s61, s61, s57")
    A(f"s_mul_i32 s96, s30, {(1 if Opt.rot4 else 5)*64*3840}")
    A("s_add_u32 s61, s61, s96")
    A("s_mul_i32 s63, s48, 5120")
    A("s_add_u32 s63, s63, 16384")
    srd(A, SW, S_W, NB_W)
    dma_w(0)
    stamp(A, 2)
    A("s_lshl_b32 s96, s96, 1")
    A(f"s_sub_u32 s96, {64*3840}, s96")
    A("s_lshl_b32 s97, s31, 1")
    A("s_sub_u32 s97, 128, s97")
    A("s_mul_i32 s57, s50, 3200")
    A("s_lshl_b32 s57, s57, s51")
    A("s_lshl_b32 s58, s48, 11")
    A("s_add_u32 s57, s57, s58")
    srd(A, SP, S_WPHI, NB_WPHI)
    A(f"s_add_u32 m0, s58, {L_WP}")
    A(f"buffer_load_dwordx4 v{t3}, s[{SP}:{SP+3}], s57 offen lds")
    A(f"buffer_load_dwordx4 v{t3}, s[{SP}:{SP+3}], s57 offen offset:1024 lds")
    srd(A, SWS, S_WS, WS_SIZE)
    Lh = A.newlabel("L_noh")
    A("s_cmp_eq_u32 s51, 0")
    A(f"s_cbranch_scc1 {Lh}")
    A("s_mul_i32 s49, s98, 80")
    A("s_lshl_b32 s50, s99, 2")
    A("s_add_u32 s49, s49, s50")
    A("s_add_u32 s49, s49, s48")
    A("s_add_u32 s49, s49, 48")
    A(f"s_mul_i32 s56, s48, {CV_LDS}")
    A(f"s_add_u32 s56, s56, {L_QCV}")
    A("s_lshl_b32 s50, s49, 12")
    A.label(Lh)
    assert Opt.LA == 2
    issued = 0
    for s in range(10):
        while issued < min(s + Opt.LA - 1, 9):
            issued += 1
            dma_x(issued)
            dma_w(issued)
        if s == 0:
            Ls = A.newlabel("L_nosetup")
            A("s_cmp_ge_u32 s99, 8")
            A(f"s_cbranch_scc1 {Ls}")
            conv_setup(A)
            f0_lines(A, 49, 49, 12)
            A.label(Ls)
        if s == 6:
            tag_issue(A)
        if s == Opt.fwat:
            Lf = A.newlabel("L_nofw")
            A("s_cmp_lt_u32 s99, 8")
            A(f"s_cbranch_scc1 {Lf}")
            wo_index(A)
            A(f"s_add_u32 s42, s{S_WS}, s54")
            A(f"s_addc_u32 s43, s{S_WS+1}, 0")
            for k in range(8):
                A(f"s_load_dwordx2 s[{4+2*k}:{5+2*k}], s[42:43], {128*k}")
            A.label(Lf)
        def fast_check():
            A("s_cmp_lt_u32 s99, 8")
            A("s_cbranch_scc1 L_q9")
            A("s_waitcnt lgkmcnt(0)")
            A("s_mov_b32 s3, 0")
            for k in range(8):
                A(f"s_cmp_eq_u64 s[{4+2*k}:{5+2*k}], s[{TAG}:{TAG+1}]")
                A("s_addc_u32 s3, s3, 0")
            A(f"s_cmp_lg_u32 s{TAG}, s{TAG+1}")
            A("s_addc_u32 s3, s3, 0")
            A(f"s_cmp_eq_u32 s3, {19 if Opt.noearly else 9}")
            A("s_cbranch_scc0 L_q9")

        if s == 9 and Opt.wearly:
            fast_check()
            wload(A, 0, Opt.wearly)
            A(f"s_waitcnt vmcnt({Opt.wearly})")
            A("s_barrier")
            stamp(A, 6)
            wload(A, Opt.wearly, Opt.wbf)
            A("s_barrier")
            A("s_branch L_wrest")
            A.label("L_q9")
        A(f"s_waitcnt vmcnt({9*(issued-s)})")
        A("s_barrier")
        if s in (0, 3, 6, 9):
            stamp(A, 3 + s // 3)
        if s == 9 and not Opt.wearly:
            fast_check()
            wload(A, 0, Opt.wbf)
            A("s_barrier")
            A("s_branch L_wrest")
            A.label("L_q9")
    A("s_setprio 0")
    A("s_cmp_lt_u32 s99, 8")
    A("s_cbranch_scc1 L_conv")
    role_wo(A)


def role_wo(A):
    SO, SWO = 32, 36
    A.label("L_wo")
    A(f"s_setprio {Opt.lprio}")
    wo_index(A)
    A("v_lshrrev_b32 v15, 3, v1")
    A("v_lshlrev_b32 v15, 7, v15")
    A("v_lshlrev_b32 v18, 4, v1")
    tag_check(A, 20)
    A(f"buffer_load_dwordx2 v[16:17], v15, s[{SWS}:{SWS+3}], s54 offen{SC}")
    Lj, Lk = A.newlabel("L_woj"), A.newlabel("L_wok")
    A("s_cmp_lt_u32 s99, 8")
    A(f"s_cbranch_scc1 {Lj}")
    A("s_barrier")
    A.label(Lj)
    A("s_waitcnt vmcnt(0)")
    A(f"v_cmp_eq_u64 vcc, s[{TAG}:{TAG+1}], v[16:17]")
    A("s_cmp_eq_u64 vcc, -1")
    A(f"s_cbranch_scc1 {Lk}")
    poll(A, 16, 15, "s54", sleep=8)
    A.label(Lk)

    wload(A, 0, Opt.wbf)
    A.label("L_wrest")
    if Opt.wdel:
        A(f"s_sleep {Opt.wdel}")
    A(f"s_setprio {Opt.lprio}")
    wload(A, Opt.wbf, Opt.wpk if Opt.wpk else Opt.wfirst)
    A("v_lshrrev_b32 v2, 2, v1")
    A("v_and_b32 v3, 3, v1")
    A("s_mul_i32 s58, s48, 20480")
    A(f"s_add_u32 s58, s58, {L_WOB}")
    A("v_lshrrev_b32 v11, 5, v1")
    A("v_and_b32 v9, 31, v1")
    A("v_lshrrev_b32 v15, 4, v1")
    A("v_lshlrev_b32 v15, 7, v15")
    o_index(A)
    Lq1, Lq2 = A.newlabel("L_woq"), A.newlabel("L_woq")
    A("s_cmp_lt_u32 s99, 8")
    A(f"s_cbranch_scc1 {Lq2}")
    A("s_lshr_b32 s54, s62, 2")
    A("s_lshl_b32 s54, s54, 4")
    A("s_add_u32 s54, s54, s63")
    A("s_lshl_b32 s54, s54, 8")
    if Opt.f2all:
        A("s_and_b32 s54, s54, 0xfffffc00")
        A("v_lshrrev_b32 v19, 3, v1")
        A("v_lshlrev_b32 v19, 7, v19")
    else:
        A("v_lshlrev_b32 v19, 7, v11")
    A(f"s_add_u32 s54, s54, {F2:#x}")
    A("s_lshl_b32 s55, s62, 4")
    A("s_add_u32 s55, s55, s63")
    A("s_mul_i32 s55, s55, 5120")

    def pqdma():
        A("s_mov_b32 m0, s58")
        A("s_add_u32 s56, s55, 4096")
        for i in range(4):
            A(f"buffer_load_dwordx4 v18, s[{SWS}:{SWS+3}], s55 offen offset:{1024*i}{SC} lds")
        A("s_add_u32 m0, s58, 4096")
        A(f"buffer_load_dwordx4 v18, s[{SWS}:{SWS+3}], s56 offen{SC} lds")

    Lslow, Ljn = A.newlabel("L_pqs"), A.newlabel("L_pqj")
    if Opt.wpk:
        A(f"buffer_load_dwordx2 v[16:17], v19, s[{SWS}:{SWS+3}], s54 offen{SC}")
        wload(A, Opt.wpk, Opt.wpk + 4)
        A("s_waitcnt vmcnt(4)")
        A(f"v_cmp_eq_u64 vcc, s[{TAG}:{TAG+1}], v[16:17]")
        A("s_cmp_eq_u64 vcc, -1")
        A(f"s_cbranch_scc0 {Lslow}")
        pqdma()
        wload(A, Opt.wpk + 4, Opt.wfirst)
        A(f"s_waitcnt vmcnt({Opt.wfirst - Opt.wpk - 4})")
        A(f"s_branch {Ljn}")
        A.label(Lslow)
        wload(A, Opt.wpk + 4, Opt.wfirst)
    if Opt.lag:
        stamp(A, 4)
    poll(A, 16, 19, "s54", sleep=Opt.f2s)
    if Opt.lag:
        stamp(A, 5)
    pqdma()
    A("s_waitcnt vmcnt(0)")
    A.label(Ljn)
    A("s_lshl_b32 s54, s48, 2")
    A(f"s_add_u32 s54, s54, {L_SYNC+16}")
    lds_arrive(A, 16, "s54")
    if Opt.pqsync:
        lds_arrive(A, 16, L_SYNC + 4)
    stamp(A, 14)
    A("s_lshl_b32 s54, s62, 2")
    A("s_add_u32 s54, s54, s48")
    A("s_mul_i32 s55, s54, 10240")
    A(f"s_add_u32 s55, s55, {WS_PART:#x}")
    A("s_lshl_b32 s54, s54, 9")
    if Opt.f1all:
        A("s_and_b32 s54, s54, 0xfffff800")
        A("v_lshrrev_b32 v15, 2, v1")
        A("v_lshlrev_b32 v15, 7, v15")
    A(f"s_add_u32 s54, s54, {F1:#x}")
    A("v_min_u32 v19, 20, v9")
    A("v_and_b32 v20, 32, v1")
    A("v_add_u32 v19, v19, v20")
    A("v_lshlrev_b32 v20, 3, v19")
    A("v_lshlrev_b32 v19, 4, v19")
    A("s_mul_i32 s57, s48, 5120")
    A("v_add_u32 v21, s57, v18")
    A("s_mov_b32 s59, 0xffff0000")
    lds_wait(A, 16, L_SYNC + 4, 8 if Opt.pqsync else 4, sleep=2)
    stamp(A, 7)
    wload(A, Opt.wfirst, max(Opt.wmid, Opt.wfirst))
    PR = [24, 34, 44, 54]
    SM, TP = 224, 244

    def pload(p):
        so = "s55" if p < 1 else f"s{40+p}"
        A(f"buffer_load_dwordx4 {vr(PR[p],4)}, v19, s[{SWS}:{SWS+3}], {so} offen{Opt.ldp}")
        A(f"buffer_load_dwordx4 {vr(PR[p]+4,4)}, v19, s[{SWS}:{SWS+3}], {so} offen offset:1024{Opt.ldp}")
        A(f"buffer_load_dwordx2 {vr(PR[p]+8,2)}, v20, s[{SWS}:{SWS+3}], {so} offen offset:2048{Opt.ldp}")

    for p in (1, 2, 3):
        A(f"s_add_u32 s{40+p}, s55, {2560*p}")
    if Opt.prog:
        L, Ld = A.newlabel("L_pg"), A.newlabel("L_pgd")
        A("s_mov_b64 s[56:57], 0")
        A("s_mov_b32 s101, 0x10000")
        A.label(L)
        A(f"buffer_load_dwordx2 v[16:17], v15, s[{SWS}:{SWS+3}], s54 offen{SC}")
        A("s_waitcnt vmcnt(0)")
        A(f"v_cmp_eq_u64 vcc, s[{TAG}:{TAG+1}], v[16:17]")
        A("s_andn2_b64 s[50:51], vcc, s[56:57]" if False else "s_andn2_b64 s[96:97], vcc, s[56:57]")
        A("s_mov_b64 s[56:57], vcc")
        for p in range(4):
            Ls = A.newlabel("L_pgs")
            A(f"s_bitcmp1_b64 s[96:97], {16*p}")
            A(f"s_cbranch_scc0 {Ls}")
            pload(p)
            A.label(Ls)
        A("s_cmp_eq_u64 s[56:57], -1")
        A(f"s_cbranch_scc1 {Ld}")
        A(f"s_sleep {Opt.psleep}")
        A("s_sub_u32 s101, s101, 1")
        A(f"s_cbranch_scc0 {L}")
        A("s_endpgm")
        A.label(Ld)
        stamp(A, 12)
        A("s_waitcnt vmcnt(0)")
    else:
        ppoll(A, 244, 15, "s54", sleep=Opt.psleep)
        stamp(A, 12)
        for p in range(4):
            pload(p)
    A("s_setprio 3")
    for p in range(4):
        A(f"s_waitcnt vmcnt({9-3*p})")
        for i in range(10):
            d = SM + 2 * i if p == 0 else TP + 2 * (i % 5)
            A(f"v_lshlrev_b32 v{d}, 16, v{PR[p]+i}")
            A(f"v_and_b32 v{d+1}, s59, v{PR[p]+i}")
            if p:
                A(f"v_pk_add_f32 {vr(SM+2*i,2)}, {vr(SM+2*i,2)}, {vr(d,2)}")
    for q in range(5):
        A(f"ds_write_b128 v21, {vr(SM+4*q,4)} offset:{1024*q}")
    lds_arrive(A, 16, L_SYNC + 8)
    A("s_setprio 0")
    stamp(A, 13)
    if True:
        Lq3 = A.newlabel("L_woq")
        A(f"s_branch {Lq3}")
    A.label(Lq2)
    if True:
        wload(A, Opt.wpk if Opt.wpk else Opt.wfirst, max(Opt.wmid, Opt.wfirst))
        A.label(Lq3)
    wload(A, max(Opt.wmid, Opt.wfirst), 40)
    srd(A, SO, S_OUT, NB_OUT)
    A("s_and_b32 s54, s99, 3")
    A("s_lshl_b32 s55, s98, 2")
    A("s_add_u32 s54, s54, s55")
    A("s_lshr_b32 s55, s54, 1")
    A("s_lshl_b32 s55, s55, 12")
    A(f"s_add_u32 s55, s55, {F3:#x}")
    A("s_lshl_b32 s57, s48, 10")
    A("s_add_u32 s55, s55, s57")
    A("v_lshrrev_b32 v15, 3, v1")
    A("v_lshlrev_b32 v15, 7, v15")
    A("s_mul_i32 s57, s54, 81920")
    A(f"s_add_u32 s57, s57, {WS_O:#x}")
    A("s_lshl_b32 s58, s48, 10")
    A("s_add_u32 s57, s57, s58")
    A(f"s_add_u32 s58, s58, {L_OT}")
    A("v_mov_b32 v5, v18")
    A(f"v_add_u32 v6, {L_OT}, v5")
    A(f"v_add_u32 v7, {L_OT+40960}, v5")
    A("v_lshlrev_b32 v10, 3, v9")
    A("v_lshl_add_u32 v10, v11, 9, v10")
    A(f"v_add_u32 v10, {L_OT+32768}, v10")
    if Opt.fullout:
        A("s_lshl_b32 s56, s48, 6")
        A("s_waitcnt lgkmcnt(0)")
        A("v_mul_u32_u24 v12, 272, v9")
        A("v_lshl_add_u32 v12, v11, 5, v12")
        A("v_add_u32 v12, s56, v12")
        A("v_lshrrev_b32 v2, 4, v1")
        A("v_and_b32 v3, 15, v1")
        A("v_mul_u32_u24 v13, 272, v2")
        A("v_lshl_add_u32 v13, v3, 4, v13")
        A(f"s_mul_i32 s59, s48, {8*272}")
        A("v_add_u32 v13, s59, v13")
        A("v_mul_u32_u24 v14, 2560, v2")
        A("v_lshl_add_u32 v14, v3, 4, v14")
        A("s_lshl_b32 s59, s54, 3")
        A("s_add_u32 s59, s59, s48")
        A(f"s_mul_i32 s59, s59, {8*2560}")
        A("s_add_u32 s59, s59, s52")
        A("s_sub_u32 s59, s59, s56")
    else:
        A("s_mul_i32 s56, s48, 5120")
        A("s_waitcnt lgkmcnt(0)")
        A("v_mul_u32_u24 v12, 80, v9")
        A("v_lshl_add_u32 v12, v11, 5, v12")
        A("v_add_u32 v12, s56, v12")
        A("v_mul_u32_u24 v13, 80, v2")
        A("v_lshl_add_u32 v13, v3, 4, v13")
        A("v_add_u32 v13, s56, v13")
        A("v_mul_u32_u24 v14, 2560, v2")
        A("v_lshl_add_u32 v14, v3, 4, v14")
        A(f"s_mul_i32 s59, s54, {64*2560}")
        A("s_add_u32 s59, s59, s52")
    lds_wait(A, 16, L_SYNC + 12, 4, sleep=2)
    stamp(A, 8)
    ppoll(A, 48, 15, "s55", sleep=Opt.psleep)
    A("s_barrier")
    stamp(A, 9)
    nis = [0]

    def oissue():
        j = nis[0]
        A(f"s_add_u32 m0, s58, {4096*j}")
        A(f"buffer_load_dwordx4 v5, s[{SWS}:{SWS+3}], s57 offen{Opt.ldo} lds")
        if j < 19:
            A("s_add_u32 s57, s57, 4096")
        nis[0] += 1

    for j in range(Opt.oa):
        oissue()
    if Ctx.stamps:
        A("s_waitcnt lgkmcnt(0)")
    ACC = (16, 32)
    OFB = 224
    T = Lgkm(A)
    bars = Opt.obar + [80]

    def rdx(n):
        if n in bars:
            nxt = bars[bars.index(n) + 1]
            if n == bars[-2]:
                T.wait("W")
            assert nis[0] >= nxt // 4
            A(f"s_waitcnt vmcnt({nis[0] - nxt // 4})")
            A("s_barrier")
        t, f = n // 40, n % 40
        d = OFB + 4 * (n % 8)
        if f < 32:
            T.issue(f"ds_read_b128 {vr(d,4)}, v{6+t} offset:{1024*f}", n)
        else:
            a = f - 32
            T.issue(f"ds_read_b64 {vr(d,2)}, v10 offset:{40960*t + 1024*a}")
            T.issue(f"ds_read_b64 {vr(d+2,2)}, v10 offset:{40960*t + 1024*a + 256}", n)

    def stage(t):
        L = [f"v_cvt_pk_bf16_f32 v{48+i}, v{ACC[t]+2*i}, v{ACC[t]+2*i+1}" for i in range(8)]
        return L[:4] + [("ds", f"ds_write_b128 v12, v[48:51] offset:{32*272*t}", None)] + L[4:] + \
            [("ds", f"ds_write_b128 v12, v[52:55] offset:{32*272*t+16}", "W")]

    def out(t):
        L = [("ds", f"ds_read_b128 {vr(56+4*i,4)}, v13 offset:{32*272*t+4*272*i}", ("R", i)) for i in range(2)]
        L += [None, None]
        for i in range(2):
            L += [("wait", ("R", i)), f"buffer_store_dwordx4 {vr(56+4*i,4)}, v14, s[{SO}:{SO+3}], s59 offen{Opt.osc}",
                  f"s_add_u32 s59, s59, {(4 if i == 0 else 28)*2560}"]
        return L

    def emit(x):
        if isinstance(x, tuple):
            T.issue(x[1], x[2]) if x[0] == "ds" else T.wait(x[1])
        elif x:
            A(x)

    PF = 6
    for n in range(PF):
        rdx(n)
    fill = []
    for n in range(80):
        t, f = n // 40, n % 40
        T.wait(n)
        c = vr(ACC[t], 16) if f else "0"
        A(f"v_mfma_f32_32x32x16_bf16 {vr(ACC[t],16)}, {vr(WR+4*f,4)}, {vr(OFB+4*(n%8),4)}, {c}")
        if nis[0] < 20 and n % Opt.oe == 0:
            oissue()
        if n + PF < 80:
            rdx(n + PF)
        if n == 44:
            fill = stage(0)
        if n + PF == bars[-2]:
            assert not fill
            fill = out(0)
        for _ in range(2 if n < 56 else 1):
            if fill:
                emit(fill.pop(0))
    assert not fill
    stampw(A, 10)
    for x in stage(1):
        emit(x)
    A("s_waitcnt lgkmcnt(0)")
    T.done = T.n
    A("s_barrier")
    for x in out(1):
        emit(x)
    stamp(A, 11)
    end_wave(A, True)


def role_compute(A):
    ACC = 16
    WF = (96, 116)
    XF = (136, 152)
    XA, WA, AD = 168, 172, 182
    t0, t1, t2, t3 = 11, 12, 13, 14
    for i in range(80):
        A(f"v_mov_b32 v{ACC+i}, 0")
    A(f"v_and_b32 v{t0}, 255, v0")
    A(f"v_lshlrev_b32 v{t0}, 4, v{t0}")
    A(f"v_add_u32 v{t0}, {L_Z}, v{t0}")
    A(f"ds_write_b128 v{t0}, {vr(ACC,4)}")
    A(f"ds_write_b128 v{t0}, {vr(ACC,4)} offset:64")
    A("s_lshr_b32 s52, s48, 1")
    A("s_and_b32 s53, s48, 1")
    S16, G4, R4, C4 = 183, 184, 185, 186
    A(f"v_and_b32 v{S16}, 15, v1")
    A(f"v_lshrrev_b32 v{G4}, 4, v1")
    A(f"v_bfe_u32 v{R4}, v1, 2, 2")
    A(f"v_and_b32 v{C4}, 3, v1")
    A(f"v_bfe_u32 v{t2}, v1, 1, 3")
    A(f"v_xor_b32 v{t2}, v{t2}, v{G4}")
    A(f"v_lshlrev_b32 v{t2}, 4, v{t2}")
    A(f"v_lshl_add_u32 v{t2}, v{S16}, 7, v{t2}")
    A("s_lshl_b32 s54, s52, 13")
    A(f"v_add_u32 v{XA}, s54, v{t2}")
    A(f"v_xor_b32 v{XA+1}, 64, v{XA}")
    A(f"v_add_u32 v{XA+2}, {2*SLOT}, v{XA}")
    A(f"v_add_u32 v{XA+3}, {2*SLOT}, v{XA+1}")
    A("s_cmp_eq_u32 s51, 0")
    A("s_cselect_b32 s55, 80, 0")
    A("s_mul_i32 s56, s53, 80")
    A("s_lshl_b32 s56, s56, s51")
    A(f"v_lshrrev_b32 v{t0}, 1, v{C4}")
    A(f"v_mul_u32_u24 v{t0}, s55, v{t0}")
    A(f"v_mad_u32_u24 v{t0}, v{C4}, 40, v{t0}")
    A(f"v_add_u32 v{t0}, s56, v{t0}")
    A(f"v_and_b32 v{t1}, 1, v{G4}")
    A("s_add_u32 s57, s51, 4")
    A(f"v_lshlrev_b32 v{t1}, s57, v{t1}")
    A(f"v_lshl_add_u32 v{t2}, v{G4}, 3, v{R4}")
    A(f"v_mul_u32_u24 v{t2}, 320, v{t2}")
    A(f"v_add_u32 v{t2}, 16384, v{t2}")
    for t in range(5):
        A(f"v_add_u32 v{t3}, {8*t}, v{t0}")
        A(f"v_xor_b32 v{t3}, v{t3}, v{t1}")
        A(f"v_add_u32 v{WA+t}, v{t2}, v{t3}")
        A(f"v_add_u32 v{WA+5+t}, {2*SLOT}, v{WA+t}")
    HD = 187
    A("s_cmp_eq_u32 s51, 0")
    A("s_cselect_b32 s55, 1, 3")
    A("s_add_u32 s57, s51, 1")
    A("s_lshl_b32 s56, s53, s57")
    A(f"v_and_b32 v{HD}, s55, v{G4}")
    A(f"v_add_u32 v{HD}, s56, v{HD}")
    A(f"v_mul_u32_u24 v{t0}, 800, v{HD}")
    A(f"v_mad_u32_u24 v{t0}, v{R4}, 40, v{t0}")
    A(f"v_add_u32 v{t0}, {L_WP}, v{t0}")
    A(f"v_mov_b32 v{t1}, {L_Z}")
    A(f"v_cmp_eq_u32 vcc, v{C4}, v{G4}")
    A(f"v_cndmask_b32 v{AD}, v{t1}, v{t0}, vcc")
    A(f"v_lshrrev_b32 v{t0}, 5, v1")
    A(f"v_lshl_add_u32 v{t0}, v{t0}, 4, v{S16}")
    A("s_lshl_b32 s57, s52, 6")
    A(f"v_add_u32 v{t0}, s57, v{t0}")
    A(f"v_mul_u32_u24 v{t1}, 208, v{t0}")
    A(f"v_mad_u32_u24 v2, v{HD}, 48, v{t1}")
    A(f"v_add_u32 v2, {L_V}, v2")
    A(f"v_mul_u32_u24 v{t3}, 80, v{HD}")
    A(f"v_mul_u32_u24 v{t2}, 336, v{t0}")
    A(f"v_add_u32 v3, v{t3}, v{t2}")
    A(f"v_lshrrev_b32 v{t1}, 5, v1")
    A(f"v_lshl_add_u32 v9, v{t1}, 3, v{R4}")
    A(f"v_bfe_u32 v{t2}, v1, 4, 1")
    A(f"v_bfe_u32 v{t3}, v1, 1, 1")
    A(f"v_lshl_add_u32 v10, v{t2}, 1, v{t3}")
    A(f"v_and_b32 v15, 1, v1")
    A(f"v_mul_u32_u24 v{t0}, 336, v9")
    A(f"v_mad_u32_u24 v{t1}, v15, 5, v10")
    A(f"v_lshl_add_u32 v{t0}, v{t1}, 3, v{t0}")
    A("s_mul_i32 s57, s48, 80")
    A(f"v_add_u32 v6, s57, v{t0}")
    A(f"v_lshl_add_u32 v{t0}, v10, 1, v15")
    A("s_mul_i32 s57, s48, 6")
    A(f"v_min_u32 v{t1}, 5, v{t0}")
    A(f"v_add_u32 v{t1}, s57, v{t1}")
    A(f"v_mul_u32_u24 v{t0}, 208, v9")
    A(f"v_lshl_add_u32 v{t0}, v{t1}, 3, v{t0}")
    A(f"v_add_u32 v7, {L_V}, v{t0}")
    WPF = 188
    for tp in range(5):
        A(f"v_mov_b32 v{WPF+12*tp+10}, 0")
        A(f"v_mov_b32 v{WPF+12*tp+11}, 0")
    A(f"s_mov_b32 s60, {LOG2E:#x}")
    A(f"s_mov_b32 s61, {LOG2E:#x}")
    A("s_waitcnt lgkmcnt(0)")
    srd(A, SWS, S_WS, WS_SIZE)
    if Opt.touch & 1:
        Lt = A.newlabel("L_nt")
        A("s_cmp_eq_u32 s48, 0")
        A(f"s_cbranch_scc0 {Lt}")
        touch(A, 248, 32, Opt.tsh)
        A.label(Lt)
    if Opt.fwarm:
        o_index(A)
        A("s_lshl_b32 s54, s62, 2")
        A("s_add_u32 s54, s54, s48")
        A("s_lshl_b32 s54, s54, 2")
        A("s_lshr_b32 s55, s62, 2")
        A("s_lshl_b32 s55, s55, 4")
        A("s_add_u32 s55, s55, s63")
        A("s_lshl_b32 s55, s55, 1")
        A("s_add_u32 s55, s55, 508")
        A("s_and_b32 s56, s99, 2")
        A("s_lshl_b32 s57, s98, 2")
        A("s_add_u32 s56, s56, s57")
        A("s_lshl_b32 s56, s56, 4")
        A("s_lshl_b32 s57, s48, 3")
        A("s_add_u32 s56, s56, s57")
        A("s_add_u32 s56, s56, 1016")
        A(f"v_mov_b32 v{t0}, s54")
        A(f"v_mov_b32 v{t1}, s55")
        A(f"v_mov_b32 v{t2}, s56")
        A("v_cmp_gt_u32 vcc, 16, v1")
        A(f"v_cndmask_b32 v{t1}, v{t1}, v{t0}, vcc")
        A("v_cmp_gt_u32 vcc, 32, v1")
        A(f"v_cndmask_b32 v{t1}, v{t2}, v{t1}, vcc")
        A(f"v_lshrrev_b32 v{t0}, 2, v1")
        A(f"v_add_u32 v{t0}, v{t0}, v{t1}")
        A(f"v_and_b32 v{t0}, 2047, v{t0}")
        A(f"v_lshlrev_b32 v{t0}, 7, v{t0}")
        A(f"s_mov_b32 s54, {WS_FLAG:#x}")
        A(f"buffer_load_dword v4, v{t0}, s[{SWS}:{SWS+3}], s54 offen{SC}")
        if Opt.fww:
            A("s_lshr_b32 s54, s99, 2")
            A("s_sub_u32 s54, s54, 1")
            A("s_max_i32 s54, s54, 0")
            A("s_lshl_b32 s54, s54, 2")
            A("s_add_u32 s54, s54, s48")
            A("s_lshl_b32 s54, s54, 10")
            A(f"s_add_u32 s54, s54, {FW:#x}")
            A(f"v_lshrrev_b32 v{t0}, 3, v1")
            A(f"v_lshlrev_b32 v{t0}, 7, v{t0}")
            A(f"buffer_load_dword v5, v{t0}, s[{SWS}:{SWS+3}], s54 offen{SC}")
    A("s_setprio 2")

    T = Lgkm(A)

    def reads(s, ks):
        sl, b = s % 3, ks
        L = []
        for t in range(5):
            for half in range(2):
                L.append((f"ds_read_b64_tr_b16 {vr(WF[b]+4*t+2*half,2)}, v{WA+5*(sl>>1)+t} offset:{(sl&1)*SLOT + (32*ks+4*half)*320}",
                          ("w", s, ks, t) if half else None))
            if t == 0:
                for rho in range(4):
                    L.append((f"ds_read_b128 {vr(XF[b]+4*rho,4)}, v{XA+2*(sl>>1)+ks} offset:{(sl&1)*SLOT + 2048*rho}", ("x", s, ks, rho)))
        return L

    wp = []
    for tp in range(5):
        for dq in range(5):
            wp.append((f"ds_read_b64_tr_b16 {vr(WPF+12*tp+2*dq,2)}, v{AD} offset:{160*dq+8*tp}", None))

    PS = (96, 106, 118, 128)
    E, F, TT_ = 140, 160, 248

    def cvt(rho):
        L = [f"v_cvt_pk_bf16_f32 v{PS[rho]+i}, v{ACC+20*rho+2*i}, v{ACC+20*rho+2*i+1}" for i in range(10)]
        if rho & 1:
            L += [f"v_mov_b32 v{PS[rho]+10}, 0x3f803f80", f"v_mov_b32 v{PS[rho]+11}, 0x3f803f80"]
        return L

    A("s_barrier")
    stampw(A, 3)
    for x, tg in reads(0, 0):
        T.issue(x, tg)
    early = cvt(0) + cvt(1)
    for s in range(10):
        for ks in range(2):
            last = (s == 9 and ks == 1)
            nxt = [] if last else (reads(s, 1) if ks == 0 else reads(s + 1, 0))
            if ks == 0 and s < 5:
                nxt += wp[5 * s:5 * s + 5]
            start = 0 if ks == 0 else Opt.bpos
            for k in range(20):
                t, rho = (k % 5, k // 5) if last else (k // 4, k % 4)
                if Opt.snake and t & 1:
                    rho = 3 - rho
                T.wait(("w", s, ks, t), ("x", s, ks, rho))
                a_ = ACC + 20 * rho + 4 * t
                A(f"v_mfma_f32_16x16x32_bf16 {vr(a_,4)}, {vr(WF[ks]+4*t,4)}, {vr(XF[ks]+4*rho,4)}, {vr(a_,4)}")
                if ks == 1 and k == start:
                    T.all()
                    A("s_barrier")
                if k >= start and nxt:
                    T.issue(*nxt.pop(0))
                if last and k >= 9:
                    for _ in range(2):
                        if early:
                            A(early.pop(0))
            assert not nxt
    stamp(A, 4)
    if Opt.fwarm:
        A("s_waitcnt vmcnt(0)")
    tag_issue(A)
    def phi_mfma(src, acc):
        L = []
        for u in range(3):
            for tp in range(5):
                c = vr(acc + 4 * tp, 4) if u else "0"
                L.append(f"v_mfma_f32_16x16x32_bf16 {vr(acc+4*tp,4)}, {vr(WPF+12*tp+4*u,4)}, {vr(src+4*u,4)}, {c}")
        return L

    def weave(mf, va, per):
        mf, va = list(mf), list(va)
        while mf or va:
            if mf:
                A(mf.pop(0))
            for _ in range(per):
                if va:
                    A(va.pop(0))

    assert not early
    Lq = A.newlabel("L_q")
    A("s_cmp_eq_u32 s51, 0")
    A(f"s_cbranch_scc0 {Lq}")
    mq = A.mark()
    for i in range(10):
        A(f"v_permlane32_swap_b32 v{PS[0]+i}, v{PS[1]+i}")
    weave(phi_mfma(PS[0], ACC), cvt(2) + cvt(3) + [f"v_permlane32_swap_b32 v{PS[2]+i}, v{PS[3]+i}" for i in range(10)], 2)
    vw = [f"ds_write_b128 v2, {vr(PS[1+2*sg]+4*i,4)} offset:{32*208*sg+16*i}" for sg in range(2) for i in range(3)]

    def body(parts):
        mm, fm, ex, sm, fin, tail = parts
        L = fm[:4]
        fm2, sm2 = list(fm[4:]), list(sm)
        for k in range(0, 40, 4):
            L += ex[k:k + 2]
            if fm2:
                L.append(fm2.pop(0))
            L += ex[k + 2:k + 4]
            if fm2:
                L.append(fm2.pop(0))
            if k >= 8:
                L += [sm2.pop(0), sm2.pop(0)]
        return L + sm2 + fin

    def tail_list(tail, wr):
        L = [tail[0][0], tail[1][0]]
        for j in range(20):
            if j + 2 < 20:
                L.append(tail[j + 2][0])
            L.append(tail[j][1])
            if wr and j % 4 == 3:
                L.append(wr[j // 4])
        return L

    s0 = softmax_parts(ACC, E, F, TT_, 56)
    s1 = softmax_parts(ACC + 20, E, F, TT_, 76)
    w0 = [f"ds_write_b128 v3, {vr(56+4*i,4)} offset:{16*i}" for i in range(5)]
    w1 = [f"ds_write_b128 v3, {vr(76+4*i,4)} offset:{32*336+16*i}" for i in range(5)]
    m1 = phi_mfma(PS[2], ACC + 20)
    for x in m1[:4]:
        A(x)
    weave(m1[4:], s0[0], 2)
    stamp(A, 2)
    for x in merge(body(s0), vw, 12) + tail_list(s0[5], w0):
        A(x)
    stamp(A, 13)
    A(f"v_mov_b32 v10, {L_SYNC}")
    A("v_mov_b32 v11, 1")
    A("s_mov_b64 exec, 1")
    A("ds_add_u32 v10, v11 offset:52")
    A("s_mov_b64 exec, -1")
    sal = ["s_lshl_b32 s57, s50, 2", "s_add_u32 s57, s57, s48", "s_lshl_b32 s57, s57, 4", "s_add_u32 s57, s57, s49",
           "s_lshl_b32 s59, s57, 7", f"s_add_u32 s59, s59, {F1:#x}", "s_mul_i32 s57, s57, 2560", f"s_add_u32 s57, s57, {WS_PART:#x}"]
    b1 = body(s1)
    for x in s1[0] + merge(b1[:60], sal, 6) + ["ds_read_b32 v12, v10 offset:52"] + b1[60:]:
        A(x)
    tag_check(A, 14)
    Lok = A.newlabel("L_s0ok")
    A("v_cmp_le_u32 vcc, 4, v12")
    A(f"s_cbranch_vccnz {Lok}")
    lds_wait(A, 12, L_SYNC + 52, 4)
    A.label(Lok)
    for x in tail_list(s1[5], w1):
        A(x)
    A("s_mov_b64 exec, 1")
    A("ds_add_u32 v10, v11")
    A("s_mov_b64 exec, -1")
    stampw(A, 5)
    T = Lgkm(A)
    T.n = 0 if (Ctx.stamps and not Opt.lite and not Opt.hp) else 0
    FAa = {0: 188, 1: 196, 4: 204, 5: 212, 2: 220, 3: 228, 6: 236, 7: 128}
    FBb = {u: 96 + 4 * u for u in range(8)}

    def rdA_(u):
        for half in range(2):
            o = (16 * u + 4 * half)
            T.issue(f"ds_read_b64_tr_b16 {vr(FAa[u]+2*half,2)}, v6 offset:{o*336}")
            T.issue(f"ds_read_b64_tr_b16 {vr(FAa[u]+4+2*half,2)}, v6 offset:{o*336+32}", ("a", u))

    def rdB_(u):
        for half in range(2):
            T.issue(f"ds_read_b64_tr_b16 {vr(FBb[u]+2*half,2)}, v7 offset:{(16*u+4*half)*208}", ("b", u))

    def pm(u, first=False):
        T.wait(("a", u), ("b", u))
        for TT in range(2):
            c = "0" if first else vr(ACC + 16 * TT, 16)
            A(f"v_mfma_f32_32x32x16_bf16 {vr(ACC+16*TT,16)}, {vr(FAa[u]+4*TT,4)}, {vr(FBb[u],4)}, {c}")

    rdB_(0); rdA_(0); rdB_(1); rdA_(1)
    pm(0, True)
    rdB_(4); rdA_(4)
    pm(1)
    rdB_(5); rdA_(5)
    T.issue("ds_read_b32 v12, v10", "c")
    pm(4)
    for u in (2, 3, 6, 7):
        rdB_(u)
    A("v_lshlrev_b32 v2, 4, v1")
    A("v_lshlrev_b32 v3, 3, v1")
    T.wait("c")
    Lok = A.newlabel("L_s1ok")
    A("v_cmp_le_u32 vcc, 4, v12")
    A(f"s_cbranch_vccnz {Lok}")
    lds_wait(A, 10, None, 4)
    A.label(Lok)
    rdA_(2); rdA_(3)
    pm(5)
    rdA_(6)
    pm(2)
    rdA_(7)
    pm(3); pm(6); pm(7)
    o_index(A)
    for i in range(10):
        A(f"v_cvt_pk_bf16_f32 v{48+i}, v{ACC+2*i}, v{ACC+2*i+1}")
    A(f"buffer_store_dwordx2 v[56:57], v3, s[{SWS}:{SWS+3}], s57 offen offset:2048{SC}")
    A("s_mov_b32 exec_lo, 0x00ffffff")
    A("s_mov_b32 exec_hi, 0x00ffffff")
    A(f"buffer_store_dwordx4 v[48:51], v2, s[{SWS}:{SWS+3}], s57 offen{SC}")
    A(f"buffer_store_dwordx4 v[52:55], v2, s[{SWS}:{SWS+3}], s57 offen offset:1024{SC}")
    A("s_mov_b64 exec, -1")
    stamp(A, 6)
    role_o(A)
    end_wave(A)
    A.label(Lq)
    hq = A.mark()
    pre = [f"s_mov_b32 s57, {64*1280}",
           f"v_mul_lo_u32 v{t1}, s57, v{HD}",
           f"v_lshl_add_u32 v2, v{S16}, 4, v{t1}",
           f"v_lshl_add_u32 v3, v{S16}, 3, v{t1}",
           "s_lshl_b32 s58, s49, 1",
           "s_add_u32 s58, s58, s52",
           "s_lshl_b32 s59, s50, 1",
           "s_add_u32 s59, s59, s53",
           "s_lshl_b32 s59, s59, 5",
           "s_add_u32 s59, s59, s58",
           "s_lshl_b32 s59, s59, 7",
           f"s_add_u32 s59, s59, {F2:#x}",
           "s_lshl_b32 s57, s50, 8",
           "s_add_u32 s57, s57, s58",
           "s_mul_i32 s57, s57, 2560"]
    A("s_nop 0")
    OQ = 140

    def outq(rho):
        x, o = ACC + 20 * rho, OQ + 10 * rho
        off = 1280 * (rho >> 1)
        L = [f"v_cvt_pk_bf16_f32 v{o+i}, v{x+2*i}, v{x+2*i+1}" for i in range(10)]
        L.append(f"buffer_store_dwordx4 {vr(o,4)}, v2, s[{SWS}:{SWS+3}], s57 offen offset:{off+256*(rho&1)}{SC}")
        L.append(f"buffer_store_dwordx4 {vr(o+4,4)}, v2, s[{SWS}:{SWS+3}], s57 offen offset:{off+512+256*(rho&1)}{SC}")
        L.append(f"buffer_store_dwordx2 {vr(o+8,2)}, v3, s[{SWS}:{SWS+3}], s57 offen offset:{off+1024+128*(rho&1)}{SC}")
        return L

    weave(phi_mfma(PS[0], ACC), pre + cvt(2), 2)
    m = phi_mfma(PS[1], ACC + 20)
    weave(m[:6], cvt(3), 2)
    weave(m[6:], outq(0), 2)
    m = phi_mfma(PS[2], ACC + 40)
    weave(m[:6], [], 0)
    weave(m[6:], outq(1), 2)
    m = phi_mfma(PS[3], ACC + 60)
    weave(m[:6], [], 0)
    weave(m[6:], outq(2), 2)
    for x in outq(3):
        A(x)
    stamp(A, 6)
    if Opt.qlate == 3:
        lds_arrive(A, 14, L_SYNC + 52)
    tag_check(A, 10)
    set_flag(A, 10, "s59")
    stamp(A, 7)
    A.check_seam(mq, hq)
    lds_arrive(A, 14, L_SYNC)
    lds_wait(A, 14, None, 8 if Opt.qlate else 4, sleep=2)
    A("s_setprio 0")
    A("s_cmp_lt_u32 s99, 4")
    A("s_cbranch_scc1 L_wo")
    if Opt.wopf == "qs":
        srd(A, 36, S_WO, NB_WO)
        A("s_sub_u32 s57, s99, 4")
        A("s_lshl_b32 s57, s57, 2")
        A("s_add_u32 s57, s57, s48")
        A("s_lshl_b32 s57, s57, 13")
        A(f"s_add_u32 s57, s57, {240*1280}")
        A("v_lshlrev_b32 v8, 7, v1")
        for i in range(4):
            A(f"buffer_load_dword v{200+i}, v8, s[36:39], s57 offen")
            A(f"s_add_u32 s57, s57, {16*8192}")
    A(f"s_cmp_lt_u32 s48, {4 if Opt.p3 else 2}")
    A("s_cbranch_scc1 L_post")
    end_wave(A)


def role_o(A):
    NT = 4
    RAW, X, PQ = 64, 104, 128
    A("s_mul_i32 s53, s48, 20480")
    A(f"s_add_u32 s53, s53, {L_WOB}")
    A("v_and_b32 v4, 31, v1")
    A("v_lshl_add_u32 v5, v4, 4, s53")
    A("v_lshl_add_u32 v6, v4, 3, s53")
    A("v_and_b32 v7, 32, v1")
    A("v_lshlrev_b32 v7, 26, v7")
    A("s_lshl_b32 s54, s48, 2")
    A(f"s_add_u32 s54, s54, {L_SYNC+16}")
    A("s_mov_b32 s58, 0xffff0000")
    for t in range(NT):
        A(f"v_mov_b32 v{PQ+12*t+10}, 0")
        A(f"v_mov_b32 v{PQ+12*t+11}, 0")
    A("s_mov_b32 s96, s59")
    A("s_mov_b32 s97, 0")
    if Opt.dflag:
        Lgo = A.newlabel("L_go")
        A("v_mov_b32 v14, s54")
        A("ds_read_b32 v15, v14")
        A("s_waitcnt lgkmcnt(0)")
        A("v_cmp_le_u32 vcc, 1, v15")
        A(f"s_cbranch_vccnz {Lgo}")
    set_flag(A, 10, "s96")
    lds_arrive(A, 14, L_SYNC + 4)
    A("s_mov_b32 s97, 1")
    stamp(A, 7)
    lds_wait(A, 14, "s54", 1)
    if Opt.dflag:
        A.label(Lgo)
    stampw(A, 8)
    T = Lgkm(A)
    for t in range(NT):
        T.issue(f"ds_read_b128 {vr(RAW+10*t,4)}, v5 offset:{1280*t}")
        T.issue(f"ds_read_b128 {vr(RAW+10*t+4,4)}, v5 offset:{1280*t+512}")
        T.issue(f"ds_read_b64 {vr(RAW+10*t+8,2)}, v6 offset:{1280*t+1024}", t)
    A("s_lshl_b32 s57, s63, 2")
    A("s_mul_i32 s54, s57, 40960")
    A(f"s_add_u32 s54, s54, {WS_O:#x}")
    A("s_lshl_b32 s59, s62, 8")
    A("s_add_u32 s59, s59, s54")
    A("s_add_u32 s59, s59, 32768")
    A("s_lshl_b32 s57, s62, 10")
    A("s_add_u32 s54, s54, s57")
    A("s_lshl_b32 s50, s63, 5")
    A("s_add_u32 s50, s50, s62")
    A("s_lshl_b32 s50, s50, 7")
    A(f"s_add_u32 s50, s50, {F3:#x}")
    if Opt.qpipe:
        XS = (176, 200, 104, 224)

        def stA(t):
            X_, m = XS[t], XS[t] + 20
            L = []
            for i in range(10):
                r = RAW + 10 * t + i
                L += [f"v_lshl_add_u32 v{X_+2*i}, v{r}, 16, v7", f"v_bitop3_b32 v{X_+2*i+1}, v{r}, s58, v7 bitop3:0x6a"]
            L += [f"v_max3_f32 v{m}, v{X_}, v{X_+1}, v{X_+2}", f"v_max3_f32 v{m+1}, v{X_+3}, v{X_+4}, v{X_+5}"]
            for i in range(6, 18, 4):
                L += [f"v_max3_f32 v{m}, v{m}, v{X_+i}, v{X_+i+1}", f"v_max3_f32 v{m+1}, v{m+1}, v{X_+i+2}, v{X_+i+3}"]
            L += [f"v_max3_f32 v{m}, v{m}, v{X_+18}, v{X_+19}", f"v_max_f32 v{m}, v{m}, v{m+1}", f"v_mul_f32 v{m}, s60, v{m}"]
            L += [f"v_pk_fma_f32 {vr(X_+i,2)}, {vr(X_+i,2)}, s[60:61], {vr(m,2)} op_sel_hi:[1,1,0] neg_lo:[0,0,1] neg_hi:[0,0,1]" for i in range(0, 20, 2)]
            return L

        def stC(t):
            X_, m, e = XS[t], XS[t] + 20, XS[t] + 22
            L = [f"v_pk_add_f32 {vr(e,2)}, {vr(X_,2)}, {vr(X_+2,2)}", f"v_pk_add_f32 {vr(m,2)}, {vr(X_+4,2)}, {vr(X_+6,2)}"]
            for i in range(8, 20, 4):
                L += [f"v_pk_add_f32 {vr(e,2)}, {vr(e,2)}, {vr(X_+i,2)}", f"v_pk_add_f32 {vr(m,2)}, {vr(m,2)}, {vr(X_+i+2,2)}"]
            L += [f"v_pk_add_f32 {vr(e,2)}, {vr(e,2)}, {vr(m,2)}", f"v_add_f32 v{e}, v{e}, v{e+1}", f"v_rcp_f32 v{e}, v{e}"]
            L += [f"v_pk_mul_f32 {vr(X_+i,2)}, {vr(X_+i,2)}, {vr(e,2)} op_sel_hi:[1,0]" for i in range(0, 20, 2)]
            L += [f"v_cvt_pk_bf16_f32 v{PQ+12*t+i}, v{X_+2*i}, v{X_+2*i+1}" for i in range(10)]
            return L

        def zipl(p, q):
            out = []
            while p or q:
                if p:
                    out.append(p.pop(0))
                if q:
                    out.append(q.pop(0))
            return out

        T.wait(0)
        for x in stA(0):
            A(x)
        T.all()
        for t in range(NT):
            rest = zipl(stA(t + 1) if t + 1 < NT else [], stC(t - 1) if t else [])
            n = len(rest)
            for i in range(20):
                A(f"v_exp_f32 v{XS[t]+i}, v{XS[t]+i}")
                for x in rest[i * n // 20:(i + 1) * n // 20]:
                    A(x)
        for x in stC(NT - 1):
            A(x)
    else:
        mx, se = 124, 126
        for t in range(NT):
            T.wait(t)
            for i in range(10):
                A(f"v_lshl_add_u32 v{X+2*i}, v{RAW+10*t+i}, 16, v7")
                A(f"v_bitop3_b32 v{X+2*i+1}, v{RAW+10*t+i}, s58, v7 bitop3:0x6a")
            A(f"v_max3_f32 v{mx}, v{X}, v{X+1}, v{X+2}")
            A(f"v_max3_f32 v{mx+1}, v{X+3}, v{X+4}, v{X+5}")
            for i in range(6, 18, 4):
                A(f"v_max3_f32 v{mx}, v{mx}, v{X+i}, v{X+i+1}")
                A(f"v_max3_f32 v{mx+1}, v{mx+1}, v{X+i+2}, v{X+i+3}")
            A(f"v_max3_f32 v{mx}, v{mx}, v{X+18}, v{X+19}")
            A(f"v_max_f32 v{mx}, v{mx}, v{mx+1}")
            A(f"v_mul_f32 v{mx}, s60, v{mx}")
            for i in range(0, 20, 2):
                A(f"v_pk_fma_f32 {vr(X+i,2)}, {vr(X+i,2)}, s[60:61], {vr(mx,2)} op_sel_hi:[1,1,0] neg_lo:[0,0,1] neg_hi:[0,0,1]")
            if Opt.dflag and t == 1:
                Lsk = A.newlabel("L_sk")
                A("s_cmp_eq_u32 s97, 1")
                A(f"s_cbranch_scc1 {Lsk}")
                set_flag(A, 10, "s96")
                lds_arrive(A, 14, L_SYNC + 4)
                stampw(A, 7)
                A.label(Lsk)
            for i in range(20):
                A(f"v_exp_f32 v{X+i}, v{X+i}")
            A(f"v_pk_add_f32 {vr(se,2)}, {vr(X,2)}, {vr(X+2,2)}")
            A(f"v_pk_add_f32 {vr(mx,2)}, {vr(X+4,2)}, {vr(X+6,2)}")
            for i in range(8, 20, 4):
                A(f"v_pk_add_f32 {vr(se,2)}, {vr(se,2)}, {vr(X+i,2)}")
                A(f"v_pk_add_f32 {vr(mx,2)}, {vr(mx,2)}, {vr(X+i+2,2)}")
            A(f"v_pk_add_f32 {vr(se,2)}, {vr(se,2)}, {vr(mx,2)}")
            A(f"v_add_f32 v{se}, v{se}, v{se+1}")
            A(f"v_rcp_f32 v{se}, v{se}")
            for i in range(0, 20, 2):
                A(f"v_pk_mul_f32 {vr(X+i,2)}, {vr(X+i,2)}, {vr(se,2)} op_sel_hi:[1,0]")
            for i in range(10):
                A(f"v_cvt_pk_bf16_f32 v{PQ+12*t+i}, v{X+2*i}, v{X+2*i+1}")
    stamp(A, 9)
    KF = 16
    A(f"v_mov_b32 v{KF+10}, 0")
    A(f"v_mov_b32 v{KF+11}, 0")
    lds_wait(A, 14, L_SYNC + 8, 4)
    stampw(A, 10)
    PR = 32
    T = Lgkm(A)
    for q in range(5):
        for p in range(4):
            T.issue(f"ds_read_b128 {vr(PR+16*q+4*p,4)}, v2 offset:{5120*p+1024*q}", q)
    for q in range(5):
        T.wait(q)
        b = PR + 16 * q
        for h in (0, 2):
            A(f"v_pk_add_f32 {vr(b+h,2)}, {vr(b+h,2)}, {vr(b+4+h,2)}")
            A(f"v_pk_add_f32 {vr(b+8+h,2)}, {vr(b+8+h,2)}, {vr(b+12+h,2)}")
        for h in (0, 2):
            A(f"v_pk_add_f32 {vr(b+h,2)}, {vr(b+h,2)}, {vr(b+8+h,2)}")
        for h in (0, 2):
            A(f"v_cvt_pk_bf16_f32 v{KF+2*q+h//2}, v{b+h}, v{b+h+1}")
    D = [176, 192, 208, 224]
    OP = [32, 40, 48, 56]

    def mf(t):
        for u in range(3):
            c = vr(D[t], 16) if u else "0"
            A(f"v_mfma_f32_32x32x16_bf16 {vr(D[t],16)}, {vr(KF+4*u,4)}, {vr(PQ+12*t+4*u,4)}, {c}")

    if Opt.dA:
        A(f"s_sleep {Opt.dA}")
    mf(0)
    mf(1)
    for t in range(NT):
        d, o = D[t], OP[t]
        A(f"v_add_f32 v10, 0x358637bd, v{d+12}")
        A("v_rcp_f32 v10, v10")
        if t + 2 < NT:
            mf(t + 2)
        if t >= 2:
            for i in range(0, 12, 2):
                A(f"v_pk_mul_f32 {vr(d+i,2)}, {vr(d+i,2)}, v[10:11] op_sel_hi:[1,0]")
        else:
            for i in range(12):
                A(f"v_mul_f32 v{d+i}, v10, v{d+i}")
        for i in range(6):
            A(f"v_cvt_pk_bf16_f32 v{o+i}, v{d+2*i}, v{d+2*i+1}")
        A(f"buffer_store_dwordx4 {vr(o,4)}, v2, s[{SWS}:{SWS+3}], s54 offen{SC}")
        A("s_mov_b32 exec_hi, 0")
        A(f"buffer_store_dwordx2 {vr(o+4,2)}, v3, s[{SWS}:{SWS+3}], s59 offen{SC}")
        A("s_mov_b64 exec, -1")
        if t < NT - 1:
            A("s_add_u32 s54, s54, 40960")
            A("s_add_u32 s59, s59, 40960")
    stamp(A, 11)
    set_flag(A, 12, "s50")
    lds_arrive(A, 16, L_SYNC + 12)
    stamp(A, 12)


def b_channel(A):
    A("s_mul_i32 s49, s98, 80")
    A("s_sub_u32 s50, s99, 24")
    A("s_mul_i32 s50, s50, 6")
    A("s_add_u32 s49, s49, s50")
    A("s_add_u32 s49, s49, s48")
    A("s_cmp_ge_u32 s48, 6")
    A("s_cselect_b32 s50, 2, 0")
    A("s_sub_u32 s49, s49, s50")
    A(f"s_mul_i32 s56, s48, {CV_LDS}")


def conv_load_h(A, v):
    SH = 40
    srd(A, SH, S_SSK, NB_SSK)
    A(f"v_lshlrev_b32 v{v}, 4, v1")
    A("s_lshl_b32 s50, s49, 12")
    A("s_add_u32 m0, s56, 64")
    for i in range(4):
        A(f"buffer_load_dwordx4 v{v}, s[{SH}:{SH+3}], s50 offen offset:{1024*i}{Opt.nth} lds")


def f0_lines(A, c0, c1, v):
    A(f"s_lshr_b32 s52, s{c0}, 6")
    A("s_mul_i32 s52, s52, 419431")
    A("s_lshr_b32 s52, s52, 16")
    A(f"s_lshr_b32 s53, s{c1}, 6")
    A("s_mul_i32 s53, s53, 419431")
    A("s_add_u32 s53, s53, 406324")
    A("s_lshr_b32 s53, s53, 16")
    A(f"v_lshrrev_b32 v{v}, 2, v1")
    A(f"v_add_u32 v{v}, s52, v{v}")
    A(f"v_min_u32 v{v}, s53, v{v}")
    A(f"v_lshlrev_b32 v{v}, 7, v{v}")
    A(f"s_mov_b32 s52, {F0:#x}")


def role_pre(A):
    SK, SV, SS = 32, 36, 40
    t0, t1, t2 = 2, 3, 4
    A("s_lshl_b32 s49, s98, 3")
    A("s_add_u32 s49, s49, s99")
    A("s_sub_u32 s49, s49, 24")
    A("s_mul_i32 s49, s49, 5")
    A("s_add_u32 s49, s49, s48")
    A("s_and_b32 s50, s49, 31")
    A("s_lshr_b32 s51, s49, 5")
    A(f"s_mul_i32 s52, s50, {64*1280}")
    A("s_lshl_b32 s53, s51, 7")
    A("s_add_u32 s52, s52, s53")
    A(f"v_lshrrev_b32 v{t0}, 3, v1")
    A(f"v_and_b32 v{t1}, 7, v1")
    A(f"v_mul_u32_u24 v{t2}, {8*1280}, v{t0}")
    A(f"v_lshl_add_u32 v{t2}, v{t1}, 4, v{t2}")
    A(f"v_add_u32 v5, s52, v{t2}")
    A(f"v_subrev_u32 v6, {3*1280}, v5")
    A(f"v_subrev_u32 v7, {2*1280}, v5")
    A(f"v_subrev_u32 v8, {1280}, v5")
    A(f"v_lshlrev_b32 v9, 6, v{t1}")
    A("s_lshl_b32 s54, s51, 9")
    A(f"s_movk_i32 s55, {4*1280}")
    A("s_waitcnt lgkmcnt(0)")
    srd(A, SK, S_BK, NB_X)
    srd(A, SV, S_BV, NB_X)
    srd(A, SS, S_SH, NB_SH)
    WR, KR, VR = 16, 32, 76
    for i in range(4):
        A(f"buffer_load_dwordx4 {vr(WR+4*i,4)}, v9, s[{SS}:{SS+3}], s54 offen offset:{16*i}")
    for i in range(3):
        A(f"buffer_load_dwordx4 {vr(KR+4*i,4)}, v{6+i}, s[{SK}:{SK+3}], 0 offen{Opt.ntk}")

    order = []

    def ld(kind, i):
        so = "0" if i < 4 else "s55"
        if kind == "k":
            A(f"buffer_load_dwordx4 {vr(KR+12+4*i,4)}, v5, s[{SK}:{SK+3}], {so} offen offset:{1280*(i&3)}{Opt.ntk}")
        else:
            A(f"buffer_load_dwordx4 {vr(VR+4*i,4)}, v5, s[{SV}:{SV+3}], {so} offen offset:{1280*(i&3)}{Opt.ntk}")
        order.append((kind, i))

    for i in (5, 6, 7):
        ld("k", i)
    ld("k", 0); ld("v", 0); ld("k", 1); ld("v", 1)
    todo = [("k", 2), ("v", 2), ("k", 3), ("v", 3), ("k", 4), ("v", 4), ("v", 5), ("v", 6), ("v", 7)]
    stamp(A, 2)
    srd(A, SWS, S_WS, WS_SIZE)
    A("s_mul_i32 s56, s48, 8320")
    A(f"s_add_u32 s56, s56, {B_PRE}")
    A(f"v_mul_u32_u24 v10, 1040, v{t1}")
    A(f"v_lshl_add_u32 v10, v{t0}, 4, v10")
    A("v_add_u32 v10, s56, v10")
    A("v_lshrrev_b32 v11, 4, v1")
    A("v_lshlrev_b32 v11, 8, v11")
    A("v_and_b32 v12, 3, v1")
    A("v_lshl_add_u32 v11, v12, 6, v11")
    A("v_bfe_u32 v12, v1, 2, 2")
    A("v_lshl_add_u32 v11, v12, 3, v11")
    A("v_add_u32 v11, s56, v11")
    A(f"v_mul_u32_u24 v12, {Opt.pit}, v{t0}")
    A(f"v_lshl_add_u32 v12, v{t1}, 4, v12")
    A(f"s_mul_i32 s57, s51, {64*Opt.pit}")
    A("s_lshl_b32 s58, s50, 7")
    A("s_add_u32 s57, s57, s58")
    A(f"s_add_u32 s57, s57, {WS_KVT:#x}")
    A("s_mov_b32 s59, 0xffff0000")
    WF, KF, VF, TA, OUT = 108, 140, 172, 180, 196

    def unpack(dst, src, n):
        for i in range(n):
            A(f"v_lshlrev_b32 v{dst+2*i}, 16, v{src+i}")
            A(f"v_and_b32 v{dst+2*i+1}, s59, v{src+i}")

    A(f"s_waitcnt vmcnt({3+len(order)})")
    ld(*todo.pop(0)); ld(*todo.pop(0))
    for c in range(8):
        A(f"v_lshlrev_b32 v{WF+c}, 16, v{WR+2*c}")
        A(f"v_and_b32 v{WF+8+c}, s59, v{WR+2*c}")
        A(f"v_lshlrev_b32 v{WF+16+c}, 16, v{WR+2*c+1}")
        A(f"v_and_b32 v{WF+24+c}, s59, v{WR+2*c+1}")
    A(f"s_waitcnt vmcnt({len(order)})")
    ld(*todo.pop(0)); ld(*todo.pop(0))
    for i in range(3):
        unpack(KF + 8 * i, KR + 4 * i, 4)
    for i in range(8):
        need = max(order.index(("k", i)), order.index(("v", i)))
        A(f"s_waitcnt vmcnt({len(order)-1-need})")
        for _ in range(2):
            if todo:
                ld(*todo.pop(0))
        if i == 2:
            b_channel(A)
            if Opt.hdef:
                A("s_lshl_b32 s50, s49, 12")
            else:
                conv_load_h(A, 13)
                order.extend([None] * 4)
        unpack(KF + 8 * ((i + 3) & 3), KR + 12 + 4 * i, 4)
        unpack(VF, VR + 4 * i, 4)
        acc = TA + 8 * (i & 1)
        for j in (3, 2, 1, 0):
            kk = KF + 8 * ((i + 3 - j) & 3)
            for c in range(0, 8, 2):
                if j == 3:
                    A(f"v_pk_mul_f32 {vr(acc+c,2)}, {vr(kk+c,2)}, {vr(WF+8*j+c,2)}")
                else:
                    A(f"v_pk_fma_f32 {vr(acc+c,2)}, {vr(kk+c,2)}, {vr(WF+8*j+c,2)}, {vr(acc+c,2)}")
        for c in range(0, 8, 2):
            A(f"v_pk_mul_f32 {vr(acc+c,2)}, {vr(acc+c,2)}, {vr(VF+c,2)}")
        if i & 1:
            for c in range(8):
                A(f"v_cvt_pk_bf16_f32 v{OUT+4*c+i//2}, v{TA+c}, v{TA+8+c}")
    stamp(A, 3)
    for c in range(8):
        A(f"ds_write_b128 v10, {vr(OUT+4*c,4)} offset:{128*c}")
    A("s_waitcnt lgkmcnt(0)")
    T = Lgkm(A)
    for i in range(8):
        T.issue(f"ds_read_b64_tr_b16 {vr(16+4*i,2)}, v11 offset:{1040*i}")
        T.issue(f"ds_read_b64_tr_b16 {vr(18+4*i,2)}, v11 offset:{1040*i+32}", i)
    for i in range(8):
        T.wait(i)
        A(f"buffer_store_dwordx4 {vr(16+4*i,4)}, v12, s[{SWS}:{SWS+3}], s57 offen{SC}")
        if i < 7:
            A(f"s_add_u32 s57, s57, {8*Opt.pit}")
    stamp(A, 5)
    if Opt.hdef == 2:
        conv_load_h(A, 13)


def role_helper(A):
    SD = 40
    A("s_setprio 3")
    A("s_waitcnt lgkmcnt(0)")
    srd(A, SWS, S_WS, WS_SIZE)
    srd(A, SD, S_DBG, 256)
    Lz = A.newlabel("L_nz")
    A("s_cmp_eq_u32 s2, 192")
    A(f"s_cbranch_scc0 {Lz}")
    A("s_cmp_eq_u32 s48, 5")
    A(f"s_cbranch_scc0 {Lz}")
    A(f"s_mov_b32 s57, {WS_EPOCH:#x}")
    A("s_mov_b64 exec, 1")
    for _ in range(Opt.mdelay):
        A("s_sleep 127")
    A(f"buffer_load_dword v4, off, s[{SWS}:{SWS+3}], s57{SC}")
    A("s_waitcnt vmcnt(0)")
    A("v_add_u32 v4, 1, v4")
    A("v_not_b32 v5, v4")
    A(f"buffer_store_dwordx2 v[4:5], off, s[{SD}:{SD+3}], 0{SC}")
    A(f"buffer_store_dword v4, off, s[{SWS}:{SWS+3}], s57{SC}")
    A("s_mov_b64 exec, -1")
    stamp(A, 2)
    A.label(Lz)
    if Opt.touch & 2:
        Lt = A.newlabel("L_nt")
        A("s_cmp_eq_u32 s48, 5")
        A(f"s_cbranch_scc0 {Lt}")
        touch(A, 26, 32, Opt.tsh)
        for k_, (b_, n_) in enumerate(((S_BQ, NB_X), (S_SSK, NB_SSK))):
            srd(A, 32, b_, n_)
            A(f"buffer_load_dword v29, v26, s[32:35], 0 offen")
        A.label(Lt)
    if Opt.codepf:
        Lp = A.newlabel("L_npf")
        A("s_cmp_eq_u32 s48, 6")
        A(f"s_cbranch_scc0 {Lp}")
        A("s_getpc_b64 s[50:51]")
        A.label("L_pc")
        A(f"s_sub_u32 s50, s50, L_pc-{NAME}_kernel")
        A("s_subb_u32 s51, s51, 0")
        A("s_sub_u32 s52, s99, 24")
        A("s_lshl_b32 s52, s52, 13")
        A("v_lshl_add_u32 v2, v1, 7, s52")
        A(f"v_min_u32 v2, L_code_end-{NAME}_kernel-4, v2")
        A("global_load_dword v24, v2, s[50:51]")
        A.label(Lp)
    if Opt.bwarm:
        Lw_ = A.newlabel("L_bw")
        A("s_cmp_eq_u32 s48, 7")
        A(f"s_cbranch_scc0 {Lw_}")
        A("s_sub_u32 s61, s99, 24")
        A("s_mul_i32 s60, s98, 80")
        A("s_mul_i32 s61, s61, 6")
        A("s_add_u32 s60, s60, s61")
        A("s_add_u32 s61, s60, 5")
        f0_lines(A, 60, 61, 12)
        A(f"buffer_load_dword v26, v12, s[{SWS}:{SWS+3}], s52 offen{SC}")
        if Opt.bwarm > 1:
            A("s_lshl_b32 s57, s98, 4")
            A("s_sub_u32 s58, s57, 16")
            A("v_min_u32 v12, 47, v1")
            A("v_add_u32 v12, s58, v12")
            A("v_max_i32 v12, 0, v12")
            A("v_min_u32 v12, 127, v12")
            A("v_lshlrev_b32 v12, 7, v12")
            A(f"s_mov_b32 s58, {F4:#x}")
            A(f"buffer_load_dword v27, v12, s[{SWS}:{SWS+3}], s58 offen{SC}")
        A.label(Lw_)
    Lnw = A.newlabel("L_nw")
    A("s_sub_u32 s61, s99, 24")
    A("s_lshl_b32 s60, s61, 1")
    A("s_add_u32 s60, s60, s48")
    A("s_sub_u32 s60, s60, 6")
    A("s_xor_b32 s61, s61, 20")
    A("s_cmp_eq_u32 s48, 5")
    A("s_cselect_b32 s60, s61, s60")
    A("s_lshl_b32 s60, s60, 3")
    A("s_add_u32 s60, s60, s98")
    A("s_cmp_ge_u32 s60, 160")
    A(f"s_cbranch_scc1 {Lnw}_a")
    srd(A, 36, S_WO, NB_WO)
    A("s_lshr_b32 s61, s60, 3")
    A("s_and_b32 s62, s60, 7")
    A(f"s_mul_i32 s53, s62, {80*1280}")
    A("s_lshl_b32 s54, s61, 6")
    A("s_add_u32 s53, s53, s54")
    A("v_lshrrev_b32 v2, 2, v1")
    A("v_and_b32 v3, 3, v1")
    A("v_mul_u32_u24 v4, 1280, v2")
    A("v_lshl_add_u32 v4, v3, 4, v4")
    A(f"s_mul_i32 s56, s48, {CV_LDS}")
    for i in range(5):
        A(f"s_add_u32 m0, s56, {1024*i}")
        A("buffer_load_dwordx4 v4, s[36:39], s53 offen lds")
        A(f"s_add_u32 s53, s53, {16*1280}")
    A.label(Lnw + "_a")
    if Opt.pfm:
        Le_ = A.newlabel("L_pme")
        A("s_and_b32 s50, s98, 3")
        A("s_lshr_b32 s51, s98, 2")
        A("s_and_b32 s52, s99, 3")
        A("s_lshl_b32 s53, s50, 1")
        A("s_add_u32 s53, s53, s51")
        A("s_lshl_b32 s53, s53, 2")
        A("s_add_u32 s53, s53, s52")
        A(f"s_mul_i32 s53, s53, {64*1280}")
        A("s_lshl_b32 s50, s50, 2")
        A("s_add_u32 s50, s50, s52")
        A("s_mul_i32 s52, s50, 52")
        A("s_lshr_b32 s52, s52, 8")
        A("s_add_u32 s52, s52, s51")
        A("s_mul_i32 s52, s52, 640")
        A("s_lshl_b32 s51, s50, 7")
        A("s_add_u32 s52, s52, s51")
        A("s_cmp_eq_u32 s50, 15")
        A(f"s_cselect_b32 s52, {NB_W:#x}, s52")
        A("s_cmp_lt_u32 s99, 28")
        A("s_cselect_b32 s51, s53, s52")
        A(f"s_cselect_b64 s[32:33], s[{S_X}:{S_X+1}], s[{S_W}:{S_W+1}]")
        A(f"s_mov_b32 s53, {NB_W:#x}")
        A(f"s_cselect_b32 s34, {NB_X:#x}, s53")
        A("s_mov_b32 s35, 0x20000")
        A("s_movk_i32 s53, 3840")
        A("s_cselect_b32 s52, 1280, s53")
        A(f"s_mov_b32 s53, {64*3840}")
        A("s_cselect_b32 s53, 128, s53")
        A("v_mul_u32_u24 v2, s52, v1")
        A("s_sub_u32 s50, s48, 5")
        A("s_lshl_b32 s50, s50, 2")
        for k in range(len(Opt.pfm) // 3):
            tab = Opt.pfm[3 * k] | Opt.pfm[3 * k + 1] << 4 | Opt.pfm[3 * k + 2] << 8
            A(f"s_lshr_b32 s54, {tab:#x}, s50")
            A("s_and_b32 s54, s54, 15")
            A("s_mul_i32 s52, s54, s53")
            A("s_cmp_ge_u32 s54, 10")
            A("s_cselect_b32 s52, 0x1000000, s52")
            A("s_add_u32 s52, s52, s51")
            A(f"buffer_load_dword v{30+k}, v2, s[32:35], s52 offen")
        A.label(Le_)
    if Opt.pfw or Opt.pfx:
        Lx_, Le_ = A.newlabel("L_pfx"), A.newlabel("L_pfe")
        A("s_cmp_eq_u32 s48, 5")
        A(f"s_cbranch_scc1 {Lx_}")
        A("s_lshl_b32 s50, s48, 3")
        A("s_add_u32 s50, s50, s99")
        A("s_sub_u32 s50, s50, 72")
        A("s_cmp_eq_u32 s50, 15")
        A(f"s_cbranch_scc1 {Le_}")
        A("s_mul_i32 s51, s50, 52")
        A("s_lshr_b32 s51, s51, 8")
        A("s_lshr_b32 s52, s98, 2")
        A("s_add_u32 s51, s51, s52")
        A("s_mul_i32 s51, s51, 640")
        A("s_lshl_b32 s50, s50, 7")
        A("s_add_u32 s51, s51, s50")
        srd(A, 32, S_W, NB_W)
        A("v_mul_u32_u24 v2, 3840, v1")
        for k, st in enumerate(Opt.pfw):
            A(f"s_add_u32 s50, s51, {st*64*3840}")
            A(f"buffer_load_dword v{30+k}, v2, s[32:35], s50 offen")
        A(f"s_branch {Le_}")
        A.label(Lx_)
        if Opt.pfx:
            A("s_and_b32 s51, s98, 3")
            A("s_lshl_b32 s51, s51, 3")
            A("s_add_u32 s51, s51, s99")
            A("s_sub_u32 s51, s51, 24")
            A(f"s_mul_i32 s51, s51, {64*1280}")
            srd(A, 32, S_X, NB_X)
            A("v_mul_u32_u24 v2, 1280, v1")
            for k, st in enumerate(Opt.pfx):
                A(f"buffer_load_dword v{30+k}, v2, s[32:35], s51 offen offset:{128*st}")
        A.label(Le_)
    if Opt.pft:
        tasks = []
        for st, which in Opt.pft:
            for c in (range(5) if which == "q" else range(5, 15)):
                tasks += [(st, c), (st + 5, c)]
        nsl = -(-len(tasks) // 24)
        tasks += [(15, 0)] * (24 * nsl - len(tasks))
        srd(A, 32, S_W, NB_W)
        A("v_mul_u32_u24 v2, 3840, v1")
        A("s_lshr_b32 s51, s98, 2")
        A("s_sub_u32 s50, s99, 24")
        A("s_lshl_b32 s50, s50, 3")
        for k in range(nsl):
            tab = [sum((tasks[24*k + 8*w + j][0] << 4 | tasks[24*k + 8*w + j][1]) << (8 * j) for j in range(8)) for w in range(3)]
            A(f"s_mov_b32 s52, {tab[0] & 0xffffffff:#x}")
            A(f"s_mov_b32 s53, {tab[0] >> 32:#x}")
            for w in (1, 2):
                A(f"s_cmp_eq_u32 s48, {5+w}")
                A(f"s_cselect_b32 s52, {tab[w] & 0xffffffff:#x}, s52")
                A(f"s_cselect_b32 s53, {tab[w] >> 32:#x}, s53")
            A("s_lshr_b64 s[52:53], s[52:53], s50")
            A("s_bfe_u32 s53, s52, 0x40004")
            A("s_and_b32 s52, s52, 15")
            A("s_mul_i32 s54, s52, 52")
            A("s_lshr_b32 s54, s54, 8")
            A("s_add_u32 s54, s54, s51")
            A("s_mul_i32 s54, s54, 640")
            A("s_lshl_b32 s52, s52, 7")
            A("s_add_u32 s52, s52, s54")
            A(f"s_mul_i32 s53, s53, {64*3840}")
            A("s_add_u32 s52, s52, s53")
            A(f"buffer_load_dword v{34+k}, v2, s[32:35], s52 offen")
        Opt.npft = nsl
    if Opt.gpf2:
        Lnp = A.newlabel("L_ng")
        A("s_lshl_b32 s50, s48, 3")
        A("s_add_u32 s50, s50, s99")
        A("s_sub_u32 s50, s50, 64")
        A("s_cmp_ge_u32 s50, 20")
        A("s_cselect_b32 s53, 0x1000000, 0")
        A("s_lshr_b32 s51, s50, 1")
        A("s_and_b32 s50, s50, 1")
        A("s_cmp_ge_u32 s51, 5")
        A("s_cselect_b32 s52, 640, 0")
        A("s_lshl_b32 s51, s51, 7")
        A("s_add_u32 s51, s51, s52")
        A("s_lshr_b32 s52, s98, 2")
        A("s_mul_i32 s52, s52, 640")
        A("s_add_u32 s51, s51, s52")
        A("s_add_u32 s51, s51, s53")
        A("s_add_u32 s51, s51, 1280")
        A("s_mul_i32 s50, s50, 5")
        if Opt.dlt:
            A("s_lshl_b32 s52, s98, 2")
            A(f"s_lshr_b32 s52, {Opt.dlt:#x}, s52")
            A("s_and_b32 s52, s52, 7")
            A("s_add_u32 s50, s50, s52")
        srd(A, 32, S_W, NB_W)
        A("v_mul_u32_u24 v2, 3840, v1")
        for k in range(Opt.gpf2, 5):
            A(f"s_add_u32 s52, s50, {k}")
            A("s_sub_u32 s53, s52, 10")
            A("s_cselect_b32 s52, s52, s53")
            A(f"s_mul_i32 s52, s52, {64*3840}")
            A("s_add_u32 s52, s52, s51")
            A(f"buffer_load_dword v{30+k}, v2, s[32:35], s52 offen")
        A.label(Lnp)
    if Opt.gpf:
        A("s_sub_u32 s50, s99, 24")
        A("s_mul_i32 s50, s50, 3")
        A("s_add_u32 s50, s50, s48")
        A("s_sub_u32 s50, s50, 5")
        A("s_and_b32 s51, s98, 3")
        A("s_lshl_b32 s51, s51, 3")
        A("s_add_u32 s51, s51, s50")
        A(f"s_mul_i32 s51, s51, {64*1280}")
        A("s_sub_u32 s52, s50, 8")
        A("s_mul_i32 s53, s52, 52")
        A("s_lshr_b32 s53, s53, 8")
        A("s_mul_i32 s53, s53, 640")
        A("s_lshl_b32 s52, s52, 7")
        A("s_add_u32 s52, s52, s53")
        A("s_lshr_b32 s53, s98, 2")
        A("s_mul_i32 s53, s53, 640")
        A("s_add_u32 s52, s52, s53")
        A("s_cmp_eq_u32 s50, 23")
        A(f"s_cselect_b32 s52, {NB_W:#x}, s52")
        A("s_cmp_lt_u32 s50, 8")
        A("s_cselect_b32 s51, s51, s52")
        A(f"s_cselect_b64 s[32:33], s[{S_X}:{S_X+1}], s[{S_W}:{S_W+1}]")
        A(f"s_mov_b32 s53, {NB_W:#x}")
        A(f"s_cselect_b32 s34, {NB_X:#x}, s53")
        A("s_mov_b32 s35, 0x20000")
        A("s_movk_i32 s53, 3840")
        A("s_cselect_b32 s52, 1280, s53")
        A(f"s_mov_b32 s53, {64*3840}")
        A("s_cselect_b32 s53, 128, s53")
        A("v_mul_u32_u24 v2, s52, v1")
        A(f"s_mul_i32 s52, s53, {Opt.gpf}")
        A("s_add_u32 s51, s51, s52")
        for k, st in enumerate(range(Opt.gpf, 10)):
            if k >= Opt.gpfd:
                A(f"s_waitcnt vmcnt({Opt.gpfd-1})")
            A(f"buffer_load_dword v{30+k}, v2, s[32:35], s51 offen")
            A("s_add_u32 s51, s51, s53")
    A("s_cmp_ge_u32 s60, 160")
    A(f"s_cbranch_scc1 {Lnw}")
    A("v_bfe_u32 v10, v1, 2, 2")
    A("v_lshrrev_b32 v11, 5, v1")
    A("v_and_b32 v12, 1, v1")
    A("v_lshlrev_b32 v12, 5, v12")
    A("v_bfe_u32 v13, v1, 4, 1")
    A("v_lshl_add_u32 v12, v13, 4, v12")
    A("v_bfe_u32 v13, v1, 1, 1")
    A("v_lshl_add_u32 v12, v13, 3, v12")
    A("v_lshl_add_u32 v12, v10, 6, v12")
    A("v_add_u32 v12, s56, v12")
    A("v_lshl_add_u32 v13, v11, 8, v12")
    A("v_mul_u32_u24 v14, 2560, v11")
    A("v_add_u32 v14, v14, v12")
    A("v_lshlrev_b32 v2, 4, v1")
    A(f"s_mul_i32 s53, s61, {Opt.wstr}")
    A(f"s_add_u32 s53, s53, {WS_WOT:#x}")
    A("s_lshl_b32 s54, s62, 10")
    A("s_add_u32 s54, s54, s53")
    A("s_add_u32 s54, s54, 32768")
    A("s_lshl_b32 s62, s62, 12")
    A("s_add_u32 s53, s53, s62")
    A("s_lshl_b32 s55, s60, 7")
    A(f"s_add_u32 s55, s55, {FW:#x}")
    if Opt.wback == 2:
        A("v_lshlrev_b32 v5, 7, v1")
        A("s_mov_b32 exec_hi, 0")
        A(f"buffer_load_dword v24, v5, s[{SWS}:{SWS+3}], s53 offen")
        A("s_mov_b32 exec_lo, 0xff")
        A(f"buffer_load_dword v25, v5, s[{SWS}:{SWS+3}], s54 offen")
        A("s_mov_b64 exec, -1")
    assert not (Opt.pfw or Opt.pfx or Opt.gpf)
    A(f"s_waitcnt vmcnt({len(Opt.pfm)//3 + (5-Opt.gpf2 if Opt.gpf2 else 0) + Opt.npft})")
    for hh in range(4):
        for half in range(2):
            A(f"ds_read_b64_tr_b16 {vr(40+4*hh+2*half,2)}, v13 offset:{(20*hh+8*half)*64}")
    for half in range(2):
        A(f"ds_read_b64_tr_b16 {vr(56+2*half,2)}, v14 offset:{(20*half+16)*64}")
    A("s_waitcnt lgkmcnt(0)")
    for hh in range(4):
        A(f"buffer_store_dwordx4 {vr(40+4*hh,4)}, v2, s[{SWS}:{SWS+3}], s53 offen offset:{1024*hh}{Opt.stw}")
    A(f"buffer_store_dwordx4 v[56:59], v2, s[{SWS}:{SWS+3}], s54 offen{Opt.stw}")
    A(f"s_mov_b64 s[{TAG}:{TAG+1}], 0")
    if Opt.tagl:
        A("s_waitcnt vmcnt(0)")
    tag_check(A, 8)
    set_flag(A, 8, "s55")
    stamp(A, 3)
    if Opt.wback == 1:
        A("v_lshlrev_b32 v5, 7, v1")
        A("s_mov_b32 exec_hi, 0")
        A(f"buffer_load_dword v24, v5, s[{SWS}:{SWS+3}], s53 offen")
        A("s_mov_b32 exec_lo, 0xff")
        A(f"buffer_load_dword v25, v5, s[{SWS}:{SWS+3}], s54 offen")
        A("s_mov_b64 exec, -1")
    A.label(Lnw)
    A("s_setprio 0")
    b_channel(A)
    if Opt.hdef == 1:
        A("s_lshl_b32 s50, s49, 12")
    else:
        conv_load_h(A, 2)
    A(f"v_mov_b32 v4, {B_MB+256}")
    A("v_mov_b32 v5, 0")
    A("ds_write_b32 v4, v5")
    A("ds_write_b32 v4, v5 offset:512")


def conv_setup(A):
    A("v_lshlrev_b32 v2, 4, v1")
    A("s_lshl_b32 s52, s49, 1")
    A("s_and_b32 s52, s52, 0xfffffffc")
    A(f"s_load_dword s55, s[{S_SSD}:{S_SSD+1}], s52")
    A(f"s_load_dword s54, s[{S_SSK}:{S_SSK+1}], s50")
    A(f"s_mul_i32 s51, s49, {Opt.pit}")
    A(f"s_add_u32 s51, s51, {WS_KVT:#x}")
    for i in range(4):
        A(f"v_mov_b32 v{4+i}, 0")
    A("v_add_u32 v3, s56, v2")
    A("s_mov_b64 exec, 0xf")
    A("ds_write_b128 v3, v[4:7]")
    A("s_mov_b32 exec_lo, -1")
    A(f"ds_write_b128 v3, v[4:7] offset:{64+4096}")
    A("s_mov_b64 exec, -1")
    A("v_and_b32 v11, 3, v1")
    A("v_lshrrev_b32 v10, 4, v1")
    A("v_bfe_u32 v12, v1, 2, 2")
    A("v_lshlrev_b32 v8, 4, v11")
    A("v_lshl_add_u32 v8, v10, 6, v8")
    A("v_lshlrev_b32 v9, 3, v12")
    A("v_sub_u32 v8, v8, v9")
    A("s_add_u32 s57, s56, 32")
    A("v_add_u32 v8, s57, v8")
    A("v_sub_u32 v9, v11, v10")
    A("v_lshlrev_b32 v9, 6, v9")
    A("v_lshl_add_u32 v9, v12, 4, v9")
    A(f"s_add_u32 s57, s56, {64+4096+512}")
    A("v_add_u32 v9, s57, v9")
    A("v_mov_b32 v13, 0xffff")
    for i in range(4):
        A(f"v_cmp_eq_u32 vcc, {4*i}, v1")
        A(f"v_cndmask_b32 v{MK+i}, 0, v13, vcc")
    A("v_add_u32 v13, 3, v11")
    A("v_and_b32 v13, 3, v13")
    A("v_lshl_add_u32 v13, v12, 2, v13")
    A("v_add_u32 v13, 48, v13")
    A("v_subrev_u32 v14, 16, v1")
    A("v_cmp_gt_u32 vcc, 16, v1")
    A("v_cndmask_b32 v14, v14, v13, vcc")
    A("v_lshlrev_b32 v14, 2, v14")
    A("s_mov_b32 s58, 0x1111")
    A("s_mov_b32 s59, 0")


MK = 16


def role_conv(A):
    conv_setup(A)
    A("s_sub_u32 s61, s99, 24")
    A("s_lshl_b32 s62, s98, 3")
    A("s_add_u32 s62, s62, s61")
    A("s_lshl_b32 s62, s62, 7")
    A(f"s_add_u32 s62, s62, {F0:#x}")
    A("s_mul_i32 s60, s98, 80")
    A("s_mul_i32 s61, s61, 6")
    A("s_add_u32 s60, s60, s61")
    A("s_add_u32 s61, s60, 5")
    f0_lines(A, 60, 61, 12)
    A(f"s_waitcnt vmcnt({4 if Opt.hdef == 2 else 0}) lgkmcnt(0)")
    stamp(A, 4)
    A("s_barrier")
    def xload():
        A(f"s_add_u32 m0, s56, {64+4096+512}")
        for i in range(4):
            A(f"buffer_load_dwordx4 v2, s[{SWS}:{SWS+3}], s51 offen offset:{1024*i}{SC} lds")

    Lh, Ln7 = A.newlabel("L_hd"), A.newlabel("L_n7")
    A("s_cmp_eq_u32 s48, 7")
    A(f"s_cbranch_scc0 {Lh}")
    set_flag(A, 22, "s62")
    A.label(Lh)
    A("s_barrier")
    conv_load_h(A, 2)
    A("s_cmp_eq_u32 s48, 7")
    A(f"s_cbranch_scc0 {Ln7}")
    if Opt.hq == 2:
        A("s_waitcnt vmcnt(0)")
    poll(A, 26, 12, "s52", sleep=Opt.f0s)
    A.label(Ln7)
    A("s_barrier")
    stamp(A, 8)
    xload()
    A("s_waitcnt vmcnt(4)")
    A("s_cmp_ge_u32 s48, 4")
    A("s_cbranch_scc0 L_cb")
    A("s_setprio 1")
    A("s_branch L_cb")
    A.label("L_conv")
    RA, RB = 64, 192
    ACCS = (32, 40, 48, 56)
    CAR, PUL, TMP = 20, (21, 22), 23
    OUT = (24, 28)

    def rdA(m, e):
        reg = RA + 8 * m + 4 * e
        return [(f"ds_read_b64_tr_b16 {vr(reg,2)}, v8 offset:{256*m+8*e+32}", None),
                (f"ds_read_b64_tr_b16 {vr(reg+2,2)}, v8 offset:{256*m+8*e}", ("A", m, e))]

    Lb, Lg = "L_cb", A.newlabel("L_cg")
    tag_check(A, 22)
    if Opt.qlate in (1, 3):
        conv_load_h(A, 2)
        A("s_barrier")
        lds_wait(A, 22, L_SYNC + (52 if Opt.qlate == 3 else 0), 4, sleep=2)
        A(f"buffer_load_dwordx2 v[22:23], v12, s[{SWS}:{SWS+3}], s52 offen{SC}")
        A("s_waitcnt vmcnt(0)")
    elif Opt.qlate == 2:
        A("s_barrier")
        lds_wait(A, 22, L_SYNC, 4, sleep=2)
        A(f"buffer_load_dwordx2 v[22:23], v12, s[{SWS}:{SWS+3}], s52 offen{SC}")
        conv_load_h(A, 2)
        A("s_waitcnt vmcnt(4)")
    else:
        conv_load_h(A, 2)
        A(f"buffer_load_dwordx2 v[22:23], v12, s[{SWS}:{SWS+3}], s52 offen{SC}")
        A("s_barrier")
        A("s_waitcnt vmcnt(0)")
    A(f"v_cmp_eq_u64 vcc, s[{TAG}:{TAG+1}], v[22:23]")
    A("s_cmp_eq_u64 vcc, -1")
    Lx = A.newlabel("L_cx")
    A(f"s_cbranch_scc1 {Lx}")
    poll(A, 22, 12, "s52", sleep=8)
    A.label(Lx)
    if Opt.qlate == 3:
        lds_wait(A, 22, L_SYNC, 4, sleep=1)
    stamp(A, 8)
    xload()
    if Opt.qlate:
        lds_arrive(A, 22, L_SYNC)
        A("s_waitcnt vmcnt(4)")
    A.label(Lb)
    A("s_waitcnt lgkmcnt(0)")
    A("s_lshl_b32 s54, s54, 16")
    A("s_lshl_b32 s53, s55, 16")
    A("s_and_b32 s55, s55, 0xffff0000")
    A("s_bitcmp1_b32 s49, 0")
    A("s_cselect_b32 s53, s55, s53")
    A("v_mov_b32 v15, s54")
    A("v_add_f32 v15, s53, v15")
    A("v_cvt_pk_bf16_f32 v15, v15, v15")
    T = Lgkm(A)
    for m in range(16):
        for e in range(2):
            for x, tg in rdA(m, e):
                T.issue(x, tg)
    T.wait(("A", 0, 1))
    for k in range(4):
        A(f"v_bfi_b32 v{RA+k}, v{MK+k}, v15, v{RA+k}")
        A(f"v_lshlrev_b32 v{MK+k}, 16, v{MK+k}")
        A(f"v_bfi_b32 v{RA+4+k}, v{MK+k}, v15, v{RA+4+k}")
    T.all()
    A(f"s_add_u32 s51, s51, {WS_YT-WS_KVT:#x}")
    A(f"v_mov_b32 v{PUL[1]}, 0")

    def epilogue(i):
        V = ACCS[i % 4]
        dpp = lambda d, src, op: f"v_add_f32_dpp v{d}, v{src}, v{d} {op} row_mask:0xf bank_mask:0xf"
        L = [f"v_mov_b32 v{CAR}, 0"]
        for k in (1, 2, 3):
            L += [dpp(V, V + k, f"row_shr:{4*k}"), dpp(V + 4, V + 4 + k, f"row_shr:{4*k}"), dpp(CAR, V + 4 + k, f"row_shl:{16-4*k}")]
        L.append(("ds", f"ds_bpermute_b32 v{PUL[i&1]}, v14, v{CAR}", ("P", i)))
        x = [dpp(V + 4, V + k, f"row_shl:{16-4*k}") for k in (1, 2, 3)]
        L += [x[0], "GAP", x[1], "GAP", x[2]]
        L.append(("wait", ("P", i)))
        L.append(f"v_cndmask_b32 v{TMP}, v{PUL[i&1]}, v{PUL[1-(i&1)]}, s[58:59]")
        L.append(f"v_add_f32 v{V}, v{V}, v{TMP}")
        L.append(f"v_cvt_pk_bf16_f32 v{OUT[(i>>2)&1]+(i&3)}, v{V}, v{V+4}")
        if i & 3 == 3:
            L.append(f"buffer_store_dwordx4 {vr(OUT[(i>>2)&1],4)}, v2, s[{SWS}:{SWS+3}], s51 offen offset:{1024*(i>>2)}{SC}")
        return L

    def emit(x):
        if isinstance(x, tuple):
            if x[0] == "ds":
                T.issue(x[1], x[2])
            else:
                T.wait(x[1])
        elif x != "GAP":
            A(x)

    A("s_waitcnt vmcnt(0)")
    stampw(A, 9)

    def stream(tiles, exit_at=None, keep=None):
        T.tag.clear()
        for w in range(16):
            T.issue(f"ds_read_b128 {vr(RB+4*w,4)}, v9 offset:{256*w}", ("B", w))
        fill = []
        since = 99
        for i in tiles:
            V = ACCS[i % 4]
            while fill and fill[0][0] <= i - 4:
                emit(fill.pop(0)[1])
            if exit_at and i == exit_at[0]:
                while fill and fill[0][0] <= i - 2:
                    emit(fill.pop(0)[1])
                assert len(fill) == len(epilogue(i - 1))
                A("s_cmp_ge_u32 s48, 4")
                A(f"s_cbranch_scc1 {exit_at[1]}")
            since = 0
            for w in range(i + 1):
                for e in range(2):
                    T.wait(("B", w))
                    c = vr(V + 4 * e, 4) if w else "0"
                    A(f"v_mfma_f32_16x16x32_bf16 {vr(V+4*e,4)}, {vr(RA+8*(i-w)+4*e,4)}, {vr(RB+4*w,4)}, {c}")
                    since += 1
                    left = 2 * (i + 1) - since
                    due = len([1 for t_, _x in fill if t_ <= i - 2])
                    if i == tiles[-1] or (exit_at and i == exit_at[0] - 1):
                        due = len(fill)
                    for _ in range(2 if due > left else 1):
                        if fill and (fill[0][0] < i - 1 or since >= 6):
                            emit(fill.pop(0)[1])
            ep = epilogue(i)
            if keep and i == keep[0]:
                k = [j for j, x in enumerate(ep) if isinstance(x, str) and x.startswith("v_cvt")][0]
                ep = ep[:k] + [f"v_mov_b32 v{keep[1]}, v{V}", f"v_mov_b32 v{keep[1]+1}, v{V+4}"] + ep[k + 1:]
            fill += [(i, x) for x in ep]
        stampw(A, 10)
        T.done = T.n if Ctx.stamps else T.done
        return [x for _, x in fill]

    A("s_cmp_ge_u32 s48, 6")
    A("s_cbranch_scc1 L_second")
    for x in stream(range(16), (12, "L_first")):
        emit(x)
    A("s_branch L_cdone")
    A.label("L_first")
    A("s_waitcnt lgkmcnt(0)")
    A("s_nop 6")
    T.done = T.n
    stampw(A, 10)
    for x in epilogue(11):
        emit(x)
    A("s_and_b32 s52, s48, 1")
    A("s_lshl_b32 s52, s52, 9")
    A(f"s_add_u32 s52, s52, {B_MB}")
    A("v_lshl_add_u32 v10, v1, 2, s52")
    A(f"ds_write_b32 v10, v{PUL[1]}")
    A("s_add_u32 s52, s52, 256")
    lds_arrive(A, 10, "s52")
    A("s_branch L_cdone")
    A.label("L_second")
    T.done = T.n
    last = stream(range(12, 16), keep=(12, 4))
    for x in last[:-1]:
        emit(x)
    A("s_and_b32 s52, s48, 1")
    A("s_lshl_b32 s52, s52, 9")
    A(f"s_add_u32 s52, s52, {B_MB}")
    A("v_lshl_add_u32 v12, v1, 2, s52")
    A("s_add_u32 s52, s52, 256")
    lds_wait(A, 10, "s52", 1, sleep=2)
    A(f"ds_read_b32 v{TMP}, v12")
    A("s_waitcnt lgkmcnt(0)")
    A(f"v_cndmask_b32 v{TMP}, 0, v{TMP}, s[58:59]")
    A(f"v_add_f32 v4, v4, v{TMP}")
    A(f"v_cvt_pk_bf16_f32 v{OUT[1]}, v4, v5")
    A(last[-1])
    A.label("L_cdone")
    A("s_waitcnt vmcnt(0)")
    stamp(A, 11)
    A("s_cmp_ge_u32 s99, 24")
    A("s_cbranch_scc1 L_bdone")
    A(f"v_mov_b32 v10, {L_SYNC+12}")
    A("v_mov_b32 v11, 1")
    A("s_mov_b64 exec, 1")
    A("ds_add_rtn_u32 v12, v10, v11")
    A("s_mov_b64 exec, -1")
    A("s_lshl_b32 s52, s98, 4")
    A("s_add_u32 s52, s52, s99")
    A("s_lshl_b32 s52, s52, 7")
    A(f"s_add_u32 s52, s52, {F4+8*128:#x}")
    A("s_waitcnt lgkmcnt(0)")
    A("v_readfirstlane_b32 s53, v12")
    A("s_cmp_eq_u32 s53, 3")
    A("s_cbranch_scc0 L_bend")
    set_flag(A, 10, "s52")
    A("s_branch L_bend")
    A.label("L_bdone")


def role_post(A):
    SQ, SO = 32, 36
    A.label("L_post")
    A("s_setprio 0")
    A("s_and_b32 s48, s48, 3")
    if Opt.p3:
        A("s_mul_i32 s50, s99, 3")
        A("s_sub_u32 s50, s50, 73")
        A("s_lshl_b32 s51, s99, 2")
        A("s_add_u32 s51, s51, 8")
    else:
        A("s_sub_u32 s50, s99, 24")
        A("s_lshl_b32 s50, s50, 2")
        A("s_lshl_b32 s51, s99, 1")
        A("s_add_u32 s51, s51, 24")
    A("s_cmp_ge_u32 s99, 24")
    A("s_cselect_b32 s50, s50, s51")
    A("s_mul_i32 s49, s98, 40")
    A("s_add_u32 s49, s49, s50")
    A("s_add_u32 s49, s49, s48")
    A("s_and_b32 s50, s49, 31")
    A("s_lshr_b32 s51, s49, 5")
    A("v_lshrrev_b32 v2, 3, v1")
    A("v_and_b32 v3, 7, v1")
    A(f"v_mul_u32_u24 v4, {Opt.pit}, v2")
    A("v_lshl_add_u32 v4, v3, 4, v4")
    A(f"s_mul_i32 s52, s51, {64*Opt.pit}")
    A("s_lshl_b32 s53, s50, 7")
    A("s_add_u32 s52, s52, s53")
    A(f"s_add_u32 s52, s52, {WS_YT:#x}")
    A("s_mul_i32 s56, s48, 8320")
    A(f"s_add_u32 s56, s56, {B_PRE}")
    A("s_lshr_b32 s54, s50, 3")
    A("s_lshl_b32 s54, s54, 9")
    A("s_bfe_u32 s55, s50, 0x20001")
    A("s_lshl_b32 s55, s55, 3")
    A("s_add_u32 s54, s54, s55")
    A("s_and_b32 s55, s50, 1")
    A("s_lshl_b32 s55, s55, 1")
    A("s_add_u32 s54, s54, s55")
    A("v_and_b32 v5, 3, v2")
    A("v_lshrrev_b32 v6, 2, v2")
    A("v_lshl_add_u32 v5, v5, 5, v6")
    A("v_mul_u32_u24 v6, 1280, v5")
    A("v_lshlrev_b32 v7, 1, v6")
    A("v_lshl_add_u32 v6, v3, 4, v6")
    A("v_lshl_add_u32 v7, v3, 4, v7")
    A("s_mul_i32 s54, s54, 1280")
    A("s_lshl_b32 s53, s51, 7")
    A("s_lshl_b32 s55, s54, 1")
    A("s_add_u32 s54, s54, s53")
    A("s_add_u32 s55, s55, s53")
    A("s_add_u32 s55, s55, 1280")
    srd(A, SQ, S_BQ, NB_X)
    srd(A, SO, S_OUT, NB_OUT)
    QR, YR = 16, 48
    rows = [0, 4, 128, 132, 256, 260, 384, 388]
    for i in range(8):
        A(f"s_add_u32 s57, s54, {rows[i]*1280}")
        A(f"buffer_load_dwordx4 {vr(QR+4*i,4)}, v6, s[{SQ}:{SQ+3}], s57 offen{Opt.ntq}")
    A("s_mov_b32 s59, 0xffff0000")
    QF = 128
    A("s_waitcnt vmcnt(0)")
    for i in range(32):
        A(f"v_lshlrev_b32 v{QF+2*i}, 16, v{QR+i}")
        A(f"v_and_b32 v{QF+2*i+1}, s59, v{QR+i}")
    A("s_lshl_b32 s57, s98, 4")
    A("s_sub_u32 s58, s57, 16")
    A("v_min_u32 v12, 47, v1")
    A("v_add_u32 v12, s58, v12")
    A("v_max_i32 v12, 0, v12")
    A("v_min_u32 v12, 127, v12")
    if Opt.gate:
        A(f"v_add_u32 v12, {(F4-WS_FLAG)//128}, v12")
        A("s_lshl_b32 s58, s98, 6")
        A(f"s_add_u32 s58, s58, {(F3-WS_FLAG)//128 - 48*4}")
        A("v_lshl_add_u32 v13, v1, 2, s58")
        A(f"v_cmp_lt_u32 vcc, {63-Opt.gate}, v1")
        A("v_cndmask_b32 v12, v12, v13, vcc")
    A("v_lshlrev_b32 v12, 7, v12")
    A("s_add_u32 s57, s57, s99")
    A("s_lshl_b32 s57, s57, 7")
    A(f"s_add_u32 s57, s57, {F4-24*128:#x}")
    A(f"s_mov_b32 s58, {WS_FLAG if Opt.gate else F4:#x}")
    Lx, Lq, Ld = A.newlabel("L_p7"), A.newlabel("L_pq"), A.newlabel("L_pd")
    A("s_cmp_ge_u32 s99, 24")
    A(f"s_cbranch_scc0 {Lq}")
    A("s_barrier")
    A("s_cmp_eq_u32 s48, 3")
    A(f"s_cbranch_scc0 {Lx}")
    set_flag(A, 8, "s57")
    poll(A, 14, 12, "s58", sleep=Opt.f4s)
    A.label(Lx)
    A("s_barrier")
    A(f"s_branch {Ld}")
    A.label(Lq)
    A("s_barrier")
    A("s_cmp_eq_u32 s48, 0")
    A(f"s_cbranch_scc0 {Lx}")
    poll(A, 14, 12, "s58", sleep=Opt.f4s)
    A(f"s_branch {Lx}")
    A.label(Ld)
    if Opt.dB:
        A(f"s_sleep {Opt.dB}")
    stamp(A, 12)
    for i in range(8):
        A(f"v_xor_b32 v8, {16*i}, v4")
        A(f"s_add_u32 m0, s56, {1024*i}")
        A(f"buffer_load_dwordx4 v8, s[{SWS}:{SWS+3}], s52 offen{SC} lds")
        if i < 7:
            A(f"s_add_u32 s52, s52, {8*Opt.pit}")
    A("v_xor_b32 v8, v2, v3")
    A("v_lshlrev_b32 v8, 4, v8")
    A("v_lshl_add_u32 v8, v3, 10, v8")
    A("v_add_u32 v8, s56, v8")
    A("s_waitcnt vmcnt(0)")
    for c in range(8):
        A(f"ds_read_b128 {vr(YR+4*c,4)}, v8 offset:{128*c}")
    A("s_waitcnt lgkmcnt(0)")
    stamp(A, 13)
    YF, OUT = 80, 96
    for i in range(8):
        for c in range(8):
            if i & 1:
                A(f"v_and_b32 v{YF+c}, s59, v{YR+4*c+i//2}")
            else:
                A(f"v_lshlrev_b32 v{YF+c}, 16, v{YR+4*c+i//2}")
        for c in range(0, 8, 2):
            A(f"v_pk_mul_f32 {vr(YF+c,2)}, {vr(YF+c,2)}, {vr(QF+8*i+c,2)}")
        for k in range(4):
            A(f"v_cvt_pk_bf16_f32 v{OUT+4*i+k}, v{YF+2*k}, v{YF+2*k+1}")
        A(f"s_add_u32 s57, s55, {rows[i]*2560}")
        A(f"buffer_store_dwordx4 {vr(OUT+4*i,4)}, v7, s[{SO}:{SO+3}], s57 offen{Opt.oscb}")
    stamp(A, 14)


def build():
    A = Asm()
    k = NAME + "_kernel"
    A.raw(f".globl {k}")
    A.raw(".p2align 8")
    A.raw(f".type {k},@function")
    A.label(k)
    if Opt.hold:
        A("s_memrealtime s[64:65]")
    load_kernargs(A)
    if Opt.lite:
        A("s_memrealtime s[64:65]")
    elif not Opt.hp:
        if Opt.rt:
            for k_ in range(2, 15):
                A(f"s_mov_b32 s{64+2*k_}, 0")
            stamp(A, 0, True)
        else:
            stamp_init(A)
        if Opt.rt:
            stamp(A, 1)
    A("v_lshrrev_b32 v2, 6, v0")
    A("v_and_b32 v1, 63, v0")
    A("v_readfirstlane_b32 s100, v2")
    A("s_and_b32 s98, s2, 7")
    A("s_lshr_b32 s99, s2, 3")
    A("s_cmp_ge_u32 s2, 192")
    A("s_cbranch_scc1 L_b")
    A("s_and_b32 s49, s2, 3")
    A("s_lshl_b32 s49, s49, 2")
    A("s_and_b32 s50, s99, 3")
    A("s_add_u32 s49, s49, s50")
    A("s_bfe_u32 s52, s2, 0x10002")
    A("s_lshr_b32 s53, s2, 5")
    A("s_lshl_b32 s54, s52, 1")
    A("s_add_u32 s54, s54, s53")
    A("s_lshl_b32 s55, s52, 2")
    A("s_add_u32 s55, s55, s53")
    A("s_sub_u32 s55, s55, 2")
    A("s_cmp_lt_u32 s2, 64")
    A("s_cselect_b32 s50, s54, s55")
    A("s_cselect_b32 s51, 1, 0")
    A("s_and_b32 s48, s100, 3")
    A("s_cmp_ge_u32 s100, 4")
    A("s_cbranch_scc1 L_c")
    role_loader(A)
    A.label("L_c")
    role_compute(A)
    A.label("L_b")
    A("s_cmp_ge_u32 s2, 256")
    A("s_cbranch_scc1 L_exit")
    A("s_mov_b32 s48, s100")
    A("s_cmp_ge_u32 s48, 5")
    A("s_cbranch_scc1 L_help")
    role_pre(A)
    A("s_branch L_bconv")
    A.label("L_help")
    role_helper(A)
    A.label("L_bconv")
    role_conv(A)
    A(f"s_cmp_lt_u32 s48, {5 if Opt.p3 else 4}")
    A("s_cbranch_scc1 L_bend")
    role_post(A)
    A.label("L_bend")
    end_wave(A, "b")
    A.label("L_exit")
    A("s_endpgm")
    A.label("L_code_end")
    head = [
        "; Hedgehog linear attention (cols 0..639) + H3 long convolution (cols 640..1279), one persistent launch.",
        "; Written with the generator script gen/f21.py (hand-scheduled instruction lists, own wait-state pass).",
        "; kernarg (s[0:1]): x, wqkv, w_phi, wo, q, k, v, shift_k, ssm_k, ssm_D, out, debug, ws (8 bytes each).",
        "; 256 workgroups x 8 waves, one per CU; wg = 8 i + x:",
        ";   i 0..7   Q : 128x160 tile of x@Wq -> pq (bf16) ; then 4 conv channels ; i<4 also a wo tile, i>=4 gate tiles",
        ";   i 8..23  KV: 128x160 tile of x@[Wk|Wv] -> softmax features -> partial phi_k^T [v 1] ; o = num/den ; wo tile",
        ";   i 24..31 B : shift conv * v (transposed), wo in fragment order, 6 conv channels, gate tiles",
        "; waves 0..3 of Q/KV stream operands (LDS DMA), waves 4..7 compute.  Hand-offs between workgroups go through",
        "; d_ws with write-through stores and one flag line per producer; flags carry this launch's tag (epoch word + 1,",
        "; published in d_debug).  The long convolution is a polyphase Toeplitz product on the matrix cores.",
        "; @launch grid=(256,1,1) block=(512,1,1) lds=163840"]
    txt = "\n".join(head) + '\n.amdgcn_target "amdgcn-amd-amdhsa--gfx950"\n.text\n' + A.text()
    txt += f'''.section .rodata,"a"
.p2align 6
.amdhsa_kernel {k}
  .amdhsa_next_free_vgpr 256
  .amdhsa_next_free_sgpr 102
  .amdhsa_accum_offset 256
  .amdhsa_group_segment_fixed_size 0
  .amdhsa_kernarg_size 104
  .amdhsa_user_sgpr_count 2
  .amdhsa_user_sgpr_kernarg_segment_ptr 1
  .amdhsa_system_sgpr_workgroup_id_x 1
.end_amdhsa_kernel
'''
    return txt


if __name__ == "__main__":
    args = sys.argv[2:]
    Ctx.stamps = "stamps" in args
    Opt.rot = "norot" not in args
    Opt.codepf = "nocodepf" not in args
    for a in args:
        if a.startswith("probe="):
            Opt.probe = tuple(int(x) for x in a[6:].split(","))
        if a.startswith("holdwg="):
            Opt.holdwg = int(a[7:])
        if a.startswith("osc="):
            Opt.osc = a[4:].replace("_", " ")
        if a.startswith("oscb="):
            Opt.oscb = a[5:].replace("_", " ")
        if a.startswith("gpf="):
            Opt.gpf = int(a[4:])
        if a.startswith("gpfd="):
            Opt.gpfd = int(a[5:])
        if a.startswith("rotA="):
            Opt.rotA = int(a[5:], 16)
        if a.startswith("rotB="):
            Opt.rotB = int(a[5:], 16)
        if a == "fake16":
            Opt.fake16 = True
        if a.startswith("qdelay="):
            Opt.qdelay = int(a[7:])
        if a.startswith("bpos="):
            Opt.bpos = int(a[5:])
        if a == "lidle":
            Opt.lidle = True
        if a == "qwait":
            Opt.qwait = True
        if a == "nofwarm":
            Opt.fwarm = False
        if a == "noprog":
            Opt.prog = False
        if a == "dflag":
            Opt.dflag = True
        if a == "lite":
            Opt.lite = True
            Ctx.stamps = True
        if a.startswith("wos="):
            Opt.wos = int(a[4:])
        if a.startswith("R="):
            Opt.R = int(a[2:])
        if a.startswith("hdef="):
            Opt.hdef = int(a[5:])
        if a.startswith("gpf2="):
            Opt.gpf2 = int(a[5:])
        if a.startswith("oahead="):
            Opt.oahead = int(a[7:])
        if a.startswith("hpsel="):
            Opt.hpsel = a[6:]
        if a.startswith("bdelay="):
            Opt.bdelay = int(a[7:])
        if a.startswith("qdel="):
            Opt.qdel = int(a[5:])
        if a == "snake":
            Opt.snake = True
        if a == "wrot":
            Opt.wrot = True
        if a.startswith("wfirst="):
            Opt.wfirst = int(a[7:])
        if a.startswith("wearly="):
            Opt.wearly = int(a[7:])
        if a.startswith("fwat="):
            Opt.fwat = int(a[5:])
        if a.startswith("only="):
            Opt.only = [0, 1, 15] + [int(x) for x in a[5:].split(",")]
        if a.startswith("touch="):
            Opt.touch = int(a[6:])
        if a.startswith("tsh="):
            Opt.tsh = int(a[4:])
        for nm in ("ldw", "ldo", "ldp", "stw", "ntk", "nth", "ntq"):
            if a.startswith(nm + "="):
                setattr(Opt, nm, a[4:].replace("_", " "))
        if a.startswith("wback="):
            Opt.wback = int(a[6:])
        if a.startswith("wthr="):
            Opt.wthr = int(a[5:])
        if a.startswith("wstr="):
            Opt.wstr = int(a[5:])
        if a == "fullout":
            Opt.fullout = True
        if a == "noearly":
            Opt.noearly = True
        if a.startswith("lprio="):
            Opt.lprio = int(a[6:])
        if a.startswith("lprio0="):
            Opt.lprio0 = int(a[7:])
        if a.startswith("wmid="):
            Opt.wmid = int(a[5:])
        if a.startswith("pfw="):
            Opt.pfw = [int(c) for c in a[4:]]
            Opt.gpf2 = 0
        if a.startswith("pfx="):
            Opt.pfx = [int(c) for c in a[4:]]
            Opt.gpf2 = 0
        if a.startswith("pfm="):
            Opt.pfm = [int(c, 16) for c in a[4:]]
        if a.startswith("wbf="):
            Opt.wbf = int(a[4:])
        if a.startswith("qlate="):
            Opt.qlate = int(a[6:])
        if a.startswith("wpk="):
            Opt.wpk = int(a[4:])
        for nm in ("f0s", "tgs", "f2s", "f4s", "tagl", "pit", "p3", "pqsync", "qpipe", "lag", "f2all", "f1all", "fww", "lws", "hq", "jit", "jitp", "mdelay", "oa", "oe", "rot4", "wdel", "al", "alr", "gate"):
            if a.startswith(nm + "="):
                setattr(Opt, nm, int(a.split("=")[1]))
        if a.startswith("bwarm="):
            Opt.bwarm = int(a[6:])
        if a.startswith("pft="):
            v_ = a[4:]
            Opt.pft = [(int(v_[i]), v_[i + 1]) for i in range(0, len(v_), 2)]
            Opt.gpf2 = 0
        if a.startswith("par="):
            Opt.par = int(a[4:], 16)
        if a.startswith("obar="):
            Opt.obar = [int(x) for x in a[5:].split(",")]
        if a.startswith("dlt="):
            Opt.dlt = int(a[4:], 16)
            Opt.rot4 = 1
        if a == "rt":
            Opt.rt = True
        if a.startswith("hp="):
            Opt.hp = int(a[3:])
            Ctx.stamps = True
        if a.startswith("hold="):
            Opt.hold = int(a[5:])
        if a.startswith("dA="):
            Opt.dA = int(a[3:])
        if a.startswith("dB="):
            Opt.dB = int(a[3:])
        if a == "nowomall":
            Opt.womall = False
        if a == "noppoll":
            Opt.ppoll = False
        if a.startswith("psleep="):
            Opt.psleep = int(a[7:])
        if a.startswith("wopf="):
            Opt.wopf = a[5:]
    for a in args:
        if a.startswith("LA="):
            Opt.LA = int(a[3:])
    txt = build()
    if Opt.al:
        from align import align
        txt, np_, nn_ = align(txt, minrun=Opt.alr, mf=Opt.al == 2)
        print("aligned: promoted", np_, "nops", nn_, file=sys.stderr)
    open(sys.argv[1], "w").write(txt)
```

```python
import sys
from asm import Asm, vr, ar, sr
from roles import (WS_PHIQ, WS_PART, WS_O, WS_KVT, WS_YT, WS_STAMP, WS_SIZE, S_X, S_W, S_WPHI, S_WO, S_BQ, S_BK, S_BV,
                   S_SH, S_SSK, S_SSD, S_OUT, S_DBG, S_WS, NB_X, NB_W, NB_WPHI, NB_WO, NB_SH, NB_SSK, NB_OUT, LOG2E,
                   Ctx, load_kernargs, srd, stamp, stamp_init, softmax20)

NAME = "concat_heads__linear_kernel_hedgehog__ssm_conv_h3__prompt"
WS_PQ = WS_PHIQ
WS_PART, WS_O, WS_KVT, WS_YT = 0x380000, 0x4C0000, 0x740000, 0xA40000
WS_FLAG = 0xF00000
F1, F2, F3, F0, F4 = (WS_FLAG + 128 * o for o in (0, 512, 1024, 1536, 1856))
FW = WS_FLAG + 128 * 2048
WS_WOT = 0x280000
WS_EPOCH = WS_FLAG + 128 * 2560 + 64
SWS = 44
SC = " sc1"
TAG = 30
SLOT = 36864
L_WP = 147456
L_Z = L_WP + 8192
L_SYNC = L_Z + 4096
L_V = 128 * 336
L_WOB = 69632
L_OT = 65536
CV_LDS = 8768
L_QCV = 3 * SLOT
B_PRE = 8 * CV_LDS
B_MB = B_PRE + 5 * 8320


class Opt:
    rot = True
    LA = 2
    ntk = ""
    nth = " nt"
    ntq = " nt"
    codepf = True
    wopf = "no"
    osc = " sc1 nt"
    oscb = " sc1 nt"
    hp = 0
    wsh = 0
    lean = 0
    alm = 0
    gate = 0
    al = 1
    alr = 3
    wdel = 0
    dlt = 0
    rot4 = 0
    oa = 10
    oe = 1
    obar = [0, 8, 16, 32, 48, 64]
    jit = 0
    jitp = 8
    mdelay = 0
    hq = 1
    lws = 0
    fww = 0
    f2all = 0
    f1all = 0
    lag = 0
    qpipe = 0
    pft = []
    npft = 0
    pqsync = 0
    p3 = 1
    pit = 4352
    bwarm = 2
    f0s = 4
    tgs = 8
    f2s = 4
    f4s = 4
    tagl = 0
    wpk = 22
    qlate = 1
    wbf = 6
    pfm = [2, 7, 15]
    pfw = []
    pfx = []
    wmid = 32
    lprio = 0
    lprio0 = 1
    stw = SC
    noearly = False
    fullout = True
    wthr = 0
    wstr = 40960
    wback = 0
    ldw = SC
    ldo = SC
    ldp = SC
    touch = 0
    tsh = 20
    only = None
    fwat = 9
    par = 0x32
    wearly = 0
    wrot = False
    wfirst = 26
    bdelay = 0
    qdel = 0
    snake = False
    hpsel = "kv"
    oahead = 5
    gpf2 = 3
    hdef = 1
    R = 10
    wos = 1
    lite = False
    dflag = False
    prog = True
    fwarm = True
    qwait = False
    lidle = False
    bpos = 4
    fake16 = False
    qdelay = 0
    rotA = 0x5050
    rotB = 0x550050
    gpf = 0
    gpfd = 99
    rt = False
    ppoll = False
    womall = True
    probe = None
    dA = 0
    hold = 0
    holdwg = -1
    dB = 0
    psleep = 2


_stamp0 = stamp


_site = [0]


def stamp(A, k, real=False):
    if Opt.jit:
        _site[0] += 1
        L = A.newlabel("L_jit")
        A("s_lshl_b32 s101, s2, 3")
        A("s_add_u32 s101, s101, s100")
        A(f"s_add_u32 s101, s101, {(_site[0] * 7919 + Opt.jit * 104729) & 0xffffff}")
        A("s_mul_i32 s101, s101, 0x9e3779b1")
        A(f"s_cmp_lt_u32 s101, {0x100000000 // Opt.jitp:#x}")
        A(f"s_cbranch_scc0 {L}")
        A("s_sleep 100")
        A.label(L)
        return
    if Opt.hp:
        if k == Opt.hp:
            A("s_memrealtime s[64:65]")
        return
    if Opt.lite and k not in (0, 15):
        return
    if Opt.only and k not in Opt.only:
        return
    _stamp0(A, k, real or Opt.rt)


def end_wave(A, holdable=False):
    if Opt.hp:
        if (holdable is True and Opt.hpsel in ("kv", "qw")) or (holdable == "b" and Opt.hpsel in ("b", "qs")):
            L = A.newlabel("L_hp")
            A("s_cmp_lt_u32 s99, 8")
            A("s_cbranch_scc1 L_exit" if Opt.hpsel in ("kv", "b") else "s_cbranch_scc0 L_exit")
            if holdable == "b":
                A("s_cmp_lt_u32 s100, 4")
                A("s_cbranch_scc1 L_exit")
            A.label(L)
            A("s_sleep 4")
            A("s_memrealtime s[66:67]")
            A("s_waitcnt lgkmcnt(0)")
            A("s_sub_u32 s66, s66, s64")
            A("s_cmp_lt_u32 s66, 2000")
            A(f"s_cbranch_scc1 {L}")
    elif Ctx.stamps:
        A("s_waitcnt vmcnt(0)")
        stamp(A, 15, True)
        A("s_waitcnt lgkmcnt(0)")
        A("s_mov_b64 exec, -1")
        A("v_mov_b32 v2, 0")
        for k in ((0, 15) if Opt.lite else range(16)):
            A(f"v_writelane_b32 v2, s{64+2*k}, {k}")
        A("s_lshl_b32 s62, s2, 3")
        A("s_add_u32 s62, s62, s100")
        A("s_lshl_b32 s62, s62, 6")
        A(f"s_add_u32 s62, s62, {WS_STAMP:#x}")
        A("v_lshlrev_b32 v1, 2, v1")
        A("s_mov_b64 exec, 0xffff")
        A(f"buffer_store_dword v2, v1, s[{SWS}:{SWS+3}], s62 offen sc1")
        if Opt.probe:
            Lp = A.newlabel("L_probe")
            A(f"s_cmp_eq_u32 s2, {Opt.probe[0]}")
            A(f"s_cbranch_scc0 {Lp}")
            A(f"s_cmp_eq_u32 s100, {Opt.probe[1]}")
            A(f"s_cbranch_scc0 {Lp}")
            A("v_subrev_u32 v3, s66, v2")
            A("s_sub_u32 s62, s94, s64")
            A("v_writelane_b32 v3, s62, 15")
            A("v_cmp_ne_u32 vcc, 0, v2")
            A("v_cndmask_b32 v3, 0, v3, vcc")
            A("s_mov_b64 exec, 0xfffc")
            A(f"global_store_dword v1, v3, s[{S_DBG}:{S_DBG+1}]")
            A.label(Lp)
    A("s_endpgm")


def stampw(A, k):
    stamp(A, k)
    if Ctx.stamps:
        A("s_waitcnt lgkmcnt(0)")


def poll(A, vt, voff, soff, sleep=1):
    L, Ld = A.newlabel("L_poll"), A.newlabel("L_polld")
    A("s_mov_b32 s101, 0x10000")
    A.label(L)
    A(f"buffer_load_dwordx2 {vr(vt,2)}, v{voff}, s[{SWS}:{SWS+3}], {soff} offen{SC}")
    A("s_waitcnt vmcnt(0)")
    A(f"v_cmp_eq_u64 vcc, s[{TAG}:{TAG+1}], {vr(vt,2)}")
    A("s_cmp_eq_u64 vcc, -1")
    A(f"s_cbranch_scc1 {Ld}")
    A(f"s_sleep {sleep}")
    A("s_sub_u32 s101, s101, 1")
    A("s_cmp_eq_u32 s101, 0")
    A(f"s_cbranch_scc0 {L}")
    A("s_endpgm")
    A.label(Ld)


def ppoll(A, vt, voff, soff, sleep=1, depth=4):
    if not Opt.ppoll:
        return poll(A, vt, voff, soff, sleep=sleep)
    L, Ld = A.newlabel("L_pp"), A.newlabel("L_ppd")
    ld = lambda k: f"buffer_load_dwordx2 {vr(vt+2*k,2)}, v{voff}, s[{SWS}:{SWS+3}], {soff} offen{SC}"
    A("s_mov_b32 s101, 0x10000")
    for k in range(depth - 1):
        A(ld(k))
        A(f"s_sleep {sleep}")
    A.label(L)
    for k in range(depth):
        A(ld((k + depth - 1) % depth))
        A(f"s_waitcnt vmcnt({depth-1})")
        A(f"v_cmp_eq_u64 vcc, s[{TAG}:{TAG+1}], {vr(vt+2*k,2)}")
        A("s_cmp_eq_u64 vcc, -1")
        A(f"s_cbranch_scc1 {Ld}")
        A(f"s_sleep {sleep}")
    A("s_sub_u32 s101, s101, 1")
    A("s_cmp_eq_u32 s101, 0")
    A(f"s_cbranch_scc0 {L}")
    A("s_endpgm")
    A.label(Ld)


def set_flag(A, vt, soff):
    A(f"v_mov_b32 v{vt}, s{TAG}")
    A(f"v_mov_b32 v{vt+1}, s{TAG+1}")
    A(f"v_lshlrev_b32 v{vt+2}, 3, v1")
    A("s_waitcnt vmcnt(0)")
    A("s_mov_b64 exec, 0xffff")
    A(f"buffer_store_dwordx2 {vr(vt,2)}, v{vt+2}, s[{SWS}:{SWS+3}], {soff} offen{SC}")
    A("s_mov_b64 exec, -1")


def tag_issue(A):
    A(f"s_load_dwordx2 s[{TAG}:{TAG+1}], s[{S_DBG}:{S_DBG+1}], 0")


def tag_check(A, vt):
    L, Ld = A.newlabel("L_hs"), A.newlabel("L_hsd")
    A("s_waitcnt lgkmcnt(0)")
    A(f"s_cmp_lg_u32 s{TAG}, s{TAG+1}")
    A(f"s_cbranch_scc1 {Ld}")
    A("s_mov_b32 s101, 0x10000")
    A(f"v_mov_b32 v{vt+2}, 0")
    A.label(L)
    A(f"global_load_dwordx2 {vr(vt,2)}, v{vt+2}, s[{S_DBG}:{S_DBG+1}]{SC}")
    A("s_waitcnt vmcnt(0)")
    A(f"v_readfirstlane_b32 s{TAG}, v{vt}")
    A(f"v_readfirstlane_b32 s{TAG+1}, v{vt+1}")
    A("s_nop 3")
    A(f"s_cmp_lg_u32 s{TAG}, s{TAG+1}")
    A(f"s_cbranch_scc1 {Ld}")
    A(f"s_sleep {Opt.tgs}")
    A("s_sub_u32 s101, s101, 1")
    A("s_cmp_eq_u32 s101, 0")
    A(f"s_cbranch_scc0 {L}")
    A("s_endpgm")
    A.label(Ld)


def lds_arrive(A, vt, addr):
    A(f"v_mov_b32 v{vt}, {addr}")
    A(f"v_mov_b32 v{vt+1}, 1")
    A("s_waitcnt lgkmcnt(0)")
    A("s_mov_b64 exec, 1")
    A(f"ds_add_u32 v{vt}, v{vt+1}")
    A("s_mov_b64 exec, -1")


def lds_wait(A, vt, addr, n, sleep=0):
    L, Ld = A.newlabel("L_lw"), A.newlabel("L_lwd")
    if addr is not None:
        A(f"v_mov_b32 v{vt}, {addr}")
    A("s_mov_b32 s101, 0x200000")
    A.label(L)
    A(f"ds_read_b32 v{vt+1}, v{vt}")
    A("s_waitcnt lgkmcnt(0)")
    A(f"v_cmp_le_u32 vcc, {n}, v{vt+1}")
    A(f"s_cbranch_vccnz {Ld}")
    if max(sleep, Opt.lws):
        A(f"s_sleep {max(sleep, Opt.lws)}")
    A("s_sub_u32 s101, s101, 1")
    A("s_cmp_eq_u32 s101, 0")
    A(f"s_cbranch_scc0 {L}")
    A("s_endpgm")
    A.label(Ld)


class Lgkm:
    def __init__(self, A):
        self.A, self.n, self.done, self.tag = A, 0, 0, {}

    def issue(self, text, tag=None):
        self.A(text)
        self.n += 1
        if tag is not None:
            self.tag[tag] = self.n

    def wait(self, *tags):
        need = max(self.tag[t] for t in tags)
        if need > self.done:
            self.A(f"s_waitcnt lgkmcnt({min(15, self.n - need)})")
            self.done = max(need, self.n - 15)

    def all(self):
        if self.done < self.n:
            self.A("s_waitcnt lgkmcnt(0)")
            self.done = self.n


def softmax_parts(X, E, F, T, PH):
    mx, mn = T, T + 2
    mm = [f"v_max3_f32 v{mx}, v{X}, v{X+1}, v{X+2}", f"v_min3_f32 v{mn}, v{X}, v{X+1}, v{X+2}"]
    for i in range(3, 19, 2):
        mm += [f"v_max3_f32 v{mx}, v{mx}, v{X+i}, v{X+i+1}", f"v_min3_f32 v{mn}, v{mn}, v{X+i}, v{X+i+1}"]
    mm += [f"v_max_f32 v{mx}, v{mx}, v{X+19}", f"v_min_f32 v{mn}, v{mn}, v{X+19}",
           f"v_mul_f32 v{mx}, s60, v{mx}", f"v_mul_f32 v{mn}, s60, v{mn}"]
    fm, ex = [], []
    for i in range(0, 20, 2):
        fm.append(f"v_pk_fma_f32 {vr(E+i,2)}, {vr(X+i,2)}, s[60:61], {vr(mx,2)} op_sel_hi:[1,1,0] neg_lo:[0,0,1] neg_hi:[0,0,1]")
        fm.append(f"v_pk_fma_f32 {vr(F+i,2)}, {vr(X+i,2)}, s[60:61], {vr(mn,2)} op_sel_hi:[1,1,0] neg_lo:[1,0,0] neg_hi:[1,0,0]")
    for i in range(20):
        ex += [f"v_exp_f32 v{E+i}, v{E+i}", f"v_exp_f32 v{F+i}, v{F+i}"]
    se, sf = T + 4, T + 6
    sm = [f"v_pk_add_f32 {vr(se,2)}, {vr(E,2)}, {vr(E+2,2)}", f"v_pk_add_f32 {vr(sf,2)}, {vr(F,2)}, {vr(F+2,2)}"]
    for i in range(4, 20, 2):
        sm += [f"v_pk_add_f32 {vr(se,2)}, {vr(se,2)}, {vr(E+i,2)}", f"v_pk_add_f32 {vr(sf,2)}, {vr(sf,2)}, {vr(F+i,2)}"]
    fin = [f"v_add_f32 v{se}, v{se}, v{se+1}", f"v_add_f32 v{sf}, v{sf}, v{sf+1}",
           f"v_rcp_f32 v{se}, v{se}", f"v_rcp_f32 v{sf}, v{sf}"]
    tail = []
    for j in range(20):
        R, s_ = (E + 2 * j, se) if j < 10 else (F + 2 * (j - 10), sf)
        tail.append((f"v_pk_mul_f32 {vr(R,2)}, {vr(R,2)}, {vr(s_,2)} op_sel_hi:[1,0]", f"v_cvt_pk_bf16_f32 v{PH+j}, v{R}, v{R+1}"))
    return mm, fm, ex, sm, fin, tail


def merge(main, extra, every, start=0):
    out, extra = [], list(extra)
    for i, x in enumerate(main):
        out.append(x)
        if extra and i >= start and (i - start) % every == every - 1:
            out.append(extra.pop(0))
    return out + extra


def touch(A, v, sd, shift):
    A(f"v_lshlrev_b32 v{v}, {shift}, v1")
    A(f"buffer_load_dword v{v+1}, v{v}, s[{SWS}:{SWS+3}], 0 offen")
    srd(A, sd, S_OUT, NB_OUT)
    A(f"buffer_load_dword v{v+2}, v{v}, s[{sd}:{sd+3}], 0 offen")


def o_index(A):
    A("s_sub_u32 s63, s99, 8")
    A("s_lshr_b32 s62, s63, 2")
    A("s_lshl_b32 s3, s98, 2")
    A("s_add_u32 s62, s62, s3")
    A("s_and_b32 s63, s63, 3")
    A("s_lshl_b32 s63, s63, 2")
    A("s_add_u32 s63, s63, s48")


WR = 64


def wo_index(A):
    A("s_lshr_b32 s50, s99, 2")
    A("s_sub_u32 s50, s50, 1")
    A("s_max_i32 s50, s50, 0")
    A("s_lshl_b32 s50, s50, 2")
    A("s_add_u32 s50, s50, s48")
    A("s_lshl_b32 s52, s50, 6")
    A(f"s_mul_i32 s51, s50, {Opt.wstr}")
    A(f"s_add_u32 s51, s51, {WS_WOT:#x}")
    A("s_lshl_b32 s54, s50, 10")
    A(f"s_add_u32 s54, s54, {FW:#x}")
    A("v_lshlrev_b32 v18, 4, v1")


def wload(A, f0, f1):
    for f in range(f0, f1):
        if Opt.wthr and f >= Opt.wbf:
            A(f"s_waitcnt vmcnt({Opt.wthr-1})")
        if Opt.only and f in (14, 22, 30, 38):
            stamp(A, {14: 2, 22: 3, 30: 4, 38: 5}[f])
        if f % 4 == 0 or f == f0:
            A(f"s_add_u32 s53, s51, {4096*(f//4)}")
        A(f"buffer_load_dwordx4 {vr(WR+4*f,4)}, v18, s[{SWS}:{SWS+3}], s53 offen offset:{1024*(f&3)}{Opt.ldw}")


def role_loader(A):
    SX, SW, SP = 32, 36, 40
    VX, VW = 24, 28
    t0, t1, t2, t3 = 11, 12, 13, 14
    A(f"s_setprio {Opt.lprio0}")
    A(f"v_lshrrev_b32 v{t0}, 3, v1")
    A(f"v_mul_u32_u24 v{t0}, 1280, v{t0}")
    A(f"v_lshrrev_b32 v{t1}, 4, v1")
    A(f"v_and_b32 v{t2}, 7, v1")
    A(f"v_xor_b32 v{t1}, v{t1}, v{t2}")
    A(f"v_xor_b32 v{t2}, 4, v{t1}")
    A(f"v_lshl_add_u32 v{VX}, v{t1}, 4, v{t0}")
    A(f"v_lshl_add_u32 v{VX+1}, v{t2}, 4, v{t0}")
    A(f"v_add_u32 v{VX+2}, {2*(8*1280-1024)}, v{VX}")
    A(f"v_add_u32 v{VX+3}, {3*(8*1280-1024)}, v{VX+1}")
    A(f"v_add_u32 v{VX+1}, {8*1280-1024}, v{VX+1}")
    A("s_lshl_b32 s60, s49, 2")
    A("s_add_u32 s60, s60, s48")
    A(f"s_mul_i32 s60, s60, {32*1280}")
    if Opt.dlt:
        A("s_lshr_b32 s30, s99, 2")
        A(f"s_lshr_b32 s30, {Opt.par:#x}, s30")
        A("s_xor_b32 s30, s30, s49")
        A("s_and_b32 s30, s30, 1")
        A("s_mul_i32 s30, s30, 5")
        A("s_lshl_b32 s31, s98, 2")
        A(f"s_lshr_b32 s31, {Opt.dlt:#x}, s31")
        A("s_and_b32 s31, s31, 7")
        A("s_add_u32 s30, s30, s31")
        A("s_lshl_b32 s31, s30, 7")
        A("s_add_u32 s60, s60, s31")
        A("s_mov_b32 s3, s30")
    elif Opt.rot4:
        A("s_lshl_b32 s30, s49, 2")
        A("s_and_b32 s30, s30, 15")
        A(f"s_lshr_b32 s30, {Opt.rotA:#x}, s30")
        A("s_and_b32 s30, s30, 15")
        A("s_and_b32 s31, s99, 28")
        A(f"s_lshr_b32 s31, {Opt.rotB:#x}, s31")
        A("s_and_b32 s31, s31, 15")
        A("s_add_u32 s30, s30, s31")
        A("s_sub_u32 s31, s30, 10")
        A("s_cmp_ge_u32 s30, 10")
        A("s_cselect_b32 s30, s31, s30")
        A("s_lshl_b32 s31, s30, 7")
        A("s_add_u32 s60, s60, s31")
        A("s_mov_b32 s3, s30")
    else:
        A("s_lshr_b32 s30, s99, 2")
        A(f"s_lshr_b32 s30, {Opt.par:#x}, s30")
        A("s_xor_b32 s30, s30, s49")
        A("s_and_b32 s30, s30, 1")
        A("s_mul_i32 s31, s30, 640")
        A("s_add_u32 s60, s60, s31")
    A("s_lshl_b32 s62, s48, 12")
    A("s_mov_b32 m0, s62")
    A(f"s_mov_b32 s{SX+2}, {NB_X:#x}")
    A(f"s_mov_b32 s{SX+3}, 0x20000")
    A("s_waitcnt lgkmcnt(0)")
    A(f"s_mov_b64 s[{SX}:{SX+1}], s[{S_X}:{S_X+1}]")

    def dma_x(s):
        if s:
            A(f"s_add_u32 m0, s62, {(s % 3) * SLOT}")
        for i in range(4):
            A(f"buffer_load_dwordx4 v{VX+i}, s[{SX}:{SX+3}], s60 offen offset:{1024*i} lds")

    def dma_w(s):
        sl = (s % 3) * SLOT
        A(f"s_add_u32 m0, s63, {sl}")
        for i in range(4):
            A(f"buffer_load_dwordx4 v{VW+i}, s[{SW}:{SW+3}], s61 offen offset:{1024*i} lds")
        A(f"s_add_u32 m0, s63, {sl+4096}")
        A(f"buffer_load_dwordx4 v{VW+4}, s[{SW}:{SW+3}], s61 offen lds")
        if s < 9:
            if Opt.rot4:
                A(f"s_cmp_eq_u32 s3, {9-s}")
                A(f"s_cselect_b32 s96, {10*64*3840}, 0")
                A("s_cselect_b32 s97, 1280, 0")
                A("s_sub_u32 s60, s60, s97")
                A("s_sub_u32 s61, s61, s96")
                A("s_add_u32 s60, s60, 128")
                A(f"s_add_u32 s61, s61, {64*3840}")
            elif s == 4:
                A("s_add_u32 s60, s60, s97")
                A("s_add_u32 s61, s61, s96")
            else:
                A("s_add_u32 s60, s60, 128")
                A(f"s_add_u32 s61, s61, {64*3840}")

    dma_x(0)
    A("s_cmp_eq_u32 s51, 0")
    A("s_cselect_b32 s56, 1120, 0")
    A("s_add_u32 s58, s51, 1")
    A(f"v_xor_b32 v15, s58, v1")
    A(f"v_cmp_gt_u32 vcc, 32, v1")
    A("s_movk_i32 s57, 3520")
    A(f"v_cndmask_b32 v16, v15, v1, vcc")
    for i in range(5):
        src = (1, 1, 16, 15, 15)[i]
        A(f"v_add_u32 v{t2}, {64*i}, v{src}")
        A(f"v_mul_u32_u24 v{t2}, 6554, v{t2}")
        A(f"v_lshlrev_b32 v{t3}, 4, v{src}")
        A(f"v_lshrrev_b32 v{t0}, 17, v{t2}")
        A(f"v_bfe_u32 v{t1}, v{t2}, 16, 1")
        A(f"v_mad_u32_u24 v{t0}, v{t0}, s57, v{t3}")
        A(f"v_mad_u32_u24 v{VW+i}, v{t1}, s56, v{t0}")
    A(f"v_lshlrev_b32 v{t3}, 4, v1")
    A(f"v_add_u32 v{VW+4}, 4096, v{VW+4}")
    A(f"s_mul_i32 s61, s48, {16*3840}")
    A("s_mul_i32 s57, s50, 160")
    A("s_add_u32 s58, s57, 1280")
    A("s_lshl_b32 s57, s57, 1")
    A("s_cmp_eq_u32 s51, 0")
    A("s_cselect_b32 s57, s58, s57")
    A("s_add_u32 s61, s61, s57")
    A(f"s_mul_i32 s96, s30, {(1 if Opt.rot4 else 5)*64*3840}")
    A("s_add_u32 s61, s61, s96")
    A("s_mul_i32 s63, s48, 5120")
    A("s_add_u32 s63, s63, 16384")
    srd(A, SW, S_W, NB_W)
    dma_w(0)
    stamp(A, 2)
    A("s_lshl_b32 s96, s96, 1")
    A(f"s_sub_u32 s96, {64*3840}, s96")
    A("s_lshl_b32 s97, s31, 1")
    A("s_sub_u32 s97, 128, s97")
    A("s_mul_i32 s57, s50, 3200")
    A("s_lshl_b32 s57, s57, s51")
    A("s_lshl_b32 s58, s48, 11")
    A("s_add_u32 s57, s57, s58")
    srd(A, SP, S_WPHI, NB_WPHI)
    A(f"s_add_u32 m0, s58, {L_WP}")
    A(f"buffer_load_dwordx4 v{t3}, s[{SP}:{SP+3}], s57 offen lds")
    A(f"buffer_load_dwordx4 v{t3}, s[{SP}:{SP+3}], s57 offen offset:1024 lds")
    srd(A, SWS, S_WS, WS_SIZE)
    Lh = A.newlabel("L_noh")
    A("s_cmp_eq_u32 s51, 0")
    A(f"s_cbranch_scc1 {Lh}")
    A("s_mul_i32 s49, s98, 80")
    A("s_lshl_b32 s50, s99, 2")
    A("s_add_u32 s49, s49, s50")
    A("s_add_u32 s49, s49, s48")
    A("s_add_u32 s49, s49, 48")
    A(f"s_mul_i32 s56, s48, {CV_LDS}")
    A(f"s_add_u32 s56, s56, {L_QCV}")
    A("s_lshl_b32 s50, s49, 12")
    A.label(Lh)
    assert Opt.LA == 2
    issued = 0
    for s in range(10):
        while issued < min(s + Opt.LA - 1, 9):
            issued += 1
            dma_x(issued)
            dma_w(issued)
        if s == 0:
            Ls = A.newlabel("L_nosetup")
            A("s_cmp_ge_u32 s99, 8")
            A(f"s_cbranch_scc1 {Ls}")
            conv_setup(A)
            f0_lines(A, 49, 49, 12)
            A.label(Ls)
        if s == 6:
            tag_issue(A)
        if s == Opt.fwat:
            Lf = A.newlabel("L_nofw")
            A("s_cmp_lt_u32 s99, 8")
            A(f"s_cbranch_scc1 {Lf}")
            wo_index(A)
            A(f"s_add_u32 s42, s{S_WS}, s54")
            A(f"s_addc_u32 s43, s{S_WS+1}, 0")
            for k in range(8):
                A(f"s_load_dwordx2 s[{4+2*k}:{5+2*k}], s[42:43], {128*k}")
            A.label(Lf)
        def fast_check():
            A("s_cmp_lt_u32 s99, 8")
            A("s_cbranch_scc1 L_q9")
            A("s_waitcnt lgkmcnt(0)")
            A("s_mov_b32 s3, 0")
            for k in range(8):
                A(f"s_cmp_eq_u64 s[{4+2*k}:{5+2*k}], s[{TAG}:{TAG+1}]")
                A("s_addc_u32 s3, s3, 0")
            A(f"s_cmp_lg_u32 s{TAG}, s{TAG+1}")
            A("s_addc_u32 s3, s3, 0")
            A(f"s_cmp_eq_u32 s3, {19 if Opt.noearly else 9}")
            A("s_cbranch_scc0 L_q9")

        if s == 9 and Opt.wearly:
            fast_check()
            wload(A, 0, Opt.wearly)
            A(f"s_waitcnt vmcnt({Opt.wearly})")
            A("s_barrier")
            stamp(A, 6)
            wload(A, Opt.wearly, Opt.wbf)
            A("s_barrier")
            A("s_branch L_wrest")
            A.label("L_q9")
        A(f"s_waitcnt vmcnt({9*(issued-s)})")
        A("s_barrier")
        if s in (0, 3, 6, 9):
            stamp(A, 3 + s // 3)
        if s == 9 and not Opt.wearly:
            fast_check()
            wload(A, 0, Opt.wbf)
            A("s_barrier")
            A("s_branch L_wrest")
            A.label("L_q9")
    A("s_setprio 0")
    A("s_cmp_lt_u32 s99, 8")
    A("s_cbranch_scc1 L_conv")
    role_wo(A)


def role_wo(A):
    SO, SWO = 32, 36
    A.label("L_wo")
    A(f"s_setprio {Opt.lprio}")
    wo_index(A)
    A("v_lshrrev_b32 v15, 3, v1")
    A("v_lshlrev_b32 v15, 7, v15")
    A("v_lshlrev_b32 v18, 4, v1")
    tag_check(A, 20)
    A(f"buffer_load_dwordx2 v[16:17], v15, s[{SWS}:{SWS+3}], s54 offen{SC}")
    Lj, Lk = A.newlabel("L_woj"), A.newlabel("L_wok")
    A("s_cmp_lt_u32 s99, 8")
    A(f"s_cbranch_scc1 {Lj}")
    A("s_barrier")
    A.label(Lj)
    A("s_waitcnt vmcnt(0)")
    A(f"v_cmp_eq_u64 vcc, s[{TAG}:{TAG+1}], v[16:17]")
    A("s_cmp_eq_u64 vcc, -1")
    A(f"s_cbranch_scc1 {Lk}")
    poll(A, 16, 15, "s54", sleep=8)
    A.label(Lk)

    wload(A, 0, Opt.wbf)
    A.label("L_wrest")
    if Opt.wdel:
        A(f"s_sleep {Opt.wdel}")
    A(f"s_setprio {Opt.lprio}")
    wload(A, Opt.wbf, Opt.wpk if Opt.wpk else Opt.wfirst)
    A("v_lshrrev_b32 v2, 2, v1")
    A("v_and_b32 v3, 3, v1")
    A("s_mul_i32 s58, s48, 20480")
    A(f"s_add_u32 s58, s58, {L_WOB}")
    A("v_lshrrev_b32 v11, 5, v1")
    A("v_and_b32 v9, 31, v1")
    A("v_lshrrev_b32 v15, 4, v1")
    A("v_lshlrev_b32 v15, 7, v15")
    o_index(A)
    Lq1, Lq2 = A.newlabel("L_woq"), A.newlabel("L_woq")
    A("s_cmp_lt_u32 s99, 8")
    A(f"s_cbranch_scc1 {Lq2}")
    A("s_lshr_b32 s54, s62, 2")
    A("s_lshl_b32 s54, s54, 4")
    A("s_add_u32 s54, s54, s63")
    A("s_lshl_b32 s54, s54, 8")
    if Opt.f2all:
        A("s_and_b32 s54, s54, 0xfffffc00")
        A("v_lshrrev_b32 v19, 3, v1")
        A("v_lshlrev_b32 v19, 7, v19")
    else:
        A("v_lshlrev_b32 v19, 7, v11")
    A(f"s_add_u32 s54, s54, {F2:#x}")
    A("s_lshl_b32 s55, s62, 4")
    A("s_add_u32 s55, s55, s63")
    A("s_mul_i32 s55, s55, 5120")

    def pqdma():
        A("s_mov_b32 m0, s58")
        A("s_add_u32 s56, s55, 4096")
        for i in range(4):
            A(f"buffer_load_dwordx4 v18, s[{SWS}:{SWS+3}], s55 offen offset:{1024*i}{SC} lds")
        A("s_add_u32 m0, s58, 4096")
        A(f"buffer_load_dwordx4 v18, s[{SWS}:{SWS+3}], s56 offen{SC} lds")

    Lslow, Ljn = A.newlabel("L_pqs"), A.newlabel("L_pqj")
    if Opt.wpk:
        A(f"buffer_load_dwordx2 v[16:17], v19, s[{SWS}:{SWS+3}], s54 offen{SC}")
        wload(A, Opt.wpk, Opt.wpk + 4)
        A("s_waitcnt vmcnt(4)")
        A(f"v_cmp_eq_u64 vcc, s[{TAG}:{TAG+1}], v[16:17]")
        A("s_cmp_eq_u64 vcc, -1")
        A(f"s_cbranch_scc0 {Lslow}")
        pqdma()
        wload(A, Opt.wpk + 4, Opt.wfirst)
        A(f"s_waitcnt vmcnt({Opt.wfirst - Opt.wpk - 4})")
        A(f"s_branch {Ljn}")
        A.label(Lslow)
        wload(A, Opt.wpk + 4, Opt.wfirst)
    if Opt.lag:
        stamp(A, 4)
    poll(A, 16, 19, "s54", sleep=Opt.f2s)
    if Opt.lag:
        stamp(A, 5)
    pqdma()
    A("s_waitcnt vmcnt(0)")
    A.label(Ljn)
    A("s_lshl_b32 s54, s48, 2")
    A(f"s_add_u32 s54, s54, {L_SYNC+16}")
    lds_arrive(A, 16, "s54")
    if Opt.pqsync:
        lds_arrive(A, 16, L_SYNC + 4)
    stamp(A, 14)
    A("s_lshl_b32 s54, s62, 2")
    A("s_add_u32 s54, s54, s48")
    A("s_mul_i32 s55, s54, 10240")
    A(f"s_add_u32 s55, s55, {WS_PART:#x}")
    A("s_lshl_b32 s54, s54, 9")
    if Opt.f1all:
        A("s_and_b32 s54, s54, 0xfffff800")
        A("v_lshrrev_b32 v15, 2, v1")
        A("v_lshlrev_b32 v15, 7, v15")
    A(f"s_add_u32 s54, s54, {F1:#x}")
    A("v_min_u32 v19, 20, v9")
    A("v_and_b32 v20, 32, v1")
    A("v_add_u32 v19, v19, v20")
    A("v_lshlrev_b32 v20, 3, v19")
    A("v_lshlrev_b32 v19, 4, v19")
    A("s_mul_i32 s57, s48, 5120")
    A("v_add_u32 v21, s57, v18")
    A("s_mov_b32 s59, 0xffff0000")
    lds_wait(A, 16, L_SYNC + 4, 8 if Opt.pqsync else 4, sleep=2)
    stamp(A, 7)
    wload(A, Opt.wfirst, max(Opt.wmid, Opt.wfirst))
    PR = [24, 34, 44, 54]
    SM, TP = 224, 244

    def pload(p):
        so = "s55" if p < 1 else f"s{40+p}"
        A(f"buffer_load_dwordx4 {vr(PR[p],4)}, v19, s[{SWS}:{SWS+3}], {so} offen{Opt.ldp}")
        A(f"buffer_load_dwordx4 {vr(PR[p]+4,4)}, v19, s[{SWS}:{SWS+3}], {so} offen offset:1024{Opt.ldp}")
        A(f"buffer_load_dwordx2 {vr(PR[p]+8,2)}, v20, s[{SWS}:{SWS+3}], {so} offen offset:2048{Opt.ldp}")

    for p in (1, 2, 3):
        A(f"s_add_u32 s{40+p}, s55, {2560*p}")
    if Opt.prog:
        L, Ld = A.newlabel("L_pg"), A.newlabel("L_pgd")
        A("s_mov_b64 s[56:57], 0")
        A("s_mov_b32 s101, 0x10000")
        A.label(L)
        A(f"buffer_load_dwordx2 v[16:17], v15, s[{SWS}:{SWS+3}], s54 offen{SC}")
        A("s_waitcnt vmcnt(0)")
        A(f"v_cmp_eq_u64 vcc, s[{TAG}:{TAG+1}], v[16:17]")
        A("s_andn2_b64 s[50:51], vcc, s[56:57]" if False else "s_andn2_b64 s[96:97], vcc, s[56:57]")
        A("s_mov_b64 s[56:57], vcc")
        for p in range(4):
            Ls = A.newlabel("L_pgs")
            A(f"s_bitcmp1_b64 s[96:97], {16*p}")
            A(f"s_cbranch_scc0 {Ls}")
            pload(p)
            A.label(Ls)
        A("s_cmp_eq_u64 s[56:57], -1")
        A(f"s_cbranch_scc1 {Ld}")
        A(f"s_sleep {Opt.psleep}")
        A("s_sub_u32 s101, s101, 1")
        A(f"s_cbranch_scc0 {L}")
        A("s_endpgm")
        A.label(Ld)
        stamp(A, 12)
        A("s_waitcnt vmcnt(0)")
    else:
        ppoll(A, 244, 15, "s54", sleep=Opt.psleep)
        stamp(A, 12)
        for p in range(4):
            pload(p)
    A("s_setprio 3")
    for p in range(4):
        A(f"s_waitcnt vmcnt({9-3*p})")
        for i in range(10):
            d = SM + 2 * i if p == 0 else TP + 2 * (i % 5)
            A(f"v_lshlrev_b32 v{d}, 16, v{PR[p]+i}")
            A(f"v_and_b32 v{d+1}, s59, v{PR[p]+i}")
            if p:
                A(f"v_pk_add_f32 {vr(SM+2*i,2)}, {vr(SM+2*i,2)}, {vr(d,2)}")
    for q in range(5):
        A(f"ds_write_b128 v21, {vr(SM+4*q,4)} offset:{1024*q}")
    lds_arrive(A, 16, L_SYNC + 8)
    A("s_setprio 0")
    stamp(A, 13)
    if True:
        Lq3 = A.newlabel("L_woq")
        A(f"s_branch {Lq3}")
    A.label(Lq2)
    if True:
        wload(A, Opt.wpk if Opt.wpk else Opt.wfirst, max(Opt.wmid, Opt.wfirst))
        A.label(Lq3)
    wload(A, max(Opt.wmid, Opt.wfirst), 40)
    srd(A, SO, S_OUT, NB_OUT)
    A("s_and_b32 s54, s99, 3")
    A("s_lshl_b32 s55, s98, 2")
    A("s_add_u32 s54, s54, s55")
    A("s_lshr_b32 s55, s54, 1")
    A("s_lshl_b32 s55, s55, 12")
    A(f"s_add_u32 s55, s55, {F3:#x}")
    A("s_lshl_b32 s57, s48, 10")
    A("s_add_u32 s55, s55, s57")
    A("v_lshrrev_b32 v15, 3, v1")
    A("v_lshlrev_b32 v15, 7, v15")
    A("s_mul_i32 s57, s54, 81920")
    A(f"s_add_u32 s57, s57, {WS_O:#x}")
    A("s_lshl_b32 s58, s48, 10")
    A("s_add_u32 s57, s57, s58")
    A(f"s_add_u32 s58, s58, {L_OT}")
    A("v_mov_b32 v5, v18")
    A(f"v_add_u32 v6, {L_OT}, v5")
    A(f"v_add_u32 v7, {L_OT+40960}, v5")
    A("v_lshlrev_b32 v10, 3, v9")
    A("v_lshl_add_u32 v10, v11, 9, v10")
    A(f"v_add_u32 v10, {L_OT+32768}, v10")
    if Opt.fullout:
        A("s_lshl_b32 s56, s48, 6")
        A("s_waitcnt lgkmcnt(0)")
        A("v_mul_u32_u24 v12, 272, v9")
        A("v_lshl_add_u32 v12, v11, 5, v12")
        A("v_add_u32 v12, s56, v12")
        A("v_lshrrev_b32 v2, 4, v1")
        A("v_and_b32 v3, 15, v1")
        A("v_mul_u32_u24 v13, 272, v2")
        A("v_lshl_add_u32 v13, v3, 4, v13")
        A(f"s_mul_i32 s59, s48, {8*272}")
        A("v_add_u32 v13, s59, v13")
        A("v_mul_u32_u24 v14, 2560, v2")
        A("v_lshl_add_u32 v14, v3, 4, v14")
        A("s_lshl_b32 s59, s54, 3")
        A("s_add_u32 s59, s59, s48")
        A(f"s_mul_i32 s59, s59, {8*2560}")
        A("s_add_u32 s59, s59, s52")
        A("s_sub_u32 s59, s59, s56")
    else:
        A("s_mul_i32 s56, s48, 5120")
        A("s_waitcnt lgkmcnt(0)")
        A("v_mul_u32_u24 v12, 80, v9")
        A("v_lshl_add_u32 v12, v11, 5, v12")
        A("v_add_u32 v12, s56, v12")
        A("v_mul_u32_u24 v13, 80, v2")
        A("v_lshl_add_u32 v13, v3, 4, v13")
        A("v_add_u32 v13, s56, v13")
        A("v_mul_u32_u24 v14, 2560, v2")
        A("v_lshl_add_u32 v14, v3, 4, v14")
        A(f"s_mul_i32 s59, s54, {64*2560}")
        A("s_add_u32 s59, s59, s52")
    lds_wait(A, 16, L_SYNC + 12, 4, sleep=2)
    stamp(A, 8)
    ppoll(A, 48, 15, "s55", sleep=Opt.psleep)
    A("s_barrier")
    stamp(A, 9)
    nis = [0]

    def oissue():
        j = nis[0]
        A(f"s_add_u32 m0, s58, {4096*j}")
        A(f"buffer_load_dwordx4 v5, s[{SWS}:{SWS+3}], s57 offen{Opt.ldo} lds")
        if j < 19:
            A("s_add_u32 s57, s57, 4096")
        nis[0] += 1

    for j in range(Opt.oa):
        oissue()
    if Ctx.stamps:
        A("s_waitcnt lgkmcnt(0)")
    ACC = (16, 32)
    OFB = 224
    T = Lgkm(A)
    bars = Opt.obar + [80]

    def rdx(n):
        if n in bars:
            nxt = bars[bars.index(n) + 1]
            if n == bars[-2]:
                T.wait("W")
            assert nis[0] >= nxt // 4
            A(f"s_waitcnt vmcnt({nis[0] - nxt // 4})")
            A("s_barrier")
        t, f = n // 40, n % 40
        d = OFB + 4 * (n % 8)
        if f < 32:
            T.issue(f"ds_read_b128 {vr(d,4)}, v{6+t} offset:{1024*f}", n)
        else:
            a = f - 32
            T.issue(f"ds_read_b64 {vr(d,2)}, v10 offset:{40960*t + 1024*a}")
            T.issue(f"ds_read_b64 {vr(d+2,2)}, v10 offset:{40960*t + 1024*a + 256}", n)

    def stage(t):
        L = [f"v_cvt_pk_bf16_f32 v{48+i}, v{ACC[t]+2*i}, v{ACC[t]+2*i+1}" for i in range(8)]
        return L[:4] + [("ds", f"ds_write_b128 v12, v[48:51] offset:{32*272*t}", None)] + L[4:] + \
            [("ds", f"ds_write_b128 v12, v[52:55] offset:{32*272*t+16}", "W")]

    def out(t):
        L = [("ds", f"ds_read_b128 {vr(56+4*i,4)}, v13 offset:{32*272*t+4*272*i}", ("R", i)) for i in range(2)]
        L += [None, None]
        for i in range(2):
            L += [("wait", ("R", i)), f"buffer_store_dwordx4 {vr(56+4*i,4)}, v14, s[{SO}:{SO+3}], s59 offen{Opt.osc}",
                  f"s_add_u32 s59, s59, {(4 if i == 0 else 28)*2560}"]
        return L

    def emit(x):
        if isinstance(x, tuple):
            T.issue(x[1], x[2]) if x[0] == "ds" else T.wait(x[1])
        elif x:
            A(x)

    PF = 6
    for n in range(PF):
        rdx(n)
    fill = []
    for n in range(80):
        t, f = n // 40, n % 40
        T.wait(n)
        c = vr(ACC[t], 16) if f else "0"
        A(f"v_mfma_f32_32x32x16_bf16 {vr(ACC[t],16)}, {vr(WR+4*f,4)}, {vr(OFB+4*(n%8),4)}, {c}")
        if nis[0] < 20 and n % Opt.oe == 0:
            oissue()
        if n + PF < 80:
            rdx(n + PF)
        if n == 44:
            fill = stage(0)
        if n + PF == bars[-2]:
            assert not fill
            fill = out(0)
        for _ in range(2 if n < 56 else 1):
            if fill:
                emit(fill.pop(0))
    assert not fill
    stampw(A, 10)
    for x in stage(1):
        emit(x)
    A("s_waitcnt lgkmcnt(0)")
    T.done = T.n
    A("s_barrier")
    for x in out(1):
        emit(x)
    stamp(A, 11)
    end_wave(A, True)


def role_compute(A):
    ACC = 16
    WF = (96, 116)
    XF = (136, 152)
    XA, WA, AD = 168, 172, 182
    t0, t1, t2, t3 = 11, 12, 13, 14
    for i in range(80):
        A(f"v_mov_b32 v{ACC+i}, 0")
    A(f"v_and_b32 v{t0}, 255, v0")
    A(f"v_lshlrev_b32 v{t0}, 4, v{t0}")
    A(f"v_add_u32 v{t0}, {L_Z}, v{t0}")
    A(f"ds_write_b128 v{t0}, {vr(ACC,4)}")
    A(f"ds_write_b128 v{t0}, {vr(ACC,4)} offset:64")
    A("s_lshr_b32 s52, s48, 1")
    A("s_and_b32 s53, s48, 1")
    S16, G4, R4, C4 = 183, 184, 185, 186
    A(f"v_and_b32 v{S16}, 15, v1")
    A(f"v_lshrrev_b32 v{G4}, 4, v1")
    A(f"v_bfe_u32 v{R4}, v1, 2, 2")
    A(f"v_and_b32 v{C4}, 3, v1")
    A(f"v_bfe_u32 v{t2}, v1, 1, 3")
    A(f"v_xor_b32 v{t2}, v{t2}, v{G4}")
    A(f"v_lshlrev_b32 v{t2}, 4, v{t2}")
    A(f"v_lshl_add_u32 v{t2}, v{S16}, 7, v{t2}")
    A("s_lshl_b32 s54, s52, 13")
    A(f"v_add_u32 v{XA}, s54, v{t2}")
    A(f"v_xor_b32 v{XA+1}, 64, v{XA}")
    A(f"v_add_u32 v{XA+2}, {2*SLOT}, v{XA}")
    A(f"v_add_u32 v{XA+3}, {2*SLOT}, v{XA+1}")
    A("s_cmp_eq_u32 s51, 0")
    A("s_cselect_b32 s55, 80, 0")
    A("s_mul_i32 s56, s53, 80")
    A("s_lshl_b32 s56, s56, s51")
    A(f"v_lshrrev_b32 v{t0}, 1, v{C4}")
    A(f"v_mul_u32_u24 v{t0}, s55, v{t0}")
    A(f"v_mad_u32_u24 v{t0}, v{C4}, 40, v{t0}")
    A(f"v_add_u32 v{t0}, s56, v{t0}")
    A(f"v_and_b32 v{t1}, 1, v{G4}")
    A("s_add_u32 s57, s51, 4")
    A(f"v_lshlrev_b32 v{t1}, s57, v{t1}")
    A(f"v_lshl_add_u32 v{t2}, v{G4}, 3, v{R4}")
    A(f"v_mul_u32_u24 v{t2}, 320, v{t2}")
    A(f"v_add_u32 v{t2}, 16384, v{t2}")
    for t in range(5):
        A(f"v_add_u32 v{t3}, {8*t}, v{t0}")
        A(f"v_xor_b32 v{t3}, v{t3}, v{t1}")
        A(f"v_add_u32 v{WA+t}, v{t2}, v{t3}")
        A(f"v_add_u32 v{WA+5+t}, {2*SLOT}, v{WA+t}")
    HD = 187
    A("s_cmp_eq_u32 s51, 0")
    A("s_cselect_b32 s55, 1, 3")
    A("s_add_u32 s57, s51, 1")
    A("s_lshl_b32 s56, s53, s57")
    A(f"v_and_b32 v{HD}, s55, v{G4}")
    A(f"v_add_u32 v{HD}, s56, v{HD}")
    A(f"v_mul_u32_u24 v{t0}, 800, v{HD}")
    A(f"v_mad_u32_u24 v{t0}, v{R4}, 40, v{t0}")
    A(f"v_add_u32 v{t0}, {L_WP}, v{t0}")
    A(f"v_mov_b32 v{t1}, {L_Z}")
    A(f"v_cmp_eq_u32 vcc, v{C4}, v{G4}")
    A(f"v_cndmask_b32 v{AD}, v{t1}, v{t0}, vcc")
    A(f"v_lshrrev_b32 v{t0}, 5, v1")
    A(f"v_lshl_add_u32 v{t0}, v{t0}, 4, v{S16}")
    A("s_lshl_b32 s57, s52, 6")
    A(f"v_add_u32 v{t0}, s57, v{t0}")
    A(f"v_mul_u32_u24 v{t1}, 208, v{t0}")
    A(f"v_mad_u32_u24 v2, v{HD}, 48, v{t1}")
    A(f"v_add_u32 v2, {L_V}, v2")
    A(f"v_mul_u32_u24 v{t3}, 80, v{HD}")
    A(f"v_mul_u32_u24 v{t2}, 336, v{t0}")
    A(f"v_add_u32 v3, v{t3}, v{t2}")
    A(f"v_lshrrev_b32 v{t1}, 5, v1")
    A(f"v_lshl_add_u32 v9, v{t1}, 3, v{R4}")
    A(f"v_bfe_u32 v{t2}, v1, 4, 1")
    A(f"v_bfe_u32 v{t3}, v1, 1, 1")
    A(f"v_lshl_add_u32 v10, v{t2}, 1, v{t3}")
    A(f"v_and_b32 v15, 1, v1")
    A(f"v_mul_u32_u24 v{t0}, 336, v9")
    A(f"v_mad_u32_u24 v{t1}, v15, 5, v10")
    A(f"v_lshl_add_u32 v{t0}, v{t1}, 3, v{t0}")
    A("s_mul_i32 s57, s48, 80")
    A(f"v_add_u32 v6, s57, v{t0}")
    A(f"v_lshl_add_u32 v{t0}, v10, 1, v15")
    A("s_mul_i32 s57, s48, 6")
    A(f"v_min_u32 v{t1}, 5, v{t0}")
    A(f"v_add_u32 v{t1}, s57, v{t1}")
    A(f"v_mul_u32_u24 v{t0}, 208, v9")
    A(f"v_lshl_add_u32 v{t0}, v{t1}, 3, v{t0}")
    A(f"v_add_u32 v7, {L_V}, v{t0}")
    WPF = 188
    for tp in range(5):
        A(f"v_mov_b32 v{WPF+12*tp+10}, 0")
        A(f"v_mov_b32 v{WPF+12*tp+11}, 0")
    A(f"s_mov_b32 s60, {LOG2E:#x}")
    A(f"s_mov_b32 s61, {LOG2E:#x}")
    A("s_waitcnt lgkmcnt(0)")
    srd(A, SWS, S_WS, WS_SIZE)
    if Opt.touch & 1:
        Lt = A.newlabel("L_nt")
        A("s_cmp_eq_u32 s48, 0")
        A(f"s_cbranch_scc0 {Lt}")
        touch(A, 248, 32, Opt.tsh)
        A.label(Lt)
    if Opt.fwarm:
        o_index(A)
        A("s_lshl_b32 s54, s62, 2")
        A("s_add_u32 s54, s54, s48")
        A("s_lshl_b32 s54, s54, 2")
        A("s_lshr_b32 s55, s62, 2")
        A("s_lshl_b32 s55, s55, 4")
        A("s_add_u32 s55, s55, s63")
        A("s_lshl_b32 s55, s55, 1")
        A("s_add_u32 s55, s55, 508")
        A("s_and_b32 s56, s99, 2")
        A("s_lshl_b32 s57, s98, 2")
        A("s_add_u32 s56, s56, s57")
        A("s_lshl_b32 s56, s56, 4")
        A("s_lshl_b32 s57, s48, 3")
        A("s_add_u32 s56, s56, s57")
        A("s_add_u32 s56, s56, 1016")
        A(f"v_mov_b32 v{t0}, s54")
        A(f"v_mov_b32 v{t1}, s55")
        A(f"v_mov_b32 v{t2}, s56")
        A("v_cmp_gt_u32 vcc, 16, v1")
        A(f"v_cndmask_b32 v{t1}, v{t1}, v{t0}, vcc")
        A("v_cmp_gt_u32 vcc, 32, v1")
        A(f"v_cndmask_b32 v{t1}, v{t2}, v{t1}, vcc")
        A(f"v_lshrrev_b32 v{t0}, 2, v1")
        A(f"v_add_u32 v{t0}, v{t0}, v{t1}")
        A(f"v_and_b32 v{t0}, 2047, v{t0}")
        A(f"v_lshlrev_b32 v{t0}, 7, v{t0}")
        A(f"s_mov_b32 s54, {WS_FLAG:#x}")
        A(f"buffer_load_dword v4, v{t0}, s[{SWS}:{SWS+3}], s54 offen{SC}")
        if Opt.fww:
            A("s_lshr_b32 s54, s99, 2")
            A("s_sub_u32 s54, s54, 1")
            A("s_max_i32 s54, s54, 0")
            A("s_lshl_b32 s54, s54, 2")
            A("s_add_u32 s54, s54, s48")
            A("s_lshl_b32 s54, s54, 10")
            A(f"s_add_u32 s54, s54, {FW:#x}")
            A(f"v_lshrrev_b32 v{t0}, 3, v1")
            A(f"v_lshlrev_b32 v{t0}, 7, v{t0}")
            A(f"buffer_load_dword v5, v{t0}, s[{SWS}:{SWS+3}], s54 offen{SC}")
    A("s_setprio 2")

    T = Lgkm(A)

    def reads(s, ks):
        sl, b = s % 3, ks
        L = []
        for t in range(5):
            for half in range(2):
                L.append((f"ds_read_b64_tr_b16 {vr(WF[b]+4*t+2*half,2)}, v{WA+5*(sl>>1)+t} offset:{(sl&1)*SLOT + (32*ks+4*half)*320}",
                          ("w", s, ks, t) if half else None))
            if t == 0:
                for rho in range(4):
                    L.append((f"ds_read_b128 {vr(XF[b]+4*rho,4)}, v{XA+2*(sl>>1)+ks} offset:{(sl&1)*SLOT + 2048*rho}", ("x", s, ks, rho)))
        return L

    wp = []
    for tp in range(5):
        for dq in range(5):
            wp.append((f"ds_read_b64_tr_b16 {vr(WPF+12*tp+2*dq,2)}, v{AD} offset:{160*dq+8*tp}", None))

    PS = (96, 106, 118, 128)
    E, F, TT_ = 140, 160, 248

    def cvt(rho):
        L = [f"v_cvt_pk_bf16_f32 v{PS[rho]+i}, v{ACC+20*rho+2*i}, v{ACC+20*rho+2*i+1}" for i in range(10)]
        if rho & 1:
            L += [f"v_mov_b32 v{PS[rho]+10}, 0x3f803f80", f"v_mov_b32 v{PS[rho]+11}, 0x3f803f80"]
        return L

    A("s_barrier")
    stampw(A, 3)
    for x, tg in reads(0, 0):
        T.issue(x, tg)
    early = cvt(0) + cvt(1)
    for s in range(10):
        for ks in range(2):
            last = (s == 9 and ks == 1)
            nxt = [] if last else (reads(s, 1) if ks == 0 else reads(s + 1, 0))
            if Opt.lean:
                if s < 9 and wp:
                    nxt = [wp.pop(0) for _ in range(min(len(wp), 2 - ks))] + nxt
            elif ks == 0 and s < 5:
                nxt += wp[5 * s:5 * s + 5]
            start = 0 if ks == 0 else Opt.bpos
            for k in range(20):
                t, rho = (k % 5, k // 5) if last else (k // 4, k % 4)
                if Opt.snake and t & 1:
                    rho = 3 - rho
                if Opt.lean and k == 0 and (s or ks):
                    T.all()
                T.wait(("w", s, ks, t), ("x", s, ks, rho))
                a_ = ACC + 20 * rho + 4 * t
                A(f"v_mfma_f32_16x16x32_bf16 {vr(a_,4)}, {vr(WF[ks]+4*t,4)}, {vr(XF[ks]+4*rho,4)}, {vr(a_,4)}")
                if ks == 1 and k == start:
                    T.all()
                    A("s_barrier")
                if k >= start and nxt:
                    T.issue(*nxt.pop(0))
                if last and k >= 9:
                    for _ in range(2):
                        if early:
                            A(early.pop(0))
            assert not nxt
    assert not (Opt.lean and wp)
    stamp(A, 4)
    if Opt.fwarm:
        A("s_waitcnt vmcnt(0)")
    tag_issue(A)
    def phi_mfma(src, acc):
        L = []
        for u in range(3):
            for tp in range(5):
                c = vr(acc + 4 * tp, 4) if u else "0"
                L.append(f"v_mfma_f32_16x16x32_bf16 {vr(acc+4*tp,4)}, {vr(WPF+12*tp+4*u,4)}, {vr(src+4*u,4)}, {c}")
        return L

    def weave(mf, va, per):
        mf, va = list(mf), list(va)
        while mf or va:
            if mf:
                A(mf.pop(0))
            for _ in range(per):
                if va:
                    A(va.pop(0))

    assert not early
    Lq = A.newlabel("L_q")
    A("s_cmp_eq_u32 s51, 0")
    A(f"s_cbranch_scc0 {Lq}")
    mq = A.mark()
    for i in range(10):
        A(f"v_permlane32_swap_b32 v{PS[0]+i}, v{PS[1]+i}")
    weave(phi_mfma(PS[0], ACC), cvt(2) + cvt(3) + [f"v_permlane32_swap_b32 v{PS[2]+i}, v{PS[3]+i}" for i in range(10)], 2)
    vw = [f"ds_write_b128 v2, {vr(PS[1+2*sg]+4*i,4)} offset:{32*208*sg+16*i}" for sg in range(2) for i in range(3)]

    def body(parts):
        mm, fm, ex, sm, fin, tail = parts
        L = fm[:4]
        fm2, sm2 = list(fm[4:]), list(sm)
        for k in range(0, 40, 4):
            L += ex[k:k + 2]
            if fm2:
                L.append(fm2.pop(0))
            L += ex[k + 2:k + 4]
            if fm2:
                L.append(fm2.pop(0))
            if k >= 8:
                L += [sm2.pop(0), sm2.pop(0)]
        return L + sm2 + fin

    def tail_list(tail, wr):
        L = [tail[0][0], tail[1][0]]
        for j in range(20):
            if j + 2 < 20:
                L.append(tail[j + 2][0])
            L.append(tail[j][1])
            if wr and j % 4 == 3:
                L.append(wr[j // 4])
        return L

    s0 = softmax_parts(ACC, E, F, TT_, 56)
    s1 = softmax_parts(ACC + 20, E, F, TT_, 76)
    w0 = [f"ds_write_b128 v3, {vr(56+4*i,4)} offset:{16*i}" for i in range(5)]
    w1 = [f"ds_write_b128 v3, {vr(76+4*i,4)} offset:{32*336+16*i}" for i in range(5)]
    m1 = phi_mfma(PS[2], ACC + 20)
    for x in m1[:4]:
        A(x)
    weave(m1[4:], s0[0], 2)
    stamp(A, 2)
    for x in merge(body(s0), vw, 12) + tail_list(s0[5], w0):
        A(x)
    stamp(A, 13)
    A(f"v_mov_b32 v10, {L_SYNC}")
    A("v_mov_b32 v11, 1")
    A("s_mov_b64 exec, 1")
    A("ds_add_u32 v10, v11 offset:52")
    A("s_mov_b64 exec, -1")
    sal = ["s_lshl_b32 s57, s50, 2", "s_add_u32 s57, s57, s48", "s_lshl_b32 s57, s57, 4", "s_add_u32 s57, s57, s49",
           "s_lshl_b32 s59, s57, 7", f"s_add_u32 s59, s59, {F1:#x}", "s_mul_i32 s57, s57, 2560", f"s_add_u32 s57, s57, {WS_PART:#x}"]
    b1 = body(s1)
    for x in s1[0] + merge(b1[:60], sal, 6) + ["ds_read_b32 v12, v10 offset:52"] + b1[60:]:
        A(x)
    tag_check(A, 14)
    Lok = A.newlabel("L_s0ok")
    A("v_cmp_le_u32 vcc, 4, v12")
    A(f"s_cbranch_vccnz {Lok}")
    lds_wait(A, 12, L_SYNC + 52, 4)
    A.label(Lok)
    for x in tail_list(s1[5], w1):
        A(x)
    A("s_mov_b64 exec, 1")
    A("ds_add_u32 v10, v11")
    A("s_mov_b64 exec, -1")
    stampw(A, 5)
    T = Lgkm(A)
    T.n = 0 if (Ctx.stamps and not Opt.lite and not Opt.hp) else 0
    FAa = {0: 188, 1: 196, 4: 204, 5: 212, 2: 220, 3: 228, 6: 236, 7: 128}
    FBb = {u: 96 + 4 * u for u in range(8)}

    def rdA_(u):
        for half in range(2):
            o = (16 * u + 4 * half)
            T.issue(f"ds_read_b64_tr_b16 {vr(FAa[u]+2*half,2)}, v6 offset:{o*336}")
            T.issue(f"ds_read_b64_tr_b16 {vr(FAa[u]+4+2*half,2)}, v6 offset:{o*336+32}", ("a", u))

    def rdB_(u):
        for half in range(2):
            T.issue(f"ds_read_b64_tr_b16 {vr(FBb[u]+2*half,2)}, v7 offset:{(16*u+4*half)*208}", ("b", u))

    def pm(u, first=False):
        T.wait(("a", u), ("b", u))
        for TT in range(2):
            c = "0" if first else vr(ACC + 16 * TT, 16)
            A(f"v_mfma_f32_32x32x16_bf16 {vr(ACC+16*TT,16)}, {vr(FAa[u]+4*TT,4)}, {vr(FBb[u],4)}, {c}")

    rdB_(0); rdA_(0); rdB_(1); rdA_(1)
    pm(0, True)
    rdB_(4); rdA_(4)
    pm(1)
    rdB_(5); rdA_(5)
    T.issue("ds_read_b32 v12, v10", "c")
    pm(4)
    for u in (2, 3, 6, 7):
        rdB_(u)
    A("v_lshlrev_b32 v2, 4, v1")
    A("v_lshlrev_b32 v3, 3, v1")
    T.wait("c")
    Lok = A.newlabel("L_s1ok")
    A("v_cmp_le_u32 vcc, 4, v12")
    A(f"s_cbranch_vccnz {Lok}")
    lds_wait(A, 10, None, 4)
    A.label(Lok)
    rdA_(2); rdA_(3)
    pm(5)
    rdA_(6)
    pm(2)
    rdA_(7)
    pm(3); pm(6); pm(7)
    o_index(A)
    for i in range(10):
        A(f"v_cvt_pk_bf16_f32 v{48+i}, v{ACC+2*i}, v{ACC+2*i+1}")
    A(f"buffer_store_dwordx2 v[56:57], v3, s[{SWS}:{SWS+3}], s57 offen offset:2048{SC}")
    A("s_mov_b32 exec_lo, 0x00ffffff")
    A("s_mov_b32 exec_hi, 0x00ffffff")
    A(f"buffer_store_dwordx4 v[48:51], v2, s[{SWS}:{SWS+3}], s57 offen{SC}")
    A(f"buffer_store_dwordx4 v[52:55], v2, s[{SWS}:{SWS+3}], s57 offen offset:1024{SC}")
    A("s_mov_b64 exec, -1")
    stamp(A, 6)
    role_o(A)
    end_wave(A)
    A.label(Lq)
    hq = A.mark()
    pre = [f"s_mov_b32 s57, {64*1280}",
           f"v_mul_lo_u32 v{t1}, s57, v{HD}",
           f"v_lshl_add_u32 v2, v{S16}, 4, v{t1}",
           f"v_lshl_add_u32 v3, v{S16}, 3, v{t1}",
           "s_lshl_b32 s58, s49, 1",
           "s_add_u32 s58, s58, s52",
           "s_lshl_b32 s59, s50, 1",
           "s_add_u32 s59, s59, s53",
           "s_lshl_b32 s59, s59, 5",
           "s_add_u32 s59, s59, s58",
           "s_lshl_b32 s59, s59, 7",
           f"s_add_u32 s59, s59, {F2:#x}",
           "s_lshl_b32 s57, s50, 8",
           "s_add_u32 s57, s57, s58",
           "s_mul_i32 s57, s57, 2560"]
    A("s_nop 0")
    OQ = 140

    def outq(rho):
        x, o = ACC + 20 * rho, OQ + 10 * rho
        off = 1280 * (rho >> 1)
        L = [f"v_cvt_pk_bf16_f32 v{o+i}, v{x+2*i}, v{x+2*i+1}" for i in range(10)]
        L.append(f"buffer_store_dwordx4 {vr(o,4)}, v2, s[{SWS}:{SWS+3}], s57 offen offset:{off+256*(rho&1)}{SC}")
        L.append(f"buffer_store_dwordx4 {vr(o+4,4)}, v2, s[{SWS}:{SWS+3}], s57 offen offset:{off+512+256*(rho&1)}{SC}")
        L.append(f"buffer_store_dwordx2 {vr(o+8,2)}, v3, s[{SWS}:{SWS+3}], s57 offen offset:{off+1024+128*(rho&1)}{SC}")
        return L

    weave(phi_mfma(PS[0], ACC), pre + cvt(2), 2)
    m = phi_mfma(PS[1], ACC + 20)
    weave(m[:6], cvt(3), 2)
    weave(m[6:], outq(0), 2)
    m = phi_mfma(PS[2], ACC + 40)
    weave(m[:6], [], 0)
    weave(m[6:], outq(1), 2)
    m = phi_mfma(PS[3], ACC + 60)
    weave(m[:6], [], 0)
    weave(m[6:], outq(2), 2)
    for x in outq(3):
        A(x)
    stamp(A, 6)
    if Opt.qlate == 3:
        lds_arrive(A, 14, L_SYNC + 52)
    tag_check(A, 10)
    set_flag(A, 10, "s59")
    stamp(A, 7)
    A.check_seam(mq, hq)
    lds_arrive(A, 14, L_SYNC)
    lds_wait(A, 14, None, 8 if Opt.qlate else 4, sleep=2)
    A("s_setprio 0")
    A("s_cmp_lt_u32 s99, 4")
    A("s_cbranch_scc1 L_wo")
    if Opt.wopf == "qs":
        srd(A, 36, S_WO, NB_WO)
        A("s_sub_u32 s57, s99, 4")
        A("s_lshl_b32 s57, s57, 2")
        A("s_add_u32 s57, s57, s48")
        A("s_lshl_b32 s57, s57, 13")
        A(f"s_add_u32 s57, s57, {240*1280}")
        A("v_lshlrev_b32 v8, 7, v1")
        for i in range(4):
            A(f"buffer_load_dword v{200+i}, v8, s[36:39], s57 offen")
            A(f"s_add_u32 s57, s57, {16*8192}")
    A(f"s_cmp_lt_u32 s48, {4 if Opt.p3 else 2}")
    A("s_cbranch_scc1 L_post")
    end_wave(A)


def role_o(A):
    NT = 4
    RAW, X, PQ = 64, 104, 128
    A("s_mul_i32 s53, s48, 20480")
    A(f"s_add_u32 s53, s53, {L_WOB}")
    A("v_and_b32 v4, 31, v1")
    A("v_lshl_add_u32 v5, v4, 4, s53")
    A("v_lshl_add_u32 v6, v4, 3, s53")
    A("v_and_b32 v7, 32, v1")
    A("v_lshlrev_b32 v7, 26, v7")
    A("s_lshl_b32 s54, s48, 2")
    A(f"s_add_u32 s54, s54, {L_SYNC+16}")
    A("s_mov_b32 s58, 0xffff0000")
    for t in range(NT):
        A(f"v_mov_b32 v{PQ+12*t+10}, 0")
        A(f"v_mov_b32 v{PQ+12*t+11}, 0")
    A("s_mov_b32 s96, s59")
    A("s_mov_b32 s97, 0")
    if Opt.dflag:
        Lgo = A.newlabel("L_go")
        A("v_mov_b32 v14, s54")
        A("ds_read_b32 v15, v14")
        A("s_waitcnt lgkmcnt(0)")
        A("v_cmp_le_u32 vcc, 1, v15")
        A(f"s_cbranch_vccnz {Lgo}")
    set_flag(A, 10, "s96")
    lds_arrive(A, 14, L_SYNC + 4)
    A("s_mov_b32 s97, 1")
    stamp(A, 7)
    lds_wait(A, 14, "s54", 1)
    if Opt.dflag:
        A.label(Lgo)
    stampw(A, 8)
    T = Lgkm(A)
    for t in range(NT):
        T.issue(f"ds_read_b128 {vr(RAW+10*t,4)}, v5 offset:{1280*t}")
        T.issue(f"ds_read_b128 {vr(RAW+10*t+4,4)}, v5 offset:{1280*t+512}")
        T.issue(f"ds_read_b64 {vr(RAW+10*t+8,2)}, v6 offset:{1280*t+1024}", t)
    A("s_lshl_b32 s57, s63, 2")
    A("s_mul_i32 s54, s57, 40960")
    A(f"s_add_u32 s54, s54, {WS_O:#x}")
    A("s_lshl_b32 s59, s62, 8")
    A("s_add_u32 s59, s59, s54")
    A("s_add_u32 s59, s59, 32768")
    A("s_lshl_b32 s57, s62, 10")
    A("s_add_u32 s54, s54, s57")
    A("s_lshl_b32 s50, s63, 5")
    A("s_add_u32 s50, s50, s62")
    A("s_lshl_b32 s50, s50, 7")
    A(f"s_add_u32 s50, s50, {F3:#x}")
    if Opt.qpipe:
        XS = (176, 200, 104, 224)

        def stA(t):
            X_, m = XS[t], XS[t] + 20
            L = []
            for i in range(10):
                r = RAW + 10 * t + i
                L += [f"v_lshl_add_u32 v{X_+2*i}, v{r}, 16, v7", f"v_bitop3_b32 v{X_+2*i+1}, v{r}, s58, v7 bitop3:0x6a"]
            L += [f"v_max3_f32 v{m}, v{X_}, v{X_+1}, v{X_+2}", f"v_max3_f32 v{m+1}, v{X_+3}, v{X_+4}, v{X_+5}"]
            for i in range(6, 18, 4):
                L += [f"v_max3_f32 v{m}, v{m}, v{X_+i}, v{X_+i+1}", f"v_max3_f32 v{m+1}, v{m+1}, v{X_+i+2}, v{X_+i+3}"]
            L += [f"v_max3_f32 v{m}, v{m}, v{X_+18}, v{X_+19}", f"v_max_f32 v{m}, v{m}, v{m+1}", f"v_mul_f32 v{m}, s60, v{m}"]
            L += [f"v_pk_fma_f32 {vr(X_+i,2)}, {vr(X_+i,2)}, s[60:61], {vr(m,2)} op_sel_hi:[1,1,0] neg_lo:[0,0,1] neg_hi:[0,0,1]" for i in range(0, 20, 2)]
            return L

        def stC(t):
            X_, m, e = XS[t], XS[t] + 20, XS[t] + 22
            L = [f"v_pk_add_f32 {vr(e,2)}, {vr(X_,2)}, {vr(X_+2,2)}", f"v_pk_add_f32 {vr(m,2)}, {vr(X_+4,2)}, {vr(X_+6,2)}"]
            for i in range(8, 20, 4):
                L += [f"v_pk_add_f32 {vr(e,2)}, {vr(e,2)}, {vr(X_+i,2)}", f"v_pk_add_f32 {vr(m,2)}, {vr(m,2)}, {vr(X_+i+2,2)}"]
            L += [f"v_pk_add_f32 {vr(e,2)}, {vr(e,2)}, {vr(m,2)}", f"v_add_f32 v{e}, v{e}, v{e+1}", f"v_rcp_f32 v{e}, v{e}"]
            L += [f"v_pk_mul_f32 {vr(X_+i,2)}, {vr(X_+i,2)}, {vr(e,2)} op_sel_hi:[1,0]" for i in range(0, 20, 2)]
            L += [f"v_cvt_pk_bf16_f32 v{PQ+12*t+i}, v{X_+2*i}, v{X_+2*i+1}" for i in range(10)]
            return L

        def zipl(p, q):
            out = []
            while p or q:
                if p:
                    out.append(p.pop(0))
                if q:
                    out.append(q.pop(0))
            return out

        T.wait(0)
        for x in stA(0):
            A(x)
        T.all()
        for t in range(NT):
            rest = zipl(stA(t + 1) if t + 1 < NT else [], stC(t - 1) if t else [])
            n = len(rest)
            for i in range(20):
                A(f"v_exp_f32 v{XS[t]+i}, v{XS[t]+i}")
                for x in rest[i * n // 20:(i + 1) * n // 20]:
                    A(x)
        for x in stC(NT - 1):
            A(x)
    else:
        mx, se = 124, 126
        for t in range(NT):
            T.wait(t)
            for i in range(10):
                A(f"v_lshl_add_u32 v{X+2*i}, v{RAW+10*t+i}, 16, v7")
                A(f"v_bitop3_b32 v{X+2*i+1}, v{RAW+10*t+i}, s58, v7 bitop3:0x6a")
            A(f"v_max3_f32 v{mx}, v{X}, v{X+1}, v{X+2}")
            A(f"v_max3_f32 v{mx+1}, v{X+3}, v{X+4}, v{X+5}")
            for i in range(6, 18, 4):
                A(f"v_max3_f32 v{mx}, v{mx}, v{X+i}, v{X+i+1}")
                A(f"v_max3_f32 v{mx+1}, v{mx+1}, v{X+i+2}, v{X+i+3}")
            A(f"v_max3_f32 v{mx}, v{mx}, v{X+18}, v{X+19}")
            A(f"v_max_f32 v{mx}, v{mx}, v{mx+1}")
            A(f"v_mul_f32 v{mx}, s60, v{mx}")
            for i in range(0, 20, 2):
                A(f"v_pk_fma_f32 {vr(X+i,2)}, {vr(X+i,2)}, s[60:61], {vr(mx,2)} op_sel_hi:[1,1,0] neg_lo:[0,0,1] neg_hi:[0,0,1]")
            if Opt.dflag and t == 1:
                Lsk = A.newlabel("L_sk")
                A("s_cmp_eq_u32 s97, 1")
                A(f"s_cbranch_scc1 {Lsk}")
                set_flag(A, 10, "s96")
                lds_arrive(A, 14, L_SYNC + 4)
                stampw(A, 7)
                A.label(Lsk)
            for i in range(20):
                A(f"v_exp_f32 v{X+i}, v{X+i}")
            A(f"v_pk_add_f32 {vr(se,2)}, {vr(X,2)}, {vr(X+2,2)}")
            A(f"v_pk_add_f32 {vr(mx,2)}, {vr(X+4,2)}, {vr(X+6,2)}")
            for i in range(8, 20, 4):
                A(f"v_pk_add_f32 {vr(se,2)}, {vr(se,2)}, {vr(X+i,2)}")
                A(f"v_pk_add_f32 {vr(mx,2)}, {vr(mx,2)}, {vr(X+i+2,2)}")
            A(f"v_pk_add_f32 {vr(se,2)}, {vr(se,2)}, {vr(mx,2)}")
            A(f"v_add_f32 v{se}, v{se}, v{se+1}")
            A(f"v_rcp_f32 v{se}, v{se}")
            for i in range(0, 20, 2):
                A(f"v_pk_mul_f32 {vr(X+i,2)}, {vr(X+i,2)}, {vr(se,2)} op_sel_hi:[1,0]")
            for i in range(10):
                A(f"v_cvt_pk_bf16_f32 v{PQ+12*t+i}, v{X+2*i}, v{X+2*i+1}")
    stamp(A, 9)
    KF = 16
    A(f"v_mov_b32 v{KF+10}, 0")
    A(f"v_mov_b32 v{KF+11}, 0")
    lds_wait(A, 14, L_SYNC + 8, 4)
    stampw(A, 10)
    PR = 32
    T = Lgkm(A)
    for q in range(5):
        for p in range(4):
            T.issue(f"ds_read_b128 {vr(PR+16*q+4*p,4)}, v2 offset:{5120*p+1024*q}", q)
    for q in range(5):
        T.wait(q)
        b = PR + 16 * q
        for h in (0, 2):
            A(f"v_pk_add_f32 {vr(b+h,2)}, {vr(b+h,2)}, {vr(b+4+h,2)}")
            A(f"v_pk_add_f32 {vr(b+8+h,2)}, {vr(b+8+h,2)}, {vr(b+12+h,2)}")
        for h in (0, 2):
            A(f"v_pk_add_f32 {vr(b+h,2)}, {vr(b+h,2)}, {vr(b+8+h,2)}")
        for h in (0, 2):
            A(f"v_cvt_pk_bf16_f32 v{KF+2*q+h//2}, v{b+h}, v{b+h+1}")
    D = [176, 192, 208, 224]
    OP = [32, 40, 48, 56]

    def mf(t):
        for u in range(3):
            c = vr(D[t], 16) if u else "0"
            A(f"v_mfma_f32_32x32x16_bf16 {vr(D[t],16)}, {vr(KF+4*u,4)}, {vr(PQ+12*t+4*u,4)}, {c}")

    if Opt.dA:
        A(f"s_sleep {Opt.dA}")
    mf(0)
    mf(1)
    for t in range(NT):
        d, o = D[t], OP[t]
        A(f"v_add_f32 v10, 0x358637bd, v{d+12}")
        A("v_rcp_f32 v10, v10")
        if t + 2 < NT:
            mf(t + 2)
        if t >= 2:
            for i in range(0, 12, 2):
                A(f"v_pk_mul_f32 {vr(d+i,2)}, {vr(d+i,2)}, v[10:11] op_sel_hi:[1,0]")
        else:
            for i in range(12):
                A(f"v_mul_f32 v{d+i}, v10, v{d+i}")
        for i in range(6):
            A(f"v_cvt_pk_bf16_f32 v{o+i}, v{d+2*i}, v{d+2*i+1}")
        A(f"buffer_store_dwordx4 {vr(o,4)}, v2, s[{SWS}:{SWS+3}], s54 offen{SC}")
        A("s_mov_b32 exec_hi, 0")
        A(f"buffer_store_dwordx2 {vr(o+4,2)}, v3, s[{SWS}:{SWS+3}], s59 offen{SC}")
        A("s_mov_b64 exec, -1")
        if t < NT - 1:
            A("s_add_u32 s54, s54, 40960")
            A("s_add_u32 s59, s59, 40960")
    stamp(A, 11)
    set_flag(A, 12, "s50")
    lds_arrive(A, 16, L_SYNC + 12)
    stamp(A, 12)


def b_channel(A):
    A("s_mul_i32 s49, s98, 80")
    A("s_sub_u32 s50, s99, 24")
    A("s_mul_i32 s50, s50, 6")
    A("s_add_u32 s49, s49, s50")
    A("s_add_u32 s49, s49, s48")
    A("s_cmp_ge_u32 s48, 6")
    A("s_cselect_b32 s50, 2, 0")
    A("s_sub_u32 s49, s49, s50")
    A(f"s_mul_i32 s56, s48, {CV_LDS}")


def conv_load_h(A, v):
    SH = 40
    srd(A, SH, S_SSK, NB_SSK)
    A(f"v_lshlrev_b32 v{v}, 4, v1")
    A("s_lshl_b32 s50, s49, 12")
    A("s_add_u32 m0, s56, 64")
    for i in range(4):
        A(f"buffer_load_dwordx4 v{v}, s[{SH}:{SH+3}], s50 offen offset:{1024*i}{Opt.nth} lds")


def f0_lines(A, c0, c1, v):
    A(f"s_lshr_b32 s52, s{c0}, 6")
    A("s_mul_i32 s52, s52, 419431")
    A("s_lshr_b32 s52, s52, 16")
    A(f"s_lshr_b32 s53, s{c1}, 6")
    A("s_mul_i32 s53, s53, 419431")
    A("s_add_u32 s53, s53, 406324")
    A("s_lshr_b32 s53, s53, 16")
    A(f"v_lshrrev_b32 v{v}, 2, v1")
    A(f"v_add_u32 v{v}, s52, v{v}")
    A(f"v_min_u32 v{v}, s53, v{v}")
    A(f"v_lshlrev_b32 v{v}, 7, v{v}")
    A(f"s_mov_b32 s52, {F0:#x}")


def role_pre(A):
    SK, SV, SS = 32, 36, 40
    t0, t1, t2 = 2, 3, 4
    A("s_lshl_b32 s49, s98, 3")
    A("s_add_u32 s49, s49, s99")
    A("s_sub_u32 s49, s49, 24")
    A("s_mul_i32 s49, s49, 5")
    A("s_add_u32 s49, s49, s48")
    A("s_and_b32 s50, s49, 31")
    A("s_lshr_b32 s51, s49, 5")
    A(f"s_mul_i32 s52, s50, {64*1280}")
    A("s_lshl_b32 s53, s51, 7")
    A("s_add_u32 s52, s52, s53")
    A(f"v_lshrrev_b32 v{t0}, 3, v1")
    A(f"v_and_b32 v{t1}, 7, v1")
    A(f"v_mul_u32_u24 v{t2}, {8*1280}, v{t0}")
    A(f"v_lshl_add_u32 v{t2}, v{t1}, 4, v{t2}")
    A(f"v_add_u32 v5, s52, v{t2}")
    A(f"v_subrev_u32 v6, {3*1280}, v5")
    A(f"v_subrev_u32 v7, {2*1280}, v5")
    A(f"v_subrev_u32 v8, {1280}, v5")
    A(f"v_lshlrev_b32 v9, 6, v{t1}")
    A("s_lshl_b32 s54, s51, 9")
    A(f"s_movk_i32 s55, {4*1280}")
    A("s_waitcnt lgkmcnt(0)")
    srd(A, SK, S_BK, NB_X)
    srd(A, SV, S_BV, NB_X)
    srd(A, SS, S_SH, NB_SH)
    WR, KR, VR = 16, 32, 76
    for i in range(4):
        A(f"buffer_load_dwordx4 {vr(WR+4*i,4)}, v9, s[{SS}:{SS+3}], s54 offen offset:{16*i}")
    for i in range(3):
        A(f"buffer_load_dwordx4 {vr(KR+4*i,4)}, v{6+i}, s[{SK}:{SK+3}], 0 offen{Opt.ntk}")

    order = []

    def ld(kind, i):
        so = "0" if i < 4 else "s55"
        if kind == "k":
            A(f"buffer_load_dwordx4 {vr(KR+12+4*i,4)}, v5, s[{SK}:{SK+3}], {so} offen offset:{1280*(i&3)}{Opt.ntk}")
        else:
            A(f"buffer_load_dwordx4 {vr(VR+4*i,4)}, v5, s[{SV}:{SV+3}], {so} offen offset:{1280*(i&3)}{Opt.ntk}")
        order.append((kind, i))

    for i in (5, 6, 7):
        ld("k", i)
    ld("k", 0); ld("v", 0); ld("k", 1); ld("v", 1)
    todo = [("k", 2), ("v", 2), ("k", 3), ("v", 3), ("k", 4), ("v", 4), ("v", 5), ("v", 6), ("v", 7)]
    stamp(A, 2)
    srd(A, SWS, S_WS, WS_SIZE)
    A("s_mul_i32 s56, s48, 8320")
    A(f"s_add_u32 s56, s56, {B_PRE}")
    A(f"v_mul_u32_u24 v10, 1040, v{t1}")
    A(f"v_lshl_add_u32 v10, v{t0}, 4, v10")
    A("v_add_u32 v10, s56, v10")
    A("v_lshrrev_b32 v11, 4, v1")
    A("v_lshlrev_b32 v11, 8, v11")
    A("v_and_b32 v12, 3, v1")
    A("v_lshl_add_u32 v11, v12, 6, v11")
    A("v_bfe_u32 v12, v1, 2, 2")
    A("v_lshl_add_u32 v11, v12, 3, v11")
    A("v_add_u32 v11, s56, v11")
    A(f"v_mul_u32_u24 v12, {Opt.pit}, v{t0}")
    A(f"v_lshl_add_u32 v12, v{t1}, 4, v12")
    A(f"s_mul_i32 s57, s51, {64*Opt.pit}")
    A("s_lshl_b32 s58, s50, 7")
    A("s_add_u32 s57, s57, s58")
    A(f"s_add_u32 s57, s57, {WS_KVT:#x}")
    A("s_mov_b32 s59, 0xffff0000")
    WF, KF, VF, TA, OUT = 108, 140, 172, 180, 196

    def unpack(dst, src, n):
        for i in range(n):
            A(f"v_lshlrev_b32 v{dst+2*i}, 16, v{src+i}")
            A(f"v_and_b32 v{dst+2*i+1}, s59, v{src+i}")

    A(f"s_waitcnt vmcnt({3+len(order)})")
    ld(*todo.pop(0)); ld(*todo.pop(0))
    for c in range(8):
        A(f"v_lshlrev_b32 v{WF+c}, 16, v{WR+2*c}")
        A(f"v_and_b32 v{WF+8+c}, s59, v{WR+2*c}")
        A(f"v_lshlrev_b32 v{WF+16+c}, 16, v{WR+2*c+1}")
        A(f"v_and_b32 v{WF+24+c}, s59, v{WR+2*c+1}")
    A(f"s_waitcnt vmcnt({len(order)})")
    ld(*todo.pop(0)); ld(*todo.pop(0))
    for i in range(3):
        unpack(KF + 8 * i, KR + 4 * i, 4)
    for i in range(8):
        need = max(order.index(("k", i)), order.index(("v", i)))
        A(f"s_waitcnt vmcnt({len(order)-1-need})")
        for _ in range(2):
            if todo:
                ld(*todo.pop(0))
        if i == 2:
            b_channel(A)
            if Opt.hdef:
                A("s_lshl_b32 s50, s49, 12")
            else:
                conv_load_h(A, 13)
                order.extend([None] * 4)
        unpack(KF + 8 * ((i + 3) & 3), KR + 12 + 4 * i, 4)
        unpack(VF, VR + 4 * i, 4)
        acc = TA + 8 * (i & 1)
        for j in (3, 2, 1, 0):
            kk = KF + 8 * ((i + 3 - j) & 3)
            for c in range(0, 8, 2):
                if j == 3:
                    A(f"v_pk_mul_f32 {vr(acc+c,2)}, {vr(kk+c,2)}, {vr(WF+8*j+c,2)}")
                else:
                    A(f"v_pk_fma_f32 {vr(acc+c,2)}, {vr(kk+c,2)}, {vr(WF+8*j+c,2)}, {vr(acc+c,2)}")
        for c in range(0, 8, 2):
            A(f"v_pk_mul_f32 {vr(acc+c,2)}, {vr(acc+c,2)}, {vr(VF+c,2)}")
        if i & 1:
            for c in range(8):
                A(f"v_cvt_pk_bf16_f32 v{OUT+4*c+i//2}, v{TA+c}, v{TA+8+c}")
    stamp(A, 3)
    for c in range(8):
        A(f"ds_write_b128 v10, {vr(OUT+4*c,4)} offset:{128*c}")
    A("s_waitcnt lgkmcnt(0)")
    T = Lgkm(A)
    for i in range(8):
        T.issue(f"ds_read_b64_tr_b16 {vr(16+4*i,2)}, v11 offset:{1040*i}")
        T.issue(f"ds_read_b64_tr_b16 {vr(18+4*i,2)}, v11 offset:{1040*i+32}", i)
    for i in range(8):
        T.wait(i)
        A(f"buffer_store_dwordx4 {vr(16+4*i,4)}, v12, s[{SWS}:{SWS+3}], s57 offen{SC}")
        if i < 7:
            A(f"s_add_u32 s57, s57, {8*Opt.pit}")
    stamp(A, 5)
    if Opt.hdef == 2:
        conv_load_h(A, 13)


def role_helper(A):
    SD = 40
    A("s_setprio 3")
    A("s_waitcnt lgkmcnt(0)")
    srd(A, SWS, S_WS, WS_SIZE)
    srd(A, SD, S_DBG, 256)
    Lz = A.newlabel("L_nz")
    A("s_cmp_eq_u32 s2, 192")
    A(f"s_cbranch_scc0 {Lz}")
    A("s_cmp_eq_u32 s48, 5")
    A(f"s_cbranch_scc0 {Lz}")
    A(f"s_mov_b32 s57, {WS_EPOCH:#x}")
    A("s_mov_b64 exec, 1")
    for _ in range(Opt.mdelay):
        A("s_sleep 127")
    A(f"buffer_load_dword v4, off, s[{SWS}:{SWS+3}], s57{SC}")
    A("s_waitcnt vmcnt(0)")
    A("v_add_u32 v4, 1, v4")
    A("v_not_b32 v5, v4")
    A(f"buffer_store_dwordx2 v[4:5], off, s[{SD}:{SD+3}], 0{SC}")
    A(f"buffer_store_dword v4, off, s[{SWS}:{SWS+3}], s57{SC}")
    A("s_mov_b64 exec, -1")
    stamp(A, 2)
    A.label(Lz)
    if Opt.touch & 2:
        Lt = A.newlabel("L_nt")
        A("s_cmp_eq_u32 s48, 5")
        A(f"s_cbranch_scc0 {Lt}")
        touch(A, 26, 32, Opt.tsh)
        for k_, (b_, n_) in enumerate(((S_BQ, NB_X), (S_SSK, NB_SSK))):
            srd(A, 32, b_, n_)
            A(f"buffer_load_dword v29, v26, s[32:35], 0 offen")
        A.label(Lt)
    if Opt.codepf:
        Lp = A.newlabel("L_npf")
        A("s_cmp_eq_u32 s48, 6")
        A(f"s_cbranch_scc0 {Lp}")
        A("s_getpc_b64 s[50:51]")
        A.label("L_pc")
        A(f"s_sub_u32 s50, s50, L_pc-{NAME}_kernel")
        A("s_subb_u32 s51, s51, 0")
        A("s_sub_u32 s52, s99, 24")
        A("s_lshl_b32 s52, s52, 13")
        A("v_lshl_add_u32 v2, v1, 7, s52")
        A(f"v_min_u32 v2, L_code_end-{NAME}_kernel-4, v2")
        A("global_load_dword v24, v2, s[50:51]")
        A.label(Lp)
    if Opt.bwarm:
        Lw_ = A.newlabel("L_bw")
        A("s_cmp_eq_u32 s48, 7")
        A(f"s_cbranch_scc0 {Lw_}")
        A("s_sub_u32 s61, s99, 24")
        A("s_mul_i32 s60, s98, 80")
        A("s_mul_i32 s61, s61, 6")
        A("s_add_u32 s60, s60, s61")
        A("s_add_u32 s61, s60, 5")
        f0_lines(A, 60, 61, 12)
        A(f"buffer_load_dword v26, v12, s[{SWS}:{SWS+3}], s52 offen{SC}")
        if Opt.bwarm > 1:
            A("s_lshl_b32 s57, s98, 4")
            A("s_sub_u32 s58, s57, 16")
            A("v_min_u32 v12, 47, v1")
            A("v_add_u32 v12, s58, v12")
            A("v_max_i32 v12, 0, v12")
            A("v_min_u32 v12, 127, v12")
            A("v_lshlrev_b32 v12, 7, v12")
            A(f"s_mov_b32 s58, {F4:#x}")
            A(f"buffer_load_dword v27, v12, s[{SWS}:{SWS+3}], s58 offen{SC}")
        A.label(Lw_)
    Lnw = A.newlabel("L_nw")
    A("s_sub_u32 s61, s99, 24")
    A("s_lshl_b32 s60, s61, 1")
    A("s_add_u32 s60, s60, s48")
    A("s_sub_u32 s60, s60, 6")
    A("s_xor_b32 s61, s61, 20")
    A("s_cmp_eq_u32 s48, 5")
    A("s_cselect_b32 s60, s61, s60")
    A("s_lshl_b32 s60, s60, 3")
    A("s_add_u32 s60, s60, s98")
    A("s_cmp_ge_u32 s60, 160")
    A(f"s_cbranch_scc1 {Lnw}_a")
    srd(A, 36, S_WO, NB_WO)
    A("s_lshr_b32 s61, s60, 3")
    A("s_and_b32 s62, s60, 7")
    A(f"s_mul_i32 s53, s62, {80*1280}")
    A("s_lshl_b32 s54, s61, 6")
    A("s_add_u32 s53, s53, s54")
    A("v_lshrrev_b32 v2, 2, v1")
    A("v_and_b32 v3, 3, v1")
    A("v_mul_u32_u24 v4, 1280, v2")
    A("v_lshl_add_u32 v4, v3, 4, v4")
    A(f"s_mul_i32 s56, s48, {CV_LDS}")
    for i in range(5):
        A(f"s_add_u32 m0, s56, {1024*i}")
        A("buffer_load_dwordx4 v4, s[36:39], s53 offen lds")
        A(f"s_add_u32 s53, s53, {16*1280}")
    A.label(Lnw + "_a")
    if Opt.pfm:
        Le_ = A.newlabel("L_pme")
        A("s_and_b32 s50, s98, 3")
        A("s_lshr_b32 s51, s98, 2")
        A("s_and_b32 s52, s99, 3")
        A("s_lshl_b32 s53, s50, 1")
        A("s_add_u32 s53, s53, s51")
        A("s_lshl_b32 s53, s53, 2")
        A("s_add_u32 s53, s53, s52")
        A(f"s_mul_i32 s53, s53, {64*1280}")
        A("s_lshl_b32 s50, s50, 2")
        A("s_add_u32 s50, s50, s52")
        A("s_mul_i32 s52, s50, 52")
        A("s_lshr_b32 s52, s52, 8")
        A("s_add_u32 s52, s52, s51")
        A("s_mul_i32 s52, s52, 640")
        A("s_lshl_b32 s51, s50, 7")
        A("s_add_u32 s52, s52, s51")
        A("s_cmp_eq_u32 s50, 15")
        A(f"s_cselect_b32 s52, {NB_W:#x}, s52")
        A("s_cmp_lt_u32 s99, 28")
        A("s_cselect_b32 s51, s53, s52")
        A(f"s_cselect_b64 s[32:33], s[{S_X}:{S_X+1}], s[{S_W}:{S_W+1}]")
        A(f"s_mov_b32 s53, {NB_W:#x}")
        A(f"s_cselect_b32 s34, {NB_X:#x}, s53")
        A("s_mov_b32 s35, 0x20000")
        A("s_movk_i32 s53, 3840")
        A("s_cselect_b32 s52, 1280, s53")
        A(f"s_mov_b32 s53, {64*3840}")
        A("s_cselect_b32 s53, 128, s53")
        A("v_mul_u32_u24 v2, s52, v1")
        A("s_sub_u32 s50, s48, 5")
        A("s_lshl_b32 s50, s50, 2")
        for k in range(len(Opt.pfm) // 3):
            tab = Opt.pfm[3 * k] | Opt.pfm[3 * k + 1] << 4 | Opt.pfm[3 * k + 2] << 8
            A(f"s_lshr_b32 s54, {tab:#x}, s50")
            A("s_and_b32 s54, s54, 15")
            A("s_mul_i32 s52, s54, s53")
            A("s_cmp_ge_u32 s54, 10")
            A("s_cselect_b32 s52, 0x1000000, s52")
            A("s_add_u32 s52, s52, s51")
            A(f"buffer_load_dword v{30+k}, v2, s[32:35], s52 offen")
        A.label(Le_)
    if Opt.pfw or Opt.pfx:
        Lx_, Le_ = A.newlabel("L_pfx"), A.newlabel("L_pfe")
        A("s_cmp_eq_u32 s48, 5")
        A(f"s_cbranch_scc1 {Lx_}")
        A("s_lshl_b32 s50, s48, 3")
        A("s_add_u32 s50, s50, s99")
        A("s_sub_u32 s50, s50, 72")
        A("s_cmp_eq_u32 s50, 15")
        A(f"s_cbranch_scc1 {Le_}")
        A("s_mul_i32 s51, s50, 52")
        A("s_lshr_b32 s51, s51, 8")
        A("s_lshr_b32 s52, s98, 2")
        A("s_add_u32 s51, s51, s52")
        A("s_mul_i32 s51, s51, 640")
        A("s_lshl_b32 s50, s50, 7")
        A("s_add_u32 s51, s51, s50")
        srd(A, 32, S_W, NB_W)
        A("v_mul_u32_u24 v2, 3840, v1")
        for k, st in enumerate(Opt.pfw):
            A(f"s_add_u32 s50, s51, {st*64*3840}")
            A(f"buffer_load_dword v{30+k}, v2, s[32:35], s50 offen")
        A(f"s_branch {Le_}")
        A.label(Lx_)
        if Opt.pfx:
            A("s_and_b32 s51, s98, 3")
            A("s_lshl_b32 s51, s51, 3")
            A("s_add_u32 s51, s51, s99")
            A("s_sub_u32 s51, s51, 24")
            A(f"s_mul_i32 s51, s51, {64*1280}")
            srd(A, 32, S_X, NB_X)
            A("v_mul_u32_u24 v2, 1280, v1")
            for k, st in enumerate(Opt.pfx):
                A(f"buffer_load_dword v{30+k}, v2, s[32:35], s51 offen offset:{128*st}")
        A.label(Le_)
    if Opt.pft:
        tasks = []
        for st, which in Opt.pft:
            for c in (range(5) if which == "q" else range(5, 15)):
                tasks += [(st, c), (st + 5, c)]
        nsl = -(-len(tasks) // 24)
        tasks += [(15, 0)] * (24 * nsl - len(tasks))
        srd(A, 32, S_W, NB_W)
        A("v_mul_u32_u24 v2, 3840, v1")
        A("s_lshr_b32 s51, s98, 2")
        A("s_sub_u32 s50, s99, 24")
        A("s_lshl_b32 s50, s50, 3")
        for k in range(nsl):
            tab = [sum((tasks[24*k + 8*w + j][0] << 4 | tasks[24*k + 8*w + j][1]) << (8 * j) for j in range(8)) for w in range(3)]
            A(f"s_mov_b32 s52, {tab[0] & 0xffffffff:#x}")
            A(f"s_mov_b32 s53, {tab[0] >> 32:#x}")
            for w in (1, 2):
                A(f"s_cmp_eq_u32 s48, {5+w}")
                A(f"s_cselect_b32 s52, {tab[w] & 0xffffffff:#x}, s52")
                A(f"s_cselect_b32 s53, {tab[w] >> 32:#x}, s53")
            A("s_lshr_b64 s[52:53], s[52:53], s50")
            A("s_bfe_u32 s53, s52, 0x40004")
            A("s_and_b32 s52, s52, 15")
            A("s_mul_i32 s54, s52, 52")
            A("s_lshr_b32 s54, s54, 8")
            A("s_add_u32 s54, s54, s51")
            A("s_mul_i32 s54, s54, 640")
            A("s_lshl_b32 s52, s52, 7")
            A("s_add_u32 s52, s52, s54")
            A(f"s_mul_i32 s53, s53, {64*3840}")
            A("s_add_u32 s52, s52, s53")
            A(f"buffer_load_dword v{34+k}, v2, s[32:35], s52 offen")
        Opt.npft = nsl
    if Opt.gpf2:
        Lnp = A.newlabel("L_ng")
        A("s_lshl_b32 s50, s48, 3")
        A("s_add_u32 s50, s50, s99")
        A("s_sub_u32 s50, s50, 64")
        A("s_cmp_ge_u32 s50, 20")
        A("s_cselect_b32 s53, 0x1000000, 0")
        A("s_lshr_b32 s51, s50, 1")
        A("s_and_b32 s50, s50, 1")
        A("s_cmp_ge_u32 s51, 5")
        A("s_cselect_b32 s52, 640, 0")
        A("s_lshl_b32 s51, s51, 7")
        A("s_add_u32 s51, s51, s52")
        A("s_lshr_b32 s52, s98, 2")
        A("s_mul_i32 s52, s52, 640")
        A("s_add_u32 s51, s51, s52")
        A("s_add_u32 s51, s51, s53")
        A("s_add_u32 s51, s51, 1280")
        A("s_mul_i32 s50, s50, 5")
        if Opt.dlt:
            A("s_lshl_b32 s52, s98, 2")
            A(f"s_lshr_b32 s52, {Opt.dlt:#x}, s52")
            A("s_and_b32 s52, s52, 7")
            A("s_add_u32 s50, s50, s52")
        srd(A, 32, S_W, NB_W)
        A("v_mul_u32_u24 v2, 3840, v1")
        for k in range(Opt.gpf2, 5):
            A(f"s_add_u32 s52, s50, {k}")
            A("s_sub_u32 s53, s52, 10")
            A("s_cselect_b32 s52, s52, s53")
            A(f"s_mul_i32 s52, s52, {64*3840}")
            A("s_add_u32 s52, s52, s51")
            A(f"buffer_load_dword v{30+k}, v2, s[32:35], s52 offen")
        A.label(Lnp)
    if Opt.gpf:
        A("s_sub_u32 s50, s99, 24")
        A("s_mul_i32 s50, s50, 3")
        A("s_add_u32 s50, s50, s48")
        A("s_sub_u32 s50, s50, 5")
        A("s_and_b32 s51, s98, 3")
        A("s_lshl_b32 s51, s51, 3")
        A("s_add_u32 s51, s51, s50")
        A(f"s_mul_i32 s51, s51, {64*1280}")
        A("s_sub_u32 s52, s50, 8")
        A("s_mul_i32 s53, s52, 52")
        A("s_lshr_b32 s53, s53, 8")
        A("s_mul_i32 s53, s53, 640")
        A("s_lshl_b32 s52, s52, 7")
        A("s_add_u32 s52, s52, s53")
        A("s_lshr_b32 s53, s98, 2")
        A("s_mul_i32 s53, s53, 640")
        A("s_add_u32 s52, s52, s53")
        A("s_cmp_eq_u32 s50, 23")
        A(f"s_cselect_b32 s52, {NB_W:#x}, s52")
        A("s_cmp_lt_u32 s50, 8")
        A("s_cselect_b32 s51, s51, s52")
        A(f"s_cselect_b64 s[32:33], s[{S_X}:{S_X+1}], s[{S_W}:{S_W+1}]")
        A(f"s_mov_b32 s53, {NB_W:#x}")
        A(f"s_cselect_b32 s34, {NB_X:#x}, s53")
        A("s_mov_b32 s35, 0x20000")
        A("s_movk_i32 s53, 3840")
        A("s_cselect_b32 s52, 1280, s53")
        A(f"s_mov_b32 s53, {64*3840}")
        A("s_cselect_b32 s53, 128, s53")
        A("v_mul_u32_u24 v2, s52, v1")
        A(f"s_mul_i32 s52, s53, {Opt.gpf}")
        A("s_add_u32 s51, s51, s52")
        for k, st in enumerate(range(Opt.gpf, 10)):
            if k >= Opt.gpfd:
                A(f"s_waitcnt vmcnt({Opt.gpfd-1})")
            A(f"buffer_load_dword v{30+k}, v2, s[32:35], s51 offen")
            A("s_add_u32 s51, s51, s53")
    A("s_cmp_ge_u32 s60, 160")
    A(f"s_cbranch_scc1 {Lnw}")
    A("v_bfe_u32 v10, v1, 2, 2")
    A("v_lshrrev_b32 v11, 5, v1")
    A("v_and_b32 v12, 1, v1")
    A("v_lshlrev_b32 v12, 5, v12")
    A("v_bfe_u32 v13, v1, 4, 1")
    A("v_lshl_add_u32 v12, v13, 4, v12")
    A("v_bfe_u32 v13, v1, 1, 1")
    A("v_lshl_add_u32 v12, v13, 3, v12")
    A("v_lshl_add_u32 v12, v10, 6, v12")
    A("v_add_u32 v12, s56, v12")
    A("v_lshl_add_u32 v13, v11, 8, v12")
    A("v_mul_u32_u24 v14, 2560, v11")
    A("v_add_u32 v14, v14, v12")
    A("v_lshlrev_b32 v2, 4, v1")
    A(f"s_mul_i32 s53, s61, {Opt.wstr}")
    A(f"s_add_u32 s53, s53, {WS_WOT:#x}")
    A("s_lshl_b32 s54, s62, 10")
    A("s_add_u32 s54, s54, s53")
    A("s_add_u32 s54, s54, 32768")
    A("s_lshl_b32 s62, s62, 12")
    A("s_add_u32 s53, s53, s62")
    A("s_lshl_b32 s55, s60, 7")
    A(f"s_add_u32 s55, s55, {FW:#x}")
    if Opt.wback == 2:
        A("v_lshlrev_b32 v5, 7, v1")
        A("s_mov_b32 exec_hi, 0")
        A(f"buffer_load_dword v24, v5, s[{SWS}:{SWS+3}], s53 offen")
        A("s_mov_b32 exec_lo, 0xff")
        A(f"buffer_load_dword v25, v5, s[{SWS}:{SWS+3}], s54 offen")
        A("s_mov_b64 exec, -1")
    assert not (Opt.pfw or Opt.pfx or Opt.gpf)
    A(f"s_waitcnt vmcnt({len(Opt.pfm)//3 + (5-Opt.gpf2 if Opt.gpf2 else 0) + Opt.npft})")
    for hh in range(4):
        for half in range(2):
            A(f"ds_read_b64_tr_b16 {vr(40+4*hh+2*half,2)}, v13 offset:{(20*hh+8*half)*64}")
    for half in range(2):
        A(f"ds_read_b64_tr_b16 {vr(56+2*half,2)}, v14 offset:{(20*half+16)*64}")
    A("s_waitcnt lgkmcnt(0)")
    for hh in range(4):
        A(f"buffer_store_dwordx4 {vr(40+4*hh,4)}, v2, s[{SWS}:{SWS+3}], s53 offen offset:{1024*hh}{Opt.stw}")
    A(f"buffer_store_dwordx4 v[56:59], v2, s[{SWS}:{SWS+3}], s54 offen{Opt.stw}")
    A(f"s_mov_b64 s[{TAG}:{TAG+1}], 0")
    if Opt.tagl:
        A("s_waitcnt vmcnt(0)")
    tag_check(A, 8)
    set_flag(A, 8, "s55")
    stamp(A, 3)
    if Opt.wback == 1:
        A("v_lshlrev_b32 v5, 7, v1")
        A("s_mov_b32 exec_hi, 0")
        A(f"buffer_load_dword v24, v5, s[{SWS}:{SWS+3}], s53 offen")
        A("s_mov_b32 exec_lo, 0xff")
        A(f"buffer_load_dword v25, v5, s[{SWS}:{SWS+3}], s54 offen")
        A("s_mov_b64 exec, -1")
    if Opt.wsh:
        A("s_waitcnt vmcnt(0)")
        A("v_lshlrev_b32 v5, 7, v1")
        for d_ in range(1, Opt.wsh + 1):
            A(f"s_add_u32 s62, s98, {d_}")
            A("s_and_b32 s62, s62, 7")
            A(f"s_mul_i32 s53, s61, {Opt.wstr}")
            A(f"s_add_u32 s53, s53, {WS_WOT:#x}")
            A("s_lshl_b32 s54, s62, 10")
            A("s_add_u32 s54, s54, s53")
            A("s_add_u32 s54, s54, 32768")
            A("s_lshl_b32 s62, s62, 12")
            A("s_add_u32 s53, s53, s62")
            A("s_mov_b32 exec_hi, 0")
            A(f"buffer_load_dword v24, v5, s[{SWS}:{SWS+3}], s53 offen")
            A("s_mov_b32 exec_lo, 0xff")
            A(f"buffer_load_dword v25, v5, s[{SWS}:{SWS+3}], s54 offen")
            A("s_mov_b64 exec, -1")
    A.label(Lnw)
    A("s_setprio 0")
    b_channel(A)
    if Opt.hdef == 1:
        A("s_lshl_b32 s50, s49, 12")
    else:
        conv_load_h(A, 2)
    A(f"v_mov_b32 v4, {B_MB+256}")
    A("v_mov_b32 v5, 0")
    A("ds_write_b32 v4, v5")
    A("ds_write_b32 v4, v5 offset:512")


def conv_setup(A):
    A("v_lshlrev_b32 v2, 4, v1")
    A("s_lshl_b32 s52, s49, 1")
    A("s_and_b32 s52, s52, 0xfffffffc")
    A(f"s_load_dword s55, s[{S_SSD}:{S_SSD+1}], s52")
    A(f"s_load_dword s54, s[{S_SSK}:{S_SSK+1}], s50")
    A(f"s_mul_i32 s51, s49, {Opt.pit}")
    A(f"s_add_u32 s51, s51, {WS_KVT:#x}")
    for i in range(4):
        A(f"v_mov_b32 v{4+i}, 0")
    A("v_add_u32 v3, s56, v2")
    A("s_mov_b64 exec, 0xf")
    A("ds_write_b128 v3, v[4:7]")
    A("s_mov_b32 exec_lo, -1")
    A(f"ds_write_b128 v3, v[4:7] offset:{64+4096}")
    A("s_mov_b64 exec, -1")
    A("v_and_b32 v11, 3, v1")
    A("v_lshrrev_b32 v10, 4, v1")
    A("v_bfe_u32 v12, v1, 2, 2")
    A("v_lshlrev_b32 v8, 4, v11")
    A("v_lshl_add_u32 v8, v10, 6, v8")
    A("v_lshlrev_b32 v9, 3, v12")
    A("v_sub_u32 v8, v8, v9")
    A("s_add_u32 s57, s56, 32")
    A("v_add_u32 v8, s57, v8")
    A("v_sub_u32 v9, v11, v10")
    A("v_lshlrev_b32 v9, 6, v9")
    A("v_lshl_add_u32 v9, v12, 4, v9")
    A(f"s_add_u32 s57, s56, {64+4096+512}")
    A("v_add_u32 v9, s57, v9")
    A("v_mov_b32 v13, 0xffff")
    for i in range(4):
        A(f"v_cmp_eq_u32 vcc, {4*i}, v1")
        A(f"v_cndmask_b32 v{MK+i}, 0, v13, vcc")
    A("v_add_u32 v13, 3, v11")
    A("v_and_b32 v13, 3, v13")
    A("v_lshl_add_u32 v13, v12, 2, v13")
    A("v_add_u32 v13, 48, v13")
    A("v_subrev_u32 v14, 16, v1")
    A("v_cmp_gt_u32 vcc, 16, v1")
    A("v_cndmask_b32 v14, v14, v13, vcc")
    A("v_lshlrev_b32 v14, 2, v14")
    A("s_mov_b32 s58, 0x1111")
    A("s_mov_b32 s59, 0")


MK = 16


def role_conv(A):
    conv_setup(A)
    A("s_sub_u32 s61, s99, 24")
    A("s_lshl_b32 s62, s98, 3")
    A("s_add_u32 s62, s62, s61")
    A("s_lshl_b32 s62, s62, 7")
    A(f"s_add_u32 s62, s62, {F0:#x}")
    A("s_mul_i32 s60, s98, 80")
    A("s_mul_i32 s61, s61, 6")
    A("s_add_u32 s60, s60, s61")
    A("s_add_u32 s61, s60, 5")
    f0_lines(A, 60, 61, 12)
    A(f"s_waitcnt vmcnt({4 if Opt.hdef == 2 else 0}) lgkmcnt(0)")
    stamp(A, 4)
    A("s_barrier")
    def xload():
        A(f"s_add_u32 m0, s56, {64+4096+512}")
        for i in range(4):
            A(f"buffer_load_dwordx4 v2, s[{SWS}:{SWS+3}], s51 offen offset:{1024*i}{SC} lds")

    Lh, Ln7 = A.newlabel("L_hd"), A.newlabel("L_n7")
    A("s_cmp_eq_u32 s48, 7")
    A(f"s_cbranch_scc0 {Lh}")
    set_flag(A, 22, "s62")
    A.label(Lh)
    A("s_barrier")
    conv_load_h(A, 2)
    A("s_cmp_eq_u32 s48, 7")
    A(f"s_cbranch_scc0 {Ln7}")
    if Opt.hq == 2:
        A("s_waitcnt vmcnt(0)")
    poll(A, 26, 12, "s52", sleep=Opt.f0s)
    A.label(Ln7)
    A("s_barrier")
    stamp(A, 8)
    xload()
    A("s_waitcnt vmcnt(4)")
    A("s_cmp_ge_u32 s48, 4")
    A("s_cbranch_scc0 L_cb")
    A("s_setprio 1")
    A("s_branch L_cb")
    A.label("L_conv")
    RA, RB = 64, 192
    ACCS = (32, 40, 48, 56)
    CAR, PUL, TMP = 20, (21, 22), 23
    OUT = (24, 28)

    def rdA(m, e):
        reg = RA + 8 * m + 4 * e
        return [(f"ds_read_b64_tr_b16 {vr(reg,2)}, v8 offset:{256*m+8*e+32}", None),
                (f"ds_read_b64_tr_b16 {vr(reg+2,2)}, v8 offset:{256*m+8*e}", ("A", m, e))]

    Lb, Lg = "L_cb", A.newlabel("L_cg")
    tag_check(A, 22)
    if Opt.qlate in (1, 3):
        conv_load_h(A, 2)
        A("s_barrier")
        lds_wait(A, 22, L_SYNC + (52 if Opt.qlate == 3 else 0), 4, sleep=2)
        A(f"buffer_load_dwordx2 v[22:23], v12, s[{SWS}:{SWS+3}], s52 offen{SC}")
        A("s_waitcnt vmcnt(0)")
    elif Opt.qlate == 2:
        A("s_barrier")
        lds_wait(A, 22, L_SYNC, 4, sleep=2)
        A(f"buffer_load_dwordx2 v[22:23], v12, s[{SWS}:{SWS+3}], s52 offen{SC}")
        conv_load_h(A, 2)
        A("s_waitcnt vmcnt(4)")
    else:
        conv_load_h(A, 2)
        A(f"buffer_load_dwordx2 v[22:23], v12, s[{SWS}:{SWS+3}], s52 offen{SC}")
        A("s_barrier")
        A("s_waitcnt vmcnt(0)")
    A(f"v_cmp_eq_u64 vcc, s[{TAG}:{TAG+1}], v[22:23]")
    A("s_cmp_eq_u64 vcc, -1")
    Lx = A.newlabel("L_cx")
    A(f"s_cbranch_scc1 {Lx}")
    poll(A, 22, 12, "s52", sleep=8)
    A.label(Lx)
    if Opt.qlate == 3:
        lds_wait(A, 22, L_SYNC, 4, sleep=1)
    stamp(A, 8)
    xload()
    if Opt.qlate:
        lds_arrive(A, 22, L_SYNC)
        A("s_waitcnt vmcnt(4)")
    A.label(Lb)
    A("s_waitcnt lgkmcnt(0)")
    A("s_lshl_b32 s54, s54, 16")
    A("s_lshl_b32 s53, s55, 16")
    A("s_and_b32 s55, s55, 0xffff0000")
    A("s_bitcmp1_b32 s49, 0")
    A("s_cselect_b32 s53, s55, s53")
    A("v_mov_b32 v15, s54")
    A("v_add_f32 v15, s53, v15")
    A("v_cvt_pk_bf16_f32 v15, v15, v15")
    T = Lgkm(A)
    for m in range(16):
        for e in range(2):
            for x, tg in rdA(m, e):
                T.issue(x, tg)
    T.wait(("A", 0, 1))
    for k in range(4):
        A(f"v_bfi_b32 v{RA+k}, v{MK+k}, v15, v{RA+k}")
        A(f"v_lshlrev_b32 v{MK+k}, 16, v{MK+k}")
        A(f"v_bfi_b32 v{RA+4+k}, v{MK+k}, v15, v{RA+4+k}")
    T.all()
    A(f"s_add_u32 s51, s51, {WS_YT-WS_KVT:#x}")
    A(f"v_mov_b32 v{PUL[1]}, 0")

    def epilogue(i):
        V = ACCS[i % 4]
        dpp = lambda d, src, op: f"v_add_f32_dpp v{d}, v{src}, v{d} {op} row_mask:0xf bank_mask:0xf"
        L = [f"v_mov_b32 v{CAR}, 0"]
        for k in (1, 2, 3):
            L += [dpp(V, V + k, f"row_shr:{4*k}"), dpp(V + 4, V + 4 + k, f"row_shr:{4*k}"), dpp(CAR, V + 4 + k, f"row_shl:{16-4*k}")]
        L.append(("ds", f"ds_bpermute_b32 v{PUL[i&1]}, v14, v{CAR}", ("P", i)))
        x = [dpp(V + 4, V + k, f"row_shl:{16-4*k}") for k in (1, 2, 3)]
        L += [x[0], "GAP", x[1], "GAP", x[2]]
        L.append(("wait", ("P", i)))
        L.append(f"v_cndmask_b32 v{TMP}, v{PUL[i&1]}, v{PUL[1-(i&1)]}, s[58:59]")
        L.append(f"v_add_f32 v{V}, v{V}, v{TMP}")
        L.append(f"v_cvt_pk_bf16_f32 v{OUT[(i>>2)&1]+(i&3)}, v{V}, v{V+4}")
        if i & 3 == 3:
            L.append(f"buffer_store_dwordx4 {vr(OUT[(i>>2)&1],4)}, v2, s[{SWS}:{SWS+3}], s51 offen offset:{1024*(i>>2)}{SC}")
        return L

    def emit(x):
        if isinstance(x, tuple):
            if x[0] == "ds":
                T.issue(x[1], x[2])
            else:
                T.wait(x[1])
        elif x != "GAP":
            A(x)

    A("s_waitcnt vmcnt(0)")
    stampw(A, 9)

    def stream(tiles, exit_at=None, keep=None):
        T.tag.clear()
        for w in range(16):
            T.issue(f"ds_read_b128 {vr(RB+4*w,4)}, v9 offset:{256*w}", ("B", w))
        fill = []
        since = 99
        for i in tiles:
            V = ACCS[i % 4]
            while fill and fill[0][0] <= i - 4:
                emit(fill.pop(0)[1])
            if exit_at and i == exit_at[0]:
                while fill and fill[0][0] <= i - 2:
                    emit(fill.pop(0)[1])
                assert len(fill) == len(epilogue(i - 1))
                A("s_cmp_ge_u32 s48, 4")
                A(f"s_cbranch_scc1 {exit_at[1]}")
            since = 0
            for w in range(i + 1):
                for e in range(2):
                    T.wait(("B", w))
                    c = vr(V + 4 * e, 4) if w else "0"
                    A(f"v_mfma_f32_16x16x32_bf16 {vr(V+4*e,4)}, {vr(RA+8*(i-w)+4*e,4)}, {vr(RB+4*w,4)}, {c}")
                    since += 1
                    left = 2 * (i + 1) - since
                    due = len([1 for t_, _x in fill if t_ <= i - 2])
                    if i == tiles[-1] or (exit_at and i == exit_at[0] - 1):
                        due = len(fill)
                    for _ in range(2 if due > left else 1):
                        if fill and (fill[0][0] < i - 1 or since >= 6):
                            emit(fill.pop(0)[1])
            ep = epilogue(i)
            if keep and i == keep[0]:
                k = [j for j, x in enumerate(ep) if isinstance(x, str) and x.startswith("v_cvt")][0]
                ep = ep[:k] + [f"v_mov_b32 v{keep[1]}, v{V}", f"v_mov_b32 v{keep[1]+1}, v{V+4}"] + ep[k + 1:]
            fill += [(i, x) for x in ep]
        stampw(A, 10)
        T.done = T.n if Ctx.stamps else T.done
        return [x for _, x in fill]

    A("s_cmp_ge_u32 s48, 6")
    A("s_cbranch_scc1 L_second")
    for x in stream(range(16), (12, "L_first")):
        emit(x)
    A("s_branch L_cdone")
    A.label("L_first")
    A("s_waitcnt lgkmcnt(0)")
    A("s_nop 6")
    T.done = T.n
    stampw(A, 10)
    for x in epilogue(11):
        emit(x)
    A("s_and_b32 s52, s48, 1")
    A("s_lshl_b32 s52, s52, 9")
    A(f"s_add_u32 s52, s52, {B_MB}")
    A("v_lshl_add_u32 v10, v1, 2, s52")
    A(f"ds_write_b32 v10, v{PUL[1]}")
    A("s_add_u32 s52, s52, 256")
    lds_arrive(A, 10, "s52")
    A("s_branch L_cdone")
    A.label("L_second")
    T.done = T.n
    last = stream(range(12, 16), keep=(12, 4))
    for x in last[:-1]:
        emit(x)
    A("s_and_b32 s52, s48, 1")
    A("s_lshl_b32 s52, s52, 9")
    A(f"s_add_u32 s52, s52, {B_MB}")
    A("v_lshl_add_u32 v12, v1, 2, s52")
    A("s_add_u32 s52, s52, 256")
    lds_wait(A, 10, "s52", 1, sleep=2)
    A(f"ds_read_b32 v{TMP}, v12")
    A("s_waitcnt lgkmcnt(0)")
    A(f"v_cndmask_b32 v{TMP}, 0, v{TMP}, s[58:59]")
    A(f"v_add_f32 v4, v4, v{TMP}")
    A(f"v_cvt_pk_bf16_f32 v{OUT[1]}, v4, v5")
    A(last[-1])
    A.label("L_cdone")
    A("s_waitcnt vmcnt(0)")
    stamp(A, 11)
    A("s_cmp_ge_u32 s99, 24")
    A("s_cbranch_scc1 L_bdone")
    A(f"v_mov_b32 v10, {L_SYNC+12}")
    A("v_mov_b32 v11, 1")
    A("s_mov_b64 exec, 1")
    A("ds_add_rtn_u32 v12, v10, v11")
    A("s_mov_b64 exec, -1")
    A("s_lshl_b32 s52, s98, 4")
    A("s_add_u32 s52, s52, s99")
    A("s_lshl_b32 s52, s52, 7")
    A(f"s_add_u32 s52, s52, {F4+8*128:#x}")
    A("s_waitcnt lgkmcnt(0)")
    A("v_readfirstlane_b32 s53, v12")
    A("s_cmp_eq_u32 s53, 3")
    A("s_cbranch_scc0 L_bend")
    set_flag(A, 10, "s52")
    A("s_branch L_bend")
    A.label("L_bdone")


def role_post(A):
    SQ, SO = 32, 36
    A.label("L_post")
    A("s_setprio 0")
    A("s_and_b32 s48, s48, 3")
    if Opt.p3:
        A("s_mul_i32 s50, s99, 3")
        A("s_sub_u32 s50, s50, 73")
        A("s_lshl_b32 s51, s99, 2")
        A("s_add_u32 s51, s51, 8")
    else:
        A("s_sub_u32 s50, s99, 24")
        A("s_lshl_b32 s50, s50, 2")
        A("s_lshl_b32 s51, s99, 1")
        A("s_add_u32 s51, s51, 24")
    A("s_cmp_ge_u32 s99, 24")
    A("s_cselect_b32 s50, s50, s51")
    A("s_mul_i32 s49, s98, 40")
    A("s_add_u32 s49, s49, s50")
    A("s_add_u32 s49, s49, s48")
    A("s_and_b32 s50, s49, 31")
    A("s_lshr_b32 s51, s49, 5")
    A("v_lshrrev_b32 v2, 3, v1")
    A("v_and_b32 v3, 7, v1")
    A(f"v_mul_u32_u24 v4, {Opt.pit}, v2")
    A("v_lshl_add_u32 v4, v3, 4, v4")
    A(f"s_mul_i32 s52, s51, {64*Opt.pit}")
    A("s_lshl_b32 s53, s50, 7")
    A("s_add_u32 s52, s52, s53")
    A(f"s_add_u32 s52, s52, {WS_YT:#x}")
    A("s_mul_i32 s56, s48, 8320")
    A(f"s_add_u32 s56, s56, {B_PRE}")
    A("s_lshr_b32 s54, s50, 3")
    A("s_lshl_b32 s54, s54, 9")
    A("s_bfe_u32 s55, s50, 0x20001")
    A("s_lshl_b32 s55, s55, 3")
    A("s_add_u32 s54, s54, s55")
    A("s_and_b32 s55, s50, 1")
    A("s_lshl_b32 s55, s55, 1")
    A("s_add_u32 s54, s54, s55")
    A("v_and_b32 v5, 3, v2")
    A("v_lshrrev_b32 v6, 2, v2")
    A("v_lshl_add_u32 v5, v5, 5, v6")
    A("v_mul_u32_u24 v6, 1280, v5")
    A("v_lshlrev_b32 v7, 1, v6")
    A("v_lshl_add_u32 v6, v3, 4, v6")
    A("v_lshl_add_u32 v7, v3, 4, v7")
    A("s_mul_i32 s54, s54, 1280")
    A("s_lshl_b32 s53, s51, 7")
    A("s_lshl_b32 s55, s54, 1")
    A("s_add_u32 s54, s54, s53")
    A("s_add_u32 s55, s55, s53")
    A("s_add_u32 s55, s55, 1280")
    srd(A, SQ, S_BQ, NB_X)
    srd(A, SO, S_OUT, NB_OUT)
    QR, YR = 16, 48
    rows = [0, 4, 128, 132, 256, 260, 384, 388]
    for i in range(8):
        A(f"s_add_u32 s57, s54, {rows[i]*1280}")
        A(f"buffer_load_dwordx4 {vr(QR+4*i,4)}, v6, s[{SQ}:{SQ+3}], s57 offen{Opt.ntq}")
    A("s_mov_b32 s59, 0xffff0000")
    QF = 128
    A("s_waitcnt vmcnt(0)")
    for i in range(32):
        A(f"v_lshlrev_b32 v{QF+2*i}, 16, v{QR+i}")
        A(f"v_and_b32 v{QF+2*i+1}, s59, v{QR+i}")
    A("s_lshl_b32 s57, s98, 4")
    A("s_sub_u32 s58, s57, 16")
    A("v_min_u32 v12, 47, v1")
    A("v_add_u32 v12, s58, v12")
    A("v_max_i32 v12, 0, v12")
    A("v_min_u32 v12, 127, v12")
    if Opt.gate:
        A(f"v_add_u32 v12, {(F4-WS_FLAG)//128}, v12")
        A("s_lshl_b32 s58, s98, 6")
        A(f"s_add_u32 s58, s58, {(F3-WS_FLAG)//128 - 48*4}")
        A("v_lshl_add_u32 v13, v1, 2, s58")
        A(f"v_cmp_lt_u32 vcc, {63-Opt.gate}, v1")
        A("v_cndmask_b32 v12, v12, v13, vcc")
    A("v_lshlrev_b32 v12, 7, v12")
    A("s_add_u32 s57, s57, s99")
    A("s_lshl_b32 s57, s57, 7")
    A(f"s_add_u32 s57, s57, {F4-24*128:#x}")
    A(f"s_mov_b32 s58, {WS_FLAG if Opt.gate else F4:#x}")
    Lx, Lq, Ld = A.newlabel("L_p7"), A.newlabel("L_pq"), A.newlabel("L_pd")
    A("s_cmp_ge_u32 s99, 24")
    A(f"s_cbranch_scc0 {Lq}")
    A("s_barrier")
    A("s_cmp_eq_u32 s48, 3")
    A(f"s_cbranch_scc0 {Lx}")
    set_flag(A, 8, "s57")
    poll(A, 14, 12, "s58", sleep=Opt.f4s)
    A.label(Lx)
    A("s_barrier")
    A(f"s_branch {Ld}")
    A.label(Lq)
    A("s_barrier")
    A("s_cmp_eq_u32 s48, 0")
    A(f"s_cbranch_scc0 {Lx}")
    poll(A, 14, 12, "s58", sleep=Opt.f4s)
    A(f"s_branch {Lx}")
    A.label(Ld)
    if Opt.dB:
        A(f"s_sleep {Opt.dB}")
    stamp(A, 12)
    for i in range(8):
        A(f"v_xor_b32 v8, {16*i}, v4")
        A(f"s_add_u32 m0, s56, {1024*i}")
        A(f"buffer_load_dwordx4 v8, s[{SWS}:{SWS+3}], s52 offen{SC} lds")
        if i < 7:
            A(f"s_add_u32 s52, s52, {8*Opt.pit}")
    A("v_xor_b32 v8, v2, v3")
    A("v_lshlrev_b32 v8, 4, v8")
    A("v_lshl_add_u32 v8, v3, 10, v8")
    A("v_add_u32 v8, s56, v8")
    A("s_waitcnt vmcnt(0)")
    for c in range(8):
        A(f"ds_read_b128 {vr(YR+4*c,4)}, v8 offset:{128*c}")
    A("s_waitcnt lgkmcnt(0)")
    stamp(A, 13)
    YF, OUT = 80, 96
    for i in range(8):
        for c in range(8):
            if i & 1:
                A(f"v_and_b32 v{YF+c}, s59, v{YR+4*c+i//2}")
            else:
                A(f"v_lshlrev_b32 v{YF+c}, 16, v{YR+4*c+i//2}")
        for c in range(0, 8, 2):
            A(f"v_pk_mul_f32 {vr(YF+c,2)}, {vr(YF+c,2)}, {vr(QF+8*i+c,2)}")
        for k in range(4):
            A(f"v_cvt_pk_bf16_f32 v{OUT+4*i+k}, v{YF+2*k}, v{YF+2*k+1}")
        A(f"s_add_u32 s57, s55, {rows[i]*2560}")
        A(f"buffer_store_dwordx4 {vr(OUT+4*i,4)}, v7, s[{SO}:{SO+3}], s57 offen{Opt.oscb}")
    stamp(A, 14)


def build():
    A = Asm()
    k = NAME + "_kernel"
    A.raw(f".globl {k}")
    A.raw(".p2align 8")
    A.raw(f".type {k},@function")
    A.label(k)
    if Opt.hold:
        A("s_memrealtime s[64:65]")
    load_kernargs(A)
    if Opt.lite:
        A("s_memrealtime s[64:65]")
    elif not Opt.hp:
        if Opt.rt:
            for k_ in range(2, 15):
                A(f"s_mov_b32 s{64+2*k_}, 0")
            stamp(A, 0, True)
        else:
            stamp_init(A)
        if Opt.rt:
            stamp(A, 1)
    A("v_lshrrev_b32 v2, 6, v0")
    A("v_and_b32 v1, 63, v0")
    A("v_readfirstlane_b32 s100, v2")
    A("s_and_b32 s98, s2, 7")
    A("s_lshr_b32 s99, s2, 3")
    A("s_cmp_ge_u32 s2, 192")
    A("s_cbranch_scc1 L_b")
    A("s_and_b32 s49, s2, 3")
    A("s_lshl_b32 s49, s49, 2")
    A("s_and_b32 s50, s99, 3")
    A("s_add_u32 s49, s49, s50")
    A("s_bfe_u32 s52, s2, 0x10002")
    A("s_lshr_b32 s53, s2, 5")
    A("s_lshl_b32 s54, s52, 1")
    A("s_add_u32 s54, s54, s53")
    A("s_lshl_b32 s55, s52, 2")
    A("s_add_u32 s55, s55, s53")
    A("s_sub_u32 s55, s55, 2")
    A("s_cmp_lt_u32 s2, 64")
    A("s_cselect_b32 s50, s54, s55")
    A("s_cselect_b32 s51, 1, 0")
    A("s_and_b32 s48, s100, 3")
    A("s_cmp_ge_u32 s100, 4")
    A("s_cbranch_scc1 L_c")
    role_loader(A)
    A.label("L_c")
    role_compute(A)
    A.label("L_b")
    A("s_cmp_ge_u32 s2, 256")
    A("s_cbranch_scc1 L_exit")
    A("s_mov_b32 s48, s100")
    A("s_cmp_ge_u32 s48, 5")
    A("s_cbranch_scc1 L_help")
    role_pre(A)
    A("s_branch L_bconv")
    A.label("L_help")
    role_helper(A)
    A.label("L_bconv")
    role_conv(A)
    A(f"s_cmp_lt_u32 s48, {5 if Opt.p3 else 4}")
    A("s_cbranch_scc1 L_bend")
    role_post(A)
    A.label("L_bend")
    end_wave(A, "b")
    A.label("L_exit")
    A("s_endpgm")
    A.label("L_code_end")
    head = [
        "; Hedgehog linear attention (cols 0..639) + H3 long convolution (cols 640..1279), one persistent launch.",
        "; Written with the generator script gen/f21.py (hand-scheduled instruction lists, own wait-state pass).",
        "; kernarg (s[0:1]): x, wqkv, w_phi, wo, q, k, v, shift_k, ssm_k, ssm_D, out, debug, ws (8 bytes each).",
        "; 256 workgroups x 8 waves, one per CU; wg = 8 i + x:",
        ";   i 0..7   Q : 128x160 tile of x@Wq -> pq (bf16) ; then 4 conv channels ; i<4 also a wo tile, i>=4 gate tiles",
        ";   i 8..23  KV: 128x160 tile of x@[Wk|Wv] -> softmax features -> partial phi_k^T [v 1] ; o = num/den ; wo tile",
        ";   i 24..31 B : shift conv * v (transposed), wo in fragment order, 6 conv channels, gate tiles",
        "; waves 0..3 of Q/KV stream operands (LDS DMA), waves 4..7 compute.  Hand-offs between workgroups go through",
        "; d_ws with write-through stores and one flag line per producer; flags carry this launch's tag (epoch word + 1,",
        "; published in d_debug).  The long convolution is a polyphase Toeplitz product on the matrix cores.",
        "; @launch grid=(256,1,1) block=(512,1,1) lds=163840"]
    txt = "\n".join(head) + '\n.amdgcn_target "amdgcn-amd-amdhsa--gfx950"\n.text\n' + A.text()
    txt += f'''.section .rodata,"a"
.p2align 6
.amdhsa_kernel {k}
  .amdhsa_next_free_vgpr 256
  .amdhsa_next_free_sgpr 102
  .amdhsa_accum_offset 256
  .amdhsa_group_segment_fixed_size 0
  .amdhsa_kernarg_size 104
  .amdhsa_user_sgpr_count 2
  .amdhsa_user_sgpr_kernarg_segment_ptr 1
  .amdhsa_system_sgpr_workgroup_id_x 1
.end_amdhsa_kernel
'''
    return txt


if __name__ == "__main__":
    args = sys.argv[2:]
    Ctx.stamps = "stamps" in args
    Opt.rot = "norot" not in args
    Opt.codepf = "nocodepf" not in args
    for a in args:
        if a.startswith("probe="):
            Opt.probe = tuple(int(x) for x in a[6:].split(","))
        if a.startswith("holdwg="):
            Opt.holdwg = int(a[7:])
        if a.startswith("osc="):
            Opt.osc = a[4:].replace("_", " ")
        if a.startswith("oscb="):
            Opt.oscb = a[5:].replace("_", " ")
        if a.startswith("gpf="):
            Opt.gpf = int(a[4:])
        if a.startswith("gpfd="):
            Opt.gpfd = int(a[5:])
        if a.startswith("rotA="):
            Opt.rotA = int(a[5:], 16)
        if a.startswith("rotB="):
            Opt.rotB = int(a[5:], 16)
        if a == "fake16":
            Opt.fake16 = True
        if a.startswith("qdelay="):
            Opt.qdelay = int(a[7:])
        if a.startswith("bpos="):
            Opt.bpos = int(a[5:])
        if a == "lidle":
            Opt.lidle = True
        if a == "qwait":
            Opt.qwait = True
        if a == "nofwarm":
            Opt.fwarm = False
        if a == "noprog":
            Opt.prog = False
        if a == "dflag":
            Opt.dflag = True
        if a == "lite":
            Opt.lite = True
            Ctx.stamps = True
        if a.startswith("wos="):
            Opt.wos = int(a[4:])
        if a.startswith("R="):
            Opt.R = int(a[2:])
        if a.startswith("hdef="):
            Opt.hdef = int(a[5:])
        if a.startswith("gpf2="):
            Opt.gpf2 = int(a[5:])
        if a.startswith("oahead="):
            Opt.oahead = int(a[7:])
        if a.startswith("hpsel="):
            Opt.hpsel = a[6:]
        if a.startswith("bdelay="):
            Opt.bdelay = int(a[7:])
        if a.startswith("qdel="):
            Opt.qdel = int(a[5:])
        if a == "snake":
            Opt.snake = True
        if a == "wrot":
            Opt.wrot = True
        if a.startswith("wfirst="):
            Opt.wfirst = int(a[7:])
        if a.startswith("wearly="):
            Opt.wearly = int(a[7:])
        if a.startswith("fwat="):
            Opt.fwat = int(a[5:])
        if a.startswith("only="):
            Opt.only = [0, 1, 15] + [int(x) for x in a[5:].split(",")]
        if a.startswith("touch="):
            Opt.touch = int(a[6:])
        if a.startswith("tsh="):
            Opt.tsh = int(a[4:])
        for nm in ("ldw", "ldo", "ldp", "stw", "ntk", "nth", "ntq"):
            if a.startswith(nm + "="):
                setattr(Opt, nm, a[4:].replace("_", " "))
        if a.startswith("wback="):
            Opt.wback = int(a[6:])
        if a.startswith("wthr="):
            Opt.wthr = int(a[5:])
        if a.startswith("wstr="):
            Opt.wstr = int(a[5:])
        if a == "fullout":
            Opt.fullout = True
        if a == "noearly":
            Opt.noearly = True
        if a.startswith("lprio="):
            Opt.lprio = int(a[6:])
        if a.startswith("lprio0="):
            Opt.lprio0 = int(a[7:])
        if a.startswith("wmid="):
            Opt.wmid = int(a[5:])
        if a.startswith("pfw="):
            Opt.pfw = [int(c) for c in a[4:]]
            Opt.gpf2 = 0
        if a.startswith("pfx="):
            Opt.pfx = [int(c) for c in a[4:]]
            Opt.gpf2 = 0
        if a.startswith("pfm="):
            Opt.pfm = [int(c, 16) for c in a[4:]]
        if a.startswith("wbf="):
            Opt.wbf = int(a[4:])
        if a.startswith("qlate="):
            Opt.qlate = int(a[6:])
        if a.startswith("wpk="):
            Opt.wpk = int(a[4:])
        for nm in ("f0s", "tgs", "f2s", "f4s", "tagl", "pit", "p3", "pqsync", "qpipe", "lag", "f2all", "f1all", "fww", "lws", "hq", "jit", "jitp", "mdelay", "oa", "oe", "rot4", "wdel", "al", "alr", "gate", "lean", "alm", "wsh"):
            if a.startswith(nm + "="):
                setattr(Opt, nm, int(a.split("=")[1]))
        if a.startswith("bwarm="):
            Opt.bwarm = int(a[6:])
        if a.startswith("pft="):
            v_ = a[4:]
            Opt.pft = [(int(v_[i]), v_[i + 1]) for i in range(0, len(v_), 2)]
            Opt.gpf2 = 0
        if a.startswith("par="):
            Opt.par = int(a[4:], 16)
        if a.startswith("obar="):
            Opt.obar = [int(x) for x in a[5:].split(",")]
        if a.startswith("dlt="):
            Opt.dlt = int(a[4:], 16)
            Opt.rot4 = 1
        if a == "rt":
            Opt.rt = True
        if a.startswith("hp="):
            Opt.hp = int(a[3:])
            Ctx.stamps = True
        if a.startswith("hold="):
            Opt.hold = int(a[5:])
        if a.startswith("dA="):
            Opt.dA = int(a[3:])
        if a.startswith("dB="):
            Opt.dB = int(a[3:])
        if a == "nowomall":
            Opt.womall = False
        if a == "noppoll":
            Opt.ppoll = False
        if a.startswith("psleep="):
            Opt.psleep = int(a[7:])
        if a.startswith("wopf="):
            Opt.wopf = a[5:]
    for a in args:
        if a.startswith("LA="):
            Opt.LA = int(a[3:])
    txt = build()
    if Opt.al:
        from align import align
        txt, np_, nn_ = align(txt, minrun=Opt.alr, mf=Opt.alm)
        print("aligned: promoted", np_, "nops", nn_, file=sys.stderr)
    open(sys.argv[1], "w").write(txt)
```
